```python
import torch

def _softmax(x, axis=-1):
    return torch.softmax(x, dim=axis)
def _gelu(x):
    return torch.nn.functional.gelu(x, approximate="tanh")
def _silu(x):
    return torch.nn.functional.silu(x)
def _sigmoid(x):
    return torch.sigmoid(x)
def _layernorm(x, axis=-1, eps=1e-5):
    m = x.mean(dim=axis, keepdim=True)
    v = x.var(dim=axis, keepdim=True, unbiased=False)
    return (x - m) / torch.sqrt(v + eps)
def _scatter_add(tgt, idx, src, axis=0):
    return tgt.clone().index_add_(axis, idx, src)
def _segment_sum(src, seg, n):
    out = torch.zeros((n,) + src.shape[1:], dtype=src.dtype)
    return out.index_add_(0, seg, src)
def _pad(x, pw):
    flat = tuple(v for pair in reversed(pw) for v in pair)
    return torch.nn.functional.pad(x, flat)

kernel_name = 'sequential_preLN__gqa_block_cached__geglu_ffn__decode'

def setup_inputs():

    _w = (lambda a: (lambda t: t.to(torch.bfloat16) if t.is_floating_point() else t)(torch.as_tensor(a)))
    def _A_setup():
        B, Sq, D = 8, 1, 512
        Hq, Hkv, Sk, Dh = 32, 8, 8192, 128
        assert Hq % Hkv == 0, (Hq, Hkv)
        return {
            "x": _w((lambda *s: torch.randn(*s, dtype=torch.bfloat16) * 0.05)(B, Sq, D)),
            "k_cache": _w((lambda *s: torch.randn(*s, dtype=torch.bfloat16) * 3.2)(B, Hkv, Sk, Dh)),
            "v_cache": _w((lambda *s: torch.randn(*s, dtype=torch.bfloat16) * 0.4)(B, Hkv, Sk, Dh)),
            "wq": _w((lambda *s: torch.randn(*s, dtype=torch.bfloat16) * 3.2)(D, Hq * Dh) * (D ** -0.5)),
            "wo": _w((lambda *s: torch.randn(*s, dtype=torch.bfloat16) * 0.4)(Hq * Dh, D) * ((Hq * Dh) ** -0.5)),
        }
    _A_in = _A_setup()

    def _B_setup():
        B, S, D, F = 8, 1, 512, 1792
        return {
            "x": _w((lambda *s: torch.randn(*s, dtype=torch.bfloat16) * 0.05)(B, S, D)),
            "w_gate": _w((lambda *s: torch.randn(*s, dtype=torch.bfloat16) * 0.05)(D, F)),
            "w_up": _w((lambda *s: torch.randn(*s, dtype=torch.bfloat16) * 0.05)(D, F)),
            "w_down": _w((lambda *s: torch.randn(*s, dtype=torch.bfloat16) * 0.05)(F, D)),
        }
    _B_in = _B_setup()

    return {
        "A_x": _A_in["x"],
        "A_k_cache": _A_in["k_cache"],
        "A_v_cache": _A_in["v_cache"],
        "A_wq": _A_in["wq"],
        "A_wo": _A_in["wo"],
        "B_x": _B_in["x"],
        "B_w_gate": _B_in["w_gate"],
        "B_w_up": _B_in["w_up"],
        "B_w_down": _B_in["w_down"],
    }

def reference(A_x, A_k_cache, A_v_cache, A_wq, A_wo, B_x, B_w_gate, B_w_up, B_w_down):
    def _A_ref(x, k_cache, v_cache, wq, wo):
        B, Sq, D = x.shape
        Hq, Dh = 32, 128
        Hkv = k_cache.shape[1]
        rep = Hq // Hkv
        q = (lambda x, *d: x.permute(*d))((x @ wq).reshape(B, Sq, Hq, Dh), 0, 2, 1, 3)
        k = (lambda x, n, axis: torch.repeat_interleave(x, n, dim=axis))(k_cache, rep, axis=1)
        v = (lambda x, n, axis: torch.repeat_interleave(x, n, dim=axis))(v_cache, rep, axis=1)
        scores = torch.einsum("bhqd,bhkd->bhqk", q, k) * (Dh ** -0.5)
        p = _softmax(scores, axis=-1)
        o = torch.einsum("bhqk,bhkd->bhqd", p, v)
        return (lambda x, *d: x.permute(*d))(o, 0, 2, 1, 3).reshape(B, Sq, Hq * Dh) @ wo

    def _B_ref(x, w_gate, w_up, w_down):
        return (_gelu(x @ w_gate) * (x @ w_up)) @ w_down

    x = A_x
    h = x + _A_ref(_layernorm(x, axis=-1), A_k_cache, A_v_cache, A_wq, A_wo)
    h2 = h + _B_ref(_layernorm(h, axis=-1), B_w_gate, B_w_up, B_w_down)
    return h2
```

```python
import sys
NAME='sequential_preLN__gqa_block_cached__geglu_ffn__decode'
K=NAME+'_kernel'

class Cfg:
    diag=False
    NG=6
    wlate=False
    spin=1<<17

QB=0x0
CLR=0x100000
OP=0x100000
WP=0x180000
MISC=0x200000
HB=MISC
AB=MISC+0x2000
ML=MISC+0xA000
STAMP=0x10000000
L_CNT=0
L_MLW=64
L_QL=256
L_XN=1280
XNS=1040
L_XO=9600
XOS=272
L_DP=11776
L_OW=19968
L_ST=28160
L_WA=28672
L_WB=L_WA+16384
L_WC=L_WB+16384
LDS_BYTES=L_WC+57344

LOG2E=0x3fb8aa3b
SCALE=0x3db504f3

def gen(cfg):
    L=[]
    def A(s):
        for x in s.split('\n'):
            L.append(x)
    lab=[0]
    def newlab(p):
        lab[0]+=1
        return 'L_%s_%d'%(p,lab[0])
    nst=[0]
    X,KP,VP,WQ,WO,BX,WG,WU,WD,OUT,DBG,WS=['s[%d:%d]'%(16+2*i,17+2*i) for i in range(12)]
    def stamp(i):
        if cfg.diag:
            A('s_memrealtime s[%d:%d]'%(72+2*i,73+2*i))
    def pack_stamps(n,vt):
        A('s_waitcnt lgkmcnt(0)')
        A('v_mov_b32 v%d, 0'%vt)
        for i in range(n):
            A('v_writelane_b32 v%d, s%d, %d'%(vt,72+2*i,i))
    def dump_stamps(n,base,vt):
        if not cfg.diag: return
        pack_stamps(n,vt)
        A('v_lshlrev_b32 v%d, 2, v0'%(vt+1))
        A('ds_read_b32 v%d, v%d offset:%d'%(vt+2,vt+1,L_ST))
        A('s_lshl_b32 s66, s2, 8\ns_add_u32 s66, s66, %d'%(STAMP))
        A('v_add_u32 v%d, s66, v%d'%(vt+1,vt+1))
        A('s_mov_b64 exec, 0xffff')
        A('s_waitcnt lgkmcnt(0)')
        A('global_store_dword v%d, v%d, %s'%(vt+1,vt+2,WS))
        A('global_store_dword v%d, v%d, %s offset:64'%(vt+1,vt,WS))

    A('; @launch grid=(256,1,1) block=(512,1,1) lds=%d'%LDS_BYTES)
    A('.amdgcn_target "amdgcn-amd-amdhsa--gfx950"\n.text\n.globl %s\n.p2align 8\n.type %s,@function\n%s:'%(K,K,K))
    A('s_cmp_ge_u32 s2, 256\ns_cbranch_scc1 L_end')
    A('s_load_dwordx16 s[16:31], s[0:1], 0')
    A('s_load_dwordx8 s[32:39], s[0:1], 64')
    stamp(0)
    A('v_lshrrev_b32 v1, 6, v0')
    A('v_and_b32 v0, 63, v0')
    A('v_readfirstlane_b32 s52, v1')
    A('s_and_b32 s48, s2, 7\ns_lshr_b32 s49, s2, 3\ns_lshr_b32 s50, s49, 2\ns_and_b32 s51, s49, 3')
    A('s_mov_b32 s58, 0x%x\ns_mov_b32 s59, 0x%x\ns_mov_b32 s60, 0xffff0000'%(SCALE,LOG2E))
    A('v_mov_b32 v2, 0\nv_mov_b32 v3, 0')
    A('ds_write_b64 v2, v[2:3] offset:%d'%L_CNT)
    A('s_waitcnt lgkmcnt(0)')
    A('s_barrier')
    A('s_cmp_ge_u32 s52, 4\ns_cbranch_scc1 L_service')

    NG=cfg.NG
    RB=256-NG*32
    A('s_lshl_b32 s54, s50, 3\ns_add_u32 s54, s54, s48\ns_lshl_b32 s54, s54, 2\ns_add_u32 s54, s54, s51\ns_lshl_b32 s54, s54, 19')
    A('s_add_u32 s40, s18, s54\ns_addc_u32 s41, s19, 0\ns_and_b32 s41, s41, 0xffff\ns_mov_b32 s42, 0x80000\ns_mov_b32 s43, 0x20000')
    A('s_add_u32 s44, s20, s54\ns_addc_u32 s45, s21, 0\ns_and_b32 s45, s45, 0xffff\ns_mov_b32 s46, 0x80000\ns_mov_b32 s47, 0x20000')
    A('s_lshl_b32 s53, s52, 12')
    A('v_lshlrev_b32 v1, 4, v0')
    A('v_lshrrev_b32 v2, 4, v0\nv_lshlrev_b32 v2, 6, v2\nv_and_b32 v3, 3, v0\nv_lshl_add_u32 v2, v3, 4, v2')
    A('v_bfe_u32 v3, v0, 2, 2\nv_lshl_add_u32 v2, v3, 8, v2')
    A('s_mov_b32 s56, 0x05040100\ns_mov_b32 s57, 0x07060302')
    def issue_group(G):
        t=G//16; gi=G%16
        base=RB+(G%NG)*32
        srd='s[40:43]' if t==0 else 's[44:47]'
        vo='v2' if t==0 else 'v1'
        for h in range(2):
            A('s_add_u32 s54, s53, %d'%((2*gi+h)*16384))
            for j in range(4):
                r=base+(h*4+j)*4
                A('buffer_load_dwordx4 v[%d:%d], %s, %s, s54 offen offset:%d nt'%(r,r+3,vo,srd,j*1024))
    for G in range(NG): issue_group(G)
    stamp(1)
    A('s_barrier')
    A('ds_read_b128 v[4:7], v1 offset:%d'%L_QL)
    stamp(2)
    A('v_mov_b32 v14, 0xff800000')
    A('s_waitcnt lgkmcnt(0)')
    def wait_group(G):
        rem=min(NG-1,31-G)*8
        A('s_waitcnt vmcnt(%d)'%rem)
    for G in range(16):
        base=RB+(G%NG)*32
        wait_group(G)
        for i in range(8):
            A('v_mfma_f32_16x16x32_bf16 v[%d:%d], v[%d:%d], v[4:7], 0'%(32+4*i,35+4*i,base+4*i,base+4*i+3))
        issue_group(G+NG)
        for be in range(4):
            for step in range(3):
                for e in range(2):
                    D=32+4*(2*be+e)
                    S=8+e
                    src0=D+((be+step+1)&3)
                    src1=(D+be) if step==0 else S
                    A('v_add_f32_dpp v%d, v%d, v%d row_ror:%d row_mask:0xf bank_mask:0x%x'%(S,src0,src1,12-4*step,1<<be))
                A('s_nop 0')
        A('v_cvt_pk_bf16_f32 v10, v8, v9')
        A('v_lshlrev_b32 v11, 16, v10\nv_and_b32 v12, s60, v10')
        A('v_mul_f32 v11, s58, v11\nv_mul_f32 v12, s58, v12')
        A('v_cvt_pk_bf16_f32 v%d, v11, v12'%(16+G))
        A('v_lshlrev_b32 v11, 16, v%d\nv_and_b32 v12, s60, v%d'%(16+G,16+G))
        A('v_max3_f32 v14, v14, v11, v12')
    stamp(3)
    def wave_red(op,r,t):
        A('s_nop 1')
        A('%s_dpp v%d, v%d, v%d row_ror:4 row_mask:0xf bank_mask:0xf'%(op,r,r,r))
        A('s_nop 1')
        A('%s_dpp v%d, v%d, v%d row_ror:8 row_mask:0xf bank_mask:0xf'%(op,r,r,r))
        A('v_mov_b32 v%d, v%d\ns_nop 1\nv_permlane16_swap_b32 v%d, v%d\n%s v%d, v%d, v%d'%(t,r,r,t,op,r,r,t))
        A('v_mov_b32 v%d, v%d\ns_nop 1\nv_permlane32_swap_b32 v%d, v%d\n%s v%d, v%d, v%d'%(t,r,r,t,op,r,r,t))
    wave_red('v_max_f32',14,13)
    A('v_mov_b32 v15, 0')
    for G in range(16):
        A('v_lshlrev_b32 v8, 16, v%d\nv_and_b32 v9, s60, v%d'%(16+G,16+G))
        A('v_sub_f32 v8, v8, v14\nv_sub_f32 v9, v9, v14')
        A('v_mul_f32 v8, s59, v8\nv_mul_f32 v9, s59, v9')
        A('v_exp_f32 v8, v8\nv_exp_f32 v9, v9\ns_nop 0')
        A('v_cvt_pk_bf16_f32 v%d, v8, v9'%(16+G))
        A('v_add_f32 v15, v15, v8\nv_add_f32 v15, v15, v9')
    wave_red('v_add_f32',15,13)
    A('s_lshl_b32 s54, s52, 5')
    A('v_lshlrev_b32 v3, 3, v0\nv_add_u32 v3, s54, v3')
    A('s_mov_b64 exec, 0xf')
    A('ds_write_b64 v3, v[14:15] offset:%d'%L_MLW)
    A('s_mov_b64 exec, -1')
    A('s_waitcnt lgkmcnt(0)')
    A('s_barrier')
    stamp(4)
    A('s_lshl_b32 s54, s52, 11')
    A('v_and_b32 v3, 3, v0\nv_lshlrev_b32 v3, 9, v3\nv_and_b32 v2, 0x30, v0\nv_add3_u32 v3, v3, v2, s54')
    for G in range(16,32):
        base=RB+(G%NG)*32
        P=16+(G-16)
        A('v_mov_b32 v4, v%d'%P)
        for r in range(1,4):
            A('v_mov_b32_dpp v%d, v%d row_ror:%d row_mask:0xf bank_mask:0xf'%(4+r,P,16-4*r))
        wait_group(G)
        def perms(j):
            T=8+4*(j&1)
            for ii in range(4):
                A('v_perm_b32 v%d, v%d, v%d, s%d'%(T+ii,base+4*(2*ii+1)+(j>>1),base+4*(2*ii)+(j>>1),56+(j&1)))
        perms(0)
        for j in range(8):
            if j<7: perms(j+1)
            else:
                if G+NG<32: issue_group(G+NG)
                else: A('s_nop 1')
            T=8+4*(j&1)
            acc='v[%d:%d]'%(32+4*j,35+4*j)
            A('v_mfma_f32_16x16x32_bf16 %s, v[%d:%d], v[4:7], %s'%(acc,T,T+3,'0' if G==16 else acc))
    A('s_mov_b32 exec_lo, 0x000f000f\ns_mov_b32 exec_hi, 0x000f000f')
    stamp(5)
    for j in range(8):
        if j==6: A('s_nop 3')
        A('ds_write_b128 v3, v[%d:%d] offset:%d'%(32+4*j,35+4*j,L_OW+64*j))
    if cfg.diag:
        A('s_mov_b64 exec, -1')
        A('s_cmp_lg_u32 s52, 0\ns_cbranch_scc1 L_nost')
        pack_stamps(6,8)
        A('v_lshlrev_b32 v9, 2, v0')
        A('ds_write_b32 v9, v8 offset:%d'%L_ST)
        A('L_nost:')
    A('s_waitcnt lgkmcnt(0)')
    A('s_barrier')
    A('s_endpgm')

    A('L_service:')
    A('s_setprio 3')
    A('s_sub_u32 s53, s52, 4')
    A('v_lshlrev_b32 v1, 4, v0')
    A('v_lshrrev_b32 v2, 5, v0\ns_lshl_b32 s54, s53, 1\nv_add_u32 v2, s54, v2')
    A('v_and_b32 v3, 31, v0\nv_lshlrev_b32 v3, 4, v3')
    A('v_lshl_add_u32 v4, v2, 10, v3')
    A('v_mul_u32_u24 v5, %d, v2\nv_add_u32 v5, v5, v3'%XNS)
    A('global_load_dwordx4 v[32:35], v4, %s'%X)
    A('global_load_dwordx4 v[36:39], v4, %s offset:512'%X)
    A('v_lshrrev_b32 v6, 1, v0\ns_lshl_b32 s54, s53, 7\nv_add_u32 v6, s54, v6\nv_lshlrev_b32 v6, 13, v6')
    A('v_and_b32 v7, 1, v0\nv_lshl_add_u32 v6, v7, 4, v6')
    A('s_lshl_b32 s54, s48, 10\ns_lshl_b32 s55, s49, 5\ns_add_u32 s54, s54, s55\nv_add_u32 v6, s54, v6')
    A('s_lshl_b32 s66, s53, 12')
    for i in range(4):
        A('s_add_u32 m0, s66, %d'%(L_WA+i*1024))
        if i: A('v_add_u32 v6, 0x40000, v6')
        else: A('s_nop 0')
        A('global_load_lds_dwordx4 v6, %s nt'%WQ)
    A('v_mov_b32 v40, -1\nv_mov_b32 v41, -1\nv_mov_b32 v42, -1\nv_mov_b32 v43, -1')
    A('s_lshl_b32 s54, s2, 12\ns_lshl_b32 s55, s53, 10\ns_add_u32 s54, s54, s55\ns_add_u32 s54, s54, %d'%CLR)
    A('v_add_u32 v6, s54, v1')
    A('global_store_dwordx4 v6, v[40:43], %s sc1'%WS)
    A('s_lshl_b32 s54, s2, 8\ns_lshl_b32 s55, s53, 6\ns_add_u32 s54, s54, s55\ns_add_u32 s54, s54, %d'%MISC)
    A('v_add_u32 v6, s54, v1')
    A('s_mov_b64 exec, 0xf')
    A('global_store_dwordx4 v6, v[40:43], %s sc1'%WS)
    A('s_mov_b64 exec, -1')
    A('v_lshrrev_b32 v8, 4, v0\nv_lshlrev_b32 v8, 8, v8')
    A('v_and_b32 v9, 15, v0\nv_lshl_add_u32 v8, v9, 3, v8')
    A('v_add_u32 v8, s66, v8')
    A('v_and_b32 v9, 7, v0\nv_mul_u32_u24 v9, %d, v9\nv_and_b32 v10, 0x30, v0\ns_lshl_b32 s54, s53, 8\nv_add3_u32 v9, v9, v10, s54'%XNS)
    A('s_lshl_b32 s54, s53, 11\nv_add_u32 v10, s54, v1')
    A('v_mov_b32 v11, 0\nv_mov_b32 v12, 1')

    def half_red_add(r,t):
        for k in (1,2,4,8):
            A('s_nop 1')
            A('v_add_f32_dpp v%d, v%d, v%d row_ror:%d row_mask:0xf bank_mask:0xf'%(r,r,r,k))
        A('v_mov_b32 v%d, v%d\ns_nop 1\nv_permlane16_swap_b32 v%d, v%d\nv_add_f32 v%d, v%d, v%d'%(t,r,r,t,r,r,t))
    def rbf(r):
        A('v_cvt_pk_bf16_f32 v%d, v%d, v%d\nv_lshlrev_b32 v%d, 16, v%d'%(r,r,r,r,r))
    def layernorm():
        for i in range(8):
            A('v_lshlrev_b32 v%d, 16, v%d\nv_and_b32 v%d, s60, v%d'%(48+2*i,32+i,49+2*i,32+i))
        A('v_pk_add_f32 v[64:65], v[48:49], v[50:51]\nv_pk_add_f32 v[66:67], v[52:53], v[54:55]')
        A('v_pk_add_f32 v[64:65], v[64:65], v[56:57]\nv_pk_add_f32 v[66:67], v[66:67], v[58:59]')
        A('v_pk_add_f32 v[64:65], v[64:65], v[60:61]\nv_pk_add_f32 v[66:67], v[66:67], v[62:63]')
        A('v_pk_add_f32 v[64:65], v[64:65], v[66:67]\nv_add_f32 v64, v64, v65')
        half_red_add(64,65)
        A('v_mul_f32 v64, 0x3b000000, v64')
        A('v_mov_b32 v66, 0\nv_mov_b32 v67, 0')
        for i in range(8):
            A('v_sub_f32 v68, v%d, v64\nv_sub_f32 v69, v%d, v64'%(48+2*i,49+2*i))
            A('v_fmac_f32 v66, v68, v68\nv_fmac_f32 v67, v69, v69')
        A('v_add_f32 v66, v66, v67')
        half_red_add(66,67)
        A('v_mul_f32 v66, 0x3b000000, v66')
        rbf(64); rbf(66)
        A('v_add_f32 v66, 0x3727c5ac, v66')
        rbf(66)
        A('v_sqrt_f32 v66, v66\ns_nop 0')
        rbf(66)
        A('v_rcp_f32 v66, v66')
        for i in range(8):
            A('v_sub_f32 v68, v%d, v64\nv_sub_f32 v69, v%d, v64'%(48+2*i,49+2*i))
            A('v_cvt_pk_bf16_f32 v68, v68, v69')
            A('v_and_b32 v69, s60, v68\nv_lshlrev_b32 v68, 16, v68')
            A('v_mul_f32 v68, v68, v66\nv_mul_f32 v69, v69, v66')
            A('v_cvt_pk_bf16_f32 v%d, v68, v69'%(32+i))
        A('ds_write_b128 v5, v[32:35] offset:%d'%L_XN)
        A('ds_write_b128 v5, v[36:39] offset:%d'%(L_XN+512))
    def lds_sync(cnt):
        l=newlab('ls')
        A('s_waitcnt lgkmcnt(0)')
        A('s_mov_b64 exec, 1\nds_add_u32 v11, v12 offset:%d\ns_mov_b64 exec, -1'%(L_CNT+4*cnt))
        A('%s:'%l)
        A('ds_read_b32 v13, v11 offset:%d\ns_waitcnt lgkmcnt(0)\nv_readfirstlane_b32 s54, v13\ns_cmp_lt_u32 s54, 4\ns_cbranch_scc1 %s'%(L_CNT+4*cnt,l))
    def gemm16(wreg):
        for st in range(4):
            A('ds_read_b128 v[%d:%d], v9 offset:%d'%(32+4*st,35+4*st,L_XN+64*st))
        for st in range(4):
            A('s_waitcnt lgkmcnt(%d)'%(3-st))
            A('v_mfma_f32_16x16x32_bf16 v[48:51], v[%d:%d], v[%d:%d], %s'%(wreg+4*st,wreg+4*st+3,32+4*st,35+4*st,'0' if st==0 else 'v[48:51]'))
        A('s_nop 7')
        A('ds_write_b128 v10, v[48:51] offset:%d'%L_DP)
    def poll(loads,regs,sleep=0):
        l=newlab('pl'); d=newlab('pd')
        A('s_mov_b32 s61, %d'%cfg.spin)
        A('%s:'%l)
        for x in loads: A(x)
        A('s_waitcnt vmcnt(0)')
        r=list(regs)
        if len(r)==1: A('v_cmp_eq_u32 vcc, -1, v%d'%r[0])
        else:
            if len(r)==2: A('v_max_u32 v13, v%d, v%d'%(r[0],r[1])); r=[]
            else: A('v_max3_u32 v13, v%d, v%d, v%d'%(r[0],r[1],r[2])); r=r[3:]
            while r:
                if len(r)==1: A('v_max_u32 v13, v13, v%d'%r[0]); r=[]
                else: A('v_max3_u32 v13, v13, v%d, v%d'%(r[0],r[1])); r=r[2:]
            A('v_cmp_eq_u32 vcc, -1, v13')
        A('s_cbranch_vccz %s'%d)
        if sleep: A('s_sleep %d'%sleep)
        A('s_sub_u32 s61, s61, 1\ns_cmp_lg_u32 s61, 0\ns_cbranch_scc1 %s'%l)
        A('%s:'%d)
    def flagpoll(voff,execmask):
        l=newlab('fl'); d=newlab('fd')
        A('s_mov_b32 s61, %d\ns_mov_b32 s54, 0x01010101'%cfg.spin)
        A('s_mov_b64 exec, %s'%execmask)
        A('%s:'%l)
        A('global_load_dword v13, v%d, %s sc1\ns_waitcnt vmcnt(0)'%(voff,DBG))
        A('v_cmp_ne_u32 vcc, s54, v13\ns_cbranch_vccz %s'%d)
        A('s_sub_u32 s61, s61, 1\ns_cmp_lg_u32 s61, 0\ns_cbranch_scc1 %s'%l)
        A('%s:'%d)
        A('s_mov_b64 exec, -1')

    A('s_waitcnt vmcnt(6)')
    stamp(1)
    layernorm()
    A('s_waitcnt vmcnt(2)')
    for st in range(4):
        A('ds_read_b64_tr_b16 v[%d:%d], v8 offset:%d'%(80+4*st,81+4*st,L_WA+1024*st))
        A('ds_read_b64_tr_b16 v[%d:%d], v8 offset:%d'%(82+4*st,83+4*st,L_WA+1024*st+128))
    lds_sync(0)
    gemm16(80)
    A('s_waitcnt vmcnt(0)')
    lds_sync(1)
    stamp(2)
    A('s_cmp_lg_u32 s53, 0\ns_cbranch_scc1 L_qdone')
    for w in range(4):
        A('ds_read_b128 v[%d:%d], v1 offset:%d'%(32+4*w,35+4*w,L_DP+2048*w))
    A('v_and_b32 v6, 15, v0\nv_lshlrev_b32 v6, 13, v6\nv_lshrrev_b32 v7, 4, v0\nv_lshl_add_u32 v6, v7, 3, v6')
    A('s_lshl_b32 s54, s48, 10\ns_lshl_b32 s55, s49, 5\ns_add_u32 s54, s54, s55\nv_add_u32 v6, s54, v6')
    A('s_waitcnt lgkmcnt(0)')
    A('v_pk_add_f32 v[32:33], v[32:33], v[36:37]\nv_pk_add_f32 v[34:35], v[34:35], v[38:39]')
    A('v_pk_add_f32 v[40:41], v[40:41], v[44:45]\nv_pk_add_f32 v[42:43], v[42:43], v[46:47]')
    A('v_pk_add_f32 v[32:33], v[32:33], v[40:41]\nv_pk_add_f32 v[34:35], v[34:35], v[42:43]')
    A('v_cvt_pk_bf16_f32 v32, v32, v33\nv_cvt_pk_bf16_f32 v33, v34, v35')
    A('s_mov_b32 exec_lo, 0x00ff00ff\ns_mov_b32 exec_hi, 0x00ff00ff')
    A('global_store_dwordx2 v6, v[32:33], %s sc1'%WS)
    A('s_mov_b64 exec, -1')
    A('s_lshl_b32 s54, s48, 5\nv_lshlrev_b32 v7, 2, v0\nv_add_u32 v7, s54, v7')
    A('s_add_u32 s54, s54, s49\nv_mov_b32 v6, s54')
    A('s_waitcnt vmcnt(0)')
    A('s_mov_b64 exec, 1\nglobal_store_byte v6, v12, %s sc1\ns_mov_b64 exec, -1'%DBG)
    stamp(3)
    A('v_and_b32 v6, 3, v0\nv_lshlrev_b32 v6, 8, v6\nv_lshrrev_b32 v14, 2, v0\nv_lshl_add_u32 v6, v14, 4, v6')
    A('s_lshl_b32 s54, s50, 13\ns_lshl_b32 s55, s48, 10\ns_add_u32 s54, s54, s55\nv_add_u32 v6, s54, v6')
    flagpoll(7,'0xff')
    stamp(4)
    A('global_load_dwordx4 v[32:35], v6, %s sc1\ns_waitcnt vmcnt(0)'%WS)
    A('ds_write_b128 v1, v[32:35] offset:%d'%L_QL)
    stamp(5)
    A('s_waitcnt lgkmcnt(0)')
    A('L_qdone:')
    A('s_setprio 0')

    def weight_dma():
        A('s_lshr_b32 s54, s49, 3\ns_lshl_b32 s55, s48, 2\ns_add_u32 s54, s54, s55\ns_lshl_b32 s54, s54, 17')
        A('s_and_b32 s55, s49, 7\ns_lshl_b32 s55, s55, 7\ns_add_u32 s54, s54, s55\ns_lshl_b32 s55, s53, 5\ns_add_u32 s54, s54, s55')
        A('v_bfe_u32 v6, v0, 3, 2\nv_lshlrev_b32 v6, 5, v6\nv_bfe_u32 v7, v0, 1, 2\nv_lshl_add_u32 v6, v7, 3, v6\nv_lshrrev_b32 v7, 5, v0\nv_add_u32 v6, v6, v7')
        A('v_lshlrev_b32 v6, 10, v6\nv_and_b32 v7, 1, v0\nv_lshl_add_u32 v6, v7, 4, v6\nv_add_u32 v6, s54, v6')
        for i in range(4):
            A('s_add_u32 m0, s66, %d'%(L_WB+i*1024))
            if i: A('v_add_u32 v6, 2048, v6')
            else: A('s_nop 0')
            A('global_load_lds_dwordx4 v6, %s nt'%WO)
        l2=newlab('w2'); le=newlab('we')
        A('s_cmp_eq_u32 s48, 7\ns_cbranch_scc1 %s'%l2)
        A('s_lshl_b32 s54, s48, 5\ns_add_u32 s54, s54, s49\ns_lshl_b32 s54, s54, 4')
        A('s_lshl_b32 s55, s53, 7\nv_add_u32 v6, s55, v0\nv_mul_u32_u24 v6, 3584, v6\nv_add_u32 v6, s54, v6')
        A('v_add_u32 v7, %d, v6'%(64*3584))
        for i,(v,p) in enumerate(((6,WG),(7,WG),(6,WU),(7,WU))):
            A('s_add_u32 m0, s66, %d\ns_nop 0'%(L_WA+i*1024))
            A('global_load_lds_dwordx4 v%d, %s nt'%(v,p))
        A('s_branch %s'%le)
        A('%s:'%l2)
        A('s_mul_i32 s54, s53, 448\nv_lshrrev_b32 v6, 1, v0\nv_add_u32 v6, s54, v6\nv_lshlrev_b32 v6, 10, v6')
        A('v_and_b32 v7, 1, v0\nv_lshl_add_u32 v6, v7, 4, v6\ns_lshl_b32 s54, s49, 5\nv_add_u32 v6, s54, v6')
        A('s_mul_i32 s55, s53, 14336')
        for i in range(14):
            A('s_add_u32 m0, s55, %d'%(L_WC+i*1024))
            if i: A('v_add_u32 v6, 0x8000, v6')
            else: A('s_nop 0')
            A('global_load_lds_dwordx4 v6, %s nt'%WD)
        A('%s:'%le)
    def weight_read():
        for st in range(4):
            A('ds_read_b64_tr_b16 v[%d:%d], v8 offset:%d'%(80+4*st,81+4*st,L_WB+1024*st))
            A('ds_read_b64_tr_b16 v[%d:%d], v8 offset:%d'%(82+4*st,83+4*st,L_WB+1024*st+128))
        l2=newlab('r2'); le=newlab('re')
        A('s_cmp_eq_u32 s48, 7\ns_cbranch_scc1 %s'%l2)
        A('v_lshrrev_b32 v6, 4, v0\nv_lshlrev_b32 v6, 7, v6\nv_bfe_u32 v7, v0, 2, 2\nv_lshl_add_u32 v6, v7, 4, v6')
        A('v_and_b32 v7, 1, v0\nv_lshl_add_u32 v6, v7, 3, v6\nv_bfe_u32 v7, v0, 1, 1\nv_lshl_add_u32 v6, v7, 11, v6\nv_add_u32 v6, s66, v6')
        for st in range(4):
            A('ds_read_b64_tr_b16 v[%d:%d], v6 offset:%d'%(96+4*st,97+4*st,L_WA+512*st))
            A('ds_read_b64_tr_b16 v[%d:%d], v6 offset:%d'%(98+4*st,99+4*st,L_WA+512*st+64))
        A('s_branch %s'%le)
        A('%s:'%l2)
        A('v_lshrrev_b32 v6, 4, v0\nv_lshlrev_b32 v6, 9, v6\nv_bfe_u32 v7, v0, 1, 1\nv_lshl_add_u32 v6, v7, 8, v6\nv_bfe_u32 v7, v0, 2, 2\nv_lshl_add_u32 v6, v7, 5, v6')
        A('v_and_b32 v7, 1, v0\nv_lshl_add_u32 v6, v7, 3, v6\ns_mul_i32 s55, s53, 14336\ns_add_u32 s55, s55, %d\nv_add_u32 v6, s55, v6'%L_WC)
        for t in range(7):
            for tt in range(2):
                r=96+8*t+4*tt
                A('ds_read_b64_tr_b16 v[%d:%d], v6 offset:%d'%(r,r+1,2048*t+16*tt))
                A('ds_read_b64_tr_b16 v[%d:%d], v6 offset:%d'%(r+2,r+3,2048*t+16*tt+128))
            A('s_waitcnt lgkmcnt(0)')
        A('%s:'%le)
        A('s_waitcnt lgkmcnt(0)')

    A('s_barrier')
    weight_dma()
    A('v_and_b32 v6, 3, v0\nv_lshlrev_b32 v6, 2, v6\nv_lshrrev_b32 v7, 4, v0\nv_add_u32 v6, v6, v7\nv_lshlrev_b32 v6, 1, v6')
    A('s_lshl_b32 s54, s2, 5\nv_add_u32 v6, s54, v6')
    A('global_load_ushort v16, v6, %s'%X)
    A('s_waitcnt vmcnt(0)')
    A('v_lshlrev_b32 v16, 16, v16')
    weight_read()
    A('v_lshlrev_b32 v7, 2, v0')
    flagpoll(7,'-1')
    A('v_and_b32 v6, 31, v0\nv_lshlrev_b32 v6, 4, v6\ns_lshl_b32 s54, s53, 9\nv_add_u32 v17, s54, v6')
    A('s_lshl_b32 s54, s48, 2\ns_add_u32 s54, s54, s53\ns_lshl_b32 s54, s54, 5\ns_add_u32 s54, s54, s49\ns_lshl_b32 s54, s54, 9\ns_add_u32 s54, s54, %d\nv_add_u32 v18, s54, v6'%OP)
    A('s_lshr_b32 s54, s49, 3\ns_lshl_b32 s55, s48, 2\ns_add_u32 s67, s54, s55\ns_lshl_b32 s54, s67, 14\ns_add_u32 s54, s54, %d'%OP)
    A('v_lshl_add_u32 v19, v2, 11, v6\nv_add_u32 v19, s54, v19')
    A('v_mul_u32_u24 v20, %d, v2\nv_lshrrev_b32 v7, 1, v6\nv_add_u32 v20, v20, v7'%XOS)
    A('v_and_b32 v21, 7, v0\nv_mul_u32_u24 v21, %d, v21\nv_and_b32 v7, 0x30, v0\nv_add_u32 v21, v21, v7'%XOS)
    A('s_and_b32 s54, s49, 7\ns_lshl_b32 s54, s54, 2\ns_add_u32 s54, s54, s53\ns_lshl_b32 s54, s54, 5\ns_add_u32 s54, s54, s67\ns_lshl_b32 s54, s54, 6\ns_add_u32 s54, s54, %d'%WP)
    A('v_and_b32 v22, 7, v0\nv_lshlrev_b32 v22, 16, v22\nv_add3_u32 v22, v22, v7, s54')
    A('s_lshl_b32 s54, s2, 11\ns_add_u32 s54, s54, %d\nv_add_u32 v23, s54, v1'%WP)
    A('v_and_b32 v24, 3, v0\nv_lshlrev_b32 v24, 3, v24\nv_lshrrev_b32 v7, 5, v0\nv_lshl_add_u32 v24, v7, 2, v24\ns_lshl_b32 s54, s2, 5\ns_add_u32 s54, s54, %d\nv_add_u32 v24, s54, v24'%HB)
    A('v_add_u32 v4, %d, v4'%HB)
    A('s_lshl_b32 s54, s50, 3\ns_add_u32 s54, s54, s48\ns_lshl_b32 s54, s54, 7\ns_lshl_b32 s55, s53, 5\ns_add_u32 s54, s54, s55\ns_add_u32 s54, s54, %d'%ML)
    A('v_and_b32 v25, 3, v0\nv_lshlrev_b32 v25, 3, v25\nv_add_u32 v25, s54, v25')
    l2=newlab('a2'); le=newlab('ae')
    A('s_cmp_eq_u32 s48, 7\ns_cbranch_scc1 %s'%l2)
    A('v_bfe_u32 v26, v0, 2, 1\nv_lshlrev_b32 v26, 8, v26\nv_lshrrev_b32 v7, 3, v0\nv_lshl_add_u32 v26, v7, 4, v26\nv_and_b32 v7, 3, v0\nv_lshl_add_u32 v26, v7, 2, v26')
    A('s_lshl_b32 s54, s48, 5\ns_add_u32 s54, s54, s49\ns_lshl_b32 s54, s54, 7\ns_add_u32 s54, s54, %d'%AB)
    A('v_lshrrev_b32 v27, 1, v0\nv_lshlrev_b32 v27, 2, v27\nv_add_u32 v27, s54, v27')
    A('v_mov_b32 v28, 0')
    A('s_branch %s'%le)
    A('%s:'%l2)
    A('v_bfe_u32 v26, v0, 2, 1\nv_lshlrev_b32 v26, 10, v26\nv_bfe_u32 v7, v0, 1, 1\nv_lshl_add_u32 v26, v7, 8, v26\nv_lshrrev_b32 v7, 3, v0\nv_lshl_add_u32 v26, v7, 4, v26\nv_and_b32 v7, 1, v0\nv_lshl_add_u32 v26, v7, 3, v26')
    A('s_mul_i32 s54, s53, 7168\ns_add_u32 s54, s54, %d\nv_add_u32 v27, s54, v1'%(AB+3072))
    A('v_lshrrev_b32 v28, 3, v0\nv_lshlrev_b32 v28, 10, v28\nv_and_b32 v7, 7, v0\nv_lshl_add_u32 v28, v7, 2, v28\ns_lshl_b32 s54, s49, 5\nv_add_u32 v28, s54, v28')
    A('%s:'%le)
    A('v_add_u32 v29, %d, v28'%HB)
    stamp(6)
    A('s_barrier')
    A('v_and_b32 v6, 3, v0\nv_lshlrev_b32 v6, 5, v6\ns_lshl_b32 s54, s53, 3\nv_add_u32 v6, s54, v6')
    A('ds_read_b64 v[32:33], v6 offset:%d\ns_waitcnt lgkmcnt(0)'%L_MLW)
    def quad(op,d,s):
        A('s_nop 1\n%s_dpp v%d, v%d, v%d quad_perm:[1,0,3,2] row_mask:0xf bank_mask:0xf'%(op,d,s,s))
        A('s_nop 1\n%s_dpp v%d, v%d, v%d quad_perm:[2,3,0,1] row_mask:0xf bank_mask:0xf'%(op,d,d,d))
    def comb(m,l,M,Lr):
        quad('v_max_f32',M,m)
        A('v_sub_f32 v40, v%d, v%d\nv_mul_f32 v40, s59, v40\nv_exp_f32 v40, v40\ns_nop 0\nv_mul_f32 v40, v40, v%d'%(m,M,l))
        quad('v_add_f32',Lr,40)
    comb(32,33,34,35)
    A('v_min_u32 v34, -2, v34\nv_min_u32 v35, -2, v35')
    A('s_lshl_b32 s54, s51, 3\nv_add_u32 v6, s54, v25')
    A('s_mov_b64 exec, 1\nglobal_store_dwordx2 v6, v[34:35], %s sc1\ns_mov_b64 exec, -1'%WS)
    poll(['global_load_dwordx2 v[36:37], v25, %s sc1'%WS],[36,37],sleep=4)
    comb(36,37,38,39)
    A('v_sub_f32 v40, v32, v38\nv_mul_f32 v40, s59, v40\nv_exp_f32 v40, v40\nv_rcp_f32 v39, v39\ns_nop 0\nv_mul_f32 v40, v40, v39\ns_nop 0')
    for w in range(4): A('v_readlane_b32 s%d, v40, %d'%(62+w,w))
    stamp(7)
    A('s_setprio 3')
    A('s_barrier')
    for w in range(4):
        A('ds_read_b128 v[%d:%d], v17 offset:%d'%(32+4*w,35+4*w,L_OW+2048*w))
    stamp(8)
    A('s_waitcnt lgkmcnt(0)')
    for r in range(4): A('v_mul_f32 v%d, s62, v%d'%(32+r,32+r))
    for w in range(1,4):
        for r in range(4): A('v_fmac_f32 v%d, s%d, v%d'%(32+r,62+w,32+4*w+r))
    for r in range(4): A('v_min_u32 v%d, -2, v%d'%(32+r,32+r))
    A('s_mov_b32 exec_hi, 0')
    A('global_store_dwordx4 v18, v[32:35], %s sc1'%WS)
    A('s_mov_b64 exec, -1')
    poll(['global_load_dwordx4 v[%d:%d], v19, %s offset:%d sc1'%(48+4*s,51+4*s,WS,512*s) for s in range(4)],list(range(48,64)))
    stamp(9)
    A('v_pk_add_f32 v[48:49], v[48:49], v[52:53]\nv_pk_add_f32 v[50:51], v[50:51], v[54:55]')
    A('v_pk_add_f32 v[56:57], v[56:57], v[60:61]\nv_pk_add_f32 v[58:59], v[58:59], v[62:63]')
    A('v_pk_add_f32 v[48:49], v[48:49], v[56:57]\nv_pk_add_f32 v[50:51], v[50:51], v[58:59]')
    A('v_cvt_pk_bf16_f32 v48, v48, v49\nv_cvt_pk_bf16_f32 v49, v50, v51')
    A('ds_write_b64 v20, v[48:49] offset:%d'%L_XO)
    A('s_waitcnt lgkmcnt(0)\ns_barrier')
    for st in range(4):
        A('ds_read_b128 v[%d:%d], v21 offset:%d'%(32+4*st,35+4*st,L_XO+64*st))
    for st in range(4):
        A('s_waitcnt lgkmcnt(%d)'%(3-st))
        A('v_mfma_f32_16x16x32_bf16 v[48:51], v[%d:%d], v[%d:%d], %s'%(80+4*st,83+4*st,32+4*st,35+4*st,'0' if st==0 else 'v[48:51]'))
    A('s_nop 7')
    for r in range(4): A('v_min_u32 v%d, -2, v%d'%(48+r,48+r))
    A('s_mov_b32 exec_lo, 0x00ff00ff\ns_mov_b32 exec_hi, 0x00ff00ff')
    A('global_store_dwordx4 v22, v[48:51], %s sc1'%WS)
    A('s_mov_b64 exec, -1')
    A('s_cmp_lg_u32 s53, 0\ns_cbranch_scc1 L_rdone')
    poll(['global_load_dwordx4 v[32:35], v23, %s sc1'%WS,'global_load_dwordx4 v[36:39], v23, %s offset:1024 sc1'%WS],list(range(32,40)))
    stamp(10)
    A('v_pk_add_f32 v[32:33], v[32:33], v[36:37]\nv_pk_add_f32 v[34:35], v[34:35], v[38:39]')
    A('s_nop 1\nv_permlane32_swap_b32 v32, v34\nv_permlane32_swap_b32 v33, v35')
    A('v_add_f32 v32, v32, v34\nv_add_f32 v33, v33, v35')
    A('s_nop 1\nv_permlane16_swap_b32 v32, v33\nv_add_f32 v32, v32, v33')
    A('s_nop 1\nv_add_f32_dpp v32, v32, v32 row_ror:4 row_mask:0xf bank_mask:0xf')
    A('s_nop 1\nv_add_f32_dpp v32, v32, v32 row_ror:8 row_mask:0xf bank_mask:0xf')
    rbf(32)
    A('v_add_f32 v32, v32, v16\nv_mov_b32 v33, v32\ns_nop 1\nv_permlane16_swap_b32 v32, v33')
    A('v_cvt_pk_bf16_f32 v32, v32, v33\nv_min_u32 v32, -2, v32')
    A('s_mov_b32 exec_lo, 0xf\ns_mov_b32 exec_hi, 0xf')
    A('global_store_dword v24, v32, %s sc1'%WS)
    A('s_mov_b64 exec, -1')
    A('L_rdone:')
    A('s_cmp_eq_u32 s48, 7\ns_cbranch_scc1 L_ffn2')
    poll(['global_load_dwordx4 v[32:35], v4, %s sc1'%WS,'global_load_dwordx4 v[36:39], v4, %s offset:512 sc1'%WS],list(range(32,40)))
    stamp(11)
    layernorm()
    A('s_waitcnt lgkmcnt(0)\ns_barrier')
    gemm16(96)
    A('s_waitcnt lgkmcnt(0)\ns_barrier')
    A('s_cmp_lg_u32 s53, 0\ns_cbranch_scc1 L_end')
    for w in range(4):
        A('ds_read_b32 v%d, v26 offset:%d'%(32+w,L_DP+2048*w))
        A('ds_read_b32 v%d, v26 offset:%d'%(36+w,L_DP+2048*w+512))
    A('s_waitcnt lgkmcnt(0)')
    A('v_add_f32 v32, v32, v33\nv_add_f32 v34, v34, v35\nv_add_f32 v36, v36, v37\nv_add_f32 v38, v38, v39')
    A('v_add_f32 v32, v32, v34\nv_add_f32 v36, v36, v38')
    A('v_cvt_pk_bf16_f32 v32, v32, v36\nv_and_b32 v36, s60, v32\nv_lshlrev_b32 v32, 16, v32')
    A('v_mul_f32 v33, v32, v32\nv_mul_f32 v33, 0x3d372713, v33\nv_fma_f32 v33, v33, v32, v32')
    A('v_mul_f32 v33, 0xc0135761, v33\nv_exp_f32 v33, v33\ns_nop 0\nv_add_f32 v33, 1.0, v33\nv_rcp_f32 v33, v33\ns_nop 0\nv_mul_f32 v33, v33, v32')
    rbf(33)
    A('v_mul_f32 v33, v33, v36')
    A('s_nop 1\nv_mov_b32_dpp v34, v33 quad_perm:[1,0,3,2] row_mask:0xf bank_mask:0xf')
    A('v_cvt_pk_bf16_f32 v33, v33, v34\nv_min_u32 v33, -2, v33')
    A('s_mov_b32 exec_lo, 0x55555555\ns_mov_b32 exec_hi, 0x55555555')
    A('global_store_dword v27, v33, %s sc1'%WS)
    if cfg.diag:
        A('s_mov_b64 exec, -1')
        stamp(12)
        dump_stamps(13,64,8)
    A('s_endpgm')
    A('L_ffn2:')
    poll(['global_load_dword v30, v29, %s sc1'%WS],[30])
    stamp(11)
    poll(['global_load_dwordx4 v[%d:%d], v27, %s offset:%d sc1'%(32+4*t,35+4*t,WS,1024*t-3072) for t in range(7)],list(range(32,60)))
    stamp(12)
    for t in range(7):
        for tt in range(2):
            acc='v[%d:%d]'%(64+4*tt,67+4*tt)
            r=96+8*t+4*tt
            A('v_mfma_f32_16x16x32_bf16 %s, v[%d:%d], v[%d:%d], %s'%(acc,r,r+3,32+4*t,35+4*t,'0' if t==0 else acc))
    A('s_nop 6')
    A('ds_write_b128 v10, v[64:67] offset:%d'%L_DP)
    A('ds_write_b128 v10, v[68:71] offset:%d'%(L_DP+1024))
    A('s_waitcnt lgkmcnt(0)\ns_barrier')
    A('s_cmp_lg_u32 s53, 0\ns_cbranch_scc1 L_end')
    for w in range(4):
        A('ds_read_b64 v[%d:%d], v26 offset:%d'%(32+4*w,33+4*w,L_DP+2048*w))
        A('ds_read_b64 v[%d:%d], v26 offset:%d'%(34+4*w,35+4*w,L_DP+2048*w+640))
    A('v_lshlrev_b32 v60, 16, v30\nv_and_b32 v61, s60, v30')
    A('s_waitcnt lgkmcnt(0)')
    for w in range(4): A('v_pk_add_f32 v[%d:%d], v[%d:%d], v[%d:%d]'%(32+4*w,33+4*w,32+4*w,33+4*w,34+4*w,35+4*w))
    A('v_pk_add_f32 v[32:33], v[32:33], v[36:37]\nv_pk_add_f32 v[40:41], v[40:41], v[44:45]\nv_pk_add_f32 v[32:33], v[32:33], v[40:41]')
    A('v_cvt_pk_bf16_f32 v32, v32, v33\nv_and_b32 v33, s60, v32\nv_lshlrev_b32 v32, 16, v32')
    A('v_pk_add_f32 v[32:33], v[32:33], v[60:61]')
    A('v_cvt_pk_bf16_f32 v32, v32, v33')
    A('global_store_dword v28, v32, %s'%OUT)
    if cfg.diag:
        stamp(13)
        dump_stamps(14,64,8)
    A('L_end:')
    A('s_endpgm')
    A('.section .rodata,"a"\n.p2align 6\n.amdhsa_kernel %s'%K)
    A('  .amdhsa_next_free_vgpr 256\n  .amdhsa_next_free_sgpr 102\n  .amdhsa_accum_offset 256\n  .amdhsa_group_segment_fixed_size 0\n  .amdhsa_kernarg_size 96')
    A('  .amdhsa_user_sgpr_count 2\n  .amdhsa_user_sgpr_kernarg_segment_ptr 1\n  .amdhsa_system_sgpr_workgroup_id_x 1')
    A('  .amdhsa_float_denorm_mode_32 3\n  .amdhsa_float_denorm_mode_16_64 3')
    A('.end_amdhsa_kernel')
    return '\n'.join(L)+'\n'

if __name__=='__main__':
    cfg=Cfg()
    out=sys.argv[1]
    for a in sys.argv[2:]:
        k,v=a.split('='); setattr(cfg,k,eval(v))
    s=gen(cfg)
    hdr=''.join(l for l in open('cdna_kernels/%s.s.ref'%NAME).readlines()[:13])
    open(out,'w').write(hdr+s)
```

```python
import sys
NAME='sequential_preLN__gqa_block_cached__geglu_ffn__decode'
K=NAME+'_kernel'

class Cfg:
    diag=False
    NG=6
    wlate=False
    spin=1<<17
    T=8
    lag=2
    kf='nt'
    noML=False
    noQ=False
    mlsleep=4
    noPoll=False
    noClr=False
    noFlag=False
    noWq=False
    wf='nt'
    noW=False
    fsleep=0
    vf='nt'

QB=0x0
CLR=0x100000
OP=0x100000
WP=0x180000
MISC=0x200000
HB=MISC
AB=MISC+0x2000
ML=MISC+0xA000
STAMP=0x10000000
L_CNT=0
L_MLW=64
L_QL=256
L_XN=1280
XNS=1040
L_XO=9600
XOS=272
L_DP=11776
L_OW=19968
L_ST=28160
L_WA=28672
L_WB=L_WA+16384
L_WC=L_WB+16384
LDS_BYTES=L_WC+57344

LOG2E=0x3fb8aa3b
SCALE=0x3db504f3

def gen(cfg):
    L=[]
    def A(s):
        for x in s.split('\n'):
            L.append(x)
    lab=[0]
    def newlab(p):
        lab[0]+=1
        return 'L_%s_%d'%(p,lab[0])
    nst=[0]
    X,KP,VP,WQ,WO,BX,WG,WU,WD,OUT,DBG,WS=['s[%d:%d]'%(16+2*i,17+2*i) for i in range(12)]
    def stamp(i):
        if cfg.diag:
            A('s_memrealtime s[%d:%d]'%(72+2*i,73+2*i))
    def pack_stamps(n,vt):
        A('s_waitcnt lgkmcnt(0)')
        A('v_mov_b32 v%d, 0'%vt)
        for i in range(n):
            A('v_writelane_b32 v%d, s%d, %d'%(vt,72+2*i,i))
    def dump_stamps(n,base,vt):
        if not cfg.diag: return
        pack_stamps(n,vt)
        A('v_lshlrev_b32 v%d, 2, v0'%(vt+1))
        A('ds_read_b32 v%d, v%d offset:%d'%(vt+2,vt+1,L_ST))
        A('s_lshl_b32 s66, s2, 8\ns_add_u32 s66, s66, %d'%(STAMP))
        A('v_add_u32 v%d, s66, v%d'%(vt+1,vt+1))
        A('s_mov_b64 exec, 0xffff')
        A('s_waitcnt lgkmcnt(0)')
        A('global_store_dword v%d, v%d, %s'%(vt+1,vt+2,WS))
        A('global_store_dword v%d, v%d, %s offset:64'%(vt+1,vt,WS))

    A('; @launch grid=(256,1,1) block=(512,1,1) lds=%d'%LDS_BYTES)
    A('.amdgcn_target "amdgcn-amd-amdhsa--gfx950"\n.text\n.globl %s\n.p2align 8\n.type %s,@function\n%s:'%(K,K,K))
    A('s_cmp_ge_u32 s2, 256\ns_cbranch_scc1 L_end')
    A('s_load_dwordx16 s[16:31], s[0:1], 0')
    A('s_load_dwordx8 s[32:39], s[0:1], 64')
    stamp(0)
    A('v_lshrrev_b32 v1, 6, v0')
    A('v_and_b32 v0, 63, v0')
    A('v_readfirstlane_b32 s52, v1')
    A('s_and_b32 s48, s2, 7\ns_lshr_b32 s49, s2, 3\ns_lshr_b32 s50, s49, 2\ns_and_b32 s51, s49, 3')
    A('s_mov_b32 s58, 0x%x\ns_mov_b32 s59, 0x%x\ns_mov_b32 s60, 0xffff0000'%(SCALE,LOG2E))
    A('v_mov_b32 v4, 0\nv_mov_b32 v5, 0\nv_mov_b32 v6, 0\nv_mov_b32 v7, 0')
    A('ds_write_b128 v4, v[4:7] offset:%d'%L_CNT)
    A('s_waitcnt lgkmcnt(0)')
    A('s_barrier')
    A('s_cmp_ge_u32 s52, 4\ns_cbranch_scc1 L_service')

    NG=cfg.NG
    RB=256-NG*32
    A('s_lshl_b32 s54, s50, 3\ns_add_u32 s54, s54, s48\ns_lshl_b32 s54, s54, 2\ns_add_u32 s54, s54, s51\ns_lshl_b32 s54, s54, 19')
    A('s_add_u32 s40, s18, s54\ns_addc_u32 s41, s19, 0\ns_and_b32 s41, s41, 0xffff\ns_mov_b32 s42, 0x80000\ns_mov_b32 s43, 0x20000')
    A('s_add_u32 s44, s20, s54\ns_addc_u32 s45, s21, 0\ns_and_b32 s45, s45, 0xffff\ns_mov_b32 s46, 0x80000\ns_mov_b32 s47, 0x20000')
    A('s_lshl_b32 s53, s52, 12')
    A('v_lshlrev_b32 v1, 4, v0')
    A('v_lshrrev_b32 v2, 4, v0\nv_lshlrev_b32 v2, 6, v2\nv_and_b32 v3, 3, v0\nv_lshl_add_u32 v2, v3, 4, v2')
    A('v_bfe_u32 v3, v0, 2, 2\nv_lshl_add_u32 v2, v3, 8, v2')
    A('s_mov_b32 s56, 0x05040100\ns_mov_b32 s57, 0x07060302')
    TH=cfg.T
    st={'n':0}
    def issue(k,Gfree):
        for _ in range(k):
            n=st['n']
            if n>=256: return
            G=n//8
            assert G-NG<=Gfree,(n,Gfree)
            t=G//16; gi=G%16; h=(n%8)//4; j=n%4
            if j==0: A('s_add_u32 s54, s53, %d'%((2*gi+h)*16384))
            if n>=TH: A('s_waitcnt vmcnt(%d)'%(TH-1))
            r=RB+(n%(NG*8))*4
            A('buffer_load_dwordx4 v[%d:%d], %s, %s, s54 offen offset:%d %s'%(r,r+3,'v2' if t==0 else 'v1','s[40:43]' if t==0 else 's[44:47]',j*1024,cfg.kf if t==0 else cfg.vf))
            st['n']=n+1
    def wait_group(G):
        rem=st['n']-(G+1)*8
        assert rem>=0
        if rem<TH: A('s_waitcnt vmcnt(%d)'%rem)
    def quota(G):
        want=min(256,(G+1+cfg.lag)*8)
        return max(4,want-st['n']) if want<256 or st['n']<256 else 0
    issue(NG*8,-1)
    stamp(1)
    A('s_barrier')
    A('ds_read_b128 v[4:7], v1 offset:%d'%L_QL)
    stamp(2)
    A('v_mov_b32 v14, 0xff800000')
    A('s_waitcnt lgkmcnt(0)')
    for G in range(16):
        base=RB+(G%NG)*32
        wait_group(G)
        for i in range(8):
            A('v_mfma_f32_16x16x32_bf16 v[%d:%d], v[%d:%d], v[4:7], 0'%(32+4*i,35+4*i,base+4*i,base+4*i+3))
        A('s_nop 1')
        q=quota(G)
        for be in range(4):
            issue(q//4,G)
            for step in range(3):
                for e in range(2):
                    D=32+4*(2*be+e)
                    S=8+e
                    src0=D+((be+step+1)&3)
                    src1=(D+be) if step==0 else S
                    A('v_add_f32_dpp v%d, v%d, v%d row_ror:%d row_mask:0xf bank_mask:0x%x'%(S,src0,src1,12-4*step,1<<be))
                A('s_nop 0')
        A('v_cvt_pk_bf16_f32 v10, v8, v9')
        A('v_lshlrev_b32 v11, 16, v10\nv_and_b32 v12, s60, v10')
        A('v_mul_f32 v11, s58, v11\nv_mul_f32 v12, s58, v12')
        A('v_cvt_pk_bf16_f32 v%d, v11, v12'%(16+G))
        A('v_lshlrev_b32 v11, 16, v%d\nv_and_b32 v12, s60, v%d'%(16+G,16+G))
        A('v_max3_f32 v14, v14, v11, v12')
    stamp(3)
    def wave_red(op,r,t):
        A('s_nop 1')
        A('%s_dpp v%d, v%d, v%d row_ror:4 row_mask:0xf bank_mask:0xf'%(op,r,r,r))
        A('s_nop 1')
        A('%s_dpp v%d, v%d, v%d row_ror:8 row_mask:0xf bank_mask:0xf'%(op,r,r,r))
        A('v_mov_b32 v%d, v%d\ns_nop 1\nv_permlane16_swap_b32 v%d, v%d\n%s v%d, v%d, v%d'%(t,r,r,t,op,r,r,t))
        A('v_mov_b32 v%d, v%d\ns_nop 1\nv_permlane32_swap_b32 v%d, v%d\n%s v%d, v%d, v%d'%(t,r,r,t,op,r,r,t))
    wave_red('v_max_f32',14,13)
    A('v_mov_b32 v15, 0')
    for G in range(16):
        A('v_lshlrev_b32 v8, 16, v%d\nv_and_b32 v9, s60, v%d'%(16+G,16+G))
        A('v_sub_f32 v8, v8, v14\nv_sub_f32 v9, v9, v14')
        A('v_mul_f32 v8, s59, v8\nv_mul_f32 v9, s59, v9')
        A('v_exp_f32 v8, v8\nv_exp_f32 v9, v9\ns_nop 0')
        A('v_cvt_pk_bf16_f32 v%d, v8, v9'%(16+G))
        A('v_add_f32 v15, v15, v8\nv_add_f32 v15, v15, v9')
        if G%4==3: issue(1,15)
    wave_red('v_add_f32',15,13)
    A('s_lshl_b32 s55, s52, 5')
    A('v_lshlrev_b32 v3, 3, v0\nv_add_u32 v3, s55, v3')
    A('v_mov_b32 v8, 0\nv_mov_b32 v9, 1')
    A('s_mov_b64 exec, 0xf')
    A('ds_write_b64 v3, v[14:15] offset:%d'%L_MLW)
    A('s_mov_b64 exec, 1')
    A('s_waitcnt lgkmcnt(0)')
    A('ds_add_u32 v8, v9 offset:%d'%(L_CNT+8))
    A('s_mov_b64 exec, -1')
    stamp(4)
    A('s_lshl_b32 s55, s52, 11')
    A('v_and_b32 v3, 3, v0\nv_lshlrev_b32 v3, 9, v3\nv_and_b32 v2, 0x30, v0\nv_add3_u32 v3, v3, v2, s55')
    A('s_waitcnt lgkmcnt(0)')
    for G in range(16,32):
        base=RB+(G%NG)*32
        P=16+(G-16)
        A('v_mov_b32 v4, v%d'%P)
        for r in range(1,4):
            A('v_mov_b32_dpp v%d, v%d row_ror:%d row_mask:0xf bank_mask:0xf'%(4+r,P,16-4*r))
        wait_group(G)
        def perms(j):
            T=8+4*(j&1)
            for ii in range(4):
                A('v_perm_b32 v%d, v%d, v%d, s%d'%(T+ii,base+4*(2*ii+1)+(j>>1),base+4*(2*ii)+(j>>1),56+(j&1)))
        perms(0)
        q=quota(G)
        for j in range(8):
            issue((q*(j+1))//8-(q*j)//8,G-1)
            if j<7: perms(j+1)
            else: A('s_nop 1')
            T=8+4*(j&1)
            acc='v[%d:%d]'%(32+4*j,35+4*j)
            A('v_mfma_f32_16x16x32_bf16 %s, v[%d:%d], v[4:7], %s'%(acc,T,T+3,'0' if G==16 else acc))
    A('s_mov_b32 exec_lo, 0x000f000f\ns_mov_b32 exec_hi, 0x000f000f')
    stamp(5)
    for j in range(8):
        if j==6: A('s_nop 3')
        A('ds_write_b128 v3, v[%d:%d] offset:%d'%(32+4*j,35+4*j,L_OW+64*j))
    if cfg.diag:
        A('s_mov_b64 exec, -1')
        A('s_cmp_lg_u32 s52, 0\ns_cbranch_scc1 L_nost')
        pack_stamps(6,8)
        A('v_lshlrev_b32 v9, 2, v0')
        A('ds_write_b32 v9, v8 offset:%d'%L_ST)
        A('L_nost:')
    A('s_waitcnt lgkmcnt(0)')
    A('s_barrier')
    A('s_endpgm')

    A('L_service:')
    A('s_setprio 3')
    A('s_sub_u32 s53, s52, 4')
    A('v_lshlrev_b32 v1, 4, v0')
    A('v_lshrrev_b32 v2, 5, v0\ns_lshl_b32 s54, s53, 1\nv_add_u32 v2, s54, v2')
    A('v_and_b32 v3, 31, v0\nv_lshlrev_b32 v3, 4, v3')
    A('v_lshl_add_u32 v4, v2, 10, v3')
    A('v_mul_u32_u24 v5, %d, v2\nv_add_u32 v5, v5, v3'%XNS)
    A('global_load_dwordx4 v[32:35], v4, %s'%X)
    A('global_load_dwordx4 v[36:39], v4, %s offset:512'%X)
    A('v_lshrrev_b32 v6, 1, v0\ns_lshl_b32 s54, s53, 7\nv_add_u32 v6, s54, v6\nv_lshlrev_b32 v6, 13, v6')
    A('v_and_b32 v7, 1, v0\nv_lshl_add_u32 v6, v7, 4, v6')
    A('s_lshl_b32 s54, s48, 10\ns_lshl_b32 s55, s49, 5\ns_add_u32 s54, s54, s55\nv_add_u32 v6, s54, v6')
    A('s_lshl_b32 s66, s53, 12')
    if cfg.noWq: A('v_and_b32 v6, 0x3ff, v1\ns_lshl_b32 s54, s2, 10\nv_add_u32 v6, s54, v6')
    for i in range(4):
        A('s_add_u32 m0, s66, %d'%(L_WA+i*1024))
        if i: A('v_add_u32 v6, 0x40000, v6')
        else: A('s_nop 0')
        A('global_load_lds_dwordx4 v6, %s %s'%(WQ,cfg.wf))
    A('v_mov_b32 v40, -1\nv_mov_b32 v41, -1\nv_mov_b32 v42, -1\nv_mov_b32 v43, -1')
    A('s_lshl_b32 s54, s2, 12\ns_lshl_b32 s55, s53, 10\ns_add_u32 s54, s54, s55\ns_add_u32 s54, s54, %d'%CLR)
    A('v_add_u32 v6, s54, v1')
    if cfg.noClr: A('s_mov_b64 exec, 1')
    A('global_store_dwordx4 v6, v[40:43], %s sc1'%WS)
    A('s_lshl_b32 s54, s2, 8\ns_lshl_b32 s55, s53, 6\ns_add_u32 s54, s54, s55\ns_add_u32 s54, s54, %d'%MISC)
    A('v_add_u32 v6, s54, v1')
    A('s_mov_b64 exec, 0xf')
    A('global_store_dwordx4 v6, v[40:43], %s sc1'%WS)
    A('s_mov_b64 exec, -1')
    A('v_lshrrev_b32 v8, 4, v0\nv_lshlrev_b32 v8, 8, v8')
    A('v_and_b32 v9, 15, v0\nv_lshl_add_u32 v8, v9, 3, v8')
    A('v_add_u32 v8, s66, v8')
    A('v_and_b32 v9, 7, v0\nv_mul_u32_u24 v9, %d, v9\nv_and_b32 v10, 0x30, v0\ns_lshl_b32 s54, s53, 8\nv_add3_u32 v9, v9, v10, s54'%XNS)
    A('s_lshl_b32 s54, s53, 11\nv_add_u32 v10, s54, v1')
    A('v_mov_b32 v11, 0\nv_mov_b32 v12, 1')

    def half_red_add(r,t):
        for k in (1,2,4,8):
            A('s_nop 1')
            A('v_add_f32_dpp v%d, v%d, v%d row_ror:%d row_mask:0xf bank_mask:0xf'%(r,r,r,k))
        A('v_mov_b32 v%d, v%d\ns_nop 1\nv_permlane16_swap_b32 v%d, v%d\nv_add_f32 v%d, v%d, v%d'%(t,r,r,t,r,r,t))
    def rbf(r):
        A('v_cvt_pk_bf16_f32 v%d, v%d, v%d\nv_lshlrev_b32 v%d, 16, v%d'%(r,r,r,r,r))
    def layernorm():
        for i in range(8):
            A('v_lshlrev_b32 v%d, 16, v%d\nv_and_b32 v%d, s60, v%d'%(48+2*i,32+i,49+2*i,32+i))
        A('v_pk_add_f32 v[64:65], v[48:49], v[50:51]\nv_pk_add_f32 v[66:67], v[52:53], v[54:55]')
        A('v_pk_add_f32 v[64:65], v[64:65], v[56:57]\nv_pk_add_f32 v[66:67], v[66:67], v[58:59]')
        A('v_pk_add_f32 v[64:65], v[64:65], v[60:61]\nv_pk_add_f32 v[66:67], v[66:67], v[62:63]')
        A('v_pk_add_f32 v[64:65], v[64:65], v[66:67]\nv_add_f32 v64, v64, v65')
        half_red_add(64,65)
        A('v_mul_f32 v64, 0x3b000000, v64')
        A('v_mov_b32 v66, 0\nv_mov_b32 v67, 0')
        for i in range(8):
            A('v_sub_f32 v68, v%d, v64\nv_sub_f32 v69, v%d, v64'%(48+2*i,49+2*i))
            A('v_fmac_f32 v66, v68, v68\nv_fmac_f32 v67, v69, v69')
        A('v_add_f32 v66, v66, v67')
        half_red_add(66,67)
        A('v_mul_f32 v66, 0x3b000000, v66')
        rbf(64); rbf(66)
        A('v_add_f32 v66, 0x3727c5ac, v66')
        rbf(66)
        A('v_sqrt_f32 v66, v66\ns_nop 0')
        rbf(66)
        A('v_rcp_f32 v66, v66')
        for i in range(8):
            A('v_sub_f32 v68, v%d, v64\nv_sub_f32 v69, v%d, v64'%(48+2*i,49+2*i))
            A('v_cvt_pk_bf16_f32 v68, v68, v69')
            A('v_and_b32 v69, s60, v68\nv_lshlrev_b32 v68, 16, v68')
            A('v_mul_f32 v68, v68, v66\nv_mul_f32 v69, v69, v66')
            A('v_cvt_pk_bf16_f32 v%d, v68, v69'%(32+i))
        A('ds_write_b128 v5, v[32:35] offset:%d'%L_XN)
        A('ds_write_b128 v5, v[36:39] offset:%d'%(L_XN+512))
    def lds_sync(cnt):
        l=newlab('ls')
        A('s_waitcnt lgkmcnt(0)')
        A('s_mov_b64 exec, 1\nds_add_u32 v11, v12 offset:%d\ns_mov_b64 exec, -1'%(L_CNT+4*cnt))
        A('%s:'%l)
        A('ds_read_b32 v13, v11 offset:%d\ns_waitcnt lgkmcnt(0)\nv_readfirstlane_b32 s54, v13\ns_cmp_lt_u32 s54, 4\ns_cbranch_scc1 %s'%(L_CNT+4*cnt,l))
    def gemm16(wreg):
        for st in range(4):
            A('ds_read_b128 v[%d:%d], v9 offset:%d'%(32+4*st,35+4*st,L_XN+64*st))
        for st in range(4):
            A('s_waitcnt lgkmcnt(%d)'%(3-st))
            A('v_mfma_f32_16x16x32_bf16 v[48:51], v[%d:%d], v[%d:%d], %s'%(wreg+4*st,wreg+4*st+3,32+4*st,35+4*st,'0' if st==0 else 'v[48:51]'))
        A('s_nop 7')
        A('ds_write_b128 v10, v[48:51] offset:%d'%L_DP)
    def poll(loads,regs,sleep=0):
        l=newlab('pl'); d=newlab('pd')
        A('s_mov_b32 s61, %d'%cfg.spin)
        A('%s:'%l)
        for x in loads: A(x)
        A('s_waitcnt vmcnt(0)')
        r=list(regs)
        if len(r)==1: A('v_cmp_eq_u32 vcc, -1, v%d'%r[0])
        else:
            if len(r)==2: A('v_max_u32 v13, v%d, v%d'%(r[0],r[1])); r=[]
            else: A('v_max3_u32 v13, v%d, v%d, v%d'%(r[0],r[1],r[2])); r=r[3:]
            while r:
                if len(r)==1: A('v_max_u32 v13, v13, v%d'%r[0]); r=[]
                else: A('v_max3_u32 v13, v13, v%d, v%d'%(r[0],r[1])); r=r[2:]
            A('v_cmp_eq_u32 vcc, -1, v13')
        A('s_cbranch_vccz %s'%d)
        if sleep: A('s_sleep %d'%sleep)
        A('s_sub_u32 s61, s61, 1\ns_cmp_lg_u32 s61, 0\ns_cbranch_scc1 %s'%l)
        A('%s:'%d)
    def flagpoll(voff,execmask):
        l=newlab('fl'); d=newlab('fd')
        A('s_mov_b32 s61, %d\ns_mov_b32 s54, 0x01010101'%cfg.spin)
        A('s_mov_b64 exec, %s'%execmask)
        A('%s:'%l)
        A('global_load_dword v13, v%d, %s sc1\ns_waitcnt vmcnt(0)'%(voff,DBG))
        A('v_cmp_ne_u32 vcc, s54, v13\ns_cbranch_vccz %s'%d)
        if cfg.fsleep: A('s_sleep %d'%cfg.fsleep)
        A('s_sub_u32 s61, s61, 1\ns_cmp_lg_u32 s61, 0\ns_cbranch_scc1 %s'%l)
        A('%s:'%d)
        A('s_mov_b64 exec, -1')

    A('s_waitcnt vmcnt(6)')
    stamp(1)
    layernorm()
    A('s_waitcnt vmcnt(2)')
    for st in range(4):
        A('ds_read_b64_tr_b16 v[%d:%d], v8 offset:%d'%(80+4*st,81+4*st,L_WA+1024*st))
        A('ds_read_b64_tr_b16 v[%d:%d], v8 offset:%d'%(82+4*st,83+4*st,L_WA+1024*st+128))
    lds_sync(0)
    gemm16(80)
    A('s_waitcnt vmcnt(0)')
    lds_sync(1)
    stamp(2)
    A('s_cmp_lg_u32 s53, %d\ns_cbranch_scc1 L_qdone'%(9 if cfg.noQ else 0))
    for w in range(4):
        A('ds_read_b128 v[%d:%d], v1 offset:%d'%(32+4*w,35+4*w,L_DP+2048*w))
    A('v_and_b32 v6, 15, v0\nv_lshlrev_b32 v6, 13, v6\nv_lshrrev_b32 v7, 4, v0\nv_lshl_add_u32 v6, v7, 3, v6')
    A('s_lshl_b32 s54, s48, 10\ns_lshl_b32 s55, s49, 5\ns_add_u32 s54, s54, s55\nv_add_u32 v6, s54, v6')
    A('s_waitcnt lgkmcnt(0)')
    A('v_pk_add_f32 v[32:33], v[32:33], v[36:37]\nv_pk_add_f32 v[34:35], v[34:35], v[38:39]')
    A('v_pk_add_f32 v[40:41], v[40:41], v[44:45]\nv_pk_add_f32 v[42:43], v[42:43], v[46:47]')
    A('v_pk_add_f32 v[32:33], v[32:33], v[40:41]\nv_pk_add_f32 v[34:35], v[34:35], v[42:43]')
    A('v_cvt_pk_bf16_f32 v32, v32, v33\nv_cvt_pk_bf16_f32 v33, v34, v35')
    A('s_mov_b32 exec_lo, 0x00ff00ff\ns_mov_b32 exec_hi, 0x00ff00ff')
    A('global_store_dwordx2 v6, v[32:33], %s sc1'%WS)
    A('s_mov_b64 exec, -1')
    A('s_lshl_b32 s54, s48, 5\nv_lshlrev_b32 v7, 2, v0\nv_add_u32 v7, s54, v7')
    A('s_add_u32 s54, s54, s49\nv_mov_b32 v6, s54')
    A('s_waitcnt vmcnt(0)')
    if not cfg.noFlag: A('s_mov_b64 exec, 1\nglobal_store_byte v6, v12, %s sc1\ns_mov_b64 exec, -1'%DBG)
    stamp(3)
    A('v_and_b32 v6, 3, v0\nv_lshlrev_b32 v6, 8, v6\nv_lshrrev_b32 v14, 2, v0\nv_lshl_add_u32 v6, v14, 4, v6')
    A('s_lshl_b32 s54, s50, 13\ns_lshl_b32 s55, s48, 10\ns_add_u32 s54, s54, s55\nv_add_u32 v6, s54, v6')
    if not cfg.noPoll: flagpoll(7,'0xff')
    stamp(4)
    A('global_load_dwordx4 v[32:35], v6, %s sc1\ns_waitcnt vmcnt(0)'%WS)
    A('ds_write_b128 v1, v[32:35] offset:%d'%L_QL)
    stamp(5)
    A('s_waitcnt lgkmcnt(0)')
    A('L_qdone:')
    A('s_setprio 0')

    def weight_dma():
        A('s_lshr_b32 s54, s49, 3\ns_lshl_b32 s55, s48, 2\ns_add_u32 s54, s54, s55\ns_lshl_b32 s54, s54, 17')
        A('s_and_b32 s55, s49, 7\ns_lshl_b32 s55, s55, 7\ns_add_u32 s54, s54, s55\ns_lshl_b32 s55, s53, 5\ns_add_u32 s54, s54, s55')
        A('v_bfe_u32 v6, v0, 3, 2\nv_lshlrev_b32 v6, 5, v6\nv_bfe_u32 v7, v0, 1, 2\nv_lshl_add_u32 v6, v7, 3, v6\nv_lshrrev_b32 v7, 5, v0\nv_add_u32 v6, v6, v7')
        A('v_lshlrev_b32 v6, 10, v6\nv_and_b32 v7, 1, v0\nv_lshl_add_u32 v6, v7, 4, v6\nv_add_u32 v6, s54, v6')
        for i in range(4):
            A('s_add_u32 m0, s66, %d'%(L_WB+i*1024))
            if i: A('v_add_u32 v6, 2048, v6')
            else: A('s_nop 0')
            A('global_load_lds_dwordx4 v6, %s %s'%(WO,cfg.wf))
        l2=newlab('w2'); le=newlab('we')
        A('s_cmp_eq_u32 s48, 7\ns_cbranch_scc1 %s'%l2)
        A('s_lshl_b32 s54, s48, 5\ns_add_u32 s54, s54, s49\ns_lshl_b32 s54, s54, 4')
        A('s_lshl_b32 s55, s53, 7\nv_add_u32 v6, s55, v0\nv_mul_u32_u24 v6, 3584, v6\nv_add_u32 v6, s54, v6')
        A('v_add_u32 v7, %d, v6'%(64*3584))
        for i,(v,p) in enumerate(((6,WG),(7,WG),(6,WU),(7,WU))):
            A('s_add_u32 m0, s66, %d\ns_nop 0'%(L_WA+i*1024))
            A('global_load_lds_dwordx4 v%d, %s %s'%(v,p,cfg.wf))
        A('s_branch %s'%le)
        A('%s:'%l2)
        A('s_mul_i32 s54, s53, 448\nv_lshrrev_b32 v6, 1, v0\nv_add_u32 v6, s54, v6\nv_lshlrev_b32 v6, 10, v6')
        A('v_and_b32 v7, 1, v0\nv_lshl_add_u32 v6, v7, 4, v6\ns_lshl_b32 s54, s49, 5\nv_add_u32 v6, s54, v6')
        A('s_mul_i32 s55, s53, 14336')
        for i in range(14):
            A('s_add_u32 m0, s55, %d'%(L_WC+i*1024))
            if i: A('v_add_u32 v6, 0x8000, v6')
            else: A('s_nop 0')
            A('global_load_lds_dwordx4 v6, %s %s'%(WD,cfg.wf))
        A('%s:'%le)
    def weight_read():
        for st in range(4):
            A('ds_read_b64_tr_b16 v[%d:%d], v8 offset:%d'%(80+4*st,81+4*st,L_WB+1024*st))
            A('ds_read_b64_tr_b16 v[%d:%d], v8 offset:%d'%(82+4*st,83+4*st,L_WB+1024*st+128))
        l2=newlab('r2'); le=newlab('re')
        A('s_cmp_eq_u32 s48, 7\ns_cbranch_scc1 %s'%l2)
        A('v_lshrrev_b32 v6, 4, v0\nv_lshlrev_b32 v6, 7, v6\nv_bfe_u32 v7, v0, 2, 2\nv_lshl_add_u32 v6, v7, 4, v6')
        A('v_and_b32 v7, 1, v0\nv_lshl_add_u32 v6, v7, 3, v6\nv_bfe_u32 v7, v0, 1, 1\nv_lshl_add_u32 v6, v7, 11, v6\nv_add_u32 v6, s66, v6')
        for st in range(4):
            A('ds_read_b64_tr_b16 v[%d:%d], v6 offset:%d'%(96+4*st,97+4*st,L_WA+512*st))
            A('ds_read_b64_tr_b16 v[%d:%d], v6 offset:%d'%(98+4*st,99+4*st,L_WA+512*st+64))
        A('s_branch %s'%le)
        A('%s:'%l2)
        A('v_lshrrev_b32 v6, 4, v0\nv_lshlrev_b32 v6, 9, v6\nv_bfe_u32 v7, v0, 1, 1\nv_lshl_add_u32 v6, v7, 8, v6\nv_bfe_u32 v7, v0, 2, 2\nv_lshl_add_u32 v6, v7, 5, v6')
        A('v_and_b32 v7, 1, v0\nv_lshl_add_u32 v6, v7, 3, v6\ns_mul_i32 s55, s53, 14336\ns_add_u32 s55, s55, %d\nv_add_u32 v6, s55, v6'%L_WC)
        for t in range(7):
            for tt in range(2):
                r=96+8*t+4*tt
                A('ds_read_b64_tr_b16 v[%d:%d], v6 offset:%d'%(r,r+1,2048*t+16*tt))
                A('ds_read_b64_tr_b16 v[%d:%d], v6 offset:%d'%(r+2,r+3,2048*t+16*tt+128))
            A('s_waitcnt lgkmcnt(0)')
        A('%s:'%le)
        A('s_waitcnt lgkmcnt(0)')

    A('s_barrier')
    if not cfg.noW: weight_dma()
    A('v_and_b32 v6, 3, v0\nv_lshlrev_b32 v6, 2, v6\nv_lshrrev_b32 v7, 4, v0\nv_add_u32 v6, v6, v7\nv_lshlrev_b32 v6, 1, v6')
    A('s_lshl_b32 s54, s2, 5\nv_add_u32 v6, s54, v6')
    A('global_load_ushort v16, v6, %s'%X)
    A('s_waitcnt vmcnt(0)')
    A('v_lshlrev_b32 v16, 16, v16')
    weight_read()
    A('v_lshlrev_b32 v7, 2, v0')
    if not cfg.noFlag: flagpoll(7,'-1')
    A('v_and_b32 v6, 31, v0\nv_lshlrev_b32 v6, 4, v6\ns_lshl_b32 s54, s53, 9\nv_add_u32 v17, s54, v6')
    A('s_lshl_b32 s54, s48, 2\ns_add_u32 s54, s54, s53\ns_lshl_b32 s54, s54, 5\ns_add_u32 s54, s54, s49\ns_lshl_b32 s54, s54, 9\ns_add_u32 s54, s54, %d\nv_add_u32 v18, s54, v6'%OP)
    A('s_lshr_b32 s54, s49, 3\ns_lshl_b32 s55, s48, 2\ns_add_u32 s67, s54, s55\ns_lshl_b32 s54, s67, 14\ns_add_u32 s54, s54, %d'%OP)
    A('v_lshl_add_u32 v19, v2, 11, v6\nv_add_u32 v19, s54, v19')
    A('v_mul_u32_u24 v20, %d, v2\nv_lshrrev_b32 v7, 1, v6\nv_add_u32 v20, v20, v7'%XOS)
    A('v_and_b32 v21, 7, v0\nv_mul_u32_u24 v21, %d, v21\nv_and_b32 v7, 0x30, v0\nv_add_u32 v21, v21, v7'%XOS)
    A('s_and_b32 s54, s49, 7\ns_lshl_b32 s54, s54, 2\ns_add_u32 s54, s54, s53\ns_lshl_b32 s54, s54, 5\ns_add_u32 s54, s54, s67\ns_lshl_b32 s54, s54, 6\ns_add_u32 s54, s54, %d'%WP)
    A('v_and_b32 v22, 7, v0\nv_lshlrev_b32 v22, 16, v22\nv_add3_u32 v22, v22, v7, s54')
    A('s_lshl_b32 s54, s2, 11\ns_add_u32 s54, s54, %d\nv_add_u32 v23, s54, v1'%WP)
    A('v_and_b32 v24, 3, v0\nv_lshlrev_b32 v24, 3, v24\nv_lshrrev_b32 v7, 5, v0\nv_lshl_add_u32 v24, v7, 2, v24\ns_lshl_b32 s54, s2, 5\ns_add_u32 s54, s54, %d\nv_add_u32 v24, s54, v24'%HB)
    A('v_add_u32 v4, %d, v4'%HB)
    A('s_lshl_b32 s54, s50, 3\ns_add_u32 s54, s54, s48\ns_lshl_b32 s54, s54, 7\ns_lshl_b32 s55, s53, 5\ns_add_u32 s54, s54, s55\ns_add_u32 s54, s54, %d'%ML)
    A('v_and_b32 v25, 3, v0\nv_lshlrev_b32 v25, 3, v25\nv_add_u32 v25, s54, v25')
    l2=newlab('a2'); le=newlab('ae')
    A('s_cmp_eq_u32 s48, 7\ns_cbranch_scc1 %s'%l2)
    A('v_bfe_u32 v26, v0, 2, 1\nv_lshlrev_b32 v26, 8, v26\nv_lshrrev_b32 v7, 3, v0\nv_lshl_add_u32 v26, v7, 4, v26\nv_and_b32 v7, 3, v0\nv_lshl_add_u32 v26, v7, 2, v26')
    A('s_lshl_b32 s54, s48, 5\ns_add_u32 s54, s54, s49\ns_lshl_b32 s54, s54, 7\ns_add_u32 s54, s54, %d'%AB)
    A('v_lshrrev_b32 v27, 1, v0\nv_lshlrev_b32 v27, 2, v27\nv_add_u32 v27, s54, v27')
    A('v_mov_b32 v28, 0')
    A('s_branch %s'%le)
    A('%s:'%l2)
    A('v_bfe_u32 v26, v0, 2, 1\nv_lshlrev_b32 v26, 10, v26\nv_bfe_u32 v7, v0, 1, 1\nv_lshl_add_u32 v26, v7, 8, v26\nv_lshrrev_b32 v7, 3, v0\nv_lshl_add_u32 v26, v7, 4, v26\nv_and_b32 v7, 1, v0\nv_lshl_add_u32 v26, v7, 3, v26')
    A('s_mul_i32 s54, s53, 7168\ns_add_u32 s54, s54, %d\nv_add_u32 v27, s54, v1'%(AB+3072))
    A('v_lshrrev_b32 v28, 3, v0\nv_lshlrev_b32 v28, 10, v28\nv_and_b32 v7, 7, v0\nv_lshl_add_u32 v28, v7, 2, v28\ns_lshl_b32 s54, s49, 5\nv_add_u32 v28, s54, v28')
    A('%s:'%le)
    A('v_add_u32 v29, %d, v28'%HB)
    stamp(6)
    lw=newlab('mw')
    A('%s:'%lw)
    A('s_sleep 8\nds_read_b32 v13, v11 offset:%d\ns_waitcnt lgkmcnt(0)\nv_readfirstlane_b32 s54, v13\ns_cmp_lt_u32 s54, 4\ns_cbranch_scc1 %s'%(L_CNT+8,lw))
    A('v_and_b32 v6, 3, v0\nv_lshlrev_b32 v6, 5, v6\ns_lshl_b32 s54, s53, 3\nv_add_u32 v6, s54, v6')
    A('ds_read_b64 v[32:33], v6 offset:%d\ns_waitcnt lgkmcnt(0)'%L_MLW)
    def quad(op,d,s):
        A('s_nop 1\n%s_dpp v%d, v%d, v%d quad_perm:[1,0,3,2] row_mask:0xf bank_mask:0xf'%(op,d,s,s))
        A('s_nop 1\n%s_dpp v%d, v%d, v%d quad_perm:[2,3,0,1] row_mask:0xf bank_mask:0xf'%(op,d,d,d))
    def comb(m,l,M,Lr):
        quad('v_max_f32',M,m)
        A('v_sub_f32 v40, v%d, v%d\nv_mul_f32 v40, s59, v40\nv_exp_f32 v40, v40\ns_nop 0\nv_mul_f32 v40, v40, v%d'%(m,M,l))
        quad('v_add_f32',Lr,40)
    comb(32,33,34,35)
    A('v_min_u32 v34, -2, v34\nv_min_u32 v35, -2, v35')
    A('s_lshl_b32 s54, s51, 3\nv_add_u32 v6, s54, v25')
    A('s_mov_b64 exec, 1\nglobal_store_dwordx2 v6, v[34:35], %s sc1\ns_mov_b64 exec, -1'%WS)
    if not cfg.noML: poll(['global_load_dwordx2 v[36:37], v25, %s sc1'%WS],[36,37],sleep=cfg.mlsleep)
    comb(36,37,38,39)
    A('v_sub_f32 v40, v32, v38\nv_mul_f32 v40, s59, v40\nv_exp_f32 v40, v40\nv_rcp_f32 v39, v39\ns_nop 0\nv_mul_f32 v40, v40, v39\ns_nop 0')
    for w in range(4): A('v_readlane_b32 s%d, v40, %d'%(62+w,w))
    stamp(7)
    A('s_setprio 3')
    A('s_barrier')
    for w in range(4):
        A('ds_read_b128 v[%d:%d], v17 offset:%d'%(32+4*w,35+4*w,L_OW+2048*w))
    stamp(8)
    A('s_waitcnt lgkmcnt(0)')
    for r in range(4): A('v_mul_f32 v%d, s62, v%d'%(32+r,32+r))
    for w in range(1,4):
        for r in range(4): A('v_fmac_f32 v%d, s%d, v%d'%(32+r,62+w,32+4*w+r))
    for r in range(4): A('v_min_u32 v%d, -2, v%d'%(32+r,32+r))
    A('s_mov_b32 exec_hi, 0')
    A('global_store_dwordx4 v18, v[32:35], %s sc1'%WS)
    A('s_mov_b64 exec, -1')
    poll(['global_load_dwordx4 v[%d:%d], v19, %s offset:%d sc1'%(48+4*s,51+4*s,WS,512*s) for s in range(4)],list(range(48,64)))
    stamp(9)
    A('v_pk_add_f32 v[48:49], v[48:49], v[52:53]\nv_pk_add_f32 v[50:51], v[50:51], v[54:55]')
    A('v_pk_add_f32 v[56:57], v[56:57], v[60:61]\nv_pk_add_f32 v[58:59], v[58:59], v[62:63]')
    A('v_pk_add_f32 v[48:49], v[48:49], v[56:57]\nv_pk_add_f32 v[50:51], v[50:51], v[58:59]')
    A('v_cvt_pk_bf16_f32 v48, v48, v49\nv_cvt_pk_bf16_f32 v49, v50, v51')
    A('ds_write_b64 v20, v[48:49] offset:%d'%L_XO)
    A('s_waitcnt lgkmcnt(0)\ns_barrier')
    for st in range(4):
        A('ds_read_b128 v[%d:%d], v21 offset:%d'%(32+4*st,35+4*st,L_XO+64*st))
    for st in range(4):
        A('s_waitcnt lgkmcnt(%d)'%(3-st))
        A('v_mfma_f32_16x16x32_bf16 v[48:51], v[%d:%d], v[%d:%d], %s'%(80+4*st,83+4*st,32+4*st,35+4*st,'0' if st==0 else 'v[48:51]'))
    A('s_nop 7')
    for r in range(4): A('v_min_u32 v%d, -2, v%d'%(48+r,48+r))
    A('s_mov_b32 exec_lo, 0x00ff00ff\ns_mov_b32 exec_hi, 0x00ff00ff')
    A('global_store_dwordx4 v22, v[48:51], %s sc1'%WS)
    A('s_mov_b64 exec, -1')
    A('s_cmp_lg_u32 s53, 0\ns_cbranch_scc1 L_rdone')
    poll(['global_load_dwordx4 v[32:35], v23, %s sc1'%WS,'global_load_dwordx4 v[36:39], v23, %s offset:1024 sc1'%WS],list(range(32,40)))
    stamp(10)
    A('v_pk_add_f32 v[32:33], v[32:33], v[36:37]\nv_pk_add_f32 v[34:35], v[34:35], v[38:39]')
    A('s_nop 1\nv_permlane32_swap_b32 v32, v34\nv_permlane32_swap_b32 v33, v35')
    A('v_add_f32 v32, v32, v34\nv_add_f32 v33, v33, v35')
    A('s_nop 1\nv_permlane16_swap_b32 v32, v33\nv_add_f32 v32, v32, v33')
    A('s_nop 1\nv_add_f32_dpp v32, v32, v32 row_ror:4 row_mask:0xf bank_mask:0xf')
    A('s_nop 1\nv_add_f32_dpp v32, v32, v32 row_ror:8 row_mask:0xf bank_mask:0xf')
    rbf(32)
    A('v_add_f32 v32, v32, v16\nv_mov_b32 v33, v32\ns_nop 1\nv_permlane16_swap_b32 v32, v33')
    A('v_cvt_pk_bf16_f32 v32, v32, v33\nv_min_u32 v32, -2, v32')
    A('s_mov_b32 exec_lo, 0xf\ns_mov_b32 exec_hi, 0xf')
    A('global_store_dword v24, v32, %s sc1'%WS)
    A('s_mov_b64 exec, -1')
    A('L_rdone:')
    A('s_cmp_eq_u32 s48, 7\ns_cbranch_scc1 L_ffn2')
    poll(['global_load_dwordx4 v[32:35], v4, %s sc1'%WS,'global_load_dwordx4 v[36:39], v4, %s offset:512 sc1'%WS],list(range(32,40)))
    stamp(11)
    layernorm()
    A('s_waitcnt lgkmcnt(0)\ns_barrier')
    gemm16(96)
    A('s_waitcnt lgkmcnt(0)\ns_barrier')
    A('s_cmp_lg_u32 s53, 0\ns_cbranch_scc1 L_end')
    for w in range(4):
        A('ds_read_b32 v%d, v26 offset:%d'%(32+w,L_DP+2048*w))
        A('ds_read_b32 v%d, v26 offset:%d'%(36+w,L_DP+2048*w+512))
    A('s_waitcnt lgkmcnt(0)')
    A('v_add_f32 v32, v32, v33\nv_add_f32 v34, v34, v35\nv_add_f32 v36, v36, v37\nv_add_f32 v38, v38, v39')
    A('v_add_f32 v32, v32, v34\nv_add_f32 v36, v36, v38')
    A('v_cvt_pk_bf16_f32 v32, v32, v36\nv_and_b32 v36, s60, v32\nv_lshlrev_b32 v32, 16, v32')
    A('v_mul_f32 v33, v32, v32\nv_mul_f32 v33, 0x3d372713, v33\nv_fma_f32 v33, v33, v32, v32')
    A('v_mul_f32 v33, 0xc0135761, v33\nv_exp_f32 v33, v33\ns_nop 0\nv_add_f32 v33, 1.0, v33\nv_rcp_f32 v33, v33\ns_nop 0\nv_mul_f32 v33, v33, v32')
    rbf(33)
    A('v_mul_f32 v33, v33, v36')
    A('s_nop 1\nv_mov_b32_dpp v34, v33 quad_perm:[1,0,3,2] row_mask:0xf bank_mask:0xf')
    A('v_cvt_pk_bf16_f32 v33, v33, v34\nv_min_u32 v33, -2, v33')
    A('s_mov_b32 exec_lo, 0x55555555\ns_mov_b32 exec_hi, 0x55555555')
    A('global_store_dword v27, v33, %s sc1'%WS)
    if cfg.diag:
        A('s_mov_b64 exec, -1')
        stamp(12)
        dump_stamps(13,64,8)
    A('s_endpgm')
    A('L_ffn2:')
    poll(['global_load_dword v30, v29, %s sc1'%WS],[30])
    stamp(11)
    poll(['global_load_dwordx4 v[%d:%d], v27, %s offset:%d sc1'%(32+4*t,35+4*t,WS,1024*t-3072) for t in range(7)],list(range(32,60)))
    stamp(12)
    for t in range(7):
        for tt in range(2):
            acc='v[%d:%d]'%(64+4*tt,67+4*tt)
            r=96+8*t+4*tt
            A('v_mfma_f32_16x16x32_bf16 %s, v[%d:%d], v[%d:%d], %s'%(acc,r,r+3,32+4*t,35+4*t,'0' if t==0 else acc))
    A('s_nop 6')
    A('ds_write_b128 v10, v[64:67] offset:%d'%L_DP)
    A('ds_write_b128 v10, v[68:71] offset:%d'%(L_DP+1024))
    A('s_waitcnt lgkmcnt(0)\ns_barrier')
    A('s_cmp_lg_u32 s53, 0\ns_cbranch_scc1 L_end')
    for w in range(4):
        A('ds_read_b64 v[%d:%d], v26 offset:%d'%(32+4*w,33+4*w,L_DP+2048*w))
        A('ds_read_b64 v[%d:%d], v26 offset:%d'%(34+4*w,35+4*w,L_DP+2048*w+640))
    A('v_lshlrev_b32 v60, 16, v30\nv_and_b32 v61, s60, v30')
    A('s_waitcnt lgkmcnt(0)')
    for w in range(4): A('v_pk_add_f32 v[%d:%d], v[%d:%d], v[%d:%d]'%(32+4*w,33+4*w,32+4*w,33+4*w,34+4*w,35+4*w))
    A('v_pk_add_f32 v[32:33], v[32:33], v[36:37]\nv_pk_add_f32 v[40:41], v[40:41], v[44:45]\nv_pk_add_f32 v[32:33], v[32:33], v[40:41]')
    A('v_cvt_pk_bf16_f32 v32, v32, v33\nv_and_b32 v33, s60, v32\nv_lshlrev_b32 v32, 16, v32')
    A('v_pk_add_f32 v[32:33], v[32:33], v[60:61]')
    A('v_cvt_pk_bf16_f32 v32, v32, v33')
    A('global_store_dword v28, v32, %s'%OUT)
    if cfg.diag:
        stamp(13)
        dump_stamps(14,64,8)
    A('L_end:')
    A('s_endpgm')
    A('.section .rodata,"a"\n.p2align 6\n.amdhsa_kernel %s'%K)
    A('  .amdhsa_next_free_vgpr 256\n  .amdhsa_next_free_sgpr 102\n  .amdhsa_accum_offset 256\n  .amdhsa_group_segment_fixed_size 0\n  .amdhsa_kernarg_size 96')
    A('  .amdhsa_user_sgpr_count 2\n  .amdhsa_user_sgpr_kernarg_segment_ptr 1\n  .amdhsa_system_sgpr_workgroup_id_x 1')
    A('  .amdhsa_float_denorm_mode_32 3\n  .amdhsa_float_denorm_mode_16_64 3')
    A('.end_amdhsa_kernel')
    return '\n'.join(L)+'\n'

if __name__=='__main__':
    cfg=Cfg()
    out=sys.argv[1]
    for a in sys.argv[2:]:
        k,v=a.split('='); setattr(cfg,k,eval(v))
    s=gen(cfg)
    hdr=''.join(l for l in open('cdna_kernels/%s.s.ref'%NAME).readlines()[:13])
    open(out,'w').write(hdr+s)
```

```python
import sys
NAME='sequential_preLN__gqa_block_cached__geglu_ffn__decode'
K=NAME+'_kernel'

class Cfg:
    diag=False
    NG=6
    wlate=False
    spin=1<<17
    T=8
    lag=2
    kf='nt'
    leak=None
    noML=False
    noQ=False
    mlsleep=4
    noPoll=False
    noClr=False
    noFlag=False
    noWq=False
    wf='nt'
    noW=False
    fsleep=0
    vf='nt'

QB=0x0
CLR=0x100000
OP=0x100000
WP=0x180000
MISC=0x200000
HB=MISC
AB=MISC+0x2000
ML=MISC+0xA000
STAMP=0x10000000
L_CNT=0
L_MLW=64
L_QL=256
L_XN=1280
XNS=1040
L_XO=9600
XOS=272
L_DP=11776
L_OW=19968
L_ST=28160
L_WA=28672
L_WB=L_WA+16384
L_WC=L_WB+16384
LDS_BYTES=L_WC+57344

LOG2E=0x3fb8aa3b
SCALE=0x3db504f3

def gen(cfg):
    L=[]
    def A(s):
        for x in s.split('\n'):
            L.append(x)
    lab=[0]
    def newlab(p):
        lab[0]+=1
        return 'L_%s_%d'%(p,lab[0])
    nst=[0]
    X,KP,VP,WQ,WO,BX,WG,WU,WD,OUT,DBG,WS=['s[%d:%d]'%(16+2*i,17+2*i) for i in range(12)]
    def stamp(i):
        if cfg.diag:
            A('s_memrealtime s[%d:%d]'%(72+2*i,73+2*i))
    def pack_stamps(n,vt):
        A('s_waitcnt lgkmcnt(0)')
        A('v_mov_b32 v%d, 0'%vt)
        for i in range(n):
            A('v_writelane_b32 v%d, s%d, %d'%(vt,72+2*i,i))
    def dump_stamps(n,base,vt):
        if not cfg.diag: return
        pack_stamps(n,vt)
        A('v_lshlrev_b32 v%d, 2, v0'%(vt+1))
        A('ds_read_b32 v%d, v%d offset:%d'%(vt+2,vt+1,L_ST))
        A('s_lshl_b32 s66, s2, 8\ns_add_u32 s66, s66, %d'%(STAMP))
        A('v_add_u32 v%d, s66, v%d'%(vt+1,vt+1))
        A('s_mov_b64 exec, 0xffff')
        A('s_waitcnt lgkmcnt(0)')
        A('global_store_dword v%d, v%d, %s'%(vt+1,vt+2,WS))
        A('global_store_dword v%d, v%d, %s offset:64'%(vt+1,vt,WS))

    A('; @launch grid=(256,1,1) block=(512,1,1) lds=%d'%LDS_BYTES)
    A('.amdgcn_target "amdgcn-amd-amdhsa--gfx950"\n.text\n.globl %s\n.p2align 8\n.type %s,@function\n%s:'%(K,K,K))
    A('s_cmp_ge_u32 s2, 256\ns_cbranch_scc1 L_end')
    A('s_load_dwordx16 s[16:31], s[0:1], 0')
    A('s_load_dwordx8 s[32:39], s[0:1], 64')
    stamp(0)
    A('v_lshrrev_b32 v1, 6, v0')
    A('v_and_b32 v0, 63, v0')
    A('v_readfirstlane_b32 s52, v1')
    A('s_and_b32 s48, s2, 7\ns_lshr_b32 s49, s2, 3\ns_lshr_b32 s50, s49, 2\ns_and_b32 s51, s49, 3')
    A('s_mov_b32 s58, 0x%x\ns_mov_b32 s59, 0x%x\ns_mov_b32 s60, 0xffff0000'%(SCALE,LOG2E))
    A('v_mov_b32 v4, 0\nv_mov_b32 v5, 0\nv_mov_b32 v6, 0\nv_mov_b32 v7, 0')
    A('ds_write_b128 v4, v[4:7] offset:%d'%L_CNT)
    A('s_waitcnt lgkmcnt(0)')
    A('s_barrier')
    A('s_cmp_ge_u32 s52, 4\ns_cbranch_scc1 L_service')

    NG=cfg.NG
    RB=256-NG*32
    A('s_lshl_b32 s54, s50, 3\ns_add_u32 s54, s54, s48\ns_lshl_b32 s54, s54, 2\ns_add_u32 s54, s54, s51\ns_lshl_b32 s54, s54, 19')
    A('s_add_u32 s40, s18, s54\ns_addc_u32 s41, s19, 0\ns_and_b32 s41, s41, 0xffff\ns_mov_b32 s42, 0x80000\ns_mov_b32 s43, 0x20000')
    A('s_add_u32 s44, s20, s54\ns_addc_u32 s45, s21, 0\ns_and_b32 s45, s45, 0xffff\ns_mov_b32 s46, 0x80000\ns_mov_b32 s47, 0x20000')
    A('s_lshl_b32 s53, s52, 12')
    A('v_lshlrev_b32 v1, 4, v0')
    A('v_lshrrev_b32 v2, 4, v0\nv_lshlrev_b32 v2, 6, v2\nv_and_b32 v3, 3, v0\nv_lshl_add_u32 v2, v3, 4, v2')
    A('v_bfe_u32 v3, v0, 2, 2\nv_lshl_add_u32 v2, v3, 8, v2')
    A('s_mov_b32 s56, 0x05040100\ns_mov_b32 s57, 0x07060302')
    TH=cfg.T
    st={'n':0}
    def issue(k,Gfree):
        for _ in range(k):
            n=st['n']
            if n>=256: return
            G=n//8
            assert G-NG<=Gfree,(n,Gfree)
            t=G//16; gi=G%16; h=(n%8)//4; j=n%4
            if j==0: A('s_add_u32 s54, s53, %d'%((2*gi+h)*16384))
            if n>=TH: A('s_waitcnt vmcnt(%d)'%(TH-1))
            r=RB+(n%(NG*8))*4
            A('buffer_load_dwordx4 v[%d:%d], %s, %s, s54 offen offset:%d %s'%(r,r+3,'v2' if t==0 else 'v1','s[40:43]' if t==0 else 's[44:47]',j*1024,cfg.kf if t==0 else cfg.vf))
            st['n']=n+1
    def wait_group(G):
        rem=st['n']-(G+1)*8
        assert rem>=0
        if rem<TH: A('s_waitcnt vmcnt(%d)'%rem)
    def quota(G):
        want=min(256,(G+1+cfg.lag)*8)
        return max(4,want-st['n']) if want<256 or st['n']<256 else 0
    issue(NG*8,-1)
    stamp(1)
    A('s_barrier')
    A('ds_read_b128 v[4:7], v1 offset:%d'%L_QL)
    stamp(2)
    A('v_mov_b32 v14, 0xff800000')
    A('s_waitcnt lgkmcnt(0)')
    for G in range(16):
        base=RB+(G%NG)*32
        wait_group(G)
        for i in range(8):
            A('v_mfma_f32_16x16x32_bf16 v[%d:%d], v[%d:%d], v[4:7], 0'%(32+4*i,35+4*i,base+4*i,base+4*i+3))
        A('s_nop 1')
        q=quota(G)
        for be in range(4):
            issue(q//4,G)
            for step in range(3):
                for e in range(2):
                    D=32+4*(2*be+e)
                    S=8+e
                    src0=D+((be+step+1)&3)
                    src1=(D+be) if step==0 else S
                    A('v_add_f32_dpp v%d, v%d, v%d row_ror:%d row_mask:0xf bank_mask:0x%x'%(S,src0,src1,12-4*step,1<<be))
                A('s_nop 0')
        A('v_cvt_pk_bf16_f32 v10, v8, v9')
        A('v_lshlrev_b32 v11, 16, v10\nv_and_b32 v12, s60, v10')
        A('v_mul_f32 v11, s58, v11\nv_mul_f32 v12, s58, v12')
        A('v_cvt_pk_bf16_f32 v%d, v11, v12'%(16+G))
        A('v_lshlrev_b32 v11, 16, v%d\nv_and_b32 v12, s60, v%d'%(16+G,16+G))
        A('v_max3_f32 v14, v14, v11, v12')
    stamp(3)
    def wave_red(op,r,t):
        A('s_nop 1')
        A('%s_dpp v%d, v%d, v%d row_ror:4 row_mask:0xf bank_mask:0xf'%(op,r,r,r))
        A('s_nop 1')
        A('%s_dpp v%d, v%d, v%d row_ror:8 row_mask:0xf bank_mask:0xf'%(op,r,r,r))
        A('v_mov_b32 v%d, v%d\ns_nop 1\nv_permlane16_swap_b32 v%d, v%d\n%s v%d, v%d, v%d'%(t,r,r,t,op,r,r,t))
        A('v_mov_b32 v%d, v%d\ns_nop 1\nv_permlane32_swap_b32 v%d, v%d\n%s v%d, v%d, v%d'%(t,r,r,t,op,r,r,t))
    wave_red('v_max_f32',14,13)
    A('v_mov_b32 v15, 0')
    for G in range(16):
        A('v_lshlrev_b32 v8, 16, v%d\nv_and_b32 v9, s60, v%d'%(16+G,16+G))
        A('v_sub_f32 v8, v8, v14\nv_sub_f32 v9, v9, v14')
        A('v_mul_f32 v8, s59, v8\nv_mul_f32 v9, s59, v9')
        A('v_exp_f32 v8, v8\nv_exp_f32 v9, v9\ns_nop 0')
        A('v_cvt_pk_bf16_f32 v%d, v8, v9'%(16+G))
        A('v_add_f32 v15, v15, v8\nv_add_f32 v15, v15, v9')
        if G%4==3: issue(1,15)
    wave_red('v_add_f32',15,13)
    A('s_lshl_b32 s55, s52, 5')
    A('v_lshlrev_b32 v3, 3, v0\nv_add_u32 v3, s55, v3')
    A('v_mov_b32 v8, 0\nv_mov_b32 v9, 1')
    A('s_mov_b64 exec, 0xf')
    A('ds_write_b64 v3, v[14:15] offset:%d'%L_MLW)
    A('s_mov_b64 exec, 1')
    A('s_waitcnt lgkmcnt(0)')
    A('ds_add_u32 v8, v9 offset:%d'%(L_CNT+8))
    A('s_mov_b64 exec, -1')
    stamp(4)
    A('s_lshl_b32 s55, s52, 11')
    A('v_and_b32 v3, 3, v0\nv_lshlrev_b32 v3, 9, v3\nv_and_b32 v2, 0x30, v0\nv_add3_u32 v3, v3, v2, s55')
    A('s_waitcnt lgkmcnt(0)')
    for G in range(16,32):
        base=RB+(G%NG)*32
        P=16+(G-16)
        A('v_mov_b32 v4, v%d'%P)
        for r in range(1,4):
            A('v_mov_b32_dpp v%d, v%d row_ror:%d row_mask:0xf bank_mask:0xf'%(4+r,P,16-4*r))
        wait_group(G)
        def perms(j):
            T=8+4*(j&1)
            for ii in range(4):
                A('v_perm_b32 v%d, v%d, v%d, s%d'%(T+ii,base+4*(2*ii+1)+(j>>1),base+4*(2*ii)+(j>>1),56+(j&1)))
        perms(0)
        q=quota(G)
        for j in range(8):
            issue((q*(j+1))//8-(q*j)//8,G-1)
            if j<7: perms(j+1)
            else: A('s_nop 1')
            T=8+4*(j&1)
            acc='v[%d:%d]'%(32+4*j,35+4*j)
            A('v_mfma_f32_16x16x32_bf16 %s, v[%d:%d], v[4:7], %s'%(acc,T,T+3,'0' if G==16 else acc))
    A('s_mov_b32 exec_lo, 0x000f000f\ns_mov_b32 exec_hi, 0x000f000f')
    stamp(5)
    for j in range(8):
        if j==6: A('s_nop 3')
        A('ds_write_b128 v3, v[%d:%d] offset:%d'%(32+4*j,35+4*j,L_OW+64*j))
    if cfg.diag:
        A('s_mov_b64 exec, -1')
        A('s_cmp_lg_u32 s52, 0\ns_cbranch_scc1 L_nost')
        pack_stamps(6,8)
        A('v_lshlrev_b32 v9, 2, v0')
        A('ds_write_b32 v9, v8 offset:%d'%L_ST)
        A('L_nost:')
    A('s_waitcnt lgkmcnt(0)')
    A('s_barrier')
    A('s_endpgm')

    A('L_service:')
    A('s_setprio 3')
    A('s_sub_u32 s53, s52, 4')
    A('v_lshlrev_b32 v1, 4, v0')
    A('v_lshrrev_b32 v2, 5, v0\ns_lshl_b32 s54, s53, 1\nv_add_u32 v2, s54, v2')
    A('v_and_b32 v3, 31, v0\nv_lshlrev_b32 v3, 4, v3')
    A('v_lshl_add_u32 v4, v2, 10, v3')
    A('v_mul_u32_u24 v5, %d, v2\nv_add_u32 v5, v5, v3'%XNS)
    A('global_load_dwordx4 v[32:35], v4, %s'%X)
    A('global_load_dwordx4 v[36:39], v4, %s offset:512'%X)
    A('v_lshrrev_b32 v6, 1, v0\ns_lshl_b32 s54, s53, 7\nv_add_u32 v6, s54, v6\nv_lshlrev_b32 v6, 13, v6')
    A('v_and_b32 v7, 1, v0\nv_lshl_add_u32 v6, v7, 4, v6')
    A('s_lshl_b32 s54, s48, 10\ns_lshl_b32 s55, s49, 5\ns_add_u32 s54, s54, s55\nv_add_u32 v6, s54, v6')
    A('s_lshl_b32 s66, s53, 12')
    if cfg.noWq: A('v_and_b32 v6, 0x3ff, v1\ns_lshl_b32 s54, s2, 10\nv_add_u32 v6, s54, v6')
    for i in range(4):
        A('s_add_u32 m0, s66, %d'%(L_WA+i*1024))
        if i: A('v_add_u32 v6, 0x40000, v6')
        else: A('s_nop 0')
        A('global_load_lds_dwordx4 v6, %s %s'%(WQ,cfg.wf))
    A('v_mov_b32 v40, -1\nv_mov_b32 v41, -1\nv_mov_b32 v42, -1\nv_mov_b32 v43, -1')
    A('s_lshl_b32 s54, s2, 12\ns_lshl_b32 s55, s53, 10\ns_add_u32 s54, s54, s55\ns_add_u32 s54, s54, %d'%CLR)
    A('v_add_u32 v6, s54, v1')
    if cfg.noClr: A('s_mov_b64 exec, 1')
    A('global_store_dwordx4 v6, v[40:43], %s sc1'%WS)
    A('s_lshl_b32 s54, s2, 8\ns_lshl_b32 s55, s53, 6\ns_add_u32 s54, s54, s55\ns_add_u32 s54, s54, %d'%MISC)
    A('v_add_u32 v6, s54, v1')
    A('s_mov_b64 exec, 0xf')
    A('global_store_dwordx4 v6, v[40:43], %s sc1'%WS)
    A('s_mov_b64 exec, -1')
    A('v_lshrrev_b32 v8, 4, v0\nv_lshlrev_b32 v8, 8, v8')
    A('v_and_b32 v9, 15, v0\nv_lshl_add_u32 v8, v9, 3, v8')
    A('v_add_u32 v8, s66, v8')
    A('v_and_b32 v9, 7, v0\nv_mul_u32_u24 v9, %d, v9\nv_and_b32 v10, 0x30, v0\ns_lshl_b32 s54, s53, 8\nv_add3_u32 v9, v9, v10, s54'%XNS)
    A('s_lshl_b32 s54, s53, 11\nv_add_u32 v10, s54, v1')
    A('v_mov_b32 v11, 0\nv_mov_b32 v12, 1')

    def half_red_add(r,t):
        for k in (1,2,4,8):
            A('s_nop 1')
            A('v_add_f32_dpp v%d, v%d, v%d row_ror:%d row_mask:0xf bank_mask:0xf'%(r,r,r,k))
        A('v_mov_b32 v%d, v%d\ns_nop 1\nv_permlane16_swap_b32 v%d, v%d\nv_add_f32 v%d, v%d, v%d'%(t,r,r,t,r,r,t))
    def rbf(r):
        A('v_cvt_pk_bf16_f32 v%d, v%d, v%d\nv_lshlrev_b32 v%d, 16, v%d'%(r,r,r,r,r))
    def layernorm():
        for i in range(8):
            A('v_lshlrev_b32 v%d, 16, v%d\nv_and_b32 v%d, s60, v%d'%(48+2*i,32+i,49+2*i,32+i))
        A('v_pk_add_f32 v[64:65], v[48:49], v[50:51]\nv_pk_add_f32 v[66:67], v[52:53], v[54:55]')
        A('v_pk_add_f32 v[64:65], v[64:65], v[56:57]\nv_pk_add_f32 v[66:67], v[66:67], v[58:59]')
        A('v_pk_add_f32 v[64:65], v[64:65], v[60:61]\nv_pk_add_f32 v[66:67], v[66:67], v[62:63]')
        A('v_pk_add_f32 v[64:65], v[64:65], v[66:67]\nv_add_f32 v64, v64, v65')
        half_red_add(64,65)
        A('v_mul_f32 v64, 0x3b000000, v64')
        A('v_mov_b32 v66, 0\nv_mov_b32 v67, 0')
        for i in range(8):
            A('v_sub_f32 v68, v%d, v64\nv_sub_f32 v69, v%d, v64'%(48+2*i,49+2*i))
            A('v_fmac_f32 v66, v68, v68\nv_fmac_f32 v67, v69, v69')
        A('v_add_f32 v66, v66, v67')
        half_red_add(66,67)
        A('v_mul_f32 v66, 0x3b000000, v66')
        rbf(64); rbf(66)
        A('v_add_f32 v66, 0x3727c5ac, v66')
        rbf(66)
        A('v_sqrt_f32 v66, v66\ns_nop 0')
        rbf(66)
        A('v_rcp_f32 v66, v66')
        for i in range(8):
            A('v_sub_f32 v68, v%d, v64\nv_sub_f32 v69, v%d, v64'%(48+2*i,49+2*i))
            A('v_cvt_pk_bf16_f32 v68, v68, v69')
            A('v_and_b32 v69, s60, v68\nv_lshlrev_b32 v68, 16, v68')
            A('v_mul_f32 v68, v68, v66\nv_mul_f32 v69, v69, v66')
            A('v_cvt_pk_bf16_f32 v%d, v68, v69'%(32+i))
        A('ds_write_b128 v5, v[32:35] offset:%d'%L_XN)
        A('ds_write_b128 v5, v[36:39] offset:%d'%(L_XN+512))
    def lds_sync(cnt):
        l=newlab('ls')
        A('s_waitcnt lgkmcnt(0)')
        A('s_mov_b64 exec, 1\nds_add_u32 v11, v12 offset:%d\ns_mov_b64 exec, -1'%(L_CNT+4*cnt))
        A('%s:'%l)
        A('ds_read_b32 v13, v11 offset:%d\ns_waitcnt lgkmcnt(0)\nv_readfirstlane_b32 s54, v13\ns_cmp_lt_u32 s54, 4\ns_cbranch_scc1 %s'%(L_CNT+4*cnt,l))
    def gemm16(wreg):
        for st in range(4):
            A('ds_read_b128 v[%d:%d], v9 offset:%d'%(32+4*st,35+4*st,L_XN+64*st))
        for st in range(4):
            A('s_waitcnt lgkmcnt(%d)'%(3-st))
            A('v_mfma_f32_16x16x32_bf16 v[48:51], v[%d:%d], v[%d:%d], %s'%(wreg+4*st,wreg+4*st+3,32+4*st,35+4*st,'0' if st==0 else 'v[48:51]'))
        A('s_nop 7')
        A('ds_write_b128 v10, v[48:51] offset:%d'%L_DP)
    def poll(loads,regs,sleep=0):
        l=newlab('pl'); d=newlab('pd')
        A('s_mov_b32 s61, %d'%cfg.spin)
        A('%s:'%l)
        for x in loads: A(x)
        A('s_waitcnt vmcnt(0)')
        r=list(regs)
        if len(r)==1: A('v_cmp_eq_u32 vcc, -1, v%d'%r[0])
        else:
            if len(r)==2: A('v_max_u32 v13, v%d, v%d'%(r[0],r[1])); r=[]
            else: A('v_max3_u32 v13, v%d, v%d, v%d'%(r[0],r[1],r[2])); r=r[3:]
            while r:
                if len(r)==1: A('v_max_u32 v13, v13, v%d'%r[0]); r=[]
                else: A('v_max3_u32 v13, v13, v%d, v%d'%(r[0],r[1])); r=r[2:]
            A('v_cmp_eq_u32 vcc, -1, v13')
        A('s_cbranch_vccz %s'%d)
        if sleep: A('s_sleep %d'%sleep)
        A('s_sub_u32 s61, s61, 1\ns_cmp_lg_u32 s61, 0\ns_cbranch_scc1 %s'%l)
        A('%s:'%d)
    def flagpoll(voff,execmask):
        l=newlab('fl'); d=newlab('fd')
        A('s_mov_b32 s61, %d\ns_mov_b32 s54, 0x01010101'%cfg.spin)
        A('s_mov_b64 exec, %s'%execmask)
        A('%s:'%l)
        A('global_load_dword v13, v%d, %s sc1\ns_waitcnt vmcnt(0)'%(voff,DBG))
        A('v_cmp_ne_u32 vcc, s54, v13\ns_cbranch_vccz %s'%d)
        if cfg.fsleep: A('s_sleep %d'%cfg.fsleep)
        A('s_sub_u32 s61, s61, 1\ns_cmp_lg_u32 s61, 0\ns_cbranch_scc1 %s'%l)
        A('%s:'%d)
        A('s_mov_b64 exec, -1')

    A('s_waitcnt vmcnt(6)')
    stamp(1)
    layernorm()
    A('s_waitcnt vmcnt(2)')
    for st in range(4):
        A('ds_read_b64_tr_b16 v[%d:%d], v8 offset:%d'%(80+4*st,81+4*st,L_WA+1024*st))
        A('ds_read_b64_tr_b16 v[%d:%d], v8 offset:%d'%(82+4*st,83+4*st,L_WA+1024*st+128))
    lds_sync(0)
    gemm16(80)
    A('s_waitcnt vmcnt(0)')
    lds_sync(1)
    stamp(2)
    A('s_cmp_lg_u32 s53, %d\ns_cbranch_scc1 L_qdone'%(9 if cfg.noQ else 0))
    for w in range(4):
        A('ds_read_b128 v[%d:%d], v1 offset:%d'%(32+4*w,35+4*w,L_DP+2048*w))
    A('v_and_b32 v6, 15, v0\nv_lshlrev_b32 v6, 13, v6\nv_lshrrev_b32 v7, 4, v0\nv_lshl_add_u32 v6, v7, 3, v6')
    A('s_lshl_b32 s54, s48, 10\ns_lshl_b32 s55, s49, 5\ns_add_u32 s54, s54, s55\nv_add_u32 v6, s54, v6')
    A('s_waitcnt lgkmcnt(0)')
    A('v_pk_add_f32 v[32:33], v[32:33], v[36:37]\nv_pk_add_f32 v[34:35], v[34:35], v[38:39]')
    A('v_pk_add_f32 v[40:41], v[40:41], v[44:45]\nv_pk_add_f32 v[42:43], v[42:43], v[46:47]')
    A('v_pk_add_f32 v[32:33], v[32:33], v[40:41]\nv_pk_add_f32 v[34:35], v[34:35], v[42:43]')
    A('v_cvt_pk_bf16_f32 v32, v32, v33\nv_cvt_pk_bf16_f32 v33, v34, v35')
    A('s_mov_b32 exec_lo, 0x00ff00ff\ns_mov_b32 exec_hi, 0x00ff00ff')
    A('global_store_dwordx2 v6, v[32:33], %s sc1'%WS)
    A('s_mov_b64 exec, -1')
    A('s_lshl_b32 s54, s48, 5\nv_lshlrev_b32 v7, 2, v0\nv_add_u32 v7, s54, v7')
    A('s_add_u32 s54, s54, s49\nv_mov_b32 v6, s54')
    A('s_waitcnt vmcnt(0)')
    if not cfg.noFlag: A('s_mov_b64 exec, 1\nglobal_store_byte v6, v12, %s sc1\ns_mov_b64 exec, -1'%DBG)
    stamp(3)
    A('v_and_b32 v6, 3, v0\nv_lshlrev_b32 v6, 8, v6\nv_lshrrev_b32 v14, 2, v0\nv_lshl_add_u32 v6, v14, 4, v6')
    A('s_lshl_b32 s54, s50, 13\ns_lshl_b32 s55, s48, 10\ns_add_u32 s54, s54, s55\nv_add_u32 v6, s54, v6')
    if not cfg.noPoll: flagpoll(7,'0xff')
    stamp(4)
    A('global_load_dwordx4 v[32:35], v6, %s sc1\ns_waitcnt vmcnt(0)'%WS)
    A('ds_write_b128 v1, v[32:35] offset:%d'%L_QL)
    stamp(5)
    A('s_waitcnt lgkmcnt(0)')
    A('L_qdone:')
    A('s_setprio 0')

    def weight_dma():
        A('s_lshr_b32 s54, s49, 3\ns_lshl_b32 s55, s48, 2\ns_add_u32 s54, s54, s55\ns_lshl_b32 s54, s54, 17')
        A('s_and_b32 s55, s49, 7\ns_lshl_b32 s55, s55, 7\ns_add_u32 s54, s54, s55\ns_lshl_b32 s55, s53, 5\ns_add_u32 s54, s54, s55')
        A('v_bfe_u32 v6, v0, 3, 2\nv_lshlrev_b32 v6, 5, v6\nv_bfe_u32 v7, v0, 1, 2\nv_lshl_add_u32 v6, v7, 3, v6\nv_lshrrev_b32 v7, 5, v0\nv_add_u32 v6, v6, v7')
        A('v_lshlrev_b32 v6, 10, v6\nv_and_b32 v7, 1, v0\nv_lshl_add_u32 v6, v7, 4, v6\nv_add_u32 v6, s54, v6')
        for i in range(4):
            A('s_add_u32 m0, s66, %d'%(L_WB+i*1024))
            if i: A('v_add_u32 v6, 2048, v6')
            else: A('s_nop 0')
            A('global_load_lds_dwordx4 v6, %s %s'%(WO,cfg.wf))
        l2=newlab('w2'); le=newlab('we')
        A('s_cmp_eq_u32 s48, 7\ns_cbranch_scc1 %s'%l2)
        A('s_lshl_b32 s54, s48, 5\ns_add_u32 s54, s54, s49\ns_lshl_b32 s54, s54, 4')
        A('s_lshl_b32 s55, s53, 7\nv_add_u32 v6, s55, v0\nv_mul_u32_u24 v6, 3584, v6\nv_add_u32 v6, s54, v6')
        A('v_add_u32 v7, %d, v6'%(64*3584))
        for i,(v,p) in enumerate(((6,WG),(7,WG),(6,WU),(7,WU))):
            A('s_add_u32 m0, s66, %d\ns_nop 0'%(L_WA+i*1024))
            A('global_load_lds_dwordx4 v%d, %s %s'%(v,p,cfg.wf))
        A('s_branch %s'%le)
        A('%s:'%l2)
        A('s_mul_i32 s54, s53, 448\nv_lshrrev_b32 v6, 1, v0\nv_add_u32 v6, s54, v6\nv_lshlrev_b32 v6, 10, v6')
        A('v_and_b32 v7, 1, v0\nv_lshl_add_u32 v6, v7, 4, v6\ns_lshl_b32 s54, s49, 5\nv_add_u32 v6, s54, v6')
        A('s_mul_i32 s55, s53, 14336')
        for i in range(14):
            A('s_add_u32 m0, s55, %d'%(L_WC+i*1024))
            if i: A('v_add_u32 v6, 0x8000, v6')
            else: A('s_nop 0')
            A('global_load_lds_dwordx4 v6, %s %s'%(WD,cfg.wf))
        A('%s:'%le)
    def weight_read():
        for st in range(4):
            A('ds_read_b64_tr_b16 v[%d:%d], v8 offset:%d'%(80+4*st,81+4*st,L_WB+1024*st))
            A('ds_read_b64_tr_b16 v[%d:%d], v8 offset:%d'%(82+4*st,83+4*st,L_WB+1024*st+128))
        l2=newlab('r2'); le=newlab('re')
        A('s_cmp_eq_u32 s48, 7\ns_cbranch_scc1 %s'%l2)
        A('v_lshrrev_b32 v6, 4, v0\nv_lshlrev_b32 v6, 7, v6\nv_bfe_u32 v7, v0, 2, 2\nv_lshl_add_u32 v6, v7, 4, v6')
        A('v_and_b32 v7, 1, v0\nv_lshl_add_u32 v6, v7, 3, v6\nv_bfe_u32 v7, v0, 1, 1\nv_lshl_add_u32 v6, v7, 11, v6\nv_add_u32 v6, s66, v6')
        for st in range(4):
            A('ds_read_b64_tr_b16 v[%d:%d], v6 offset:%d'%(96+4*st,97+4*st,L_WA+512*st))
            A('ds_read_b64_tr_b16 v[%d:%d], v6 offset:%d'%(98+4*st,99+4*st,L_WA+512*st+64))
        A('s_branch %s'%le)
        A('%s:'%l2)
        A('v_lshrrev_b32 v6, 4, v0\nv_lshlrev_b32 v6, 9, v6\nv_bfe_u32 v7, v0, 1, 1\nv_lshl_add_u32 v6, v7, 8, v6\nv_bfe_u32 v7, v0, 2, 2\nv_lshl_add_u32 v6, v7, 5, v6')
        A('v_and_b32 v7, 1, v0\nv_lshl_add_u32 v6, v7, 3, v6\ns_mul_i32 s55, s53, 14336\ns_add_u32 s55, s55, %d\nv_add_u32 v6, s55, v6'%L_WC)
        for t in range(7):
            for tt in range(2):
                r=96+8*t+4*tt
                A('ds_read_b64_tr_b16 v[%d:%d], v6 offset:%d'%(r,r+1,2048*t+16*tt))
                A('ds_read_b64_tr_b16 v[%d:%d], v6 offset:%d'%(r+2,r+3,2048*t+16*tt+128))
            A('s_waitcnt lgkmcnt(0)')
        A('%s:'%le)
        A('s_waitcnt lgkmcnt(0)')

    A('s_barrier')
    if not cfg.noW: weight_dma()
    A('v_and_b32 v6, 3, v0\nv_lshlrev_b32 v6, 2, v6\nv_lshrrev_b32 v7, 4, v0\nv_add_u32 v6, v6, v7\nv_lshlrev_b32 v6, 1, v6')
    A('s_lshl_b32 s54, s2, 5\nv_add_u32 v6, s54, v6')
    A('global_load_ushort v16, v6, %s'%X)
    A('s_waitcnt vmcnt(0)')
    A('v_lshlrev_b32 v16, 16, v16')
    weight_read()
    A('v_lshlrev_b32 v7, 2, v0')
    if not cfg.noFlag: flagpoll(7,'-1')
    A('v_and_b32 v6, 31, v0\nv_lshlrev_b32 v6, 4, v6\ns_lshl_b32 s54, s53, 9\nv_add_u32 v17, s54, v6')
    A('s_lshl_b32 s54, s48, 2\ns_add_u32 s54, s54, s53\ns_lshl_b32 s54, s54, 5\ns_add_u32 s54, s54, s49\ns_lshl_b32 s54, s54, 9\ns_add_u32 s54, s54, %d\nv_add_u32 v18, s54, v6'%OP)
    A('s_lshr_b32 s54, s49, 3\ns_lshl_b32 s55, s48, 2\ns_add_u32 s67, s54, s55\ns_lshl_b32 s54, s67, 14\ns_add_u32 s54, s54, %d'%OP)
    A('v_lshl_add_u32 v19, v2, 11, v6\nv_add_u32 v19, s54, v19')
    A('v_mul_u32_u24 v20, %d, v2\nv_lshrrev_b32 v7, 1, v6\nv_add_u32 v20, v20, v7'%XOS)
    A('v_and_b32 v21, 7, v0\nv_mul_u32_u24 v21, %d, v21\nv_and_b32 v7, 0x30, v0\nv_add_u32 v21, v21, v7'%XOS)
    A('s_and_b32 s54, s49, 7\ns_lshl_b32 s54, s54, 2\ns_add_u32 s54, s54, s53\ns_lshl_b32 s54, s54, 5\ns_add_u32 s54, s54, s67\ns_lshl_b32 s54, s54, 6\ns_add_u32 s54, s54, %d'%WP)
    A('v_and_b32 v22, 7, v0\nv_lshlrev_b32 v22, 16, v22\nv_add3_u32 v22, v22, v7, s54')
    A('s_lshl_b32 s54, s2, 11\ns_add_u32 s54, s54, %d\nv_add_u32 v23, s54, v1'%WP)
    A('v_and_b32 v24, 3, v0\nv_lshlrev_b32 v24, 3, v24\nv_lshrrev_b32 v7, 5, v0\nv_lshl_add_u32 v24, v7, 2, v24\ns_lshl_b32 s54, s2, 5\ns_add_u32 s54, s54, %d\nv_add_u32 v24, s54, v24'%HB)
    A('v_add_u32 v4, %d, v4'%HB)
    A('s_lshl_b32 s54, s50, 3\ns_add_u32 s54, s54, s48\ns_lshl_b32 s54, s54, 7\ns_lshl_b32 s55, s53, 5\ns_add_u32 s54, s54, s55\ns_add_u32 s54, s54, %d'%ML)
    A('v_and_b32 v25, 3, v0\nv_lshlrev_b32 v25, 3, v25\nv_add_u32 v25, s54, v25')
    l2=newlab('a2'); le=newlab('ae')
    A('s_cmp_eq_u32 s48, 7\ns_cbranch_scc1 %s'%l2)
    A('v_bfe_u32 v26, v0, 2, 1\nv_lshlrev_b32 v26, 8, v26\nv_lshrrev_b32 v7, 3, v0\nv_lshl_add_u32 v26, v7, 4, v26\nv_and_b32 v7, 3, v0\nv_lshl_add_u32 v26, v7, 2, v26')
    A('s_lshl_b32 s54, s48, 5\ns_add_u32 s54, s54, s49\ns_lshl_b32 s54, s54, 7\ns_add_u32 s54, s54, %d'%AB)
    A('v_lshrrev_b32 v27, 1, v0\nv_lshlrev_b32 v27, 2, v27\nv_add_u32 v27, s54, v27')
    A('v_mov_b32 v28, 0')
    A('s_branch %s'%le)
    A('%s:'%l2)
    A('v_bfe_u32 v26, v0, 2, 1\nv_lshlrev_b32 v26, 10, v26\nv_bfe_u32 v7, v0, 1, 1\nv_lshl_add_u32 v26, v7, 8, v26\nv_lshrrev_b32 v7, 3, v0\nv_lshl_add_u32 v26, v7, 4, v26\nv_and_b32 v7, 1, v0\nv_lshl_add_u32 v26, v7, 3, v26')
    A('s_mul_i32 s54, s53, 7168\ns_add_u32 s54, s54, %d\nv_add_u32 v27, s54, v1'%(AB+3072))
    A('v_lshrrev_b32 v28, 3, v0\nv_lshlrev_b32 v28, 10, v28\nv_and_b32 v7, 7, v0\nv_lshl_add_u32 v28, v7, 2, v28\ns_lshl_b32 s54, s49, 5\nv_add_u32 v28, s54, v28')
    A('%s:'%le)
    A('v_add_u32 v29, %d, v28'%HB)
    stamp(6)
    lw=newlab('mw')
    A('%s:'%lw)
    A('s_sleep 8\nds_read_b32 v13, v11 offset:%d\ns_waitcnt lgkmcnt(0)\nv_readfirstlane_b32 s54, v13\ns_cmp_lt_u32 s54, 4\ns_cbranch_scc1 %s'%(L_CNT+8,lw))
    A('v_and_b32 v6, 3, v0\nv_lshlrev_b32 v6, 5, v6\ns_lshl_b32 s54, s53, 3\nv_add_u32 v6, s54, v6')
    A('ds_read_b64 v[32:33], v6 offset:%d\ns_waitcnt lgkmcnt(0)'%L_MLW)
    def quad(op,d,s):
        A('s_nop 1\n%s_dpp v%d, v%d, v%d quad_perm:[1,0,3,2] row_mask:0xf bank_mask:0xf'%(op,d,s,s))
        A('s_nop 1\n%s_dpp v%d, v%d, v%d quad_perm:[2,3,0,1] row_mask:0xf bank_mask:0xf'%(op,d,d,d))
    def comb(m,l,M,Lr):
        quad('v_max_f32',M,m)
        A('v_sub_f32 v40, v%d, v%d\nv_mul_f32 v40, s59, v40\nv_exp_f32 v40, v40\ns_nop 0\nv_mul_f32 v40, v40, v%d'%(m,M,l))
        quad('v_add_f32',Lr,40)
    comb(32,33,34,35)
    A('v_min_u32 v34, -2, v34\nv_min_u32 v35, -2, v35')
    A('s_lshl_b32 s54, s51, 3\nv_add_u32 v6, s54, v25')
    A('s_mov_b64 exec, 1\nglobal_store_dwordx2 v6, v[34:35], %s sc1\ns_mov_b64 exec, -1'%WS)
    if not cfg.noML: poll(['global_load_dwordx2 v[36:37], v25, %s sc1'%WS],[36,37],sleep=cfg.mlsleep)
    comb(36,37,38,39)
    A('v_sub_f32 v40, v32, v38\nv_mul_f32 v40, s59, v40\nv_exp_f32 v40, v40\nv_rcp_f32 v39, v39\ns_nop 0\nv_mul_f32 v40, v40, v39\ns_nop 0')
    for w in range(4): A('v_readlane_b32 s%d, v40, %d'%(62+w,w))
    stamp(7)
    A('s_setprio 3')
    A('s_barrier')
    for w in range(4):
        A('ds_read_b128 v[%d:%d], v17 offset:%d'%(32+4*w,35+4*w,L_OW+2048*w))
    stamp(8)
    A('s_waitcnt lgkmcnt(0)')
    for r in range(4): A('v_mul_f32 v%d, s62, v%d'%(32+r,32+r))
    for w in range(1,4):
        for r in range(4): A('v_fmac_f32 v%d, s%d, v%d'%(32+r,62+w,32+4*w+r))
    for r in range(4): A('v_min_u32 v%d, -2, v%d'%(32+r,32+r))
    A('s_mov_b32 exec_hi, 0')
    A('global_store_dwordx4 v18, v[32:35], %s sc1'%WS)
    A('s_mov_b64 exec, -1')
    poll(['global_load_dwordx4 v[%d:%d], v19, %s offset:%d sc1'%(48+4*s,51+4*s,WS,512*s) for s in range(4)],list(range(48,64)))
    stamp(9)
    A('v_pk_add_f32 v[48:49], v[48:49], v[52:53]\nv_pk_add_f32 v[50:51], v[50:51], v[54:55]')
    A('v_pk_add_f32 v[56:57], v[56:57], v[60:61]\nv_pk_add_f32 v[58:59], v[58:59], v[62:63]')
    A('v_pk_add_f32 v[48:49], v[48:49], v[56:57]\nv_pk_add_f32 v[50:51], v[50:51], v[58:59]')
    A('v_cvt_pk_bf16_f32 v48, v48, v49\nv_cvt_pk_bf16_f32 v49, v50, v51')
    A('ds_write_b64 v20, v[48:49] offset:%d'%L_XO)
    A('s_waitcnt lgkmcnt(0)\ns_barrier')
    for st in range(4):
        A('ds_read_b128 v[%d:%d], v21 offset:%d'%(32+4*st,35+4*st,L_XO+64*st))
    for st in range(4):
        A('s_waitcnt lgkmcnt(%d)'%(3-st))
        A('v_mfma_f32_16x16x32_bf16 v[48:51], v[%d:%d], v[%d:%d], %s'%(80+4*st,83+4*st,32+4*st,35+4*st,'0' if st==0 else 'v[48:51]'))
    A('s_nop 7')
    for r in range(4): A('v_min_u32 v%d, -2, v%d'%(48+r,48+r))
    A('s_mov_b32 exec_lo, 0x00ff00ff\ns_mov_b32 exec_hi, 0x00ff00ff')
    A('global_store_dwordx4 v22, v[48:51], %s sc1'%WS)
    A('s_mov_b64 exec, -1')
    A('s_cmp_lg_u32 s53, 0\ns_cbranch_scc1 L_rdone')
    poll(['global_load_dwordx4 v[32:35], v23, %s sc1'%WS,'global_load_dwordx4 v[36:39], v23, %s offset:1024 sc1'%WS],list(range(32,40)))
    stamp(10)
    A('v_pk_add_f32 v[32:33], v[32:33], v[36:37]\nv_pk_add_f32 v[34:35], v[34:35], v[38:39]')
    A('s_nop 1\nv_permlane32_swap_b32 v32, v34\nv_permlane32_swap_b32 v33, v35')
    A('v_add_f32 v32, v32, v34\nv_add_f32 v33, v33, v35')
    A('s_nop 1\nv_permlane16_swap_b32 v32, v33\nv_add_f32 v32, v32, v33')
    A('s_nop 1\nv_add_f32_dpp v32, v32, v32 row_ror:4 row_mask:0xf bank_mask:0xf')
    A('s_nop 1\nv_add_f32_dpp v32, v32, v32 row_ror:8 row_mask:0xf bank_mask:0xf')
    rbf(32)
    A('v_add_f32 v32, v32, v16\nv_mov_b32 v33, v32\ns_nop 1\nv_permlane16_swap_b32 v32, v33')
    A('v_cvt_pk_bf16_f32 v32, v32, v33\nv_min_u32 v32, -2, v32')
    A('s_mov_b32 exec_lo, 0xf\ns_mov_b32 exec_hi, 0xf')
    A('global_store_dword v24, v32, %s sc1'%WS)
    A('s_mov_b64 exec, -1')
    A('L_rdone:')
    A('s_cmp_eq_u32 s48, 7\ns_cbranch_scc1 L_ffn2')
    poll(['global_load_dwordx4 v[32:35], v4, %s sc1'%WS,'global_load_dwordx4 v[36:39], v4, %s offset:512 sc1'%WS],list(range(32,40)))
    stamp(11)
    layernorm()
    A('s_waitcnt lgkmcnt(0)\ns_barrier')
    gemm16(96)
    A('s_waitcnt lgkmcnt(0)\ns_barrier')
    A('s_cmp_lg_u32 s53, 0\ns_cbranch_scc1 L_end')
    for w in range(4):
        A('ds_read_b32 v%d, v26 offset:%d'%(32+w,L_DP+2048*w))
        A('ds_read_b32 v%d, v26 offset:%d'%(36+w,L_DP+2048*w+512))
    A('s_waitcnt lgkmcnt(0)')
    A('v_add_f32 v32, v32, v33\nv_add_f32 v34, v34, v35\nv_add_f32 v36, v36, v37\nv_add_f32 v38, v38, v39')
    A('v_add_f32 v32, v32, v34\nv_add_f32 v36, v36, v38')
    A('v_cvt_pk_bf16_f32 v32, v32, v36\nv_and_b32 v36, s60, v32\nv_lshlrev_b32 v32, 16, v32')
    A('v_mul_f32 v33, v32, v32\nv_mul_f32 v33, 0x3d372713, v33\nv_fma_f32 v33, v33, v32, v32')
    A('v_mul_f32 v33, 0xc0135761, v33\nv_exp_f32 v33, v33\ns_nop 0\nv_add_f32 v33, 1.0, v33\nv_rcp_f32 v33, v33\ns_nop 0\nv_mul_f32 v33, v33, v32')
    rbf(33)
    A('v_mul_f32 v33, v33, v36')
    A('s_nop 1\nv_mov_b32_dpp v34, v33 quad_perm:[1,0,3,2] row_mask:0xf bank_mask:0xf')
    A('v_cvt_pk_bf16_f32 v33, v33, v34\nv_min_u32 v33, -2, v33')
    A('s_mov_b32 exec_lo, 0x55555555\ns_mov_b32 exec_hi, 0x55555555')
    A('global_store_dword v27, v33, %s sc1'%WS)
    if cfg.diag:
        A('s_mov_b64 exec, -1')
        stamp(12)
        dump_stamps(13,64,8)
    A('s_endpgm')
    A('L_ffn2:')
    poll(['global_load_dword v30, v29, %s sc1'%WS],[30])
    stamp(11)
    poll(['global_load_dwordx4 v[%d:%d], v27, %s offset:%d sc1'%(32+4*t,35+4*t,WS,1024*t-3072) for t in range(7)],list(range(32,60)))
    stamp(12)
    for t in range(7):
        for tt in range(2):
            acc='v[%d:%d]'%(64+4*tt,67+4*tt)
            r=96+8*t+4*tt
            A('v_mfma_f32_16x16x32_bf16 %s, v[%d:%d], v[%d:%d], %s'%(acc,r,r+3,32+4*t,35+4*t,'0' if t==0 else acc))
    A('s_nop 6')
    A('ds_write_b128 v10, v[64:67] offset:%d'%L_DP)
    A('ds_write_b128 v10, v[68:71] offset:%d'%(L_DP+1024))
    A('s_waitcnt lgkmcnt(0)\ns_barrier')
    A('s_cmp_lg_u32 s53, 0\ns_cbranch_scc1 L_end')
    for w in range(4):
        A('ds_read_b64 v[%d:%d], v26 offset:%d'%(32+4*w,33+4*w,L_DP+2048*w))
        A('ds_read_b64 v[%d:%d], v26 offset:%d'%(34+4*w,35+4*w,L_DP+2048*w+640))
    A('v_lshlrev_b32 v60, 16, v30\nv_and_b32 v61, s60, v30')
    A('s_waitcnt lgkmcnt(0)')
    for w in range(4): A('v_pk_add_f32 v[%d:%d], v[%d:%d], v[%d:%d]'%(32+4*w,33+4*w,32+4*w,33+4*w,34+4*w,35+4*w))
    A('v_pk_add_f32 v[32:33], v[32:33], v[36:37]\nv_pk_add_f32 v[40:41], v[40:41], v[44:45]\nv_pk_add_f32 v[32:33], v[32:33], v[40:41]')
    A('v_cvt_pk_bf16_f32 v32, v32, v33\nv_and_b32 v33, s60, v32\nv_lshlrev_b32 v32, 16, v32')
    A('v_pk_add_f32 v[32:33], v[32:33], v[60:61]')
    A('v_cvt_pk_bf16_f32 v32, v32, v33')
    A('global_store_dword v28, v32, %s'%OUT)
    if cfg.diag:
        stamp(13)
        if cfg.leak is not None:
            a,b=cfg.leak
            A('s_waitcnt lgkmcnt(0)')
            A('s_sub_u32 s54, s%d, s%d'%(72+2*b,72+2*a))
            A('s_min_u32 s54, s54, 20000')
            A('L_leak:')
            A('s_memrealtime s[68:69]\ns_waitcnt lgkmcnt(0)\ns_sub_u32 s55, s68, s%d\ns_cmp_lt_u32 s55, s54\ns_cbranch_scc1 L_leak'%(72+2*13))
        else: dump_stamps(14,64,8)
    A('L_end:')
    A('s_endpgm')
    A('.section .rodata,"a"\n.p2align 6\n.amdhsa_kernel %s'%K)
    A('  .amdhsa_next_free_vgpr 256\n  .amdhsa_next_free_sgpr 102\n  .amdhsa_accum_offset 256\n  .amdhsa_group_segment_fixed_size 0\n  .amdhsa_kernarg_size 96')
    A('  .amdhsa_user_sgpr_count 2\n  .amdhsa_user_sgpr_kernarg_segment_ptr 1\n  .amdhsa_system_sgpr_workgroup_id_x 1')
    A('  .amdhsa_float_denorm_mode_32 3\n  .amdhsa_float_denorm_mode_16_64 3')
    A('.end_amdhsa_kernel')
    return '\n'.join(L)+'\n'

if __name__=='__main__':
    cfg=Cfg()
    out=sys.argv[1]
    for a in sys.argv[2:]:
        k,v=a.split('='); setattr(cfg,k,eval(v))
    s=gen(cfg)
    hdr=''.join(l for l in open('cdna_kernels/%s.s.ref'%NAME).readlines()[:13])
    open(out,'w').write(hdr+s)
```

```python
import sys
NAME='sequential_preLN__gqa_block_cached__geglu_ffn__decode'
K=NAME+'_kernel'

class Cfg:
    diag=False
    leak=None
    NS=22
    sflag=False
    svcfirst=True
    spin=1<<17
    T=6
    kf='nt'; vf='nt'; wf='nt'; ff=''
    pq=3
    pw0=7
    pw1=22
    noW=False

QP=0x0
CTR=0x230000
CLR=0x100000
WP=0x100000
OP=0x180000
OPS=640
HB=0x220000
AB=0x224000
STAMP=0x10000000
L_CNT=0
L_MLW=64
L_QL=256
L_XN=1280
XNS=1040
L_XO=9600
XOS=272
L_DP=11776
L_OW=19968
L_ST=28160
L_PR=28416
L_WB=29696
L_WA=L_WB+16384
LDS_BYTES=L_WA+65536

LOG2E=0x3fb8aa3b
SCALE=0x3db504f3

def gen(cfg):
    L=[]
    def A(s):
        L.extend(s.split('\n'))
    lab=[0]
    def newlab(p):
        lab[0]+=1
        return 'L_%s_%d'%(p,lab[0])
    X,KP,VP,WQ,WO,BX,WG,WU,WD,OUT,DBG,WS=['s[%d:%d]'%(16+2*i,17+2*i) for i in range(12)]
    def stamp(i):
        if cfg.diag: A('s_memrealtime s[%d:%d]'%(72+2*i,73+2*i))
    def pack_stamps(n,vt):
        A('s_waitcnt lgkmcnt(0)')
        A('v_mov_b32 v%d, 0'%vt)
        for i in range(n): A('v_writelane_b32 v%d, s%d, %d'%(vt,72+2*i,i))
    def dump_stamps(n,vt):
        if not cfg.diag: return
        A('s_mov_b64 exec, -1')
        pack_stamps(n,vt)
        A('v_lshlrev_b32 v%d, 2, v0'%(vt+1))
        A('ds_read_b32 v%d, v%d offset:%d'%(vt+2,vt+1,L_ST))
        A('s_lshl_b32 s66, s2, 8\ns_add_u32 s66, s66, %d'%(STAMP))
        A('v_add_u32 v%d, s66, v%d'%(vt+1,vt+1))
        A('s_mov_b64 exec, 0xffff')
        A('s_waitcnt lgkmcnt(0)')
        A('global_store_dword v%d, v%d, %s'%(vt+1,vt+2,WS))
        A('global_store_dword v%d, v%d, %s offset:64'%(vt+1,vt,WS))

    A('; @launch grid=(256,1,1) block=(512,1,1) lds=%d'%LDS_BYTES)
    A('.amdgcn_target "amdgcn-amd-amdhsa--gfx950"\n.text\n.globl %s\n.p2align 8\n.type %s,@function\n%s:'%(K,K,K))
    A('s_cmp_ge_u32 s2, 256\ns_cbranch_scc1 L_end')
    A('s_load_dwordx16 s[16:31], s[0:1], 0')
    A('s_load_dwordx8 s[32:39], s[0:1], 64')
    if cfg.diag:
        for i in range(1,14): A('s_mov_b32 s%d, 0'%(72+2*i))
    stamp(0)
    A('v_lshrrev_b32 v1, 6, v0')
    A('v_lshlrev_b32 v3, 2, v0')
    A('v_and_b32 v0, 63, v0')
    A('v_readfirstlane_b32 s52, v1')
    A('s_and_b32 s48, s2, 7\ns_lshr_b32 s49, s2, 3\ns_lshl_b32 s50, s49, 1\ns_bfe_u32 s54, s2, 0x10001\ns_or_b32 s50, s50, s54')
    A('s_and_b32 s51, s2, 1\ns_bfe_u32 s54, s2, 0x10002\ns_lshl_b32 s54, s54, 1\ns_or_b32 s51, s51, s54')
    A('s_mov_b32 s59, 0x%x\ns_mov_b32 s60, 0xffff0000'%(LOG2E))
    A('v_lshlrev_b32 v1, 4, v0')
    A('s_cmp_ge_u32 s52, 4\ns_cbranch_scc1 L_service')

    TH=cfg.T
    NS=cfg.NS
    RB=64
    A('s_lshl_b32 s54, s50, 21')
    A('s_lshl_b32 s62, s51, 2\ns_add_u32 s62, s62, s52')
    A('v_lshrrev_b32 v2, 4, v0\nv_lshlrev_b32 v2, 6, v2\nv_and_b32 v4, 3, v0\nv_lshl_add_u32 v2, v4, 4, v2')
    A('v_bfe_u32 v5, v0, 2, 2\nv_lshl_add_u32 v2, v5, 8, v2')
    A('s_mov_b32 s42, 0x200000\ns_mov_b32 s43, 0x20000\ns_mov_b32 s46, 0x200000\ns_mov_b32 s47, 0x20000')
    A('v_mov_b32 v30, 0')
    A('s_waitcnt lgkmcnt(0)')
    A('s_add_u32 s40, s18, s54\ns_addc_u32 s41, s19, 0\ns_and_b32 s41, s41, 0xffff')
    A('s_add_u32 s44, s20, s54\ns_addc_u32 s45, s21, 0\ns_and_b32 s45, s45, 0xffff')
    st={'n':0}
    def load(slot,j,throttle=True):
        if j==0: A('s_lshl_b32 s65, s62, 12')
        if throttle: A('s_waitcnt vmcnt(%d)'%(TH-1))
        r=RB+slot*32+j*4
        t=j//4
        A('buffer_load_dwordx4 v[%d:%d], %s, %s, s65 offen offset:%d %s'%(r,r+3,'v2' if t==0 else 'v1','s[40:43]' if t==0 else 's[44:47]',(j%4)*1024,cfg.kf if t==0 else cfg.vf))
    def prog(val):
        A('v_mov_b32 v30, %s\nds_write_b32 v3, v30 offset:%d'%(val,L_PR))
    def pro_issue(n0,n1):
        for n in range(n0,n1):
            load(n//8,n%8,n>=TH)
            if n%8==7:
                A('s_add_u32 s62, s62, 16')
                if n>=15: prog(n//8+1)
    if cfg.svcfirst: A('s_barrier')
    pro_issue(0,TH)
    A('ds_write_b32 v3, v30 offset:%d'%L_PR)
    A('s_mov_b32 s56, 0x05040100\ns_mov_b32 s57, 0x07060302\ns_mov_b32 s58, 0x%x'%SCALE)
    A('s_lshl_b32 s54, s50, 8\ns_add_u32 s54, s54, %d\ns_add_u32 s66, s38, s54\ns_addc_u32 s67, s39, 0'%CTR)
    A('s_lshl_b32 s55, s52, 11')
    A('v_lshlrev_b32 v4, 9, v4\nv_and_b32 v0, 0x30, v0\nv_add3_u32 v0, v4, v0, s55')
    A('v_mov_b32 v14, 0xff800000\nv_mov_b32 v28, 0x3f803f80\nv_mov_b32 v29, 0x3f803f80')
    for r in list(range(24,28))+list(range(32,64)): A('v_mov_b32 v%d, 0'%r)
    A('s_waitcnt lgkmcnt(0)')
    A('s_barrier')
    pro_issue(TH,48)
    stamp(1)
    A('s_barrier')
    A('ds_read_b128 v[4:7], v1 offset:%d'%L_QL)
    stamp(2)
    A('s_waitcnt lgkmcnt(0)')
    def kpart(slot,fill):
        B=RB+slot*32
        f=list(fill)
        def nxt():
            if f: f.pop(0)()
        D=[20,B,B+4,B+8]
        for i in range(4):
            A('v_mfma_f32_16x16x32_bf16 v[%d:%d], v[%d:%d], v[4:7], 0'%(D[i],D[i]+3,B+4*i,B+4*i+3))
        A('s_nop 7')
        for h in range(2):
            for step in range(3):
                for e in range(2):
                    be=2*e+h
                    S=18+e
                    A('v_add_f32_dpp v%d, v%d, v%d row_ror:%d row_mask:0xf bank_mask:0x%x'%(S,D[be]+((be+step+1)&3),(D[be]+be) if step==0 else S,12-4*step,1<<be))
                A('s_nop 0')
        nxt()
        A('s_nop 0')
        A('v_mov_b32_dpp v18, v19 quad_perm:[0,1,2,3] row_mask:0xf bank_mask:0xc')
        A('v_cvt_pk_bf16_f32 v18, v18, v18\nv_lshlrev_b32 v18, 16, v18\nv_mul_f32 v18, s58, v18\nv_cvt_pk_bf16_f32 v18, v18, v18\nv_lshlrev_b32 v18, 16, v18')
        A('v_max_f32 v15, v14, v18')
        A('s_nop 1\nv_max_f32_dpp v15, v15, v15 row_ror:4 row_mask:0xf bank_mask:0xf')
        A('s_nop 1\nv_max_f32_dpp v15, v15, v15 row_ror:8 row_mask:0xf bank_mask:0xf')
        A('v_mov_b32 v31, v15\ns_nop 1\nv_permlane16_swap_b32 v15, v31\nv_max_f32 v15, v15, v31')
        A('v_mov_b32 v31, v15\ns_nop 1\nv_permlane32_swap_b32 v15, v31\nv_max_f32 v15, v15, v31')
        nxt()
        A('v_sub_f32 v16, v14, v15\nv_sub_f32 v18, v18, v15\nv_cmp_neq_f32 vcc, v14, v15\nv_mul_f32 v16, s59, v16\nv_mul_f32 v18, s59, v18')
        A('v_exp_f32 v16, v16\nv_exp_f32 v18, v18\nv_mov_b32 v14, v15\ns_nop 0')
        A('v_mov_b32_dpp v19, v18 row_ror:12 row_mask:0xf bank_mask:0xf')
        A('v_cvt_pk_bf16_f32 v8, v18, v19')
        l=newlab('nr')
        A('s_cbranch_vccz %s'%l)
        for r in range(32,64,2):
            A('v_pk_mul_f32 v[%d:%d], v[%d:%d], v[16:17] op_sel_hi:[1,0]'%(r,r+1,r,r+1))
        A('v_mul_f32 v24, v24, v16')
        A('%s:'%l)
        A('s_nop 0')
        A('v_mov_b32_dpp v9, v8 row_ror:8 row_mask:0xf bank_mask:0xf')
        while f: nxt()
    def vpart(slot):
        B=RB+slot*32+16
        def perms(j):
            Tt=10+2*(j&1)
            for ii in range(2):
                A('v_perm_b32 v%d, v%d, v%d, s%d'%(Tt+ii,B+4*(2*ii+1)+(j>>1),B+4*(2*ii)+(j>>1),56+(j&1)))
        perms(0)
        for j in range(8):
            if j<7: perms(j+1)
            else: A('v_mfma_f32_16x16x16_bf16 v[24:27], v[28:29], v[8:9], v[24:27]')
            Tt=10+2*(j&1)
            A('v_mfma_f32_16x16x16_bf16 v[%d:%d], v[%d:%d], v[8:9], v[%d:%d]'%(32+4*j,35+4*j,Tt,Tt+1,32+4*j,35+4*j))
    tr={'issued':48}
    slot_of={u:u for u in range(6)}
    slot_of.update({6:0,7:1,8:2,9:0})
    def tload():
        n=tr['issued']; load(slot_of[n//8],n%8); tr['issued']=n+1
        if n%8==7:
            A('s_add_u32 s62, s62, 16')
            if n//8<9: prog(n//8+1)
    def need(n):
        rem=tr['issued']-n
        assert rem>=0
        if rem<TH: A('s_waitcnt vmcnt(%d)'%rem)
    for u in range(9):
        need(8*u+4)
        if u==0: kpart(0,[])
        else: kpart(slot_of[u],[tload]*(3 if u<8 else 4))
        need(8*u+8)
        vpart(slot_of[u])
        if u<8 and u>0: tload()
    assert tr['issued']==80
    A('s_mov_b32 s64, 10')
    stamp(3)
    A('L_loop:')
    for c in range(2):
        ls=newlab('st'); lq=newlab('rq')
        prog('s64')
        A('s_add_u32 s64, s64, 1')
        A('s_add_u32 s63, s62, 16')
        A('s_cmp_lt_u32 s64, %d\ns_cbranch_scc1 %s'%(NS,ls))
        A('s_cmp_ge_u32 s62, 512\ns_cbranch_scc1 %s'%ls)
        A('s_cmp_gt_u32 s64, %d\ns_cbranch_scc1 %s'%(NS,lq))
        lw=newlab('cw')
        A('v_mov_b32 v31, 0\n%s:\nds_read_b32 v15, v31 offset:%d\ns_waitcnt lgkmcnt(0)\nv_readfirstlane_b32 s54, v15\ns_cmp_eq_u32 s54, 0\ns_cbranch_scc1 %s'%(lw,L_CNT+8,lw))
        stamp(4)
        A('%s:'%lq)
        A('s_mov_b32 s63, 1\ns_atomic_add s63, s[66:67], 0x0 glc')
        A('%s:'%ls)
        for j in range(4): load(1-c,j)
        if TH>8: A('s_waitcnt vmcnt(8)')
        kpart(c,[(lambda j=j: load(1-c,j)) for j in range(4,8)])
        if TH>8: A('s_waitcnt vmcnt(8)')
        vpart(c)
        A('s_cmp_ge_u32 s62, 512\ns_cbranch_scc1 L_sdone')
        A('s_waitcnt lgkmcnt(0)')
        A('s_add_u32 s54, s63, %d\ns_cmp_lt_u32 s64, %d\ns_cselect_b32 s62, s63, s54'%(NS*16+1,NS))
        if c==1: A('s_branch L_loop')
    A('L_sdone:')
    A('s_mov_b32 exec_lo, 0x000f000f\ns_mov_b32 exec_hi, 0x000f000f')
    stamp(5)
    A('s_nop 1')
    for j in range(8):
        if j==5: A('v_mov_b32 v15, v24\ns_nop 1')
        A('ds_write_b128 v0, v[%d:%d] offset:%d'%(32+4*j,35+4*j,L_OW+64*j))
    A('s_mov_b64 exec, 0xf')
    A('s_lshl_b32 s55, s52, 3\nv_lshlrev_b32 v31, 1, v1\nv_add_u32 v31, s55, v31')
    A('ds_write_b64 v31, v[14:15] offset:%d'%L_MLW)
    if cfg.diag:
        A('s_mov_b64 exec, -1')
        A('s_cmp_lg_u32 s52, 0\ns_cbranch_scc1 L_nost')
        pack_stamps(6,8)
        A('v_writelane_b32 v8, s64, 8')
        A('ds_write_b32 v3, v8 offset:%d'%L_ST)
        A('L_nost:')
    A('s_waitcnt lgkmcnt(0)')
    A('s_barrier')
    A('s_endpgm')

    A('L_service:')
    A('s_setprio 3')
    A('s_sub_u32 s53, s52, 4')
    A('s_lshl_b32 s66, s53, 12')
    A('s_lshr_b32 s68, s49, 3\ns_and_b32 s69, s49, 7')
    A('v_lshrrev_b32 v2, 5, v0\ns_lshl_b32 s54, s53, 1\nv_add_u32 v2, s54, v2')
    A('v_and_b32 v3, 31, v0\nv_lshlrev_b32 v3, 4, v3')
    A('v_lshl_add_u32 v4, v2, 10, v3')
    A('s_lshl_b32 s54, s68, 7\ns_lshl_b32 s55, s53, 5\ns_add_u32 s54, s54, s55')
    A('v_lshrrev_b32 v6, 3, v0\nv_add_u32 v6, s54, v6\nv_lshlrev_b32 v6, 13, v6')
    A('v_and_b32 v7, 7, v0\nv_lshl_add_u32 v6, v7, 4, v6')
    A('s_lshl_b32 s54, s48, 10\ns_lshl_b32 s55, s69, 7\ns_add_u32 s54, s54, s55\nv_add_u32 v6, s54, v6')
    A('s_lshl_b32 s54, s48, 2\ns_add_u32 s54, s54, s68\ns_lshl_b32 s54, s54, 11\ns_lshl_b32 s55, s69, 8\ns_add_u32 s54, s54, s55\ns_lshl_b32 s55, s53, 6\ns_add_u32 s54, s54, s55')
    A('v_lshlrev_b32 v14, 16, v7\nv_and_b32 v15, 0x30, v0\nv_add3_u32 v14, v14, v15, s54')
    A('v_mov_b32 v40, -1\nv_mov_b32 v41, -1\nv_mov_b32 v42, -1\nv_mov_b32 v43, -1')
    A('s_add_u32 m0, s66, %d'%L_WA)
    A('s_waitcnt lgkmcnt(0)')
    A('global_load_dwordx4 v[32:35], v4, %s'%X)
    A('global_load_dwordx4 v[36:39], v4, %s offset:512'%X)
    for i in range(4):
        if i: A('s_add_u32 m0, s66, %d\nv_add_u32 v6, 0x10000, v6'%(L_WA+i*1024))
        A('global_load_lds_dwordx4 v6, %s %s'%(WQ,cfg.wf))
    A('s_mov_b32 exec_lo, 0x00ff00ff\ns_mov_b32 exec_hi, 0x00ff00ff')
    A('global_store_dwordx4 v14, v[40:43], %s sc1'%WS)
    A('s_mov_b64 exec, -1')
    if cfg.svcfirst==1: A('s_barrier')
    A('s_lshl_b32 s54, s2, 12\ns_lshl_b32 s55, s53, 10\ns_add_u32 s54, s54, s55\ns_add_u32 s54, s54, %d'%CLR)
    A('v_add_u32 v6, s54, v1')
    A('global_store_dwordx4 v6, v[40:43], %s sc1'%WS)
    A('s_lshl_b32 s54, s2, 10\ns_lshl_b32 s55, s53, 8\ns_add_u32 s54, s54, s55\ns_add_u32 s54, s54, %d'%(CLR+0x100000))
    A('v_add_u32 v6, s54, v1')
    A('s_mov_b64 exec, 0xffff')
    A('global_store_dwordx4 v6, v[40:43], %s sc1'%WS)
    A('s_mov_b64 exec, -1')
    if cfg.svcfirst==2: A('s_barrier')
    A('v_mov_b32 v11, 0\nv_mov_b32 v12, 1\nv_mov_b32 v44, 0\nv_mov_b32 v45, 0\nv_mov_b32 v46, 0\nv_mov_b32 v47, 0')
    A('ds_write_b128 v11, v[44:47] offset:%d'%L_CNT)
    A('v_mul_u32_u24 v5, %d, v2\nv_add_u32 v5, v5, v3'%XNS)
    A('v_lshrrev_b32 v8, 4, v0\nv_lshlrev_b32 v8, 10, v8\nv_bfe_u32 v9, v0, 2, 2\nv_lshl_add_u32 v8, v9, 7, v8\nv_and_b32 v9, 3, v0\nv_lshl_add_u32 v8, v9, 3, v8')
    A('s_lshl_b32 s54, s53, 5\nv_add_u32 v8, s54, v8')
    A('v_mul_u32_u24 v9, %d, v7\nv_add_u32 v9, v9, v15\ns_lshl_b32 s54, s68, 8\nv_add_u32 v10, s54, v9'%XNS)
    A('s_lshl_b32 s54, s53, 8\nv_mov_b32 v31, s54')
    A('s_waitcnt lgkmcnt(0)')
    A('s_barrier')

    def dppadd(r,ctl):
        A('s_nop 1\nv_add_f32_dpp v%d, v%d, v%d %s row_mask:0xf bank_mask:0xf'%(r,r,r,ctl))
    def swapadd(r,t,w):
        A('v_mov_b32 v%d, v%d\ns_nop 1\nv_permlane%d_swap_b32 v%d, v%d\nv_add_f32 v%d, v%d, v%d'%(t,r,w,r,t,r,r,t))
    def rbf(r):
        A('v_cvt_pk_bf16_f32 v%d, v%d, v%d\nv_lshlrev_b32 v%d, 16, v%d'%(r,r,r,r,r))
    def layernorm(mode):
        def red(r,t):
            if mode=='x':
                for k in (1,2,4,8): dppadd(r,'row_ror:%d'%k)
                swapadd(r,t,16)
            else:
                dppadd(r,'quad_perm:[1,0,3,2]'); dppadd(r,'quad_perm:[2,3,0,1]'); dppadd(r,'row_ror:8')
                swapadd(r,t,16); swapadd(r,t,32)
        if mode=='x':
            for i in range(8):
                A('v_lshlrev_b32 v%d, 16, v%d\nv_and_b32 v%d, s60, v%d'%(48+2*i,32+i,49+2*i,32+i))
        A('v_pk_add_f32 v[64:65], v[48:49], v[50:51]\nv_pk_add_f32 v[66:67], v[52:53], v[54:55]')
        A('v_pk_add_f32 v[68:69], v[56:57], v[58:59]\nv_pk_add_f32 v[70:71], v[60:61], v[62:63]')
        A('v_pk_add_f32 v[64:65], v[64:65], v[66:67]\nv_pk_add_f32 v[68:69], v[68:69], v[70:71]')
        A('v_pk_add_f32 v[64:65], v[64:65], v[68:69]\nv_add_f32 v64, v64, v65')
        red(64,65)
        A('v_mul_f32 v64, 0xbb000000, v64')
        A('v_mov_b32 v65, v64')
        for i in range(8):
            t=68+2*(i&1)
            A('v_pk_add_f32 v[%d:%d], v[%d:%d], v[64:65]'%(t,t+1,48+2*i,49+2*i))
            if i==0: A('v_pk_mul_f32 v[66:67], v[%d:%d], v[%d:%d]'%(t,t+1,t,t+1))
            else: A('v_pk_fma_f32 v[66:67], v[%d:%d], v[%d:%d], v[66:67]'%(t,t+1,t,t+1))
        A('v_add_f32 v66, v66, v67')
        rbf(64)
        A('v_mov_b32 v65, v64')
        red(66,67)
        for i in range(8):
            A('v_pk_add_f32 v[%d:%d], v[%d:%d], v[64:65]'%(48+2*i,49+2*i,48+2*i,49+2*i))
        A('v_mul_f32 v66, 0x3b000000, v66')
        rbf(66)
        A('v_add_f32 v66, 0x3727c5ac, v66')
        rbf(66)
        A('v_sqrt_f32 v66, v66')
        for i in range(8):
            A('v_cvt_pk_bf16_f32 v%d, v%d, v%d'%(48+2*i,48+2*i,49+2*i))
        rbf(66)
        A('v_rcp_f32 v66, v66')
        for i in range(8):
            A('v_and_b32 v%d, s60, v%d\nv_lshlrev_b32 v%d, 16, v%d'%(49+2*i,48+2*i,48+2*i,48+2*i))
        A('v_mov_b32 v67, v66')
        for i in range(8):
            A('v_pk_mul_f32 v[%d:%d], v[%d:%d], v[66:67]'%(48+2*i,49+2*i,48+2*i,49+2*i))
        for i in range(8):
            A('v_cvt_pk_bf16_f32 v%d, v%d, v%d'%(32+i,48+2*i,49+2*i))
        if mode=='x':
            A('ds_write_b128 v5, v[32:35] offset:%d'%L_XN)
            A('ds_write_b128 v5, v[36:39] offset:%d'%(L_XN+512))
        else:
            for t in range(4):
                A('ds_write_b64 v5, v[%d:%d] offset:%d'%(32+2*t,33+2*t,L_XN+256*t))
    def lds_sync(cnt,sleep=0):
        l=newlab('ls')
        A('s_waitcnt lgkmcnt(0)')
        A('s_mov_b64 exec, 1\nds_add_u32 v11, v12 offset:%d\ns_mov_b64 exec, -1'%(L_CNT+4*cnt))
        lds_wait(11,L_CNT+4*cnt,4,sleep)
    def lds_wait(va,off,val,sleep):
        l=newlab('lw'); d=newlab('ld')
        A('%s:'%l)
        A('ds_read_b32 v13, v%d offset:%d\ns_waitcnt lgkmcnt(0)\nv_readfirstlane_b32 s54, v13\ns_cmp_ge_u32 s54, %s'%(va,off,val))
        if sleep: A('s_cbranch_scc1 %s\ns_sleep %d\ns_branch %s\n%s:'%(d,sleep,l,d))
        else: A('s_cbranch_scc0 %s'%l)
    def progress(p): lds_wait(31,L_PR,p,6)
    def poll(loads,regs,sleep=0):
        l=newlab('pl'); d=newlab('pd')
        A('s_mov_b32 s61, %d'%cfg.spin)
        A('%s:'%l)
        for x in loads: A(x)
        A('s_waitcnt vmcnt(0)')
        r=list(regs)
        if len(r)==1: A('v_cmp_eq_u32 vcc, -1, v%d'%r[0])
        else:
            if len(r)==2: A('v_max_u32 v13, v%d, v%d'%(r[0],r[1])); r=[]
            else: A('v_max3_u32 v13, v%d, v%d, v%d'%(r[0],r[1],r[2])); r=r[3:]
            while r:
                if len(r)==1: A('v_max_u32 v13, v13, v%d'%r[0]); r=[]
                else: A('v_max3_u32 v13, v13, v%d, v%d'%(r[0],r[1])); r=r[2:]
            A('v_cmp_eq_u32 vcc, -1, v13')
        A('s_cbranch_vccz %s'%d)
        if sleep: A('s_sleep %d'%sleep)
        A('s_sub_u32 s61, s61, 1\ns_cmp_lg_u32 s61, 0\ns_cbranch_scc1 %s'%l)
        A('%s:'%d)
    def flagpoll(voff,execmask):
        l=newlab('fl'); d=newlab('fd')
        A('s_mov_b32 s61, %d\ns_mov_b32 s55, 0x01010101'%cfg.spin)
        A('s_mov_b64 exec, %s'%execmask)
        A('%s:'%l)
        A('global_load_dword v13, v%d, %s sc1\ns_waitcnt vmcnt(0)'%(voff,DBG))
        A('v_cmp_ne_u32 vcc, s55, v13\ns_cbranch_vccz %s'%d)
        A('s_sleep 16')
        A('s_sub_u32 s61, s61, 1\ns_cmp_lg_u32 s61, 0\ns_cbranch_scc1 %s'%l)
        A('%s:'%d)
        A('s_mov_b64 exec, -1')
    def tr128(dst,base):
        for s_ in range(4):
            A('ds_read_b64_tr_b16 v[%d:%d], v8 offset:%d'%(dst+4*s_,dst+4*s_+1,base+4096*s_))
            A('ds_read_b64_tr_b16 v[%d:%d], v8 offset:%d'%(dst+4*s_+2,dst+4*s_+3,base+4096*s_+512))

    A('s_waitcnt vmcnt(7)')
    stamp(1)
    layernorm('x')
    A('s_waitcnt vmcnt(0)')
    lds_sync(0)
    stamp(2)
    tr128(80,L_WA)
    for s_ in range(4):
        A('ds_read_b128 v[%d:%d], v10 offset:%d'%(32+4*s_,35+4*s_,L_XN+64*s_))
    A('s_and_b32 s71, s50, 7\ns_lshl_b32 s71, s71, 5\nv_lshlrev_b32 v7, 2, v0\nv_add_u32 v7, s71, v7')
    A('s_lshl_b32 s54, s48, 5\ns_add_u32 s54, s54, s49\nv_mov_b32 v6, s54')
    A('s_cmp_lg_u32 s53, 3\ns_cbranch_scc1 L_noflag')
    A('s_mov_b64 exec, 1\nglobal_store_byte v6, v12, %s sc1\ns_mov_b64 exec, -1'%DBG)
    A('L_noflag:')
    A('s_waitcnt lgkmcnt(0)')
    for s_ in range(4):
        A('v_mfma_f32_16x16x32_bf16 v[48:51], v[%d:%d], v[%d:%d], %s'%(80+4*s_,83+4*s_,32+4*s_,35+4*s_,'0' if s_==0 else 'v[48:51]'))
    A('s_nop 7')
    for r in range(4): A('v_min_u32 v%d, -2, v%d'%(48+r,48+r))
    A('s_mov_b32 exec_lo, 0x00ff00ff\ns_mov_b32 exec_hi, 0x00ff00ff')
    A('global_store_dwordx4 v14, v[48:51], %s sc1'%WS)
    A('s_mov_b64 exec, -1')
    stamp(3)
    A('s_cmp_lg_u32 s53, 0\ns_cbranch_scc1 L_qdone')
    A('v_and_b32 v6, 3, v0\nv_lshlrev_b32 v6, 9, v6\nv_lshrrev_b32 v14, 2, v0\nv_lshl_add_u32 v6, v14, 5, v6')
    A('s_lshl_b32 s54, s50, 13\ns_add_u32 s54, s54, %d\nv_add_u32 v6, s54, v6'%(QP+3072))
    progress(cfg.pq)
    if cfg.sflag:
        l=newlab('sf'); d=newlab('sd')
        A('s_mov_b32 s61, %d'%cfg.spin)
        A('%s:'%l)
        A('s_load_dwordx8 s[4:11], %s, s71 glc\ns_waitcnt lgkmcnt(0)'%DBG)
        A('s_and_b64 s[4:5], s[4:5], s[6:7]\ns_and_b64 s[8:9], s[8:9], s[10:11]\ns_and_b64 s[4:5], s[4:5], s[8:9]\ns_and_b32 s4, s4, s5')
        A('s_cmp_eq_u32 s4, 0x01010101\ns_cbranch_scc1 %s'%d)
        A('s_sleep 16\ns_sub_u32 s61, s61, 1\ns_cmp_lg_u32 s61, 0\ns_cbranch_scc1 %s'%l)
        A('%s:'%d)
    else: flagpoll(7,'0xff')
    stamp(4)
    poll(['global_load_dwordx4 v[%d:%d], v6, %s offset:%d sc1'%(32+8*kq+4*h,35+8*kq+4*h,WS,2048*kq+16*h-3072) for kq in range(4) for h in range(2)],list(range(32,64)),sleep=8)
    for p in range(4):
        A('v_pk_add_f32 v[%d:%d], v[%d:%d], v[%d:%d]'%(32+2*p,33+2*p,32+2*p,33+2*p,40+2*p,41+2*p))
        A('v_pk_add_f32 v[%d:%d], v[%d:%d], v[%d:%d]'%(48+2*p,49+2*p,48+2*p,49+2*p,56+2*p,57+2*p))
    for p in range(4):
        A('v_pk_add_f32 v[%d:%d], v[%d:%d], v[%d:%d]'%(32+2*p,33+2*p,32+2*p,33+2*p,48+2*p,49+2*p))
    for p in range(4):
        A('v_cvt_pk_bf16_f32 v%d, v%d, v%d'%(32+p,32+2*p,33+2*p))
    A('ds_write_b128 v1, v[32:35] offset:%d'%L_QL)
    stamp(5)
    A('s_waitcnt lgkmcnt(0)')
    A('L_qdone:')
    A('s_setprio 0')
    A('s_barrier')

    A('s_mov_b32 s70, 0\ns_and_b32 s54, s49, 0x13\ns_cmp_eq_u32 s54, s51\ns_cselect_b32 s70, 2, s70')
    A('s_sub_u32 s54, s49, 16\ns_cmp_lt_u32 s54, 14\ns_cselect_b32 s70, 1, s70')
    A('s_xor_b32 s55, s2, s49\ns_and_b32 s55, s55, 1\ns_cselect_b32 s70, 3, s70')
    A('s_lshr_b32 s54, s54, 1\ns_mul_i32 s14, s48, 7\ns_add_u32 s14, s14, s54')
    A('s_lshr_b32 s15, s49, 2\ns_lshl_b32 s54, s48, 2\ns_add_u32 s15, s15, s54')
    A('s_lshr_b32 s13, s2, 1')
    A('s_lshl_b32 s54, s48, 2\ns_add_u32 s67, s54, s68')
    A('v_and_b32 v6, 3, v0\nv_lshlrev_b32 v6, 2, v6\nv_lshrrev_b32 v7, 4, v0\nv_add_u32 v6, v6, v7')
    A('v_bfe_u32 v7, v0, 2, 1')
    A('v_lshlrev_b32 v24, 2, v6\nv_lshl_add_u32 v24, v7, 6, v24\ns_mov_b32 s55, s13\ns_lshl_b32 s54, s55, 7\ns_add_u32 s54, s54, %d\nv_add_u32 v24, s54, v24'%HB)
    A('v_lshlrev_b32 v6, 1, v6\nv_lshl_add_u32 v6, v7, 10, v6\ns_lshr_b32 s54, s55, 5\ns_lshl_b32 s54, s54, 11\ns_and_b32 s55, s55, 31\ns_lshl_b32 s55, s55, 5\ns_add_u32 s54, s54, s55\nv_add_u32 v6, s54, v6')
    A('global_load_ushort v16, v6, %s'%X)
    A('v_lshlrev_b32 v7, 2, v0')
    A('s_cmp_lg_u32 s53, 0\ns_cbranch_scc1 L_nofc')
    flagpoll(7,'-1')
    A('s_mov_b64 exec, 1\nds_add_u32 v11, v12 offset:%d\ns_mov_b64 exec, -1'%(L_CNT+8))
    A('L_nofc:')
    pslot=[0]
    def paced(line):
        k=pslot[0]
        f=lambda k: cfg.pw0+(k*(cfg.pw1-cfg.pw0))//20
        if k==0 or k==4 or f(k)!=f(k-1): progress(f(k))
        assert f(k)<cfg.NS
        pslot[0]+=1
        A(line)
    if not cfg.noW:
        A('s_lshl_b32 s54, s67, 7\ns_lshl_b32 s55, s53, 1\ns_add_u32 s54, s54, s55\ns_lshl_b32 s54, s54, 10\ns_lshl_b32 s55, s69, 7\ns_add_u32 s54, s54, s55')
        A('v_lshrrev_b32 v6, 5, v0\nv_lshlrev_b32 v6, 15, v6\nv_bfe_u32 v7, v0, 3, 2\nv_lshl_add_u32 v6, v7, 13, v6\nv_and_b32 v7, 7, v0\nv_lshl_add_u32 v6, v7, 4, v6\nv_add_u32 v6, s54, v6')
        for i in range(4):
            A('v_add_u32 v7, %d, v6'%((64*(i&1)+(i>>1))*1024))
            paced('s_add_u32 m0, s66, %d\ns_nop 0\nglobal_load_lds_dwordx4 v7, %s %s'%(L_WB+i*1024,WO,cfg.wf))
        l2=newlab('w2'); le=newlab('we')
        A('s_cmp_eq_u32 s70, 2\ns_cbranch_scc1 %s'%l2)
        A('s_cmp_lg_u32 s70, 1\ns_cbranch_scc1 %s'%le)
        p0=pslot[0]
        A('s_lshl_b32 s54, s14, 6')
        A('s_lshl_b32 s55, s53, 7\nv_lshrrev_b32 v6, 2, v0\nv_add_u32 v6, s55, v6\nv_mul_u32_u24 v6, 3584, v6\nv_and_b32 v7, 3, v0\nv_lshl_add_u32 v6, v7, 4, v6\nv_add_u32 v6, s54, v6')
        A('s_lshl_b32 s71, s53, 13')
        for i in range(8):
            if i: A('v_add_u32 v6, %d, v6'%(16*3584))
            paced('s_add_u32 m0, s71, %d\ns_nop 0\nglobal_load_lds_dwordx4 v6, %s %s'%(L_WA+i*1024,WG,cfg.ff))
            paced('s_add_u32 m0, s71, %d\ns_nop 0\nglobal_load_lds_dwordx4 v6, %s %s'%(L_WA+32768+i*1024,WU,cfg.ff))
        A('s_branch %s'%le)
        A('%s:'%l2)
        pslot[0]=p0
        A('s_mul_i32 s54, s53, 448\nv_lshrrev_b32 v6, 1, v0\nv_add_u32 v6, s54, v6\nv_lshlrev_b32 v6, 10, v6')
        A('v_and_b32 v7, 1, v0\nv_lshl_add_u32 v6, v7, 4, v6\ns_lshl_b32 s54, s15, 5\nv_add_u32 v6, s54, v6')
        A('s_mul_i32 s71, s53, 14336')
        for i in range(14):
            if i: A('v_add_u32 v6, 0x8000, v6')
            paced('s_add_u32 m0, s71, %d\ns_nop 0\nglobal_load_lds_dwordx4 v6, %s %s'%(L_WA+i*1024,WD,cfg.ff))
        A('%s:'%le)
    A('s_waitcnt vmcnt(0)')
    A('v_lshlrev_b32 v16, 16, v16')
    lds_sync(1,sleep=4)
    stamp(6)
    tr128(80,L_WB)
    l2=newlab('r2'); le=newlab('re')
    A('v_mov_b32 v26, 0\nv_mov_b32 v27, 0\nv_mov_b32 v28, 0\nv_mov_b32 v29, 0')
    A('s_cmp_eq_u32 s70, 2\ns_cbranch_scc1 %s'%l2)
    A('s_cmp_lg_u32 s70, 1\ns_cbranch_scc1 %s'%le)
    A('v_lshrrev_b32 v6, 4, v0\nv_lshlrev_b32 v6, 9, v6\nv_bfe_u32 v7, v0, 2, 2\nv_lshl_add_u32 v6, v7, 6, v6')
    A('v_and_b32 v7, 1, v0\nv_lshl_add_u32 v6, v7, 3, v6\nv_bfe_u32 v7, v0, 1, 1\nv_lshl_add_u32 v6, v7, 15, v6\ns_lshl_b32 s54, s53, 4\ns_add_u32 s54, s54, %d\nv_add_u32 v6, s54, v6'%L_WA)
    for s_ in range(16):
        A('ds_read_b64_tr_b16 v[%d:%d], v6 offset:%d'%(96+4*s_,97+4*s_,2048*s_))
        A('ds_read_b64_tr_b16 v[%d:%d], v6 offset:%d'%(98+4*s_,99+4*s_,2048*s_+256))
        if s_%4==3: A('s_waitcnt lgkmcnt(0)')
    A('s_lshl_b32 s54, s14, 2\ns_add_u32 s54, s54, s53\ns_lshl_b32 s54, s54, 7\ns_add_u32 s54, s54, %d'%AB)
    A('v_and_b32 v27, 7, v0\nv_lshlrev_b32 v27, 4, v27\nv_bfe_u32 v7, v0, 4, 1\nv_lshl_add_u32 v27, v7, 3, v27\nv_bfe_u32 v7, v0, 3, 1\nv_lshl_add_u32 v27, v7, 2, v27\nv_add_u32 v27, s54, v27')
    A('s_add_u32 s54, s66, %d\nv_add_u32 v4, s54, v1'%HB)
    A('v_bfe_u32 v5, v0, 2, 1\ns_lshl_b32 s54, s53, 1\nv_add_u32 v5, s54, v5\nv_mul_u32_u24 v5, %d, v5\nv_lshrrev_b32 v7, 3, v0\nv_lshl_add_u32 v5, v7, 5, v5\nv_and_b32 v7, 3, v0\nv_lshl_add_u32 v5, v7, 3, v5'%XNS)
    A('s_branch %s'%le)
    A('%s:'%l2)
    A('v_lshrrev_b32 v6, 4, v0\nv_lshlrev_b32 v6, 9, v6\nv_bfe_u32 v7, v0, 1, 1\nv_lshl_add_u32 v6, v7, 8, v6\nv_bfe_u32 v7, v0, 2, 2\nv_lshl_add_u32 v6, v7, 5, v6')
    A('v_and_b32 v7, 1, v0\nv_lshl_add_u32 v6, v7, 3, v6\ns_mul_i32 s55, s53, 14336\ns_add_u32 s55, s55, %d\nv_add_u32 v6, s55, v6'%L_WA)
    for t in range(7):
        for tt in range(2):
            r=96+8*t+4*tt
            A('ds_read_b64_tr_b16 v[%d:%d], v6 offset:%d'%(r,r+1,2048*t+16*tt))
            A('ds_read_b64_tr_b16 v[%d:%d], v6 offset:%d'%(r+2,r+3,2048*t+16*tt+128))
        A('s_waitcnt lgkmcnt(0)')
    A('v_bfe_u32 v26, v0, 2, 1\nv_lshlrev_b32 v26, 10, v26\nv_bfe_u32 v7, v0, 1, 1\nv_lshl_add_u32 v26, v7, 8, v26\nv_lshrrev_b32 v7, 3, v0\nv_lshl_add_u32 v26, v7, 4, v26\nv_and_b32 v7, 1, v0\nv_lshl_add_u32 v26, v7, 3, v26')
    A('s_mul_i32 s54, s53, 7168\ns_add_u32 s54, s54, %d\nv_add_u32 v27, s54, v1'%(AB+3072))
    A('s_mov_b32 s54, s15\ns_lshl_b32 s55, s54, 5')
    A('v_lshrrev_b32 v28, 3, v0\nv_lshlrev_b32 v28, 10, v28\nv_and_b32 v7, 7, v0\nv_lshl_add_u32 v28, v7, 2, v28\nv_add_u32 v28, s55, v28')
    A('s_lshl_b32 s54, s54, 7\ns_add_u32 s54, s54, %d'%HB)
    A('v_lshrrev_b32 v29, 4, v0\nv_lshlrev_b32 v29, 12, v29\nv_and_b32 v7, 15, v0\nv_lshl_add_u32 v29, v7, 3, v29\nv_add_u32 v29, s54, v29')
    A('s_lshl_b32 s54, s53, 11\nv_add_u32 v10, s54, v1')
    A('%s:'%le)
    A('s_lshl_b32 s54, s53, 9\nv_add_u32 v17, s54, v3')
    A('s_and_b32 s54, s50, 7\ns_lshl_b32 s54, s54, 2\ns_add_u32 s54, s54, s53\ns_lshl_b32 s54, s54, 3\ns_lshr_b32 s55, s50, 3\ns_add_u32 s54, s54, s55\ns_lshl_b32 s54, s54, 2\ns_add_u32 s54, s54, s51')
    A('s_mul_i32 s54, s54, %d\ns_add_u32 s54, s54, %d\nv_add_u32 v18, s54, v1'%(OPS,OP))
    A('s_mul_i32 s54, s67, %d\ns_add_u32 s54, s54, %d\nv_mul_u32_u24 v25, %d, v2\nv_add_u32 v25, s54, v25\nv_add_u32 v19, v25, v3'%(32*OPS,OP,4*OPS))
    A('s_lshl_b32 s54, s53, 5\nv_mov_b32 v30, s54')
    A('v_mul_u32_u24 v20, %d, v2\nv_lshrrev_b32 v7, 1, v3\nv_add_u32 v20, v20, v7'%XOS)
    A('v_and_b32 v21, 7, v0\nv_mul_u32_u24 v21, %d, v21\nv_add_u32 v21, v21, v15'%XOS)
    A('s_lshl_b32 s54, s69, 2\ns_add_u32 s54, s54, s53\ns_lshl_b32 s54, s54, 5\ns_add_u32 s54, s54, s67\ns_lshl_b32 s54, s54, 7\ns_add_u32 s54, s54, %d'%WP)
    A('v_bfe_u32 v22, v0, 1, 2\nv_lshlrev_b32 v22, 17, v22\nv_and_b32 v7, 1, v0\nv_lshl_add_u32 v22, v7, 6, v22\nv_add3_u32 v22, v22, v15, s54')
    A('s_lshl_b32 s54, s13, 12\ns_add_u32 s54, s54, %d\nv_add_u32 v23, s54, v1'%WP)
    stamp(7)
    A('s_waitcnt lgkmcnt(0)')
    A('s_barrier')
    def weights4(m0,st_,norm):
        m=[m0+st_*i for i in range(4)]
        A('v_max3_f32 v76, v%d, v%d, v%d\nv_max_f32 v76, v76, v%d'%tuple(m))
        for i in range(4): A('v_sub_f32 v%d, v%d, v76'%(72+i,m[i]))
        for i in range(4): A('v_mul_f32 v%d, s59, v%d'%(72+i,72+i))
        for i in range(4): A('v_exp_f32 v%d, v%d'%(72+i,72+i))
        A('v_mul_f32 v77, v72, v%d'%(m[0]+1))
        for i in range(1,4): A('v_fmac_f32 v77, v%d, v%d'%(72+i,m[i]+1))
        if norm: A('v_rcp_f32 v78, v77')
    def wsum(b0):
        for r in range(4): A('v_mul_f32 v%d, v72, v%d'%(b0+r,b0+r))
        for w in range(1,4):
            for r in range(4): A('v_fmac_f32 v%d, v%d, v%d'%(b0+r,72+w,b0+4*w+r))
    A('ds_read_b128 v[64:67], v30 offset:%d\nds_read_b128 v[68:71], v30 offset:%d'%(L_MLW,L_MLW+16))
    for w in range(4):
        A('ds_read_b128 v[%d:%d], v17 offset:%d'%(32+4*w,35+4*w,L_OW+2048*w))
    stamp(8)
    A('s_waitcnt lgkmcnt(%d)'%(0 if cfg.diag else 4))
    weights4(64,2,False)
    A('s_waitcnt lgkmcnt(0)')
    wsum(32)
    A('s_mov_b32 exec_lo, 0')
    A('v_mov_b32 v32, v76\nv_mov_b32 v33, v77')
    A('s_mov_b32 exec_lo, -1\ns_mov_b32 exec_hi, 1')
    for r in range(4): A('v_min_u32 v%d, -2, v%d'%(32+r,32+r))
    A('global_store_dwordx4 v18, v[32:35], %s sc1'%WS)
    A('s_mov_b64 exec, -1')
    poll(['global_load_dwordx2 v[%d:%d], v25, %s offset:%d sc1'%(64+2*s_,65+2*s_,WS,OPS*s_+512) for s_ in range(4)]+
         ['global_load_dwordx4 v[%d:%d], v19, %s offset:%d sc1'%(48+4*s_,51+4*s_,WS,OPS*s_) for s_ in range(4)],list(range(48,72)))
    stamp(9)
    weights4(64,2,True)
    wsum(48)
    for r in range(4): A('v_mul_f32 v%d, v78, v%d'%(48+r,48+r))
    A('v_cvt_pk_bf16_f32 v48, v48, v49\nv_cvt_pk_bf16_f32 v49, v50, v51')
    A('ds_write_b64 v20, v[48:49] offset:%d'%L_XO)
    A('s_waitcnt lgkmcnt(0)\ns_barrier')
    for s_ in range(4):
        A('ds_read_b128 v[%d:%d], v21 offset:%d'%(32+4*s_,35+4*s_,L_XO+64*s_))
    for s_ in range(4):
        A('s_waitcnt lgkmcnt(%d)'%(3-s_))
        A('v_mfma_f32_16x16x32_bf16 v[48:51], v[%d:%d], v[%d:%d], %s'%(80+4*s_,83+4*s_,32+4*s_,35+4*s_,'0' if s_==0 else 'v[48:51]'))
    A('s_nop 7')
    for r in range(4): A('v_min_u32 v%d, -2, v%d'%(48+r,48+r))
    A('s_mov_b32 exec_lo, 0x00ff00ff\ns_mov_b32 exec_hi, 0x00ff00ff')
    A('global_store_dwordx4 v22, v[48:51], %s sc1'%WS)
    A('s_mov_b64 exec, -1')
    A('s_cmp_lg_u32 s70, 3\ns_cbranch_scc1 L_rdone')
    A('s_cmp_lg_u32 s53, 0\ns_cbranch_scc1 L_end')
    poll(['global_load_dwordx4 v[%d:%d], v23, %s offset:%d sc1'%(32+4*t,35+4*t,WS,1024*t) for t in range(4)],list(range(32,48)))
    stamp(10)
    A('v_pk_add_f32 v[32:33], v[32:33], v[36:37]\nv_pk_add_f32 v[34:35], v[34:35], v[38:39]')
    A('v_pk_add_f32 v[40:41], v[40:41], v[44:45]\nv_pk_add_f32 v[42:43], v[42:43], v[46:47]')
    A('v_pk_add_f32 v[32:33], v[32:33], v[40:41]\nv_pk_add_f32 v[34:35], v[34:35], v[42:43]')
    A('s_nop 1\nv_permlane32_swap_b32 v32, v34\nv_permlane32_swap_b32 v33, v35')
    A('v_add_f32 v32, v32, v34\nv_add_f32 v33, v33, v35')
    A('s_nop 1\nv_permlane16_swap_b32 v32, v33\nv_add_f32 v32, v32, v33')
    dppadd(32,'row_ror:8')
    rbf(32)
    A('v_add_f32 v32, v32, v16')
    rbf(32)
    A('s_mov_b32 exec_lo, 0x00ff00ff\ns_mov_b32 exec_hi, 0x00ff00ff')
    A('global_store_dword v24, v32, %s sc1'%WS)
    dump_stamps(14,8)
    A('s_endpgm')
    A('L_rdone:')
    A('s_cmp_eq_u32 s70, 2\ns_cbranch_scc1 L_ffn2')
    A('s_cmp_eq_u32 s70, 0\ns_cbranch_scc1 L_fin')
    poll(['global_load_dwordx4 v[%d:%d], v4, %s offset:%d sc1'%(48+4*t,51+4*t,WS,1024*t) for t in range(4)],list(range(48,64)))
    stamp(11)
    layernorm('h')
    A('s_waitcnt lgkmcnt(0)\ns_barrier')
    for s_ in range(8):
        A('ds_read_b128 v[%d:%d], v9 offset:%d'%(32+4*s_,35+4*s_,L_XN+64*s_))
    for s_ in range(16):
        A('s_waitcnt lgkmcnt(%d)'%min(7,15-s_))
        b=32+4*(s_%8) if s_<8 else 160+4*(s_-8)
        A('v_mfma_f32_16x16x32_bf16 v[64:67], v[%d:%d], v[%d:%d], %s'%(96+4*s_,99+4*s_,b,b+3,'0' if s_==0 else 'v[64:67]'))
        if s_<8: A('ds_read_b128 v[%d:%d], v9 offset:%d'%(160+4*s_,163+4*s_,L_XN+64*(s_+8)))
    A('s_nop 7')
    A('v_permlane32_swap_b32 v64, v65\nv_permlane32_swap_b32 v66, v67')
    A('s_nop 1')
    A('v_mov_b32_dpp v64, v66 quad_perm:[0,1,2,3] row_mask:0xf bank_mask:0xc')
    A('v_mov_b32_dpp v65, v67 quad_perm:[0,1,2,3] row_mask:0xf bank_mask:0xc')
    A('v_cvt_pk_bf16_f32 v32, v64, v65\nv_and_b32 v36, s60, v32\nv_lshlrev_b32 v32, 16, v32')
    A('v_mul_f32 v33, v32, v32\nv_mul_f32 v33, 0x3d372713, v33\nv_fma_f32 v33, v33, v32, v32')
    A('v_mul_f32 v33, 0xc0135761, v33\nv_exp_f32 v33, v33\ns_nop 0\nv_add_f32 v33, 1.0, v33\nv_rcp_f32 v33, v33\ns_nop 0\nv_mul_f32 v33, v33, v32')
    rbf(33)
    A('v_mul_f32 v33, v33, v36\nv_mov_b32 v34, v33\ns_nop 1\nv_permlane32_swap_b32 v33, v34')
    A('v_cvt_pk_bf16_f32 v33, v33, v34\nv_min_u32 v33, -2, v33')
    A('s_mov_b32 exec_hi, 0')
    A('global_store_dword v27, v33, %s sc1'%WS)
    stamp(12)
    A('L_fin:')
    if cfg.diag:
        A('s_cmp_lg_u32 s53, 0\ns_cbranch_scc1 L_end')
        dump_stamps(14,8)
    A('s_endpgm')
    A('L_ffn2:')
    poll(['global_load_dwordx2 v[60:61], v29, %s sc1'%WS],[60,61])
    poll(['global_load_dwordx4 v[%d:%d], v27, %s offset:%d sc1'%(32+4*t,35+4*t,WS,1024*t-3072) for t in range(7)],list(range(32,60)))
    stamp(10)
    for t in range(7):
        for tt in range(2):
            acc='v[%d:%d]'%(64+4*tt,67+4*tt)
            r=96+8*t+4*tt
            A('v_mfma_f32_16x16x32_bf16 %s, v[%d:%d], v[%d:%d], %s'%(acc,r,r+3,32+4*t,35+4*t,'0' if t==0 else acc))
    A('s_nop 6')
    A('ds_write_b128 v10, v[64:67] offset:%d'%L_DP)
    A('ds_write_b128 v10, v[68:71] offset:%d'%(L_DP+1024))
    A('s_waitcnt lgkmcnt(0)\ns_barrier')
    A('s_cmp_lg_u32 s53, 0\ns_cbranch_scc1 L_end')
    for w in range(4):
        A('ds_read_b64 v[%d:%d], v26 offset:%d'%(32+4*w,33+4*w,L_DP+2048*w))
        A('ds_read_b64 v[%d:%d], v26 offset:%d'%(34+4*w,35+4*w,L_DP+2048*w+640))
    A('s_waitcnt lgkmcnt(0)')
    for w in range(4): A('v_pk_add_f32 v[%d:%d], v[%d:%d], v[%d:%d]'%(32+4*w,33+4*w,32+4*w,33+4*w,34+4*w,35+4*w))
    A('v_pk_add_f32 v[32:33], v[32:33], v[36:37]\nv_pk_add_f32 v[40:41], v[40:41], v[44:45]\nv_pk_add_f32 v[32:33], v[32:33], v[40:41]')
    A('v_cvt_pk_bf16_f32 v32, v32, v33\nv_and_b32 v33, s60, v32\nv_lshlrev_b32 v32, 16, v32')
    A('v_pk_add_f32 v[32:33], v[32:33], v[60:61]')
    A('v_cvt_pk_bf16_f32 v32, v32, v33')
    A('global_store_dword v28, v32, %s'%OUT)
    if cfg.diag:
        stamp(13)
        if cfg.leak is not None:
            a,b=cfg.leak
            A('s_waitcnt lgkmcnt(0)')
            if b>=100:
                A('v_mov_b32 v8, %d\nds_read_b32 v9, v8 offset:%d\ns_waitcnt lgkmcnt(0)\nv_readfirstlane_b32 s54, v9\ns_sub_u32 s54, s54, s%d'%(4*(b-100),L_ST,72+2*a))
            else: A('s_sub_u32 s54, s%d, s%d'%(72+2*b,72+2*a))
            A('s_min_u32 s54, s54, 20000')
            A('L_leak:')
            A('s_memrealtime s[68:69]\ns_waitcnt lgkmcnt(0)\ns_sub_u32 s55, s68, s%d\ns_cmp_lt_u32 s55, s54\ns_cbranch_scc1 L_leak'%(72+2*13))
        else:
            A('s_waitcnt lgkmcnt(0)\ns_mov_b32 s100, s92\ns_mov_b32 s92, 0')
            dump_stamps(15,8)
    A('L_end:')
    A('s_endpgm')
    A('.section .rodata,"a"\n.p2align 6\n.amdhsa_kernel %s'%K)
    A('  .amdhsa_next_free_vgpr 256\n  .amdhsa_next_free_sgpr 102\n  .amdhsa_accum_offset 256\n  .amdhsa_group_segment_fixed_size 0\n  .amdhsa_kernarg_size 96')
    A('  .amdhsa_user_sgpr_count 2\n  .amdhsa_user_sgpr_kernarg_segment_ptr 1\n  .amdhsa_system_sgpr_workgroup_id_x 1')
    A('  .amdhsa_float_denorm_mode_32 3\n  .amdhsa_float_denorm_mode_16_64 3')
    A('.end_amdhsa_kernel')
    return '\n'.join(L)+'\n'

if __name__=='__main__':
    cfg=Cfg()
    out=sys.argv[1]
    for a in sys.argv[2:]:
        k,v=a.split('=',1); setattr(cfg,k,eval(v))
    s=gen(cfg)
    hdr=''.join(l for l in open('cdna_kernels/%s.s.ref'%NAME).readlines()[:13])
    open(out,'w').write(hdr+s)
```

```python
import sys
NAME='sequential_preLN__gqa_block_cached__geglu_ffn__decode'
K=NAME+'_kernel'

class Cfg:
    diag=False
    leak=None
    gleak=None
    NS=22
    sflag=False
    svcfirst=True
    spin=1<<17
    T=6
    kf='nt'; vf='nt'; wf='nt'; ff=''
    pq=3
    pw0=7
    pw1=22
    noW=False

QP=0x0
CTR=0x230000
CLR=0x100000
WP=0x100000
OP=0x180000
OPS=640
HB=0x220000
AB=0x224000
STAMP=0x10000000
L_CNT=0
L_MLW=64
L_QL=256
L_XN=1280
XNS=1040
L_XO=9600
XOS=272
L_DP=11776
L_OW=19968
L_ST=28160
L_PR=28416
L_WB=29696
L_WA=L_WB+16384
LDS_BYTES=L_WA+65536

LOG2E=0x3fb8aa3b
SCALE=0x3db504f3

def gen(cfg):
    L=[]
    def A(s):
        L.extend(s.split('\n'))
    lab=[0]
    def newlab(p):
        lab[0]+=1
        return 'L_%s_%d'%(p,lab[0])
    X,KP,VP,WQ,WO,BX,WG,WU,WD,OUT,DBG,WS=['s[%d:%d]'%(16+2*i,17+2*i) for i in range(12)]
    def stamp(i):
        if cfg.diag: A('s_memrealtime s[%d:%d]'%(72+2*i,73+2*i))
    def pack_stamps(n,vt):
        A('s_waitcnt lgkmcnt(0)')
        A('v_mov_b32 v%d, 0'%vt)
        for i in range(n): A('v_writelane_b32 v%d, s%d, %d'%(vt,72+2*i,i))
    def dump_stamps(n,vt):
        if not cfg.diag: return
        A('s_mov_b64 exec, -1')
        pack_stamps(n,vt)
        A('v_lshlrev_b32 v%d, 2, v0'%(vt+1))
        A('ds_read_b32 v%d, v%d offset:%d'%(vt+2,vt+1,L_ST))
        A('s_lshl_b32 s66, s2, 8\ns_add_u32 s66, s66, %d'%(STAMP))
        A('v_add_u32 v%d, s66, v%d'%(vt+1,vt+1))
        A('s_mov_b64 exec, 0xffff')
        A('s_waitcnt lgkmcnt(0)')
        A('global_store_dword v%d, v%d, %s'%(vt+1,vt+2,WS))
        A('global_store_dword v%d, v%d, %s offset:64'%(vt+1,vt,WS))

    A('; @launch grid=(256,1,1) block=(512,1,1) lds=%d'%LDS_BYTES)
    A('.amdgcn_target "amdgcn-amd-amdhsa--gfx950"\n.text\n.globl %s\n.p2align 8\n.type %s,@function\n%s:'%(K,K,K))
    A('s_cmp_ge_u32 s2, 256\ns_cbranch_scc1 L_end')
    A('s_load_dwordx16 s[16:31], s[0:1], 0')
    A('s_load_dwordx8 s[32:39], s[0:1], 64')
    if cfg.diag:
        for i in range(1,14): A('s_mov_b32 s%d, 0'%(72+2*i))
    stamp(0)
    A('v_lshrrev_b32 v1, 6, v0')
    A('v_lshlrev_b32 v3, 2, v0')
    A('v_and_b32 v0, 63, v0')
    A('v_readfirstlane_b32 s52, v1')
    A('s_and_b32 s48, s2, 7\ns_lshr_b32 s49, s2, 3\ns_lshl_b32 s50, s49, 1\ns_bfe_u32 s54, s2, 0x10001\ns_or_b32 s50, s50, s54')
    A('s_and_b32 s51, s2, 1\ns_bfe_u32 s54, s2, 0x10002\ns_lshl_b32 s54, s54, 1\ns_or_b32 s51, s51, s54')
    A('s_mov_b32 s59, 0x%x\ns_mov_b32 s60, 0xffff0000'%(LOG2E))
    A('v_lshlrev_b32 v1, 4, v0')
    A('s_cmp_ge_u32 s52, 4\ns_cbranch_scc1 L_service')

    TH=cfg.T
    NS=cfg.NS
    RB=64
    A('s_lshl_b32 s54, s50, 21')
    A('s_lshl_b32 s62, s51, 2\ns_add_u32 s62, s62, s52')
    A('v_lshrrev_b32 v2, 4, v0\nv_lshlrev_b32 v2, 6, v2\nv_and_b32 v4, 3, v0\nv_lshl_add_u32 v2, v4, 4, v2')
    A('v_bfe_u32 v5, v0, 2, 2\nv_lshl_add_u32 v2, v5, 8, v2')
    A('s_mov_b32 s42, 0x200000\ns_mov_b32 s43, 0x20000\ns_mov_b32 s46, 0x200000\ns_mov_b32 s47, 0x20000')
    A('v_mov_b32 v30, 0')
    A('s_waitcnt lgkmcnt(0)')
    A('s_add_u32 s40, s18, s54\ns_addc_u32 s41, s19, 0\ns_and_b32 s41, s41, 0xffff')
    A('s_add_u32 s44, s20, s54\ns_addc_u32 s45, s21, 0\ns_and_b32 s45, s45, 0xffff')
    st={'n':0}
    def load(slot,j,throttle=True):
        if j==0: A('s_lshl_b32 s65, s62, 12')
        if throttle: A('s_waitcnt vmcnt(%d)'%(TH-1))
        r=RB+slot*32+j*4
        t=j//4
        A('buffer_load_dwordx4 v[%d:%d], %s, %s, s65 offen offset:%d %s'%(r,r+3,'v2' if t==0 else 'v1','s[40:43]' if t==0 else 's[44:47]',(j%4)*1024,cfg.kf if t==0 else cfg.vf))
    def prog(val):
        A('v_mov_b32 v30, %s\nds_write_b32 v3, v30 offset:%d'%(val,L_PR))
    def pro_issue(n0,n1):
        for n in range(n0,n1):
            load(n//8,n%8,n>=TH)
            if n%8==7:
                A('s_add_u32 s62, s62, 16')
                if n>=15: prog(n//8+1)
    if cfg.svcfirst: A('s_barrier')
    pro_issue(0,TH)
    A('ds_write_b32 v3, v30 offset:%d'%L_PR)
    A('s_mov_b32 s56, 0x05040100\ns_mov_b32 s57, 0x07060302\ns_mov_b32 s58, 0x%x'%SCALE)
    A('s_lshl_b32 s54, s50, 8\ns_add_u32 s54, s54, %d\ns_add_u32 s66, s38, s54\ns_addc_u32 s67, s39, 0'%CTR)
    A('s_lshl_b32 s55, s52, 11')
    A('v_lshlrev_b32 v4, 9, v4\nv_and_b32 v0, 0x30, v0\nv_add3_u32 v0, v4, v0, s55')
    A('v_mov_b32 v14, 0xff800000\nv_mov_b32 v28, 0x3f803f80\nv_mov_b32 v29, 0x3f803f80')
    for r in list(range(24,28))+list(range(32,64)): A('v_mov_b32 v%d, 0'%r)
    A('s_waitcnt lgkmcnt(0)')
    A('s_barrier')
    pro_issue(TH,48)
    stamp(1)
    A('s_barrier')
    A('ds_read_b128 v[4:7], v1 offset:%d'%L_QL)
    stamp(2)
    A('s_waitcnt lgkmcnt(0)')
    def kpart(slot,fill):
        B=RB+slot*32
        f=list(fill)
        def nxt():
            if f: f.pop(0)()
        D=[20,B,B+4,B+8]
        for i in range(4):
            A('v_mfma_f32_16x16x32_bf16 v[%d:%d], v[%d:%d], v[4:7], 0'%(D[i],D[i]+3,B+4*i,B+4*i+3))
        A('s_nop 7')
        for h in range(2):
            for step in range(3):
                for e in range(2):
                    be=2*e+h
                    S=18+e
                    A('v_add_f32_dpp v%d, v%d, v%d row_ror:%d row_mask:0xf bank_mask:0x%x'%(S,D[be]+((be+step+1)&3),(D[be]+be) if step==0 else S,12-4*step,1<<be))
                A('s_nop 0')
        nxt()
        A('s_nop 0')
        A('v_mov_b32_dpp v18, v19 quad_perm:[0,1,2,3] row_mask:0xf bank_mask:0xc')
        A('v_cvt_pk_bf16_f32 v18, v18, v18\nv_lshlrev_b32 v18, 16, v18\nv_mul_f32 v18, s58, v18\nv_cvt_pk_bf16_f32 v18, v18, v18\nv_lshlrev_b32 v18, 16, v18')
        A('v_max_f32 v15, v14, v18')
        A('s_nop 1\nv_max_f32_dpp v15, v15, v15 row_ror:4 row_mask:0xf bank_mask:0xf')
        A('s_nop 1\nv_max_f32_dpp v15, v15, v15 row_ror:8 row_mask:0xf bank_mask:0xf')
        A('v_mov_b32 v31, v15\ns_nop 1\nv_permlane16_swap_b32 v15, v31\nv_max_f32 v15, v15, v31')
        A('v_mov_b32 v31, v15\ns_nop 1\nv_permlane32_swap_b32 v15, v31\nv_max_f32 v15, v15, v31')
        nxt()
        A('v_sub_f32 v16, v14, v15\nv_sub_f32 v18, v18, v15\nv_cmp_neq_f32 vcc, v14, v15\nv_mul_f32 v16, s59, v16\nv_mul_f32 v18, s59, v18')
        A('v_exp_f32 v16, v16\nv_exp_f32 v18, v18\nv_mov_b32 v14, v15\ns_nop 0')
        A('v_mov_b32_dpp v19, v18 row_ror:12 row_mask:0xf bank_mask:0xf')
        A('v_cvt_pk_bf16_f32 v8, v18, v19')
        l=newlab('nr')
        A('s_cbranch_vccz %s'%l)
        for r in range(32,64,2):
            A('v_pk_mul_f32 v[%d:%d], v[%d:%d], v[16:17] op_sel_hi:[1,0]'%(r,r+1,r,r+1))
        A('v_mul_f32 v24, v24, v16')
        A('%s:'%l)
        A('s_nop 0')
        A('v_mov_b32_dpp v9, v8 row_ror:8 row_mask:0xf bank_mask:0xf')
        while f: nxt()
    def vpart(slot):
        B=RB+slot*32+16
        def perms(j):
            Tt=10+2*(j&1)
            for ii in range(2):
                A('v_perm_b32 v%d, v%d, v%d, s%d'%(Tt+ii,B+4*(2*ii+1)+(j>>1),B+4*(2*ii)+(j>>1),56+(j&1)))
        perms(0)
        for j in range(8):
            if j<7: perms(j+1)
            else: A('v_mfma_f32_16x16x16_bf16 v[24:27], v[28:29], v[8:9], v[24:27]')
            Tt=10+2*(j&1)
            A('v_mfma_f32_16x16x16_bf16 v[%d:%d], v[%d:%d], v[8:9], v[%d:%d]'%(32+4*j,35+4*j,Tt,Tt+1,32+4*j,35+4*j))
    tr={'issued':48}
    slot_of={u:u for u in range(6)}
    slot_of.update({6:0,7:1,8:2,9:0})
    def tload():
        n=tr['issued']; load(slot_of[n//8],n%8); tr['issued']=n+1
        if n%8==7:
            A('s_add_u32 s62, s62, 16')
            if n//8<9: prog(n//8+1)
    def need(n):
        rem=tr['issued']-n
        assert rem>=0
        if rem<TH: A('s_waitcnt vmcnt(%d)'%rem)
    for u in range(9):
        need(8*u+4)
        if u==0: kpart(0,[])
        else: kpart(slot_of[u],[tload]*(3 if u<8 else 4))
        need(8*u+8)
        vpart(slot_of[u])
        if u<8 and u>0: tload()
    assert tr['issued']==80
    A('s_mov_b32 s64, 10')
    stamp(3)
    A('L_loop:')
    for c in range(2):
        ls=newlab('st'); lq=newlab('rq')
        prog('s64')
        A('s_add_u32 s64, s64, 1')
        A('s_add_u32 s63, s62, 16')
        A('s_cmp_lt_u32 s64, %d\ns_cbranch_scc1 %s'%(NS,ls))
        A('s_cmp_ge_u32 s62, 512\ns_cbranch_scc1 %s'%ls)
        A('s_cmp_gt_u32 s64, %d\ns_cbranch_scc1 %s'%(NS,lq))
        lw=newlab('cw')
        A('v_mov_b32 v31, 0\n%s:\nds_read_b32 v15, v31 offset:%d\ns_waitcnt lgkmcnt(0)\nv_readfirstlane_b32 s54, v15\ns_cmp_eq_u32 s54, 0\ns_cbranch_scc1 %s'%(lw,L_CNT+8,lw))
        stamp(4)
        A('%s:'%lq)
        A('s_mov_b32 s63, 1\ns_atomic_add s63, s[66:67], 0x0 glc')
        A('%s:'%ls)
        for j in range(4): load(1-c,j)
        if TH>8: A('s_waitcnt vmcnt(8)')
        kpart(c,[(lambda j=j: load(1-c,j)) for j in range(4,8)])
        if TH>8: A('s_waitcnt vmcnt(8)')
        vpart(c)
        A('s_cmp_ge_u32 s62, 512\ns_cbranch_scc1 L_sdone')
        A('s_waitcnt lgkmcnt(0)')
        A('s_add_u32 s54, s63, %d\ns_cmp_lt_u32 s64, %d\ns_cselect_b32 s62, s63, s54'%(NS*16+1,NS))
        if c==1: A('s_branch L_loop')
    A('L_sdone:')
    A('s_mov_b32 exec_lo, 0x000f000f\ns_mov_b32 exec_hi, 0x000f000f')
    stamp(5)
    A('s_nop 1')
    for j in range(8):
        if j==5: A('v_mov_b32 v15, v24\ns_nop 1')
        A('ds_write_b128 v0, v[%d:%d] offset:%d'%(32+4*j,35+4*j,L_OW+64*j))
    A('s_mov_b64 exec, 0xf')
    A('s_lshl_b32 s55, s52, 3\nv_lshlrev_b32 v31, 1, v1\nv_add_u32 v31, s55, v31')
    A('ds_write_b64 v31, v[14:15] offset:%d'%L_MLW)
    if cfg.diag:
        A('s_mov_b64 exec, -1')
        A('s_cmp_lg_u32 s52, 0\ns_cbranch_scc1 L_nost')
        pack_stamps(6,8)
        A('v_writelane_b32 v8, s64, 8')
        A('ds_write_b32 v3, v8 offset:%d'%L_ST)
        A('L_nost:')
    A('s_waitcnt lgkmcnt(0)')
    A('s_barrier')
    A('s_endpgm')

    A('L_service:')
    A('s_setprio 3')
    A('s_sub_u32 s53, s52, 4')
    A('s_lshl_b32 s66, s53, 12')
    A('s_lshr_b32 s68, s49, 3\ns_and_b32 s69, s49, 7')
    A('v_lshrrev_b32 v2, 5, v0\ns_lshl_b32 s54, s53, 1\nv_add_u32 v2, s54, v2')
    A('v_and_b32 v3, 31, v0\nv_lshlrev_b32 v3, 4, v3')
    A('v_lshl_add_u32 v4, v2, 10, v3')
    A('s_lshl_b32 s54, s68, 7\ns_lshl_b32 s55, s53, 5\ns_add_u32 s54, s54, s55')
    A('v_lshrrev_b32 v6, 3, v0\nv_add_u32 v6, s54, v6\nv_lshlrev_b32 v6, 13, v6')
    A('v_and_b32 v7, 7, v0\nv_lshl_add_u32 v6, v7, 4, v6')
    A('s_lshl_b32 s54, s48, 10\ns_lshl_b32 s55, s69, 7\ns_add_u32 s54, s54, s55\nv_add_u32 v6, s54, v6')
    A('s_lshl_b32 s54, s48, 2\ns_add_u32 s54, s54, s68\ns_lshl_b32 s54, s54, 11\ns_lshl_b32 s55, s69, 8\ns_add_u32 s54, s54, s55\ns_lshl_b32 s55, s53, 6\ns_add_u32 s54, s54, s55')
    A('v_lshlrev_b32 v14, 16, v7\nv_and_b32 v15, 0x30, v0\nv_add3_u32 v14, v14, v15, s54')
    A('v_mov_b32 v40, -1\nv_mov_b32 v41, -1\nv_mov_b32 v42, -1\nv_mov_b32 v43, -1')
    A('s_add_u32 m0, s66, %d'%L_WA)
    A('s_waitcnt lgkmcnt(0)')
    A('global_load_dwordx4 v[32:35], v4, %s'%X)
    A('global_load_dwordx4 v[36:39], v4, %s offset:512'%X)
    for i in range(4):
        if i: A('s_add_u32 m0, s66, %d\nv_add_u32 v6, 0x10000, v6'%(L_WA+i*1024))
        A('global_load_lds_dwordx4 v6, %s %s'%(WQ,cfg.wf))
    A('s_mov_b32 exec_lo, 0x00ff00ff\ns_mov_b32 exec_hi, 0x00ff00ff')
    A('global_store_dwordx4 v14, v[40:43], %s sc1'%WS)
    A('s_mov_b64 exec, -1')
    if cfg.svcfirst==1: A('s_barrier')
    A('s_lshl_b32 s54, s2, 12\ns_lshl_b32 s55, s53, 10\ns_add_u32 s54, s54, s55\ns_add_u32 s54, s54, %d'%CLR)
    A('v_add_u32 v6, s54, v1')
    A('global_store_dwordx4 v6, v[40:43], %s sc1'%WS)
    A('s_lshl_b32 s54, s2, 10\ns_lshl_b32 s55, s53, 8\ns_add_u32 s54, s54, s55\ns_add_u32 s54, s54, %d'%(CLR+0x100000))
    A('v_add_u32 v6, s54, v1')
    A('s_mov_b64 exec, 0xffff')
    A('global_store_dwordx4 v6, v[40:43], %s sc1'%WS)
    A('s_mov_b64 exec, -1')
    if cfg.svcfirst==2: A('s_barrier')
    A('v_mov_b32 v11, 0\nv_mov_b32 v12, 1\nv_mov_b32 v44, 0\nv_mov_b32 v45, 0\nv_mov_b32 v46, 0\nv_mov_b32 v47, 0')
    A('ds_write_b128 v11, v[44:47] offset:%d'%L_CNT)
    A('v_mul_u32_u24 v5, %d, v2\nv_add_u32 v5, v5, v3'%XNS)
    A('v_lshrrev_b32 v8, 4, v0\nv_lshlrev_b32 v8, 10, v8\nv_bfe_u32 v9, v0, 2, 2\nv_lshl_add_u32 v8, v9, 7, v8\nv_and_b32 v9, 3, v0\nv_lshl_add_u32 v8, v9, 3, v8')
    A('s_lshl_b32 s54, s53, 5\nv_add_u32 v8, s54, v8')
    A('v_mul_u32_u24 v9, %d, v7\nv_add_u32 v9, v9, v15\ns_lshl_b32 s54, s68, 8\nv_add_u32 v10, s54, v9'%XNS)
    A('s_lshl_b32 s54, s53, 8\nv_mov_b32 v31, s54')
    A('s_waitcnt lgkmcnt(0)')
    A('s_barrier')

    def dppadd(r,ctl):
        A('s_nop 1\nv_add_f32_dpp v%d, v%d, v%d %s row_mask:0xf bank_mask:0xf'%(r,r,r,ctl))
    def swapadd(r,t,w):
        A('v_mov_b32 v%d, v%d\ns_nop 1\nv_permlane%d_swap_b32 v%d, v%d\nv_add_f32 v%d, v%d, v%d'%(t,r,w,r,t,r,r,t))
    def rbf(r):
        A('v_cvt_pk_bf16_f32 v%d, v%d, v%d\nv_lshlrev_b32 v%d, 16, v%d'%(r,r,r,r,r))
    def layernorm(mode):
        def red(r,t):
            if mode=='x':
                for k in (1,2,4,8): dppadd(r,'row_ror:%d'%k)
                swapadd(r,t,16)
            else:
                dppadd(r,'quad_perm:[1,0,3,2]'); dppadd(r,'quad_perm:[2,3,0,1]'); dppadd(r,'row_ror:8')
                swapadd(r,t,16); swapadd(r,t,32)
        if mode=='x':
            for i in range(8):
                A('v_lshlrev_b32 v%d, 16, v%d\nv_and_b32 v%d, s60, v%d'%(48+2*i,32+i,49+2*i,32+i))
        A('v_pk_add_f32 v[64:65], v[48:49], v[50:51]\nv_pk_add_f32 v[66:67], v[52:53], v[54:55]')
        A('v_pk_add_f32 v[68:69], v[56:57], v[58:59]\nv_pk_add_f32 v[70:71], v[60:61], v[62:63]')
        A('v_pk_add_f32 v[64:65], v[64:65], v[66:67]\nv_pk_add_f32 v[68:69], v[68:69], v[70:71]')
        A('v_pk_add_f32 v[64:65], v[64:65], v[68:69]\nv_add_f32 v64, v64, v65')
        red(64,65)
        A('v_mul_f32 v64, 0xbb000000, v64')
        A('v_mov_b32 v65, v64')
        for i in range(8):
            t=68+2*(i&1)
            A('v_pk_add_f32 v[%d:%d], v[%d:%d], v[64:65]'%(t,t+1,48+2*i,49+2*i))
            if i==0: A('v_pk_mul_f32 v[66:67], v[%d:%d], v[%d:%d]'%(t,t+1,t,t+1))
            else: A('v_pk_fma_f32 v[66:67], v[%d:%d], v[%d:%d], v[66:67]'%(t,t+1,t,t+1))
        A('v_add_f32 v66, v66, v67')
        rbf(64)
        A('v_mov_b32 v65, v64')
        red(66,67)
        for i in range(8):
            A('v_pk_add_f32 v[%d:%d], v[%d:%d], v[64:65]'%(48+2*i,49+2*i,48+2*i,49+2*i))
        A('v_mul_f32 v66, 0x3b000000, v66')
        rbf(66)
        A('v_add_f32 v66, 0x3727c5ac, v66')
        rbf(66)
        A('v_sqrt_f32 v66, v66')
        for i in range(8):
            A('v_cvt_pk_bf16_f32 v%d, v%d, v%d'%(48+2*i,48+2*i,49+2*i))
        rbf(66)
        A('v_rcp_f32 v66, v66')
        for i in range(8):
            A('v_and_b32 v%d, s60, v%d\nv_lshlrev_b32 v%d, 16, v%d'%(49+2*i,48+2*i,48+2*i,48+2*i))
        A('v_mov_b32 v67, v66')
        for i in range(8):
            A('v_pk_mul_f32 v[%d:%d], v[%d:%d], v[66:67]'%(48+2*i,49+2*i,48+2*i,49+2*i))
        for i in range(8):
            A('v_cvt_pk_bf16_f32 v%d, v%d, v%d'%(32+i,48+2*i,49+2*i))
        if mode=='x':
            A('ds_write_b128 v5, v[32:35] offset:%d'%L_XN)
            A('ds_write_b128 v5, v[36:39] offset:%d'%(L_XN+512))
        else:
            for t in range(4):
                A('ds_write_b64 v5, v[%d:%d] offset:%d'%(32+2*t,33+2*t,L_XN+256*t))
    def lds_sync(cnt,sleep=0):
        l=newlab('ls')
        A('s_waitcnt lgkmcnt(0)')
        A('s_mov_b64 exec, 1\nds_add_u32 v11, v12 offset:%d\ns_mov_b64 exec, -1'%(L_CNT+4*cnt))
        lds_wait(11,L_CNT+4*cnt,4,sleep)
    def lds_wait(va,off,val,sleep):
        l=newlab('lw'); d=newlab('ld')
        A('%s:'%l)
        A('ds_read_b32 v13, v%d offset:%d\ns_waitcnt lgkmcnt(0)\nv_readfirstlane_b32 s54, v13\ns_cmp_ge_u32 s54, %s'%(va,off,val))
        if sleep: A('s_cbranch_scc1 %s\ns_sleep %d\ns_branch %s\n%s:'%(d,sleep,l,d))
        else: A('s_cbranch_scc0 %s'%l)
    def progress(p): lds_wait(31,L_PR,p,6)
    def poll(loads,regs,sleep=0):
        l=newlab('pl'); d=newlab('pd')
        A('s_mov_b32 s61, %d'%cfg.spin)
        A('%s:'%l)
        for x in loads: A(x)
        A('s_waitcnt vmcnt(0)')
        r=list(regs)
        if len(r)==1: A('v_cmp_eq_u32 vcc, -1, v%d'%r[0])
        else:
            if len(r)==2: A('v_max_u32 v13, v%d, v%d'%(r[0],r[1])); r=[]
            else: A('v_max3_u32 v13, v%d, v%d, v%d'%(r[0],r[1],r[2])); r=r[3:]
            while r:
                if len(r)==1: A('v_max_u32 v13, v13, v%d'%r[0]); r=[]
                else: A('v_max3_u32 v13, v13, v%d, v%d'%(r[0],r[1])); r=r[2:]
            A('v_cmp_eq_u32 vcc, -1, v13')
        A('s_cbranch_vccz %s'%d)
        if sleep: A('s_sleep %d'%sleep)
        A('s_sub_u32 s61, s61, 1\ns_cmp_lg_u32 s61, 0\ns_cbranch_scc1 %s'%l)
        A('%s:'%d)
    def flagpoll(voff,execmask):
        l=newlab('fl'); d=newlab('fd')
        A('s_mov_b32 s61, %d\ns_mov_b32 s55, 0x01010101'%cfg.spin)
        A('s_mov_b64 exec, %s'%execmask)
        A('%s:'%l)
        A('global_load_dword v13, v%d, %s sc1\ns_waitcnt vmcnt(0)'%(voff,DBG))
        A('v_cmp_ne_u32 vcc, s55, v13\ns_cbranch_vccz %s'%d)
        A('s_sleep 16')
        A('s_sub_u32 s61, s61, 1\ns_cmp_lg_u32 s61, 0\ns_cbranch_scc1 %s'%l)
        A('%s:'%d)
        A('s_mov_b64 exec, -1')
    def tr128(dst,base):
        for s_ in range(4):
            A('ds_read_b64_tr_b16 v[%d:%d], v8 offset:%d'%(dst+4*s_,dst+4*s_+1,base+4096*s_))
            A('ds_read_b64_tr_b16 v[%d:%d], v8 offset:%d'%(dst+4*s_+2,dst+4*s_+3,base+4096*s_+512))

    A('s_waitcnt vmcnt(7)')
    stamp(1)
    layernorm('x')
    A('s_waitcnt vmcnt(0)')
    lds_sync(0)
    stamp(2)
    tr128(80,L_WA)
    for s_ in range(4):
        A('ds_read_b128 v[%d:%d], v10 offset:%d'%(32+4*s_,35+4*s_,L_XN+64*s_))
    A('s_and_b32 s71, s50, 7\ns_lshl_b32 s71, s71, 5\nv_lshlrev_b32 v7, 2, v0\nv_add_u32 v7, s71, v7')
    A('s_lshl_b32 s54, s48, 5\ns_add_u32 s54, s54, s49\nv_mov_b32 v6, s54')
    A('s_cmp_lg_u32 s53, 3\ns_cbranch_scc1 L_noflag')
    A('s_mov_b64 exec, 1\nglobal_store_byte v6, v12, %s sc1\ns_mov_b64 exec, -1'%DBG)
    A('L_noflag:')
    A('s_waitcnt lgkmcnt(0)')
    for s_ in range(4):
        A('v_mfma_f32_16x16x32_bf16 v[48:51], v[%d:%d], v[%d:%d], %s'%(80+4*s_,83+4*s_,32+4*s_,35+4*s_,'0' if s_==0 else 'v[48:51]'))
    A('s_nop 7')
    for r in range(4): A('v_min_u32 v%d, -2, v%d'%(48+r,48+r))
    A('s_mov_b32 exec_lo, 0x00ff00ff\ns_mov_b32 exec_hi, 0x00ff00ff')
    A('global_store_dwordx4 v14, v[48:51], %s sc1'%WS)
    A('s_mov_b64 exec, -1')
    stamp(3)
    A('s_cmp_lg_u32 s53, 0\ns_cbranch_scc1 L_qdone')
    A('v_and_b32 v6, 3, v0\nv_lshlrev_b32 v6, 9, v6\nv_lshrrev_b32 v14, 2, v0\nv_lshl_add_u32 v6, v14, 5, v6')
    A('s_lshl_b32 s54, s50, 13\ns_add_u32 s54, s54, %d\nv_add_u32 v6, s54, v6'%(QP+3072))
    progress(cfg.pq)
    if cfg.sflag:
        l=newlab('sf'); d=newlab('sd')
        A('s_mov_b32 s61, %d'%cfg.spin)
        A('%s:'%l)
        A('s_load_dwordx8 s[4:11], %s, s71 glc\ns_waitcnt lgkmcnt(0)'%DBG)
        A('s_and_b64 s[4:5], s[4:5], s[6:7]\ns_and_b64 s[8:9], s[8:9], s[10:11]\ns_and_b64 s[4:5], s[4:5], s[8:9]\ns_and_b32 s4, s4, s5')
        A('s_cmp_eq_u32 s4, 0x01010101\ns_cbranch_scc1 %s'%d)
        A('s_sleep 16\ns_sub_u32 s61, s61, 1\ns_cmp_lg_u32 s61, 0\ns_cbranch_scc1 %s'%l)
        A('%s:'%d)
    else: flagpoll(7,'0xff')
    stamp(4)
    poll(['global_load_dwordx4 v[%d:%d], v6, %s offset:%d sc1'%(32+8*kq+4*h,35+8*kq+4*h,WS,2048*kq+16*h-3072) for kq in range(4) for h in range(2)],list(range(32,64)),sleep=8)
    for p in range(4):
        A('v_pk_add_f32 v[%d:%d], v[%d:%d], v[%d:%d]'%(32+2*p,33+2*p,32+2*p,33+2*p,40+2*p,41+2*p))
        A('v_pk_add_f32 v[%d:%d], v[%d:%d], v[%d:%d]'%(48+2*p,49+2*p,48+2*p,49+2*p,56+2*p,57+2*p))
    for p in range(4):
        A('v_pk_add_f32 v[%d:%d], v[%d:%d], v[%d:%d]'%(32+2*p,33+2*p,32+2*p,33+2*p,48+2*p,49+2*p))
    for p in range(4):
        A('v_cvt_pk_bf16_f32 v%d, v%d, v%d'%(32+p,32+2*p,33+2*p))
    A('ds_write_b128 v1, v[32:35] offset:%d'%L_QL)
    stamp(5)
    A('s_waitcnt lgkmcnt(0)')
    A('L_qdone:')
    A('s_setprio 0')
    A('s_barrier')

    A('s_mov_b32 s70, 0\ns_and_b32 s54, s49, 0x13\ns_cmp_eq_u32 s54, s51\ns_cselect_b32 s70, 2, s70')
    A('s_sub_u32 s54, s49, 16\ns_cmp_lt_u32 s54, 14\ns_cselect_b32 s70, 1, s70')
    A('s_xor_b32 s55, s2, s49\ns_and_b32 s55, s55, 1\ns_cselect_b32 s70, 3, s70')
    A('s_lshr_b32 s54, s54, 1\ns_mul_i32 s14, s48, 7\ns_add_u32 s14, s14, s54')
    A('s_lshr_b32 s15, s49, 2\ns_lshl_b32 s54, s48, 2\ns_add_u32 s15, s15, s54')
    A('s_lshr_b32 s13, s2, 1')
    A('s_lshl_b32 s54, s48, 2\ns_add_u32 s67, s54, s68')
    A('v_and_b32 v6, 3, v0\nv_lshlrev_b32 v6, 2, v6\nv_lshrrev_b32 v7, 4, v0\nv_add_u32 v6, v6, v7')
    A('v_bfe_u32 v7, v0, 2, 1')
    A('v_lshlrev_b32 v24, 2, v6\nv_lshl_add_u32 v24, v7, 6, v24\ns_mov_b32 s55, s13\ns_lshl_b32 s54, s55, 7\ns_add_u32 s54, s54, %d\nv_add_u32 v24, s54, v24'%HB)
    A('v_lshlrev_b32 v6, 1, v6\nv_lshl_add_u32 v6, v7, 10, v6\ns_lshr_b32 s54, s55, 5\ns_lshl_b32 s54, s54, 11\ns_and_b32 s55, s55, 31\ns_lshl_b32 s55, s55, 5\ns_add_u32 s54, s54, s55\nv_add_u32 v6, s54, v6')
    A('global_load_ushort v16, v6, %s'%X)
    A('v_lshlrev_b32 v7, 2, v0')
    A('s_cmp_lg_u32 s53, 0\ns_cbranch_scc1 L_nofc')
    flagpoll(7,'-1')
    A('s_mov_b64 exec, 1\nds_add_u32 v11, v12 offset:%d\ns_mov_b64 exec, -1'%(L_CNT+8))
    A('L_nofc:')
    pslot=[0]
    def paced(line):
        k=pslot[0]
        f=lambda k: cfg.pw0+(k*(cfg.pw1-cfg.pw0))//20
        if k==0 or k==4 or f(k)!=f(k-1): progress(f(k))
        assert f(k)<cfg.NS
        pslot[0]+=1
        A(line)
    if not cfg.noW:
        A('s_lshl_b32 s54, s67, 7\ns_lshl_b32 s55, s53, 1\ns_add_u32 s54, s54, s55\ns_lshl_b32 s54, s54, 10\ns_lshl_b32 s55, s69, 7\ns_add_u32 s54, s54, s55')
        A('v_lshrrev_b32 v6, 5, v0\nv_lshlrev_b32 v6, 15, v6\nv_bfe_u32 v7, v0, 3, 2\nv_lshl_add_u32 v6, v7, 13, v6\nv_and_b32 v7, 7, v0\nv_lshl_add_u32 v6, v7, 4, v6\nv_add_u32 v6, s54, v6')
        for i in range(4):
            A('v_add_u32 v7, %d, v6'%((64*(i&1)+(i>>1))*1024))
            paced('s_add_u32 m0, s66, %d\ns_nop 0\nglobal_load_lds_dwordx4 v7, %s %s'%(L_WB+i*1024,WO,cfg.wf))
        l2=newlab('w2'); le=newlab('we')
        A('s_cmp_eq_u32 s70, 2\ns_cbranch_scc1 %s'%l2)
        A('s_cmp_lg_u32 s70, 1\ns_cbranch_scc1 %s'%le)
        p0=pslot[0]
        A('s_lshl_b32 s54, s14, 6')
        A('s_lshl_b32 s55, s53, 7\nv_lshrrev_b32 v6, 2, v0\nv_add_u32 v6, s55, v6\nv_mul_u32_u24 v6, 3584, v6\nv_and_b32 v7, 3, v0\nv_lshl_add_u32 v6, v7, 4, v6\nv_add_u32 v6, s54, v6')
        A('s_lshl_b32 s71, s53, 13')
        for i in range(8):
            if i: A('v_add_u32 v6, %d, v6'%(16*3584))
            paced('s_add_u32 m0, s71, %d\ns_nop 0\nglobal_load_lds_dwordx4 v6, %s %s'%(L_WA+i*1024,WG,cfg.ff))
            paced('s_add_u32 m0, s71, %d\ns_nop 0\nglobal_load_lds_dwordx4 v6, %s %s'%(L_WA+32768+i*1024,WU,cfg.ff))
        A('s_branch %s'%le)
        A('%s:'%l2)
        pslot[0]=p0
        A('s_mul_i32 s54, s53, 448\nv_lshrrev_b32 v6, 1, v0\nv_add_u32 v6, s54, v6\nv_lshlrev_b32 v6, 10, v6')
        A('v_and_b32 v7, 1, v0\nv_lshl_add_u32 v6, v7, 4, v6\ns_lshl_b32 s54, s15, 5\nv_add_u32 v6, s54, v6')
        A('s_mul_i32 s71, s53, 14336')
        for i in range(14):
            if i: A('v_add_u32 v6, 0x8000, v6')
            paced('s_add_u32 m0, s71, %d\ns_nop 0\nglobal_load_lds_dwordx4 v6, %s %s'%(L_WA+i*1024,WD,cfg.ff))
        A('%s:'%le)
    A('s_waitcnt vmcnt(0)')
    A('v_lshlrev_b32 v16, 16, v16')
    lds_sync(1,sleep=4)
    stamp(6)
    tr128(80,L_WB)
    l2=newlab('r2'); le=newlab('re')
    A('v_mov_b32 v26, 0\nv_mov_b32 v27, 0\nv_mov_b32 v28, 0\nv_mov_b32 v29, 0')
    A('s_cmp_eq_u32 s70, 2\ns_cbranch_scc1 %s'%l2)
    A('s_cmp_lg_u32 s70, 1\ns_cbranch_scc1 %s'%le)
    A('v_lshrrev_b32 v6, 4, v0\nv_lshlrev_b32 v6, 9, v6\nv_bfe_u32 v7, v0, 2, 2\nv_lshl_add_u32 v6, v7, 6, v6')
    A('v_and_b32 v7, 1, v0\nv_lshl_add_u32 v6, v7, 3, v6\nv_bfe_u32 v7, v0, 1, 1\nv_lshl_add_u32 v6, v7, 15, v6\ns_lshl_b32 s54, s53, 4\ns_add_u32 s54, s54, %d\nv_add_u32 v6, s54, v6'%L_WA)
    for s_ in range(16):
        A('ds_read_b64_tr_b16 v[%d:%d], v6 offset:%d'%(96+4*s_,97+4*s_,2048*s_))
        A('ds_read_b64_tr_b16 v[%d:%d], v6 offset:%d'%(98+4*s_,99+4*s_,2048*s_+256))
        if s_%4==3: A('s_waitcnt lgkmcnt(0)')
    A('s_lshl_b32 s54, s14, 2\ns_add_u32 s54, s54, s53\ns_lshl_b32 s54, s54, 7\ns_add_u32 s54, s54, %d'%AB)
    A('v_and_b32 v27, 7, v0\nv_lshlrev_b32 v27, 4, v27\nv_bfe_u32 v7, v0, 4, 1\nv_lshl_add_u32 v27, v7, 3, v27\nv_bfe_u32 v7, v0, 3, 1\nv_lshl_add_u32 v27, v7, 2, v27\nv_add_u32 v27, s54, v27')
    A('s_add_u32 s54, s66, %d\nv_add_u32 v4, s54, v1'%HB)
    A('v_bfe_u32 v5, v0, 2, 1\ns_lshl_b32 s54, s53, 1\nv_add_u32 v5, s54, v5\nv_mul_u32_u24 v5, %d, v5\nv_lshrrev_b32 v7, 3, v0\nv_lshl_add_u32 v5, v7, 5, v5\nv_and_b32 v7, 3, v0\nv_lshl_add_u32 v5, v7, 3, v5'%XNS)
    A('s_branch %s'%le)
    A('%s:'%l2)
    A('v_lshrrev_b32 v6, 4, v0\nv_lshlrev_b32 v6, 9, v6\nv_bfe_u32 v7, v0, 1, 1\nv_lshl_add_u32 v6, v7, 8, v6\nv_bfe_u32 v7, v0, 2, 2\nv_lshl_add_u32 v6, v7, 5, v6')
    A('v_and_b32 v7, 1, v0\nv_lshl_add_u32 v6, v7, 3, v6\ns_mul_i32 s55, s53, 14336\ns_add_u32 s55, s55, %d\nv_add_u32 v6, s55, v6'%L_WA)
    for t in range(7):
        for tt in range(2):
            r=96+8*t+4*tt
            A('ds_read_b64_tr_b16 v[%d:%d], v6 offset:%d'%(r,r+1,2048*t+16*tt))
            A('ds_read_b64_tr_b16 v[%d:%d], v6 offset:%d'%(r+2,r+3,2048*t+16*tt+128))
        A('s_waitcnt lgkmcnt(0)')
    A('v_bfe_u32 v26, v0, 2, 1\nv_lshlrev_b32 v26, 10, v26\nv_bfe_u32 v7, v0, 1, 1\nv_lshl_add_u32 v26, v7, 8, v26\nv_lshrrev_b32 v7, 3, v0\nv_lshl_add_u32 v26, v7, 4, v26\nv_and_b32 v7, 1, v0\nv_lshl_add_u32 v26, v7, 3, v26')
    A('s_mul_i32 s54, s53, 7168\ns_add_u32 s54, s54, %d\nv_add_u32 v27, s54, v1'%(AB+3072))
    A('s_mov_b32 s54, s15\ns_lshl_b32 s55, s54, 5')
    A('v_lshrrev_b32 v28, 3, v0\nv_lshlrev_b32 v28, 10, v28\nv_and_b32 v7, 7, v0\nv_lshl_add_u32 v28, v7, 2, v28\nv_add_u32 v28, s55, v28')
    A('s_lshl_b32 s54, s54, 7\ns_add_u32 s54, s54, %d'%HB)
    A('v_lshrrev_b32 v29, 4, v0\nv_lshlrev_b32 v29, 12, v29\nv_and_b32 v7, 15, v0\nv_lshl_add_u32 v29, v7, 3, v29\nv_add_u32 v29, s54, v29')
    A('s_lshl_b32 s54, s53, 11\nv_add_u32 v10, s54, v1')
    A('%s:'%le)
    A('s_lshl_b32 s54, s53, 9\nv_add_u32 v17, s54, v3')
    A('s_and_b32 s54, s50, 7\ns_lshl_b32 s54, s54, 2\ns_add_u32 s54, s54, s53\ns_lshl_b32 s54, s54, 3\ns_lshr_b32 s55, s50, 3\ns_add_u32 s54, s54, s55\ns_lshl_b32 s54, s54, 2\ns_add_u32 s54, s54, s51')
    A('s_mul_i32 s54, s54, %d\ns_add_u32 s54, s54, %d\nv_add_u32 v18, s54, v1'%(OPS,OP))
    A('s_mul_i32 s54, s67, %d\ns_add_u32 s54, s54, %d\nv_mul_u32_u24 v25, %d, v2\nv_add_u32 v25, s54, v25\nv_add_u32 v19, v25, v3'%(32*OPS,OP,4*OPS))
    A('s_lshl_b32 s54, s53, 5\nv_mov_b32 v30, s54')
    A('v_mul_u32_u24 v20, %d, v2\nv_lshrrev_b32 v7, 1, v3\nv_add_u32 v20, v20, v7'%XOS)
    A('v_and_b32 v21, 7, v0\nv_mul_u32_u24 v21, %d, v21\nv_add_u32 v21, v21, v15'%XOS)
    A('s_lshl_b32 s54, s69, 2\ns_add_u32 s54, s54, s53\ns_lshl_b32 s54, s54, 5\ns_add_u32 s54, s54, s67\ns_lshl_b32 s54, s54, 7\ns_add_u32 s54, s54, %d'%WP)
    A('v_bfe_u32 v22, v0, 1, 2\nv_lshlrev_b32 v22, 17, v22\nv_and_b32 v7, 1, v0\nv_lshl_add_u32 v22, v7, 6, v22\nv_add3_u32 v22, v22, v15, s54')
    A('s_lshl_b32 s54, s13, 12\ns_add_u32 s54, s54, %d\nv_add_u32 v23, s54, v1'%WP)
    stamp(7)
    A('s_waitcnt lgkmcnt(0)')
    A('s_barrier')
    def weights4(m0,st_,norm):
        m=[m0+st_*i for i in range(4)]
        A('v_max3_f32 v76, v%d, v%d, v%d\nv_max_f32 v76, v76, v%d'%tuple(m))
        for i in range(4): A('v_sub_f32 v%d, v%d, v76'%(72+i,m[i]))
        for i in range(4): A('v_mul_f32 v%d, s59, v%d'%(72+i,72+i))
        for i in range(4): A('v_exp_f32 v%d, v%d'%(72+i,72+i))
        A('v_mul_f32 v77, v72, v%d'%(m[0]+1))
        for i in range(1,4): A('v_fmac_f32 v77, v%d, v%d'%(72+i,m[i]+1))
        if norm: A('v_rcp_f32 v78, v77')
    def wsum(b0):
        for r in range(4): A('v_mul_f32 v%d, v72, v%d'%(b0+r,b0+r))
        for w in range(1,4):
            for r in range(4): A('v_fmac_f32 v%d, v%d, v%d'%(b0+r,72+w,b0+4*w+r))
    if cfg.gleak is not None:
        k,lo,hi,msk=cfg.gleak
        A('s_cmp_lg_u32 s53, 0\ns_cbranch_scc1 L_nogl')
        if k>=100: A('v_mov_b32 v32, %d\nds_read_b32 v33, v32 offset:%d\ns_waitcnt lgkmcnt(0)'%(4*(k-100),L_ST))
        else: A('v_mov_b32 v33, s%d'%(72+2*k))
        A('v_not_b32 v33, v33\nv_mov_b32 v34, s72\nv_mov_b32 v32, 0x238000')
        A('s_mov_b64 exec, 1')
        A('global_atomic_umin v32, v34, %s'%WS)
        A('s_and_b32 s54, s2, %d\ns_sub_u32 s54, s54, %d\ns_cmp_ge_u32 s54, %d\ns_cbranch_scc1 L_nogl2'%(msk,lo,hi-lo))
        A('global_atomic_umin v32, v33, %s offset:256'%WS)
        A('L_nogl2:\ns_mov_b64 exec, -1\ns_waitcnt vmcnt(0)')
        A('L_nogl:')
    A('ds_read_b128 v[64:67], v30 offset:%d\nds_read_b128 v[68:71], v30 offset:%d'%(L_MLW,L_MLW+16))
    for w in range(4):
        A('ds_read_b128 v[%d:%d], v17 offset:%d'%(32+4*w,35+4*w,L_OW+2048*w))
    stamp(8)
    A('s_waitcnt lgkmcnt(%d)'%(0 if cfg.diag else 4))
    weights4(64,2,False)
    A('s_waitcnt lgkmcnt(0)')
    wsum(32)
    A('s_mov_b32 exec_lo, 0')
    A('v_mov_b32 v32, v76\nv_mov_b32 v33, v77')
    A('s_mov_b32 exec_lo, -1\ns_mov_b32 exec_hi, 1')
    for r in range(4): A('v_min_u32 v%d, -2, v%d'%(32+r,32+r))
    A('global_store_dwordx4 v18, v[32:35], %s sc1'%WS)
    A('s_mov_b64 exec, -1')
    poll(['global_load_dwordx2 v[%d:%d], v25, %s offset:%d sc1'%(64+2*s_,65+2*s_,WS,OPS*s_+512) for s_ in range(4)]+
         ['global_load_dwordx4 v[%d:%d], v19, %s offset:%d sc1'%(48+4*s_,51+4*s_,WS,OPS*s_) for s_ in range(4)],list(range(48,72)))
    stamp(9)
    weights4(64,2,True)
    wsum(48)
    for r in range(4): A('v_mul_f32 v%d, v78, v%d'%(48+r,48+r))
    A('v_cvt_pk_bf16_f32 v48, v48, v49\nv_cvt_pk_bf16_f32 v49, v50, v51')
    A('ds_write_b64 v20, v[48:49] offset:%d'%L_XO)
    A('s_waitcnt lgkmcnt(0)\ns_barrier')
    for s_ in range(4):
        A('ds_read_b128 v[%d:%d], v21 offset:%d'%(32+4*s_,35+4*s_,L_XO+64*s_))
    for s_ in range(4):
        A('s_waitcnt lgkmcnt(%d)'%(3-s_))
        A('v_mfma_f32_16x16x32_bf16 v[48:51], v[%d:%d], v[%d:%d], %s'%(80+4*s_,83+4*s_,32+4*s_,35+4*s_,'0' if s_==0 else 'v[48:51]'))
    A('s_nop 7')
    for r in range(4): A('v_min_u32 v%d, -2, v%d'%(48+r,48+r))
    A('s_mov_b32 exec_lo, 0x00ff00ff\ns_mov_b32 exec_hi, 0x00ff00ff')
    A('global_store_dwordx4 v22, v[48:51], %s sc1'%WS)
    A('s_mov_b64 exec, -1')
    A('s_cmp_lg_u32 s70, 3\ns_cbranch_scc1 L_rdone')
    A('s_cmp_lg_u32 s53, 0\ns_cbranch_scc1 L_end')
    poll(['global_load_dwordx4 v[%d:%d], v23, %s offset:%d sc1'%(32+4*t,35+4*t,WS,1024*t) for t in range(4)],list(range(32,48)))
    stamp(10)
    A('v_pk_add_f32 v[32:33], v[32:33], v[36:37]\nv_pk_add_f32 v[34:35], v[34:35], v[38:39]')
    A('v_pk_add_f32 v[40:41], v[40:41], v[44:45]\nv_pk_add_f32 v[42:43], v[42:43], v[46:47]')
    A('v_pk_add_f32 v[32:33], v[32:33], v[40:41]\nv_pk_add_f32 v[34:35], v[34:35], v[42:43]')
    A('s_nop 1\nv_permlane32_swap_b32 v32, v34\nv_permlane32_swap_b32 v33, v35')
    A('v_add_f32 v32, v32, v34\nv_add_f32 v33, v33, v35')
    A('s_nop 1\nv_permlane16_swap_b32 v32, v33\nv_add_f32 v32, v32, v33')
    dppadd(32,'row_ror:8')
    rbf(32)
    A('v_add_f32 v32, v32, v16')
    rbf(32)
    A('s_mov_b32 exec_lo, 0x00ff00ff\ns_mov_b32 exec_hi, 0x00ff00ff')
    A('global_store_dword v24, v32, %s sc1'%WS)
    dump_stamps(14,8)
    A('s_endpgm')
    A('L_rdone:')
    A('s_cmp_eq_u32 s70, 2\ns_cbranch_scc1 L_ffn2')
    A('s_cmp_eq_u32 s70, 0\ns_cbranch_scc1 L_fin')
    poll(['global_load_dwordx4 v[%d:%d], v4, %s offset:%d sc1'%(48+4*t,51+4*t,WS,1024*t) for t in range(4)],list(range(48,64)))
    stamp(11)
    layernorm('h')
    A('s_waitcnt lgkmcnt(0)\ns_barrier')
    for s_ in range(8):
        A('ds_read_b128 v[%d:%d], v9 offset:%d'%(32+4*s_,35+4*s_,L_XN+64*s_))
    for s_ in range(16):
        A('s_waitcnt lgkmcnt(%d)'%min(7,15-s_))
        b=32+4*(s_%8) if s_<8 else 160+4*(s_-8)
        A('v_mfma_f32_16x16x32_bf16 v[64:67], v[%d:%d], v[%d:%d], %s'%(96+4*s_,99+4*s_,b,b+3,'0' if s_==0 else 'v[64:67]'))
        if s_<8: A('ds_read_b128 v[%d:%d], v9 offset:%d'%(160+4*s_,163+4*s_,L_XN+64*(s_+8)))
    A('s_nop 7')
    A('v_permlane32_swap_b32 v64, v65\nv_permlane32_swap_b32 v66, v67')
    A('s_nop 1')
    A('v_mov_b32_dpp v64, v66 quad_perm:[0,1,2,3] row_mask:0xf bank_mask:0xc')
    A('v_mov_b32_dpp v65, v67 quad_perm:[0,1,2,3] row_mask:0xf bank_mask:0xc')
    A('v_cvt_pk_bf16_f32 v32, v64, v65\nv_and_b32 v36, s60, v32\nv_lshlrev_b32 v32, 16, v32')
    A('v_mul_f32 v33, v32, v32\nv_mul_f32 v33, 0x3d372713, v33\nv_fma_f32 v33, v33, v32, v32')
    A('v_mul_f32 v33, 0xc0135761, v33\nv_exp_f32 v33, v33\ns_nop 0\nv_add_f32 v33, 1.0, v33\nv_rcp_f32 v33, v33\ns_nop 0\nv_mul_f32 v33, v33, v32')
    rbf(33)
    A('v_mul_f32 v33, v33, v36\nv_mov_b32 v34, v33\ns_nop 1\nv_permlane32_swap_b32 v33, v34')
    A('v_cvt_pk_bf16_f32 v33, v33, v34\nv_min_u32 v33, -2, v33')
    A('s_mov_b32 exec_hi, 0')
    A('global_store_dword v27, v33, %s sc1'%WS)
    stamp(12)
    A('L_fin:')
    if cfg.diag:
        A('s_cmp_lg_u32 s53, 0\ns_cbranch_scc1 L_end')
        dump_stamps(14,8)
    A('s_endpgm')
    A('L_ffn2:')
    poll(['global_load_dwordx2 v[60:61], v29, %s sc1'%WS],[60,61])
    poll(['global_load_dwordx4 v[%d:%d], v27, %s offset:%d sc1'%(32+4*t,35+4*t,WS,1024*t-3072) for t in range(7)],list(range(32,60)))
    stamp(10)
    for t in range(7):
        for tt in range(2):
            acc='v[%d:%d]'%(64+4*tt,67+4*tt)
            r=96+8*t+4*tt
            A('v_mfma_f32_16x16x32_bf16 %s, v[%d:%d], v[%d:%d], %s'%(acc,r,r+3,32+4*t,35+4*t,'0' if t==0 else acc))
    A('s_nop 6')
    A('ds_write_b128 v10, v[64:67] offset:%d'%L_DP)
    A('ds_write_b128 v10, v[68:71] offset:%d'%(L_DP+1024))
    A('s_waitcnt lgkmcnt(0)\ns_barrier')
    A('s_cmp_lg_u32 s53, 0\ns_cbranch_scc1 L_end')
    for w in range(4):
        A('ds_read_b64 v[%d:%d], v26 offset:%d'%(32+4*w,33+4*w,L_DP+2048*w))
        A('ds_read_b64 v[%d:%d], v26 offset:%d'%(34+4*w,35+4*w,L_DP+2048*w+640))
    A('s_waitcnt lgkmcnt(0)')
    for w in range(4): A('v_pk_add_f32 v[%d:%d], v[%d:%d], v[%d:%d]'%(32+4*w,33+4*w,32+4*w,33+4*w,34+4*w,35+4*w))
    A('v_pk_add_f32 v[32:33], v[32:33], v[36:37]\nv_pk_add_f32 v[40:41], v[40:41], v[44:45]\nv_pk_add_f32 v[32:33], v[32:33], v[40:41]')
    A('v_cvt_pk_bf16_f32 v32, v32, v33\nv_and_b32 v33, s60, v32\nv_lshlrev_b32 v32, 16, v32')
    A('v_pk_add_f32 v[32:33], v[32:33], v[60:61]')
    A('v_cvt_pk_bf16_f32 v32, v32, v33')
    A('global_store_dword v28, v32, %s'%OUT)
    if cfg.diag:
        stamp(13)
        if cfg.leak is not None:
            a,b=cfg.leak
            A('s_waitcnt lgkmcnt(0)')
            if cfg.gleak is not None:
                A('v_mov_b32 v8, 0x238000\nglobal_load_dword v9, v8, %s sc1\nglobal_load_dword v10, v8, %s offset:256 sc1\ns_waitcnt vmcnt(0)'%(WS,WS))
                if b==13: A('v_mov_b32 v10, s%d'%(72+2*13))
                else: A('v_not_b32 v10, v10')
                A('v_sub_u32 v9, v10, v9\ns_nop 1\nv_readfirstlane_b32 s54, v9')
                if b==0: A('s_mov_b32 s54, 0')
            elif b>=100:
                A('v_mov_b32 v8, %d\nds_read_b32 v9, v8 offset:%d\ns_waitcnt lgkmcnt(0)\nv_readfirstlane_b32 s54, v9\ns_sub_u32 s54, s54, s%d'%(4*(b-100),L_ST,72+2*a))
            else: A('s_sub_u32 s54, s%d, s%d'%(72+2*b,72+2*a))
            A('s_min_u32 s54, s54, 20000')
            A('L_leak:')
            A('s_memrealtime s[68:69]\ns_waitcnt lgkmcnt(0)\ns_sub_u32 s55, s68, s%d\ns_cmp_lt_u32 s55, s54\ns_cbranch_scc1 L_leak'%(72+2*13))
        else:
            A('s_waitcnt lgkmcnt(0)\ns_mov_b32 s100, s92\ns_mov_b32 s92, 0')
            dump_stamps(15,8)
    A('L_end:')
    A('s_endpgm')
    A('.section .rodata,"a"\n.p2align 6\n.amdhsa_kernel %s'%K)
    A('  .amdhsa_next_free_vgpr 256\n  .amdhsa_next_free_sgpr 102\n  .amdhsa_accum_offset 256\n  .amdhsa_group_segment_fixed_size 0\n  .amdhsa_kernarg_size 96')
    A('  .amdhsa_user_sgpr_count 2\n  .amdhsa_user_sgpr_kernarg_segment_ptr 1\n  .amdhsa_system_sgpr_workgroup_id_x 1')
    A('  .amdhsa_float_denorm_mode_32 3\n  .amdhsa_float_denorm_mode_16_64 3')
    A('.end_amdhsa_kernel')
    return '\n'.join(L)+'\n'

if __name__=='__main__':
    cfg=Cfg()
    out=sys.argv[1]
    for a in sys.argv[2:]:
        k,v=a.split('=',1); setattr(cfg,k,eval(v))
    s=gen(cfg)
    hdr=''.join(l for l in open('cdna_kernels/%s.s.ref'%NAME).readlines()[:13])
    open(out,'w').write(hdr+s)
```

```python
import sys
NAME='sequential_preLN__gqa_block_cached__geglu_ffn__decode'
K=NAME+'_kernel'

class Cfg:
    diag=False
    leak=None
    nocomp=False
    noq=False
    T2=12
    nH=8; nA=8
    pW=('c',1,0); pR=('m',8,1); pF=('c',1,0); pG=('c',1,0)
    tdiag=False
    tsleep=0
    crot=0
    noclr=False
    wolate=False
    warm=True
    of=''
    gleak=None
    NS=22
    sflag=False
    svcfirst=True
    spin=1<<17
    T=6
    kf='nt'; vf='nt'; wf='nt'; ff=''
    pq=3
    pw0=7
    pw1=22
    noW=False

QP=0x0
CTR=0x230000
CLR=0x100000
WP=0x100000
OP=0x180000
OPS=640
HB=0x240000
AB=0x260000
STAMP=0x10000000
L_CNT=0
L_MLW=64
L_QL=256
L_XN=1280
XNS=1040
L_XO=9600
XOS=272
L_DP=11776
L_OW=19968
L_ST=28160
L_PR=28416
L_WB=29696
L_WA=L_WB+16384
LDS_BYTES=L_WA+65536

LOG2E=0x3fb8aa3b
SCALE=0x3db504f3

def gen(cfg):
    L=[]
    def A(s):
        L.extend(s.split('\n'))
    lab=[0]
    def newlab(p):
        lab[0]+=1
        return 'L_%s_%d'%(p,lab[0])
    X,KP,VP,WQ,WO,BX,WG,WU,WD,OUT,DBG,WS=['s[%d:%d]'%(16+2*i,17+2*i) for i in range(12)]
    def stamp(i):
        if cfg.diag: A('s_memrealtime s[%d:%d]'%(72+2*i,73+2*i))
    def tstamp(i):
        if cfg.tdiag: stamp(i)
    def pack_stamps(n,vt):
        A('s_waitcnt lgkmcnt(0)')
        A('v_mov_b32 v%d, 0'%vt)
        for i in range(n): A('v_writelane_b32 v%d, s%d, %d'%(vt,72+2*i,i))
    def dump_stamps(n,vt):
        if not cfg.diag: return
        A('s_mov_b64 exec, -1')
        pack_stamps(n,vt)
        A('v_lshlrev_b32 v%d, 2, v0'%(vt+1))
        A('ds_read_b32 v%d, v%d offset:%d'%(vt+2,vt+1,L_ST))
        A('s_lshl_b32 s66, s2, 9\ns_add_u32 s66, s66, %d'%(STAMP))
        A('v_add_u32 v%d, s66, v%d'%(vt+1,vt+1))
        A('s_mov_b64 exec, 0xffff')
        A('s_waitcnt lgkmcnt(0)')
        A('global_store_dword v%d, v%d, %s'%(vt+1,vt+2,WS))
        A('s_lshl_b32 s66, s53, 6\nv_add_u32 v%d, s66, v%d'%(vt+1,vt+1))
        A('global_store_dword v%d, v%d, %s offset:64'%(vt+1,vt,WS))

    A('; @launch grid=(256,1,1) block=(512,1,1) lds=%d'%LDS_BYTES)
    A('.amdgcn_target "amdgcn-amd-amdhsa--gfx950"\n.text\n.globl %s\n.p2align 8\n.type %s,@function\n%s:'%(K,K,K))
    A('s_cmp_ge_u32 s2, 256\ns_cbranch_scc1 L_end')
    A('s_load_dwordx16 s[16:31], s[0:1], 0')
    A('s_load_dwordx8 s[32:39], s[0:1], 64')
    if cfg.diag:
        for i in range(1,14): A('s_mov_b32 s%d, 0'%(72+2*i))
    stamp(0)
    A('v_lshrrev_b32 v1, 6, v0')
    A('v_lshlrev_b32 v3, 2, v0')
    A('v_and_b32 v0, 63, v0')
    A('v_readfirstlane_b32 s52, v1')
    A('s_and_b32 s48, s2, 7\ns_lshr_b32 s49, s2, 3\ns_lshl_b32 s50, s49, 1\ns_bfe_u32 s54, s2, 0x10001\ns_or_b32 s50, s50, s54')
    A('s_and_b32 s51, s2, 1\ns_bfe_u32 s54, s2, 0x10002\ns_lshl_b32 s54, s54, 1\ns_or_b32 s51, s51, s54')
    A('s_mov_b32 s59, 0x%x\ns_mov_b32 s60, 0xffff0000'%(LOG2E))
    A('v_lshlrev_b32 v1, 4, v0')
    A('s_cmp_ge_u32 s52, 4\ns_cbranch_scc1 L_service')

    TH=cfg.T
    NS=cfg.NS
    RB=64
    A('s_lshl_b32 s54, s50, 21')
    A('s_lshl_b32 s62, s51, 2\ns_add_u32 s62, s62, s52')
    A('v_lshrrev_b32 v2, 4, v0\nv_lshlrev_b32 v2, 6, v2\nv_and_b32 v4, 3, v0\nv_lshl_add_u32 v2, v4, 4, v2')
    A('v_bfe_u32 v5, v0, 2, 2\nv_lshl_add_u32 v2, v5, 8, v2')
    A('s_mov_b32 s42, 0x200000\ns_mov_b32 s43, 0x20000\ns_mov_b32 s46, 0x200000\ns_mov_b32 s47, 0x20000')
    A('v_mov_b32 v30, 0')
    A('s_waitcnt lgkmcnt(0)')
    A('s_add_u32 s40, s18, s54\ns_addc_u32 s41, s19, 0\ns_and_b32 s41, s41, 0xffff')
    A('s_add_u32 s44, s20, s54\ns_addc_u32 s45, s21, 0\ns_and_b32 s45, s45, 0xffff')
    st={'n':0}
    def load(slot,j,throttle=True,th=None):
        if j==0: A('s_lshl_b32 s65, s62, 12')
        if throttle: A('s_waitcnt vmcnt(%d)'%((th or TH)-1))
        r=RB+slot*32+j*4
        t=j//4
        A('buffer_load_dwordx4 v[%d:%d], %s, %s, s65 offen offset:%d %s'%(r,r+3,'v2' if t==0 else 'v1','s[40:43]' if t==0 else 's[44:47]',(j%4)*1024,cfg.kf if t==0 else cfg.vf))
    def prog(val):
        A('v_mov_b32 v30, %s\nds_write_b32 v3, v30 offset:%d'%(val,L_PR))
    def pro_issue(n0,n1):
        for n in range(n0,n1):
            load(n//8,n%8,n>=TH)
            if n%8==7:
                A('s_add_u32 s62, s62, 16')
                if n>=15: prog(n//8+1)
    if cfg.svcfirst: A('s_barrier')
    pro_issue(0,TH)
    A('ds_write_b32 v3, v30 offset:%d'%L_PR)
    A('s_mov_b32 s56, 0x05040100\ns_mov_b32 s57, 0x07060302\ns_mov_b32 s58, 0x%x'%SCALE)
    A('s_lshl_b32 s54, s50, 8\ns_add_u32 s54, s54, %d\ns_add_u32 s66, s38, s54\ns_addc_u32 s67, s39, 0'%CTR)
    A('s_lshl_b32 s55, s52, 11')
    A('v_lshlrev_b32 v4, 9, v4\nv_and_b32 v0, 0x30, v0\nv_add3_u32 v0, v4, v0, s55')
    A('v_mov_b32 v14, 0xff800000\nv_mov_b32 v28, 0x3f803f80\nv_mov_b32 v29, 0x3f803f80')
    for r in list(range(24,28))+list(range(32,64)): A('v_mov_b32 v%d, 0'%r)
    A('s_waitcnt lgkmcnt(0)')
    A('s_barrier')
    pro_issue(TH,48)
    stamp(1)
    A('s_barrier')
    A('ds_read_b128 v[4:7], v1 offset:%d'%L_QL)
    stamp(2)
    A('s_waitcnt lgkmcnt(0)')
    def kpart(slot,fill):
        B=RB+slot*32
        f=list(fill)
        def nxt():
            if f: f.pop(0)()
        D=[20,B,B+4,B+8]
        if cfg.nocomp:
            while f: nxt()
            return
        for i in range(4):
            A('v_mfma_f32_16x16x32_bf16 v[%d:%d], v[%d:%d], v[4:7], 0'%(D[i],D[i]+3,B+4*i,B+4*i+3))
        A('s_nop 7')
        for h in range(2):
            for step in range(3):
                for e in range(2):
                    be=2*e+h
                    S=18+e
                    A('v_add_f32_dpp v%d, v%d, v%d row_ror:%d row_mask:0xf bank_mask:0x%x'%(S,D[be]+((be+step+1)&3),(D[be]+be) if step==0 else S,12-4*step,1<<be))
                A('s_nop 0')
        nxt()
        A('s_nop 0')
        A('v_mov_b32_dpp v18, v19 quad_perm:[0,1,2,3] row_mask:0xf bank_mask:0xc')
        A('v_cvt_pk_bf16_f32 v18, 0, v18\nv_mul_f32 v18, s58, v18\nv_cvt_pk_bf16_f32 v18, 0, v18')
        A('v_max_f32 v15, v14, v18')
        A('s_nop 1\nv_max_f32_dpp v15, v15, v15 row_ror:4 row_mask:0xf bank_mask:0xf')
        A('s_nop 1\nv_max_f32_dpp v15, v15, v15 row_ror:8 row_mask:0xf bank_mask:0xf')
        A('v_mov_b32 v31, v15\ns_nop 1\nv_permlane16_swap_b32 v15, v31\nv_max_f32 v15, v15, v31')
        A('v_mov_b32 v31, v15\ns_nop 1\nv_permlane32_swap_b32 v15, v31\nv_max_f32 v15, v15, v31')
        nxt()
        A('v_sub_f32 v16, v14, v15\nv_sub_f32 v18, v18, v15\nv_cmp_neq_f32 vcc, v14, v15\nv_mul_f32 v16, s59, v16\nv_mul_f32 v18, s59, v18')
        A('v_exp_f32 v16, v16\nv_exp_f32 v18, v18\nv_mov_b32 v14, v15\nv_mul_f32 v17, s59, v15')
        A('v_mov_b32_dpp v19, v18 row_ror:12 row_mask:0xf bank_mask:0xf')
        A('v_cvt_pk_bf16_f32 v8, v18, v19')
        l=newlab('nr')
        A('s_cbranch_vccz %s'%l)
        for r in range(32,64,2):
            A('v_pk_mul_f32 v[%d:%d], v[%d:%d], v[16:17] op_sel_hi:[1,0]'%(r,r+1,r,r+1))
        A('v_mul_f32 v24, v24, v16')
        A('%s:'%l)
        A('s_nop 0')
        A('v_mov_b32_dpp v9, v8 row_ror:8 row_mask:0xf bank_mask:0xf')
        while f: nxt()
    def vpart(slot):
        B=RB+slot*32+16
        if cfg.nocomp: return
        def perms(j):
            Tt=10+2*(j&1)
            for ii in range(2):
                A('v_perm_b32 v%d, v%d, v%d, s%d'%(Tt+ii,B+4*(2*ii+1)+(j>>1),B+4*(2*ii)+(j>>1),56+(j&1)))
        perms(0)
        for j in range(8):
            if j<7: perms(j+1)
            else: A('v_mfma_f32_16x16x16_bf16 v[24:27], v[28:29], v[8:9], v[24:27]')
            Tt=10+2*(j&1)
            A('v_mfma_f32_16x16x16_bf16 v[%d:%d], v[%d:%d], v[8:9], v[%d:%d]'%(32+4*j,35+4*j,Tt,Tt+1,32+4*j,35+4*j))
    tr={'issued':48}
    slot_of={u:u for u in range(6)}
    slot_of.update({6:0,7:1,8:2,9:0})
    def tload():
        n=tr['issued']; load(slot_of[n//8],n%8); tr['issued']=n+1
        if n%8==7:
            A('s_add_u32 s62, s62, 16')
            if n//8<9: prog(n//8+1)
    def need(n):
        rem=tr['issued']-n
        assert rem>=0
        if rem<TH: A('s_waitcnt vmcnt(%d)'%rem)
    for u in range(9):
        need(8*u+4)
        if u==0: kpart(0,[])
        else: kpart(slot_of[u],[tload]*(3 if u<8 else 4))
        need(8*u+8)
        vpart(slot_of[u])
        if u<8 and u>0: tload()
    assert tr['issued']==80
    A('s_mov_b32 s64, 10')
    stamp(3)
    assert NS%2==0
    def body(c,th):
        for j in range(4): load(1-c,j,th=th)
        if th>8: A('s_waitcnt vmcnt(8)')
        kpart(c,[(lambda j=j: load(1-c,j,th=th)) for j in range(4,8)])
        if th>8: A('s_waitcnt vmcnt(8)')
        vpart(c)
    A('L_loop:')
    for c in range(2):
        prog('s64')
        A('s_add_u32 s64, s64, 1')
        body(c,TH)
        A('s_add_u32 s62, s62, 16')
    A('s_cmp_lt_u32 s64, %d\ns_cbranch_scc1 L_loop'%(NS-2))
    prog('s64')
    A('s_add_u32 s64, s64, 1')
    body(0,TH)
    A('s_add_u32 s62, s62, 16')
    prog('s64')
    A('v_mov_b32 v31, 0\nL_cw:\nds_read_b32 v15, v31 offset:%d\ns_waitcnt lgkmcnt(0)\nv_readfirstlane_b32 s54, v15\ns_cmp_eq_u32 s54, 0\ns_cbranch_scc1 L_cw'%(L_CNT+8))
    stamp(4)
    A('L_dyn:')
    for c in (1,0):
        ls=newlab('st'); lc=newlab('sc')
        if cfg.diag: A('s_add_u32 s64, s64, 1')
        A('s_cmp_ge_u32 s62, 512\ns_cbranch_scc1 %s'%ls)
        A('s_mov_b32 s63, 1\ns_atomic_add s63, s[66:67], 0x0 glc')
        A('s_branch %s'%lc)
        A('%s:'%ls)
        prog(64)
        A('%s:'%lc)
        body(c,cfg.T2 or TH)
        A('s_cmp_ge_u32 s62, 512\ns_cbranch_scc1 L_sdone')
        A('s_waitcnt lgkmcnt(0)')
        A('s_add_u32 s62, s63, %d'%(NS*16+1))
    A('s_branch L_dyn')
    A('L_sdone:')
    A('s_mov_b32 exec_lo, 0x000f000f\ns_mov_b32 exec_hi, 0x000f000f')
    stamp(5)
    A('s_lshl_b32 s55, s52, 2\nv_and_b32 v31, 0x30, v1\nv_lshl_add_u32 v31, v31, 1, s55')
    for j in range(8):
        A('ds_write_b128 v0, v[%d:%d] offset:%d'%(32+4*j,35+4*j,L_OW+64*j))
    A('ds_write2_b32 v31, v17, v24 offset0:%d offset1:%d'%(L_MLW//4,L_MLW//4+4))
    if cfg.diag:
        A('s_mov_b64 exec, -1')
        A('s_cmp_lg_u32 s52, 0\ns_cbranch_scc1 L_nost')
        pack_stamps(6,8)
        A('v_writelane_b32 v8, s64, 8')
        A('ds_write_b32 v3, v8 offset:%d'%L_ST)
        A('L_nost:')
    A('s_waitcnt lgkmcnt(0)')
    A('s_barrier')
    A('s_endpgm')

    A('L_service:')
    A('s_setprio 3')
    A('s_sub_u32 s53, s52, 4')
    A('s_lshl_b32 s66, s53, 12')
    A('s_lshr_b32 s68, s49, 3\ns_and_b32 s69, s49, 7')
    A('v_lshrrev_b32 v2, 5, v0\ns_lshl_b32 s54, s53, 1\nv_add_u32 v2, s54, v2')
    A('v_and_b32 v3, 31, v0\nv_lshlrev_b32 v3, 4, v3')
    A('v_lshl_add_u32 v4, v2, 10, v3')
    A('s_lshl_b32 s54, s68, 7\ns_lshl_b32 s55, s53, 5\ns_add_u32 s54, s54, s55')
    A('v_lshrrev_b32 v6, 3, v0\nv_add_u32 v6, s54, v6\nv_lshlrev_b32 v6, 13, v6')
    A('v_and_b32 v7, 7, v0\nv_lshl_add_u32 v6, v7, 4, v6')
    A('s_lshl_b32 s54, s48, 10\ns_lshl_b32 s55, s69, 7\ns_add_u32 s54, s54, s55\nv_add_u32 v6, s54, v6')
    A('s_lshl_b32 s54, s48, 2\ns_add_u32 s54, s54, s68\ns_lshl_b32 s54, s54, 11\ns_lshl_b32 s55, s69, 8\ns_add_u32 s54, s54, s55\ns_lshl_b32 s55, s53, 6\ns_add_u32 s54, s54, s55')
    A('v_lshlrev_b32 v14, 16, v7\nv_and_b32 v15, 0x30, v0\nv_add3_u32 v14, v14, v15, s54')
    A('v_mov_b32 v40, -1\nv_mov_b32 v41, -1\nv_mov_b32 v42, -1\nv_mov_b32 v43, -1')
    A('s_add_u32 m0, s66, %d'%L_WA)
    A('s_waitcnt lgkmcnt(0)')
    A('global_load_dwordx4 v[32:35], v4, %s'%X)
    A('global_load_dwordx4 v[36:39], v4, %s offset:512'%X)
    for i in range(4):
        if i: A('s_add_u32 m0, s66, %d\nv_add_u32 v6, 0x10000, v6'%(L_WA+i*1024))
        A('global_load_lds_dwordx4 v6, %s %s'%(WQ,cfg.wf))
    A('s_mov_b32 exec_lo, 0x00ff00ff\ns_mov_b32 exec_hi, 0x00ff00ff')
    A('global_store_dwordx4 v14, v[40:43], %s sc1'%WS)
    A('s_mov_b64 exec, -1')
    if cfg.svcfirst==1: A('s_barrier')
    A('s_lshl_b32 s54, s2, 12\ns_lshl_b32 s55, s53, 10\ns_add_u32 s54, s54, s55\ns_add_u32 s54, s54, %d'%CLR)
    A('v_add_u32 v6, s54, v1')
    if cfg.noclr: A('s_mov_b64 exec, 1')
    A('global_store_dwordx4 v6, v[40:43], %s sc1'%WS)
    if cfg.noclr: A('s_mov_b64 exec, -1')
    A('s_lshl_b32 s54, s2, 2\ns_add_u32 s54, s54, s53\ns_mul_i32 s54, s54, 640\ns_add_u32 s54, s54, %d'%(CLR+0x100000))
    A('v_add_u32 v6, s54, v1')
    A('s_mov_b32 exec_hi, 0xff')
    A('global_store_dwordx4 v6, v[40:43], %s sc1'%WS)
    A('s_mov_b64 exec, -1')
    if cfg.svcfirst==2: A('s_barrier')
    A('v_mov_b32 v11, 0\nv_mov_b32 v12, 1\nv_mov_b32 v44, 0\nv_mov_b32 v45, 0\nv_mov_b32 v46, 0\nv_mov_b32 v47, 0')
    A('ds_write_b128 v11, v[44:47] offset:%d'%L_CNT)
    A('v_mul_u32_u24 v5, %d, v2\nv_add_u32 v5, v5, v3'%XNS)
    A('v_lshrrev_b32 v8, 4, v0\nv_lshlrev_b32 v8, 10, v8\nv_bfe_u32 v9, v0, 2, 2\nv_lshl_add_u32 v8, v9, 7, v8\nv_and_b32 v9, 3, v0\nv_lshl_add_u32 v8, v9, 3, v8')
    A('s_lshl_b32 s54, s53, 5\nv_add_u32 v8, s54, v8')
    A('v_mul_u32_u24 v9, %d, v7\nv_add_u32 v9, v9, v15\ns_lshl_b32 s54, s68, 8\nv_add_u32 v10, s54, v9'%XNS)
    A('s_lshl_b32 s54, s53, 8\nv_mov_b32 v31, s54')
    A('s_waitcnt lgkmcnt(0)')
    A('s_barrier')

    def dppadd(r,ctl):
        A('s_nop 1\nv_add_f32_dpp v%d, v%d, v%d %s row_mask:0xf bank_mask:0xf'%(r,r,r,ctl))
    def swapadd(r,t,w):
        A('v_mov_b32 v%d, v%d\ns_nop 1\nv_permlane%d_swap_b32 v%d, v%d\nv_add_f32 v%d, v%d, v%d'%(t,r,w,r,t,r,r,t))
    def rbf(r):
        A('v_cvt_pk_bf16_f32 v%d, 0, v%d'%(r,r))
    def layernorm(mode):
        if mode=='x':
            for i in range(8):
                A('v_lshlrev_b32 v%d, 16, v%d\nv_and_b32 v%d, s60, v%d'%(48+2*i,32+i,49+2*i,32+i))
        Q=lambda i:'v[%d:%d]'%(48+2*i,49+2*i)
        P=Q if mode=='x' else (lambda i:'v[%d:%d]'%(216+2*i,217+2*i))
        A('v_pk_add_f32 v[64:65], %s, %s\nv_pk_mul_f32 v[66:67], %s, %s'%(P(0),P(1),P(0),P(0)))
        A('v_pk_add_f32 v[68:69], %s, %s\nv_pk_mul_f32 v[70:71], %s, %s'%(P(2),P(3),P(1),P(1)))
        for i in range(2,8,2):
            if i>2: A('v_pk_add_f32 v[64:65], v[64:65], %s'%P(i))
            A('v_pk_fma_f32 v[66:67], %s, %s, v[66:67]'%(P(i),P(i)))
            if i>2: A('v_pk_add_f32 v[68:69], v[68:69], %s'%P(i+1))
            A('v_pk_fma_f32 v[70:71], %s, %s, v[70:71]'%(P(i+1),P(i+1)))
        A('v_pk_add_f32 v[64:65], v[64:65], v[68:69]\nv_pk_add_f32 v[66:67], v[66:67], v[70:71]')
        A('v_add_f32 v64, v64, v65\nv_add_f32 v66, v66, v67')
        ctl=['row_ror:1','row_ror:2','row_ror:4','row_ror:8'] if mode=='x' else ['quad_perm:[1,0,3,2]','quad_perm:[2,3,0,1]','row_ror:8']
        for c in ctl:
            A('s_nop 0')
            for r in (64,66): A('v_add_f32_dpp v%d, v%d, v%d %s row_mask:0xf bank_mask:0xf'%(r,r,r,c))
        for w in ((16,) if mode=='x' else (16,32)):
            A('v_mov_b32 v65, v64\nv_mov_b32 v67, v66\ns_nop 0')
            A('v_permlane%d_swap_b32 v64, v65\nv_permlane%d_swap_b32 v66, v67'%(w,w))
            A('v_add_f32 v64, v64, v65\nv_add_f32 v66, v66, v67')
        A('v_mul_f32 v64, 0xbb000000, v64\nv_mul_f32 v66, 0x3b000000, v66')
        A('v_cvt_pk_bf16_f32 v68, 0, v64')
        chain=['v_fma_f32 v66, -v64, v64, v66','v_max_f32 v66, 0, v66','v_cvt_pk_bf16_f32 v66, 0, v66','v_add_f32 v66, 0x3727c5ac, v66',
               'v_cvt_pk_bf16_f32 v66, 0, v66','v_sqrt_f32 v66, v66','v_cvt_pk_bf16_f32 v66, 0, v66','v_rcp_f32 v66, v66']
        for i in range(8):
            A(chain[i])
            A('v_pk_add_f32 %s, %s, v[68:69] op_sel_hi:[1,0]'%(Q(i),P(i)))
        for i in range(16): A('v_cvt_pk_bf16_f32 v%d, 0, v%d'%(48+i,48+i))
        nw=2 if mode=='h' else 4
        for i in range(8):
            A('v_pk_mul_f32 %s, %s, v[66:67] op_sel_hi:[1,0]'%(Q(i),Q(i)))
        for i in range(8):
            A('v_cvt_pk_bf16_f32 v%d, v%d, v%d'%(32+i,48+2*i,49+2*i))
            if mode=='h' and i%2==1: A('ds_write_b64 v5, v[%d:%d] offset:%d'%(31+i,32+i,L_XN+256*(i//2)))
            if mode=='x' and i%4==3: A('ds_write_b128 v5, v[%d:%d] offset:%d'%(29+i,32+i,L_XN+512*(i//4)))
    def lds_sync(cnt,sleep=0):
        l=newlab('ls')
        A('s_waitcnt lgkmcnt(0)')
        A('s_mov_b64 exec, 1\nds_add_u32 v11, v12 offset:%d\ns_mov_b64 exec, -1'%(L_CNT+4*cnt))
        lds_wait(11,L_CNT+4*cnt,4,sleep)
    def lds_wait(va,off,val,sleep):
        l=newlab('lw'); d=newlab('ld')
        A('%s:'%l)
        A('ds_read_b32 v13, v%d offset:%d\ns_waitcnt lgkmcnt(0)\nv_readfirstlane_b32 s54, v13\ns_cmp_ge_u32 s54, %s'%(va,off,val))
        if sleep: A('s_cbranch_scc1 %s\ns_sleep %d\ns_branch %s\n%s:'%(d,sleep,l,d))
        else: A('s_cbranch_scc0 %s'%l)
    def progress(p): lds_wait(31,L_PR,p,6)
    def poll(loads,regs,sleep=0,guard=False):
        l=newlab('pl'); d=newlab('pd')
        if guard: sleep=cfg.tsleep
        A('s_mov_b32 s61, %d'%cfg.spin)
        A('%s:'%l)
        if guard:
            gl=newlab('pg'); A('s_cbranch_execz %s'%gl)
        for x in loads: A(x)
        if guard: A('%s:'%gl)
        import re as _re
        first=True; pend=[]
        for i,x in enumerate(loads):
            m=_re.search(r'v\[(\d+):(\d+)\]',x)
            pend+=list(range(int(m.group(1)),int(m.group(2))+1))
            last=(i==len(loads)-1)
            if len(pend)<4 and not last: continue
            A('s_waitcnt vmcnt(%d)'%(len(loads)-1-i))
            while pend:
                if first:
                    if len(pend)>=3: A('v_max3_u32 v13, v%d, v%d, v%d'%tuple(pend[:3])); pend=pend[3:]
                    else: A('v_max_u32 v13, v%d, v%d'%tuple(pend[:2])); pend=pend[2:]
                    first=False
                elif len(pend)>=2: A('v_max3_u32 v13, v13, v%d, v%d'%tuple(pend[:2])); pend=pend[2:]
                elif last: A('v_max_u32 v13, v13, v%d'%pend[0]); pend=[]
                else: break
        A('v_cmp_eq_u32 vcc, -1, v13')
        A('s_cbranch_vccz %s'%d)
        if sleep: A('s_sleep %d'%sleep)
        A('s_sub_u32 s61, s61, 1\ns_cmp_lg_u32 s61, 0\ns_cbranch_scc1 %s'%l)
        A('%s:'%d)
    def apoll(loads,par):
        import re as _re
        mode,D,sleep=par
        l=newlab('al'); d=newlab('ad'); gl=newlab('ag')
        rg=[]
        for x in loads:
            m=_re.search(r'v\[(\d+):(\d+)\]',x); rg.append(list(range(int(m.group(1)),int(m.group(2))+1)))
        def chain(t,r):
            r=list(r)
            if len(r)==2: A('v_max_u32 v%d, v%d, v%d'%(t,r[0],r[1])); return
            A('v_max3_u32 v%d, v%d, v%d, v%d'%(t,r[0],r[1],r[2])); r=r[3:]
            while r:
                if len(r)==1: A('v_max_u32 v%d, v%d, v%d'%(t,t,r[0])); r=[]
                else: A('v_max3_u32 v%d, v%d, v%d, v%d'%(t,t,r[0],r[1])); r=r[2:]
        n=len(loads)
        A('s_mov_b32 s61, %d'%cfg.spin)
        if mode in 'cm':
            A('%s:'%l)
            A('s_cbranch_execz %s'%gl)
            for x in loads: A(x)
            A('%s:'%gl)
            if sleep: A('s_sleep %d'%sleep)
            A('s_waitcnt vmcnt(%d)'%min(63,n*(D-1)))
            chain(13,sum(rg,[]))
            A('v_cmp_eq_u32 vcc, -1, v13')
            A('s_cbranch_vccz %s'%d)
            if mode=='m': A('s_mov_b64 exec, vcc')
            A('s_sub_u32 s61, s61, 1\ns_cmp_lg_u32 s61, 0\ns_cbranch_scc1 %s'%l)
            A('%s:'%d)
            if mode=='m': A('s_mov_b64 exec, s[4:5]')
        else:
            mk=['s[6:7]','s[8:9]','s[10:11]','s[40:41]','s[42:43]','s[44:45]','s[46:47]','s[62:63]'][:n]
            for m_ in mk: A('s_mov_b64 %s, s[4:5]'%m_)
            A('%s:'%l)
            for x,m_ in zip(loads,mk):
                sk=newlab('as')
                A('s_mov_b64 exec, %s\ns_cbranch_execz %s'%(m_,sk)); A(x); A('%s:'%sk)
            A('s_mov_b64 exec, s[4:5]')
            if sleep: A('s_sleep %d'%sleep)
            A('s_waitcnt vmcnt(%d)'%min(63,n*(D-1)))
            for i in range(n): chain(246+i,rg[i])
            chain(13,[246+i for i in range(n)])
            A('v_cmp_eq_u32 vcc, -1, v13')
            A('s_cbranch_vccz %s'%d)
            for i in range(n): A('v_cmp_eq_u32 %s, -1, v%d'%(mk[i],246+i))
            A('s_sub_u32 s61, s61, 1\ns_cmp_lg_u32 s61, 0\ns_cbranch_scc1 %s'%l)
            A('%s:'%d)
    def flagpoll(voff,execmask):
        l=newlab('fl'); d=newlab('fd')
        A('s_mov_b32 s61, %d\ns_mov_b32 s55, 0x01010101'%cfg.spin)
        A('s_mov_b64 exec, %s'%execmask)
        A('%s:'%l)
        A('global_load_dword v13, v%d, %s sc1\ns_waitcnt vmcnt(0)'%(voff,DBG))
        A('v_cmp_ne_u32 vcc, s55, v13\ns_cbranch_vccz %s'%d)
        A('s_sleep 16')
        A('s_sub_u32 s61, s61, 1\ns_cmp_lg_u32 s61, 0\ns_cbranch_scc1 %s'%l)
        A('%s:'%d)
        A('s_mov_b64 exec, -1')
    def tr128(dst,base):
        for s_ in range(4):
            A('ds_read_b64_tr_b16 v[%d:%d], v8 offset:%d'%(dst+4*s_,dst+4*s_+1,base+4096*s_))
            A('ds_read_b64_tr_b16 v[%d:%d], v8 offset:%d'%(dst+4*s_+2,dst+4*s_+3,base+4096*s_+512))

    A('s_waitcnt vmcnt(7)')
    stamp(1)
    layernorm('x')
    A('s_waitcnt vmcnt(0)')
    lds_sync(0)
    stamp(2)
    tr128(80,L_WA)
    for s_ in range(4):
        A('ds_read_b128 v[%d:%d], v10 offset:%d'%(32+4*s_,35+4*s_,L_XN+64*s_))
    A('s_and_b32 s71, s50, 7\ns_lshl_b32 s71, s71, 5\nv_lshlrev_b32 v7, 2, v0\nv_add_u32 v7, s71, v7')
    A('s_lshl_b32 s54, s48, 5\ns_add_u32 s54, s54, s49\nv_mov_b32 v6, s54')
    A('s_cmp_lg_u32 s53, 3\ns_cbranch_scc1 L_noflag')
    A('s_mov_b64 exec, 1\nglobal_store_byte v6, v12, %s sc1\ns_mov_b64 exec, -1'%DBG)
    A('L_noflag:')
    A('s_waitcnt lgkmcnt(0)')
    for s_ in range(4):
        A('v_mfma_f32_16x16x32_bf16 v[48:51], v[%d:%d], v[%d:%d], %s'%(80+4*s_,83+4*s_,32+4*s_,35+4*s_,'0' if s_==0 else 'v[48:51]'))
    A('s_nop 7')
    for r in range(4): A('v_min_u32 v%d, -2, v%d'%(48+r,48+r))
    A('s_mov_b32 exec_lo, 0x00ff00ff\ns_mov_b32 exec_hi, 0x00ff00ff')
    A('global_store_dwordx4 v14, v[48:51], %s sc1'%WS)
    A('s_mov_b64 exec, -1')
    stamp(3)
    A('s_cmp_lg_u32 s53, %d\ns_cbranch_scc1 L_qdone'%(9 if cfg.noq else 0))
    A('v_and_b32 v6, 3, v0\nv_lshlrev_b32 v6, 9, v6\nv_lshrrev_b32 v14, 2, v0\nv_lshl_add_u32 v6, v14, 5, v6')
    A('s_lshl_b32 s54, s50, 13\ns_add_u32 s54, s54, %d\nv_add_u32 v6, s54, v6'%(QP+3072))
    progress(cfg.pq)
    if cfg.sflag:
        l=newlab('sf'); d=newlab('sd')
        A('s_mov_b32 s61, %d'%cfg.spin)
        A('%s:'%l)
        A('s_load_dwordx8 s[4:11], %s, s71 glc\ns_waitcnt lgkmcnt(0)'%DBG)
        A('s_and_b64 s[4:5], s[4:5], s[6:7]\ns_and_b64 s[8:9], s[8:9], s[10:11]\ns_and_b64 s[4:5], s[4:5], s[8:9]\ns_and_b32 s4, s4, s5')
        A('s_cmp_eq_u32 s4, 0x01010101\ns_cbranch_scc1 %s'%d)
        A('s_sleep 16\ns_sub_u32 s61, s61, 1\ns_cmp_lg_u32 s61, 0\ns_cbranch_scc1 %s'%l)
        A('%s:'%d)
    else: flagpoll(7,'0xff')
    stamp(4)
    poll(['global_load_dwordx4 v[%d:%d], v6, %s offset:%d sc1'%(32+8*kq+4*h,35+8*kq+4*h,WS,2048*kq+16*h-3072) for kq in range(4) for h in range(2)],list(range(32,64)),sleep=8)
    for p in range(4):
        A('v_pk_add_f32 v[%d:%d], v[%d:%d], v[%d:%d]'%(32+2*p,33+2*p,32+2*p,33+2*p,40+2*p,41+2*p))
        A('v_pk_add_f32 v[%d:%d], v[%d:%d], v[%d:%d]'%(48+2*p,49+2*p,48+2*p,49+2*p,56+2*p,57+2*p))
    for p in range(4):
        A('v_pk_add_f32 v[%d:%d], v[%d:%d], v[%d:%d]'%(32+2*p,33+2*p,32+2*p,33+2*p,48+2*p,49+2*p))
    for p in range(4):
        A('v_cvt_pk_bf16_f32 v%d, v%d, v%d'%(32+p,32+2*p,33+2*p))
    A('ds_write_b128 v1, v[32:35] offset:%d'%L_QL)
    stamp(5)
    A('s_waitcnt lgkmcnt(0)')
    A('L_qdone:')
    A('s_setprio 0')
    A('s_barrier')

    A('s_mov_b32 s70, 0\ns_and_b32 s54, s49, 0x13\ns_cmp_eq_u32 s54, s51\ns_cselect_b32 s70, 2, s70')
    A('s_sub_u32 s54, s49, 16\ns_cmp_lt_u32 s54, 14\ns_cselect_b32 s70, 1, s70')
    A('s_xor_b32 s55, s2, s49\ns_and_b32 s55, s55, 1\ns_cselect_b32 s70, 3, s70')
    A('s_lshr_b32 s54, s54, 1\ns_mul_i32 s14, s48, 7\ns_add_u32 s14, s14, s54')
    A('s_lshr_b32 s15, s49, 2\ns_add_u32 s54, s48, %d\ns_and_b32 s54, s54, 7\ns_lshl_b32 s54, s54, 2\ns_add_u32 s15, s15, s54'%cfg.crot)
    A('s_lshr_b32 s13, s2, 1')
    A('s_lshl_b32 s54, s48, 2\ns_add_u32 s67, s54, s68')
    A('v_and_b32 v6, 3, v0\nv_lshlrev_b32 v6, 2, v6\nv_lshrrev_b32 v7, 4, v0\nv_add_u32 v6, v6, v7')
    A('v_bfe_u32 v7, v0, 2, 1')
    A('v_lshrrev_b32 v24, 3, v0\nv_lshlrev_b32 v24, 14, v24\nv_and_b32 v13, 0x70, v1\nv_add_u32 v24, v24, v13\ns_mov_b32 s55, s13\ns_lshl_b32 s54, s55, 7\ns_add_u32 s54, s54, %d\nv_add_u32 v24, s54, v24'%HB)
    A('v_lshlrev_b32 v6, 1, v6\nv_lshl_add_u32 v6, v7, 10, v6\ns_lshr_b32 s54, s55, 5\ns_lshl_b32 s54, s54, 11\ns_and_b32 s55, s55, 31\ns_lshl_b32 s55, s55, 5\ns_add_u32 s54, s54, s55\nv_add_u32 v6, s54, v6')
    A('global_load_ushort v16, v6, %s'%X)
    A('v_lshlrev_b32 v7, 2, v0')
    A('s_cmp_lg_u32 s53, 0\ns_cbranch_scc1 L_nofc')
    flagpoll(7,'-1')
    A('s_mov_b64 exec, 1\nds_add_u32 v11, v12 offset:%d\ns_mov_b64 exec, -1'%(L_CNT+8))
    A('L_nofc:')
    pslot=[0]
    def paced(line):
        k=pslot[0]
        f=(lambda k: cfg.pw0+((k-4)*(cfg.pw1-cfg.pw0))//16) if cfg.wolate else (lambda k: cfg.pw0+(k*(cfg.pw1-cfg.pw0))//20)
        if k==0 or k==4 or f(k)!=f(k-1): progress(f(k))
        assert f(k)<cfg.NS
        pslot[0]+=1
        A(line)
    if not cfg.noW:
        A('s_lshl_b32 s54, s67, 7\ns_lshl_b32 s55, s53, 1\ns_add_u32 s54, s54, s55\ns_lshl_b32 s54, s54, 10\ns_lshl_b32 s55, s69, 7\ns_add_u32 s54, s54, s55')
        A('v_lshrrev_b32 v6, 5, v0\nv_lshlrev_b32 v6, 15, v6\nv_bfe_u32 v7, v0, 3, 2\nv_lshl_add_u32 v6, v7, 13, v6\nv_and_b32 v7, 7, v0\nv_lshl_add_u32 v6, v7, 4, v6\nv_add_u32 v6, s54, v6')
        if cfg.wolate: A('v_mov_b32 v14, v6'); pslot[0]=4
        for i in range(0 if cfg.wolate else 4):
            A('v_add_u32 v7, %d, v6'%((64*(i&1)+(i>>1))*1024))
            paced('s_add_u32 m0, s66, %d\ns_nop 0\nglobal_load_lds_dwordx4 v7, %s %s'%(L_WB+i*1024,WO,cfg.wf))
        l2=newlab('w2'); le=newlab('we')
        A('s_cmp_eq_u32 s70, 2\ns_cbranch_scc1 %s'%l2)
        A('s_cmp_lg_u32 s70, 1\ns_cbranch_scc1 %s'%le)
        p0=pslot[0]
        A('s_lshl_b32 s54, s14, 6')
        A('s_lshl_b32 s55, s53, 7\nv_lshrrev_b32 v6, 2, v0\nv_add_u32 v6, s55, v6\nv_mul_u32_u24 v6, 3584, v6\nv_and_b32 v7, 3, v0\nv_lshl_add_u32 v6, v7, 4, v6\nv_add_u32 v6, s54, v6')
        A('s_lshl_b32 s71, s53, 13')
        for i in range(8):
            if i: A('v_add_u32 v6, %d, v6'%(16*3584))
            paced('s_add_u32 m0, s71, %d\ns_nop 0\nglobal_load_lds_dwordx4 v6, %s %s'%(L_WA+i*1024,WG,cfg.ff))
            paced('s_add_u32 m0, s71, %d\ns_nop 0\nglobal_load_lds_dwordx4 v6, %s %s'%(L_WA+32768+i*1024,WU,cfg.ff))
        A('s_branch %s'%le)
        A('%s:'%l2)
        pslot[0]=p0
        A('s_mul_i32 s54, s53, 448\nv_lshrrev_b32 v6, 1, v0\nv_add_u32 v6, s54, v6\nv_lshlrev_b32 v6, 10, v6')
        A('v_and_b32 v7, 1, v0\nv_lshl_add_u32 v6, v7, 4, v6\ns_lshl_b32 s54, s15, 5\nv_add_u32 v6, s54, v6')
        A('s_mul_i32 s71, s53, 14336')
        for i in range(14):
            if i: A('v_add_u32 v6, 0x8000, v6')
            paced('s_add_u32 m0, s71, %d\ns_nop 0\nglobal_load_lds_dwordx4 v6, %s %s'%(L_WA+i*1024,WD,cfg.ff))
        A('%s:'%le)
    A('s_waitcnt vmcnt(0)')
    A('v_lshlrev_b32 v16, 16, v16')
    lds_sync(1,sleep=4)
    stamp(6)
    if not cfg.wolate: tr128(80,L_WB)
    l2=newlab('r2'); le=newlab('re')
    A('v_mov_b32 v26, 0\nv_mov_b32 v27, 0\nv_mov_b32 v28, 0\nv_mov_b32 v29, 0')
    A('s_cmp_eq_u32 s70, 2\ns_cbranch_scc1 %s'%l2)
    A('s_cmp_lg_u32 s70, 1\ns_cbranch_scc1 %s'%le)
    A('v_lshrrev_b32 v6, 4, v0\nv_lshlrev_b32 v6, 9, v6\nv_bfe_u32 v7, v0, 2, 2\nv_lshl_add_u32 v6, v7, 6, v6')
    A('v_and_b32 v7, 1, v0\nv_lshl_add_u32 v6, v7, 3, v6\nv_bfe_u32 v7, v0, 1, 1\nv_lshl_add_u32 v6, v7, 15, v6\ns_lshl_b32 s54, s53, 4\ns_add_u32 s54, s54, %d\nv_add_u32 v6, s54, v6'%L_WA)
    for s_ in range(16):
        A('ds_read_b64_tr_b16 v[%d:%d], v6 offset:%d'%(96+4*s_,97+4*s_,2048*s_))
        A('ds_read_b64_tr_b16 v[%d:%d], v6 offset:%d'%(98+4*s_,99+4*s_,2048*s_+256))
        if s_%4==3: A('s_waitcnt lgkmcnt(0)')
    A('s_lshl_b32 s54, s14, 2\ns_add_u32 s54, s54, s53\ns_lshl_b32 s54, s54, 7\ns_add_u32 s54, s54, %d'%AB)
    A('v_and_b32 v27, 0x70, v1\nv_lshrrev_b32 v7, 3, v0\nv_lshl_add_u32 v27, v7, 15, v27\nv_add_u32 v27, s54, v27')
    A('s_and_b32 s55, s48, %d\ns_lshl_b32 s55, s55, 14\ns_add_u32 s54, s66, s55\ns_add_u32 s54, s54, %d\nv_add_u32 v4, s54, v1'%(cfg.nH-1,HB))
    A('v_bfe_u32 v5, v0, 2, 1\ns_lshl_b32 s54, s53, 1\nv_add_u32 v5, s54, v5\nv_mul_u32_u24 v5, %d, v5\nv_lshrrev_b32 v7, 3, v0\nv_lshl_add_u32 v5, v7, 5, v5\nv_and_b32 v7, 3, v0\nv_lshl_add_u32 v5, v7, 3, v5'%XNS)
    A('s_branch %s'%le)
    A('%s:'%l2)
    A('v_lshrrev_b32 v6, 4, v0\nv_lshlrev_b32 v6, 9, v6\nv_bfe_u32 v7, v0, 1, 1\nv_lshl_add_u32 v6, v7, 8, v6\nv_bfe_u32 v7, v0, 2, 2\nv_lshl_add_u32 v6, v7, 5, v6')
    A('v_and_b32 v7, 1, v0\nv_lshl_add_u32 v6, v7, 3, v6\ns_mul_i32 s55, s53, 14336\ns_add_u32 s55, s55, %d\nv_add_u32 v6, s55, v6'%L_WA)
    for t in range(7):
        for tt in range(2):
            r=96+8*t+4*tt
            A('ds_read_b64_tr_b16 v[%d:%d], v6 offset:%d'%(r,r+1,2048*t+16*tt))
            A('ds_read_b64_tr_b16 v[%d:%d], v6 offset:%d'%(r+2,r+3,2048*t+16*tt+128))
        A('s_waitcnt lgkmcnt(0)')
    A('v_bfe_u32 v26, v0, 2, 1\nv_lshlrev_b32 v26, 10, v26\nv_bfe_u32 v7, v0, 1, 1\nv_lshl_add_u32 v26, v7, 8, v26\nv_lshrrev_b32 v7, 3, v0\nv_lshl_add_u32 v26, v7, 4, v26\nv_and_b32 v7, 1, v0\nv_lshl_add_u32 v26, v7, 3, v26')
    A('s_and_b32 s55, s48, %d\ns_lshl_b32 s55, s55, 15\ns_mul_i32 s54, s53, 7168\ns_add_u32 s54, s54, s55\ns_add_u32 s54, s54, %d\nv_add_u32 v27, s54, v1'%(cfg.nA-1,AB+3072))
    A('s_mov_b32 s54, s15\ns_lshl_b32 s55, s54, 5')
    A('v_lshrrev_b32 v28, 3, v0\nv_lshlrev_b32 v28, 10, v28\nv_and_b32 v7, 7, v0\nv_lshl_add_u32 v28, v7, 2, v28\nv_add_u32 v28, s55, v28')
    A('s_lshl_b32 s54, s54, 7\ns_and_b32 s55, s48, %d\ns_lshl_b32 s55, s55, 14\ns_add_u32 s54, s54, s55\ns_add_u32 s54, s54, %d'%(cfg.nH-1,HB))
    A('v_lshrrev_b32 v29, 4, v0\nv_lshlrev_b32 v29, 12, v29\nv_and_b32 v7, 15, v0\nv_lshl_add_u32 v29, v7, 3, v29\nv_add_u32 v29, s54, v29')
    A('s_lshl_b32 s54, s53, 11\nv_add_u32 v10, s54, v1')
    A('%s:'%le)
    A('s_lshl_b32 s54, s53, 9\nv_add_u32 v17, s54, v3')
    A('s_and_b32 s54, s50, 7\ns_lshl_b32 s54, s54, 2\ns_add_u32 s54, s54, s53\ns_lshl_b32 s54, s54, 3\ns_lshr_b32 s55, s50, 3\ns_add_u32 s54, s54, s55\ns_lshl_b32 s54, s54, 2\ns_add_u32 s54, s54, s51')
    A('s_mul_i32 s54, s54, %d\ns_add_u32 s54, s54, %d\nv_add_u32 v18, s54, v1'%(OPS,OP))
    A('s_mul_i32 s54, s67, %d\ns_add_u32 s54, s54, %d\nv_mul_u32_u24 v25, %d, v2\nv_add_u32 v25, s54, v25\nv_add_u32 v19, v25, v3'%(32*OPS,OP,4*OPS))
    A('s_lshl_b32 s54, s53, 5\nv_mov_b32 v30, s54')
    A('v_mul_u32_u24 v20, %d, v2\nv_lshrrev_b32 v7, 1, v3\nv_add_u32 v20, v20, v7'%XOS)
    A('v_and_b32 v21, 7, v0\nv_mul_u32_u24 v21, %d, v21\nv_add_u32 v21, v21, v15'%XOS)
    A('s_lshl_b32 s54, s69, 2\ns_add_u32 s54, s54, s53\ns_lshl_b32 s54, s54, 5\ns_add_u32 s54, s54, s67\ns_lshl_b32 s54, s54, 7\ns_add_u32 s54, s54, %d'%WP)
    A('v_bfe_u32 v22, v0, 1, 2\nv_lshlrev_b32 v22, 17, v22\nv_and_b32 v7, 1, v0\nv_lshl_add_u32 v22, v7, 6, v22\nv_add3_u32 v22, v22, v15, s54')
    A('s_lshl_b32 s54, s13, 12\ns_add_u32 s54, s54, %d\nv_add_u32 v23, s54, v1'%WP)
    def guarded(lines):
        l=newlab('g')
        A('s_cbranch_execz %s'%l); A(lines); A('%s:'%l)
    def drychk():
        A('s_cmp_eq_u32 s4, 0\ns_cbranch_scc1 L_again')
    for r in range(192,246): A('v_mov_b32 v%d, -1'%r)
    A('s_waitcnt lgkmcnt(0)')
    A('s_mov_b64 vcc, 0\ns_mov_b64 s[4:5], %d\ns_mov_b64 exec, s[4:5]'%(0 if cfg.warm else -1))
    A('L_tail:')
    stamp(7)
    guarded('s_barrier')
    def wsum(b0,half,s0=None):
        d='v[%d:%d]'%(b0+2*half,b0+2*half+1)
        s0=s0 or b0
        for w in range(4):
            src='v[%d:%d]'%(s0+4*w+2*half,s0+4*w+2*half+1)
            f='v[%d:%d]'%(72+2*(w//2),73+2*(w//2))
            if w==0: A('v_pk_mul_f32 %s, %s, %s op_sel_hi:[1,0]'%(d,src,f))
            elif w%2==0: A('v_pk_fma_f32 %s, %s, %s, %s op_sel_hi:[1,0,1]'%(d,src,f,d))
            else: A('v_pk_fma_f32 %s, %s, %s, %s op_sel:[0,1,0] op_sel_hi:[1,1,1]'%(d,src,f,d))
    if cfg.gleak is not None:
        k,lo,hi,msk=cfg.gleak
        A('s_cbranch_execz L_nogl\ns_cmp_lg_u32 s53, 0\ns_cbranch_scc1 L_nogl')
        if k>=100: A('v_mov_b32 v32, %d\nds_read_b32 v33, v32 offset:%d\ns_waitcnt lgkmcnt(0)'%(4*(k-100),L_ST))
        else: A('v_mov_b32 v33, s%d'%(72+2*k))
        A('v_not_b32 v33, v33\nv_mov_b32 v34, s72\nv_mov_b32 v32, 0x238000')
        A('s_mov_b64 exec, 1')
        A('global_atomic_umin v32, v34, %s'%WS)
        A('s_and_b32 s54, s2, %d\ns_sub_u32 s54, s54, %d\ns_cmp_ge_u32 s54, %d\ns_cbranch_scc1 L_nogl2'%(msk,lo,hi-lo))
        A('global_atomic_umin v32, v33, %s offset:256'%WS)
        A('L_nogl2:\ns_mov_b64 exec, -1\ns_waitcnt vmcnt(0)')
        A('L_nogl:')
    A('ds_read_b128 v[64:67], v30 offset:%d\nds_read_b128 v[68:71], v30 offset:%d'%(L_MLW,L_MLW+16))
    for w in range(4):
        A('ds_read_b128 v[%d:%d], v17 offset:%d'%(32+4*w,35+4*w,L_OW+2048*w))
    stamp(8)
    A('s_and_b32 exec_hi, s4, 1')
    A('s_waitcnt lgkmcnt(%d)'%(0 if cfg.diag else 4))
    A('v_max3_f32 v76, v64, v65, v66\nv_max_f32 v76, v76, v67')
    A('v_pk_add_f32 v[72:73], v[64:65], v[76:77] op_sel_hi:[1,0] neg_lo:[0,1] neg_hi:[0,1]')
    A('v_pk_add_f32 v[74:75], v[66:67], v[76:77] op_sel_hi:[1,0] neg_lo:[0,1] neg_hi:[0,1]')
    for i in range(4): A('v_exp_f32 v%d, v%d'%(72+i,72+i))
    A('v_pk_mul_f32 v[68:69], v[68:69], v[72:73]\nv_pk_fma_f32 v[68:69], v[70:71], v[74:75], v[68:69]')
    A('s_waitcnt lgkmcnt(0)')
    A('v_add_f32 v77, v68, v69')
    wsum(32,0); wsum(32,1)
    A('v_mov_b32_dpp v32, v76 quad_perm:[0,1,2,3] row_mask:0x4 bank_mask:0xf')
    A('v_mov_b32_dpp v33, v77 quad_perm:[0,1,2,3] row_mask:0x4 bank_mask:0xf')
    guarded('global_store_dwordx4 v18, v[32:35], %s sc1'%WS)
    tstamp(1)
    A('s_mov_b64 exec, s[4:5]')
    apoll(['global_load_dwordx2 v[%d:%d], v25, %s offset:%d sc1'%(208+2*s_,209+2*s_,WS,OPS*s_+512) for s_ in range(4)]+
         ['global_load_dwordx4 v[%d:%d], v19, %s offset:%d sc1'%(192+4*s_,195+4*s_,WS,OPS*s_) for s_ in range(4)],cfg.pW)
    stamp(9)
    A('v_max3_f32 v76, v208, v210, v212\nv_max_f32 v76, v76, v214')
    for i in range(4): A('v_sub_f32 v%d, v%d, v76'%(72+i,208+2*i))
    for i in range(4): A('v_exp_f32 v%d, v%d'%(72+i,72+i))
    A('v_mul_f32 v78, v72, v209')
    for i in range(1,4): A('v_fmac_f32 v78, v%d, v%d'%(72+i,209+2*i))
    A('v_rcp_f32 v78, v78')
    wsum(48,0,192); wsum(48,1,192)
    A('v_pk_mul_f32 v[48:49], v[48:49], v[78:79] op_sel_hi:[1,0]\nv_pk_mul_f32 v[50:51], v[50:51], v[78:79] op_sel_hi:[1,0]')
    A('v_cvt_pk_bf16_f32 v48, v48, v49\nv_cvt_pk_bf16_f32 v49, v50, v51')
    A('ds_write_b64 v20, v[48:49] offset:%d'%L_XO)
    A('s_waitcnt lgkmcnt(0)'); guarded('s_barrier')
    if cfg.tdiag: tstamp(2); A('s_waitcnt lgkmcnt(0)')
    for s_ in range(4):
        A('ds_read_b128 v[%d:%d], v21 offset:%d'%(32+4*s_,35+4*s_,L_XO+64*s_))
        if cfg.wolate:
            A('ds_read_b64_tr_b16 v[%d:%d], v8 offset:%d'%(80+4*s_,81+4*s_,L_WB+4096*s_))
            A('ds_read_b64_tr_b16 v[%d:%d], v8 offset:%d'%(82+4*s_,83+4*s_,L_WB+4096*s_+512))
    for s_ in range(4):
        A('s_waitcnt lgkmcnt(%d)'%((3-s_)*(3 if cfg.wolate else 1)))
        A('v_mfma_f32_16x16x32_bf16 v[48:51], v[%d:%d], v[%d:%d], %s'%(80+4*s_,83+4*s_,32+4*s_,35+4*s_,'0' if s_==0 else 'v[48:51]'))
    A('s_and_b32 exec_lo, s4, 0x00ff00ff\ns_and_b32 exec_hi, s4, 0x00ff00ff')
    A('s_nop 4')
    guarded('global_store_dwordx4 v22, v[48:51], %s sc1'%WS)
    tstamp(3)
    A('s_mov_b64 exec, s[4:5]')
    A('s_cmp_lg_u32 s70, 3\ns_cbranch_scc1 L_rdone')
    A('s_cmp_lg_u32 s53, 0\ns_cbranch_scc1 L_fin')
    apoll(['global_load_dwordx4 v[%d:%d], v23, %s offset:%d sc1'%(216+4*t,219+4*t,WS,1024*t) for t in range(4)],cfg.pR)
    stamp(10)
    A('v_pk_add_f32 v[32:33], v[216:217], v[220:221]\nv_pk_add_f32 v[34:35], v[218:219], v[222:223]')
    A('v_pk_add_f32 v[40:41], v[224:225], v[228:229]\nv_pk_add_f32 v[42:43], v[226:227], v[230:231]')
    A('v_pk_add_f32 v[32:33], v[32:33], v[40:41]\nv_pk_add_f32 v[34:35], v[34:35], v[42:43]')
    A('s_nop 1\nv_permlane32_swap_b32 v32, v34\nv_permlane32_swap_b32 v33, v35')
    A('v_add_f32 v32, v32, v34\nv_add_f32 v33, v33, v35')
    A('s_nop 1\nv_permlane16_swap_b32 v32, v33\nv_add_f32 v32, v32, v33')
    dppadd(32,'row_ror:8')
    rbf(32)
    A('v_add_f32 v32, v32, v16')
    rbf(32)
    A('v_mov_b32 v33, v32\ns_nop 1\nv_permlane16_swap_b32 v32, v33\nv_mov_b32 v34, v32\nv_mov_b32 v35, v33\ns_nop 0')
    A('v_permlane32_swap_b32 v32, v34\nv_permlane32_swap_b32 v33, v35')
    if cfg.nH<8: A('s_and_b32 exec_lo, s4, 0x%x\ns_mov_b32 exec_hi, 0'%((1<<(8*cfg.nH))-1))
    guarded('global_store_dwordx4 v24, v[32:35], %s sc1'%WS)
    tstamp(4)
    A('s_branch L_fin')
    A('L_rdone:')
    A('s_cmp_eq_u32 s70, 2\ns_cbranch_scc1 L_ffn2')
    A('s_cmp_eq_u32 s70, 0\ns_cbranch_scc1 L_fin')
    apoll(['global_load_dwordx4 v[%d:%d], v4, %s offset:%d sc1'%(216+4*t,219+4*t,WS,1024*t) for t in range(4)],cfg.pF)
    stamp(11)
    layernorm('h')
    tstamp(5)
    A('s_waitcnt lgkmcnt(0)'); guarded('s_barrier')
    if cfg.tdiag: tstamp(6); A('s_waitcnt lgkmcnt(0)')
    for s_ in range(8):
        A('ds_read_b128 v[%d:%d], v9 offset:%d'%(32+4*s_,35+4*s_,L_XN+64*s_))
    for s_ in range(16):
        A('s_waitcnt lgkmcnt(%d)'%min(7,15-s_))
        b=32+4*(s_%8) if s_<8 else 160+4*(s_-8)
        A('v_mfma_f32_16x16x32_bf16 v[64:67], v[%d:%d], v[%d:%d], %s'%(96+4*s_,99+4*s_,b,b+3,'0' if s_==0 else 'v[64:67]'))
        if s_<8: A('ds_read_b128 v[%d:%d], v9 offset:%d'%(160+4*s_,163+4*s_,L_XN+64*(s_+8)))
    A('s_nop 7')
    A('v_permlane32_swap_b32 v64, v65\nv_permlane32_swap_b32 v66, v67')
    A('s_nop 1')
    A('v_mov_b32_dpp v64, v66 quad_perm:[0,1,2,3] row_mask:0xf bank_mask:0xc')
    A('v_mov_b32_dpp v65, v67 quad_perm:[0,1,2,3] row_mask:0xf bank_mask:0xc')
    A('v_cvt_pk_bf16_f32 v32, 0, v64\nv_cvt_pk_bf16_f32 v36, 0, v65')
    A('v_mul_f32 v33, v32, v32\nv_mul_f32 v33, 0x3d372713, v33\nv_fma_f32 v33, v33, v32, v32')
    A('v_mul_f32 v33, 0xc0135761, v33\nv_exp_f32 v33, v33\ns_nop 0\nv_add_f32 v33, 1.0, v33\nv_rcp_f32 v33, v33\ns_nop 0\nv_mul_f32 v33, v33, v32')
    rbf(33)
    A('v_mul_f32 v33, v33, v36\nv_mov_b32 v34, v33\ns_nop 1\nv_permlane32_swap_b32 v33, v34')
    A('v_cvt_pk_bf16_f32 v33, v33, v34\nv_min_u32 v36, -2, v33')
    A('v_mov_b32 v32, v36\nv_mov_b32 v33, v36\ns_nop 0')
    A('v_mov_b32_dpp v32, v36 row_ror:8 row_mask:0xf bank_mask:0xc\nv_mov_b32_dpp v33, v36 row_ror:8 row_mask:0xf bank_mask:0x3')
    A('v_mov_b32 v34, v32\nv_mov_b32 v35, v33\ns_nop 0')
    A('v_permlane16_swap_b32 v32, v34\nv_permlane16_swap_b32 v33, v35')
    if cfg.nA<8: A('s_and_b32 exec_lo, s4, 0x%x\ns_mov_b32 exec_hi, 0'%((1<<(8*cfg.nA))-1))
    guarded('global_store_dwordx4 v27, v[32:35], %s sc1'%WS)
    stamp(12)
    A('L_fin:')
    drychk()
    if cfg.diag:
        dump_stamps(14,8)
    A('s_endpgm')
    A('L_ffn2:')
    poll(guard=True,loads=['global_load_dwordx2 v[60:61], v29, %s sc1'%WS],regs=[60,61])
    apoll(['global_load_dwordx4 v[%d:%d], v27, %s offset:%d sc1'%(216+4*t,219+4*t,WS,1024*t-3072) for t in range(7)],cfg.pG)
    stamp(10)
    for t in range(7):
        for tt in range(2):
            acc='v[%d:%d]'%(64+4*tt,67+4*tt)
            r=96+8*t+4*tt
            A('v_mfma_f32_16x16x32_bf16 %s, v[%d:%d], v[%d:%d], %s'%(acc,r,r+3,216+4*t,219+4*t,'0' if t==0 else acc))
    A('s_nop 6')
    A('ds_write_b128 v10, v[64:67] offset:%d'%L_DP)
    A('ds_write_b128 v10, v[68:71] offset:%d'%(L_DP+1024))
    A('s_waitcnt lgkmcnt(0)'); guarded('s_barrier')
    tstamp(6)
    A('s_cmp_lg_u32 s53, 0\ns_cbranch_scc1 L_fin')
    for w in range(4):
        A('ds_read_b64 v[%d:%d], v26 offset:%d'%(32+4*w,33+4*w,L_DP+2048*w))
        A('ds_read_b64 v[%d:%d], v26 offset:%d'%(34+4*w,35+4*w,L_DP+2048*w+640))
    A('s_waitcnt lgkmcnt(0)')
    for w in range(4): A('v_pk_add_f32 v[%d:%d], v[%d:%d], v[%d:%d]'%(32+4*w,33+4*w,32+4*w,33+4*w,34+4*w,35+4*w))
    A('v_pk_add_f32 v[32:33], v[32:33], v[36:37]\nv_pk_add_f32 v[40:41], v[40:41], v[44:45]\nv_pk_add_f32 v[32:33], v[32:33], v[40:41]')
    A('v_cvt_pk_bf16_f32 v32, 0, v32\nv_cvt_pk_bf16_f32 v33, 0, v33')
    A('v_pk_add_f32 v[32:33], v[32:33], v[60:61]')
    A('v_cvt_pk_bf16_f32 v32, v32, v33')
    guarded('global_store_dword v28, v32, %s %s'%(OUT,cfg.of))
    drychk()
    if cfg.diag:
        stamp(13)
        if cfg.leak is not None:
            a,b=cfg.leak
            A('s_waitcnt lgkmcnt(0)')
            if cfg.gleak is not None:
                A('v_mov_b32 v8, 0x238000\nglobal_load_dword v9, v8, %s sc1\nglobal_load_dword v10, v8, %s offset:256 sc1\ns_waitcnt vmcnt(0)'%(WS,WS))
                if b==13: A('v_mov_b32 v10, s%d'%(72+2*13))
                else: A('v_not_b32 v10, v10')
                A('v_sub_u32 v9, v10, v9\ns_nop 1\nv_readfirstlane_b32 s54, v9')
                if b==0: A('s_mov_b32 s54, 0')
            elif b>=100:
                A('v_mov_b32 v8, %d\nds_read_b32 v9, v8 offset:%d\ns_waitcnt lgkmcnt(0)\nv_readfirstlane_b32 s54, v9\ns_sub_u32 s54, s54, s%d'%(4*(b-100),L_ST,72+2*a))
            else: A('s_sub_u32 s54, s%d, s%d'%(72+2*b,72+2*a))
            A('s_min_u32 s54, s54, 20000')
            A('L_leak:')
            A('s_memrealtime s[68:69]\ns_waitcnt lgkmcnt(0)\ns_sub_u32 s55, s68, s%d\ns_cmp_lt_u32 s55, s54\ns_cbranch_scc1 L_leak'%(72+2*13))
        else:
            A('s_waitcnt lgkmcnt(0)\ns_mov_b32 s100, s92\ns_mov_b32 s92, 0')
            dump_stamps(15,8)
    A('L_end:')
    A('s_endpgm')
    A('L_again:')
    if cfg.diag:
        A('s_waitcnt lgkmcnt(0)')
        for i in range(1 if cfg.tdiag else 8,14): A('s_mov_b32 s%d, 0'%(72+2*i))
    A('s_mov_b64 s[4:5], -1\ns_mov_b64 exec, -1')
    if cfg.wolate:
        lds_wait(31,L_PR,cfg.wolate,2)
        for i in range(4):
            A('s_add_u32 m0, s66, %d\nv_add_u32 v7, %d, v14\nglobal_load_lds_dwordx4 v7, %s %s'%(L_WB+i*1024,(64*(i&1)+(i>>1))*1024,WO,cfg.wf))
    A('s_branch L_tail')
    A('.section .rodata,"a"\n.p2align 6\n.amdhsa_kernel %s'%K)
    A('  .amdhsa_next_free_vgpr 256\n  .amdhsa_next_free_sgpr 102\n  .amdhsa_accum_offset 256\n  .amdhsa_group_segment_fixed_size 0\n  .amdhsa_kernarg_size 96')
    A('  .amdhsa_user_sgpr_count 2\n  .amdhsa_user_sgpr_kernarg_segment_ptr 1\n  .amdhsa_system_sgpr_workgroup_id_x 1')
    A('  .amdhsa_float_denorm_mode_32 3\n  .amdhsa_float_denorm_mode_16_64 3')
    A('.end_amdhsa_kernel')
    return '\n'.join(L)+'\n'

if __name__=='__main__':
    cfg=Cfg()
    out=sys.argv[1]
    for a in sys.argv[2:]:
        k,v=a.split('=',1); setattr(cfg,k,eval(v))
    s=gen(cfg)
    hdr=''.join(l for l in open('cdna_kernels/%s.s.ref'%NAME).readlines()[:13])
    open(out,'w').write(hdr+s)
```

```python
import sys
NAME='sequential_preLN__gqa_block_cached__geglu_ffn__decode'
K=NAME+'_kernel'

class Cfg:
    diag=False
    leak=None
    nocomp=False
    noq=False
    T2=12
    bare=0
    notail=False
    knat=False
    cdbg=False
    ctouch=None
    rot=4
    cs=9
    nowq=False
    noqst=False
    nH=8; nA=8
    pW=('c',1,0); pR=('m',8,1); pF=('c',1,0); pG=('c',1,0)
    tdiag=False
    tsleep=0
    crot=0
    noclr=False
    wolate=False
    warm=True
    of=''
    gleak=None
    NS=24
    sflag=False
    svcfirst=True
    spin=1<<17
    T=5
    kf='nt'; vf='nt'; wf='nt'; ff=''
    pq=3
    pw0=7
    pw1=22
    noW=False

QP=0x0
CTR=0x230000
FLG=0x80000
CLR=0x100000
WP=0x100000
OP=0x180000
OPS=640
HB=0x240000
AB=0x260000
STAMP=0x10000000
L_CNT=0
L_MLW=64
L_QL=256
L_XN=1280
XNS=1040
L_XO=9600
XOS=272
L_DP=11776
L_OW=19968
L_ST=28160
L_PR=28416
L_WB=29696
L_WA=L_WB+16384
LDS_BYTES=L_WA+65536

LOG2E=0x3fb8aa3b
SCALE=0x3db504f3

def gen(cfg):
    L=[]
    def A(s):
        L.extend(s.split('\n'))
    lab=[0]
    def newlab(p):
        lab[0]+=1
        return 'L_%s_%d'%(p,lab[0])
    X,KP,VP,WQ,WO,BX,WG,WU,WD,OUT,DBG,WS=['s[%d:%d]'%(16+2*i,17+2*i) for i in range(12)]
    def stamp(i):
        if cfg.diag: A('s_memrealtime s[%d:%d]'%(72+2*i,73+2*i))
    def tstamp(i):
        if cfg.tdiag: stamp(i)
    def pack_stamps(n,vt):
        A('s_waitcnt lgkmcnt(0)')
        A('v_mov_b32 v%d, 0'%vt)
        for i in range(n): A('v_writelane_b32 v%d, s%d, %d'%(vt,72+2*i,i))
    def dump_stamps(n,vt):
        if not cfg.diag: return
        A('s_mov_b64 exec, -1')
        pack_stamps(n,vt)
        A('v_lshlrev_b32 v%d, 2, v0'%(vt+1))
        A('ds_read_b32 v%d, v%d offset:%d'%(vt+2,vt+1,L_ST))
        A('s_lshl_b32 s66, s2, 9\ns_add_u32 s66, s66, %d'%(STAMP))
        A('v_add_u32 v%d, s66, v%d'%(vt+1,vt+1))
        A('s_mov_b64 exec, 0xffff')
        A('s_waitcnt lgkmcnt(0)')
        A('global_store_dword v%d, v%d, %s'%(vt+1,vt+2,WS))
        A('s_lshl_b32 s66, s53, 6\nv_add_u32 v%d, s66, v%d'%(vt+1,vt+1))
        A('global_store_dword v%d, v%d, %s offset:64'%(vt+1,vt,WS))

    A('; @launch grid=(256,1,1) block=(512,1,1) lds=%d'%LDS_BYTES)
    A('.amdgcn_target "amdgcn-amd-amdhsa--gfx950"\n.text\n.globl %s\n.p2align 8\n.type %s,@function\n%s:'%(K,K,K))
    A('s_cmp_ge_u32 s2, 256\ns_cbranch_scc1 L_end')
    A('s_load_dwordx16 s[16:31], s[0:1], 0')
    A('s_load_dwordx8 s[32:39], s[0:1], 64')
    if cfg.diag:
        for i in range(1,14): A('s_mov_b32 s%d, 0'%(72+2*i))
    stamp(0)
    A('v_lshrrev_b32 v1, 6, v0')
    A('v_lshlrev_b32 v3, 2, v0')
    A('v_and_b32 v0, 63, v0')
    A('v_readfirstlane_b32 s52, v1')
    A('s_and_b32 s48, s2, 7\ns_lshr_b32 s49, s2, 3\ns_lshl_b32 s50, s49, 1\ns_bfe_u32 s54, s2, 0x10001\ns_or_b32 s50, s50, s54')
    A('s_and_b32 s51, s2, 1\ns_bfe_u32 s54, s2, 0x10002\ns_lshl_b32 s54, s54, 1\ns_or_b32 s51, s51, s54')
    A('s_mov_b32 s59, 0x%x\ns_mov_b32 s60, 0xffff0000'%(LOG2E))
    A('v_lshlrev_b32 v1, 4, v0')
    A('s_cmp_ge_u32 s52, 4\ns_cbranch_scc1 L_service')

    import math
    TH=math.ceil(cfg.T)
    NS=cfg.NS
    RB=64
    A('s_lshl_b32 s54, s50, 21')
    A('s_lshl_b32 s62, s51, 2\ns_add_u32 s62, s62, s52')
    for i in range(4): A('s_add_u32 s%d, s62, %d\ns_and_b32 s%d, s%d, 15\ns_lshl_b32 s%d, s%d, 12'%(8+i,cfg.rot*i,8+i,8+i,8+i,8+i))
    A('v_lshrrev_b32 v2, 4, v0\nv_lshlrev_b32 v2, 6, v2\nv_and_b32 v4, 3, v0\nv_lshl_add_u32 v2, v4, 4, v2')
    A('v_bfe_u32 v5, v0, 2, 2\nv_lshl_add_u32 v2, v5, 8, v2')
    if cfg.knat: A('v_mov_b32 v2, v1')
    A('s_mov_b32 s42, 0x200000\ns_mov_b32 s43, 0x20000\ns_mov_b32 s46, 0x200000\ns_mov_b32 s47, 0x20000')
    A('v_mov_b32 v30, 0')
    A('s_waitcnt lgkmcnt(0)')
    A('s_add_u32 s40, s18, s54\ns_addc_u32 s41, s19, 0\ns_and_b32 s41, s41, 0xffff')
    A('s_add_u32 s44, s20, s54\ns_addc_u32 s45, s21, 0\ns_and_b32 s45, s45, 0xffff')
    st={'n':0}
    def adv():
        if cfg.rot: A('s_add_u32 s68, s62, %d\ns_and_b32 s68, s68, 15\ns_andn2_b32 s62, s62, 15\ns_add_u32 s62, s62, 16\ns_or_b32 s62, s62, s68'%cfg.rot)
        else: A('s_add_u32 s62, s62, 16')
    def load(slot,j,throttle=True,th=None):
        if j==0: A('s_lshl_b32 s65, s62, 12')
        if throttle:
            t_=(th or cfg.T); lo=int(t_); fr=t_-lo
            w=lo+(1 if (int((j+1)*fr+1e-9)>int(j*fr+1e-9)) else 0)
            A('s_waitcnt vmcnt(%d)'%(w-1))
        r=RB+slot*32+j*4
        t=j//4
        A('buffer_load_dwordx4 v[%d:%d], %s, %s, s65 offen offset:%d %s'%(r,r+3,'v2' if t==0 else 'v1','s[40:43]' if t==0 else 's[44:47]',(j%4)*1024,cfg.kf if t==0 else cfg.vf))
    def prog(val):
        A('v_mov_b32 v30, %s\nds_write_b32 v3, v30 offset:%d'%(val,L_PR))
    NK=NS//2
    assert NS%2==0 and NK>=10 and NK<=15
    slot_of={u:u for u in range(6)}
    slot_of.update({6:0,7:1,8:2})
    for u in range(9,NS+1): slot_of[u]=(u-9)&1
    tr={'issued':0}
    def sload():
        n=tr['issued']; G=n//8; j=n%8
        tr['issued']=n+1
        if G==NS:
            load(slot_of[G],j,th=cfg.T); return
        t=G//NK; k=2*(G%NK)+j//4
        if j%4==0: A('s_add_u32 s65, s%d, %d'%(8+k%4,k*65536))
        if n>=TH: A('s_waitcnt vmcnt(%d)'%(TH-1))
        r=RB+slot_of[G]*32+j*4
        A('buffer_load_dwordx4 v[%d:%d], %s, %s, s65 offen offset:%d %s'%(r,r+3,'v2' if t==0 else 'v1','s[40:43]' if t==0 else 's[44:47]',(j%4)*1024,cfg.kf if t==0 else cfg.vf))
        if j==7 and n>=15: prog(G+1)
    def pro_issue(n0,n1):
        assert tr['issued']==n0
        for n in range(n0,n1): sload()
    if cfg.svcfirst: A('s_barrier')
    pro_issue(0,TH)
    A('ds_write_b32 v3, v30 offset:%d'%L_PR)
    A('s_mov_b32 s56, 0x05040100\ns_mov_b32 s57, 0x07060302\ns_mov_b32 s58, 0x%x'%SCALE)
    A('s_lshl_b32 s54, s50, %d\ns_add_u32 s54, s54, %d\ns_add_u32 s66, s38, s54\ns_addc_u32 s67, s39, 0'%(cfg.cs,CTR))
    if cfg.cdbg: A('s_lshl_b32 s54, s50, 9\ns_add_u32 s54, s54, 4096\ns_add_u32 s66, s36, s54\ns_addc_u32 s67, s37, 0')
    A('s_lshl_b32 s55, s52, 11')
    A('v_lshlrev_b32 v4, 9, v4\nv_and_b32 v0, 0x30, v0\nv_add3_u32 v0, v4, v0, s55')
    A('v_mov_b32 v14, 0xff800000')
    A('s_waitcnt lgkmcnt(0)')
    A('s_barrier')
    pro_issue(TH,48)
    stamp(1)
    A('s_barrier')
    A('ds_read_b128 v[4:7], v1 offset:%d'%L_QL)
    stamp(2)
    A('s_waitcnt lgkmcnt(0)')
    def kpart(slot,fill):
        B=RB+slot*32
        f=list(fill)
        def nxt():
            if f: f.pop(0)()
        D=[20,B,B+4,B+8]
        if cfg.nocomp:
            while f: nxt()
            return
        for i in range(4):
            A('v_mfma_f32_16x16x32_bf16 v[%d:%d], v[%d:%d], v[4:7], 0'%(D[i],D[i]+3,B+4*i,B+4*i+3))
        A('s_nop 7')
        for h in range(2):
            for step in range(3):
                for e in range(2):
                    be=2*e+h
                    S=18+e
                    A('v_add_f32_dpp v%d, v%d, v%d row_ror:%d row_mask:0xf bank_mask:0x%x'%(S,D[be]+((be+step+1)&3),(D[be]+be) if step==0 else S,12-4*step,1<<be))
                A('s_nop 0')
        nxt()
        A('s_nop 0')
        A('v_mov_b32_dpp v18, v19 quad_perm:[0,1,2,3] row_mask:0xf bank_mask:0xc')
        A('v_cvt_pk_bf16_f32 v18, 0, v18\nv_mul_f32 v18, s58, v18\nv_cvt_pk_bf16_f32 v18, 0, v18')
        A('v_max_f32 v15, v14, v18')
        A('s_nop 1\nv_max_f32_dpp v15, v15, v15 row_ror:4 row_mask:0xf bank_mask:0xf')
        A('s_nop 1\nv_max_f32_dpp v15, v15, v15 row_ror:8 row_mask:0xf bank_mask:0xf')
        A('v_mov_b32 v31, v15\ns_nop 1\nv_permlane16_swap_b32 v15, v31\nv_max_f32 v15, v15, v31')
        A('v_mov_b32 v31, v15\ns_nop 1\nv_permlane32_swap_b32 v15, v31\nv_max_f32 v15, v15, v31')
        nxt()
        A('v_sub_f32 v16, v14, v15\nv_sub_f32 v18, v18, v15\nv_cmp_neq_f32 vcc, v14, v15\nv_mul_f32 v16, s59, v16\nv_mul_f32 v18, s59, v18')
        A('v_exp_f32 v16, v16\nv_exp_f32 v18, v18\nv_mov_b32 v14, v15\nv_mul_f32 v17, s59, v15')
        A('v_mov_b32_dpp v19, v18 row_ror:12 row_mask:0xf bank_mask:0xf')
        A('v_cvt_pk_bf16_f32 v8, v18, v19')
        l=newlab('nr')
        A('s_cbranch_vccz %s'%l)
        for r in range(32,64,2):
            A('v_pk_mul_f32 v[%d:%d], v[%d:%d], v[16:17] op_sel_hi:[1,0]'%(r,r+1,r,r+1))
        A('v_mul_f32 v24, v24, v16')
        A('%s:'%l)
        A('s_nop 0')
        A('v_mov_b32_dpp v9, v8 row_ror:8 row_mask:0xf bank_mask:0xf')
        while f: nxt()
    def vpart(slot):
        B=RB+slot*32+16
        if cfg.nocomp: return
        def perms(j):
            Tt=10+2*(j&1)
            for ii in range(2):
                A('v_perm_b32 v%d, v%d, v%d, s%d'%(Tt+ii,B+4*(2*ii+1)+(j>>1),B+4*(2*ii)+(j>>1),56+(j&1)))
        perms(0)
        for j in range(8):
            if j<7: perms(j+1)
            else: A('v_mfma_f32_16x16x16_bf16 v[24:27], v[28:29], v[8:9], v[24:27]')
            Tt=10+2*(j&1)
            A('v_mfma_f32_16x16x16_bf16 v[%d:%d], v[%d:%d], v[8:9], v[%d:%d]'%(32+4*j,35+4*j,Tt,Tt+1,32+4*j,35+4*j))
    SC=[8,9,10,11,12,13,20,21,22,23,25,26,27,28,29][:NK]
    RV=RB+5*32; TV=RV+4
    def need(n):
        rem=tr['issued']-n
        assert rem>=0
        if rem<TH: A('s_waitcnt vmcnt(%d)'%rem)
    def spread(chunks,nl):
        m=len(chunks)
        for i,c in enumerate(chunks):
            if not cfg.nocomp: A(c)
            for _ in range((nl*(i+1))//m-(nl*i)//m): sload()
    def kgroup(G):
        B=RB+slot_of[G]*32
        ch=['\n'.join('v_mfma_f32_16x16x32_bf16 v[%d:%d], v[%d:%d], v[4:7], 0'%(32+4*i,35+4*i,B+4*i,B+4*i+3) for i in range(8))+'\ns_nop 1']
        for be in range(4):
            c=[]
            for step in range(3):
                for e in range(2):
                    D=32+4*(2*be+e); S=18+e
                    c.append('v_add_f32_dpp v%d, v%d, v%d row_ror:%d row_mask:0xf bank_mask:0x%x'%(S,D+((be+step+1)&3),(D+be) if step==0 else S,12-4*step,1<<be))
                c.append('s_nop 0')
            ch.append('\n'.join(c))
        ch[-1]+='\nv_cvt_pk_bf16_f32 v15, 0, v18\nv_cvt_pk_bf16_f32 v16, 0, v19\nv_mul_f32 v15, s58, v15\nv_mul_f32 v16, s58, v16'
        ch[-1]+='\nv_cvt_pk_bf16_f32 v%d, v15, v16\nv_cvt_pk_bf16_f32 v15, 0, v15\nv_cvt_pk_bf16_f32 v16, 0, v16\nv_max3_f32 v14, v14, v15, v16'%SC[G]
        return ch
    def wred(op,r):
        return ('s_nop 1\n%s_dpp v%d, v%d, v%d row_ror:4 row_mask:0xf bank_mask:0xf\ns_nop 1\n%s_dpp v%d, v%d, v%d row_ror:8 row_mask:0xf bank_mask:0xf\n'%(op,r,r,r,op,r,r,r)+
                'v_mov_b32 v31, v%d\ns_nop 1\nv_permlane16_swap_b32 v%d, v31\n%s v%d, v%d, v31\n'%(r,r,op,r,r)+
                'v_mov_b32 v31, v%d\ns_nop 1\nv_permlane32_swap_b32 v%d, v31\n%s v%d, v%d, v31'%(r,r,op,r,r))
    def softmax():
        ch=[wred('v_max_f32',14)+'\nv_mul_f32 v17, s59, v14\nv_mov_b32 v24, 0']
        for g in range(NK):
            ch.append('v_lshlrev_b32 v18, 16, v%d\nv_and_b32 v19, s60, v%d\nv_sub_f32 v18, v18, v14\nv_sub_f32 v19, v19, v14\nv_mul_f32 v18, s59, v18\nv_mul_f32 v19, s59, v19\n'%(SC[g],SC[g])+
                      'v_exp_f32 v18, v18\nv_exp_f32 v19, v19\ns_nop 0\nv_cvt_pk_bf16_f32 v%d, v18, v19\nv_add_f32 v24, v24, v18\nv_add_f32 v24, v24, v19'%SC[g])
        ch.append(wred('v_add_f32',24))
        return ch
    def vgroup(G):
        B=RB+slot_of[G]*32; P=SC[G-NK]
        def perms(j):
            Tt=TV+4*(j&1)
            return '\n'.join('v_perm_b32 v%d, v%d, v%d, s%d'%(Tt+ii,B+4*(2*ii+1)+(j>>1),B+4*(2*ii)+(j>>1),56+(j&1)) for ii in range(4))
        c0='v_mov_b32 v%d, v%d\n'%(RV,P)+'\n'.join('v_mov_b32_dpp v%d, v%d row_ror:%d row_mask:0xf bank_mask:0xf'%(RV+r,P,16-4*r) for r in range(1,4))+'\n'+perms(0)
        ch=[c0]
        for j in range(8):
            Tt=TV+4*(j&1); acc='v[%d:%d]'%(32+4*j,35+4*j)
            ch.append((perms(j+1) if j<7 else 's_nop 1')+'\nv_mfma_f32_16x16x32_bf16 %s, v[%d:%d], v[%d:%d], %s'%(acc,Tt,Tt+3,RV,RV+3,'0' if G==NK else acc))
        return ch
    for G in range(9):
        if G==8: sload()
        need(8*G+8)
        spread(kgroup(G),0 if G==0 else (4 if G<8 else 3))
    assert tr['issued']==80
    stamp(3)
    for G in range(9,NS):
        if G==NS-2:
            A('v_mov_b32 v31, 0\nL_cw:\nds_read_b32 v15, v31 offset:%d\ns_waitcnt lgkmcnt(0)\nv_readfirstlane_b32 s54, v15\ns_cmp_eq_u32 s54, 0\ns_cbranch_scc1 L_cw'%(L_CNT+8))
            stamp(4)
            A('s_mov_b32 s63, 1\ns_atomic_add s63, s[66:67], 0x0 glc')
        if G==NS-1:
            A('s_waitcnt lgkmcnt(0)\ns_add_u32 s62, s63, %d'%(NS*16+1))
            A('s_cmp_ge_u32 s62, 512\ns_cbranch_scc1 L_nrq\ns_mov_b32 s63, 1\ns_atomic_add s63, s[66:67], 0x0 glc\nL_nrq:')
        lead=min(TH,8)
        if G==NK: spread(softmax(),lead)
        else:
            for _ in range(lead): sload()
        need(8*G+8)
        ch=kgroup(G) if G<NK else vgroup(G)
        spread(ch[:-1],8-lead); spread(ch[-1:],0)
    A('s_cmp_ge_u32 s62, 512\ns_cbranch_scc1 L_sdone')
    A('v_mov_b32 v28, 0x3f803f80\nv_mov_b32 v29, 0x3f803f80\nv_mov_b32 v25, 0\nv_mov_b32 v26, 0\nv_mov_b32 v27, 0')
    A('s_waitcnt lgkmcnt(0)\ns_add_u32 s62, s63, %d'%(NS*16+1))
    A('s_mov_b32 s64, %d'%(NS+1))
    def body(c,th):
        for j in range(4): load(1-c,j,th=th)
        if th>8: A('s_waitcnt vmcnt(8)')
        kpart(c,[(lambda j=j: load(1-c,j,th=th)) for j in range(4,8)])
        if th>8: A('s_waitcnt vmcnt(8)')
        vpart(c)
    A('L_dyn:')
    for c in (slot_of[NS],1-slot_of[NS]):
        ls=newlab('st'); lc=newlab('sc')
        if cfg.diag: A('s_add_u32 s64, s64, 1')
        A('s_cmp_ge_u32 s62, 512\ns_cbranch_scc1 %s'%ls)
        A('s_mov_b32 s63, 1\ns_atomic_add s63, s[66:67], 0x0 glc')
        A('s_branch %s'%lc)
        A('%s:'%ls)
        prog(64)
        A('%s:'%lc)
        body(c,cfg.T2 or cfg.T)
        A('s_cmp_ge_u32 s62, 512\ns_cbranch_scc1 L_sdone')
        A('s_waitcnt lgkmcnt(0)')
        A('s_add_u32 s62, s63, %d'%(NS*16+1))
    A('s_branch L_dyn')
    A('L_sdone:')
    A('s_mov_b32 exec_lo, 0x000f000f\ns_mov_b32 exec_hi, 0x000f000f')
    stamp(5)
    A('s_lshl_b32 s55, s52, 2\nv_and_b32 v31, 0x30, v1\nv_lshl_add_u32 v31, v31, 1, s55')
    for j in range(8):
        A('ds_write_b128 v0, v[%d:%d] offset:%d'%(32+4*j,35+4*j,L_OW+64*j))
    A('ds_write2_b32 v31, v17, v24 offset0:%d offset1:%d'%(L_MLW//4,L_MLW//4+4))
    if cfg.diag:
        A('s_mov_b64 exec, -1')
        A('s_cmp_lg_u32 s52, 0\ns_cbranch_scc1 L_nost')
        pack_stamps(6,8)
        A('v_writelane_b32 v8, s64, 8')
        A('ds_write_b32 v3, v8 offset:%d'%L_ST)
        A('L_nost:')
    A('s_waitcnt lgkmcnt(0)')
    A('s_barrier')
    A('s_endpgm')

    A('L_service:')
    if cfg.bare:
        A('s_sub_u32 s53, s52, 4\nv_mov_b32 v11, 0\nv_mov_b32 v12, 1\nv_mov_b32 v40, -1\nv_mov_b32 v41, -1\nv_mov_b32 v42, -1\nv_mov_b32 v43, -1\ns_waitcnt lgkmcnt(0)')
        if cfg.bare&2:
            A('s_lshl_b32 s54, s2, 2\ns_add_u32 s54, s54, s53\ns_mul_i32 s54, s54, 640\ns_add_u32 s54, s54, %d\nv_add_u32 v6, s54, v1\ns_mov_b32 exec_hi, 0xff\nglobal_store_dwordx4 v6, v[40:43], %s sc1\ns_mov_b64 exec, -1'%(CLR+0x100000,WS))
        if cfg.bare&4:
            A('global_load_dwordx4 v[32:35], v1, %s'%X)
        if cfg.bare&8:
            A('v_mov_b32 v6, s2\ns_mov_b64 exec, 1\nglobal_store_byte v6, v12, %s sc1\ns_mov_b64 exec, -1'%DBG)
        A('ds_write_b32 v11, v12 offset:%d\ns_waitcnt lgkmcnt(0)\ns_barrier\ns_barrier'%(L_CNT+8))
        if cfg.bare&16:
            A('v_lshlrev_b32 v7, 2, v0\nglobal_load_dword v13, v7, %s sc1'%DBG)
        A('s_barrier\ns_endpgm')
    A('s_setprio 3')
    A('s_sub_u32 s53, s52, 4')
    A('s_lshl_b32 s66, s53, 12')
    A('s_mov_b32 s3, %d'%FLG)
    A('s_lshr_b32 s68, s49, 3\ns_and_b32 s69, s49, 7')
    A('v_lshrrev_b32 v2, 5, v0\ns_lshl_b32 s54, s53, 1\nv_add_u32 v2, s54, v2')
    A('v_and_b32 v3, 31, v0\nv_lshlrev_b32 v3, 4, v3')
    A('v_lshl_add_u32 v4, v2, 10, v3')
    A('s_lshl_b32 s54, s68, 7\ns_lshl_b32 s55, s53, 5\ns_add_u32 s54, s54, s55')
    A('v_lshrrev_b32 v6, 3, v0\nv_add_u32 v6, s54, v6\nv_lshlrev_b32 v6, 13, v6')
    A('v_and_b32 v7, 7, v0\nv_lshl_add_u32 v6, v7, 4, v6')
    A('s_lshl_b32 s54, s48, 10\ns_lshl_b32 s55, s69, 7\ns_add_u32 s54, s54, s55\nv_add_u32 v6, s54, v6')
    A('s_lshl_b32 s54, s48, 2\ns_add_u32 s54, s54, s68\ns_lshl_b32 s54, s54, 11\ns_lshl_b32 s55, s69, 8\ns_add_u32 s54, s54, s55\ns_lshl_b32 s55, s53, 6\ns_add_u32 s54, s54, s55')
    A('v_lshlrev_b32 v14, 16, v7\nv_and_b32 v15, 0x30, v0\nv_add3_u32 v14, v14, v15, s54')
    A('v_mov_b32 v40, -1\nv_mov_b32 v41, -1\nv_mov_b32 v42, -1\nv_mov_b32 v43, -1')
    A('s_add_u32 m0, s66, %d'%L_WA)
    A('v_lshrrev_b32 v44, 1, v0\nv_lshlrev_b32 v44, 9, v44\nv_and_b32 v45, 16, v1\nv_add3_u32 v79, v44, v45, %s'%'s3')
    A('v_mov_b32 v44, 0\nv_mov_b32 v45, 0\nv_mov_b32 v46, 0\nv_mov_b32 v47, 0\nv_mov_b32 v11, 0\nv_mov_b32 v12, 1')
    A('s_lshl_b32 s12, s2, 2\ns_add_u32 s12, s12, s53')
    A('s_waitcnt lgkmcnt(0)')
    A('s_cmp_lg_u32 s12, 3\ns_cbranch_scc1 L_nolead')
    A('global_store_dwordx4 v79, v[44:47], %s sc1'%WS)
    A('L_nolead:')
    A('global_load_dwordx4 v[32:35], v4, %s'%X)
    A('global_load_dwordx4 v[36:39], v4, %s offset:512'%X)
    if cfg.nowq: A('s_mov_b64 exec, 1')
    for i in range(4):
        if i: A('s_add_u32 m0, s66, %d\nv_add_u32 v6, 0x10000, v6'%(L_WA+i*1024))
        A('global_load_lds_dwordx4 v6, %s %s'%(WQ,cfg.wf))
    A('s_mov_b32 exec_lo, 0x00ff00ff\ns_mov_b32 exec_hi, 0x00ff00ff')
    if cfg.noqst: A('s_mov_b64 exec, 1')
    A('global_store_dwordx4 v14, v[40:43], %s sc1'%WS)
    A('s_mov_b64 exec, -1')
    if cfg.svcfirst==1: A('s_barrier')
    A('s_lshl_b32 s54, s2, 12\ns_lshl_b32 s55, s53, 10\ns_add_u32 s54, s54, s55\ns_add_u32 s54, s54, %d'%CLR)
    A('v_add_u32 v6, s54, v1')
    if cfg.noclr: A('s_mov_b64 exec, 1')
    A('global_store_dwordx4 v6, v[40:43], %s sc1'%WS)
    if cfg.noclr: A('s_mov_b64 exec, -1')
    A('s_lshl_b32 s54, s2, 2\ns_add_u32 s54, s54, s53\ns_mul_i32 s54, s54, 640\ns_add_u32 s54, s54, %d'%(CLR+0x100000))
    A('v_add_u32 v6, s54, v1')
    A('s_mov_b32 exec_hi, 0xff')
    A('global_store_dwordx4 v6, v[40:43], %s sc1'%WS)
    A('s_mov_b64 exec, -1')
    if cfg.svcfirst==2: A('s_barrier')
    A('ds_write_b128 v11, v[44:47] offset:%d'%L_CNT)
    A('v_mul_u32_u24 v5, %d, v2\nv_add_u32 v5, v5, v3'%XNS)
    A('v_lshrrev_b32 v8, 4, v0\nv_lshlrev_b32 v8, 10, v8\nv_bfe_u32 v9, v0, 2, 2\nv_lshl_add_u32 v8, v9, 7, v8\nv_and_b32 v9, 3, v0\nv_lshl_add_u32 v8, v9, 3, v8')
    A('s_lshl_b32 s54, s53, 5\nv_add_u32 v8, s54, v8')
    A('v_mul_u32_u24 v9, %d, v7\nv_add_u32 v9, v9, v15\ns_lshl_b32 s54, s68, 8\nv_add_u32 v10, s54, v9'%XNS)
    A('s_lshl_b32 s54, s53, 8\nv_mov_b32 v31, s54')
    A('s_waitcnt lgkmcnt(0)')
    A('s_barrier')

    def dppadd(r,ctl):
        A('s_nop 1\nv_add_f32_dpp v%d, v%d, v%d %s row_mask:0xf bank_mask:0xf'%(r,r,r,ctl))
    def swapadd(r,t,w):
        A('v_mov_b32 v%d, v%d\ns_nop 1\nv_permlane%d_swap_b32 v%d, v%d\nv_add_f32 v%d, v%d, v%d'%(t,r,w,r,t,r,r,t))
    def rbf(r):
        A('v_cvt_pk_bf16_f32 v%d, 0, v%d'%(r,r))
    def layernorm(mode):
        if mode=='x':
            for i in range(8):
                A('v_lshlrev_b32 v%d, 16, v%d\nv_and_b32 v%d, s60, v%d'%(48+2*i,32+i,49+2*i,32+i))
        Q=lambda i:'v[%d:%d]'%(48+2*i,49+2*i)
        P=Q if mode=='x' else (lambda i:'v[%d:%d]'%(216+2*i,217+2*i))
        A('v_pk_add_f32 v[64:65], %s, %s\nv_pk_mul_f32 v[66:67], %s, %s'%(P(0),P(1),P(0),P(0)))
        A('v_pk_add_f32 v[68:69], %s, %s\nv_pk_mul_f32 v[70:71], %s, %s'%(P(2),P(3),P(1),P(1)))
        for i in range(2,8,2):
            if i>2: A('v_pk_add_f32 v[64:65], v[64:65], %s'%P(i))
            A('v_pk_fma_f32 v[66:67], %s, %s, v[66:67]'%(P(i),P(i)))
            if i>2: A('v_pk_add_f32 v[68:69], v[68:69], %s'%P(i+1))
            A('v_pk_fma_f32 v[70:71], %s, %s, v[70:71]'%(P(i+1),P(i+1)))
        A('v_pk_add_f32 v[64:65], v[64:65], v[68:69]\nv_pk_add_f32 v[66:67], v[66:67], v[70:71]')
        A('v_add_f32 v64, v64, v65\nv_add_f32 v66, v66, v67')
        ctl=['row_ror:1','row_ror:2','row_ror:4','row_ror:8'] if mode=='x' else ['quad_perm:[1,0,3,2]','quad_perm:[2,3,0,1]','row_ror:8']
        for c in ctl:
            A('s_nop 0')
            for r in (64,66): A('v_add_f32_dpp v%d, v%d, v%d %s row_mask:0xf bank_mask:0xf'%(r,r,r,c))
        for w in ((16,) if mode=='x' else (16,32)):
            A('v_mov_b32 v65, v64\nv_mov_b32 v67, v66\ns_nop 0')
            A('v_permlane%d_swap_b32 v64, v65\nv_permlane%d_swap_b32 v66, v67'%(w,w))
            A('v_add_f32 v64, v64, v65\nv_add_f32 v66, v66, v67')
        A('v_mul_f32 v64, 0xbb000000, v64\nv_mul_f32 v66, 0x3b000000, v66')
        A('v_cvt_pk_bf16_f32 v68, 0, v64')
        chain=['v_fma_f32 v66, -v64, v64, v66','v_max_f32 v66, 0, v66','v_cvt_pk_bf16_f32 v66, 0, v66','v_add_f32 v66, 0x3727c5ac, v66',
               'v_cvt_pk_bf16_f32 v66, 0, v66','v_sqrt_f32 v66, v66','v_cvt_pk_bf16_f32 v66, 0, v66','v_rcp_f32 v66, v66']
        for i in range(8):
            A(chain[i])
            A('v_pk_add_f32 %s, %s, v[68:69] op_sel_hi:[1,0]'%(Q(i),P(i)))
        for i in range(16): A('v_cvt_pk_bf16_f32 v%d, 0, v%d'%(48+i,48+i))
        nw=2 if mode=='h' else 4
        for i in range(8):
            A('v_pk_mul_f32 %s, %s, v[66:67] op_sel_hi:[1,0]'%(Q(i),Q(i)))
        for i in range(8):
            A('v_cvt_pk_bf16_f32 v%d, v%d, v%d'%(32+i,48+2*i,49+2*i))
            if mode=='h' and i%2==1: A('ds_write_b64 v5, v[%d:%d] offset:%d'%(31+i,32+i,L_XN+256*(i//2)))
            if mode=='x' and i%4==3: A('ds_write_b128 v5, v[%d:%d] offset:%d'%(29+i,32+i,L_XN+512*(i//4)))
    def lds_sync(cnt,sleep=0):
        l=newlab('ls')
        A('s_waitcnt lgkmcnt(0)')
        A('s_mov_b64 exec, 1\nds_add_u32 v11, v12 offset:%d\ns_mov_b64 exec, -1'%(L_CNT+4*cnt))
        lds_wait(11,L_CNT+4*cnt,4,sleep)
    def lds_wait(va,off,val,sleep):
        l=newlab('lw'); d=newlab('ld')
        A('%s:'%l)
        A('ds_read_b32 v13, v%d offset:%d\ns_waitcnt lgkmcnt(0)\nv_readfirstlane_b32 s54, v13\ns_cmp_ge_u32 s54, %s'%(va,off,val))
        if sleep: A('s_cbranch_scc1 %s\ns_sleep %d\ns_branch %s\n%s:'%(d,sleep,l,d))
        else: A('s_cbranch_scc0 %s'%l)
    def progress(p): lds_wait(31,L_PR,p,6)
    def poll(loads,regs,sleep=0,guard=False):
        l=newlab('pl'); d=newlab('pd')
        if guard: sleep=cfg.tsleep
        A('s_mov_b32 s61, %d'%cfg.spin)
        A('%s:'%l)
        if guard:
            gl=newlab('pg'); A('s_cbranch_execz %s'%gl)
        for x in loads: A(x)
        if guard: A('%s:'%gl)
        import re as _re
        first=True; pend=[]
        for i,x in enumerate(loads):
            m=_re.search(r'v\[(\d+):(\d+)\]',x)
            pend+=list(range(int(m.group(1)),int(m.group(2))+1))
            last=(i==len(loads)-1)
            if len(pend)<4 and not last: continue
            A('s_waitcnt vmcnt(%d)'%(len(loads)-1-i))
            while pend:
                if first:
                    if len(pend)>=3: A('v_max3_u32 v13, v%d, v%d, v%d'%tuple(pend[:3])); pend=pend[3:]
                    else: A('v_max_u32 v13, v%d, v%d'%tuple(pend[:2])); pend=pend[2:]
                    first=False
                elif len(pend)>=2: A('v_max3_u32 v13, v13, v%d, v%d'%tuple(pend[:2])); pend=pend[2:]
                elif last: A('v_max_u32 v13, v13, v%d'%pend[0]); pend=[]
                else: break
        A('v_cmp_eq_u32 vcc, -1, v13')
        A('s_cbranch_vccz %s'%d)
        if sleep: A('s_sleep %d'%sleep)
        A('s_sub_u32 s61, s61, 1\ns_cmp_lg_u32 s61, 0\ns_cbranch_scc1 %s'%l)
        A('%s:'%d)
    def apoll(loads,par):
        import re as _re
        mode,D,sleep=par
        l=newlab('al'); d=newlab('ad'); gl=newlab('ag')
        rg=[]
        for x in loads:
            m=_re.search(r'v\[(\d+):(\d+)\]',x); rg.append(list(range(int(m.group(1)),int(m.group(2))+1)))
        def chain(t,r):
            r=list(r)
            if len(r)==2: A('v_max_u32 v%d, v%d, v%d'%(t,r[0],r[1])); return
            A('v_max3_u32 v%d, v%d, v%d, v%d'%(t,r[0],r[1],r[2])); r=r[3:]
            while r:
                if len(r)==1: A('v_max_u32 v%d, v%d, v%d'%(t,t,r[0])); r=[]
                else: A('v_max3_u32 v%d, v%d, v%d, v%d'%(t,t,r[0],r[1])); r=r[2:]
        n=len(loads)
        A('s_mov_b32 s61, %d'%cfg.spin)
        if mode in 'cm':
            A('%s:'%l)
            A('s_cbranch_execz %s'%gl)
            for x in loads: A(x)
            A('%s:'%gl)
            if sleep: A('s_sleep %d'%sleep)
            A('s_waitcnt vmcnt(%d)'%min(63,n*(D-1)))
            chain(13,sum(rg,[]))
            A('v_cmp_eq_u32 vcc, -1, v13')
            A('s_cbranch_vccz %s'%d)
            if mode=='m': A('s_mov_b64 exec, vcc')
            A('s_sub_u32 s61, s61, 1\ns_cmp_lg_u32 s61, 0\ns_cbranch_scc1 %s'%l)
            A('%s:'%d)
            if mode=='m': A('s_mov_b64 exec, s[4:5]')
        else:
            mk=['s[6:7]','s[8:9]','s[10:11]','s[40:41]','s[42:43]','s[44:45]','s[46:47]','s[62:63]'][:n]
            for m_ in mk: A('s_mov_b64 %s, s[4:5]'%m_)
            A('%s:'%l)
            for x,m_ in zip(loads,mk):
                sk=newlab('as')
                A('s_mov_b64 exec, %s\ns_cbranch_execz %s'%(m_,sk)); A(x); A('%s:'%sk)
            A('s_mov_b64 exec, s[4:5]')
            if sleep: A('s_sleep %d'%sleep)
            A('s_waitcnt vmcnt(%d)'%min(63,n*(D-1)))
            for i in range(n): chain(246+i,rg[i])
            chain(13,[246+i for i in range(n)])
            A('v_cmp_eq_u32 vcc, -1, v13')
            A('s_cbranch_vccz %s'%d)
            for i in range(n): A('v_cmp_eq_u32 %s, -1, v%d'%(mk[i],246+i))
            A('s_sub_u32 s61, s61, 1\ns_cmp_lg_u32 s61, 0\ns_cbranch_scc1 %s'%l)
            A('%s:'%d)
    def flagpoll(voff,execmask):
        l=newlab('fl'); d=newlab('fd')
        A('s_mov_b32 s61, %d'%cfg.spin)
        A('s_mov_b64 exec, %s'%execmask)
        A('%s:'%l)
        A('global_load_dwordx4 v[72:75], v%d, %s sc1\ns_waitcnt vmcnt(0)'%(voff,WS))
        A('v_min3_u32 v13, v72, v73, v74\nv_min_u32 v13, v13, v75\nv_cmp_eq_u32 vcc, 0, v13\ns_cbranch_vccz %s'%d)
        A('s_sleep 16')
        A('s_sub_u32 s61, s61, 1\ns_cmp_lg_u32 s61, 0\ns_cbranch_scc1 %s'%l)
        A('%s:'%d)
        A('s_mov_b64 exec, -1')
    def tr128(dst,base):
        for s_ in range(4):
            A('ds_read_b64_tr_b16 v[%d:%d], v8 offset:%d'%(dst+4*s_,dst+4*s_+1,base+4096*s_))
            A('ds_read_b64_tr_b16 v[%d:%d], v8 offset:%d'%(dst+4*s_+2,dst+4*s_+3,base+4096*s_+512))

    A('s_waitcnt vmcnt(7)')
    A('s_cmp_lg_u32 s12, 3\ns_cbranch_scc1 L_nogo')
    A('s_waitcnt vmcnt(0)')
    A('s_mov_b64 exec, 1\nglobal_store_dword v11, v12, %s sc1\ns_mov_b64 exec, -1'%DBG)
    A('L_nogo:')
    stamp(1)
    layernorm('x')
    A('s_waitcnt vmcnt(0)')
    lds_sync(0)
    stamp(2)
    tr128(80,L_WA)
    for s_ in range(4):
        A('ds_read_b128 v[%d:%d], v10 offset:%d'%(32+4*s_,35+4*s_,L_XN+64*s_))
    A('s_waitcnt lgkmcnt(0)')
    for s_ in range(4):
        A('v_mfma_f32_16x16x32_bf16 v[48:51], v[%d:%d], v[%d:%d], %s'%(80+4*s_,83+4*s_,32+4*s_,35+4*s_,'0' if s_==0 else 'v[48:51]'))
    A('s_nop 7')
    for r in range(4): A('v_min_u32 v%d, -2, v%d'%(48+r,48+r))
    A('s_mov_b32 exec_lo, 0x00ff00ff\ns_mov_b32 exec_hi, 0x00ff00ff')
    if cfg.noqst: A('s_mov_b64 exec, 1')
    A('global_store_dwordx4 v14, v[48:51], %s sc1'%WS)
    A('s_mov_b64 exec, -1')
    stamp(3)
    A('s_cmp_lg_u32 s53, 3\ns_cbranch_scc1 L_noflag')
    A('s_lshl_b32 s54, s48, 2\ns_add_u32 s54, s54, s68\ns_lshl_b32 s54, s54, 9\ns_lshl_b32 s55, s69, 2\ns_add_u32 s54, s54, s55\ns_add_u32 s54, s54, s3\nv_mov_b32 v6, s54')
    A('s_mov_b32 s61, %d\ns_mov_b64 exec, 1\nL_go:\nglobal_load_dword v13, v11, %s sc1\ns_waitcnt vmcnt(0)\nv_cmp_eq_u32 vcc, 0, v13\ns_cbranch_vccz L_god'%(cfg.spin,DBG))
    A('s_sleep 8\ns_sub_u32 s61, s61, 1\ns_cmp_lg_u32 s61, 0\ns_cbranch_scc1 L_go\nL_god:')
    A('global_store_dword v6, v12, %s sc1'%WS)
    A('ds_add_u32 v11, v12 offset:%d\ns_mov_b64 exec, -1'%(L_CNT+12))
    A('L_noflag:')
    A('s_cmp_lg_u32 s53, %d\ns_cbranch_scc1 L_qdone'%(9 if cfg.noq else 0))
    A('v_and_b32 v6, 3, v0\nv_lshlrev_b32 v6, 9, v6\nv_lshrrev_b32 v14, 2, v0\nv_lshl_add_u32 v6, v14, 5, v6')
    A('s_lshl_b32 s54, s50, 13\ns_add_u32 s54, s54, %d\nv_add_u32 v6, s54, v6'%(QP+3072))
    A('s_and_b32 s54, s50, 7\ns_lshl_b32 s54, s54, 11\nv_add_u32 v7, s54, v79')
    lds_wait(11,L_CNT+12,1,2)
    progress(cfg.pq)
    flagpoll(7,'0xff')
    stamp(4)
    poll(['global_load_dwordx4 v[%d:%d], v6, %s offset:%d sc1'%(32+8*kq+4*h,35+8*kq+4*h,WS,2048*kq+16*h-3072) for kq in range(4) for h in range(2)],list(range(32,64)),sleep=8)
    for p in range(4):
        A('v_pk_add_f32 v[%d:%d], v[%d:%d], v[%d:%d]'%(32+2*p,33+2*p,32+2*p,33+2*p,40+2*p,41+2*p))
        A('v_pk_add_f32 v[%d:%d], v[%d:%d], v[%d:%d]'%(48+2*p,49+2*p,48+2*p,49+2*p,56+2*p,57+2*p))
    for p in range(4):
        A('v_pk_add_f32 v[%d:%d], v[%d:%d], v[%d:%d]'%(32+2*p,33+2*p,32+2*p,33+2*p,48+2*p,49+2*p))
    for p in range(4):
        A('v_cvt_pk_bf16_f32 v%d, v%d, v%d'%(32+p,32+2*p,33+2*p))
    A('ds_write_b128 v1, v[32:35] offset:%d'%L_QL)
    stamp(5)
    A('s_waitcnt lgkmcnt(0)')
    A('L_qdone:')
    A('s_setprio 0')
    A('s_barrier')

    A('s_mov_b32 s70, 0\ns_and_b32 s54, s49, 0x13\ns_cmp_eq_u32 s54, s51\ns_cselect_b32 s70, 2, s70')
    A('s_sub_u32 s54, s49, 16\ns_cmp_lt_u32 s54, 14\ns_cselect_b32 s70, 1, s70')
    A('s_xor_b32 s55, s2, s49\ns_and_b32 s55, s55, 1\ns_cselect_b32 s70, 3, s70')
    A('s_lshr_b32 s54, s54, 1\ns_mul_i32 s14, s48, 7\ns_add_u32 s14, s14, s54')
    A('s_lshr_b32 s15, s49, 2\ns_add_u32 s54, s48, %d\ns_and_b32 s54, s54, 7\ns_lshl_b32 s54, s54, 2\ns_add_u32 s15, s15, s54'%cfg.crot)
    A('s_lshr_b32 s13, s2, 1')
    A('s_lshl_b32 s54, s48, 2\ns_add_u32 s67, s54, s68')
    A('v_and_b32 v6, 3, v0\nv_lshlrev_b32 v6, 2, v6\nv_lshrrev_b32 v7, 4, v0\nv_add_u32 v6, v6, v7')
    A('v_bfe_u32 v7, v0, 2, 1')
    A('v_lshrrev_b32 v24, 3, v0\nv_lshlrev_b32 v24, 14, v24\nv_and_b32 v13, 0x70, v1\nv_add_u32 v24, v24, v13\ns_mov_b32 s55, s13\ns_lshl_b32 s54, s55, 7\ns_add_u32 s54, s54, %d\nv_add_u32 v24, s54, v24'%HB)
    A('v_lshlrev_b32 v6, 1, v6\nv_lshl_add_u32 v6, v7, 10, v6\ns_lshr_b32 s54, s55, 5\ns_lshl_b32 s54, s54, 11\ns_and_b32 s55, s55, 31\ns_lshl_b32 s55, s55, 5\ns_add_u32 s54, s54, s55\nv_add_u32 v6, s54, v6')
    A('global_load_ushort v16, v6, %s'%X)
    A('s_cmp_lg_u32 s53, 0\ns_cbranch_scc1 L_nofc')
    flagpoll(79,'-1')
    if cfg.ctouch is not None:
        A('s_lshl_b32 s54, s50, %d\ns_add_u32 s54, s54, %d\nv_mov_b32 v7, s54\nglobal_load_dword v13, v7, %s %s\ns_waitcnt vmcnt(0)'%(cfg.cs,CTR,WS,cfg.ctouch))
    A('s_mov_b64 exec, 1\nds_add_u32 v11, v12 offset:%d\ns_mov_b64 exec, -1'%(L_CNT+8))
    A('L_nofc:')
    pslot=[0]
    def paced(line):
        k=pslot[0]
        f=(lambda k: cfg.pw0+((k-4)*(cfg.pw1-cfg.pw0))//16) if cfg.wolate else (lambda k: cfg.pw0+(k*(cfg.pw1-cfg.pw0))//20)
        if k==0 or k==4 or f(k)!=f(k-1): progress(f(k))
        assert f(k)<cfg.NS
        pslot[0]+=1
        A(line)
    if not cfg.noW:
        A('s_lshl_b32 s54, s67, 7\ns_lshl_b32 s55, s53, 1\ns_add_u32 s54, s54, s55\ns_lshl_b32 s54, s54, 10\ns_lshl_b32 s55, s69, 7\ns_add_u32 s54, s54, s55')
        A('v_lshrrev_b32 v6, 5, v0\nv_lshlrev_b32 v6, 15, v6\nv_bfe_u32 v7, v0, 3, 2\nv_lshl_add_u32 v6, v7, 13, v6\nv_and_b32 v7, 7, v0\nv_lshl_add_u32 v6, v7, 4, v6\nv_add_u32 v6, s54, v6')
        if cfg.wolate: A('v_mov_b32 v14, v6'); pslot[0]=4
        for i in range(0 if cfg.wolate else 4):
            A('v_add_u32 v7, %d, v6'%((64*(i&1)+(i>>1))*1024))
            paced('s_add_u32 m0, s66, %d\ns_nop 0\nglobal_load_lds_dwordx4 v7, %s %s'%(L_WB+i*1024,WO,cfg.wf))
        l2=newlab('w2'); le=newlab('we')
        A('s_cmp_eq_u32 s70, 2\ns_cbranch_scc1 %s'%l2)
        A('s_cmp_lg_u32 s70, 1\ns_cbranch_scc1 %s'%le)
        p0=pslot[0]
        A('s_lshl_b32 s54, s14, 6')
        A('s_lshl_b32 s55, s53, 7\nv_lshrrev_b32 v6, 2, v0\nv_add_u32 v6, s55, v6\nv_mul_u32_u24 v6, 3584, v6\nv_and_b32 v7, 3, v0\nv_lshl_add_u32 v6, v7, 4, v6\nv_add_u32 v6, s54, v6')
        A('s_lshl_b32 s71, s53, 13')
        for i in range(8):
            if i: A('v_add_u32 v6, %d, v6'%(16*3584))
            paced('s_add_u32 m0, s71, %d\ns_nop 0\nglobal_load_lds_dwordx4 v6, %s %s'%(L_WA+i*1024,WG,cfg.ff))
            paced('s_add_u32 m0, s71, %d\ns_nop 0\nglobal_load_lds_dwordx4 v6, %s %s'%(L_WA+32768+i*1024,WU,cfg.ff))
        A('s_branch %s'%le)
        A('%s:'%l2)
        pslot[0]=p0
        A('s_mul_i32 s54, s53, 448\nv_lshrrev_b32 v6, 1, v0\nv_add_u32 v6, s54, v6\nv_lshlrev_b32 v6, 10, v6')
        A('v_and_b32 v7, 1, v0\nv_lshl_add_u32 v6, v7, 4, v6\ns_lshl_b32 s54, s15, 5\nv_add_u32 v6, s54, v6')
        A('s_mul_i32 s71, s53, 14336')
        for i in range(14):
            if i: A('v_add_u32 v6, 0x8000, v6')
            paced('s_add_u32 m0, s71, %d\ns_nop 0\nglobal_load_lds_dwordx4 v6, %s %s'%(L_WA+i*1024,WD,cfg.ff))
        A('%s:'%le)
    A('s_waitcnt vmcnt(0)')
    A('v_lshlrev_b32 v16, 16, v16')
    lds_sync(1,sleep=4)
    stamp(6)
    if not cfg.wolate: tr128(80,L_WB)
    l2=newlab('r2'); le=newlab('re')
    A('v_mov_b32 v26, 0\nv_mov_b32 v27, 0\nv_mov_b32 v28, 0\nv_mov_b32 v29, 0')
    A('s_cmp_eq_u32 s70, 2\ns_cbranch_scc1 %s'%l2)
    A('s_cmp_lg_u32 s70, 1\ns_cbranch_scc1 %s'%le)
    A('v_lshrrev_b32 v6, 4, v0\nv_lshlrev_b32 v6, 9, v6\nv_bfe_u32 v7, v0, 2, 2\nv_lshl_add_u32 v6, v7, 6, v6')
    A('v_and_b32 v7, 1, v0\nv_lshl_add_u32 v6, v7, 3, v6\nv_bfe_u32 v7, v0, 1, 1\nv_lshl_add_u32 v6, v7, 15, v6\ns_lshl_b32 s54, s53, 4\ns_add_u32 s54, s54, %d\nv_add_u32 v6, s54, v6'%L_WA)
    for s_ in range(16):
        A('ds_read_b64_tr_b16 v[%d:%d], v6 offset:%d'%(96+4*s_,97+4*s_,2048*s_))
        A('ds_read_b64_tr_b16 v[%d:%d], v6 offset:%d'%(98+4*s_,99+4*s_,2048*s_+256))
        if s_%4==3: A('s_waitcnt lgkmcnt(0)')
    A('s_lshl_b32 s54, s14, 2\ns_add_u32 s54, s54, s53\ns_lshl_b32 s54, s54, 7\ns_add_u32 s54, s54, %d'%AB)
    A('v_and_b32 v27, 0x70, v1\nv_lshrrev_b32 v7, 3, v0\nv_lshl_add_u32 v27, v7, 15, v27\nv_add_u32 v27, s54, v27')
    A('s_and_b32 s55, s48, %d\ns_lshl_b32 s55, s55, 14\ns_add_u32 s54, s66, s55\ns_add_u32 s54, s54, %d\nv_add_u32 v4, s54, v1'%(cfg.nH-1,HB))
    A('v_bfe_u32 v5, v0, 2, 1\ns_lshl_b32 s54, s53, 1\nv_add_u32 v5, s54, v5\nv_mul_u32_u24 v5, %d, v5\nv_lshrrev_b32 v7, 3, v0\nv_lshl_add_u32 v5, v7, 5, v5\nv_and_b32 v7, 3, v0\nv_lshl_add_u32 v5, v7, 3, v5'%XNS)
    A('s_branch %s'%le)
    A('%s:'%l2)
    A('v_lshrrev_b32 v6, 4, v0\nv_lshlrev_b32 v6, 9, v6\nv_bfe_u32 v7, v0, 1, 1\nv_lshl_add_u32 v6, v7, 8, v6\nv_bfe_u32 v7, v0, 2, 2\nv_lshl_add_u32 v6, v7, 5, v6')
    A('v_and_b32 v7, 1, v0\nv_lshl_add_u32 v6, v7, 3, v6\ns_mul_i32 s55, s53, 14336\ns_add_u32 s55, s55, %d\nv_add_u32 v6, s55, v6'%L_WA)
    for t in range(7):
        for tt in range(2):
            r=96+8*t+4*tt
            A('ds_read_b64_tr_b16 v[%d:%d], v6 offset:%d'%(r,r+1,2048*t+16*tt))
            A('ds_read_b64_tr_b16 v[%d:%d], v6 offset:%d'%(r+2,r+3,2048*t+16*tt+128))
        A('s_waitcnt lgkmcnt(0)')
    A('v_bfe_u32 v26, v0, 2, 1\nv_lshlrev_b32 v26, 10, v26\nv_bfe_u32 v7, v0, 1, 1\nv_lshl_add_u32 v26, v7, 8, v26\nv_lshrrev_b32 v7, 3, v0\nv_lshl_add_u32 v26, v7, 4, v26\nv_and_b32 v7, 1, v0\nv_lshl_add_u32 v26, v7, 3, v26')
    A('s_and_b32 s55, s48, %d\ns_lshl_b32 s55, s55, 15\ns_mul_i32 s54, s53, 7168\ns_add_u32 s54, s54, s55\ns_add_u32 s54, s54, %d\nv_add_u32 v27, s54, v1'%(cfg.nA-1,AB+3072))
    A('s_mov_b32 s54, s15\ns_lshl_b32 s55, s54, 5')
    A('v_lshrrev_b32 v28, 3, v0\nv_lshlrev_b32 v28, 10, v28\nv_and_b32 v7, 7, v0\nv_lshl_add_u32 v28, v7, 2, v28\nv_add_u32 v28, s55, v28')
    A('s_lshl_b32 s54, s54, 7\ns_and_b32 s55, s48, %d\ns_lshl_b32 s55, s55, 14\ns_add_u32 s54, s54, s55\ns_add_u32 s54, s54, %d'%(cfg.nH-1,HB))
    A('v_lshrrev_b32 v29, 4, v0\nv_lshlrev_b32 v29, 12, v29\nv_and_b32 v7, 15, v0\nv_lshl_add_u32 v29, v7, 3, v29\nv_add_u32 v29, s54, v29')
    A('s_lshl_b32 s54, s53, 11\nv_add_u32 v10, s54, v1')
    A('%s:'%le)
    A('s_lshl_b32 s54, s53, 9\nv_add_u32 v17, s54, v3')
    A('s_and_b32 s54, s50, 7\ns_lshl_b32 s54, s54, 2\ns_add_u32 s54, s54, s53\ns_lshl_b32 s54, s54, 3\ns_lshr_b32 s55, s50, 3\ns_add_u32 s54, s54, s55\ns_lshl_b32 s54, s54, 2\ns_add_u32 s54, s54, s51')
    A('s_mul_i32 s54, s54, %d\ns_add_u32 s54, s54, %d\nv_add_u32 v18, s54, v1'%(OPS,OP))
    A('s_mul_i32 s54, s67, %d\ns_add_u32 s54, s54, %d\nv_mul_u32_u24 v25, %d, v2\nv_add_u32 v25, s54, v25\nv_add_u32 v19, v25, v3'%(32*OPS,OP,4*OPS))
    A('s_lshl_b32 s54, s53, 5\nv_mov_b32 v30, s54')
    A('v_mul_u32_u24 v20, %d, v2\nv_lshrrev_b32 v7, 1, v3\nv_add_u32 v20, v20, v7'%XOS)
    A('v_and_b32 v21, 7, v0\nv_mul_u32_u24 v21, %d, v21\nv_add_u32 v21, v21, v15'%XOS)
    A('s_lshl_b32 s54, s69, 2\ns_add_u32 s54, s54, s53\ns_lshl_b32 s54, s54, 5\ns_add_u32 s54, s54, s67\ns_lshl_b32 s54, s54, 7\ns_add_u32 s54, s54, %d'%WP)
    A('v_bfe_u32 v22, v0, 1, 2\nv_lshlrev_b32 v22, 17, v22\nv_and_b32 v7, 1, v0\nv_lshl_add_u32 v22, v7, 6, v22\nv_add3_u32 v22, v22, v15, s54')
    A('s_lshl_b32 s54, s13, 12\ns_add_u32 s54, s54, %d\nv_add_u32 v23, s54, v1'%WP)
    def guarded(lines):
        l=newlab('g')
        A('s_cbranch_execz %s'%l); A(lines); A('%s:'%l)
    def drychk():
        A('s_cmp_eq_u32 s4, 0\ns_cbranch_scc1 L_again')
    for r in range(192,246): A('v_mov_b32 v%d, -1'%r)
    A('s_waitcnt lgkmcnt(0)')
    A('s_mov_b64 vcc, 0\ns_mov_b64 s[4:5], %d\ns_mov_b64 exec, s[4:5]'%(0 if cfg.warm else -1))
    A('L_tail:')
    stamp(7)
    guarded('s_barrier')
    def wsum(b0,half,s0=None):
        d='v[%d:%d]'%(b0+2*half,b0+2*half+1)
        s0=s0 or b0
        for w in range(4):
            src='v[%d:%d]'%(s0+4*w+2*half,s0+4*w+2*half+1)
            f='v[%d:%d]'%(72+2*(w//2),73+2*(w//2))
            if w==0: A('v_pk_mul_f32 %s, %s, %s op_sel_hi:[1,0]'%(d,src,f))
            elif w%2==0: A('v_pk_fma_f32 %s, %s, %s, %s op_sel_hi:[1,0,1]'%(d,src,f,d))
            else: A('v_pk_fma_f32 %s, %s, %s, %s op_sel:[0,1,0] op_sel_hi:[1,1,1]'%(d,src,f,d))
    if cfg.gleak is not None:
        k,lo,hi,msk=cfg.gleak
        A('s_cbranch_execz L_nogl\ns_cmp_lg_u32 s53, 0\ns_cbranch_scc1 L_nogl')
        if k>=100: A('v_mov_b32 v32, %d\nds_read_b32 v33, v32 offset:%d\ns_waitcnt lgkmcnt(0)'%(4*(k-100),L_ST))
        else: A('v_mov_b32 v33, s%d'%(72+2*k))
        A('v_not_b32 v33, v33\nv_mov_b32 v34, s72\nv_mov_b32 v32, 0x22f000')
        A('s_mov_b64 exec, 1')
        A('global_atomic_umin v32, v34, %s'%WS)
        A('s_and_b32 s54, s2, %d\ns_sub_u32 s54, s54, %d\ns_cmp_ge_u32 s54, %d\ns_cbranch_scc1 L_nogl2'%(msk,lo,hi-lo))
        A('global_atomic_umin v32, v33, %s offset:256'%WS)
        A('L_nogl2:\ns_mov_b64 exec, -1\ns_waitcnt vmcnt(0)')
        A('L_nogl:')
    A('ds_read_b128 v[64:67], v30 offset:%d\nds_read_b128 v[68:71], v30 offset:%d'%(L_MLW,L_MLW+16))
    for w in range(4):
        A('ds_read_b128 v[%d:%d], v17 offset:%d'%(32+4*w,35+4*w,L_OW+2048*w))
    stamp(8)
    if cfg.notail: A('s_branch L_fin')
    A('s_and_b32 exec_hi, s4, 1')
    A('s_waitcnt lgkmcnt(%d)'%(0 if cfg.diag else 4))
    A('v_max3_f32 v76, v64, v65, v66\nv_max_f32 v76, v76, v67')
    A('v_pk_add_f32 v[72:73], v[64:65], v[76:77] op_sel_hi:[1,0] neg_lo:[0,1] neg_hi:[0,1]')
    A('v_pk_add_f32 v[74:75], v[66:67], v[76:77] op_sel_hi:[1,0] neg_lo:[0,1] neg_hi:[0,1]')
    for i in range(4): A('v_exp_f32 v%d, v%d'%(72+i,72+i))
    A('v_pk_mul_f32 v[68:69], v[68:69], v[72:73]\nv_pk_fma_f32 v[68:69], v[70:71], v[74:75], v[68:69]')
    A('s_waitcnt lgkmcnt(0)')
    A('v_add_f32 v77, v68, v69')
    wsum(32,0); wsum(32,1)
    A('v_mov_b32_dpp v32, v76 quad_perm:[0,1,2,3] row_mask:0x4 bank_mask:0xf')
    A('v_mov_b32_dpp v33, v77 quad_perm:[0,1,2,3] row_mask:0x4 bank_mask:0xf')
    guarded('global_store_dwordx4 v18, v[32:35], %s sc1'%WS)
    tstamp(1)
    A('s_mov_b64 exec, s[4:5]')
    apoll(['global_load_dwordx2 v[%d:%d], v25, %s offset:%d sc1'%(208+2*s_,209+2*s_,WS,OPS*s_+512) for s_ in range(4)]+
         ['global_load_dwordx4 v[%d:%d], v19, %s offset:%d sc1'%(192+4*s_,195+4*s_,WS,OPS*s_) for s_ in range(4)],cfg.pW)
    stamp(9)
    A('v_max3_f32 v76, v208, v210, v212\nv_max_f32 v76, v76, v214')
    for i in range(4): A('v_sub_f32 v%d, v%d, v76'%(72+i,208+2*i))
    for i in range(4): A('v_exp_f32 v%d, v%d'%(72+i,72+i))
    A('v_mul_f32 v78, v72, v209')
    for i in range(1,4): A('v_fmac_f32 v78, v%d, v%d'%(72+i,209+2*i))
    A('v_rcp_f32 v78, v78')
    wsum(48,0,192); wsum(48,1,192)
    A('v_pk_mul_f32 v[48:49], v[48:49], v[78:79] op_sel_hi:[1,0]\nv_pk_mul_f32 v[50:51], v[50:51], v[78:79] op_sel_hi:[1,0]')
    A('v_cvt_pk_bf16_f32 v48, v48, v49\nv_cvt_pk_bf16_f32 v49, v50, v51')
    A('ds_write_b64 v20, v[48:49] offset:%d'%L_XO)
    A('s_waitcnt lgkmcnt(0)'); guarded('s_barrier')
    if cfg.tdiag: tstamp(2); A('s_waitcnt lgkmcnt(0)')
    for s_ in range(4):
        A('ds_read_b128 v[%d:%d], v21 offset:%d'%(32+4*s_,35+4*s_,L_XO+64*s_))
        if cfg.wolate:
            A('ds_read_b64_tr_b16 v[%d:%d], v8 offset:%d'%(80+4*s_,81+4*s_,L_WB+4096*s_))
            A('ds_read_b64_tr_b16 v[%d:%d], v8 offset:%d'%(82+4*s_,83+4*s_,L_WB+4096*s_+512))
    for s_ in range(4):
        A('s_waitcnt lgkmcnt(%d)'%((3-s_)*(3 if cfg.wolate else 1)))
        A('v_mfma_f32_16x16x32_bf16 v[48:51], v[%d:%d], v[%d:%d], %s'%(80+4*s_,83+4*s_,32+4*s_,35+4*s_,'0' if s_==0 else 'v[48:51]'))
    A('s_and_b32 exec_lo, s4, 0x00ff00ff\ns_and_b32 exec_hi, s4, 0x00ff00ff')
    A('s_nop 4')
    guarded('global_store_dwordx4 v22, v[48:51], %s sc1'%WS)
    tstamp(3)
    A('s_mov_b64 exec, s[4:5]')
    A('s_cmp_lg_u32 s70, 3\ns_cbranch_scc1 L_rdone')
    A('s_cmp_lg_u32 s53, 0\ns_cbranch_scc1 L_fin')
    apoll(['global_load_dwordx4 v[%d:%d], v23, %s offset:%d sc1'%(216+4*t,219+4*t,WS,1024*t) for t in range(4)],cfg.pR)
    stamp(10)
    A('v_pk_add_f32 v[32:33], v[216:217], v[220:221]\nv_pk_add_f32 v[34:35], v[218:219], v[222:223]')
    A('v_pk_add_f32 v[40:41], v[224:225], v[228:229]\nv_pk_add_f32 v[42:43], v[226:227], v[230:231]')
    A('v_pk_add_f32 v[32:33], v[32:33], v[40:41]\nv_pk_add_f32 v[34:35], v[34:35], v[42:43]')
    A('s_nop 1\nv_permlane32_swap_b32 v32, v34\nv_permlane32_swap_b32 v33, v35')
    A('v_add_f32 v32, v32, v34\nv_add_f32 v33, v33, v35')
    A('s_nop 1\nv_permlane16_swap_b32 v32, v33\nv_add_f32 v32, v32, v33')
    dppadd(32,'row_ror:8')
    rbf(32)
    A('v_add_f32 v32, v32, v16')
    rbf(32)
    A('v_mov_b32 v33, v32\ns_nop 1\nv_permlane16_swap_b32 v32, v33\nv_mov_b32 v34, v32\nv_mov_b32 v35, v33\ns_nop 0')
    A('v_permlane32_swap_b32 v32, v34\nv_permlane32_swap_b32 v33, v35')
    if cfg.nH<8: A('s_and_b32 exec_lo, s4, 0x%x\ns_mov_b32 exec_hi, 0'%((1<<(8*cfg.nH))-1))
    guarded('global_store_dwordx4 v24, v[32:35], %s sc1'%WS)
    tstamp(4)
    A('s_branch L_fin')
    A('L_rdone:')
    A('s_cmp_eq_u32 s70, 2\ns_cbranch_scc1 L_ffn2')
    A('s_cmp_eq_u32 s70, 0\ns_cbranch_scc1 L_fin')
    apoll(['global_load_dwordx4 v[%d:%d], v4, %s offset:%d sc1'%(216+4*t,219+4*t,WS,1024*t) for t in range(4)],cfg.pF)
    stamp(11)
    layernorm('h')
    tstamp(5)
    A('s_waitcnt lgkmcnt(0)'); guarded('s_barrier')
    if cfg.tdiag: tstamp(6); A('s_waitcnt lgkmcnt(0)')
    for s_ in range(8):
        A('ds_read_b128 v[%d:%d], v9 offset:%d'%(32+4*s_,35+4*s_,L_XN+64*s_))
    for s_ in range(16):
        A('s_waitcnt lgkmcnt(%d)'%min(7,15-s_))
        b=32+4*(s_%8) if s_<8 else 160+4*(s_-8)
        A('v_mfma_f32_16x16x32_bf16 v[64:67], v[%d:%d], v[%d:%d], %s'%(96+4*s_,99+4*s_,b,b+3,'0' if s_==0 else 'v[64:67]'))
        if s_<8: A('ds_read_b128 v[%d:%d], v9 offset:%d'%(160+4*s_,163+4*s_,L_XN+64*(s_+8)))
    A('s_nop 7')
    A('v_permlane32_swap_b32 v64, v65\nv_permlane32_swap_b32 v66, v67')
    A('s_nop 1')
    A('v_mov_b32_dpp v64, v66 quad_perm:[0,1,2,3] row_mask:0xf bank_mask:0xc')
    A('v_mov_b32_dpp v65, v67 quad_perm:[0,1,2,3] row_mask:0xf bank_mask:0xc')
    A('v_cvt_pk_bf16_f32 v32, 0, v64\nv_cvt_pk_bf16_f32 v36, 0, v65')
    A('v_mul_f32 v33, v32, v32\nv_mul_f32 v33, 0x3d372713, v33\nv_fma_f32 v33, v33, v32, v32')
    A('v_mul_f32 v33, 0xc0135761, v33\nv_exp_f32 v33, v33\ns_nop 0\nv_add_f32 v33, 1.0, v33\nv_rcp_f32 v33, v33\ns_nop 0\nv_mul_f32 v33, v33, v32')
    rbf(33)
    A('v_mul_f32 v33, v33, v36\nv_mov_b32 v34, v33\ns_nop 1\nv_permlane32_swap_b32 v33, v34')
    A('v_cvt_pk_bf16_f32 v33, v33, v34\nv_min_u32 v36, -2, v33')
    A('v_mov_b32 v32, v36\nv_mov_b32 v33, v36\ns_nop 0')
    A('v_mov_b32_dpp v32, v36 row_ror:8 row_mask:0xf bank_mask:0xc\nv_mov_b32_dpp v33, v36 row_ror:8 row_mask:0xf bank_mask:0x3')
    A('v_mov_b32 v34, v32\nv_mov_b32 v35, v33\ns_nop 0')
    A('v_permlane16_swap_b32 v32, v34\nv_permlane16_swap_b32 v33, v35')
    if cfg.nA<8: A('s_and_b32 exec_lo, s4, 0x%x\ns_mov_b32 exec_hi, 0'%((1<<(8*cfg.nA))-1))
    guarded('global_store_dwordx4 v27, v[32:35], %s sc1'%WS)
    stamp(12)
    A('L_fin:')
    drychk()
    if cfg.diag:
        dump_stamps(14,8)
    A('s_endpgm')
    A('L_ffn2:')
    poll(guard=True,loads=['global_load_dwordx2 v[60:61], v29, %s sc1'%WS],regs=[60,61])
    apoll(['global_load_dwordx4 v[%d:%d], v27, %s offset:%d sc1'%(216+4*t,219+4*t,WS,1024*t-3072) for t in range(7)],cfg.pG)
    stamp(10)
    for t in range(7):
        for tt in range(2):
            acc='v[%d:%d]'%(64+4*tt,67+4*tt)
            r=96+8*t+4*tt
            A('v_mfma_f32_16x16x32_bf16 %s, v[%d:%d], v[%d:%d], %s'%(acc,r,r+3,216+4*t,219+4*t,'0' if t==0 else acc))
    A('s_nop 6')
    A('ds_write_b128 v10, v[64:67] offset:%d'%L_DP)
    A('ds_write_b128 v10, v[68:71] offset:%d'%(L_DP+1024))
    A('s_waitcnt lgkmcnt(0)'); guarded('s_barrier')
    tstamp(6)
    A('s_cmp_lg_u32 s53, 0\ns_cbranch_scc1 L_fin')
    for w in range(4):
        A('ds_read_b64 v[%d:%d], v26 offset:%d'%(32+4*w,33+4*w,L_DP+2048*w))
        A('ds_read_b64 v[%d:%d], v26 offset:%d'%(34+4*w,35+4*w,L_DP+2048*w+640))
    A('s_waitcnt lgkmcnt(0)')
    for w in range(4): A('v_pk_add_f32 v[%d:%d], v[%d:%d], v[%d:%d]'%(32+4*w,33+4*w,32+4*w,33+4*w,34+4*w,35+4*w))
    A('v_pk_add_f32 v[32:33], v[32:33], v[36:37]\nv_pk_add_f32 v[40:41], v[40:41], v[44:45]\nv_pk_add_f32 v[32:33], v[32:33], v[40:41]')
    A('v_cvt_pk_bf16_f32 v32, 0, v32\nv_cvt_pk_bf16_f32 v33, 0, v33')
    A('v_pk_add_f32 v[32:33], v[32:33], v[60:61]')
    A('v_cvt_pk_bf16_f32 v32, v32, v33')
    guarded('global_store_dword v28, v32, %s %s'%(OUT,cfg.of))
    drychk()
    if cfg.diag:
        stamp(13)
        if cfg.leak is not None:
            a,b=cfg.leak
            A('s_waitcnt lgkmcnt(0)')
            if cfg.gleak is not None:
                A('v_mov_b32 v8, 0x22f000\nglobal_load_dword v9, v8, %s sc1\nglobal_load_dword v10, v8, %s offset:256 sc1\ns_waitcnt vmcnt(0)'%(WS,WS))
                if b==13: A('v_mov_b32 v10, s%d'%(72+2*13))
                else: A('v_not_b32 v10, v10')
                A('v_sub_u32 v9, v10, v9\ns_nop 1\nv_readfirstlane_b32 s54, v9')
                if b==0: A('s_mov_b32 s54, 0')
            elif b>=100:
                A('v_mov_b32 v8, %d\nds_read_b32 v9, v8 offset:%d\ns_waitcnt lgkmcnt(0)\nv_readfirstlane_b32 s54, v9\ns_sub_u32 s54, s54, s%d'%(4*(b-100),L_ST,72+2*a))
            else: A('s_sub_u32 s54, s%d, s%d'%(72+2*b,72+2*a))
            A('s_min_u32 s54, s54, 20000')
            A('L_leak:')
            A('s_memrealtime s[68:69]\ns_waitcnt lgkmcnt(0)\ns_sub_u32 s55, s68, s%d\ns_cmp_lt_u32 s55, s54\ns_cbranch_scc1 L_leak'%(72+2*13))
        else:
            A('s_waitcnt lgkmcnt(0)\ns_mov_b32 s100, s92\ns_mov_b32 s92, 0')
            dump_stamps(15,8)
    A('L_end:')
    A('s_endpgm')
    A('L_again:')
    if cfg.diag:
        A('s_waitcnt lgkmcnt(0)')
        for i in range(1 if cfg.tdiag else 8,14): A('s_mov_b32 s%d, 0'%(72+2*i))
    A('s_mov_b64 s[4:5], -1\ns_mov_b64 exec, -1')
    if cfg.wolate:
        lds_wait(31,L_PR,cfg.wolate,2)
        for i in range(4):
            A('s_add_u32 m0, s66, %d\nv_add_u32 v7, %d, v14\nglobal_load_lds_dwordx4 v7, %s %s'%(L_WB+i*1024,(64*(i&1)+(i>>1))*1024,WO,cfg.wf))
    A('s_branch L_tail')
    A('.section .rodata,"a"\n.p2align 6\n.amdhsa_kernel %s'%K)
    A('  .amdhsa_next_free_vgpr 256\n  .amdhsa_next_free_sgpr 102\n  .amdhsa_accum_offset 256\n  .amdhsa_group_segment_fixed_size 0\n  .amdhsa_kernarg_size 96')
    A('  .amdhsa_user_sgpr_count 2\n  .amdhsa_user_sgpr_kernarg_segment_ptr 1\n  .amdhsa_system_sgpr_workgroup_id_x 1')
    A('  .amdhsa_float_denorm_mode_32 3\n  .amdhsa_float_denorm_mode_16_64 3')
    A('.end_amdhsa_kernel')
    return '\n'.join(L)+'\n'

if __name__=='__main__':
    cfg=Cfg()
    out=sys.argv[1]
    for a in sys.argv[2:]:
        k,v=a.split('=',1); setattr(cfg,k,eval(v))
    s=gen(cfg)
    hdr=''.join(l for l in open('cdna_kernels/%s.s.ref'%NAME).readlines()[:13])
    open(out,'w').write(hdr+s)
```

```python
import sys
NAME='sequential_preLN__gqa_block_cached__geglu_ffn__decode'
K=NAME+'_kernel'

class Cfg:
    diag=False
    leak=None
    nocomp=False
    noq=False
    T2=12
    Q1=0; Q2=0
    E1=2; E2=0; lrot=True; helper=False
    T0=None; n0=24
    qflag=True
    chunk=0
    bare=0
    notail=False
    knat=False
    cdbg=False
    ctouch=None
    rot=4
    cs=9
    nowq=False
    noqst=False
    nH=8; nA=8
    pW=('c',1,0); pR=('m',8,1); pF=('c',1,0); pG=('c',1,0)
    tdiag=False
    tsleep=0
    crot=0
    noclr=False
    wolate=False
    warm=False
    of=''
    gleak=None
    NS=28
    sflag=False
    svcfirst=True
    spin=1<<17
    T=5
    kf='nt'; vf='nt'; wf='nt'; ff=''
    pq=3
    pw0=7
    pw1=22
    noW=False

QP=0x0
CTR=0x230000
FLG=0x80000
CLR=0x100000
WP=0x100000
OP=0x180000
OPS=640
HB=0x240000
AB=0x260000
STAMP=0x10000000
L_CNT=0
L_MLW=64
L_QL=256
L_XN=1280
XNS=1040
L_XO=9600
XOS=272
L_DP=11776
L_OW=19968
L_ST=28160
L_PR=28416
L_WB=29696
L_WA=L_WB+16384
LDS_BYTES=L_WA+65536

LOG2E=0x3fb8aa3b
SCALE=0x3db504f3

def gen(cfg):
    L=[]
    def A(s):
        L.extend(s.split('\n'))
    lab=[0]
    def newlab(p):
        lab[0]+=1
        return 'L_%s_%d'%(p,lab[0])
    X,KP,VP,WQ,WO,BX,WG,WU,WD,OUT,DBG,WS=['s[%d:%d]'%(16+2*i,17+2*i) for i in range(12)]
    def stamp(i):
        if cfg.diag: A('s_memrealtime s[%d:%d]'%(72+2*i,73+2*i))
    def tstamp(i):
        if cfg.tdiag: stamp(i)
    def pack_stamps(n,vt):
        A('s_waitcnt lgkmcnt(0)')
        A('v_mov_b32 v%d, 0'%vt)
        for i in range(n): A('v_writelane_b32 v%d, s%d, %d'%(vt,72+2*i,i))
    def dump_stamps(n,vt):
        if not cfg.diag: return
        A('s_mov_b64 exec, -1')
        pack_stamps(n,vt)
        A('v_lshlrev_b32 v%d, 2, v0'%(vt+1))
        A('ds_read_b32 v%d, v%d offset:%d'%(vt+2,vt+1,L_ST))
        A('s_lshl_b32 s66, s2, 9\ns_add_u32 s66, s66, %d'%(STAMP))
        A('v_add_u32 v%d, s66, v%d'%(vt+1,vt+1))
        A('s_mov_b64 exec, 0xffff')
        A('s_waitcnt lgkmcnt(0)')
        A('global_store_dword v%d, v%d, %s'%(vt+1,vt+2,WS))
        A('s_lshl_b32 s66, s53, 6\nv_add_u32 v%d, s66, v%d'%(vt+1,vt+1))
        A('global_store_dword v%d, v%d, %s offset:64'%(vt+1,vt,WS))

    A('; @launch grid=(256,1,1) block=(512,1,1) lds=%d'%LDS_BYTES)
    A('.amdgcn_target "amdgcn-amd-amdhsa--gfx950"\n.text\n.globl %s\n.p2align 8\n.type %s,@function\n%s:'%(K,K,K))
    A('s_cmp_ge_u32 s2, 256\ns_cbranch_scc1 L_end')
    A('s_load_dwordx16 s[16:31], s[0:1], 0')
    A('s_load_dwordx8 s[32:39], s[0:1], 64')
    if cfg.diag:
        for i in range(1,14): A('s_mov_b32 s%d, 0'%(72+2*i))
    stamp(0)
    A('v_lshrrev_b32 v1, 6, v0')
    A('v_lshlrev_b32 v3, 2, v0')
    A('v_and_b32 v0, 63, v0')
    A('v_readfirstlane_b32 s52, v1')
    A('s_and_b32 s48, s2, 7\ns_lshr_b32 s49, s2, 3\ns_lshl_b32 s50, s49, 1\ns_bfe_u32 s54, s2, 0x10001\ns_or_b32 s50, s50, s54')
    A('s_and_b32 s51, s2, 1\ns_bfe_u32 s54, s2, 0x10002\ns_lshl_b32 s54, s54, 1\ns_or_b32 s51, s51, s54')
    A('s_mov_b32 s59, 0x%x\ns_mov_b32 s60, 0xffff0000'%(LOG2E))
    A('v_lshlrev_b32 v1, 4, v0')
    A('s_cmp_ge_u32 s52, 4\ns_cbranch_scc1 L_service')

    import math
    TH=math.ceil(cfg.T)
    NS=cfg.NS
    RB=64
    A('s_lshl_b32 s54, s50, 21')
    A('s_lshl_b32 s62, s51, 2\ns_add_u32 s62, s62, s52')
    for i in range(4): A('s_add_u32 s%d, s62, %d\ns_and_b32 s%d, s%d, 15\ns_lshl_b32 s%d, s%d, 12'%(8+i,cfg.rot*i,8+i,8+i,8+i,8+i))
    A('v_lshrrev_b32 v2, 4, v0\nv_lshlrev_b32 v2, 6, v2\nv_and_b32 v4, 3, v0\nv_lshl_add_u32 v2, v4, 4, v2')
    A('v_bfe_u32 v5, v0, 2, 2\nv_lshl_add_u32 v2, v5, 8, v2')
    if cfg.knat: A('v_mov_b32 v2, v1')
    A('s_mov_b32 s42, 0x200000\ns_mov_b32 s43, 0x20000\ns_mov_b32 s46, 0x200000\ns_mov_b32 s47, 0x20000')
    A('v_mov_b32 v30, 0')
    A('s_waitcnt lgkmcnt(0)')
    A('s_add_u32 s40, s18, s54\ns_addc_u32 s41, s19, 0\ns_and_b32 s41, s41, 0xffff')
    A('s_add_u32 s44, s20, s54\ns_addc_u32 s45, s21, 0\ns_and_b32 s45, s45, 0xffff')
    st={'n':0}
    def adv():
        if cfg.rot: A('s_add_u32 s68, s62, %d\ns_and_b32 s68, s68, 15\ns_andn2_b32 s62, s62, 15\ns_add_u32 s62, s62, 16\ns_or_b32 s62, s62, s68'%cfg.rot)
        else: A('s_add_u32 s62, s62, 16')
    def load(slot,j,throttle=True,th=None):
        if j==0: A('s_lshl_b32 s65, s62, 12')
        if throttle:
            t_=(th or cfg.T); lo=int(t_); fr=t_-lo
            w=lo+(1 if (int((j+1)*fr+1e-9)>int(j*fr+1e-9)) else 0)
            A('s_waitcnt vmcnt(%d)'%(w-1))
        r=RB+slot*32+j*4
        t=j//4
        A('buffer_load_dwordx4 v[%d:%d], %s, %s, s65 offen offset:%d %s'%(r,r+3,'v2' if t==0 else 'v1','s[40:43]' if t==0 else 's[44:47]',(j%4)*1024,cfg.kf if t==0 else cfg.vf))
    def prog(val):
        A('v_mov_b32 v30, %s\nds_write_b32 v3, v30 offset:%d'%(val,L_PR))
    NK=NS//2
    assert NS%2==0 and NK>=10 and NK<=15
    slot_of={u:u for u in range(6)}
    slot_of.update({6:0,7:1,8:2})
    for u in range(9,NS+1): slot_of[u]=(u-9)&1
    tr={'issued':0}
    def sload():
        n=tr['issued']; G=n//8; j=n%8
        tr['issued']=n+1
        if G==NS:
            load(slot_of[G],j,th=cfg.T); return
        t=G//NK; k=2*(G%NK)+j//4
        if j%4==0: A('s_add_u32 s65, s%d, %d'%(8+k%4,k*65536))
        w=cfg.T0 if (cfg.T0 and n<cfg.n0) else TH
        if n>=w: A('s_waitcnt vmcnt(%d)'%(w-1))
        r=RB+slot_of[G]*32+j*4
        A('buffer_load_dwordx4 v[%d:%d], %s, %s, s65 offen offset:%d %s'%(r,r+3,'v2' if t==0 else 'v1','s[40:43]' if t==0 else 's[44:47]',(j%4)*1024,cfg.kf if t==0 else cfg.vf))
        if j==7 and n>=15: prog(G+1)
    def pro_issue(n0,n1):
        assert tr['issued']==n0
        for n in range(n0,n1): sload()
    if cfg.svcfirst: A('s_barrier')
    pro_issue(0,TH)
    A('ds_write_b32 v3, v30 offset:%d'%L_PR)
    A('s_mov_b32 s56, 0x05040100\ns_mov_b32 s57, 0x07060302\ns_mov_b32 s58, 0x%x'%SCALE)
    A('s_lshl_b32 s54, s50, %d\ns_add_u32 s54, s54, %d\ns_add_u32 s66, s38, s54\ns_addc_u32 s67, s39, 0'%(cfg.cs,CTR))
    if cfg.cdbg: A('s_lshl_b32 s54, s50, 9\ns_add_u32 s54, s54, 4096\ns_add_u32 s66, s36, s54\ns_addc_u32 s67, s37, 0')
    A('s_lshl_b32 s55, s52, 11')
    A('v_lshlrev_b32 v4, 9, v4\nv_and_b32 v0, 0x30, v0\nv_add3_u32 v0, v4, v0, s55')
    A('v_mov_b32 v14, 0xff800000')
    A('s_waitcnt lgkmcnt(0)')
    A('s_barrier')
    pro_issue(TH,48)
    stamp(1)
    if cfg.qflag:
        A('v_mov_b32 v31, 0\nL_qw:\nds_read_b32 v15, v31 offset:%d\ns_waitcnt lgkmcnt(0)\nv_readfirstlane_b32 s54, v15\ns_cmp_eq_u32 s54, 0\ns_cbranch_scc1 L_qw'%(L_CNT+16))
    else: A('s_barrier')
    A('ds_read_b128 v[4:7], v1 offset:%d'%L_QL)
    stamp(2)
    A('s_waitcnt lgkmcnt(0)')
    def kpart(slot,fill):
        B=RB+slot*32
        f=list(fill)
        def nxt():
            if f: f.pop(0)()
        D=[20,B,B+4,B+8]
        if cfg.nocomp:
            while f: nxt()
            return
        for i in range(4):
            A('v_mfma_f32_16x16x32_bf16 v[%d:%d], v[%d:%d], v[4:7], 0'%(D[i],D[i]+3,B+4*i,B+4*i+3))
        A('s_nop 7')
        for h in range(2):
            for step in range(3):
                for e in range(2):
                    be=2*e+h
                    S=18+e
                    A('v_add_f32_dpp v%d, v%d, v%d row_ror:%d row_mask:0xf bank_mask:0x%x'%(S,D[be]+((be+step+1)&3),(D[be]+be) if step==0 else S,12-4*step,1<<be))
                A('s_nop 0')
        nxt()
        A('s_nop 0')
        A('v_mov_b32_dpp v18, v19 quad_perm:[0,1,2,3] row_mask:0xf bank_mask:0xc')
        A('v_cvt_pk_bf16_f32 v18, 0, v18\nv_mul_f32 v18, s58, v18\nv_cvt_pk_bf16_f32 v18, 0, v18')
        A('v_max_f32 v15, v14, v18')
        A('s_nop 1\nv_max_f32_dpp v15, v15, v15 row_ror:4 row_mask:0xf bank_mask:0xf')
        A('s_nop 1\nv_max_f32_dpp v15, v15, v15 row_ror:8 row_mask:0xf bank_mask:0xf')
        A('v_mov_b32 v31, v15\ns_nop 1\nv_permlane16_swap_b32 v15, v31\nv_max_f32 v15, v15, v31')
        A('v_mov_b32 v31, v15\ns_nop 1\nv_permlane32_swap_b32 v15, v31\nv_max_f32 v15, v15, v31')
        nxt()
        A('v_sub_f32 v16, v14, v15\nv_sub_f32 v18, v18, v15\nv_cmp_neq_f32 vcc, v14, v15\nv_mul_f32 v16, s59, v16\nv_mul_f32 v18, s59, v18')
        A('v_exp_f32 v16, v16\nv_exp_f32 v18, v18\nv_mov_b32 v14, v15\nv_mul_f32 v17, s59, v15')
        A('v_mov_b32_dpp v19, v18 row_ror:12 row_mask:0xf bank_mask:0xf')
        A('v_cvt_pk_bf16_f32 v8, v18, v19')
        l=newlab('nr')
        A('s_cbranch_vccz %s'%l)
        for r in range(32,64,2):
            A('v_pk_mul_f32 v[%d:%d], v[%d:%d], v[16:17] op_sel_hi:[1,0]'%(r,r+1,r,r+1))
        A('v_mul_f32 v24, v24, v16')
        A('%s:'%l)
        A('s_nop 0')
        A('v_mov_b32_dpp v9, v8 row_ror:8 row_mask:0xf bank_mask:0xf')
        while f: nxt()
    def vpart(slot):
        B=RB+slot*32+16
        if cfg.nocomp: return
        def perms(j):
            Tt=10+2*(j&1)
            for ii in range(2):
                A('v_perm_b32 v%d, v%d, v%d, s%d'%(Tt+ii,B+4*(2*ii+1)+(j>>1),B+4*(2*ii)+(j>>1),56+(j&1)))
        perms(0)
        for j in range(8):
            if j<7: perms(j+1)
            else: A('v_mfma_f32_16x16x16_bf16 v[24:27], v[28:29], v[8:9], v[24:27]')
            Tt=10+2*(j&1)
            A('v_mfma_f32_16x16x16_bf16 v[%d:%d], v[%d:%d], v[8:9], v[%d:%d]'%(32+4*j,35+4*j,Tt,Tt+1,32+4*j,35+4*j))
    SC=[8,9,10,11,12,13,20,21,22,23,25,26,27,28,29][:NK]
    RV=RB+5*32; TV=RV+4
    def need(n):
        rem=tr['issued']-n
        assert rem>=0
        if rem<TH: A('s_waitcnt vmcnt(%d)'%rem)
    def spread(chunks,nl):
        m=len(chunks)
        for i,c in enumerate(chunks):
            if not cfg.nocomp: A(c)
            for _ in range((nl*(i+1))//m-(nl*i)//m): sload()
    def kgroup(G):
        B=RB+slot_of[G]*32
        ch=['\n'.join('v_mfma_f32_16x16x32_bf16 v[%d:%d], v[%d:%d], v[4:7], 0'%(32+4*i,35+4*i,B+4*i,B+4*i+3) for i in range(8))+'\ns_nop 1']
        for be in range(4):
            c=[]
            for step in range(3):
                for e in range(2):
                    D=32+4*(2*be+e); S=18+e
                    c.append('v_add_f32_dpp v%d, v%d, v%d row_ror:%d row_mask:0xf bank_mask:0x%x'%(S,D+((be+step+1)&3),(D+be) if step==0 else S,12-4*step,1<<be))
                c.append('s_nop 0')
            ch.append('\n'.join(c))
        ch[-1]+='\nv_cvt_pk_bf16_f32 v15, 0, v18\nv_cvt_pk_bf16_f32 v16, 0, v19\nv_mul_f32 v15, s58, v15\nv_mul_f32 v16, s58, v16'
        ch[-1]+='\nv_cvt_pk_bf16_f32 v%d, v15, v16\nv_cvt_pk_bf16_f32 v15, 0, v15\nv_cvt_pk_bf16_f32 v16, 0, v16\nv_max3_f32 v14, v14, v15, v16'%SC[G]
        return ch
    def wred(op,r):
        return ('s_nop 1\n%s_dpp v%d, v%d, v%d row_ror:4 row_mask:0xf bank_mask:0xf\ns_nop 1\n%s_dpp v%d, v%d, v%d row_ror:8 row_mask:0xf bank_mask:0xf\n'%(op,r,r,r,op,r,r,r)+
                'v_mov_b32 v31, v%d\ns_nop 1\nv_permlane16_swap_b32 v%d, v31\n%s v%d, v%d, v31\n'%(r,r,op,r,r)+
                'v_mov_b32 v31, v%d\ns_nop 1\nv_permlane32_swap_b32 v%d, v31\n%s v%d, v%d, v31'%(r,r,op,r,r))
    def softmax():
        ch=[wred('v_max_f32',14)+'\nv_mul_f32 v17, s59, v14\nv_mov_b32 v24, 0']
        for g in range(NK):
            ch.append('v_lshlrev_b32 v18, 16, v%d\nv_and_b32 v19, s60, v%d\nv_sub_f32 v18, v18, v14\nv_sub_f32 v19, v19, v14\nv_mul_f32 v18, s59, v18\nv_mul_f32 v19, s59, v19\n'%(SC[g],SC[g])+
                      'v_exp_f32 v18, v18\nv_exp_f32 v19, v19\ns_nop 0\nv_cvt_pk_bf16_f32 v%d, v18, v19\nv_add_f32 v24, v24, v18\nv_add_f32 v24, v24, v19'%SC[g])
        ch.append(wred('v_add_f32',24))
        return ch
    def vgroup(G):
        B=RB+slot_of[G]*32; P=SC[G-NK]
        def perms(j):
            Tt=TV+4*(j&1)
            return '\n'.join('v_perm_b32 v%d, v%d, v%d, s%d'%(Tt+ii,B+4*(2*ii+1)+(j>>1),B+4*(2*ii)+(j>>1),56+(j&1)) for ii in range(4))
        c0='v_mov_b32 v%d, v%d\n'%(RV,P)+'\n'.join('v_mov_b32_dpp v%d, v%d row_ror:%d row_mask:0xf bank_mask:0xf'%(RV+r,P,16-4*r) for r in range(1,4))+'\n'+perms(0)
        ch=[c0]
        for j in range(8):
            Tt=TV+4*(j&1); acc='v[%d:%d]'%(32+4*j,35+4*j)
            ch.append((perms(j+1) if j<7 else 's_nop 1')+'\nv_mfma_f32_16x16x32_bf16 %s, v[%d:%d], v[%d:%d], %s'%(acc,Tt,Tt+3,RV,RV+3,'0' if G==NK else acc))
        return ch
    def request():
        if not cfg.chunk:
            A('s_mov_b32 s63, 1\ns_atomic_add s63, s[66:67], 0x0 glc'); return
        la=newlab('ra'); lb=newlab('rb')
        A('s_cmp_eq_u32 s69, 0\ns_cbranch_scc1 %s'%la)
        A('s_mov_b32 s69, 0\ns_sub_u32 s63, s62, %d\ns_branch %s'%(NS*16,lb))
        A('%s:'%la)
        A('s_cmp_lt_u32 s62, %d\ns_cselect_b32 s69, 1, 0\ns_add_u32 s63, s69, 1\ns_atomic_add s63, s[66:67], 0x0 glc'%(512-cfg.chunk))
        A('%s:'%lb)
    for G in range(9):
        need(8*G+8)
        spread(kgroup(G),[4,4,4,4,4,4,3,2,3][G])
    assert tr['issued']==80
    stamp(3)
    for G in range(9,NS):
        if G==NS-2:
            A('v_mov_b32 v31, 0\nL_cw:\nds_read_b32 v15, v31 offset:%d\ns_waitcnt lgkmcnt(0)\nv_readfirstlane_b32 s54, v15\ns_cmp_eq_u32 s54, 0\ns_cbranch_scc1 L_cw'%(L_CNT+8))
            stamp(4)
            A('s_mov_b32 s63, %d\ns_atomic_add s63, s[66:67], 0x0 glc\ns_mov_b32 s69, %d'%((2,1) if cfg.chunk else (1,0)))
        if G==NS-1:
            A('s_waitcnt lgkmcnt(0)\ns_add_u32 s62, s63, %d'%(NS*16+1))
            A('s_cmp_ge_u32 s62, 512\ns_cbranch_scc1 L_nrq'); request(); A('L_nrq:')
        lead=min(TH,8)
        if G==NK: spread(softmax(),lead)
        else:
            for _ in range(lead): sload()
        need(8*G+8)
        ch=kgroup(G) if G<NK else vgroup(G)
        spread(ch[:-1],8-lead); spread(ch[-1:],0)
    A('s_cmp_ge_u32 s62, 512\ns_cbranch_scc1 L_sdone')
    A('v_mov_b32 v28, 0x3f803f80\nv_mov_b32 v29, 0x3f803f80\nv_mov_b32 v25, 0\nv_mov_b32 v26, 0\nv_mov_b32 v27, 0')
    A('s_waitcnt lgkmcnt(0)\ns_add_u32 s62, s63, %d'%(NS*16+1))
    A('s_mov_b32 s64, %d'%(NS+1))
    def body(c,th):
        for j in range(4): load(1-c,j,th=th)
        if th>8: A('s_waitcnt vmcnt(8)')
        kpart(c,[(lambda j=j: load(1-c,j,th=th)) for j in range(4,8)])
        if th>8: A('s_waitcnt vmcnt(8)')
        vpart(c)
    A('L_dyn:')
    for c in (slot_of[NS],1-slot_of[NS]):
        ls=newlab('st'); lc=newlab('sc')
        if cfg.diag: A('s_add_u32 s64, s64, 1')
        A('s_cmp_ge_u32 s62, 512\ns_cbranch_scc1 %s'%ls)
        request()
        A('%s:'%ls)
        body(c,cfg.T2 or cfg.T)
        A('s_cmp_ge_u32 s62, 512\ns_cbranch_scc1 L_sdone')
        A('s_waitcnt lgkmcnt(0)')
        A('s_add_u32 s62, s63, %d'%(NS*16+1))
    A('s_branch L_dyn')
    A('L_sdone:')
    A('s_mov_b32 exec_lo, 0x000f000f\ns_mov_b32 exec_hi, 0x000f000f')
    stamp(5)
    A('s_lshl_b32 s55, s52, 2\nv_and_b32 v31, 0x30, v1\nv_lshl_add_u32 v31, v31, 1, s55')
    for j in range(8):
        A('ds_write_b128 v0, v[%d:%d] offset:%d'%(32+4*j,35+4*j,L_OW+64*j))
    A('ds_write2_b32 v31, v17, v24 offset0:%d offset1:%d'%(L_MLW//4,L_MLW//4+4))
    if cfg.diag:
        A('s_mov_b64 exec, -1')
        A('s_cmp_lg_u32 s52, 0\ns_cbranch_scc1 L_nost')
        pack_stamps(6,8)
        A('v_writelane_b32 v8, s64, 8')
        A('ds_write_b32 v3, v8 offset:%d'%L_ST)
        A('L_nost:')
    A('s_waitcnt lgkmcnt(0)')
    A('s_barrier')
    A('s_endpgm')

    A('L_service:')
    if cfg.bare:
        A('s_sub_u32 s53, s52, 4\nv_mov_b32 v11, 0\nv_mov_b32 v12, 1\nv_mov_b32 v40, -1\nv_mov_b32 v41, -1\nv_mov_b32 v42, -1\nv_mov_b32 v43, -1\ns_waitcnt lgkmcnt(0)')
        if cfg.bare&2:
            A('s_lshl_b32 s54, s2, 2\ns_add_u32 s54, s54, s53\ns_mul_i32 s54, s54, 640\ns_add_u32 s54, s54, %d\nv_add_u32 v6, s54, v1\ns_mov_b32 exec_hi, 0xff\nglobal_store_dwordx4 v6, v[40:43], %s sc1\ns_mov_b64 exec, -1'%(CLR+0x100000,WS))
        if cfg.bare&4:
            A('global_load_dwordx4 v[32:35], v1, %s'%X)
        if cfg.bare&8:
            A('v_mov_b32 v6, s2\ns_mov_b64 exec, 1\nglobal_store_byte v6, v12, %s sc1\ns_mov_b64 exec, -1'%DBG)
        A('ds_write_b32 v11, v12 offset:%d\ns_waitcnt lgkmcnt(0)\ns_barrier\ns_barrier'%(L_CNT+8))
        if cfg.bare&16:
            A('v_lshlrev_b32 v7, 2, v0\nglobal_load_dword v13, v7, %s sc1'%DBG)
        A('s_barrier\ns_endpgm')
    A('s_setprio 3')
    A('s_sub_u32 s53, s52, 4')
    A('s_lshl_b32 s66, s53, 12')
    A('s_mov_b32 s3, %d'%FLG)
    A('s_lshr_b32 s68, s49, 3\ns_and_b32 s69, s49, 7')
    A('v_lshrrev_b32 v2, 5, v0\ns_lshl_b32 s54, s53, 1\nv_add_u32 v2, s54, v2')
    A('v_and_b32 v3, 31, v0\nv_lshlrev_b32 v3, 4, v3')
    A('v_lshl_add_u32 v4, v2, 10, v3')
    A('s_lshl_b32 s54, s68, 7\ns_lshl_b32 s55, s53, 5\ns_add_u32 s54, s54, s55')
    A('v_lshrrev_b32 v6, 3, v0\nv_add_u32 v6, s54, v6\nv_lshlrev_b32 v6, 13, v6')
    A('v_and_b32 v7, 7, v0\nv_lshl_add_u32 v6, v7, 4, v6')
    A('s_lshl_b32 s54, s48, 10\ns_lshl_b32 s55, s69, 7\ns_add_u32 s54, s54, s55\nv_add_u32 v6, s54, v6')
    A('s_lshl_b32 s54, s48, 2\ns_add_u32 s54, s54, s68\ns_lshl_b32 s54, s54, 11\ns_lshl_b32 s55, s69, 8\ns_add_u32 s54, s54, s55\ns_lshl_b32 s55, s53, 6\ns_add_u32 s54, s54, s55')
    A('v_lshlrev_b32 v14, 16, v7\nv_and_b32 v15, 0x30, v0\nv_add3_u32 v14, v14, v15, s54')
    A('v_mov_b32 v40, -1\nv_mov_b32 v41, -1\nv_mov_b32 v42, -1\nv_mov_b32 v43, -1')
    A('s_add_u32 m0, s66, %d'%L_WA)
    A('v_lshrrev_b32 v44, 1, v0\nv_lshlrev_b32 v44, 9, v44\nv_and_b32 v45, 16, v1\nv_add3_u32 v79, v44, v45, %s'%'s3')
    A('v_mov_b32 v44, 0\nv_mov_b32 v45, 0\nv_mov_b32 v46, 0\nv_mov_b32 v47, 0\nv_mov_b32 v11, 0\nv_mov_b32 v12, 1')
    A('s_lshl_b32 s12, s2, 2\ns_add_u32 s12, s12, s53')
    A('s_waitcnt lgkmcnt(0)')
    A('s_cmp_lg_u32 s12, 3\ns_cbranch_scc1 L_nolead')
    A('global_store_dwordx4 v79, v[44:47], %s sc1'%WS)
    A('L_nolead:')
    A('global_load_dwordx4 v[32:35], v4, %s'%X)
    A('global_load_dwordx4 v[36:39], v4, %s offset:512'%X)
    if cfg.nowq: A('s_mov_b64 exec, 1')
    for i in range(4):
        if i: A('s_add_u32 m0, s66, %d\nv_add_u32 v6, 0x10000, v6'%(L_WA+i*1024))
        A('global_load_lds_dwordx4 v6, %s %s'%(WQ,cfg.wf))
    A('s_mov_b32 exec_lo, 0x00ff00ff\ns_mov_b32 exec_hi, 0x00ff00ff')
    if cfg.noqst: A('s_mov_b64 exec, 1')
    A('global_store_dwordx4 v14, v[40:43], %s sc1'%WS)
    A('s_mov_b64 exec, -1')
    if cfg.svcfirst==1: A('s_barrier')
    A('s_lshl_b32 s54, s2, 12\ns_lshl_b32 s55, s53, 10\ns_add_u32 s54, s54, s55\ns_add_u32 s54, s54, %d'%CLR)
    A('v_add_u32 v6, s54, v1')
    if cfg.noclr: A('s_mov_b64 exec, 1')
    A('global_store_dwordx4 v6, v[40:43], %s sc1'%WS)
    if cfg.noclr: A('s_mov_b64 exec, -1')
    A('s_lshl_b32 s54, s2, 2\ns_add_u32 s54, s54, s53\ns_mul_i32 s54, s54, 640\ns_add_u32 s54, s54, %d'%(CLR+0x100000))
    A('v_add_u32 v6, s54, v1')
    A('s_mov_b32 exec_hi, 0xff')
    A('global_store_dwordx4 v6, v[40:43], %s sc1'%WS)
    A('s_mov_b64 exec, -1')
    if cfg.svcfirst==2: A('s_barrier')
    A('ds_write_b128 v11, v[44:47] offset:%d\nds_write_b128 v11, v[44:47] offset:%d'%(L_CNT,L_CNT+16))
    A('v_mul_u32_u24 v5, %d, v2\nv_add_u32 v5, v5, v3'%XNS)
    A('v_lshrrev_b32 v8, 4, v0\nv_lshlrev_b32 v8, 10, v8\nv_bfe_u32 v9, v0, 2, 2\nv_lshl_add_u32 v8, v9, 7, v8\nv_and_b32 v9, 3, v0\nv_lshl_add_u32 v8, v9, 3, v8')
    A('s_lshl_b32 s54, s53, 5\nv_add_u32 v8, s54, v8')
    A('v_mul_u32_u24 v9, %d, v7\nv_add_u32 v9, v9, v15\ns_lshl_b32 s54, s68, 8\nv_add_u32 v10, s54, v9'%XNS)
    A('s_lshl_b32 s54, s53, 8\nv_mov_b32 v31, s54')
    A('s_waitcnt lgkmcnt(0)')
    A('s_barrier')

    def dppadd(r,ctl):
        A('s_nop 1\nv_add_f32_dpp v%d, v%d, v%d %s row_mask:0xf bank_mask:0xf'%(r,r,r,ctl))
    def swapadd(r,t,w):
        A('v_mov_b32 v%d, v%d\ns_nop 1\nv_permlane%d_swap_b32 v%d, v%d\nv_add_f32 v%d, v%d, v%d'%(t,r,w,r,t,r,r,t))
    def rbf(r):
        A('v_cvt_pk_bf16_f32 v%d, 0, v%d'%(r,r))
    def layernorm(mode):
        if mode=='x':
            for i in range(8):
                A('v_lshlrev_b32 v%d, 16, v%d\nv_and_b32 v%d, s60, v%d'%(48+2*i,32+i,49+2*i,32+i))
        Q=lambda i:'v[%d:%d]'%(48+2*i,49+2*i)
        P=Q if mode=='x' else (lambda i:'v[%d:%d]'%(216+2*i,217+2*i))
        A('v_pk_add_f32 v[64:65], %s, %s\nv_pk_mul_f32 v[66:67], %s, %s'%(P(0),P(1),P(0),P(0)))
        A('v_pk_add_f32 v[68:69], %s, %s\nv_pk_mul_f32 v[70:71], %s, %s'%(P(2),P(3),P(1),P(1)))
        for i in range(2,8,2):
            if i>2: A('v_pk_add_f32 v[64:65], v[64:65], %s'%P(i))
            A('v_pk_fma_f32 v[66:67], %s, %s, v[66:67]'%(P(i),P(i)))
            if i>2: A('v_pk_add_f32 v[68:69], v[68:69], %s'%P(i+1))
            A('v_pk_fma_f32 v[70:71], %s, %s, v[70:71]'%(P(i+1),P(i+1)))
        A('v_pk_add_f32 v[64:65], v[64:65], v[68:69]\nv_pk_add_f32 v[66:67], v[66:67], v[70:71]')
        A('v_add_f32 v64, v64, v65\nv_add_f32 v66, v66, v67')
        ctl=['row_ror:1','row_ror:2','row_ror:4','row_ror:8'] if mode=='x' else ['quad_perm:[1,0,3,2]','quad_perm:[2,3,0,1]','row_ror:8']
        for c in ctl:
            A('s_nop 0')
            for r in (64,66): A('v_add_f32_dpp v%d, v%d, v%d %s row_mask:0xf bank_mask:0xf'%(r,r,r,c))
        for w in ((16,) if mode=='x' else (16,32)):
            A('v_mov_b32 v65, v64\nv_mov_b32 v67, v66\ns_nop 0')
            A('v_permlane%d_swap_b32 v64, v65\nv_permlane%d_swap_b32 v66, v67'%(w,w))
            A('v_add_f32 v64, v64, v65\nv_add_f32 v66, v66, v67')
        A('v_mul_f32 v64, 0xbb000000, v64\nv_mul_f32 v66, 0x3b000000, v66')
        A('v_cvt_pk_bf16_f32 v68, 0, v64')
        chain=['v_fma_f32 v66, -v64, v64, v66','v_max_f32 v66, 0, v66','v_cvt_pk_bf16_f32 v66, 0, v66','v_add_f32 v66, 0x3727c5ac, v66',
               'v_cvt_pk_bf16_f32 v66, 0, v66','v_sqrt_f32 v66, v66','v_cvt_pk_bf16_f32 v66, 0, v66','v_rcp_f32 v66, v66']
        for i in range(8):
            A(chain[i])
            A('v_pk_add_f32 %s, %s, v[68:69] op_sel_hi:[1,0]'%(Q(i),P(i)))
        for i in range(16): A('v_cvt_pk_bf16_f32 v%d, 0, v%d'%(48+i,48+i))
        nw=2 if mode=='h' else 4
        for i in range(8):
            A('v_pk_mul_f32 %s, %s, v[66:67] op_sel_hi:[1,0]'%(Q(i),Q(i)))
        for i in range(8):
            A('v_cvt_pk_bf16_f32 v%d, v%d, v%d'%(32+i,48+2*i,49+2*i))
            if mode=='h' and i%2==1: A('ds_write_b64 v5, v[%d:%d] offset:%d'%(31+i,32+i,L_XN+256*(i//2)))
            if mode=='x' and i%4==3: A('ds_write_b128 v5, v[%d:%d] offset:%d'%(29+i,32+i,L_XN+512*(i//4)))
    def lds_sync(cnt,sleep=0):
        l=newlab('ls')
        A('s_waitcnt lgkmcnt(0)')
        A('s_mov_b64 exec, 1\nds_add_u32 v11, v12 offset:%d\ns_mov_b64 exec, -1'%(L_CNT+4*cnt))
        lds_wait(11,L_CNT+4*cnt,4,sleep)
    def lds_wait(va,off,val,sleep):
        l=newlab('lw'); d=newlab('ld')
        A('%s:'%l)
        A('ds_read_b32 v13, v%d offset:%d\ns_waitcnt lgkmcnt(0)\nv_readfirstlane_b32 s54, v13\ns_cmp_ge_u32 s54, %s'%(va,off,val))
        if sleep: A('s_cbranch_scc1 %s\ns_sleep %d\ns_branch %s\n%s:'%(d,sleep,l,d))
        else: A('s_cbranch_scc0 %s'%l)
    def progress(p): lds_wait(31,L_PR,p,6)
    def poll(loads,regs,sleep=0,guard=False):
        l=newlab('pl'); d=newlab('pd')
        if guard: sleep=cfg.tsleep
        A('s_mov_b32 s61, %d'%cfg.spin)
        A('%s:'%l)
        for x in loads: A(x)
        import re as _re
        first=True; pend=[]
        for i,x in enumerate(loads):
            m=_re.search(r'v\[(\d+):(\d+)\]',x)
            pend+=list(range(int(m.group(1)),int(m.group(2))+1))
            last=(i==len(loads)-1)
            if len(pend)<4 and not last: continue
            A('s_waitcnt vmcnt(%d)'%(len(loads)-1-i))
            while pend:
                if first:
                    if len(pend)>=3: A('v_max3_u32 v13, v%d, v%d, v%d'%tuple(pend[:3])); pend=pend[3:]
                    else: A('v_max_u32 v13, v%d, v%d'%tuple(pend[:2])); pend=pend[2:]
                    first=False
                elif len(pend)>=2: A('v_max3_u32 v13, v13, v%d, v%d'%tuple(pend[:2])); pend=pend[2:]
                elif last: A('v_max_u32 v13, v13, v%d'%pend[0]); pend=[]
                else: break
        A('v_cmp_eq_u32 vcc, -1, v13')
        A('s_cbranch_vccz %s'%d)
        if sleep: A('s_sleep %d'%sleep)
        A('s_sub_u32 s61, s61, 1\ns_cmp_lg_u32 s61, 0\ns_cbranch_scc1 %s'%l)
        A('%s:'%d)
    def apoll(loads,par):
        import re as _re
        mode,D,sleep=par
        l=newlab('al'); d=newlab('ad'); gl=newlab('ag')
        rg=[]
        for x in loads:
            m=_re.search(r'v\[(\d+):(\d+)\]',x); rg.append(list(range(int(m.group(1)),int(m.group(2))+1)))
        def chain(t,r):
            r=list(r)
            if len(r)==2: A('v_max_u32 v%d, v%d, v%d'%(t,r[0],r[1])); return
            A('v_max3_u32 v%d, v%d, v%d, v%d'%(t,r[0],r[1],r[2])); r=r[3:]
            while r:
                if len(r)==1: A('v_max_u32 v%d, v%d, v%d'%(t,t,r[0])); r=[]
                else: A('v_max3_u32 v%d, v%d, v%d, v%d'%(t,t,r[0],r[1])); r=r[2:]
        n=len(loads)
        A('s_mov_b32 s61, %d'%cfg.spin)
        if mode in 'cm':
            A('%s:'%l)
            for x in loads: A(x)
            if sleep: A('s_sleep %d'%sleep)
            A('s_waitcnt vmcnt(%d)'%min(63,n*(D-1)))
            chain(13,sum(rg,[]))
            A('v_cmp_eq_u32 vcc, -1, v13')
            A('s_cbranch_vccz %s'%d)
            if mode=='m': A('s_mov_b64 exec, vcc')
            A('s_sub_u32 s61, s61, 1\ns_cmp_lg_u32 s61, 0\ns_cbranch_scc1 %s'%l)
            A('%s:'%d)
            if mode=='m': A('s_mov_b64 exec, s[4:5]')
        else:
            mk=['s[6:7]','s[8:9]','s[10:11]','s[40:41]','s[42:43]','s[44:45]','s[46:47]','s[62:63]'][:n]
            for m_ in mk: A('s_mov_b64 %s, s[4:5]'%m_)
            A('%s:'%l)
            for x,m_ in zip(loads,mk):
                sk=newlab('as')
                A('s_mov_b64 exec, %s\ns_cbranch_execz %s'%(m_,sk)); A(x); A('%s:'%sk)
            A('s_mov_b64 exec, s[4:5]')
            if sleep: A('s_sleep %d'%sleep)
            A('s_waitcnt vmcnt(%d)'%min(63,n*(D-1)))
            for i in range(n): chain(246+i,rg[i])
            chain(13,[246+i for i in range(n)])
            A('v_cmp_eq_u32 vcc, -1, v13')
            A('s_cbranch_vccz %s'%d)
            for i in range(n): A('v_cmp_eq_u32 %s, -1, v%d'%(mk[i],246+i))
            A('s_sub_u32 s61, s61, 1\ns_cmp_lg_u32 s61, 0\ns_cbranch_scc1 %s'%l)
            A('%s:'%d)
    def flagpoll(voff,execmask):
        l=newlab('fl'); d=newlab('fd')
        A('s_mov_b32 s61, %d'%cfg.spin)
        A('s_mov_b64 exec, %s'%execmask)
        A('%s:'%l)
        A('global_load_dwordx4 v[72:75], v%d, %s sc1\ns_waitcnt vmcnt(0)'%(voff,WS))
        A('v_min3_u32 v13, v72, v73, v74\nv_min_u32 v13, v13, v75\nv_cmp_eq_u32 vcc, 0, v13\ns_cbranch_vccz %s'%d)
        A('s_sleep 16')
        A('s_sub_u32 s61, s61, 1\ns_cmp_lg_u32 s61, 0\ns_cbranch_scc1 %s'%l)
        A('%s:'%d)
        A('s_mov_b64 exec, -1')
    def tr128(dst,base):
        for s_ in range(4):
            A('ds_read_b64_tr_b16 v[%d:%d], v8 offset:%d'%(dst+4*s_,dst+4*s_+1,base+4096*s_))
            A('ds_read_b64_tr_b16 v[%d:%d], v8 offset:%d'%(dst+4*s_+2,dst+4*s_+3,base+4096*s_+512))

    A('s_waitcnt vmcnt(7)')
    A('s_cmp_lg_u32 s12, 3\ns_cbranch_scc1 L_nogo')
    A('s_waitcnt vmcnt(0)')
    A('s_mov_b64 exec, 1\nglobal_store_dword v11, v12, %s sc1\ns_mov_b64 exec, -1'%DBG)
    A('L_nogo:')
    stamp(1)
    layernorm('x')
    A('s_waitcnt vmcnt(0)')
    lds_sync(0)
    stamp(2)
    tr128(80,L_WA)
    for s_ in range(4):
        A('ds_read_b128 v[%d:%d], v10 offset:%d'%(32+4*s_,35+4*s_,L_XN+64*s_))
    A('s_waitcnt lgkmcnt(0)')
    for s_ in range(4):
        A('v_mfma_f32_16x16x32_bf16 v[48:51], v[%d:%d], v[%d:%d], %s'%(80+4*s_,83+4*s_,32+4*s_,35+4*s_,'0' if s_==0 else 'v[48:51]'))
    A('s_nop 7')
    for r in range(4): A('v_min_u32 v%d, -2, v%d'%(48+r,48+r))
    A('s_mov_b32 exec_lo, 0x00ff00ff\ns_mov_b32 exec_hi, 0x00ff00ff')
    if cfg.noqst: A('s_mov_b64 exec, 1')
    A('global_store_dwordx4 v14, v[48:51], %s sc1'%WS)
    A('s_mov_b64 exec, -1')
    stamp(3)
    A('s_cmp_lg_u32 s53, 3\ns_cbranch_scc1 L_noflag')
    A('s_lshl_b32 s54, s48, 2\ns_add_u32 s54, s54, s68\ns_lshl_b32 s54, s54, 9\ns_lshl_b32 s55, s69, 2\ns_add_u32 s54, s54, s55\ns_add_u32 s54, s54, s3\nv_mov_b32 v6, s54')
    A('s_mov_b32 s61, %d\ns_mov_b64 exec, 1\nL_go:\nglobal_load_dword v13, v11, %s sc1\ns_waitcnt vmcnt(0)\nv_cmp_eq_u32 vcc, 0, v13\ns_cbranch_vccz L_god'%(cfg.spin,DBG))
    A('s_sleep 8\ns_sub_u32 s61, s61, 1\ns_cmp_lg_u32 s61, 0\ns_cbranch_scc1 L_go\nL_god:')
    A('global_store_dword v6, v12, %s sc1'%WS)
    A('L_noflag:')
    A('s_mov_b64 exec, 1\nds_add_u32 v11, v12 offset:%d\ns_mov_b64 exec, -1'%(L_CNT+12))
    A('s_cmp_lg_u32 s53, %d\ns_cbranch_scc1 L_qdone'%(9 if cfg.noq else 0))
    A('v_and_b32 v6, 3, v0\nv_lshlrev_b32 v6, 9, v6\nv_lshrrev_b32 v14, 2, v0\nv_lshl_add_u32 v6, v14, 5, v6')
    A('s_lshl_b32 s54, s50, 13\ns_add_u32 s54, s54, %d\nv_add_u32 v6, s54, v6'%(QP+3072))
    A('s_and_b32 s54, s50, 7\ns_lshl_b32 s54, s54, 11\nv_add_u32 v7, s54, v79')
    lds_wait(11,L_CNT+12,4,2)
    progress(cfg.pq)
    flagpoll(7,'0xff')
    stamp(4)
    poll(['global_load_dwordx4 v[%d:%d], v6, %s offset:%d sc1'%(32+8*kq+4*h,35+8*kq+4*h,WS,2048*kq+16*h-3072) for kq in range(4) for h in range(2)],list(range(32,64)),sleep=8)
    for p in range(4):
        A('v_pk_add_f32 v[%d:%d], v[%d:%d], v[%d:%d]'%(32+2*p,33+2*p,32+2*p,33+2*p,40+2*p,41+2*p))
        A('v_pk_add_f32 v[%d:%d], v[%d:%d], v[%d:%d]'%(48+2*p,49+2*p,48+2*p,49+2*p,56+2*p,57+2*p))
    for p in range(4):
        A('v_pk_add_f32 v[%d:%d], v[%d:%d], v[%d:%d]'%(32+2*p,33+2*p,32+2*p,33+2*p,48+2*p,49+2*p))
    for p in range(4):
        A('v_cvt_pk_bf16_f32 v%d, v%d, v%d'%(32+p,32+2*p,33+2*p))
    A('ds_write_b128 v1, v[32:35] offset:%d'%L_QL)
    stamp(5)
    A('s_waitcnt lgkmcnt(0)')
    if cfg.qflag: A('ds_write_b32 v11, v12 offset:%d'%(L_CNT+16))
    A('L_qdone:')
    A('s_setprio 0')
    if not cfg.qflag: A('s_barrier')

    A('s_mov_b32 s70, 0\ns_and_b32 s54, s49, 0x13\ns_cmp_eq_u32 s54, s51\ns_cselect_b32 s70, 2, s70')
    A('s_cmp_lt_u32 s48, 4\ns_cselect_b32 s6, 16, 12\ns_cselect_b32 s7, 8, 6\ns_cselect_b32 s8, 0, 8\ns_mul_i32 s14, s48, s7\ns_add_u32 s14, s14, s8')
    if cfg.helper: A('s_and_b32 s54, s49, 0x13\ns_xor_b32 s54, s54, 2\ns_cmp_eq_u32 s54, s51\ns_cselect_b32 s9, s49, 99\ns_cmp_lt_u32 s9, s6\ns_cselect_b32 s70, 4, s70')
    A('s_sub_u32 s54, s49, 16\ns_cmp_lt_u32 s54, s6\ns_cselect_b32 s70, 1, s70')
    A('s_xor_b32 s55, s2, s49\ns_and_b32 s55, s55, 1\ns_cselect_b32 s70, 3, s70')
    A('s_bfe_u32 s54, s49, 0x30001\ns_add_u32 s14, s14, s54')
    A('s_lshr_b32 s15, s49, 2\ns_add_u32 s54, s48, %d\ns_and_b32 s54, s54, 7\ns_lshl_b32 s54, s54, 2\ns_add_u32 s15, s15, s54'%cfg.crot)
    A('s_lshr_b32 s13, s2, 1')
    A('s_lshl_b32 s54, s48, 2\ns_add_u32 s67, s54, s68')
    A('s_bfe_u32 s69, s49, 0x20001')
    A('v_and_b32 v6, 3, v0\nv_lshlrev_b32 v6, 2, v6\nv_lshrrev_b32 v7, 4, v0\nv_add_u32 v6, v6, v7')
    A('v_bfe_u32 v7, v0, 2, 1')
    A('v_lshrrev_b32 v24, 3, v0\nv_lshlrev_b32 v24, 14, v24\nv_and_b32 v13, 0x70, v1\nv_add_u32 v24, v24, v13\ns_mov_b32 s55, s13\ns_lshl_b32 s54, s55, 7\ns_add_u32 s54, s54, %d\nv_add_u32 v24, s54, v24'%HB)
    A('v_lshlrev_b32 v6, 1, v6\nv_lshl_add_u32 v6, v7, 10, v6\ns_lshr_b32 s54, s55, 5\ns_lshl_b32 s54, s54, 11\ns_and_b32 s55, s55, 31\ns_lshl_b32 s55, s55, 5\ns_add_u32 s54, s54, s55\nv_add_u32 v6, s54, v6')
    A('global_load_ushort v16, v6, %s'%X)
    A('s_cmp_lg_u32 s53, 0\ns_cbranch_scc1 L_nofc')
    flagpoll(79,'-1')
    if cfg.ctouch is not None:
        A('s_lshl_b32 s54, s50, %d\ns_add_u32 s54, s54, %d\nv_mov_b32 v7, s54\nglobal_load_dword v13, v7, %s %s\ns_waitcnt vmcnt(0)'%(cfg.cs,CTR,WS,cfg.ctouch))
    A('s_mov_b64 exec, 1\nds_add_u32 v11, v12 offset:%d\ns_mov_b64 exec, -1'%(L_CNT+8))
    A('L_nofc:')
    def paced(k,n,line):
        f=lambda k: cfg.pw0+(k*(cfg.pw1-cfg.pw0))//n
        if k==0 or f(k)!=f(k-1): progress(f(k))
        assert f(k)<cfg.NS
        A(line)
    def dma1(k):
        i=k//2
        return ('v_add_u32 v7, %d, v6\n'%(i*16*3584))+'s_add_u32 m0, s71, %d\ns_nop 0\nglobal_load_lds_dwordx4 v7, %s %s'%(L_WA+32768*(k&1)+i*1024,WU if k&1 else WG,cfg.ff)
    def dma2(i):
        return ('v_add_u32 v7, %d, v6\n'%(i*0x8000))+'s_add_u32 m0, s71, %d\ns_nop 0\nglobal_load_lds_dwordx4 v7, %s %s'%(L_WA+i*1024,WD,cfg.ff)
    l1=newlab('w1'); l2=newlab('w2'); le=newlab('we')
    A('s_cmp_eq_u32 s70, 0\ns_cbranch_scc1 %s\ns_cmp_eq_u32 s70, 2\ns_cbranch_scc1 %s\ns_cmp_lg_u32 s70, 3\ns_cbranch_scc1 %s'%(le,l2,l1))
    A('s_lshl_b32 s54, s67, 7\ns_lshl_b32 s55, s53, 1\ns_add_u32 s54, s54, s55\ns_lshl_b32 s54, s54, 10\ns_lshl_b32 s55, s69, 8\ns_add_u32 s54, s54, s55')
    A('v_lshrrev_b32 v6, 4, v0\nv_lshlrev_b32 v6, 13, v6\nv_and_b32 v7, 15, v0\nv_lshl_add_u32 v6, v7, 4, v6\nv_add_u32 v6, s54, v6')
    A('s_lshl_b32 s71, s53, 13')
    for i in range(0 if cfg.noW else 8):
        paced(i,8,'v_add_u32 v7, %d, v6\ns_add_u32 m0, s71, %d\ns_nop 0\nglobal_load_lds_dwordx4 v7, %s %s'%((32*(i&3)+(i>>2))*1024,L_WA+i*1024,WO,cfg.wf))
    A('s_branch %s'%le)
    A('%s:'%l1)
    A('s_lshl_b32 s54, s14, 6')
    A('s_lshl_b32 s55, s53, 7\nv_lshrrev_b32 v6, 2, v0\nv_add_u32 v6, s55, v6\nv_mul_u32_u24 v6, 3584, v6\nv_and_b32 v7, 3, v0\nv_lshl_add_u32 v6, v7, 4, v6\nv_add_u32 v6, s54, v6')
    A('s_lshl_b32 s71, s53, 13')
    A('s_cmp_eq_u32 s70, 4\ns_cbranch_scc1 %s'%le)
    for k in range(cfg.E1): paced(k,cfg.E1,dma1(k))
    A('s_branch %s'%le)
    A('%s:'%l2)
    A('s_mul_i32 s54, s53, 448\nv_lshrrev_b32 v6, 1, v0\nv_add_u32 v6, s54, v6\nv_lshlrev_b32 v6, 10, v6')
    A('v_and_b32 v7, 1, v0\nv_lshl_add_u32 v6, v7, 4, v6\ns_lshl_b32 s54, s15, 5\nv_add_u32 v6, s54, v6')
    A('s_mul_i32 s71, s53, 14336')
    for k in range(cfg.E2): paced(k,cfg.E2,dma2(k))
    A('%s:'%le)
    A('s_waitcnt vmcnt(0)')
    A('v_lshlrev_b32 v16, 16, v16')
    lds_sync(1,sleep=4)
    stamp(6)
    l1=newlab('r1'); l2=newlab('r2'); le=newlab('re')
    A('v_mov_b32 v26, 0\nv_mov_b32 v27, 0\nv_mov_b32 v28, 0\nv_mov_b32 v29, 0')
    A('s_cmp_eq_u32 s70, 1\ns_cbranch_scc1 %s\ns_cmp_eq_u32 s70, 2\ns_cbranch_scc1 %s'%(l1,l2))
    A('v_lshrrev_b32 v8, 4, v0\nv_lshlrev_b32 v8, 11, v8\nv_bfe_u32 v7, v0, 2, 2\nv_lshl_add_u32 v8, v7, 8, v8\nv_and_b32 v7, 3, v0\nv_lshl_add_u32 v8, v7, 3, v8')
    A('s_lshl_b32 s54, s53, 6\ns_add_u32 s54, s54, %d\nv_add_u32 v8, s54, v8'%L_WA)
    for t in range(2):
        for s_ in range(4):
            r=80+16*t+4*s_
            A('ds_read_b64_tr_b16 v[%d:%d], v8 offset:%d'%(r,r+1,8192*s_+32*t))
            A('ds_read_b64_tr_b16 v[%d:%d], v8 offset:%d'%(r+2,r+3,8192*s_+32*t+1024))
        A('s_waitcnt lgkmcnt(0)')
    A('s_branch %s'%le)
    A('%s:'%l1)
    A('v_lshrrev_b32 v8, 4, v0\nv_lshlrev_b32 v8, 9, v8\nv_bfe_u32 v7, v0, 2, 2\nv_lshl_add_u32 v8, v7, 6, v8')
    A('v_and_b32 v7, 1, v0\nv_lshl_add_u32 v8, v7, 3, v8\nv_bfe_u32 v7, v0, 1, 1\nv_lshl_add_u32 v8, v7, 15, v8\ns_lshl_b32 s54, s53, 4\ns_add_u32 s54, s54, %d\nv_add_u32 v8, s54, v8'%L_WA)
    A('s_lshl_b32 s54, s14, 2\ns_add_u32 s54, s54, s53\ns_lshl_b32 s54, s54, 7\ns_add_u32 s54, s54, %d'%AB)
    A('v_and_b32 v27, 0x70, v1\nv_lshrrev_b32 v7, 3, v0\nv_lshl_add_u32 v27, v7, 15, v27\nv_add_u32 v27, s54, v27')
    A('s_and_b32 s55, s48, %d\ns_lshl_b32 s55, s55, 14\ns_add_u32 s54, s66, s55\ns_add_u32 s54, s54, %d\nv_add_u32 v4, s54, v1'%(cfg.nH-1,HB))
    A('v_bfe_u32 v5, v0, 2, 1\ns_lshl_b32 s54, s53, 1\nv_add_u32 v5, s54, v5\nv_mul_u32_u24 v5, %d, v5\nv_lshrrev_b32 v7, 3, v0\nv_lshl_add_u32 v5, v7, 5, v5\nv_and_b32 v7, 3, v0\nv_lshl_add_u32 v5, v7, 3, v5'%XNS)
    A('s_branch %s'%le)
    A('%s:'%l2)
    A('v_lshrrev_b32 v8, 4, v0\nv_lshlrev_b32 v8, 9, v8\nv_bfe_u32 v7, v0, 1, 1\nv_lshl_add_u32 v8, v7, 8, v8\nv_bfe_u32 v7, v0, 2, 2\nv_lshl_add_u32 v8, v7, 5, v8')
    A('v_and_b32 v7, 1, v0\nv_lshl_add_u32 v8, v7, 3, v8\ns_add_u32 s55, s71, %d\nv_add_u32 v8, s55, v8'%L_WA)
    A('v_bfe_u32 v26, v0, 2, 1\nv_lshlrev_b32 v26, 10, v26\nv_bfe_u32 v7, v0, 1, 1\nv_lshl_add_u32 v26, v7, 8, v26\nv_lshrrev_b32 v7, 3, v0\nv_lshl_add_u32 v26, v7, 4, v26\nv_and_b32 v7, 1, v0\nv_lshl_add_u32 v26, v7, 3, v26')
    A('s_and_b32 s55, s48, %d\ns_lshl_b32 s55, s55, 15\ns_mul_i32 s54, s53, 7168\ns_add_u32 s54, s54, s55\ns_add_u32 s54, s54, %d\nv_add_u32 v27, s54, v1'%(cfg.nA-1,AB+3072))
    A('s_mov_b32 s54, s15\ns_lshl_b32 s55, s54, 5')
    A('v_lshrrev_b32 v28, 3, v0\nv_lshlrev_b32 v28, 10, v28\nv_and_b32 v7, 7, v0\nv_lshl_add_u32 v28, v7, 2, v28\nv_add_u32 v28, s55, v28')
    A('s_lshl_b32 s54, s54, 7\ns_and_b32 s55, s48, %d\ns_lshl_b32 s55, s55, 14\ns_add_u32 s54, s54, s55\ns_add_u32 s54, s54, %d'%(cfg.nH-1,HB))
    A('v_lshrrev_b32 v29, 4, v0\nv_lshlrev_b32 v29, 12, v29\nv_and_b32 v7, 15, v0\nv_lshl_add_u32 v29, v7, 3, v29\nv_add_u32 v29, s54, v29')
    A('s_lshl_b32 s54, s53, 11\nv_add_u32 v10, s54, v1')
    A('%s:'%le)
    A('s_lshl_b32 s54, s53, 9\nv_add_u32 v17, s54, v3')
    A('s_and_b32 s54, s50, 7\ns_lshl_b32 s54, s54, 2\ns_add_u32 s54, s54, s53\ns_lshl_b32 s54, s54, 3\ns_lshr_b32 s55, s50, 3\ns_add_u32 s54, s54, s55\ns_lshl_b32 s54, s54, 2\ns_add_u32 s54, s54, s51')
    A('s_mul_i32 s54, s54, %d\ns_add_u32 s54, s54, %d\nv_add_u32 v18, s54, v1'%(OPS,OP))
    A('s_mul_i32 s54, s67, %d\ns_add_u32 s54, s54, %d\nv_mul_u32_u24 v25, %d, v2\nv_add_u32 v25, s54, v25\nv_add_u32 v19, v25, v3'%(32*OPS,OP,4*OPS))
    A('s_lshl_b32 s54, s53, 5\nv_mov_b32 v30, s54')
    A('v_mul_u32_u24 v20, %d, v2\nv_lshrrev_b32 v7, 1, v3\nv_add_u32 v20, v20, v7'%XOS)
    A('v_and_b32 v21, 7, v0\nv_mul_u32_u24 v21, %d, v21\nv_add_u32 v21, v21, v15'%XOS)
    A('s_lshl_b32 s54, s69, 2\ns_add_u32 s54, s54, s53\ns_lshl_b32 s54, s54, 6\ns_add_u32 s54, s54, s67\ns_lshl_b32 s54, s54, 7\ns_add_u32 s54, s54, %d'%(WP+2048))
    A('v_bfe_u32 v22, v0, 1, 2\nv_lshlrev_b32 v22, 17, v22\nv_and_b32 v7, 1, v0\nv_lshl_add_u32 v22, v7, 6, v22\nv_add3_u32 v22, v22, v15, s54')
    A('s_lshl_b32 s54, s13, 12\ns_add_u32 s54, s54, %d\nv_add_u32 v23, s54, v1'%WP)
    def guarded(lines):
        A(lines)
    def drychk():
        pass
    for r in range(192,246): A('v_mov_b32 v%d, -1'%r)
    A('s_waitcnt lgkmcnt(0)')
    A('s_mov_b64 vcc, 0\ns_mov_b64 s[4:5], %d\ns_mov_b64 exec, s[4:5]'%(0 if cfg.warm else -1))
    A('L_tail:')
    stamp(7)
    guarded('s_barrier')
    def wsum(b0,half,s0=None):
        d='v[%d:%d]'%(b0+2*half,b0+2*half+1)
        s0=s0 or b0
        for w in range(4):
            src='v[%d:%d]'%(s0+4*w+2*half,s0+4*w+2*half+1)
            f='v[%d:%d]'%(72+2*(w//2),73+2*(w//2))
            if w==0: A('v_pk_mul_f32 %s, %s, %s op_sel_hi:[1,0]'%(d,src,f))
            elif w%2==0: A('v_pk_fma_f32 %s, %s, %s, %s op_sel_hi:[1,0,1]'%(d,src,f,d))
            else: A('v_pk_fma_f32 %s, %s, %s, %s op_sel:[0,1,0] op_sel_hi:[1,1,1]'%(d,src,f,d))
    if cfg.gleak is not None:
        k,lo,hi,msk=cfg.gleak
        A('s_cbranch_execz L_nogl\ns_cmp_lg_u32 s53, 0\ns_cbranch_scc1 L_nogl')
        if k>=100: A('v_mov_b32 v32, %d\nds_read_b32 v33, v32 offset:%d\ns_waitcnt lgkmcnt(0)'%(4*(k-100),L_ST))
        else: A('v_mov_b32 v33, s%d'%(72+2*k))
        A('v_not_b32 v33, v33\nv_mov_b32 v34, s72\nv_mov_b32 v32, 0x22f000')
        A('s_mov_b64 exec, 1')
        A('global_atomic_umin v32, v34, %s'%WS)
        A('s_and_b32 s54, s2, %d\ns_sub_u32 s54, s54, %d\ns_cmp_ge_u32 s54, %d\ns_cbranch_scc1 L_nogl2'%(msk,lo,hi-lo))
        A('global_atomic_umin v32, v33, %s offset:256'%WS)
        A('L_nogl2:\ns_mov_b64 exec, -1\ns_waitcnt vmcnt(0)')
        A('L_nogl:')
    A('ds_read_b128 v[64:67], v30 offset:%d\nds_read_b128 v[68:71], v30 offset:%d'%(L_MLW,L_MLW+16))
    for w in range(4):
        A('ds_read_b128 v[%d:%d], v17 offset:%d'%(32+4*w,35+4*w,L_OW+2048*w))
    stamp(8)
    if cfg.notail: A('s_branch L_fin')
    A('s_and_b32 exec_hi, s4, 1')
    A('s_waitcnt lgkmcnt(%d)'%(0 if cfg.diag else 4))
    A('v_max3_f32 v76, v64, v65, v66\nv_max_f32 v76, v76, v67')
    A('v_pk_add_f32 v[72:73], v[64:65], v[76:77] op_sel_hi:[1,0] neg_lo:[0,1] neg_hi:[0,1]')
    A('v_pk_add_f32 v[74:75], v[66:67], v[76:77] op_sel_hi:[1,0] neg_lo:[0,1] neg_hi:[0,1]')
    for i in range(4): A('v_exp_f32 v%d, v%d'%(72+i,72+i))
    A('v_pk_mul_f32 v[68:69], v[68:69], v[72:73]\nv_pk_fma_f32 v[68:69], v[70:71], v[74:75], v[68:69]')
    A('s_waitcnt lgkmcnt(0)')
    A('v_add_f32 v77, v68, v69')
    wsum(32,0); wsum(32,1)
    A('v_mov_b32_dpp v32, v76 quad_perm:[0,1,2,3] row_mask:0x4 bank_mask:0xf')
    A('v_mov_b32_dpp v33, v77 quad_perm:[0,1,2,3] row_mask:0x4 bank_mask:0xf')
    guarded('global_store_dwordx4 v18, v[32:35], %s sc1'%WS)
    tstamp(1)
    A('s_mov_b64 exec, s[4:5]')
    A('s_cmp_lg_u32 s70, 3\ns_cbranch_scc1 L_rdone')
    apoll(['global_load_dwordx2 v[%d:%d], v25, %s offset:%d sc1'%(208+2*s_,209+2*s_,WS,OPS*s_+512) for s_ in range(4)]+
         ['global_load_dwordx4 v[%d:%d], v19, %s offset:%d sc1'%(192+4*s_,195+4*s_,WS,OPS*s_) for s_ in range(4)],cfg.pW)
    stamp(9)
    A('v_max3_f32 v76, v208, v210, v212\nv_max_f32 v76, v76, v214')
    for i in range(4): A('v_sub_f32 v%d, v%d, v76'%(72+i,208+2*i))
    for i in range(4): A('v_exp_f32 v%d, v%d'%(72+i,72+i))
    A('v_mul_f32 v78, v72, v209')
    for i in range(1,4): A('v_fmac_f32 v78, v%d, v%d'%(72+i,209+2*i))
    A('v_rcp_f32 v78, v78')
    wsum(48,0,192); wsum(48,1,192)
    A('v_pk_mul_f32 v[48:49], v[48:49], v[78:79] op_sel_hi:[1,0]\nv_pk_mul_f32 v[50:51], v[50:51], v[78:79] op_sel_hi:[1,0]')
    A('v_cvt_pk_bf16_f32 v48, v48, v49\nv_cvt_pk_bf16_f32 v49, v50, v51')
    A('ds_write_b64 v20, v[48:49] offset:%d'%L_XO)
    A('s_waitcnt lgkmcnt(0)'); guarded('s_barrier')
    if cfg.tdiag: tstamp(2); A('s_waitcnt lgkmcnt(0)')
    for s_ in range(4):
        A('ds_read_b128 v[%d:%d], v21 offset:%d'%(32+4*s_,35+4*s_,L_XO+64*s_))
    for s_ in range(4):
        A('s_waitcnt lgkmcnt(%d)'%(3-s_))
        for t in range(2):
            acc='v[%d:%d]'%(48+4*t,51+4*t); r=80+16*t+4*s_
            A('v_mfma_f32_16x16x32_bf16 %s, v[%d:%d], v[%d:%d], %s'%(acc,r,r+3,32+4*s_,35+4*s_,'0' if s_==0 else acc))
    A('s_mov_b32 exec_lo, 0x00ff00ff\ns_mov_b32 exec_hi, 0x00ff00ff')
    A('s_nop 4')
    A('global_store_dwordx4 v22, v[48:51], %s offset:-2048 sc1'%WS)
    A('global_store_dwordx4 v22, v[52:55], %s offset:2048 sc1'%WS)
    tstamp(3)
    A('s_mov_b64 exec, -1')
    A('s_cmp_lg_u32 s53, 0\ns_cbranch_scc1 L_fin')
    apoll(['global_load_dwordx4 v[%d:%d], v23, %s offset:%d sc1'%(216+4*t,219+4*t,WS,1024*t) for t in range(4)],cfg.pR)
    stamp(10)
    A('v_pk_add_f32 v[32:33], v[216:217], v[220:221]\nv_pk_add_f32 v[34:35], v[218:219], v[222:223]')
    A('v_pk_add_f32 v[40:41], v[224:225], v[228:229]\nv_pk_add_f32 v[42:43], v[226:227], v[230:231]')
    A('v_pk_add_f32 v[32:33], v[32:33], v[40:41]\nv_pk_add_f32 v[34:35], v[34:35], v[42:43]')
    A('s_nop 1\nv_permlane32_swap_b32 v32, v34\nv_permlane32_swap_b32 v33, v35')
    A('v_add_f32 v32, v32, v34\nv_add_f32 v33, v33, v35')
    A('s_nop 1\nv_permlane16_swap_b32 v32, v33\nv_add_f32 v32, v32, v33')
    dppadd(32,'row_ror:8')
    rbf(32)
    A('v_add_f32 v32, v32, v16')
    rbf(32)
    A('v_mov_b32 v33, v32\ns_nop 1\nv_permlane16_swap_b32 v32, v33\nv_mov_b32 v34, v32\nv_mov_b32 v35, v33\ns_nop 0')
    A('v_permlane32_swap_b32 v32, v34\nv_permlane32_swap_b32 v33, v35')
    if cfg.nH<8: A('s_and_b32 exec_lo, s4, 0x%x\ns_mov_b32 exec_hi, 0'%((1<<(8*cfg.nH))-1))
    guarded('global_store_dwordx4 v24, v[32:35], %s sc1'%WS)
    tstamp(4)
    A('s_branch L_fin')
    A('L_rdone:')
    A('s_cmp_eq_u32 s70, 2\ns_cbranch_scc1 L_ffn2')
    A('s_cmp_eq_u32 s70, 0\ns_cbranch_scc1 L_fin')
    if cfg.lrot:
        assert cfg.E1%2==0
        i0=cfg.E1//2; n=8-i0
        if cfg.helper: A('s_and_b32 s6, s14, 1\ns_cmp_eq_u32 s70, 4\ns_cselect_b32 s6, 2, s6\ns_mul_i32 s6, s6, %d\ns_add_u32 s6, s6, %d'%(n//3,i0))
        else: A('s_and_b32 s6, s14, 1\ns_mul_i32 s6, s6, %d\ns_add_u32 s6, s6, %d'%(n//2,i0))
        for it in range(n):
            if cfg.helper and it==n-2*(n//3): A('s_cmp_eq_u32 s70, 4\ns_cbranch_scc1 L_fin')
            A('s_mul_i32 s7, s6, %d\nv_add_u32 v7, s7, v6\ns_lshl_b32 s7, s6, 10\ns_add_u32 s7, s7, s71\ns_add_u32 m0, s7, %d\ns_add_u32 s6, s6, 1'%(16*3584,L_WA))
            A('global_load_lds_dwordx4 v7, %s %s'%(WG,cfg.ff))
            A('s_add_u32 m0, s7, %d\ns_cmp_eq_u32 s6, 8\ns_cselect_b32 s6, %d, s6'%(L_WA+32768,i0))
            A('global_load_lds_dwordx4 v7, %s %s'%(WU,cfg.ff))
    else:
        for k in range(cfg.E1,16): A(dma1(k))
    A('s_waitcnt vmcnt(0)\ns_barrier')
    for s_ in range(16):
        A('ds_read_b64_tr_b16 v[%d:%d], v8 offset:%d'%(96+4*s_,97+4*s_,2048*s_))
        A('ds_read_b64_tr_b16 v[%d:%d], v8 offset:%d'%(98+4*s_,99+4*s_,2048*s_+256))
        if s_%4==3: A('s_waitcnt lgkmcnt(0)')
    tstamp(2)
    apoll(['global_load_dwordx4 v[%d:%d], v4, %s offset:%d sc1'%(216+4*t,219+4*t,WS,1024*t) for t in range(4)],cfg.pF)
    stamp(11)
    layernorm('h')
    tstamp(5)
    A('s_waitcnt lgkmcnt(0)'); guarded('s_barrier')
    if cfg.tdiag: tstamp(6); A('s_waitcnt lgkmcnt(0)')
    for s_ in range(8):
        A('ds_read_b128 v[%d:%d], v9 offset:%d'%(32+4*s_,35+4*s_,L_XN+64*s_))
    for s_ in range(16):
        A('s_waitcnt lgkmcnt(%d)'%min(7,15-s_))
        b=32+4*(s_%8) if s_<8 else 160+4*(s_-8)
        A('v_mfma_f32_16x16x32_bf16 v[64:67], v[%d:%d], v[%d:%d], %s'%(96+4*s_,99+4*s_,b,b+3,'0' if s_==0 else 'v[64:67]'))
        if s_<8: A('ds_read_b128 v[%d:%d], v9 offset:%d'%(160+4*s_,163+4*s_,L_XN+64*(s_+8)))
    A('s_nop 7')
    A('v_permlane32_swap_b32 v64, v65\nv_permlane32_swap_b32 v66, v67')
    A('s_nop 1')
    A('v_mov_b32_dpp v64, v66 quad_perm:[0,1,2,3] row_mask:0xf bank_mask:0xc')
    A('v_mov_b32_dpp v65, v67 quad_perm:[0,1,2,3] row_mask:0xf bank_mask:0xc')
    A('v_cvt_pk_bf16_f32 v32, 0, v64\nv_cvt_pk_bf16_f32 v36, 0, v65')
    A('v_mul_f32 v33, v32, v32\nv_mul_f32 v33, 0x3d372713, v33\nv_fma_f32 v33, v33, v32, v32')
    A('v_mul_f32 v33, 0xc0135761, v33\nv_exp_f32 v33, v33\ns_nop 0\nv_add_f32 v33, 1.0, v33\nv_rcp_f32 v33, v33\ns_nop 0\nv_mul_f32 v33, v33, v32')
    rbf(33)
    A('v_mul_f32 v33, v33, v36\nv_mov_b32 v34, v33\ns_nop 1\nv_permlane32_swap_b32 v33, v34')
    A('v_cvt_pk_bf16_f32 v33, v33, v34\nv_min_u32 v36, -2, v33')
    A('v_mov_b32 v32, v36\nv_mov_b32 v33, v36\ns_nop 0')
    A('v_mov_b32_dpp v32, v36 row_ror:8 row_mask:0xf bank_mask:0xc\nv_mov_b32_dpp v33, v36 row_ror:8 row_mask:0xf bank_mask:0x3')
    A('v_mov_b32 v34, v32\nv_mov_b32 v35, v33\ns_nop 0')
    A('v_permlane16_swap_b32 v32, v34\nv_permlane16_swap_b32 v33, v35')
    if cfg.nA<8: A('s_and_b32 exec_lo, s4, 0x%x\ns_mov_b32 exec_hi, 0'%((1<<(8*cfg.nA))-1))
    guarded('global_store_dwordx4 v27, v[32:35], %s sc1'%WS)
    stamp(12)
    A('L_fin:')
    A('s_waitcnt vmcnt(0)')
    if cfg.diag:
        dump_stamps(14,8)
    A('s_endpgm')
    A('L_ffn2:')
    if cfg.lrot:
        n=14-cfg.E2
        A('s_and_b32 s6, s15, 3\ns_mul_i32 s6, s6, %d\ns_lshr_b32 s6, s6, 2\ns_add_u32 s6, s6, %d'%(n,cfg.E2))
        for _ in range(n):
            A('s_lshl_b32 s7, s6, 15\nv_add_u32 v7, s7, v6\ns_lshl_b32 s7, s6, 10\ns_add_u32 s7, s7, s71\ns_add_u32 m0, s7, %d\ns_add_u32 s6, s6, 1'%L_WA)
            A('global_load_lds_dwordx4 v7, %s %s'%(WD,cfg.ff))
            A('s_cmp_eq_u32 s6, 14\ns_cselect_b32 s6, %d, s6'%cfg.E2)
    else:
        for k in range(cfg.E2,14): A(dma2(k))
    A('s_waitcnt vmcnt(0)')
    for t in range(7):
        for tt in range(2):
            r=96+8*t+4*tt
            A('ds_read_b64_tr_b16 v[%d:%d], v8 offset:%d'%(r,r+1,2048*t+16*tt))
            A('ds_read_b64_tr_b16 v[%d:%d], v8 offset:%d'%(r+2,r+3,2048*t+16*tt+128))
        if t%2==0: A('s_waitcnt lgkmcnt(0)')
    tstamp(2)
    poll(guard=True,loads=['global_load_dwordx2 v[60:61], v29, %s sc1'%WS],regs=[60,61])
    apoll(['global_load_dwordx4 v[%d:%d], v27, %s offset:%d sc1'%(216+4*t,219+4*t,WS,1024*t-3072) for t in range(7)],cfg.pG)
    stamp(10)
    for t in range(7):
        for tt in range(2):
            acc='v[%d:%d]'%(64+4*tt,67+4*tt)
            r=96+8*t+4*tt
            A('v_mfma_f32_16x16x32_bf16 %s, v[%d:%d], v[%d:%d], %s'%(acc,r,r+3,216+4*t,219+4*t,'0' if t==0 else acc))
    A('s_nop 6')
    A('ds_write_b128 v10, v[64:67] offset:%d'%L_DP)
    A('ds_write_b128 v10, v[68:71] offset:%d'%(L_DP+1024))
    A('s_waitcnt lgkmcnt(0)'); guarded('s_barrier')
    tstamp(6)
    A('s_cmp_lg_u32 s53, 0\ns_cbranch_scc1 L_fin')
    for w in range(4):
        A('ds_read_b64 v[%d:%d], v26 offset:%d'%(32+4*w,33+4*w,L_DP+2048*w))
        A('ds_read_b64 v[%d:%d], v26 offset:%d'%(34+4*w,35+4*w,L_DP+2048*w+640))
    A('s_waitcnt lgkmcnt(0)')
    for w in range(4): A('v_pk_add_f32 v[%d:%d], v[%d:%d], v[%d:%d]'%(32+4*w,33+4*w,32+4*w,33+4*w,34+4*w,35+4*w))
    A('v_pk_add_f32 v[32:33], v[32:33], v[36:37]\nv_pk_add_f32 v[40:41], v[40:41], v[44:45]\nv_pk_add_f32 v[32:33], v[32:33], v[40:41]')
    A('v_cvt_pk_bf16_f32 v32, 0, v32\nv_cvt_pk_bf16_f32 v33, 0, v33')
    A('v_pk_add_f32 v[32:33], v[32:33], v[60:61]')
    A('v_cvt_pk_bf16_f32 v32, v32, v33')
    guarded('global_store_dword v28, v32, %s %s'%(OUT,cfg.of))
    drychk()
    if cfg.diag:
        stamp(13)
        if cfg.leak is not None:
            a,b=cfg.leak
            A('s_waitcnt lgkmcnt(0)')
            if cfg.gleak is not None:
                A('v_mov_b32 v8, 0x22f000\nglobal_load_dword v9, v8, %s sc1\nglobal_load_dword v10, v8, %s offset:256 sc1\ns_waitcnt vmcnt(0)'%(WS,WS))
                if b==13: A('v_mov_b32 v10, s%d'%(72+2*13))
                else: A('v_not_b32 v10, v10')
                A('v_sub_u32 v9, v10, v9\ns_nop 1\nv_readfirstlane_b32 s54, v9')
                if b==0: A('s_mov_b32 s54, 0')
            elif b>=100:
                A('v_mov_b32 v8, %d\nds_read_b32 v9, v8 offset:%d\ns_waitcnt lgkmcnt(0)\nv_readfirstlane_b32 s54, v9\ns_sub_u32 s54, s54, s%d'%(4*(b-100),L_ST,72+2*a))
            else: A('s_sub_u32 s54, s%d, s%d'%(72+2*b,72+2*a))
            A('s_min_u32 s54, s54, 20000')
            A('L_leak:')
            A('s_memrealtime s[68:69]\ns_waitcnt lgkmcnt(0)\ns_sub_u32 s55, s68, s%d\ns_cmp_lt_u32 s55, s54\ns_cbranch_scc1 L_leak'%(72+2*13))
        else:
            A('s_waitcnt lgkmcnt(0)\ns_mov_b32 s100, s92\ns_mov_b32 s92, 0')
            dump_stamps(15,8)
    A('L_end:')
    A('s_endpgm')
    A('.section .rodata,"a"\n.p2align 6\n.amdhsa_kernel %s'%K)
    A('  .amdhsa_next_free_vgpr 256\n  .amdhsa_next_free_sgpr 102\n  .amdhsa_accum_offset 256\n  .amdhsa_group_segment_fixed_size 0\n  .amdhsa_kernarg_size 96')
    A('  .amdhsa_user_sgpr_count 2\n  .amdhsa_user_sgpr_kernarg_segment_ptr 1\n  .amdhsa_system_sgpr_workgroup_id_x 1')
    A('  .amdhsa_float_denorm_mode_32 3\n  .amdhsa_float_denorm_mode_16_64 3')
    A('.end_amdhsa_kernel')
    return '\n'.join(L)+'\n'

if __name__=='__main__':
    cfg=Cfg()
    out=sys.argv[1]
    for a in sys.argv[2:]:
        k,v=a.split('=',1); setattr(cfg,k,eval(v))
    s=gen(cfg)
    hdr=''.join(l for l in open('cdna_kernels/%s.s.ref'%NAME).readlines()[:13])
    open(out,'w').write(hdr+s)
```

```python
import sys
NAME='sequential_preLN__gqa_block_cached__geglu_ffn__decode'
K=NAME+'_kernel'

class Cfg:
    diag=False
    leak=None
    nocomp=False
    noq=False
    T2=12
    mult=1
    Q1=0; Q2=0
    E1=0; E2=0; EW=8; lrot=True; helper=False
    T0=None; n0=24
    qflag=True
    chunk=0
    bare=0
    notail=False
    knat=False
    cdbg=False
    ctouch=None
    rot=4
    cs=9
    nowq=False
    noqst=False
    nH=8; nA=8
    pW=('c',1,0); pR=('m',8,1); pF=('c',1,0); pG=('c',1,0)
    tdiag=False
    tsleep=0
    crot=0
    noclr=False
    wolate=False
    warm=False
    of=''
    gleak=None
    NS=28
    sflag=False
    svcfirst=True
    spin=1<<17
    T=5
    kf='nt'; vf='nt'; wf='nt'; ff=''
    pq=3
    pw0=7
    pw1=22
    noW=False

QP=0x0
CTR=0x230000
FLG=0x80000
CLR=0x100000
WP=0x100000
OP=0x180000
OPS=640
HB=0x240000
AB=0x260000
STAMP=0x10000000
L_CNT=0
L_MLW=64
L_QL=256
L_XN=1280
XNS=1040
L_XO=9600
XOS=272
L_DP=11776
L_OW=19968
L_ST=28160
L_PR=28416
L_WB=29696
L_WA=L_WB+16384
LDS_BYTES=L_WA+65536

LOG2E=0x3fb8aa3b
SCALE=0x3db504f3

def gen(cfg):
    L=[]
    def A(s):
        L.extend(s.split('\n'))
    lab=[0]
    def newlab(p):
        lab[0]+=1
        return 'L_%s_%d'%(p,lab[0])
    X,KP,VP,WQ,WO,BX,WG,WU,WD,OUT,DBG,WS=['s[%d:%d]'%(16+2*i,17+2*i) for i in range(12)]
    def stamp(i):
        if cfg.diag: A('s_memrealtime s[%d:%d]'%(72+2*i,73+2*i))
    def tstamp(i):
        if cfg.tdiag: stamp(i)
    def pack_stamps(n,vt):
        A('s_waitcnt lgkmcnt(0)')
        A('v_mov_b32 v%d, 0'%vt)
        for i in range(n): A('v_writelane_b32 v%d, s%d, %d'%(vt,72+2*i,i))
    def dump_stamps(n,vt):
        if not cfg.diag: return
        A('s_mov_b64 exec, -1')
        pack_stamps(n,vt)
        A('v_lshlrev_b32 v%d, 2, v0'%(vt+1))
        A('ds_read_b32 v%d, v%d offset:%d'%(vt+2,vt+1,L_ST))
        A('s_lshl_b32 s66, s2, 9\ns_add_u32 s66, s66, %d'%(STAMP))
        A('v_add_u32 v%d, s66, v%d'%(vt+1,vt+1))
        A('s_mov_b64 exec, 0xffff')
        A('s_waitcnt lgkmcnt(0)')
        A('global_store_dword v%d, v%d, %s'%(vt+1,vt+2,WS))
        A('s_lshl_b32 s66, s53, 6\nv_add_u32 v%d, s66, v%d'%(vt+1,vt+1))
        A('global_store_dword v%d, v%d, %s offset:64'%(vt+1,vt,WS))

    A('; @launch grid=(256,1,1) block=(512,1,1) lds=%d'%LDS_BYTES)
    A('.amdgcn_target "amdgcn-amd-amdhsa--gfx950"\n.text\n.globl %s\n.p2align 8\n.type %s,@function\n%s:'%(K,K,K))
    A('s_cmp_ge_u32 s2, 256\ns_cbranch_scc1 L_end')
    A('s_load_dwordx16 s[16:31], s[0:1], 0')
    A('s_load_dwordx8 s[32:39], s[0:1], 64')
    if cfg.diag:
        for i in range(1,14): A('s_mov_b32 s%d, 0'%(72+2*i))
    stamp(0)
    A('v_lshrrev_b32 v1, 6, v0')
    A('v_lshlrev_b32 v3, 2, v0')
    A('v_and_b32 v0, 63, v0')
    A('v_readfirstlane_b32 s52, v1')
    A('s_and_b32 s48, s2, 7\ns_lshr_b32 s49, s2, 3\ns_lshl_b32 s50, s49, 1\ns_bfe_u32 s54, s2, 0x10001\ns_or_b32 s50, s50, s54')
    A('s_and_b32 s51, s2, 1\ns_bfe_u32 s54, s2, 0x10002\ns_lshl_b32 s54, s54, 1\ns_or_b32 s51, s51, s54')
    A('s_mov_b32 s59, 0x%x\ns_mov_b32 s60, 0xffff0000'%(LOG2E))
    A('v_lshlrev_b32 v1, 4, v0')
    A('s_cmp_ge_u32 s52, 4\ns_cbranch_scc1 L_service')

    import math
    TH=math.ceil(cfg.T)
    NS=cfg.NS
    RB=64
    A('s_lshl_b32 s54, s50, 21')
    A('s_lshl_b32 s62, s51, 2\ns_add_u32 s62, s62, s52')
    for i in range(4): A('s_add_u32 s%d, s62, %d\ns_and_b32 s%d, s%d, 15\ns_lshl_b32 s%d, s%d, 12'%(8+i,cfg.rot*i,8+i,8+i,8+i,8+i))
    A('v_lshrrev_b32 v2, 4, v0\nv_lshlrev_b32 v2, 6, v2\nv_and_b32 v4, 3, v0\nv_lshl_add_u32 v2, v4, 4, v2')
    A('v_bfe_u32 v5, v0, 2, 2\nv_lshl_add_u32 v2, v5, 8, v2')
    if cfg.knat: A('v_mov_b32 v2, v1')
    A('s_mov_b32 s42, 0x200000\ns_mov_b32 s43, 0x20000\ns_mov_b32 s46, 0x200000\ns_mov_b32 s47, 0x20000')
    A('v_mov_b32 v30, 0')
    A('s_waitcnt lgkmcnt(0)')
    A('s_add_u32 s40, s18, s54\ns_addc_u32 s41, s19, 0\ns_and_b32 s41, s41, 0xffff')
    A('s_add_u32 s44, s20, s54\ns_addc_u32 s45, s21, 0\ns_and_b32 s45, s45, 0xffff')
    st={'n':0}
    def adv():
        if cfg.rot: A('s_add_u32 s68, s62, %d\ns_and_b32 s68, s68, 15\ns_andn2_b32 s62, s62, 15\ns_add_u32 s62, s62, 16\ns_or_b32 s62, s62, s68'%cfg.rot)
        else: A('s_add_u32 s62, s62, 16')
    def load(slot,j,throttle=True,th=None):
        if j==0: A('s_lshl_b32 s65, s62, 12')
        if throttle:
            t_=(th or cfg.T); lo=int(t_); fr=t_-lo
            w=lo+(1 if (int((j+1)*fr+1e-9)>int(j*fr+1e-9)) else 0)
            A('s_waitcnt vmcnt(%d)'%(w-1))
        r=RB+slot*32+j*4
        t=j//4
        A('buffer_load_dwordx4 v[%d:%d], %s, %s, s65 offen offset:%d %s'%(r,r+3,'v2' if t==0 else 'v1','s[40:43]' if t==0 else 's[44:47]',(j%4)*1024,cfg.kf if t==0 else cfg.vf))
    def prog(val):
        A('v_mov_b32 v30, %s\nds_write_b32 v3, v30 offset:%d'%(val,L_PR))
    NK=NS//2
    assert NS%2==0 and NK>=10 and NK<=15
    slot_of={u:u for u in range(6)}
    slot_of.update({6:0,7:1,8:2})
    for u in range(9,NS+1): slot_of[u]=(u-9)&1
    tr={'issued':0}
    def sload():
        n=tr['issued']; G=n//8; j=n%8
        tr['issued']=n+1
        if G==NS:
            load(slot_of[G],j,th=cfg.T); return
        t=G//NK; k=2*(G%NK)+j//4
        if j%4==0: A('s_add_u32 s65, s%d, %d'%(8+k%4,k*65536))
        w=cfg.T0 if (cfg.T0 and n<cfg.n0) else TH
        if n>=w: A('s_waitcnt vmcnt(%d)'%(w-1))
        r=RB+slot_of[G]*32+j*4
        A('buffer_load_dwordx4 v[%d:%d], %s, %s, s65 offen offset:%d %s'%(r,r+3,'v2' if t==0 else 'v1','s[40:43]' if t==0 else 's[44:47]',(j%4)*1024,cfg.kf if t==0 else cfg.vf))
        if j==7 and n>=15: prog(G+1)
    def pro_issue(n0,n1):
        assert tr['issued']==n0
        for n in range(n0,n1): sload()
    if cfg.svcfirst: A('s_barrier')
    pro_issue(0,TH)
    A('ds_write_b32 v3, v30 offset:%d'%L_PR)
    A('s_mov_b32 s56, 0x05040100\ns_mov_b32 s57, 0x07060302\ns_mov_b32 s58, 0x%x'%SCALE)
    A('s_lshl_b32 s54, s50, %d\ns_add_u32 s54, s54, %d\ns_add_u32 s66, s38, s54\ns_addc_u32 s67, s39, 0'%(cfg.cs,CTR))
    if cfg.cdbg: A('s_lshl_b32 s54, s50, 9\ns_add_u32 s54, s54, 4096\ns_add_u32 s66, s36, s54\ns_addc_u32 s67, s37, 0')
    A('s_lshl_b32 s55, s52, 11')
    A('v_lshlrev_b32 v4, 9, v4\nv_and_b32 v0, 0x30, v0\nv_add3_u32 v0, v4, v0, s55')
    A('v_mov_b32 v14, 0xff800000')
    A('s_waitcnt lgkmcnt(0)')
    A('s_barrier')
    pro_issue(TH,48)
    stamp(1)
    if cfg.qflag:
        A('v_mov_b32 v31, 0\nL_qw:\nds_read_b32 v15, v31 offset:%d\ns_waitcnt lgkmcnt(0)\nv_readfirstlane_b32 s54, v15\ns_cmp_eq_u32 s54, 0\ns_cbranch_scc1 L_qw'%(L_CNT+16))
    else: A('s_barrier')
    A('ds_read_b128 v[4:7], v1 offset:%d'%L_QL)
    stamp(2)
    A('s_waitcnt lgkmcnt(0)')
    def kpart(slot,fill):
        B=RB+slot*32
        f=list(fill)
        def nxt():
            if f: f.pop(0)()
        D=[20,B,B+4,B+8]
        if cfg.nocomp:
            while f: nxt()
            return
        for i in range(4):
            A('v_mfma_f32_16x16x32_bf16 v[%d:%d], v[%d:%d], v[4:7], 0'%(D[i],D[i]+3,B+4*i,B+4*i+3))
        A('s_nop 7')
        for h in range(2):
            for step in range(3):
                for e in range(2):
                    be=2*e+h
                    S=18+e
                    A('v_add_f32_dpp v%d, v%d, v%d row_ror:%d row_mask:0xf bank_mask:0x%x'%(S,D[be]+((be+step+1)&3),(D[be]+be) if step==0 else S,12-4*step,1<<be))
                A('s_nop 0')
        nxt()
        A('s_nop 0')
        A('v_mov_b32_dpp v18, v19 quad_perm:[0,1,2,3] row_mask:0xf bank_mask:0xc')
        A('v_cvt_pk_bf16_f32 v18, 0, v18\nv_mul_f32 v18, s58, v18\nv_cvt_pk_bf16_f32 v18, 0, v18')
        A('v_max_f32 v15, v14, v18')
        A('s_nop 1\nv_max_f32_dpp v15, v15, v15 row_ror:4 row_mask:0xf bank_mask:0xf')
        A('s_nop 1\nv_max_f32_dpp v15, v15, v15 row_ror:8 row_mask:0xf bank_mask:0xf')
        A('v_mov_b32 v31, v15\ns_nop 1\nv_permlane16_swap_b32 v15, v31\nv_max_f32 v15, v15, v31')
        A('v_mov_b32 v31, v15\ns_nop 1\nv_permlane32_swap_b32 v15, v31\nv_max_f32 v15, v15, v31')
        nxt()
        A('v_sub_f32 v16, v14, v15\nv_sub_f32 v18, v18, v15\nv_cmp_neq_f32 vcc, v14, v15\nv_mul_f32 v16, s59, v16\nv_mul_f32 v18, s59, v18')
        A('v_exp_f32 v16, v16\nv_exp_f32 v18, v18\nv_mov_b32 v14, v15\nv_mul_f32 v17, s59, v15')
        A('v_mov_b32_dpp v19, v18 row_ror:12 row_mask:0xf bank_mask:0xf')
        A('v_cvt_pk_bf16_f32 v8, v18, v19')
        l=newlab('nr')
        A('s_cbranch_vccz %s'%l)
        for r in range(32,64,2):
            A('v_pk_mul_f32 v[%d:%d], v[%d:%d], v[16:17] op_sel_hi:[1,0]'%(r,r+1,r,r+1))
        A('v_mul_f32 v24, v24, v16')
        A('%s:'%l)
        A('s_nop 0')
        A('v_mov_b32_dpp v9, v8 row_ror:8 row_mask:0xf bank_mask:0xf')
        while f: nxt()
    def vpart(slot):
        B=RB+slot*32+16
        if cfg.nocomp: return
        def perms(j):
            Tt=10+2*(j&1)
            for ii in range(2):
                A('v_perm_b32 v%d, v%d, v%d, s%d'%(Tt+ii,B+4*(2*ii+1)+(j>>1),B+4*(2*ii)+(j>>1),56+(j&1)))
        perms(0)
        for j in range(8):
            if j<7: perms(j+1)
            else: A('v_mfma_f32_16x16x16_bf16 v[24:27], v[28:29], v[8:9], v[24:27]')
            Tt=10+2*(j&1)
            A('v_mfma_f32_16x16x16_bf16 v[%d:%d], v[%d:%d], v[8:9], v[%d:%d]'%(32+4*j,35+4*j,Tt,Tt+1,32+4*j,35+4*j))
    SC=[8,9,10,11,12,13,20,21,22,23,25,26,27,28,29][:NK]
    RV=RB+5*32; TV=RV+4
    def need(n):
        rem=tr['issued']-n
        assert rem>=0
        if rem<TH: A('s_waitcnt vmcnt(%d)'%rem)
    def spread(chunks,nl):
        m=len(chunks)
        for i,c in enumerate(chunks):
            if not cfg.nocomp: A(c)
            for _ in range((nl*(i+1))//m-(nl*i)//m): sload()
    def kgroup(G):
        B=RB+slot_of[G]*32
        ch=['\n'.join('v_mfma_f32_16x16x32_bf16 v[%d:%d], v[%d:%d], v[4:7], 0'%(32+4*i,35+4*i,B+4*i,B+4*i+3) for i in range(8))+'\ns_nop 1']
        for be in range(4):
            c=[]
            for step in range(3):
                for e in range(2):
                    D=32+4*(2*be+e); S=18+e
                    c.append('v_add_f32_dpp v%d, v%d, v%d row_ror:%d row_mask:0xf bank_mask:0x%x'%(S,D+((be+step+1)&3),(D+be) if step==0 else S,12-4*step,1<<be))
                c.append('s_nop 0')
            ch.append('\n'.join(c))
        ch[-1]+='\nv_cvt_pk_bf16_f32 v15, 0, v18\nv_cvt_pk_bf16_f32 v16, 0, v19\nv_mul_f32 v15, s58, v15\nv_mul_f32 v16, s58, v16'
        ch[-1]+='\nv_cvt_pk_bf16_f32 v%d, v15, v16\nv_cvt_pk_bf16_f32 v15, 0, v15\nv_cvt_pk_bf16_f32 v16, 0, v16\nv_max3_f32 v14, v14, v15, v16'%SC[G]
        return ch
    def wred(op,r):
        return ('s_nop 1\n%s_dpp v%d, v%d, v%d row_ror:4 row_mask:0xf bank_mask:0xf\ns_nop 1\n%s_dpp v%d, v%d, v%d row_ror:8 row_mask:0xf bank_mask:0xf\n'%(op,r,r,r,op,r,r,r)+
                'v_mov_b32 v31, v%d\ns_nop 1\nv_permlane16_swap_b32 v%d, v31\n%s v%d, v%d, v31\n'%(r,r,op,r,r)+
                'v_mov_b32 v31, v%d\ns_nop 1\nv_permlane32_swap_b32 v%d, v31\n%s v%d, v%d, v31'%(r,r,op,r,r))
    def softmax():
        ch=[wred('v_max_f32',14)+'\nv_mul_f32 v17, s59, v14\nv_mov_b32 v24, 0']
        for g in range(NK):
            ch.append('v_lshlrev_b32 v18, 16, v%d\nv_and_b32 v19, s60, v%d\nv_sub_f32 v18, v18, v14\nv_sub_f32 v19, v19, v14\nv_mul_f32 v18, s59, v18\nv_mul_f32 v19, s59, v19\n'%(SC[g],SC[g])+
                      'v_exp_f32 v18, v18\nv_exp_f32 v19, v19\ns_nop 0\nv_cvt_pk_bf16_f32 v%d, v18, v19\nv_add_f32 v24, v24, v18\nv_add_f32 v24, v24, v19'%SC[g])
        ch.append(wred('v_add_f32',24))
        return ch
    def vgroup(G):
        B=RB+slot_of[G]*32; P=SC[G-NK]
        def perms(j):
            Tt=TV+4*(j&1)
            return '\n'.join('v_perm_b32 v%d, v%d, v%d, s%d'%(Tt+ii,B+4*(2*ii+1)+(j>>1),B+4*(2*ii)+(j>>1),56+(j&1)) for ii in range(4))
        c0='v_mov_b32 v%d, v%d\n'%(RV,P)+'\n'.join('v_mov_b32_dpp v%d, v%d row_ror:%d row_mask:0xf bank_mask:0xf'%(RV+r,P,16-4*r) for r in range(1,4))+'\n'+perms(0)
        ch=[c0]
        for j in range(8):
            Tt=TV+4*(j&1); acc='v[%d:%d]'%(32+4*j,35+4*j)
            ch.append((perms(j+1) if j<7 else 's_nop 1')+'\nv_mfma_f32_16x16x32_bf16 %s, v[%d:%d], v[%d:%d], %s'%(acc,Tt,Tt+3,RV,RV+3,'0' if G==NK else acc))
        return ch
    def request():
        if not cfg.chunk:
            A('s_mov_b32 s63, 1\ns_atomic_add s63, s[66:67], 0x0 glc'); return
        la=newlab('ra'); lb=newlab('rb')
        A('s_cmp_eq_u32 s69, 0\ns_cbranch_scc1 %s'%la)
        A('s_mov_b32 s69, 0\ns_sub_u32 s63, s62, %d\ns_branch %s'%(NS*16,lb))
        A('%s:'%la)
        A('s_cmp_lt_u32 s62, %d\ns_cselect_b32 s69, 1, 0\ns_add_u32 s63, s69, 1\ns_atomic_add s63, s[66:67], 0x0 glc'%(512-cfg.chunk))
        A('%s:'%lb)
    for G in range(9):
        need(8*G+8)
        spread(kgroup(G),[4,4,4,4,4,4,3,2,3][G])
    assert tr['issued']==80
    stamp(3)
    for G in range(9,NS):
        if G==NS-2:
            A('v_mov_b32 v31, 0\nL_cw:\nds_read_b32 v15, v31 offset:%d\ns_waitcnt lgkmcnt(0)\nv_readfirstlane_b32 s54, v15\ns_cmp_eq_u32 s54, 0\ns_cbranch_scc1 L_cw'%(L_CNT+8))
            stamp(4)
            A('s_mov_b32 s63, %d\ns_atomic_add s63, s[66:67], 0x0 glc\ns_mov_b32 s69, %d'%((2,1) if cfg.chunk else (1,0)))
        if G==NS-1:
            A('s_waitcnt lgkmcnt(0)\ns_add_u32 s62, s63, %d'%(NS*16+1))
            A('s_cmp_ge_u32 s62, 512\ns_cbranch_scc1 L_nrq'); request(); A('L_nrq:')
        lead=min(TH,8)
        if G==NK: spread(softmax(),lead)
        else:
            for _ in range(lead): sload()
        need(8*G+8)
        ch=kgroup(G) if G<NK else vgroup(G)
        spread(ch[:-1],8-lead); spread(ch[-1:],0)
    A('s_cmp_ge_u32 s62, 512\ns_cbranch_scc1 L_sdone')
    A('v_mov_b32 v28, 0x3f803f80\nv_mov_b32 v29, 0x3f803f80\nv_mov_b32 v25, 0\nv_mov_b32 v26, 0\nv_mov_b32 v27, 0')
    A('s_waitcnt lgkmcnt(0)\ns_add_u32 s62, s63, %d'%(NS*16+1))
    A('s_mov_b32 s64, %d'%(NS+1))
    def body(c,th):
        for j in range(4): load(1-c,j,th=th)
        if th>8: A('s_waitcnt vmcnt(8)')
        kpart(c,[(lambda j=j: load(1-c,j,th=th)) for j in range(4,8)])
        if th>8: A('s_waitcnt vmcnt(8)')
        vpart(c)
    A('L_dyn:')
    for c in (slot_of[NS],1-slot_of[NS]):
        ls=newlab('st'); lc=newlab('sc')
        if cfg.diag: A('s_add_u32 s64, s64, 1')
        A('s_cmp_ge_u32 s62, 512\ns_cbranch_scc1 %s'%ls)
        request()
        A('%s:'%ls)
        body(c,cfg.T2 or cfg.T)
        A('s_cmp_ge_u32 s62, 512\ns_cbranch_scc1 L_sdone')
        A('s_waitcnt lgkmcnt(0)')
        A('s_add_u32 s62, s63, %d'%(NS*16+1))
    A('s_branch L_dyn')
    A('L_sdone:')
    A('s_mov_b32 exec_lo, 0x000f000f\ns_mov_b32 exec_hi, 0x000f000f')
    stamp(5)
    A('s_lshl_b32 s55, s52, 2\nv_and_b32 v31, 0x30, v1\nv_lshl_add_u32 v31, v31, 1, s55')
    for j in range(8):
        A('ds_write_b128 v0, v[%d:%d] offset:%d'%(32+4*j,35+4*j,L_OW+64*j))
    A('ds_write2_b32 v31, v17, v24 offset0:%d offset1:%d'%(L_MLW//4,L_MLW//4+4))
    if cfg.diag:
        A('s_mov_b64 exec, -1')
        A('s_cmp_lg_u32 s52, 0\ns_cbranch_scc1 L_nost')
        pack_stamps(6,8)
        A('v_writelane_b32 v8, s64, 8')
        A('ds_write_b32 v3, v8 offset:%d'%L_ST)
        A('L_nost:')
    A('s_waitcnt lgkmcnt(0)')
    A('s_barrier')
    A('s_endpgm')

    A('L_service:')
    if cfg.bare:
        A('s_sub_u32 s53, s52, 4\nv_mov_b32 v11, 0\nv_mov_b32 v12, 1\nv_mov_b32 v40, -1\nv_mov_b32 v41, -1\nv_mov_b32 v42, -1\nv_mov_b32 v43, -1\ns_waitcnt lgkmcnt(0)')
        if cfg.bare&2:
            A('s_lshl_b32 s54, s2, 2\ns_add_u32 s54, s54, s53\ns_mul_i32 s54, s54, 640\ns_add_u32 s54, s54, %d\nv_add_u32 v6, s54, v1\ns_mov_b32 exec_hi, 0xff\nglobal_store_dwordx4 v6, v[40:43], %s sc1\ns_mov_b64 exec, -1'%(CLR+0x100000,WS))
        if cfg.bare&4:
            A('global_load_dwordx4 v[32:35], v1, %s'%X)
        if cfg.bare&8:
            A('v_mov_b32 v6, s2\ns_mov_b64 exec, 1\nglobal_store_byte v6, v12, %s sc1\ns_mov_b64 exec, -1'%DBG)
        A('ds_write_b32 v11, v12 offset:%d\ns_waitcnt lgkmcnt(0)\ns_barrier\ns_barrier'%(L_CNT+8))
        if cfg.bare&16:
            A('v_lshlrev_b32 v7, 2, v0\nglobal_load_dword v13, v7, %s sc1'%DBG)
        A('s_barrier\ns_endpgm')
    A('s_setprio 3')
    A('s_sub_u32 s53, s52, 4')
    A('s_lshl_b32 s66, s53, 12')
    A('s_mov_b32 s3, %d'%FLG)
    A('s_lshr_b32 s68, s49, 3\ns_and_b32 s69, s49, 7')
    A('v_lshrrev_b32 v2, 5, v0\ns_lshl_b32 s54, s53, 1\nv_add_u32 v2, s54, v2')
    A('v_and_b32 v3, 31, v0\nv_lshlrev_b32 v3, 4, v3')
    A('v_lshl_add_u32 v4, v2, 10, v3')
    A('s_lshl_b32 s54, s68, 7\ns_lshl_b32 s55, s53, 5\ns_add_u32 s54, s54, s55')
    A('v_lshrrev_b32 v6, 3, v0\nv_add_u32 v6, s54, v6\nv_lshlrev_b32 v6, 13, v6')
    A('v_and_b32 v7, 7, v0\nv_lshl_add_u32 v6, v7, 4, v6')
    A('s_lshl_b32 s54, s48, 10\ns_lshl_b32 s55, s69, 7\ns_add_u32 s54, s54, s55\nv_add_u32 v6, s54, v6')
    A('s_lshl_b32 s54, s48, 2\ns_add_u32 s54, s54, s68\ns_lshl_b32 s54, s54, 11\ns_lshl_b32 s55, s69, 8\ns_add_u32 s54, s54, s55\ns_lshl_b32 s55, s53, 6\ns_add_u32 s54, s54, s55')
    A('v_lshlrev_b32 v14, 16, v7\nv_and_b32 v15, 0x30, v0\nv_add3_u32 v14, v14, v15, s54')
    A('v_mov_b32 v40, -1\nv_mov_b32 v41, -1\nv_mov_b32 v42, -1\nv_mov_b32 v43, -1')
    A('s_add_u32 m0, s66, %d'%L_WA)
    A('v_lshrrev_b32 v44, 1, v0\nv_lshlrev_b32 v44, 9, v44\nv_and_b32 v45, 16, v1\nv_add3_u32 v79, v44, v45, %s'%'s3')
    A('v_mov_b32 v44, 0\nv_mov_b32 v45, 0\nv_mov_b32 v46, 0\nv_mov_b32 v47, 0\nv_mov_b32 v11, 0\nv_mov_b32 v12, 1')
    A('s_lshl_b32 s12, s2, 2\ns_add_u32 s12, s12, s53')
    A('s_waitcnt lgkmcnt(0)')
    A('s_cmp_lg_u32 s12, 3\ns_cbranch_scc1 L_nolead')
    A('global_store_dwordx4 v79, v[44:47], %s sc1'%WS)
    A('L_nolead:')
    A('global_load_dwordx4 v[32:35], v4, %s'%X)
    A('global_load_dwordx4 v[36:39], v4, %s offset:512'%X)
    if cfg.nowq: A('s_mov_b64 exec, 1')
    for i in range(4):
        if i: A('s_add_u32 m0, s66, %d\nv_add_u32 v6, 0x10000, v6'%(L_WA+i*1024))
        A('global_load_lds_dwordx4 v6, %s %s'%(WQ,cfg.wf))
    A('s_mov_b32 exec_lo, 0x00ff00ff\ns_mov_b32 exec_hi, 0x00ff00ff')
    if cfg.noqst: A('s_mov_b64 exec, 1')
    A('global_store_dwordx4 v14, v[40:43], %s sc1'%WS)
    A('s_mov_b64 exec, -1')
    if cfg.svcfirst==1: A('s_barrier')
    A('s_lshl_b32 s54, s2, 12\ns_lshl_b32 s55, s53, 10\ns_add_u32 s54, s54, s55\ns_add_u32 s54, s54, %d'%CLR)
    A('v_add_u32 v6, s54, v1')
    if cfg.noclr: A('s_mov_b64 exec, 1')
    A('global_store_dwordx4 v6, v[40:43], %s sc1'%WS)
    if cfg.noclr: A('s_mov_b64 exec, -1')
    A('s_lshl_b32 s54, s2, 2\ns_add_u32 s54, s54, s53\ns_mul_i32 s54, s54, 640\ns_add_u32 s54, s54, %d'%(CLR+0x100000))
    A('v_add_u32 v6, s54, v1')
    A('s_mov_b32 exec_hi, 0xff')
    A('global_store_dwordx4 v6, v[40:43], %s sc1'%WS)
    A('s_mov_b64 exec, -1')
    if cfg.svcfirst==2: A('s_barrier')
    A('ds_write_b128 v11, v[44:47] offset:%d\nds_write_b128 v11, v[44:47] offset:%d'%(L_CNT,L_CNT+16))
    A('v_mul_u32_u24 v5, %d, v2\nv_add_u32 v5, v5, v3'%XNS)
    A('v_lshrrev_b32 v8, 4, v0\nv_lshlrev_b32 v8, 10, v8\nv_bfe_u32 v9, v0, 2, 2\nv_lshl_add_u32 v8, v9, 7, v8\nv_and_b32 v9, 3, v0\nv_lshl_add_u32 v8, v9, 3, v8')
    A('s_lshl_b32 s54, s53, 5\nv_add_u32 v8, s54, v8')
    A('v_mul_u32_u24 v9, %d, v7\nv_add_u32 v9, v9, v15\ns_lshl_b32 s54, s68, 8\nv_add_u32 v10, s54, v9'%XNS)
    A('s_lshl_b32 s54, s53, 8\nv_mov_b32 v31, s54')
    A('s_waitcnt lgkmcnt(0)')
    A('s_barrier')

    def dppadd(r,ctl):
        A('s_nop 1\nv_add_f32_dpp v%d, v%d, v%d %s row_mask:0xf bank_mask:0xf'%(r,r,r,ctl))
    def swapadd(r,t,w):
        A('v_mov_b32 v%d, v%d\ns_nop 1\nv_permlane%d_swap_b32 v%d, v%d\nv_add_f32 v%d, v%d, v%d'%(t,r,w,r,t,r,r,t))
    def rbf(r):
        A('v_cvt_pk_bf16_f32 v%d, 0, v%d'%(r,r))
    def layernorm(mode):
        if mode=='x':
            for i in range(8):
                A('v_lshlrev_b32 v%d, 16, v%d\nv_and_b32 v%d, s60, v%d'%(48+2*i,32+i,49+2*i,32+i))
        Q=lambda i:'v[%d:%d]'%(48+2*i,49+2*i)
        P=Q if mode=='x' else (lambda i:'v[%d:%d]'%(216+2*i,217+2*i))
        A('v_pk_add_f32 v[64:65], %s, %s\nv_pk_mul_f32 v[66:67], %s, %s'%(P(0),P(1),P(0),P(0)))
        A('v_pk_add_f32 v[68:69], %s, %s\nv_pk_mul_f32 v[70:71], %s, %s'%(P(2),P(3),P(1),P(1)))
        for i in range(2,8,2):
            if i>2: A('v_pk_add_f32 v[64:65], v[64:65], %s'%P(i))
            A('v_pk_fma_f32 v[66:67], %s, %s, v[66:67]'%(P(i),P(i)))
            if i>2: A('v_pk_add_f32 v[68:69], v[68:69], %s'%P(i+1))
            A('v_pk_fma_f32 v[70:71], %s, %s, v[70:71]'%(P(i+1),P(i+1)))
        A('v_pk_add_f32 v[64:65], v[64:65], v[68:69]\nv_pk_add_f32 v[66:67], v[66:67], v[70:71]')
        A('v_add_f32 v64, v64, v65\nv_add_f32 v66, v66, v67')
        ctl=['row_ror:1','row_ror:2','row_ror:4','row_ror:8'] if mode=='x' else ['quad_perm:[1,0,3,2]','quad_perm:[2,3,0,1]','row_ror:8']
        for c in ctl:
            A('s_nop 0')
            for r in (64,66): A('v_add_f32_dpp v%d, v%d, v%d %s row_mask:0xf bank_mask:0xf'%(r,r,r,c))
        for w in ((16,) if mode=='x' else (16,32)):
            A('v_mov_b32 v65, v64\nv_mov_b32 v67, v66\ns_nop 0')
            A('v_permlane%d_swap_b32 v64, v65\nv_permlane%d_swap_b32 v66, v67'%(w,w))
            A('v_add_f32 v64, v64, v65\nv_add_f32 v66, v66, v67')
        A('v_mul_f32 v64, 0xbb000000, v64\nv_mul_f32 v66, 0x3b000000, v66')
        A('v_cvt_pk_bf16_f32 v68, 0, v64')
        chain=['v_fma_f32 v66, -v64, v64, v66','v_max_f32 v66, 0, v66','v_cvt_pk_bf16_f32 v66, 0, v66','v_add_f32 v66, 0x3727c5ac, v66',
               'v_cvt_pk_bf16_f32 v66, 0, v66','v_sqrt_f32 v66, v66','v_cvt_pk_bf16_f32 v66, 0, v66','v_rcp_f32 v66, v66']
        for i in range(8):
            A(chain[i])
            A('v_pk_add_f32 %s, %s, v[68:69] op_sel_hi:[1,0]'%(Q(i),P(i)))
        for i in range(16): A('v_cvt_pk_bf16_f32 v%d, 0, v%d'%(48+i,48+i))
        nw=2 if mode=='h' else 4
        for i in range(8):
            A('v_pk_mul_f32 %s, %s, v[66:67] op_sel_hi:[1,0]'%(Q(i),Q(i)))
        for i in range(8):
            A('v_cvt_pk_bf16_f32 v%d, v%d, v%d'%(32+i,48+2*i,49+2*i))
            if mode=='h' and i%2==1: A('ds_write_b64 v5, v[%d:%d] offset:%d'%(31+i,32+i,L_XN+256*(i//2)))
            if mode=='x' and i%4==3: A('ds_write_b128 v5, v[%d:%d] offset:%d'%(29+i,32+i,L_XN+512*(i//4)))
    def lds_sync(cnt,sleep=0):
        l=newlab('ls')
        A('s_waitcnt lgkmcnt(0)')
        A('s_mov_b64 exec, 1\nds_add_u32 v11, v12 offset:%d\ns_mov_b64 exec, -1'%(L_CNT+4*cnt))
        lds_wait(11,L_CNT+4*cnt,4,sleep)
    def lds_wait(va,off,val,sleep):
        l=newlab('lw'); d=newlab('ld')
        A('%s:'%l)
        A('ds_read_b32 v13, v%d offset:%d\ns_waitcnt lgkmcnt(0)\nv_readfirstlane_b32 s54, v13\ns_cmp_ge_u32 s54, %s'%(va,off,val))
        if sleep: A('s_cbranch_scc1 %s\ns_sleep %d\ns_branch %s\n%s:'%(d,sleep,l,d))
        else: A('s_cbranch_scc0 %s'%l)
    def progress(p): lds_wait(31,L_PR,p,6)
    def poll(loads,regs,sleep=0,guard=False):
        l=newlab('pl'); d=newlab('pd')
        if guard: sleep=cfg.tsleep
        A('s_mov_b32 s61, %d'%cfg.spin)
        A('%s:'%l)
        for x in loads: A(x)
        import re as _re
        first=True; pend=[]
        for i,x in enumerate(loads):
            m=_re.search(r'v\[(\d+):(\d+)\]',x)
            pend+=list(range(int(m.group(1)),int(m.group(2))+1))
            last=(i==len(loads)-1)
            if len(pend)<4 and not last: continue
            A('s_waitcnt vmcnt(%d)'%(len(loads)-1-i))
            while pend:
                if first:
                    if len(pend)>=3: A('v_max3_u32 v13, v%d, v%d, v%d'%tuple(pend[:3])); pend=pend[3:]
                    else: A('v_max_u32 v13, v%d, v%d'%tuple(pend[:2])); pend=pend[2:]
                    first=False
                elif len(pend)>=2: A('v_max3_u32 v13, v13, v%d, v%d'%tuple(pend[:2])); pend=pend[2:]
                elif last: A('v_max_u32 v13, v13, v%d'%pend[0]); pend=[]
                else: break
        A('v_cmp_eq_u32 vcc, -1, v13')
        A('s_cbranch_vccz %s'%d)
        if sleep: A('s_sleep %d'%sleep)
        A('s_sub_u32 s61, s61, 1\ns_cmp_lg_u32 s61, 0\ns_cbranch_scc1 %s'%l)
        A('%s:'%d)
    def apoll(loads,par):
        import re as _re
        mode,D,sleep=par
        l=newlab('al'); d=newlab('ad'); gl=newlab('ag')
        rg=[]
        for x in loads:
            m=_re.search(r'v\[(\d+):(\d+)\]',x); rg.append(list(range(int(m.group(1)),int(m.group(2))+1)))
        def chain(t,r):
            r=list(r)
            if len(r)==2: A('v_max_u32 v%d, v%d, v%d'%(t,r[0],r[1])); return
            A('v_max3_u32 v%d, v%d, v%d, v%d'%(t,r[0],r[1],r[2])); r=r[3:]
            while r:
                if len(r)==1: A('v_max_u32 v%d, v%d, v%d'%(t,t,r[0])); r=[]
                else: A('v_max3_u32 v%d, v%d, v%d, v%d'%(t,t,r[0],r[1])); r=r[2:]
        n=len(loads)
        A('s_mov_b32 s61, %d'%cfg.spin)
        if mode in 'cm':
            A('%s:'%l)
            for x in loads: A(x)
            if sleep: A('s_sleep %d'%sleep)
            A('s_waitcnt vmcnt(%d)'%min(63,n*(D-1)))
            chain(13,sum(rg,[]))
            A('v_cmp_eq_u32 vcc, -1, v13')
            A('s_cbranch_vccz %s'%d)
            if mode=='m': A('s_mov_b64 exec, vcc')
            A('s_sub_u32 s61, s61, 1\ns_cmp_lg_u32 s61, 0\ns_cbranch_scc1 %s'%l)
            A('%s:'%d)
            if mode=='m': A('s_mov_b64 exec, s[4:5]')
        else:
            mk=['s[6:7]','s[8:9]','s[10:11]','s[40:41]','s[42:43]','s[44:45]','s[46:47]','s[62:63]'][:n]
            for m_ in mk: A('s_mov_b64 %s, s[4:5]'%m_)
            A('%s:'%l)
            for x,m_ in zip(loads,mk):
                sk=newlab('as')
                A('s_mov_b64 exec, %s\ns_cbranch_execz %s'%(m_,sk)); A(x); A('%s:'%sk)
            A('s_mov_b64 exec, s[4:5]')
            if sleep: A('s_sleep %d'%sleep)
            A('s_waitcnt vmcnt(%d)'%min(63,n*(D-1)))
            for i in range(n): chain(246+i,rg[i])
            chain(13,[246+i for i in range(n)])
            A('v_cmp_eq_u32 vcc, -1, v13')
            A('s_cbranch_vccz %s'%d)
            for i in range(n): A('v_cmp_eq_u32 %s, -1, v%d'%(mk[i],246+i))
            A('s_sub_u32 s61, s61, 1\ns_cmp_lg_u32 s61, 0\ns_cbranch_scc1 %s'%l)
            A('%s:'%d)
    def flagpoll(voff,execmask):
        l=newlab('fl'); d=newlab('fd')
        A('s_mov_b32 s61, %d'%cfg.spin)
        A('s_mov_b64 exec, %s'%execmask)
        A('%s:'%l)
        A('global_load_dwordx4 v[72:75], v%d, %s sc1\ns_waitcnt vmcnt(0)'%(voff,WS))
        A('v_min3_u32 v13, v72, v73, v74\nv_min_u32 v13, v13, v75\nv_cmp_eq_u32 vcc, 0, v13\ns_cbranch_vccz %s'%d)
        A('s_sleep 16')
        A('s_sub_u32 s61, s61, 1\ns_cmp_lg_u32 s61, 0\ns_cbranch_scc1 %s'%l)
        A('%s:'%d)
        A('s_mov_b64 exec, -1')
    def tr128(dst,base):
        for s_ in range(4):
            A('ds_read_b64_tr_b16 v[%d:%d], v8 offset:%d'%(dst+4*s_,dst+4*s_+1,base+4096*s_))
            A('ds_read_b64_tr_b16 v[%d:%d], v8 offset:%d'%(dst+4*s_+2,dst+4*s_+3,base+4096*s_+512))

    A('s_waitcnt vmcnt(7)')
    A('s_cmp_lg_u32 s12, 3\ns_cbranch_scc1 L_nogo')
    A('s_waitcnt vmcnt(0)')
    A('s_mov_b64 exec, 1\nglobal_store_dword v11, v12, %s sc1\ns_mov_b64 exec, -1'%DBG)
    A('L_nogo:')
    stamp(1)
    layernorm('x')
    A('s_waitcnt vmcnt(0)')
    lds_sync(0)
    stamp(2)
    tr128(80,L_WA)
    for s_ in range(4):
        A('ds_read_b128 v[%d:%d], v10 offset:%d'%(32+4*s_,35+4*s_,L_XN+64*s_))
    A('s_waitcnt lgkmcnt(0)')
    for s_ in range(4):
        A('v_mfma_f32_16x16x32_bf16 v[48:51], v[%d:%d], v[%d:%d], %s'%(80+4*s_,83+4*s_,32+4*s_,35+4*s_,'0' if s_==0 else 'v[48:51]'))
    A('s_nop 7')
    for r in range(4): A('v_min_u32 v%d, -2, v%d'%(48+r,48+r))
    A('s_mov_b32 exec_lo, 0x00ff00ff\ns_mov_b32 exec_hi, 0x00ff00ff')
    if cfg.noqst: A('s_mov_b64 exec, 1')
    A('global_store_dwordx4 v14, v[48:51], %s sc1'%WS)
    A('s_mov_b64 exec, -1')
    stamp(3)
    A('s_cmp_lg_u32 s53, 3\ns_cbranch_scc1 L_noflag')
    A('s_lshl_b32 s54, s48, 2\ns_add_u32 s54, s54, s68\ns_lshl_b32 s54, s54, 9\ns_lshl_b32 s55, s69, 2\ns_add_u32 s54, s54, s55\ns_add_u32 s54, s54, s3\nv_mov_b32 v6, s54')
    A('s_mov_b32 s61, %d\ns_mov_b64 exec, 1\nL_go:\nglobal_load_dword v13, v11, %s sc1\ns_waitcnt vmcnt(0)\nv_cmp_eq_u32 vcc, 0, v13\ns_cbranch_vccz L_god'%(cfg.spin,DBG))
    A('s_sleep 8\ns_sub_u32 s61, s61, 1\ns_cmp_lg_u32 s61, 0\ns_cbranch_scc1 L_go\nL_god:')
    A('global_store_dword v6, v12, %s sc1'%WS)
    A('L_noflag:')
    A('s_mov_b64 exec, 1\nds_add_u32 v11, v12 offset:%d\ns_mov_b64 exec, -1'%(L_CNT+12))
    A('s_cmp_lg_u32 s53, %d\ns_cbranch_scc1 L_qdone'%(9 if cfg.noq else 0))
    A('v_and_b32 v6, 3, v0\nv_lshlrev_b32 v6, 9, v6\nv_lshrrev_b32 v14, 2, v0\nv_lshl_add_u32 v6, v14, 5, v6')
    A('s_lshl_b32 s54, s50, 13\ns_add_u32 s54, s54, %d\nv_add_u32 v6, s54, v6'%(QP+3072))
    A('s_and_b32 s54, s50, 7\ns_lshl_b32 s54, s54, 11\nv_add_u32 v7, s54, v79')
    lds_wait(11,L_CNT+12,4,2)
    progress(cfg.pq)
    flagpoll(7,'0xff')
    stamp(4)
    poll(['global_load_dwordx4 v[%d:%d], v6, %s offset:%d sc1'%(32+8*kq+4*h,35+8*kq+4*h,WS,2048*kq+16*h-3072) for kq in range(4) for h in range(2)],list(range(32,64)),sleep=8)
    for p in range(4):
        A('v_pk_add_f32 v[%d:%d], v[%d:%d], v[%d:%d]'%(32+2*p,33+2*p,32+2*p,33+2*p,40+2*p,41+2*p))
        A('v_pk_add_f32 v[%d:%d], v[%d:%d], v[%d:%d]'%(48+2*p,49+2*p,48+2*p,49+2*p,56+2*p,57+2*p))
    for p in range(4):
        A('v_pk_add_f32 v[%d:%d], v[%d:%d], v[%d:%d]'%(32+2*p,33+2*p,32+2*p,33+2*p,48+2*p,49+2*p))
    for p in range(4):
        A('v_cvt_pk_bf16_f32 v%d, v%d, v%d'%(32+p,32+2*p,33+2*p))
    A('ds_write_b128 v1, v[32:35] offset:%d'%L_QL)
    stamp(5)
    A('s_waitcnt lgkmcnt(0)')
    if cfg.qflag: A('ds_write_b32 v11, v12 offset:%d'%(L_CNT+16))
    A('L_qdone:')
    A('s_setprio 0')
    if not cfg.qflag: A('s_barrier')

    A('s_mov_b32 s70, 0\ns_and_b32 s54, s49, 0x13\ns_cmp_eq_u32 s54, s51\ns_cselect_b32 s70, 2, s70')
    A('s_cmp_lt_u32 s48, 4\ns_cselect_b32 s6, 16, 12\ns_cselect_b32 s7, 8, 6\ns_cselect_b32 s8, 0, 8\ns_mul_i32 s14, s48, s7\ns_add_u32 s14, s14, s8')
    if cfg.helper: A('s_and_b32 s54, s49, 0x13\ns_xor_b32 s54, s54, 2\ns_cmp_eq_u32 s54, s51\ns_cselect_b32 s9, s49, 99\ns_cmp_lt_u32 s9, s6\ns_cselect_b32 s70, 4, s70')
    A('s_sub_u32 s54, s49, 16\ns_cmp_lt_u32 s54, s6\ns_cselect_b32 s70, 1, s70')
    A('s_xor_b32 s55, s2, s49\ns_and_b32 s55, s55, 1\ns_cselect_b32 s70, 3, s70')
    A('s_bfe_u32 s54, s49, 0x30001\ns_add_u32 s14, s14, s54')
    A('s_lshr_b32 s15, s49, 2\ns_add_u32 s54, s48, %d\ns_and_b32 s54, s54, 7\ns_lshl_b32 s54, s54, 2\ns_add_u32 s15, s15, s54'%cfg.crot)
    A('s_lshr_b32 s13, s2, 1')
    A('s_lshl_b32 s54, s48, 2\ns_add_u32 s67, s54, s68')
    A('s_bfe_u32 s69, s49, 0x20001')
    A('v_and_b32 v6, 3, v0\nv_lshlrev_b32 v6, 2, v6\nv_lshrrev_b32 v7, 4, v0\nv_add_u32 v6, v6, v7')
    A('v_bfe_u32 v7, v0, 2, 1')
    A('v_lshrrev_b32 v24, 3, v0\nv_lshlrev_b32 v24, 14, v24\nv_and_b32 v13, 0x70, v1\nv_add_u32 v24, v24, v13\ns_mov_b32 s55, s13\ns_lshl_b32 s54, s55, 7\ns_add_u32 s54, s54, %d\nv_add_u32 v24, s54, v24'%HB)
    A('v_lshlrev_b32 v6, 1, v6\nv_lshl_add_u32 v6, v7, 10, v6\ns_lshr_b32 s54, s55, 5\ns_lshl_b32 s54, s54, 11\ns_and_b32 s55, s55, 31\ns_lshl_b32 s55, s55, 5\ns_add_u32 s54, s54, s55\nv_add_u32 v6, s54, v6')
    A('global_load_ushort v16, v6, %s'%X)
    A('s_cmp_lg_u32 s53, 0\ns_cbranch_scc1 L_nofc')
    flagpoll(79,'-1')
    if cfg.ctouch is not None:
        A('s_lshl_b32 s54, s50, %d\ns_add_u32 s54, s54, %d\nv_mov_b32 v7, s54\nglobal_load_dword v13, v7, %s %s\ns_waitcnt vmcnt(0)'%(cfg.cs,CTR,WS,cfg.ctouch))
    A('s_mov_b64 exec, 1\nds_add_u32 v11, v12 offset:%d\ns_mov_b64 exec, -1'%(L_CNT+8))
    A('L_nofc:')
    def paced(k,n,line):
        f=lambda k: cfg.pw0+(k*(cfg.pw1-cfg.pw0))//n
        if k==0 or f(k)!=f(k-1): progress(f(k))
        assert f(k)<cfg.NS
        A(line)
    def dma1(k):
        i=k//2
        return ('v_add_u32 v7, %d, v6\n'%(i*16*3584))+'s_add_u32 m0, s71, %d\ns_nop 0\nglobal_load_lds_dwordx4 v7, %s %s'%(L_WA+32768*(k&1)+i*1024,WU if k&1 else WG,cfg.ff)
    def dma2(i):
        return ('v_add_u32 v7, %d, v6\n'%(i*0x8000))+'s_add_u32 m0, s71, %d\ns_nop 0\nglobal_load_lds_dwordx4 v7, %s %s'%(L_WA+i*1024,WD,cfg.ff)
    l1=newlab('w1'); l2=newlab('w2'); le=newlab('we')
    A('s_cmp_eq_u32 s70, 0\ns_cbranch_scc1 %s\ns_cmp_eq_u32 s70, 2\ns_cbranch_scc1 %s\ns_cmp_lg_u32 s70, 3\ns_cbranch_scc1 %s'%(le,l2,l1))
    A('s_lshl_b32 s54, s67, 7\ns_lshl_b32 s55, s53, 1\ns_add_u32 s54, s54, s55\ns_lshl_b32 s54, s54, 10\ns_lshl_b32 s55, s69, 8\ns_add_u32 s54, s54, s55')
    A('v_lshrrev_b32 v6, 4, v0\nv_lshlrev_b32 v6, 13, v6\nv_and_b32 v7, 15, v0\nv_lshl_add_u32 v6, v7, 4, v6\nv_add_u32 v6, s54, v6')
    A('s_lshl_b32 s71, s53, 13')
    def dmaw(i):
        return 'v_add_u32 v7, %d, v6\ns_add_u32 m0, s71, %d\ns_nop 0\nglobal_load_lds_dwordx4 v7, %s %s'%((32*(i&3)+(i>>2))*1024,L_WA+i*1024,WO,cfg.wf)
    for i in range(0 if cfg.noW else cfg.EW): paced(i,cfg.EW,dmaw(i))
    A('s_branch %s'%le)
    A('%s:'%l1)
    A('s_lshl_b32 s54, s14, 6')
    A('s_lshl_b32 s55, s53, 7\nv_lshrrev_b32 v6, 2, v0\nv_add_u32 v6, s55, v6\nv_mul_u32_u24 v6, 3584, v6\nv_and_b32 v7, 3, v0\nv_lshl_add_u32 v6, v7, 4, v6\nv_add_u32 v6, s54, v6')
    A('s_lshl_b32 s71, s53, 13')
    A('s_cmp_eq_u32 s70, 4\ns_cbranch_scc1 %s'%le)
    for k in range(cfg.E1): paced(k,cfg.E1,dma1(k))
    A('s_branch %s'%le)
    A('%s:'%l2)
    A('s_mul_i32 s54, s53, 448\nv_lshrrev_b32 v6, 1, v0\nv_add_u32 v6, s54, v6\nv_lshlrev_b32 v6, 10, v6')
    A('v_and_b32 v7, 1, v0\nv_lshl_add_u32 v6, v7, 4, v6\ns_lshl_b32 s54, s15, 5\nv_add_u32 v6, s54, v6')
    A('s_mul_i32 s71, s53, 14336')
    for k in range(cfg.E2): paced(k,cfg.E2,dma2(k))
    A('%s:'%le)
    A('s_waitcnt vmcnt(0)')
    A('v_lshlrev_b32 v16, 16, v16')
    lds_sync(1,sleep=4)
    stamp(6)
    l1=newlab('r1'); l2=newlab('r2'); le=newlab('re')
    A('v_mov_b32 v26, 0\nv_mov_b32 v27, 0\nv_mov_b32 v28, 0\nv_mov_b32 v29, 0')
    A('s_cmp_eq_u32 s70, 1\ns_cbranch_scc1 %s\ns_cmp_eq_u32 s70, 2\ns_cbranch_scc1 %s'%(l1,l2))
    A('v_lshrrev_b32 v8, 4, v0\nv_lshlrev_b32 v8, 11, v8\nv_bfe_u32 v7, v0, 2, 2\nv_lshl_add_u32 v8, v7, 8, v8\nv_and_b32 v7, 3, v0\nv_lshl_add_u32 v8, v7, 3, v8')
    A('s_lshl_b32 s54, s53, 6\ns_add_u32 s54, s54, %d\nv_add_u32 v8, s54, v8'%L_WA)
    def trw():
        for t in range(2):
            for s_ in range(4):
                r=80+16*t+4*s_
                A('ds_read_b64_tr_b16 v[%d:%d], v8 offset:%d'%(r,r+1,8192*s_+32*t))
                A('ds_read_b64_tr_b16 v[%d:%d], v8 offset:%d'%(r+2,r+3,8192*s_+32*t+1024))
            if t==0 or cfg.EW==8: A('s_waitcnt lgkmcnt(0)')
    if cfg.EW==8: trw()
    A('s_branch %s'%le)
    A('%s:'%l1)
    A('v_lshrrev_b32 v8, 4, v0\nv_lshlrev_b32 v8, 9, v8\nv_bfe_u32 v7, v0, 2, 2\nv_lshl_add_u32 v8, v7, 6, v8')
    A('v_and_b32 v7, 1, v0\nv_lshl_add_u32 v8, v7, 3, v8\nv_bfe_u32 v7, v0, 1, 1\nv_lshl_add_u32 v8, v7, 15, v8\ns_lshl_b32 s54, s53, 4\ns_add_u32 s54, s54, %d\nv_add_u32 v8, s54, v8'%L_WA)
    A('s_lshl_b32 s54, s14, 2\ns_add_u32 s54, s54, s53\ns_lshl_b32 s54, s54, 7\ns_add_u32 s54, s54, %d'%AB)
    A('v_and_b32 v27, 0x70, v1\nv_lshrrev_b32 v7, 3, v0\nv_lshl_add_u32 v27, v7, 15, v27\nv_add_u32 v27, s54, v27')
    A('s_and_b32 s55, s48, %d\ns_lshl_b32 s55, s55, 14\ns_add_u32 s54, s66, s55\ns_add_u32 s54, s54, %d\nv_add_u32 v4, s54, v1'%(cfg.nH-1,HB))
    A('v_bfe_u32 v5, v0, 2, 1\ns_lshl_b32 s54, s53, 1\nv_add_u32 v5, s54, v5\nv_mul_u32_u24 v5, %d, v5\nv_lshrrev_b32 v7, 3, v0\nv_lshl_add_u32 v5, v7, 5, v5\nv_and_b32 v7, 3, v0\nv_lshl_add_u32 v5, v7, 3, v5'%XNS)
    A('s_branch %s'%le)
    A('%s:'%l2)
    A('v_lshrrev_b32 v8, 4, v0\nv_lshlrev_b32 v8, 9, v8\nv_bfe_u32 v7, v0, 1, 1\nv_lshl_add_u32 v8, v7, 8, v8\nv_bfe_u32 v7, v0, 2, 2\nv_lshl_add_u32 v8, v7, 5, v8')
    A('v_and_b32 v7, 1, v0\nv_lshl_add_u32 v8, v7, 3, v8\ns_add_u32 s55, s71, %d\nv_add_u32 v8, s55, v8'%L_WA)
    A('v_bfe_u32 v26, v0, 2, 1\nv_lshlrev_b32 v26, 10, v26\nv_bfe_u32 v7, v0, 1, 1\nv_lshl_add_u32 v26, v7, 8, v26\nv_lshrrev_b32 v7, 3, v0\nv_lshl_add_u32 v26, v7, 4, v26\nv_and_b32 v7, 1, v0\nv_lshl_add_u32 v26, v7, 3, v26')
    A('s_and_b32 s55, s48, %d\ns_lshl_b32 s55, s55, 15\ns_mul_i32 s54, s53, 7168\ns_add_u32 s54, s54, s55\ns_add_u32 s54, s54, %d\nv_add_u32 v27, s54, v1'%(cfg.nA-1,AB+3072))
    A('s_mov_b32 s54, s15\ns_lshl_b32 s55, s54, 5')
    A('v_lshrrev_b32 v28, 3, v0\nv_lshlrev_b32 v28, 10, v28\nv_and_b32 v7, 7, v0\nv_lshl_add_u32 v28, v7, 2, v28\nv_add_u32 v28, s55, v28')
    A('s_lshl_b32 s54, s54, 7\ns_and_b32 s55, s48, %d\ns_lshl_b32 s55, s55, 14\ns_add_u32 s54, s54, s55\ns_add_u32 s54, s54, %d'%(cfg.nH-1,HB))
    A('v_lshrrev_b32 v29, 4, v0\nv_lshlrev_b32 v29, 12, v29\nv_and_b32 v7, 15, v0\nv_lshl_add_u32 v29, v7, 3, v29\nv_add_u32 v29, s54, v29')
    A('s_lshl_b32 s54, s53, 11\nv_add_u32 v10, s54, v1')
    A('%s:'%le)
    A('s_lshl_b32 s54, s53, 9\nv_add_u32 v17, s54, v3')
    A('s_and_b32 s54, s50, 7\ns_lshl_b32 s54, s54, 2\ns_add_u32 s54, s54, s53\ns_lshl_b32 s54, s54, 3\ns_lshr_b32 s55, s50, 3\ns_add_u32 s54, s54, s55\ns_lshl_b32 s54, s54, 2\ns_add_u32 s54, s54, s51')
    A('s_mul_i32 s54, s54, %d\ns_add_u32 s54, s54, %d\nv_add_u32 v18, s54, v1'%(OPS,OP))
    A('s_mul_i32 s54, s67, %d\ns_add_u32 s54, s54, %d\nv_mul_u32_u24 v25, %d, v2\nv_add_u32 v25, s54, v25\nv_add_u32 v19, v25, v3'%(32*OPS,OP,4*OPS))
    A('s_lshl_b32 s54, s53, 5\nv_mov_b32 v30, s54')
    A('v_mul_u32_u24 v20, %d, v2\nv_lshrrev_b32 v7, 1, v3\nv_add_u32 v20, v20, v7'%XOS)
    A('v_and_b32 v21, 7, v0\nv_mul_u32_u24 v21, %d, v21\nv_add_u32 v21, v21, v15'%XOS)
    A('s_lshl_b32 s54, s69, 2\ns_add_u32 s54, s54, s53\ns_lshl_b32 s54, s54, 6\ns_add_u32 s54, s54, s67\ns_lshl_b32 s54, s54, 7\ns_add_u32 s54, s54, %d'%(WP+2048))
    A('v_bfe_u32 v22, v0, 1, 2\nv_lshlrev_b32 v22, 17, v22\nv_and_b32 v7, 1, v0\nv_lshl_add_u32 v22, v7, 6, v22\nv_add3_u32 v22, v22, v15, s54')
    A('s_lshl_b32 s54, s13, 12\ns_add_u32 s54, s54, %d\nv_add_u32 v23, s54, v1'%WP)
    def guarded(lines):
        A(lines)
    def drychk():
        pass
    for r in range(192,246): A('v_mov_b32 v%d, -1'%r)
    A('s_waitcnt lgkmcnt(0)')
    A('s_mov_b64 vcc, 0\ns_mov_b64 s[4:5], %d\ns_mov_b64 exec, s[4:5]'%(0 if cfg.warm else -1))
    A('L_tail:')
    stamp(7)
    guarded('s_barrier')
    def wsum(b0,half,s0=None):
        d='v[%d:%d]'%(b0+2*half,b0+2*half+1)
        s0=s0 or b0
        for w in range(4):
            src='v[%d:%d]'%(s0+4*w+2*half,s0+4*w+2*half+1)
            f='v[%d:%d]'%(72+2*(w//2),73+2*(w//2))
            if w==0: A('v_pk_mul_f32 %s, %s, %s op_sel_hi:[1,0]'%(d,src,f))
            elif w%2==0: A('v_pk_fma_f32 %s, %s, %s, %s op_sel_hi:[1,0,1]'%(d,src,f,d))
            else: A('v_pk_fma_f32 %s, %s, %s, %s op_sel:[0,1,0] op_sel_hi:[1,1,1]'%(d,src,f,d))
    if cfg.gleak is not None:
        k,lo,hi,msk=cfg.gleak
        A('s_cbranch_execz L_nogl\ns_cmp_lg_u32 s53, 0\ns_cbranch_scc1 L_nogl')
        if k>=100: A('v_mov_b32 v32, %d\nds_read_b32 v33, v32 offset:%d\ns_waitcnt lgkmcnt(0)'%(4*(k-100),L_ST))
        else: A('v_mov_b32 v33, s%d'%(72+2*k))
        A('v_not_b32 v33, v33\nv_mov_b32 v34, s72\nv_mov_b32 v32, 0x22f000')
        A('s_mov_b64 exec, 1')
        A('global_atomic_umin v32, v34, %s'%WS)
        A('s_and_b32 s54, s2, %d\ns_sub_u32 s54, s54, %d\ns_cmp_ge_u32 s54, %d\ns_cbranch_scc1 L_nogl2'%(msk,lo,hi-lo))
        A('global_atomic_umin v32, v33, %s offset:256'%WS)
        A('L_nogl2:\ns_mov_b64 exec, -1\ns_waitcnt vmcnt(0)')
        A('L_nogl:')
    A('ds_read_b128 v[64:67], v30 offset:%d\nds_read_b128 v[68:71], v30 offset:%d'%(L_MLW,L_MLW+16))
    for w in range(4):
        A('ds_read_b128 v[%d:%d], v17 offset:%d'%(32+4*w,35+4*w,L_OW+2048*w))
    stamp(8)
    if cfg.notail: A('s_branch L_fin')
    A('s_and_b32 exec_hi, s4, 1')
    A('s_waitcnt lgkmcnt(%d)'%(0 if cfg.diag else 4))
    A('v_max3_f32 v76, v64, v65, v66\nv_max_f32 v76, v76, v67')
    A('v_pk_add_f32 v[72:73], v[64:65], v[76:77] op_sel_hi:[1,0] neg_lo:[0,1] neg_hi:[0,1]')
    A('v_pk_add_f32 v[74:75], v[66:67], v[76:77] op_sel_hi:[1,0] neg_lo:[0,1] neg_hi:[0,1]')
    for i in range(4): A('v_exp_f32 v%d, v%d'%(72+i,72+i))
    A('v_pk_mul_f32 v[68:69], v[68:69], v[72:73]\nv_pk_fma_f32 v[68:69], v[70:71], v[74:75], v[68:69]')
    A('s_waitcnt lgkmcnt(0)')
    A('v_add_f32 v77, v68, v69')
    wsum(32,0); wsum(32,1)
    A('v_mov_b32_dpp v32, v76 quad_perm:[0,1,2,3] row_mask:0x4 bank_mask:0xf')
    A('v_mov_b32_dpp v33, v77 quad_perm:[0,1,2,3] row_mask:0x4 bank_mask:0xf')
    guarded('global_store_dwordx4 v18, v[32:35], %s sc1'%WS)
    tstamp(1)
    A('s_mov_b64 exec, s[4:5]')
    A('s_cmp_lg_u32 s70, 3\ns_cbranch_scc1 L_rdone')
    if cfg.EW<8:
        for i in range(cfg.EW,8): A(dmaw(i))
        A('s_waitcnt vmcnt(0)\ns_barrier')
        trw()
    apoll(['global_load_dwordx2 v[%d:%d], v25, %s offset:%d sc1'%(208+2*s_,209+2*s_,WS,OPS*s_+512) for s_ in range(4)]+
         ['global_load_dwordx4 v[%d:%d], v19, %s offset:%d sc1'%(192+4*s_,195+4*s_,WS,OPS*s_) for s_ in range(4)],cfg.pW)
    stamp(9)
    A('v_max3_f32 v76, v208, v210, v212\nv_max_f32 v76, v76, v214')
    for i in range(4): A('v_sub_f32 v%d, v%d, v76'%(72+i,208+2*i))
    for i in range(4): A('v_exp_f32 v%d, v%d'%(72+i,72+i))
    A('v_mul_f32 v78, v72, v209')
    for i in range(1,4): A('v_fmac_f32 v78, v%d, v%d'%(72+i,209+2*i))
    A('v_rcp_f32 v78, v78')
    wsum(48,0,192); wsum(48,1,192)
    A('v_pk_mul_f32 v[48:49], v[48:49], v[78:79] op_sel_hi:[1,0]\nv_pk_mul_f32 v[50:51], v[50:51], v[78:79] op_sel_hi:[1,0]')
    A('v_cvt_pk_bf16_f32 v48, v48, v49\nv_cvt_pk_bf16_f32 v49, v50, v51')
    A('ds_write_b64 v20, v[48:49] offset:%d'%L_XO)
    A('s_waitcnt lgkmcnt(0)'); guarded('s_barrier')
    if cfg.tdiag: tstamp(2); A('s_waitcnt lgkmcnt(0)')
    for s_ in range(4):
        A('ds_read_b128 v[%d:%d], v21 offset:%d'%(32+4*s_,35+4*s_,L_XO+64*s_))
    for s_ in range(4):
        A('s_waitcnt lgkmcnt(%d)'%(3-s_))
        for t in range(2):
            acc='v[%d:%d]'%(48+4*t,51+4*t); r=80+16*t+4*s_
            A('v_mfma_f32_16x16x32_bf16 %s, v[%d:%d], v[%d:%d], %s'%(acc,r,r+3,32+4*s_,35+4*s_,'0' if s_==0 else acc))
    A('s_mov_b32 exec_lo, 0x00ff00ff\ns_mov_b32 exec_hi, 0x00ff00ff')
    A('s_nop 4')
    A('global_store_dwordx4 v22, v[48:51], %s offset:-2048 sc1'%WS)
    A('global_store_dwordx4 v22, v[52:55], %s offset:2048 sc1'%WS)
    tstamp(3)
    A('s_mov_b64 exec, -1')
    A('s_cmp_lg_u32 s53, 0\ns_cbranch_scc1 L_fin')
    apoll(['global_load_dwordx4 v[%d:%d], v23, %s offset:%d sc1'%(216+4*t,219+4*t,WS,1024*t) for t in range(4)],cfg.pR)
    stamp(10)
    A('v_pk_add_f32 v[32:33], v[216:217], v[220:221]\nv_pk_add_f32 v[34:35], v[218:219], v[222:223]')
    A('v_pk_add_f32 v[40:41], v[224:225], v[228:229]\nv_pk_add_f32 v[42:43], v[226:227], v[230:231]')
    A('v_pk_add_f32 v[32:33], v[32:33], v[40:41]\nv_pk_add_f32 v[34:35], v[34:35], v[42:43]')
    A('s_nop 1\nv_permlane32_swap_b32 v32, v34\nv_permlane32_swap_b32 v33, v35')
    A('v_add_f32 v32, v32, v34\nv_add_f32 v33, v33, v35')
    A('s_nop 1\nv_permlane16_swap_b32 v32, v33\nv_add_f32 v32, v32, v33')
    dppadd(32,'row_ror:8')
    rbf(32)
    A('v_add_f32 v32, v32, v16')
    rbf(32)
    A('v_mov_b32 v33, v32\ns_nop 1\nv_permlane16_swap_b32 v32, v33\nv_mov_b32 v34, v32\nv_mov_b32 v35, v33\ns_nop 0')
    A('v_permlane32_swap_b32 v32, v34\nv_permlane32_swap_b32 v33, v35')
    if cfg.nH<8: A('s_and_b32 exec_lo, s4, 0x%x\ns_mov_b32 exec_hi, 0'%((1<<(8*cfg.nH))-1))
    guarded('global_store_dwordx4 v24, v[32:35], %s sc1'%WS)
    tstamp(4)
    A('s_branch L_fin')
    A('L_rdone:')
    A('s_cmp_eq_u32 s70, 2\ns_cbranch_scc1 L_ffn2')
    A('s_cmp_eq_u32 s70, 0\ns_cbranch_scc1 L_fin')
    if cfg.lrot:
        assert cfg.E1%2==0
        i0=cfg.E1//2; n=8-i0
        if cfg.helper: A('s_and_b32 s6, s14, 1\ns_cmp_eq_u32 s70, 4\ns_cselect_b32 s6, 2, s6\ns_mul_i32 s6, s6, %d\ns_add_u32 s6, s6, %d'%(n//3,i0))
        else: A('s_and_b32 s6, s14, 1\ns_mul_i32 s6, s6, %d\ns_add_u32 s6, s6, %d'%(n//2,i0))
        for it in range(n):
            if cfg.helper and it==n-2*(n//3): A('s_cmp_eq_u32 s70, 4\ns_cbranch_scc1 L_fin')
            A('s_mul_i32 s7, s6, %d\nv_add_u32 v7, s7, v6\ns_lshl_b32 s7, s6, 10\ns_add_u32 s7, s7, s71\ns_add_u32 m0, s7, %d\ns_add_u32 s6, s6, 1'%(16*3584,L_WA))
            A('global_load_lds_dwordx4 v7, %s %s'%(WG,cfg.ff))
            A('s_add_u32 m0, s7, %d\ns_cmp_eq_u32 s6, 8\ns_cselect_b32 s6, %d, s6'%(L_WA+32768,i0))
            A('global_load_lds_dwordx4 v7, %s %s'%(WU,cfg.ff))
    else:
        for k in range(cfg.E1,16): A(dma1(k))
    A('s_waitcnt vmcnt(0)\ns_barrier')
    for s_ in range(16):
        A('ds_read_b64_tr_b16 v[%d:%d], v8 offset:%d'%(96+4*s_,97+4*s_,2048*s_))
        A('ds_read_b64_tr_b16 v[%d:%d], v8 offset:%d'%(98+4*s_,99+4*s_,2048*s_+256))
        if s_%4==3: A('s_waitcnt lgkmcnt(0)')
    tstamp(2)
    apoll(['global_load_dwordx4 v[%d:%d], v4, %s offset:%d sc1'%(216+4*t,219+4*t,WS,1024*t) for t in range(4)],cfg.pF)
    stamp(11)
    layernorm('h')
    tstamp(5)
    A('s_waitcnt lgkmcnt(0)'); guarded('s_barrier')
    if cfg.tdiag: tstamp(6); A('s_waitcnt lgkmcnt(0)')
    for s_ in range(8):
        A('ds_read_b128 v[%d:%d], v9 offset:%d'%(32+4*s_,35+4*s_,L_XN+64*s_))
    for s_ in range(16):
        A('s_waitcnt lgkmcnt(%d)'%min(7,15-s_))
        b=32+4*(s_%8) if s_<8 else 160+4*(s_-8)
        A('v_mfma_f32_16x16x32_bf16 v[64:67], v[%d:%d], v[%d:%d], %s'%(96+4*s_,99+4*s_,b,b+3,'0' if s_==0 else 'v[64:67]'))
        if s_<8: A('ds_read_b128 v[%d:%d], v9 offset:%d'%(160+4*s_,163+4*s_,L_XN+64*(s_+8)))
    A('s_nop 7')
    A('v_permlane32_swap_b32 v64, v65\nv_permlane32_swap_b32 v66, v67')
    A('s_nop 1')
    A('v_mov_b32_dpp v64, v66 quad_perm:[0,1,2,3] row_mask:0xf bank_mask:0xc')
    A('v_mov_b32_dpp v65, v67 quad_perm:[0,1,2,3] row_mask:0xf bank_mask:0xc')
    A('v_cvt_pk_bf16_f32 v32, 0, v64\nv_cvt_pk_bf16_f32 v36, 0, v65')
    A('v_mul_f32 v33, v32, v32\nv_mul_f32 v33, 0x3d372713, v33\nv_fma_f32 v33, v33, v32, v32')
    A('v_mul_f32 v33, 0xc0135761, v33\nv_exp_f32 v33, v33\ns_nop 0\nv_add_f32 v33, 1.0, v33\nv_rcp_f32 v33, v33\ns_nop 0\nv_mul_f32 v33, v33, v32')
    rbf(33)
    A('v_mul_f32 v33, v33, v36\nv_mov_b32 v34, v33\ns_nop 1\nv_permlane32_swap_b32 v33, v34')
    A('v_cvt_pk_bf16_f32 v33, v33, v34\nv_min_u32 v36, -2, v33')
    A('v_mov_b32 v32, v36\nv_mov_b32 v33, v36\ns_nop 0')
    A('v_mov_b32_dpp v32, v36 row_ror:8 row_mask:0xf bank_mask:0xc\nv_mov_b32_dpp v33, v36 row_ror:8 row_mask:0xf bank_mask:0x3')
    A('v_mov_b32 v34, v32\nv_mov_b32 v35, v33\ns_nop 0')
    A('v_permlane16_swap_b32 v32, v34\nv_permlane16_swap_b32 v33, v35')
    if cfg.nA<8: A('s_and_b32 exec_lo, s4, 0x%x\ns_mov_b32 exec_hi, 0'%((1<<(8*cfg.nA))-1))
    guarded('global_store_dwordx4 v27, v[32:35], %s sc1'%WS)
    stamp(12)
    A('L_fin:')
    A('s_waitcnt vmcnt(0)')
    if cfg.diag:
        dump_stamps(14,8)
    A('s_endpgm')
    A('L_ffn2:')
    if cfg.lrot:
        n=14-cfg.E2
        A('s_and_b32 s6, s15, 3\ns_mul_i32 s6, s6, %d\ns_lshr_b32 s6, s6, 2\ns_add_u32 s6, s6, %d'%(n,cfg.E2))
        for _ in range(n):
            A('s_lshl_b32 s7, s6, 15\nv_add_u32 v7, s7, v6\ns_lshl_b32 s7, s6, 10\ns_add_u32 s7, s7, s71\ns_add_u32 m0, s7, %d\ns_add_u32 s6, s6, 1'%L_WA)
            A('global_load_lds_dwordx4 v7, %s %s'%(WD,cfg.ff))
            A('s_cmp_eq_u32 s6, 14\ns_cselect_b32 s6, %d, s6'%cfg.E2)
    else:
        for k in range(cfg.E2,14): A(dma2(k))
    A('s_waitcnt vmcnt(0)')
    for t in range(7):
        for tt in range(2):
            r=96+8*t+4*tt
            A('ds_read_b64_tr_b16 v[%d:%d], v8 offset:%d'%(r,r+1,2048*t+16*tt))
            A('ds_read_b64_tr_b16 v[%d:%d], v8 offset:%d'%(r+2,r+3,2048*t+16*tt+128))
        if t%2==0: A('s_waitcnt lgkmcnt(0)')
    tstamp(2)
    poll(guard=True,loads=['global_load_dwordx2 v[60:61], v29, %s sc1'%WS],regs=[60,61])
    apoll(['global_load_dwordx4 v[%d:%d], v27, %s offset:%d sc1'%(216+4*t,219+4*t,WS,1024*t-3072) for t in range(7)],cfg.pG)
    stamp(10)
    for t in range(7):
        for tt in range(2):
            acc='v[%d:%d]'%(64+4*tt,67+4*tt)
            r=96+8*t+4*tt
            A('v_mfma_f32_16x16x32_bf16 %s, v[%d:%d], v[%d:%d], %s'%(acc,r,r+3,216+4*t,219+4*t,'0' if t==0 else acc))
    A('s_nop 6')
    A('ds_write_b128 v10, v[64:67] offset:%d'%L_DP)
    A('ds_write_b128 v10, v[68:71] offset:%d'%(L_DP+1024))
    A('s_waitcnt lgkmcnt(0)'); guarded('s_barrier')
    tstamp(6)
    A('s_cmp_lg_u32 s53, 0\ns_cbranch_scc1 L_fin')
    for w in range(4):
        A('ds_read_b64 v[%d:%d], v26 offset:%d'%(32+4*w,33+4*w,L_DP+2048*w))
        A('ds_read_b64 v[%d:%d], v26 offset:%d'%(34+4*w,35+4*w,L_DP+2048*w+640))
    A('s_waitcnt lgkmcnt(0)')
    for w in range(4): A('v_pk_add_f32 v[%d:%d], v[%d:%d], v[%d:%d]'%(32+4*w,33+4*w,32+4*w,33+4*w,34+4*w,35+4*w))
    A('v_pk_add_f32 v[32:33], v[32:33], v[36:37]\nv_pk_add_f32 v[40:41], v[40:41], v[44:45]\nv_pk_add_f32 v[32:33], v[32:33], v[40:41]')
    A('v_cvt_pk_bf16_f32 v32, 0, v32\nv_cvt_pk_bf16_f32 v33, 0, v33')
    A('v_pk_add_f32 v[32:33], v[32:33], v[60:61]')
    A('v_cvt_pk_bf16_f32 v32, v32, v33')
    guarded('global_store_dword v28, v32, %s %s'%(OUT,cfg.of))
    drychk()
    if cfg.diag:
        stamp(13)
        if cfg.leak is not None:
            a,b=cfg.leak
            A('s_waitcnt lgkmcnt(0)')
            if cfg.gleak is not None:
                A('v_mov_b32 v8, 0x22f000\nglobal_load_dword v9, v8, %s sc1\nglobal_load_dword v10, v8, %s offset:256 sc1\ns_waitcnt vmcnt(0)'%(WS,WS))
                if b==13: A('v_mov_b32 v10, s%d'%(72+2*13))
                else: A('v_not_b32 v10, v10')
                A('v_sub_u32 v9, v10, v9\ns_nop 1\nv_readfirstlane_b32 s54, v9')
                if b==0: A('s_mov_b32 s54, 0')
            elif b>=100:
                A('v_mov_b32 v8, %d\nds_read_b32 v9, v8 offset:%d\ns_waitcnt lgkmcnt(0)\nv_readfirstlane_b32 s54, v9\ns_sub_u32 s54, s54, s%d'%(4*(b-100),L_ST,72+2*a))
            else: A('s_sub_u32 s54, s%d, s%d'%(72+2*b,72+2*a))
            A('s_mul_i32 s54, s54, %d\ns_min_u32 s54, s54, 60000'%cfg.mult)
            A('L_leak:')
            A('s_memrealtime s[68:69]\ns_waitcnt lgkmcnt(0)\ns_sub_u32 s55, s68, s%d\ns_cmp_lt_u32 s55, s54\ns_cbranch_scc1 L_leak'%(72+2*13))
        else:
            A('s_waitcnt lgkmcnt(0)\ns_mov_b32 s100, s92\ns_mov_b32 s92, 0')
            dump_stamps(15,8)
    A('L_end:')
    A('s_endpgm')
    A('.section .rodata,"a"\n.p2align 6\n.amdhsa_kernel %s'%K)
    A('  .amdhsa_next_free_vgpr 256\n  .amdhsa_next_free_sgpr 102\n  .amdhsa_accum_offset 256\n  .amdhsa_group_segment_fixed_size 0\n  .amdhsa_kernarg_size 96')
    A('  .amdhsa_user_sgpr_count 2\n  .amdhsa_user_sgpr_kernarg_segment_ptr 1\n  .amdhsa_system_sgpr_workgroup_id_x 1')
    A('  .amdhsa_float_denorm_mode_32 3\n  .amdhsa_float_denorm_mode_16_64 3')
    A('.end_amdhsa_kernel')
    return '\n'.join(L)+'\n'

if __name__=='__main__':
    cfg=Cfg()
    out=sys.argv[1]
    for a in sys.argv[2:]:
        k,v=a.split('=',1); setattr(cfg,k,eval(v))
    s=gen(cfg)
    hdr=''.join(l for l in open('cdna_kernels/%s.s.ref'%NAME).readlines()[:13])
    open(out,'w').write(hdr+s)
```

```python
import sys
NAME='sequential_preLN__gqa_block_cached__geglu_ffn__decode'
K=NAME+'_kernel'

class Cfg:
    diag=False
    leak=None
    nocomp=False
    noq=False
    T2=12
    sdiag=False
    mult=1
    Q1=0; Q2=0
    E1=0; E2=0; EW=8; lrot=True; helper=False
    T0=None; n0=24
    qflag=True
    chunk=0
    bare=0
    notail=False
    knat=False
    cdbg=False
    ctouch=None
    rot=4
    cs=9
    nowq=False
    noqst=False
    nH=8; nA=8
    pW=('c',1,0); pR=('m',8,1); pF=('c',1,0); pG=('c',1,0)
    tdiag=False
    tsleep=0
    crot=0
    noclr=False
    wolate=False
    warm=False
    of=''
    gleak=None
    NS=28
    sflag=False
    svcfirst=0
    spin=1<<17
    T=5
    kf='nt'; vf='nt'; wf='nt'; ff=''
    pq=3
    pw0=7
    pw1=22
    noW=False

QP=0x0
CTR=0x230000
FLG=0x80000
CLR=0x100000
WP=0x100000
OP=0x180000
OPS=640
HB=0x240000
AB=0x260000
STAMP=0x10000000
L_CNT=0
L_MLW=64
L_QL=256
L_XN=1280
XNS=1040
L_XO=9600
XOS=272
L_DP=11776
L_OW=19968
L_ST=28160
L_PR=28416
L_WB=29696
L_WA=L_WB+16384
LDS_BYTES=L_WA+65536

LOG2E=0x3fb8aa3b
SCALE=0x3db504f3

def gen(cfg):
    L=[]
    def A(s):
        L.extend(s.split('\n'))
    lab=[0]
    def newlab(p):
        lab[0]+=1
        return 'L_%s_%d'%(p,lab[0])
    X,KP,VP,WQ,WO,BX,WG,WU,WD,OUT,DBG,WS=['s[%d:%d]'%(16+2*i,17+2*i) for i in range(12)]
    def stamp(i):
        if cfg.diag: A('s_memrealtime s[%d:%d]'%(72+2*i,73+2*i))
    def tstamp(i):
        if cfg.tdiag: stamp(i)
    def pack_stamps(n,vt):
        A('s_waitcnt lgkmcnt(0)')
        A('v_mov_b32 v%d, 0'%vt)
        for i in range(n): A('v_writelane_b32 v%d, s%d, %d'%(vt,72+2*i,i))
    def dump_stamps(n,vt):
        if not cfg.diag: return
        A('s_mov_b64 exec, -1')
        pack_stamps(n,vt)
        A('v_lshlrev_b32 v%d, 2, v0'%(vt+1))
        A('ds_read_b32 v%d, v%d offset:%d'%(vt+2,vt+1,L_ST))
        A('s_lshl_b32 s66, s2, 9\ns_add_u32 s66, s66, %d'%(STAMP))
        A('v_add_u32 v%d, s66, v%d'%(vt+1,vt+1))
        A('s_mov_b64 exec, 0xffff')
        A('s_waitcnt lgkmcnt(0)')
        A('global_store_dword v%d, v%d, %s'%(vt+1,vt+2,WS))
        A('s_lshl_b32 s66, s53, 6\nv_add_u32 v%d, s66, v%d'%(vt+1,vt+1))
        A('global_store_dword v%d, v%d, %s offset:64'%(vt+1,vt,WS))

    A('; @launch grid=(256,1,1) block=(512,1,1) lds=%d'%LDS_BYTES)
    A('.amdgcn_target "amdgcn-amd-amdhsa--gfx950"\n.text\n.globl %s\n.p2align 8\n.type %s,@function\n%s:'%(K,K,K))
    A('s_cmp_ge_u32 s2, 256\ns_cbranch_scc1 L_end')
    A('s_load_dwordx16 s[16:31], s[0:1], 0')
    A('s_load_dwordx8 s[32:39], s[0:1], 64')
    if cfg.diag:
        for i in range(1,14): A('s_mov_b32 s%d, 0'%(72+2*i))
    stamp(0)
    A('v_lshrrev_b32 v1, 6, v0')
    A('v_lshlrev_b32 v3, 2, v0')
    A('v_and_b32 v0, 63, v0')
    A('v_readfirstlane_b32 s52, v1')
    A('s_and_b32 s48, s2, 7\ns_lshr_b32 s49, s2, 3\ns_lshl_b32 s50, s49, 1\ns_bfe_u32 s54, s2, 0x10001\ns_or_b32 s50, s50, s54')
    A('s_and_b32 s51, s2, 1\ns_bfe_u32 s54, s2, 0x10002\ns_lshl_b32 s54, s54, 1\ns_or_b32 s51, s51, s54')
    A('s_mov_b32 s59, 0x%x\ns_mov_b32 s60, 0xffff0000'%(LOG2E))
    A('v_lshlrev_b32 v1, 4, v0')
    A('s_cmp_ge_u32 s52, 4\ns_cbranch_scc1 L_service')

    import math
    TH=math.ceil(cfg.T)
    NS=cfg.NS
    RB=64
    A('s_lshl_b32 s54, s50, 21')
    A('s_lshl_b32 s62, s51, 2\ns_add_u32 s62, s62, s52')
    for i in range(4): A('s_add_u32 s%d, s62, %d\ns_and_b32 s%d, s%d, 15\ns_lshl_b32 s%d, s%d, 12'%(8+i,cfg.rot*i,8+i,8+i,8+i,8+i))
    A('v_lshrrev_b32 v2, 4, v0\nv_lshlrev_b32 v2, 6, v2\nv_and_b32 v4, 3, v0\nv_lshl_add_u32 v2, v4, 4, v2')
    A('v_bfe_u32 v5, v0, 2, 2\nv_lshl_add_u32 v2, v5, 8, v2')
    if cfg.knat: A('v_mov_b32 v2, v1')
    A('s_mov_b32 s42, 0x200000\ns_mov_b32 s43, 0x20000\ns_mov_b32 s46, 0x200000\ns_mov_b32 s47, 0x20000')
    A('v_mov_b32 v30, 0')
    A('s_waitcnt lgkmcnt(0)')
    A('s_add_u32 s40, s18, s54\ns_addc_u32 s41, s19, 0\ns_and_b32 s41, s41, 0xffff')
    A('s_add_u32 s44, s20, s54\ns_addc_u32 s45, s21, 0\ns_and_b32 s45, s45, 0xffff')
    st={'n':0}
    def adv():
        if cfg.rot: A('s_add_u32 s68, s62, %d\ns_and_b32 s68, s68, 15\ns_andn2_b32 s62, s62, 15\ns_add_u32 s62, s62, 16\ns_or_b32 s62, s62, s68'%cfg.rot)
        else: A('s_add_u32 s62, s62, 16')
    def load(slot,j,throttle=True,th=None):
        if j==0: A('s_lshl_b32 s65, s62, 12')
        if throttle:
            t_=(th or cfg.T); lo=int(t_); fr=t_-lo
            w=lo+(1 if (int((j+1)*fr+1e-9)>int(j*fr+1e-9)) else 0)
            A('s_waitcnt vmcnt(%d)'%(w-1))
        r=RB+slot*32+j*4
        t=j//4
        A('buffer_load_dwordx4 v[%d:%d], %s, %s, s65 offen offset:%d %s'%(r,r+3,'v2' if t==0 else 'v1','s[40:43]' if t==0 else 's[44:47]',(j%4)*1024,cfg.kf if t==0 else cfg.vf))
    def prog(val):
        A('v_mov_b32 v30, %s\nds_write_b32 v3, v30 offset:%d'%(val,L_PR))
    NK=NS//2
    assert NS%2==0 and NK>=10 and NK<=15
    slot_of={u:u for u in range(6)}
    slot_of.update({6:0,7:1,8:2})
    for u in range(9,NS+1): slot_of[u]=(u-9)&1
    tr={'issued':0}
    def sload():
        n=tr['issued']; G=n//8; j=n%8
        tr['issued']=n+1
        if G==NS:
            load(slot_of[G],j,th=cfg.T); return
        t=G//NK; k=2*(G%NK)+j//4
        if j%4==0: A('s_add_u32 s65, s%d, %d'%(8+k%4,k*65536))
        w=cfg.T0 if (cfg.T0 and n<cfg.n0) else TH
        if n>=w: A('s_waitcnt vmcnt(%d)'%(w-1))
        r=RB+slot_of[G]*32+j*4
        A('buffer_load_dwordx4 v[%d:%d], %s, %s, s65 offen offset:%d %s'%(r,r+3,'v2' if t==0 else 'v1','s[40:43]' if t==0 else 's[44:47]',(j%4)*1024,cfg.kf if t==0 else cfg.vf))
        if j==7 and n>=15: prog(G+1)
    def pro_issue(n0,n1):
        assert tr['issued']==n0
        for n in range(n0,n1): sload()
    if cfg.svcfirst: A('s_barrier')
    if cfg.sdiag: stamp(6)
    pro_issue(0,TH)
    if cfg.sdiag: stamp(7)
    A('ds_write_b32 v3, v30 offset:%d'%L_PR)
    A('s_mov_b32 s56, 0x05040100\ns_mov_b32 s57, 0x07060302\ns_mov_b32 s58, 0x%x'%SCALE)
    A('s_lshl_b32 s54, s50, %d\ns_add_u32 s54, s54, %d\ns_add_u32 s66, s38, s54\ns_addc_u32 s67, s39, 0'%(cfg.cs,CTR))
    if cfg.cdbg: A('s_lshl_b32 s54, s50, 9\ns_add_u32 s54, s54, 4096\ns_add_u32 s66, s36, s54\ns_addc_u32 s67, s37, 0')
    A('s_lshl_b32 s55, s52, 11')
    A('v_lshlrev_b32 v4, 9, v4\nv_and_b32 v0, 0x30, v0\nv_add3_u32 v0, v4, v0, s55')
    A('v_mov_b32 v14, 0xff800000')
    A('s_waitcnt lgkmcnt(0)')
    A('s_barrier')
    if cfg.sdiag:
        stamp(9); A('s_waitcnt vmcnt(%d)'%(TH-1)); stamp(10)
    pro_issue(TH,48)
    stamp(1)
    if cfg.qflag:
        A('v_mov_b32 v31, 0\nL_qw:\nds_read_b32 v15, v31 offset:%d\ns_waitcnt lgkmcnt(0)\nv_readfirstlane_b32 s54, v15\ns_cmp_eq_u32 s54, 0\ns_cbranch_scc1 L_qw'%(L_CNT+16))
    else: A('s_barrier')
    A('ds_read_b128 v[4:7], v1 offset:%d'%L_QL)
    stamp(2)
    A('s_waitcnt lgkmcnt(0)')
    def kpart(slot,fill):
        B=RB+slot*32
        f=list(fill)
        def nxt():
            if f: f.pop(0)()
        D=[20,B,B+4,B+8]
        if cfg.nocomp:
            while f: nxt()
            return
        for i in range(4):
            A('v_mfma_f32_16x16x32_bf16 v[%d:%d], v[%d:%d], v[4:7], 0'%(D[i],D[i]+3,B+4*i,B+4*i+3))
        A('s_nop 7')
        for h in range(2):
            for step in range(3):
                for e in range(2):
                    be=2*e+h
                    S=18+e
                    A('v_add_f32_dpp v%d, v%d, v%d row_ror:%d row_mask:0xf bank_mask:0x%x'%(S,D[be]+((be+step+1)&3),(D[be]+be) if step==0 else S,12-4*step,1<<be))
                A('s_nop 0')
        nxt()
        A('s_nop 0')
        A('v_mov_b32_dpp v18, v19 quad_perm:[0,1,2,3] row_mask:0xf bank_mask:0xc')
        A('v_cvt_pk_bf16_f32 v18, 0, v18\nv_mul_f32 v18, s58, v18\nv_cvt_pk_bf16_f32 v18, 0, v18')
        A('v_max_f32 v15, v14, v18')
        A('s_nop 1\nv_max_f32_dpp v15, v15, v15 row_ror:4 row_mask:0xf bank_mask:0xf')
        A('s_nop 1\nv_max_f32_dpp v15, v15, v15 row_ror:8 row_mask:0xf bank_mask:0xf')
        A('v_mov_b32 v31, v15\ns_nop 1\nv_permlane16_swap_b32 v15, v31\nv_max_f32 v15, v15, v31')
        A('v_mov_b32 v31, v15\ns_nop 1\nv_permlane32_swap_b32 v15, v31\nv_max_f32 v15, v15, v31')
        nxt()
        A('v_sub_f32 v16, v14, v15\nv_sub_f32 v18, v18, v15\nv_cmp_neq_f32 vcc, v14, v15\nv_mul_f32 v16, s59, v16\nv_mul_f32 v18, s59, v18')
        A('v_exp_f32 v16, v16\nv_exp_f32 v18, v18\nv_mov_b32 v14, v15\nv_mul_f32 v17, s59, v15')
        A('v_mov_b32_dpp v19, v18 row_ror:12 row_mask:0xf bank_mask:0xf')
        A('v_cvt_pk_bf16_f32 v8, v18, v19')
        l=newlab('nr')
        A('s_cbranch_vccz %s'%l)
        for r in range(32,64,2):
            A('v_pk_mul_f32 v[%d:%d], v[%d:%d], v[16:17] op_sel_hi:[1,0]'%(r,r+1,r,r+1))
        A('v_mul_f32 v24, v24, v16')
        A('%s:'%l)
        A('s_nop 0')
        A('v_mov_b32_dpp v9, v8 row_ror:8 row_mask:0xf bank_mask:0xf')
        while f: nxt()
    def vpart(slot):
        B=RB+slot*32+16
        if cfg.nocomp: return
        def perms(j):
            Tt=10+2*(j&1)
            for ii in range(2):
                A('v_perm_b32 v%d, v%d, v%d, s%d'%(Tt+ii,B+4*(2*ii+1)+(j>>1),B+4*(2*ii)+(j>>1),56+(j&1)))
        perms(0)
        for j in range(8):
            if j<7: perms(j+1)
            else: A('v_mfma_f32_16x16x16_bf16 v[24:27], v[28:29], v[8:9], v[24:27]')
            Tt=10+2*(j&1)
            A('v_mfma_f32_16x16x16_bf16 v[%d:%d], v[%d:%d], v[8:9], v[%d:%d]'%(32+4*j,35+4*j,Tt,Tt+1,32+4*j,35+4*j))
    SC=[8,9,10,11,12,13,20,21,22,23,25,26,27,28,29][:NK]
    RV=RB+5*32; TV=RV+4
    def need(n):
        rem=tr['issued']-n
        assert rem>=0
        if rem<TH: A('s_waitcnt vmcnt(%d)'%rem)
    def spread(chunks,nl):
        m=len(chunks)
        for i,c in enumerate(chunks):
            if not cfg.nocomp: A(c)
            for _ in range((nl*(i+1))//m-(nl*i)//m): sload()
    def kgroup(G):
        B=RB+slot_of[G]*32
        ch=['\n'.join('v_mfma_f32_16x16x32_bf16 v[%d:%d], v[%d:%d], v[4:7], 0'%(32+4*i,35+4*i,B+4*i,B+4*i+3) for i in range(8))+'\ns_nop 1']
        for be in range(4):
            c=[]
            for step in range(3):
                for e in range(2):
                    D=32+4*(2*be+e); S=18+e
                    c.append('v_add_f32_dpp v%d, v%d, v%d row_ror:%d row_mask:0xf bank_mask:0x%x'%(S,D+((be+step+1)&3),(D+be) if step==0 else S,12-4*step,1<<be))
                c.append('s_nop 0')
            ch.append('\n'.join(c))
        ch[-1]+='\nv_cvt_pk_bf16_f32 v15, 0, v18\nv_cvt_pk_bf16_f32 v16, 0, v19\nv_mul_f32 v15, s58, v15\nv_mul_f32 v16, s58, v16'
        ch[-1]+='\nv_cvt_pk_bf16_f32 v%d, v15, v16\nv_cvt_pk_bf16_f32 v15, 0, v15\nv_cvt_pk_bf16_f32 v16, 0, v16\nv_max3_f32 v14, v14, v15, v16'%SC[G]
        return ch
    def wred(op,r):
        return ('s_nop 1\n%s_dpp v%d, v%d, v%d row_ror:4 row_mask:0xf bank_mask:0xf\ns_nop 1\n%s_dpp v%d, v%d, v%d row_ror:8 row_mask:0xf bank_mask:0xf\n'%(op,r,r,r,op,r,r,r)+
                'v_mov_b32 v31, v%d\ns_nop 1\nv_permlane16_swap_b32 v%d, v31\n%s v%d, v%d, v31\n'%(r,r,op,r,r)+
                'v_mov_b32 v31, v%d\ns_nop 1\nv_permlane32_swap_b32 v%d, v31\n%s v%d, v%d, v31'%(r,r,op,r,r))
    def softmax():
        ch=[wred('v_max_f32',14)+'\nv_mul_f32 v17, s59, v14\nv_mov_b32 v24, 0']
        for g in range(NK):
            ch.append('v_lshlrev_b32 v18, 16, v%d\nv_and_b32 v19, s60, v%d\nv_sub_f32 v18, v18, v14\nv_sub_f32 v19, v19, v14\nv_mul_f32 v18, s59, v18\nv_mul_f32 v19, s59, v19\n'%(SC[g],SC[g])+
                      'v_exp_f32 v18, v18\nv_exp_f32 v19, v19\ns_nop 0\nv_cvt_pk_bf16_f32 v%d, v18, v19\nv_add_f32 v24, v24, v18\nv_add_f32 v24, v24, v19'%SC[g])
        ch.append(wred('v_add_f32',24))
        return ch
    def vgroup(G):
        B=RB+slot_of[G]*32; P=SC[G-NK]
        def perms(j):
            Tt=TV+4*(j&1)
            return '\n'.join('v_perm_b32 v%d, v%d, v%d, s%d'%(Tt+ii,B+4*(2*ii+1)+(j>>1),B+4*(2*ii)+(j>>1),56+(j&1)) for ii in range(4))
        c0='v_mov_b32 v%d, v%d\n'%(RV,P)+'\n'.join('v_mov_b32_dpp v%d, v%d row_ror:%d row_mask:0xf bank_mask:0xf'%(RV+r,P,16-4*r) for r in range(1,4))+'\n'+perms(0)
        ch=[c0]
        for j in range(8):
            Tt=TV+4*(j&1); acc='v[%d:%d]'%(32+4*j,35+4*j)
            ch.append((perms(j+1) if j<7 else 's_nop 1')+'\nv_mfma_f32_16x16x32_bf16 %s, v[%d:%d], v[%d:%d], %s'%(acc,Tt,Tt+3,RV,RV+3,'0' if G==NK else acc))
        return ch
    def request():
        if not cfg.chunk:
            A('s_mov_b32 s63, 1\ns_atomic_add s63, s[66:67], 0x0 glc'); return
        la=newlab('ra'); lb=newlab('rb')
        A('s_cmp_eq_u32 s69, 0\ns_cbranch_scc1 %s'%la)
        A('s_mov_b32 s69, 0\ns_sub_u32 s63, s62, %d\ns_branch %s'%(NS*16,lb))
        A('%s:'%la)
        A('s_cmp_lt_u32 s62, %d\ns_cselect_b32 s69, 1, 0\ns_add_u32 s63, s69, 1\ns_atomic_add s63, s[66:67], 0x0 glc'%(512-cfg.chunk))
        A('%s:'%lb)
    for G in range(9):
        need(8*G+8)
        spread(kgroup(G),[4,4,4,4,4,4,3,2,3][G])
    assert tr['issued']==80
    stamp(3)
    for G in range(9,NS):
        if G==NS-2:
            A('v_mov_b32 v31, 0\nL_cw:\nds_read_b32 v15, v31 offset:%d\ns_waitcnt lgkmcnt(0)\nv_readfirstlane_b32 s54, v15\ns_cmp_eq_u32 s54, 0\ns_cbranch_scc1 L_cw'%(L_CNT+8))
            stamp(4)
            A('s_mov_b32 s63, %d\ns_atomic_add s63, s[66:67], 0x0 glc\ns_mov_b32 s69, %d'%((2,1) if cfg.chunk else (1,0)))
        if G==NS-1:
            A('s_waitcnt lgkmcnt(0)\ns_add_u32 s62, s63, %d'%(NS*16+1))
            A('s_cmp_ge_u32 s62, 512\ns_cbranch_scc1 L_nrq'); request(); A('L_nrq:')
        lead=min(TH,8)
        if G==NK: spread(softmax(),lead)
        else:
            for _ in range(lead): sload()
        need(8*G+8)
        ch=kgroup(G) if G<NK else vgroup(G)
        spread(ch[:-1],8-lead); spread(ch[-1:],0)
    A('s_cmp_ge_u32 s62, 512\ns_cbranch_scc1 L_sdone')
    A('v_mov_b32 v28, 0x3f803f80\nv_mov_b32 v29, 0x3f803f80\nv_mov_b32 v25, 0\nv_mov_b32 v26, 0\nv_mov_b32 v27, 0')
    A('s_waitcnt lgkmcnt(0)\ns_add_u32 s62, s63, %d'%(NS*16+1))
    A('s_mov_b32 s64, %d'%(NS+1))
    def body(c,th):
        for j in range(4): load(1-c,j,th=th)
        if th>8: A('s_waitcnt vmcnt(8)')
        kpart(c,[(lambda j=j: load(1-c,j,th=th)) for j in range(4,8)])
        if th>8: A('s_waitcnt vmcnt(8)')
        vpart(c)
    A('L_dyn:')
    for c in (slot_of[NS],1-slot_of[NS]):
        ls=newlab('st'); lc=newlab('sc')
        if cfg.diag: A('s_add_u32 s64, s64, 1')
        A('s_cmp_ge_u32 s62, 512\ns_cbranch_scc1 %s'%ls)
        request()
        A('%s:'%ls)
        body(c,cfg.T2 or cfg.T)
        A('s_cmp_ge_u32 s62, 512\ns_cbranch_scc1 L_sdone')
        A('s_waitcnt lgkmcnt(0)')
        A('s_add_u32 s62, s63, %d'%(NS*16+1))
    A('s_branch L_dyn')
    A('L_sdone:')
    A('s_mov_b32 exec_lo, 0x000f000f\ns_mov_b32 exec_hi, 0x000f000f')
    stamp(5)
    A('s_lshl_b32 s55, s52, 2\nv_and_b32 v31, 0x30, v1\nv_lshl_add_u32 v31, v31, 1, s55')
    for j in range(8):
        A('ds_write_b128 v0, v[%d:%d] offset:%d'%(32+4*j,35+4*j,L_OW+64*j))
    A('ds_write2_b32 v31, v17, v24 offset0:%d offset1:%d'%(L_MLW//4,L_MLW//4+4))
    if cfg.diag:
        A('s_mov_b64 exec, -1')
        A('s_cmp_lg_u32 s52, 0\ns_cbranch_scc1 L_nost')
        pack_stamps(11 if cfg.sdiag else 6,8)
        A('v_writelane_b32 v8, s64, 8')
        A('ds_write_b32 v3, v8 offset:%d'%L_ST)
        A('L_nost:')
    A('s_waitcnt lgkmcnt(0)')
    A('s_barrier')
    A('s_endpgm')

    A('L_service:')
    if cfg.bare:
        A('s_sub_u32 s53, s52, 4\nv_mov_b32 v11, 0\nv_mov_b32 v12, 1\nv_mov_b32 v40, -1\nv_mov_b32 v41, -1\nv_mov_b32 v42, -1\nv_mov_b32 v43, -1\ns_waitcnt lgkmcnt(0)')
        if cfg.bare&2:
            A('s_lshl_b32 s54, s2, 2\ns_add_u32 s54, s54, s53\ns_mul_i32 s54, s54, 640\ns_add_u32 s54, s54, %d\nv_add_u32 v6, s54, v1\ns_mov_b32 exec_hi, 0xff\nglobal_store_dwordx4 v6, v[40:43], %s sc1\ns_mov_b64 exec, -1'%(CLR+0x100000,WS))
        if cfg.bare&4:
            A('global_load_dwordx4 v[32:35], v1, %s'%X)
        if cfg.bare&8:
            A('v_mov_b32 v6, s2\ns_mov_b64 exec, 1\nglobal_store_byte v6, v12, %s sc1\ns_mov_b64 exec, -1'%DBG)
        A('ds_write_b32 v11, v12 offset:%d\ns_waitcnt lgkmcnt(0)\ns_barrier\ns_barrier'%(L_CNT+8))
        if cfg.bare&16:
            A('v_lshlrev_b32 v7, 2, v0\nglobal_load_dword v13, v7, %s sc1'%DBG)
        A('s_barrier\ns_endpgm')
    A('s_setprio 3')
    A('s_sub_u32 s53, s52, 4')
    A('s_lshl_b32 s66, s53, 12')
    A('s_mov_b32 s3, %d'%FLG)
    A('s_lshr_b32 s68, s49, 3\ns_and_b32 s69, s49, 7')
    A('v_lshrrev_b32 v2, 5, v0\ns_lshl_b32 s54, s53, 1\nv_add_u32 v2, s54, v2')
    A('v_and_b32 v3, 31, v0\nv_lshlrev_b32 v3, 4, v3')
    A('v_lshl_add_u32 v4, v2, 10, v3')
    A('s_lshl_b32 s54, s68, 7\ns_lshl_b32 s55, s53, 5\ns_add_u32 s54, s54, s55')
    A('v_lshrrev_b32 v6, 3, v0\nv_add_u32 v6, s54, v6\nv_lshlrev_b32 v6, 13, v6')
    A('v_and_b32 v7, 7, v0\nv_lshl_add_u32 v6, v7, 4, v6')
    A('s_lshl_b32 s54, s48, 10\ns_lshl_b32 s55, s69, 7\ns_add_u32 s54, s54, s55\nv_add_u32 v6, s54, v6')
    A('s_lshl_b32 s54, s48, 2\ns_add_u32 s54, s54, s68\ns_lshl_b32 s54, s54, 11\ns_lshl_b32 s55, s69, 8\ns_add_u32 s54, s54, s55\ns_lshl_b32 s55, s53, 6\ns_add_u32 s54, s54, s55')
    A('v_lshlrev_b32 v14, 16, v7\nv_and_b32 v15, 0x30, v0\nv_add3_u32 v14, v14, v15, s54')
    A('v_mov_b32 v40, -1\nv_mov_b32 v41, -1\nv_mov_b32 v42, -1\nv_mov_b32 v43, -1')
    A('s_add_u32 m0, s66, %d'%L_WA)
    A('v_lshrrev_b32 v44, 1, v0\nv_lshlrev_b32 v44, 9, v44\nv_and_b32 v45, 16, v1\nv_add3_u32 v79, v44, v45, %s'%'s3')
    A('v_mov_b32 v44, 0\nv_mov_b32 v45, 0\nv_mov_b32 v46, 0\nv_mov_b32 v47, 0\nv_mov_b32 v11, 0\nv_mov_b32 v12, 1')
    A('s_lshl_b32 s12, s2, 2\ns_add_u32 s12, s12, s53')
    A('s_waitcnt lgkmcnt(0)')
    A('s_cmp_lg_u32 s12, 3\ns_cbranch_scc1 L_nolead')
    A('global_store_dwordx4 v79, v[44:47], %s sc1'%WS)
    A('L_nolead:')
    A('global_load_dwordx4 v[32:35], v4, %s'%X)
    A('global_load_dwordx4 v[36:39], v4, %s offset:512'%X)
    if cfg.nowq: A('s_mov_b64 exec, 1')
    for i in range(4):
        if i: A('s_add_u32 m0, s66, %d\nv_add_u32 v6, 0x10000, v6'%(L_WA+i*1024))
        A('global_load_lds_dwordx4 v6, %s %s'%(WQ,cfg.wf))
    A('s_mov_b32 exec_lo, 0x00ff00ff\ns_mov_b32 exec_hi, 0x00ff00ff')
    if cfg.noqst: A('s_mov_b64 exec, 1')
    A('global_store_dwordx4 v14, v[40:43], %s sc1'%WS)
    A('s_mov_b64 exec, -1')
    if cfg.svcfirst==1: A('s_barrier')
    A('s_lshl_b32 s54, s2, 12\ns_lshl_b32 s55, s53, 10\ns_add_u32 s54, s54, s55\ns_add_u32 s54, s54, %d'%CLR)
    A('v_add_u32 v6, s54, v1')
    if cfg.noclr: A('s_mov_b64 exec, 1')
    A('global_store_dwordx4 v6, v[40:43], %s sc1'%WS)
    if cfg.noclr: A('s_mov_b64 exec, -1')
    A('s_lshl_b32 s54, s2, 2\ns_add_u32 s54, s54, s53\ns_mul_i32 s54, s54, 640\ns_add_u32 s54, s54, %d'%(CLR+0x100000))
    A('v_add_u32 v6, s54, v1')
    A('s_mov_b32 exec_hi, 0xff')
    A('global_store_dwordx4 v6, v[40:43], %s sc1'%WS)
    A('s_mov_b64 exec, -1')
    if cfg.svcfirst==2: A('s_barrier')
    A('ds_write_b128 v11, v[44:47] offset:%d\nds_write_b128 v11, v[44:47] offset:%d'%(L_CNT,L_CNT+16))
    A('v_mul_u32_u24 v5, %d, v2\nv_add_u32 v5, v5, v3'%XNS)
    A('v_lshrrev_b32 v8, 4, v0\nv_lshlrev_b32 v8, 10, v8\nv_bfe_u32 v9, v0, 2, 2\nv_lshl_add_u32 v8, v9, 7, v8\nv_and_b32 v9, 3, v0\nv_lshl_add_u32 v8, v9, 3, v8')
    A('s_lshl_b32 s54, s53, 5\nv_add_u32 v8, s54, v8')
    A('v_mul_u32_u24 v9, %d, v7\nv_add_u32 v9, v9, v15\ns_lshl_b32 s54, s68, 8\nv_add_u32 v10, s54, v9'%XNS)
    A('s_lshl_b32 s54, s53, 8\nv_mov_b32 v31, s54')
    A('s_waitcnt lgkmcnt(0)')
    A('s_barrier')

    def dppadd(r,ctl):
        A('s_nop 1\nv_add_f32_dpp v%d, v%d, v%d %s row_mask:0xf bank_mask:0xf'%(r,r,r,ctl))
    def swapadd(r,t,w):
        A('v_mov_b32 v%d, v%d\ns_nop 1\nv_permlane%d_swap_b32 v%d, v%d\nv_add_f32 v%d, v%d, v%d'%(t,r,w,r,t,r,r,t))
    def rbf(r):
        A('v_cvt_pk_bf16_f32 v%d, 0, v%d'%(r,r))
    def layernorm(mode):
        if mode=='x':
            for i in range(8):
                A('v_lshlrev_b32 v%d, 16, v%d\nv_and_b32 v%d, s60, v%d'%(48+2*i,32+i,49+2*i,32+i))
        Q=lambda i:'v[%d:%d]'%(48+2*i,49+2*i)
        P=Q if mode=='x' else (lambda i:'v[%d:%d]'%(216+2*i,217+2*i))
        A('v_pk_add_f32 v[64:65], %s, %s\nv_pk_mul_f32 v[66:67], %s, %s'%(P(0),P(1),P(0),P(0)))
        A('v_pk_add_f32 v[68:69], %s, %s\nv_pk_mul_f32 v[70:71], %s, %s'%(P(2),P(3),P(1),P(1)))
        for i in range(2,8,2):
            if i>2: A('v_pk_add_f32 v[64:65], v[64:65], %s'%P(i))
            A('v_pk_fma_f32 v[66:67], %s, %s, v[66:67]'%(P(i),P(i)))
            if i>2: A('v_pk_add_f32 v[68:69], v[68:69], %s'%P(i+1))
            A('v_pk_fma_f32 v[70:71], %s, %s, v[70:71]'%(P(i+1),P(i+1)))
        A('v_pk_add_f32 v[64:65], v[64:65], v[68:69]\nv_pk_add_f32 v[66:67], v[66:67], v[70:71]')
        A('v_add_f32 v64, v64, v65\nv_add_f32 v66, v66, v67')
        ctl=['row_ror:1','row_ror:2','row_ror:4','row_ror:8'] if mode=='x' else ['quad_perm:[1,0,3,2]','quad_perm:[2,3,0,1]','row_ror:8']
        for c in ctl:
            A('s_nop 0')
            for r in (64,66): A('v_add_f32_dpp v%d, v%d, v%d %s row_mask:0xf bank_mask:0xf'%(r,r,r,c))
        for w in ((16,) if mode=='x' else (16,32)):
            A('v_mov_b32 v65, v64\nv_mov_b32 v67, v66\ns_nop 0')
            A('v_permlane%d_swap_b32 v64, v65\nv_permlane%d_swap_b32 v66, v67'%(w,w))
            A('v_add_f32 v64, v64, v65\nv_add_f32 v66, v66, v67')
        A('v_mul_f32 v64, 0xbb000000, v64\nv_mul_f32 v66, 0x3b000000, v66')
        A('v_cvt_pk_bf16_f32 v68, 0, v64')
        chain=['v_fma_f32 v66, -v64, v64, v66','v_max_f32 v66, 0, v66','v_cvt_pk_bf16_f32 v66, 0, v66','v_add_f32 v66, 0x3727c5ac, v66',
               'v_cvt_pk_bf16_f32 v66, 0, v66','v_sqrt_f32 v66, v66','v_cvt_pk_bf16_f32 v66, 0, v66','v_rcp_f32 v66, v66']
        for i in range(8):
            A(chain[i])
            A('v_pk_add_f32 %s, %s, v[68:69] op_sel_hi:[1,0]'%(Q(i),P(i)))
        for i in range(16): A('v_cvt_pk_bf16_f32 v%d, 0, v%d'%(48+i,48+i))
        nw=2 if mode=='h' else 4
        for i in range(8):
            A('v_pk_mul_f32 %s, %s, v[66:67] op_sel_hi:[1,0]'%(Q(i),Q(i)))
        for i in range(8):
            A('v_cvt_pk_bf16_f32 v%d, v%d, v%d'%(32+i,48+2*i,49+2*i))
            if mode=='h' and i%2==1: A('ds_write_b64 v5, v[%d:%d] offset:%d'%(31+i,32+i,L_XN+256*(i//2)))
            if mode=='x' and i%4==3: A('ds_write_b128 v5, v[%d:%d] offset:%d'%(29+i,32+i,L_XN+512*(i//4)))
    def lds_sync(cnt,sleep=0):
        l=newlab('ls')
        A('s_waitcnt lgkmcnt(0)')
        A('s_mov_b64 exec, 1\nds_add_u32 v11, v12 offset:%d\ns_mov_b64 exec, -1'%(L_CNT+4*cnt))
        lds_wait(11,L_CNT+4*cnt,4,sleep)
    def lds_wait(va,off,val,sleep):
        l=newlab('lw'); d=newlab('ld')
        A('%s:'%l)
        A('ds_read_b32 v13, v%d offset:%d\ns_waitcnt lgkmcnt(0)\nv_readfirstlane_b32 s54, v13\ns_cmp_ge_u32 s54, %s'%(va,off,val))
        if sleep: A('s_cbranch_scc1 %s\ns_sleep %d\ns_branch %s\n%s:'%(d,sleep,l,d))
        else: A('s_cbranch_scc0 %s'%l)
    def progress(p): lds_wait(31,L_PR,p,6)
    def poll(loads,regs,sleep=0,guard=False):
        l=newlab('pl'); d=newlab('pd')
        if guard: sleep=cfg.tsleep
        A('s_mov_b32 s61, %d'%cfg.spin)
        A('%s:'%l)
        for x in loads: A(x)
        import re as _re
        first=True; pend=[]
        for i,x in enumerate(loads):
            m=_re.search(r'v\[(\d+):(\d+)\]',x)
            pend+=list(range(int(m.group(1)),int(m.group(2))+1))
            last=(i==len(loads)-1)
            if len(pend)<4 and not last: continue
            A('s_waitcnt vmcnt(%d)'%(len(loads)-1-i))
            while pend:
                if first:
                    if len(pend)>=3: A('v_max3_u32 v13, v%d, v%d, v%d'%tuple(pend[:3])); pend=pend[3:]
                    else: A('v_max_u32 v13, v%d, v%d'%tuple(pend[:2])); pend=pend[2:]
                    first=False
                elif len(pend)>=2: A('v_max3_u32 v13, v13, v%d, v%d'%tuple(pend[:2])); pend=pend[2:]
                elif last: A('v_max_u32 v13, v13, v%d'%pend[0]); pend=[]
                else: break
        A('v_cmp_eq_u32 vcc, -1, v13')
        A('s_cbranch_vccz %s'%d)
        if sleep: A('s_sleep %d'%sleep)
        A('s_sub_u32 s61, s61, 1\ns_cmp_lg_u32 s61, 0\ns_cbranch_scc1 %s'%l)
        A('%s:'%d)
    def apoll(loads,par):
        import re as _re
        mode,D,sleep=par
        l=newlab('al'); d=newlab('ad'); gl=newlab('ag')
        rg=[]
        for x in loads:
            m=_re.search(r'v\[(\d+):(\d+)\]',x); rg.append(list(range(int(m.group(1)),int(m.group(2))+1)))
        def chain(t,r):
            r=list(r)
            if len(r)==2: A('v_max_u32 v%d, v%d, v%d'%(t,r[0],r[1])); return
            A('v_max3_u32 v%d, v%d, v%d, v%d'%(t,r[0],r[1],r[2])); r=r[3:]
            while r:
                if len(r)==1: A('v_max_u32 v%d, v%d, v%d'%(t,t,r[0])); r=[]
                else: A('v_max3_u32 v%d, v%d, v%d, v%d'%(t,t,r[0],r[1])); r=r[2:]
        n=len(loads)
        A('s_mov_b32 s61, %d'%cfg.spin)
        if mode in 'cm':
            A('%s:'%l)
            for x in loads: A(x)
            if sleep: A('s_sleep %d'%sleep)
            A('s_waitcnt vmcnt(%d)'%min(63,n*(D-1)))
            chain(13,sum(rg,[]))
            A('v_cmp_eq_u32 vcc, -1, v13')
            A('s_cbranch_vccz %s'%d)
            if mode=='m': A('s_mov_b64 exec, vcc')
            A('s_sub_u32 s61, s61, 1\ns_cmp_lg_u32 s61, 0\ns_cbranch_scc1 %s'%l)
            A('%s:'%d)
            if mode=='m': A('s_mov_b64 exec, s[4:5]')
        else:
            mk=['s[6:7]','s[8:9]','s[10:11]','s[40:41]','s[42:43]','s[44:45]','s[46:47]','s[62:63]'][:n]
            for m_ in mk: A('s_mov_b64 %s, s[4:5]'%m_)
            A('%s:'%l)
            for x,m_ in zip(loads,mk):
                sk=newlab('as')
                A('s_mov_b64 exec, %s\ns_cbranch_execz %s'%(m_,sk)); A(x); A('%s:'%sk)
            A('s_mov_b64 exec, s[4:5]')
            if sleep: A('s_sleep %d'%sleep)
            A('s_waitcnt vmcnt(%d)'%min(63,n*(D-1)))
            for i in range(n): chain(246+i,rg[i])
            chain(13,[246+i for i in range(n)])
            A('v_cmp_eq_u32 vcc, -1, v13')
            A('s_cbranch_vccz %s'%d)
            for i in range(n): A('v_cmp_eq_u32 %s, -1, v%d'%(mk[i],246+i))
            A('s_sub_u32 s61, s61, 1\ns_cmp_lg_u32 s61, 0\ns_cbranch_scc1 %s'%l)
            A('%s:'%d)
    def flagpoll(voff,execmask):
        l=newlab('fl'); d=newlab('fd')
        A('s_mov_b32 s61, %d'%cfg.spin)
        A('s_mov_b64 exec, %s'%execmask)
        A('%s:'%l)
        A('global_load_dwordx4 v[72:75], v%d, %s sc1\ns_waitcnt vmcnt(0)'%(voff,WS))
        A('v_min3_u32 v13, v72, v73, v74\nv_min_u32 v13, v13, v75\nv_cmp_eq_u32 vcc, 0, v13\ns_cbranch_vccz %s'%d)
        A('s_sleep 16')
        A('s_sub_u32 s61, s61, 1\ns_cmp_lg_u32 s61, 0\ns_cbranch_scc1 %s'%l)
        A('%s:'%d)
        A('s_mov_b64 exec, -1')
    def tr128(dst,base):
        for s_ in range(4):
            A('ds_read_b64_tr_b16 v[%d:%d], v8 offset:%d'%(dst+4*s_,dst+4*s_+1,base+4096*s_))
            A('ds_read_b64_tr_b16 v[%d:%d], v8 offset:%d'%(dst+4*s_+2,dst+4*s_+3,base+4096*s_+512))

    A('s_waitcnt vmcnt(7)')
    A('s_cmp_lg_u32 s12, 3\ns_cbranch_scc1 L_nogo')
    A('s_waitcnt vmcnt(0)')
    A('s_mov_b64 exec, 1\nglobal_store_dword v11, v12, %s sc1\ns_mov_b64 exec, -1'%DBG)
    A('L_nogo:')
    stamp(1)
    layernorm('x')
    A('s_waitcnt vmcnt(0)')
    lds_sync(0)
    stamp(2)
    tr128(80,L_WA)
    for s_ in range(4):
        A('ds_read_b128 v[%d:%d], v10 offset:%d'%(32+4*s_,35+4*s_,L_XN+64*s_))
    A('s_waitcnt lgkmcnt(0)')
    for s_ in range(4):
        A('v_mfma_f32_16x16x32_bf16 v[48:51], v[%d:%d], v[%d:%d], %s'%(80+4*s_,83+4*s_,32+4*s_,35+4*s_,'0' if s_==0 else 'v[48:51]'))
    A('s_nop 7')
    for r in range(4): A('v_min_u32 v%d, -2, v%d'%(48+r,48+r))
    A('s_mov_b32 exec_lo, 0x00ff00ff\ns_mov_b32 exec_hi, 0x00ff00ff')
    if cfg.noqst: A('s_mov_b64 exec, 1')
    A('global_store_dwordx4 v14, v[48:51], %s sc1'%WS)
    A('s_mov_b64 exec, -1')
    stamp(3)
    A('s_cmp_lg_u32 s53, 3\ns_cbranch_scc1 L_noflag')
    A('s_lshl_b32 s54, s48, 2\ns_add_u32 s54, s54, s68\ns_lshl_b32 s54, s54, 9\ns_lshl_b32 s55, s69, 2\ns_add_u32 s54, s54, s55\ns_add_u32 s54, s54, s3\nv_mov_b32 v6, s54')
    A('s_mov_b32 s61, %d\ns_mov_b64 exec, 1\nL_go:\nglobal_load_dword v13, v11, %s sc1\ns_waitcnt vmcnt(0)\nv_cmp_eq_u32 vcc, 0, v13\ns_cbranch_vccz L_god'%(cfg.spin,DBG))
    A('s_sleep 8\ns_sub_u32 s61, s61, 1\ns_cmp_lg_u32 s61, 0\ns_cbranch_scc1 L_go\nL_god:')
    A('global_store_dword v6, v12, %s sc1'%WS)
    A('L_noflag:')
    A('s_mov_b64 exec, 1\nds_add_u32 v11, v12 offset:%d\ns_mov_b64 exec, -1'%(L_CNT+12))
    A('s_cmp_lg_u32 s53, %d\ns_cbranch_scc1 L_qdone'%(9 if cfg.noq else 0))
    A('v_and_b32 v6, 3, v0\nv_lshlrev_b32 v6, 9, v6\nv_lshrrev_b32 v14, 2, v0\nv_lshl_add_u32 v6, v14, 5, v6')
    A('s_lshl_b32 s54, s50, 13\ns_add_u32 s54, s54, %d\nv_add_u32 v6, s54, v6'%(QP+3072))
    A('s_and_b32 s54, s50, 7\ns_lshl_b32 s54, s54, 11\nv_add_u32 v7, s54, v79')
    lds_wait(11,L_CNT+12,4,2)
    progress(cfg.pq)
    flagpoll(7,'0xff')
    stamp(4)
    poll(['global_load_dwordx4 v[%d:%d], v6, %s offset:%d sc1'%(32+8*kq+4*h,35+8*kq+4*h,WS,2048*kq+16*h-3072) for kq in range(4) for h in range(2)],list(range(32,64)),sleep=8)
    for p in range(4):
        A('v_pk_add_f32 v[%d:%d], v[%d:%d], v[%d:%d]'%(32+2*p,33+2*p,32+2*p,33+2*p,40+2*p,41+2*p))
        A('v_pk_add_f32 v[%d:%d], v[%d:%d], v[%d:%d]'%(48+2*p,49+2*p,48+2*p,49+2*p,56+2*p,57+2*p))
    for p in range(4):
        A('v_pk_add_f32 v[%d:%d], v[%d:%d], v[%d:%d]'%(32+2*p,33+2*p,32+2*p,33+2*p,48+2*p,49+2*p))
    for p in range(4):
        A('v_cvt_pk_bf16_f32 v%d, v%d, v%d'%(32+p,32+2*p,33+2*p))
    A('ds_write_b128 v1, v[32:35] offset:%d'%L_QL)
    stamp(5)
    A('s_waitcnt lgkmcnt(0)')
    if cfg.qflag: A('ds_write_b32 v11, v12 offset:%d'%(L_CNT+16))
    A('L_qdone:')
    A('s_setprio 0')
    if not cfg.qflag: A('s_barrier')

    A('s_mov_b32 s70, 0\ns_and_b32 s54, s49, 0x13\ns_cmp_eq_u32 s54, s51\ns_cselect_b32 s70, 2, s70')
    A('s_cmp_lt_u32 s48, 4\ns_cselect_b32 s6, 16, 12\ns_cselect_b32 s7, 8, 6\ns_cselect_b32 s8, 0, 8\ns_mul_i32 s14, s48, s7\ns_add_u32 s14, s14, s8')
    if cfg.helper: A('s_and_b32 s54, s49, 0x13\ns_xor_b32 s54, s54, 2\ns_cmp_eq_u32 s54, s51\ns_cselect_b32 s9, s49, 99\ns_cmp_lt_u32 s9, s6\ns_cselect_b32 s70, 4, s70')
    A('s_sub_u32 s54, s49, 16\ns_cmp_lt_u32 s54, s6\ns_cselect_b32 s70, 1, s70')
    A('s_xor_b32 s55, s2, s49\ns_and_b32 s55, s55, 1\ns_cselect_b32 s70, 3, s70')
    A('s_bfe_u32 s54, s49, 0x30001\ns_add_u32 s14, s14, s54')
    A('s_lshr_b32 s15, s49, 2\ns_add_u32 s54, s48, %d\ns_and_b32 s54, s54, 7\ns_lshl_b32 s54, s54, 2\ns_add_u32 s15, s15, s54'%cfg.crot)
    A('s_lshr_b32 s13, s2, 1')
    A('s_lshl_b32 s54, s48, 2\ns_add_u32 s67, s54, s68')
    A('s_bfe_u32 s69, s49, 0x20001')
    A('v_and_b32 v6, 3, v0\nv_lshlrev_b32 v6, 2, v6\nv_lshrrev_b32 v7, 4, v0\nv_add_u32 v6, v6, v7')
    A('v_bfe_u32 v7, v0, 2, 1')
    A('v_lshrrev_b32 v24, 3, v0\nv_lshlrev_b32 v24, 14, v24\nv_and_b32 v13, 0x70, v1\nv_add_u32 v24, v24, v13\ns_mov_b32 s55, s13\ns_lshl_b32 s54, s55, 7\ns_add_u32 s54, s54, %d\nv_add_u32 v24, s54, v24'%HB)
    A('v_lshlrev_b32 v6, 1, v6\nv_lshl_add_u32 v6, v7, 10, v6\ns_lshr_b32 s54, s55, 5\ns_lshl_b32 s54, s54, 11\ns_and_b32 s55, s55, 31\ns_lshl_b32 s55, s55, 5\ns_add_u32 s54, s54, s55\nv_add_u32 v6, s54, v6')
    A('global_load_ushort v16, v6, %s'%X)
    A('s_cmp_lg_u32 s53, 0\ns_cbranch_scc1 L_nofc')
    flagpoll(79,'-1')
    if cfg.ctouch is not None:
        A('s_lshl_b32 s54, s50, %d\ns_add_u32 s54, s54, %d\nv_mov_b32 v7, s54\nglobal_load_dword v13, v7, %s %s\ns_waitcnt vmcnt(0)'%(cfg.cs,CTR,WS,cfg.ctouch))
    A('s_mov_b64 exec, 1\nds_add_u32 v11, v12 offset:%d\ns_mov_b64 exec, -1'%(L_CNT+8))
    A('L_nofc:')
    def paced(k,n,line):
        f=lambda k: cfg.pw0+(k*(cfg.pw1-cfg.pw0))//n
        if k==0 or f(k)!=f(k-1): progress(f(k))
        assert f(k)<cfg.NS
        A(line)
    def dma1(k):
        i=k//2
        return ('v_add_u32 v7, %d, v6\n'%(i*16*3584))+'s_add_u32 m0, s71, %d\ns_nop 0\nglobal_load_lds_dwordx4 v7, %s %s'%(L_WA+32768*(k&1)+i*1024,WU if k&1 else WG,cfg.ff)
    def dma2(i):
        return ('v_add_u32 v7, %d, v6\n'%(i*0x8000))+'s_add_u32 m0, s71, %d\ns_nop 0\nglobal_load_lds_dwordx4 v7, %s %s'%(L_WA+i*1024,WD,cfg.ff)
    l1=newlab('w1'); l2=newlab('w2'); le=newlab('we')
    A('s_cmp_eq_u32 s70, 0\ns_cbranch_scc1 %s\ns_cmp_eq_u32 s70, 2\ns_cbranch_scc1 %s\ns_cmp_lg_u32 s70, 3\ns_cbranch_scc1 %s'%(le,l2,l1))
    A('s_lshl_b32 s54, s67, 7\ns_lshl_b32 s55, s53, 1\ns_add_u32 s54, s54, s55\ns_lshl_b32 s54, s54, 10\ns_lshl_b32 s55, s69, 8\ns_add_u32 s54, s54, s55')
    A('v_lshrrev_b32 v6, 4, v0\nv_lshlrev_b32 v6, 13, v6\nv_and_b32 v7, 15, v0\nv_lshl_add_u32 v6, v7, 4, v6\nv_add_u32 v6, s54, v6')
    A('s_lshl_b32 s71, s53, 13')
    def dmaw(i):
        return 'v_add_u32 v7, %d, v6\ns_add_u32 m0, s71, %d\ns_nop 0\nglobal_load_lds_dwordx4 v7, %s %s'%((32*(i&3)+(i>>2))*1024,L_WA+i*1024,WO,cfg.wf)
    for i in range(0 if cfg.noW else cfg.EW): paced(i,cfg.EW,dmaw(i))
    A('s_branch %s'%le)
    A('%s:'%l1)
    A('s_lshl_b32 s54, s14, 6')
    A('s_lshl_b32 s55, s53, 7\nv_lshrrev_b32 v6, 2, v0\nv_add_u32 v6, s55, v6\nv_mul_u32_u24 v6, 3584, v6\nv_and_b32 v7, 3, v0\nv_lshl_add_u32 v6, v7, 4, v6\nv_add_u32 v6, s54, v6')
    A('s_lshl_b32 s71, s53, 13')
    A('s_cmp_eq_u32 s70, 4\ns_cbranch_scc1 %s'%le)
    for k in range(cfg.E1): paced(k,cfg.E1,dma1(k))
    A('s_branch %s'%le)
    A('%s:'%l2)
    A('s_mul_i32 s54, s53, 448\nv_lshrrev_b32 v6, 1, v0\nv_add_u32 v6, s54, v6\nv_lshlrev_b32 v6, 10, v6')
    A('v_and_b32 v7, 1, v0\nv_lshl_add_u32 v6, v7, 4, v6\ns_lshl_b32 s54, s15, 5\nv_add_u32 v6, s54, v6')
    A('s_mul_i32 s71, s53, 14336')
    for k in range(cfg.E2): paced(k,cfg.E2,dma2(k))
    A('%s:'%le)
    A('s_waitcnt vmcnt(0)')
    A('v_lshlrev_b32 v16, 16, v16')
    lds_sync(1,sleep=4)
    stamp(6)
    l1=newlab('r1'); l2=newlab('r2'); le=newlab('re')
    A('v_mov_b32 v26, 0\nv_mov_b32 v27, 0\nv_mov_b32 v28, 0\nv_mov_b32 v29, 0')
    A('s_cmp_eq_u32 s70, 1\ns_cbranch_scc1 %s\ns_cmp_eq_u32 s70, 2\ns_cbranch_scc1 %s'%(l1,l2))
    A('v_lshrrev_b32 v8, 4, v0\nv_lshlrev_b32 v8, 11, v8\nv_bfe_u32 v7, v0, 2, 2\nv_lshl_add_u32 v8, v7, 8, v8\nv_and_b32 v7, 3, v0\nv_lshl_add_u32 v8, v7, 3, v8')
    A('s_lshl_b32 s54, s53, 6\ns_add_u32 s54, s54, %d\nv_add_u32 v8, s54, v8'%L_WA)
    def trw():
        for t in range(2):
            for s_ in range(4):
                r=80+16*t+4*s_
                A('ds_read_b64_tr_b16 v[%d:%d], v8 offset:%d'%(r,r+1,8192*s_+32*t))
                A('ds_read_b64_tr_b16 v[%d:%d], v8 offset:%d'%(r+2,r+3,8192*s_+32*t+1024))
            if t==0 or cfg.EW==8: A('s_waitcnt lgkmcnt(0)')
    if cfg.EW==8: trw()
    A('s_branch %s'%le)
    A('%s:'%l1)
    A('v_lshrrev_b32 v8, 4, v0\nv_lshlrev_b32 v8, 9, v8\nv_bfe_u32 v7, v0, 2, 2\nv_lshl_add_u32 v8, v7, 6, v8')
    A('v_and_b32 v7, 1, v0\nv_lshl_add_u32 v8, v7, 3, v8\nv_bfe_u32 v7, v0, 1, 1\nv_lshl_add_u32 v8, v7, 15, v8\ns_lshl_b32 s54, s53, 4\ns_add_u32 s54, s54, %d\nv_add_u32 v8, s54, v8'%L_WA)
    A('s_lshl_b32 s54, s14, 2\ns_add_u32 s54, s54, s53\ns_lshl_b32 s54, s54, 7\ns_add_u32 s54, s54, %d'%AB)
    A('v_and_b32 v27, 0x70, v1\nv_lshrrev_b32 v7, 3, v0\nv_lshl_add_u32 v27, v7, 15, v27\nv_add_u32 v27, s54, v27')
    A('s_and_b32 s55, s48, %d\ns_lshl_b32 s55, s55, 14\ns_add_u32 s54, s66, s55\ns_add_u32 s54, s54, %d\nv_add_u32 v4, s54, v1'%(cfg.nH-1,HB))
    A('v_bfe_u32 v5, v0, 2, 1\ns_lshl_b32 s54, s53, 1\nv_add_u32 v5, s54, v5\nv_mul_u32_u24 v5, %d, v5\nv_lshrrev_b32 v7, 3, v0\nv_lshl_add_u32 v5, v7, 5, v5\nv_and_b32 v7, 3, v0\nv_lshl_add_u32 v5, v7, 3, v5'%XNS)
    A('s_branch %s'%le)
    A('%s:'%l2)
    A('v_lshrrev_b32 v8, 4, v0\nv_lshlrev_b32 v8, 9, v8\nv_bfe_u32 v7, v0, 1, 1\nv_lshl_add_u32 v8, v7, 8, v8\nv_bfe_u32 v7, v0, 2, 2\nv_lshl_add_u32 v8, v7, 5, v8')
    A('v_and_b32 v7, 1, v0\nv_lshl_add_u32 v8, v7, 3, v8\ns_add_u32 s55, s71, %d\nv_add_u32 v8, s55, v8'%L_WA)
    A('v_bfe_u32 v26, v0, 2, 1\nv_lshlrev_b32 v26, 10, v26\nv_bfe_u32 v7, v0, 1, 1\nv_lshl_add_u32 v26, v7, 8, v26\nv_lshrrev_b32 v7, 3, v0\nv_lshl_add_u32 v26, v7, 4, v26\nv_and_b32 v7, 1, v0\nv_lshl_add_u32 v26, v7, 3, v26')
    A('s_and_b32 s55, s48, %d\ns_lshl_b32 s55, s55, 15\ns_mul_i32 s54, s53, 7168\ns_add_u32 s54, s54, s55\ns_add_u32 s54, s54, %d\nv_add_u32 v27, s54, v1'%(cfg.nA-1,AB+3072))
    A('s_mov_b32 s54, s15\ns_lshl_b32 s55, s54, 5')
    A('v_lshrrev_b32 v28, 3, v0\nv_lshlrev_b32 v28, 10, v28\nv_and_b32 v7, 7, v0\nv_lshl_add_u32 v28, v7, 2, v28\nv_add_u32 v28, s55, v28')
    A('s_lshl_b32 s54, s54, 7\ns_and_b32 s55, s48, %d\ns_lshl_b32 s55, s55, 14\ns_add_u32 s54, s54, s55\ns_add_u32 s54, s54, %d'%(cfg.nH-1,HB))
    A('v_lshrrev_b32 v29, 4, v0\nv_lshlrev_b32 v29, 12, v29\nv_and_b32 v7, 15, v0\nv_lshl_add_u32 v29, v7, 3, v29\nv_add_u32 v29, s54, v29')
    A('s_lshl_b32 s54, s53, 11\nv_add_u32 v10, s54, v1')
    A('%s:'%le)
    A('s_lshl_b32 s54, s53, 9\nv_add_u32 v17, s54, v3')
    A('s_and_b32 s54, s50, 7\ns_lshl_b32 s54, s54, 2\ns_add_u32 s54, s54, s53\ns_lshl_b32 s54, s54, 3\ns_lshr_b32 s55, s50, 3\ns_add_u32 s54, s54, s55\ns_lshl_b32 s54, s54, 2\ns_add_u32 s54, s54, s51')
    A('s_mul_i32 s54, s54, %d\ns_add_u32 s54, s54, %d\nv_add_u32 v18, s54, v1'%(OPS,OP))
    A('s_mul_i32 s54, s67, %d\ns_add_u32 s54, s54, %d\nv_mul_u32_u24 v25, %d, v2\nv_add_u32 v25, s54, v25\nv_add_u32 v19, v25, v3'%(32*OPS,OP,4*OPS))
    A('s_lshl_b32 s54, s53, 5\nv_mov_b32 v30, s54')
    A('v_mul_u32_u24 v20, %d, v2\nv_lshrrev_b32 v7, 1, v3\nv_add_u32 v20, v20, v7'%XOS)
    A('v_and_b32 v21, 7, v0\nv_mul_u32_u24 v21, %d, v21\nv_add_u32 v21, v21, v15'%XOS)
    A('s_lshl_b32 s54, s69, 2\ns_add_u32 s54, s54, s53\ns_lshl_b32 s54, s54, 6\ns_add_u32 s54, s54, s67\ns_lshl_b32 s54, s54, 7\ns_add_u32 s54, s54, %d'%(WP+2048))
    A('v_bfe_u32 v22, v0, 1, 2\nv_lshlrev_b32 v22, 17, v22\nv_and_b32 v7, 1, v0\nv_lshl_add_u32 v22, v7, 6, v22\nv_add3_u32 v22, v22, v15, s54')
    A('s_lshl_b32 s54, s13, 12\ns_add_u32 s54, s54, %d\nv_add_u32 v23, s54, v1'%WP)
    def guarded(lines):
        A(lines)
    def drychk():
        pass
    for r in range(192,246): A('v_mov_b32 v%d, -1'%r)
    A('s_waitcnt lgkmcnt(0)')
    A('s_mov_b64 vcc, 0\ns_mov_b64 s[4:5], %d\ns_mov_b64 exec, s[4:5]'%(0 if cfg.warm else -1))
    A('L_tail:')
    stamp(7)
    guarded('s_barrier')
    def wsum(b0,half,s0=None):
        d='v[%d:%d]'%(b0+2*half,b0+2*half+1)
        s0=s0 or b0
        for w in range(4):
            src='v[%d:%d]'%(s0+4*w+2*half,s0+4*w+2*half+1)
            f='v[%d:%d]'%(72+2*(w//2),73+2*(w//2))
            if w==0: A('v_pk_mul_f32 %s, %s, %s op_sel_hi:[1,0]'%(d,src,f))
            elif w%2==0: A('v_pk_fma_f32 %s, %s, %s, %s op_sel_hi:[1,0,1]'%(d,src,f,d))
            else: A('v_pk_fma_f32 %s, %s, %s, %s op_sel:[0,1,0] op_sel_hi:[1,1,1]'%(d,src,f,d))
    if cfg.gleak is not None:
        k,lo,hi,msk=cfg.gleak
        A('s_cbranch_execz L_nogl\ns_cmp_lg_u32 s53, 0\ns_cbranch_scc1 L_nogl')
        if k>=100: A('v_mov_b32 v32, %d\nds_read_b32 v33, v32 offset:%d\ns_waitcnt lgkmcnt(0)'%(4*(k-100),L_ST))
        else: A('v_mov_b32 v33, s%d'%(72+2*k))
        A('v_not_b32 v33, v33\nv_mov_b32 v34, s72\nv_mov_b32 v32, 0x22f000')
        A('s_mov_b64 exec, 1')
        A('global_atomic_umin v32, v34, %s'%WS)
        A('s_and_b32 s54, s2, %d\ns_sub_u32 s54, s54, %d\ns_cmp_ge_u32 s54, %d\ns_cbranch_scc1 L_nogl2'%(msk,lo,hi-lo))
        A('global_atomic_umin v32, v33, %s offset:256'%WS)
        A('L_nogl2:\ns_mov_b64 exec, -1\ns_waitcnt vmcnt(0)')
        A('L_nogl:')
    A('ds_read_b128 v[64:67], v30 offset:%d\nds_read_b128 v[68:71], v30 offset:%d'%(L_MLW,L_MLW+16))
    for w in range(4):
        A('ds_read_b128 v[%d:%d], v17 offset:%d'%(32+4*w,35+4*w,L_OW+2048*w))
    stamp(8)
    if cfg.notail: A('s_branch L_fin')
    A('s_and_b32 exec_hi, s4, 1')
    A('s_waitcnt lgkmcnt(%d)'%(0 if cfg.diag else 4))
    A('v_max3_f32 v76, v64, v65, v66\nv_max_f32 v76, v76, v67')
    A('v_pk_add_f32 v[72:73], v[64:65], v[76:77] op_sel_hi:[1,0] neg_lo:[0,1] neg_hi:[0,1]')
    A('v_pk_add_f32 v[74:75], v[66:67], v[76:77] op_sel_hi:[1,0] neg_lo:[0,1] neg_hi:[0,1]')
    for i in range(4): A('v_exp_f32 v%d, v%d'%(72+i,72+i))
    A('v_pk_mul_f32 v[68:69], v[68:69], v[72:73]\nv_pk_fma_f32 v[68:69], v[70:71], v[74:75], v[68:69]')
    A('s_waitcnt lgkmcnt(0)')
    A('v_add_f32 v77, v68, v69')
    wsum(32,0); wsum(32,1)
    A('v_mov_b32_dpp v32, v76 quad_perm:[0,1,2,3] row_mask:0x4 bank_mask:0xf')
    A('v_mov_b32_dpp v33, v77 quad_perm:[0,1,2,3] row_mask:0x4 bank_mask:0xf')
    guarded('global_store_dwordx4 v18, v[32:35], %s sc1'%WS)
    tstamp(1)
    A('s_mov_b64 exec, s[4:5]')
    A('s_cmp_lg_u32 s70, 3\ns_cbranch_scc1 L_rdone')
    if cfg.EW<8:
        for i in range(cfg.EW,8): A(dmaw(i))
        A('s_waitcnt vmcnt(0)\ns_barrier')
        trw()
    apoll(['global_load_dwordx2 v[%d:%d], v25, %s offset:%d sc1'%(208+2*s_,209+2*s_,WS,OPS*s_+512) for s_ in range(4)]+
         ['global_load_dwordx4 v[%d:%d], v19, %s offset:%d sc1'%(192+4*s_,195+4*s_,WS,OPS*s_) for s_ in range(4)],cfg.pW)
    stamp(9)
    A('v_max3_f32 v76, v208, v210, v212\nv_max_f32 v76, v76, v214')
    for i in range(4): A('v_sub_f32 v%d, v%d, v76'%(72+i,208+2*i))
    for i in range(4): A('v_exp_f32 v%d, v%d'%(72+i,72+i))
    A('v_mul_f32 v78, v72, v209')
    for i in range(1,4): A('v_fmac_f32 v78, v%d, v%d'%(72+i,209+2*i))
    A('v_rcp_f32 v78, v78')
    wsum(48,0,192); wsum(48,1,192)
    A('v_pk_mul_f32 v[48:49], v[48:49], v[78:79] op_sel_hi:[1,0]\nv_pk_mul_f32 v[50:51], v[50:51], v[78:79] op_sel_hi:[1,0]')
    A('v_cvt_pk_bf16_f32 v48, v48, v49\nv_cvt_pk_bf16_f32 v49, v50, v51')
    A('ds_write_b64 v20, v[48:49] offset:%d'%L_XO)
    A('s_waitcnt lgkmcnt(0)'); guarded('s_barrier')
    if cfg.tdiag: tstamp(2); A('s_waitcnt lgkmcnt(0)')
    for s_ in range(4):
        A('ds_read_b128 v[%d:%d], v21 offset:%d'%(32+4*s_,35+4*s_,L_XO+64*s_))
    for s_ in range(4):
        A('s_waitcnt lgkmcnt(%d)'%(3-s_))
        for t in range(2):
            acc='v[%d:%d]'%(48+4*t,51+4*t); r=80+16*t+4*s_
            A('v_mfma_f32_16x16x32_bf16 %s, v[%d:%d], v[%d:%d], %s'%(acc,r,r+3,32+4*s_,35+4*s_,'0' if s_==0 else acc))
    A('s_mov_b32 exec_lo, 0x00ff00ff\ns_mov_b32 exec_hi, 0x00ff00ff')
    A('s_nop 4')
    A('global_store_dwordx4 v22, v[48:51], %s offset:-2048 sc1'%WS)
    A('global_store_dwordx4 v22, v[52:55], %s offset:2048 sc1'%WS)
    tstamp(3)
    A('s_mov_b64 exec, -1')
    A('s_cmp_lg_u32 s53, 0\ns_cbranch_scc1 L_fin')
    apoll(['global_load_dwordx4 v[%d:%d], v23, %s offset:%d sc1'%(216+4*t,219+4*t,WS,1024*t) for t in range(4)],cfg.pR)
    stamp(10)
    A('v_pk_add_f32 v[32:33], v[216:217], v[220:221]\nv_pk_add_f32 v[34:35], v[218:219], v[222:223]')
    A('v_pk_add_f32 v[40:41], v[224:225], v[228:229]\nv_pk_add_f32 v[42:43], v[226:227], v[230:231]')
    A('v_pk_add_f32 v[32:33], v[32:33], v[40:41]\nv_pk_add_f32 v[34:35], v[34:35], v[42:43]')
    A('s_nop 1\nv_permlane32_swap_b32 v32, v34\nv_permlane32_swap_b32 v33, v35')
    A('v_add_f32 v32, v32, v34\nv_add_f32 v33, v33, v35')
    A('s_nop 1\nv_permlane16_swap_b32 v32, v33\nv_add_f32 v32, v32, v33')
    dppadd(32,'row_ror:8')
    rbf(32)
    A('v_add_f32 v32, v32, v16')
    rbf(32)
    A('v_mov_b32 v33, v32\ns_nop 1\nv_permlane16_swap_b32 v32, v33\nv_mov_b32 v34, v32\nv_mov_b32 v35, v33\ns_nop 0')
    A('v_permlane32_swap_b32 v32, v34\nv_permlane32_swap_b32 v33, v35')
    if cfg.nH<8: A('s_and_b32 exec_lo, s4, 0x%x\ns_mov_b32 exec_hi, 0'%((1<<(8*cfg.nH))-1))
    guarded('global_store_dwordx4 v24, v[32:35], %s sc1'%WS)
    tstamp(4)
    A('s_branch L_fin')
    A('L_rdone:')
    A('s_cmp_eq_u32 s70, 2\ns_cbranch_scc1 L_ffn2')
    A('s_cmp_eq_u32 s70, 0\ns_cbranch_scc1 L_fin')
    if cfg.lrot:
        assert cfg.E1%2==0
        i0=cfg.E1//2; n=8-i0
        if cfg.helper: A('s_and_b32 s6, s14, 1\ns_cmp_eq_u32 s70, 4\ns_cselect_b32 s6, 2, s6\ns_mul_i32 s6, s6, %d\ns_add_u32 s6, s6, %d'%(n//3,i0))
        else: A('s_and_b32 s6, s14, 1\ns_mul_i32 s6, s6, %d\ns_add_u32 s6, s6, %d'%(n//2,i0))
        for it in range(n):
            if cfg.helper and it==n-2*(n//3): A('s_cmp_eq_u32 s70, 4\ns_cbranch_scc1 L_fin')
            A('s_mul_i32 s7, s6, %d\nv_add_u32 v7, s7, v6\ns_lshl_b32 s7, s6, 10\ns_add_u32 s7, s7, s71\ns_add_u32 m0, s7, %d\ns_add_u32 s6, s6, 1'%(16*3584,L_WA))
            A('global_load_lds_dwordx4 v7, %s %s'%(WG,cfg.ff))
            A('s_add_u32 m0, s7, %d\ns_cmp_eq_u32 s6, 8\ns_cselect_b32 s6, %d, s6'%(L_WA+32768,i0))
            A('global_load_lds_dwordx4 v7, %s %s'%(WU,cfg.ff))
    else:
        for k in range(cfg.E1,16): A(dma1(k))
    A('s_waitcnt vmcnt(0)\ns_barrier')
    for s_ in range(16):
        A('ds_read_b64_tr_b16 v[%d:%d], v8 offset:%d'%(96+4*s_,97+4*s_,2048*s_))
        A('ds_read_b64_tr_b16 v[%d:%d], v8 offset:%d'%(98+4*s_,99+4*s_,2048*s_+256))
        if s_%4==3: A('s_waitcnt lgkmcnt(0)')
    tstamp(2)
    apoll(['global_load_dwordx4 v[%d:%d], v4, %s offset:%d sc1'%(216+4*t,219+4*t,WS,1024*t) for t in range(4)],cfg.pF)
    stamp(11)
    layernorm('h')
    tstamp(5)
    A('s_waitcnt lgkmcnt(0)'); guarded('s_barrier')
    if cfg.tdiag: tstamp(6); A('s_waitcnt lgkmcnt(0)')
    for s_ in range(8):
        A('ds_read_b128 v[%d:%d], v9 offset:%d'%(32+4*s_,35+4*s_,L_XN+64*s_))
    for s_ in range(16):
        A('s_waitcnt lgkmcnt(%d)'%min(7,15-s_))
        b=32+4*(s_%8) if s_<8 else 160+4*(s_-8)
        A('v_mfma_f32_16x16x32_bf16 v[64:67], v[%d:%d], v[%d:%d], %s'%(96+4*s_,99+4*s_,b,b+3,'0' if s_==0 else 'v[64:67]'))
        if s_<8: A('ds_read_b128 v[%d:%d], v9 offset:%d'%(160+4*s_,163+4*s_,L_XN+64*(s_+8)))
    A('s_nop 7')
    A('v_permlane32_swap_b32 v64, v65\nv_permlane32_swap_b32 v66, v67')
    A('s_nop 1')
    A('v_mov_b32_dpp v64, v66 quad_perm:[0,1,2,3] row_mask:0xf bank_mask:0xc')
    A('v_mov_b32_dpp v65, v67 quad_perm:[0,1,2,3] row_mask:0xf bank_mask:0xc')
    A('v_cvt_pk_bf16_f32 v32, 0, v64\nv_cvt_pk_bf16_f32 v36, 0, v65')
    A('v_mul_f32 v33, v32, v32\nv_mul_f32 v33, 0x3d372713, v33\nv_fma_f32 v33, v33, v32, v32')
    A('v_mul_f32 v33, 0xc0135761, v33\nv_exp_f32 v33, v33\ns_nop 0\nv_add_f32 v33, 1.0, v33\nv_rcp_f32 v33, v33\ns_nop 0\nv_mul_f32 v33, v33, v32')
    rbf(33)
    A('v_mul_f32 v33, v33, v36\nv_mov_b32 v34, v33\ns_nop 1\nv_permlane32_swap_b32 v33, v34')
    A('v_cvt_pk_bf16_f32 v33, v33, v34\nv_min_u32 v36, -2, v33')
    A('v_mov_b32 v32, v36\nv_mov_b32 v33, v36\ns_nop 0')
    A('v_mov_b32_dpp v32, v36 row_ror:8 row_mask:0xf bank_mask:0xc\nv_mov_b32_dpp v33, v36 row_ror:8 row_mask:0xf bank_mask:0x3')
    A('v_mov_b32 v34, v32\nv_mov_b32 v35, v33\ns_nop 0')
    A('v_permlane16_swap_b32 v32, v34\nv_permlane16_swap_b32 v33, v35')
    if cfg.nA<8: A('s_and_b32 exec_lo, s4, 0x%x\ns_mov_b32 exec_hi, 0'%((1<<(8*cfg.nA))-1))
    guarded('global_store_dwordx4 v27, v[32:35], %s sc1'%WS)
    stamp(12)
    A('L_fin:')
    A('s_waitcnt vmcnt(0)')
    if cfg.diag:
        dump_stamps(14,8)
    A('s_endpgm')
    A('L_ffn2:')
    if cfg.lrot:
        n=14-cfg.E2
        A('s_and_b32 s6, s15, 3\ns_mul_i32 s6, s6, %d\ns_lshr_b32 s6, s6, 2\ns_add_u32 s6, s6, %d'%(n,cfg.E2))
        for _ in range(n):
            A('s_lshl_b32 s7, s6, 15\nv_add_u32 v7, s7, v6\ns_lshl_b32 s7, s6, 10\ns_add_u32 s7, s7, s71\ns_add_u32 m0, s7, %d\ns_add_u32 s6, s6, 1'%L_WA)
            A('global_load_lds_dwordx4 v7, %s %s'%(WD,cfg.ff))
            A('s_cmp_eq_u32 s6, 14\ns_cselect_b32 s6, %d, s6'%cfg.E2)
    else:
        for k in range(cfg.E2,14): A(dma2(k))
    A('s_waitcnt vmcnt(0)')
    for t in range(7):
        for tt in range(2):
            r=96+8*t+4*tt
            A('ds_read_b64_tr_b16 v[%d:%d], v8 offset:%d'%(r,r+1,2048*t+16*tt))
            A('ds_read_b64_tr_b16 v[%d:%d], v8 offset:%d'%(r+2,r+3,2048*t+16*tt+128))
        if t%2==0: A('s_waitcnt lgkmcnt(0)')
    tstamp(2)
    poll(guard=True,loads=['global_load_dwordx2 v[60:61], v29, %s sc1'%WS],regs=[60,61])
    apoll(['global_load_dwordx4 v[%d:%d], v27, %s offset:%d sc1'%(216+4*t,219+4*t,WS,1024*t-3072) for t in range(7)],cfg.pG)
    stamp(10)
    for t in range(7):
        for tt in range(2):
            acc='v[%d:%d]'%(64+4*tt,67+4*tt)
            r=96+8*t+4*tt
            A('v_mfma_f32_16x16x32_bf16 %s, v[%d:%d], v[%d:%d], %s'%(acc,r,r+3,216+4*t,219+4*t,'0' if t==0 else acc))
    A('s_nop 6')
    A('ds_write_b128 v10, v[64:67] offset:%d'%L_DP)
    A('ds_write_b128 v10, v[68:71] offset:%d'%(L_DP+1024))
    A('s_waitcnt lgkmcnt(0)'); guarded('s_barrier')
    tstamp(6)
    A('s_cmp_lg_u32 s53, 0\ns_cbranch_scc1 L_fin')
    for w in range(4):
        A('ds_read_b64 v[%d:%d], v26 offset:%d'%(32+4*w,33+4*w,L_DP+2048*w))
        A('ds_read_b64 v[%d:%d], v26 offset:%d'%(34+4*w,35+4*w,L_DP+2048*w+640))
    A('s_waitcnt lgkmcnt(0)')
    for w in range(4): A('v_pk_add_f32 v[%d:%d], v[%d:%d], v[%d:%d]'%(32+4*w,33+4*w,32+4*w,33+4*w,34+4*w,35+4*w))
    A('v_pk_add_f32 v[32:33], v[32:33], v[36:37]\nv_pk_add_f32 v[40:41], v[40:41], v[44:45]\nv_pk_add_f32 v[32:33], v[32:33], v[40:41]')
    A('v_cvt_pk_bf16_f32 v32, 0, v32\nv_cvt_pk_bf16_f32 v33, 0, v33')
    A('v_pk_add_f32 v[32:33], v[32:33], v[60:61]')
    A('v_cvt_pk_bf16_f32 v32, v32, v33')
    guarded('global_store_dword v28, v32, %s %s'%(OUT,cfg.of))
    drychk()
    if cfg.diag:
        stamp(13)
        if cfg.leak is not None:
            a,b=cfg.leak
            A('s_waitcnt lgkmcnt(0)')
            if cfg.gleak is not None:
                A('v_mov_b32 v8, 0x22f000\nglobal_load_dword v9, v8, %s sc1\nglobal_load_dword v10, v8, %s offset:256 sc1\ns_waitcnt vmcnt(0)'%(WS,WS))
                if b==13: A('v_mov_b32 v10, s%d'%(72+2*13))
                else: A('v_not_b32 v10, v10')
                A('v_sub_u32 v9, v10, v9\ns_nop 1\nv_readfirstlane_b32 s54, v9')
                if b==0: A('s_mov_b32 s54, 0')
            elif b>=100:
                A('v_mov_b32 v8, %d\nds_read_b32 v9, v8 offset:%d\ns_waitcnt lgkmcnt(0)\nv_readfirstlane_b32 s54, v9\ns_sub_u32 s54, s54, s%d'%(4*(b-100),L_ST,72+2*a))
            else: A('s_sub_u32 s54, s%d, s%d'%(72+2*b,72+2*a))
            A('s_mul_i32 s54, s54, %d\ns_min_u32 s54, s54, 60000'%cfg.mult)
            A('L_leak:')
            A('s_memrealtime s[68:69]\ns_waitcnt lgkmcnt(0)\ns_sub_u32 s55, s68, s%d\ns_cmp_lt_u32 s55, s54\ns_cbranch_scc1 L_leak'%(72+2*13))
        else:
            A('s_waitcnt lgkmcnt(0)\ns_mov_b32 s100, s92\ns_mov_b32 s92, 0')
            dump_stamps(15,8)
    A('L_end:')
    A('s_endpgm')
    A('.section .rodata,"a"\n.p2align 6\n.amdhsa_kernel %s'%K)
    A('  .amdhsa_next_free_vgpr 256\n  .amdhsa_next_free_sgpr 102\n  .amdhsa_accum_offset 256\n  .amdhsa_group_segment_fixed_size 0\n  .amdhsa_kernarg_size 96')
    A('  .amdhsa_user_sgpr_count 2\n  .amdhsa_user_sgpr_kernarg_segment_ptr 1\n  .amdhsa_system_sgpr_workgroup_id_x 1')
    A('  .amdhsa_float_denorm_mode_32 3\n  .amdhsa_float_denorm_mode_16_64 3')
    A('.end_amdhsa_kernel')
    return '\n'.join(L)+'\n'

if __name__=='__main__':
    cfg=Cfg()
    out=sys.argv[1]
    for a in sys.argv[2:]:
        k,v=a.split('=',1); setattr(cfg,k,eval(v))
    s=gen(cfg)
    hdr=''.join(l for l in open('cdna_kernels/%s.s.ref'%NAME).readlines()[:13])
    open(out,'w').write(hdr+s)
```

```python
import sys
NAME='sequential_preLN__gqa_block_cached__geglu_ffn__decode'
K=NAME+'_kernel'

class Cfg:
    diag=False
    leak=None
    nocomp=False
    noq=False
    T2=12
    sdiag=False
    mult=1
    Q1=0; Q2=0
    E1=0; E2=0; EW=8; lrot=True; helper=False
    T0=None; n0=24
    qflag=True
    chunk=0
    bare=0
    notail=False
    knat=False
    cdbg=False
    ctouch=None
    rot=4
    cs=9
    nowq=False
    noqst=False
    nH=8; nA=8
    pW=('c',1,0); pR=('m',8,1); pF=('c',1,0); pG=('c',1,0)
    tdiag=False
    tsleep=0
    crot=0
    noclr=False
    wolate=False
    warm=False
    of=''
    gleak=None
    NS=28
    sflag=False
    svcfirst=0
    spin=1<<17
    T=5
    kf='nt'; vf='nt'; wf='nt'; ff=''
    pq=3
    pw0=7
    pw1=22
    noW=False

QP=0x0
CTR=0x230000
FLG=0x80000
CLR=0x100000
WP=0x100000
OP=0x180000
OPS=640
HB=0x240000
AB=0x260000
STAMP=0x10000000
L_MLW=64
L_QL=256
L_XN=1280
XNS=1040
L_XO=9600
XOS=272
L_DP=11776
L_OW=19968
L_ST=28160
L_PR=28416
L_CNT=L_PR+1024
L_WA=30720
LDS_BYTES=L_WA+65536

LOG2E=0x3fb8aa3b
SCALE=0x3db504f3

def gen(cfg):
    L=[]
    def A(s):
        L.extend(s.split('\n'))
    lab=[0]
    def newlab(p):
        lab[0]+=1
        return 'L_%s_%d'%(p,lab[0])
    X,KP,VP,WQ,WO,BX,WG,WU,WD,OUT,DBG,WS=['s[%d:%d]'%(16+2*i,17+2*i) for i in range(12)]
    def stamp(i):
        if cfg.diag: A('s_memrealtime s[%d:%d]'%(72+2*i,73+2*i))
    def tstamp(i):
        if cfg.tdiag: stamp(i)
    def pack_stamps(n,vt):
        A('s_waitcnt lgkmcnt(0)')
        A('v_mov_b32 v%d, 0'%vt)
        for i in range(n): A('v_writelane_b32 v%d, s%d, %d'%(vt,72+2*i,i))
    def dump_stamps(n,vt):
        if not cfg.diag: return
        A('s_mov_b64 exec, -1')
        pack_stamps(n,vt)
        A('v_lshlrev_b32 v%d, 2, v0'%(vt+1))
        A('ds_read_b32 v%d, v%d offset:%d'%(vt+2,vt+1,L_ST))
        A('s_lshl_b32 s66, s2, 9\ns_add_u32 s66, s66, %d'%(STAMP))
        A('v_add_u32 v%d, s66, v%d'%(vt+1,vt+1))
        A('s_mov_b64 exec, 0xffff')
        A('s_waitcnt lgkmcnt(0)')
        A('global_store_dword v%d, v%d, %s'%(vt+1,vt+2,WS))
        A('s_lshl_b32 s66, s53, 6\nv_add_u32 v%d, s66, v%d'%(vt+1,vt+1))
        A('global_store_dword v%d, v%d, %s offset:64'%(vt+1,vt,WS))

    A('; @launch grid=(256,1,1) block=(512,1,1) lds=%d'%LDS_BYTES)
    A('.amdgcn_target "amdgcn-amd-amdhsa--gfx950"\n.text\n.globl %s\n.p2align 8\n.type %s,@function\n%s:'%(K,K,K))
    A('s_cmp_ge_u32 s2, 256\ns_cbranch_scc1 L_end')
    stamp(0)
    A('v_lshrrev_b32 v1, 6, v0')
    A('v_lshlrev_b32 v3, 2, v0')
    A('v_readfirstlane_b32 s52, v1')
    A('s_cmp_lt_u32 s52, 4\ns_cbranch_scc1 L_noz')
    A('v_mov_b32 v30, 0')
    A('ds_write_b32 v3, v30 offset:%d\nds_write_b32 v3, v30 offset:%d'%(L_PR-1024,L_PR))
    A('s_waitcnt lgkmcnt(0)')
    A('L_noz:')
    A('s_load_dwordx16 s[16:31], s[0:1], 0')
    A('s_load_dwordx8 s[32:39], s[0:1], 64')
    A('s_barrier')
    if cfg.diag:
        for i in range(1,14): A('s_mov_b32 s%d, 0'%(72+2*i))
    A('v_and_b32 v0, 63, v0')
    A('s_and_b32 s48, s2, 7\ns_lshr_b32 s49, s2, 3\ns_lshl_b32 s50, s49, 1\ns_bfe_u32 s54, s2, 0x10001\ns_or_b32 s50, s50, s54')
    A('s_and_b32 s51, s2, 1\ns_bfe_u32 s54, s2, 0x10002\ns_lshl_b32 s54, s54, 1\ns_or_b32 s51, s51, s54')
    A('s_mov_b32 s59, 0x%x\ns_mov_b32 s60, 0xffff0000'%(LOG2E))
    A('v_lshlrev_b32 v1, 4, v0')
    A('s_cmp_ge_u32 s52, 4\ns_cbranch_scc1 L_service')

    import math
    TH=math.ceil(cfg.T)
    NS=cfg.NS
    RB=64
    A('s_lshl_b32 s54, s50, 21')
    A('s_lshl_b32 s62, s51, 2\ns_add_u32 s62, s62, s52')
    for i in range(4): A('s_add_u32 s%d, s62, %d\ns_and_b32 s%d, s%d, 15\ns_lshl_b32 s%d, s%d, 12'%(8+i,cfg.rot*i,8+i,8+i,8+i,8+i))
    A('v_lshrrev_b32 v2, 4, v0\nv_lshlrev_b32 v2, 6, v2\nv_and_b32 v4, 3, v0\nv_lshl_add_u32 v2, v4, 4, v2')
    A('v_bfe_u32 v5, v0, 2, 2\nv_lshl_add_u32 v2, v5, 8, v2')
    if cfg.knat: A('v_mov_b32 v2, v1')
    A('s_mov_b32 s42, 0x200000\ns_mov_b32 s43, 0x20000\ns_mov_b32 s46, 0x200000\ns_mov_b32 s47, 0x20000')
    A('s_waitcnt lgkmcnt(0)')
    A('s_add_u32 s40, s18, s54\ns_addc_u32 s41, s19, 0\ns_and_b32 s41, s41, 0xffff')
    A('s_add_u32 s44, s20, s54\ns_addc_u32 s45, s21, 0\ns_and_b32 s45, s45, 0xffff')
    st={'n':0}
    def adv():
        if cfg.rot: A('s_add_u32 s68, s62, %d\ns_and_b32 s68, s68, 15\ns_andn2_b32 s62, s62, 15\ns_add_u32 s62, s62, 16\ns_or_b32 s62, s62, s68'%cfg.rot)
        else: A('s_add_u32 s62, s62, 16')
    def load(slot,j,throttle=True,th=None):
        if j==0: A('s_lshl_b32 s65, s62, 12')
        if throttle:
            t_=(th or cfg.T); lo=int(t_); fr=t_-lo
            w=lo+(1 if (int((j+1)*fr+1e-9)>int(j*fr+1e-9)) else 0)
            A('s_waitcnt vmcnt(%d)'%(w-1))
        r=RB+slot*32+j*4
        t=j//4
        A('buffer_load_dwordx4 v[%d:%d], %s, %s, s65 offen offset:%d %s'%(r,r+3,'v2' if t==0 else 'v1','s[40:43]' if t==0 else 's[44:47]',(j%4)*1024,cfg.kf if t==0 else cfg.vf))
    def prog(val):
        A('v_mov_b32 v30, %s\nds_write_b32 v3, v30 offset:%d'%(val,L_PR))
    NK=NS//2
    assert NS%2==0 and NK>=10 and NK<=15
    slot_of={u:u for u in range(6)}
    slot_of.update({6:0,7:1,8:2})
    for u in range(9,NS+1): slot_of[u]=(u-9)&1
    tr={'issued':0}
    def sload():
        n=tr['issued']; G=n//8; j=n%8
        tr['issued']=n+1
        if G==NS:
            load(slot_of[G],j,th=cfg.T); return
        t=G//NK; k=2*(G%NK)+j//4
        if j%4==0: A('s_add_u32 s65, s%d, %d'%(8+k%4,k*65536))
        w=cfg.T0 if (cfg.T0 and n<cfg.n0) else TH
        if n>=w: A('s_waitcnt vmcnt(%d)'%(w-1))
        r=RB+slot_of[G]*32+j*4
        A('buffer_load_dwordx4 v[%d:%d], %s, %s, s65 offen offset:%d %s'%(r,r+3,'v2' if t==0 else 'v1','s[40:43]' if t==0 else 's[44:47]',(j%4)*1024,cfg.kf if t==0 else cfg.vf))
        if j==7 and n>=15: prog(G+1)
    def pro_issue(n0,n1):
        assert tr['issued']==n0
        for n in range(n0,n1): sload()
    if cfg.svcfirst: A('s_barrier')
    if cfg.sdiag: stamp(6)
    pro_issue(0,TH)
    if cfg.sdiag: stamp(7)
    A('s_mov_b32 s56, 0x05040100\ns_mov_b32 s57, 0x07060302\ns_mov_b32 s58, 0x%x'%SCALE)
    A('s_lshl_b32 s54, s50, %d\ns_add_u32 s54, s54, %d\ns_add_u32 s66, s38, s54\ns_addc_u32 s67, s39, 0'%(cfg.cs,CTR))
    if cfg.cdbg: A('s_lshl_b32 s54, s50, 9\ns_add_u32 s54, s54, 4096\ns_add_u32 s66, s36, s54\ns_addc_u32 s67, s37, 0')
    A('s_lshl_b32 s55, s52, 11')
    A('v_lshlrev_b32 v4, 9, v4\nv_and_b32 v0, 0x30, v0\nv_add3_u32 v0, v4, v0, s55')
    A('v_mov_b32 v14, 0xff800000')
    if cfg.sdiag:
        stamp(9); A('s_waitcnt vmcnt(%d)'%(TH-1)); stamp(10)
    pro_issue(TH,48)
    stamp(1)
    if cfg.qflag:
        A('v_mov_b32 v31, 0\nL_qw:\nds_read_b32 v15, v31 offset:%d\ns_waitcnt lgkmcnt(0)\nv_readfirstlane_b32 s54, v15\ns_cmp_eq_u32 s54, 0\ns_cbranch_scc1 L_qw'%(L_CNT+16))
    else: A('s_barrier')
    A('ds_read_b128 v[4:7], v1 offset:%d'%L_QL)
    stamp(2)
    A('s_waitcnt lgkmcnt(0)')
    def kpart(slot,fill):
        B=RB+slot*32
        f=list(fill)
        def nxt():
            if f: f.pop(0)()
        D=[20,B,B+4,B+8]
        if cfg.nocomp:
            while f: nxt()
            return
        for i in range(4):
            A('v_mfma_f32_16x16x32_bf16 v[%d:%d], v[%d:%d], v[4:7], 0'%(D[i],D[i]+3,B+4*i,B+4*i+3))
        A('s_nop 7')
        for h in range(2):
            for step in range(3):
                for e in range(2):
                    be=2*e+h
                    S=18+e
                    A('v_add_f32_dpp v%d, v%d, v%d row_ror:%d row_mask:0xf bank_mask:0x%x'%(S,D[be]+((be+step+1)&3),(D[be]+be) if step==0 else S,12-4*step,1<<be))
                A('s_nop 0')
        nxt()
        A('s_nop 0')
        A('v_mov_b32_dpp v18, v19 quad_perm:[0,1,2,3] row_mask:0xf bank_mask:0xc')
        A('v_cvt_pk_bf16_f32 v18, 0, v18\nv_mul_f32 v18, s58, v18\nv_cvt_pk_bf16_f32 v18, 0, v18')
        A('v_max_f32 v15, v14, v18')
        A('s_nop 1\nv_max_f32_dpp v15, v15, v15 row_ror:4 row_mask:0xf bank_mask:0xf')
        A('s_nop 1\nv_max_f32_dpp v15, v15, v15 row_ror:8 row_mask:0xf bank_mask:0xf')
        A('v_mov_b32 v31, v15\ns_nop 1\nv_permlane16_swap_b32 v15, v31\nv_max_f32 v15, v15, v31')
        A('v_mov_b32 v31, v15\ns_nop 1\nv_permlane32_swap_b32 v15, v31\nv_max_f32 v15, v15, v31')
        nxt()
        A('v_sub_f32 v16, v14, v15\nv_sub_f32 v18, v18, v15\nv_cmp_neq_f32 vcc, v14, v15\nv_mul_f32 v16, s59, v16\nv_mul_f32 v18, s59, v18')
        A('v_exp_f32 v16, v16\nv_exp_f32 v18, v18\nv_mov_b32 v14, v15\nv_mul_f32 v17, s59, v15')
        A('v_mov_b32_dpp v19, v18 row_ror:12 row_mask:0xf bank_mask:0xf')
        A('v_cvt_pk_bf16_f32 v8, v18, v19')
        l=newlab('nr')
        A('s_cbranch_vccz %s'%l)
        for r in range(32,64,2):
            A('v_pk_mul_f32 v[%d:%d], v[%d:%d], v[16:17] op_sel_hi:[1,0]'%(r,r+1,r,r+1))
        A('v_mul_f32 v24, v24, v16')
        A('%s:'%l)
        A('s_nop 0')
        A('v_mov_b32_dpp v9, v8 row_ror:8 row_mask:0xf bank_mask:0xf')
        while f: nxt()
    def vpart(slot):
        B=RB+slot*32+16
        if cfg.nocomp: return
        def perms(j):
            Tt=10+2*(j&1)
            for ii in range(2):
                A('v_perm_b32 v%d, v%d, v%d, s%d'%(Tt+ii,B+4*(2*ii+1)+(j>>1),B+4*(2*ii)+(j>>1),56+(j&1)))
        perms(0)
        for j in range(8):
            if j<7: perms(j+1)
            else: A('v_mfma_f32_16x16x16_bf16 v[24:27], v[28:29], v[8:9], v[24:27]')
            Tt=10+2*(j&1)
            A('v_mfma_f32_16x16x16_bf16 v[%d:%d], v[%d:%d], v[8:9], v[%d:%d]'%(32+4*j,35+4*j,Tt,Tt+1,32+4*j,35+4*j))
    SC=[8,9,10,11,12,13,20,21,22,23,25,26,27,28,29][:NK]
    RV=RB+5*32; TV=RV+4
    def need(n):
        rem=tr['issued']-n
        assert rem>=0
        if rem<TH: A('s_waitcnt vmcnt(%d)'%rem)
    def spread(chunks,nl):
        m=len(chunks)
        for i,c in enumerate(chunks):
            if not cfg.nocomp: A(c)
            for _ in range((nl*(i+1))//m-(nl*i)//m): sload()
    def kgroup(G):
        B=RB+slot_of[G]*32
        ch=['\n'.join('v_mfma_f32_16x16x32_bf16 v[%d:%d], v[%d:%d], v[4:7], 0'%(32+4*i,35+4*i,B+4*i,B+4*i+3) for i in range(8))+'\ns_nop 1']
        for be in range(4):
            c=[]
            for step in range(3):
                for e in range(2):
                    D=32+4*(2*be+e); S=18+e
                    c.append('v_add_f32_dpp v%d, v%d, v%d row_ror:%d row_mask:0xf bank_mask:0x%x'%(S,D+((be+step+1)&3),(D+be) if step==0 else S,12-4*step,1<<be))
                c.append('s_nop 0')
            ch.append('\n'.join(c))
        ch[-1]+='\nv_cvt_pk_bf16_f32 v15, 0, v18\nv_cvt_pk_bf16_f32 v16, 0, v19\nv_mul_f32 v15, s58, v15\nv_mul_f32 v16, s58, v16'
        ch[-1]+='\nv_cvt_pk_bf16_f32 v%d, v15, v16\nv_cvt_pk_bf16_f32 v15, 0, v15\nv_cvt_pk_bf16_f32 v16, 0, v16\nv_max3_f32 v14, v14, v15, v16'%SC[G]
        return ch
    def wred(op,r):
        return ('s_nop 1\n%s_dpp v%d, v%d, v%d row_ror:4 row_mask:0xf bank_mask:0xf\ns_nop 1\n%s_dpp v%d, v%d, v%d row_ror:8 row_mask:0xf bank_mask:0xf\n'%(op,r,r,r,op,r,r,r)+
                'v_mov_b32 v31, v%d\ns_nop 1\nv_permlane16_swap_b32 v%d, v31\n%s v%d, v%d, v31\n'%(r,r,op,r,r)+
                'v_mov_b32 v31, v%d\ns_nop 1\nv_permlane32_swap_b32 v%d, v31\n%s v%d, v%d, v31'%(r,r,op,r,r))
    def softmax():
        ch=[wred('v_max_f32',14)+'\nv_mul_f32 v17, s59, v14\nv_mov_b32 v24, 0']
        for g in range(NK):
            ch.append('v_lshlrev_b32 v18, 16, v%d\nv_and_b32 v19, s60, v%d\nv_sub_f32 v18, v18, v14\nv_sub_f32 v19, v19, v14\nv_mul_f32 v18, s59, v18\nv_mul_f32 v19, s59, v19\n'%(SC[g],SC[g])+
                      'v_exp_f32 v18, v18\nv_exp_f32 v19, v19\ns_nop 0\nv_cvt_pk_bf16_f32 v%d, v18, v19\nv_add_f32 v24, v24, v18\nv_add_f32 v24, v24, v19'%SC[g])
        ch.append(wred('v_add_f32',24))
        return ch
    def vgroup(G):
        B=RB+slot_of[G]*32; P=SC[G-NK]
        def perms(j):
            Tt=TV+4*(j&1)
            return '\n'.join('v_perm_b32 v%d, v%d, v%d, s%d'%(Tt+ii,B+4*(2*ii+1)+(j>>1),B+4*(2*ii)+(j>>1),56+(j&1)) for ii in range(4))
        c0='v_mov_b32 v%d, v%d\n'%(RV,P)+'\n'.join('v_mov_b32_dpp v%d, v%d row_ror:%d row_mask:0xf bank_mask:0xf'%(RV+r,P,16-4*r) for r in range(1,4))+'\n'+perms(0)
        ch=[c0]
        for j in range(8):
            Tt=TV+4*(j&1); acc='v[%d:%d]'%(32+4*j,35+4*j)
            ch.append((perms(j+1) if j<7 else 's_nop 1')+'\nv_mfma_f32_16x16x32_bf16 %s, v[%d:%d], v[%d:%d], %s'%(acc,Tt,Tt+3,RV,RV+3,'0' if G==NK else acc))
        return ch
    def request():
        if not cfg.chunk:
            A('s_mov_b32 s63, 1\ns_atomic_add s63, s[66:67], 0x0 glc'); return
        la=newlab('ra'); lb=newlab('rb')
        A('s_cmp_eq_u32 s69, 0\ns_cbranch_scc1 %s'%la)
        A('s_mov_b32 s69, 0\ns_sub_u32 s63, s62, %d\ns_branch %s'%(NS*16,lb))
        A('%s:'%la)
        A('s_cmp_lt_u32 s62, %d\ns_cselect_b32 s69, 1, 0\ns_add_u32 s63, s69, 1\ns_atomic_add s63, s[66:67], 0x0 glc'%(512-cfg.chunk))
        A('%s:'%lb)
    for G in range(9):
        need(8*G+8)
        spread(kgroup(G),[4,4,4,4,4,4,3,2,3][G])
    assert tr['issued']==80
    stamp(3)
    for G in range(9,NS):
        if G==NS-2:
            A('v_mov_b32 v31, 0\nL_cw:\nds_read_b32 v15, v31 offset:%d\ns_waitcnt lgkmcnt(0)\nv_readfirstlane_b32 s54, v15\ns_cmp_eq_u32 s54, 0\ns_cbranch_scc1 L_cw'%(L_CNT+8))
            stamp(4)
            A('s_mov_b32 s63, %d\ns_atomic_add s63, s[66:67], 0x0 glc\ns_mov_b32 s69, %d'%((2,1) if cfg.chunk else (1,0)))
        if G==NS-1:
            A('s_waitcnt lgkmcnt(0)\ns_add_u32 s62, s63, %d'%(NS*16+1))
            A('s_cmp_ge_u32 s62, 512\ns_cbranch_scc1 L_nrq'); request(); A('L_nrq:')
        lead=min(TH,8)
        if G==NK: spread(softmax(),lead)
        else:
            for _ in range(lead): sload()
        need(8*G+8)
        ch=kgroup(G) if G<NK else vgroup(G)
        spread(ch[:-1],8-lead); spread(ch[-1:],0)
    A('s_cmp_ge_u32 s62, 512\ns_cbranch_scc1 L_sdone')
    A('v_mov_b32 v28, 0x3f803f80\nv_mov_b32 v29, 0x3f803f80\nv_mov_b32 v25, 0\nv_mov_b32 v26, 0\nv_mov_b32 v27, 0')
    A('s_waitcnt lgkmcnt(0)\ns_add_u32 s62, s63, %d'%(NS*16+1))
    A('s_mov_b32 s64, %d'%(NS+1))
    def body(c,th):
        for j in range(4): load(1-c,j,th=th)
        if th>8: A('s_waitcnt vmcnt(8)')
        kpart(c,[(lambda j=j: load(1-c,j,th=th)) for j in range(4,8)])
        if th>8: A('s_waitcnt vmcnt(8)')
        vpart(c)
    A('L_dyn:')
    for c in (slot_of[NS],1-slot_of[NS]):
        ls=newlab('st'); lc=newlab('sc')
        if cfg.diag: A('s_add_u32 s64, s64, 1')
        A('s_cmp_ge_u32 s62, 512\ns_cbranch_scc1 %s'%ls)
        request()
        A('%s:'%ls)
        body(c,cfg.T2 or cfg.T)
        A('s_cmp_ge_u32 s62, 512\ns_cbranch_scc1 L_sdone')
        A('s_waitcnt lgkmcnt(0)')
        A('s_add_u32 s62, s63, %d'%(NS*16+1))
    A('s_branch L_dyn')
    A('L_sdone:')
    A('s_mov_b32 exec_lo, 0x000f000f\ns_mov_b32 exec_hi, 0x000f000f')
    stamp(5)
    A('s_lshl_b32 s55, s52, 2\nv_and_b32 v31, 0x30, v1\nv_lshl_add_u32 v31, v31, 1, s55')
    for j in range(8):
        A('ds_write_b128 v0, v[%d:%d] offset:%d'%(32+4*j,35+4*j,L_OW+64*j))
    A('ds_write2_b32 v31, v17, v24 offset0:%d offset1:%d'%(L_MLW//4,L_MLW//4+4))
    if cfg.diag:
        A('s_mov_b64 exec, -1')
        A('s_cmp_lg_u32 s52, 0\ns_cbranch_scc1 L_nost')
        pack_stamps(11 if cfg.sdiag else 6,8)
        A('v_writelane_b32 v8, s64, 8')
        A('ds_write_b32 v3, v8 offset:%d'%L_ST)
        A('L_nost:')
    A('s_waitcnt lgkmcnt(0)')
    A('s_barrier')
    A('s_endpgm')

    A('L_service:')
    if cfg.bare:
        A('s_sub_u32 s53, s52, 4\nv_mov_b32 v11, 0\nv_mov_b32 v12, 1\nv_mov_b32 v40, -1\nv_mov_b32 v41, -1\nv_mov_b32 v42, -1\nv_mov_b32 v43, -1\ns_waitcnt lgkmcnt(0)')
        if cfg.bare&2:
            A('s_lshl_b32 s54, s2, 2\ns_add_u32 s54, s54, s53\ns_mul_i32 s54, s54, 640\ns_add_u32 s54, s54, %d\nv_add_u32 v6, s54, v1\ns_mov_b32 exec_hi, 0xff\nglobal_store_dwordx4 v6, v[40:43], %s sc1\ns_mov_b64 exec, -1'%(CLR+0x100000,WS))
        if cfg.bare&4:
            A('global_load_dwordx4 v[32:35], v1, %s'%X)
        if cfg.bare&8:
            A('v_mov_b32 v6, s2\ns_mov_b64 exec, 1\nglobal_store_byte v6, v12, %s sc1\ns_mov_b64 exec, -1'%DBG)
        A('ds_write_b32 v11, v12 offset:%d\ns_waitcnt lgkmcnt(0)\ns_barrier\ns_barrier'%(L_CNT+8))
        if cfg.bare&16:
            A('v_lshlrev_b32 v7, 2, v0\nglobal_load_dword v13, v7, %s sc1'%DBG)
        A('s_barrier\ns_endpgm')
    A('s_setprio 3')
    A('s_sub_u32 s53, s52, 4')
    A('s_lshl_b32 s66, s53, 12')
    A('s_mov_b32 s3, %d'%FLG)
    A('s_lshr_b32 s68, s49, 3\ns_and_b32 s69, s49, 7')
    A('v_lshrrev_b32 v2, 5, v0\ns_lshl_b32 s54, s53, 1\nv_add_u32 v2, s54, v2')
    A('v_and_b32 v3, 31, v0\nv_lshlrev_b32 v3, 4, v3')
    A('v_lshl_add_u32 v4, v2, 10, v3')
    A('s_lshl_b32 s54, s68, 7\ns_lshl_b32 s55, s53, 5\ns_add_u32 s54, s54, s55')
    A('v_lshrrev_b32 v6, 3, v0\nv_add_u32 v6, s54, v6\nv_lshlrev_b32 v6, 13, v6')
    A('v_and_b32 v7, 7, v0\nv_lshl_add_u32 v6, v7, 4, v6')
    A('s_lshl_b32 s54, s48, 10\ns_lshl_b32 s55, s69, 7\ns_add_u32 s54, s54, s55\nv_add_u32 v6, s54, v6')
    A('s_lshl_b32 s54, s48, 2\ns_add_u32 s54, s54, s68\ns_lshl_b32 s54, s54, 11\ns_lshl_b32 s55, s69, 8\ns_add_u32 s54, s54, s55\ns_lshl_b32 s55, s53, 6\ns_add_u32 s54, s54, s55')
    A('v_lshlrev_b32 v14, 16, v7\nv_and_b32 v15, 0x30, v0\nv_add3_u32 v14, v14, v15, s54')
    A('v_mov_b32 v40, -1\nv_mov_b32 v41, -1\nv_mov_b32 v42, -1\nv_mov_b32 v43, -1')
    A('s_add_u32 m0, s66, %d'%L_WA)
    A('v_lshrrev_b32 v44, 1, v0\nv_lshlrev_b32 v44, 9, v44\nv_and_b32 v45, 16, v1\nv_add3_u32 v79, v44, v45, %s'%'s3')
    A('v_mov_b32 v44, 0\nv_mov_b32 v45, 0\nv_mov_b32 v46, 0\nv_mov_b32 v47, 0\nv_mov_b32 v11, 0\nv_mov_b32 v12, 1')
    A('s_lshl_b32 s12, s2, 2\ns_add_u32 s12, s12, s53')
    A('s_waitcnt lgkmcnt(0)')
    A('s_cmp_lg_u32 s12, 3\ns_cbranch_scc1 L_nolead')
    A('global_store_dwordx4 v79, v[44:47], %s sc1'%WS)
    A('L_nolead:')
    A('global_load_dwordx4 v[32:35], v4, %s'%X)
    A('global_load_dwordx4 v[36:39], v4, %s offset:512'%X)
    if cfg.nowq: A('s_mov_b64 exec, 1')
    for i in range(4):
        if i: A('s_add_u32 m0, s66, %d\nv_add_u32 v6, 0x10000, v6'%(L_WA+i*1024))
        A('global_load_lds_dwordx4 v6, %s %s'%(WQ,cfg.wf))
    A('s_mov_b32 exec_lo, 0x00ff00ff\ns_mov_b32 exec_hi, 0x00ff00ff')
    if cfg.noqst: A('s_mov_b64 exec, 1')
    A('global_store_dwordx4 v14, v[40:43], %s sc1'%WS)
    A('s_mov_b64 exec, -1')
    if cfg.svcfirst==1: A('s_barrier')
    A('s_lshl_b32 s54, s2, 12\ns_lshl_b32 s55, s53, 10\ns_add_u32 s54, s54, s55\ns_add_u32 s54, s54, %d'%CLR)
    A('v_add_u32 v6, s54, v1')
    if cfg.noclr: A('s_mov_b64 exec, 1')
    A('global_store_dwordx4 v6, v[40:43], %s sc1'%WS)
    if cfg.noclr: A('s_mov_b64 exec, -1')
    A('s_lshl_b32 s54, s2, 2\ns_add_u32 s54, s54, s53\ns_mul_i32 s54, s54, 640\ns_add_u32 s54, s54, %d'%(CLR+0x100000))
    A('v_add_u32 v6, s54, v1')
    A('s_mov_b32 exec_hi, 0xff')
    A('global_store_dwordx4 v6, v[40:43], %s sc1'%WS)
    A('s_mov_b64 exec, -1')
    if cfg.svcfirst==2: A('s_barrier')
    A('v_mul_u32_u24 v5, %d, v2\nv_add_u32 v5, v5, v3'%XNS)
    A('v_lshrrev_b32 v8, 4, v0\nv_lshlrev_b32 v8, 10, v8\nv_bfe_u32 v9, v0, 2, 2\nv_lshl_add_u32 v8, v9, 7, v8\nv_and_b32 v9, 3, v0\nv_lshl_add_u32 v8, v9, 3, v8')
    A('s_lshl_b32 s54, s53, 5\nv_add_u32 v8, s54, v8')
    A('v_mul_u32_u24 v9, %d, v7\nv_add_u32 v9, v9, v15\ns_lshl_b32 s54, s68, 8\nv_add_u32 v10, s54, v9'%XNS)
    A('s_lshl_b32 s54, s53, 8\nv_mov_b32 v31, s54')

    def dppadd(r,ctl):
        A('s_nop 1\nv_add_f32_dpp v%d, v%d, v%d %s row_mask:0xf bank_mask:0xf'%(r,r,r,ctl))
    def swapadd(r,t,w):
        A('v_mov_b32 v%d, v%d\ns_nop 1\nv_permlane%d_swap_b32 v%d, v%d\nv_add_f32 v%d, v%d, v%d'%(t,r,w,r,t,r,r,t))
    def rbf(r):
        A('v_cvt_pk_bf16_f32 v%d, 0, v%d'%(r,r))
    def layernorm(mode):
        if mode=='x':
            for i in range(8):
                A('v_lshlrev_b32 v%d, 16, v%d\nv_and_b32 v%d, s60, v%d'%(48+2*i,32+i,49+2*i,32+i))
        Q=lambda i:'v[%d:%d]'%(48+2*i,49+2*i)
        P=Q if mode=='x' else (lambda i:'v[%d:%d]'%(216+2*i,217+2*i))
        A('v_pk_add_f32 v[64:65], %s, %s\nv_pk_mul_f32 v[66:67], %s, %s'%(P(0),P(1),P(0),P(0)))
        A('v_pk_add_f32 v[68:69], %s, %s\nv_pk_mul_f32 v[70:71], %s, %s'%(P(2),P(3),P(1),P(1)))
        for i in range(2,8,2):
            if i>2: A('v_pk_add_f32 v[64:65], v[64:65], %s'%P(i))
            A('v_pk_fma_f32 v[66:67], %s, %s, v[66:67]'%(P(i),P(i)))
            if i>2: A('v_pk_add_f32 v[68:69], v[68:69], %s'%P(i+1))
            A('v_pk_fma_f32 v[70:71], %s, %s, v[70:71]'%(P(i+1),P(i+1)))
        A('v_pk_add_f32 v[64:65], v[64:65], v[68:69]\nv_pk_add_f32 v[66:67], v[66:67], v[70:71]')
        A('v_add_f32 v64, v64, v65\nv_add_f32 v66, v66, v67')
        ctl=['row_ror:1','row_ror:2','row_ror:4','row_ror:8'] if mode=='x' else ['quad_perm:[1,0,3,2]','quad_perm:[2,3,0,1]','row_ror:8']
        for c in ctl:
            A('s_nop 0')
            for r in (64,66): A('v_add_f32_dpp v%d, v%d, v%d %s row_mask:0xf bank_mask:0xf'%(r,r,r,c))
        for w in ((16,) if mode=='x' else (16,32)):
            A('v_mov_b32 v65, v64\nv_mov_b32 v67, v66\ns_nop 0')
            A('v_permlane%d_swap_b32 v64, v65\nv_permlane%d_swap_b32 v66, v67'%(w,w))
            A('v_add_f32 v64, v64, v65\nv_add_f32 v66, v66, v67')
        A('v_mul_f32 v64, 0xbb000000, v64\nv_mul_f32 v66, 0x3b000000, v66')
        A('v_cvt_pk_bf16_f32 v68, 0, v64')
        chain=['v_fma_f32 v66, -v64, v64, v66','v_max_f32 v66, 0, v66','v_cvt_pk_bf16_f32 v66, 0, v66','v_add_f32 v66, 0x3727c5ac, v66',
               'v_cvt_pk_bf16_f32 v66, 0, v66','v_sqrt_f32 v66, v66','v_cvt_pk_bf16_f32 v66, 0, v66','v_rcp_f32 v66, v66']
        for i in range(8):
            A(chain[i])
            A('v_pk_add_f32 %s, %s, v[68:69] op_sel_hi:[1,0]'%(Q(i),P(i)))
        for i in range(16): A('v_cvt_pk_bf16_f32 v%d, 0, v%d'%(48+i,48+i))
        nw=2 if mode=='h' else 4
        for i in range(8):
            A('v_pk_mul_f32 %s, %s, v[66:67] op_sel_hi:[1,0]'%(Q(i),Q(i)))
        for i in range(8):
            A('v_cvt_pk_bf16_f32 v%d, v%d, v%d'%(32+i,48+2*i,49+2*i))
            if mode=='h' and i%2==1: A('ds_write_b64 v5, v[%d:%d] offset:%d'%(31+i,32+i,L_XN+256*(i//2)))
            if mode=='x' and i%4==3: A('ds_write_b128 v5, v[%d:%d] offset:%d'%(29+i,32+i,L_XN+512*(i//4)))
    def lds_sync(cnt,sleep=0):
        l=newlab('ls')
        A('s_waitcnt lgkmcnt(0)')
        A('s_mov_b64 exec, 1\nds_add_u32 v11, v12 offset:%d\ns_mov_b64 exec, -1'%(L_CNT+4*cnt))
        lds_wait(11,L_CNT+4*cnt,4,sleep)
    def lds_wait(va,off,val,sleep):
        l=newlab('lw'); d=newlab('ld')
        A('%s:'%l)
        A('ds_read_b32 v13, v%d offset:%d\ns_waitcnt lgkmcnt(0)\nv_readfirstlane_b32 s54, v13\ns_cmp_ge_u32 s54, %s'%(va,off,val))
        if sleep: A('s_cbranch_scc1 %s\ns_sleep %d\ns_branch %s\n%s:'%(d,sleep,l,d))
        else: A('s_cbranch_scc0 %s'%l)
    def progress(p): lds_wait(31,L_PR,p,6)
    def poll(loads,regs,sleep=0,guard=False):
        l=newlab('pl'); d=newlab('pd')
        if guard: sleep=cfg.tsleep
        A('s_mov_b32 s61, %d'%cfg.spin)
        A('%s:'%l)
        for x in loads: A(x)
        import re as _re
        first=True; pend=[]
        for i,x in enumerate(loads):
            m=_re.search(r'v\[(\d+):(\d+)\]',x)
            pend+=list(range(int(m.group(1)),int(m.group(2))+1))
            last=(i==len(loads)-1)
            if len(pend)<4 and not last: continue
            A('s_waitcnt vmcnt(%d)'%(len(loads)-1-i))
            while pend:
                if first:
                    if len(pend)>=3: A('v_max3_u32 v13, v%d, v%d, v%d'%tuple(pend[:3])); pend=pend[3:]
                    else: A('v_max_u32 v13, v%d, v%d'%tuple(pend[:2])); pend=pend[2:]
                    first=False
                elif len(pend)>=2: A('v_max3_u32 v13, v13, v%d, v%d'%tuple(pend[:2])); pend=pend[2:]
                elif last: A('v_max_u32 v13, v13, v%d'%pend[0]); pend=[]
                else: break
        A('v_cmp_eq_u32 vcc, -1, v13')
        A('s_cbranch_vccz %s'%d)
        if sleep: A('s_sleep %d'%sleep)
        A('s_sub_u32 s61, s61, 1\ns_cmp_lg_u32 s61, 0\ns_cbranch_scc1 %s'%l)
        A('%s:'%d)
    def apoll(loads,par):
        import re as _re
        mode,D,sleep=par
        l=newlab('al'); d=newlab('ad'); gl=newlab('ag')
        rg=[]
        for x in loads:
            m=_re.search(r'v\[(\d+):(\d+)\]',x); rg.append(list(range(int(m.group(1)),int(m.group(2))+1)))
        def chain(t,r):
            r=list(r)
            if len(r)==2: A('v_max_u32 v%d, v%d, v%d'%(t,r[0],r[1])); return
            A('v_max3_u32 v%d, v%d, v%d, v%d'%(t,r[0],r[1],r[2])); r=r[3:]
            while r:
                if len(r)==1: A('v_max_u32 v%d, v%d, v%d'%(t,t,r[0])); r=[]
                else: A('v_max3_u32 v%d, v%d, v%d, v%d'%(t,t,r[0],r[1])); r=r[2:]
        n=len(loads)
        A('s_mov_b32 s61, %d'%cfg.spin)
        if mode in 'cm':
            A('%s:'%l)
            for x in loads: A(x)
            if sleep: A('s_sleep %d'%sleep)
            A('s_waitcnt vmcnt(%d)'%min(63,n*(D-1)))
            chain(13,sum(rg,[]))
            A('v_cmp_eq_u32 vcc, -1, v13')
            A('s_cbranch_vccz %s'%d)
            if mode=='m': A('s_mov_b64 exec, vcc')
            A('s_sub_u32 s61, s61, 1\ns_cmp_lg_u32 s61, 0\ns_cbranch_scc1 %s'%l)
            A('%s:'%d)
            if mode=='m': A('s_mov_b64 exec, s[4:5]')
        else:
            mk=['s[6:7]','s[8:9]','s[10:11]','s[40:41]','s[42:43]','s[44:45]','s[46:47]','s[62:63]'][:n]
            for m_ in mk: A('s_mov_b64 %s, s[4:5]'%m_)
            A('%s:'%l)
            for x,m_ in zip(loads,mk):
                sk=newlab('as')
                A('s_mov_b64 exec, %s\ns_cbranch_execz %s'%(m_,sk)); A(x); A('%s:'%sk)
            A('s_mov_b64 exec, s[4:5]')
            if sleep: A('s_sleep %d'%sleep)
            A('s_waitcnt vmcnt(%d)'%min(63,n*(D-1)))
            for i in range(n): chain(246+i,rg[i])
            chain(13,[246+i for i in range(n)])
            A('v_cmp_eq_u32 vcc, -1, v13')
            A('s_cbranch_vccz %s'%d)
            for i in range(n): A('v_cmp_eq_u32 %s, -1, v%d'%(mk[i],246+i))
            A('s_sub_u32 s61, s61, 1\ns_cmp_lg_u32 s61, 0\ns_cbranch_scc1 %s'%l)
            A('%s:'%d)
    def flagpoll(voff,execmask):
        l=newlab('fl'); d=newlab('fd')
        A('s_mov_b32 s61, %d'%cfg.spin)
        A('s_mov_b64 exec, %s'%execmask)
        A('%s:'%l)
        A('global_load_dwordx4 v[72:75], v%d, %s sc1\ns_waitcnt vmcnt(0)'%(voff,WS))
        A('v_min3_u32 v13, v72, v73, v74\nv_min_u32 v13, v13, v75\nv_cmp_eq_u32 vcc, 0, v13\ns_cbranch_vccz %s'%d)
        A('s_sleep 16')
        A('s_sub_u32 s61, s61, 1\ns_cmp_lg_u32 s61, 0\ns_cbranch_scc1 %s'%l)
        A('%s:'%d)
        A('s_mov_b64 exec, -1')
    def tr128(dst,base):
        for s_ in range(4):
            A('ds_read_b64_tr_b16 v[%d:%d], v8 offset:%d'%(dst+4*s_,dst+4*s_+1,base+4096*s_))
            A('ds_read_b64_tr_b16 v[%d:%d], v8 offset:%d'%(dst+4*s_+2,dst+4*s_+3,base+4096*s_+512))

    A('s_waitcnt vmcnt(7)')
    A('s_cmp_lg_u32 s12, 3\ns_cbranch_scc1 L_nogo')
    A('s_waitcnt vmcnt(0)')
    A('s_mov_b64 exec, 1\nglobal_store_dword v11, v12, %s sc1\ns_mov_b64 exec, -1'%DBG)
    A('L_nogo:')
    stamp(1)
    layernorm('x')
    A('s_waitcnt vmcnt(0)')
    lds_sync(0)
    stamp(2)
    tr128(80,L_WA)
    for s_ in range(4):
        A('ds_read_b128 v[%d:%d], v10 offset:%d'%(32+4*s_,35+4*s_,L_XN+64*s_))
    A('s_waitcnt lgkmcnt(0)')
    for s_ in range(4):
        A('v_mfma_f32_16x16x32_bf16 v[48:51], v[%d:%d], v[%d:%d], %s'%(80+4*s_,83+4*s_,32+4*s_,35+4*s_,'0' if s_==0 else 'v[48:51]'))
    A('s_nop 7')
    for r in range(4): A('v_min_u32 v%d, -2, v%d'%(48+r,48+r))
    A('s_mov_b32 exec_lo, 0x00ff00ff\ns_mov_b32 exec_hi, 0x00ff00ff')
    if cfg.noqst: A('s_mov_b64 exec, 1')
    A('global_store_dwordx4 v14, v[48:51], %s sc1'%WS)
    A('s_mov_b64 exec, -1')
    stamp(3)
    A('s_cmp_lg_u32 s53, 3\ns_cbranch_scc1 L_noflag')
    A('s_lshl_b32 s54, s48, 2\ns_add_u32 s54, s54, s68\ns_lshl_b32 s54, s54, 9\ns_lshl_b32 s55, s69, 2\ns_add_u32 s54, s54, s55\ns_add_u32 s54, s54, s3\nv_mov_b32 v6, s54')
    A('s_mov_b32 s61, %d\ns_mov_b64 exec, 1\nL_go:\nglobal_load_dword v13, v11, %s sc1\ns_waitcnt vmcnt(0)\nv_cmp_eq_u32 vcc, 0, v13\ns_cbranch_vccz L_god'%(cfg.spin,DBG))
    A('s_sleep 8\ns_sub_u32 s61, s61, 1\ns_cmp_lg_u32 s61, 0\ns_cbranch_scc1 L_go\nL_god:')
    A('global_store_dword v6, v12, %s sc1'%WS)
    A('L_noflag:')
    A('s_mov_b64 exec, 1\nds_add_u32 v11, v12 offset:%d\ns_mov_b64 exec, -1'%(L_CNT+12))
    A('s_cmp_lg_u32 s53, %d\ns_cbranch_scc1 L_qdone'%(9 if cfg.noq else 0))
    A('v_and_b32 v6, 3, v0\nv_lshlrev_b32 v6, 9, v6\nv_lshrrev_b32 v14, 2, v0\nv_lshl_add_u32 v6, v14, 5, v6')
    A('s_lshl_b32 s54, s50, 13\ns_add_u32 s54, s54, %d\nv_add_u32 v6, s54, v6'%(QP+3072))
    A('s_and_b32 s54, s50, 7\ns_lshl_b32 s54, s54, 11\nv_add_u32 v7, s54, v79')
    lds_wait(11,L_CNT+12,4,2)
    progress(cfg.pq)
    flagpoll(7,'0xff')
    stamp(4)
    poll(['global_load_dwordx4 v[%d:%d], v6, %s offset:%d sc1'%(32+8*kq+4*h,35+8*kq+4*h,WS,2048*kq+16*h-3072) for kq in range(4) for h in range(2)],list(range(32,64)),sleep=8)
    for p in range(4):
        A('v_pk_add_f32 v[%d:%d], v[%d:%d], v[%d:%d]'%(32+2*p,33+2*p,32+2*p,33+2*p,40+2*p,41+2*p))
        A('v_pk_add_f32 v[%d:%d], v[%d:%d], v[%d:%d]'%(48+2*p,49+2*p,48+2*p,49+2*p,56+2*p,57+2*p))
    for p in range(4):
        A('v_pk_add_f32 v[%d:%d], v[%d:%d], v[%d:%d]'%(32+2*p,33+2*p,32+2*p,33+2*p,48+2*p,49+2*p))
    for p in range(4):
        A('v_cvt_pk_bf16_f32 v%d, v%d, v%d'%(32+p,32+2*p,33+2*p))
    A('ds_write_b128 v1, v[32:35] offset:%d'%L_QL)
    stamp(5)
    A('s_waitcnt lgkmcnt(0)')
    if cfg.qflag: A('ds_write_b32 v11, v12 offset:%d'%(L_CNT+16))
    A('L_qdone:')
    A('s_setprio 0')
    if not cfg.qflag: A('s_barrier')

    A('s_mov_b32 s70, 0\ns_and_b32 s54, s49, 0x13\ns_cmp_eq_u32 s54, s51\ns_cselect_b32 s70, 2, s70')
    A('s_cmp_lt_u32 s48, 4\ns_cselect_b32 s6, 16, 12\ns_cselect_b32 s7, 8, 6\ns_cselect_b32 s8, 0, 8\ns_mul_i32 s14, s48, s7\ns_add_u32 s14, s14, s8')
    if cfg.helper: A('s_and_b32 s54, s49, 0x13\ns_xor_b32 s54, s54, 2\ns_cmp_eq_u32 s54, s51\ns_cselect_b32 s9, s49, 99\ns_cmp_lt_u32 s9, s6\ns_cselect_b32 s70, 4, s70')
    A('s_sub_u32 s54, s49, 16\ns_cmp_lt_u32 s54, s6\ns_cselect_b32 s70, 1, s70')
    A('s_xor_b32 s55, s2, s49\ns_and_b32 s55, s55, 1\ns_cselect_b32 s70, 3, s70')
    A('s_bfe_u32 s54, s49, 0x30001\ns_add_u32 s14, s14, s54')
    A('s_lshr_b32 s15, s49, 2\ns_add_u32 s54, s48, %d\ns_and_b32 s54, s54, 7\ns_lshl_b32 s54, s54, 2\ns_add_u32 s15, s15, s54'%cfg.crot)
    A('s_lshr_b32 s13, s2, 1')
    A('s_lshl_b32 s54, s48, 2\ns_add_u32 s67, s54, s68')
    A('s_bfe_u32 s69, s49, 0x20001')
    A('v_and_b32 v6, 3, v0\nv_lshlrev_b32 v6, 2, v6\nv_lshrrev_b32 v7, 4, v0\nv_add_u32 v6, v6, v7')
    A('v_bfe_u32 v7, v0, 2, 1')
    A('v_lshrrev_b32 v24, 3, v0\nv_lshlrev_b32 v24, 14, v24\nv_and_b32 v13, 0x70, v1\nv_add_u32 v24, v24, v13\ns_mov_b32 s55, s13\ns_lshl_b32 s54, s55, 7\ns_add_u32 s54, s54, %d\nv_add_u32 v24, s54, v24'%HB)
    A('v_lshlrev_b32 v6, 1, v6\nv_lshl_add_u32 v6, v7, 10, v6\ns_lshr_b32 s54, s55, 5\ns_lshl_b32 s54, s54, 11\ns_and_b32 s55, s55, 31\ns_lshl_b32 s55, s55, 5\ns_add_u32 s54, s54, s55\nv_add_u32 v6, s54, v6')
    A('global_load_ushort v16, v6, %s'%X)
    A('s_cmp_lg_u32 s53, 0\ns_cbranch_scc1 L_nofc')
    flagpoll(79,'-1')
    if cfg.ctouch is not None:
        A('s_lshl_b32 s54, s50, %d\ns_add_u32 s54, s54, %d\nv_mov_b32 v7, s54\nglobal_load_dword v13, v7, %s %s\ns_waitcnt vmcnt(0)'%(cfg.cs,CTR,WS,cfg.ctouch))
    A('s_mov_b64 exec, 1\nds_add_u32 v11, v12 offset:%d\ns_mov_b64 exec, -1'%(L_CNT+8))
    A('L_nofc:')
    def paced(k,n,line):
        f=lambda k: cfg.pw0+(k*(cfg.pw1-cfg.pw0))//n
        if k==0 or f(k)!=f(k-1): progress(f(k))
        assert f(k)<cfg.NS
        A(line)
    def dma1(k):
        i=k//2
        return ('v_add_u32 v7, %d, v6\n'%(i*16*3584))+'s_add_u32 m0, s71, %d\ns_nop 0\nglobal_load_lds_dwordx4 v7, %s %s'%(L_WA+32768*(k&1)+i*1024,WU if k&1 else WG,cfg.ff)
    def dma2(i):
        return ('v_add_u32 v7, %d, v6\n'%(i*0x8000))+'s_add_u32 m0, s71, %d\ns_nop 0\nglobal_load_lds_dwordx4 v7, %s %s'%(L_WA+i*1024,WD,cfg.ff)
    l1=newlab('w1'); l2=newlab('w2'); le=newlab('we')
    A('s_cmp_eq_u32 s70, 0\ns_cbranch_scc1 %s\ns_cmp_eq_u32 s70, 2\ns_cbranch_scc1 %s\ns_cmp_lg_u32 s70, 3\ns_cbranch_scc1 %s'%(le,l2,l1))
    A('s_lshl_b32 s54, s67, 7\ns_lshl_b32 s55, s53, 1\ns_add_u32 s54, s54, s55\ns_lshl_b32 s54, s54, 10\ns_lshl_b32 s55, s69, 8\ns_add_u32 s54, s54, s55')
    A('v_lshrrev_b32 v6, 4, v0\nv_lshlrev_b32 v6, 13, v6\nv_and_b32 v7, 15, v0\nv_lshl_add_u32 v6, v7, 4, v6\nv_add_u32 v6, s54, v6')
    A('s_lshl_b32 s71, s53, 13')
    def dmaw(i):
        return 'v_add_u32 v7, %d, v6\ns_add_u32 m0, s71, %d\ns_nop 0\nglobal_load_lds_dwordx4 v7, %s %s'%((32*(i&3)+(i>>2))*1024,L_WA+i*1024,WO,cfg.wf)
    for i in range(0 if cfg.noW else cfg.EW): paced(i,cfg.EW,dmaw(i))
    A('s_branch %s'%le)
    A('%s:'%l1)
    A('s_lshl_b32 s54, s14, 6')
    A('s_lshl_b32 s55, s53, 7\nv_lshrrev_b32 v6, 2, v0\nv_add_u32 v6, s55, v6\nv_mul_u32_u24 v6, 3584, v6\nv_and_b32 v7, 3, v0\nv_lshl_add_u32 v6, v7, 4, v6\nv_add_u32 v6, s54, v6')
    A('s_lshl_b32 s71, s53, 13')
    A('s_cmp_eq_u32 s70, 4\ns_cbranch_scc1 %s'%le)
    for k in range(cfg.E1): paced(k,cfg.E1,dma1(k))
    A('s_branch %s'%le)
    A('%s:'%l2)
    A('s_mul_i32 s54, s53, 448\nv_lshrrev_b32 v6, 1, v0\nv_add_u32 v6, s54, v6\nv_lshlrev_b32 v6, 10, v6')
    A('v_and_b32 v7, 1, v0\nv_lshl_add_u32 v6, v7, 4, v6\ns_lshl_b32 s54, s15, 5\nv_add_u32 v6, s54, v6')
    A('s_mul_i32 s71, s53, 14336')
    for k in range(cfg.E2): paced(k,cfg.E2,dma2(k))
    A('%s:'%le)
    A('s_waitcnt vmcnt(0)')
    A('v_lshlrev_b32 v16, 16, v16')
    lds_sync(1,sleep=4)
    stamp(6)
    l1=newlab('r1'); l2=newlab('r2'); le=newlab('re')
    A('v_mov_b32 v26, 0\nv_mov_b32 v27, 0\nv_mov_b32 v28, 0\nv_mov_b32 v29, 0')
    A('s_cmp_eq_u32 s70, 1\ns_cbranch_scc1 %s\ns_cmp_eq_u32 s70, 2\ns_cbranch_scc1 %s'%(l1,l2))
    A('v_lshrrev_b32 v8, 4, v0\nv_lshlrev_b32 v8, 11, v8\nv_bfe_u32 v7, v0, 2, 2\nv_lshl_add_u32 v8, v7, 8, v8\nv_and_b32 v7, 3, v0\nv_lshl_add_u32 v8, v7, 3, v8')
    A('s_lshl_b32 s54, s53, 6\ns_add_u32 s54, s54, %d\nv_add_u32 v8, s54, v8'%L_WA)
    def trw():
        for t in range(2):
            for s_ in range(4):
                r=80+16*t+4*s_
                A('ds_read_b64_tr_b16 v[%d:%d], v8 offset:%d'%(r,r+1,8192*s_+32*t))
                A('ds_read_b64_tr_b16 v[%d:%d], v8 offset:%d'%(r+2,r+3,8192*s_+32*t+1024))
            if t==0 or cfg.EW==8: A('s_waitcnt lgkmcnt(0)')
    if cfg.EW==8: trw()
    A('s_branch %s'%le)
    A('%s:'%l1)
    A('v_lshrrev_b32 v8, 4, v0\nv_lshlrev_b32 v8, 9, v8\nv_bfe_u32 v7, v0, 2, 2\nv_lshl_add_u32 v8, v7, 6, v8')
    A('v_and_b32 v7, 1, v0\nv_lshl_add_u32 v8, v7, 3, v8\nv_bfe_u32 v7, v0, 1, 1\nv_lshl_add_u32 v8, v7, 15, v8\ns_lshl_b32 s54, s53, 4\ns_add_u32 s54, s54, %d\nv_add_u32 v8, s54, v8'%L_WA)
    A('s_lshl_b32 s54, s14, 2\ns_add_u32 s54, s54, s53\ns_lshl_b32 s54, s54, 7\ns_add_u32 s54, s54, %d'%AB)
    A('v_and_b32 v27, 0x70, v1\nv_lshrrev_b32 v7, 3, v0\nv_lshl_add_u32 v27, v7, 15, v27\nv_add_u32 v27, s54, v27')
    A('s_and_b32 s55, s48, %d\ns_lshl_b32 s55, s55, 14\ns_add_u32 s54, s66, s55\ns_add_u32 s54, s54, %d\nv_add_u32 v4, s54, v1'%(cfg.nH-1,HB))
    A('v_bfe_u32 v5, v0, 2, 1\ns_lshl_b32 s54, s53, 1\nv_add_u32 v5, s54, v5\nv_mul_u32_u24 v5, %d, v5\nv_lshrrev_b32 v7, 3, v0\nv_lshl_add_u32 v5, v7, 5, v5\nv_and_b32 v7, 3, v0\nv_lshl_add_u32 v5, v7, 3, v5'%XNS)
    A('s_branch %s'%le)
    A('%s:'%l2)
    A('v_lshrrev_b32 v8, 4, v0\nv_lshlrev_b32 v8, 9, v8\nv_bfe_u32 v7, v0, 1, 1\nv_lshl_add_u32 v8, v7, 8, v8\nv_bfe_u32 v7, v0, 2, 2\nv_lshl_add_u32 v8, v7, 5, v8')
    A('v_and_b32 v7, 1, v0\nv_lshl_add_u32 v8, v7, 3, v8\ns_add_u32 s55, s71, %d\nv_add_u32 v8, s55, v8'%L_WA)
    A('v_bfe_u32 v26, v0, 2, 1\nv_lshlrev_b32 v26, 10, v26\nv_bfe_u32 v7, v0, 1, 1\nv_lshl_add_u32 v26, v7, 8, v26\nv_lshrrev_b32 v7, 3, v0\nv_lshl_add_u32 v26, v7, 4, v26\nv_and_b32 v7, 1, v0\nv_lshl_add_u32 v26, v7, 3, v26')
    A('s_and_b32 s55, s48, %d\ns_lshl_b32 s55, s55, 15\ns_mul_i32 s54, s53, 7168\ns_add_u32 s54, s54, s55\ns_add_u32 s54, s54, %d\nv_add_u32 v27, s54, v1'%(cfg.nA-1,AB+3072))
    A('s_mov_b32 s54, s15\ns_lshl_b32 s55, s54, 5')
    A('v_lshrrev_b32 v28, 3, v0\nv_lshlrev_b32 v28, 10, v28\nv_and_b32 v7, 7, v0\nv_lshl_add_u32 v28, v7, 2, v28\nv_add_u32 v28, s55, v28')
    A('s_lshl_b32 s54, s54, 7\ns_and_b32 s55, s48, %d\ns_lshl_b32 s55, s55, 14\ns_add_u32 s54, s54, s55\ns_add_u32 s54, s54, %d'%(cfg.nH-1,HB))
    A('v_lshrrev_b32 v29, 4, v0\nv_lshlrev_b32 v29, 12, v29\nv_and_b32 v7, 15, v0\nv_lshl_add_u32 v29, v7, 3, v29\nv_add_u32 v29, s54, v29')
    A('s_lshl_b32 s54, s53, 11\nv_add_u32 v10, s54, v1')
    A('%s:'%le)
    A('s_lshl_b32 s54, s53, 9\nv_add_u32 v17, s54, v3')
    A('s_and_b32 s54, s50, 7\ns_lshl_b32 s54, s54, 2\ns_add_u32 s54, s54, s53\ns_lshl_b32 s54, s54, 3\ns_lshr_b32 s55, s50, 3\ns_add_u32 s54, s54, s55\ns_lshl_b32 s54, s54, 2\ns_add_u32 s54, s54, s51')
    A('s_mul_i32 s54, s54, %d\ns_add_u32 s54, s54, %d\nv_add_u32 v18, s54, v1'%(OPS,OP))
    A('s_mul_i32 s54, s67, %d\ns_add_u32 s54, s54, %d\nv_mul_u32_u24 v25, %d, v2\nv_add_u32 v25, s54, v25\nv_add_u32 v19, v25, v3'%(32*OPS,OP,4*OPS))
    A('s_lshl_b32 s54, s53, 5\nv_mov_b32 v30, s54')
    A('v_mul_u32_u24 v20, %d, v2\nv_lshrrev_b32 v7, 1, v3\nv_add_u32 v20, v20, v7'%XOS)
    A('v_and_b32 v21, 7, v0\nv_mul_u32_u24 v21, %d, v21\nv_add_u32 v21, v21, v15'%XOS)
    A('s_lshl_b32 s54, s69, 2\ns_add_u32 s54, s54, s53\ns_lshl_b32 s54, s54, 6\ns_add_u32 s54, s54, s67\ns_lshl_b32 s54, s54, 7\ns_add_u32 s54, s54, %d'%(WP+2048))
    A('v_bfe_u32 v22, v0, 1, 2\nv_lshlrev_b32 v22, 17, v22\nv_and_b32 v7, 1, v0\nv_lshl_add_u32 v22, v7, 6, v22\nv_add3_u32 v22, v22, v15, s54')
    A('s_lshl_b32 s54, s13, 12\ns_add_u32 s54, s54, %d\nv_add_u32 v23, s54, v1'%WP)
    def guarded(lines):
        A(lines)
    def drychk():
        pass
    for r in range(192,246): A('v_mov_b32 v%d, -1'%r)
    A('s_waitcnt lgkmcnt(0)')
    A('s_mov_b64 vcc, 0\ns_mov_b64 s[4:5], %d\ns_mov_b64 exec, s[4:5]'%(0 if cfg.warm else -1))
    A('L_tail:')
    stamp(7)
    guarded('s_barrier')
    def wsum(b0,half,s0=None):
        d='v[%d:%d]'%(b0+2*half,b0+2*half+1)
        s0=s0 or b0
        for w in range(4):
            src='v[%d:%d]'%(s0+4*w+2*half,s0+4*w+2*half+1)
            f='v[%d:%d]'%(72+2*(w//2),73+2*(w//2))
            if w==0: A('v_pk_mul_f32 %s, %s, %s op_sel_hi:[1,0]'%(d,src,f))
            elif w%2==0: A('v_pk_fma_f32 %s, %s, %s, %s op_sel_hi:[1,0,1]'%(d,src,f,d))
            else: A('v_pk_fma_f32 %s, %s, %s, %s op_sel:[0,1,0] op_sel_hi:[1,1,1]'%(d,src,f,d))
    if cfg.gleak is not None:
        k,lo,hi,msk=cfg.gleak
        A('s_cbranch_execz L_nogl\ns_cmp_lg_u32 s53, 0\ns_cbranch_scc1 L_nogl')
        if k>=100: A('v_mov_b32 v32, %d\nds_read_b32 v33, v32 offset:%d\ns_waitcnt lgkmcnt(0)'%(4*(k-100),L_ST))
        else: A('v_mov_b32 v33, s%d'%(72+2*k))
        A('v_not_b32 v33, v33\nv_mov_b32 v34, s72\nv_mov_b32 v32, 0x22f000')
        A('s_mov_b64 exec, 1')
        A('global_atomic_umin v32, v34, %s'%WS)
        A('s_and_b32 s54, s2, %d\ns_sub_u32 s54, s54, %d\ns_cmp_ge_u32 s54, %d\ns_cbranch_scc1 L_nogl2'%(msk,lo,hi-lo))
        A('global_atomic_umin v32, v33, %s offset:256'%WS)
        A('L_nogl2:\ns_mov_b64 exec, -1\ns_waitcnt vmcnt(0)')
        A('L_nogl:')
    A('ds_read_b128 v[64:67], v30 offset:%d\nds_read_b128 v[68:71], v30 offset:%d'%(L_MLW,L_MLW+16))
    for w in range(4):
        A('ds_read_b128 v[%d:%d], v17 offset:%d'%(32+4*w,35+4*w,L_OW+2048*w))
    stamp(8)
    if cfg.notail: A('s_branch L_fin')
    A('s_and_b32 exec_hi, s4, 1')
    A('s_waitcnt lgkmcnt(%d)'%(0 if cfg.diag else 4))
    A('v_max3_f32 v76, v64, v65, v66\nv_max_f32 v76, v76, v67')
    A('v_pk_add_f32 v[72:73], v[64:65], v[76:77] op_sel_hi:[1,0] neg_lo:[0,1] neg_hi:[0,1]')
    A('v_pk_add_f32 v[74:75], v[66:67], v[76:77] op_sel_hi:[1,0] neg_lo:[0,1] neg_hi:[0,1]')
    for i in range(4): A('v_exp_f32 v%d, v%d'%(72+i,72+i))
    A('v_pk_mul_f32 v[68:69], v[68:69], v[72:73]\nv_pk_fma_f32 v[68:69], v[70:71], v[74:75], v[68:69]')
    A('s_waitcnt lgkmcnt(0)')
    A('v_add_f32 v77, v68, v69')
    wsum(32,0); wsum(32,1)
    A('v_mov_b32_dpp v32, v76 quad_perm:[0,1,2,3] row_mask:0x4 bank_mask:0xf')
    A('v_mov_b32_dpp v33, v77 quad_perm:[0,1,2,3] row_mask:0x4 bank_mask:0xf')
    guarded('global_store_dwordx4 v18, v[32:35], %s sc1'%WS)
    tstamp(1)
    A('s_mov_b64 exec, s[4:5]')
    A('s_cmp_lg_u32 s70, 3\ns_cbranch_scc1 L_rdone')
    if cfg.EW<8:
        for i in range(cfg.EW,8): A(dmaw(i))
        A('s_waitcnt vmcnt(0)\ns_barrier')
        trw()
    apoll(['global_load_dwordx2 v[%d:%d], v25, %s offset:%d sc1'%(208+2*s_,209+2*s_,WS,OPS*s_+512) for s_ in range(4)]+
         ['global_load_dwordx4 v[%d:%d], v19, %s offset:%d sc1'%(192+4*s_,195+4*s_,WS,OPS*s_) for s_ in range(4)],cfg.pW)
    stamp(9)
    A('v_max3_f32 v76, v208, v210, v212\nv_max_f32 v76, v76, v214')
    for i in range(4): A('v_sub_f32 v%d, v%d, v76'%(72+i,208+2*i))
    for i in range(4): A('v_exp_f32 v%d, v%d'%(72+i,72+i))
    A('v_mul_f32 v78, v72, v209')
    for i in range(1,4): A('v_fmac_f32 v78, v%d, v%d'%(72+i,209+2*i))
    A('v_rcp_f32 v78, v78')
    wsum(48,0,192); wsum(48,1,192)
    A('v_pk_mul_f32 v[48:49], v[48:49], v[78:79] op_sel_hi:[1,0]\nv_pk_mul_f32 v[50:51], v[50:51], v[78:79] op_sel_hi:[1,0]')
    A('v_cvt_pk_bf16_f32 v48, v48, v49\nv_cvt_pk_bf16_f32 v49, v50, v51')
    A('ds_write_b64 v20, v[48:49] offset:%d'%L_XO)
    A('s_waitcnt lgkmcnt(0)'); guarded('s_barrier')
    if cfg.tdiag: tstamp(2); A('s_waitcnt lgkmcnt(0)')
    for s_ in range(4):
        A('ds_read_b128 v[%d:%d], v21 offset:%d'%(32+4*s_,35+4*s_,L_XO+64*s_))
    for s_ in range(4):
        A('s_waitcnt lgkmcnt(%d)'%(3-s_))
        for t in range(2):
            acc='v[%d:%d]'%(48+4*t,51+4*t); r=80+16*t+4*s_
            A('v_mfma_f32_16x16x32_bf16 %s, v[%d:%d], v[%d:%d], %s'%(acc,r,r+3,32+4*s_,35+4*s_,'0' if s_==0 else acc))
    A('s_mov_b32 exec_lo, 0x00ff00ff\ns_mov_b32 exec_hi, 0x00ff00ff')
    A('s_nop 4')
    A('global_store_dwordx4 v22, v[48:51], %s offset:-2048 sc1'%WS)
    A('global_store_dwordx4 v22, v[52:55], %s offset:2048 sc1'%WS)
    tstamp(3)
    A('s_mov_b64 exec, -1')
    A('s_cmp_lg_u32 s53, 0\ns_cbranch_scc1 L_fin')
    apoll(['global_load_dwordx4 v[%d:%d], v23, %s offset:%d sc1'%(216+4*t,219+4*t,WS,1024*t) for t in range(4)],cfg.pR)
    stamp(10)
    A('v_pk_add_f32 v[32:33], v[216:217], v[220:221]\nv_pk_add_f32 v[34:35], v[218:219], v[222:223]')
    A('v_pk_add_f32 v[40:41], v[224:225], v[228:229]\nv_pk_add_f32 v[42:43], v[226:227], v[230:231]')
    A('v_pk_add_f32 v[32:33], v[32:33], v[40:41]\nv_pk_add_f32 v[34:35], v[34:35], v[42:43]')
    A('s_nop 1\nv_permlane32_swap_b32 v32, v34\nv_permlane32_swap_b32 v33, v35')
    A('v_add_f32 v32, v32, v34\nv_add_f32 v33, v33, v35')
    A('s_nop 1\nv_permlane16_swap_b32 v32, v33\nv_add_f32 v32, v32, v33')
    dppadd(32,'row_ror:8')
    rbf(32)
    A('v_add_f32 v32, v32, v16')
    rbf(32)
    A('v_mov_b32 v33, v32\ns_nop 1\nv_permlane16_swap_b32 v32, v33\nv_mov_b32 v34, v32\nv_mov_b32 v35, v33\ns_nop 0')
    A('v_permlane32_swap_b32 v32, v34\nv_permlane32_swap_b32 v33, v35')
    if cfg.nH<8: A('s_and_b32 exec_lo, s4, 0x%x\ns_mov_b32 exec_hi, 0'%((1<<(8*cfg.nH))-1))
    guarded('global_store_dwordx4 v24, v[32:35], %s sc1'%WS)
    tstamp(4)
    A('s_branch L_fin')
    A('L_rdone:')
    A('s_cmp_eq_u32 s70, 2\ns_cbranch_scc1 L_ffn2')
    A('s_cmp_eq_u32 s70, 0\ns_cbranch_scc1 L_fin')
    if cfg.lrot:
        assert cfg.E1%2==0
        i0=cfg.E1//2; n=8-i0
        if cfg.helper: A('s_and_b32 s6, s14, 1\ns_cmp_eq_u32 s70, 4\ns_cselect_b32 s6, 2, s6\ns_mul_i32 s6, s6, %d\ns_add_u32 s6, s6, %d'%(n//3,i0))
        else: A('s_and_b32 s6, s14, 1\ns_mul_i32 s6, s6, %d\ns_add_u32 s6, s6, %d'%(n//2,i0))
        for it in range(n):
            if cfg.helper and it==n-2*(n//3): A('s_cmp_eq_u32 s70, 4\ns_cbranch_scc1 L_fin')
            A('s_mul_i32 s7, s6, %d\nv_add_u32 v7, s7, v6\ns_lshl_b32 s7, s6, 10\ns_add_u32 s7, s7, s71\ns_add_u32 m0, s7, %d\ns_add_u32 s6, s6, 1'%(16*3584,L_WA))
            A('global_load_lds_dwordx4 v7, %s %s'%(WG,cfg.ff))
            A('s_add_u32 m0, s7, %d\ns_cmp_eq_u32 s6, 8\ns_cselect_b32 s6, %d, s6'%(L_WA+32768,i0))
            A('global_load_lds_dwordx4 v7, %s %s'%(WU,cfg.ff))
    else:
        for k in range(cfg.E1,16): A(dma1(k))
    A('s_waitcnt vmcnt(0)\ns_barrier')
    for s_ in range(16):
        A('ds_read_b64_tr_b16 v[%d:%d], v8 offset:%d'%(96+4*s_,97+4*s_,2048*s_))
        A('ds_read_b64_tr_b16 v[%d:%d], v8 offset:%d'%(98+4*s_,99+4*s_,2048*s_+256))
        if s_%4==3: A('s_waitcnt lgkmcnt(0)')
    tstamp(2)
    apoll(['global_load_dwordx4 v[%d:%d], v4, %s offset:%d sc1'%(216+4*t,219+4*t,WS,1024*t) for t in range(4)],cfg.pF)
    stamp(11)
    layernorm('h')
    tstamp(5)
    A('s_waitcnt lgkmcnt(0)'); guarded('s_barrier')
    if cfg.tdiag: tstamp(6); A('s_waitcnt lgkmcnt(0)')
    for s_ in range(8):
        A('ds_read_b128 v[%d:%d], v9 offset:%d'%(32+4*s_,35+4*s_,L_XN+64*s_))
    for s_ in range(16):
        A('s_waitcnt lgkmcnt(%d)'%min(7,15-s_))
        b=32+4*(s_%8) if s_<8 else 160+4*(s_-8)
        A('v_mfma_f32_16x16x32_bf16 v[64:67], v[%d:%d], v[%d:%d], %s'%(96+4*s_,99+4*s_,b,b+3,'0' if s_==0 else 'v[64:67]'))
        if s_<8: A('ds_read_b128 v[%d:%d], v9 offset:%d'%(160+4*s_,163+4*s_,L_XN+64*(s_+8)))
    A('s_nop 7')
    A('v_permlane32_swap_b32 v64, v65\nv_permlane32_swap_b32 v66, v67')
    A('s_nop 1')
    A('v_mov_b32_dpp v64, v66 quad_perm:[0,1,2,3] row_mask:0xf bank_mask:0xc')
    A('v_mov_b32_dpp v65, v67 quad_perm:[0,1,2,3] row_mask:0xf bank_mask:0xc')
    A('v_cvt_pk_bf16_f32 v32, 0, v64\nv_cvt_pk_bf16_f32 v36, 0, v65')
    A('v_mul_f32 v33, v32, v32\nv_mul_f32 v33, 0x3d372713, v33\nv_fma_f32 v33, v33, v32, v32')
    A('v_mul_f32 v33, 0xc0135761, v33\nv_exp_f32 v33, v33\ns_nop 0\nv_add_f32 v33, 1.0, v33\nv_rcp_f32 v33, v33\ns_nop 0\nv_mul_f32 v33, v33, v32')
    rbf(33)
    A('v_mul_f32 v33, v33, v36\nv_mov_b32 v34, v33\ns_nop 1\nv_permlane32_swap_b32 v33, v34')
    A('v_cvt_pk_bf16_f32 v33, v33, v34\nv_min_u32 v36, -2, v33')
    A('v_mov_b32 v32, v36\nv_mov_b32 v33, v36\ns_nop 0')
    A('v_mov_b32_dpp v32, v36 row_ror:8 row_mask:0xf bank_mask:0xc\nv_mov_b32_dpp v33, v36 row_ror:8 row_mask:0xf bank_mask:0x3')
    A('v_mov_b32 v34, v32\nv_mov_b32 v35, v33\ns_nop 0')
    A('v_permlane16_swap_b32 v32, v34\nv_permlane16_swap_b32 v33, v35')
    if cfg.nA<8: A('s_and_b32 exec_lo, s4, 0x%x\ns_mov_b32 exec_hi, 0'%((1<<(8*cfg.nA))-1))
    guarded('global_store_dwordx4 v27, v[32:35], %s sc1'%WS)
    stamp(12)
    A('L_fin:')
    A('s_waitcnt vmcnt(0)')
    if cfg.diag:
        dump_stamps(14,8)
    A('s_endpgm')
    A('L_ffn2:')
    if cfg.lrot:
        n=14-cfg.E2
        A('s_and_b32 s6, s15, 3\ns_mul_i32 s6, s6, %d\ns_lshr_b32 s6, s6, 2\ns_add_u32 s6, s6, %d'%(n,cfg.E2))
        for _ in range(n):
            A('s_lshl_b32 s7, s6, 15\nv_add_u32 v7, s7, v6\ns_lshl_b32 s7, s6, 10\ns_add_u32 s7, s7, s71\ns_add_u32 m0, s7, %d\ns_add_u32 s6, s6, 1'%L_WA)
            A('global_load_lds_dwordx4 v7, %s %s'%(WD,cfg.ff))
            A('s_cmp_eq_u32 s6, 14\ns_cselect_b32 s6, %d, s6'%cfg.E2)
    else:
        for k in range(cfg.E2,14): A(dma2(k))
    A('s_waitcnt vmcnt(0)')
    for t in range(7):
        for tt in range(2):
            r=96+8*t+4*tt
            A('ds_read_b64_tr_b16 v[%d:%d], v8 offset:%d'%(r,r+1,2048*t+16*tt))
            A('ds_read_b64_tr_b16 v[%d:%d], v8 offset:%d'%(r+2,r+3,2048*t+16*tt+128))
        if t%2==0: A('s_waitcnt lgkmcnt(0)')
    tstamp(2)
    poll(guard=True,loads=['global_load_dwordx2 v[60:61], v29, %s sc1'%WS],regs=[60,61])
    apoll(['global_load_dwordx4 v[%d:%d], v27, %s offset:%d sc1'%(216+4*t,219+4*t,WS,1024*t-3072) for t in range(7)],cfg.pG)
    stamp(10)
    for t in range(7):
        for tt in range(2):
            acc='v[%d:%d]'%(64+4*tt,67+4*tt)
            r=96+8*t+4*tt
            A('v_mfma_f32_16x16x32_bf16 %s, v[%d:%d], v[%d:%d], %s'%(acc,r,r+3,216+4*t,219+4*t,'0' if t==0 else acc))
    A('s_nop 6')
    A('ds_write_b128 v10, v[64:67] offset:%d'%L_DP)
    A('ds_write_b128 v10, v[68:71] offset:%d'%(L_DP+1024))
    A('s_waitcnt lgkmcnt(0)'); guarded('s_barrier')
    tstamp(6)
    A('s_cmp_lg_u32 s53, 0\ns_cbranch_scc1 L_fin')
    for w in range(4):
        A('ds_read_b64 v[%d:%d], v26 offset:%d'%(32+4*w,33+4*w,L_DP+2048*w))
        A('ds_read_b64 v[%d:%d], v26 offset:%d'%(34+4*w,35+4*w,L_DP+2048*w+640))
    A('s_waitcnt lgkmcnt(0)')
    for w in range(4): A('v_pk_add_f32 v[%d:%d], v[%d:%d], v[%d:%d]'%(32+4*w,33+4*w,32+4*w,33+4*w,34+4*w,35+4*w))
    A('v_pk_add_f32 v[32:33], v[32:33], v[36:37]\nv_pk_add_f32 v[40:41], v[40:41], v[44:45]\nv_pk_add_f32 v[32:33], v[32:33], v[40:41]')
    A('v_cvt_pk_bf16_f32 v32, 0, v32\nv_cvt_pk_bf16_f32 v33, 0, v33')
    A('v_pk_add_f32 v[32:33], v[32:33], v[60:61]')
    A('v_cvt_pk_bf16_f32 v32, v32, v33')
    guarded('global_store_dword v28, v32, %s %s'%(OUT,cfg.of))
    drychk()
    if cfg.diag:
        stamp(13)
        if cfg.leak is not None:
            a,b=cfg.leak
            A('s_waitcnt lgkmcnt(0)')
            if cfg.gleak is not None:
                A('v_mov_b32 v8, 0x22f000\nglobal_load_dword v9, v8, %s sc1\nglobal_load_dword v10, v8, %s offset:256 sc1\ns_waitcnt vmcnt(0)'%(WS,WS))
                if b==13: A('v_mov_b32 v10, s%d'%(72+2*13))
                else: A('v_not_b32 v10, v10')
                A('v_sub_u32 v9, v10, v9\ns_nop 1\nv_readfirstlane_b32 s54, v9')
                if b==0: A('s_mov_b32 s54, 0')
            elif b>=100:
                A('v_mov_b32 v8, %d\nds_read_b32 v9, v8 offset:%d\ns_waitcnt lgkmcnt(0)\nv_readfirstlane_b32 s54, v9\ns_sub_u32 s54, s54, s%d'%(4*(b-100),L_ST,72+2*a))
            else: A('s_sub_u32 s54, s%d, s%d'%(72+2*b,72+2*a))
            A('s_mul_i32 s54, s54, %d\ns_min_u32 s54, s54, 60000'%cfg.mult)
            A('L_leak:')
            A('s_memrealtime s[68:69]\ns_waitcnt lgkmcnt(0)\ns_sub_u32 s55, s68, s%d\ns_cmp_lt_u32 s55, s54\ns_cbranch_scc1 L_leak'%(72+2*13))
        else:
            A('s_waitcnt lgkmcnt(0)\ns_mov_b32 s100, s92\ns_mov_b32 s92, 0')
            dump_stamps(15,8)
    A('L_end:')
    A('s_endpgm')
    A('.section .rodata,"a"\n.p2align 6\n.amdhsa_kernel %s'%K)
    A('  .amdhsa_next_free_vgpr 256\n  .amdhsa_next_free_sgpr 102\n  .amdhsa_accum_offset 256\n  .amdhsa_group_segment_fixed_size 0\n  .amdhsa_kernarg_size 96')
    A('  .amdhsa_user_sgpr_count 2\n  .amdhsa_user_sgpr_kernarg_segment_ptr 1\n  .amdhsa_system_sgpr_workgroup_id_x 1')
    A('  .amdhsa_float_denorm_mode_32 3\n  .amdhsa_float_denorm_mode_16_64 3')
    A('.end_amdhsa_kernel')
    return '\n'.join(L)+'\n'

if __name__=='__main__':
    cfg=Cfg()
    out=sys.argv[1]
    for a in sys.argv[2:]:
        k,v=a.split('=',1); setattr(cfg,k,eval(v))
    s=gen(cfg)
    hdr=''.join(l for l in open('cdna_kernels/%s.s.ref'%NAME).readlines()[:13])
    open(out,'w').write(hdr+s)
```

```python
import sys
NAME='sequential_preLN__gqa_block_cached__geglu_ffn__decode'
K=NAME+'_kernel'

class Cfg:
    diag=False
    leak=None
    nocomp=False
    noq=False
    T2=12
    vdiag=None
    odiag=False
    touch=False
    sdiag=False
    mult=1
    Q1=0; Q2=0
    E1=0; E2=0; EW=8; lrot=True; helper=False
    T0=None; n0=24
    qflag=True
    chunk=0
    bare=0
    notail=False
    knat=False
    cdbg=False
    ctouch=None
    rot=4
    cs=9
    nowq=False
    noqst=False
    nH=8; nA=8
    pW=('c',1,0); pR=('m',8,1); pF=('c',1,0); pG=('c',1,0)
    tdiag=False
    tsleep=0
    crot=0
    noclr=False
    wolate=False
    warm=False
    of=''
    gleak=None
    NS=28
    sflag=False
    svcfirst=0
    spin=1<<17
    T=5
    kf='nt'; vf='nt'; wf='nt'; ff=''
    pq=3
    pw0=7
    pw1=22
    noW=False

QP=0x0
CTR=0x230000
FLG=0x80000
CLR=0x100000
WP=0x100000
OP=0x180000
OPS=640
HB=0x240000
AB=0x260000
STAMP=0x10000000
L_MLW=64
L_QL=256
L_XN=1280
XNS=1040
L_XO=9600
XOS=272
L_DP=11776
L_OW=19968
L_ST=28160
L_PR=28416
L_CNT=L_PR+1024
L_WA=30720
LDS_BYTES=L_WA+65536

LOG2E=0x3fb8aa3b
SCALE=0x3db504f3

def gen(cfg):
    L=[]
    def A(s):
        L.extend(s.split('\n'))
    lab=[0]
    def newlab(p):
        lab[0]+=1
        return 'L_%s_%d'%(p,lab[0])
    X,KP,VP,WQ,WO,BX,WG,WU,WD,OUT,DBG,WS=['s[%d:%d]'%(16+2*i,17+2*i) for i in range(12)]
    def stamp(i):
        if cfg.diag: A('s_memrealtime s[%d:%d]'%(72+2*i,73+2*i))
    def tstamp(i):
        if cfg.tdiag: stamp(i)
    def pack_stamps(n,vt):
        A('s_waitcnt lgkmcnt(0)')
        A('v_mov_b32 v%d, 0'%vt)
        for i in range(n): A('v_writelane_b32 v%d, s%d, %d'%(vt,72+2*i,i))
    def dump_stamps(n,vt):
        if not cfg.diag: return
        A('s_mov_b64 exec, -1')
        pack_stamps(n,vt)
        A('v_lshlrev_b32 v%d, 2, v0'%(vt+1))
        A('ds_read_b32 v%d, v%d offset:%d'%(vt+2,vt+1,L_ST))
        A('s_lshl_b32 s66, s2, 9\ns_add_u32 s66, s66, %d'%(STAMP))
        A('v_add_u32 v%d, s66, v%d'%(vt+1,vt+1))
        A('s_mov_b64 exec, 0xffff')
        A('s_waitcnt lgkmcnt(0)')
        A('global_store_dword v%d, v%d, %s'%(vt+1,vt+2,WS))
        A('s_lshl_b32 s66, s53, 6\nv_add_u32 v%d, s66, v%d'%(vt+1,vt+1))
        A('global_store_dword v%d, v%d, %s offset:64'%(vt+1,vt,WS))

    A('; @launch grid=(256,1,1) block=(512,1,1) lds=%d'%LDS_BYTES)
    A('.amdgcn_target "amdgcn-amd-amdhsa--gfx950"\n.text\n.globl %s\n.p2align 8\n.type %s,@function\n%s:'%(K,K,K))
    A('s_cmp_ge_u32 s2, 256\ns_cbranch_scc1 L_end')
    stamp(0)
    A('v_lshrrev_b32 v1, 6, v0')
    A('v_lshlrev_b32 v3, 2, v0')
    A('v_readfirstlane_b32 s52, v1')
    A('s_cmp_lt_u32 s52, 4\ns_cbranch_scc1 L_noz')
    A('v_mov_b32 v30, 0')
    A('ds_write_b32 v3, v30 offset:%d\nds_write_b32 v3, v30 offset:%d'%(L_PR-1024,L_PR))
    A('s_waitcnt lgkmcnt(0)')
    A('L_noz:')
    A('s_load_dwordx16 s[16:31], s[0:1], 0')
    A('s_load_dwordx8 s[32:39], s[0:1], 64')
    A('s_barrier')
    if cfg.diag:
        for i in range(1,14): A('s_mov_b32 s%d, 0'%(72+2*i))
    A('v_and_b32 v0, 63, v0')
    A('s_and_b32 s48, s2, 7\ns_lshr_b32 s49, s2, 3\ns_lshl_b32 s50, s49, 1\ns_bfe_u32 s54, s2, 0x10001\ns_or_b32 s50, s50, s54')
    A('s_and_b32 s51, s2, 1\ns_bfe_u32 s54, s2, 0x10002\ns_lshl_b32 s54, s54, 1\ns_or_b32 s51, s51, s54')
    A('s_mov_b32 s59, 0x%x\ns_mov_b32 s60, 0xffff0000'%(LOG2E))
    A('v_lshlrev_b32 v1, 4, v0')
    A('s_cmp_ge_u32 s52, 4\ns_cbranch_scc1 L_service')

    import math
    TH=math.ceil(cfg.T)
    NS=cfg.NS
    RB=64
    A('s_lshl_b32 s54, s50, 21')
    A('s_lshl_b32 s62, s51, 2\ns_add_u32 s62, s62, s52')
    for i in range(4): A('s_add_u32 s%d, s62, %d\ns_and_b32 s%d, s%d, 15\ns_lshl_b32 s%d, s%d, 12'%(8+i,cfg.rot*i,8+i,8+i,8+i,8+i))
    A('v_lshrrev_b32 v2, 4, v0\nv_lshlrev_b32 v2, 6, v2\nv_and_b32 v4, 3, v0\nv_lshl_add_u32 v2, v4, 4, v2')
    A('v_bfe_u32 v5, v0, 2, 2\nv_lshl_add_u32 v2, v5, 8, v2')
    if cfg.knat: A('v_mov_b32 v2, v1')
    A('s_mov_b32 s42, 0x200000\ns_mov_b32 s43, 0x20000\ns_mov_b32 s46, 0x200000\ns_mov_b32 s47, 0x20000')
    A('s_waitcnt lgkmcnt(0)')
    A('s_add_u32 s40, s18, s54\ns_addc_u32 s41, s19, 0\ns_and_b32 s41, s41, 0xffff')
    A('s_add_u32 s44, s20, s54\ns_addc_u32 s45, s21, 0\ns_and_b32 s45, s45, 0xffff')
    st={'n':0}
    def adv():
        if cfg.rot: A('s_add_u32 s68, s62, %d\ns_and_b32 s68, s68, 15\ns_andn2_b32 s62, s62, 15\ns_add_u32 s62, s62, 16\ns_or_b32 s62, s62, s68'%cfg.rot)
        else: A('s_add_u32 s62, s62, 16')
    def load(slot,j,throttle=True,th=None):
        if j==0: A('s_lshl_b32 s65, s62, 12')
        if throttle:
            t_=(th or cfg.T); lo=int(t_); fr=t_-lo
            w=lo+(1 if (int((j+1)*fr+1e-9)>int(j*fr+1e-9)) else 0)
            A('s_waitcnt vmcnt(%d)'%(w-1))
        r=RB+slot*32+j*4
        t=j//4
        A('buffer_load_dwordx4 v[%d:%d], %s, %s, s65 offen offset:%d %s'%(r,r+3,'v2' if t==0 else 'v1','s[40:43]' if t==0 else 's[44:47]',(j%4)*1024,cfg.kf if t==0 else cfg.vf))
    def prog(val):
        A('v_mov_b32 v30, %s\nds_write_b32 v3, v30 offset:%d'%(val,L_PR))
    NK=NS//2
    assert NS%2==0 and NK>=10 and NK<=15
    slot_of={u:u for u in range(6)}
    slot_of.update({6:0,7:1,8:2})
    for u in range(9,NS+1): slot_of[u]=(u-9)&1
    tr={'issued':0}
    def sload():
        n=tr['issued']; G=n//8; j=n%8
        tr['issued']=n+1
        if G==NS:
            load(slot_of[G],j,th=cfg.T); return
        t=G//NK; k=2*(G%NK)+j//4
        if cfg.vdiag is not None and G==cfg.vdiag and j==0: stamp(6)
        if cfg.vdiag is not None and G==cfg.vdiag+1 and j==0: stamp(7)
        if j%4==0: A('s_add_u32 s65, s%d, %d'%(8+k%4,k*65536))
        w=cfg.T0 if (cfg.T0 and n<cfg.n0) else TH
        if n>=w: A('s_waitcnt vmcnt(%d)'%(w-1))
        r=RB+slot_of[G]*32+j*4
        A('buffer_load_dwordx4 v[%d:%d], %s, %s, s65 offen offset:%d %s'%(r,r+3,'v2' if t==0 else 'v1','s[40:43]' if t==0 else 's[44:47]',(j%4)*1024,cfg.kf if t==0 else cfg.vf))
        if j==7 and n>=15: prog(G+1)
    def pro_issue(n0,n1):
        assert tr['issued']==n0
        for n in range(n0,n1): sload()
    if cfg.svcfirst: A('s_barrier')
    if cfg.sdiag: stamp(6)
    pro_issue(0,TH)
    if cfg.sdiag: stamp(7)
    A('s_mov_b32 s56, 0x05040100\ns_mov_b32 s57, 0x07060302\ns_mov_b32 s58, 0x%x'%SCALE)
    A('s_lshl_b32 s54, s50, %d\ns_add_u32 s54, s54, %d\ns_add_u32 s66, s38, s54\ns_addc_u32 s67, s39, 0'%(cfg.cs,CTR))
    if cfg.cdbg: A('s_lshl_b32 s54, s50, 9\ns_add_u32 s54, s54, 4096\ns_add_u32 s66, s36, s54\ns_addc_u32 s67, s37, 0')
    A('s_lshl_b32 s55, s52, 11')
    A('v_lshlrev_b32 v4, 9, v4\nv_and_b32 v0, 0x30, v0\nv_add3_u32 v0, v4, v0, s55')
    A('v_mov_b32 v14, 0xff800000')
    if cfg.sdiag:
        stamp(9); A('s_waitcnt vmcnt(%d)'%(TH-1)); stamp(10)
    pro_issue(TH,48)
    stamp(1)
    if cfg.qflag:
        A('v_mov_b32 v31, 0\nL_qw:\nds_read_b32 v15, v31 offset:%d\ns_waitcnt lgkmcnt(0)\nv_readfirstlane_b32 s54, v15\ns_cmp_eq_u32 s54, 0\ns_cbranch_scc1 L_qw'%(L_CNT+16))
    else: A('s_barrier')
    A('ds_read_b128 v[4:7], v1 offset:%d'%L_QL)
    stamp(2)
    A('s_waitcnt lgkmcnt(0)')
    def kpart(slot,fill):
        B=RB+slot*32
        f=list(fill)
        def nxt():
            if f: f.pop(0)()
        D=[20,B,B+4,B+8]
        if cfg.nocomp:
            while f: nxt()
            return
        for i in range(4):
            A('v_mfma_f32_16x16x32_bf16 v[%d:%d], v[%d:%d], v[4:7], 0'%(D[i],D[i]+3,B+4*i,B+4*i+3))
        A('s_nop 7')
        for h in range(2):
            for step in range(3):
                for e in range(2):
                    be=2*e+h
                    S=18+e
                    A('v_add_f32_dpp v%d, v%d, v%d row_ror:%d row_mask:0xf bank_mask:0x%x'%(S,D[be]+((be+step+1)&3),(D[be]+be) if step==0 else S,12-4*step,1<<be))
                A('s_nop 0')
        nxt()
        A('s_nop 0')
        A('v_mov_b32_dpp v18, v19 quad_perm:[0,1,2,3] row_mask:0xf bank_mask:0xc')
        A('v_cvt_pk_bf16_f32 v18, 0, v18\nv_mul_f32 v18, s58, v18\nv_cvt_pk_bf16_f32 v18, 0, v18')
        A('v_max_f32 v15, v14, v18')
        A('s_nop 1\nv_max_f32_dpp v15, v15, v15 row_ror:4 row_mask:0xf bank_mask:0xf')
        A('s_nop 1\nv_max_f32_dpp v15, v15, v15 row_ror:8 row_mask:0xf bank_mask:0xf')
        A('v_mov_b32 v31, v15\ns_nop 1\nv_permlane16_swap_b32 v15, v31\nv_max_f32 v15, v15, v31')
        A('v_mov_b32 v31, v15\ns_nop 1\nv_permlane32_swap_b32 v15, v31\nv_max_f32 v15, v15, v31')
        nxt()
        A('v_sub_f32 v16, v14, v15\nv_sub_f32 v18, v18, v15\nv_cmp_neq_f32 vcc, v14, v15\nv_mul_f32 v16, s59, v16\nv_mul_f32 v18, s59, v18')
        A('v_exp_f32 v16, v16\nv_exp_f32 v18, v18\nv_mov_b32 v14, v15\nv_mul_f32 v17, s59, v15')
        A('v_mov_b32_dpp v19, v18 row_ror:12 row_mask:0xf bank_mask:0xf')
        A('v_cvt_pk_bf16_f32 v8, v18, v19')
        l=newlab('nr')
        A('s_cbranch_vccz %s'%l)
        for r in range(32,64,2):
            A('v_pk_mul_f32 v[%d:%d], v[%d:%d], v[16:17] op_sel_hi:[1,0]'%(r,r+1,r,r+1))
        A('v_mul_f32 v24, v24, v16')
        A('%s:'%l)
        A('s_nop 0')
        A('v_mov_b32_dpp v9, v8 row_ror:8 row_mask:0xf bank_mask:0xf')
        while f: nxt()
    def vpart(slot):
        B=RB+slot*32+16
        if cfg.nocomp: return
        def perms(j):
            Tt=10+2*(j&1)
            for ii in range(2):
                A('v_perm_b32 v%d, v%d, v%d, s%d'%(Tt+ii,B+4*(2*ii+1)+(j>>1),B+4*(2*ii)+(j>>1),56+(j&1)))
        perms(0)
        for j in range(8):
            if j<7: perms(j+1)
            else: A('v_mfma_f32_16x16x16_bf16 v[24:27], v[28:29], v[8:9], v[24:27]')
            Tt=10+2*(j&1)
            A('v_mfma_f32_16x16x16_bf16 v[%d:%d], v[%d:%d], v[8:9], v[%d:%d]'%(32+4*j,35+4*j,Tt,Tt+1,32+4*j,35+4*j))
    SC=[8,9,10,11,12,13,20,21,22,23,25,26,27,28,29][:NK]
    RV=RB+5*32; TV=RV+4
    def need(n):
        rem=tr['issued']-n
        assert rem>=0
        if rem<TH: A('s_waitcnt vmcnt(%d)'%rem)
    def spread(chunks,nl):
        m=len(chunks)
        for i,c in enumerate(chunks):
            if not cfg.nocomp: A(c)
            for _ in range((nl*(i+1))//m-(nl*i)//m): sload()
    def kgroup(G):
        B=RB+slot_of[G]*32
        ch=['\n'.join('v_mfma_f32_16x16x32_bf16 v[%d:%d], v[%d:%d], v[4:7], 0'%(32+4*i,35+4*i,B+4*i,B+4*i+3) for i in range(8))+'\ns_nop 1']
        for be in range(4):
            c=[]
            for step in range(3):
                for e in range(2):
                    D=32+4*(2*be+e); S=18+e
                    c.append('v_add_f32_dpp v%d, v%d, v%d row_ror:%d row_mask:0xf bank_mask:0x%x'%(S,D+((be+step+1)&3),(D+be) if step==0 else S,12-4*step,1<<be))
                c.append('s_nop 0')
            ch.append('\n'.join(c))
        ch[-1]+='\nv_cvt_pk_bf16_f32 v15, 0, v18\nv_cvt_pk_bf16_f32 v16, 0, v19\nv_mul_f32 v15, s58, v15\nv_mul_f32 v16, s58, v16'
        ch[-1]+='\nv_cvt_pk_bf16_f32 v%d, v15, v16\nv_cvt_pk_bf16_f32 v15, 0, v15\nv_cvt_pk_bf16_f32 v16, 0, v16\nv_max3_f32 v14, v14, v15, v16'%SC[G]
        return ch
    def wred(op,r):
        return ('s_nop 1\n%s_dpp v%d, v%d, v%d row_ror:4 row_mask:0xf bank_mask:0xf\ns_nop 1\n%s_dpp v%d, v%d, v%d row_ror:8 row_mask:0xf bank_mask:0xf\n'%(op,r,r,r,op,r,r,r)+
                'v_mov_b32 v31, v%d\ns_nop 1\nv_permlane16_swap_b32 v%d, v31\n%s v%d, v%d, v31\n'%(r,r,op,r,r)+
                'v_mov_b32 v31, v%d\ns_nop 1\nv_permlane32_swap_b32 v%d, v31\n%s v%d, v%d, v31'%(r,r,op,r,r))
    def softmax():
        ch=[wred('v_max_f32',14)+'\nv_mul_f32 v17, s59, v14\nv_mov_b32 v24, 0']
        for g in range(NK):
            ch.append('v_lshlrev_b32 v18, 16, v%d\nv_and_b32 v19, s60, v%d\nv_sub_f32 v18, v18, v14\nv_sub_f32 v19, v19, v14\nv_mul_f32 v18, s59, v18\nv_mul_f32 v19, s59, v19\n'%(SC[g],SC[g])+
                      'v_exp_f32 v18, v18\nv_exp_f32 v19, v19\ns_nop 0\nv_cvt_pk_bf16_f32 v%d, v18, v19\nv_add_f32 v24, v24, v18\nv_add_f32 v24, v24, v19'%SC[g])
        ch.append(wred('v_add_f32',24))
        return ch
    def vgroup(G):
        B=RB+slot_of[G]*32; P=SC[G-NK]
        def perms(j):
            Tt=TV+4*(j&1)
            return '\n'.join('v_perm_b32 v%d, v%d, v%d, s%d'%(Tt+ii,B+4*(2*ii+1)+(j>>1),B+4*(2*ii)+(j>>1),56+(j&1)) for ii in range(4))
        c0='v_mov_b32 v%d, v%d\n'%(RV,P)+'\n'.join('v_mov_b32_dpp v%d, v%d row_ror:%d row_mask:0xf bank_mask:0xf'%(RV+r,P,16-4*r) for r in range(1,4))+'\n'+perms(0)
        ch=[c0]
        for j in range(8):
            Tt=TV+4*(j&1); acc='v[%d:%d]'%(32+4*j,35+4*j)
            ch.append((perms(j+1) if j<7 else 's_nop 1')+'\nv_mfma_f32_16x16x32_bf16 %s, v[%d:%d], v[%d:%d], %s'%(acc,Tt,Tt+3,RV,RV+3,'0' if G==NK else acc))
        return ch
    def request():
        if not cfg.chunk:
            A('s_mov_b32 s63, 1\ns_atomic_add s63, s[66:67], 0x0 glc'); return
        la=newlab('ra'); lb=newlab('rb')
        A('s_cmp_eq_u32 s69, 0\ns_cbranch_scc1 %s'%la)
        A('s_mov_b32 s69, 0\ns_sub_u32 s63, s62, %d\ns_branch %s'%(NS*16,lb))
        A('%s:'%la)
        A('s_cmp_lt_u32 s62, %d\ns_cselect_b32 s69, 1, 0\ns_add_u32 s63, s69, 1\ns_atomic_add s63, s[66:67], 0x0 glc'%(512-cfg.chunk))
        A('%s:'%lb)
    for G in range(9):
        need(8*G+8)
        spread(kgroup(G),[4,4,4,4,4,4,3,2,3][G])
    assert tr['issued']==80
    stamp(3)
    for G in range(9,NS):
        if G==NS-2:
            A('v_mov_b32 v31, 0\nL_cw:\nds_read_b32 v15, v31 offset:%d\ns_waitcnt lgkmcnt(0)\nv_readfirstlane_b32 s54, v15\ns_cmp_eq_u32 s54, 0\ns_cbranch_scc1 L_cw'%(L_CNT+8))
            stamp(4)
            A('s_mov_b32 s63, %d\ns_atomic_add s63, s[66:67], 0x0 glc\ns_mov_b32 s69, %d'%((2,1) if cfg.chunk else (1,0)))
        if G==NS-1:
            A('s_waitcnt lgkmcnt(0)\ns_add_u32 s62, s63, %d'%(NS*16+1))
            A('s_cmp_ge_u32 s62, 512\ns_cbranch_scc1 L_nrq'); request(); A('L_nrq:')
        lead=min(TH,8)
        if G==NK: spread(softmax(),lead)
        else:
            for _ in range(lead): sload()
        need(8*G+8)
        ch=kgroup(G) if G<NK else vgroup(G)
        spread(ch[:-1],8-lead); spread(ch[-1:],0)
    A('s_cmp_ge_u32 s62, 512\ns_cbranch_scc1 L_sdone')
    A('v_mov_b32 v28, 0x3f803f80\nv_mov_b32 v29, 0x3f803f80\nv_mov_b32 v25, 0\nv_mov_b32 v26, 0\nv_mov_b32 v27, 0')
    A('s_waitcnt lgkmcnt(0)\ns_add_u32 s62, s63, %d'%(NS*16+1))
    A('s_mov_b32 s64, %d'%(NS+1))
    def body(c,th):
        for j in range(4): load(1-c,j,th=th)
        if th>8: A('s_waitcnt vmcnt(8)')
        kpart(c,[(lambda j=j: load(1-c,j,th=th)) for j in range(4,8)])
        if th>8: A('s_waitcnt vmcnt(8)')
        vpart(c)
    A('L_dyn:')
    for c in (slot_of[NS],1-slot_of[NS]):
        ls=newlab('st'); lc=newlab('sc')
        if cfg.diag: A('s_add_u32 s64, s64, 1')
        A('s_cmp_ge_u32 s62, 512\ns_cbranch_scc1 %s'%ls)
        request()
        A('%s:'%ls)
        body(c,cfg.T2 or cfg.T)
        A('s_cmp_ge_u32 s62, 512\ns_cbranch_scc1 L_sdone')
        A('s_waitcnt lgkmcnt(0)')
        A('s_add_u32 s62, s63, %d'%(NS*16+1))
    A('s_branch L_dyn')
    A('L_sdone:')
    A('s_mov_b32 exec_lo, 0x000f000f\ns_mov_b32 exec_hi, 0x000f000f')
    stamp(5)
    A('s_lshl_b32 s55, s52, 2\nv_and_b32 v31, 0x30, v1\nv_lshl_add_u32 v31, v31, 1, s55')
    for j in range(8):
        A('ds_write_b128 v0, v[%d:%d] offset:%d'%(32+4*j,35+4*j,L_OW+64*j))
    A('ds_write2_b32 v31, v17, v24 offset0:%d offset1:%d'%(L_MLW//4,L_MLW//4+4))
    if cfg.diag:
        A('s_mov_b64 exec, -1')
        A('s_cmp_lg_u32 s52, 0\ns_cbranch_scc1 L_nost')
        pack_stamps(11 if cfg.sdiag else 8,8)
        A('v_writelane_b32 v8, s64, 8')
        A('ds_write_b32 v3, v8 offset:%d'%L_ST)
        A('L_nost:')
    A('s_waitcnt lgkmcnt(0)')
    A('s_barrier')
    A('s_endpgm')

    A('L_service:')
    if cfg.bare:
        A('s_sub_u32 s53, s52, 4\nv_mov_b32 v11, 0\nv_mov_b32 v12, 1\nv_mov_b32 v40, -1\nv_mov_b32 v41, -1\nv_mov_b32 v42, -1\nv_mov_b32 v43, -1\ns_waitcnt lgkmcnt(0)')
        if cfg.bare&2:
            A('s_lshl_b32 s54, s2, 2\ns_add_u32 s54, s54, s53\ns_mul_i32 s54, s54, 640\ns_add_u32 s54, s54, %d\nv_add_u32 v6, s54, v1\ns_mov_b32 exec_hi, 0xff\nglobal_store_dwordx4 v6, v[40:43], %s sc1\ns_mov_b64 exec, -1'%(CLR+0x100000,WS))
        if cfg.bare&4:
            A('global_load_dwordx4 v[32:35], v1, %s'%X)
        if cfg.bare&8:
            A('v_mov_b32 v6, s2\ns_mov_b64 exec, 1\nglobal_store_byte v6, v12, %s sc1\ns_mov_b64 exec, -1'%DBG)
        A('ds_write_b32 v11, v12 offset:%d\ns_waitcnt lgkmcnt(0)\ns_barrier\ns_barrier'%(L_CNT+8))
        if cfg.bare&16:
            A('v_lshlrev_b32 v7, 2, v0\nglobal_load_dword v13, v7, %s sc1'%DBG)
        A('s_barrier\ns_endpgm')
    A('s_setprio 3')
    A('s_sub_u32 s53, s52, 4')
    A('s_lshl_b32 s66, s53, 12')
    A('s_mov_b32 s3, %d'%FLG)
    A('s_lshr_b32 s68, s49, 3\ns_and_b32 s69, s49, 7')
    A('v_lshrrev_b32 v2, 5, v0\ns_lshl_b32 s54, s53, 1\nv_add_u32 v2, s54, v2')
    A('v_and_b32 v3, 31, v0\nv_lshlrev_b32 v3, 4, v3')
    A('v_lshl_add_u32 v4, v2, 10, v3')
    A('s_lshl_b32 s54, s68, 7\ns_lshl_b32 s55, s53, 5\ns_add_u32 s54, s54, s55')
    A('v_lshrrev_b32 v6, 3, v0\nv_add_u32 v6, s54, v6\nv_lshlrev_b32 v6, 13, v6')
    A('v_and_b32 v7, 7, v0\nv_lshl_add_u32 v6, v7, 4, v6')
    A('s_lshl_b32 s54, s48, 10\ns_lshl_b32 s55, s69, 7\ns_add_u32 s54, s54, s55\nv_add_u32 v6, s54, v6')
    A('s_lshl_b32 s54, s48, 2\ns_add_u32 s54, s54, s68\ns_lshl_b32 s54, s54, 11\ns_lshl_b32 s55, s69, 8\ns_add_u32 s54, s54, s55\ns_lshl_b32 s55, s53, 6\ns_add_u32 s54, s54, s55')
    A('v_lshlrev_b32 v14, 16, v7\nv_and_b32 v15, 0x30, v0\nv_add3_u32 v14, v14, v15, s54')
    A('v_mov_b32 v40, -1\nv_mov_b32 v41, -1\nv_mov_b32 v42, -1\nv_mov_b32 v43, -1')
    A('s_add_u32 m0, s66, %d'%L_WA)
    A('v_lshrrev_b32 v44, 1, v0\nv_lshlrev_b32 v44, 9, v44\nv_and_b32 v45, 16, v1\nv_add3_u32 v79, v44, v45, %s'%'s3')
    A('v_mov_b32 v44, 0\nv_mov_b32 v45, 0\nv_mov_b32 v46, 0\nv_mov_b32 v47, 0\nv_mov_b32 v11, 0\nv_mov_b32 v12, 1')
    A('s_lshl_b32 s12, s2, 2\ns_add_u32 s12, s12, s53')
    A('s_waitcnt lgkmcnt(0)')
    A('s_cmp_lg_u32 s12, 3\ns_cbranch_scc1 L_nolead')
    A('global_store_dwordx4 v79, v[44:47], %s sc1'%WS)
    A('L_nolead:')
    A('global_load_dwordx4 v[32:35], v4, %s'%X)
    A('global_load_dwordx4 v[36:39], v4, %s offset:512'%X)
    if cfg.nowq: A('s_mov_b64 exec, 1')
    for i in range(4):
        if i: A('s_add_u32 m0, s66, %d\nv_add_u32 v6, 0x10000, v6'%(L_WA+i*1024))
        A('global_load_lds_dwordx4 v6, %s %s'%(WQ,cfg.wf))
    A('s_mov_b32 exec_lo, 0x00ff00ff\ns_mov_b32 exec_hi, 0x00ff00ff')
    if cfg.noqst: A('s_mov_b64 exec, 1')
    A('global_store_dwordx4 v14, v[40:43], %s sc1'%WS)
    A('s_mov_b64 exec, -1')
    if cfg.svcfirst==1: A('s_barrier')
    A('s_lshl_b32 s54, s2, 12\ns_lshl_b32 s55, s53, 10\ns_add_u32 s54, s54, s55\ns_add_u32 s54, s54, %d'%CLR)
    A('v_add_u32 v6, s54, v1')
    if cfg.noclr: A('s_mov_b64 exec, 1')
    A('global_store_dwordx4 v6, v[40:43], %s sc1'%WS)
    if cfg.noclr: A('s_mov_b64 exec, -1')
    A('s_lshl_b32 s54, s2, 2\ns_add_u32 s54, s54, s53\ns_mul_i32 s54, s54, 640\ns_add_u32 s54, s54, %d'%(CLR+0x100000))
    A('v_add_u32 v6, s54, v1')
    A('s_mov_b32 exec_hi, 0xff')
    A('global_store_dwordx4 v6, v[40:43], %s sc1'%WS)
    A('s_mov_b64 exec, -1')
    if cfg.svcfirst==2: A('s_barrier')
    A('v_mul_u32_u24 v5, %d, v2\nv_add_u32 v5, v5, v3'%XNS)
    A('v_lshrrev_b32 v8, 4, v0\nv_lshlrev_b32 v8, 10, v8\nv_bfe_u32 v9, v0, 2, 2\nv_lshl_add_u32 v8, v9, 7, v8\nv_and_b32 v9, 3, v0\nv_lshl_add_u32 v8, v9, 3, v8')
    A('s_lshl_b32 s54, s53, 5\nv_add_u32 v8, s54, v8')
    A('v_mul_u32_u24 v9, %d, v7\nv_add_u32 v9, v9, v15\ns_lshl_b32 s54, s68, 8\nv_add_u32 v10, s54, v9'%XNS)
    A('s_lshl_b32 s54, s53, 8\nv_mov_b32 v31, s54')

    def dppadd(r,ctl):
        A('s_nop 1\nv_add_f32_dpp v%d, v%d, v%d %s row_mask:0xf bank_mask:0xf'%(r,r,r,ctl))
    def swapadd(r,t,w):
        A('v_mov_b32 v%d, v%d\ns_nop 1\nv_permlane%d_swap_b32 v%d, v%d\nv_add_f32 v%d, v%d, v%d'%(t,r,w,r,t,r,r,t))
    def rbf(r):
        A('v_cvt_pk_bf16_f32 v%d, 0, v%d'%(r,r))
    def layernorm(mode):
        if mode=='x':
            for i in range(8):
                A('v_lshlrev_b32 v%d, 16, v%d\nv_and_b32 v%d, s60, v%d'%(48+2*i,32+i,49+2*i,32+i))
        Q=lambda i:'v[%d:%d]'%(48+2*i,49+2*i)
        P=Q if mode=='x' else (lambda i:'v[%d:%d]'%(216+2*i,217+2*i))
        A('v_pk_add_f32 v[64:65], %s, %s\nv_pk_mul_f32 v[66:67], %s, %s'%(P(0),P(1),P(0),P(0)))
        A('v_pk_add_f32 v[68:69], %s, %s\nv_pk_mul_f32 v[70:71], %s, %s'%(P(2),P(3),P(1),P(1)))
        for i in range(2,8,2):
            if i>2: A('v_pk_add_f32 v[64:65], v[64:65], %s'%P(i))
            A('v_pk_fma_f32 v[66:67], %s, %s, v[66:67]'%(P(i),P(i)))
            if i>2: A('v_pk_add_f32 v[68:69], v[68:69], %s'%P(i+1))
            A('v_pk_fma_f32 v[70:71], %s, %s, v[70:71]'%(P(i+1),P(i+1)))
        A('v_pk_add_f32 v[64:65], v[64:65], v[68:69]\nv_pk_add_f32 v[66:67], v[66:67], v[70:71]')
        A('v_add_f32 v64, v64, v65\nv_add_f32 v66, v66, v67')
        ctl=['row_ror:1','row_ror:2','row_ror:4','row_ror:8'] if mode=='x' else ['quad_perm:[1,0,3,2]','quad_perm:[2,3,0,1]','row_ror:8']
        for c in ctl:
            A('s_nop 0')
            for r in (64,66): A('v_add_f32_dpp v%d, v%d, v%d %s row_mask:0xf bank_mask:0xf'%(r,r,r,c))
        for w in ((16,) if mode=='x' else (16,32)):
            A('v_mov_b32 v65, v64\nv_mov_b32 v67, v66\ns_nop 0')
            A('v_permlane%d_swap_b32 v64, v65\nv_permlane%d_swap_b32 v66, v67'%(w,w))
            A('v_add_f32 v64, v64, v65\nv_add_f32 v66, v66, v67')
        A('v_mul_f32 v64, 0xbb000000, v64\nv_mul_f32 v66, 0x3b000000, v66')
        A('v_cvt_pk_bf16_f32 v68, 0, v64')
        chain=['v_fma_f32 v66, -v64, v64, v66','v_max_f32 v66, 0, v66','v_cvt_pk_bf16_f32 v66, 0, v66','v_add_f32 v66, 0x3727c5ac, v66',
               'v_cvt_pk_bf16_f32 v66, 0, v66','v_sqrt_f32 v66, v66','v_cvt_pk_bf16_f32 v66, 0, v66','v_rcp_f32 v66, v66']
        for i in range(8):
            A(chain[i])
            A('v_pk_add_f32 %s, %s, v[68:69] op_sel_hi:[1,0]'%(Q(i),P(i)))
        for i in range(16): A('v_cvt_pk_bf16_f32 v%d, 0, v%d'%(48+i,48+i))
        nw=2 if mode=='h' else 4
        for i in range(8):
            A('v_pk_mul_f32 %s, %s, v[66:67] op_sel_hi:[1,0]'%(Q(i),Q(i)))
        for i in range(8):
            A('v_cvt_pk_bf16_f32 v%d, v%d, v%d'%(32+i,48+2*i,49+2*i))
            if mode=='h' and i%2==1: A('ds_write_b64 v5, v[%d:%d] offset:%d'%(31+i,32+i,L_XN+256*(i//2)))
            if mode=='x' and i%4==3: A('ds_write_b128 v5, v[%d:%d] offset:%d'%(29+i,32+i,L_XN+512*(i//4)))
    def lds_sync(cnt,sleep=0):
        l=newlab('ls')
        A('s_waitcnt lgkmcnt(0)')
        A('s_mov_b64 exec, 1\nds_add_u32 v11, v12 offset:%d\ns_mov_b64 exec, -1'%(L_CNT+4*cnt))
        lds_wait(11,L_CNT+4*cnt,4,sleep)
    def lds_wait(va,off,val,sleep):
        l=newlab('lw'); d=newlab('ld')
        A('%s:'%l)
        A('ds_read_b32 v13, v%d offset:%d\ns_waitcnt lgkmcnt(0)\nv_readfirstlane_b32 s54, v13\ns_cmp_ge_u32 s54, %s'%(va,off,val))
        if sleep: A('s_cbranch_scc1 %s\ns_sleep %d\ns_branch %s\n%s:'%(d,sleep,l,d))
        else: A('s_cbranch_scc0 %s'%l)
    def progress(p): lds_wait(31,L_PR,p,6)
    def poll(loads,regs,sleep=0,guard=False):
        l=newlab('pl'); d=newlab('pd')
        if guard: sleep=cfg.tsleep
        A('s_mov_b32 s61, %d'%cfg.spin)
        A('%s:'%l)
        for x in loads: A(x)
        import re as _re
        first=True; pend=[]
        for i,x in enumerate(loads):
            m=_re.search(r'v\[(\d+):(\d+)\]',x)
            pend+=list(range(int(m.group(1)),int(m.group(2))+1))
            last=(i==len(loads)-1)
            if len(pend)<4 and not last: continue
            A('s_waitcnt vmcnt(%d)'%(len(loads)-1-i))
            while pend:
                if first:
                    if len(pend)>=3: A('v_max3_u32 v13, v%d, v%d, v%d'%tuple(pend[:3])); pend=pend[3:]
                    else: A('v_max_u32 v13, v%d, v%d'%tuple(pend[:2])); pend=pend[2:]
                    first=False
                elif len(pend)>=2: A('v_max3_u32 v13, v13, v%d, v%d'%tuple(pend[:2])); pend=pend[2:]
                elif last: A('v_max_u32 v13, v13, v%d'%pend[0]); pend=[]
                else: break
        A('v_cmp_eq_u32 vcc, -1, v13')
        A('s_cbranch_vccz %s'%d)
        if sleep: A('s_sleep %d'%sleep)
        A('s_sub_u32 s61, s61, 1\ns_cmp_lg_u32 s61, 0\ns_cbranch_scc1 %s'%l)
        A('%s:'%d)
    def apoll(loads,par):
        import re as _re
        mode,D,sleep=par
        l=newlab('al'); d=newlab('ad'); gl=newlab('ag')
        rg=[]
        for x in loads:
            m=_re.search(r'v\[(\d+):(\d+)\]',x); rg.append(list(range(int(m.group(1)),int(m.group(2))+1)))
        def chain(t,r):
            r=list(r)
            if len(r)==2: A('v_max_u32 v%d, v%d, v%d'%(t,r[0],r[1])); return
            A('v_max3_u32 v%d, v%d, v%d, v%d'%(t,r[0],r[1],r[2])); r=r[3:]
            while r:
                if len(r)==1: A('v_max_u32 v%d, v%d, v%d'%(t,t,r[0])); r=[]
                else: A('v_max3_u32 v%d, v%d, v%d, v%d'%(t,t,r[0],r[1])); r=r[2:]
        n=len(loads)
        A('s_mov_b32 s61, %d'%cfg.spin)
        if mode in 'cm':
            A('%s:'%l)
            for x in loads: A(x)
            if sleep: A('s_sleep %d'%sleep)
            A('s_waitcnt vmcnt(%d)'%min(63,n*(D-1)))
            chain(13,sum(rg,[]))
            A('v_cmp_eq_u32 vcc, -1, v13')
            A('s_cbranch_vccz %s'%d)
            if mode=='m': A('s_mov_b64 exec, vcc')
            A('s_sub_u32 s61, s61, 1\ns_cmp_lg_u32 s61, 0\ns_cbranch_scc1 %s'%l)
            A('%s:'%d)
            if mode=='m': A('s_mov_b64 exec, s[4:5]')
        else:
            mk=['s[6:7]','s[8:9]','s[10:11]','s[40:41]','s[42:43]','s[44:45]','s[46:47]','s[62:63]'][:n]
            for m_ in mk: A('s_mov_b64 %s, s[4:5]'%m_)
            A('%s:'%l)
            for x,m_ in zip(loads,mk):
                sk=newlab('as')
                A('s_mov_b64 exec, %s\ns_cbranch_execz %s'%(m_,sk)); A(x); A('%s:'%sk)
            A('s_mov_b64 exec, s[4:5]')
            if sleep: A('s_sleep %d'%sleep)
            A('s_waitcnt vmcnt(%d)'%min(63,n*(D-1)))
            for i in range(n): chain(246+i,rg[i])
            chain(13,[246+i for i in range(n)])
            A('v_cmp_eq_u32 vcc, -1, v13')
            A('s_cbranch_vccz %s'%d)
            for i in range(n): A('v_cmp_eq_u32 %s, -1, v%d'%(mk[i],246+i))
            A('s_sub_u32 s61, s61, 1\ns_cmp_lg_u32 s61, 0\ns_cbranch_scc1 %s'%l)
            A('%s:'%d)
    def flagpoll(voff,execmask):
        l=newlab('fl'); d=newlab('fd')
        A('s_mov_b32 s61, %d'%cfg.spin)
        A('s_mov_b64 exec, %s'%execmask)
        A('%s:'%l)
        A('global_load_dwordx4 v[72:75], v%d, %s sc1\ns_waitcnt vmcnt(0)'%(voff,WS))
        A('v_min3_u32 v13, v72, v73, v74\nv_min_u32 v13, v13, v75\nv_cmp_eq_u32 vcc, 0, v13\ns_cbranch_vccz %s'%d)
        A('s_sleep 16')
        A('s_sub_u32 s61, s61, 1\ns_cmp_lg_u32 s61, 0\ns_cbranch_scc1 %s'%l)
        A('%s:'%d)
        A('s_mov_b64 exec, -1')
    def tr128(dst,base):
        for s_ in range(4):
            A('ds_read_b64_tr_b16 v[%d:%d], v8 offset:%d'%(dst+4*s_,dst+4*s_+1,base+4096*s_))
            A('ds_read_b64_tr_b16 v[%d:%d], v8 offset:%d'%(dst+4*s_+2,dst+4*s_+3,base+4096*s_+512))

    A('s_waitcnt vmcnt(7)')
    A('s_cmp_lg_u32 s12, 3\ns_cbranch_scc1 L_nogo')
    A('s_waitcnt vmcnt(0)')
    A('s_mov_b64 exec, 1\nglobal_store_dword v11, v12, %s sc1\ns_mov_b64 exec, -1'%DBG)
    A('L_nogo:')
    stamp(1)
    layernorm('x')
    A('s_waitcnt vmcnt(0)')
    lds_sync(0)
    stamp(2)
    tr128(80,L_WA)
    for s_ in range(4):
        A('ds_read_b128 v[%d:%d], v10 offset:%d'%(32+4*s_,35+4*s_,L_XN+64*s_))
    A('s_waitcnt lgkmcnt(0)')
    for s_ in range(4):
        A('v_mfma_f32_16x16x32_bf16 v[48:51], v[%d:%d], v[%d:%d], %s'%(80+4*s_,83+4*s_,32+4*s_,35+4*s_,'0' if s_==0 else 'v[48:51]'))
    A('s_nop 7')
    for r in range(4): A('v_min_u32 v%d, -2, v%d'%(48+r,48+r))
    A('s_mov_b32 exec_lo, 0x00ff00ff\ns_mov_b32 exec_hi, 0x00ff00ff')
    if cfg.noqst: A('s_mov_b64 exec, 1')
    A('global_store_dwordx4 v14, v[48:51], %s sc1'%WS)
    A('s_mov_b64 exec, -1')
    stamp(3)
    A('s_cmp_lg_u32 s53, 3\ns_cbranch_scc1 L_noflag')
    A('s_lshl_b32 s54, s48, 2\ns_add_u32 s54, s54, s68\ns_lshl_b32 s54, s54, 9\ns_lshl_b32 s55, s69, 2\ns_add_u32 s54, s54, s55\ns_add_u32 s54, s54, s3\nv_mov_b32 v6, s54')
    A('s_mov_b32 s61, %d\ns_mov_b64 exec, 1\nL_go:\nglobal_load_dword v13, v11, %s sc1\ns_waitcnt vmcnt(0)\nv_cmp_eq_u32 vcc, 0, v13\ns_cbranch_vccz L_god'%(cfg.spin,DBG))
    A('s_sleep 8\ns_sub_u32 s61, s61, 1\ns_cmp_lg_u32 s61, 0\ns_cbranch_scc1 L_go\nL_god:')
    A('global_store_dword v6, v12, %s sc1'%WS)
    A('L_noflag:')
    A('s_mov_b64 exec, 1\nds_add_u32 v11, v12 offset:%d\ns_mov_b64 exec, -1'%(L_CNT+12))
    A('s_cmp_lg_u32 s53, %d\ns_cbranch_scc1 L_qdone'%(9 if cfg.noq else 0))
    A('v_and_b32 v6, 3, v0\nv_lshlrev_b32 v6, 9, v6\nv_lshrrev_b32 v14, 2, v0\nv_lshl_add_u32 v6, v14, 5, v6')
    A('s_lshl_b32 s54, s50, 13\ns_add_u32 s54, s54, %d\nv_add_u32 v6, s54, v6'%(QP+3072))
    A('s_and_b32 s54, s50, 7\ns_lshl_b32 s54, s54, 11\nv_add_u32 v7, s54, v79')
    lds_wait(11,L_CNT+12,4,2)
    progress(cfg.pq)
    flagpoll(7,'0xff')
    stamp(4)
    poll(['global_load_dwordx4 v[%d:%d], v6, %s offset:%d sc1'%(32+8*kq+4*h,35+8*kq+4*h,WS,2048*kq+16*h-3072) for kq in range(4) for h in range(2)],list(range(32,64)),sleep=8)
    for p in range(4):
        A('v_pk_add_f32 v[%d:%d], v[%d:%d], v[%d:%d]'%(32+2*p,33+2*p,32+2*p,33+2*p,40+2*p,41+2*p))
        A('v_pk_add_f32 v[%d:%d], v[%d:%d], v[%d:%d]'%(48+2*p,49+2*p,48+2*p,49+2*p,56+2*p,57+2*p))
    for p in range(4):
        A('v_pk_add_f32 v[%d:%d], v[%d:%d], v[%d:%d]'%(32+2*p,33+2*p,32+2*p,33+2*p,48+2*p,49+2*p))
    for p in range(4):
        A('v_cvt_pk_bf16_f32 v%d, v%d, v%d'%(32+p,32+2*p,33+2*p))
    A('ds_write_b128 v1, v[32:35] offset:%d'%L_QL)
    stamp(5)
    A('s_waitcnt lgkmcnt(0)')
    if cfg.qflag: A('ds_write_b32 v11, v12 offset:%d'%(L_CNT+16))
    A('L_qdone:')
    if cfg.touch:
        A('s_lshl_b32 s54, s50, 21\ns_load_dword s4, %s, s54'%VP)
        A('s_load_dword s5, %s, 0\ns_load_dword s6, %s, 0\ns_load_dword s7, %s, 0\ns_load_dword s8, %s, 0'%(OUT,WG,WU,WD))
        A('s_lshl_b32 s54, s48, 19\ns_load_dword s9, %s, s54'%WO)
        A('s_waitcnt lgkmcnt(0)')
    A('s_setprio 0')
    if not cfg.qflag: A('s_barrier')

    A('s_mov_b32 s70, 0\ns_and_b32 s54, s49, 0x13\ns_cmp_eq_u32 s54, s51\ns_cselect_b32 s70, 2, s70')
    A('s_cmp_lt_u32 s48, 4\ns_cselect_b32 s6, 16, 12\ns_cselect_b32 s7, 8, 6\ns_cselect_b32 s8, 0, 8\ns_mul_i32 s14, s48, s7\ns_add_u32 s14, s14, s8')
    if cfg.helper: A('s_and_b32 s54, s49, 0x13\ns_xor_b32 s54, s54, 2\ns_cmp_eq_u32 s54, s51\ns_cselect_b32 s9, s49, 99\ns_cmp_lt_u32 s9, s6\ns_cselect_b32 s70, 4, s70')
    A('s_sub_u32 s54, s49, 16\ns_cmp_lt_u32 s54, s6\ns_cselect_b32 s70, 1, s70')
    A('s_xor_b32 s55, s2, s49\ns_and_b32 s55, s55, 1\ns_cselect_b32 s70, 3, s70')
    A('s_bfe_u32 s54, s49, 0x30001\ns_add_u32 s14, s14, s54')
    A('s_lshr_b32 s15, s49, 2\ns_add_u32 s54, s48, %d\ns_and_b32 s54, s54, 7\ns_lshl_b32 s54, s54, 2\ns_add_u32 s15, s15, s54'%cfg.crot)
    A('s_lshr_b32 s13, s2, 1')
    A('s_lshl_b32 s54, s48, 2\ns_add_u32 s67, s54, s68')
    A('s_bfe_u32 s69, s49, 0x20001')
    A('v_and_b32 v6, 3, v0\nv_lshlrev_b32 v6, 2, v6\nv_lshrrev_b32 v7, 4, v0\nv_add_u32 v6, v6, v7')
    A('v_bfe_u32 v7, v0, 2, 1')
    A('v_lshrrev_b32 v24, 3, v0\nv_lshlrev_b32 v24, 14, v24\nv_and_b32 v13, 0x70, v1\nv_add_u32 v24, v24, v13\ns_mov_b32 s55, s13\ns_lshl_b32 s54, s55, 7\ns_add_u32 s54, s54, %d\nv_add_u32 v24, s54, v24'%HB)
    A('v_lshlrev_b32 v6, 1, v6\nv_lshl_add_u32 v6, v7, 10, v6\ns_lshr_b32 s54, s55, 5\ns_lshl_b32 s54, s54, 11\ns_and_b32 s55, s55, 31\ns_lshl_b32 s55, s55, 5\ns_add_u32 s54, s54, s55\nv_add_u32 v6, s54, v6')
    A('global_load_ushort v16, v6, %s'%X)
    A('s_cmp_lg_u32 s53, 0\ns_cbranch_scc1 L_nofc')
    flagpoll(79,'-1')
    if cfg.ctouch is not None:
        A('s_lshl_b32 s54, s50, %d\ns_add_u32 s54, s54, %d\nv_mov_b32 v7, s54\nglobal_load_dword v13, v7, %s %s\ns_waitcnt vmcnt(0)'%(cfg.cs,CTR,WS,cfg.ctouch))
    A('s_mov_b64 exec, 1\nds_add_u32 v11, v12 offset:%d\ns_mov_b64 exec, -1'%(L_CNT+8))
    A('L_nofc:')
    def paced(k,n,line):
        f=lambda k: cfg.pw0+(k*(cfg.pw1-cfg.pw0))//n
        if k==0 or f(k)!=f(k-1): progress(f(k))
        assert f(k)<cfg.NS
        A(line)
    def dma1(k):
        i=k//2
        return ('v_add_u32 v7, %d, v6\n'%(i*16*3584))+'s_add_u32 m0, s71, %d\ns_nop 0\nglobal_load_lds_dwordx4 v7, %s %s'%(L_WA+32768*(k&1)+i*1024,WU if k&1 else WG,cfg.ff)
    def dma2(i):
        return ('v_add_u32 v7, %d, v6\n'%(i*0x8000))+'s_add_u32 m0, s71, %d\ns_nop 0\nglobal_load_lds_dwordx4 v7, %s %s'%(L_WA+i*1024,WD,cfg.ff)
    l1=newlab('w1'); l2=newlab('w2'); le=newlab('we')
    A('s_cmp_eq_u32 s70, 0\ns_cbranch_scc1 %s\ns_cmp_eq_u32 s70, 2\ns_cbranch_scc1 %s\ns_cmp_lg_u32 s70, 3\ns_cbranch_scc1 %s'%(le,l2,l1))
    A('s_lshl_b32 s54, s67, 7\ns_lshl_b32 s55, s53, 1\ns_add_u32 s54, s54, s55\ns_lshl_b32 s54, s54, 10\ns_lshl_b32 s55, s69, 8\ns_add_u32 s54, s54, s55')
    A('v_lshrrev_b32 v6, 4, v0\nv_lshlrev_b32 v6, 13, v6\nv_and_b32 v7, 15, v0\nv_lshl_add_u32 v6, v7, 4, v6\nv_add_u32 v6, s54, v6')
    A('s_lshl_b32 s71, s53, 13')
    def dmaw(i):
        return 'v_add_u32 v7, %d, v6\ns_add_u32 m0, s71, %d\ns_nop 0\nglobal_load_lds_dwordx4 v7, %s %s'%((32*(i&3)+(i>>2))*1024,L_WA+i*1024,WO,cfg.wf)
    for i in range(0 if cfg.noW else cfg.EW): paced(i,cfg.EW,dmaw(i))
    A('s_branch %s'%le)
    A('%s:'%l1)
    A('s_lshl_b32 s54, s14, 6')
    A('s_lshl_b32 s55, s53, 7\nv_lshrrev_b32 v6, 2, v0\nv_add_u32 v6, s55, v6\nv_mul_u32_u24 v6, 3584, v6\nv_and_b32 v7, 3, v0\nv_lshl_add_u32 v6, v7, 4, v6\nv_add_u32 v6, s54, v6')
    A('s_lshl_b32 s71, s53, 13')
    A('s_cmp_eq_u32 s70, 4\ns_cbranch_scc1 %s'%le)
    for k in range(cfg.E1): paced(k,cfg.E1,dma1(k))
    A('s_branch %s'%le)
    A('%s:'%l2)
    A('s_mul_i32 s54, s53, 448\nv_lshrrev_b32 v6, 1, v0\nv_add_u32 v6, s54, v6\nv_lshlrev_b32 v6, 10, v6')
    A('v_and_b32 v7, 1, v0\nv_lshl_add_u32 v6, v7, 4, v6\ns_lshl_b32 s54, s15, 5\nv_add_u32 v6, s54, v6')
    A('s_mul_i32 s71, s53, 14336')
    for k in range(cfg.E2): paced(k,cfg.E2,dma2(k))
    A('%s:'%le)
    A('s_waitcnt vmcnt(0)')
    A('v_lshlrev_b32 v16, 16, v16')
    lds_sync(1,sleep=4)
    stamp(6)
    l1=newlab('r1'); l2=newlab('r2'); le=newlab('re')
    A('v_mov_b32 v26, 0\nv_mov_b32 v27, 0\nv_mov_b32 v28, 0\nv_mov_b32 v29, 0')
    A('s_cmp_eq_u32 s70, 1\ns_cbranch_scc1 %s\ns_cmp_eq_u32 s70, 2\ns_cbranch_scc1 %s'%(l1,l2))
    A('v_lshrrev_b32 v8, 4, v0\nv_lshlrev_b32 v8, 11, v8\nv_bfe_u32 v7, v0, 2, 2\nv_lshl_add_u32 v8, v7, 8, v8\nv_and_b32 v7, 3, v0\nv_lshl_add_u32 v8, v7, 3, v8')
    A('s_lshl_b32 s54, s53, 6\ns_add_u32 s54, s54, %d\nv_add_u32 v8, s54, v8'%L_WA)
    def trw():
        for t in range(2):
            for s_ in range(4):
                r=80+16*t+4*s_
                A('ds_read_b64_tr_b16 v[%d:%d], v8 offset:%d'%(r,r+1,8192*s_+32*t))
                A('ds_read_b64_tr_b16 v[%d:%d], v8 offset:%d'%(r+2,r+3,8192*s_+32*t+1024))
            if t==0 or cfg.EW==8: A('s_waitcnt lgkmcnt(0)')
    if cfg.EW==8: trw()
    A('s_branch %s'%le)
    A('%s:'%l1)
    A('v_lshrrev_b32 v8, 4, v0\nv_lshlrev_b32 v8, 9, v8\nv_bfe_u32 v7, v0, 2, 2\nv_lshl_add_u32 v8, v7, 6, v8')
    A('v_and_b32 v7, 1, v0\nv_lshl_add_u32 v8, v7, 3, v8\nv_bfe_u32 v7, v0, 1, 1\nv_lshl_add_u32 v8, v7, 15, v8\ns_lshl_b32 s54, s53, 4\ns_add_u32 s54, s54, %d\nv_add_u32 v8, s54, v8'%L_WA)
    A('s_lshl_b32 s54, s14, 2\ns_add_u32 s54, s54, s53\ns_lshl_b32 s54, s54, 7\ns_add_u32 s54, s54, %d'%AB)
    A('v_and_b32 v27, 0x70, v1\nv_lshrrev_b32 v7, 3, v0\nv_lshl_add_u32 v27, v7, 15, v27\nv_add_u32 v27, s54, v27')
    A('s_and_b32 s55, s48, %d\ns_lshl_b32 s55, s55, 14\ns_add_u32 s54, s66, s55\ns_add_u32 s54, s54, %d\nv_add_u32 v4, s54, v1'%(cfg.nH-1,HB))
    A('v_bfe_u32 v5, v0, 2, 1\ns_lshl_b32 s54, s53, 1\nv_add_u32 v5, s54, v5\nv_mul_u32_u24 v5, %d, v5\nv_lshrrev_b32 v7, 3, v0\nv_lshl_add_u32 v5, v7, 5, v5\nv_and_b32 v7, 3, v0\nv_lshl_add_u32 v5, v7, 3, v5'%XNS)
    A('s_branch %s'%le)
    A('%s:'%l2)
    A('v_lshrrev_b32 v8, 4, v0\nv_lshlrev_b32 v8, 9, v8\nv_bfe_u32 v7, v0, 1, 1\nv_lshl_add_u32 v8, v7, 8, v8\nv_bfe_u32 v7, v0, 2, 2\nv_lshl_add_u32 v8, v7, 5, v8')
    A('v_and_b32 v7, 1, v0\nv_lshl_add_u32 v8, v7, 3, v8\ns_add_u32 s55, s71, %d\nv_add_u32 v8, s55, v8'%L_WA)
    A('v_bfe_u32 v26, v0, 2, 1\nv_lshlrev_b32 v26, 10, v26\nv_bfe_u32 v7, v0, 1, 1\nv_lshl_add_u32 v26, v7, 8, v26\nv_lshrrev_b32 v7, 3, v0\nv_lshl_add_u32 v26, v7, 4, v26\nv_and_b32 v7, 1, v0\nv_lshl_add_u32 v26, v7, 3, v26')
    A('s_and_b32 s55, s48, %d\ns_lshl_b32 s55, s55, 15\ns_mul_i32 s54, s53, 7168\ns_add_u32 s54, s54, s55\ns_add_u32 s54, s54, %d\nv_add_u32 v27, s54, v1'%(cfg.nA-1,AB+3072))
    A('s_mov_b32 s54, s15\ns_lshl_b32 s55, s54, 5')
    A('v_lshrrev_b32 v28, 3, v0\nv_lshlrev_b32 v28, 10, v28\nv_and_b32 v7, 7, v0\nv_lshl_add_u32 v28, v7, 2, v28\nv_add_u32 v28, s55, v28')
    A('s_lshl_b32 s54, s54, 7\ns_and_b32 s55, s48, %d\ns_lshl_b32 s55, s55, 14\ns_add_u32 s54, s54, s55\ns_add_u32 s54, s54, %d'%(cfg.nH-1,HB))
    A('v_lshrrev_b32 v29, 4, v0\nv_lshlrev_b32 v29, 12, v29\nv_and_b32 v7, 15, v0\nv_lshl_add_u32 v29, v7, 3, v29\nv_add_u32 v29, s54, v29')
    A('s_lshl_b32 s54, s53, 11\nv_add_u32 v10, s54, v1')
    A('%s:'%le)
    A('s_lshl_b32 s54, s53, 9\nv_add_u32 v17, s54, v3')
    A('s_and_b32 s54, s50, 7\ns_lshl_b32 s54, s54, 2\ns_add_u32 s54, s54, s53\ns_lshl_b32 s54, s54, 3\ns_lshr_b32 s55, s50, 3\ns_add_u32 s54, s54, s55\ns_lshl_b32 s54, s54, 2\ns_add_u32 s54, s54, s51')
    A('s_mul_i32 s54, s54, %d\ns_add_u32 s54, s54, %d\nv_add_u32 v18, s54, v1'%(OPS,OP))
    A('s_mul_i32 s54, s67, %d\ns_add_u32 s54, s54, %d\nv_mul_u32_u24 v25, %d, v2\nv_add_u32 v25, s54, v25\nv_add_u32 v19, v25, v3'%(32*OPS,OP,4*OPS))
    A('s_lshl_b32 s54, s53, 5\nv_mov_b32 v30, s54')
    A('v_mul_u32_u24 v20, %d, v2\nv_lshrrev_b32 v7, 1, v3\nv_add_u32 v20, v20, v7'%XOS)
    A('v_and_b32 v21, 7, v0\nv_mul_u32_u24 v21, %d, v21\nv_add_u32 v21, v21, v15'%XOS)
    A('s_lshl_b32 s54, s69, 2\ns_add_u32 s54, s54, s53\ns_lshl_b32 s54, s54, 6\ns_add_u32 s54, s54, s67\ns_lshl_b32 s54, s54, 7\ns_add_u32 s54, s54, %d'%(WP+2048))
    A('v_bfe_u32 v22, v0, 1, 2\nv_lshlrev_b32 v22, 17, v22\nv_and_b32 v7, 1, v0\nv_lshl_add_u32 v22, v7, 6, v22\nv_add3_u32 v22, v22, v15, s54')
    A('s_lshl_b32 s54, s13, 12\ns_add_u32 s54, s54, %d\nv_add_u32 v23, s54, v1'%WP)
    def guarded(lines):
        A(lines)
    def drychk():
        pass
    for r in range(192,246): A('v_mov_b32 v%d, -1'%r)
    A('s_waitcnt lgkmcnt(0)')
    A('s_mov_b64 vcc, 0\ns_mov_b64 s[4:5], %d\ns_mov_b64 exec, s[4:5]'%(0 if cfg.warm else -1))
    A('L_tail:')
    stamp(7)
    guarded('s_barrier')
    def wsum(b0,half,s0=None):
        d='v[%d:%d]'%(b0+2*half,b0+2*half+1)
        s0=s0 or b0
        for w in range(4):
            src='v[%d:%d]'%(s0+4*w+2*half,s0+4*w+2*half+1)
            f='v[%d:%d]'%(72+2*(w//2),73+2*(w//2))
            if w==0: A('v_pk_mul_f32 %s, %s, %s op_sel_hi:[1,0]'%(d,src,f))
            elif w%2==0: A('v_pk_fma_f32 %s, %s, %s, %s op_sel_hi:[1,0,1]'%(d,src,f,d))
            else: A('v_pk_fma_f32 %s, %s, %s, %s op_sel:[0,1,0] op_sel_hi:[1,1,1]'%(d,src,f,d))
    if cfg.gleak is not None:
        k,lo,hi,msk=cfg.gleak
        A('s_cbranch_execz L_nogl\ns_cmp_lg_u32 s53, 0\ns_cbranch_scc1 L_nogl')
        if k>=100: A('v_mov_b32 v32, %d\nds_read_b32 v33, v32 offset:%d\ns_waitcnt lgkmcnt(0)'%(4*(k-100),L_ST))
        else: A('v_mov_b32 v33, s%d'%(72+2*k))
        A('v_not_b32 v33, v33\nv_mov_b32 v34, s72\nv_mov_b32 v32, 0x22f000')
        A('s_mov_b64 exec, 1')
        A('global_atomic_umin v32, v34, %s'%WS)
        A('s_and_b32 s54, s2, %d\ns_sub_u32 s54, s54, %d\ns_cmp_ge_u32 s54, %d\ns_cbranch_scc1 L_nogl2'%(msk,lo,hi-lo))
        A('global_atomic_umin v32, v33, %s offset:256'%WS)
        A('L_nogl2:\ns_mov_b64 exec, -1\ns_waitcnt vmcnt(0)')
        A('L_nogl:')
    A('ds_read_b128 v[64:67], v30 offset:%d\nds_read_b128 v[68:71], v30 offset:%d'%(L_MLW,L_MLW+16))
    for w in range(4):
        A('ds_read_b128 v[%d:%d], v17 offset:%d'%(32+4*w,35+4*w,L_OW+2048*w))
    stamp(8)
    if cfg.notail: A('s_branch L_fin')
    A('s_and_b32 exec_hi, s4, 1')
    A('s_waitcnt lgkmcnt(%d)'%(0 if cfg.diag else 4))
    A('v_max3_f32 v76, v64, v65, v66\nv_max_f32 v76, v76, v67')
    A('v_pk_add_f32 v[72:73], v[64:65], v[76:77] op_sel_hi:[1,0] neg_lo:[0,1] neg_hi:[0,1]')
    A('v_pk_add_f32 v[74:75], v[66:67], v[76:77] op_sel_hi:[1,0] neg_lo:[0,1] neg_hi:[0,1]')
    for i in range(4): A('v_exp_f32 v%d, v%d'%(72+i,72+i))
    A('v_pk_mul_f32 v[68:69], v[68:69], v[72:73]\nv_pk_fma_f32 v[68:69], v[70:71], v[74:75], v[68:69]')
    A('s_waitcnt lgkmcnt(0)')
    A('v_add_f32 v77, v68, v69')
    wsum(32,0); wsum(32,1)
    A('v_mov_b32_dpp v32, v76 quad_perm:[0,1,2,3] row_mask:0x4 bank_mask:0xf')
    A('v_mov_b32_dpp v33, v77 quad_perm:[0,1,2,3] row_mask:0x4 bank_mask:0xf')
    guarded('global_store_dwordx4 v18, v[32:35], %s sc1'%WS)
    tstamp(1)
    A('s_mov_b64 exec, s[4:5]')
    A('s_cmp_lg_u32 s70, 3\ns_cbranch_scc1 L_rdone')
    if cfg.EW<8:
        for i in range(cfg.EW,8): A(dmaw(i))
        A('s_waitcnt vmcnt(0)\ns_barrier')
        trw()
    apoll(['global_load_dwordx2 v[%d:%d], v25, %s offset:%d sc1'%(208+2*s_,209+2*s_,WS,OPS*s_+512) for s_ in range(4)]+
         ['global_load_dwordx4 v[%d:%d], v19, %s offset:%d sc1'%(192+4*s_,195+4*s_,WS,OPS*s_) for s_ in range(4)],cfg.pW)
    stamp(9)
    A('v_max3_f32 v76, v208, v210, v212\nv_max_f32 v76, v76, v214')
    for i in range(4): A('v_sub_f32 v%d, v%d, v76'%(72+i,208+2*i))
    for i in range(4): A('v_exp_f32 v%d, v%d'%(72+i,72+i))
    A('v_mul_f32 v78, v72, v209')
    for i in range(1,4): A('v_fmac_f32 v78, v%d, v%d'%(72+i,209+2*i))
    A('v_rcp_f32 v78, v78')
    wsum(48,0,192); wsum(48,1,192)
    A('v_pk_mul_f32 v[48:49], v[48:49], v[78:79] op_sel_hi:[1,0]\nv_pk_mul_f32 v[50:51], v[50:51], v[78:79] op_sel_hi:[1,0]')
    A('v_cvt_pk_bf16_f32 v48, v48, v49\nv_cvt_pk_bf16_f32 v49, v50, v51')
    A('ds_write_b64 v20, v[48:49] offset:%d'%L_XO)
    A('s_waitcnt lgkmcnt(0)'); guarded('s_barrier')
    if cfg.tdiag: tstamp(2); A('s_waitcnt lgkmcnt(0)')
    for s_ in range(4):
        A('ds_read_b128 v[%d:%d], v21 offset:%d'%(32+4*s_,35+4*s_,L_XO+64*s_))
    for s_ in range(4):
        A('s_waitcnt lgkmcnt(%d)'%(3-s_))
        for t in range(2):
            acc='v[%d:%d]'%(48+4*t,51+4*t); r=80+16*t+4*s_
            A('v_mfma_f32_16x16x32_bf16 %s, v[%d:%d], v[%d:%d], %s'%(acc,r,r+3,32+4*s_,35+4*s_,'0' if s_==0 else acc))
    A('s_mov_b32 exec_lo, 0x00ff00ff\ns_mov_b32 exec_hi, 0x00ff00ff')
    A('s_nop 4')
    A('global_store_dwordx4 v22, v[48:51], %s offset:-2048 sc1'%WS)
    A('global_store_dwordx4 v22, v[52:55], %s offset:2048 sc1'%WS)
    tstamp(3)
    A('s_mov_b64 exec, -1')
    A('s_cmp_lg_u32 s53, 0\ns_cbranch_scc1 L_fin')
    apoll(['global_load_dwordx4 v[%d:%d], v23, %s offset:%d sc1'%(216+4*t,219+4*t,WS,1024*t) for t in range(4)],cfg.pR)
    stamp(10)
    A('v_pk_add_f32 v[32:33], v[216:217], v[220:221]\nv_pk_add_f32 v[34:35], v[218:219], v[222:223]')
    A('v_pk_add_f32 v[40:41], v[224:225], v[228:229]\nv_pk_add_f32 v[42:43], v[226:227], v[230:231]')
    A('v_pk_add_f32 v[32:33], v[32:33], v[40:41]\nv_pk_add_f32 v[34:35], v[34:35], v[42:43]')
    A('s_nop 1\nv_permlane32_swap_b32 v32, v34\nv_permlane32_swap_b32 v33, v35')
    A('v_add_f32 v32, v32, v34\nv_add_f32 v33, v33, v35')
    A('s_nop 1\nv_permlane16_swap_b32 v32, v33\nv_add_f32 v32, v32, v33')
    dppadd(32,'row_ror:8')
    rbf(32)
    A('v_add_f32 v32, v32, v16')
    rbf(32)
    A('v_mov_b32 v33, v32\ns_nop 1\nv_permlane16_swap_b32 v32, v33\nv_mov_b32 v34, v32\nv_mov_b32 v35, v33\ns_nop 0')
    A('v_permlane32_swap_b32 v32, v34\nv_permlane32_swap_b32 v33, v35')
    if cfg.nH<8: A('s_and_b32 exec_lo, s4, 0x%x\ns_mov_b32 exec_hi, 0'%((1<<(8*cfg.nH))-1))
    guarded('global_store_dwordx4 v24, v[32:35], %s sc1'%WS)
    tstamp(4)
    A('s_branch L_fin')
    A('L_rdone:')
    A('s_cmp_eq_u32 s70, 2\ns_cbranch_scc1 L_ffn2')
    A('s_cmp_eq_u32 s70, 0\ns_cbranch_scc1 L_fin')
    if cfg.lrot:
        assert cfg.E1%2==0
        i0=cfg.E1//2; n=8-i0
        if cfg.helper: A('s_and_b32 s6, s14, 1\ns_cmp_eq_u32 s70, 4\ns_cselect_b32 s6, 2, s6\ns_mul_i32 s6, s6, %d\ns_add_u32 s6, s6, %d'%(n//3,i0))
        else: A('s_and_b32 s6, s14, 1\ns_mul_i32 s6, s6, %d\ns_add_u32 s6, s6, %d'%(n//2,i0))
        for it in range(n):
            if cfg.helper and it==n-2*(n//3): A('s_cmp_eq_u32 s70, 4\ns_cbranch_scc1 L_fin')
            A('s_mul_i32 s7, s6, %d\nv_add_u32 v7, s7, v6\ns_lshl_b32 s7, s6, 10\ns_add_u32 s7, s7, s71\ns_add_u32 m0, s7, %d\ns_add_u32 s6, s6, 1'%(16*3584,L_WA))
            A('global_load_lds_dwordx4 v7, %s %s'%(WG,cfg.ff))
            A('s_add_u32 m0, s7, %d\ns_cmp_eq_u32 s6, 8\ns_cselect_b32 s6, %d, s6'%(L_WA+32768,i0))
            A('global_load_lds_dwordx4 v7, %s %s'%(WU,cfg.ff))
    else:
        for k in range(cfg.E1,16): A(dma1(k))
    A('s_waitcnt vmcnt(0)\ns_barrier')
    for s_ in range(16):
        A('ds_read_b64_tr_b16 v[%d:%d], v8 offset:%d'%(96+4*s_,97+4*s_,2048*s_))
        A('ds_read_b64_tr_b16 v[%d:%d], v8 offset:%d'%(98+4*s_,99+4*s_,2048*s_+256))
        if s_%4==3: A('s_waitcnt lgkmcnt(0)')
    tstamp(2)
    apoll(['global_load_dwordx4 v[%d:%d], v4, %s offset:%d sc1'%(216+4*t,219+4*t,WS,1024*t) for t in range(4)],cfg.pF)
    stamp(11)
    layernorm('h')
    tstamp(5)
    A('s_waitcnt lgkmcnt(0)'); guarded('s_barrier')
    if cfg.tdiag: tstamp(6); A('s_waitcnt lgkmcnt(0)')
    for s_ in range(8):
        A('ds_read_b128 v[%d:%d], v9 offset:%d'%(32+4*s_,35+4*s_,L_XN+64*s_))
    for s_ in range(16):
        A('s_waitcnt lgkmcnt(%d)'%min(7,15-s_))
        b=32+4*(s_%8) if s_<8 else 160+4*(s_-8)
        A('v_mfma_f32_16x16x32_bf16 v[64:67], v[%d:%d], v[%d:%d], %s'%(96+4*s_,99+4*s_,b,b+3,'0' if s_==0 else 'v[64:67]'))
        if s_<8: A('ds_read_b128 v[%d:%d], v9 offset:%d'%(160+4*s_,163+4*s_,L_XN+64*(s_+8)))
    A('s_nop 7')
    A('v_permlane32_swap_b32 v64, v65\nv_permlane32_swap_b32 v66, v67')
    A('s_nop 1')
    A('v_mov_b32_dpp v64, v66 quad_perm:[0,1,2,3] row_mask:0xf bank_mask:0xc')
    A('v_mov_b32_dpp v65, v67 quad_perm:[0,1,2,3] row_mask:0xf bank_mask:0xc')
    A('v_cvt_pk_bf16_f32 v32, 0, v64\nv_cvt_pk_bf16_f32 v36, 0, v65')
    A('v_mul_f32 v33, v32, v32\nv_mul_f32 v33, 0x3d372713, v33\nv_fma_f32 v33, v33, v32, v32')
    A('v_mul_f32 v33, 0xc0135761, v33\nv_exp_f32 v33, v33\ns_nop 0\nv_add_f32 v33, 1.0, v33\nv_rcp_f32 v33, v33\ns_nop 0\nv_mul_f32 v33, v33, v32')
    rbf(33)
    A('v_mul_f32 v33, v33, v36\nv_mov_b32 v34, v33\ns_nop 1\nv_permlane32_swap_b32 v33, v34')
    A('v_cvt_pk_bf16_f32 v33, v33, v34\nv_min_u32 v36, -2, v33')
    A('v_mov_b32 v32, v36\nv_mov_b32 v33, v36\ns_nop 0')
    A('v_mov_b32_dpp v32, v36 row_ror:8 row_mask:0xf bank_mask:0xc\nv_mov_b32_dpp v33, v36 row_ror:8 row_mask:0xf bank_mask:0x3')
    A('v_mov_b32 v34, v32\nv_mov_b32 v35, v33\ns_nop 0')
    A('v_permlane16_swap_b32 v32, v34\nv_permlane16_swap_b32 v33, v35')
    if cfg.nA<8: A('s_and_b32 exec_lo, s4, 0x%x\ns_mov_b32 exec_hi, 0'%((1<<(8*cfg.nA))-1))
    guarded('global_store_dwordx4 v27, v[32:35], %s sc1'%WS)
    stamp(12)
    A('L_fin:')
    A('s_waitcnt vmcnt(0)')
    if cfg.diag:
        dump_stamps(14,8)
    A('s_endpgm')
    A('L_ffn2:')
    if cfg.lrot:
        n=14-cfg.E2
        A('s_and_b32 s6, s15, 3\ns_mul_i32 s6, s6, %d\ns_lshr_b32 s6, s6, 2\ns_add_u32 s6, s6, %d'%(n,cfg.E2))
        for _ in range(n):
            A('s_lshl_b32 s7, s6, 15\nv_add_u32 v7, s7, v6\ns_lshl_b32 s7, s6, 10\ns_add_u32 s7, s7, s71\ns_add_u32 m0, s7, %d\ns_add_u32 s6, s6, 1'%L_WA)
            A('global_load_lds_dwordx4 v7, %s %s'%(WD,cfg.ff))
            A('s_cmp_eq_u32 s6, 14\ns_cselect_b32 s6, %d, s6'%cfg.E2)
    else:
        for k in range(cfg.E2,14): A(dma2(k))
    A('s_waitcnt vmcnt(0)')
    for t in range(7):
        for tt in range(2):
            r=96+8*t+4*tt
            A('ds_read_b64_tr_b16 v[%d:%d], v8 offset:%d'%(r,r+1,2048*t+16*tt))
            A('ds_read_b64_tr_b16 v[%d:%d], v8 offset:%d'%(r+2,r+3,2048*t+16*tt+128))
        if t%2==0: A('s_waitcnt lgkmcnt(0)')
    tstamp(2)
    poll(guard=True,loads=['global_load_dwordx2 v[60:61], v29, %s sc1'%WS],regs=[60,61])
    apoll(['global_load_dwordx4 v[%d:%d], v27, %s offset:%d sc1'%(216+4*t,219+4*t,WS,1024*t-3072) for t in range(7)],cfg.pG)
    stamp(10)
    for t in range(7):
        for tt in range(2):
            acc='v[%d:%d]'%(64+4*tt,67+4*tt)
            r=96+8*t+4*tt
            A('v_mfma_f32_16x16x32_bf16 %s, v[%d:%d], v[%d:%d], %s'%(acc,r,r+3,216+4*t,219+4*t,'0' if t==0 else acc))
    A('s_nop 6')
    A('ds_write_b128 v10, v[64:67] offset:%d'%L_DP)
    A('ds_write_b128 v10, v[68:71] offset:%d'%(L_DP+1024))
    A('s_waitcnt lgkmcnt(0)'); guarded('s_barrier')
    tstamp(6)
    A('s_cmp_lg_u32 s53, 0\ns_cbranch_scc1 L_fin')
    for w in range(4):
        A('ds_read_b64 v[%d:%d], v26 offset:%d'%(32+4*w,33+4*w,L_DP+2048*w))
        A('ds_read_b64 v[%d:%d], v26 offset:%d'%(34+4*w,35+4*w,L_DP+2048*w+640))
    A('s_waitcnt lgkmcnt(0)')
    for w in range(4): A('v_pk_add_f32 v[%d:%d], v[%d:%d], v[%d:%d]'%(32+4*w,33+4*w,32+4*w,33+4*w,34+4*w,35+4*w))
    A('v_pk_add_f32 v[32:33], v[32:33], v[36:37]\nv_pk_add_f32 v[40:41], v[40:41], v[44:45]\nv_pk_add_f32 v[32:33], v[32:33], v[40:41]')
    A('v_cvt_pk_bf16_f32 v32, 0, v32\nv_cvt_pk_bf16_f32 v33, 0, v33')
    A('v_pk_add_f32 v[32:33], v[32:33], v[60:61]')
    A('v_cvt_pk_bf16_f32 v32, v32, v33')
    if cfg.odiag: stamp(12)
    guarded('global_store_dword v28, v32, %s %s'%(OUT,cfg.of))
    if cfg.odiag: A('s_waitcnt vmcnt(0)')
    drychk()
    if cfg.diag:
        stamp(13)
        if cfg.leak is not None:
            a,b=cfg.leak
            A('s_waitcnt lgkmcnt(0)')
            if cfg.gleak is not None:
                A('v_mov_b32 v8, 0x22f000\nglobal_load_dword v9, v8, %s sc1\nglobal_load_dword v10, v8, %s offset:256 sc1\ns_waitcnt vmcnt(0)'%(WS,WS))
                if b==13: A('v_mov_b32 v10, s%d'%(72+2*13))
                else: A('v_not_b32 v10, v10')
                A('v_sub_u32 v9, v10, v9\ns_nop 1\nv_readfirstlane_b32 s54, v9')
                if b==0: A('s_mov_b32 s54, 0')
            elif a>=100:
                A('v_mov_b32 v8, %d\nds_read_b32 v9, v8 offset:%d\nds_read_b32 v10, v8 offset:%d\ns_waitcnt lgkmcnt(0)\nv_sub_u32 v9, v9, v10\ns_nop 1\nv_readfirstlane_b32 s54, v9'%(0,L_ST+4*(b-100),L_ST+4*(a-100)))
            elif b>=100:
                A('v_mov_b32 v8, %d\nds_read_b32 v9, v8 offset:%d\ns_waitcnt lgkmcnt(0)\nv_readfirstlane_b32 s54, v9\ns_sub_u32 s54, s54, s%d'%(4*(b-100),L_ST,72+2*a))
            else: A('s_sub_u32 s54, s%d, s%d'%(72+2*b,72+2*a))
            A('s_mul_i32 s54, s54, %d\ns_min_u32 s54, s54, 60000'%cfg.mult)
            A('L_leak:')
            A('s_memrealtime s[68:69]\ns_waitcnt lgkmcnt(0)\ns_sub_u32 s55, s68, s%d\ns_cmp_lt_u32 s55, s54\ns_cbranch_scc1 L_leak'%(72+2*13))
        else:
            A('s_waitcnt lgkmcnt(0)\ns_mov_b32 s100, s92\ns_mov_b32 s92, 0')
            dump_stamps(15,8)
    A('L_end:')
    A('s_endpgm')
    A('.section .rodata,"a"\n.p2align 6\n.amdhsa_kernel %s'%K)
    A('  .amdhsa_next_free_vgpr 256\n  .amdhsa_next_free_sgpr 102\n  .amdhsa_accum_offset 256\n  .amdhsa_group_segment_fixed_size 0\n  .amdhsa_kernarg_size 96')
    A('  .amdhsa_user_sgpr_count 2\n  .amdhsa_user_sgpr_kernarg_segment_ptr 1\n  .amdhsa_system_sgpr_workgroup_id_x 1')
    A('  .amdhsa_float_denorm_mode_32 3\n  .amdhsa_float_denorm_mode_16_64 3')
    A('.end_amdhsa_kernel')
    return '\n'.join(L)+'\n'

if __name__=='__main__':
    cfg=Cfg()
    out=sys.argv[1]
    for a in sys.argv[2:]:
        k,v=a.split('=',1); setattr(cfg,k,eval(v))
    s=gen(cfg)
    hdr=''.join(l for l in open('cdna_kernels/%s.s.ref'%NAME).readlines()[:13])
    open(out,'w').write(hdr+s)
```

```python
import sys
NAME='sequential_preLN__gqa_block_cached__geglu_ffn__decode'
K=NAME+'_kernel'

class Cfg:
    diag=False
    leak=None
    nocomp=False
    noq=False
    T2=12
    par=None
    NP=3
    HS=20736; AS=28672; wrot=False; pre=0; head=0
    upfront=False
    vdiag=None
    odiag=False
    touch=True
    sdiag=False
    mult=1
    Q1=0; Q2=0
    E1=4; E2=0; EW=8; lrot=True; helper=False
    T0=None; n0=24
    qflag=True
    chunk=0
    bare=0
    notail=False
    knat=False
    cdbg=False
    ctouch=None
    rot=4
    cs=9
    nowq=False
    noqst=False
    nH=8; nA=8
    pW=('c',1,0); pR=('m',8,1); pF=('c',1,0); pG=('c',1,0)
    tdiag=False
    tsleep=0
    crot=0
    noclr=False
    wolate=False
    warm=False
    of=''
    gleak=None
    NS=28
    sflag=False
    svcfirst=0
    spin=1<<17
    T=5
    kf='nt'; vf='nt'; wf='nt'; ff=''
    pq=3
    pw0=7
    pw1=22
    noW=False

QP=0x0
FLG=0x80000
CLR=0x200000
WP=0x200000
OP=0x280000
OPS=640
HB=0x340000
AB=0x360000
CTR=0x3A0000
PRB=0x3C0000
STAMP=0x10000000
L_MLW=64
L_QL=256
L_XN=1280
XNS=1040
L_XO=9600
XOS=272
L_DP=11776
L_OW=19968
L_ST=28160
L_PR=28416
L_CNT=L_PR+1024
L_WA=30720
LDS_BYTES=L_WA+65536

LOG2E=0x3fb8aa3b
SCALE=0x3db504f3

def gen(cfg):
    L=[]
    def A(s):
        L.extend(s.split('\n'))
    lab=[0]
    def newlab(p):
        lab[0]+=1
        return 'L_%s_%d'%(p,lab[0])
    X,KP,VP,WQ,WO,BX,WG,WU,WD,OUT,DBG,WS=['s[%d:%d]'%(16+2*i,17+2*i) for i in range(12)]
    def stamp(i):
        if cfg.diag: A('s_memrealtime s[%d:%d]'%(72+2*i,73+2*i))
    def tstamp(i):
        if cfg.tdiag: stamp(i)
    def pack_stamps(n,vt):
        A('s_waitcnt lgkmcnt(0)')
        A('v_mov_b32 v%d, 0'%vt)
        for i in range(n): A('v_writelane_b32 v%d, s%d, %d'%(vt,72+2*i,i))
    def dump_stamps(n,vt):
        if not cfg.diag: return
        A('s_mov_b64 exec, -1')
        pack_stamps(n,vt)
        A('v_lshlrev_b32 v%d, 2, v0'%(vt+1))
        A('ds_read_b32 v%d, v%d offset:%d'%(vt+2,vt+1,L_ST))
        A('s_lshl_b32 s66, s2, 9\ns_add_u32 s66, s66, %d'%(STAMP))
        A('v_add_u32 v%d, s66, v%d'%(vt+1,vt+1))
        A('s_mov_b64 exec, 0xffff')
        A('s_waitcnt lgkmcnt(0)')
        A('global_store_dword v%d, v%d, %s'%(vt+1,vt+2,WS))
        A('s_lshl_b32 s66, s53, 6\nv_add_u32 v%d, s66, v%d'%(vt+1,vt+1))
        A('global_store_dword v%d, v%d, %s offset:64'%(vt+1,vt,WS))

    A('; @launch grid=(256,1,1) block=(512,1,1) lds=%d'%LDS_BYTES)
    A('.amdgcn_target "amdgcn-amd-amdhsa--gfx950"\n.text\n.globl %s\n.p2align 8\n.type %s,@function\n%s:'%(K,K,K))
    A('s_cmp_ge_u32 s2, 256\ns_cbranch_scc1 L_end')
    stamp(0)
    A('v_lshrrev_b32 v1, 6, v0')
    A('v_lshlrev_b32 v3, 2, v0')
    A('v_readfirstlane_b32 s52, v1')
    A('s_cmp_lt_u32 s52, 4\ns_cbranch_scc1 L_noz')
    A('v_mov_b32 v30, 0')
    A('ds_write_b32 v3, v30 offset:%d\nds_write_b32 v3, v30 offset:%d'%(L_PR-1024,L_PR))
    A('s_waitcnt lgkmcnt(0)')
    A('L_noz:')
    A('s_load_dwordx16 s[16:31], s[0:1], 0')
    A('s_load_dwordx8 s[32:39], s[0:1], 64')
    A('s_barrier')
    if cfg.diag:
        for i in range(1,14): A('s_mov_b32 s%d, 0'%(72+2*i))
    A('v_and_b32 v0, 63, v0')
    A('s_and_b32 s48, s2, 7\ns_lshr_b32 s49, s2, 3\ns_lshl_b32 s50, s49, 1\ns_bfe_u32 s54, s2, 0x10001\ns_or_b32 s50, s50, s54')
    A('s_and_b32 s51, s2, 1\ns_bfe_u32 s54, s2, 0x10002\ns_lshl_b32 s54, s54, 1\ns_or_b32 s51, s51, s54')
    A('s_mov_b32 s59, 0x%x\ns_mov_b32 s60, 0xffff0000'%(LOG2E))
    A('v_lshlrev_b32 v1, 4, v0')
    A('s_cmp_ge_u32 s52, 4\ns_cbranch_scc1 L_service')

    import math
    TH=math.ceil(cfg.T)
    NS=cfg.NS
    RB=64
    A('s_lshl_b32 s54, s50, 21')
    A('s_lshl_b32 s62, s51, 2\ns_add_u32 s62, s62, s52')
    for i in range(4): A('s_add_u32 s%d, s62, %d\ns_and_b32 s%d, s%d, 15\ns_lshl_b32 s%d, s%d, 12'%(8+i,cfg.rot*i,8+i,8+i,8+i,8+i))
    A('v_lshrrev_b32 v2, 4, v0\nv_lshlrev_b32 v2, 6, v2\nv_and_b32 v4, 3, v0\nv_lshl_add_u32 v2, v4, 4, v2')
    A('v_bfe_u32 v5, v0, 2, 2\nv_lshl_add_u32 v2, v5, 8, v2')
    if cfg.knat: A('v_mov_b32 v2, v1')
    A('s_mov_b32 s42, 0x200000\ns_mov_b32 s43, 0x20000\ns_mov_b32 s46, 0x200000\ns_mov_b32 s47, 0x20000')
    A('s_waitcnt lgkmcnt(0)')
    A('s_add_u32 s40, s18, s54\ns_addc_u32 s41, s19, 0\ns_and_b32 s41, s41, 0xffff')
    A('s_add_u32 s44, s20, s54\ns_addc_u32 s45, s21, 0\ns_and_b32 s45, s45, 0xffff')
    st={'n':0}
    def adv():
        if cfg.rot: A('s_add_u32 s68, s62, %d\ns_and_b32 s68, s68, 15\ns_andn2_b32 s62, s62, 15\ns_add_u32 s62, s62, 16\ns_or_b32 s62, s62, s68'%cfg.rot)
        else: A('s_add_u32 s62, s62, 16')
    def load(slot,j,throttle=True,th=None):
        if j==0: A('s_lshl_b32 s65, s62, 12')
        if throttle:
            t_=(th or cfg.T); lo=int(t_); fr=t_-lo
            w=lo+(1 if (int((j+1)*fr+1e-9)>int(j*fr+1e-9)) else 0)
            A('s_waitcnt vmcnt(%d)'%(w-1))
        r=RB+slot*32+j*4
        t=j//4
        A('buffer_load_dwordx4 v[%d:%d], %s, %s, s65 offen offset:%d %s'%(r,r+3,'v2' if t==0 else 'v1','s[40:43]' if t==0 else 's[44:47]',(j%4)*1024,cfg.kf if t==0 else cfg.vf))
    def prog(val):
        A('v_mov_b32 v30, %s\nds_write_b32 v3, v30 offset:%d'%(val,L_PR))
    NK=NS//2
    assert NS%2==0 and NK>=10 and NK<=15
    slot_of={u:u for u in range(6)}
    slot_of.update({6:0,7:1,8:2})
    for u in range(9,NS+1): slot_of[u]=(u-9)&1
    tr={'issued':0}
    def sload():
        n=tr['issued']; G=n//8; j=n%8
        tr['issued']=n+1
        if G==NS:
            load(slot_of[G],j,th=cfg.T); return
        t=G//NK; k=2*(G%NK)+j//4
        if cfg.vdiag is not None and G==cfg.vdiag and j==0: stamp(6)
        if cfg.vdiag is not None and G==cfg.vdiag+1 and j==0: stamp(7)
        if j%4==0: A('s_add_u32 s65, s%d, %d'%(8+k%4,k*65536))
        w=cfg.T0 if (cfg.T0 and n<cfg.n0) else TH
        if n>=w: A('s_waitcnt vmcnt(%d)'%(w-1))
        r=RB+slot_of[G]*32+j*4
        A('buffer_load_dwordx4 v[%d:%d], %s, %s, s65 offen offset:%d %s'%(r,r+3,'v2' if t==0 else 'v1','s[40:43]' if t==0 else 's[44:47]',(j%4)*1024,cfg.kf if t==0 else cfg.vf))
        if j==7 and n>=15: prog(G+1)
    def pro_issue(n0,n1):
        assert tr['issued']==n0
        for n in range(n0,n1): sload()
    if cfg.svcfirst: A('s_barrier')
    if cfg.sdiag: stamp(6)
    pro_issue(0,TH)
    if cfg.sdiag: stamp(7)
    A('s_mov_b32 s56, 0x05040100\ns_mov_b32 s57, 0x07060302\ns_mov_b32 s58, 0x%x'%SCALE)
    A('s_lshl_b32 s54, s50, %d\ns_add_u32 s54, s54, %d\ns_add_u32 s66, s38, s54\ns_addc_u32 s67, s39, 0'%(cfg.cs,CTR))
    if cfg.cdbg: A('s_lshl_b32 s54, s50, 9\ns_add_u32 s54, s54, 4096\ns_add_u32 s66, s36, s54\ns_addc_u32 s67, s37, 0')
    A('s_lshl_b32 s55, s52, 11')
    A('v_lshlrev_b32 v4, 9, v4\nv_and_b32 v0, 0x30, v0\nv_add3_u32 v0, v4, v0, s55')
    A('v_mov_b32 v14, 0xff800000')
    if cfg.sdiag:
        stamp(9); A('s_waitcnt vmcnt(%d)'%(TH-1)); stamp(10)
    pro_issue(TH,48)
    stamp(1)
    if cfg.qflag:
        A('v_mov_b32 v31, 0\nL_qw:\nds_read_b32 v15, v31 offset:%d\ns_waitcnt lgkmcnt(0)\nv_readfirstlane_b32 s54, v15\ns_cmp_eq_u32 s54, 0\ns_cbranch_scc1 L_qw'%(L_CNT+16))
    else: A('s_barrier')
    A('ds_read_b128 v[4:7], v1 offset:%d'%L_QL)
    stamp(2)
    A('s_waitcnt lgkmcnt(0)')
    def kpart(slot,fill):
        B=RB+slot*32
        f=list(fill)
        def nxt():
            if f: f.pop(0)()
        D=[20,B,B+4,B+8]
        if cfg.nocomp:
            while f: nxt()
            return
        for i in range(4):
            A('v_mfma_f32_16x16x32_bf16 v[%d:%d], v[%d:%d], v[4:7], 0'%(D[i],D[i]+3,B+4*i,B+4*i+3))
        A('s_nop 7')
        for h in range(2):
            for step in range(3):
                for e in range(2):
                    be=2*e+h
                    S=18+e
                    A('v_add_f32_dpp v%d, v%d, v%d row_ror:%d row_mask:0xf bank_mask:0x%x'%(S,D[be]+((be+step+1)&3),(D[be]+be) if step==0 else S,12-4*step,1<<be))
                A('s_nop 0')
        nxt()
        A('s_nop 0')
        A('v_mov_b32_dpp v18, v19 quad_perm:[0,1,2,3] row_mask:0xf bank_mask:0xc')
        A('v_cvt_pk_bf16_f32 v18, 0, v18\nv_mul_f32 v18, s58, v18\nv_cvt_pk_bf16_f32 v18, 0, v18')
        A('v_max_f32 v15, v14, v18')
        A('s_nop 1\nv_max_f32_dpp v15, v15, v15 row_ror:4 row_mask:0xf bank_mask:0xf')
        A('s_nop 1\nv_max_f32_dpp v15, v15, v15 row_ror:8 row_mask:0xf bank_mask:0xf')
        A('v_mov_b32 v31, v15\ns_nop 1\nv_permlane16_swap_b32 v15, v31\nv_max_f32 v15, v15, v31')
        A('v_mov_b32 v31, v15\ns_nop 1\nv_permlane32_swap_b32 v15, v31\nv_max_f32 v15, v15, v31')
        nxt()
        A('v_sub_f32 v16, v14, v15\nv_sub_f32 v18, v18, v15\nv_cmp_neq_f32 vcc, v14, v15\nv_mul_f32 v16, s59, v16\nv_mul_f32 v18, s59, v18')
        A('v_exp_f32 v16, v16\nv_exp_f32 v18, v18\nv_mov_b32 v14, v15\nv_mul_f32 v17, s59, v15')
        A('v_mov_b32_dpp v19, v18 row_ror:12 row_mask:0xf bank_mask:0xf')
        A('v_cvt_pk_bf16_f32 v8, v18, v19')
        l=newlab('nr')
        A('s_cbranch_vccz %s'%l)
        for r in range(32,64,2):
            A('v_pk_mul_f32 v[%d:%d], v[%d:%d], v[16:17] op_sel_hi:[1,0]'%(r,r+1,r,r+1))
        A('v_mul_f32 v24, v24, v16')
        A('%s:'%l)
        A('s_nop 0')
        A('v_mov_b32_dpp v9, v8 row_ror:8 row_mask:0xf bank_mask:0xf')
        while f: nxt()
    def vpart(slot):
        B=RB+slot*32+16
        if cfg.nocomp: return
        def perms(j):
            Tt=10+2*(j&1)
            for ii in range(2):
                A('v_perm_b32 v%d, v%d, v%d, s%d'%(Tt+ii,B+4*(2*ii+1)+(j>>1),B+4*(2*ii)+(j>>1),56+(j&1)))
        perms(0)
        for j in range(8):
            if j<7: perms(j+1)
            else: A('v_mfma_f32_16x16x16_bf16 v[24:27], v[28:29], v[8:9], v[24:27]')
            Tt=10+2*(j&1)
            A('v_mfma_f32_16x16x16_bf16 v[%d:%d], v[%d:%d], v[8:9], v[%d:%d]'%(32+4*j,35+4*j,Tt,Tt+1,32+4*j,35+4*j))
    SC=[8,9,10,11,12,13,20,21,22,23,25,26,27,28,29][:NK]
    RV=RB+5*32; TV=RV+4
    def need(n):
        rem=tr['issued']-n
        assert rem>=0
        if rem<TH: A('s_waitcnt vmcnt(%d)'%rem)
    def spread(chunks,nl):
        m=len(chunks)
        for i,c in enumerate(chunks):
            if not cfg.nocomp: A(c)
            for _ in range((nl*(i+1))//m-(nl*i)//m): sload()
    def kgroup(G):
        B=RB+slot_of[G]*32
        ch=['\n'.join('v_mfma_f32_16x16x32_bf16 v[%d:%d], v[%d:%d], v[4:7], 0'%(32+4*i,35+4*i,B+4*i,B+4*i+3) for i in range(8))+'\ns_nop 1']
        for be in range(4):
            c=[]
            for step in range(3):
                for e in range(2):
                    D=32+4*(2*be+e); S=18+e
                    c.append('v_add_f32_dpp v%d, v%d, v%d row_ror:%d row_mask:0xf bank_mask:0x%x'%(S,D+((be+step+1)&3),(D+be) if step==0 else S,12-4*step,1<<be))
                c.append('s_nop 0')
            ch.append('\n'.join(c))
        ch[-1]+='\nv_cvt_pk_bf16_f32 v15, 0, v18\nv_cvt_pk_bf16_f32 v16, 0, v19\nv_mul_f32 v15, s58, v15\nv_mul_f32 v16, s58, v16'
        ch[-1]+='\nv_cvt_pk_bf16_f32 v%d, v15, v16\nv_cvt_pk_bf16_f32 v15, 0, v15\nv_cvt_pk_bf16_f32 v16, 0, v16\nv_max3_f32 v14, v14, v15, v16'%SC[G]
        return ch
    def wred(op,r):
        return ('s_nop 1\n%s_dpp v%d, v%d, v%d row_ror:4 row_mask:0xf bank_mask:0xf\ns_nop 1\n%s_dpp v%d, v%d, v%d row_ror:8 row_mask:0xf bank_mask:0xf\n'%(op,r,r,r,op,r,r,r)+
                'v_mov_b32 v31, v%d\ns_nop 1\nv_permlane16_swap_b32 v%d, v31\n%s v%d, v%d, v31\n'%(r,r,op,r,r)+
                'v_mov_b32 v31, v%d\ns_nop 1\nv_permlane32_swap_b32 v%d, v31\n%s v%d, v%d, v31'%(r,r,op,r,r))
    def softmax():
        ch=[wred('v_max_f32',14)+'\nv_mul_f32 v17, s59, v14\nv_mov_b32 v24, 0']
        for g in range(NK):
            ch.append('v_lshlrev_b32 v18, 16, v%d\nv_and_b32 v19, s60, v%d\nv_sub_f32 v18, v18, v14\nv_sub_f32 v19, v19, v14\nv_mul_f32 v18, s59, v18\nv_mul_f32 v19, s59, v19\n'%(SC[g],SC[g])+
                      'v_exp_f32 v18, v18\nv_exp_f32 v19, v19\ns_nop 0\nv_cvt_pk_bf16_f32 v%d, v18, v19\nv_add_f32 v24, v24, v18\nv_add_f32 v24, v24, v19'%SC[g])
        ch.append(wred('v_add_f32',24))
        return ch
    def vgroup(G):
        B=RB+slot_of[G]*32; P=SC[G-NK]
        def perms(j):
            Tt=TV+4*(j&1)
            return '\n'.join('v_perm_b32 v%d, v%d, v%d, s%d'%(Tt+ii,B+4*(2*ii+1)+(j>>1),B+4*(2*ii)+(j>>1),56+(j&1)) for ii in range(4))
        c0='v_mov_b32 v%d, v%d\n'%(RV,P)+'\n'.join('v_mov_b32_dpp v%d, v%d row_ror:%d row_mask:0xf bank_mask:0xf'%(RV+r,P,16-4*r) for r in range(1,4))+'\n'+perms(0)
        ch=[c0]
        for j in range(8):
            Tt=TV+4*(j&1); acc='v[%d:%d]'%(32+4*j,35+4*j)
            ch.append((perms(j+1) if j<7 else 's_nop 1')+'\nv_mfma_f32_16x16x32_bf16 %s, v[%d:%d], v[%d:%d], %s'%(acc,Tt,Tt+3,RV,RV+3,'0' if G==NK else acc))
        return ch
    def request():
        if not cfg.chunk:
            A('s_mov_b32 s63, 1\ns_atomic_add s63, s[66:67], 0x0 glc'); return
        la=newlab('ra'); lb=newlab('rb')
        A('s_cmp_eq_u32 s69, 0\ns_cbranch_scc1 %s'%la)
        A('s_mov_b32 s69, 0\ns_sub_u32 s63, s62, %d\ns_branch %s'%(NS*16,lb))
        A('%s:'%la)
        A('s_cmp_lt_u32 s62, %d\ns_cselect_b32 s69, 1, 0\ns_add_u32 s63, s69, 1\ns_atomic_add s63, s[66:67], 0x0 glc'%(512-cfg.chunk))
        A('%s:'%lb)
    for G in range(9):
        need(8*G+8)
        spread(kgroup(G),[4,4,4,4,4,4,3,2,3][G])
    assert tr['issued']==80
    stamp(3)
    for G in range(9,NS):
        if G==NS-2:
            A('v_mov_b32 v31, 0\nL_cw:\nds_read_b32 v15, v31 offset:%d\ns_waitcnt lgkmcnt(0)\nv_readfirstlane_b32 s54, v15\ns_cmp_eq_u32 s54, 0\ns_cbranch_scc1 L_cw'%(L_CNT+8))
            stamp(4)
            A('s_mov_b32 s63, %d\ns_atomic_add s63, s[66:67], 0x0 glc\ns_mov_b32 s69, %d'%((2,1) if cfg.chunk else (1,0)))
        if G==NS-1:
            A('s_waitcnt lgkmcnt(0)\ns_add_u32 s62, s63, %d'%(NS*16+1))
            A('s_cmp_ge_u32 s62, 512\ns_cbranch_scc1 L_nrq'); request(); A('L_nrq:')
        lead=min(TH,8)
        if G==NK: spread(softmax(),lead)
        else:
            for _ in range(lead): sload()
        need(8*G+8)
        ch=kgroup(G) if G<NK else vgroup(G)
        spread(ch[:-1],8-lead); spread(ch[-1:],0)
    A('s_cmp_ge_u32 s62, 512\ns_cbranch_scc1 L_sdone')
    A('v_mov_b32 v28, 0x3f803f80\nv_mov_b32 v29, 0x3f803f80\nv_mov_b32 v25, 0\nv_mov_b32 v26, 0\nv_mov_b32 v27, 0')
    A('s_waitcnt lgkmcnt(0)\ns_add_u32 s62, s63, %d'%(NS*16+1))
    A('s_mov_b32 s64, %d'%(NS+1))
    def body(c,th):
        if cfg.upfront:
            for j in range(8): load(1-c,j,th=th,throttle=(8+j>=th))
            if th>12: A('s_waitcnt vmcnt(12)')
            kpart(c,[])
            A('s_waitcnt vmcnt(8)')
            vpart(c)
            return
        for j in range(4): load(1-c,j,th=th)
        if th>8: A('s_waitcnt vmcnt(8)')
        kpart(c,[(lambda j=j: load(1-c,j,th=th)) for j in range(4,8)])
        if th>8: A('s_waitcnt vmcnt(8)')
        vpart(c)
    A('L_dyn:')
    for c in (slot_of[NS],1-slot_of[NS]):
        ls=newlab('st'); lc=newlab('sc')
        if cfg.diag: A('s_add_u32 s64, s64, 1')
        A('s_cmp_ge_u32 s62, 512\ns_cbranch_scc1 %s'%ls)
        request()
        A('%s:'%ls)
        body(c,cfg.T2 or cfg.T)
        A('s_cmp_ge_u32 s62, 512\ns_cbranch_scc1 L_sdone')
        A('s_waitcnt lgkmcnt(0)')
        A('s_add_u32 s62, s63, %d'%(NS*16+1))
    A('s_branch L_dyn')
    A('L_sdone:')
    A('s_mov_b32 exec_lo, 0x000f000f\ns_mov_b32 exec_hi, 0x000f000f')
    stamp(5)
    A('s_lshl_b32 s55, s52, 2\nv_and_b32 v31, 0x30, v1\nv_lshl_add_u32 v31, v31, 1, s55')
    for j in range(8):
        A('ds_write_b128 v0, v[%d:%d] offset:%d'%(32+4*j,35+4*j,L_OW+64*j))
    A('ds_write2_b32 v31, v17, v24 offset0:%d offset1:%d'%(L_MLW//4,L_MLW//4+4))
    if cfg.diag:
        A('s_mov_b64 exec, -1')
        A('s_cmp_lg_u32 s52, 0\ns_cbranch_scc1 L_nost')
        pack_stamps(11 if cfg.sdiag else 8,8)
        A('v_writelane_b32 v8, s64, 8')
        A('ds_write_b32 v3, v8 offset:%d'%L_ST)
        A('L_nost:')
    A('s_waitcnt lgkmcnt(0)')
    A('s_barrier')
    A('s_endpgm')

    A('L_service:')
    if cfg.bare:
        A('s_sub_u32 s53, s52, 4\nv_mov_b32 v11, 0\nv_mov_b32 v12, 1\nv_mov_b32 v40, -1\nv_mov_b32 v41, -1\nv_mov_b32 v42, -1\nv_mov_b32 v43, -1\ns_waitcnt lgkmcnt(0)')
        if cfg.bare&2:
            A('s_lshl_b32 s54, s2, 2\ns_add_u32 s54, s54, s53\ns_mul_i32 s54, s54, 640\ns_add_u32 s54, s54, %d\nv_add_u32 v6, s54, v1\ns_mov_b32 exec_hi, 0xff\nglobal_store_dwordx4 v6, v[40:43], %s sc1\ns_mov_b64 exec, -1'%(CLR+0x100000,WS))
        if cfg.bare&4:
            A('global_load_dwordx4 v[32:35], v1, %s'%X)
        if cfg.bare&8:
            A('v_mov_b32 v6, s2\ns_mov_b64 exec, 1\nglobal_store_byte v6, v12, %s sc1\ns_mov_b64 exec, -1'%DBG)
        A('ds_write_b32 v11, v12 offset:%d\ns_waitcnt lgkmcnt(0)\ns_barrier\ns_barrier'%(L_CNT+8))
        if cfg.bare&16:
            A('v_lshlrev_b32 v7, 2, v0\nglobal_load_dword v13, v7, %s sc1'%DBG)
        A('s_barrier\ns_endpgm')
    A('s_setprio 3')
    A('s_sub_u32 s53, s52, 4')
    A('s_lshl_b32 s66, s53, 12')
    A('s_mov_b32 s3, %d'%FLG)
    A('s_lshr_b32 s68, s49, 3\ns_and_b32 s69, s49, 7')
    A('v_lshrrev_b32 v2, 5, v0\ns_lshl_b32 s54, s53, 1\nv_add_u32 v2, s54, v2')
    A('v_and_b32 v3, 31, v0\nv_lshlrev_b32 v3, 4, v3')
    A('v_lshl_add_u32 v4, v2, 10, v3')
    A('s_lshl_b32 s54, s68, 7\ns_lshl_b32 s55, s53, 5\ns_add_u32 s54, s54, s55')
    A('v_lshrrev_b32 v6, 3, v0\nv_add_u32 v6, s54, v6\nv_lshlrev_b32 v6, 13, v6')
    A('v_and_b32 v7, 7, v0\nv_lshl_add_u32 v6, v7, 4, v6')
    A('s_lshl_b32 s54, s48, 10\ns_lshl_b32 s55, s69, 7\ns_add_u32 s54, s54, s55\nv_add_u32 v6, s54, v6')
    A('s_lshl_b32 s54, s48, 2\ns_add_u32 s54, s54, s68\ns_lshl_b32 s54, s54, 11\ns_lshl_b32 s55, s69, 8\ns_add_u32 s54, s54, s55\ns_lshl_b32 s55, s53, 6\ns_add_u32 s54, s54, s55')
    A('v_lshlrev_b32 v14, 16, v7\nv_and_b32 v15, 0x30, v0\nv_add3_u32 v14, v14, v15, s54')
    A('v_mov_b32 v40, -1\nv_mov_b32 v41, -1\nv_mov_b32 v42, -1\nv_mov_b32 v43, -1')
    A('s_add_u32 m0, s66, %d'%L_WA)
    A('v_lshrrev_b32 v44, 1, v0\nv_lshlrev_b32 v44, 9, v44\nv_and_b32 v45, 16, v1\nv_add3_u32 v79, v44, v45, %s'%'s3')
    A('v_mov_b32 v44, 0\nv_mov_b32 v45, 0\nv_mov_b32 v46, 0\nv_mov_b32 v47, 0\nv_mov_b32 v11, 0\nv_mov_b32 v12, 1')
    A('s_lshl_b32 s12, s2, 2\ns_add_u32 s12, s12, s53')
    A('s_waitcnt lgkmcnt(0)')
    A('s_cmp_lg_u32 s12, 3\ns_cbranch_scc1 L_nolead')
    A('global_store_dwordx4 v79, v[44:47], %s sc1\nglobal_store_dwordx4 v79, v[44:47], %s offset:256 sc1'%(WS,WS))
    A('L_nolead:')
    A('global_load_dwordx4 v[32:35], v4, %s'%X)
    A('global_load_dwordx4 v[36:39], v4, %s offset:512'%X)
    if cfg.nowq: A('s_mov_b64 exec, 1')
    for i in range(4):
        if i: A('s_add_u32 m0, s66, %d\nv_add_u32 v6, 0x10000, v6'%(L_WA+i*1024))
        A('global_load_lds_dwordx4 v6, %s %s'%(WQ,cfg.wf))
    A('s_mov_b32 exec_lo, 0x00ff00ff\ns_mov_b32 exec_hi, 0x00ff00ff')
    if cfg.noqst: A('s_mov_b64 exec, 1')
    A('global_store_dwordx4 v14, v[40:43], %s sc1'%WS)
    A('s_mov_b64 exec, -1')
    if cfg.svcfirst==1: A('s_barrier')
    A('s_lshl_b32 s54, s2, 2\ns_add_u32 s54, s54, s53\ns_mul_i32 s54, s54, 1792\ns_add_u32 s54, s54, %d'%CLR)
    A('v_add_u32 v6, s54, v1')
    A('global_store_dwordx4 v6, v[40:43], %s sc1'%WS)
    A('s_mov_b32 exec_hi, 0xffff')
    A('global_store_dwordx4 v6, v[40:43], %s offset:1024 sc1'%WS)
    A('s_and_b32 s54, s49, 3\ns_lshl_b32 s9, s54, 16\ns_lshr_b32 s54, s49, 2\ns_lshl_b32 s54, s54, 10\ns_add_u32 s9, s9, s54\ns_lshl_b32 s54, s48, 7\ns_add_u32 s9, s9, s54\ns_add_u32 s9, s9, %d'%PRB)
    A('s_lshl_b32 s54, s53, 14\ns_add_u32 s54, s54, s9\nv_bfe_u32 v6, v0, 3, 1\nv_lshlrev_b32 v6, 13, v6\nv_and_b32 v13, 0x70, v1\nv_add3_u32 v6, v6, v13, s54')
    A('s_mov_b64 exec, 0xffff')
    A('s_cmp_ge_u32 s49, 8\ns_cbranch_scc1 L_nopl\ns_cmp_ge_u32 s53, %d\ns_cbranch_scc1 L_nopl'%cfg.NP)
    A('global_store_dwordx4 v6, v[40:43], %s sc1'%WS)
    A('L_nopl:')
    A('s_mov_b64 exec, -1')
    if cfg.svcfirst==2: A('s_barrier')
    A('v_mul_u32_u24 v5, %d, v2\nv_add_u32 v5, v5, v3'%XNS)
    A('v_lshrrev_b32 v8, 4, v0\nv_lshlrev_b32 v8, 10, v8\nv_bfe_u32 v9, v0, 2, 2\nv_lshl_add_u32 v8, v9, 7, v8\nv_and_b32 v9, 3, v0\nv_lshl_add_u32 v8, v9, 3, v8')
    A('s_lshl_b32 s54, s53, 5\nv_add_u32 v8, s54, v8')
    A('v_mul_u32_u24 v9, %d, v7\nv_add_u32 v9, v9, v15\ns_lshl_b32 s54, s68, 8\nv_add_u32 v10, s54, v9'%XNS)
    A('s_lshl_b32 s54, s53, 8\nv_mov_b32 v31, s54')

    def dppadd(r,ctl):
        A('s_nop 1\nv_add_f32_dpp v%d, v%d, v%d %s row_mask:0xf bank_mask:0xf'%(r,r,r,ctl))
    def swapadd(r,t,w):
        A('v_mov_b32 v%d, v%d\ns_nop 1\nv_permlane%d_swap_b32 v%d, v%d\nv_add_f32 v%d, v%d, v%d'%(t,r,w,r,t,r,r,t))
    def rbf(r):
        A('v_cvt_pk_bf16_f32 v%d, 0, v%d'%(r,r))
    def layernorm(mode):
        if mode=='x':
            for i in range(8):
                A('v_lshlrev_b32 v%d, 16, v%d\nv_and_b32 v%d, s60, v%d'%(48+2*i,32+i,49+2*i,32+i))
        Q=lambda i:'v[%d:%d]'%(48+2*i,49+2*i)
        P=Q if mode=='x' else (lambda i:'v[%d:%d]'%(216+2*i,217+2*i))
        A('v_pk_add_f32 v[64:65], %s, %s\nv_pk_mul_f32 v[66:67], %s, %s'%(P(0),P(1),P(0),P(0)))
        A('v_pk_add_f32 v[68:69], %s, %s\nv_pk_mul_f32 v[70:71], %s, %s'%(P(2),P(3),P(1),P(1)))
        for i in range(2,8,2):
            if i>2: A('v_pk_add_f32 v[64:65], v[64:65], %s'%P(i))
            A('v_pk_fma_f32 v[66:67], %s, %s, v[66:67]'%(P(i),P(i)))
            if i>2: A('v_pk_add_f32 v[68:69], v[68:69], %s'%P(i+1))
            A('v_pk_fma_f32 v[70:71], %s, %s, v[70:71]'%(P(i+1),P(i+1)))
        A('v_pk_add_f32 v[64:65], v[64:65], v[68:69]\nv_pk_add_f32 v[66:67], v[66:67], v[70:71]')
        A('v_add_f32 v64, v64, v65\nv_add_f32 v66, v66, v67')
        ctl=['row_ror:1','row_ror:2','row_ror:4','row_ror:8'] if mode=='x' else ['quad_perm:[1,0,3,2]','quad_perm:[2,3,0,1]','row_ror:8']
        for c in ctl:
            A('s_nop 0')
            for r in (64,66): A('v_add_f32_dpp v%d, v%d, v%d %s row_mask:0xf bank_mask:0xf'%(r,r,r,c))
        for w in ((16,) if mode=='x' else (16,32)):
            A('v_mov_b32 v65, v64\nv_mov_b32 v67, v66\ns_nop 0')
            A('v_permlane%d_swap_b32 v64, v65\nv_permlane%d_swap_b32 v66, v67'%(w,w))
            A('v_add_f32 v64, v64, v65\nv_add_f32 v66, v66, v67')
        A('v_mul_f32 v64, 0xbb000000, v64\nv_mul_f32 v66, 0x3b000000, v66')
        A('v_cvt_pk_bf16_f32 v68, 0, v64')
        chain=['v_fma_f32 v66, -v64, v64, v66','v_max_f32 v66, 0, v66','v_cvt_pk_bf16_f32 v66, 0, v66','v_add_f32 v66, 0x3727c5ac, v66',
               'v_cvt_pk_bf16_f32 v66, 0, v66','v_sqrt_f32 v66, v66','v_cvt_pk_bf16_f32 v66, 0, v66','v_rcp_f32 v66, v66']
        for i in range(8):
            A(chain[i])
            A('v_pk_add_f32 %s, %s, v[68:69] op_sel_hi:[1,0]'%(Q(i),P(i)))
        for i in range(16): A('v_cvt_pk_bf16_f32 v%d, 0, v%d'%(48+i,48+i))
        nw=2 if mode=='h' else 4
        for i in range(8):
            A('v_pk_mul_f32 %s, %s, v[66:67] op_sel_hi:[1,0]'%(Q(i),Q(i)))
        for i in range(8):
            A('v_cvt_pk_bf16_f32 v%d, v%d, v%d'%(32+i,48+2*i,49+2*i))
            if mode=='h' and i%2==1: A('ds_write_b64 v5, v[%d:%d] offset:%d'%(31+i,32+i,L_XN+256*(i//2)))
            if mode=='x' and i%4==3: A('ds_write_b128 v5, v[%d:%d] offset:%d'%(29+i,32+i,L_XN+512*(i//4)))
    def lds_sync(cnt,sleep=0):
        l=newlab('ls')
        A('s_waitcnt lgkmcnt(0)')
        A('s_mov_b64 exec, 1\nds_add_u32 v11, v12 offset:%d\ns_mov_b64 exec, -1'%(L_CNT+4*cnt))
        lds_wait(11,L_CNT+4*cnt,4,sleep)
    def lds_wait(va,off,val,sleep):
        l=newlab('lw'); d=newlab('ld')
        A('%s:'%l)
        A('ds_read_b32 v13, v%d offset:%d\ns_waitcnt lgkmcnt(0)\nv_readfirstlane_b32 s54, v13\ns_cmp_ge_u32 s54, %s'%(va,off,val))
        if sleep: A('s_cbranch_scc1 %s\ns_sleep %d\ns_branch %s\n%s:'%(d,sleep,l,d))
        else: A('s_cbranch_scc0 %s'%l)
    def progress(p): lds_wait(31,L_PR,p,6)
    def poll(loads,regs,sleep=0,guard=False):
        l=newlab('pl'); d=newlab('pd')
        if guard: sleep=cfg.tsleep
        A('s_mov_b32 s61, %d'%cfg.spin)
        A('%s:'%l)
        for x in loads: A(x)
        import re as _re
        first=True; pend=[]
        for i,x in enumerate(loads):
            m=_re.search(r'v\[(\d+):(\d+)\]',x)
            pend+=list(range(int(m.group(1)),int(m.group(2))+1))
            last=(i==len(loads)-1)
            if len(pend)<4 and not last: continue
            A('s_waitcnt vmcnt(%d)'%(len(loads)-1-i))
            while pend:
                if first:
                    if len(pend)>=3: A('v_max3_u32 v13, v%d, v%d, v%d'%tuple(pend[:3])); pend=pend[3:]
                    else: A('v_max_u32 v13, v%d, v%d'%tuple(pend[:2])); pend=pend[2:]
                    first=False
                elif len(pend)>=2: A('v_max3_u32 v13, v13, v%d, v%d'%tuple(pend[:2])); pend=pend[2:]
                elif last: A('v_max_u32 v13, v13, v%d'%pend[0]); pend=[]
                else: break
        A('v_cmp_eq_u32 vcc, -1, v13')
        A('s_cbranch_vccz %s'%d)
        if sleep: A('s_sleep %d'%sleep)
        A('s_sub_u32 s61, s61, 1\ns_cmp_lg_u32 s61, 0\ns_cbranch_scc1 %s'%l)
        A('%s:'%d)
    def apoll(loads,par):
        import re as _re
        mode,D,sleep=par
        l=newlab('al'); d=newlab('ad'); gl=newlab('ag')
        rg=[]
        for x in loads:
            m=_re.search(r'v\[(\d+):(\d+)\]',x); rg.append(list(range(int(m.group(1)),int(m.group(2))+1)))
        def chain(t,r):
            r=list(r)
            if len(r)==2: A('v_max_u32 v%d, v%d, v%d'%(t,r[0],r[1])); return
            A('v_max3_u32 v%d, v%d, v%d, v%d'%(t,r[0],r[1],r[2])); r=r[3:]
            while r:
                if len(r)==1: A('v_max_u32 v%d, v%d, v%d'%(t,t,r[0])); r=[]
                else: A('v_max3_u32 v%d, v%d, v%d, v%d'%(t,t,r[0],r[1])); r=r[2:]
        n=len(loads)
        A('s_mov_b32 s61, %d'%cfg.spin)
        if mode in 'cm':
            A('%s:'%l)
            for x in loads: A(x)
            if sleep: A('s_sleep %d'%sleep)
            A('s_waitcnt vmcnt(%d)'%min(63,n*(D-1)))
            chain(13,sum(rg,[]))
            A('v_cmp_eq_u32 vcc, -1, v13')
            A('s_cbranch_vccz %s'%d)
            if mode=='m': A('s_mov_b64 exec, vcc')
            A('s_sub_u32 s61, s61, 1\ns_cmp_lg_u32 s61, 0\ns_cbranch_scc1 %s'%l)
            A('%s:'%d)
            if mode=='m': A('s_mov_b64 exec, s[4:5]')
        else:
            mk=['s[6:7]','s[8:9]','s[10:11]','s[40:41]','s[42:43]','s[44:45]','s[46:47]','s[62:63]'][:n]
            for m_ in mk: A('s_mov_b64 %s, s[4:5]'%m_)
            A('%s:'%l)
            for x,m_ in zip(loads,mk):
                sk=newlab('as')
                A('s_mov_b64 exec, %s\ns_cbranch_execz %s'%(m_,sk)); A(x); A('%s:'%sk)
            A('s_mov_b64 exec, s[4:5]')
            if sleep: A('s_sleep %d'%sleep)
            A('s_waitcnt vmcnt(%d)'%min(63,n*(D-1)))
            for i in range(n): chain(246+i,rg[i])
            chain(13,[246+i for i in range(n)])
            A('v_cmp_eq_u32 vcc, -1, v13')
            A('s_cbranch_vccz %s'%d)
            for i in range(n): A('v_cmp_eq_u32 %s, -1, v%d'%(mk[i],246+i))
            A('s_sub_u32 s61, s61, 1\ns_cmp_lg_u32 s61, 0\ns_cbranch_scc1 %s'%l)
            A('%s:'%d)
    def flagpoll(voff,execmask):
        l=newlab('fl'); d=newlab('fd')
        A('s_mov_b32 s61, %d'%cfg.spin)
        A('s_mov_b64 exec, %s'%execmask)
        A('%s:'%l)
        A('global_load_dwordx4 v[72:75], v%d, %s sc1\ns_waitcnt vmcnt(0)'%(voff,WS))
        A('v_min3_u32 v13, v72, v73, v74\nv_min_u32 v13, v13, v75\nv_cmp_eq_u32 vcc, 0, v13\ns_cbranch_vccz %s'%d)
        A('s_sleep 16')
        A('s_sub_u32 s61, s61, 1\ns_cmp_lg_u32 s61, 0\ns_cbranch_scc1 %s'%l)
        A('%s:'%d)
        A('s_mov_b64 exec, -1')
    def CLASS():
        A('s_cmp_lg_u32 s53, 0\ns_cbranch_scc1 L_nofc')
        progress(cfg.pw0)
        flagpoll(79,'-1')
        A('ds_write_b128 v1, v[72:75] offset:%d'%L_DP)
        A('v_add_u32 v7, 256, v79\ns_mov_b32 s6, 0x03030303\ns_mov_b32 s7, s6\ns_waitcnt lgkmcnt(0)')
        flagpoll(7,'s[6:7]')
        A('s_and_b32 s54, s48, 3\ns_lshl_b32 s54, s54, 7\ns_lshl_b32 s55, s49, 2\ns_add_u32 s54, s54, s55\nv_mov_b32 v7, s54')
        A('s_mov_b32 s6, 0')
        for r in range(72,76):
            A('v_and_b32 v13, 2, v%d\nv_cmp_ne_u32 vcc, 0, v13\ns_nop 1\ns_bcnt1_i32_b64 s7, vcc\ns_add_u32 s6, s6, s7'%r)
        A('s_waitcnt lgkmcnt(0)\nds_read_b32 v13, v7 offset:%d\ns_waitcnt lgkmcnt(0)\nv_readfirstlane_b32 s7, v13'%L_DP)
        if cfg.diag: A('s_mov_b32 s9, s6')
        A('s_cmp_ge_u32 s6, 32\ns_cselect_b32 s6, 1, 0')
        if cfg.par is not None: A('s_mov_b32 s6, %d'%cfg.par)
        A('s_xor_b32 s7, s7, s48\ns_bfe_u32 s7, s7, 0x10002\ns_xor_b32 s7, s7, s6\ns_lshl_b32 s7, s7, 2\ns_lshl_b32 s6, s6, 1\ns_or_b32 s6, s6, s7\ns_or_b32 s6, s6, 1')
        A('v_mov_b32 v13, s6\nds_write_b32 v11, v13 offset:%d'%(L_CNT+8))
        if cfg.diag: A('s_cmp_lg_u32 s2, 0\ns_cbranch_scc1 L_nofc\nv_mov_b32 v13, s9\nv_mov_b32 v7, 8\nglobal_store_dword v7, v13, %s'%DBG)
        A('L_nofc:')
        lds_wait(11,L_CNT+8,1,6)
        A('s_bfe_u32 s11, s54, 0x10002\ns_bfe_u32 s54, s54, 0x10001\ns_xor_b32 s10, s10, s54')
    def tr128(dst,base):
        for s_ in range(4):
            A('ds_read_b64_tr_b16 v[%d:%d], v8 offset:%d'%(dst+4*s_,dst+4*s_+1,base+4096*s_))
            A('ds_read_b64_tr_b16 v[%d:%d], v8 offset:%d'%(dst+4*s_+2,dst+4*s_+3,base+4096*s_+512))

    A('s_waitcnt vmcnt(7)')
    A('s_cmp_lg_u32 s12, 3\ns_cbranch_scc1 L_nogo')
    A('s_waitcnt vmcnt(0)')
    A('s_mov_b64 exec, 1\nglobal_store_dword v11, v12, %s sc1\ns_mov_b64 exec, -1'%DBG)
    A('L_nogo:')
    stamp(1)
    layernorm('x')
    A('s_waitcnt vmcnt(0)')
    lds_sync(0)
    stamp(2)
    tr128(80,L_WA)
    for s_ in range(4):
        A('ds_read_b128 v[%d:%d], v10 offset:%d'%(32+4*s_,35+4*s_,L_XN+64*s_))
    A('s_waitcnt lgkmcnt(0)')
    for s_ in range(4):
        A('v_mfma_f32_16x16x32_bf16 v[48:51], v[%d:%d], v[%d:%d], %s'%(80+4*s_,83+4*s_,32+4*s_,35+4*s_,'0' if s_==0 else 'v[48:51]'))
    A('s_nop 7')
    for r in range(4): A('v_min_u32 v%d, -2, v%d'%(48+r,48+r))
    A('s_mov_b32 exec_lo, 0x00ff00ff\ns_mov_b32 exec_hi, 0x00ff00ff')
    if cfg.noqst: A('s_mov_b64 exec, 1')
    A('global_store_dwordx4 v14, v[48:51], %s sc1'%WS)
    A('s_mov_b64 exec, -1')
    stamp(3)
    A('s_lshl_b32 s54, s48, 2\ns_add_u32 s54, s54, s68\ns_lshl_b32 s54, s54, 9\ns_lshl_b32 s55, s69, 2\ns_add_u32 s54, s54, s55\ns_add_u32 s54, s54, s3\nv_mov_b32 v6, s54')
    A('s_getreg_b32 s10, hwreg(HW_REG_XCC_ID)\ns_bfe_u32 s10, s10, 0x10002')
    A('s_cmp_lg_u32 s53, 3\ns_cbranch_scc1 L_noflag')
    A('s_mov_b32 s61, %d\ns_mov_b64 exec, 1\nL_go:\nglobal_load_dword v13, v11, %s sc1\ns_waitcnt vmcnt(0)\nv_cmp_eq_u32 vcc, 0, v13\ns_cbranch_vccz L_god'%(cfg.spin,DBG))
    A('s_sleep 8\ns_sub_u32 s61, s61, 1\ns_cmp_lg_u32 s61, 0\ns_cbranch_scc1 L_go\nL_god:')
    A('s_lshl_b32 s54, s10, 2\ns_or_b32 s54, s54, 1\nv_mov_b32 v7, s54\nglobal_store_dword v6, v7, %s sc1'%WS)
    A('L_noflag:')
    A('s_mov_b64 exec, 1\nds_add_u32 v11, v12 offset:%d\ns_mov_b64 exec, -1'%(L_CNT+12))
    A('s_cmp_eq_u32 s53, 0\ns_cbranch_scc1 L_qg\ns_cmp_lg_u32 s53, 1\ns_cbranch_scc1 L_qdone\ns_cmp_ge_u32 s49, 8\ns_cbranch_scc1 L_qdone')
    A('s_mov_b32 s6, 0')
    for i in range(cfg.NP):
        for c in ((0,1) if i%2==0 else (1,0)):
            l=newlab('pb'); d=newlab('pe')
            A('s_add_u32 s7, s9, %d\ns_mov_b32 s8, 0\ns_mov_b32 s61, 0\ns_load_dword s8, %s, s7'%(i*16384+c*8192,WS))
            A('%s:\ns_add_u32 s61, s61, 1\ns_cmp_gt_u32 s61, 0xffff\ns_cbranch_scc1 %s\ns_cmp_eq_u32 s8, 0\ns_cbranch_scc1 %s\n%s:\ns_waitcnt lgkmcnt(0)'%(l,d,l,d))
            if i>0: A('%s s6, s6, s61'%('s_add_i32' if c==0 else 's_sub_i32'))
    A('s_cmp_gt_i32 s6, 0\ns_cselect_b32 s6, 1, 0')
    A('s_xor_b32 s6, s6, s10\ns_lshl_b32 s6, s6, 1\ns_or_b32 s6, s6, 1\nv_mov_b32 v7, s6')
    lds_wait(11,L_CNT+12,4,2)
    A('s_mov_b64 exec, 1\nglobal_store_dword v6, v7, %s offset:256 sc1\ns_mov_b64 exec, -1\ns_branch L_qdone'%WS)
    A('L_qg:')
    A('v_and_b32 v6, 3, v0\nv_lshlrev_b32 v6, 9, v6\nv_lshrrev_b32 v14, 2, v0\nv_lshl_add_u32 v6, v14, 5, v6')
    A('s_lshl_b32 s54, s50, 13\ns_add_u32 s54, s54, %d\nv_add_u32 v6, s54, v6'%(QP+3072))
    A('s_and_b32 s54, s50, 7\ns_lshl_b32 s54, s54, 11\nv_add_u32 v7, s54, v79')
    lds_wait(11,L_CNT+12,4,2)
    progress(cfg.pq)
    flagpoll(7,'0xff')
    stamp(4)
    poll(['global_load_dwordx4 v[%d:%d], v6, %s offset:%d sc1'%(32+8*kq+4*h,35+8*kq+4*h,WS,2048*kq+16*h-3072) for kq in range(4) for h in range(2)],list(range(32,64)),sleep=8)
    for p in range(4):
        A('v_pk_add_f32 v[%d:%d], v[%d:%d], v[%d:%d]'%(32+2*p,33+2*p,32+2*p,33+2*p,40+2*p,41+2*p))
        A('v_pk_add_f32 v[%d:%d], v[%d:%d], v[%d:%d]'%(48+2*p,49+2*p,48+2*p,49+2*p,56+2*p,57+2*p))
    for p in range(4):
        A('v_pk_add_f32 v[%d:%d], v[%d:%d], v[%d:%d]'%(32+2*p,33+2*p,32+2*p,33+2*p,48+2*p,49+2*p))
    for p in range(4):
        A('v_cvt_pk_bf16_f32 v%d, v%d, v%d'%(32+p,32+2*p,33+2*p))
    A('ds_write_b128 v1, v[32:35] offset:%d'%L_QL)
    stamp(5)
    A('s_waitcnt lgkmcnt(0)')
    if cfg.qflag: A('ds_write_b32 v11, v12 offset:%d'%(L_CNT+16))
    A('L_qdone:')
    if cfg.touch:
        A('s_lshl_b32 s54, s50, 21\ns_load_dword s4, %s, s54'%VP)
        A('s_load_dword s6, %s, 0\ns_load_dword s7, %s, 0\ns_load_dword s8, %s, 0'%(WG,WU,WD))
        A('s_lshl_b32 s54, s48, 19\ns_load_dword s9, %s, s54'%WO)
        A('s_waitcnt lgkmcnt(0)')
    A('s_setprio 0')
    if not cfg.qflag: A('s_barrier')

    A('s_mov_b32 s70, 0\ns_and_b32 s54, s49, 0x13\ns_cmp_eq_u32 s54, s51\ns_cselect_b32 s70, 2, s70')
    A('s_cmp_lt_u32 s48, 4\ns_cselect_b32 s6, 16, 12\ns_cselect_b32 s7, 8, 6\ns_cselect_b32 s8, 0, 8\ns_mul_i32 s14, s48, s7\ns_add_u32 s14, s14, s8')
    if cfg.helper: A('s_and_b32 s54, s49, 0x13\ns_xor_b32 s54, s54, 2\ns_cmp_eq_u32 s54, s51\ns_cselect_b32 s9, s49, 99\ns_cmp_lt_u32 s9, s6\ns_cselect_b32 s70, 4, s70')
    A('s_sub_u32 s54, s49, 16\ns_cmp_lt_u32 s54, s6\ns_cselect_b32 s70, 1, s70')
    A('s_xor_b32 s55, s2, s49\ns_and_b32 s55, s55, 1\ns_cselect_b32 s70, 3, s70')
    A('s_bfe_u32 s54, s49, 0x30001\ns_add_u32 s14, s14, s54')
    A('s_lshr_b32 s15, s49, 2\ns_add_u32 s54, s48, %d\ns_and_b32 s54, s54, 7\ns_lshl_b32 s54, s54, 2\ns_add_u32 s15, s15, s54'%cfg.crot)
    CLASS()
    A('s_lshr_b32 s13, s2, 1\ns_andn2_b32 s13, s13, 2\ns_lshl_b32 s54, s11, 1\ns_or_b32 s13, s13, s54')
    A('s_and_b32 s54, s48, 3\ns_lshl_b32 s54, s54, 2\ns_add_u32 s67, s54, s68\ns_lshl_b32 s54, s11, 4\ns_add_u32 s67, s67, s54')
    A('s_bfe_u32 s69, s49, 0x20001')
    A('v_and_b32 v6, 3, v0\nv_lshlrev_b32 v6, 2, v6\nv_lshrrev_b32 v7, 4, v0\nv_add_u32 v6, v6, v7')
    A('v_bfe_u32 v7, v0, 2, 1')
    A('v_lshrrev_b32 v24, 4, v0\nv_lshlrev_b32 v24, 15, v24\nv_bfe_u32 v13, v0, 3, 1\nv_lshl_add_u32 v24, v13, 13, v24\nv_and_b32 v13, 0x70, v1\nv_add_u32 v24, v24, v13')
    A('s_and_b32 s54, s13, 63\ns_lshl_b32 s54, s54, 7\ns_lshr_b32 s55, s13, 6\ns_lshl_b32 s55, s55, 14\ns_add_u32 s54, s54, s55\ns_add_u32 s54, s54, %d\nv_add_u32 v24, s54, v24\ns_mov_b32 s55, s13'%HB)
    A('v_lshlrev_b32 v6, 1, v6\nv_lshl_add_u32 v6, v7, 10, v6\ns_lshr_b32 s54, s55, 5\ns_lshl_b32 s54, s54, 11\ns_and_b32 s55, s55, 31\ns_lshl_b32 s55, s55, 5\ns_add_u32 s54, s54, s55\nv_add_u32 v6, s54, v6')
    A('global_load_ushort v16, v6, %s'%X)
    def paced(k,n,line):
        f=lambda k: cfg.pw0+(k*(cfg.pw1-cfg.pw0))//n
        if k==0 or f(k)!=f(k-1): progress(f(k))
        assert f(k)<cfg.NS
        A(line)
    def dma1(k):
        i=k//2
        return ('v_add_u32 v7, %d, v6\n'%(i*16*3584))+'s_add_u32 m0, s71, %d\ns_nop 0\nglobal_load_lds_dwordx4 v7, %s %s'%(L_WA+32768*(k&1)+i*1024,WU if k&1 else WG,cfg.ff)
    def dma2(i):
        return ('v_add_u32 v7, %d, v6\n'%(i*0x8000))+'s_add_u32 m0, s71, %d\ns_nop 0\nglobal_load_lds_dwordx4 v7, %s %s'%(L_WA+i*1024,WD,cfg.ff)
    l1=newlab('w1'); l2=newlab('w2'); le=newlab('we')
    A('s_cmp_eq_u32 s70, 0\ns_cbranch_scc1 %s\ns_cmp_eq_u32 s70, 2\ns_cbranch_scc1 %s\ns_cmp_lg_u32 s70, 3\ns_cbranch_scc1 %s'%(le,l2,l1))
    A('s_lshl_b32 s54, s67, 7\ns_lshl_b32 s55, s53, 1\ns_add_u32 s54, s54, s55\ns_lshl_b32 s54, s54, 10\ns_lshl_b32 s55, s69, 8\ns_add_u32 s54, s54, s55')
    A('v_lshrrev_b32 v6, 4, v0\nv_lshlrev_b32 v6, 13, v6\nv_and_b32 v7, 15, v0\nv_lshl_add_u32 v6, v7, 4, v6\nv_add_u32 v6, s54, v6')
    A('s_lshl_b32 s71, s53, 13')
    def dmaw(i):
        return 'v_add_u32 v7, %d, v6\ns_add_u32 m0, s71, %d\ns_nop 0\nglobal_load_lds_dwordx4 v7, %s %s'%((32*(i&3)+(i>>2))*1024,L_WA+i*1024,WO,cfg.wf)
    for i in range(0 if cfg.noW else cfg.EW): paced(i,cfg.EW,dmaw(i))
    A('s_branch %s'%le)
    A('%s:'%l1)
    A('s_lshl_b32 s54, s14, 6')
    A('s_lshl_b32 s55, s53, 7\nv_lshrrev_b32 v6, 2, v0\nv_add_u32 v6, s55, v6\nv_mul_u32_u24 v6, 3584, v6\nv_and_b32 v7, 3, v0\nv_lshl_add_u32 v6, v7, 4, v6\nv_add_u32 v6, s54, v6')
    A('s_lshl_b32 s71, s53, 13')
    A('s_cmp_eq_u32 s70, 4\ns_cbranch_scc1 %s'%le)
    for k in range(cfg.E1): paced(k,cfg.E1,dma1(k))
    A('s_branch %s'%le)
    A('%s:'%l2)
    A('s_mul_i32 s54, s53, 448\nv_lshrrev_b32 v6, 1, v0\nv_add_u32 v6, s54, v6\nv_lshlrev_b32 v6, 10, v6')
    A('v_and_b32 v7, 1, v0\nv_lshl_add_u32 v6, v7, 4, v6\ns_lshl_b32 s54, s15, 5\nv_add_u32 v6, s54, v6')
    A('s_mul_i32 s71, s53, 14336')
    for k in range(cfg.E2): paced(k,cfg.E2,dma2(k))
    A('%s:'%le)
    A('s_waitcnt vmcnt(0)')
    A('v_lshlrev_b32 v16, 16, v16')
    lds_sync(1,sleep=4)
    stamp(6)
    l1=newlab('r1'); l2=newlab('r2'); le=newlab('re')
    A('v_mov_b32 v26, 0\nv_mov_b32 v27, 0\nv_mov_b32 v28, 0\nv_mov_b32 v29, 0')
    A('s_cmp_eq_u32 s70, 1\ns_cbranch_scc1 %s\ns_cmp_eq_u32 s70, 2\ns_cbranch_scc1 %s'%(l1,l2))
    A('v_lshrrev_b32 v8, 4, v0\nv_lshlrev_b32 v8, 11, v8\nv_bfe_u32 v7, v0, 2, 2\nv_lshl_add_u32 v8, v7, 8, v8\nv_and_b32 v7, 3, v0\nv_lshl_add_u32 v8, v7, 3, v8')
    A('s_lshl_b32 s54, s53, 6\ns_add_u32 s54, s54, %d\nv_add_u32 v8, s54, v8'%L_WA)
    def trw():
        for t in range(2):
            for s_ in range(4):
                r=80+16*t+4*s_
                A('ds_read_b64_tr_b16 v[%d:%d], v8 offset:%d'%(r,r+1,8192*s_+32*t))
                A('ds_read_b64_tr_b16 v[%d:%d], v8 offset:%d'%(r+2,r+3,8192*s_+32*t+1024))
            if t==0 or cfg.EW==8: A('s_waitcnt lgkmcnt(0)')
    if cfg.EW==8: trw()
    A('s_branch %s'%le)
    A('%s:'%l1)
    A('v_lshrrev_b32 v8, 4, v0\nv_lshlrev_b32 v8, 9, v8\nv_bfe_u32 v7, v0, 2, 2\nv_lshl_add_u32 v8, v7, 6, v8')
    A('v_and_b32 v7, 1, v0\nv_lshl_add_u32 v8, v7, 3, v8\nv_bfe_u32 v7, v0, 1, 1\nv_lshl_add_u32 v8, v7, 15, v8\ns_lshl_b32 s54, s53, 4\ns_add_u32 s54, s54, %d\nv_add_u32 v8, s54, v8'%L_WA)
    A('s_mul_i32 s55, s14, 147\ns_lshr_b32 s55, s55, 11\ns_mul_i32 s55, s55, %d'%(16384-7168))
    A('s_lshl_b32 s54, s14, 2\ns_add_u32 s54, s54, s53\ns_lshl_b32 s54, s54, 7\ns_add_u32 s54, s54, s55\ns_add_u32 s54, s54, %d'%AB)
    A('v_and_b32 v27, 0x70, v1\nv_lshrrev_b32 v7, 4, v0\nv_lshl_add_u32 v27, v7, 16, v27\nv_bfe_u32 v7, v0, 3, 1\nv_lshlrev_b32 v7, 13, v7\nv_add3_u32 v27, v27, v7, s54')
    A('s_and_b32 s55, s48, 3\ns_lshl_b32 s55, s55, 15\ns_lshl_b32 s54, s10, 13\ns_add_u32 s54, s54, s55\ns_lshr_b32 s55, s53, 1\ns_lshl_b32 s55, s55, 14\ns_add_u32 s54, s54, s55')
    A('s_and_b32 s55, s53, 1\ns_lshl_b32 s55, s55, 12\ns_add_u32 s54, s54, s55\ns_add_u32 s54, s54, %d\nv_add_u32 v4, s54, v1'%HB)
    A('v_bfe_u32 v5, v0, 2, 1\ns_lshl_b32 s54, s53, 1\nv_add_u32 v5, s54, v5\nv_mul_u32_u24 v5, %d, v5\nv_lshrrev_b32 v7, 3, v0\nv_lshl_add_u32 v5, v7, 5, v5\nv_and_b32 v7, 3, v0\nv_lshl_add_u32 v5, v7, 3, v5'%XNS)
    A('s_branch %s'%le)
    A('%s:'%l2)
    A('v_lshrrev_b32 v8, 4, v0\nv_lshlrev_b32 v8, 9, v8\nv_bfe_u32 v7, v0, 1, 1\nv_lshl_add_u32 v8, v7, 8, v8\nv_bfe_u32 v7, v0, 2, 2\nv_lshl_add_u32 v8, v7, 5, v8')
    A('v_and_b32 v7, 1, v0\nv_lshl_add_u32 v8, v7, 3, v8\ns_add_u32 s55, s71, %d\nv_add_u32 v8, s55, v8'%L_WA)
    A('v_bfe_u32 v26, v0, 2, 1\nv_lshlrev_b32 v26, 10, v26\nv_bfe_u32 v7, v0, 1, 1\nv_lshl_add_u32 v26, v7, 8, v26\nv_lshrrev_b32 v7, 3, v0\nv_lshl_add_u32 v26, v7, 4, v26\nv_and_b32 v7, 1, v0\nv_lshl_add_u32 v26, v7, 3, v26')
    A('s_and_b32 s55, s48, 3\ns_lshl_b32 s55, s55, 16\ns_lshl_b32 s54, s53, 14\ns_add_u32 s54, s54, s55\ns_lshl_b32 s55, s10, 13\ns_add_u32 s54, s54, s55\ns_add_u32 s54, s54, %d\nv_add_u32 v27, s54, v1'%(AB+3072))
    A('s_mov_b32 s54, s15\ns_lshl_b32 s55, s54, 5')
    A('v_lshrrev_b32 v28, 3, v0\nv_lshlrev_b32 v28, 10, v28\nv_and_b32 v7, 7, v0\nv_lshl_add_u32 v28, v7, 2, v28\nv_add_u32 v28, s55, v28')
    A('s_lshl_b32 s54, s54, 7\ns_and_b32 s55, s48, 3\ns_lshl_b32 s55, s55, 15\ns_add_u32 s54, s54, s55\ns_lshl_b32 s55, s10, 13\ns_add_u32 s54, s54, s55\ns_add_u32 s54, s54, %d'%HB)
    A('v_bfe_u32 v29, v0, 4, 1\nv_lshlrev_b32 v29, 12, v29\nv_lshrrev_b32 v7, 5, v0\nv_lshl_add_u32 v29, v7, 14, v29\nv_and_b32 v7, 15, v0\nv_lshl_add_u32 v29, v7, 3, v29\nv_add_u32 v29, s54, v29')
    A('s_lshl_b32 s54, s53, 11\nv_add_u32 v10, s54, v1')
    A('%s:'%le)
    A('s_lshl_b32 s54, s53, 9\nv_add_u32 v17, s54, v3')
    A('s_and_b32 s54, s50, 3\ns_lshl_b32 s54, s54, 2\ns_add_u32 s54, s54, s53\ns_mul_i32 s54, s54, 49152\ns_bfe_u32 s55, s50, 0x10002\ns_lshl_b32 s55, s55, 13\ns_add_u32 s54, s54, s55')
    A('s_lshr_b32 s6, s50, 3\ns_mul_i32 s7, s6, 11\ns_lshr_b32 s7, s7, 5\ns_mul_i32 s7, s7, %d\ns_lshl_b32 s6, s6, 2\ns_add_u32 s6, s6, s51\ns_mul_i32 s6, s6, %d'%(16384-12*OPS,OPS))
    A('s_add_u32 s54, s54, s6\ns_add_u32 s54, s54, s7\ns_add_u32 s54, s54, %d\nv_add_u32 v18, s54, v1'%OP)
    A('s_and_b32 s54, s67, 15\ns_mul_i32 s54, s54, 49152\ns_lshl_b32 s55, s11, 13\ns_add_u32 s54, s54, s55\ns_add_u32 s54, s54, %d'%OP)
    A('v_mul_u32_u24 v7, 11, v2\nv_lshrrev_b32 v7, 5, v7\nv_mul_u32_u24 v7, %d, v7\nv_mul_u32_u24 v25, %d, v2\nv_add3_u32 v25, v25, v7, s54\nv_add_u32 v19, v25, v3'%(16384-12*OPS,4*OPS))
    A('s_lshl_b32 s54, s53, 5\nv_mov_b32 v30, s54')
    A('v_mul_u32_u24 v20, %d, v2\nv_lshrrev_b32 v7, 1, v3\nv_add_u32 v20, v20, v7'%XOS)
    A('v_and_b32 v21, 7, v0\nv_mul_u32_u24 v21, %d, v21\nv_add_u32 v21, v21, v15'%XOS)
    A('s_lshl_b32 s54, s69, 2\ns_add_u32 s54, s54, s53\ns_lshl_b32 s54, s54, 13\ns_add_u32 s54, s54, %d'%(WP+2048))
    A('s_lshl_b32 s55, s69, 1\ns_add_u32 s55, s55, s67' if cfg.wrot else 's_mov_b32 s55, s67')
    A('v_bfe_u32 v22, v0, 1, 2')
    A('v_lshl_add_u32 v7, v22, 3, s55' if cfg.wrot else 'v_mov_b32 v7, s55')
    A('v_and_b32 v7, 31, v7\nv_lshlrev_b32 v22, 17, v22\nv_lshl_add_u32 v22, v7, 7, v22\nv_and_b32 v7, 1, v0\nv_lshl_add_u32 v22, v7, 6, v22\nv_add3_u32 v22, v22, v15, s54')
    A('s_lshl_b32 s54, s13, 12\ns_add_u32 s54, s54, %d\nv_add_u32 v23, s54, v1'%WP)
    def guarded(lines):
        A(lines)
    def drychk():
        pass
    for r in range(192,246): A('v_mov_b32 v%d, -1'%r)
    A('s_waitcnt lgkmcnt(0)')
    A('s_mov_b64 vcc, 0\ns_mov_b64 s[4:5], %d\ns_mov_b64 exec, s[4:5]'%(0 if cfg.warm else -1))
    wpl=['global_load_dwordx4 v[%d:%d], v23, %s offset:%d sc1'%(216+4*t,219+4*t,WS,1024*t) for t in range(4)]
    opl=['global_load_dwordx2 v[%d:%d], v25, %s offset:%d sc1'%(208+2*s_,209+2*s_,WS,OPS*s_+512) for s_ in range(4)]+['global_load_dwordx4 v[%d:%d], v19, %s offset:%d sc1'%(192+4*s_,195+4*s_,WS,OPS*s_) for s_ in range(4)]
    hbl=['global_load_dwordx4 v[%d:%d], v4, %s offset:%d sc1'%(216+4*t,219+4*t,WS,1024*t) for t in range(4)]
    abl=['global_load_dwordx4 v[%d:%d], v27, %s offset:%d sc1'%(216+4*t,219+4*t,WS,1024*t-3072) for t in range(7)]
    if cfg.pre:
        A('s_cmp_lg_u32 s70, 3\ns_cbranch_scc1 L_pre1')
        if cfg.pre&2: A('\n'.join(opl))
        A('s_cmp_lg_u32 s53, 0\ns_cbranch_scc1 L_pre3')
        if cfg.pre&1: A('\n'.join(wpl))
        A('s_branch L_pre3\nL_pre1:')
        if cfg.pre&4:
            A('s_cmp_lg_u32 s70, 1\ns_cbranch_scc1 L_pre2'); A('\n'.join(hbl)); A('L_pre2:\ns_cmp_lg_u32 s70, 2\ns_cbranch_scc1 L_pre3'); A('\n'.join(abl))
        A('L_pre3:')
    A('L_tail:')
    stamp(7)
    guarded('s_barrier')
    def wsum(b0,half,s0=None):
        d='v[%d:%d]'%(b0+2*half,b0+2*half+1)
        s0=s0 or b0
        for w in range(4):
            src='v[%d:%d]'%(s0+4*w+2*half,s0+4*w+2*half+1)
            f='v[%d:%d]'%(72+2*(w//2),73+2*(w//2))
            if w==0: A('v_pk_mul_f32 %s, %s, %s op_sel_hi:[1,0]'%(d,src,f))
            elif w%2==0: A('v_pk_fma_f32 %s, %s, %s, %s op_sel_hi:[1,0,1]'%(d,src,f,d))
            else: A('v_pk_fma_f32 %s, %s, %s, %s op_sel:[0,1,0] op_sel_hi:[1,1,1]'%(d,src,f,d))
    if cfg.gleak is not None:
        k,lo,hi,msk=cfg.gleak
        A('s_cbranch_execz L_nogl\ns_cmp_lg_u32 s53, 0\ns_cbranch_scc1 L_nogl')
        if k>=100: A('v_mov_b32 v32, %d\nds_read_b32 v33, v32 offset:%d\ns_waitcnt lgkmcnt(0)'%(4*(k-100),L_ST))
        else: A('v_mov_b32 v33, s%d'%(72+2*k))
        A('v_not_b32 v33, v33\nv_mov_b32 v34, s72\nv_mov_b32 v32, 0x3b0000')
        A('s_mov_b64 exec, 1')
        A('global_atomic_umin v32, v34, %s'%WS)
        A('s_and_b32 s54, s2, %d\ns_sub_u32 s54, s54, %d\ns_cmp_ge_u32 s54, %d\ns_cbranch_scc1 L_nogl2'%(msk,lo,hi-lo))
        A('global_atomic_umin v32, v33, %s offset:256'%WS)
        A('L_nogl2:\ns_mov_b64 exec, -1\ns_waitcnt vmcnt(0)')
        A('L_nogl:')
    A('ds_read_b128 v[64:67], v30 offset:%d\nds_read_b128 v[68:71], v30 offset:%d'%(L_MLW,L_MLW+16))
    for w in range(4):
        A('ds_read_b128 v[%d:%d], v17 offset:%d'%(32+4*w,35+4*w,L_OW+2048*w))
    stamp(8)
    if cfg.notail: A('s_branch L_fin')
    A('s_and_b32 exec_hi, s4, 1')
    A('s_waitcnt lgkmcnt(%d)'%(0 if cfg.diag else 4))
    A('v_max3_f32 v76, v64, v65, v66\nv_max_f32 v76, v76, v67')
    A('v_pk_add_f32 v[72:73], v[64:65], v[76:77] op_sel_hi:[1,0] neg_lo:[0,1] neg_hi:[0,1]')
    A('v_pk_add_f32 v[74:75], v[66:67], v[76:77] op_sel_hi:[1,0] neg_lo:[0,1] neg_hi:[0,1]')
    for i in range(4): A('v_exp_f32 v%d, v%d'%(72+i,72+i))
    A('v_pk_mul_f32 v[68:69], v[68:69], v[72:73]\nv_pk_fma_f32 v[68:69], v[70:71], v[74:75], v[68:69]')
    A('s_waitcnt lgkmcnt(0)')
    A('v_add_f32 v77, v68, v69')
    wsum(32,0); wsum(32,1)
    A('v_mov_b32_dpp v32, v76 quad_perm:[0,1,2,3] row_mask:0x4 bank_mask:0xf')
    A('v_mov_b32_dpp v33, v77 quad_perm:[0,1,2,3] row_mask:0x4 bank_mask:0xf')
    guarded('global_store_dwordx4 v18, v[32:35], %s sc1'%WS)
    tstamp(1)
    A('s_mov_b64 exec, s[4:5]')
    A('s_cmp_lg_u32 s70, 3\ns_cbranch_scc1 L_rdone')
    if cfg.EW<8:
        for i in range(cfg.EW,8): A(dmaw(i))
        A('s_waitcnt vmcnt(0)\ns_barrier')
        trw()
    apoll(['global_load_dwordx2 v[%d:%d], v25, %s offset:%d sc1'%(208+2*s_,209+2*s_,WS,OPS*s_+512) for s_ in range(4)]+
         ['global_load_dwordx4 v[%d:%d], v19, %s offset:%d sc1'%(192+4*s_,195+4*s_,WS,OPS*s_) for s_ in range(4)],cfg.pW)
    stamp(9)
    if cfg.head:
        A('s_cmp_lg_u32 s53, 0\ns_cbranch_scc1 L_nohead'); A('\n'.join(wpl)); A('L_nohead:')
    A('v_max3_f32 v76, v208, v210, v212\nv_max_f32 v76, v76, v214')
    for i in range(4): A('v_sub_f32 v%d, v%d, v76'%(72+i,208+2*i))
    for i in range(4): A('v_exp_f32 v%d, v%d'%(72+i,72+i))
    A('v_mul_f32 v78, v72, v209')
    for i in range(1,4): A('v_fmac_f32 v78, v%d, v%d'%(72+i,209+2*i))
    A('v_rcp_f32 v78, v78')
    wsum(48,0,192); wsum(48,1,192)
    A('v_pk_mul_f32 v[48:49], v[48:49], v[78:79] op_sel_hi:[1,0]\nv_pk_mul_f32 v[50:51], v[50:51], v[78:79] op_sel_hi:[1,0]')
    A('v_cvt_pk_bf16_f32 v48, v48, v49\nv_cvt_pk_bf16_f32 v49, v50, v51')
    A('ds_write_b64 v20, v[48:49] offset:%d'%L_XO)
    A('s_waitcnt lgkmcnt(0)'); guarded('s_barrier')
    if cfg.tdiag: tstamp(2); A('s_waitcnt lgkmcnt(0)')
    for s_ in range(4):
        A('ds_read_b128 v[%d:%d], v21 offset:%d'%(32+4*s_,35+4*s_,L_XO+64*s_))
    for s_ in range(4):
        A('s_waitcnt lgkmcnt(%d)'%(3-s_))
        for t in range(2):
            acc='v[%d:%d]'%(48+4*t,51+4*t); r=80+16*t+4*s_
            A('v_mfma_f32_16x16x32_bf16 %s, v[%d:%d], v[%d:%d], %s'%(acc,r,r+3,32+4*s_,35+4*s_,'0' if s_==0 else acc))
    A('s_mov_b32 exec_lo, 0x00ff00ff\ns_mov_b32 exec_hi, 0x00ff00ff')
    A('s_nop 4')
    A('global_store_dwordx4 v22, v[48:51], %s offset:-2048 sc1'%WS)
    A('global_store_dwordx4 v22, v[52:55], %s offset:2048 sc1'%WS)
    tstamp(3)
    A('s_mov_b64 exec, -1')
    A('s_cmp_lg_u32 s53, 0\ns_cbranch_scc1 L_fin')
    apoll(['global_load_dwordx4 v[%d:%d], v23, %s offset:%d sc1'%(216+4*t,219+4*t,WS,1024*t) for t in range(4)],cfg.pR)
    stamp(10)
    A('v_pk_add_f32 v[32:33], v[216:217], v[220:221]\nv_pk_add_f32 v[34:35], v[218:219], v[222:223]')
    A('v_pk_add_f32 v[40:41], v[224:225], v[228:229]\nv_pk_add_f32 v[42:43], v[226:227], v[230:231]')
    A('v_pk_add_f32 v[32:33], v[32:33], v[40:41]\nv_pk_add_f32 v[34:35], v[34:35], v[42:43]')
    A('s_nop 1\nv_permlane32_swap_b32 v32, v34\nv_permlane32_swap_b32 v33, v35')
    A('v_add_f32 v32, v32, v34\nv_add_f32 v33, v33, v35')
    A('s_nop 1\nv_permlane16_swap_b32 v32, v33\nv_add_f32 v32, v32, v33')
    dppadd(32,'row_ror:8')
    rbf(32)
    A('v_add_f32 v32, v32, v16')
    rbf(32)
    A('v_mov_b32 v33, v32\ns_nop 1\nv_permlane16_swap_b32 v32, v33\nv_mov_b32 v34, v32\nv_mov_b32 v35, v33\ns_nop 0')
    A('v_permlane32_swap_b32 v32, v34\nv_permlane32_swap_b32 v33, v35')
    if cfg.nH<8: A('s_and_b32 exec_lo, s4, 0x%x\ns_mov_b32 exec_hi, 0'%((1<<(8*cfg.nH))-1))
    guarded('global_store_dwordx4 v24, v[32:35], %s sc1'%WS)
    tstamp(4)
    A('s_branch L_fin')
    A('L_rdone:')
    A('s_cmp_eq_u32 s70, 2\ns_cbranch_scc1 L_ffn2')
    A('s_cmp_eq_u32 s70, 0\ns_cbranch_scc1 L_fin')
    if cfg.lrot:
        assert cfg.E1%2==0
        i0=cfg.E1//2; n=8-i0
        if cfg.helper: A('s_and_b32 s6, s14, 1\ns_cmp_eq_u32 s70, 4\ns_cselect_b32 s6, 2, s6\ns_mul_i32 s6, s6, %d\ns_add_u32 s6, s6, %d'%(n//3,i0))
        else: A('s_and_b32 s6, s14, 1\ns_mul_i32 s6, s6, %d\ns_add_u32 s6, s6, %d'%(n//2,i0))
        for it in range(n):
            if cfg.helper and it==n-2*(n//3): A('s_cmp_eq_u32 s70, 4\ns_cbranch_scc1 L_fin')
            A('s_mul_i32 s7, s6, %d\nv_add_u32 v7, s7, v6\ns_lshl_b32 s7, s6, 10\ns_add_u32 s7, s7, s71\ns_add_u32 m0, s7, %d\ns_add_u32 s6, s6, 1'%(16*3584,L_WA))
            A('global_load_lds_dwordx4 v7, %s %s'%(WG,cfg.ff))
            A('s_add_u32 m0, s7, %d\ns_cmp_eq_u32 s6, 8\ns_cselect_b32 s6, %d, s6'%(L_WA+32768,i0))
            A('global_load_lds_dwordx4 v7, %s %s'%(WU,cfg.ff))
    else:
        for k in range(cfg.E1,16): A(dma1(k))
    A('s_waitcnt vmcnt(0)\ns_barrier')
    for s_ in range(16):
        A('ds_read_b64_tr_b16 v[%d:%d], v8 offset:%d'%(96+4*s_,97+4*s_,2048*s_))
        A('ds_read_b64_tr_b16 v[%d:%d], v8 offset:%d'%(98+4*s_,99+4*s_,2048*s_+256))
        if s_%4==3: A('s_waitcnt lgkmcnt(0)')
    tstamp(2)
    apoll(['global_load_dwordx4 v[%d:%d], v4, %s offset:%d sc1'%(216+4*t,219+4*t,WS,1024*t) for t in range(4)],cfg.pF)
    stamp(11)
    layernorm('h')
    tstamp(5)
    A('s_waitcnt lgkmcnt(0)'); guarded('s_barrier')
    if cfg.tdiag: tstamp(6); A('s_waitcnt lgkmcnt(0)')
    for s_ in range(8):
        A('ds_read_b128 v[%d:%d], v9 offset:%d'%(32+4*s_,35+4*s_,L_XN+64*s_))
    for s_ in range(16):
        A('s_waitcnt lgkmcnt(%d)'%min(7,15-s_))
        b=32+4*(s_%8) if s_<8 else 160+4*(s_-8)
        A('v_mfma_f32_16x16x32_bf16 v[64:67], v[%d:%d], v[%d:%d], %s'%(96+4*s_,99+4*s_,b,b+3,'0' if s_==0 else 'v[64:67]'))
        if s_<8: A('ds_read_b128 v[%d:%d], v9 offset:%d'%(160+4*s_,163+4*s_,L_XN+64*(s_+8)))
    A('s_nop 7')
    A('v_permlane32_swap_b32 v64, v65\nv_permlane32_swap_b32 v66, v67')
    A('s_nop 1')
    A('v_mov_b32_dpp v64, v66 quad_perm:[0,1,2,3] row_mask:0xf bank_mask:0xc')
    A('v_mov_b32_dpp v65, v67 quad_perm:[0,1,2,3] row_mask:0xf bank_mask:0xc')
    A('v_cvt_pk_bf16_f32 v32, 0, v64\nv_cvt_pk_bf16_f32 v36, 0, v65')
    A('v_mul_f32 v33, v32, v32\nv_mul_f32 v33, 0x3d372713, v33\nv_fma_f32 v33, v33, v32, v32')
    A('v_mul_f32 v33, 0xc0135761, v33\nv_exp_f32 v33, v33\ns_nop 0\nv_add_f32 v33, 1.0, v33\nv_rcp_f32 v33, v33\ns_nop 0\nv_mul_f32 v33, v33, v32')
    rbf(33)
    A('v_mul_f32 v33, v33, v36\nv_mov_b32 v34, v33\ns_nop 1\nv_permlane32_swap_b32 v33, v34')
    A('v_cvt_pk_bf16_f32 v33, v33, v34\nv_min_u32 v36, -2, v33')
    A('v_mov_b32 v32, v36\nv_mov_b32 v33, v36\ns_nop 0')
    A('v_mov_b32_dpp v32, v36 row_ror:8 row_mask:0xf bank_mask:0xc\nv_mov_b32_dpp v33, v36 row_ror:8 row_mask:0xf bank_mask:0x3')
    A('v_mov_b32 v34, v32\nv_mov_b32 v35, v33\ns_nop 0')
    A('v_permlane16_swap_b32 v32, v34\nv_permlane16_swap_b32 v33, v35')
    if cfg.nA<8: A('s_and_b32 exec_lo, s4, 0x%x\ns_mov_b32 exec_hi, 0'%((1<<(8*cfg.nA))-1))
    guarded('global_store_dwordx4 v27, v[32:35], %s sc1'%WS)
    stamp(12)
    A('L_fin:')
    A('s_waitcnt vmcnt(0)')
    if cfg.diag:
        dump_stamps(14,8)
    A('s_endpgm')
    A('L_ffn2:')
    if cfg.lrot:
        n=14-cfg.E2
        A('s_and_b32 s6, s15, 3\ns_mul_i32 s6, s6, %d\ns_lshr_b32 s6, s6, 2\ns_add_u32 s6, s6, %d'%(n,cfg.E2))
        for _ in range(n):
            A('s_lshl_b32 s7, s6, 15\nv_add_u32 v7, s7, v6\ns_lshl_b32 s7, s6, 10\ns_add_u32 s7, s7, s71\ns_add_u32 m0, s7, %d\ns_add_u32 s6, s6, 1'%L_WA)
            A('global_load_lds_dwordx4 v7, %s %s'%(WD,cfg.ff))
            A('s_cmp_eq_u32 s6, 14\ns_cselect_b32 s6, %d, s6'%cfg.E2)
    else:
        for k in range(cfg.E2,14): A(dma2(k))
    A('s_waitcnt vmcnt(0)')
    for t in range(7):
        for tt in range(2):
            r=96+8*t+4*tt
            A('ds_read_b64_tr_b16 v[%d:%d], v8 offset:%d'%(r,r+1,2048*t+16*tt))
            A('ds_read_b64_tr_b16 v[%d:%d], v8 offset:%d'%(r+2,r+3,2048*t+16*tt+128))
        if t%2==0: A('s_waitcnt lgkmcnt(0)')
    tstamp(2)
    poll(guard=True,loads=['global_load_dwordx2 v[60:61], v29, %s sc1'%WS],regs=[60,61])
    apoll(['global_load_dwordx4 v[%d:%d], v27, %s offset:%d sc1'%(216+4*t,219+4*t,WS,1024*t-3072) for t in range(7)],cfg.pG)
    stamp(10)
    for t in range(7):
        for tt in range(2):
            acc='v[%d:%d]'%(64+4*tt,67+4*tt)
            r=96+8*t+4*tt
            A('v_mfma_f32_16x16x32_bf16 %s, v[%d:%d], v[%d:%d], %s'%(acc,r,r+3,216+4*t,219+4*t,'0' if t==0 else acc))
    A('s_nop 6')
    A('ds_write_b128 v10, v[64:67] offset:%d'%L_DP)
    A('ds_write_b128 v10, v[68:71] offset:%d'%(L_DP+1024))
    A('s_waitcnt lgkmcnt(0)'); guarded('s_barrier')
    tstamp(6)
    A('s_cmp_lg_u32 s53, 0\ns_cbranch_scc1 L_fin')
    for w in range(4):
        A('ds_read_b64 v[%d:%d], v26 offset:%d'%(32+4*w,33+4*w,L_DP+2048*w))
        A('ds_read_b64 v[%d:%d], v26 offset:%d'%(34+4*w,35+4*w,L_DP+2048*w+640))
    A('s_waitcnt lgkmcnt(0)')
    for w in range(4): A('v_pk_add_f32 v[%d:%d], v[%d:%d], v[%d:%d]'%(32+4*w,33+4*w,32+4*w,33+4*w,34+4*w,35+4*w))
    A('v_pk_add_f32 v[32:33], v[32:33], v[36:37]\nv_pk_add_f32 v[40:41], v[40:41], v[44:45]\nv_pk_add_f32 v[32:33], v[32:33], v[40:41]')
    A('v_cvt_pk_bf16_f32 v32, 0, v32\nv_cvt_pk_bf16_f32 v33, 0, v33')
    A('v_pk_add_f32 v[32:33], v[32:33], v[60:61]')
    A('v_cvt_pk_bf16_f32 v32, v32, v33')
    if cfg.odiag: stamp(12)
    guarded('global_store_dword v28, v32, %s %s'%(OUT,cfg.of))
    if cfg.odiag: A('s_waitcnt vmcnt(0)')
    drychk()
    if cfg.diag:
        stamp(13)
        if cfg.leak is not None:
            a,b=cfg.leak
            A('s_waitcnt lgkmcnt(0)')
            if cfg.gleak is not None:
                A('v_mov_b32 v8, 0x3b0000\nglobal_load_dword v9, v8, %s sc1\nglobal_load_dword v10, v8, %s offset:256 sc1\ns_waitcnt vmcnt(0)'%(WS,WS))
                if b==13: A('v_mov_b32 v10, s%d'%(72+2*13))
                else: A('v_not_b32 v10, v10')
                A('v_sub_u32 v9, v10, v9\ns_nop 1\nv_readfirstlane_b32 s54, v9')
                if b==0: A('s_mov_b32 s54, 0')
            elif a>=100:
                A('v_mov_b32 v8, %d\nds_read_b32 v9, v8 offset:%d\nds_read_b32 v10, v8 offset:%d\ns_waitcnt lgkmcnt(0)\nv_sub_u32 v9, v9, v10\ns_nop 1\nv_readfirstlane_b32 s54, v9'%(0,L_ST+4*(b-100),L_ST+4*(a-100)))
            elif b>=100:
                A('v_mov_b32 v8, %d\nds_read_b32 v9, v8 offset:%d\ns_waitcnt lgkmcnt(0)\nv_readfirstlane_b32 s54, v9\ns_sub_u32 s54, s54, s%d'%(4*(b-100),L_ST,72+2*a))
            else: A('s_sub_u32 s54, s%d, s%d'%(72+2*b,72+2*a))
            A('s_mul_i32 s54, s54, %d\ns_min_u32 s54, s54, 60000'%cfg.mult)
            A('L_leak:')
            A('s_memrealtime s[68:69]\ns_waitcnt lgkmcnt(0)\ns_sub_u32 s55, s68, s%d\ns_cmp_lt_u32 s55, s54\ns_cbranch_scc1 L_leak'%(72+2*13))
        else:
            A('s_waitcnt lgkmcnt(0)\ns_mov_b32 s100, s92\ns_mov_b32 s92, 0')
            dump_stamps(15,8)
    A('L_end:')
    A('s_endpgm')
    A('.section .rodata,"a"\n.p2align 6\n.amdhsa_kernel %s'%K)
    A('  .amdhsa_next_free_vgpr 256\n  .amdhsa_next_free_sgpr 102\n  .amdhsa_accum_offset 256\n  .amdhsa_group_segment_fixed_size 0\n  .amdhsa_kernarg_size 96')
    A('  .amdhsa_user_sgpr_count 2\n  .amdhsa_user_sgpr_kernarg_segment_ptr 1\n  .amdhsa_system_sgpr_workgroup_id_x 1')
    A('  .amdhsa_float_denorm_mode_32 3\n  .amdhsa_float_denorm_mode_16_64 3')
    A('.end_amdhsa_kernel')
    return '\n'.join(L)+'\n'

if __name__=='__main__':
    cfg=Cfg()
    out=sys.argv[1]
    for a in sys.argv[2:]:
        k,v=a.split('=',1); setattr(cfg,k,eval(v))
    s=gen(cfg)
    hdr=''.join(l for l in open('cdna_kernels/%s.s.ref'%NAME).readlines()[:13])
    open(out,'w').write(hdr+s)
```

```python
import sys
NAME='sequential_preLN__gqa_block_cached__geglu_ffn__decode'
K=NAME+'_kernel'

class Cfg:
    diag=False
    leak=None
    nocomp=False
    noq=False
    T2=12
    par=None
    NP=3
    HS=20736; AS=28672; wrot=False; pre=0; head=0
    upfront=False
    vdiag=None
    odiag=False
    touch=True
    sdiag=False
    mult=1
    Q1=0; Q2=0
    E1=4; E2=0; EW=8; lrot=True; helper=False
    T0=None; n0=24
    qflag=True
    chunk=0
    bare=0
    notail=False
    knat=False
    cdbg=False
    ctouch=None
    rot=4
    cs=9
    nowq=False
    noqst=False
    nH=8; nA=8
    pW=('c',1,0); pR=('m',8,1); pF=('c',1,0); pG=('c',1,0)
    tdiag=False
    tsleep=0
    crot=0
    noclr=False
    wolate=False
    warm=False
    of=''
    gleak=None
    NS=28
    sflag=False
    svcfirst=0
    spin=1<<17
    T=5
    kf='nt'; vf='nt'; wf='nt'; ff=''
    pq=3
    pw0=7
    pw1=22
    noW=False

QP=0x0
FLG=0x80000
CLR=0x200000
WP=0x200000
OP=0x280000
OPS=640
HB=0x340000
AB=0x360000
CTR=0x3A0000
PRB=0x3C0000
STAMP=0x10000000
L_MLW=64
L_QL=256
L_XN=1280
XNS=1040
L_XO=9600
XOS=272
L_DP=11776
L_OW=19968
L_ST=28160
L_PR=28416
L_CNT=L_PR+1024
L_WA=30720
LDS_BYTES=L_WA+65536

LOG2E=0x3fb8aa3b
SCALE=0x3db504f3

def gen(cfg):
    L=[]
    def A(s):
        L.extend(s.split('\n'))
    lab=[0]
    def newlab(p):
        lab[0]+=1
        return 'L_%s_%d'%(p,lab[0])
    X,KP,VP,WQ,WO,BX,WG,WU,WD,OUT,DBG,WS=['s[%d:%d]'%(16+2*i,17+2*i) for i in range(12)]
    def stamp(i):
        if cfg.diag: A('s_memrealtime s[%d:%d]'%(72+2*i,73+2*i))
    def tstamp(i):
        if cfg.tdiag: stamp(i)
    def pack_stamps(n,vt):
        A('s_waitcnt lgkmcnt(0)')
        A('v_mov_b32 v%d, 0'%vt)
        for i in range(n): A('v_writelane_b32 v%d, s%d, %d'%(vt,72+2*i,i))
    def dump_stamps(n,vt):
        if not cfg.diag: return
        A('s_mov_b64 exec, -1')
        pack_stamps(n,vt)
        A('v_lshlrev_b32 v%d, 2, v0'%(vt+1))
        A('ds_read_b32 v%d, v%d offset:%d'%(vt+2,vt+1,L_ST))
        A('s_lshl_b32 s66, s2, 9\ns_add_u32 s66, s66, %d'%(STAMP))
        A('v_add_u32 v%d, s66, v%d'%(vt+1,vt+1))
        A('s_mov_b64 exec, 0xffff')
        A('s_waitcnt lgkmcnt(0)')
        A('global_store_dword v%d, v%d, %s'%(vt+1,vt+2,WS))
        A('s_lshl_b32 s66, s53, 6\nv_add_u32 v%d, s66, v%d'%(vt+1,vt+1))
        A('global_store_dword v%d, v%d, %s offset:64'%(vt+1,vt,WS))

    A('; @launch grid=(256,1,1) block=(512,1,1) lds=%d'%LDS_BYTES)
    A('.amdgcn_target "amdgcn-amd-amdhsa--gfx950"\n.text\n.globl %s\n.p2align 8\n.type %s,@function\n%s:'%(K,K,K))
    A('s_cmp_ge_u32 s2, 256\ns_cbranch_scc1 L_end')
    stamp(0)
    A('v_lshrrev_b32 v1, 6, v0')
    A('v_lshlrev_b32 v3, 2, v0')
    A('v_readfirstlane_b32 s52, v1')
    A('s_cmp_lt_u32 s52, 4\ns_cbranch_scc1 L_noz')
    A('v_mov_b32 v30, 0')
    A('ds_write_b32 v3, v30 offset:%d\nds_write_b32 v3, v30 offset:%d'%(L_PR-1024,L_PR))
    A('s_waitcnt lgkmcnt(0)')
    A('L_noz:')
    A('s_load_dwordx16 s[16:31], s[0:1], 0')
    A('s_load_dwordx8 s[32:39], s[0:1], 64')
    A('s_barrier')
    if cfg.diag:
        for i in range(1,14): A('s_mov_b32 s%d, 0'%(72+2*i))
    A('v_and_b32 v0, 63, v0')
    A('s_and_b32 s48, s2, 7\ns_lshr_b32 s49, s2, 3\ns_lshl_b32 s50, s49, 1\ns_bfe_u32 s54, s2, 0x10001\ns_or_b32 s50, s50, s54')
    A('s_and_b32 s51, s2, 1\ns_bfe_u32 s54, s2, 0x10002\ns_lshl_b32 s54, s54, 1\ns_or_b32 s51, s51, s54')
    A('s_mov_b32 s59, 0x%x\ns_mov_b32 s60, 0xffff0000'%(LOG2E))
    A('v_lshlrev_b32 v1, 4, v0')
    A('s_cmp_ge_u32 s52, 4\ns_cbranch_scc1 L_service')

    import math
    TH=math.ceil(cfg.T)
    NS=cfg.NS
    RB=64
    A('s_lshl_b32 s54, s50, 21')
    A('s_lshl_b32 s62, s51, 2\ns_add_u32 s62, s62, s52')
    for i in range(4): A('s_add_u32 s%d, s62, %d\ns_and_b32 s%d, s%d, 15\ns_lshl_b32 s%d, s%d, 12'%(8+i,cfg.rot*i,8+i,8+i,8+i,8+i))
    A('v_lshrrev_b32 v2, 4, v0\nv_lshlrev_b32 v2, 6, v2\nv_and_b32 v4, 3, v0\nv_lshl_add_u32 v2, v4, 4, v2')
    A('v_bfe_u32 v5, v0, 2, 2\nv_lshl_add_u32 v2, v5, 8, v2')
    if cfg.knat: A('v_mov_b32 v2, v1')
    A('s_mov_b32 s42, 0x200000\ns_mov_b32 s43, 0x20000\ns_mov_b32 s46, 0x200000\ns_mov_b32 s47, 0x20000')
    A('s_waitcnt lgkmcnt(0)')
    A('s_add_u32 s40, s18, s54\ns_addc_u32 s41, s19, 0\ns_and_b32 s41, s41, 0xffff')
    A('s_add_u32 s44, s20, s54\ns_addc_u32 s45, s21, 0\ns_and_b32 s45, s45, 0xffff')
    st={'n':0}
    def adv():
        if cfg.rot: A('s_add_u32 s68, s62, %d\ns_and_b32 s68, s68, 15\ns_andn2_b32 s62, s62, 15\ns_add_u32 s62, s62, 16\ns_or_b32 s62, s62, s68'%cfg.rot)
        else: A('s_add_u32 s62, s62, 16')
    def load(slot,j,throttle=True,th=None):
        if j==0: A('s_lshl_b32 s65, s62, 12')
        if throttle:
            t_=(th or cfg.T); lo=int(t_); fr=t_-lo
            w=lo+(1 if (int((j+1)*fr+1e-9)>int(j*fr+1e-9)) else 0)
            A('s_waitcnt vmcnt(%d)'%(w-1))
        r=RB+slot*32+j*4
        t=j//4
        A('buffer_load_dwordx4 v[%d:%d], %s, %s, s65 offen offset:%d %s'%(r,r+3,'v2' if t==0 else 'v1','s[40:43]' if t==0 else 's[44:47]',(j%4)*1024,cfg.kf if t==0 else cfg.vf))
    def prog(val):
        A('v_mov_b32 v30, %s\nds_write_b32 v3, v30 offset:%d'%(val,L_PR))
    NK=NS//2
    assert NS%2==0 and NK>=10 and NK<=15
    slot_of={u:u for u in range(6)}
    slot_of.update({6:0,7:1,8:2})
    for u in range(9,NS+1): slot_of[u]=(u-9)&1
    tr={'issued':0}
    def sload():
        n=tr['issued']; G=n//8; j=n%8
        tr['issued']=n+1
        if G==NS:
            load(slot_of[G],j,th=cfg.T); return
        t=G//NK; k=2*(G%NK)+j//4
        if cfg.vdiag is not None and G==cfg.vdiag and j==0: stamp(6)
        if cfg.vdiag is not None and G==cfg.vdiag+1 and j==0: stamp(7)
        if j%4==0: A('s_add_u32 s65, s%d, %d'%(8+k%4,k*65536))
        w=cfg.T0 if (cfg.T0 and n<cfg.n0) else TH
        if n>=w: A('s_waitcnt vmcnt(%d)'%(w-1))
        r=RB+slot_of[G]*32+j*4
        A('buffer_load_dwordx4 v[%d:%d], %s, %s, s65 offen offset:%d %s'%(r,r+3,'v2' if t==0 else 'v1','s[40:43]' if t==0 else 's[44:47]',(j%4)*1024,cfg.kf if t==0 else cfg.vf))
        if j==7 and n>=15: prog(G+1)
    def pro_issue(n0,n1):
        assert tr['issued']==n0
        for n in range(n0,n1): sload()
    if cfg.svcfirst: A('s_barrier')
    if cfg.sdiag: stamp(6)
    pro_issue(0,TH)
    if cfg.sdiag: stamp(7)
    A('s_mov_b32 s56, 0x05040100\ns_mov_b32 s57, 0x07060302\ns_mov_b32 s58, 0x%x'%SCALE)
    A('s_lshl_b32 s54, s50, %d\ns_add_u32 s54, s54, %d\ns_add_u32 s66, s38, s54\ns_addc_u32 s67, s39, 0'%(cfg.cs,CTR))
    if cfg.cdbg: A('s_lshl_b32 s54, s50, 9\ns_add_u32 s54, s54, 4096\ns_add_u32 s66, s36, s54\ns_addc_u32 s67, s37, 0')
    A('s_lshl_b32 s55, s52, 11')
    A('v_lshlrev_b32 v4, 9, v4\nv_and_b32 v0, 0x30, v0\nv_add3_u32 v0, v4, v0, s55')
    A('v_mov_b32 v14, 0xff800000')
    if cfg.sdiag:
        stamp(9); A('s_waitcnt vmcnt(%d)'%(TH-1)); stamp(10)
    pro_issue(TH,48)
    stamp(1)
    if cfg.qflag:
        A('v_mov_b32 v31, 0\nL_qw:\nds_read_b32 v15, v31 offset:%d\ns_waitcnt lgkmcnt(0)\nv_readfirstlane_b32 s54, v15\ns_cmp_eq_u32 s54, 0\ns_cbranch_scc1 L_qw'%(L_CNT+16))
    else: A('s_barrier')
    A('ds_read_b128 v[4:7], v1 offset:%d'%L_QL)
    stamp(2)
    A('s_waitcnt lgkmcnt(0)')
    def kpart(slot,fill):
        B=RB+slot*32
        f=list(fill)
        def nxt():
            if f: f.pop(0)()
        D=[20,B,B+4,B+8]
        if cfg.nocomp:
            while f: nxt()
            return
        for i in range(4):
            A('v_mfma_f32_16x16x32_bf16 v[%d:%d], v[%d:%d], v[4:7], 0'%(D[i],D[i]+3,B+4*i,B+4*i+3))
        A('s_nop 7')
        for h in range(2):
            for step in range(3):
                for e in range(2):
                    be=2*e+h
                    S=18+e
                    A('v_add_f32_dpp v%d, v%d, v%d row_ror:%d row_mask:0xf bank_mask:0x%x'%(S,D[be]+((be+step+1)&3),(D[be]+be) if step==0 else S,12-4*step,1<<be))
                A('s_nop 0')
        nxt()
        A('s_nop 0')
        A('v_mov_b32_dpp v18, v19 quad_perm:[0,1,2,3] row_mask:0xf bank_mask:0xc')
        A('v_cvt_pk_bf16_f32 v18, 0, v18\nv_mul_f32 v18, s58, v18\nv_cvt_pk_bf16_f32 v18, 0, v18')
        A('v_max_f32 v15, v14, v18')
        A('s_nop 1\nv_max_f32_dpp v15, v15, v15 row_ror:4 row_mask:0xf bank_mask:0xf')
        A('s_nop 1\nv_max_f32_dpp v15, v15, v15 row_ror:8 row_mask:0xf bank_mask:0xf')
        A('v_mov_b32 v31, v15\ns_nop 1\nv_permlane16_swap_b32 v15, v31\nv_max_f32 v15, v15, v31')
        A('v_mov_b32 v31, v15\ns_nop 1\nv_permlane32_swap_b32 v15, v31\nv_max_f32 v15, v15, v31')
        nxt()
        A('v_sub_f32 v16, v14, v15\nv_sub_f32 v18, v18, v15\nv_cmp_neq_f32 vcc, v14, v15\nv_mul_f32 v16, s59, v16\nv_mul_f32 v18, s59, v18')
        A('v_exp_f32 v16, v16\nv_exp_f32 v18, v18\nv_mov_b32 v14, v15\nv_mul_f32 v17, s59, v15')
        A('v_mov_b32_dpp v19, v18 row_ror:12 row_mask:0xf bank_mask:0xf')
        A('v_cvt_pk_bf16_f32 v8, v18, v19')
        l=newlab('nr')
        A('s_cbranch_vccz %s'%l)
        for r in range(32,64,2):
            A('v_pk_mul_f32 v[%d:%d], v[%d:%d], v[16:17] op_sel_hi:[1,0]'%(r,r+1,r,r+1))
        A('v_mul_f32 v24, v24, v16')
        A('%s:'%l)
        A('s_nop 0')
        A('v_mov_b32_dpp v9, v8 row_ror:8 row_mask:0xf bank_mask:0xf')
        while f: nxt()
    def vpart(slot):
        B=RB+slot*32+16
        if cfg.nocomp: return
        def perms(j):
            Tt=10+2*(j&1)
            for ii in range(2):
                A('v_perm_b32 v%d, v%d, v%d, s%d'%(Tt+ii,B+4*(2*ii+1)+(j>>1),B+4*(2*ii)+(j>>1),56+(j&1)))
        perms(0)
        for j in range(8):
            if j<7: perms(j+1)
            else: A('v_mfma_f32_16x16x16_bf16 v[24:27], v[28:29], v[8:9], v[24:27]')
            Tt=10+2*(j&1)
            A('v_mfma_f32_16x16x16_bf16 v[%d:%d], v[%d:%d], v[8:9], v[%d:%d]'%(32+4*j,35+4*j,Tt,Tt+1,32+4*j,35+4*j))
    SC=[8,9,10,11,12,13,20,21,22,23,25,26,27,28,29][:NK]
    RV=RB+5*32; TV=RV+4
    def need(n):
        rem=tr['issued']-n
        assert rem>=0
        if rem<TH: A('s_waitcnt vmcnt(%d)'%rem)
    def spread(chunks,nl):
        m=len(chunks)
        for i,c in enumerate(chunks):
            if not cfg.nocomp: A(c)
            for _ in range((nl*(i+1))//m-(nl*i)//m): sload()
    def kgroup(G):
        B=RB+slot_of[G]*32
        ch=['\n'.join('v_mfma_f32_16x16x32_bf16 v[%d:%d], v[%d:%d], v[4:7], 0'%(32+4*i,35+4*i,B+4*i,B+4*i+3) for i in range(8))+'\ns_nop 1']
        for be in range(4):
            c=[]
            for step in range(3):
                for e in range(2):
                    D=32+4*(2*be+e); S=18+e
                    c.append('v_add_f32_dpp v%d, v%d, v%d row_ror:%d row_mask:0xf bank_mask:0x%x'%(S,D+((be+step+1)&3),(D+be) if step==0 else S,12-4*step,1<<be))
                c.append('s_nop 0')
            ch.append('\n'.join(c))
        ch[-1]+='\nv_cvt_pk_bf16_f32 v15, 0, v18\nv_cvt_pk_bf16_f32 v16, 0, v19\nv_mul_f32 v15, s58, v15\nv_mul_f32 v16, s58, v16'
        ch[-1]+='\nv_cvt_pk_bf16_f32 v%d, v15, v16\nv_cvt_pk_bf16_f32 v15, 0, v15\nv_cvt_pk_bf16_f32 v16, 0, v16\nv_max3_f32 v14, v14, v15, v16'%SC[G]
        return ch
    def wred(op,r):
        return ('s_nop 1\n%s_dpp v%d, v%d, v%d row_ror:4 row_mask:0xf bank_mask:0xf\ns_nop 1\n%s_dpp v%d, v%d, v%d row_ror:8 row_mask:0xf bank_mask:0xf\n'%(op,r,r,r,op,r,r,r)+
                'v_mov_b32 v31, v%d\ns_nop 1\nv_permlane16_swap_b32 v%d, v31\n%s v%d, v%d, v31\n'%(r,r,op,r,r)+
                'v_mov_b32 v31, v%d\ns_nop 1\nv_permlane32_swap_b32 v%d, v31\n%s v%d, v%d, v31'%(r,r,op,r,r))
    def softmax():
        ch=[wred('v_max_f32',14)+'\nv_mul_f32 v17, s59, v14\nv_mov_b32 v24, 0']
        for g in range(NK):
            ch.append('v_lshlrev_b32 v18, 16, v%d\nv_and_b32 v19, s60, v%d\nv_sub_f32 v18, v18, v14\nv_sub_f32 v19, v19, v14\nv_mul_f32 v18, s59, v18\nv_mul_f32 v19, s59, v19\n'%(SC[g],SC[g])+
                      'v_exp_f32 v18, v18\nv_exp_f32 v19, v19\ns_nop 0\nv_cvt_pk_bf16_f32 v%d, v18, v19\nv_add_f32 v24, v24, v18\nv_add_f32 v24, v24, v19'%SC[g])
        ch.append(wred('v_add_f32',24))
        return ch
    def vgroup(G):
        B=RB+slot_of[G]*32; P=SC[G-NK]
        def perms(j):
            Tt=TV+4*(j&1)
            return '\n'.join('v_perm_b32 v%d, v%d, v%d, s%d'%(Tt+ii,B+4*(2*ii+1)+(j>>1),B+4*(2*ii)+(j>>1),56+(j&1)) for ii in range(4))
        c0='v_mov_b32 v%d, v%d\n'%(RV,P)+'\n'.join('v_mov_b32_dpp v%d, v%d row_ror:%d row_mask:0xf bank_mask:0xf'%(RV+r,P,16-4*r) for r in range(1,4))+'\n'+perms(0)
        ch=[c0]
        for j in range(8):
            Tt=TV+4*(j&1); acc='v[%d:%d]'%(32+4*j,35+4*j)
            ch.append((perms(j+1) if j<7 else 's_nop 1')+'\nv_mfma_f32_16x16x32_bf16 %s, v[%d:%d], v[%d:%d], %s'%(acc,Tt,Tt+3,RV,RV+3,'0' if G==NK else acc))
        return ch
    def request():
        if not cfg.chunk:
            A('s_mov_b32 s63, 1\ns_atomic_add s63, s[66:67], 0x0 glc'); return
        la=newlab('ra'); lb=newlab('rb')
        A('s_cmp_eq_u32 s69, 0\ns_cbranch_scc1 %s'%la)
        A('s_mov_b32 s69, 0\ns_sub_u32 s63, s62, %d\ns_branch %s'%(NS*16,lb))
        A('%s:'%la)
        A('s_cmp_lt_u32 s62, %d\ns_cselect_b32 s69, 1, 0\ns_add_u32 s63, s69, 1\ns_atomic_add s63, s[66:67], 0x0 glc'%(512-cfg.chunk))
        A('%s:'%lb)
    for G in range(9):
        need(8*G+8)
        spread(kgroup(G),[4,4,4,4,4,4,3,2,3][G])
    assert tr['issued']==80
    stamp(3)
    for G in range(9,NS):
        if G==NS-2:
            A('v_mov_b32 v31, 0\nL_cw:\nds_read_b32 v15, v31 offset:%d\ns_waitcnt lgkmcnt(0)\nv_readfirstlane_b32 s54, v15\ns_cmp_eq_u32 s54, 0\ns_cbranch_scc1 L_cw'%(L_CNT+8))
            stamp(4)
            A('s_mov_b32 s63, %d\ns_atomic_add s63, s[66:67], 0x0 glc\ns_mov_b32 s69, %d'%((2,1) if cfg.chunk else (1,0)))
        if G==NS-1:
            A('s_waitcnt lgkmcnt(0)\ns_add_u32 s62, s63, %d'%(NS*16+1))
            A('s_cmp_ge_u32 s62, 512\ns_cbranch_scc1 L_nrq'); request(); A('L_nrq:')
        lead=min(TH,8)
        if G==NK: spread(softmax(),lead)
        else:
            for _ in range(lead): sload()
        need(8*G+8)
        ch=kgroup(G) if G<NK else vgroup(G)
        spread(ch[:-1],8-lead); spread(ch[-1:],0)
    A('s_cmp_ge_u32 s62, 512\ns_cbranch_scc1 L_sdone')
    A('v_mov_b32 v28, 0x3f803f80\nv_mov_b32 v29, 0x3f803f80\nv_mov_b32 v25, 0\nv_mov_b32 v26, 0\nv_mov_b32 v27, 0')
    A('s_waitcnt lgkmcnt(0)\ns_add_u32 s62, s63, %d'%(NS*16+1))
    A('s_mov_b32 s64, %d'%(NS+1))
    def body(c,th):
        if cfg.upfront:
            for j in range(8): load(1-c,j,th=th,throttle=(8+j>=th))
            if th>12: A('s_waitcnt vmcnt(12)')
            kpart(c,[])
            A('s_waitcnt vmcnt(8)')
            vpart(c)
            return
        for j in range(4): load(1-c,j,th=th)
        if th>8: A('s_waitcnt vmcnt(8)')
        kpart(c,[(lambda j=j: load(1-c,j,th=th)) for j in range(4,8)])
        if th>8: A('s_waitcnt vmcnt(8)')
        vpart(c)
    A('L_dyn:')
    for c in (slot_of[NS],1-slot_of[NS]):
        ls=newlab('st'); lc=newlab('sc')
        if cfg.diag: A('s_add_u32 s64, s64, 1')
        A('s_cmp_ge_u32 s62, 512\ns_cbranch_scc1 %s'%ls)
        request()
        A('%s:'%ls)
        body(c,cfg.T2 or cfg.T)
        A('s_cmp_ge_u32 s62, 512\ns_cbranch_scc1 L_sdone')
        A('s_waitcnt lgkmcnt(0)')
        A('s_add_u32 s62, s63, %d'%(NS*16+1))
    A('s_branch L_dyn')
    A('L_sdone:')
    A('s_mov_b32 exec_lo, 0x000f000f\ns_mov_b32 exec_hi, 0x000f000f')
    stamp(5)
    A('s_lshl_b32 s55, s52, 2\nv_and_b32 v31, 0x30, v1\nv_lshl_add_u32 v31, v31, 1, s55')
    for j in range(8):
        A('ds_write_b128 v0, v[%d:%d] offset:%d'%(32+4*j,35+4*j,L_OW+64*j))
    A('ds_write2_b32 v31, v17, v24 offset0:%d offset1:%d'%(L_MLW//4,L_MLW//4+4))
    if cfg.diag:
        A('s_mov_b64 exec, -1')
        A('s_cmp_lg_u32 s52, 0\ns_cbranch_scc1 L_nost')
        pack_stamps(11 if cfg.sdiag else 8,8)
        A('v_writelane_b32 v8, s64, 8')
        A('ds_write_b32 v3, v8 offset:%d'%L_ST)
        A('L_nost:')
    A('s_waitcnt lgkmcnt(0)')
    A('s_barrier')
    A('s_endpgm')

    A('L_service:')
    if cfg.bare:
        A('s_sub_u32 s53, s52, 4\nv_mov_b32 v11, 0\nv_mov_b32 v12, 1\nv_mov_b32 v40, -1\nv_mov_b32 v41, -1\nv_mov_b32 v42, -1\nv_mov_b32 v43, -1\ns_waitcnt lgkmcnt(0)')
        if cfg.bare&2:
            A('s_lshl_b32 s54, s2, 2\ns_add_u32 s54, s54, s53\ns_mul_i32 s54, s54, 640\ns_add_u32 s54, s54, %d\nv_add_u32 v6, s54, v1\ns_mov_b32 exec_hi, 0xff\nglobal_store_dwordx4 v6, v[40:43], %s sc1\ns_mov_b64 exec, -1'%(CLR+0x100000,WS))
        if cfg.bare&4:
            A('global_load_dwordx4 v[32:35], v1, %s'%X)
        if cfg.bare&8:
            A('v_mov_b32 v6, s2\ns_mov_b64 exec, 1\nglobal_store_byte v6, v12, %s sc1\ns_mov_b64 exec, -1'%DBG)
        A('ds_write_b32 v11, v12 offset:%d\ns_waitcnt lgkmcnt(0)\ns_barrier\ns_barrier'%(L_CNT+8))
        if cfg.bare&16:
            A('v_lshlrev_b32 v7, 2, v0\nglobal_load_dword v13, v7, %s sc1'%DBG)
        A('s_barrier\ns_endpgm')
    A('s_setprio 3')
    A('s_sub_u32 s53, s52, 4')
    A('s_lshl_b32 s66, s53, 12')
    A('s_mov_b32 s3, %d'%FLG)
    A('s_lshr_b32 s68, s49, 3\ns_and_b32 s69, s49, 7')
    A('v_lshrrev_b32 v2, 5, v0\ns_lshl_b32 s54, s53, 1\nv_add_u32 v2, s54, v2')
    A('v_and_b32 v3, 31, v0\nv_lshlrev_b32 v3, 4, v3')
    A('v_lshl_add_u32 v4, v2, 10, v3')
    A('s_lshl_b32 s54, s68, 7\ns_lshl_b32 s55, s53, 5\ns_add_u32 s54, s54, s55')
    A('v_lshrrev_b32 v6, 3, v0\nv_add_u32 v6, s54, v6\nv_lshlrev_b32 v6, 13, v6')
    A('v_and_b32 v7, 7, v0\nv_lshl_add_u32 v6, v7, 4, v6')
    A('s_lshl_b32 s54, s48, 10\ns_lshl_b32 s55, s69, 7\ns_add_u32 s54, s54, s55\nv_add_u32 v6, s54, v6')
    A('s_lshl_b32 s54, s48, 2\ns_add_u32 s54, s54, s68\ns_lshl_b32 s54, s54, 11\ns_lshl_b32 s55, s69, 8\ns_add_u32 s54, s54, s55\ns_lshl_b32 s55, s53, 6\ns_add_u32 s54, s54, s55')
    A('v_lshlrev_b32 v14, 16, v7\nv_and_b32 v15, 0x30, v0\nv_add3_u32 v14, v14, v15, s54')
    A('v_mov_b32 v40, -1\nv_mov_b32 v41, -1\nv_mov_b32 v42, -1\nv_mov_b32 v43, -1')
    A('s_add_u32 m0, s66, %d'%L_WA)
    A('v_lshrrev_b32 v44, 1, v0\nv_lshlrev_b32 v44, 9, v44\nv_and_b32 v45, 16, v1\nv_add3_u32 v79, v44, v45, %s'%'s3')
    A('v_mov_b32 v44, 0\nv_mov_b32 v45, 0\nv_mov_b32 v46, 0\nv_mov_b32 v47, 0\nv_mov_b32 v11, 0\nv_mov_b32 v12, 1')
    A('s_lshl_b32 s12, s2, 2\ns_add_u32 s12, s12, s53')
    A('s_waitcnt lgkmcnt(0)')
    A('s_cmp_lg_u32 s12, 3\ns_cbranch_scc1 L_nolead')
    A('global_store_dwordx4 v79, v[44:47], %s sc1\nglobal_store_dwordx4 v79, v[44:47], %s offset:256 sc1'%(WS,WS))
    A('L_nolead:')
    A('global_load_dwordx4 v[32:35], v4, %s'%X)
    A('global_load_dwordx4 v[36:39], v4, %s offset:512'%X)
    if cfg.nowq: A('s_mov_b64 exec, 1')
    for i in range(4):
        if i: A('s_add_u32 m0, s66, %d\nv_add_u32 v6, 0x10000, v6'%(L_WA+i*1024))
        A('global_load_lds_dwordx4 v6, %s %s'%(WQ,cfg.wf))
    A('s_mov_b32 exec_lo, 0x00ff00ff\ns_mov_b32 exec_hi, 0x00ff00ff')
    if cfg.noqst: A('s_mov_b64 exec, 1')
    A('global_store_dwordx4 v14, v[40:43], %s sc1'%WS)
    A('s_mov_b64 exec, -1')
    if cfg.svcfirst==1: A('s_barrier')
    A('s_lshl_b32 s54, s2, 2\ns_add_u32 s54, s54, s53\ns_mul_i32 s54, s54, 1792\ns_add_u32 s54, s54, %d'%CLR)
    A('v_add_u32 v6, s54, v1')
    A('global_store_dwordx4 v6, v[40:43], %s sc1'%WS)
    A('s_mov_b32 exec_hi, 0xffff')
    A('global_store_dwordx4 v6, v[40:43], %s offset:1024 sc1'%WS)
    A('s_and_b32 s54, s49, 3\ns_lshl_b32 s9, s54, 16\ns_lshr_b32 s54, s49, 2\ns_lshl_b32 s54, s54, 10\ns_add_u32 s9, s9, s54\ns_lshl_b32 s54, s48, 7\ns_add_u32 s9, s9, s54\ns_add_u32 s9, s9, %d'%PRB)
    A('s_lshl_b32 s54, s53, 14\ns_add_u32 s54, s54, s9\nv_bfe_u32 v6, v0, 3, 1\nv_lshlrev_b32 v6, 13, v6\nv_and_b32 v13, 0x70, v1\nv_add3_u32 v6, v6, v13, s54')
    A('s_mov_b64 exec, 0xffff')
    A('s_cmp_ge_u32 s49, 8\ns_cbranch_scc1 L_nopl\ns_cmp_ge_u32 s53, %d\ns_cbranch_scc1 L_nopl'%cfg.NP)
    A('global_store_dwordx4 v6, v[40:43], %s sc1'%WS)
    A('L_nopl:')
    A('s_mov_b64 exec, -1')
    if cfg.svcfirst==2: A('s_barrier')
    A('v_mul_u32_u24 v5, %d, v2\nv_add_u32 v5, v5, v3'%XNS)
    A('v_lshrrev_b32 v8, 4, v0\nv_lshlrev_b32 v8, 10, v8\nv_bfe_u32 v9, v0, 2, 2\nv_lshl_add_u32 v8, v9, 7, v8\nv_and_b32 v9, 3, v0\nv_lshl_add_u32 v8, v9, 3, v8')
    A('s_lshl_b32 s54, s53, 5\nv_add_u32 v8, s54, v8')
    A('v_mul_u32_u24 v9, %d, v7\nv_add_u32 v9, v9, v15\ns_lshl_b32 s54, s68, 8\nv_add_u32 v10, s54, v9'%XNS)
    A('s_lshl_b32 s54, s53, 8\nv_mov_b32 v31, s54')

    def dppadd(r,ctl):
        A('s_nop 1\nv_add_f32_dpp v%d, v%d, v%d %s row_mask:0xf bank_mask:0xf'%(r,r,r,ctl))
    def swapadd(r,t,w):
        A('v_mov_b32 v%d, v%d\ns_nop 1\nv_permlane%d_swap_b32 v%d, v%d\nv_add_f32 v%d, v%d, v%d'%(t,r,w,r,t,r,r,t))
    def rbf(r):
        A('v_cvt_pk_bf16_f32 v%d, 0, v%d'%(r,r))
    def layernorm(mode):
        if mode=='x':
            for i in range(8):
                A('v_lshlrev_b32 v%d, 16, v%d\nv_and_b32 v%d, s60, v%d'%(48+2*i,32+i,49+2*i,32+i))
        Q=lambda i:'v[%d:%d]'%(48+2*i,49+2*i)
        P=Q if mode=='x' else (lambda i:'v[%d:%d]'%(216+2*i,217+2*i))
        A('v_pk_add_f32 v[64:65], %s, %s\nv_pk_mul_f32 v[66:67], %s, %s'%(P(0),P(1),P(0),P(0)))
        A('v_pk_add_f32 v[68:69], %s, %s\nv_pk_mul_f32 v[70:71], %s, %s'%(P(2),P(3),P(1),P(1)))
        for i in range(2,8,2):
            if i>2: A('v_pk_add_f32 v[64:65], v[64:65], %s'%P(i))
            A('v_pk_fma_f32 v[66:67], %s, %s, v[66:67]'%(P(i),P(i)))
            if i>2: A('v_pk_add_f32 v[68:69], v[68:69], %s'%P(i+1))
            A('v_pk_fma_f32 v[70:71], %s, %s, v[70:71]'%(P(i+1),P(i+1)))
        A('v_pk_add_f32 v[64:65], v[64:65], v[68:69]\nv_pk_add_f32 v[66:67], v[66:67], v[70:71]')
        A('v_add_f32 v64, v64, v65\nv_add_f32 v66, v66, v67')
        ctl=['row_ror:1','row_ror:2','row_ror:4','row_ror:8'] if mode=='x' else ['quad_perm:[1,0,3,2]','quad_perm:[2,3,0,1]','row_ror:8']
        for c in ctl:
            A('s_nop 0')
            for r in (64,66): A('v_add_f32_dpp v%d, v%d, v%d %s row_mask:0xf bank_mask:0xf'%(r,r,r,c))
        for w in ((16,) if mode=='x' else (16,32)):
            A('v_mov_b32 v65, v64\nv_mov_b32 v67, v66\ns_nop 0')
            A('v_permlane%d_swap_b32 v64, v65\nv_permlane%d_swap_b32 v66, v67'%(w,w))
            A('v_add_f32 v64, v64, v65\nv_add_f32 v66, v66, v67')
        A('v_mul_f32 v64, 0xbb000000, v64\nv_mul_f32 v66, 0x3b000000, v66')
        A('v_cvt_pk_bf16_f32 v68, 0, v64')
        chain=['v_fma_f32 v66, -v64, v64, v66','v_max_f32 v66, 0, v66','v_cvt_pk_bf16_f32 v66, 0, v66','v_add_f32 v66, 0x3727c5ac, v66',
               'v_cvt_pk_bf16_f32 v66, 0, v66','v_sqrt_f32 v66, v66','v_cvt_pk_bf16_f32 v66, 0, v66','v_rcp_f32 v66, v66']
        for i in range(8):
            A(chain[i])
            A('v_pk_add_f32 %s, %s, v[68:69] op_sel_hi:[1,0]'%(Q(i),P(i)))
        for i in range(16): A('v_cvt_pk_bf16_f32 v%d, 0, v%d'%(48+i,48+i))
        nw=2 if mode=='h' else 4
        for i in range(8):
            A('v_pk_mul_f32 %s, %s, v[66:67] op_sel_hi:[1,0]'%(Q(i),Q(i)))
        for i in range(8):
            A('v_cvt_pk_bf16_f32 v%d, v%d, v%d'%(32+i,48+2*i,49+2*i))
            if mode=='h' and i%2==1: A('ds_write_b64 v5, v[%d:%d] offset:%d'%(31+i,32+i,L_XN+256*(i//2)))
            if mode=='x' and i%4==3: A('ds_write_b128 v5, v[%d:%d] offset:%d'%(29+i,32+i,L_XN+512*(i//4)))
    def lds_sync(cnt,sleep=0):
        l=newlab('ls')
        A('s_waitcnt lgkmcnt(0)')
        A('s_mov_b64 exec, 1\nds_add_u32 v11, v12 offset:%d\ns_mov_b64 exec, -1'%(L_CNT+4*cnt))
        lds_wait(11,L_CNT+4*cnt,4,sleep)
    def lds_wait(va,off,val,sleep):
        l=newlab('lw'); d=newlab('ld')
        A('%s:'%l)
        A('ds_read_b32 v13, v%d offset:%d\ns_waitcnt lgkmcnt(0)\nv_readfirstlane_b32 s54, v13\ns_cmp_ge_u32 s54, %s'%(va,off,val))
        if sleep: A('s_cbranch_scc1 %s\ns_sleep %d\ns_branch %s\n%s:'%(d,sleep,l,d))
        else: A('s_cbranch_scc0 %s'%l)
    def progress(p): lds_wait(31,L_PR,p,6)
    def poll(loads,regs,sleep=0,guard=False):
        l=newlab('pl'); d=newlab('pd')
        if guard: sleep=cfg.tsleep
        A('s_mov_b32 s61, %d'%cfg.spin)
        A('%s:'%l)
        for x in loads: A(x)
        import re as _re
        first=True; pend=[]
        for i,x in enumerate(loads):
            m=_re.search(r'v\[(\d+):(\d+)\]',x)
            pend+=list(range(int(m.group(1)),int(m.group(2))+1))
            last=(i==len(loads)-1)
            if len(pend)<4 and not last: continue
            A('s_waitcnt vmcnt(%d)'%(len(loads)-1-i))
            while pend:
                if first:
                    if len(pend)>=3: A('v_max3_u32 v13, v%d, v%d, v%d'%tuple(pend[:3])); pend=pend[3:]
                    else: A('v_max_u32 v13, v%d, v%d'%tuple(pend[:2])); pend=pend[2:]
                    first=False
                elif len(pend)>=2: A('v_max3_u32 v13, v13, v%d, v%d'%tuple(pend[:2])); pend=pend[2:]
                elif last: A('v_max_u32 v13, v13, v%d'%pend[0]); pend=[]
                else: break
        A('v_cmp_eq_u32 vcc, -1, v13')
        A('s_cbranch_vccz %s'%d)
        if sleep: A('s_sleep %d'%sleep)
        A('s_sub_u32 s61, s61, 1\ns_cmp_lg_u32 s61, 0\ns_cbranch_scc1 %s'%l)
        A('%s:'%d)
    def apoll(loads,par):
        import re as _re
        mode,D,sleep=par
        l=newlab('al'); d=newlab('ad'); gl=newlab('ag')
        rg=[]
        for x in loads:
            m=_re.search(r'v\[(\d+):(\d+)\]',x); rg.append(list(range(int(m.group(1)),int(m.group(2))+1)))
        def chain(t,r):
            r=list(r)
            if len(r)==2: A('v_max_u32 v%d, v%d, v%d'%(t,r[0],r[1])); return
            A('v_max3_u32 v%d, v%d, v%d, v%d'%(t,r[0],r[1],r[2])); r=r[3:]
            while r:
                if len(r)==1: A('v_max_u32 v%d, v%d, v%d'%(t,t,r[0])); r=[]
                else: A('v_max3_u32 v%d, v%d, v%d, v%d'%(t,t,r[0],r[1])); r=r[2:]
        n=len(loads)
        A('s_mov_b32 s61, %d'%cfg.spin)
        if mode in 'cm':
            A('%s:'%l)
            for x in loads: A(x)
            if sleep: A('s_sleep %d'%sleep)
            A('s_waitcnt vmcnt(%d)'%min(63,n*(D-1)))
            chain(13,sum(rg,[]))
            A('v_cmp_eq_u32 vcc, -1, v13')
            A('s_cbranch_vccz %s'%d)
            if mode=='m': A('s_mov_b64 exec, vcc')
            A('s_sub_u32 s61, s61, 1\ns_cmp_lg_u32 s61, 0\ns_cbranch_scc1 %s'%l)
            A('%s:'%d)
            if mode=='m': A('s_mov_b64 exec, s[4:5]')
        else:
            mk=['s[6:7]','s[8:9]','s[10:11]','s[40:41]','s[42:43]','s[44:45]','s[46:47]','s[62:63]'][:n]
            for m_ in mk: A('s_mov_b64 %s, s[4:5]'%m_)
            A('%s:'%l)
            for x,m_ in zip(loads,mk):
                sk=newlab('as')
                A('s_mov_b64 exec, %s\ns_cbranch_execz %s'%(m_,sk)); A(x); A('%s:'%sk)
            A('s_mov_b64 exec, s[4:5]')
            if sleep: A('s_sleep %d'%sleep)
            A('s_waitcnt vmcnt(%d)'%min(63,n*(D-1)))
            for i in range(n): chain(246+i,rg[i])
            chain(13,[246+i for i in range(n)])
            A('v_cmp_eq_u32 vcc, -1, v13')
            A('s_cbranch_vccz %s'%d)
            for i in range(n): A('v_cmp_eq_u32 %s, -1, v%d'%(mk[i],246+i))
            A('s_sub_u32 s61, s61, 1\ns_cmp_lg_u32 s61, 0\ns_cbranch_scc1 %s'%l)
            A('%s:'%d)
    def flagpoll(voff,execmask):
        l=newlab('fl'); d=newlab('fd')
        A('s_mov_b32 s61, %d'%cfg.spin)
        A('s_mov_b64 exec, %s'%execmask)
        A('%s:'%l)
        A('global_load_dwordx4 v[72:75], v%d, %s sc1\ns_waitcnt vmcnt(0)'%(voff,WS))
        A('v_min3_u32 v13, v72, v73, v74\nv_min_u32 v13, v13, v75\nv_cmp_eq_u32 vcc, 0, v13\ns_cbranch_vccz %s'%d)
        A('s_sleep 16')
        A('s_sub_u32 s61, s61, 1\ns_cmp_lg_u32 s61, 0\ns_cbranch_scc1 %s'%l)
        A('%s:'%d)
        A('s_mov_b64 exec, -1')
    def CLASS():
        A('s_cmp_lg_u32 s53, 0\ns_cbranch_scc1 L_nofc')
        progress(cfg.pw0)
        flagpoll(79,'-1')
        A('ds_write_b128 v1, v[72:75] offset:%d'%L_DP)
        A('v_add_u32 v7, 256, v79\ns_mov_b32 s6, 0x03030303\ns_mov_b32 s7, s6\ns_waitcnt lgkmcnt(0)')
        flagpoll(7,'s[6:7]')
        A('s_and_b32 s54, s48, 3\ns_lshl_b32 s54, s54, 7\ns_lshl_b32 s55, s49, 2\ns_add_u32 s54, s54, s55\nv_mov_b32 v7, s54')
        A('s_mov_b32 s6, 0')
        for r in range(72,76):
            A('v_and_b32 v13, 2, v%d\nv_cmp_ne_u32 vcc, 0, v13\ns_nop 1\ns_bcnt1_i32_b64 s7, vcc\ns_add_u32 s6, s6, s7'%r)
        A('s_waitcnt lgkmcnt(0)\nds_read_b32 v13, v7 offset:%d\ns_waitcnt lgkmcnt(0)\nv_readfirstlane_b32 s7, v13'%L_DP)
        if cfg.diag: A('s_mov_b32 s9, s6')
        A('s_cmp_ge_u32 s6, 32\ns_cselect_b32 s6, 1, 0')
        if cfg.par is not None: A('s_mov_b32 s6, %d'%cfg.par)
        A('s_xor_b32 s7, s7, s48\ns_bfe_u32 s7, s7, 0x10002\ns_xor_b32 s7, s7, s6\ns_lshl_b32 s7, s7, 2\ns_lshl_b32 s6, s6, 1\ns_or_b32 s6, s6, s7\ns_or_b32 s6, s6, 1')
        A('v_mov_b32 v13, s6\nds_write_b32 v11, v13 offset:%d'%(L_CNT+8))
        if cfg.diag: A('s_cmp_lg_u32 s2, 0\ns_cbranch_scc1 L_nofc\nv_mov_b32 v13, s9\nv_mov_b32 v7, 8\nglobal_store_dword v7, v13, %s'%DBG)
        A('L_nofc:')
        lds_wait(11,L_CNT+8,1,6)
        A('s_bfe_u32 s11, s54, 0x10002\ns_bfe_u32 s54, s54, 0x10001\ns_xor_b32 s10, s10, s54')
    def tr128(dst,base):
        for s_ in range(4):
            A('ds_read_b64_tr_b16 v[%d:%d], v8 offset:%d'%(dst+4*s_,dst+4*s_+1,base+4096*s_))
            A('ds_read_b64_tr_b16 v[%d:%d], v8 offset:%d'%(dst+4*s_+2,dst+4*s_+3,base+4096*s_+512))

    A('s_waitcnt vmcnt(7)')
    A('s_cmp_lg_u32 s12, 3\ns_cbranch_scc1 L_nogo')
    A('s_waitcnt vmcnt(0)')
    A('s_mov_b64 exec, 1\nglobal_store_dword v11, v12, %s sc1\ns_mov_b64 exec, -1'%DBG)
    A('L_nogo:')
    stamp(1)
    layernorm('x')
    A('s_waitcnt vmcnt(0)')
    lds_sync(0)
    stamp(2)
    tr128(80,L_WA)
    for s_ in range(4):
        A('ds_read_b128 v[%d:%d], v10 offset:%d'%(32+4*s_,35+4*s_,L_XN+64*s_))
    A('s_waitcnt lgkmcnt(0)')
    for s_ in range(4):
        A('v_mfma_f32_16x16x32_bf16 v[48:51], v[%d:%d], v[%d:%d], %s'%(80+4*s_,83+4*s_,32+4*s_,35+4*s_,'0' if s_==0 else 'v[48:51]'))
    A('s_nop 7')
    for r in range(4): A('v_min_u32 v%d, -2, v%d'%(48+r,48+r))
    A('s_mov_b32 exec_lo, 0x00ff00ff\ns_mov_b32 exec_hi, 0x00ff00ff')
    if cfg.noqst: A('s_mov_b64 exec, 1')
    A('global_store_dwordx4 v14, v[48:51], %s sc1'%WS)
    A('s_mov_b64 exec, -1')
    stamp(3)
    A('s_lshl_b32 s54, s48, 2\ns_add_u32 s54, s54, s68\ns_lshl_b32 s54, s54, 9\ns_lshl_b32 s55, s69, 2\ns_add_u32 s54, s54, s55\ns_add_u32 s54, s54, s3\nv_mov_b32 v6, s54')
    A('s_getreg_b32 s10, hwreg(HW_REG_XCC_ID)\ns_bfe_u32 s10, s10, 0x10002')
    A('s_cmp_lg_u32 s53, 3\ns_cbranch_scc1 L_noflag')
    A('s_mov_b32 s61, %d\ns_mov_b64 exec, 1\nL_go:\nglobal_load_dword v13, v11, %s sc1\ns_waitcnt vmcnt(0)\nv_cmp_eq_u32 vcc, 0, v13\ns_cbranch_vccz L_god'%(cfg.spin,DBG))
    A('s_sleep 8\ns_sub_u32 s61, s61, 1\ns_cmp_lg_u32 s61, 0\ns_cbranch_scc1 L_go\nL_god:')
    A('s_lshl_b32 s54, s10, 2\ns_or_b32 s54, s54, 1\nv_mov_b32 v7, s54\nglobal_store_dword v6, v7, %s sc1'%WS)
    A('L_noflag:')
    A('s_mov_b64 exec, 1\nds_add_u32 v11, v12 offset:%d\ns_mov_b64 exec, -1'%(L_CNT+12))
    A('s_cmp_eq_u32 s53, 0\ns_cbranch_scc1 L_qg\ns_cmp_lg_u32 s53, 1\ns_cbranch_scc1 L_qdone\ns_cmp_ge_u32 s49, 8\ns_cbranch_scc1 L_qdone')
    A('s_mov_b32 s6, 0')
    for i in range(cfg.NP):
        for c in ((0,1) if i%2==0 else (1,0)):
            l=newlab('pb'); d=newlab('pe')
            A('s_add_u32 s7, s9, %d\ns_mov_b32 s8, 0\ns_mov_b32 s61, 0\ns_load_dword s8, %s, s7'%(i*16384+c*8192,WS))
            A('%s:\ns_add_u32 s61, s61, 1\ns_cmp_gt_u32 s61, 0xffff\ns_cbranch_scc1 %s\ns_cmp_eq_u32 s8, 0\ns_cbranch_scc1 %s\n%s:\ns_waitcnt lgkmcnt(0)'%(l,d,l,d))
            if i>0: A('%s s6, s6, s61'%('s_add_i32' if c==0 else 's_sub_i32'))
    A('s_cmp_gt_i32 s6, 0\ns_cselect_b32 s6, 1, 0')
    A('s_xor_b32 s6, s6, s10\ns_lshl_b32 s6, s6, 1\ns_or_b32 s6, s6, 1\nv_mov_b32 v7, s6')
    lds_wait(11,L_CNT+12,4,2)
    A('s_mov_b64 exec, 1\nglobal_store_dword v6, v7, %s offset:256 sc1\ns_mov_b64 exec, -1\ns_branch L_qdone'%WS)
    A('L_qg:')
    A('v_and_b32 v6, 3, v0\nv_lshlrev_b32 v6, 9, v6\nv_lshrrev_b32 v14, 2, v0\nv_lshl_add_u32 v6, v14, 5, v6')
    A('s_lshl_b32 s54, s50, 13\ns_add_u32 s54, s54, %d\nv_add_u32 v6, s54, v6'%(QP+3072))
    A('s_and_b32 s54, s50, 7\ns_lshl_b32 s54, s54, 11\nv_add_u32 v7, s54, v79')
    lds_wait(11,L_CNT+12,4,2)
    progress(cfg.pq)
    flagpoll(7,'0xff')
    stamp(4)
    poll(['global_load_dwordx4 v[%d:%d], v6, %s offset:%d sc1'%(32+8*kq+4*h,35+8*kq+4*h,WS,2048*kq+16*h-3072) for kq in range(4) for h in range(2)],list(range(32,64)),sleep=8)
    for p in range(4):
        A('v_pk_add_f32 v[%d:%d], v[%d:%d], v[%d:%d]'%(32+2*p,33+2*p,32+2*p,33+2*p,40+2*p,41+2*p))
        A('v_pk_add_f32 v[%d:%d], v[%d:%d], v[%d:%d]'%(48+2*p,49+2*p,48+2*p,49+2*p,56+2*p,57+2*p))
    for p in range(4):
        A('v_pk_add_f32 v[%d:%d], v[%d:%d], v[%d:%d]'%(32+2*p,33+2*p,32+2*p,33+2*p,48+2*p,49+2*p))
    for p in range(4):
        A('v_cvt_pk_bf16_f32 v%d, v%d, v%d'%(32+p,32+2*p,33+2*p))
    A('ds_write_b128 v1, v[32:35] offset:%d'%L_QL)
    stamp(5)
    A('s_waitcnt lgkmcnt(0)')
    if cfg.qflag: A('ds_write_b32 v11, v12 offset:%d'%(L_CNT+16))
    A('L_qdone:')
    if cfg.touch:
        A('s_lshl_b32 s54, s50, 21\ns_load_dword s4, %s, s54'%VP)
        A('s_load_dword s6, %s, 0\ns_load_dword s7, %s, 0\ns_load_dword s8, %s, 0'%(WG,WU,WD))
        A('s_lshl_b32 s54, s48, 19\ns_load_dword s9, %s, s54'%WO)
        A('s_waitcnt lgkmcnt(0)')
    A('s_setprio 0')
    if not cfg.qflag: A('s_barrier')

    A('s_mov_b32 s70, 0\ns_and_b32 s54, s49, 0x13\ns_cmp_eq_u32 s54, s51\ns_cselect_b32 s70, 2, s70')
    A('s_cmp_lt_u32 s48, 4\ns_cselect_b32 s6, 16, 12\ns_cselect_b32 s7, 8, 6\ns_cselect_b32 s8, 0, 8\ns_mul_i32 s14, s48, s7\ns_add_u32 s14, s14, s8')
    if cfg.helper: A('s_and_b32 s54, s49, 0x13\ns_xor_b32 s54, s54, 2\ns_cmp_eq_u32 s54, s51\ns_cselect_b32 s9, s49, 99\ns_cmp_lt_u32 s9, s6\ns_cselect_b32 s70, 4, s70')
    A('s_sub_u32 s54, s49, 16\ns_cmp_lt_u32 s54, s6\ns_cselect_b32 s70, 1, s70')
    A('s_xor_b32 s55, s2, s49\ns_and_b32 s55, s55, 1\ns_cselect_b32 s70, 3, s70')
    A('s_bfe_u32 s54, s49, 0x30001\ns_add_u32 s14, s14, s54')
    A('s_lshr_b32 s15, s49, 2\ns_add_u32 s54, s48, %d\ns_and_b32 s54, s54, 7\ns_lshl_b32 s54, s54, 2\ns_add_u32 s15, s15, s54'%cfg.crot)
    CLASS()
    A('s_lshr_b32 s13, s2, 1\ns_andn2_b32 s13, s13, 2\ns_lshl_b32 s54, s11, 1\ns_or_b32 s13, s13, s54')
    A('s_and_b32 s54, s48, 3\ns_lshl_b32 s54, s54, 2\ns_add_u32 s67, s54, s68\ns_lshl_b32 s54, s11, 4\ns_add_u32 s67, s67, s54')
    A('s_bfe_u32 s69, s49, 0x20001')
    A('v_and_b32 v6, 3, v0\nv_lshlrev_b32 v6, 2, v6\nv_lshrrev_b32 v7, 4, v0\nv_add_u32 v6, v6, v7')
    A('v_bfe_u32 v7, v0, 2, 1')
    A('v_lshrrev_b32 v24, 4, v0\nv_lshlrev_b32 v24, 15, v24\nv_bfe_u32 v13, v0, 3, 1\nv_lshl_add_u32 v24, v13, 13, v24\nv_and_b32 v13, 0x70, v1\nv_add_u32 v24, v24, v13')
    A('s_and_b32 s54, s13, 63\ns_lshl_b32 s54, s54, 7\ns_lshr_b32 s55, s13, 6\ns_lshl_b32 s55, s55, 14\ns_add_u32 s54, s54, s55\ns_add_u32 s54, s54, %d\nv_add_u32 v24, s54, v24\ns_mov_b32 s55, s13'%HB)
    A('v_lshlrev_b32 v6, 1, v6\nv_lshl_add_u32 v6, v7, 10, v6\ns_lshr_b32 s54, s55, 5\ns_lshl_b32 s54, s54, 11\ns_and_b32 s55, s55, 31\ns_lshl_b32 s55, s55, 5\ns_add_u32 s54, s54, s55\nv_add_u32 v6, s54, v6')
    A('global_load_ushort v16, v6, %s'%X)
    def paced(k,n,line):
        f=lambda k: cfg.pw0+(k*(cfg.pw1-cfg.pw0))//n
        if k==0 or f(k)!=f(k-1): progress(f(k))
        assert f(k)<cfg.NS
        A(line)
    def dma1(k):
        i=k//2
        return ('v_add_u32 v7, %d, v6\n'%(i*16*3584))+'s_add_u32 m0, s71, %d\ns_nop 0\nglobal_load_lds_dwordx4 v7, %s %s'%(L_WA+32768*(k&1)+i*1024,WU if k&1 else WG,cfg.ff)
    def dma2(i):
        return ('v_add_u32 v7, %d, v6\n'%(i*0x8000))+'s_add_u32 m0, s71, %d\ns_nop 0\nglobal_load_lds_dwordx4 v7, %s %s'%(L_WA+i*1024,WD,cfg.ff)
    l1=newlab('w1'); l2=newlab('w2'); le=newlab('we')
    A('s_cmp_eq_u32 s70, 0\ns_cbranch_scc1 %s\ns_cmp_eq_u32 s70, 2\ns_cbranch_scc1 %s\ns_cmp_lg_u32 s70, 3\ns_cbranch_scc1 %s'%(le,l2,l1))
    A('s_lshl_b32 s54, s67, 7\ns_lshl_b32 s55, s53, 1\ns_add_u32 s54, s54, s55\ns_lshl_b32 s54, s54, 10\ns_lshl_b32 s55, s69, 8\ns_add_u32 s54, s54, s55')
    A('v_lshrrev_b32 v6, 4, v0\nv_lshlrev_b32 v6, 13, v6\nv_and_b32 v7, 15, v0\nv_lshl_add_u32 v6, v7, 4, v6\nv_add_u32 v6, s54, v6')
    A('s_lshl_b32 s71, s53, 13')
    def dmaw(i):
        return 'v_add_u32 v7, %d, v6\ns_add_u32 m0, s71, %d\ns_nop 0\nglobal_load_lds_dwordx4 v7, %s %s'%((32*(i&3)+(i>>2))*1024,L_WA+i*1024,WO,cfg.wf)
    for i in range(0 if cfg.noW else cfg.EW): paced(i,cfg.EW,dmaw(i))
    A('s_branch %s'%le)
    A('%s:'%l1)
    A('s_lshl_b32 s54, s14, 6')
    A('s_lshl_b32 s55, s53, 7\nv_lshrrev_b32 v6, 2, v0\nv_add_u32 v6, s55, v6\nv_mul_u32_u24 v6, 3584, v6\nv_and_b32 v7, 3, v0\nv_lshl_add_u32 v6, v7, 4, v6\nv_add_u32 v6, s54, v6')
    A('s_lshl_b32 s71, s53, 13')
    A('s_cmp_eq_u32 s70, 4\ns_cbranch_scc1 %s'%le)
    for k in range(cfg.E1): paced(k,cfg.E1,dma1(k))
    A('s_branch %s'%le)
    A('%s:'%l2)
    A('s_mul_i32 s54, s53, 448\nv_lshrrev_b32 v6, 1, v0\nv_add_u32 v6, s54, v6\nv_lshlrev_b32 v6, 10, v6')
    A('v_and_b32 v7, 1, v0\nv_lshl_add_u32 v6, v7, 4, v6\ns_lshl_b32 s54, s15, 5\nv_add_u32 v6, s54, v6')
    A('s_mul_i32 s71, s53, 14336')
    for k in range(cfg.E2): paced(k,cfg.E2,dma2(k))
    A('%s:'%le)
    A('s_waitcnt vmcnt(0)')
    A('v_lshlrev_b32 v16, 16, v16')
    lds_sync(1,sleep=4)
    stamp(6)
    l1=newlab('r1'); l2=newlab('r2'); le=newlab('re')
    A('v_mov_b32 v26, 0\nv_mov_b32 v27, 0\nv_mov_b32 v28, 0\nv_mov_b32 v29, 0')
    A('s_cmp_eq_u32 s70, 1\ns_cbranch_scc1 %s\ns_cmp_eq_u32 s70, 2\ns_cbranch_scc1 %s'%(l1,l2))
    A('v_lshrrev_b32 v8, 4, v0\nv_lshlrev_b32 v8, 11, v8\nv_bfe_u32 v7, v0, 2, 2\nv_lshl_add_u32 v8, v7, 8, v8\nv_and_b32 v7, 3, v0\nv_lshl_add_u32 v8, v7, 3, v8')
    A('s_lshl_b32 s54, s53, 6\ns_add_u32 s54, s54, %d\nv_add_u32 v8, s54, v8'%L_WA)
    def trw():
        for t in range(2):
            for s_ in range(4):
                r=80+16*t+4*s_
                A('ds_read_b64_tr_b16 v[%d:%d], v8 offset:%d'%(r,r+1,8192*s_+32*t))
                A('ds_read_b64_tr_b16 v[%d:%d], v8 offset:%d'%(r+2,r+3,8192*s_+32*t+1024))
            if t==0 or cfg.EW==8: A('s_waitcnt lgkmcnt(0)')
    if cfg.EW==8: trw()
    A('s_branch %s'%le)
    A('%s:'%l1)
    A('v_lshrrev_b32 v8, 4, v0\nv_lshlrev_b32 v8, 9, v8\nv_bfe_u32 v7, v0, 2, 2\nv_lshl_add_u32 v8, v7, 6, v8')
    A('v_and_b32 v7, 1, v0\nv_lshl_add_u32 v8, v7, 3, v8\nv_bfe_u32 v7, v0, 1, 1\nv_lshl_add_u32 v8, v7, 15, v8\ns_lshl_b32 s54, s53, 4\ns_add_u32 s54, s54, %d\nv_add_u32 v8, s54, v8'%L_WA)
    A('s_mul_i32 s55, s14, 147\ns_lshr_b32 s55, s55, 11\ns_mul_i32 s55, s55, %d'%(16384-7168))
    A('s_lshl_b32 s54, s14, 2\ns_add_u32 s54, s54, s53\ns_lshl_b32 s54, s54, 7\ns_add_u32 s54, s54, s55\ns_add_u32 s54, s54, %d'%AB)
    A('v_and_b32 v27, 0x70, v1\nv_lshrrev_b32 v7, 4, v0\nv_lshl_add_u32 v27, v7, 16, v27\nv_bfe_u32 v7, v0, 3, 1\nv_lshlrev_b32 v7, 13, v7\nv_add3_u32 v27, v27, v7, s54')
    A('s_and_b32 s55, s48, 3\ns_lshl_b32 s55, s55, 15\ns_lshl_b32 s54, s10, 13\ns_add_u32 s54, s54, s55\ns_lshr_b32 s55, s53, 1\ns_lshl_b32 s55, s55, 14\ns_add_u32 s54, s54, s55')
    A('s_and_b32 s55, s53, 1\ns_lshl_b32 s55, s55, 12\ns_add_u32 s54, s54, s55\ns_add_u32 s54, s54, %d\nv_add_u32 v4, s54, v1'%HB)
    A('v_bfe_u32 v5, v0, 2, 1\ns_lshl_b32 s54, s53, 1\nv_add_u32 v5, s54, v5\nv_mul_u32_u24 v5, %d, v5\nv_lshrrev_b32 v7, 3, v0\nv_lshl_add_u32 v5, v7, 5, v5\nv_and_b32 v7, 3, v0\nv_lshl_add_u32 v5, v7, 3, v5'%XNS)
    A('s_branch %s'%le)
    A('%s:'%l2)
    A('v_lshrrev_b32 v8, 4, v0\nv_lshlrev_b32 v8, 9, v8\nv_bfe_u32 v7, v0, 1, 1\nv_lshl_add_u32 v8, v7, 8, v8\nv_bfe_u32 v7, v0, 2, 2\nv_lshl_add_u32 v8, v7, 5, v8')
    A('v_and_b32 v7, 1, v0\nv_lshl_add_u32 v8, v7, 3, v8\ns_add_u32 s55, s71, %d\nv_add_u32 v8, s55, v8'%L_WA)
    A('v_bfe_u32 v26, v0, 2, 1\nv_lshlrev_b32 v26, 10, v26\nv_bfe_u32 v7, v0, 1, 1\nv_lshl_add_u32 v26, v7, 8, v26\nv_lshrrev_b32 v7, 3, v0\nv_lshl_add_u32 v26, v7, 4, v26\nv_and_b32 v7, 1, v0\nv_lshl_add_u32 v26, v7, 3, v26')
    A('s_and_b32 s55, s48, 3\ns_lshl_b32 s55, s55, 16\ns_lshl_b32 s54, s53, 14\ns_add_u32 s54, s54, s55\ns_lshl_b32 s55, s10, 13\ns_add_u32 s54, s54, s55\ns_add_u32 s54, s54, %d\nv_add_u32 v27, s54, v1'%(AB+3072))
    A('s_mov_b32 s54, s15\ns_lshl_b32 s55, s54, 5')
    A('v_lshrrev_b32 v28, 3, v0\nv_lshlrev_b32 v28, 10, v28\nv_and_b32 v7, 7, v0\nv_lshl_add_u32 v28, v7, 2, v28\nv_add_u32 v28, s55, v28')
    A('s_lshl_b32 s54, s54, 7\ns_and_b32 s55, s48, 3\ns_lshl_b32 s55, s55, 15\ns_add_u32 s54, s54, s55\ns_lshl_b32 s55, s10, 13\ns_add_u32 s54, s54, s55\ns_add_u32 s54, s54, %d'%HB)
    A('v_bfe_u32 v29, v0, 4, 1\nv_lshlrev_b32 v29, 12, v29\nv_lshrrev_b32 v7, 5, v0\nv_lshl_add_u32 v29, v7, 14, v29\nv_and_b32 v7, 15, v0\nv_lshl_add_u32 v29, v7, 3, v29\nv_add_u32 v29, s54, v29')
    A('s_lshl_b32 s54, s53, 11\nv_add_u32 v10, s54, v1')
    A('%s:'%le)
    A('s_lshl_b32 s54, s53, 9\nv_add_u32 v17, s54, v3')
    A('s_and_b32 s54, s50, 3\ns_lshl_b32 s54, s54, 2\ns_add_u32 s54, s54, s53\ns_mul_i32 s54, s54, 49152\ns_bfe_u32 s55, s50, 0x10002\ns_lshl_b32 s55, s55, 13\ns_add_u32 s54, s54, s55')
    A('s_lshr_b32 s6, s50, 3\ns_mul_i32 s7, s6, 11\ns_lshr_b32 s7, s7, 5\ns_mul_i32 s7, s7, %d\ns_lshl_b32 s6, s6, 2\ns_add_u32 s6, s6, s51\ns_mul_i32 s6, s6, %d'%(16384-12*OPS,OPS))
    A('s_add_u32 s54, s54, s6\ns_add_u32 s54, s54, s7\ns_add_u32 s54, s54, %d\nv_add_u32 v18, s54, v1'%OP)
    A('s_and_b32 s54, s67, 15\ns_mul_i32 s54, s54, 49152\ns_lshl_b32 s55, s11, 13\ns_add_u32 s54, s54, s55\ns_add_u32 s54, s54, %d'%OP)
    A('v_mul_u32_u24 v7, 11, v2\nv_lshrrev_b32 v7, 5, v7\nv_mul_u32_u24 v7, %d, v7\nv_mul_u32_u24 v25, %d, v2\nv_add3_u32 v25, v25, v7, s54\nv_add_u32 v19, v25, v3'%(16384-12*OPS,4*OPS))
    A('s_lshl_b32 s54, s53, 5\nv_mov_b32 v30, s54')
    A('v_mul_u32_u24 v20, %d, v2\nv_lshrrev_b32 v7, 1, v3\nv_add_u32 v20, v20, v7'%XOS)
    A('v_and_b32 v21, 7, v0\nv_mul_u32_u24 v21, %d, v21\nv_add_u32 v21, v21, v15'%XOS)
    A('s_lshl_b32 s54, s69, 2\ns_add_u32 s54, s54, s53\ns_lshl_b32 s54, s54, 13\ns_add_u32 s54, s54, %d'%(WP+2048))
    A('s_lshl_b32 s55, s69, 1\ns_add_u32 s55, s55, s67' if cfg.wrot else 's_mov_b32 s55, s67')
    A('v_bfe_u32 v22, v0, 1, 2')
    A('v_lshl_add_u32 v7, v22, 3, s55' if cfg.wrot else 'v_mov_b32 v7, s55')
    A('v_and_b32 v7, 31, v7\nv_lshlrev_b32 v22, 17, v22\nv_lshl_add_u32 v22, v7, 7, v22\nv_and_b32 v7, 1, v0\nv_lshl_add_u32 v22, v7, 6, v22\nv_add3_u32 v22, v22, v15, s54')
    A('s_lshl_b32 s54, s13, 12\ns_add_u32 s54, s54, %d\nv_add_u32 v23, s54, v1'%WP)
    def guarded(lines):
        A(lines)
    def drychk():
        pass
    for r in range(192,246): A('v_mov_b32 v%d, -1'%r)
    A('s_waitcnt lgkmcnt(0)')
    A('s_mov_b64 vcc, 0\ns_mov_b64 s[4:5], %d\ns_mov_b64 exec, s[4:5]'%(0 if cfg.warm else -1))
    wpl=['global_load_dwordx4 v[%d:%d], v23, %s offset:%d sc1'%(216+4*t,219+4*t,WS,1024*t) for t in range(4)]
    opl=['global_load_dwordx2 v[%d:%d], v25, %s offset:%d sc1'%(208+2*s_,209+2*s_,WS,OPS*s_+512) for s_ in range(4)]+['global_load_dwordx4 v[%d:%d], v19, %s offset:%d sc1'%(192+4*s_,195+4*s_,WS,OPS*s_) for s_ in range(4)]
    hbl=['global_load_dwordx4 v[%d:%d], v4, %s offset:%d sc1'%(216+4*t,219+4*t,WS,1024*t) for t in range(4)]
    abl=['global_load_dwordx4 v[%d:%d], v27, %s offset:%d sc1'%(216+4*t,219+4*t,WS,1024*t-3072) for t in range(7)]
    if cfg.pre:
        A('s_cmp_lg_u32 s70, 3\ns_cbranch_scc1 L_pre1')
        if cfg.pre&2: A('\n'.join(opl))
        A('s_cmp_lg_u32 s53, 0\ns_cbranch_scc1 L_pre3')
        if cfg.pre&1: A('\n'.join(wpl))
        A('s_branch L_pre3\nL_pre1:')
        if cfg.pre&4:
            A('s_cmp_lg_u32 s70, 1\ns_cbranch_scc1 L_pre2'); A('\n'.join(hbl)); A('L_pre2:\ns_cmp_lg_u32 s70, 2\ns_cbranch_scc1 L_pre3'); A('\n'.join(abl))
        A('L_pre3:')
    A('L_tail:')
    stamp(7)
    guarded('s_barrier')
    def wsum(b0,half,s0=None):
        d='v[%d:%d]'%(b0+2*half,b0+2*half+1)
        s0=s0 or b0
        for w in range(4):
            src='v[%d:%d]'%(s0+4*w+2*half,s0+4*w+2*half+1)
            f='v[%d:%d]'%(72+2*(w//2),73+2*(w//2))
            if w==0: A('v_pk_mul_f32 %s, %s, %s op_sel_hi:[1,0]'%(d,src,f))
            elif w%2==0: A('v_pk_fma_f32 %s, %s, %s, %s op_sel_hi:[1,0,1]'%(d,src,f,d))
            else: A('v_pk_fma_f32 %s, %s, %s, %s op_sel:[0,1,0] op_sel_hi:[1,1,1]'%(d,src,f,d))
    if cfg.gleak is not None:
        k,lo,hi,msk=cfg.gleak
        A('s_cbranch_execz L_nogl\ns_cmp_lg_u32 s53, 0\ns_cbranch_scc1 L_nogl')
        if k==8: stamp(8); A('s_waitcnt lgkmcnt(0)')
        if k==200: A('s_getreg_b32 s72, hwreg(HW_REG_XCC_ID)\ns_sub_u32 s72, s72, s48\ns_and_b32 s72, s72, 7\ns_mul_i32 s72, s72, 50\nv_mov_b32 v33, s72')
        elif k>=100: A('v_mov_b32 v32, %d\nds_read_b32 v33, v32 offset:%d\ns_waitcnt lgkmcnt(0)'%(4*(k-100),L_ST))
        else: A('v_mov_b32 v33, s%d'%(72+2*k))
        A('v_not_b32 v33, v33\nv_mov_b32 v34, s72\nv_mov_b32 v32, 0x3b0000')
        A('s_mov_b64 exec, 1')
        if k!=8: A('global_atomic_umin v32, v34, %s'%WS)
        A('s_and_b32 s54, s2, %d\ns_sub_u32 s54, s54, %d\ns_cmp_ge_u32 s54, %d\ns_cbranch_scc1 L_nogl2'%(msk,lo,hi-lo))
        A('global_atomic_umin v32, v33, %s offset:256'%WS)
        A('L_nogl2:\ns_mov_b64 exec, -1\n'+('s_nop 2' if k==8 else 's_waitcnt vmcnt(0)'))
        A('L_nogl:')
    A('ds_read_b128 v[64:67], v30 offset:%d\nds_read_b128 v[68:71], v30 offset:%d'%(L_MLW,L_MLW+16))
    for w in range(4):
        A('ds_read_b128 v[%d:%d], v17 offset:%d'%(32+4*w,35+4*w,L_OW+2048*w))
    stamp(8)
    if cfg.notail: A('s_branch L_fin')
    A('s_and_b32 exec_hi, s4, 1')
    A('s_waitcnt lgkmcnt(%d)'%(0 if cfg.diag else 4))
    A('v_max3_f32 v76, v64, v65, v66\nv_max_f32 v76, v76, v67')
    A('v_pk_add_f32 v[72:73], v[64:65], v[76:77] op_sel_hi:[1,0] neg_lo:[0,1] neg_hi:[0,1]')
    A('v_pk_add_f32 v[74:75], v[66:67], v[76:77] op_sel_hi:[1,0] neg_lo:[0,1] neg_hi:[0,1]')
    for i in range(4): A('v_exp_f32 v%d, v%d'%(72+i,72+i))
    A('v_pk_mul_f32 v[68:69], v[68:69], v[72:73]\nv_pk_fma_f32 v[68:69], v[70:71], v[74:75], v[68:69]')
    A('s_waitcnt lgkmcnt(0)')
    A('v_add_f32 v77, v68, v69')
    wsum(32,0); wsum(32,1)
    A('v_mov_b32_dpp v32, v76 quad_perm:[0,1,2,3] row_mask:0x4 bank_mask:0xf')
    A('v_mov_b32_dpp v33, v77 quad_perm:[0,1,2,3] row_mask:0x4 bank_mask:0xf')
    guarded('global_store_dwordx4 v18, v[32:35], %s sc1'%WS)
    tstamp(1)
    A('s_mov_b64 exec, s[4:5]')
    A('s_cmp_lg_u32 s70, 3\ns_cbranch_scc1 L_rdone')
    if cfg.EW<8:
        for i in range(cfg.EW,8): A(dmaw(i))
        A('s_waitcnt vmcnt(0)\ns_barrier')
        trw()
    apoll(['global_load_dwordx2 v[%d:%d], v25, %s offset:%d sc1'%(208+2*s_,209+2*s_,WS,OPS*s_+512) for s_ in range(4)]+
         ['global_load_dwordx4 v[%d:%d], v19, %s offset:%d sc1'%(192+4*s_,195+4*s_,WS,OPS*s_) for s_ in range(4)],cfg.pW)
    stamp(9)
    if cfg.head:
        A('s_cmp_lg_u32 s53, 0\ns_cbranch_scc1 L_nohead'); A('\n'.join(wpl)); A('L_nohead:')
    A('v_max3_f32 v76, v208, v210, v212\nv_max_f32 v76, v76, v214')
    for i in range(4): A('v_sub_f32 v%d, v%d, v76'%(72+i,208+2*i))
    for i in range(4): A('v_exp_f32 v%d, v%d'%(72+i,72+i))
    A('v_mul_f32 v78, v72, v209')
    for i in range(1,4): A('v_fmac_f32 v78, v%d, v%d'%(72+i,209+2*i))
    A('v_rcp_f32 v78, v78')
    wsum(48,0,192); wsum(48,1,192)
    A('v_pk_mul_f32 v[48:49], v[48:49], v[78:79] op_sel_hi:[1,0]\nv_pk_mul_f32 v[50:51], v[50:51], v[78:79] op_sel_hi:[1,0]')
    A('v_cvt_pk_bf16_f32 v48, v48, v49\nv_cvt_pk_bf16_f32 v49, v50, v51')
    A('ds_write_b64 v20, v[48:49] offset:%d'%L_XO)
    A('s_waitcnt lgkmcnt(0)'); guarded('s_barrier')
    if cfg.tdiag: tstamp(2); A('s_waitcnt lgkmcnt(0)')
    for s_ in range(4):
        A('ds_read_b128 v[%d:%d], v21 offset:%d'%(32+4*s_,35+4*s_,L_XO+64*s_))
    for s_ in range(4):
        A('s_waitcnt lgkmcnt(%d)'%(3-s_))
        for t in range(2):
            acc='v[%d:%d]'%(48+4*t,51+4*t); r=80+16*t+4*s_
            A('v_mfma_f32_16x16x32_bf16 %s, v[%d:%d], v[%d:%d], %s'%(acc,r,r+3,32+4*s_,35+4*s_,'0' if s_==0 else acc))
    A('s_mov_b32 exec_lo, 0x00ff00ff\ns_mov_b32 exec_hi, 0x00ff00ff')
    A('s_nop 4')
    A('global_store_dwordx4 v22, v[48:51], %s offset:-2048 sc1'%WS)
    A('global_store_dwordx4 v22, v[52:55], %s offset:2048 sc1'%WS)
    tstamp(3)
    A('s_mov_b64 exec, -1')
    A('s_cmp_lg_u32 s53, 0\ns_cbranch_scc1 L_fin')
    apoll(['global_load_dwordx4 v[%d:%d], v23, %s offset:%d sc1'%(216+4*t,219+4*t,WS,1024*t) for t in range(4)],cfg.pR)
    stamp(10)
    A('v_pk_add_f32 v[32:33], v[216:217], v[220:221]\nv_pk_add_f32 v[34:35], v[218:219], v[222:223]')
    A('v_pk_add_f32 v[40:41], v[224:225], v[228:229]\nv_pk_add_f32 v[42:43], v[226:227], v[230:231]')
    A('v_pk_add_f32 v[32:33], v[32:33], v[40:41]\nv_pk_add_f32 v[34:35], v[34:35], v[42:43]')
    A('s_nop 1\nv_permlane32_swap_b32 v32, v34\nv_permlane32_swap_b32 v33, v35')
    A('v_add_f32 v32, v32, v34\nv_add_f32 v33, v33, v35')
    A('s_nop 1\nv_permlane16_swap_b32 v32, v33\nv_add_f32 v32, v32, v33')
    dppadd(32,'row_ror:8')
    rbf(32)
    A('v_add_f32 v32, v32, v16')
    rbf(32)
    A('v_mov_b32 v33, v32\ns_nop 1\nv_permlane16_swap_b32 v32, v33\nv_mov_b32 v34, v32\nv_mov_b32 v35, v33\ns_nop 0')
    A('v_permlane32_swap_b32 v32, v34\nv_permlane32_swap_b32 v33, v35')
    if cfg.nH<8: A('s_and_b32 exec_lo, s4, 0x%x\ns_mov_b32 exec_hi, 0'%((1<<(8*cfg.nH))-1))
    guarded('global_store_dwordx4 v24, v[32:35], %s sc1'%WS)
    tstamp(4)
    A('s_branch L_fin')
    A('L_rdone:')
    A('s_cmp_eq_u32 s70, 2\ns_cbranch_scc1 L_ffn2')
    A('s_cmp_eq_u32 s70, 0\ns_cbranch_scc1 L_fin')
    if cfg.lrot:
        assert cfg.E1%2==0
        i0=cfg.E1//2; n=8-i0
        if cfg.helper: A('s_and_b32 s6, s14, 1\ns_cmp_eq_u32 s70, 4\ns_cselect_b32 s6, 2, s6\ns_mul_i32 s6, s6, %d\ns_add_u32 s6, s6, %d'%(n//3,i0))
        else: A('s_and_b32 s6, s14, 1\ns_mul_i32 s6, s6, %d\ns_add_u32 s6, s6, %d'%(n//2,i0))
        for it in range(n):
            if cfg.helper and it==n-2*(n//3): A('s_cmp_eq_u32 s70, 4\ns_cbranch_scc1 L_fin')
            A('s_mul_i32 s7, s6, %d\nv_add_u32 v7, s7, v6\ns_lshl_b32 s7, s6, 10\ns_add_u32 s7, s7, s71\ns_add_u32 m0, s7, %d\ns_add_u32 s6, s6, 1'%(16*3584,L_WA))
            A('global_load_lds_dwordx4 v7, %s %s'%(WG,cfg.ff))
            A('s_add_u32 m0, s7, %d\ns_cmp_eq_u32 s6, 8\ns_cselect_b32 s6, %d, s6'%(L_WA+32768,i0))
            A('global_load_lds_dwordx4 v7, %s %s'%(WU,cfg.ff))
    else:
        for k in range(cfg.E1,16): A(dma1(k))
    A('s_waitcnt vmcnt(0)\ns_barrier')
    for s_ in range(16):
        A('ds_read_b64_tr_b16 v[%d:%d], v8 offset:%d'%(96+4*s_,97+4*s_,2048*s_))
        A('ds_read_b64_tr_b16 v[%d:%d], v8 offset:%d'%(98+4*s_,99+4*s_,2048*s_+256))
        if s_%4==3: A('s_waitcnt lgkmcnt(0)')
    tstamp(2)
    apoll(['global_load_dwordx4 v[%d:%d], v4, %s offset:%d sc1'%(216+4*t,219+4*t,WS,1024*t) for t in range(4)],cfg.pF)
    stamp(11)
    layernorm('h')
    tstamp(5)
    A('s_waitcnt lgkmcnt(0)'); guarded('s_barrier')
    if cfg.tdiag: tstamp(6); A('s_waitcnt lgkmcnt(0)')
    for s_ in range(8):
        A('ds_read_b128 v[%d:%d], v9 offset:%d'%(32+4*s_,35+4*s_,L_XN+64*s_))
    for s_ in range(16):
        A('s_waitcnt lgkmcnt(%d)'%min(7,15-s_))
        b=32+4*(s_%8) if s_<8 else 160+4*(s_-8)
        A('v_mfma_f32_16x16x32_bf16 v[64:67], v[%d:%d], v[%d:%d], %s'%(96+4*s_,99+4*s_,b,b+3,'0' if s_==0 else 'v[64:67]'))
        if s_<8: A('ds_read_b128 v[%d:%d], v9 offset:%d'%(160+4*s_,163+4*s_,L_XN+64*(s_+8)))
    A('s_nop 7')
    A('v_permlane32_swap_b32 v64, v65\nv_permlane32_swap_b32 v66, v67')
    A('s_nop 1')
    A('v_mov_b32_dpp v64, v66 quad_perm:[0,1,2,3] row_mask:0xf bank_mask:0xc')
    A('v_mov_b32_dpp v65, v67 quad_perm:[0,1,2,3] row_mask:0xf bank_mask:0xc')
    A('v_cvt_pk_bf16_f32 v32, 0, v64\nv_cvt_pk_bf16_f32 v36, 0, v65')
    A('v_mul_f32 v33, v32, v32\nv_mul_f32 v33, 0x3d372713, v33\nv_fma_f32 v33, v33, v32, v32')
    A('v_mul_f32 v33, 0xc0135761, v33\nv_exp_f32 v33, v33\ns_nop 0\nv_add_f32 v33, 1.0, v33\nv_rcp_f32 v33, v33\ns_nop 0\nv_mul_f32 v33, v33, v32')
    rbf(33)
    A('v_mul_f32 v33, v33, v36\nv_mov_b32 v34, v33\ns_nop 1\nv_permlane32_swap_b32 v33, v34')
    A('v_cvt_pk_bf16_f32 v33, v33, v34\nv_min_u32 v36, -2, v33')
    A('v_mov_b32 v32, v36\nv_mov_b32 v33, v36\ns_nop 0')
    A('v_mov_b32_dpp v32, v36 row_ror:8 row_mask:0xf bank_mask:0xc\nv_mov_b32_dpp v33, v36 row_ror:8 row_mask:0xf bank_mask:0x3')
    A('v_mov_b32 v34, v32\nv_mov_b32 v35, v33\ns_nop 0')
    A('v_permlane16_swap_b32 v32, v34\nv_permlane16_swap_b32 v33, v35')
    if cfg.nA<8: A('s_and_b32 exec_lo, s4, 0x%x\ns_mov_b32 exec_hi, 0'%((1<<(8*cfg.nA))-1))
    guarded('global_store_dwordx4 v27, v[32:35], %s sc1'%WS)
    stamp(12)
    A('L_fin:')
    A('s_waitcnt vmcnt(0)')
    if cfg.diag:
        dump_stamps(14,8)
    A('s_endpgm')
    A('L_ffn2:')
    if cfg.lrot:
        n=14-cfg.E2
        A('s_and_b32 s6, s15, 3\ns_mul_i32 s6, s6, %d\ns_lshr_b32 s6, s6, 2\ns_add_u32 s6, s6, %d'%(n,cfg.E2))
        for _ in range(n):
            A('s_lshl_b32 s7, s6, 15\nv_add_u32 v7, s7, v6\ns_lshl_b32 s7, s6, 10\ns_add_u32 s7, s7, s71\ns_add_u32 m0, s7, %d\ns_add_u32 s6, s6, 1'%L_WA)
            A('global_load_lds_dwordx4 v7, %s %s'%(WD,cfg.ff))
            A('s_cmp_eq_u32 s6, 14\ns_cselect_b32 s6, %d, s6'%cfg.E2)
    else:
        for k in range(cfg.E2,14): A(dma2(k))
    A('s_waitcnt vmcnt(0)')
    for t in range(7):
        for tt in range(2):
            r=96+8*t+4*tt
            A('ds_read_b64_tr_b16 v[%d:%d], v8 offset:%d'%(r,r+1,2048*t+16*tt))
            A('ds_read_b64_tr_b16 v[%d:%d], v8 offset:%d'%(r+2,r+3,2048*t+16*tt+128))
        if t%2==0: A('s_waitcnt lgkmcnt(0)')
    tstamp(2)
    poll(guard=True,loads=['global_load_dwordx2 v[60:61], v29, %s sc1'%WS],regs=[60,61])
    apoll(['global_load_dwordx4 v[%d:%d], v27, %s offset:%d sc1'%(216+4*t,219+4*t,WS,1024*t-3072) for t in range(7)],cfg.pG)
    stamp(10)
    for t in range(7):
        for tt in range(2):
            acc='v[%d:%d]'%(64+4*tt,67+4*tt)
            r=96+8*t+4*tt
            A('v_mfma_f32_16x16x32_bf16 %s, v[%d:%d], v[%d:%d], %s'%(acc,r,r+3,216+4*t,219+4*t,'0' if t==0 else acc))
    A('s_nop 6')
    A('ds_write_b128 v10, v[64:67] offset:%d'%L_DP)
    A('ds_write_b128 v10, v[68:71] offset:%d'%(L_DP+1024))
    A('s_waitcnt lgkmcnt(0)'); guarded('s_barrier')
    tstamp(6)
    A('s_cmp_lg_u32 s53, 0\ns_cbranch_scc1 L_fin')
    for w in range(4):
        A('ds_read_b64 v[%d:%d], v26 offset:%d'%(32+4*w,33+4*w,L_DP+2048*w))
        A('ds_read_b64 v[%d:%d], v26 offset:%d'%(34+4*w,35+4*w,L_DP+2048*w+640))
    A('s_waitcnt lgkmcnt(0)')
    for w in range(4): A('v_pk_add_f32 v[%d:%d], v[%d:%d], v[%d:%d]'%(32+4*w,33+4*w,32+4*w,33+4*w,34+4*w,35+4*w))
    A('v_pk_add_f32 v[32:33], v[32:33], v[36:37]\nv_pk_add_f32 v[40:41], v[40:41], v[44:45]\nv_pk_add_f32 v[32:33], v[32:33], v[40:41]')
    A('v_cvt_pk_bf16_f32 v32, 0, v32\nv_cvt_pk_bf16_f32 v33, 0, v33')
    A('v_pk_add_f32 v[32:33], v[32:33], v[60:61]')
    A('v_cvt_pk_bf16_f32 v32, v32, v33')
    if cfg.odiag: stamp(12)
    guarded('global_store_dword v28, v32, %s %s'%(OUT,cfg.of))
    if cfg.odiag: A('s_waitcnt vmcnt(0)')
    drychk()
    if cfg.diag:
        stamp(13)
        if cfg.leak is not None:
            a,b=cfg.leak
            A('s_waitcnt lgkmcnt(0)')
            if cfg.gleak is not None:
                A('v_mov_b32 v8, 0x3b0000\nglobal_load_dword v9, v8, %s sc1\nglobal_load_dword v10, v8, %s offset:256 sc1\ns_waitcnt vmcnt(0)'%(WS,WS))
                if b==14: A('v_not_b32 v9, v10\nv_mov_b32 v10, s%d'%(72+2*13))
                elif b==13: A('v_mov_b32 v10, s%d'%(72+2*13))
                else: A('v_not_b32 v10, v10')
                A('v_sub_u32 v9, v10, v9\ns_nop 1\nv_readfirstlane_b32 s54, v9')
                if b==0: A('s_mov_b32 s54, 0')
            elif a>=100:
                A('v_mov_b32 v8, %d\nds_read_b32 v9, v8 offset:%d\nds_read_b32 v10, v8 offset:%d\ns_waitcnt lgkmcnt(0)\nv_sub_u32 v9, v9, v10\ns_nop 1\nv_readfirstlane_b32 s54, v9'%(0,L_ST+4*(b-100),L_ST+4*(a-100)))
            elif b>=100:
                A('v_mov_b32 v8, %d\nds_read_b32 v9, v8 offset:%d\ns_waitcnt lgkmcnt(0)\nv_readfirstlane_b32 s54, v9\ns_sub_u32 s54, s54, s%d'%(4*(b-100),L_ST,72+2*a))
            else: A('s_sub_u32 s54, s%d, s%d'%(72+2*b,72+2*a))
            A('s_mul_i32 s54, s54, %d\ns_min_u32 s54, s54, 60000'%cfg.mult)
            A('L_leak:')
            A('s_memrealtime s[68:69]\ns_waitcnt lgkmcnt(0)\ns_sub_u32 s55, s68, s%d\ns_cmp_lt_u32 s55, s54\ns_cbranch_scc1 L_leak'%(72+2*13))
        else:
            A('s_waitcnt lgkmcnt(0)\ns_mov_b32 s100, s92\ns_mov_b32 s92, 0')
            dump_stamps(15,8)
    A('L_end:')
    A('s_endpgm')
    A('.section .rodata,"a"\n.p2align 6\n.amdhsa_kernel %s'%K)
    A('  .amdhsa_next_free_vgpr 256\n  .amdhsa_next_free_sgpr 102\n  .amdhsa_accum_offset 256\n  .amdhsa_group_segment_fixed_size 0\n  .amdhsa_kernarg_size 96')
    A('  .amdhsa_user_sgpr_count 2\n  .amdhsa_user_sgpr_kernarg_segment_ptr 1\n  .amdhsa_system_sgpr_workgroup_id_x 1')
    A('  .amdhsa_float_denorm_mode_32 3\n  .amdhsa_float_denorm_mode_16_64 3')
    A('.end_amdhsa_kernel')
    return '\n'.join(L)+'\n'

if __name__=='__main__':
    cfg=Cfg()
    out=sys.argv[1]
    for a in sys.argv[2:]:
        k,v=a.split('=',1); setattr(cfg,k,eval(v))
    s=gen(cfg)
    hdr=''.join(l for l in open('cdna_kernels/%s.s.ref'%NAME).readlines()[:13])
    open(out,'w').write(hdr+s)
```

```python
import sys
NAME='sequential_preLN__gqa_block_cached__geglu_ffn__decode'
K=NAME+'_kernel'

class Cfg:
    diag=False
    leak=None
    nocomp=False
    noq=False
    T2=12
    disp=4; LA=1; boost=(1,5,3); lf='sc1'; sf='sc1'
    skipG=False; skipF=False
    par=None
    NP=3
    HS=20736; AS=28672; wrot=False; pre=0; head=0
    upfront=False
    vdiag=None
    odiag=False
    touch=True
    sdiag=False
    mult=1
    Q1=0; Q2=0
    E1=4; E2=0; EW=8; lrot=True; helper=False
    T0=None; n0=24
    qflag=True
    chunk=0
    bare=0
    notail=False
    knat=False
    cdbg=False
    ctouch=None
    rot=4
    cs=9
    nowq=False
    noqst=False
    nH=8; nA=8
    pW=('c',1,0); pR=('m',8,1); pF=('c',1,0); pG=('c',1,0)
    tdiag=False
    tsleep=0
    crot=0
    noclr=False
    wolate=False
    warm=False
    of=''
    gleak=None
    NS=28
    sflag=False
    svcfirst=0
    spin=1<<17
    T=5
    kf='nt'; vf='nt'; wf='nt'; ff=''
    pq=3
    pw0=7
    pw1=22
    noW=False

QP=0x0
FLG=0x80000
CLR=0x200000
WP=0x200000
OP=0x280000
OPS=640
HB=0x340000
AB=0x360000
CTR=0x3A0000
PRB=0x3C0000
STAMP=0x10000000
L_MLW=64
L_QL=256
L_XN=1280
XNS=1040
L_XO=9600
XOS=272
L_DP=11776
L_OW=19968
L_ST=28160
L_PR=28416
L_CNT=L_PR+1024
L_WA=30720
LDS_BYTES=L_WA+65536

LOG2E=0x3fb8aa3b
SCALE=0x3db504f3

def gen(cfg):
    L=[]
    def A(s):
        L.extend(s.split('\n'))
    lab=[0]
    def newlab(p):
        lab[0]+=1
        return 'L_%s_%d'%(p,lab[0])
    X,KP,VP,WQ,WO,BX,WG,WU,WD,OUT,DBG,WS=['s[%d:%d]'%(16+2*i,17+2*i) for i in range(12)]
    def stamp(i):
        if cfg.diag: A('s_memrealtime s[%d:%d]'%(72+2*i,73+2*i))
    def tstamp(i):
        if cfg.tdiag: stamp(i)
    def pack_stamps(n,vt):
        A('s_waitcnt lgkmcnt(0)')
        A('v_mov_b32 v%d, 0'%vt)
        for i in range(n): A('v_writelane_b32 v%d, s%d, %d'%(vt,72+2*i,i))
    def dump_stamps(n,vt):
        if not cfg.diag: return
        A('s_mov_b64 exec, -1')
        pack_stamps(n,vt)
        A('v_lshlrev_b32 v%d, 2, v0'%(vt+1))
        A('ds_read_b32 v%d, v%d offset:%d'%(vt+2,vt+1,L_ST))
        A('s_lshl_b32 s66, s2, 9\ns_add_u32 s66, s66, %d'%(STAMP))
        A('v_add_u32 v%d, s66, v%d'%(vt+1,vt+1))
        A('s_mov_b64 exec, 0xffff')
        A('s_waitcnt lgkmcnt(0)')
        A('global_store_dword v%d, v%d, %s'%(vt+1,vt+2,WS))
        A('s_lshl_b32 s66, s53, 6\nv_add_u32 v%d, s66, v%d'%(vt+1,vt+1))
        A('global_store_dword v%d, v%d, %s offset:64'%(vt+1,vt,WS))

    A('; @launch grid=(256,1,1) block=(512,1,1) lds=%d'%LDS_BYTES)
    A('.amdgcn_target "amdgcn-amd-amdhsa--gfx950"\n.text\n.globl %s\n.p2align 8\n.type %s,@function\n%s:'%(K,K,K))
    A('s_cmp_ge_u32 s2, 256\ns_cbranch_scc1 L_end')
    stamp(0)
    A('v_lshrrev_b32 v1, 6, v0')
    A('v_lshlrev_b32 v3, 2, v0')
    A('v_readfirstlane_b32 s52, v1')
    A('s_cmp_lt_u32 s52, 4\ns_cbranch_scc1 L_noz')
    A('v_mov_b32 v30, 0')
    A('ds_write_b32 v3, v30 offset:%d\nds_write_b32 v3, v30 offset:%d'%(L_PR-1024,L_PR))
    A('s_waitcnt lgkmcnt(0)')
    A('L_noz:')
    A('s_load_dwordx16 s[16:31], s[0:1], 0')
    A('s_load_dwordx8 s[32:39], s[0:1], 64')
    A('s_barrier')
    if cfg.diag:
        for i in range(1,14): A('s_mov_b32 s%d, 0'%(72+2*i))
    A('v_and_b32 v0, 63, v0')
    A('s_and_b32 s48, s2, 7\ns_lshr_b32 s49, s2, 3\ns_lshl_b32 s50, s49, 1\ns_bfe_u32 s54, s2, 0x10001\ns_or_b32 s50, s50, s54')
    A('s_and_b32 s51, s2, 1\ns_bfe_u32 s54, s2, 0x10002\ns_lshl_b32 s54, s54, 1\ns_or_b32 s51, s51, s54')
    A('s_mov_b32 s59, 0x%x\ns_mov_b32 s60, 0xffff0000'%(LOG2E))
    A('v_lshlrev_b32 v1, 4, v0')
    A('s_cmp_ge_u32 s52, 4\ns_cbranch_scc1 L_service')

    import math
    TH=math.ceil(cfg.T)
    NS=cfg.NS
    RB=64
    A('s_lshl_b32 s54, s50, 21')
    A('s_lshl_b32 s62, s51, 2\ns_add_u32 s62, s62, s52')
    for i in range(4): A('s_add_u32 s%d, s62, %d\ns_and_b32 s%d, s%d, 15\ns_lshl_b32 s%d, s%d, 12'%(8+i,cfg.rot*i,8+i,8+i,8+i,8+i))
    A('v_lshrrev_b32 v2, 4, v0\nv_lshlrev_b32 v2, 6, v2\nv_and_b32 v4, 3, v0\nv_lshl_add_u32 v2, v4, 4, v2')
    A('v_bfe_u32 v5, v0, 2, 2\nv_lshl_add_u32 v2, v5, 8, v2')
    if cfg.knat: A('v_mov_b32 v2, v1')
    A('s_mov_b32 s42, 0x200000\ns_mov_b32 s43, 0x20000\ns_mov_b32 s46, 0x200000\ns_mov_b32 s47, 0x20000')
    A('s_waitcnt lgkmcnt(0)')
    A('s_add_u32 s40, s18, s54\ns_addc_u32 s41, s19, 0\ns_and_b32 s41, s41, 0xffff')
    A('s_add_u32 s44, s20, s54\ns_addc_u32 s45, s21, 0\ns_and_b32 s45, s45, 0xffff')
    st={'n':0}
    def adv():
        if cfg.rot: A('s_add_u32 s68, s62, %d\ns_and_b32 s68, s68, 15\ns_andn2_b32 s62, s62, 15\ns_add_u32 s62, s62, 16\ns_or_b32 s62, s62, s68'%cfg.rot)
        else: A('s_add_u32 s62, s62, 16')
    def load(slot,j,throttle=True,th=None):
        if j==0: A('s_lshl_b32 s65, s62, 12')
        if throttle:
            t_=(th or cfg.T); lo=int(t_); fr=t_-lo
            w=lo+(1 if (int((j+1)*fr+1e-9)>int(j*fr+1e-9)) else 0)
            A('s_waitcnt vmcnt(%d)'%(w-1))
        r=RB+slot*32+j*4
        t=j//4
        A('buffer_load_dwordx4 v[%d:%d], %s, %s, s65 offen offset:%d %s'%(r,r+3,'v2' if t==0 else 'v1','s[40:43]' if t==0 else 's[44:47]',(j%4)*1024,cfg.kf if t==0 else cfg.vf))
    def prog(val):
        A('v_mov_b32 v30, %s\nds_write_b32 v3, v30 offset:%d'%(val,L_PR))
    NK=NS//2
    assert NS%2==0 and NK>=10 and NK<=15
    slot_of={u:u for u in range(6)}
    slot_of.update({6:0,7:1,8:2})
    for u in range(9,NS+1): slot_of[u]=(u-9)&1
    tr={'issued':0}
    def sload():
        n=tr['issued']; G=n//8; j=n%8
        tr['issued']=n+1
        if G==NS:
            load(slot_of[G],j,th=cfg.T); return
        t=G//NK; k=2*(G%NK)+j//4
        if cfg.vdiag is not None and G==cfg.vdiag and j==0: stamp(6)
        if cfg.vdiag is not None and G==cfg.vdiag+1 and j==0: stamp(7)
        if j%4==0: A('s_add_u32 s65, s%d, %d'%(8+k%4,k*65536))
        w=cfg.T0 if (cfg.T0 and n<cfg.n0) else TH
        if cfg.boost and cfg.boost[0]<=G<cfg.boost[1] and j<(8 if G<5 else 0):
            l=newlab('bo'); A('s_waitcnt vmcnt(%d)\ns_cbranch_vccnz %s\ns_waitcnt vmcnt(%d)\n%s:'%(w-1+cfg.boost[2],l,w-1,l))
        elif n>=w: A('s_waitcnt vmcnt(%d)'%(w-1))
        r=RB+slot_of[G]*32+j*4
        A('buffer_load_dwordx4 v[%d:%d], %s, %s, s65 offen offset:%d %s'%(r,r+3,'v2' if t==0 else 'v1','s[40:43]' if t==0 else 's[44:47]',(j%4)*1024,cfg.kf if t==0 else cfg.vf))
        if j==7 and n>=15: prog(G+1)
    def pro_issue(n0,n1):
        assert tr['issued']==n0
        for n in range(n0,n1): sload()
    if cfg.svcfirst: A('s_barrier')
    if cfg.sdiag: stamp(6)
    pro_issue(0,TH)
    if cfg.sdiag: stamp(7)
    if cfg.boost: A('s_xor_b32 s55, s2, s49\ns_and_b32 s55, s55, 1\ns_cselect_b64 vcc, 0, -1')
    A('s_mov_b32 s56, 0x05040100\ns_mov_b32 s57, 0x07060302\ns_mov_b32 s58, 0x%x'%SCALE)
    A('s_lshl_b32 s54, s50, %d\ns_add_u32 s54, s54, %d\ns_add_u32 s66, s38, s54\ns_addc_u32 s67, s39, 0'%(cfg.cs,CTR))
    if cfg.cdbg: A('s_lshl_b32 s54, s50, 9\ns_add_u32 s54, s54, 4096\ns_add_u32 s66, s36, s54\ns_addc_u32 s67, s37, 0')
    A('s_lshl_b32 s55, s52, 11')
    A('v_lshlrev_b32 v4, 9, v4\nv_and_b32 v0, 0x30, v0\nv_add3_u32 v0, v4, v0, s55')
    A('v_mov_b32 v14, 0xff800000')
    if cfg.sdiag:
        stamp(9); A('s_waitcnt vmcnt(%d)'%(TH-1)); stamp(10)
    pro_issue(TH,48)
    stamp(1)
    if cfg.qflag:
        A('v_mov_b32 v31, 0\nL_qw:\nds_read_b32 v15, v31 offset:%d\ns_waitcnt lgkmcnt(0)\nv_readfirstlane_b32 s54, v15\ns_cmp_eq_u32 s54, 0\ns_cbranch_scc1 L_qw'%(L_CNT+16))
    else: A('s_barrier')
    A('ds_read_b128 v[4:7], v1 offset:%d'%L_QL)
    stamp(2)
    A('s_waitcnt lgkmcnt(0)')
    def kpart(slot,fill):
        B=RB+slot*32
        f=list(fill)
        def nxt():
            if f: f.pop(0)()
        D=[20,B,B+4,B+8]
        if cfg.nocomp:
            while f: nxt()
            return
        for i in range(4):
            A('v_mfma_f32_16x16x32_bf16 v[%d:%d], v[%d:%d], v[4:7], 0'%(D[i],D[i]+3,B+4*i,B+4*i+3))
        A('s_nop 7')
        for h in range(2):
            for step in range(3):
                for e in range(2):
                    be=2*e+h
                    S=18+e
                    A('v_add_f32_dpp v%d, v%d, v%d row_ror:%d row_mask:0xf bank_mask:0x%x'%(S,D[be]+((be+step+1)&3),(D[be]+be) if step==0 else S,12-4*step,1<<be))
                A('s_nop 0')
        nxt()
        A('s_nop 0')
        A('v_mov_b32_dpp v18, v19 quad_perm:[0,1,2,3] row_mask:0xf bank_mask:0xc')
        A('v_cvt_pk_bf16_f32 v18, 0, v18\nv_mul_f32 v18, s58, v18\nv_cvt_pk_bf16_f32 v18, 0, v18')
        A('v_max_f32 v15, v14, v18')
        A('s_nop 1\nv_max_f32_dpp v15, v15, v15 row_ror:4 row_mask:0xf bank_mask:0xf')
        A('s_nop 1\nv_max_f32_dpp v15, v15, v15 row_ror:8 row_mask:0xf bank_mask:0xf')
        A('v_mov_b32 v31, v15\ns_nop 1\nv_permlane16_swap_b32 v15, v31\nv_max_f32 v15, v15, v31')
        A('v_mov_b32 v31, v15\ns_nop 1\nv_permlane32_swap_b32 v15, v31\nv_max_f32 v15, v15, v31')
        nxt()
        A('v_sub_f32 v16, v14, v15\nv_sub_f32 v18, v18, v15\nv_cmp_neq_f32 vcc, v14, v15\nv_mul_f32 v16, s59, v16\nv_mul_f32 v18, s59, v18')
        A('v_exp_f32 v16, v16\nv_exp_f32 v18, v18\nv_mov_b32 v14, v15\nv_mul_f32 v17, s59, v15')
        A('v_mov_b32_dpp v19, v18 row_ror:12 row_mask:0xf bank_mask:0xf')
        A('v_cvt_pk_bf16_f32 v8, v18, v19')
        l=newlab('nr')
        A('s_cbranch_vccz %s'%l)
        for r in range(32,64,2):
            A('v_pk_mul_f32 v[%d:%d], v[%d:%d], v[16:17] op_sel_hi:[1,0]'%(r,r+1,r,r+1))
        A('v_mul_f32 v24, v24, v16')
        A('%s:'%l)
        A('s_nop 0')
        A('v_mov_b32_dpp v9, v8 row_ror:8 row_mask:0xf bank_mask:0xf')
        while f: nxt()
    def vpart(slot):
        B=RB+slot*32+16
        if cfg.nocomp: return
        def perms(j):
            Tt=10+2*(j&1)
            for ii in range(2):
                A('v_perm_b32 v%d, v%d, v%d, s%d'%(Tt+ii,B+4*(2*ii+1)+(j>>1),B+4*(2*ii)+(j>>1),56+(j&1)))
        perms(0)
        for j in range(8):
            if j<7: perms(j+1)
            else: A('v_mfma_f32_16x16x16_bf16 v[24:27], v[28:29], v[8:9], v[24:27]')
            Tt=10+2*(j&1)
            A('v_mfma_f32_16x16x16_bf16 v[%d:%d], v[%d:%d], v[8:9], v[%d:%d]'%(32+4*j,35+4*j,Tt,Tt+1,32+4*j,35+4*j))
    SC=[8,9,10,11,12,13,20,21,22,23,25,26,27,28,29][:NK]
    RV=RB+5*32; TV=RV+4
    def need(n):
        rem=tr['issued']-n
        assert rem>=0
        if rem<TH: A('s_waitcnt vmcnt(%d)'%rem)
    def spread(chunks,nl):
        m=len(chunks)
        for i,c in enumerate(chunks):
            if not cfg.nocomp: A(c)
            for _ in range((nl*(i+1))//m-(nl*i)//m): sload()
    def kgroup(G):
        B=RB+slot_of[G]*32
        ch=['\n'.join('v_mfma_f32_16x16x32_bf16 v[%d:%d], v[%d:%d], v[4:7], 0'%(32+4*i,35+4*i,B+4*i,B+4*i+3) for i in range(8))+'\ns_nop 1']
        for be in range(4):
            c=[]
            for step in range(3):
                for e in range(2):
                    D=32+4*(2*be+e); S=18+e
                    c.append('v_add_f32_dpp v%d, v%d, v%d row_ror:%d row_mask:0xf bank_mask:0x%x'%(S,D+((be+step+1)&3),(D+be) if step==0 else S,12-4*step,1<<be))
                c.append('s_nop 0')
            ch.append('\n'.join(c))
        ch[-1]+='\nv_cvt_pk_bf16_f32 v15, 0, v18\nv_cvt_pk_bf16_f32 v16, 0, v19\nv_mul_f32 v15, s58, v15\nv_mul_f32 v16, s58, v16'
        ch[-1]+='\nv_cvt_pk_bf16_f32 v%d, v15, v16\nv_cvt_pk_bf16_f32 v15, 0, v15\nv_cvt_pk_bf16_f32 v16, 0, v16\nv_max3_f32 v14, v14, v15, v16'%SC[G]
        return ch
    def wred(op,r):
        return ('s_nop 1\n%s_dpp v%d, v%d, v%d row_ror:4 row_mask:0xf bank_mask:0xf\ns_nop 1\n%s_dpp v%d, v%d, v%d row_ror:8 row_mask:0xf bank_mask:0xf\n'%(op,r,r,r,op,r,r,r)+
                'v_mov_b32 v31, v%d\ns_nop 1\nv_permlane16_swap_b32 v%d, v31\n%s v%d, v%d, v31\n'%(r,r,op,r,r)+
                'v_mov_b32 v31, v%d\ns_nop 1\nv_permlane32_swap_b32 v%d, v31\n%s v%d, v%d, v31'%(r,r,op,r,r))
    def softmax():
        ch=[wred('v_max_f32',14)+'\nv_mul_f32 v17, s59, v14\nv_mov_b32 v24, 0']
        for g in range(NK):
            ch.append('v_lshlrev_b32 v18, 16, v%d\nv_and_b32 v19, s60, v%d\nv_sub_f32 v18, v18, v14\nv_sub_f32 v19, v19, v14\nv_mul_f32 v18, s59, v18\nv_mul_f32 v19, s59, v19\n'%(SC[g],SC[g])+
                      'v_exp_f32 v18, v18\nv_exp_f32 v19, v19\ns_nop 0\nv_cvt_pk_bf16_f32 v%d, v18, v19\nv_add_f32 v24, v24, v18\nv_add_f32 v24, v24, v19'%SC[g])
        ch.append(wred('v_add_f32',24))
        return ch
    def vgroup(G):
        B=RB+slot_of[G]*32; P=SC[G-NK]
        def perms(j):
            Tt=TV+4*(j&1)
            return '\n'.join('v_perm_b32 v%d, v%d, v%d, s%d'%(Tt+ii,B+4*(2*ii+1)+(j>>1),B+4*(2*ii)+(j>>1),56+(j&1)) for ii in range(4))
        c0='v_mov_b32 v%d, v%d\n'%(RV,P)+'\n'.join('v_mov_b32_dpp v%d, v%d row_ror:%d row_mask:0xf bank_mask:0xf'%(RV+r,P,16-4*r) for r in range(1,4))+'\n'+perms(0)
        ch=[c0]
        for j in range(8):
            Tt=TV+4*(j&1); acc='v[%d:%d]'%(32+4*j,35+4*j)
            ch.append((perms(j+1) if j<7 else 's_nop 1')+'\nv_mfma_f32_16x16x32_bf16 %s, v[%d:%d], v[%d:%d], %s'%(acc,Tt,Tt+3,RV,RV+3,'0' if G==NK else acc))
        return ch
    def request():
        if not cfg.chunk:
            A('s_mov_b32 s63, 1\ns_atomic_add s63, s[66:67], 0x0 glc'); return
        la=newlab('ra'); lb=newlab('rb')
        A('s_cmp_eq_u32 s69, 0\ns_cbranch_scc1 %s'%la)
        A('s_mov_b32 s69, 0\ns_sub_u32 s63, s62, %d\ns_branch %s'%(NS*16,lb))
        A('%s:'%la)
        A('s_cmp_lt_u32 s62, %d\ns_cselect_b32 s69, 1, 0\ns_add_u32 s63, s69, 1\ns_atomic_add s63, s[66:67], 0x0 glc'%(512-cfg.chunk))
        A('%s:'%lb)
    for G in range(9):
        need(8*G+8)
        spread(kgroup(G),[4,4,4,4,4,4,3,2,3][G])
    assert tr['issued']==80
    stamp(3)
    def get():
        lb=int(math.log2(cfg.disp)); l=newlab('gt'); d=newlab('gd')
        A('s_cmp_ge_u32 s62, 512\ns_cbranch_scc1 %s'%d)
        A('v_mov_b32 v31, 0\nv_mov_b32 v30, 1\ns_mov_b64 exec, 1\nds_add_rtn_u32 v30, v31, v30 offset:%d\ns_waitcnt lgkmcnt(0)'%(L_CNT+24))
        A('v_lshrrev_b32 v31, %d, v30\nv_lshlrev_b32 v31, 2, v31\nv_readfirstlane_b32 s63, v30'%lb)
        A('%s:\nds_read_b32 v30, v31 offset:%d\ns_waitcnt lgkmcnt(0)\nv_readfirstlane_b32 s54, v30\ns_cmp_eq_u32 s54, 0\ns_cbranch_scc1 %s'%(l,L_CNT+64,l))
        A('s_mov_b64 exec, -1\ns_and_b32 s63, s63, %d\ns_add_u32 s63, s63, s54'%(cfg.disp-1))
        A('%s:'%d)
    for G in range(9,NS):
        if cfg.disp:
            if G==NS-1:
                stamp(4); A('s_mov_b32 s62, 0'); get(); A('s_mov_b32 s62, s63')
        elif G==NS-2:
            A('v_mov_b32 v31, 0\nL_cw:\nds_read_b32 v15, v31 offset:%d\ns_waitcnt lgkmcnt(0)\nv_readfirstlane_b32 s54, v15\ns_cmp_eq_u32 s54, 0\ns_cbranch_scc1 L_cw'%(L_CNT+8))
            stamp(4)
            A('s_mov_b32 s63, %d\ns_atomic_add s63, s[66:67], 0x0 glc\ns_mov_b32 s69, %d'%((2,1) if cfg.chunk else (1,0)))
        if G==NS-1 and not cfg.disp:
            A('s_waitcnt lgkmcnt(0)\ns_add_u32 s62, s63, %d'%(NS*16+1))
            A('s_cmp_ge_u32 s62, 512\ns_cbranch_scc1 L_nrq'); request(); A('L_nrq:')
        lead=min(TH,8)
        if G==NK: spread(softmax(),lead)
        else:
            for _ in range(lead): sload()
        need(8*G+8)
        ch=kgroup(G) if G<NK else vgroup(G)
        spread(ch[:-1],8-lead); spread(ch[-1:],0)
    A('s_cmp_ge_u32 s62, 512\ns_cbranch_scc1 L_sdone')
    A('v_mov_b32 v28, 0x3f803f80\nv_mov_b32 v29, 0x3f803f80\nv_mov_b32 v25, 0\nv_mov_b32 v26, 0\nv_mov_b32 v27, 0')
    if cfg.disp: get(); A('s_mov_b32 s62, s63')
    else: A('s_waitcnt lgkmcnt(0)\ns_add_u32 s62, s63, %d'%(NS*16+1))
    A('s_mov_b32 s64, %d'%(NS+1))
    def body(c,th):
        if cfg.upfront:
            for j in range(8): load(1-c,j,th=th,throttle=(8+j>=th))
            if th>12: A('s_waitcnt vmcnt(12)')
            kpart(c,[])
            A('s_waitcnt vmcnt(8)')
            vpart(c)
            return
        for j in range(4): load(1-c,j,th=th)
        if th>8: A('s_waitcnt vmcnt(8)')
        kpart(c,[(lambda j=j: load(1-c,j,th=th)) for j in range(4,8)])
        if cfg.disp: get()
        if th>8: A('s_waitcnt vmcnt(8)')
        vpart(c)
    A('L_dyn:')
    for c in (slot_of[NS],1-slot_of[NS]):
        ls=newlab('st'); lc=newlab('sc')
        if cfg.diag: A('s_add_u32 s64, s64, 1')
        if not cfg.disp:
            A('s_cmp_ge_u32 s62, 512\ns_cbranch_scc1 %s'%ls)
            request()
            A('%s:'%ls)
        body(c,cfg.T2 or cfg.T)
        A('s_cmp_ge_u32 s62, 512\ns_cbranch_scc1 L_sdone')
        if cfg.disp: A('s_mov_b32 s62, s63')
        else:
            A('s_waitcnt lgkmcnt(0)')
            A('s_add_u32 s62, s63, %d'%(NS*16+1))
    A('s_branch L_dyn')
    A('L_sdone:')
    A('s_mov_b32 exec_lo, 0x000f000f\ns_mov_b32 exec_hi, 0x000f000f')
    stamp(5)
    A('s_lshl_b32 s55, s52, 2\nv_and_b32 v31, 0x30, v1\nv_lshl_add_u32 v31, v31, 1, s55')
    for j in range(8):
        A('ds_write_b128 v0, v[%d:%d] offset:%d'%(32+4*j,35+4*j,L_OW+64*j))
    A('ds_write2_b32 v31, v17, v24 offset0:%d offset1:%d'%(L_MLW//4,L_MLW//4+4))
    if cfg.diag:
        A('s_mov_b64 exec, -1')
        A('s_cmp_lg_u32 s52, 0\ns_cbranch_scc1 L_nost')
        pack_stamps(11 if cfg.sdiag else 8,8)
        A('v_writelane_b32 v8, s64, 8')
        A('ds_write_b32 v3, v8 offset:%d'%L_ST)
        A('L_nost:')
    A('s_waitcnt lgkmcnt(0)')
    A('s_barrier')
    A('s_endpgm')

    A('L_service:')
    if cfg.bare:
        A('s_sub_u32 s53, s52, 4\nv_mov_b32 v11, 0\nv_mov_b32 v12, 1\nv_mov_b32 v40, -1\nv_mov_b32 v41, -1\nv_mov_b32 v42, -1\nv_mov_b32 v43, -1\ns_waitcnt lgkmcnt(0)')
        if cfg.bare&2:
            A('s_lshl_b32 s54, s2, 2\ns_add_u32 s54, s54, s53\ns_mul_i32 s54, s54, 640\ns_add_u32 s54, s54, %d\nv_add_u32 v6, s54, v1\ns_mov_b32 exec_hi, 0xff\nglobal_store_dwordx4 v6, v[40:43], %s sc1\ns_mov_b64 exec, -1'%(CLR+0x100000,WS))
        if cfg.bare&4:
            A('global_load_dwordx4 v[32:35], v1, %s'%X)
        if cfg.bare&8:
            A('v_mov_b32 v6, s2\ns_mov_b64 exec, 1\nglobal_store_byte v6, v12, %s sc1\ns_mov_b64 exec, -1'%DBG)
        A('ds_write_b32 v11, v12 offset:%d\ns_waitcnt lgkmcnt(0)\ns_barrier\ns_barrier'%(L_CNT+8))
        if cfg.bare&16:
            A('v_lshlrev_b32 v7, 2, v0\nglobal_load_dword v13, v7, %s sc1'%DBG)
        A('s_barrier\ns_endpgm')
    A('s_setprio 3')
    A('s_sub_u32 s53, s52, 4')
    A('s_lshl_b32 s66, s53, 12')
    A('s_mov_b32 s3, %d'%FLG)
    A('s_lshr_b32 s68, s49, 3\ns_and_b32 s69, s49, 7')
    A('v_lshrrev_b32 v2, 5, v0\ns_lshl_b32 s54, s53, 1\nv_add_u32 v2, s54, v2')
    A('v_and_b32 v3, 31, v0\nv_lshlrev_b32 v3, 4, v3')
    A('v_lshl_add_u32 v4, v2, 10, v3')
    A('s_xor_b32 s13, s2, s49\ns_and_b32 s13, s13, 1\ns_lshr_b32 s14, s49, 4\ns_bfe_u32 s15, s49, 0x30001')
    A('s_lshl_b32 s54, s14, 8\ns_lshl_b32 s55, s53, 6\ns_add_u32 s54, s54, s55')
    A('v_lshrrev_b32 v6, 3, v0\nv_add_u32 v6, s54, v6\nv_lshlrev_b32 v6, 13, v6')
    A('v_and_b32 v7, 7, v0\nv_lshl_add_u32 v6, v7, 4, v6')
    A('s_lshl_b32 s54, s48, 10\ns_lshl_b32 s55, s15, 7\ns_add_u32 s54, s54, s55\nv_add_u32 v6, s54, v6')
    A('s_lshl_b32 s54, s48, 1\ns_add_u32 s54, s54, s14\ns_lshl_b32 s54, s54, 11\ns_lshl_b32 s55, s15, 8\ns_add_u32 s54, s54, s55\ns_lshl_b32 s55, s53, 6\ns_add_u32 s54, s54, s55')
    A('v_lshlrev_b32 v14, 15, v7\nv_and_b32 v15, 0x30, v0\nv_add3_u32 v14, v14, v15, s54')
    A('v_mov_b32 v40, -1\nv_mov_b32 v41, -1\nv_mov_b32 v42, -1\nv_mov_b32 v43, -1')
    A('s_lshl_b32 s71, s53, 13\ns_add_u32 m0, s71, %d'%L_WA)
    A('v_lshrrev_b32 v44, 1, v0\nv_lshlrev_b32 v44, 9, v44\nv_and_b32 v45, 16, v1\nv_add3_u32 v79, v44, v45, %s'%'s3')
    A('v_mov_b32 v44, 0\nv_mov_b32 v45, 0\nv_mov_b32 v46, 0\nv_mov_b32 v47, 0\nv_mov_b32 v11, 0\nv_mov_b32 v12, 1')
    A('s_lshl_b32 s12, s2, 2\ns_add_u32 s12, s12, s53')
    A('s_waitcnt lgkmcnt(0)')
    A('s_cmp_lg_u32 s13, 0\ns_cbranch_scc1 L_clr')
    A('global_load_dwordx4 v[32:35], v4, %s'%X)
    A('global_load_dwordx4 v[36:39], v4, %s offset:512'%X)
    for i in range(8):
        if i: A('s_add_u32 m0, s71, %d\nv_add_u32 v6, 0x10000, v6'%(L_WA+i*1024))
        A('global_load_lds_dwordx4 v6, %s %s'%(WQ,cfg.wf))
    A('s_mov_b32 exec_lo, 0x00ff00ff\ns_mov_b32 exec_hi, 0x00ff00ff')
    A('global_store_dwordx4 v14, v[40:43], %s sc1'%WS)
    A('s_branch L_clrd')
    A('L_clr:')
    A('s_cmp_lg_u32 s12, 7\ns_cbranch_scc1 L_nolead')
    A('global_store_dwordx4 v79, v[44:47], %s sc1\nglobal_store_dwordx4 v79, v[44:47], %s offset:256 sc1'%(WS,WS))
    A('s_waitcnt vmcnt(0)')
    A('s_mov_b64 exec, 1\nglobal_store_dword v11, v12, %s sc1\ns_mov_b64 exec, -1'%DBG)
    A('L_nolead:')
    A('s_lshr_b32 s54, s2, 1\ns_lshl_b32 s54, s54, 2\ns_add_u32 s54, s54, s53\ns_mul_i32 s54, s54, 3584\ns_add_u32 s54, s54, %d'%CLR)
    A('v_add_u32 v6, s54, v1')
    for i in range(3): A('global_store_dwordx4 v6, v[40:43], %s offset:%d sc1'%(WS,1024*i))
    A('s_mov_b32 exec_hi, 0')
    A('global_store_dwordx4 v6, v[40:43], %s offset:3072 sc1'%WS)
    A('L_clrd:')
    A('s_mov_b64 exec, -1')
    A('s_and_b32 s54, s49, 3\ns_lshl_b32 s9, s54, 16\ns_lshr_b32 s54, s49, 2\ns_lshl_b32 s54, s54, 10\ns_add_u32 s9, s9, s54\ns_lshl_b32 s54, s48, 7\ns_add_u32 s9, s9, s54\ns_add_u32 s9, s9, %d'%PRB)
    A('s_lshl_b32 s54, s53, 14\ns_add_u32 s54, s54, s9\nv_bfe_u32 v6, v0, 3, 1\nv_lshlrev_b32 v6, 13, v6\nv_and_b32 v13, 0x70, v1\nv_add3_u32 v6, v6, v13, s54')
    A('s_mov_b64 exec, 0xffff')
    A('s_cmp_ge_u32 s49, 8\ns_cbranch_scc1 L_nopl\ns_cmp_ge_u32 s53, %d\ns_cbranch_scc1 L_nopl'%cfg.NP)
    A('global_store_dwordx4 v6, v[40:43], %s sc1'%WS)
    A('L_nopl:')
    A('s_mov_b64 exec, -1')
    if cfg.svcfirst==2: A('s_barrier')
    A('v_mul_u32_u24 v5, %d, v2\nv_add_u32 v5, v5, v3'%XNS)
    A('v_lshrrev_b32 v8, 4, v0\nv_lshlrev_b32 v8, 10, v8\nv_bfe_u32 v9, v0, 2, 2\nv_lshl_add_u32 v8, v9, 7, v8\nv_and_b32 v9, 3, v0\nv_lshl_add_u32 v8, v9, 3, v8')
    A('s_lshl_b32 s54, s53, 5\nv_add_u32 v8, s54, v8')
    A('v_mul_u32_u24 v9, %d, v7\nv_add_u32 v9, v9, v15\ns_lshl_b32 s54, s14, 9\nv_add_u32 v10, s54, v9'%XNS)
    A('s_lshl_b32 s54, s53, 8\nv_mov_b32 v31, s54')

    def dppadd(r,ctl):
        A('s_nop 1\nv_add_f32_dpp v%d, v%d, v%d %s row_mask:0xf bank_mask:0xf'%(r,r,r,ctl))
    def swapadd(r,t,w):
        A('v_mov_b32 v%d, v%d\ns_nop 1\nv_permlane%d_swap_b32 v%d, v%d\nv_add_f32 v%d, v%d, v%d'%(t,r,w,r,t,r,r,t))
    def rbf(r):
        A('v_cvt_pk_bf16_f32 v%d, 0, v%d'%(r,r))
    def layernorm(mode):
        if mode=='x':
            for i in range(8):
                A('v_lshlrev_b32 v%d, 16, v%d\nv_and_b32 v%d, s60, v%d'%(48+2*i,32+i,49+2*i,32+i))
        Q=lambda i:'v[%d:%d]'%(48+2*i,49+2*i)
        P=Q if mode=='x' else (lambda i:'v[%d:%d]'%(216+2*i,217+2*i))
        A('v_pk_add_f32 v[64:65], %s, %s\nv_pk_mul_f32 v[66:67], %s, %s'%(P(0),P(1),P(0),P(0)))
        A('v_pk_add_f32 v[68:69], %s, %s\nv_pk_mul_f32 v[70:71], %s, %s'%(P(2),P(3),P(1),P(1)))
        for i in range(2,8,2):
            if i>2: A('v_pk_add_f32 v[64:65], v[64:65], %s'%P(i))
            A('v_pk_fma_f32 v[66:67], %s, %s, v[66:67]'%(P(i),P(i)))
            if i>2: A('v_pk_add_f32 v[68:69], v[68:69], %s'%P(i+1))
            A('v_pk_fma_f32 v[70:71], %s, %s, v[70:71]'%(P(i+1),P(i+1)))
        A('v_pk_add_f32 v[64:65], v[64:65], v[68:69]\nv_pk_add_f32 v[66:67], v[66:67], v[70:71]')
        A('v_add_f32 v64, v64, v65\nv_add_f32 v66, v66, v67')
        ctl=['row_ror:1','row_ror:2','row_ror:4','row_ror:8'] if mode=='x' else ['quad_perm:[1,0,3,2]','quad_perm:[2,3,0,1]','row_ror:8']
        for c in ctl:
            A('s_nop 0')
            for r in (64,66): A('v_add_f32_dpp v%d, v%d, v%d %s row_mask:0xf bank_mask:0xf'%(r,r,r,c))
        for w in ((16,) if mode=='x' else (16,32)):
            A('v_mov_b32 v65, v64\nv_mov_b32 v67, v66\ns_nop 0')
            A('v_permlane%d_swap_b32 v64, v65\nv_permlane%d_swap_b32 v66, v67'%(w,w))
            A('v_add_f32 v64, v64, v65\nv_add_f32 v66, v66, v67')
        A('v_mul_f32 v64, 0xbb000000, v64\nv_mul_f32 v66, 0x3b000000, v66')
        A('v_cvt_pk_bf16_f32 v68, 0, v64')
        chain=['v_fma_f32 v66, -v64, v64, v66','v_max_f32 v66, 0, v66','v_cvt_pk_bf16_f32 v66, 0, v66','v_add_f32 v66, 0x3727c5ac, v66',
               'v_cvt_pk_bf16_f32 v66, 0, v66','v_sqrt_f32 v66, v66','v_cvt_pk_bf16_f32 v66, 0, v66','v_rcp_f32 v66, v66']
        for i in range(8):
            A(chain[i])
            A('v_pk_add_f32 %s, %s, v[68:69] op_sel_hi:[1,0]'%(Q(i),P(i)))
        for i in range(16): A('v_cvt_pk_bf16_f32 v%d, 0, v%d'%(48+i,48+i))
        nw=2 if mode=='h' else 4
        for i in range(8):
            A('v_pk_mul_f32 %s, %s, v[66:67] op_sel_hi:[1,0]'%(Q(i),Q(i)))
        for i in range(8):
            A('v_cvt_pk_bf16_f32 v%d, v%d, v%d'%(32+i,48+2*i,49+2*i))
            if mode=='h' and i%2==1: A('ds_write_b64 v5, v[%d:%d] offset:%d'%(31+i,32+i,L_XN+256*(i//2)))
            if mode=='x' and i%4==3: A('ds_write_b128 v5, v[%d:%d] offset:%d'%(29+i,32+i,L_XN+512*(i//4)))
    def lds_sync(cnt,sleep=0):
        l=newlab('ls')
        A('s_waitcnt lgkmcnt(0)')
        A('s_mov_b64 exec, 1\nds_add_u32 v11, v12 offset:%d\ns_mov_b64 exec, -1'%(L_CNT+4*cnt))
        lds_wait(11,L_CNT+4*cnt,4,sleep)
    def lds_wait(va,off,val,sleep):
        l=newlab('lw'); d=newlab('ld')
        A('%s:'%l)
        A('ds_read_b32 v13, v%d offset:%d\ns_waitcnt lgkmcnt(0)\nv_readfirstlane_b32 s54, v13\ns_cmp_ge_u32 s54, %s'%(va,off,val))
        if sleep: A('s_cbranch_scc1 %s\ns_sleep %d\ns_branch %s\n%s:'%(d,sleep,l,d))
        else: A('s_cbranch_scc0 %s'%l)
    def progress(p): lds_wait(31,L_PR,p,6)
    def poll(loads,regs,sleep=0,guard=False):
        l=newlab('pl'); d=newlab('pd')
        if guard: sleep=cfg.tsleep
        A('s_mov_b32 s61, %d'%cfg.spin)
        A('%s:'%l)
        for x in loads: A(x)
        import re as _re
        first=True; pend=[]
        for i,x in enumerate(loads):
            m=_re.search(r'v\[(\d+):(\d+)\]',x)
            pend+=list(range(int(m.group(1)),int(m.group(2))+1))
            last=(i==len(loads)-1)
            if len(pend)<4 and not last: continue
            A('s_waitcnt vmcnt(%d)'%(len(loads)-1-i))
            while pend:
                if first:
                    if len(pend)>=3: A('v_max3_u32 v13, v%d, v%d, v%d'%tuple(pend[:3])); pend=pend[3:]
                    else: A('v_max_u32 v13, v%d, v%d'%tuple(pend[:2])); pend=pend[2:]
                    first=False
                elif len(pend)>=2: A('v_max3_u32 v13, v13, v%d, v%d'%tuple(pend[:2])); pend=pend[2:]
                elif last: A('v_max_u32 v13, v13, v%d'%pend[0]); pend=[]
                else: break
        A('v_cmp_eq_u32 vcc, -1, v13')
        A('s_cbranch_vccz %s'%d)
        if sleep: A('s_sleep %d'%sleep)
        A('s_sub_u32 s61, s61, 1\ns_cmp_lg_u32 s61, 0\ns_cbranch_scc1 %s'%l)
        A('%s:'%d)
    def apoll(loads,par):
        import re as _re
        mode,D,sleep=par
        loads=[x.replace(' sc1',' '+cfg.lf) for x in loads]
        l=newlab('al'); d=newlab('ad'); gl=newlab('ag')
        rg=[]
        for x in loads:
            m=_re.search(r'v\[(\d+):(\d+)\]',x); rg.append(list(range(int(m.group(1)),int(m.group(2))+1)))
        def chain(t,r):
            r=list(r)
            if len(r)==2: A('v_max_u32 v%d, v%d, v%d'%(t,r[0],r[1])); return
            A('v_max3_u32 v%d, v%d, v%d, v%d'%(t,r[0],r[1],r[2])); r=r[3:]
            while r:
                if len(r)==1: A('v_max_u32 v%d, v%d, v%d'%(t,t,r[0])); r=[]
                else: A('v_max3_u32 v%d, v%d, v%d, v%d'%(t,t,r[0],r[1])); r=r[2:]
        n=len(loads)
        A('s_mov_b32 s61, %d'%cfg.spin)
        if mode in 'cm':
            A('%s:'%l)
            for x in loads: A(x)
            if sleep: A('s_sleep %d'%sleep)
            A('s_waitcnt vmcnt(%d)'%min(63,n*(D-1)))
            chain(13,sum(rg,[]))
            A('v_cmp_eq_u32 vcc, -1, v13')
            A('s_cbranch_vccz %s'%d)
            if mode=='m': A('s_mov_b64 exec, vcc')
            A('s_sub_u32 s61, s61, 1\ns_cmp_lg_u32 s61, 0\ns_cbranch_scc1 %s'%l)
            A('%s:'%d)
            if mode=='m': A('s_mov_b64 exec, s[4:5]')
        else:
            mk=['s[6:7]','s[8:9]','s[10:11]','s[40:41]','s[42:43]','s[44:45]','s[46:47]','s[62:63]'][:n]
            for m_ in mk: A('s_mov_b64 %s, s[4:5]'%m_)
            A('%s:'%l)
            for x,m_ in zip(loads,mk):
                sk=newlab('as')
                A('s_mov_b64 exec, %s\ns_cbranch_execz %s'%(m_,sk)); A(x); A('%s:'%sk)
            A('s_mov_b64 exec, s[4:5]')
            if sleep: A('s_sleep %d'%sleep)
            A('s_waitcnt vmcnt(%d)'%min(63,n*(D-1)))
            for i in range(n): chain(246+i,rg[i])
            chain(13,[246+i for i in range(n)])
            A('v_cmp_eq_u32 vcc, -1, v13')
            A('s_cbranch_vccz %s'%d)
            for i in range(n): A('v_cmp_eq_u32 %s, -1, v%d'%(mk[i],246+i))
            A('s_sub_u32 s61, s61, 1\ns_cmp_lg_u32 s61, 0\ns_cbranch_scc1 %s'%l)
            A('%s:'%d)
    def flagpoll(voff,execmask):
        l=newlab('fl'); d=newlab('fd')
        A('s_mov_b32 s61, %d'%cfg.spin)
        A('s_mov_b64 exec, %s'%execmask)
        A('%s:'%l)
        A('global_load_dwordx4 v[72:75], v%d, %s sc1\ns_waitcnt vmcnt(0)'%(voff,WS))
        A('v_min3_u32 v13, v72, v73, v74\nv_min_u32 v13, v13, v75\nv_cmp_eq_u32 vcc, 0, v13\ns_cbranch_vccz %s'%d)
        A('s_sleep 16')
        A('s_sub_u32 s61, s61, 1\ns_cmp_lg_u32 s61, 0\ns_cbranch_scc1 %s'%l)
        A('%s:'%d)
        A('s_mov_b64 exec, -1')
    def CLASS():
        A('s_cmp_lg_u32 s53, 0\ns_cbranch_scc1 L_nofc')
        progress(cfg.pw0)
        flagpoll(79,'-1')
        A('ds_write_b128 v1, v[72:75] offset:%d'%L_DP)
        A('v_add_u32 v7, 256, v79\ns_mov_b32 s6, 0x03030303\ns_mov_b32 s7, s6\ns_waitcnt lgkmcnt(0)')
        flagpoll(7,'s[6:7]')
        A('s_and_b32 s54, s48, 3\ns_lshl_b32 s54, s54, 7\ns_lshl_b32 s55, s49, 2\ns_add_u32 s54, s54, s55\nv_mov_b32 v7, s54')
        A('s_mov_b32 s6, 0')
        for r in range(72,76):
            A('v_and_b32 v13, 2, v%d\nv_cmp_ne_u32 vcc, 0, v13\ns_nop 1\ns_bcnt1_i32_b64 s7, vcc\ns_add_u32 s6, s6, s7'%r)
        A('s_waitcnt lgkmcnt(0)\nds_read_b32 v13, v7 offset:%d\ns_waitcnt lgkmcnt(0)\nv_readfirstlane_b32 s7, v13'%L_DP)
        if cfg.diag: A('s_mov_b32 s9, s6')
        A('s_cmp_ge_u32 s6, 32\ns_cselect_b32 s6, 1, 0')
        if cfg.par is not None: A('s_mov_b32 s6, %d'%cfg.par)
        A('s_xor_b32 s7, s7, s48\ns_bfe_u32 s7, s7, 0x10002\ns_xor_b32 s7, s7, s6\ns_lshl_b32 s7, s7, 2\ns_lshl_b32 s6, s6, 1\ns_or_b32 s6, s6, s7\ns_or_b32 s6, s6, 1')
        A('v_mov_b32 v13, s6\nds_write_b32 v11, v13 offset:%d'%(L_CNT+8))
        if cfg.diag: A('s_cmp_lg_u32 s2, 0\ns_cbranch_scc1 L_nofc\nv_mov_b32 v13, s9\nv_mov_b32 v7, 8\nglobal_store_dword v7, v13, %s'%DBG)
        A('L_nofc:')
        lds_wait(11,L_CNT+8,1,6)
        A('s_bfe_u32 s11, s54, 0x10002\ns_bfe_u32 s54, s54, 0x10001\ns_xor_b32 s10, s10, s54')
    def tr128(dst,base):
        for s_ in range(4):
            A('ds_read_b64_tr_b16 v[%d:%d], v8 offset:%d'%(dst+4*s_,dst+4*s_+1,base+4096*s_))
            A('ds_read_b64_tr_b16 v[%d:%d], v8 offset:%d'%(dst+4*s_+2,dst+4*s_+3,base+4096*s_+512))

    A('v_mov_b32 v76, 0')
    A('s_cmp_lg_u32 s13, 0\ns_cbranch_scc1 L_noln')
    A('s_waitcnt vmcnt(9)')
    stamp(1)
    A('s_cmp_lg_u32 s53, 3\ns_cbranch_scc1 L_nog0\ns_mov_b64 exec, 1\nglobal_load_dword v76, v11, %s sc1\ns_mov_b64 exec, -1\nL_nog0:'%DBG)
    layernorm('x')
    A('L_noln:')
    A('s_waitcnt vmcnt(0)')
    lds_sync(0)
    stamp(2)
    A('s_lshl_b32 s54, s48, 2\ns_add_u32 s54, s54, s68\ns_lshl_b32 s54, s54, 9\ns_lshl_b32 s55, s69, 2\ns_add_u32 s54, s54, s55\ns_add_u32 s54, s54, s3\nv_mov_b32 v6, s54')
    A('s_getreg_b32 s10, hwreg(HW_REG_XCC_ID)\ns_bfe_u32 s10, s10, 0x10002')
    A('s_cmp_lg_u32 s53, 3\ns_cbranch_scc1 L_noflag')
    A('s_mov_b64 exec, 1\nv_cmp_eq_u32 vcc, 0, v76\ns_cbranch_vccz L_god')
    A('s_mov_b32 s61, %d\nL_go:\nglobal_load_dword v13, v11, %s sc1\ns_waitcnt vmcnt(0)\nv_cmp_eq_u32 vcc, 0, v13\ns_cbranch_vccz L_god'%(cfg.spin,DBG))
    A('s_sleep 8\ns_sub_u32 s61, s61, 1\ns_cmp_lg_u32 s61, 0\ns_cbranch_scc1 L_go\nL_god:')
    A('s_lshl_b32 s54, s10, 2\ns_or_b32 s54, s54, 1\nv_mov_b32 v7, s54\nglobal_store_dword v6, v7, %s sc1'%WS)
    A('s_mov_b64 exec, -1')
    A('L_noflag:')
    A('s_cmp_lg_u32 s13, 0\ns_cbranch_scc1 L_noq')
    for h in range(2):
        tr128(80+16*h,L_WA+16384*h)
        for s_ in range(4):
            A('ds_read_b128 v[%d:%d], v10 offset:%d'%(112+16*h+4*s_,115+16*h+4*s_,L_XN+256*h+64*s_))
        A('s_waitcnt lgkmcnt(0)')
    for s_ in range(8):
        A('v_mfma_f32_16x16x32_bf16 v[48:51], v[%d:%d], v[%d:%d], %s'%(80+4*s_,83+4*s_,112+4*s_,115+4*s_,'0' if s_==0 else 'v[48:51]'))
    A('s_mov_b32 exec_lo, 0x00ff00ff\ns_mov_b32 exec_hi, 0x00ff00ff')
    A('s_nop 5')
    A('global_store_dwordx4 v14, v[48:51], %s sc1'%WS)
    A('s_mov_b64 exec, -1')
    A('L_noq:')
    stamp(3)
    A('s_mov_b64 exec, 1\nds_add_u32 v11, v12 offset:%d\ns_mov_b64 exec, -1'%(L_CNT+12))
    A('s_cmp_eq_u32 s53, 0\ns_cbranch_scc1 L_qg\ns_cmp_lg_u32 s53, 1\ns_cbranch_scc1 L_qdone\ns_cmp_ge_u32 s49, 8\ns_cbranch_scc1 L_qdone')
    A('s_mov_b32 s6, 0')
    for i in range(cfg.NP):
        for c in ((0,1) if i%2==0 else (1,0)):
            l=newlab('pb'); d=newlab('pe')
            A('s_add_u32 s7, s9, %d\ns_mov_b32 s8, 0\ns_mov_b32 s61, 0\ns_load_dword s8, %s, s7'%(i*16384+c*8192,WS))
            A('%s:\ns_add_u32 s61, s61, 1\ns_cmp_gt_u32 s61, 0xffff\ns_cbranch_scc1 %s\ns_cmp_eq_u32 s8, 0\ns_cbranch_scc1 %s\n%s:\ns_waitcnt lgkmcnt(0)'%(l,d,l,d))
            if i>0: A('%s s6, s6, s61'%('s_add_i32' if c==0 else 's_sub_i32'))
    A('s_cmp_gt_i32 s6, 0\ns_cselect_b32 s6, 1, 0')
    A('s_xor_b32 s6, s6, s10\ns_lshl_b32 s6, s6, 1\ns_or_b32 s6, s6, 1\nv_mov_b32 v7, s6')
    lds_wait(11,L_CNT+12,4,2)
    A('s_mov_b64 exec, 1\nglobal_store_dword v6, v7, %s offset:256 sc1\ns_mov_b64 exec, -1\ns_branch L_qdone'%WS)
    A('L_qg:')
    A('v_and_b32 v6, 3, v0\nv_lshlrev_b32 v6, 9, v6\nv_lshrrev_b32 v14, 2, v0\nv_lshl_add_u32 v6, v14, 5, v6')
    A('s_lshl_b32 s54, s50, 12\ns_add_u32 s54, s54, %d\nv_add_u32 v6, s54, v6'%QP)
    A('s_and_b32 s54, s50, 7\ns_lshl_b32 s54, s54, 11\nv_add_u32 v7, s54, v79')
    lds_wait(11,L_CNT+12,4,2)
    progress(cfg.pq)
    if not cfg.skipF: flagpoll(7,'0xff')
    stamp(4)
    if not cfg.skipG: poll(['global_load_dwordx4 v[%d:%d], v6, %s offset:%d sc1'%(32+8*kq+4*h,35+8*kq+4*h,WS,2048*kq+16*h) for kq in range(2) for h in range(2)],None,sleep=8)
    for p in range(4):
        A('v_pk_add_f32 v[%d:%d], v[%d:%d], v[%d:%d]'%(32+2*p,33+2*p,32+2*p,33+2*p,40+2*p,41+2*p))
    for p in range(4):
        A('v_cvt_pk_bf16_f32 v%d, v%d, v%d'%(32+p,32+2*p,33+2*p))
    A('ds_write_b128 v1, v[32:35] offset:%d'%L_QL)
    stamp(5)
    A('s_waitcnt lgkmcnt(0)')
    if cfg.qflag: A('ds_write_b32 v11, v12 offset:%d'%(L_CNT+16))
    A('L_qdone:')
    if cfg.touch:
        A('s_lshl_b32 s54, s50, 21\ns_load_dword s4, %s, s54'%VP)
        A('s_load_dword s6, %s, 0\ns_load_dword s7, %s, 0\ns_load_dword s8, %s, 0'%(WG,WU,WD))
        A('s_lshl_b32 s54, s48, 19\ns_load_dword s9, %s, s54'%WO)
        A('s_waitcnt lgkmcnt(0)')
    A('s_setprio 0')
    if not cfg.qflag: A('s_barrier')

    A('s_mov_b32 s70, 0\ns_and_b32 s54, s49, 0x13\ns_cmp_eq_u32 s54, s51\ns_cselect_b32 s70, 2, s70')
    A('s_cmp_lt_u32 s48, 4\ns_cselect_b32 s6, 16, 12\ns_cselect_b32 s7, 8, 6\ns_cselect_b32 s8, 0, 8\ns_mul_i32 s14, s48, s7\ns_add_u32 s14, s14, s8')
    if cfg.helper: A('s_and_b32 s54, s49, 0x13\ns_xor_b32 s54, s54, 2\ns_cmp_eq_u32 s54, s51\ns_cselect_b32 s9, s49, 99\ns_cmp_lt_u32 s9, s6\ns_cselect_b32 s70, 4, s70')
    A('s_sub_u32 s54, s49, 16\ns_cmp_lt_u32 s54, s6\ns_cselect_b32 s70, 1, s70')
    A('s_xor_b32 s55, s2, s49\ns_and_b32 s55, s55, 1\ns_cselect_b32 s70, 3, s70')
    A('s_bfe_u32 s54, s49, 0x30001\ns_add_u32 s14, s14, s54')
    A('s_lshr_b32 s15, s49, 2\ns_add_u32 s54, s48, %d\ns_and_b32 s54, s54, 7\ns_lshl_b32 s54, s54, 2\ns_add_u32 s15, s15, s54'%cfg.crot)
    CLASS()
    A('s_lshr_b32 s13, s2, 1\ns_andn2_b32 s13, s13, 2\ns_lshl_b32 s54, s11, 1\ns_or_b32 s13, s13, s54')
    A('s_and_b32 s54, s48, 3\ns_lshl_b32 s54, s54, 2\ns_add_u32 s67, s54, s68\ns_lshl_b32 s54, s11, 4\ns_add_u32 s67, s67, s54')
    A('s_bfe_u32 s69, s49, 0x20001')
    A('v_and_b32 v6, 3, v0\nv_lshlrev_b32 v6, 2, v6\nv_lshrrev_b32 v7, 4, v0\nv_add_u32 v6, v6, v7')
    A('v_bfe_u32 v7, v0, 2, 1')
    A('v_lshrrev_b32 v24, 4, v0\nv_lshlrev_b32 v24, 15, v24\nv_bfe_u32 v13, v0, 3, 1\nv_lshl_add_u32 v24, v13, 13, v24\nv_and_b32 v13, 0x70, v1\nv_add_u32 v24, v24, v13')
    A('s_and_b32 s54, s13, 63\ns_lshl_b32 s54, s54, 7\ns_lshr_b32 s55, s13, 6\ns_lshl_b32 s55, s55, 14\ns_add_u32 s54, s54, s55\ns_add_u32 s54, s54, %d\nv_add_u32 v24, s54, v24\ns_mov_b32 s55, s13'%HB)
    A('v_lshlrev_b32 v6, 1, v6\nv_lshl_add_u32 v6, v7, 10, v6\ns_lshr_b32 s54, s55, 5\ns_lshl_b32 s54, s54, 11\ns_and_b32 s55, s55, 31\ns_lshl_b32 s55, s55, 5\ns_add_u32 s54, s54, s55\nv_add_u32 v6, s54, v6')
    A('global_load_ushort v16, v6, %s'%X)
    def paced(k,n,line):
        f=lambda k: cfg.pw0+(k*(cfg.pw1-cfg.pw0))//n
        if k==0 or f(k)!=f(k-1): progress(f(k))
        assert f(k)<cfg.NS
        A(line)
    def dma1(k):
        i=k//2
        return ('v_add_u32 v7, %d, v6\n'%(i*16*3584))+'s_add_u32 m0, s71, %d\ns_nop 0\nglobal_load_lds_dwordx4 v7, %s %s'%(L_WA+32768*(k&1)+i*1024,WU if k&1 else WG,cfg.ff)
    def dma2(i):
        return ('v_add_u32 v7, %d, v6\n'%(i*0x8000))+'s_add_u32 m0, s71, %d\ns_nop 0\nglobal_load_lds_dwordx4 v7, %s %s'%(L_WA+i*1024,WD,cfg.ff)
    l1=newlab('w1'); l2=newlab('w2'); le=newlab('we')
    A('s_cmp_eq_u32 s70, 0\ns_cbranch_scc1 %s\ns_cmp_eq_u32 s70, 2\ns_cbranch_scc1 %s\ns_cmp_lg_u32 s70, 3\ns_cbranch_scc1 %s'%(le,l2,l1))
    A('s_lshl_b32 s54, s67, 7\ns_lshl_b32 s55, s53, 1\ns_add_u32 s54, s54, s55\ns_lshl_b32 s54, s54, 10\ns_lshl_b32 s55, s69, 8\ns_add_u32 s54, s54, s55')
    A('v_lshrrev_b32 v6, 4, v0\nv_lshlrev_b32 v6, 13, v6\nv_and_b32 v7, 15, v0\nv_lshl_add_u32 v6, v7, 4, v6\nv_add_u32 v6, s54, v6')
    A('s_lshl_b32 s71, s53, 13')
    def dmaw(i):
        return 'v_add_u32 v7, %d, v6\ns_add_u32 m0, s71, %d\ns_nop 0\nglobal_load_lds_dwordx4 v7, %s %s'%((32*(i&3)+(i>>2))*1024,L_WA+i*1024,WO,cfg.wf)
    for i in range(0 if cfg.noW else cfg.EW): paced(i,cfg.EW,dmaw(i))
    A('s_branch %s'%le)
    A('%s:'%l1)
    A('s_lshl_b32 s54, s14, 6')
    A('s_lshl_b32 s55, s53, 7\nv_lshrrev_b32 v6, 2, v0\nv_add_u32 v6, s55, v6\nv_mul_u32_u24 v6, 3584, v6\nv_and_b32 v7, 3, v0\nv_lshl_add_u32 v6, v7, 4, v6\nv_add_u32 v6, s54, v6')
    A('s_lshl_b32 s71, s53, 13')
    A('s_cmp_eq_u32 s70, 4\ns_cbranch_scc1 %s'%le)
    for k in range(cfg.E1): paced(k,cfg.E1,dma1(k))
    A('s_branch %s'%le)
    A('%s:'%l2)
    A('s_mul_i32 s54, s53, 448\nv_lshrrev_b32 v6, 1, v0\nv_add_u32 v6, s54, v6\nv_lshlrev_b32 v6, 10, v6')
    A('v_and_b32 v7, 1, v0\nv_lshl_add_u32 v6, v7, 4, v6\ns_lshl_b32 s54, s15, 5\nv_add_u32 v6, s54, v6')
    A('s_mul_i32 s71, s53, 14336')
    for k in range(cfg.E2): paced(k,cfg.E2,dma2(k))
    A('%s:'%le)
    A('s_waitcnt vmcnt(0)')
    A('v_lshlrev_b32 v16, 16, v16')
    lds_sync(1,sleep=4)
    stamp(6)
    l1=newlab('r1'); l2=newlab('r2'); le=newlab('re')
    A('v_mov_b32 v26, 0\nv_mov_b32 v27, 0\nv_mov_b32 v28, 0\nv_mov_b32 v29, 0')
    A('s_cmp_eq_u32 s70, 1\ns_cbranch_scc1 %s\ns_cmp_eq_u32 s70, 2\ns_cbranch_scc1 %s'%(l1,l2))
    A('v_lshrrev_b32 v8, 4, v0\nv_lshlrev_b32 v8, 11, v8\nv_bfe_u32 v7, v0, 2, 2\nv_lshl_add_u32 v8, v7, 8, v8\nv_and_b32 v7, 3, v0\nv_lshl_add_u32 v8, v7, 3, v8')
    A('s_lshl_b32 s54, s53, 6\ns_add_u32 s54, s54, %d\nv_add_u32 v8, s54, v8'%L_WA)
    def trw():
        for t in range(2):
            for s_ in range(4):
                r=80+16*t+4*s_
                A('ds_read_b64_tr_b16 v[%d:%d], v8 offset:%d'%(r,r+1,8192*s_+32*t))
                A('ds_read_b64_tr_b16 v[%d:%d], v8 offset:%d'%(r+2,r+3,8192*s_+32*t+1024))
            if t==0 or cfg.EW==8: A('s_waitcnt lgkmcnt(0)')
    if cfg.EW==8: trw()
    A('s_branch %s'%le)
    A('%s:'%l1)
    A('v_lshrrev_b32 v8, 4, v0\nv_lshlrev_b32 v8, 9, v8\nv_bfe_u32 v7, v0, 2, 2\nv_lshl_add_u32 v8, v7, 6, v8')
    A('v_and_b32 v7, 1, v0\nv_lshl_add_u32 v8, v7, 3, v8\nv_bfe_u32 v7, v0, 1, 1\nv_lshl_add_u32 v8, v7, 15, v8\ns_lshl_b32 s54, s53, 4\ns_add_u32 s54, s54, %d\nv_add_u32 v8, s54, v8'%L_WA)
    A('s_mul_i32 s55, s14, 147\ns_lshr_b32 s55, s55, 11\ns_mul_i32 s55, s55, %d'%(16384-7168))
    A('s_lshl_b32 s54, s14, 2\ns_add_u32 s54, s54, s53\ns_lshl_b32 s54, s54, 7\ns_add_u32 s54, s54, s55\ns_add_u32 s54, s54, %d'%AB)
    A('v_and_b32 v27, 0x70, v1\nv_lshrrev_b32 v7, 4, v0\nv_lshl_add_u32 v27, v7, 16, v27\nv_bfe_u32 v7, v0, 3, 1\nv_lshlrev_b32 v7, 13, v7\nv_add3_u32 v27, v27, v7, s54')
    A('s_and_b32 s55, s48, %d\ns_lshl_b32 s55, s55, 15\ns_lshl_b32 s54, s10, 13\ns_add_u32 s54, s54, s55\ns_lshr_b32 s55, s53, 1\ns_lshl_b32 s55, s55, 14\ns_add_u32 s54, s54, s55'%(cfg.nH//2-1))
    A('s_and_b32 s55, s53, 1\ns_lshl_b32 s55, s55, 12\ns_add_u32 s54, s54, s55\ns_add_u32 s54, s54, %d\nv_add_u32 v4, s54, v1'%HB)
    A('v_bfe_u32 v5, v0, 2, 1\ns_lshl_b32 s54, s53, 1\nv_add_u32 v5, s54, v5\nv_mul_u32_u24 v5, %d, v5\nv_lshrrev_b32 v7, 3, v0\nv_lshl_add_u32 v5, v7, 5, v5\nv_and_b32 v7, 3, v0\nv_lshl_add_u32 v5, v7, 3, v5'%XNS)
    A('s_branch %s'%le)
    A('%s:'%l2)
    A('v_lshrrev_b32 v8, 4, v0\nv_lshlrev_b32 v8, 9, v8\nv_bfe_u32 v7, v0, 1, 1\nv_lshl_add_u32 v8, v7, 8, v8\nv_bfe_u32 v7, v0, 2, 2\nv_lshl_add_u32 v8, v7, 5, v8')
    A('v_and_b32 v7, 1, v0\nv_lshl_add_u32 v8, v7, 3, v8\ns_add_u32 s55, s71, %d\nv_add_u32 v8, s55, v8'%L_WA)
    A('v_bfe_u32 v26, v0, 2, 1\nv_lshlrev_b32 v26, 10, v26\nv_bfe_u32 v7, v0, 1, 1\nv_lshl_add_u32 v26, v7, 8, v26\nv_lshrrev_b32 v7, 3, v0\nv_lshl_add_u32 v26, v7, 4, v26\nv_and_b32 v7, 1, v0\nv_lshl_add_u32 v26, v7, 3, v26')
    A('s_and_b32 s55, s48, %d\ns_lshl_b32 s55, s55, 16\ns_lshl_b32 s54, s53, 14\ns_add_u32 s54, s54, s55\ns_lshl_b32 s55, s10, 13\ns_add_u32 s54, s54, s55\ns_add_u32 s54, s54, %d\nv_add_u32 v27, s54, v1'%(cfg.nA//2-1,AB+3072))
    A('s_mov_b32 s54, s15\ns_lshl_b32 s55, s54, 5')
    A('v_lshrrev_b32 v28, 3, v0\nv_lshlrev_b32 v28, 10, v28\nv_and_b32 v7, 7, v0\nv_lshl_add_u32 v28, v7, 2, v28\nv_add_u32 v28, s55, v28')
    A('s_lshl_b32 s54, s54, 7\ns_and_b32 s55, s48, %d\ns_lshl_b32 s55, s55, 15\ns_add_u32 s54, s54, s55\ns_lshl_b32 s55, s10, 13\ns_add_u32 s54, s54, s55\ns_add_u32 s54, s54, %d'%(cfg.nH//2-1,HB))
    A('v_bfe_u32 v29, v0, 4, 1\nv_lshlrev_b32 v29, 12, v29\nv_lshrrev_b32 v7, 5, v0\nv_lshl_add_u32 v29, v7, 14, v29\nv_and_b32 v7, 15, v0\nv_lshl_add_u32 v29, v7, 3, v29\nv_add_u32 v29, s54, v29')
    A('s_lshl_b32 s54, s53, 11\nv_add_u32 v10, s54, v1')
    A('%s:'%le)
    A('s_lshl_b32 s54, s53, 9\nv_add_u32 v17, s54, v3')
    A('s_and_b32 s54, s50, 3\ns_lshl_b32 s54, s54, 2\ns_add_u32 s54, s54, s53\ns_mul_i32 s54, s54, 49152\ns_bfe_u32 s55, s50, 0x10002\ns_lshl_b32 s55, s55, 13\ns_add_u32 s54, s54, s55')
    A('s_lshr_b32 s6, s50, 3\ns_mul_i32 s7, s6, 11\ns_lshr_b32 s7, s7, 5\ns_mul_i32 s7, s7, %d\ns_lshl_b32 s6, s6, 2\ns_add_u32 s6, s6, s51\ns_mul_i32 s6, s6, %d'%(16384-12*OPS,OPS))
    A('s_add_u32 s54, s54, s6\ns_add_u32 s54, s54, s7\ns_add_u32 s54, s54, %d\nv_add_u32 v18, s54, v1'%OP)
    A('s_and_b32 s54, s67, 15\ns_mul_i32 s54, s54, 49152\ns_lshl_b32 s55, s11, 13\ns_add_u32 s54, s54, s55\ns_add_u32 s54, s54, %d'%OP)
    A('v_mul_u32_u24 v7, 11, v2\nv_lshrrev_b32 v7, 5, v7\nv_mul_u32_u24 v7, %d, v7\nv_mul_u32_u24 v25, %d, v2\nv_add3_u32 v25, v25, v7, s54\nv_add_u32 v19, v25, v3'%(16384-12*OPS,4*OPS))
    A('s_lshl_b32 s54, s53, 5\nv_mov_b32 v30, s54')
    A('v_mul_u32_u24 v20, %d, v2\nv_lshrrev_b32 v7, 1, v3\nv_add_u32 v20, v20, v7'%XOS)
    A('v_and_b32 v21, 7, v0\nv_mul_u32_u24 v21, %d, v21\nv_add_u32 v21, v21, v15'%XOS)
    A('s_lshl_b32 s54, s69, 2\ns_add_u32 s54, s54, s53\ns_lshl_b32 s54, s54, 13\ns_add_u32 s54, s54, %d'%(WP+2048))
    A('s_lshl_b32 s55, s69, 1\ns_add_u32 s55, s55, s67' if cfg.wrot else 's_mov_b32 s55, s67')
    A('v_bfe_u32 v22, v0, 1, 2')
    A('v_lshl_add_u32 v7, v22, 3, s55' if cfg.wrot else 'v_mov_b32 v7, s55')
    A('v_and_b32 v7, 31, v7\nv_lshlrev_b32 v22, 17, v22\nv_lshl_add_u32 v22, v7, 7, v22\nv_and_b32 v7, 1, v0\nv_lshl_add_u32 v22, v7, 6, v22\nv_add3_u32 v22, v22, v15, s54')
    A('s_lshl_b32 s54, s13, 12\ns_add_u32 s54, s54, %d\nv_add_u32 v23, s54, v1'%WP)
    def guarded(lines):
        A(lines)
    def drychk():
        pass
    for r in range(192,246): A('v_mov_b32 v%d, -1'%r)
    A('s_waitcnt lgkmcnt(0)')
    A('s_mov_b64 vcc, 0\ns_mov_b64 s[4:5], %d\ns_mov_b64 exec, s[4:5]'%(0 if cfg.warm else -1))
    wpl=['global_load_dwordx4 v[%d:%d], v23, %s offset:%d sc1'%(216+4*t,219+4*t,WS,1024*t) for t in range(4)]
    opl=['global_load_dwordx2 v[%d:%d], v25, %s offset:%d sc1'%(208+2*s_,209+2*s_,WS,OPS*s_+512) for s_ in range(4)]+['global_load_dwordx4 v[%d:%d], v19, %s offset:%d sc1'%(192+4*s_,195+4*s_,WS,OPS*s_) for s_ in range(4)]
    hbl=['global_load_dwordx4 v[%d:%d], v4, %s offset:%d sc1'%(216+4*t,219+4*t,WS,1024*t) for t in range(4)]
    abl=['global_load_dwordx4 v[%d:%d], v27, %s offset:%d sc1'%(216+4*t,219+4*t,WS,1024*t-3072) for t in range(7)]
    if cfg.pre:
        A('s_cmp_lg_u32 s70, 3\ns_cbranch_scc1 L_pre1')
        if cfg.pre&2: A('\n'.join(opl))
        A('s_cmp_lg_u32 s53, 0\ns_cbranch_scc1 L_pre3')
        if cfg.pre&1: A('\n'.join(wpl))
        A('s_branch L_pre3\nL_pre1:')
        if cfg.pre&4:
            A('s_cmp_lg_u32 s70, 1\ns_cbranch_scc1 L_pre2'); A('\n'.join(hbl)); A('L_pre2:\ns_cmp_lg_u32 s70, 2\ns_cbranch_scc1 L_pre3'); A('\n'.join(abl))
        A('L_pre3:')
    if cfg.disp:
        A('s_cmp_lg_u32 s53, 2\ns_cbranch_scc1 L_tail')
        A('s_lshl_b32 s54, s50, %d\ns_add_u32 s54, s54, %d\ns_add_u32 s40, s38, s54\ns_addc_u32 s41, s39, 0'%(cfg.cs,CTR))
        lds_wait(31,L_PR,cfg.NS-1,2)
        A('s_mov_b32 s42, %d\nv_mov_b32 v7, 0'%cfg.LA)
        A('L_dsp:')
        A('s_mov_b32 s43, %d\ns_atomic_add s43, s[40:41], 0x0 glc\ns_waitcnt lgkmcnt(0)\ns_add_u32 s43, s43, %d\nv_mov_b32 v13, s43'%(cfg.disp,cfg.NS*16+1))
        A('ds_write_b32 v7, v13 offset:%d'%(L_CNT+64))
        A('s_cmp_ge_u32 s43, 512\ns_cbranch_scc1 L_dspd')
        lds_wait(11,L_CNT+24,'s42',1)
        A('s_add_u32 s42, s42, %d\nv_add_u32 v7, 4, v7\ns_branch L_dsp'%cfg.disp)
        A('L_dspd:')
        for i in range(1,4//cfg.disp): A('ds_write_b32 v7, v13 offset:%d'%(L_CNT+64+4*i))
        A('s_waitcnt lgkmcnt(0)')
    A('L_tail:')
    stamp(7)
    guarded('s_barrier')
    def wsum(b0,half,s0=None):
        d='v[%d:%d]'%(b0+2*half,b0+2*half+1)
        s0=s0 or b0
        for w in range(4):
            src='v[%d:%d]'%(s0+4*w+2*half,s0+4*w+2*half+1)
            f='v[%d:%d]'%(72+2*(w//2),73+2*(w//2))
            if w==0: A('v_pk_mul_f32 %s, %s, %s op_sel_hi:[1,0]'%(d,src,f))
            elif w%2==0: A('v_pk_fma_f32 %s, %s, %s, %s op_sel_hi:[1,0,1]'%(d,src,f,d))
            else: A('v_pk_fma_f32 %s, %s, %s, %s op_sel:[0,1,0] op_sel_hi:[1,1,1]'%(d,src,f,d))
    if cfg.gleak is not None:
        k,lo,hi,msk=cfg.gleak
        A('s_cbranch_execz L_nogl\ns_cmp_lg_u32 s53, 0\ns_cbranch_scc1 L_nogl')
        if k==8: stamp(8); A('s_waitcnt lgkmcnt(0)')
        if k==200: A('s_getreg_b32 s72, hwreg(HW_REG_XCC_ID)\ns_sub_u32 s72, s72, s48\ns_and_b32 s72, s72, 7\ns_mul_i32 s72, s72, 50\nv_mov_b32 v33, s72')
        elif k>=100: A('v_mov_b32 v32, %d\nds_read_b32 v33, v32 offset:%d\ns_waitcnt lgkmcnt(0)'%(4*(k-100),L_ST))
        else: A('v_mov_b32 v33, s%d'%(72+2*k))
        A('v_not_b32 v33, v33\nv_mov_b32 v34, s72\nv_mov_b32 v32, 0x3b0000')
        A('s_mov_b64 exec, 1')
        if k!=8: A('global_atomic_umin v32, v34, %s'%WS)
        A('s_and_b32 s54, s2, %d\ns_sub_u32 s54, s54, %d\ns_cmp_ge_u32 s54, %d\ns_cbranch_scc1 L_nogl2'%(msk,lo,hi-lo))
        A('global_atomic_umin v32, v33, %s offset:256'%WS)
        A('L_nogl2:\ns_mov_b64 exec, -1\n'+('s_nop 2' if k==8 else 's_waitcnt vmcnt(0)'))
        A('L_nogl:')
    A('ds_read_b128 v[64:67], v30 offset:%d\nds_read_b128 v[68:71], v30 offset:%d'%(L_MLW,L_MLW+16))
    for w in range(4):
        A('ds_read_b128 v[%d:%d], v17 offset:%d'%(32+4*w,35+4*w,L_OW+2048*w))
    stamp(8)
    if cfg.notail: A('s_branch L_fin')
    A('s_and_b32 exec_hi, s4, 1')
    A('s_waitcnt lgkmcnt(%d)'%(0 if cfg.diag else 4))
    A('v_max3_f32 v76, v64, v65, v66\nv_max_f32 v76, v76, v67')
    A('v_pk_add_f32 v[72:73], v[64:65], v[76:77] op_sel_hi:[1,0] neg_lo:[0,1] neg_hi:[0,1]')
    A('v_pk_add_f32 v[74:75], v[66:67], v[76:77] op_sel_hi:[1,0] neg_lo:[0,1] neg_hi:[0,1]')
    for i in range(4): A('v_exp_f32 v%d, v%d'%(72+i,72+i))
    A('v_pk_mul_f32 v[68:69], v[68:69], v[72:73]\nv_pk_fma_f32 v[68:69], v[70:71], v[74:75], v[68:69]')
    A('s_waitcnt lgkmcnt(0)')
    A('v_add_f32 v77, v68, v69')
    wsum(32,0); wsum(32,1)
    A('v_mov_b32_dpp v32, v76 quad_perm:[0,1,2,3] row_mask:0x4 bank_mask:0xf')
    A('v_mov_b32_dpp v33, v77 quad_perm:[0,1,2,3] row_mask:0x4 bank_mask:0xf')
    guarded('global_store_dwordx4 v18, v[32:35], %s %s'%(WS,cfg.sf))
    tstamp(1)
    A('s_mov_b64 exec, s[4:5]')
    A('s_cmp_lg_u32 s70, 3\ns_cbranch_scc1 L_rdone')
    if cfg.EW<8:
        for i in range(cfg.EW,8): A(dmaw(i))
        A('s_waitcnt vmcnt(0)\ns_barrier')
        trw()
    apoll(['global_load_dwordx2 v[%d:%d], v25, %s offset:%d sc1'%(208+2*s_,209+2*s_,WS,OPS*s_+512) for s_ in range(4)]+
         ['global_load_dwordx4 v[%d:%d], v19, %s offset:%d sc1'%(192+4*s_,195+4*s_,WS,OPS*s_) for s_ in range(4)],cfg.pW)
    stamp(9)
    if cfg.head:
        A('s_cmp_lg_u32 s53, 0\ns_cbranch_scc1 L_nohead'); A('\n'.join(wpl)); A('L_nohead:')
    A('v_max3_f32 v76, v208, v210, v212\nv_max_f32 v76, v76, v214')
    for i in range(4): A('v_sub_f32 v%d, v%d, v76'%(72+i,208+2*i))
    for i in range(4): A('v_exp_f32 v%d, v%d'%(72+i,72+i))
    A('v_mul_f32 v78, v72, v209')
    for i in range(1,4): A('v_fmac_f32 v78, v%d, v%d'%(72+i,209+2*i))
    A('v_rcp_f32 v78, v78')
    wsum(48,0,192); wsum(48,1,192)
    A('v_pk_mul_f32 v[48:49], v[48:49], v[78:79] op_sel_hi:[1,0]\nv_pk_mul_f32 v[50:51], v[50:51], v[78:79] op_sel_hi:[1,0]')
    A('v_cvt_pk_bf16_f32 v48, v48, v49\nv_cvt_pk_bf16_f32 v49, v50, v51')
    A('ds_write_b64 v20, v[48:49] offset:%d'%L_XO)
    A('s_waitcnt lgkmcnt(0)'); guarded('s_barrier')
    if cfg.tdiag: tstamp(2); A('s_waitcnt lgkmcnt(0)')
    for s_ in range(4):
        A('ds_read_b128 v[%d:%d], v21 offset:%d'%(32+4*s_,35+4*s_,L_XO+64*s_))
    for s_ in range(4):
        A('s_waitcnt lgkmcnt(%d)'%(3-s_))
        for t in range(2):
            acc='v[%d:%d]'%(48+4*t,51+4*t); r=80+16*t+4*s_
            A('v_mfma_f32_16x16x32_bf16 %s, v[%d:%d], v[%d:%d], %s'%(acc,r,r+3,32+4*s_,35+4*s_,'0' if s_==0 else acc))
    A('s_mov_b32 exec_lo, 0x00ff00ff\ns_mov_b32 exec_hi, 0x00ff00ff')
    A('s_nop 4')
    A('global_store_dwordx4 v22, v[48:51], %s offset:-2048 %s'%(WS,cfg.sf))
    A('global_store_dwordx4 v22, v[52:55], %s offset:2048 %s'%(WS,cfg.sf))
    tstamp(3)
    A('s_mov_b64 exec, -1')
    A('s_cmp_lg_u32 s53, 0\ns_cbranch_scc1 L_fin')
    apoll(['global_load_dwordx4 v[%d:%d], v23, %s offset:%d sc1'%(216+4*t,219+4*t,WS,1024*t) for t in range(4)],cfg.pR)
    stamp(10)
    A('v_pk_add_f32 v[32:33], v[216:217], v[220:221]\nv_pk_add_f32 v[34:35], v[218:219], v[222:223]')
    A('v_pk_add_f32 v[40:41], v[224:225], v[228:229]\nv_pk_add_f32 v[42:43], v[226:227], v[230:231]')
    A('v_pk_add_f32 v[32:33], v[32:33], v[40:41]\nv_pk_add_f32 v[34:35], v[34:35], v[42:43]')
    A('s_nop 1\nv_permlane32_swap_b32 v32, v34\nv_permlane32_swap_b32 v33, v35')
    A('v_add_f32 v32, v32, v34\nv_add_f32 v33, v33, v35')
    A('s_nop 1\nv_permlane16_swap_b32 v32, v33\nv_add_f32 v32, v32, v33')
    dppadd(32,'row_ror:8')
    rbf(32)
    A('v_add_f32 v32, v32, v16')
    rbf(32)
    A('v_mov_b32 v33, v32\ns_nop 1\nv_permlane16_swap_b32 v32, v33\nv_mov_b32 v34, v32\nv_mov_b32 v35, v33\ns_nop 0')
    A('v_permlane32_swap_b32 v32, v34\nv_permlane32_swap_b32 v33, v35')
    if cfg.nH<8: A('s_and_b32 exec_lo, s4, 0x%x\ns_mov_b32 exec_hi, 0'%((1<<(8*cfg.nH))-1))
    guarded('global_store_dwordx4 v24, v[32:35], %s %s'%(WS,cfg.sf))
    tstamp(4)
    A('s_branch L_fin')
    A('L_rdone:')
    A('s_cmp_eq_u32 s70, 2\ns_cbranch_scc1 L_ffn2')
    A('s_cmp_eq_u32 s70, 0\ns_cbranch_scc1 L_fin')
    if cfg.lrot:
        assert cfg.E1%2==0
        i0=cfg.E1//2; n=8-i0
        if cfg.helper: A('s_and_b32 s6, s14, 1\ns_cmp_eq_u32 s70, 4\ns_cselect_b32 s6, 2, s6\ns_mul_i32 s6, s6, %d\ns_add_u32 s6, s6, %d'%(n//3,i0))
        else: A('s_and_b32 s6, s14, 1\ns_mul_i32 s6, s6, %d\ns_add_u32 s6, s6, %d'%(n//2,i0))
        for it in range(n):
            if cfg.helper and it==n-2*(n//3): A('s_cmp_eq_u32 s70, 4\ns_cbranch_scc1 L_fin')
            A('s_mul_i32 s7, s6, %d\nv_add_u32 v7, s7, v6\ns_lshl_b32 s7, s6, 10\ns_add_u32 s7, s7, s71\ns_add_u32 m0, s7, %d\ns_add_u32 s6, s6, 1'%(16*3584,L_WA))
            A('global_load_lds_dwordx4 v7, %s %s'%(WG,cfg.ff))
            A('s_add_u32 m0, s7, %d\ns_cmp_eq_u32 s6, 8\ns_cselect_b32 s6, %d, s6'%(L_WA+32768,i0))
            A('global_load_lds_dwordx4 v7, %s %s'%(WU,cfg.ff))
    else:
        for k in range(cfg.E1,16): A(dma1(k))
    A('s_waitcnt vmcnt(0)\ns_barrier')
    for s_ in range(16):
        A('ds_read_b64_tr_b16 v[%d:%d], v8 offset:%d'%(96+4*s_,97+4*s_,2048*s_))
        A('ds_read_b64_tr_b16 v[%d:%d], v8 offset:%d'%(98+4*s_,99+4*s_,2048*s_+256))
        if s_%4==3: A('s_waitcnt lgkmcnt(0)')
    tstamp(2)
    apoll(['global_load_dwordx4 v[%d:%d], v4, %s offset:%d sc1'%(216+4*t,219+4*t,WS,1024*t) for t in range(4)],cfg.pF)
    stamp(11)
    layernorm('h')
    tstamp(5)
    A('s_waitcnt lgkmcnt(0)'); guarded('s_barrier')
    if cfg.tdiag: tstamp(6); A('s_waitcnt lgkmcnt(0)')
    for s_ in range(8):
        A('ds_read_b128 v[%d:%d], v9 offset:%d'%(32+4*s_,35+4*s_,L_XN+64*s_))
    for s_ in range(16):
        A('s_waitcnt lgkmcnt(%d)'%min(7,15-s_))
        b=32+4*(s_%8) if s_<8 else 160+4*(s_-8)
        A('v_mfma_f32_16x16x32_bf16 v[64:67], v[%d:%d], v[%d:%d], %s'%(96+4*s_,99+4*s_,b,b+3,'0' if s_==0 else 'v[64:67]'))
        if s_<8: A('ds_read_b128 v[%d:%d], v9 offset:%d'%(160+4*s_,163+4*s_,L_XN+64*(s_+8)))
    A('s_nop 7')
    A('v_permlane32_swap_b32 v64, v65\nv_permlane32_swap_b32 v66, v67')
    A('s_nop 1')
    A('v_mov_b32_dpp v64, v66 quad_perm:[0,1,2,3] row_mask:0xf bank_mask:0xc')
    A('v_mov_b32_dpp v65, v67 quad_perm:[0,1,2,3] row_mask:0xf bank_mask:0xc')
    A('v_cvt_pk_bf16_f32 v32, 0, v64\nv_cvt_pk_bf16_f32 v36, 0, v65')
    A('v_mul_f32 v33, v32, v32\nv_mul_f32 v33, 0x3d372713, v33\nv_fma_f32 v33, v33, v32, v32')
    A('v_mul_f32 v33, 0xc0135761, v33\nv_exp_f32 v33, v33\ns_nop 0\nv_add_f32 v33, 1.0, v33\nv_rcp_f32 v33, v33\ns_nop 0\nv_mul_f32 v33, v33, v32')
    rbf(33)
    A('v_mul_f32 v33, v33, v36\nv_mov_b32 v34, v33\ns_nop 1\nv_permlane32_swap_b32 v33, v34')
    A('v_cvt_pk_bf16_f32 v33, v33, v34\nv_min_u32 v36, -2, v33')
    A('v_mov_b32 v32, v36\nv_mov_b32 v33, v36\ns_nop 0')
    A('v_mov_b32_dpp v32, v36 row_ror:8 row_mask:0xf bank_mask:0xc\nv_mov_b32_dpp v33, v36 row_ror:8 row_mask:0xf bank_mask:0x3')
    A('v_mov_b32 v34, v32\nv_mov_b32 v35, v33\ns_nop 0')
    A('v_permlane16_swap_b32 v32, v34\nv_permlane16_swap_b32 v33, v35')
    if cfg.nA<8: A('s_and_b32 exec_lo, s4, 0x%x\ns_mov_b32 exec_hi, 0'%((1<<(8*cfg.nA))-1))
    guarded('global_store_dwordx4 v27, v[32:35], %s %s'%(WS,cfg.sf))
    stamp(12)
    A('L_fin:')
    A('s_waitcnt vmcnt(0)')
    if cfg.diag:
        dump_stamps(14,8)
    A('s_endpgm')
    A('L_ffn2:')
    if cfg.lrot:
        n=14-cfg.E2
        A('s_and_b32 s6, s15, 3\ns_mul_i32 s6, s6, %d\ns_lshr_b32 s6, s6, 2\ns_add_u32 s6, s6, %d'%(n,cfg.E2))
        for _ in range(n):
            A('s_lshl_b32 s7, s6, 15\nv_add_u32 v7, s7, v6\ns_lshl_b32 s7, s6, 10\ns_add_u32 s7, s7, s71\ns_add_u32 m0, s7, %d\ns_add_u32 s6, s6, 1'%L_WA)
            A('global_load_lds_dwordx4 v7, %s %s'%(WD,cfg.ff))
            A('s_cmp_eq_u32 s6, 14\ns_cselect_b32 s6, %d, s6'%cfg.E2)
    else:
        for k in range(cfg.E2,14): A(dma2(k))
    A('s_waitcnt vmcnt(0)')
    for t in range(7):
        for tt in range(2):
            r=96+8*t+4*tt
            A('ds_read_b64_tr_b16 v[%d:%d], v8 offset:%d'%(r,r+1,2048*t+16*tt))
            A('ds_read_b64_tr_b16 v[%d:%d], v8 offset:%d'%(r+2,r+3,2048*t+16*tt+128))
        if t%2==0: A('s_waitcnt lgkmcnt(0)')
    tstamp(2)
    poll(guard=True,loads=['global_load_dwordx2 v[60:61], v29, %s sc1'%WS],regs=[60,61])
    apoll(['global_load_dwordx4 v[%d:%d], v27, %s offset:%d sc1'%(216+4*t,219+4*t,WS,1024*t-3072) for t in range(7)],cfg.pG)
    stamp(10)
    for t in range(7):
        for tt in range(2):
            acc='v[%d:%d]'%(64+4*tt,67+4*tt)
            r=96+8*t+4*tt
            A('v_mfma_f32_16x16x32_bf16 %s, v[%d:%d], v[%d:%d], %s'%(acc,r,r+3,216+4*t,219+4*t,'0' if t==0 else acc))
    A('s_nop 6')
    A('ds_write_b128 v10, v[64:67] offset:%d'%L_DP)
    A('ds_write_b128 v10, v[68:71] offset:%d'%(L_DP+1024))
    A('s_waitcnt lgkmcnt(0)'); guarded('s_barrier')
    tstamp(6)
    A('s_cmp_lg_u32 s53, 0\ns_cbranch_scc1 L_fin')
    for w in range(4):
        A('ds_read_b64 v[%d:%d], v26 offset:%d'%(32+4*w,33+4*w,L_DP+2048*w))
        A('ds_read_b64 v[%d:%d], v26 offset:%d'%(34+4*w,35+4*w,L_DP+2048*w+640))
    A('s_waitcnt lgkmcnt(0)')
    for w in range(4): A('v_pk_add_f32 v[%d:%d], v[%d:%d], v[%d:%d]'%(32+4*w,33+4*w,32+4*w,33+4*w,34+4*w,35+4*w))
    A('v_pk_add_f32 v[32:33], v[32:33], v[36:37]\nv_pk_add_f32 v[40:41], v[40:41], v[44:45]\nv_pk_add_f32 v[32:33], v[32:33], v[40:41]')
    A('v_cvt_pk_bf16_f32 v32, 0, v32\nv_cvt_pk_bf16_f32 v33, 0, v33')
    A('v_pk_add_f32 v[32:33], v[32:33], v[60:61]')
    A('v_cvt_pk_bf16_f32 v32, v32, v33')
    if cfg.odiag: stamp(12)
    guarded('global_store_dword v28, v32, %s %s'%(OUT,cfg.of))
    if cfg.odiag: A('s_waitcnt vmcnt(0)')
    drychk()
    if cfg.diag:
        stamp(13)
        if cfg.leak is not None:
            a,b=cfg.leak
            A('s_waitcnt lgkmcnt(0)')
            if cfg.gleak is not None:
                A('v_mov_b32 v8, 0x3b0000\nglobal_load_dword v9, v8, %s sc1\nglobal_load_dword v10, v8, %s offset:256 sc1\ns_waitcnt vmcnt(0)'%(WS,WS))
                if b==14: A('v_not_b32 v9, v10\nv_mov_b32 v10, s%d'%(72+2*13))
                elif b==13: A('v_mov_b32 v10, s%d'%(72+2*13))
                else: A('v_not_b32 v10, v10')
                A('v_sub_u32 v9, v10, v9\ns_nop 1\nv_readfirstlane_b32 s54, v9')
                if b==0: A('s_mov_b32 s54, 0')
            elif a>=100:
                A('v_mov_b32 v8, %d\nds_read_b32 v9, v8 offset:%d\nds_read_b32 v10, v8 offset:%d\ns_waitcnt lgkmcnt(0)\nv_sub_u32 v9, v9, v10\ns_nop 1\nv_readfirstlane_b32 s54, v9'%(0,L_ST+4*(b-100),L_ST+4*(a-100)))
            elif b>=100:
                A('v_mov_b32 v8, %d\nds_read_b32 v9, v8 offset:%d\ns_waitcnt lgkmcnt(0)\nv_readfirstlane_b32 s54, v9\ns_sub_u32 s54, s54, s%d'%(4*(b-100),L_ST,72+2*a))
            else: A('s_sub_u32 s54, s%d, s%d'%(72+2*b,72+2*a))
            A('s_mul_i32 s54, s54, %d\ns_min_u32 s54, s54, 60000'%cfg.mult)
            A('L_leak:')
            A('s_memrealtime s[68:69]\ns_waitcnt lgkmcnt(0)\ns_sub_u32 s55, s68, s%d\ns_cmp_lt_u32 s55, s54\ns_cbranch_scc1 L_leak'%(72+2*13))
        else:
            A('s_waitcnt lgkmcnt(0)\ns_mov_b32 s100, s92\ns_mov_b32 s92, 0')
            dump_stamps(15,8)
    A('L_end:')
    A('s_endpgm')
    A('.section .rodata,"a"\n.p2align 6\n.amdhsa_kernel %s'%K)
    A('  .amdhsa_next_free_vgpr 256\n  .amdhsa_next_free_sgpr 102\n  .amdhsa_accum_offset 256\n  .amdhsa_group_segment_fixed_size 0\n  .amdhsa_kernarg_size 96')
    A('  .amdhsa_user_sgpr_count 2\n  .amdhsa_user_sgpr_kernarg_segment_ptr 1\n  .amdhsa_system_sgpr_workgroup_id_x 1')
    A('  .amdhsa_float_denorm_mode_32 3\n  .amdhsa_float_denorm_mode_16_64 3')
    A('.end_amdhsa_kernel')
    return '\n'.join(L)+'\n'

if __name__=='__main__':
    cfg=Cfg()
    out=sys.argv[1]
    for a in sys.argv[2:]:
        k,v=a.split('=',1); setattr(cfg,k,eval(v))
    s=gen(cfg)
    hdr=''.join(l for l in open('cdna_kernels/%s.s.ref'%NAME).readlines()[:13])
    open(out,'w').write(hdr+s)
```

```python
import sys
NAME='sequential_preLN__gqa_block_cached__geglu_ffn__decode'
K=NAME+'_kernel'

class Cfg:
    diag=False
    leak=None
    nocomp=False
    noq=False
    T2=12
    cpf=False
    disp=4; LA=1; boost=(1,5,3); lf='sc1'; sf='sc1'
    skipG=False; skipF=False
    par=None
    NP=3
    HS=20736; AS=28672; wrot=False; pre=0; head=0
    upfront=False
    vdiag=None
    odiag=False
    touch=True
    sdiag=False
    mult=1
    Q1=0; Q2=0
    E1=4; E2=0; EW=8; lrot=True; helper=False
    T0=None; n0=24
    qflag=True
    chunk=0
    bare=0
    notail=False
    knat=False
    cdbg=False
    ctouch=None
    rot=4
    cs=9
    nowq=False
    noqst=False
    nH=8; nA=8
    pW=('c',1,0); pR=('m',8,1); pF=('c',1,0); pG=('c',1,0)
    tdiag=False
    tsleep=0
    crot=0
    noclr=False
    wolate=False
    warm=False
    of=''
    gleak=None
    NS=28
    sflag=False
    svcfirst=0
    spin=1<<17
    T=5
    kf='nt'; vf='nt'; wf='nt'; ff=''
    pq=3
    pw0=7
    pw1=22
    noW=False

QP=0x0
FLG=0x80000
CLR=0x200000
WP=0x200000
OP=0x280000
OPS=640
HB=0x340000
AB=0x360000
CTR=0x3A0000
PRB=0x3C0000
STAMP=0x10000000
L_MLW=64
L_QL=256
L_XN=1280
XNS=1040
L_XO=9600
XOS=272
L_DP=11776
L_OW=19968
L_ST=28160
L_PR=28416
L_CNT=L_PR+1024
L_WA=30720
LDS_BYTES=L_WA+65536

LOG2E=0x3fb8aa3b
SCALE=0x3db504f3

def gen(cfg):
    L=[]
    def A(s):
        L.extend(s.split('\n'))
    lab=[0]
    def newlab(p):
        lab[0]+=1
        return 'L_%s_%d'%(p,lab[0])
    X,KP,VP,WQ,WO,BX,WG,WU,WD,OUT,DBG,WS=['s[%d:%d]'%(16+2*i,17+2*i) for i in range(12)]
    def stamp(i):
        if cfg.diag: A('s_memrealtime s[%d:%d]'%(72+2*i,73+2*i))
    def tstamp(i):
        if cfg.tdiag: stamp(i)
    def pack_stamps(n,vt):
        A('s_waitcnt lgkmcnt(0)')
        A('v_mov_b32 v%d, 0'%vt)
        for i in range(n): A('v_writelane_b32 v%d, s%d, %d'%(vt,72+2*i,i))
    def dump_stamps(n,vt):
        if not cfg.diag: return
        A('s_mov_b64 exec, -1')
        pack_stamps(n,vt)
        A('v_lshlrev_b32 v%d, 2, v0'%(vt+1))
        A('ds_read_b32 v%d, v%d offset:%d'%(vt+2,vt+1,L_ST))
        A('s_lshl_b32 s66, s2, 9\ns_add_u32 s66, s66, %d'%(STAMP))
        A('v_add_u32 v%d, s66, v%d'%(vt+1,vt+1))
        A('s_mov_b64 exec, 0xffff')
        A('s_waitcnt lgkmcnt(0)')
        A('global_store_dword v%d, v%d, %s'%(vt+1,vt+2,WS))
        A('s_lshl_b32 s66, s53, 6\nv_add_u32 v%d, s66, v%d'%(vt+1,vt+1))
        A('global_store_dword v%d, v%d, %s offset:64'%(vt+1,vt,WS))

    A('; @launch grid=(256,1,1) block=(512,1,1) lds=%d'%LDS_BYTES)
    A('.amdgcn_target "amdgcn-amd-amdhsa--gfx950"\n.text\n.globl %s\n.p2align 8\n.type %s,@function\n%s:'%(K,K,K))
    A('s_cmp_ge_u32 s2, 256\ns_cbranch_scc1 L_end')
    stamp(0)
    A('v_lshrrev_b32 v1, 6, v0')
    A('v_lshlrev_b32 v3, 2, v0')
    A('v_readfirstlane_b32 s52, v1')
    A('s_cmp_lt_u32 s52, 4\ns_cbranch_scc1 L_noz')
    A('v_mov_b32 v30, 0')
    A('ds_write_b32 v3, v30 offset:%d\nds_write_b32 v3, v30 offset:%d'%(L_PR-1024,L_PR))
    A('s_waitcnt lgkmcnt(0)')
    A('L_noz:')
    A('s_load_dwordx16 s[16:31], s[0:1], 0')
    A('s_load_dwordx8 s[32:39], s[0:1], 64')
    A('s_barrier')
    if cfg.diag:
        for i in range(1,14): A('s_mov_b32 s%d, 0'%(72+2*i))
    A('v_and_b32 v0, 63, v0')
    A('s_and_b32 s48, s2, 7\ns_lshr_b32 s49, s2, 3\ns_lshl_b32 s50, s49, 1\ns_bfe_u32 s54, s2, 0x10001\ns_or_b32 s50, s50, s54')
    A('s_and_b32 s51, s2, 1\ns_bfe_u32 s54, s2, 0x10002\ns_lshl_b32 s54, s54, 1\ns_or_b32 s51, s51, s54')
    A('s_mov_b32 s59, 0x%x\ns_mov_b32 s60, 0xffff0000'%(LOG2E))
    A('v_lshlrev_b32 v1, 4, v0')
    A('s_cmp_ge_u32 s52, 4\ns_cbranch_scc1 L_service')

    import math
    TH=math.ceil(cfg.T)
    NS=cfg.NS
    RB=64
    A('s_lshl_b32 s54, s50, 21')
    A('s_lshl_b32 s62, s51, 2\ns_add_u32 s62, s62, s52')
    for i in range(4): A('s_add_u32 s%d, s62, %d\ns_and_b32 s%d, s%d, 15\ns_lshl_b32 s%d, s%d, 12'%(8+i,cfg.rot*i,8+i,8+i,8+i,8+i))
    A('v_lshrrev_b32 v2, 4, v0\nv_lshlrev_b32 v2, 6, v2\nv_and_b32 v4, 3, v0\nv_lshl_add_u32 v2, v4, 4, v2')
    A('v_bfe_u32 v5, v0, 2, 2\nv_lshl_add_u32 v2, v5, 8, v2')
    if cfg.knat: A('v_mov_b32 v2, v1')
    A('s_mov_b32 s42, 0x200000\ns_mov_b32 s43, 0x20000\ns_mov_b32 s46, 0x200000\ns_mov_b32 s47, 0x20000')
    A('s_waitcnt lgkmcnt(0)')
    A('s_add_u32 s40, s18, s54\ns_addc_u32 s41, s19, 0\ns_and_b32 s41, s41, 0xffff')
    A('s_add_u32 s44, s20, s54\ns_addc_u32 s45, s21, 0\ns_and_b32 s45, s45, 0xffff')
    st={'n':0}
    def adv():
        if cfg.rot: A('s_add_u32 s68, s62, %d\ns_and_b32 s68, s68, 15\ns_andn2_b32 s62, s62, 15\ns_add_u32 s62, s62, 16\ns_or_b32 s62, s62, s68'%cfg.rot)
        else: A('s_add_u32 s62, s62, 16')
    def load(slot,j,throttle=True,th=None):
        if j==0: A('s_lshl_b32 s65, s62, 12')
        if throttle:
            t_=(th or cfg.T); lo=int(t_); fr=t_-lo
            w=lo+(1 if (int((j+1)*fr+1e-9)>int(j*fr+1e-9)) else 0)
            A('s_waitcnt vmcnt(%d)'%(w-1))
        r=RB+slot*32+j*4
        t=j//4
        A('buffer_load_dwordx4 v[%d:%d], %s, %s, s65 offen offset:%d %s'%(r,r+3,'v2' if t==0 else 'v1','s[40:43]' if t==0 else 's[44:47]',(j%4)*1024,cfg.kf if t==0 else cfg.vf))
    def prog(val):
        A('v_mov_b32 v30, %s\nds_write_b32 v3, v30 offset:%d'%(val,L_PR))
    NK=NS//2
    assert NS%2==0 and NK>=10 and NK<=15
    slot_of={u:u for u in range(6)}
    slot_of.update({6:0,7:1,8:2})
    for u in range(9,NS+1): slot_of[u]=(u-9)&1
    tr={'issued':0}
    def sload():
        n=tr['issued']; G=n//8; j=n%8
        tr['issued']=n+1
        if G==NS:
            load(slot_of[G],j,th=cfg.T); return
        t=G//NK; k=2*(G%NK)+j//4
        if cfg.vdiag is not None and G==cfg.vdiag and j==0: stamp(6)
        if cfg.vdiag is not None and G==cfg.vdiag+1 and j==0: stamp(7)
        if j%4==0: A('s_add_u32 s65, s%d, %d'%(8+k%4,k*65536))
        w=cfg.T0 if (cfg.T0 and n<cfg.n0) else TH
        if cfg.boost and cfg.boost[0]<=G<cfg.boost[1] and j<(8 if G<5 else 0):
            l=newlab('bo'); A('s_waitcnt vmcnt(%d)\ns_cbranch_vccnz %s\ns_waitcnt vmcnt(%d)\n%s:'%(w-1+cfg.boost[2],l,w-1,l))
        elif n>=w: A('s_waitcnt vmcnt(%d)'%(w-1))
        r=RB+slot_of[G]*32+j*4
        A('buffer_load_dwordx4 v[%d:%d], %s, %s, s65 offen offset:%d %s'%(r,r+3,'v2' if t==0 else 'v1','s[40:43]' if t==0 else 's[44:47]',(j%4)*1024,cfg.kf if t==0 else cfg.vf))
        if j==7 and n>=15: prog(G+1)
    def pro_issue(n0,n1):
        assert tr['issued']==n0
        for n in range(n0,n1): sload()
    if cfg.svcfirst: A('s_barrier')
    if cfg.sdiag: stamp(6)
    pro_issue(0,TH)
    if cfg.sdiag: stamp(7)
    if cfg.boost: A('s_xor_b32 s55, s2, s49\ns_and_b32 s55, s55, 1\ns_cselect_b64 vcc, 0, -1')
    A('s_mov_b32 s56, 0x05040100\ns_mov_b32 s57, 0x07060302\ns_mov_b32 s58, 0x%x'%SCALE)
    A('s_lshl_b32 s54, s50, %d\ns_add_u32 s54, s54, %d\ns_add_u32 s66, s38, s54\ns_addc_u32 s67, s39, 0'%(cfg.cs,CTR))
    if cfg.cdbg: A('s_lshl_b32 s54, s50, 9\ns_add_u32 s54, s54, 4096\ns_add_u32 s66, s36, s54\ns_addc_u32 s67, s37, 0')
    A('s_lshl_b32 s55, s52, 11')
    A('v_lshlrev_b32 v4, 9, v4\nv_and_b32 v0, 0x30, v0\nv_add3_u32 v0, v4, v0, s55')
    A('v_mov_b32 v14, 0xff800000')
    if cfg.sdiag:
        stamp(9); A('s_waitcnt vmcnt(%d)'%(TH-1)); stamp(10)
    pro_issue(TH,48)
    stamp(1)
    if cfg.qflag:
        A('v_mov_b32 v31, 0\nL_qw:\nds_read_b32 v15, v31 offset:%d\ns_waitcnt lgkmcnt(0)\nv_readfirstlane_b32 s54, v15\ns_cmp_eq_u32 s54, 0\ns_cbranch_scc1 L_qw'%(L_CNT+16))
    else: A('s_barrier')
    A('ds_read_b128 v[4:7], v1 offset:%d'%L_QL)
    stamp(2)
    A('s_waitcnt lgkmcnt(0)')
    def kpart(slot,fill):
        B=RB+slot*32
        f=list(fill)
        def nxt():
            if f: f.pop(0)()
        D=[20,B,B+4,B+8]
        if cfg.nocomp:
            while f: nxt()
            return
        for i in range(4):
            A('v_mfma_f32_16x16x32_bf16 v[%d:%d], v[%d:%d], v[4:7], 0'%(D[i],D[i]+3,B+4*i,B+4*i+3))
        A('s_nop 7')
        for h in range(2):
            for step in range(3):
                for e in range(2):
                    be=2*e+h
                    S=18+e
                    A('v_add_f32_dpp v%d, v%d, v%d row_ror:%d row_mask:0xf bank_mask:0x%x'%(S,D[be]+((be+step+1)&3),(D[be]+be) if step==0 else S,12-4*step,1<<be))
                A('s_nop 0')
        nxt()
        A('s_nop 0')
        A('v_mov_b32_dpp v18, v19 quad_perm:[0,1,2,3] row_mask:0xf bank_mask:0xc')
        A('v_cvt_pk_bf16_f32 v18, 0, v18\nv_mul_f32 v18, s58, v18\nv_cvt_pk_bf16_f32 v18, 0, v18')
        A('v_max_f32 v15, v14, v18')
        A('s_nop 1\nv_max_f32_dpp v15, v15, v15 row_ror:4 row_mask:0xf bank_mask:0xf')
        A('s_nop 1\nv_max_f32_dpp v15, v15, v15 row_ror:8 row_mask:0xf bank_mask:0xf')
        A('v_mov_b32 v31, v15\ns_nop 1\nv_permlane16_swap_b32 v15, v31\nv_max_f32 v15, v15, v31')
        A('v_mov_b32 v31, v15\ns_nop 1\nv_permlane32_swap_b32 v15, v31\nv_max_f32 v15, v15, v31')
        nxt()
        A('v_sub_f32 v16, v14, v15\nv_sub_f32 v18, v18, v15\nv_cmp_neq_f32 vcc, v14, v15\nv_mul_f32 v16, s59, v16\nv_mul_f32 v18, s59, v18')
        A('v_exp_f32 v16, v16\nv_exp_f32 v18, v18\nv_mov_b32 v14, v15\nv_mul_f32 v17, s59, v15')
        A('v_mov_b32_dpp v19, v18 row_ror:12 row_mask:0xf bank_mask:0xf')
        A('v_cvt_pk_bf16_f32 v8, v18, v19')
        l=newlab('nr')
        A('s_cbranch_vccz %s'%l)
        for r in range(32,64,2):
            A('v_pk_mul_f32 v[%d:%d], v[%d:%d], v[16:17] op_sel_hi:[1,0]'%(r,r+1,r,r+1))
        A('v_mul_f32 v24, v24, v16')
        A('%s:'%l)
        A('s_nop 0')
        A('v_mov_b32_dpp v9, v8 row_ror:8 row_mask:0xf bank_mask:0xf')
        while f: nxt()
    def vpart(slot):
        B=RB+slot*32+16
        if cfg.nocomp: return
        def perms(j):
            Tt=10+2*(j&1)
            for ii in range(2):
                A('v_perm_b32 v%d, v%d, v%d, s%d'%(Tt+ii,B+4*(2*ii+1)+(j>>1),B+4*(2*ii)+(j>>1),56+(j&1)))
        perms(0)
        for j in range(8):
            if j<7: perms(j+1)
            else: A('v_mfma_f32_16x16x16_bf16 v[24:27], v[28:29], v[8:9], v[24:27]')
            Tt=10+2*(j&1)
            A('v_mfma_f32_16x16x16_bf16 v[%d:%d], v[%d:%d], v[8:9], v[%d:%d]'%(32+4*j,35+4*j,Tt,Tt+1,32+4*j,35+4*j))
    SC=[8,9,10,11,12,13,20,21,22,23,25,26,27,28,29][:NK]
    RV=RB+5*32; TV=RV+4
    def need(n):
        rem=tr['issued']-n
        assert rem>=0
        if rem<TH: A('s_waitcnt vmcnt(%d)'%rem)
    def spread(chunks,nl):
        m=len(chunks)
        for i,c in enumerate(chunks):
            if not cfg.nocomp: A(c)
            for _ in range((nl*(i+1))//m-(nl*i)//m): sload()
    def kgroup(G):
        B=RB+slot_of[G]*32
        ch=['\n'.join('v_mfma_f32_16x16x32_bf16 v[%d:%d], v[%d:%d], v[4:7], 0'%(32+4*i,35+4*i,B+4*i,B+4*i+3) for i in range(8))+'\ns_nop 1']
        for be in range(4):
            c=[]
            for step in range(3):
                for e in range(2):
                    D=32+4*(2*be+e); S=18+e
                    c.append('v_add_f32_dpp v%d, v%d, v%d row_ror:%d row_mask:0xf bank_mask:0x%x'%(S,D+((be+step+1)&3),(D+be) if step==0 else S,12-4*step,1<<be))
                c.append('s_nop 0')
            ch.append('\n'.join(c))
        ch[-1]+='\nv_cvt_pk_bf16_f32 v15, 0, v18\nv_cvt_pk_bf16_f32 v16, 0, v19\nv_mul_f32 v15, s58, v15\nv_mul_f32 v16, s58, v16'
        ch[-1]+='\nv_cvt_pk_bf16_f32 v%d, v15, v16\nv_cvt_pk_bf16_f32 v15, 0, v15\nv_cvt_pk_bf16_f32 v16, 0, v16\nv_max3_f32 v14, v14, v15, v16'%SC[G]
        return ch
    def wred(op,r):
        return ('s_nop 1\n%s_dpp v%d, v%d, v%d row_ror:4 row_mask:0xf bank_mask:0xf\ns_nop 1\n%s_dpp v%d, v%d, v%d row_ror:8 row_mask:0xf bank_mask:0xf\n'%(op,r,r,r,op,r,r,r)+
                'v_mov_b32 v31, v%d\ns_nop 1\nv_permlane16_swap_b32 v%d, v31\n%s v%d, v%d, v31\n'%(r,r,op,r,r)+
                'v_mov_b32 v31, v%d\ns_nop 1\nv_permlane32_swap_b32 v%d, v31\n%s v%d, v%d, v31'%(r,r,op,r,r))
    def softmax():
        ch=[wred('v_max_f32',14)+'\nv_mul_f32 v17, s59, v14\nv_mov_b32 v24, 0']
        for g in range(NK):
            ch.append('v_lshlrev_b32 v18, 16, v%d\nv_and_b32 v19, s60, v%d\nv_sub_f32 v18, v18, v14\nv_sub_f32 v19, v19, v14\nv_mul_f32 v18, s59, v18\nv_mul_f32 v19, s59, v19\n'%(SC[g],SC[g])+
                      'v_exp_f32 v18, v18\nv_exp_f32 v19, v19\ns_nop 0\nv_cvt_pk_bf16_f32 v%d, v18, v19\nv_add_f32 v24, v24, v18\nv_add_f32 v24, v24, v19'%SC[g])
        ch.append(wred('v_add_f32',24))
        return ch
    def vgroup(G):
        B=RB+slot_of[G]*32; P=SC[G-NK]
        def perms(j):
            Tt=TV+4*(j&1)
            return '\n'.join('v_perm_b32 v%d, v%d, v%d, s%d'%(Tt+ii,B+4*(2*ii+1)+(j>>1),B+4*(2*ii)+(j>>1),56+(j&1)) for ii in range(4))
        c0='v_mov_b32 v%d, v%d\n'%(RV,P)+'\n'.join('v_mov_b32_dpp v%d, v%d row_ror:%d row_mask:0xf bank_mask:0xf'%(RV+r,P,16-4*r) for r in range(1,4))+'\n'+perms(0)
        ch=[c0]
        for j in range(8):
            Tt=TV+4*(j&1); acc='v[%d:%d]'%(32+4*j,35+4*j)
            ch.append((perms(j+1) if j<7 else 's_nop 1')+'\nv_mfma_f32_16x16x32_bf16 %s, v[%d:%d], v[%d:%d], %s'%(acc,Tt,Tt+3,RV,RV+3,'0' if G==NK else acc))
        return ch
    def request():
        if not cfg.chunk:
            A('s_mov_b32 s63, 1\ns_atomic_add s63, s[66:67], 0x0 glc'); return
        la=newlab('ra'); lb=newlab('rb')
        A('s_cmp_eq_u32 s69, 0\ns_cbranch_scc1 %s'%la)
        A('s_mov_b32 s69, 0\ns_sub_u32 s63, s62, %d\ns_branch %s'%(NS*16,lb))
        A('%s:'%la)
        A('s_cmp_lt_u32 s62, %d\ns_cselect_b32 s69, 1, 0\ns_add_u32 s63, s69, 1\ns_atomic_add s63, s[66:67], 0x0 glc'%(512-cfg.chunk))
        A('%s:'%lb)
    for G in range(9):
        need(8*G+8)
        spread(kgroup(G),[4,4,4,4,4,4,3,2,3][G])
    assert tr['issued']==80
    stamp(3)
    def get():
        lb=int(math.log2(cfg.disp)); l=newlab('gt'); d=newlab('gd')
        A('s_cmp_ge_u32 s62, 512\ns_cbranch_scc1 %s'%d)
        A('v_mov_b32 v31, 0\nv_mov_b32 v30, 1\ns_mov_b64 exec, 1\nds_add_rtn_u32 v30, v31, v30 offset:%d\ns_waitcnt lgkmcnt(0)'%(L_CNT+24))
        A('v_lshrrev_b32 v31, %d, v30\nv_lshlrev_b32 v31, 2, v31\nv_readfirstlane_b32 s63, v30'%lb)
        A('%s:\nds_read_b32 v30, v31 offset:%d\ns_waitcnt lgkmcnt(0)\nv_readfirstlane_b32 s54, v30\ns_cmp_eq_u32 s54, 0\ns_cbranch_scc1 %s'%(l,L_CNT+64,l))
        A('s_mov_b64 exec, -1\ns_and_b32 s63, s63, %d\ns_add_u32 s63, s63, s54'%(cfg.disp-1))
        A('%s:'%d)
    for G in range(9,NS):
        if cfg.disp:
            if G==NS-1:
                stamp(4); A('s_mov_b32 s62, 0'); get(); A('s_mov_b32 s62, s63')
        elif G==NS-2:
            A('v_mov_b32 v31, 0\nL_cw:\nds_read_b32 v15, v31 offset:%d\ns_waitcnt lgkmcnt(0)\nv_readfirstlane_b32 s54, v15\ns_cmp_eq_u32 s54, 0\ns_cbranch_scc1 L_cw'%(L_CNT+8))
            stamp(4)
            A('s_mov_b32 s63, %d\ns_atomic_add s63, s[66:67], 0x0 glc\ns_mov_b32 s69, %d'%((2,1) if cfg.chunk else (1,0)))
        if G==NS-1 and not cfg.disp:
            A('s_waitcnt lgkmcnt(0)\ns_add_u32 s62, s63, %d'%(NS*16+1))
            A('s_cmp_ge_u32 s62, 512\ns_cbranch_scc1 L_nrq'); request(); A('L_nrq:')
        lead=min(TH,8)
        if G==NK: spread(softmax(),lead)
        else:
            for _ in range(lead): sload()
        need(8*G+8)
        ch=kgroup(G) if G<NK else vgroup(G)
        spread(ch[:-1],8-lead); spread(ch[-1:],0)
    A('s_cmp_ge_u32 s62, 512\ns_cbranch_scc1 L_sdone')
    A('v_mov_b32 v28, 0x3f803f80\nv_mov_b32 v29, 0x3f803f80\nv_mov_b32 v25, 0\nv_mov_b32 v26, 0\nv_mov_b32 v27, 0')
    if cfg.disp: get(); A('s_mov_b32 s62, s63')
    else: A('s_waitcnt lgkmcnt(0)\ns_add_u32 s62, s63, %d'%(NS*16+1))
    A('s_mov_b32 s64, %d'%(NS+1))
    def body(c,th):
        if cfg.upfront:
            for j in range(8): load(1-c,j,th=th,throttle=(8+j>=th))
            if th>12: A('s_waitcnt vmcnt(12)')
            kpart(c,[])
            A('s_waitcnt vmcnt(8)')
            vpart(c)
            return
        for j in range(4): load(1-c,j,th=th)
        if th>8: A('s_waitcnt vmcnt(8)')
        kpart(c,[(lambda j=j: load(1-c,j,th=th)) for j in range(4,8)])
        if cfg.disp: get()
        if th>8: A('s_waitcnt vmcnt(8)')
        vpart(c)
    A('L_dyn:')
    for c in (slot_of[NS],1-slot_of[NS]):
        ls=newlab('st'); lc=newlab('sc')
        if cfg.diag: A('s_add_u32 s64, s64, 1')
        if not cfg.disp:
            A('s_cmp_ge_u32 s62, 512\ns_cbranch_scc1 %s'%ls)
            request()
            A('%s:'%ls)
        body(c,cfg.T2 or cfg.T)
        A('s_cmp_ge_u32 s62, 512\ns_cbranch_scc1 L_sdone')
        if cfg.disp: A('s_mov_b32 s62, s63')
        else:
            A('s_waitcnt lgkmcnt(0)')
            A('s_add_u32 s62, s63, %d'%(NS*16+1))
    A('s_branch L_dyn')
    A('L_sdone:')
    A('s_mov_b32 exec_lo, 0x000f000f\ns_mov_b32 exec_hi, 0x000f000f')
    stamp(5)
    A('s_lshl_b32 s55, s52, 2\nv_and_b32 v31, 0x30, v1\nv_lshl_add_u32 v31, v31, 1, s55')
    for j in range(8):
        A('ds_write_b128 v0, v[%d:%d] offset:%d'%(32+4*j,35+4*j,L_OW+64*j))
    A('ds_write2_b32 v31, v17, v24 offset0:%d offset1:%d'%(L_MLW//4,L_MLW//4+4))
    if cfg.diag:
        A('s_mov_b64 exec, -1')
        A('s_cmp_lg_u32 s52, 0\ns_cbranch_scc1 L_nost')
        pack_stamps(11 if cfg.sdiag else 8,8)
        A('v_writelane_b32 v8, s64, 8')
        A('ds_write_b32 v3, v8 offset:%d'%L_ST)
        A('L_nost:')
    A('s_waitcnt lgkmcnt(0)')
    A('s_barrier')
    A('s_endpgm')

    A('L_service:')
    if cfg.bare:
        A('s_sub_u32 s53, s52, 4\nv_mov_b32 v11, 0\nv_mov_b32 v12, 1\nv_mov_b32 v40, -1\nv_mov_b32 v41, -1\nv_mov_b32 v42, -1\nv_mov_b32 v43, -1\ns_waitcnt lgkmcnt(0)')
        if cfg.bare&2:
            A('s_lshl_b32 s54, s2, 2\ns_add_u32 s54, s54, s53\ns_mul_i32 s54, s54, 640\ns_add_u32 s54, s54, %d\nv_add_u32 v6, s54, v1\ns_mov_b32 exec_hi, 0xff\nglobal_store_dwordx4 v6, v[40:43], %s sc1\ns_mov_b64 exec, -1'%(CLR+0x100000,WS))
        if cfg.bare&4:
            A('global_load_dwordx4 v[32:35], v1, %s'%X)
        if cfg.bare&8:
            A('v_mov_b32 v6, s2\ns_mov_b64 exec, 1\nglobal_store_byte v6, v12, %s sc1\ns_mov_b64 exec, -1'%DBG)
        A('ds_write_b32 v11, v12 offset:%d\ns_waitcnt lgkmcnt(0)\ns_barrier\ns_barrier'%(L_CNT+8))
        if cfg.bare&16:
            A('v_lshlrev_b32 v7, 2, v0\nglobal_load_dword v13, v7, %s sc1'%DBG)
        A('s_barrier\ns_endpgm')
    A('s_setprio 3')
    A('s_sub_u32 s53, s52, 4')
    A('s_lshl_b32 s66, s53, 12')
    A('s_mov_b32 s3, %d'%FLG)
    A('s_lshr_b32 s68, s49, 3\ns_and_b32 s69, s49, 7')
    A('v_lshrrev_b32 v2, 5, v0\ns_lshl_b32 s54, s53, 1\nv_add_u32 v2, s54, v2')
    A('v_and_b32 v3, 31, v0\nv_lshlrev_b32 v3, 4, v3')
    A('v_lshl_add_u32 v4, v2, 10, v3')
    A('s_xor_b32 s13, s2, s49\ns_and_b32 s13, s13, 1\ns_lshr_b32 s14, s49, 4\ns_bfe_u32 s15, s49, 0x30001')
    A('s_lshl_b32 s54, s14, 8\ns_lshl_b32 s55, s53, 6\ns_add_u32 s54, s54, s55')
    A('v_lshrrev_b32 v6, 3, v0\nv_add_u32 v6, s54, v6\nv_lshlrev_b32 v6, 13, v6')
    A('v_and_b32 v7, 7, v0\nv_lshl_add_u32 v6, v7, 4, v6')
    A('s_lshl_b32 s54, s48, 10\ns_lshl_b32 s55, s15, 7\ns_add_u32 s54, s54, s55\nv_add_u32 v6, s54, v6')
    A('s_lshl_b32 s54, s48, 1\ns_add_u32 s54, s54, s14\ns_lshl_b32 s54, s54, 11\ns_lshl_b32 s55, s15, 8\ns_add_u32 s54, s54, s55\ns_lshl_b32 s55, s53, 6\ns_add_u32 s54, s54, s55')
    A('v_lshlrev_b32 v14, 15, v7\nv_and_b32 v15, 0x30, v0\nv_add3_u32 v14, v14, v15, s54')
    A('v_mov_b32 v40, -1\nv_mov_b32 v41, -1\nv_mov_b32 v42, -1\nv_mov_b32 v43, -1')
    A('s_lshl_b32 s71, s53, 13\ns_add_u32 m0, s71, %d'%L_WA)
    A('v_lshrrev_b32 v44, 1, v0\nv_lshlrev_b32 v44, 9, v44\nv_and_b32 v45, 16, v1\nv_add3_u32 v79, v44, v45, %s'%'s3')
    A('v_mov_b32 v44, 0\nv_mov_b32 v45, 0\nv_mov_b32 v46, 0\nv_mov_b32 v47, 0\nv_mov_b32 v11, 0\nv_mov_b32 v12, 1')
    A('s_lshl_b32 s12, s2, 2\ns_add_u32 s12, s12, s53')
    A('s_waitcnt lgkmcnt(0)')
    A('s_cmp_lg_u32 s13, 0\ns_cbranch_scc1 L_clr')
    A('global_load_dwordx4 v[32:35], v4, %s'%X)
    A('global_load_dwordx4 v[36:39], v4, %s offset:512'%X)
    for i in range(8):
        if i: A('s_add_u32 m0, s71, %d\nv_add_u32 v6, 0x10000, v6'%(L_WA+i*1024))
        A('global_load_lds_dwordx4 v6, %s %s'%(WQ,cfg.wf))
    A('s_mov_b32 exec_lo, 0x00ff00ff\ns_mov_b32 exec_hi, 0x00ff00ff')
    A('global_store_dwordx4 v14, v[40:43], %s sc1'%WS)
    A('s_branch L_clrd')
    A('L_clr:')
    if cfg.cpf:
        A('s_getpc_b64 s[6:7]\nL_pc:\ns_sub_u32 s6, s6, L_pc-%s\ns_subb_u32 s7, s7, 0'%K)
        A('s_lshr_b32 s54, s49, 1\ns_lshl_b32 s54, s54, 2\ns_add_u32 s54, s54, s53\ns_lshl_b32 s54, s54, 9\nv_lshl_add_u32 v48, v0, 3, s54\nv_min_u32 v48, L_last-%s-8, v48'%K)
        A('global_load_dwordx2 v[50:51], v48, s[6:7]')
    A('s_cmp_lg_u32 s12, 7\ns_cbranch_scc1 L_nolead')
    A('global_store_dwordx4 v79, v[44:47], %s sc1\nglobal_store_dwordx4 v79, v[44:47], %s offset:256 sc1'%(WS,WS))
    A('s_waitcnt vmcnt(0)')
    A('s_mov_b64 exec, 1\nglobal_store_dword v11, v12, %s sc1\ns_mov_b64 exec, -1'%DBG)
    A('L_nolead:')
    A('s_lshr_b32 s54, s2, 1\ns_lshl_b32 s54, s54, 2\ns_add_u32 s54, s54, s53\ns_mul_i32 s54, s54, 3584\ns_add_u32 s54, s54, %d'%CLR)
    A('v_add_u32 v6, s54, v1')
    for i in range(3): A('global_store_dwordx4 v6, v[40:43], %s offset:%d sc1'%(WS,1024*i))
    A('s_mov_b32 exec_hi, 0')
    A('global_store_dwordx4 v6, v[40:43], %s offset:3072 sc1'%WS)
    A('L_clrd:')
    A('s_mov_b64 exec, -1')
    A('s_and_b32 s54, s49, 3\ns_lshl_b32 s9, s54, 16\ns_lshr_b32 s54, s49, 2\ns_lshl_b32 s54, s54, 10\ns_add_u32 s9, s9, s54\ns_lshl_b32 s54, s48, 7\ns_add_u32 s9, s9, s54\ns_add_u32 s9, s9, %d'%PRB)
    A('s_lshl_b32 s54, s53, 14\ns_add_u32 s54, s54, s9\nv_bfe_u32 v6, v0, 3, 1\nv_lshlrev_b32 v6, 13, v6\nv_and_b32 v13, 0x70, v1\nv_add3_u32 v6, v6, v13, s54')
    A('s_mov_b64 exec, 0xffff')
    A('s_cmp_ge_u32 s49, 8\ns_cbranch_scc1 L_nopl\ns_cmp_ge_u32 s53, %d\ns_cbranch_scc1 L_nopl'%cfg.NP)
    A('global_store_dwordx4 v6, v[40:43], %s sc1'%WS)
    A('L_nopl:')
    A('s_mov_b64 exec, -1')
    if cfg.svcfirst==2: A('s_barrier')
    A('v_mul_u32_u24 v5, %d, v2\nv_add_u32 v5, v5, v3'%XNS)
    A('v_lshrrev_b32 v8, 4, v0\nv_lshlrev_b32 v8, 10, v8\nv_bfe_u32 v9, v0, 2, 2\nv_lshl_add_u32 v8, v9, 7, v8\nv_and_b32 v9, 3, v0\nv_lshl_add_u32 v8, v9, 3, v8')
    A('s_lshl_b32 s54, s53, 5\nv_add_u32 v8, s54, v8')
    A('v_mul_u32_u24 v9, %d, v7\nv_add_u32 v9, v9, v15\ns_lshl_b32 s54, s14, 9\nv_add_u32 v10, s54, v9'%XNS)
    A('s_lshl_b32 s54, s53, 8\nv_mov_b32 v31, s54')

    def dppadd(r,ctl):
        A('s_nop 1\nv_add_f32_dpp v%d, v%d, v%d %s row_mask:0xf bank_mask:0xf'%(r,r,r,ctl))
    def swapadd(r,t,w):
        A('v_mov_b32 v%d, v%d\ns_nop 1\nv_permlane%d_swap_b32 v%d, v%d\nv_add_f32 v%d, v%d, v%d'%(t,r,w,r,t,r,r,t))
    def rbf(r):
        A('v_cvt_pk_bf16_f32 v%d, 0, v%d'%(r,r))
    def layernorm(mode):
        if mode=='x':
            for i in range(8):
                A('v_lshlrev_b32 v%d, 16, v%d\nv_and_b32 v%d, s60, v%d'%(48+2*i,32+i,49+2*i,32+i))
        Q=lambda i:'v[%d:%d]'%(48+2*i,49+2*i)
        P=Q if mode=='x' else (lambda i:'v[%d:%d]'%(216+2*i,217+2*i))
        A('v_pk_add_f32 v[64:65], %s, %s\nv_pk_mul_f32 v[66:67], %s, %s'%(P(0),P(1),P(0),P(0)))
        A('v_pk_add_f32 v[68:69], %s, %s\nv_pk_mul_f32 v[70:71], %s, %s'%(P(2),P(3),P(1),P(1)))
        for i in range(2,8,2):
            if i>2: A('v_pk_add_f32 v[64:65], v[64:65], %s'%P(i))
            A('v_pk_fma_f32 v[66:67], %s, %s, v[66:67]'%(P(i),P(i)))
            if i>2: A('v_pk_add_f32 v[68:69], v[68:69], %s'%P(i+1))
            A('v_pk_fma_f32 v[70:71], %s, %s, v[70:71]'%(P(i+1),P(i+1)))
        A('v_pk_add_f32 v[64:65], v[64:65], v[68:69]\nv_pk_add_f32 v[66:67], v[66:67], v[70:71]')
        A('v_add_f32 v64, v64, v65\nv_add_f32 v66, v66, v67')
        ctl=['row_ror:1','row_ror:2','row_ror:4','row_ror:8'] if mode=='x' else ['quad_perm:[1,0,3,2]','quad_perm:[2,3,0,1]','row_ror:8']
        for c in ctl:
            A('s_nop 0')
            for r in (64,66): A('v_add_f32_dpp v%d, v%d, v%d %s row_mask:0xf bank_mask:0xf'%(r,r,r,c))
        for w in ((16,) if mode=='x' else (16,32)):
            A('v_mov_b32 v65, v64\nv_mov_b32 v67, v66\ns_nop 0')
            A('v_permlane%d_swap_b32 v64, v65\nv_permlane%d_swap_b32 v66, v67'%(w,w))
            A('v_add_f32 v64, v64, v65\nv_add_f32 v66, v66, v67')
        A('v_mul_f32 v64, 0xbb000000, v64\nv_mul_f32 v66, 0x3b000000, v66')
        A('v_cvt_pk_bf16_f32 v68, 0, v64')
        chain=['v_fma_f32 v66, -v64, v64, v66','v_max_f32 v66, 0, v66','v_cvt_pk_bf16_f32 v66, 0, v66','v_add_f32 v66, 0x3727c5ac, v66',
               'v_cvt_pk_bf16_f32 v66, 0, v66','v_sqrt_f32 v66, v66','v_cvt_pk_bf16_f32 v66, 0, v66','v_rcp_f32 v66, v66']
        for i in range(8):
            A(chain[i])
            A('v_pk_add_f32 %s, %s, v[68:69] op_sel_hi:[1,0]'%(Q(i),P(i)))
        for i in range(16): A('v_cvt_pk_bf16_f32 v%d, 0, v%d'%(48+i,48+i))
        nw=2 if mode=='h' else 4
        for i in range(8):
            A('v_pk_mul_f32 %s, %s, v[66:67] op_sel_hi:[1,0]'%(Q(i),Q(i)))
        for i in range(8):
            A('v_cvt_pk_bf16_f32 v%d, v%d, v%d'%(32+i,48+2*i,49+2*i))
            if mode=='h' and i%2==1: A('ds_write_b64 v5, v[%d:%d] offset:%d'%(31+i,32+i,L_XN+256*(i//2)))
            if mode=='x' and i%4==3: A('ds_write_b128 v5, v[%d:%d] offset:%d'%(29+i,32+i,L_XN+512*(i//4)))
    def lds_sync(cnt,sleep=0):
        l=newlab('ls')
        A('s_waitcnt lgkmcnt(0)')
        A('s_mov_b64 exec, 1\nds_add_u32 v11, v12 offset:%d\ns_mov_b64 exec, -1'%(L_CNT+4*cnt))
        lds_wait(11,L_CNT+4*cnt,4,sleep)
    def lds_wait(va,off,val,sleep):
        l=newlab('lw'); d=newlab('ld')
        A('%s:'%l)
        A('ds_read_b32 v13, v%d offset:%d\ns_waitcnt lgkmcnt(0)\nv_readfirstlane_b32 s54, v13\ns_cmp_ge_u32 s54, %s'%(va,off,val))
        if sleep: A('s_cbranch_scc1 %s\ns_sleep %d\ns_branch %s\n%s:'%(d,sleep,l,d))
        else: A('s_cbranch_scc0 %s'%l)
    def progress(p): lds_wait(31,L_PR,p,6)
    def poll(loads,regs,sleep=0,guard=False):
        l=newlab('pl'); d=newlab('pd')
        if guard: sleep=cfg.tsleep
        A('s_mov_b32 s61, %d'%cfg.spin)
        A('%s:'%l)
        for x in loads: A(x)
        import re as _re
        first=True; pend=[]
        for i,x in enumerate(loads):
            m=_re.search(r'v\[(\d+):(\d+)\]',x)
            pend+=list(range(int(m.group(1)),int(m.group(2))+1))
            last=(i==len(loads)-1)
            if len(pend)<4 and not last: continue
            A('s_waitcnt vmcnt(%d)'%(len(loads)-1-i))
            while pend:
                if first:
                    if len(pend)>=3: A('v_max3_u32 v13, v%d, v%d, v%d'%tuple(pend[:3])); pend=pend[3:]
                    else: A('v_max_u32 v13, v%d, v%d'%tuple(pend[:2])); pend=pend[2:]
                    first=False
                elif len(pend)>=2: A('v_max3_u32 v13, v13, v%d, v%d'%tuple(pend[:2])); pend=pend[2:]
                elif last: A('v_max_u32 v13, v13, v%d'%pend[0]); pend=[]
                else: break
        A('v_cmp_eq_u32 vcc, -1, v13')
        A('s_cbranch_vccz %s'%d)
        if sleep: A('s_sleep %d'%sleep)
        A('s_sub_u32 s61, s61, 1\ns_cmp_lg_u32 s61, 0\ns_cbranch_scc1 %s'%l)
        A('%s:'%d)
    def apoll(loads,par):
        import re as _re
        mode,D,sleep=par
        loads=[x.replace(' sc1',' '+cfg.lf) for x in loads]
        l=newlab('al'); d=newlab('ad'); gl=newlab('ag')
        rg=[]
        for x in loads:
            m=_re.search(r'v\[(\d+):(\d+)\]',x); rg.append(list(range(int(m.group(1)),int(m.group(2))+1)))
        def chain(t,r):
            r=list(r)
            if len(r)==2: A('v_max_u32 v%d, v%d, v%d'%(t,r[0],r[1])); return
            A('v_max3_u32 v%d, v%d, v%d, v%d'%(t,r[0],r[1],r[2])); r=r[3:]
            while r:
                if len(r)==1: A('v_max_u32 v%d, v%d, v%d'%(t,t,r[0])); r=[]
                else: A('v_max3_u32 v%d, v%d, v%d, v%d'%(t,t,r[0],r[1])); r=r[2:]
        n=len(loads)
        A('s_mov_b32 s61, %d'%cfg.spin)
        if mode in 'cm':
            A('%s:'%l)
            for x in loads: A(x)
            if sleep: A('s_sleep %d'%sleep)
            A('s_waitcnt vmcnt(%d)'%min(63,n*(D-1)))
            chain(13,sum(rg,[]))
            A('v_cmp_eq_u32 vcc, -1, v13')
            A('s_cbranch_vccz %s'%d)
            if mode=='m': A('s_mov_b64 exec, vcc')
            A('s_sub_u32 s61, s61, 1\ns_cmp_lg_u32 s61, 0\ns_cbranch_scc1 %s'%l)
            A('%s:'%d)
            if mode=='m': A('s_mov_b64 exec, s[4:5]')
        else:
            mk=['s[6:7]','s[8:9]','s[10:11]','s[40:41]','s[42:43]','s[44:45]','s[46:47]','s[62:63]'][:n]
            for m_ in mk: A('s_mov_b64 %s, s[4:5]'%m_)
            A('%s:'%l)
            for x,m_ in zip(loads,mk):
                sk=newlab('as')
                A('s_mov_b64 exec, %s\ns_cbranch_execz %s'%(m_,sk)); A(x); A('%s:'%sk)
            A('s_mov_b64 exec, s[4:5]')
            if sleep: A('s_sleep %d'%sleep)
            A('s_waitcnt vmcnt(%d)'%min(63,n*(D-1)))
            for i in range(n): chain(246+i,rg[i])
            chain(13,[246+i for i in range(n)])
            A('v_cmp_eq_u32 vcc, -1, v13')
            A('s_cbranch_vccz %s'%d)
            for i in range(n): A('v_cmp_eq_u32 %s, -1, v%d'%(mk[i],246+i))
            A('s_sub_u32 s61, s61, 1\ns_cmp_lg_u32 s61, 0\ns_cbranch_scc1 %s'%l)
            A('%s:'%d)
    def flagpoll(voff,execmask):
        l=newlab('fl'); d=newlab('fd')
        A('s_mov_b32 s61, %d'%cfg.spin)
        A('s_mov_b64 exec, %s'%execmask)
        A('%s:'%l)
        A('global_load_dwordx4 v[72:75], v%d, %s sc1\ns_waitcnt vmcnt(0)'%(voff,WS))
        A('v_min3_u32 v13, v72, v73, v74\nv_min_u32 v13, v13, v75\nv_cmp_eq_u32 vcc, 0, v13\ns_cbranch_vccz %s'%d)
        A('s_sleep 16')
        A('s_sub_u32 s61, s61, 1\ns_cmp_lg_u32 s61, 0\ns_cbranch_scc1 %s'%l)
        A('%s:'%d)
        A('s_mov_b64 exec, -1')
    def CLASS():
        A('s_cmp_lg_u32 s53, 0\ns_cbranch_scc1 L_nofc')
        progress(cfg.pw0)
        flagpoll(79,'-1')
        A('ds_write_b128 v1, v[72:75] offset:%d'%L_DP)
        A('v_add_u32 v7, 256, v79\ns_mov_b32 s6, 0x03030303\ns_mov_b32 s7, s6\ns_waitcnt lgkmcnt(0)')
        flagpoll(7,'s[6:7]')
        A('s_and_b32 s54, s48, 3\ns_lshl_b32 s54, s54, 7\ns_lshl_b32 s55, s49, 2\ns_add_u32 s54, s54, s55\nv_mov_b32 v7, s54')
        A('s_mov_b32 s6, 0')
        for r in range(72,76):
            A('v_and_b32 v13, 2, v%d\nv_cmp_ne_u32 vcc, 0, v13\ns_nop 1\ns_bcnt1_i32_b64 s7, vcc\ns_add_u32 s6, s6, s7'%r)
        A('s_waitcnt lgkmcnt(0)\nds_read_b32 v13, v7 offset:%d\ns_waitcnt lgkmcnt(0)\nv_readfirstlane_b32 s7, v13'%L_DP)
        if cfg.diag: A('s_mov_b32 s9, s6')
        A('s_cmp_ge_u32 s6, 32\ns_cselect_b32 s6, 1, 0')
        if cfg.par is not None: A('s_mov_b32 s6, %d'%cfg.par)
        A('s_xor_b32 s7, s7, s48\ns_bfe_u32 s7, s7, 0x10002\ns_xor_b32 s7, s7, s6\ns_lshl_b32 s7, s7, 2\ns_lshl_b32 s6, s6, 1\ns_or_b32 s6, s6, s7\ns_or_b32 s6, s6, 1')
        A('v_mov_b32 v13, s6\nds_write_b32 v11, v13 offset:%d'%(L_CNT+8))
        if cfg.diag: A('s_cmp_lg_u32 s2, 0\ns_cbranch_scc1 L_nofc\nv_mov_b32 v13, s9\nv_mov_b32 v7, 8\nglobal_store_dword v7, v13, %s'%DBG)
        A('L_nofc:')
        lds_wait(11,L_CNT+8,1,6)
        A('s_bfe_u32 s11, s54, 0x10002\ns_bfe_u32 s54, s54, 0x10001\ns_xor_b32 s10, s10, s54')
    def tr128(dst,base):
        for s_ in range(4):
            A('ds_read_b64_tr_b16 v[%d:%d], v8 offset:%d'%(dst+4*s_,dst+4*s_+1,base+4096*s_))
            A('ds_read_b64_tr_b16 v[%d:%d], v8 offset:%d'%(dst+4*s_+2,dst+4*s_+3,base+4096*s_+512))

    A('v_mov_b32 v76, 0')
    A('s_cmp_lg_u32 s13, 0\ns_cbranch_scc1 L_noln')
    A('s_waitcnt vmcnt(9)')
    stamp(1)
    A('s_cmp_lg_u32 s53, 3\ns_cbranch_scc1 L_nog0\ns_mov_b64 exec, 1\nglobal_load_dword v76, v11, %s sc1\ns_mov_b64 exec, -1\nL_nog0:'%DBG)
    layernorm('x')
    A('L_noln:')
    A('s_waitcnt vmcnt(0)')
    lds_sync(0)
    stamp(2)
    A('s_lshl_b32 s54, s48, 2\ns_add_u32 s54, s54, s68\ns_lshl_b32 s54, s54, 9\ns_lshl_b32 s55, s69, 2\ns_add_u32 s54, s54, s55\ns_add_u32 s54, s54, s3\nv_mov_b32 v6, s54')
    A('s_getreg_b32 s10, hwreg(HW_REG_XCC_ID)\ns_bfe_u32 s10, s10, 0x10002')
    A('s_cmp_lg_u32 s53, 3\ns_cbranch_scc1 L_noflag')
    A('s_mov_b64 exec, 1\nv_cmp_eq_u32 vcc, 0, v76\ns_cbranch_vccz L_god')
    A('s_mov_b32 s61, %d\nL_go:\nglobal_load_dword v13, v11, %s sc1\ns_waitcnt vmcnt(0)\nv_cmp_eq_u32 vcc, 0, v13\ns_cbranch_vccz L_god'%(cfg.spin,DBG))
    A('s_sleep 8\ns_sub_u32 s61, s61, 1\ns_cmp_lg_u32 s61, 0\ns_cbranch_scc1 L_go\nL_god:')
    A('s_lshl_b32 s54, s10, 2\ns_or_b32 s54, s54, 1\nv_mov_b32 v7, s54\nglobal_store_dword v6, v7, %s sc1'%WS)
    A('s_mov_b64 exec, -1')
    A('L_noflag:')
    A('s_cmp_lg_u32 s13, 0\ns_cbranch_scc1 L_noq')
    for h in range(2):
        tr128(80+16*h,L_WA+16384*h)
        for s_ in range(4):
            A('ds_read_b128 v[%d:%d], v10 offset:%d'%(112+16*h+4*s_,115+16*h+4*s_,L_XN+256*h+64*s_))
        A('s_waitcnt lgkmcnt(0)')
    for s_ in range(8):
        A('v_mfma_f32_16x16x32_bf16 v[48:51], v[%d:%d], v[%d:%d], %s'%(80+4*s_,83+4*s_,112+4*s_,115+4*s_,'0' if s_==0 else 'v[48:51]'))
    A('s_mov_b32 exec_lo, 0x00ff00ff\ns_mov_b32 exec_hi, 0x00ff00ff')
    A('s_nop 5')
    A('global_store_dwordx4 v14, v[48:51], %s sc1'%WS)
    A('s_mov_b64 exec, -1')
    A('L_noq:')
    stamp(3)
    A('s_mov_b64 exec, 1\nds_add_u32 v11, v12 offset:%d\ns_mov_b64 exec, -1'%(L_CNT+12))
    A('s_cmp_eq_u32 s53, 0\ns_cbranch_scc1 L_qg\ns_cmp_lg_u32 s53, 1\ns_cbranch_scc1 L_qdone\ns_cmp_ge_u32 s49, 8\ns_cbranch_scc1 L_qdone')
    A('s_mov_b32 s6, 0')
    for i in range(cfg.NP):
        for c in ((0,1) if i%2==0 else (1,0)):
            l=newlab('pb'); d=newlab('pe')
            A('s_add_u32 s7, s9, %d\ns_mov_b32 s8, 0\ns_mov_b32 s61, 0\ns_load_dword s8, %s, s7'%(i*16384+c*8192,WS))
            A('%s:\ns_add_u32 s61, s61, 1\ns_cmp_gt_u32 s61, 0xffff\ns_cbranch_scc1 %s\ns_cmp_eq_u32 s8, 0\ns_cbranch_scc1 %s\n%s:\ns_waitcnt lgkmcnt(0)'%(l,d,l,d))
            if i>0: A('%s s6, s6, s61'%('s_add_i32' if c==0 else 's_sub_i32'))
    A('s_cmp_gt_i32 s6, 0\ns_cselect_b32 s6, 1, 0')
    A('s_xor_b32 s6, s6, s10\ns_lshl_b32 s6, s6, 1\ns_or_b32 s6, s6, 1\nv_mov_b32 v7, s6')
    lds_wait(11,L_CNT+12,4,2)
    A('s_mov_b64 exec, 1\nglobal_store_dword v6, v7, %s offset:256 sc1\ns_mov_b64 exec, -1\ns_branch L_qdone'%WS)
    A('L_qg:')
    A('v_and_b32 v6, 3, v0\nv_lshlrev_b32 v6, 9, v6\nv_lshrrev_b32 v14, 2, v0\nv_lshl_add_u32 v6, v14, 5, v6')
    A('s_lshl_b32 s54, s50, 12\ns_add_u32 s54, s54, %d\nv_add_u32 v6, s54, v6'%QP)
    A('s_and_b32 s54, s50, 7\ns_lshl_b32 s54, s54, 11\nv_add_u32 v7, s54, v79')
    lds_wait(11,L_CNT+12,4,2)
    progress(cfg.pq)
    if not cfg.skipF: flagpoll(7,'0xff')
    stamp(4)
    if not cfg.skipG: poll(['global_load_dwordx4 v[%d:%d], v6, %s offset:%d sc1'%(32+8*kq+4*h,35+8*kq+4*h,WS,2048*kq+16*h) for kq in range(2) for h in range(2)],None,sleep=8)
    for p in range(4):
        A('v_pk_add_f32 v[%d:%d], v[%d:%d], v[%d:%d]'%(32+2*p,33+2*p,32+2*p,33+2*p,40+2*p,41+2*p))
    for p in range(4):
        A('v_cvt_pk_bf16_f32 v%d, v%d, v%d'%(32+p,32+2*p,33+2*p))
    A('ds_write_b128 v1, v[32:35] offset:%d'%L_QL)
    stamp(5)
    A('s_waitcnt lgkmcnt(0)')
    if cfg.qflag: A('ds_write_b32 v11, v12 offset:%d'%(L_CNT+16))
    A('L_qdone:')
    if cfg.touch:
        A('s_lshl_b32 s54, s50, 21\ns_load_dword s4, %s, s54'%VP)
        A('s_load_dword s6, %s, 0\ns_load_dword s7, %s, 0\ns_load_dword s8, %s, 0'%(WG,WU,WD))
        A('s_lshl_b32 s54, s48, 19\ns_load_dword s9, %s, s54'%WO)
        A('s_waitcnt lgkmcnt(0)')
    A('s_setprio 0')
    if not cfg.qflag: A('s_barrier')

    A('s_mov_b32 s70, 0\ns_and_b32 s54, s49, 0x13\ns_cmp_eq_u32 s54, s51\ns_cselect_b32 s70, 2, s70')
    A('s_cmp_lt_u32 s48, 4\ns_cselect_b32 s6, 16, 12\ns_cselect_b32 s7, 8, 6\ns_cselect_b32 s8, 0, 8\ns_mul_i32 s14, s48, s7\ns_add_u32 s14, s14, s8')
    if cfg.helper: A('s_and_b32 s54, s49, 0x13\ns_xor_b32 s54, s54, 2\ns_cmp_eq_u32 s54, s51\ns_cselect_b32 s9, s49, 99\ns_cmp_lt_u32 s9, s6\ns_cselect_b32 s70, 4, s70')
    A('s_sub_u32 s54, s49, 16\ns_cmp_lt_u32 s54, s6\ns_cselect_b32 s70, 1, s70')
    A('s_xor_b32 s55, s2, s49\ns_and_b32 s55, s55, 1\ns_cselect_b32 s70, 3, s70')
    A('s_bfe_u32 s54, s49, 0x30001\ns_add_u32 s14, s14, s54')
    A('s_lshr_b32 s15, s49, 2\ns_add_u32 s54, s48, %d\ns_and_b32 s54, s54, 7\ns_lshl_b32 s54, s54, 2\ns_add_u32 s15, s15, s54'%cfg.crot)
    CLASS()
    A('s_lshr_b32 s13, s2, 1\ns_andn2_b32 s13, s13, 2\ns_lshl_b32 s54, s11, 1\ns_or_b32 s13, s13, s54')
    A('s_and_b32 s54, s48, 3\ns_lshl_b32 s54, s54, 2\ns_add_u32 s67, s54, s68\ns_lshl_b32 s54, s11, 4\ns_add_u32 s67, s67, s54')
    A('s_bfe_u32 s69, s49, 0x20001')
    A('v_and_b32 v6, 3, v0\nv_lshlrev_b32 v6, 2, v6\nv_lshrrev_b32 v7, 4, v0\nv_add_u32 v6, v6, v7')
    A('v_bfe_u32 v7, v0, 2, 1')
    A('v_lshrrev_b32 v24, 4, v0\nv_lshlrev_b32 v24, 15, v24\nv_bfe_u32 v13, v0, 3, 1\nv_lshl_add_u32 v24, v13, 13, v24\nv_and_b32 v13, 0x70, v1\nv_add_u32 v24, v24, v13')
    A('s_and_b32 s54, s13, 63\ns_lshl_b32 s54, s54, 7\ns_lshr_b32 s55, s13, 6\ns_lshl_b32 s55, s55, 14\ns_add_u32 s54, s54, s55\ns_add_u32 s54, s54, %d\nv_add_u32 v24, s54, v24\ns_mov_b32 s55, s13'%HB)
    A('v_lshlrev_b32 v6, 1, v6\nv_lshl_add_u32 v6, v7, 10, v6\ns_lshr_b32 s54, s55, 5\ns_lshl_b32 s54, s54, 11\ns_and_b32 s55, s55, 31\ns_lshl_b32 s55, s55, 5\ns_add_u32 s54, s54, s55\nv_add_u32 v6, s54, v6')
    A('global_load_ushort v16, v6, %s'%X)
    def paced(k,n,line):
        f=lambda k: cfg.pw0+(k*(cfg.pw1-cfg.pw0))//n
        if k==0 or f(k)!=f(k-1): progress(f(k))
        assert f(k)<cfg.NS
        A(line)
    def dma1(k):
        i=k//2
        return ('v_add_u32 v7, %d, v6\n'%(i*16*3584))+'s_add_u32 m0, s71, %d\ns_nop 0\nglobal_load_lds_dwordx4 v7, %s %s'%(L_WA+32768*(k&1)+i*1024,WU if k&1 else WG,cfg.ff)
    def dma2(i):
        return ('v_add_u32 v7, %d, v6\n'%(i*0x8000))+'s_add_u32 m0, s71, %d\ns_nop 0\nglobal_load_lds_dwordx4 v7, %s %s'%(L_WA+i*1024,WD,cfg.ff)
    l1=newlab('w1'); l2=newlab('w2'); le=newlab('we')
    A('s_cmp_eq_u32 s70, 0\ns_cbranch_scc1 %s\ns_cmp_eq_u32 s70, 2\ns_cbranch_scc1 %s\ns_cmp_lg_u32 s70, 3\ns_cbranch_scc1 %s'%(le,l2,l1))
    A('s_lshl_b32 s54, s67, 7\ns_lshl_b32 s55, s53, 1\ns_add_u32 s54, s54, s55\ns_lshl_b32 s54, s54, 10\ns_lshl_b32 s55, s69, 8\ns_add_u32 s54, s54, s55')
    A('v_lshrrev_b32 v6, 4, v0\nv_lshlrev_b32 v6, 13, v6\nv_and_b32 v7, 15, v0\nv_lshl_add_u32 v6, v7, 4, v6\nv_add_u32 v6, s54, v6')
    A('s_lshl_b32 s71, s53, 13')
    def dmaw(i):
        return 'v_add_u32 v7, %d, v6\ns_add_u32 m0, s71, %d\ns_nop 0\nglobal_load_lds_dwordx4 v7, %s %s'%((32*(i&3)+(i>>2))*1024,L_WA+i*1024,WO,cfg.wf)
    for i in range(0 if cfg.noW else cfg.EW): paced(i,cfg.EW,dmaw(i))
    A('s_branch %s'%le)
    A('%s:'%l1)
    A('s_lshl_b32 s54, s14, 6')
    A('s_lshl_b32 s55, s53, 7\nv_lshrrev_b32 v6, 2, v0\nv_add_u32 v6, s55, v6\nv_mul_u32_u24 v6, 3584, v6\nv_and_b32 v7, 3, v0\nv_lshl_add_u32 v6, v7, 4, v6\nv_add_u32 v6, s54, v6')
    A('s_lshl_b32 s71, s53, 13')
    A('s_cmp_eq_u32 s70, 4\ns_cbranch_scc1 %s'%le)
    for k in range(cfg.E1): paced(k,cfg.E1,dma1(k))
    A('s_branch %s'%le)
    A('%s:'%l2)
    A('s_mul_i32 s54, s53, 448\nv_lshrrev_b32 v6, 1, v0\nv_add_u32 v6, s54, v6\nv_lshlrev_b32 v6, 10, v6')
    A('v_and_b32 v7, 1, v0\nv_lshl_add_u32 v6, v7, 4, v6\ns_lshl_b32 s54, s15, 5\nv_add_u32 v6, s54, v6')
    A('s_mul_i32 s71, s53, 14336')
    for k in range(cfg.E2): paced(k,cfg.E2,dma2(k))
    A('%s:'%le)
    A('s_waitcnt vmcnt(0)')
    A('v_lshlrev_b32 v16, 16, v16')
    lds_sync(1,sleep=4)
    stamp(6)
    l1=newlab('r1'); l2=newlab('r2'); le=newlab('re')
    A('v_mov_b32 v26, 0\nv_mov_b32 v27, 0\nv_mov_b32 v28, 0\nv_mov_b32 v29, 0')
    A('s_cmp_eq_u32 s70, 1\ns_cbranch_scc1 %s\ns_cmp_eq_u32 s70, 2\ns_cbranch_scc1 %s'%(l1,l2))
    A('v_lshrrev_b32 v8, 4, v0\nv_lshlrev_b32 v8, 11, v8\nv_bfe_u32 v7, v0, 2, 2\nv_lshl_add_u32 v8, v7, 8, v8\nv_and_b32 v7, 3, v0\nv_lshl_add_u32 v8, v7, 3, v8')
    A('s_lshl_b32 s54, s53, 6\ns_add_u32 s54, s54, %d\nv_add_u32 v8, s54, v8'%L_WA)
    def trw():
        for t in range(2):
            for s_ in range(4):
                r=80+16*t+4*s_
                A('ds_read_b64_tr_b16 v[%d:%d], v8 offset:%d'%(r,r+1,8192*s_+32*t))
                A('ds_read_b64_tr_b16 v[%d:%d], v8 offset:%d'%(r+2,r+3,8192*s_+32*t+1024))
            if t==0 or cfg.EW==8: A('s_waitcnt lgkmcnt(0)')
    if cfg.EW==8: trw()
    A('s_branch %s'%le)
    A('%s:'%l1)
    A('v_lshrrev_b32 v8, 4, v0\nv_lshlrev_b32 v8, 9, v8\nv_bfe_u32 v7, v0, 2, 2\nv_lshl_add_u32 v8, v7, 6, v8')
    A('v_and_b32 v7, 1, v0\nv_lshl_add_u32 v8, v7, 3, v8\nv_bfe_u32 v7, v0, 1, 1\nv_lshl_add_u32 v8, v7, 15, v8\ns_lshl_b32 s54, s53, 4\ns_add_u32 s54, s54, %d\nv_add_u32 v8, s54, v8'%L_WA)
    A('s_mul_i32 s55, s14, 147\ns_lshr_b32 s55, s55, 11\ns_mul_i32 s55, s55, %d'%(16384-7168))
    A('s_lshl_b32 s54, s14, 2\ns_add_u32 s54, s54, s53\ns_lshl_b32 s54, s54, 7\ns_add_u32 s54, s54, s55\ns_add_u32 s54, s54, %d'%AB)
    A('v_and_b32 v27, 0x70, v1\nv_lshrrev_b32 v7, 4, v0\nv_lshl_add_u32 v27, v7, 16, v27\nv_bfe_u32 v7, v0, 3, 1\nv_lshlrev_b32 v7, 13, v7\nv_add3_u32 v27, v27, v7, s54')
    A('s_and_b32 s55, s48, %d\ns_lshl_b32 s55, s55, 15\ns_lshl_b32 s54, s10, 13\ns_add_u32 s54, s54, s55\ns_lshr_b32 s55, s53, 1\ns_lshl_b32 s55, s55, 14\ns_add_u32 s54, s54, s55'%(cfg.nH//2-1))
    A('s_and_b32 s55, s53, 1\ns_lshl_b32 s55, s55, 12\ns_add_u32 s54, s54, s55\ns_add_u32 s54, s54, %d\nv_add_u32 v4, s54, v1'%HB)
    A('v_bfe_u32 v5, v0, 2, 1\ns_lshl_b32 s54, s53, 1\nv_add_u32 v5, s54, v5\nv_mul_u32_u24 v5, %d, v5\nv_lshrrev_b32 v7, 3, v0\nv_lshl_add_u32 v5, v7, 5, v5\nv_and_b32 v7, 3, v0\nv_lshl_add_u32 v5, v7, 3, v5'%XNS)
    A('s_branch %s'%le)
    A('%s:'%l2)
    A('v_lshrrev_b32 v8, 4, v0\nv_lshlrev_b32 v8, 9, v8\nv_bfe_u32 v7, v0, 1, 1\nv_lshl_add_u32 v8, v7, 8, v8\nv_bfe_u32 v7, v0, 2, 2\nv_lshl_add_u32 v8, v7, 5, v8')
    A('v_and_b32 v7, 1, v0\nv_lshl_add_u32 v8, v7, 3, v8\ns_add_u32 s55, s71, %d\nv_add_u32 v8, s55, v8'%L_WA)
    A('v_bfe_u32 v26, v0, 2, 1\nv_lshlrev_b32 v26, 10, v26\nv_bfe_u32 v7, v0, 1, 1\nv_lshl_add_u32 v26, v7, 8, v26\nv_lshrrev_b32 v7, 3, v0\nv_lshl_add_u32 v26, v7, 4, v26\nv_and_b32 v7, 1, v0\nv_lshl_add_u32 v26, v7, 3, v26')
    A('s_and_b32 s55, s48, %d\ns_lshl_b32 s55, s55, 16\ns_lshl_b32 s54, s53, 14\ns_add_u32 s54, s54, s55\ns_lshl_b32 s55, s10, 13\ns_add_u32 s54, s54, s55\ns_add_u32 s54, s54, %d\nv_add_u32 v27, s54, v1'%(cfg.nA//2-1,AB+3072))
    A('s_mov_b32 s54, s15\ns_lshl_b32 s55, s54, 5')
    A('v_lshrrev_b32 v28, 3, v0\nv_lshlrev_b32 v28, 10, v28\nv_and_b32 v7, 7, v0\nv_lshl_add_u32 v28, v7, 2, v28\nv_add_u32 v28, s55, v28')
    A('s_lshl_b32 s54, s54, 7\ns_and_b32 s55, s48, %d\ns_lshl_b32 s55, s55, 15\ns_add_u32 s54, s54, s55\ns_lshl_b32 s55, s10, 13\ns_add_u32 s54, s54, s55\ns_add_u32 s54, s54, %d'%(cfg.nH//2-1,HB))
    A('v_bfe_u32 v29, v0, 4, 1\nv_lshlrev_b32 v29, 12, v29\nv_lshrrev_b32 v7, 5, v0\nv_lshl_add_u32 v29, v7, 14, v29\nv_and_b32 v7, 15, v0\nv_lshl_add_u32 v29, v7, 3, v29\nv_add_u32 v29, s54, v29')
    A('s_lshl_b32 s54, s53, 11\nv_add_u32 v10, s54, v1')
    A('%s:'%le)
    A('s_lshl_b32 s54, s53, 9\nv_add_u32 v17, s54, v3')
    A('s_and_b32 s54, s50, 3\ns_lshl_b32 s54, s54, 2\ns_add_u32 s54, s54, s53\ns_mul_i32 s54, s54, 49152\ns_bfe_u32 s55, s50, 0x10002\ns_lshl_b32 s55, s55, 13\ns_add_u32 s54, s54, s55')
    A('s_lshr_b32 s6, s50, 3\ns_mul_i32 s7, s6, 11\ns_lshr_b32 s7, s7, 5\ns_mul_i32 s7, s7, %d\ns_lshl_b32 s6, s6, 2\ns_add_u32 s6, s6, s51\ns_mul_i32 s6, s6, %d'%(16384-12*OPS,OPS))
    A('s_add_u32 s54, s54, s6\ns_add_u32 s54, s54, s7\ns_add_u32 s54, s54, %d\nv_add_u32 v18, s54, v1'%OP)
    A('s_and_b32 s54, s67, 15\ns_mul_i32 s54, s54, 49152\ns_lshl_b32 s55, s11, 13\ns_add_u32 s54, s54, s55\ns_add_u32 s54, s54, %d'%OP)
    A('v_mul_u32_u24 v7, 11, v2\nv_lshrrev_b32 v7, 5, v7\nv_mul_u32_u24 v7, %d, v7\nv_mul_u32_u24 v25, %d, v2\nv_add3_u32 v25, v25, v7, s54\nv_add_u32 v19, v25, v3'%(16384-12*OPS,4*OPS))
    A('s_lshl_b32 s54, s53, 5\nv_mov_b32 v30, s54')
    A('v_mul_u32_u24 v20, %d, v2\nv_lshrrev_b32 v7, 1, v3\nv_add_u32 v20, v20, v7'%XOS)
    A('v_and_b32 v21, 7, v0\nv_mul_u32_u24 v21, %d, v21\nv_add_u32 v21, v21, v15'%XOS)
    A('s_lshl_b32 s54, s69, 2\ns_add_u32 s54, s54, s53\ns_lshl_b32 s54, s54, 13\ns_add_u32 s54, s54, %d'%(WP+2048))
    A('s_lshl_b32 s55, s69, 1\ns_add_u32 s55, s55, s67' if cfg.wrot else 's_mov_b32 s55, s67')
    A('v_bfe_u32 v22, v0, 1, 2')
    A('v_lshl_add_u32 v7, v22, 3, s55' if cfg.wrot else 'v_mov_b32 v7, s55')
    A('v_and_b32 v7, 31, v7\nv_lshlrev_b32 v22, 17, v22\nv_lshl_add_u32 v22, v7, 7, v22\nv_and_b32 v7, 1, v0\nv_lshl_add_u32 v22, v7, 6, v22\nv_add3_u32 v22, v22, v15, s54')
    A('s_lshl_b32 s54, s13, 12\ns_add_u32 s54, s54, %d\nv_add_u32 v23, s54, v1'%WP)
    def guarded(lines):
        A(lines)
    def drychk():
        pass
    for r in range(192,246): A('v_mov_b32 v%d, -1'%r)
    A('s_waitcnt lgkmcnt(0)')
    A('s_mov_b64 vcc, 0\ns_mov_b64 s[4:5], %d\ns_mov_b64 exec, s[4:5]'%(0 if cfg.warm else -1))
    wpl=['global_load_dwordx4 v[%d:%d], v23, %s offset:%d sc1'%(216+4*t,219+4*t,WS,1024*t) for t in range(4)]
    opl=['global_load_dwordx2 v[%d:%d], v25, %s offset:%d sc1'%(208+2*s_,209+2*s_,WS,OPS*s_+512) for s_ in range(4)]+['global_load_dwordx4 v[%d:%d], v19, %s offset:%d sc1'%(192+4*s_,195+4*s_,WS,OPS*s_) for s_ in range(4)]
    hbl=['global_load_dwordx4 v[%d:%d], v4, %s offset:%d sc1'%(216+4*t,219+4*t,WS,1024*t) for t in range(4)]
    abl=['global_load_dwordx4 v[%d:%d], v27, %s offset:%d sc1'%(216+4*t,219+4*t,WS,1024*t-3072) for t in range(7)]
    if cfg.pre:
        A('s_cmp_lg_u32 s70, 3\ns_cbranch_scc1 L_pre1')
        if cfg.pre&2: A('\n'.join(opl))
        A('s_cmp_lg_u32 s53, 0\ns_cbranch_scc1 L_pre3')
        if cfg.pre&1: A('\n'.join(wpl))
        A('s_branch L_pre3\nL_pre1:')
        if cfg.pre&4:
            A('s_cmp_lg_u32 s70, 1\ns_cbranch_scc1 L_pre2'); A('\n'.join(hbl)); A('L_pre2:\ns_cmp_lg_u32 s70, 2\ns_cbranch_scc1 L_pre3'); A('\n'.join(abl))
        A('L_pre3:')
    if cfg.disp:
        A('s_cmp_lg_u32 s53, 2\ns_cbranch_scc1 L_tail')
        A('s_lshl_b32 s54, s50, %d\ns_add_u32 s54, s54, %d\ns_add_u32 s40, s38, s54\ns_addc_u32 s41, s39, 0'%(cfg.cs,CTR))
        lds_wait(31,L_PR,cfg.NS-1,2)
        A('s_mov_b32 s42, %d\nv_mov_b32 v7, 0'%cfg.LA)
        A('L_dsp:')
        A('s_mov_b32 s43, %d\ns_atomic_add s43, s[40:41], 0x0 glc\ns_waitcnt lgkmcnt(0)\ns_add_u32 s43, s43, %d\nv_mov_b32 v13, s43'%(cfg.disp,cfg.NS*16+1))
        A('ds_write_b32 v7, v13 offset:%d'%(L_CNT+64))
        A('s_cmp_ge_u32 s43, 512\ns_cbranch_scc1 L_dspd')
        lds_wait(11,L_CNT+24,'s42',1)
        A('s_add_u32 s42, s42, %d\nv_add_u32 v7, 4, v7\ns_branch L_dsp'%cfg.disp)
        A('L_dspd:')
        for i in range(1,4//cfg.disp): A('ds_write_b32 v7, v13 offset:%d'%(L_CNT+64+4*i))
        A('s_waitcnt lgkmcnt(0)')
    A('L_tail:')
    stamp(7)
    guarded('s_barrier')
    def wsum(b0,half,s0=None):
        d='v[%d:%d]'%(b0+2*half,b0+2*half+1)
        s0=s0 or b0
        for w in range(4):
            src='v[%d:%d]'%(s0+4*w+2*half,s0+4*w+2*half+1)
            f='v[%d:%d]'%(72+2*(w//2),73+2*(w//2))
            if w==0: A('v_pk_mul_f32 %s, %s, %s op_sel_hi:[1,0]'%(d,src,f))
            elif w%2==0: A('v_pk_fma_f32 %s, %s, %s, %s op_sel_hi:[1,0,1]'%(d,src,f,d))
            else: A('v_pk_fma_f32 %s, %s, %s, %s op_sel:[0,1,0] op_sel_hi:[1,1,1]'%(d,src,f,d))
    if cfg.gleak is not None:
        k,lo,hi,msk=cfg.gleak
        A('s_cbranch_execz L_nogl\ns_cmp_lg_u32 s53, 0\ns_cbranch_scc1 L_nogl')
        if k==8: stamp(8); A('s_waitcnt lgkmcnt(0)')
        if k==200: A('s_getreg_b32 s72, hwreg(HW_REG_XCC_ID)\ns_sub_u32 s72, s72, s48\ns_and_b32 s72, s72, 7\ns_mul_i32 s72, s72, 50\nv_mov_b32 v33, s72')
        elif k>=100: A('v_mov_b32 v32, %d\nds_read_b32 v33, v32 offset:%d\ns_waitcnt lgkmcnt(0)'%(4*(k-100),L_ST))
        else: A('v_mov_b32 v33, s%d'%(72+2*k))
        A('v_not_b32 v33, v33\nv_mov_b32 v34, s72\nv_mov_b32 v32, 0x3b0000')
        A('s_mov_b64 exec, 1')
        if k!=8: A('global_atomic_umin v32, v34, %s'%WS)
        A('s_and_b32 s54, s2, %d\ns_sub_u32 s54, s54, %d\ns_cmp_ge_u32 s54, %d\ns_cbranch_scc1 L_nogl2'%(msk,lo,hi-lo))
        A('global_atomic_umin v32, v33, %s offset:256'%WS)
        A('L_nogl2:\ns_mov_b64 exec, -1\n'+('s_nop 2' if k==8 else 's_waitcnt vmcnt(0)'))
        A('L_nogl:')
    A('ds_read_b128 v[64:67], v30 offset:%d\nds_read_b128 v[68:71], v30 offset:%d'%(L_MLW,L_MLW+16))
    for w in range(4):
        A('ds_read_b128 v[%d:%d], v17 offset:%d'%(32+4*w,35+4*w,L_OW+2048*w))
    stamp(8)
    if cfg.notail: A('s_branch L_fin')
    A('s_and_b32 exec_hi, s4, 1')
    A('s_waitcnt lgkmcnt(%d)'%(0 if cfg.diag else 4))
    A('v_max3_f32 v76, v64, v65, v66\nv_max_f32 v76, v76, v67')
    A('v_pk_add_f32 v[72:73], v[64:65], v[76:77] op_sel_hi:[1,0] neg_lo:[0,1] neg_hi:[0,1]')
    A('v_pk_add_f32 v[74:75], v[66:67], v[76:77] op_sel_hi:[1,0] neg_lo:[0,1] neg_hi:[0,1]')
    for i in range(4): A('v_exp_f32 v%d, v%d'%(72+i,72+i))
    A('v_pk_mul_f32 v[68:69], v[68:69], v[72:73]\nv_pk_fma_f32 v[68:69], v[70:71], v[74:75], v[68:69]')
    A('s_waitcnt lgkmcnt(0)')
    A('v_add_f32 v77, v68, v69')
    wsum(32,0); wsum(32,1)
    A('v_mov_b32_dpp v32, v76 quad_perm:[0,1,2,3] row_mask:0x4 bank_mask:0xf')
    A('v_mov_b32_dpp v33, v77 quad_perm:[0,1,2,3] row_mask:0x4 bank_mask:0xf')
    guarded('global_store_dwordx4 v18, v[32:35], %s %s'%(WS,cfg.sf))
    tstamp(1)
    A('s_mov_b64 exec, s[4:5]')
    A('s_cmp_lg_u32 s70, 3\ns_cbranch_scc1 L_rdone')
    if cfg.EW<8:
        for i in range(cfg.EW,8): A(dmaw(i))
        A('s_waitcnt vmcnt(0)\ns_barrier')
        trw()
    apoll(['global_load_dwordx2 v[%d:%d], v25, %s offset:%d sc1'%(208+2*s_,209+2*s_,WS,OPS*s_+512) for s_ in range(4)]+
         ['global_load_dwordx4 v[%d:%d], v19, %s offset:%d sc1'%(192+4*s_,195+4*s_,WS,OPS*s_) for s_ in range(4)],cfg.pW)
    stamp(9)
    if cfg.head:
        A('s_cmp_lg_u32 s53, 0\ns_cbranch_scc1 L_nohead'); A('\n'.join(wpl)); A('L_nohead:')
    A('v_max3_f32 v76, v208, v210, v212\nv_max_f32 v76, v76, v214')
    for i in range(4): A('v_sub_f32 v%d, v%d, v76'%(72+i,208+2*i))
    for i in range(4): A('v_exp_f32 v%d, v%d'%(72+i,72+i))
    A('v_mul_f32 v78, v72, v209')
    for i in range(1,4): A('v_fmac_f32 v78, v%d, v%d'%(72+i,209+2*i))
    A('v_rcp_f32 v78, v78')
    wsum(48,0,192); wsum(48,1,192)
    A('v_pk_mul_f32 v[48:49], v[48:49], v[78:79] op_sel_hi:[1,0]\nv_pk_mul_f32 v[50:51], v[50:51], v[78:79] op_sel_hi:[1,0]')
    A('v_cvt_pk_bf16_f32 v48, v48, v49\nv_cvt_pk_bf16_f32 v49, v50, v51')
    A('ds_write_b64 v20, v[48:49] offset:%d'%L_XO)
    A('s_waitcnt lgkmcnt(0)'); guarded('s_barrier')
    if cfg.tdiag: tstamp(2); A('s_waitcnt lgkmcnt(0)')
    for s_ in range(4):
        A('ds_read_b128 v[%d:%d], v21 offset:%d'%(32+4*s_,35+4*s_,L_XO+64*s_))
    for s_ in range(4):
        A('s_waitcnt lgkmcnt(%d)'%(3-s_))
        for t in range(2):
            acc='v[%d:%d]'%(48+4*t,51+4*t); r=80+16*t+4*s_
            A('v_mfma_f32_16x16x32_bf16 %s, v[%d:%d], v[%d:%d], %s'%(acc,r,r+3,32+4*s_,35+4*s_,'0' if s_==0 else acc))
    A('s_mov_b32 exec_lo, 0x00ff00ff\ns_mov_b32 exec_hi, 0x00ff00ff')
    A('s_nop 4')
    A('global_store_dwordx4 v22, v[48:51], %s offset:-2048 %s'%(WS,cfg.sf))
    A('global_store_dwordx4 v22, v[52:55], %s offset:2048 %s'%(WS,cfg.sf))
    tstamp(3)
    A('s_mov_b64 exec, -1')
    A('s_cmp_lg_u32 s53, 0\ns_cbranch_scc1 L_fin')
    apoll(['global_load_dwordx4 v[%d:%d], v23, %s offset:%d sc1'%(216+4*t,219+4*t,WS,1024*t) for t in range(4)],cfg.pR)
    stamp(10)
    A('v_pk_add_f32 v[32:33], v[216:217], v[220:221]\nv_pk_add_f32 v[34:35], v[218:219], v[222:223]')
    A('v_pk_add_f32 v[40:41], v[224:225], v[228:229]\nv_pk_add_f32 v[42:43], v[226:227], v[230:231]')
    A('v_pk_add_f32 v[32:33], v[32:33], v[40:41]\nv_pk_add_f32 v[34:35], v[34:35], v[42:43]')
    A('s_nop 1\nv_permlane32_swap_b32 v32, v34\nv_permlane32_swap_b32 v33, v35')
    A('v_add_f32 v32, v32, v34\nv_add_f32 v33, v33, v35')
    A('s_nop 1\nv_permlane16_swap_b32 v32, v33\nv_add_f32 v32, v32, v33')
    dppadd(32,'row_ror:8')
    rbf(32)
    A('v_add_f32 v32, v32, v16')
    rbf(32)
    A('v_mov_b32 v33, v32\ns_nop 1\nv_permlane16_swap_b32 v32, v33\nv_mov_b32 v34, v32\nv_mov_b32 v35, v33\ns_nop 0')
    A('v_permlane32_swap_b32 v32, v34\nv_permlane32_swap_b32 v33, v35')
    if cfg.nH<8: A('s_and_b32 exec_lo, s4, 0x%x\ns_mov_b32 exec_hi, 0'%((1<<(8*cfg.nH))-1))
    guarded('global_store_dwordx4 v24, v[32:35], %s %s'%(WS,cfg.sf))
    tstamp(4)
    A('s_branch L_fin')
    A('L_rdone:')
    A('s_cmp_eq_u32 s70, 2\ns_cbranch_scc1 L_ffn2')
    A('s_cmp_eq_u32 s70, 0\ns_cbranch_scc1 L_fin')
    if cfg.lrot:
        assert cfg.E1%2==0
        i0=cfg.E1//2; n=8-i0
        if cfg.helper: A('s_and_b32 s6, s14, 1\ns_cmp_eq_u32 s70, 4\ns_cselect_b32 s6, 2, s6\ns_mul_i32 s6, s6, %d\ns_add_u32 s6, s6, %d'%(n//3,i0))
        else: A('s_and_b32 s6, s14, 1\ns_mul_i32 s6, s6, %d\ns_add_u32 s6, s6, %d'%(n//2,i0))
        for it in range(n):
            if cfg.helper and it==n-2*(n//3): A('s_cmp_eq_u32 s70, 4\ns_cbranch_scc1 L_fin')
            A('s_mul_i32 s7, s6, %d\nv_add_u32 v7, s7, v6\ns_lshl_b32 s7, s6, 10\ns_add_u32 s7, s7, s71\ns_add_u32 m0, s7, %d\ns_add_u32 s6, s6, 1'%(16*3584,L_WA))
            A('global_load_lds_dwordx4 v7, %s %s'%(WG,cfg.ff))
            A('s_add_u32 m0, s7, %d\ns_cmp_eq_u32 s6, 8\ns_cselect_b32 s6, %d, s6'%(L_WA+32768,i0))
            A('global_load_lds_dwordx4 v7, %s %s'%(WU,cfg.ff))
    else:
        for k in range(cfg.E1,16): A(dma1(k))
    A('s_waitcnt vmcnt(0)\ns_barrier')
    for s_ in range(16):
        A('ds_read_b64_tr_b16 v[%d:%d], v8 offset:%d'%(96+4*s_,97+4*s_,2048*s_))
        A('ds_read_b64_tr_b16 v[%d:%d], v8 offset:%d'%(98+4*s_,99+4*s_,2048*s_+256))
        if s_%4==3: A('s_waitcnt lgkmcnt(0)')
    tstamp(2)
    apoll(['global_load_dwordx4 v[%d:%d], v4, %s offset:%d sc1'%(216+4*t,219+4*t,WS,1024*t) for t in range(4)],cfg.pF)
    stamp(11)
    layernorm('h')
    tstamp(5)
    A('s_waitcnt lgkmcnt(0)'); guarded('s_barrier')
    if cfg.tdiag: tstamp(6); A('s_waitcnt lgkmcnt(0)')
    for s_ in range(8):
        A('ds_read_b128 v[%d:%d], v9 offset:%d'%(32+4*s_,35+4*s_,L_XN+64*s_))
    for s_ in range(16):
        A('s_waitcnt lgkmcnt(%d)'%min(7,15-s_))
        b=32+4*(s_%8) if s_<8 else 160+4*(s_-8)
        A('v_mfma_f32_16x16x32_bf16 v[64:67], v[%d:%d], v[%d:%d], %s'%(96+4*s_,99+4*s_,b,b+3,'0' if s_==0 else 'v[64:67]'))
        if s_<8: A('ds_read_b128 v[%d:%d], v9 offset:%d'%(160+4*s_,163+4*s_,L_XN+64*(s_+8)))
    A('s_nop 7')
    A('v_permlane32_swap_b32 v64, v65\nv_permlane32_swap_b32 v66, v67')
    A('s_nop 1')
    A('v_mov_b32_dpp v64, v66 quad_perm:[0,1,2,3] row_mask:0xf bank_mask:0xc')
    A('v_mov_b32_dpp v65, v67 quad_perm:[0,1,2,3] row_mask:0xf bank_mask:0xc')
    A('v_cvt_pk_bf16_f32 v32, 0, v64\nv_cvt_pk_bf16_f32 v36, 0, v65')
    A('v_mul_f32 v33, v32, v32\nv_mul_f32 v33, 0x3d372713, v33\nv_fma_f32 v33, v33, v32, v32')
    A('v_mul_f32 v33, 0xc0135761, v33\nv_exp_f32 v33, v33\ns_nop 0\nv_add_f32 v33, 1.0, v33\nv_rcp_f32 v33, v33\ns_nop 0\nv_mul_f32 v33, v33, v32')
    rbf(33)
    A('v_mul_f32 v33, v33, v36\nv_mov_b32 v34, v33\ns_nop 1\nv_permlane32_swap_b32 v33, v34')
    A('v_cvt_pk_bf16_f32 v33, v33, v34\nv_min_u32 v36, -2, v33')
    A('v_mov_b32 v32, v36\nv_mov_b32 v33, v36\ns_nop 0')
    A('v_mov_b32_dpp v32, v36 row_ror:8 row_mask:0xf bank_mask:0xc\nv_mov_b32_dpp v33, v36 row_ror:8 row_mask:0xf bank_mask:0x3')
    A('v_mov_b32 v34, v32\nv_mov_b32 v35, v33\ns_nop 0')
    A('v_permlane16_swap_b32 v32, v34\nv_permlane16_swap_b32 v33, v35')
    if cfg.nA<8: A('s_and_b32 exec_lo, s4, 0x%x\ns_mov_b32 exec_hi, 0'%((1<<(8*cfg.nA))-1))
    guarded('global_store_dwordx4 v27, v[32:35], %s %s'%(WS,cfg.sf))
    stamp(12)
    A('L_fin:')
    A('s_waitcnt vmcnt(0)')
    if cfg.diag:
        dump_stamps(14,8)
    A('s_endpgm')
    A('L_ffn2:')
    if cfg.lrot:
        n=14-cfg.E2
        A('s_and_b32 s6, s15, 3\ns_mul_i32 s6, s6, %d\ns_lshr_b32 s6, s6, 2\ns_add_u32 s6, s6, %d'%(n,cfg.E2))
        for _ in range(n):
            A('s_lshl_b32 s7, s6, 15\nv_add_u32 v7, s7, v6\ns_lshl_b32 s7, s6, 10\ns_add_u32 s7, s7, s71\ns_add_u32 m0, s7, %d\ns_add_u32 s6, s6, 1'%L_WA)
            A('global_load_lds_dwordx4 v7, %s %s'%(WD,cfg.ff))
            A('s_cmp_eq_u32 s6, 14\ns_cselect_b32 s6, %d, s6'%cfg.E2)
    else:
        for k in range(cfg.E2,14): A(dma2(k))
    A('s_waitcnt vmcnt(0)')
    for t in range(7):
        for tt in range(2):
            r=96+8*t+4*tt
            A('ds_read_b64_tr_b16 v[%d:%d], v8 offset:%d'%(r,r+1,2048*t+16*tt))
            A('ds_read_b64_tr_b16 v[%d:%d], v8 offset:%d'%(r+2,r+3,2048*t+16*tt+128))
        if t%2==0: A('s_waitcnt lgkmcnt(0)')
    tstamp(2)
    poll(guard=True,loads=['global_load_dwordx2 v[60:61], v29, %s sc1'%WS],regs=[60,61])
    apoll(['global_load_dwordx4 v[%d:%d], v27, %s offset:%d sc1'%(216+4*t,219+4*t,WS,1024*t-3072) for t in range(7)],cfg.pG)
    stamp(10)
    for t in range(7):
        for tt in range(2):
            acc='v[%d:%d]'%(64+4*tt,67+4*tt)
            r=96+8*t+4*tt
            A('v_mfma_f32_16x16x32_bf16 %s, v[%d:%d], v[%d:%d], %s'%(acc,r,r+3,216+4*t,219+4*t,'0' if t==0 else acc))
    A('s_nop 6')
    A('ds_write_b128 v10, v[64:67] offset:%d'%L_DP)
    A('ds_write_b128 v10, v[68:71] offset:%d'%(L_DP+1024))
    A('s_waitcnt lgkmcnt(0)'); guarded('s_barrier')
    tstamp(6)
    A('s_cmp_lg_u32 s53, 0\ns_cbranch_scc1 L_fin')
    for w in range(4):
        A('ds_read_b64 v[%d:%d], v26 offset:%d'%(32+4*w,33+4*w,L_DP+2048*w))
        A('ds_read_b64 v[%d:%d], v26 offset:%d'%(34+4*w,35+4*w,L_DP+2048*w+640))
    A('s_waitcnt lgkmcnt(0)')
    for w in range(4): A('v_pk_add_f32 v[%d:%d], v[%d:%d], v[%d:%d]'%(32+4*w,33+4*w,32+4*w,33+4*w,34+4*w,35+4*w))
    A('v_pk_add_f32 v[32:33], v[32:33], v[36:37]\nv_pk_add_f32 v[40:41], v[40:41], v[44:45]\nv_pk_add_f32 v[32:33], v[32:33], v[40:41]')
    A('v_cvt_pk_bf16_f32 v32, 0, v32\nv_cvt_pk_bf16_f32 v33, 0, v33')
    A('v_pk_add_f32 v[32:33], v[32:33], v[60:61]')
    A('v_cvt_pk_bf16_f32 v32, v32, v33')
    if cfg.odiag: stamp(12)
    guarded('global_store_dword v28, v32, %s %s'%(OUT,cfg.of))
    if cfg.odiag: A('s_waitcnt vmcnt(0)')
    drychk()
    if cfg.diag:
        stamp(13)
        if cfg.leak is not None:
            a,b=cfg.leak
            A('s_waitcnt lgkmcnt(0)')
            if cfg.gleak is not None:
                A('v_mov_b32 v8, 0x3b0000\nglobal_load_dword v9, v8, %s sc1\nglobal_load_dword v10, v8, %s offset:256 sc1\ns_waitcnt vmcnt(0)'%(WS,WS))
                if b==14: A('v_not_b32 v9, v10\nv_mov_b32 v10, s%d'%(72+2*13))
                elif b==13: A('v_mov_b32 v10, s%d'%(72+2*13))
                else: A('v_not_b32 v10, v10')
                A('v_sub_u32 v9, v10, v9\ns_nop 1\nv_readfirstlane_b32 s54, v9')
                if b==0: A('s_mov_b32 s54, 0')
            elif a>=100:
                A('v_mov_b32 v8, %d\nds_read_b32 v9, v8 offset:%d\nds_read_b32 v10, v8 offset:%d\ns_waitcnt lgkmcnt(0)\nv_sub_u32 v9, v9, v10\ns_nop 1\nv_readfirstlane_b32 s54, v9'%(0,L_ST+4*(b-100),L_ST+4*(a-100)))
            elif b>=100:
                A('v_mov_b32 v8, %d\nds_read_b32 v9, v8 offset:%d\ns_waitcnt lgkmcnt(0)\nv_readfirstlane_b32 s54, v9\ns_sub_u32 s54, s54, s%d'%(4*(b-100),L_ST,72+2*a))
            else: A('s_sub_u32 s54, s%d, s%d'%(72+2*b,72+2*a))
            A('s_mul_i32 s54, s54, %d\ns_min_u32 s54, s54, 60000'%cfg.mult)
            A('L_leak:')
            A('s_memrealtime s[68:69]\ns_waitcnt lgkmcnt(0)\ns_sub_u32 s55, s68, s%d\ns_cmp_lt_u32 s55, s54\ns_cbranch_scc1 L_leak'%(72+2*13))
        else:
            A('s_waitcnt lgkmcnt(0)\ns_mov_b32 s100, s92\ns_mov_b32 s92, 0')
            dump_stamps(15,8)
    A('L_end:')
    A('s_endpgm')
    A('L_last:')
    A('.section .rodata,"a"\n.p2align 6\n.amdhsa_kernel %s'%K)
    A('  .amdhsa_next_free_vgpr 256\n  .amdhsa_next_free_sgpr 102\n  .amdhsa_accum_offset 256\n  .amdhsa_group_segment_fixed_size 0\n  .amdhsa_kernarg_size 96')
    A('  .amdhsa_user_sgpr_count 2\n  .amdhsa_user_sgpr_kernarg_segment_ptr 1\n  .amdhsa_system_sgpr_workgroup_id_x 1')
    A('  .amdhsa_float_denorm_mode_32 3\n  .amdhsa_float_denorm_mode_16_64 3')
    A('.end_amdhsa_kernel')
    return '\n'.join(L)+'\n'

if __name__=='__main__':
    cfg=Cfg()
    out=sys.argv[1]
    for a in sys.argv[2:]:
        k,v=a.split('=',1); setattr(cfg,k,eval(v))
    s=gen(cfg)
    hdr=''.join(l for l in open('cdna_kernels/%s.s.ref'%NAME).readlines()[:13])
    open(out,'w').write(hdr+s)
```

```python
import sys
NAME='sequential_preLN__gqa_block_cached__geglu_ffn__decode'
K=NAME+'_kernel'

class Cfg:
    diag=False
    leak=None
    nocomp=False
    noq=False
    T2=12
    cpf=True
    f1s=1
    nb=1; gd=(40,2,3)
    G1=0; G2=0
    disp=4; LA=1; boost=(1,5,3); lf='sc1'; sf='sc1'
    skipG=False; skipF=False
    par=None
    NP=3
    HS=20736; AS=28672; wrot=False; pre=0; head=0
    upfront=False
    vdiag=None
    odiag=False
    touch=True
    sdiag=False
    mult=1
    Q1=0; Q2=0
    E1=4; E2=0; EW=8; lrot=True; helper=False
    T0=None; n0=24
    qflag=True
    chunk=0
    bare=0
    notail=False
    knat=False
    cdbg=False
    ctouch=None
    rot=4
    cs=9
    nowq=False
    noqst=False
    nH=8; nA=8
    pW=('c',1,0); pR=('m',8,1); pF=('c',1,0); pG=('c',1,0)
    tdiag=False
    tsleep=0
    crot=0
    noclr=False
    wolate=False
    warm=False
    of=''
    gleak=None
    NS=28
    sflag=False
    svcfirst=0
    spin=1<<17
    T=5
    kf='nt'; vf='nt'; wf='nt'; ff=''
    pq=3
    pw0=7
    pw1=22
    noW=False

QP=0x0
FLG=0x80000
CLR=0x200000
WP=0x200000
OP=0x280000
OPS=640
HB=0x340000
AB=0x360000
CTR=0x3A0000
PRB=0x3C0000
STAMP=0x10000000
L_MLW=64
L_QL=256
L_XN=1280
XNS=1040
L_XO=9600
XOS=272
L_DP=11776
L_OW=19968
L_ST=28160
L_PR=28416
L_CNT=L_PR+1024
L_WA=30720
LDS_BYTES=L_WA+65536

LOG2E=0x3fb8aa3b
SCALE=0x3db504f3

def gen(cfg):
    L=[]
    def A(s):
        L.extend(s.split('\n'))
    lab=[0]
    def newlab(p):
        lab[0]+=1
        return 'L_%s_%d'%(p,lab[0])
    X,KP,VP,WQ,WO,BX,WG,WU,WD,OUT,DBG,WS=['s[%d:%d]'%(16+2*i,17+2*i) for i in range(12)]
    def stamp(i):
        if cfg.diag: A('s_memrealtime s[%d:%d]'%(72+2*i,73+2*i))
    def tstamp(i):
        if cfg.tdiag: stamp(i)
    def pack_stamps(n,vt):
        A('s_waitcnt lgkmcnt(0)')
        A('v_mov_b32 v%d, 0'%vt)
        for i in range(n): A('v_writelane_b32 v%d, s%d, %d'%(vt,72+2*i,i))
    def dump_stamps(n,vt):
        if not cfg.diag: return
        A('s_mov_b64 exec, -1')
        pack_stamps(n,vt)
        A('v_lshlrev_b32 v%d, 2, v0'%(vt+1))
        A('ds_read_b32 v%d, v%d offset:%d'%(vt+2,vt+1,L_ST))
        A('s_lshl_b32 s66, s2, 9\ns_add_u32 s66, s66, %d'%(STAMP))
        A('v_add_u32 v%d, s66, v%d'%(vt+1,vt+1))
        A('s_mov_b64 exec, 0xffff')
        A('s_waitcnt lgkmcnt(0)')
        A('global_store_dword v%d, v%d, %s'%(vt+1,vt+2,WS))
        A('s_lshl_b32 s66, s53, 6\nv_add_u32 v%d, s66, v%d'%(vt+1,vt+1))
        A('global_store_dword v%d, v%d, %s offset:64'%(vt+1,vt,WS))

    A('; @launch grid=(256,1,1) block=(512,1,1) lds=%d'%LDS_BYTES)
    A('.amdgcn_target "amdgcn-amd-amdhsa--gfx950"\n.text\n.globl %s\n.p2align 8\n.type %s,@function\n%s:'%(K,K,K))
    A('s_cmp_ge_u32 s2, 256\ns_cbranch_scc1 L_end')
    stamp(0)
    A('v_lshrrev_b32 v1, 6, v0')
    A('v_lshlrev_b32 v3, 2, v0')
    A('v_readfirstlane_b32 s52, v1')
    A('s_cmp_lt_u32 s52, 4\ns_cbranch_scc1 L_noz')
    A('v_mov_b32 v30, 0')
    A('ds_write_b32 v3, v30 offset:%d\nds_write_b32 v3, v30 offset:%d'%(L_PR-1024,L_PR))
    A('s_waitcnt lgkmcnt(0)')
    A('L_noz:')
    A('s_load_dwordx16 s[16:31], s[0:1], 0')
    A('s_load_dwordx8 s[32:39], s[0:1], 64')
    A('s_barrier')
    if cfg.diag:
        for i in range(1,14): A('s_mov_b32 s%d, 0'%(72+2*i))
    A('v_and_b32 v0, 63, v0')
    A('s_and_b32 s48, s2, 7\ns_lshr_b32 s49, s2, 3\ns_lshl_b32 s50, s49, 1\ns_bfe_u32 s54, s2, 0x10001\ns_or_b32 s50, s50, s54')
    A('s_and_b32 s51, s2, 1\ns_bfe_u32 s54, s2, 0x10002\ns_lshl_b32 s54, s54, 1\ns_or_b32 s51, s51, s54')
    A('s_mov_b32 s59, 0x%x\ns_mov_b32 s60, 0xffff0000'%(LOG2E))
    A('v_lshlrev_b32 v1, 4, v0')
    A('s_cmp_ge_u32 s52, 4\ns_cbranch_scc1 L_service')

    import math
    TH=math.ceil(cfg.T)
    NS=cfg.NS
    RB=64
    A('s_lshl_b32 s54, s50, 21')
    A('s_lshl_b32 s62, s51, 2\ns_add_u32 s62, s62, s52')
    for i in range(4): A('s_add_u32 s%d, s62, %d\ns_and_b32 s%d, s%d, 15\ns_lshl_b32 s%d, s%d, 12'%(8+i,cfg.rot*i,8+i,8+i,8+i,8+i))
    A('v_lshrrev_b32 v2, 4, v0\nv_lshlrev_b32 v2, 6, v2\nv_and_b32 v4, 3, v0\nv_lshl_add_u32 v2, v4, 4, v2')
    A('v_bfe_u32 v5, v0, 2, 2\nv_lshl_add_u32 v2, v5, 8, v2')
    if cfg.knat: A('v_mov_b32 v2, v1')
    A('s_mov_b32 s42, 0x200000\ns_mov_b32 s43, 0x20000\ns_mov_b32 s46, 0x200000\ns_mov_b32 s47, 0x20000')
    A('s_waitcnt lgkmcnt(0)')
    A('s_add_u32 s40, s18, s54\ns_addc_u32 s41, s19, 0\ns_and_b32 s41, s41, 0xffff')
    A('s_add_u32 s44, s20, s54\ns_addc_u32 s45, s21, 0\ns_and_b32 s45, s45, 0xffff')
    st={'n':0}
    def adv():
        if cfg.rot: A('s_add_u32 s68, s62, %d\ns_and_b32 s68, s68, 15\ns_andn2_b32 s62, s62, 15\ns_add_u32 s62, s62, 16\ns_or_b32 s62, s62, s68'%cfg.rot)
        else: A('s_add_u32 s62, s62, 16')
    def load(slot,j,throttle=True,th=None):
        if j==0: A('s_lshl_b32 s65, s62, 12')
        if throttle:
            t_=(th or cfg.T); lo=int(t_); fr=t_-lo
            w=lo+(1 if (int((j+1)*fr+1e-9)>int(j*fr+1e-9)) else 0)
            A('s_waitcnt vmcnt(%d)'%(w-1))
        r=RB+slot*32+j*4
        t=j//4
        A('buffer_load_dwordx4 v[%d:%d], %s, %s, s65 offen offset:%d %s'%(r,r+3,'v2' if t==0 else 'v1','s[40:43]' if t==0 else 's[44:47]',(j%4)*1024,cfg.kf if t==0 else cfg.vf))
    def prog(val):
        A('v_mov_b32 v30, %s\nds_write_b32 v3, v30 offset:%d'%(val,L_PR))
    NK=NS//2
    assert NS%2==0 and NK>=10 and NK<=15
    slot_of={u:u for u in range(6)}
    slot_of.update({6:0,7:1,8:2})
    for u in range(9,NS+1): slot_of[u]=(u-9)&1
    tr={'issued':0}
    def sload():
        n=tr['issued']; G=n//8; j=n%8
        tr['issued']=n+1
        if G==NS:
            load(slot_of[G],j,th=cfg.T); return
        t=G//NK; k=2*(G%NK)+j//4
        if cfg.vdiag is not None and G==cfg.vdiag and j==0: stamp(6)
        if cfg.vdiag is not None and G==cfg.vdiag+1 and j==0: stamp(7)
        if j%4==0: A('s_add_u32 s65, s%d, %d'%(8+k%4,k*65536))
        w=cfg.T0 if (cfg.T0 and n<cfg.n0) else TH
        if cfg.boost and cfg.boost[0]<=G<cfg.boost[1] and j<(8 if G<5 else 0):
            l=newlab('bo'); A('s_waitcnt vmcnt(%d)\ns_cbranch_vccnz %s\ns_waitcnt vmcnt(%d)\n%s:'%(w-1+cfg.boost[2],l,w-1,l))
        elif n>=w: A('s_waitcnt vmcnt(%d)'%(w-1))
        r=RB+slot_of[G]*32+j*4
        A('buffer_load_dwordx4 v[%d:%d], %s, %s, s65 offen offset:%d %s'%(r,r+3,'v2' if t==0 else 'v1','s[40:43]' if t==0 else 's[44:47]',(j%4)*1024,cfg.kf if t==0 else cfg.vf))
        if j==7 and n>=15: prog(G+1)
    def pro_issue(n0,n1):
        assert tr['issued']==n0
        for n in range(n0,n1): sload()
    if cfg.svcfirst: A('s_barrier')
    if cfg.sdiag: stamp(6)
    pro_issue(0,TH)
    if cfg.sdiag: stamp(7)
    if cfg.boost: A('s_xor_b32 s55, s2, s49\ns_and_b32 s55, s55, 1\ns_cselect_b64 vcc, 0, -1')
    A('s_mov_b32 s56, 0x05040100\ns_mov_b32 s57, 0x07060302\ns_mov_b32 s58, 0x%x'%SCALE)
    A('s_lshl_b32 s54, s50, %d\ns_add_u32 s54, s54, %d\ns_add_u32 s66, s38, s54\ns_addc_u32 s67, s39, 0'%(cfg.cs,CTR))
    if cfg.cdbg: A('s_lshl_b32 s54, s50, 9\ns_add_u32 s54, s54, 4096\ns_add_u32 s66, s36, s54\ns_addc_u32 s67, s37, 0')
    A('s_lshl_b32 s55, s52, 11')
    A('v_lshlrev_b32 v4, 9, v4\nv_and_b32 v0, 0x30, v0\nv_add3_u32 v0, v4, v0, s55')
    A('v_mov_b32 v14, 0xff800000')
    if cfg.sdiag:
        stamp(9); A('s_waitcnt vmcnt(%d)'%(TH-1)); stamp(10)
    pro_issue(TH,48)
    stamp(1)
    if cfg.qflag:
        A('v_mov_b32 v31, 0\nL_qw:\nds_read_b32 v15, v31 offset:%d\ns_waitcnt lgkmcnt(0)\nv_readfirstlane_b32 s54, v15\ns_cmp_eq_u32 s54, 0\ns_cbranch_scc1 L_qw'%(L_CNT+16))
    else: A('s_barrier')
    A('ds_read_b128 v[4:7], v1 offset:%d'%L_QL)
    stamp(2)
    A('s_waitcnt lgkmcnt(0)')
    def kpart(slot,fill):
        B=RB+slot*32
        f=list(fill)
        def nxt():
            if f: f.pop(0)()
        D=[20,B,B+4,B+8]
        if cfg.nocomp:
            while f: nxt()
            return
        for i in range(4):
            A('v_mfma_f32_16x16x32_bf16 v[%d:%d], v[%d:%d], v[4:7], 0'%(D[i],D[i]+3,B+4*i,B+4*i+3))
        A('s_nop 7')
        for h in range(2):
            for step in range(3):
                for e in range(2):
                    be=2*e+h
                    S=18+e
                    A('v_add_f32_dpp v%d, v%d, v%d row_ror:%d row_mask:0xf bank_mask:0x%x'%(S,D[be]+((be+step+1)&3),(D[be]+be) if step==0 else S,12-4*step,1<<be))
                A('s_nop 0')
        nxt()
        A('s_nop 0')
        A('v_mov_b32_dpp v18, v19 quad_perm:[0,1,2,3] row_mask:0xf bank_mask:0xc')
        A('v_cvt_pk_bf16_f32 v18, 0, v18\nv_mul_f32 v18, s58, v18\nv_cvt_pk_bf16_f32 v18, 0, v18')
        A('v_max_f32 v15, v14, v18')
        A('s_nop 1\nv_max_f32_dpp v15, v15, v15 row_ror:4 row_mask:0xf bank_mask:0xf')
        A('s_nop 1\nv_max_f32_dpp v15, v15, v15 row_ror:8 row_mask:0xf bank_mask:0xf')
        A('v_mov_b32 v31, v15\ns_nop 1\nv_permlane16_swap_b32 v15, v31\nv_max_f32 v15, v15, v31')
        A('v_mov_b32 v31, v15\ns_nop 1\nv_permlane32_swap_b32 v15, v31\nv_max_f32 v15, v15, v31')
        nxt()
        A('v_sub_f32 v16, v14, v15\nv_sub_f32 v18, v18, v15\nv_cmp_neq_f32 vcc, v14, v15\nv_mul_f32 v16, s59, v16\nv_mul_f32 v18, s59, v18')
        A('v_exp_f32 v16, v16\nv_exp_f32 v18, v18\nv_mov_b32 v14, v15\nv_mul_f32 v17, s59, v15')
        A('v_mov_b32_dpp v19, v18 row_ror:12 row_mask:0xf bank_mask:0xf')
        A('v_cvt_pk_bf16_f32 v8, v18, v19')
        l=newlab('nr')
        A('s_cbranch_vccz %s'%l)
        for r in range(32,64,2):
            A('v_pk_mul_f32 v[%d:%d], v[%d:%d], v[16:17] op_sel_hi:[1,0]'%(r,r+1,r,r+1))
        A('v_mul_f32 v24, v24, v16')
        A('%s:'%l)
        A('s_nop 0')
        A('v_mov_b32_dpp v9, v8 row_ror:8 row_mask:0xf bank_mask:0xf')
        while f: nxt()
    def vpart(slot):
        B=RB+slot*32+16
        if cfg.nocomp: return
        def perms(j):
            Tt=10+2*(j&1)
            for ii in range(2):
                A('v_perm_b32 v%d, v%d, v%d, s%d'%(Tt+ii,B+4*(2*ii+1)+(j>>1),B+4*(2*ii)+(j>>1),56+(j&1)))
        perms(0)
        for j in range(8):
            if j<7: perms(j+1)
            else: A('v_mfma_f32_16x16x16_bf16 v[24:27], v[28:29], v[8:9], v[24:27]')
            Tt=10+2*(j&1)
            A('v_mfma_f32_16x16x16_bf16 v[%d:%d], v[%d:%d], v[8:9], v[%d:%d]'%(32+4*j,35+4*j,Tt,Tt+1,32+4*j,35+4*j))
    SC=[8,9,10,11,12,13,20,21,22,23,25,26,27,28,29][:NK]
    RV=RB+5*32; TV=RV+4
    def need(n):
        rem=tr['issued']-n
        assert rem>=0
        if rem<TH: A('s_waitcnt vmcnt(%d)'%rem)
    def spread(chunks,nl):
        m=len(chunks)
        for i,c in enumerate(chunks):
            if not cfg.nocomp: A(c)
            for _ in range((nl*(i+1))//m-(nl*i)//m): sload()
    def kgroup(G):
        B=RB+slot_of[G]*32
        ch=['\n'.join('v_mfma_f32_16x16x32_bf16 v[%d:%d], v[%d:%d], v[4:7], 0'%(32+4*i,35+4*i,B+4*i,B+4*i+3) for i in range(8))+'\ns_nop 1']
        for be in range(4):
            c=[]
            for step in range(3):
                for e in range(2):
                    D=32+4*(2*be+e); S=18+e
                    c.append('v_add_f32_dpp v%d, v%d, v%d row_ror:%d row_mask:0xf bank_mask:0x%x'%(S,D+((be+step+1)&3),(D+be) if step==0 else S,12-4*step,1<<be))
                c.append('s_nop 0')
            ch.append('\n'.join(c))
        ch[-1]+='\nv_cvt_pk_bf16_f32 v15, 0, v18\nv_cvt_pk_bf16_f32 v16, 0, v19\nv_mul_f32 v15, s58, v15\nv_mul_f32 v16, s58, v16'
        ch[-1]+='\nv_cvt_pk_bf16_f32 v%d, v15, v16\nv_cvt_pk_bf16_f32 v15, 0, v15\nv_cvt_pk_bf16_f32 v16, 0, v16\nv_max3_f32 v14, v14, v15, v16'%SC[G]
        return ch
    def wred(op,r):
        return ('s_nop 1\n%s_dpp v%d, v%d, v%d row_ror:4 row_mask:0xf bank_mask:0xf\ns_nop 1\n%s_dpp v%d, v%d, v%d row_ror:8 row_mask:0xf bank_mask:0xf\n'%(op,r,r,r,op,r,r,r)+
                'v_mov_b32 v31, v%d\ns_nop 1\nv_permlane16_swap_b32 v%d, v31\n%s v%d, v%d, v31\n'%(r,r,op,r,r)+
                'v_mov_b32 v31, v%d\ns_nop 1\nv_permlane32_swap_b32 v%d, v31\n%s v%d, v%d, v31'%(r,r,op,r,r))
    def softmax():
        ch=[wred('v_max_f32',14)+'\nv_mul_f32 v17, s59, v14\nv_mov_b32 v24, 0']
        for g in range(NK):
            ch.append('v_lshlrev_b32 v18, 16, v%d\nv_and_b32 v19, s60, v%d\nv_sub_f32 v18, v18, v14\nv_sub_f32 v19, v19, v14\nv_mul_f32 v18, s59, v18\nv_mul_f32 v19, s59, v19\n'%(SC[g],SC[g])+
                      'v_exp_f32 v18, v18\nv_exp_f32 v19, v19\ns_nop 0\nv_cvt_pk_bf16_f32 v%d, v18, v19\nv_add_f32 v24, v24, v18\nv_add_f32 v24, v24, v19'%SC[g])
        ch.append(wred('v_add_f32',24))
        return ch
    def vgroup(G):
        B=RB+slot_of[G]*32; P=SC[G-NK]
        def perms(j):
            Tt=TV+4*(j&1)
            return '\n'.join('v_perm_b32 v%d, v%d, v%d, s%d'%(Tt+ii,B+4*(2*ii+1)+(j>>1),B+4*(2*ii)+(j>>1),56+(j&1)) for ii in range(4))
        c0='v_mov_b32 v%d, v%d\n'%(RV,P)+'\n'.join('v_mov_b32_dpp v%d, v%d row_ror:%d row_mask:0xf bank_mask:0xf'%(RV+r,P,16-4*r) for r in range(1,4))+'\n'+perms(0)
        ch=[c0]
        for j in range(8):
            Tt=TV+4*(j&1); acc='v[%d:%d]'%(32+4*j,35+4*j)
            ch.append((perms(j+1) if j<7 else 's_nop 1')+'\nv_mfma_f32_16x16x32_bf16 %s, v[%d:%d], v[%d:%d], %s'%(acc,Tt,Tt+3,RV,RV+3,'0' if G==NK else acc))
        return ch
    def request():
        if not cfg.chunk:
            A('s_mov_b32 s63, 1\ns_atomic_add s63, s[66:67], 0x0 glc'); return
        la=newlab('ra'); lb=newlab('rb')
        A('s_cmp_eq_u32 s69, 0\ns_cbranch_scc1 %s'%la)
        A('s_mov_b32 s69, 0\ns_sub_u32 s63, s62, %d\ns_branch %s'%(NS*16,lb))
        A('%s:'%la)
        A('s_cmp_lt_u32 s62, %d\ns_cselect_b32 s69, 1, 0\ns_add_u32 s63, s69, 1\ns_atomic_add s63, s[66:67], 0x0 glc'%(512-cfg.chunk))
        A('%s:'%lb)
    for G in range(9):
        need(8*G+8)
        spread(kgroup(G),[4,4,4,4,4,4,3,2,3][G])
    assert tr['issued']==80
    stamp(3)
    def get():
        lb=int(math.log2(cfg.disp)); l=newlab('gt'); d=newlab('gd')
        A('s_cmp_ge_u32 s62, 512\ns_cbranch_scc1 %s'%d)
        A('v_mov_b32 v31, 0\nv_mov_b32 v30, 1\ns_mov_b64 exec, 1\nds_add_rtn_u32 v30, v31, v30 offset:%d\ns_waitcnt lgkmcnt(0)'%(L_CNT+24))
        A('v_lshlrev_b32 v31, 2, v30')
        A('%s:\nds_read_b32 v30, v31 offset:%d\ns_waitcnt lgkmcnt(0)\nv_readfirstlane_b32 s63, v30\ns_cmp_eq_u32 s63, 0\ns_cbranch_scc1 %s'%(l,L_CNT+64,l))
        A('s_mov_b64 exec, -1')
        A('%s:'%d)
    for G in range(9,NS):
        if cfg.disp:
            if G==NS-1:
                stamp(4); A('s_mov_b32 s62, 0'); get(); A('s_mov_b32 s62, s63')
        elif G==NS-2:
            A('v_mov_b32 v31, 0\nL_cw:\nds_read_b32 v15, v31 offset:%d\ns_waitcnt lgkmcnt(0)\nv_readfirstlane_b32 s54, v15\ns_cmp_eq_u32 s54, 0\ns_cbranch_scc1 L_cw'%(L_CNT+8))
            stamp(4)
            A('s_mov_b32 s63, %d\ns_atomic_add s63, s[66:67], 0x0 glc\ns_mov_b32 s69, %d'%((2,1) if cfg.chunk else (1,0)))
        if G==NS-1 and not cfg.disp:
            A('s_waitcnt lgkmcnt(0)\ns_add_u32 s62, s63, %d'%(NS*16+1))
            A('s_cmp_ge_u32 s62, 512\ns_cbranch_scc1 L_nrq'); request(); A('L_nrq:')
        lead=min(TH,8)
        if G==NK: spread(softmax(),lead)
        else:
            for _ in range(lead): sload()
        need(8*G+8)
        ch=kgroup(G) if G<NK else vgroup(G)
        spread(ch[:-1],8-lead); spread(ch[-1:],0)
    A('s_cmp_ge_u32 s62, 512\ns_cbranch_scc1 L_sdone')
    A('v_mov_b32 v28, 0x3f803f80\nv_mov_b32 v29, 0x3f803f80\nv_mov_b32 v25, 0\nv_mov_b32 v26, 0\nv_mov_b32 v27, 0')
    if cfg.disp: get(); A('s_mov_b32 s62, s63')
    else: A('s_waitcnt lgkmcnt(0)\ns_add_u32 s62, s63, %d'%(NS*16+1))
    A('s_mov_b32 s64, %d'%(NS+1))
    def body(c,th):
        if cfg.upfront:
            for j in range(8): load(1-c,j,th=th,throttle=(8+j>=th))
            if th>12: A('s_waitcnt vmcnt(12)')
            kpart(c,[])
            A('s_waitcnt vmcnt(8)')
            vpart(c)
            return
        for j in range(4): load(1-c,j,th=th)
        if th>8: A('s_waitcnt vmcnt(8)')
        kpart(c,[(lambda j=j: load(1-c,j,th=th)) for j in range(4,8)])
        if cfg.disp: get()
        if th>8: A('s_waitcnt vmcnt(8)')
        vpart(c)
    A('L_dyn:')
    for c in (slot_of[NS],1-slot_of[NS]):
        ls=newlab('st'); lc=newlab('sc')
        if cfg.diag: A('s_add_u32 s64, s64, 1')
        if not cfg.disp:
            A('s_cmp_ge_u32 s62, 512\ns_cbranch_scc1 %s'%ls)
            request()
            A('%s:'%ls)
        body(c,cfg.T2 or cfg.T)
        A('s_cmp_ge_u32 s62, 512\ns_cbranch_scc1 L_sdone')
        if cfg.disp: A('s_mov_b32 s62, s63')
        else:
            A('s_waitcnt lgkmcnt(0)')
            A('s_add_u32 s62, s63, %d'%(NS*16+1))
    A('s_branch L_dyn')
    A('L_sdone:')
    A('s_mov_b32 exec_lo, 0x000f000f\ns_mov_b32 exec_hi, 0x000f000f')
    stamp(5)
    A('s_lshl_b32 s55, s52, 2\nv_and_b32 v31, 0x30, v1\nv_lshl_add_u32 v31, v31, 1, s55')
    for j in range(8):
        A('ds_write_b128 v0, v[%d:%d] offset:%d'%(32+4*j,35+4*j,L_OW+64*j))
    A('ds_write2_b32 v31, v17, v24 offset0:%d offset1:%d'%(L_MLW//4,L_MLW//4+4))
    if cfg.diag:
        A('s_mov_b64 exec, -1')
        A('s_cmp_lg_u32 s52, 0\ns_cbranch_scc1 L_nost')
        pack_stamps(11 if cfg.sdiag else 8,8)
        A('v_writelane_b32 v8, s64, 8')
        A('ds_write_b32 v3, v8 offset:%d'%L_ST)
        A('L_nost:')
    A('s_waitcnt lgkmcnt(0)')
    A('s_barrier')
    A('s_endpgm')

    A('L_service:')
    if cfg.bare:
        A('s_sub_u32 s53, s52, 4\nv_mov_b32 v11, 0\nv_mov_b32 v12, 1\nv_mov_b32 v40, -1\nv_mov_b32 v41, -1\nv_mov_b32 v42, -1\nv_mov_b32 v43, -1\ns_waitcnt lgkmcnt(0)')
        if cfg.bare&2:
            A('s_lshl_b32 s54, s2, 2\ns_add_u32 s54, s54, s53\ns_mul_i32 s54, s54, 640\ns_add_u32 s54, s54, %d\nv_add_u32 v6, s54, v1\ns_mov_b32 exec_hi, 0xff\nglobal_store_dwordx4 v6, v[40:43], %s sc1\ns_mov_b64 exec, -1'%(CLR+0x100000,WS))
        if cfg.bare&4:
            A('global_load_dwordx4 v[32:35], v1, %s'%X)
        if cfg.bare&8:
            A('v_mov_b32 v6, s2\ns_mov_b64 exec, 1\nglobal_store_byte v6, v12, %s sc1\ns_mov_b64 exec, -1'%DBG)
        A('ds_write_b32 v11, v12 offset:%d\ns_waitcnt lgkmcnt(0)\ns_barrier\ns_barrier'%(L_CNT+8))
        if cfg.bare&16:
            A('v_lshlrev_b32 v7, 2, v0\nglobal_load_dword v13, v7, %s sc1'%DBG)
        A('s_barrier\ns_endpgm')
    A('s_setprio 3')
    A('s_sub_u32 s53, s52, 4')
    A('s_lshl_b32 s66, s53, 12')
    A('s_mov_b32 s3, %d'%FLG)
    A('s_lshr_b32 s68, s49, 3\ns_and_b32 s69, s49, 7')
    A('v_lshrrev_b32 v2, 5, v0\ns_lshl_b32 s54, s53, 1\nv_add_u32 v2, s54, v2')
    A('v_and_b32 v3, 31, v0\nv_lshlrev_b32 v3, 4, v3')
    A('v_lshl_add_u32 v4, v2, 10, v3')
    A('s_xor_b32 s13, s2, s49\ns_and_b32 s13, s13, 1\ns_lshr_b32 s14, s49, 4\ns_bfe_u32 s15, s49, 0x30001')
    A('s_lshl_b32 s54, s14, 8\ns_lshl_b32 s55, s53, 6\ns_add_u32 s54, s54, s55')
    A('v_lshrrev_b32 v6, 3, v0\nv_add_u32 v6, s54, v6\nv_lshlrev_b32 v6, 13, v6')
    A('v_and_b32 v7, 7, v0\nv_lshl_add_u32 v6, v7, 4, v6')
    A('s_lshl_b32 s54, s48, 10\ns_lshl_b32 s55, s15, 7\ns_add_u32 s54, s54, s55\nv_add_u32 v6, s54, v6')
    A('s_lshl_b32 s54, s48, 1\ns_add_u32 s54, s54, s14\ns_lshl_b32 s54, s54, 11\ns_lshl_b32 s55, s15, 8\ns_add_u32 s54, s54, s55\ns_lshl_b32 s55, s53, 6\ns_add_u32 s54, s54, s55')
    A('v_lshlrev_b32 v14, 15, v7\nv_and_b32 v15, 0x30, v0\nv_add3_u32 v14, v14, v15, s54')
    A('v_mov_b32 v40, -1\nv_mov_b32 v41, -1\nv_mov_b32 v42, -1\nv_mov_b32 v43, -1')
    A('s_lshl_b32 s71, s53, 13\ns_add_u32 m0, s71, %d'%L_WA)
    A('v_lshrrev_b32 v44, 1, v0\nv_lshlrev_b32 v44, 9, v44\nv_and_b32 v45, 16, v1\nv_add3_u32 v79, v44, v45, %s'%'s3')
    A('v_mov_b32 v44, 0\nv_mov_b32 v45, 0\nv_mov_b32 v46, 0\nv_mov_b32 v47, 0\nv_mov_b32 v11, 0\nv_mov_b32 v12, 1')
    A('s_lshl_b32 s12, s2, 2\ns_add_u32 s12, s12, s53')
    A('s_waitcnt lgkmcnt(0)')
    A('s_cmp_lg_u32 s13, 0\ns_cbranch_scc1 L_clr')
    A('global_load_dwordx4 v[32:35], v4, %s'%X)
    A('global_load_dwordx4 v[36:39], v4, %s offset:512'%X)
    for i in range(8):
        if i: A('s_add_u32 m0, s71, %d\nv_add_u32 v6, 0x10000, v6'%(L_WA+i*1024))
        A('global_load_lds_dwordx4 v6, %s %s'%(WQ,cfg.wf))
    A('s_mov_b32 exec_lo, 0x00ff00ff\ns_mov_b32 exec_hi, 0x00ff00ff')
    A('global_store_dwordx4 v14, v[40:43], %s sc1'%WS)
    A('s_branch L_clrd')
    A('L_clr:')
    if cfg.cpf:
        A('s_getpc_b64 s[6:7]\nL_pc:\ns_sub_u32 s6, s6, L_pc-%s\ns_subb_u32 s7, s7, 0'%K)
        A('s_lshr_b32 s54, s49, 1\ns_lshl_b32 s54, s54, 2\ns_add_u32 s54, s54, s53\ns_lshl_b32 s54, s54, 9\nv_lshl_add_u32 v48, v0, 3, s54\nv_min_u32 v48, L_last-%s-8, v48'%K)
        A('global_load_dwordx2 v[50:51], v48, s[6:7]')
    A('s_cmp_lg_u32 s12, 7\ns_cbranch_scc1 L_nolead')
    A('global_store_dwordx4 v79, v[44:47], %s sc1\nglobal_store_dwordx4 v79, v[44:47], %s offset:256 sc1'%(WS,WS))
    A('s_waitcnt vmcnt(0)')
    A('s_mov_b64 exec, 1\nglobal_store_dword v11, v12, %s sc1\ns_mov_b64 exec, -1'%DBG)
    A('L_nolead:')
    A('s_lshr_b32 s54, s2, 1\ns_lshl_b32 s54, s54, 2\ns_add_u32 s54, s54, s53\ns_mul_i32 s54, s54, 3584\ns_add_u32 s54, s54, %d'%CLR)
    A('v_add_u32 v6, s54, v1')
    for i in range(3): A('global_store_dwordx4 v6, v[40:43], %s offset:%d sc1'%(WS,1024*i))
    A('s_mov_b32 exec_hi, 0')
    A('global_store_dwordx4 v6, v[40:43], %s offset:3072 sc1'%WS)
    A('L_clrd:')
    A('s_mov_b64 exec, -1')
    A('s_and_b32 s54, s49, 3\ns_lshl_b32 s9, s54, 16\ns_lshr_b32 s54, s49, 2\ns_lshl_b32 s54, s54, 10\ns_add_u32 s9, s9, s54\ns_lshl_b32 s54, s48, 7\ns_add_u32 s9, s9, s54\ns_add_u32 s9, s9, %d'%PRB)
    A('s_lshl_b32 s54, s53, 14\ns_add_u32 s54, s54, s9\nv_bfe_u32 v6, v0, 3, 1\nv_lshlrev_b32 v6, 13, v6\nv_and_b32 v13, 0x70, v1\nv_add3_u32 v6, v6, v13, s54')
    A('s_mov_b64 exec, 0xffff')
    A('s_cmp_ge_u32 s49, 8\ns_cbranch_scc1 L_nopl\ns_cmp_ge_u32 s53, %d\ns_cbranch_scc1 L_nopl'%cfg.NP)
    A('global_store_dwordx4 v6, v[40:43], %s sc1'%WS)
    A('L_nopl:')
    A('s_mov_b64 exec, -1')
    if cfg.svcfirst==2: A('s_barrier')
    A('v_mul_u32_u24 v5, %d, v2\nv_add_u32 v5, v5, v3'%XNS)
    A('v_lshrrev_b32 v8, 4, v0\nv_lshlrev_b32 v8, 10, v8\nv_bfe_u32 v9, v0, 2, 2\nv_lshl_add_u32 v8, v9, 7, v8\nv_and_b32 v9, 3, v0\nv_lshl_add_u32 v8, v9, 3, v8')
    A('s_lshl_b32 s54, s53, 5\nv_add_u32 v8, s54, v8')
    A('v_mul_u32_u24 v9, %d, v7\nv_add_u32 v9, v9, v15\ns_lshl_b32 s54, s14, 9\nv_add_u32 v10, s54, v9'%XNS)
    A('s_lshl_b32 s54, s53, 8\nv_mov_b32 v31, s54')

    def dppadd(r,ctl):
        A('s_nop 1\nv_add_f32_dpp v%d, v%d, v%d %s row_mask:0xf bank_mask:0xf'%(r,r,r,ctl))
    def swapadd(r,t,w):
        A('v_mov_b32 v%d, v%d\ns_nop 1\nv_permlane%d_swap_b32 v%d, v%d\nv_add_f32 v%d, v%d, v%d'%(t,r,w,r,t,r,r,t))
    def rbf(r):
        A('v_cvt_pk_bf16_f32 v%d, 0, v%d'%(r,r))
    def layernorm(mode):
        if mode=='x':
            for i in range(8):
                A('v_lshlrev_b32 v%d, 16, v%d\nv_and_b32 v%d, s60, v%d'%(48+2*i,32+i,49+2*i,32+i))
        Q=lambda i:'v[%d:%d]'%(48+2*i,49+2*i)
        P=Q if mode=='x' else (lambda i:'v[%d:%d]'%(216+2*i,217+2*i))
        A('v_pk_add_f32 v[64:65], %s, %s\nv_pk_mul_f32 v[66:67], %s, %s'%(P(0),P(1),P(0),P(0)))
        A('v_pk_add_f32 v[68:69], %s, %s\nv_pk_mul_f32 v[70:71], %s, %s'%(P(2),P(3),P(1),P(1)))
        for i in range(2,8,2):
            if i>2: A('v_pk_add_f32 v[64:65], v[64:65], %s'%P(i))
            A('v_pk_fma_f32 v[66:67], %s, %s, v[66:67]'%(P(i),P(i)))
            if i>2: A('v_pk_add_f32 v[68:69], v[68:69], %s'%P(i+1))
            A('v_pk_fma_f32 v[70:71], %s, %s, v[70:71]'%(P(i+1),P(i+1)))
        A('v_pk_add_f32 v[64:65], v[64:65], v[68:69]\nv_pk_add_f32 v[66:67], v[66:67], v[70:71]')
        A('v_add_f32 v64, v64, v65\nv_add_f32 v66, v66, v67')
        ctl=['row_ror:1','row_ror:2','row_ror:4','row_ror:8'] if mode=='x' else ['quad_perm:[1,0,3,2]','quad_perm:[2,3,0,1]','row_ror:8']
        for c in ctl:
            A('s_nop 0')
            for r in (64,66): A('v_add_f32_dpp v%d, v%d, v%d %s row_mask:0xf bank_mask:0xf'%(r,r,r,c))
        for w in ((16,) if mode=='x' else (16,32)):
            A('v_mov_b32 v65, v64\nv_mov_b32 v67, v66\ns_nop 0')
            A('v_permlane%d_swap_b32 v64, v65\nv_permlane%d_swap_b32 v66, v67'%(w,w))
            A('v_add_f32 v64, v64, v65\nv_add_f32 v66, v66, v67')
        A('v_mul_f32 v64, 0xbb000000, v64\nv_mul_f32 v66, 0x3b000000, v66')
        A('v_cvt_pk_bf16_f32 v68, 0, v64')
        chain=['v_fma_f32 v66, -v64, v64, v66','v_max_f32 v66, 0, v66','v_cvt_pk_bf16_f32 v66, 0, v66','v_add_f32 v66, 0x3727c5ac, v66',
               'v_cvt_pk_bf16_f32 v66, 0, v66','v_sqrt_f32 v66, v66','v_cvt_pk_bf16_f32 v66, 0, v66','v_rcp_f32 v66, v66']
        for i in range(8):
            A(chain[i])
            A('v_pk_add_f32 %s, %s, v[68:69] op_sel_hi:[1,0]'%(Q(i),P(i)))
        for i in range(16): A('v_cvt_pk_bf16_f32 v%d, 0, v%d'%(48+i,48+i))
        nw=2 if mode=='h' else 4
        for i in range(8):
            A('v_pk_mul_f32 %s, %s, v[66:67] op_sel_hi:[1,0]'%(Q(i),Q(i)))
        for i in range(8):
            A('v_cvt_pk_bf16_f32 v%d, v%d, v%d'%(32+i,48+2*i,49+2*i))
            if mode=='h' and i%2==1: A('ds_write_b64 v5, v[%d:%d] offset:%d'%(31+i,32+i,L_XN+256*(i//2)))
            if mode=='x' and i%4==3: A('ds_write_b128 v5, v[%d:%d] offset:%d'%(29+i,32+i,L_XN+512*(i//4)))
    def lds_sync(cnt,sleep=0):
        l=newlab('ls')
        A('s_waitcnt lgkmcnt(0)')
        A('s_mov_b64 exec, 1\nds_add_u32 v11, v12 offset:%d\ns_mov_b64 exec, -1'%(L_CNT+4*cnt))
        lds_wait(11,L_CNT+4*cnt,4,sleep)
    def lds_wait(va,off,val,sleep):
        l=newlab('lw'); d=newlab('ld')
        A('%s:'%l)
        A('ds_read_b32 v13, v%d offset:%d\ns_waitcnt lgkmcnt(0)\nv_readfirstlane_b32 s54, v13\ns_cmp_ge_u32 s54, %s'%(va,off,val))
        if sleep: A('s_cbranch_scc1 %s\ns_sleep %d\ns_branch %s\n%s:'%(d,sleep,l,d))
        else: A('s_cbranch_scc0 %s'%l)
    def progress(p): lds_wait(31,L_PR,p,6)
    def poll(loads,regs,sleep=0,guard=False):
        l=newlab('pl'); d=newlab('pd')
        if guard: sleep=cfg.tsleep
        A('s_mov_b32 s61, %d'%cfg.spin)
        A('%s:'%l)
        for x in loads: A(x)
        import re as _re
        first=True; pend=[]
        for i,x in enumerate(loads):
            m=_re.search(r'v\[(\d+):(\d+)\]',x)
            pend+=list(range(int(m.group(1)),int(m.group(2))+1))
            last=(i==len(loads)-1)
            if len(pend)<4 and not last: continue
            A('s_waitcnt vmcnt(%d)'%(len(loads)-1-i))
            while pend:
                if first:
                    if len(pend)>=3: A('v_max3_u32 v13, v%d, v%d, v%d'%tuple(pend[:3])); pend=pend[3:]
                    else: A('v_max_u32 v13, v%d, v%d'%tuple(pend[:2])); pend=pend[2:]
                    first=False
                elif len(pend)>=2: A('v_max3_u32 v13, v13, v%d, v%d'%tuple(pend[:2])); pend=pend[2:]
                elif last: A('v_max_u32 v13, v13, v%d'%pend[0]); pend=[]
                else: break
        A('v_cmp_eq_u32 vcc, -1, v13')
        A('s_cbranch_vccz %s'%d)
        if sleep: A('s_sleep %d'%sleep)
        A('s_sub_u32 s61, s61, 1\ns_cmp_lg_u32 s61, 0\ns_cbranch_scc1 %s'%l)
        A('%s:'%d)
    def apoll(loads,par):
        import re as _re
        mode,D,sleep=par
        loads=[x.replace(' sc1',' '+cfg.lf) for x in loads]
        l=newlab('al'); d=newlab('ad'); gl=newlab('ag')
        rg=[]
        for x in loads:
            m=_re.search(r'v\[(\d+):(\d+)\]',x); rg.append(list(range(int(m.group(1)),int(m.group(2))+1)))
        def chain(t,r):
            r=list(r)
            if len(r)==2: A('v_max_u32 v%d, v%d, v%d'%(t,r[0],r[1])); return
            A('v_max3_u32 v%d, v%d, v%d, v%d'%(t,r[0],r[1],r[2])); r=r[3:]
            while r:
                if len(r)==1: A('v_max_u32 v%d, v%d, v%d'%(t,t,r[0])); r=[]
                else: A('v_max3_u32 v%d, v%d, v%d, v%d'%(t,t,r[0],r[1])); r=r[2:]
        n=len(loads)
        A('s_mov_b32 s61, %d'%cfg.spin)
        if mode in 'cm':
            A('%s:'%l)
            for x in loads: A(x)
            if sleep: A('s_sleep %d'%sleep)
            A('s_waitcnt vmcnt(%d)'%min(63,n*(D-1)))
            chain(13,sum(rg,[]))
            A('v_cmp_eq_u32 vcc, -1, v13')
            A('s_cbranch_vccz %s'%d)
            if mode=='m': A('s_mov_b64 exec, vcc')
            A('s_sub_u32 s61, s61, 1\ns_cmp_lg_u32 s61, 0\ns_cbranch_scc1 %s'%l)
            A('%s:'%d)
            if mode=='m': A('s_mov_b64 exec, s[4:5]')
        else:
            mk=['s[6:7]','s[8:9]','s[10:11]','s[40:41]','s[42:43]','s[44:45]','s[46:47]','s[62:63]'][:n]
            for m_ in mk: A('s_mov_b64 %s, s[4:5]'%m_)
            A('%s:'%l)
            for x,m_ in zip(loads,mk):
                sk=newlab('as')
                A('s_mov_b64 exec, %s\ns_cbranch_execz %s'%(m_,sk)); A(x); A('%s:'%sk)
            A('s_mov_b64 exec, s[4:5]')
            if sleep: A('s_sleep %d'%sleep)
            A('s_waitcnt vmcnt(%d)'%min(63,n*(D-1)))
            for i in range(n): chain(246+i,rg[i])
            chain(13,[246+i for i in range(n)])
            A('v_cmp_eq_u32 vcc, -1, v13')
            A('s_cbranch_vccz %s'%d)
            for i in range(n): A('v_cmp_eq_u32 %s, -1, v%d'%(mk[i],246+i))
            A('s_sub_u32 s61, s61, 1\ns_cmp_lg_u32 s61, 0\ns_cbranch_scc1 %s'%l)
            A('%s:'%d)
    def spoll(loads,hooks,pre=None,post=None):
        import re as _re
        l=newlab('sl'); d=newlab('sd')
        A('s_mov_b32 s61, %d'%cfg.spin)
        A('%s:'%l)
        if pre: A(pre)
        for x in loads: A(x)
        if post: A(post)
        first=True; pend=[]
        n=len(loads)
        for i,x in enumerate(loads):
            m=_re.search(r'v\[(\d+):(\d+)\]',x)
            pend+=list(range(int(m.group(1)),int(m.group(2))+1))
            if i<n-1 and i not in hooks: continue
            A('s_waitcnt vmcnt(%d)'%(n-1-i))
            chk=[]
            while pend:
                if first:
                    chk.append('v_max3_u32 v13, v%d, v%d, v%d'%tuple(pend[:3])); pend=pend[3:]; first=False
                elif len(pend)>=2: chk.append('v_max3_u32 v13, v13, v%d, v%d'%tuple(pend[:2])); pend=pend[2:]
                elif i==n-1: chk.append('v_max_u32 v13, v13, v%d'%pend[0]); pend=[]
                else: break
            if i==n-1: chk.append('v_cmp_eq_u32 vcc, -1, v13')
            h=list(hooks.get(i,[]))
            while h or chk:
                if h: A(h.pop(0))
                if chk: A(chk.pop(0))
        A('s_cbranch_vccz %s'%d)
        A('s_sub_u32 s61, s61, 1\ns_cmp_lg_u32 s61, 0\ns_cbranch_scc1 %s'%l)
        A('%s:'%d)
    def gate(n):
        if not n: return
        l=newlab('ga'); d=newlab('gb')
        A('s_mov_b32 s61, %d\n%s:\nglobal_load_dword v13, v14, %s sc1\ns_waitcnt vmcnt(0)\nv_cmp_ne_u32 vcc, -1, v13\ns_nop 1\ns_bcnt1_i32_b64 s6, vcc\ns_cmp_ge_u32 s6, %d\ns_cbranch_scc1 %s'%(cfg.spin,l,WS,n,d))
        A('s_sleep 2\ns_sub_u32 s61, s61, 1\ns_cmp_lg_u32 s61, 0\ns_cbranch_scc1 %s\n%s:'%(l,d))
    def flagpoll(voff,execmask):
        l=newlab('fl'); d=newlab('fd')
        A('s_mov_b32 s61, %d'%cfg.spin)
        A('s_mov_b64 exec, %s'%execmask)
        A('%s:'%l)
        A('global_load_dwordx4 v[72:75], v%d, %s sc1\ns_waitcnt vmcnt(0)'%(voff,WS))
        A('v_min3_u32 v13, v72, v73, v74\nv_min_u32 v13, v13, v75\nv_cmp_eq_u32 vcc, 0, v13\ns_cbranch_vccz %s'%d)
        A('s_sleep 16')
        A('s_sub_u32 s61, s61, 1\ns_cmp_lg_u32 s61, 0\ns_cbranch_scc1 %s'%l)
        A('%s:'%d)
        A('s_mov_b64 exec, -1')
    def CLASS():
        A('s_cmp_lg_u32 s53, 0\ns_cbranch_scc1 L_nofc')
        progress(cfg.pw0)
        flagpoll(79,'-1')
        A('ds_write_b128 v1, v[72:75] offset:%d'%L_DP)
        A('v_add_u32 v7, 256, v79\ns_mov_b32 s6, 0x03030303\ns_mov_b32 s7, s6\ns_waitcnt lgkmcnt(0)')
        flagpoll(7,'s[6:7]')
        A('s_and_b32 s54, s48, 3\ns_lshl_b32 s54, s54, 7\ns_lshl_b32 s55, s49, 2\ns_add_u32 s54, s54, s55\nv_mov_b32 v7, s54')
        A('s_mov_b32 s6, 0')
        for r in range(72,76):
            A('v_and_b32 v13, 2, v%d\nv_cmp_ne_u32 vcc, 0, v13\ns_nop 1\ns_bcnt1_i32_b64 s7, vcc\ns_add_u32 s6, s6, s7'%r)
        A('s_waitcnt lgkmcnt(0)\nds_read_b32 v13, v7 offset:%d\ns_waitcnt lgkmcnt(0)\nv_readfirstlane_b32 s7, v13'%L_DP)
        if cfg.diag: A('s_mov_b32 s9, s6')
        A('s_cmp_ge_u32 s6, 32\ns_cselect_b32 s6, 1, 0')
        if cfg.par is not None: A('s_mov_b32 s6, %d'%cfg.par)
        A('s_xor_b32 s7, s7, s48\ns_bfe_u32 s7, s7, 0x10002\ns_xor_b32 s7, s7, s6\ns_lshl_b32 s7, s7, 2\ns_lshl_b32 s6, s6, 1\ns_or_b32 s6, s6, s7\ns_or_b32 s6, s6, 1')
        A('v_mov_b32 v13, s6\nds_write_b32 v11, v13 offset:%d'%(L_CNT+8))
        if cfg.diag: A('s_cmp_lg_u32 s2, 0\ns_cbranch_scc1 L_nofc\nv_mov_b32 v13, s9\nv_mov_b32 v7, 8\nglobal_store_dword v7, v13, %s'%DBG)
        A('L_nofc:')
        lds_wait(11,L_CNT+8,1,6)
        A('s_bfe_u32 s11, s54, 0x10002\ns_bfe_u32 s54, s54, 0x10001\ns_xor_b32 s10, s10, s54')
    def tr128(dst,base):
        for s_ in range(4):
            A('ds_read_b64_tr_b16 v[%d:%d], v8 offset:%d'%(dst+4*s_,dst+4*s_+1,base+4096*s_))
            A('ds_read_b64_tr_b16 v[%d:%d], v8 offset:%d'%(dst+4*s_+2,dst+4*s_+3,base+4096*s_+512))

    A('v_mov_b32 v76, 0')
    A('s_cmp_lg_u32 s13, 0\ns_cbranch_scc1 L_noln')
    A('s_waitcnt vmcnt(9)')
    stamp(1)
    A('s_cmp_lg_u32 s53, 3\ns_cbranch_scc1 L_nog0\ns_mov_b64 exec, 1\nglobal_load_dword v76, v11, %s sc1\ns_mov_b64 exec, -1\nL_nog0:'%DBG)
    layernorm('x')
    A('L_noln:')
    A('s_waitcnt vmcnt(0)')
    lds_sync(0)
    stamp(2)
    A('s_lshl_b32 s54, s48, 2\ns_add_u32 s54, s54, s68\ns_lshl_b32 s54, s54, 9\ns_lshl_b32 s55, s69, 2\ns_add_u32 s54, s54, s55\ns_add_u32 s54, s54, s3\nv_mov_b32 v6, s54')
    A('s_getreg_b32 s10, hwreg(HW_REG_XCC_ID)\ns_bfe_u32 s10, s10, 0x10002')
    A('s_cmp_lg_u32 s53, 3\ns_cbranch_scc1 L_noflag')
    A('s_mov_b64 exec, 1\nv_cmp_eq_u32 vcc, 0, v76\ns_cbranch_vccz L_god')
    A('s_mov_b32 s61, %d\nL_go:\nglobal_load_dword v13, v11, %s sc1\ns_waitcnt vmcnt(0)\nv_cmp_eq_u32 vcc, 0, v13\ns_cbranch_vccz L_god'%(cfg.spin,DBG))
    A('s_sleep 8\ns_sub_u32 s61, s61, 1\ns_cmp_lg_u32 s61, 0\ns_cbranch_scc1 L_go\nL_god:')
    A('s_lshl_b32 s54, s10, 2\ns_or_b32 s54, s54, 1\nv_mov_b32 v7, s54\nglobal_store_dword v6, v7, %s sc1'%WS)
    A('s_mov_b64 exec, -1')
    A('L_noflag:')
    A('s_cmp_lg_u32 s13, 0\ns_cbranch_scc1 L_noq')
    for h in range(2):
        tr128(80+16*h,L_WA+16384*h)
        for s_ in range(4):
            A('ds_read_b128 v[%d:%d], v10 offset:%d'%(112+16*h+4*s_,115+16*h+4*s_,L_XN+256*h+64*s_))
        A('s_waitcnt lgkmcnt(0)')
    for s_ in range(8):
        A('v_mfma_f32_16x16x32_bf16 v[48:51], v[%d:%d], v[%d:%d], %s'%(80+4*s_,83+4*s_,112+4*s_,115+4*s_,'0' if s_==0 else 'v[48:51]'))
    A('s_mov_b32 exec_lo, 0x00ff00ff\ns_mov_b32 exec_hi, 0x00ff00ff')
    A('s_nop 5')
    A('global_store_dwordx4 v14, v[48:51], %s sc1'%WS)
    A('s_mov_b64 exec, -1')
    A('L_noq:')
    stamp(3)
    A('s_mov_b64 exec, 1\nds_add_u32 v11, v12 offset:%d\ns_mov_b64 exec, -1'%(L_CNT+12))
    A('s_cmp_eq_u32 s53, 0\ns_cbranch_scc1 L_qg\ns_cmp_lg_u32 s53, 1\ns_cbranch_scc1 L_qdone\ns_cmp_ge_u32 s49, 8\ns_cbranch_scc1 L_qdone')
    A('s_mov_b32 s6, 0')
    for i in range(cfg.NP):
        for c in ((0,1) if i%2==0 else (1,0)):
            l=newlab('pb'); d=newlab('pe')
            A('s_add_u32 s7, s9, %d\ns_mov_b32 s8, 0\ns_mov_b32 s61, 0\ns_load_dword s8, %s, s7'%(i*16384+c*8192,WS))
            A('%s:\ns_add_u32 s61, s61, 1\ns_cmp_gt_u32 s61, 0xffff\ns_cbranch_scc1 %s\ns_cmp_eq_u32 s8, 0\ns_cbranch_scc1 %s\n%s:\ns_waitcnt lgkmcnt(0)'%(l,d,l,d))
            if i>0: A('%s s6, s6, s61'%('s_add_i32' if c==0 else 's_sub_i32'))
    A('s_cmp_gt_i32 s6, 0\ns_cselect_b32 s6, 1, 0')
    A('s_xor_b32 s6, s6, s10\ns_lshl_b32 s6, s6, 1\ns_or_b32 s6, s6, 1\nv_mov_b32 v7, s6')
    lds_wait(11,L_CNT+12,4,2)
    A('s_mov_b64 exec, 1\nglobal_store_dword v6, v7, %s offset:256 sc1\ns_mov_b64 exec, -1\ns_branch L_qdone'%WS)
    A('L_qg:')
    A('v_and_b32 v6, 3, v0\nv_lshlrev_b32 v6, 9, v6\nv_lshrrev_b32 v14, 2, v0\nv_lshl_add_u32 v6, v14, 5, v6')
    A('s_lshl_b32 s54, s50, 12\ns_add_u32 s54, s54, %d\nv_add_u32 v6, s54, v6'%QP)
    A('s_and_b32 s54, s50, 7\ns_lshl_b32 s54, s54, 11\nv_add_u32 v7, s54, v79')
    lds_wait(11,L_CNT+12,4,2)
    progress(cfg.pq)
    if not cfg.skipF: flagpoll(7,'0xff')
    stamp(4)
    if not cfg.skipG: poll(['global_load_dwordx4 v[%d:%d], v6, %s offset:%d sc1'%(32+8*kq+4*h,35+8*kq+4*h,WS,2048*kq+16*h) for kq in range(2) for h in range(2)],None,sleep=8)
    for p in range(4):
        A('v_pk_add_f32 v[%d:%d], v[%d:%d], v[%d:%d]'%(32+2*p,33+2*p,32+2*p,33+2*p,40+2*p,41+2*p))
    for p in range(4):
        A('v_cvt_pk_bf16_f32 v%d, v%d, v%d'%(32+p,32+2*p,33+2*p))
    A('ds_write_b128 v1, v[32:35] offset:%d'%L_QL)
    stamp(5)
    A('s_waitcnt lgkmcnt(0)')
    if cfg.qflag: A('ds_write_b32 v11, v12 offset:%d'%(L_CNT+16))
    A('L_qdone:')
    if cfg.touch:
        A('s_lshl_b32 s54, s50, 21\ns_load_dword s4, %s, s54'%VP)
        A('s_load_dword s6, %s, 0\ns_load_dword s7, %s, 0\ns_load_dword s8, %s, 0'%(WG,WU,WD))
        A('s_lshl_b32 s54, s48, 19\ns_load_dword s9, %s, s54'%WO)
        A('s_waitcnt lgkmcnt(0)')
    A('s_setprio 0')
    if not cfg.qflag: A('s_barrier')

    A('s_mov_b32 s70, 0\ns_and_b32 s54, s49, 0x13\ns_cmp_eq_u32 s54, s51\ns_cselect_b32 s70, 2, s70')
    A('s_cmp_lt_u32 s48, 4\ns_cselect_b32 s6, 16, 12\ns_cselect_b32 s7, 8, 6\ns_cselect_b32 s8, 0, 8\ns_mul_i32 s14, s48, s7\ns_add_u32 s14, s14, s8')
    if cfg.helper: A('s_and_b32 s54, s49, 0x13\ns_xor_b32 s54, s54, 2\ns_cmp_eq_u32 s54, s51\ns_cselect_b32 s9, s49, 99\ns_cmp_lt_u32 s9, s6\ns_cselect_b32 s70, 4, s70')
    A('s_sub_u32 s54, s49, 16\ns_cmp_lt_u32 s54, s6\ns_cselect_b32 s70, 1, s70')
    A('s_xor_b32 s55, s2, s49\ns_and_b32 s55, s55, 1\ns_cselect_b32 s70, 3, s70')
    A('s_bfe_u32 s54, s49, 0x30001\ns_add_u32 s14, s14, s54')
    A('s_lshr_b32 s15, s49, 2\ns_add_u32 s54, s48, %d\ns_and_b32 s54, s54, 7\ns_lshl_b32 s54, s54, 2\ns_add_u32 s15, s15, s54'%cfg.crot)
    CLASS()
    A('s_lshr_b32 s13, s2, 1\ns_andn2_b32 s13, s13, 2\ns_lshl_b32 s54, s11, 1\ns_or_b32 s13, s13, s54')
    A('s_and_b32 s54, s48, 3\ns_lshl_b32 s54, s54, 2\ns_add_u32 s67, s54, s68\ns_lshl_b32 s54, s11, 4\ns_add_u32 s67, s67, s54')
    A('s_bfe_u32 s69, s49, 0x20001')
    A('v_and_b32 v6, 3, v0\nv_lshlrev_b32 v6, 2, v6\nv_lshrrev_b32 v7, 4, v0\nv_add_u32 v6, v6, v7')
    A('v_bfe_u32 v7, v0, 2, 1')
    A('v_lshrrev_b32 v24, 3, v0\nv_lshlrev_b32 v24, 13, v24\nv_and_b32 v13, 7, v0\nv_lshl_add_u32 v24, v13, 3, v24')
    A('s_and_b32 s54, s13, 31\ns_lshl_b32 s54, s54, 8\ns_lshr_b32 s55, s13, 5\ns_lshl_b32 s55, s55, 6\ns_add_u32 s54, s54, s55\ns_add_u32 s54, s54, %d\nv_add_u32 v24, s54, v24\ns_mov_b32 s55, s13'%HB)
    A('v_lshlrev_b32 v6, 1, v6\nv_lshl_add_u32 v6, v7, 10, v6\ns_lshr_b32 s54, s55, 5\ns_lshl_b32 s54, s54, 11\ns_and_b32 s55, s55, 31\ns_lshl_b32 s55, s55, 5\ns_add_u32 s54, s54, s55\nv_add_u32 v6, s54, v6')
    A('global_load_ushort v16, v6, %s'%X)
    def paced(k,n,line):
        if cfg.nb:
            nb=min(cfg.nb,n); span=16//nb
            bi=lambda k:(k*nb)//n
            if k==0 or bi(k)!=bi(k-1):
                A('s_lshr_b32 s55, s49, 1\ns_and_b32 s55, s55, %d\ns_add_u32 s55, s55, %d'%(span-1,cfg.pw0+1+span*bi(k)))
                progress('s55')
            assert cfg.pw0+16<cfg.NS-1
            A(line); return
        f=lambda k: cfg.pw0+(k*(cfg.pw1-cfg.pw0))//n
        if k==0 or f(k)!=f(k-1): progress(f(k))
        assert f(k)<cfg.NS
        A(line)
    def dma1(k):
        i=k//2
        return ('v_add_u32 v7, %d, v6\n'%(i*16*3584))+'s_add_u32 m0, s71, %d\ns_nop 0\nglobal_load_lds_dwordx4 v7, %s %s'%(L_WA+32768*(k&1)+i*1024,WU if k&1 else WG,cfg.ff)
    def dma2(i):
        return ('v_add_u32 v7, %d, v6\n'%(i*0x8000))+'s_add_u32 m0, s71, %d\ns_nop 0\nglobal_load_lds_dwordx4 v7, %s %s'%(L_WA+i*1024,WD,cfg.ff)
    l1=newlab('w1'); l2=newlab('w2'); le=newlab('we')
    A('s_cmp_eq_u32 s70, 0\ns_cbranch_scc1 %s\ns_cmp_eq_u32 s70, 2\ns_cbranch_scc1 %s\ns_cmp_lg_u32 s70, 3\ns_cbranch_scc1 %s'%(le,l2,l1))
    A('s_lshl_b32 s54, s67, 7\ns_lshl_b32 s55, s53, 1\ns_add_u32 s54, s54, s55\ns_lshl_b32 s54, s54, 10\ns_lshl_b32 s55, s69, 8\ns_add_u32 s54, s54, s55')
    A('v_lshrrev_b32 v6, 4, v0\nv_lshlrev_b32 v6, 13, v6\nv_and_b32 v7, 15, v0\nv_lshl_add_u32 v6, v7, 4, v6\nv_add_u32 v6, s54, v6')
    A('s_lshl_b32 s71, s53, 13')
    def dmaw(i):
        return 'v_add_u32 v7, %d, v6\ns_add_u32 m0, s71, %d\ns_nop 0\nglobal_load_lds_dwordx4 v7, %s %s'%((32*(i&3)+(i>>2))*1024,L_WA+i*1024,WO,cfg.wf)
    for i in range(0 if cfg.noW else cfg.EW): paced(i,cfg.EW,dmaw(i))
    A('s_branch %s'%le)
    A('%s:'%l1)
    A('s_lshl_b32 s54, s14, 6')
    A('s_lshl_b32 s55, s53, 7\nv_lshrrev_b32 v6, 2, v0\nv_add_u32 v6, s55, v6\nv_mul_u32_u24 v6, 3584, v6\nv_and_b32 v7, 3, v0\nv_lshl_add_u32 v6, v7, 4, v6\nv_add_u32 v6, s54, v6')
    A('s_lshl_b32 s71, s53, 13')
    A('s_cmp_eq_u32 s70, 4\ns_cbranch_scc1 %s'%le)
    for k in range(cfg.E1): paced(k,cfg.E1,dma1(k))
    A('s_branch %s'%le)
    A('%s:'%l2)
    A('s_mul_i32 s54, s53, 448\nv_lshrrev_b32 v6, 1, v0\nv_add_u32 v6, s54, v6\nv_lshlrev_b32 v6, 10, v6')
    A('v_and_b32 v7, 1, v0\nv_lshl_add_u32 v6, v7, 4, v6\ns_lshl_b32 s54, s15, 5\nv_add_u32 v6, s54, v6')
    A('s_mul_i32 s71, s53, 14336')
    for k in range(cfg.E2): paced(k,cfg.E2,dma2(k))
    A('%s:'%le)
    A('s_waitcnt vmcnt(0)')
    A('v_lshlrev_b32 v16, 16, v16')
    lds_sync(1,sleep=4)
    stamp(6)
    l1=newlab('r1'); l2=newlab('r2'); le=newlab('re')
    A('v_mov_b32 v26, 0\nv_mov_b32 v27, 0\nv_mov_b32 v28, 0\nv_mov_b32 v29, 0')
    A('s_cmp_eq_u32 s70, 1\ns_cbranch_scc1 %s\ns_cmp_eq_u32 s70, 2\ns_cbranch_scc1 %s'%(l1,l2))
    A('v_lshrrev_b32 v8, 4, v0\nv_lshlrev_b32 v8, 11, v8\nv_bfe_u32 v7, v0, 2, 2\nv_lshl_add_u32 v8, v7, 8, v8\nv_and_b32 v7, 3, v0\nv_lshl_add_u32 v8, v7, 3, v8')
    A('s_lshl_b32 s54, s53, 6\ns_add_u32 s54, s54, %d\nv_add_u32 v8, s54, v8'%L_WA)
    def trw():
        for t in range(2):
            for s_ in range(4):
                r=80+16*t+4*s_
                A('ds_read_b64_tr_b16 v[%d:%d], v8 offset:%d'%(r,r+1,8192*s_+32*t))
                A('ds_read_b64_tr_b16 v[%d:%d], v8 offset:%d'%(r+2,r+3,8192*s_+32*t+1024))
            if t==0 or cfg.EW==8: A('s_waitcnt lgkmcnt(0)')
    if cfg.EW==8: trw()
    A('s_branch %s'%le)
    A('%s:'%l1)
    A('v_lshrrev_b32 v8, 4, v0\nv_lshlrev_b32 v8, 9, v8\nv_bfe_u32 v7, v0, 2, 2\nv_lshl_add_u32 v8, v7, 6, v8')
    A('v_and_b32 v7, 1, v0\nv_lshl_add_u32 v8, v7, 3, v8\nv_bfe_u32 v7, v0, 1, 1\nv_lshl_add_u32 v8, v7, 15, v8\ns_add_u32 s54, s71, %d\nv_add_u32 v8, s54, v8'%L_WA)
    A('s_mul_i32 s55, s14, 147\ns_lshr_b32 s55, s55, 11\ns_mul_i32 s55, s55, %d'%(16384-7168))
    A('s_lshl_b32 s54, s14, 2\ns_add_u32 s54, s54, s53\ns_lshl_b32 s54, s54, 7\ns_add_u32 s54, s54, s55\ns_add_u32 s54, s54, %d'%AB)
    A('v_and_b32 v27, 0x70, v1\nv_lshrrev_b32 v7, 4, v0\nv_lshl_add_u32 v27, v7, 16, v27\nv_bfe_u32 v7, v0, 3, 1\nv_lshlrev_b32 v7, 13, v7\nv_add3_u32 v27, v27, v7, s54')
    A('s_and_b32 s55, s48, %d\ns_lshl_b32 s55, s55, 14\ns_lshl_b32 s54, s10, 13\ns_add_u32 s54, s54, s55\ns_lshl_b32 s55, s53, 11\ns_add_u32 s54, s54, s55\ns_add_u32 s54, s54, %d'%(cfg.nH//2-1,HB))
    A('v_and_b32 v4, 7, v0\nv_lshlrev_b32 v4, 5, v4\nv_lshrrev_b32 v7, 5, v0\nv_lshl_add_u32 v4, v7, 8, v4\nv_and_b32 v7, 16, v0\nv_add3_u32 v4, v4, v7, s54')
    A('s_mul_i32 s54, s53, 5120\nv_add_u32 v10, s54, v1')
    A('v_and_b32 v5, 0x17, v0\nv_lshlrev_b32 v5, 4, v5\nv_bfe_u32 v7, v0, 3, 1\nv_lshl_add_u32 v5, v7, 3, v5\nv_lshrrev_b32 v7, 5, v0\nv_lshl_add_u32 v5, v7, 2, v5\ns_lshl_b32 s54, s53, 10\nv_add_u32 v5, s54, v5')
    A('v_and_b32 v9, 7, v0\nv_lshlrev_b32 v9, 4, v9\nv_bfe_u32 v7, v0, 2, 1\nv_lshl_add_u32 v9, v7, 8, v9\nv_and_b32 v7, 3, v0\nv_lshl_add_u32 v9, v7, 2, v9')
    for p in range(4): A('v_add_u32 v%d, %d, v5\nv_add_u32 v%d, %d, v9'%(160+p,L_XN+5120*p,164+p,L_XN+5120*p+4096))
    A('s_branch %s'%le)
    A('%s:'%l2)
    A('v_lshrrev_b32 v8, 4, v0\nv_lshlrev_b32 v8, 9, v8\nv_bfe_u32 v7, v0, 1, 1\nv_lshl_add_u32 v8, v7, 8, v8\nv_bfe_u32 v7, v0, 2, 2\nv_lshl_add_u32 v8, v7, 5, v8')
    A('v_and_b32 v7, 1, v0\nv_lshl_add_u32 v8, v7, 3, v8\ns_add_u32 s55, s71, %d\nv_add_u32 v8, s55, v8'%L_WA)
    A('v_bfe_u32 v26, v0, 2, 1\nv_lshlrev_b32 v26, 10, v26\nv_bfe_u32 v7, v0, 1, 1\nv_lshl_add_u32 v26, v7, 8, v26\nv_lshrrev_b32 v7, 3, v0\nv_lshl_add_u32 v26, v7, 4, v26\nv_and_b32 v7, 1, v0\nv_lshl_add_u32 v26, v7, 3, v26')
    A('s_and_b32 s55, s48, %d\ns_lshl_b32 s55, s55, 16\ns_lshl_b32 s54, s53, 14\ns_add_u32 s54, s54, s55\ns_lshl_b32 s55, s10, 13\ns_add_u32 s54, s54, s55\ns_add_u32 s54, s54, %d\nv_add_u32 v27, s54, v1'%(cfg.nA//2-1,AB+3072))
    A('s_mov_b32 s54, s15\ns_lshl_b32 s55, s54, 5')
    A('v_lshrrev_b32 v28, 3, v0\nv_lshlrev_b32 v28, 10, v28\nv_and_b32 v7, 7, v0\nv_lshl_add_u32 v28, v7, 2, v28\nv_add_u32 v28, s55, v28')
    A('s_lshl_b32 s54, s54, 8\ns_and_b32 s55, s48, %d\ns_lshl_b32 s55, s55, 14\ns_add_u32 s54, s54, s55\ns_lshl_b32 s55, s10, 13\ns_add_u32 s54, s54, s55\ns_add_u32 s54, s54, %d'%(cfg.nH//2-1,HB))
    A('v_lshl_add_u32 v29, v0, 2, s54')
    A('s_lshl_b32 s54, s53, 11\nv_add_u32 v10, s54, v1')
    A('%s:'%le)
    A('s_lshl_b32 s54, s53, 9\nv_add_u32 v17, s54, v3')
    A('s_and_b32 s54, s50, 3\ns_lshl_b32 s54, s54, 2\ns_add_u32 s54, s54, s53\ns_mul_i32 s54, s54, 49152\ns_bfe_u32 s55, s50, 0x10002\ns_lshl_b32 s55, s55, 13\ns_add_u32 s54, s54, s55')
    A('s_lshr_b32 s6, s50, 3\ns_mul_i32 s7, s6, 11\ns_lshr_b32 s7, s7, 5\ns_mul_i32 s7, s7, %d\ns_lshl_b32 s6, s6, 2\ns_add_u32 s6, s6, s51\ns_mul_i32 s6, s6, %d'%(16384-12*OPS,OPS))
    A('s_add_u32 s54, s54, s6\ns_add_u32 s54, s54, s7\ns_add_u32 s54, s54, %d\nv_add_u32 v18, s54, v1'%OP)
    A('s_and_b32 s54, s67, 15\ns_mul_i32 s54, s54, 49152\ns_lshl_b32 s55, s11, 13\ns_add_u32 s54, s54, s55\ns_add_u32 s54, s54, %d'%OP)
    A('v_mul_u32_u24 v7, 11, v2\nv_lshrrev_b32 v7, 5, v7\nv_mul_u32_u24 v7, %d, v7\nv_mul_u32_u24 v25, %d, v2\nv_add3_u32 v25, v25, v7, s54\nv_add_u32 v19, v25, v3'%(16384-12*OPS,4*OPS))
    if cfg.G1 or cfg.G2:
        A('v_bfe_u32 v14, v0, 2, 3\nv_mul_u32_u24 v7, 11, v14\nv_lshrrev_b32 v7, 5, v7\nv_mul_u32_u24 v7, %d, v7\nv_and_b32 v14, 31, v0\nv_mul_u32_u24 v14, %d, v14\nv_add_u32 v14, v14, v7'%(16384-12*OPS,OPS))
        A('v_lshrrev_b32 v7, 5, v0\nv_add_u32 v7, s48, v7\nv_and_b32 v7, 3, v7\nv_mul_u32_u24 v7, %d, v7\ns_lshl_b32 s54, s10, 13\ns_add_u32 s54, s54, %d\nv_add3_u32 v14, v14, v7, s54'%(4*49152,OP+512))
    A('s_lshl_b32 s54, s53, 5\nv_mov_b32 v30, s54')
    A('v_mul_u32_u24 v20, %d, v2\nv_lshrrev_b32 v7, 1, v3\nv_add_u32 v20, v20, v7'%XOS)
    A('v_and_b32 v21, 7, v0\nv_mul_u32_u24 v21, %d, v21\nv_add_u32 v21, v21, v15'%XOS)
    A('s_lshl_b32 s54, s69, 2\ns_add_u32 s54, s54, s53\ns_lshl_b32 s54, s54, 13\ns_add_u32 s54, s54, %d'%(WP+2048))
    A('s_lshl_b32 s55, s69, 1\ns_add_u32 s55, s55, s67' if cfg.wrot else 's_mov_b32 s55, s67')
    A('v_bfe_u32 v22, v0, 1, 2')
    A('v_lshl_add_u32 v7, v22, 3, s55' if cfg.wrot else 'v_mov_b32 v7, s55')
    A('v_and_b32 v7, 31, v7\nv_lshlrev_b32 v22, 17, v22\nv_lshl_add_u32 v22, v7, 7, v22\nv_and_b32 v7, 1, v0\nv_lshl_add_u32 v22, v7, 6, v22\nv_add3_u32 v22, v22, v15, s54')
    A('s_lshl_b32 s54, s13, 12\ns_add_u32 s54, s54, %d\nv_add_u32 v23, s54, v1'%WP)
    def guarded(lines):
        A(lines)
    def drychk():
        pass
    for r in range(192,246): A('v_mov_b32 v%d, -1'%r)
    A('s_waitcnt lgkmcnt(0)')
    A('s_mov_b64 vcc, 0\ns_mov_b64 s[4:5], %d\ns_mov_b64 exec, s[4:5]'%(0 if cfg.warm else -1))
    wpl=['global_load_dwordx4 v[%d:%d], v23, %s offset:%d sc1'%(216+4*t,219+4*t,WS,1024*t) for t in range(4)]
    opl=['global_load_dwordx2 v[%d:%d], v25, %s offset:%d sc1'%(208+2*s_,209+2*s_,WS,OPS*s_+512) for s_ in range(4)]+['global_load_dwordx4 v[%d:%d], v19, %s offset:%d sc1'%(192+4*s_,195+4*s_,WS,OPS*s_) for s_ in range(4)]
    hbl=['global_load_dwordx4 v[%d:%d], v4, %s offset:%d sc1'%(216+4*t,219+4*t,WS,1024*t) for t in range(4)]
    abl=['global_load_dwordx4 v[%d:%d], v27, %s offset:%d sc1'%(216+4*t,219+4*t,WS,1024*t-3072) for t in range(7)]
    if cfg.pre:
        A('s_cmp_lg_u32 s70, 3\ns_cbranch_scc1 L_pre1')
        if cfg.pre&2: A('\n'.join(opl))
        A('s_cmp_lg_u32 s53, 0\ns_cbranch_scc1 L_pre3')
        if cfg.pre&1: A('\n'.join(wpl))
        A('s_branch L_pre3\nL_pre1:')
        if cfg.pre&4:
            A('s_cmp_lg_u32 s70, 1\ns_cbranch_scc1 L_pre2'); A('\n'.join(hbl)); A('L_pre2:\ns_cmp_lg_u32 s70, 2\ns_cbranch_scc1 L_pre3'); A('\n'.join(abl))
        A('L_pre3:')
    if cfg.disp:
        A('s_cmp_lg_u32 s53, 2\ns_cbranch_scc1 L_tail')
        A('s_lshl_b32 s54, s50, %d\ns_add_u32 s54, s54, %d\ns_add_u32 s40, s38, s54\ns_addc_u32 s41, s39, 0'%(cfg.cs,CTR))
        lds_wait(31,L_PR,cfg.NS-1,2)
        thr,small,keep2=cfg.gd or (0,cfg.disp,cfg.disp-cfg.LA)
        A('s_mov_b32 s42, 0\ns_mov_b32 s44, %d\ns_mov_b32 s45, %d'%(cfg.disp,cfg.disp-cfg.LA))
        A('L_dsp:')
        A('s_mov_b32 s43, s44\ns_atomic_add s43, s[40:41], 0x0 glc\nv_add_lshl_u32 v7, v0, s42, 2\ns_bfm_b64 s[46:47], s44, 0\ns_waitcnt lgkmcnt(0)\ns_add_u32 s43, s43, 1\ns_min_u32 s43, s43, 4096\ns_add_u32 s43, s43, %d\nv_add_u32 v13, s43, v0'%(cfg.NS*16))
        A('s_add_u32 s55, s43, s44\ns_cmp_ge_u32 s55, 512\ns_cbranch_scc1 L_dspd')
        A('s_mov_b64 exec, s[46:47]\nds_write_b32 v7, v13 offset:%d\ns_mov_b64 exec, -1'%(L_CNT+64))
        A('s_add_u32 s42, s42, s44\ns_cmp_ge_u32 s43, %d\ns_cselect_b32 s44, %d, s44\ns_cselect_b32 s45, %d, s45\ns_sub_i32 s55, s42, s45\ns_max_i32 s55, s55, 0'%(512-thr,small,keep2))
        lds_wait(11,L_CNT+24,'s55',1)
        A('s_branch L_dsp')
        A('L_dspd:')
        A('s_mov_b64 exec, 0xff\nds_write_b32 v7, v13 offset:%d\ns_mov_b64 exec, -1'%(L_CNT+64))
        A('s_waitcnt lgkmcnt(0)')
    A('L_tail:')
    stamp(7)
    guarded('s_barrier')
    def wstep(b0,s0,w):
        o=[]
        for half in range(2):
            d='v[%d:%d]'%(b0+2*half,b0+2*half+1); src='v[%d:%d]'%(s0+4*w+2*half,s0+4*w+2*half+1); f='v[%d:%d]'%(72+2*(w//2),73+2*(w//2))
            if w==0: o.append('v_pk_mul_f32 %s, %s, %s op_sel_hi:[1,0]'%(d,src,f))
            elif w%2==0: o.append('v_pk_fma_f32 %s, %s, %s, %s op_sel_hi:[1,0,1]'%(d,src,f,d))
            else: o.append('v_pk_fma_f32 %s, %s, %s, %s op_sel:[0,1,0] op_sel_hi:[1,1,1]'%(d,src,f,d))
        return o
    def wsum2(b0,s0):
        for w in range(4): A('\n'.join(wstep(b0,s0,w)))
    def wsum(b0,half,s0=None):
        d='v[%d:%d]'%(b0+2*half,b0+2*half+1)
        s0=s0 or b0
        for w in range(4):
            src='v[%d:%d]'%(s0+4*w+2*half,s0+4*w+2*half+1)
            f='v[%d:%d]'%(72+2*(w//2),73+2*(w//2))
            if w==0: A('v_pk_mul_f32 %s, %s, %s op_sel_hi:[1,0]'%(d,src,f))
            elif w%2==0: A('v_pk_fma_f32 %s, %s, %s, %s op_sel_hi:[1,0,1]'%(d,src,f,d))
            else: A('v_pk_fma_f32 %s, %s, %s, %s op_sel:[0,1,0] op_sel_hi:[1,1,1]'%(d,src,f,d))
    if cfg.gleak is not None:
        k,lo,hi,msk=cfg.gleak
        A('s_cbranch_execz L_nogl\ns_cmp_lg_u32 s53, 0\ns_cbranch_scc1 L_nogl')
        if k==8: stamp(8); A('s_waitcnt lgkmcnt(0)')
        if k==200: A('s_getreg_b32 s72, hwreg(HW_REG_XCC_ID)\ns_sub_u32 s72, s72, s48\ns_and_b32 s72, s72, 7\ns_mul_i32 s72, s72, 50\nv_mov_b32 v33, s72')
        elif k>=100: A('v_mov_b32 v32, %d\nds_read_b32 v33, v32 offset:%d\ns_waitcnt lgkmcnt(0)'%(4*(k-100),L_ST))
        else: A('v_mov_b32 v33, s%d'%(72+2*k))
        A('v_not_b32 v33, v33\nv_mov_b32 v34, s72\nv_mov_b32 v32, 0x3b0000')
        A('s_mov_b64 exec, 1')
        if k!=8: A('global_atomic_umin v32, v34, %s'%WS)
        A('s_and_b32 s54, s2, %d\ns_sub_u32 s54, s54, %d\ns_cmp_ge_u32 s54, %d\ns_cbranch_scc1 L_nogl2'%(msk,lo,hi-lo))
        A('global_atomic_umin v32, v33, %s offset:256'%WS)
        A('L_nogl2:\ns_mov_b64 exec, -1\n'+('s_nop 2' if k==8 else 's_waitcnt vmcnt(0)'))
        A('L_nogl:')
    A('ds_read_b128 v[64:67], v30 offset:%d\nds_read_b128 v[68:71], v30 offset:%d'%(L_MLW,L_MLW+16))
    for w in range(4):
        A('ds_read_b128 v[%d:%d], v17 offset:%d'%(32+4*w,35+4*w,L_OW+2048*w))
    stamp(8)
    if cfg.notail: A('s_branch L_fin')
    A('s_and_b32 exec_hi, s4, 1')
    A('s_waitcnt lgkmcnt(%d)'%(0 if cfg.diag else 4))
    A('v_max3_f32 v76, v64, v65, v66\nv_max_f32 v76, v76, v67')
    A('v_pk_add_f32 v[72:73], v[64:65], v[76:77] op_sel_hi:[1,0] neg_lo:[0,1] neg_hi:[0,1]')
    A('v_pk_add_f32 v[74:75], v[66:67], v[76:77] op_sel_hi:[1,0] neg_lo:[0,1] neg_hi:[0,1]')
    for i in range(4): A('v_exp_f32 v%d, v%d'%(72+i,72+i))
    A('v_pk_mul_f32 v[68:69], v[68:69], v[72:73]\nv_pk_fma_f32 v[68:69], v[70:71], v[74:75], v[68:69]')
    A('s_waitcnt lgkmcnt(0)')
    A('v_add_f32 v77, v68, v69')
    wsum2(32,32)
    A('s_nop 0')
    A('v_mov_b32_dpp v32, v76 quad_perm:[0,1,2,3] row_mask:0x4 bank_mask:0xf')
    A('v_mov_b32_dpp v33, v77 quad_perm:[0,1,2,3] row_mask:0x4 bank_mask:0xf')
    guarded('global_store_dwordx4 v18, v[32:35], %s %s'%(WS,cfg.sf))
    tstamp(1)
    A('s_mov_b64 exec, s[4:5]')
    A('s_cmp_lg_u32 s70, 3\ns_cbranch_scc1 L_rdone')
    if cfg.EW<8:
        for i in range(cfg.EW,8): A(dmaw(i))
        A('s_waitcnt vmcnt(0)\ns_barrier')
        trw()
    wts=['v_max3_f32 v76, v208, v210, v212','v_max_f32 v76, v76, v214']+['v_sub_f32 v%d, v%d, v76'%(72+i,208+2*i) for i in range(4)]+['v_exp_f32 v%d, v%d'%(72+i,72+i) for i in range(4)]
    wts+=['v_mul_f32 v78, v72, v209']+['v_fmac_f32 v78, v%d, v%d'%(72+i,209+2*i) for i in range(1,4)]+['v_rcp_f32 v78, v78','s_nop 0']
    wts+=['v_pk_mul_f32 v[72:73], v[72:73], v[78:79] op_sel_hi:[1,0]','v_pk_mul_f32 v[74:75], v[74:75], v[78:79] op_sel_hi:[1,0]']
    hk={3:wts}
    for w in range(4): hk[4+w]=wstep(48,192,w)
    spoll(opl,hk)
    stamp(9)
    A('v_cvt_pk_bf16_f32 v48, v48, v49\nv_cvt_pk_bf16_f32 v49, v50, v51')
    A('ds_write_b64 v20, v[48:49] offset:%d'%L_XO)
    A('s_waitcnt lgkmcnt(0)'); guarded('s_barrier')
    if cfg.tdiag: tstamp(2); A('s_waitcnt lgkmcnt(0)')
    for s_ in range(4):
        A('ds_read_b128 v[%d:%d], v21 offset:%d'%(32+4*s_,35+4*s_,L_XO+64*s_))
    for s_ in range(4):
        A('s_waitcnt lgkmcnt(%d)'%(3-s_))
        for t in range(2):
            acc='v[%d:%d]'%(48+4*t,51+4*t); r=80+16*t+4*s_
            A('v_mfma_f32_16x16x32_bf16 %s, v[%d:%d], v[%d:%d], %s'%(acc,r,r+3,32+4*s_,35+4*s_,'0' if s_==0 else acc))
    A('s_mov_b32 exec_lo, 0x00ff00ff\ns_mov_b32 exec_hi, 0x00ff00ff')
    A('s_nop 4')
    A('global_store_dwordx4 v22, v[48:51], %s offset:-2048 %s'%(WS,cfg.sf))
    A('global_store_dwordx4 v22, v[52:55], %s offset:2048 %s'%(WS,cfg.sf))
    tstamp(3)
    A('s_mov_b64 exec, -1')
    A('s_cmp_lg_u32 s53, 0\ns_cbranch_scc1 L_fin')
    apoll(['global_load_dwordx4 v[%d:%d], v23, %s offset:%d sc1'%(216+4*t,219+4*t,WS,1024*t) for t in range(4)],cfg.pR)
    stamp(10)
    A('v_pk_add_f32 v[32:33], v[216:217], v[220:221]\nv_pk_add_f32 v[34:35], v[218:219], v[222:223]')
    A('v_pk_add_f32 v[40:41], v[224:225], v[228:229]\nv_pk_add_f32 v[42:43], v[226:227], v[230:231]')
    A('v_pk_add_f32 v[32:33], v[32:33], v[40:41]\nv_pk_add_f32 v[34:35], v[34:35], v[42:43]')
    A('s_nop 1\nv_permlane32_swap_b32 v32, v34\nv_permlane32_swap_b32 v33, v35')
    A('v_add_f32 v32, v32, v34\nv_add_f32 v33, v33, v35')
    A('s_nop 1\nv_permlane16_swap_b32 v32, v33\nv_add_f32 v32, v32, v33')
    dppadd(32,'row_ror:8')
    rbf(32)
    A('v_add_f32 v32, v32, v16\nv_mov_b32 v33, v32\ns_nop 1')
    A('v_permlane16_swap_b32 v32, v33\nv_cvt_pk_bf16_f32 v32, v32, v33\nv_min_u32 v32, -2, v32\nv_mov_b32 v33, v32\ns_nop 1')
    A('v_permlane32_swap_b32 v32, v33')
    A('global_store_dwordx2 v24, v[32:33], %s %s'%(WS,cfg.sf))
    tstamp(4)
    A('s_branch L_fin')
    A('L_rdone:')
    A('s_cmp_eq_u32 s70, 2\ns_cbranch_scc1 L_ffn2')
    A('s_cmp_eq_u32 s70, 0\ns_cbranch_scc1 L_fin')
    gate(cfg.G1)
    if cfg.lrot:
        assert cfg.E1%2==0
        i0=cfg.E1//2; n=8-i0
        if cfg.helper: A('s_and_b32 s6, s14, 1\ns_cmp_eq_u32 s70, 4\ns_cselect_b32 s6, 2, s6\ns_mul_i32 s6, s6, %d\ns_add_u32 s6, s6, %d'%(n//3,i0))
        else: A('s_and_b32 s6, s14, 1\ns_mul_i32 s6, s6, %d\ns_add_u32 s6, s6, %d'%(n//2,i0))
        for it in range(n):
            if cfg.helper and it==n-2*(n//3): A('s_cmp_eq_u32 s70, 4\ns_cbranch_scc1 L_fin')
            A('s_mul_i32 s7, s6, %d\nv_add_u32 v7, s7, v6\ns_lshl_b32 s7, s6, 10\ns_add_u32 s7, s7, s71\ns_add_u32 m0, s7, %d\ns_add_u32 s6, s6, 1'%(16*3584,L_WA))
            A('global_load_lds_dwordx4 v7, %s %s'%(WG,cfg.ff))
            A('s_add_u32 m0, s7, %d\ns_cmp_eq_u32 s6, 8\ns_cselect_b32 s6, %d, s6'%(L_WA+32768,i0))
            A('global_load_lds_dwordx4 v7, %s %s'%(WU,cfg.ff))
    else:
        for k in range(cfg.E1,16): A(dma1(k))
    A('s_mov_b32 exec_lo, 0xff00ff00\ns_mov_b32 exec_hi, 0xff00ff00')
    for r in range(216,232): A('v_mov_b32 v%d, 0x3f803f80'%r)
    A('s_mov_b64 exec, -1')
    A('s_waitcnt vmcnt(0)')
    for t in range(4):
        for s_ in range(4):
            r=96+16*t+4*s_
            A('ds_read_b64_tr_b16 v[%d:%d], v8 offset:%d'%(r,r+1,2048*s_+16*t))
            A('ds_read_b64_tr_b16 v[%d:%d], v8 offset:%d'%(r+2,r+3,2048*s_+16*t+256))
        A('s_waitcnt lgkmcnt(0)')
    tstamp(2)
    hk={}
    for s_ in range(4):
        B='v[%d:%d]'%(216+4*s_,219+4*s_); hk[s_]=[]
        for t in (4,0,1,2,3):
            acc='v[%d:%d]'%(32+4*t,35+4*t)
            Aop=B if t==4 else 'v[%d:%d]'%(96+16*t+4*s_,99+16*t+4*s_)
            hk[s_].append('v_mfma_f32_16x16x32_bf16 %s, %s, %s, %s'%(acc,Aop,B,'0' if s_==0 else acc))
    ns_=cfg.f1s
    spoll(['global_load_dwordx4 v[%d:%d], v4, %s offset:%d sc1'%(216+4*t,219+4*t,WS,512*t) for t in range(4)],{i:(hk[i] if i<ns_ else []) for i in range(4)},
          pre='s_mov_b32 exec_lo, 0x00ff00ff\ns_mov_b32 exec_hi, 0x00ff00ff',post='s_mov_b64 exec, -1')
    stamp(11)
    for i in range(ns_,4): A('\n'.join(hk[i]))
    A('s_nop 3')
    for t in (4,0,1,2,3):
        A('ds_write_b128 v10, v[%d:%d] offset:%d'%(32+4*t,35+4*t,L_XN+1024*t))
    tstamp(5)
    A('s_waitcnt lgkmcnt(0)\ns_barrier')
    if cfg.tdiag: tstamp(6); A('s_waitcnt lgkmcnt(0)')
    for p in range(4): A('ds_read2_b32 v[%d:%d], v%d offset0:0 offset1:32'%(52+2*p,53+2*p,164+p))
    for p in range(4):
        A('ds_read2_b32 v[%d:%d], v%d offset0:0 offset1:32'%(60+2*p,61+2*p,160+p))
        A('ds_read2_b32 v[%d:%d], v%d offset0:128 offset1:160'%(68+2*p,69+2*p,160+p))
    A('s_waitcnt lgkmcnt(8)')
    A('v_pk_add_f32 v[52:53], v[52:53], v[54:55]\nv_pk_add_f32 v[56:57], v[56:57], v[58:59]\nv_pk_add_f32 v[52:53], v[52:53], v[56:57]')
    A('v_mul_f32 v53, 0xbb000000, v53\nv_mul_f32 v52, 0x3b000000, v52')
    A('v_fma_f32 v52, -v53, v53, v52\nv_cvt_pk_bf16_f32 v53, 0, v53\nv_max_f32 v52, 0, v52\nv_cvt_pk_bf16_f32 v52, 0, v52\nv_add_f32 v52, 0x3727c5ac, v52')
    A('v_cvt_pk_bf16_f32 v52, 0, v52\nv_sqrt_f32 v52, v52')
    A('s_waitcnt lgkmcnt(0)')
    A('v_pk_add_f32 v[60:61], v[60:61], v[62:63]\nv_cvt_pk_bf16_f32 v52, 0, v52\nv_pk_add_f32 v[64:65], v[64:65], v[66:67]\nv_rcp_f32 v52, v52')
    A('v_pk_add_f32 v[68:69], v[68:69], v[70:71]\nv_pk_add_f32 v[72:73], v[72:73], v[74:75]')
    A('v_pk_add_f32 v[60:61], v[60:61], v[64:65]\nv_pk_add_f32 v[68:69], v[68:69], v[72:73]')
    A('v_fmac_f32 v60, v53, v61\nv_fmac_f32 v68, v53, v69\nv_mul_f32 v60, v60, v52\nv_mul_f32 v68, v68, v52')
    A('v_cvt_pk_bf16_f32 v32, 0, v60\nv_cvt_pk_bf16_f32 v36, 0, v68')
    A('v_mul_f32 v33, v32, v32\nv_mul_f32 v33, 0x3d372713, v33\nv_fma_f32 v33, v33, v32, v32')
    A('v_mul_f32 v33, 0xc0135761, v33\nv_exp_f32 v33, v33\ns_nop 0\nv_add_f32 v33, 1.0, v33\nv_rcp_f32 v33, v33\ns_nop 0\nv_mul_f32 v33, v33, v32')
    rbf(33)
    A('v_mul_f32 v33, v33, v36\nv_mov_b32 v34, v33\ns_nop 1\nv_permlane32_swap_b32 v33, v34')
    A('v_cvt_pk_bf16_f32 v33, v33, v34\nv_min_u32 v36, -2, v33')
    A('v_mov_b32 v32, v36\nv_mov_b32 v33, v36\ns_nop 0')
    A('v_mov_b32_dpp v32, v36 row_ror:8 row_mask:0xf bank_mask:0xc\nv_mov_b32_dpp v33, v36 row_ror:8 row_mask:0xf bank_mask:0x3')
    A('v_mov_b32 v34, v32\nv_mov_b32 v35, v33\ns_nop 0')
    A('v_permlane16_swap_b32 v32, v34\nv_permlane16_swap_b32 v33, v35')
    if cfg.nA<8: A('s_and_b32 exec_lo, s4, 0x%x\ns_mov_b32 exec_hi, 0'%((1<<(8*cfg.nA))-1))
    guarded('global_store_dwordx4 v27, v[32:35], %s %s'%(WS,cfg.sf))
    stamp(12)
    A('L_fin:')
    A('s_waitcnt vmcnt(0)')
    if cfg.diag:
        dump_stamps(14,8)
    A('s_endpgm')
    A('L_ffn2:')
    gate(cfg.G2)
    if cfg.lrot:
        n=14-cfg.E2
        A('s_and_b32 s6, s15, 3\ns_mul_i32 s6, s6, %d\ns_lshr_b32 s6, s6, 2\ns_add_u32 s6, s6, %d'%(n,cfg.E2))
        for _ in range(n):
            A('s_lshl_b32 s7, s6, 15\nv_add_u32 v7, s7, v6\ns_lshl_b32 s7, s6, 10\ns_add_u32 s7, s7, s71\ns_add_u32 m0, s7, %d\ns_add_u32 s6, s6, 1'%L_WA)
            A('global_load_lds_dwordx4 v7, %s %s'%(WD,cfg.ff))
            A('s_cmp_eq_u32 s6, 14\ns_cselect_b32 s6, %d, s6'%cfg.E2)
    else:
        for k in range(cfg.E2,14): A(dma2(k))
    A('s_waitcnt vmcnt(0)')
    for t in range(7):
        for tt in range(2):
            r=96+8*t+4*tt
            A('ds_read_b64_tr_b16 v[%d:%d], v8 offset:%d'%(r,r+1,2048*t+16*tt))
            A('ds_read_b64_tr_b16 v[%d:%d], v8 offset:%d'%(r+2,r+3,2048*t+16*tt+128))
        if t%2==0: A('s_waitcnt lgkmcnt(0)')
    tstamp(2)
    l=newlab('hp'); d=newlab('hd')
    A('s_mov_b32 s61, %d\n%s:\nglobal_load_dword v60, v29, %s sc1\ns_waitcnt vmcnt(0)\nv_cmp_eq_u32 vcc, -1, v60\ns_cbranch_vccz %s'%(cfg.spin,l,WS,d))
    A('s_sub_u32 s61, s61, 1\ns_cmp_lg_u32 s61, 0\ns_cbranch_scc1 %s\n%s:'%(l,d))
    A('v_and_b32 v61, s60, v60\nv_lshlrev_b32 v60, 16, v60')
    hk={}
    for t in range(7):
        hk[t]=[]
        for tt in range(2):
            acc='v[%d:%d]'%(64+4*tt,67+4*tt); r=96+8*t+4*tt
            hk[t].append('v_mfma_f32_16x16x32_bf16 %s, v[%d:%d], v[%d:%d], %s'%(acc,r,r+3,216+4*t,219+4*t,'0' if t==0 else acc))
    spoll(abl,hk)
    stamp(10)
    A('s_nop 3')
    A('ds_write_b128 v10, v[64:67] offset:%d'%L_DP)
    A('ds_write_b128 v10, v[68:71] offset:%d'%(L_DP+1024))
    A('s_waitcnt lgkmcnt(0)'); guarded('s_barrier')
    tstamp(6)
    A('s_cmp_lg_u32 s53, 0\ns_cbranch_scc1 L_fin')
    for w in range(4):
        A('ds_read_b64 v[%d:%d], v26 offset:%d'%(32+4*w,33+4*w,L_DP+2048*w))
        A('ds_read_b64 v[%d:%d], v26 offset:%d'%(34+4*w,35+4*w,L_DP+2048*w+640))
    A('s_waitcnt lgkmcnt(0)')
    for w in range(4): A('v_pk_add_f32 v[%d:%d], v[%d:%d], v[%d:%d]'%(32+4*w,33+4*w,32+4*w,33+4*w,34+4*w,35+4*w))
    A('v_pk_add_f32 v[32:33], v[32:33], v[36:37]\nv_pk_add_f32 v[40:41], v[40:41], v[44:45]\nv_pk_add_f32 v[32:33], v[32:33], v[40:41]')
    A('v_cvt_pk_bf16_f32 v32, 0, v32\nv_cvt_pk_bf16_f32 v33, 0, v33')
    A('v_pk_add_f32 v[32:33], v[32:33], v[60:61]')
    A('v_cvt_pk_bf16_f32 v32, v32, v33')
    if cfg.odiag: stamp(12)
    guarded('global_store_dword v28, v32, %s %s'%(OUT,cfg.of))
    if cfg.odiag: A('s_waitcnt vmcnt(0)')
    drychk()
    if cfg.diag:
        stamp(13)
        if cfg.leak is not None:
            a,b=cfg.leak
            A('s_waitcnt lgkmcnt(0)')
            if cfg.gleak is not None:
                A('v_mov_b32 v8, 0x3b0000\nglobal_load_dword v9, v8, %s sc1\nglobal_load_dword v10, v8, %s offset:256 sc1\ns_waitcnt vmcnt(0)'%(WS,WS))
                if b==14: A('v_not_b32 v9, v10\nv_mov_b32 v10, s%d'%(72+2*13))
                elif b==13: A('v_mov_b32 v10, s%d'%(72+2*13))
                else: A('v_not_b32 v10, v10')
                A('v_sub_u32 v9, v10, v9\ns_nop 1\nv_readfirstlane_b32 s54, v9')
                if b==0: A('s_mov_b32 s54, 0')
            elif a>=100:
                A('v_mov_b32 v8, %d\nds_read_b32 v9, v8 offset:%d\nds_read_b32 v10, v8 offset:%d\ns_waitcnt lgkmcnt(0)\nv_sub_u32 v9, v9, v10\ns_nop 1\nv_readfirstlane_b32 s54, v9'%(0,L_ST+4*(b-100),L_ST+4*(a-100)))
            elif b>=100:
                A('v_mov_b32 v8, %d\nds_read_b32 v9, v8 offset:%d\ns_waitcnt lgkmcnt(0)\nv_readfirstlane_b32 s54, v9\ns_sub_u32 s54, s54, s%d'%(4*(b-100),L_ST,72+2*a))
            else: A('s_sub_u32 s54, s%d, s%d'%(72+2*b,72+2*a))
            A('s_mul_i32 s54, s54, %d\ns_min_u32 s54, s54, 60000'%cfg.mult)
            A('L_leak:')
            A('s_memrealtime s[68:69]\ns_waitcnt lgkmcnt(0)\ns_sub_u32 s55, s68, s%d\ns_cmp_lt_u32 s55, s54\ns_cbranch_scc1 L_leak'%(72+2*13))
        else:
            A('s_waitcnt lgkmcnt(0)\ns_mov_b32 s100, s92\ns_mov_b32 s92, 0')
            dump_stamps(15,8)
    A('L_end:')
    A('s_endpgm')
    A('L_last:')
    A('.section .rodata,"a"\n.p2align 6\n.amdhsa_kernel %s'%K)
    A('  .amdhsa_next_free_vgpr 256\n  .amdhsa_next_free_sgpr 102\n  .amdhsa_accum_offset 256\n  .amdhsa_group_segment_fixed_size 0\n  .amdhsa_kernarg_size 96')
    A('  .amdhsa_user_sgpr_count 2\n  .amdhsa_user_sgpr_kernarg_segment_ptr 1\n  .amdhsa_system_sgpr_workgroup_id_x 1')
    A('  .amdhsa_float_denorm_mode_32 3\n  .amdhsa_float_denorm_mode_16_64 3')
    A('.end_amdhsa_kernel')
    return '\n'.join(L)+'\n'

if __name__=='__main__':
    cfg=Cfg()
    out=sys.argv[1]
    for a in sys.argv[2:]:
        k,v=a.split('=',1); setattr(cfg,k,eval(v))
    s=gen(cfg)
    hdr=''.join(l for l in open('cdna_kernels/%s.s.ref'%NAME).readlines()[:13])
    open(out,'w').write(hdr+s)
```

```python
import sys
NAME='sequential_preLN__gqa_block_cached__geglu_ffn__decode'
K=NAME+'_kernel'

class Cfg:
    diag=False
    leak=None
    nocomp=False
    noq=False
    T2=12
    cpf=True
    b3=8
    f1s=1
    nb=1; gd=(40,2,3)
    G1=0; G2=0
    disp=4; LA=1; boost=(1,5,3); lf='sc1'; sf='sc1'
    skipG=False; skipF=False
    par=None
    NP=3
    HS=20736; AS=28672; wrot=False; pre=0; head=0
    upfront=False
    vdiag=None
    odiag=False
    touch=True
    sdiag=False
    mult=1
    Q1=0; Q2=0
    E1=4; E2=0; EW=8; lrot=True; helper=False
    T0=None; n0=24
    qflag=True
    chunk=0
    bare=0
    notail=False
    knat=False
    cdbg=False
    ctouch=None
    rot=4
    cs=9
    nowq=False
    noqst=False
    nH=8; nA=8
    pW=('c',1,0); pR=('m',8,1); pF=('c',1,0); pG=('c',1,0)
    tdiag=False
    tsleep=0
    crot=0
    noclr=False
    wolate=False
    warm=False
    of=''
    gleak=None
    NS=28
    sflag=False
    svcfirst=0
    spin=1<<17
    T=5
    kf='nt'; vf='nt'; wf='nt'; ff=''
    pq=3
    pw0=7
    pw1=22
    noW=False

QP=0x0
FLG=0x80000
CLR=0x200000
WP=0x200000
OP=0x280000
OPS=640
HB=0x340000
AB=0x360000
CTR=0x3A0000
PRB=0x3C0000
STAMP=0x10000000
L_MLW=64
L_QL=256
L_XN=1280
XNS=1040
L_XO=9600
XOS=272
L_DP=11776
L_OW=19968
L_ST=28160
L_PR=28416
L_CNT=L_PR+1024
L_WA=30720
LDS_BYTES=L_WA+65536

LOG2E=0x3fb8aa3b
SCALE=0x3db504f3

def gen(cfg):
    L=[]
    def A(s):
        L.extend(s.split('\n'))
    lab=[0]
    def newlab(p):
        lab[0]+=1
        return 'L_%s_%d'%(p,lab[0])
    X,KP,VP,WQ,WO,BX,WG,WU,WD,OUT,DBG,WS=['s[%d:%d]'%(16+2*i,17+2*i) for i in range(12)]
    def stamp(i):
        if cfg.diag: A('s_memrealtime s[%d:%d]'%(72+2*i,73+2*i))
    def tstamp(i):
        if cfg.tdiag: stamp(i)
    def pack_stamps(n,vt):
        A('s_waitcnt lgkmcnt(0)')
        A('v_mov_b32 v%d, 0'%vt)
        for i in range(n): A('v_writelane_b32 v%d, s%d, %d'%(vt,72+2*i,i))
    def dump_stamps(n,vt):
        if not cfg.diag: return
        A('s_mov_b64 exec, -1')
        pack_stamps(n,vt)
        A('v_lshlrev_b32 v%d, 2, v0'%(vt+1))
        A('ds_read_b32 v%d, v%d offset:%d'%(vt+2,vt+1,L_ST))
        A('s_lshl_b32 s66, s2, 9\ns_add_u32 s66, s66, %d'%(STAMP))
        A('v_add_u32 v%d, s66, v%d'%(vt+1,vt+1))
        A('s_mov_b64 exec, 0xffff')
        A('s_waitcnt lgkmcnt(0)')
        A('global_store_dword v%d, v%d, %s'%(vt+1,vt+2,WS))
        A('s_lshl_b32 s66, s53, 6\nv_add_u32 v%d, s66, v%d'%(vt+1,vt+1))
        A('global_store_dword v%d, v%d, %s offset:64'%(vt+1,vt,WS))

    A('; @launch grid=(256,1,1) block=(512,1,1) lds=%d'%LDS_BYTES)
    A('.amdgcn_target "amdgcn-amd-amdhsa--gfx950"\n.text\n.globl %s\n.p2align 8\n.type %s,@function\n%s:'%(K,K,K))
    A('s_cmp_ge_u32 s2, 256\ns_cbranch_scc1 L_end')
    stamp(0)
    A('v_lshrrev_b32 v1, 6, v0')
    A('v_lshlrev_b32 v3, 2, v0')
    A('v_readfirstlane_b32 s52, v1')
    A('s_cmp_lt_u32 s52, 4\ns_cbranch_scc1 L_noz')
    A('v_mov_b32 v30, 0')
    A('ds_write_b32 v3, v30 offset:%d\nds_write_b32 v3, v30 offset:%d'%(L_PR-1024,L_PR))
    A('s_waitcnt lgkmcnt(0)')
    A('L_noz:')
    A('s_load_dwordx16 s[16:31], s[0:1], 0')
    A('s_load_dwordx8 s[32:39], s[0:1], 64')
    A('s_barrier')
    if cfg.diag:
        for i in range(1,14): A('s_mov_b32 s%d, 0'%(72+2*i))
    A('v_and_b32 v0, 63, v0')
    A('s_and_b32 s48, s2, 7\ns_lshr_b32 s49, s2, 3\ns_lshl_b32 s50, s49, 1\ns_bfe_u32 s54, s2, 0x10001\ns_or_b32 s50, s50, s54')
    A('s_and_b32 s51, s2, 1\ns_bfe_u32 s54, s2, 0x10002\ns_lshl_b32 s54, s54, 1\ns_or_b32 s51, s51, s54')
    A('s_mov_b32 s59, 0x%x\ns_mov_b32 s60, 0xffff0000'%(LOG2E))
    A('v_lshlrev_b32 v1, 4, v0')
    A('s_cmp_ge_u32 s52, 4\ns_cbranch_scc1 L_service')

    import math
    TH=math.ceil(cfg.T)
    NS=cfg.NS
    RB=64
    A('s_lshl_b32 s54, s50, 21')
    A('s_lshl_b32 s62, s51, 2\ns_add_u32 s62, s62, s52')
    for i in range(4): A('s_add_u32 s%d, s62, %d\ns_and_b32 s%d, s%d, 15\ns_lshl_b32 s%d, s%d, 12'%(8+i,cfg.rot*i,8+i,8+i,8+i,8+i))
    A('v_lshrrev_b32 v2, 4, v0\nv_lshlrev_b32 v2, 6, v2\nv_and_b32 v4, 3, v0\nv_lshl_add_u32 v2, v4, 4, v2')
    A('v_bfe_u32 v5, v0, 2, 2\nv_lshl_add_u32 v2, v5, 8, v2')
    if cfg.knat: A('v_mov_b32 v2, v1')
    A('s_mov_b32 s42, 0x200000\ns_mov_b32 s43, 0x20000\ns_mov_b32 s46, 0x200000\ns_mov_b32 s47, 0x20000')
    A('s_waitcnt lgkmcnt(0)')
    A('s_add_u32 s40, s18, s54\ns_addc_u32 s41, s19, 0\ns_and_b32 s41, s41, 0xffff')
    A('s_add_u32 s44, s20, s54\ns_addc_u32 s45, s21, 0\ns_and_b32 s45, s45, 0xffff')
    st={'n':0}
    def adv():
        if cfg.rot: A('s_add_u32 s68, s62, %d\ns_and_b32 s68, s68, 15\ns_andn2_b32 s62, s62, 15\ns_add_u32 s62, s62, 16\ns_or_b32 s62, s62, s68'%cfg.rot)
        else: A('s_add_u32 s62, s62, 16')
    def load(slot,j,throttle=True,th=None):
        if j==0: A('s_lshl_b32 s65, s62, 12')
        if throttle:
            t_=(th or cfg.T); lo=int(t_); fr=t_-lo
            w=lo+(1 if (int((j+1)*fr+1e-9)>int(j*fr+1e-9)) else 0)
            A('s_waitcnt vmcnt(%d)'%(w-1))
        r=RB+slot*32+j*4
        t=j//4
        A('buffer_load_dwordx4 v[%d:%d], %s, %s, s65 offen offset:%d %s'%(r,r+3,'v2' if t==0 else 'v1','s[40:43]' if t==0 else 's[44:47]',(j%4)*1024,cfg.kf if t==0 else cfg.vf))
    def prog(val):
        A('v_mov_b32 v30, %s\nds_write_b32 v3, v30 offset:%d'%(val,L_PR))
    NK=NS//2
    assert NS%2==0 and NK>=10 and NK<=15
    slot_of={u:u for u in range(6)}
    slot_of.update({6:0,7:1,8:2})
    for u in range(9,NS+1): slot_of[u]=(u-9)&1
    tr={'issued':0}
    def sload():
        n=tr['issued']; G=n//8; j=n%8
        tr['issued']=n+1
        if G==NS:
            load(slot_of[G],j,th=cfg.T); return
        t=G//NK; k=2*(G%NK)+j//4
        if cfg.vdiag is not None and G==cfg.vdiag and j==0: stamp(6)
        if cfg.vdiag is not None and G==cfg.vdiag+1 and j==0: stamp(7)
        if j%4==0: A('s_add_u32 s65, s%d, %d'%(8+k%4,k*65536))
        w=cfg.T0 if (cfg.T0 and n<cfg.n0) else TH
        if cfg.b3 and G==cfg.boost[1] and j==0:
            A('s_bfe_u32 s55, s49, 0x30001\ns_cmp_eq_u32 s55, 3\ns_cselect_b64 vcc, vcc, 0')
        if cfg.boost and cfg.boost[0]<=G<max(cfg.boost[1],cfg.b3):
            assert G<9 and (G<5 or w+cfg.boost[2]<=8)
            l=newlab('bo'); A('s_waitcnt vmcnt(%d)\ns_cbranch_vccnz %s\ns_waitcnt vmcnt(%d)\n%s:'%(w-1+cfg.boost[2],l,w-1,l))
        elif n>=w: A('s_waitcnt vmcnt(%d)'%(w-1))
        r=RB+slot_of[G]*32+j*4
        A('buffer_load_dwordx4 v[%d:%d], %s, %s, s65 offen offset:%d %s'%(r,r+3,'v2' if t==0 else 'v1','s[40:43]' if t==0 else 's[44:47]',(j%4)*1024,cfg.kf if t==0 else cfg.vf))
        if j==7 and n>=15: prog(G+1)
    def pro_issue(n0,n1):
        assert tr['issued']==n0
        for n in range(n0,n1): sload()
    if cfg.svcfirst: A('s_barrier')
    if cfg.sdiag: stamp(6)
    pro_issue(0,TH)
    if cfg.sdiag: stamp(7)
    if cfg.boost: A('s_xor_b32 s55, s2, s49\ns_and_b32 s55, s55, 1\ns_cselect_b64 vcc, 0, -1')
    A('s_mov_b32 s56, 0x05040100\ns_mov_b32 s57, 0x07060302\ns_mov_b32 s58, 0x%x'%SCALE)
    A('s_lshl_b32 s54, s50, %d\ns_add_u32 s54, s54, %d\ns_add_u32 s66, s38, s54\ns_addc_u32 s67, s39, 0'%(cfg.cs,CTR))
    if cfg.cdbg: A('s_lshl_b32 s54, s50, 9\ns_add_u32 s54, s54, 4096\ns_add_u32 s66, s36, s54\ns_addc_u32 s67, s37, 0')
    A('s_lshl_b32 s55, s52, 11')
    A('v_lshlrev_b32 v4, 9, v4\nv_and_b32 v0, 0x30, v0\nv_add3_u32 v0, v4, v0, s55')
    A('v_mov_b32 v14, 0xff800000')
    if cfg.sdiag:
        stamp(9); A('s_waitcnt vmcnt(%d)'%(TH-1)); stamp(10)
    pro_issue(TH,48)
    stamp(1)
    if cfg.qflag:
        A('v_mov_b32 v31, 0\nL_qw:\nds_read_b32 v15, v31 offset:%d\ns_waitcnt lgkmcnt(0)\nv_readfirstlane_b32 s54, v15\ns_cmp_eq_u32 s54, 0\ns_cbranch_scc1 L_qw'%(L_CNT+16))
    else: A('s_barrier')
    A('ds_read_b128 v[4:7], v1 offset:%d'%L_QL)
    stamp(2)
    A('s_waitcnt lgkmcnt(0)')
    def kpart(slot,fill):
        B=RB+slot*32
        f=list(fill)
        def nxt():
            if f: f.pop(0)()
        D=[20,B,B+4,B+8]
        if cfg.nocomp:
            while f: nxt()
            return
        for i in range(4):
            A('v_mfma_f32_16x16x32_bf16 v[%d:%d], v[%d:%d], v[4:7], 0'%(D[i],D[i]+3,B+4*i,B+4*i+3))
        A('s_nop 7')
        for h in range(2):
            for step in range(3):
                for e in range(2):
                    be=2*e+h
                    S=18+e
                    A('v_add_f32_dpp v%d, v%d, v%d row_ror:%d row_mask:0xf bank_mask:0x%x'%(S,D[be]+((be+step+1)&3),(D[be]+be) if step==0 else S,12-4*step,1<<be))
                A('s_nop 0')
        nxt()
        A('s_nop 0')
        A('v_mov_b32_dpp v18, v19 quad_perm:[0,1,2,3] row_mask:0xf bank_mask:0xc')
        A('v_cvt_pk_bf16_f32 v18, 0, v18\nv_mul_f32 v18, s58, v18\nv_cvt_pk_bf16_f32 v18, 0, v18')
        A('v_max_f32 v15, v14, v18')
        A('s_nop 1\nv_max_f32_dpp v15, v15, v15 row_ror:4 row_mask:0xf bank_mask:0xf')
        A('s_nop 1\nv_max_f32_dpp v15, v15, v15 row_ror:8 row_mask:0xf bank_mask:0xf')
        A('v_mov_b32 v31, v15\ns_nop 1\nv_permlane16_swap_b32 v15, v31\nv_max_f32 v15, v15, v31')
        A('v_mov_b32 v31, v15\ns_nop 1\nv_permlane32_swap_b32 v15, v31\nv_max_f32 v15, v15, v31')
        nxt()
        A('v_sub_f32 v16, v14, v15\nv_sub_f32 v18, v18, v15\nv_cmp_neq_f32 vcc, v14, v15\nv_mul_f32 v16, s59, v16\nv_mul_f32 v18, s59, v18')
        A('v_exp_f32 v16, v16\nv_exp_f32 v18, v18\nv_mov_b32 v14, v15\nv_mul_f32 v17, s59, v15')
        A('v_mov_b32_dpp v19, v18 row_ror:12 row_mask:0xf bank_mask:0xf')
        A('v_cvt_pk_bf16_f32 v8, v18, v19')
        l=newlab('nr')
        A('s_cbranch_vccz %s'%l)
        for r in range(32,64,2):
            A('v_pk_mul_f32 v[%d:%d], v[%d:%d], v[16:17] op_sel_hi:[1,0]'%(r,r+1,r,r+1))
        A('v_mul_f32 v24, v24, v16')
        A('%s:'%l)
        A('s_nop 0')
        A('v_mov_b32_dpp v9, v8 row_ror:8 row_mask:0xf bank_mask:0xf')
        while f: nxt()
    def vpart(slot):
        B=RB+slot*32+16
        if cfg.nocomp: return
        def perms(j):
            Tt=10+2*(j&1)
            for ii in range(2):
                A('v_perm_b32 v%d, v%d, v%d, s%d'%(Tt+ii,B+4*(2*ii+1)+(j>>1),B+4*(2*ii)+(j>>1),56+(j&1)))
        perms(0)
        for j in range(8):
            if j<7: perms(j+1)
            else: A('v_mfma_f32_16x16x16_bf16 v[24:27], v[28:29], v[8:9], v[24:27]')
            Tt=10+2*(j&1)
            A('v_mfma_f32_16x16x16_bf16 v[%d:%d], v[%d:%d], v[8:9], v[%d:%d]'%(32+4*j,35+4*j,Tt,Tt+1,32+4*j,35+4*j))
    SC=[8,9,10,11,12,13,20,21,22,23,25,26,27,28,29][:NK]
    RV=RB+5*32; TV=RV+4
    def need(n):
        rem=tr['issued']-n
        assert rem>=0
        if rem<TH: A('s_waitcnt vmcnt(%d)'%rem)
    def spread(chunks,nl):
        m=len(chunks)
        for i,c in enumerate(chunks):
            if not cfg.nocomp: A(c)
            for _ in range((nl*(i+1))//m-(nl*i)//m): sload()
    def kgroup(G):
        B=RB+slot_of[G]*32
        ch=['\n'.join('v_mfma_f32_16x16x32_bf16 v[%d:%d], v[%d:%d], v[4:7], 0'%(32+4*i,35+4*i,B+4*i,B+4*i+3) for i in range(8))+'\ns_nop 1']
        for be in range(4):
            c=[]
            for step in range(3):
                for e in range(2):
                    D=32+4*(2*be+e); S=18+e
                    c.append('v_add_f32_dpp v%d, v%d, v%d row_ror:%d row_mask:0xf bank_mask:0x%x'%(S,D+((be+step+1)&3),(D+be) if step==0 else S,12-4*step,1<<be))
                c.append('s_nop 0')
            ch.append('\n'.join(c))
        ch[-1]+='\nv_cvt_pk_bf16_f32 v15, 0, v18\nv_cvt_pk_bf16_f32 v16, 0, v19\nv_mul_f32 v15, s58, v15\nv_mul_f32 v16, s58, v16'
        ch[-1]+='\nv_cvt_pk_bf16_f32 v%d, v15, v16\nv_cvt_pk_bf16_f32 v15, 0, v15\nv_cvt_pk_bf16_f32 v16, 0, v16\nv_max3_f32 v14, v14, v15, v16'%SC[G]
        return ch
    def wred(op,r):
        return ('s_nop 1\n%s_dpp v%d, v%d, v%d row_ror:4 row_mask:0xf bank_mask:0xf\ns_nop 1\n%s_dpp v%d, v%d, v%d row_ror:8 row_mask:0xf bank_mask:0xf\n'%(op,r,r,r,op,r,r,r)+
                'v_mov_b32 v31, v%d\ns_nop 1\nv_permlane16_swap_b32 v%d, v31\n%s v%d, v%d, v31\n'%(r,r,op,r,r)+
                'v_mov_b32 v31, v%d\ns_nop 1\nv_permlane32_swap_b32 v%d, v31\n%s v%d, v%d, v31'%(r,r,op,r,r))
    def softmax():
        ch=[wred('v_max_f32',14)+'\nv_mul_f32 v17, s59, v14\nv_mov_b32 v24, 0']
        for g in range(NK):
            ch.append('v_lshlrev_b32 v18, 16, v%d\nv_and_b32 v19, s60, v%d\nv_sub_f32 v18, v18, v14\nv_sub_f32 v19, v19, v14\nv_mul_f32 v18, s59, v18\nv_mul_f32 v19, s59, v19\n'%(SC[g],SC[g])+
                      'v_exp_f32 v18, v18\nv_exp_f32 v19, v19\ns_nop 0\nv_cvt_pk_bf16_f32 v%d, v18, v19\nv_add_f32 v24, v24, v18\nv_add_f32 v24, v24, v19'%SC[g])
        ch.append(wred('v_add_f32',24))
        return ch
    def vgroup(G):
        B=RB+slot_of[G]*32; P=SC[G-NK]
        def perms(j):
            Tt=TV+4*(j&1)
            return '\n'.join('v_perm_b32 v%d, v%d, v%d, s%d'%(Tt+ii,B+4*(2*ii+1)+(j>>1),B+4*(2*ii)+(j>>1),56+(j&1)) for ii in range(4))
        c0='v_mov_b32 v%d, v%d\n'%(RV,P)+'\n'.join('v_mov_b32_dpp v%d, v%d row_ror:%d row_mask:0xf bank_mask:0xf'%(RV+r,P,16-4*r) for r in range(1,4))+'\n'+perms(0)
        ch=[c0]
        for j in range(8):
            Tt=TV+4*(j&1); acc='v[%d:%d]'%(32+4*j,35+4*j)
            ch.append((perms(j+1) if j<7 else 's_nop 1')+'\nv_mfma_f32_16x16x32_bf16 %s, v[%d:%d], v[%d:%d], %s'%(acc,Tt,Tt+3,RV,RV+3,'0' if G==NK else acc))
        return ch
    def request():
        if not cfg.chunk:
            A('s_mov_b32 s63, 1\ns_atomic_add s63, s[66:67], 0x0 glc'); return
        la=newlab('ra'); lb=newlab('rb')
        A('s_cmp_eq_u32 s69, 0\ns_cbranch_scc1 %s'%la)
        A('s_mov_b32 s69, 0\ns_sub_u32 s63, s62, %d\ns_branch %s'%(NS*16,lb))
        A('%s:'%la)
        A('s_cmp_lt_u32 s62, %d\ns_cselect_b32 s69, 1, 0\ns_add_u32 s63, s69, 1\ns_atomic_add s63, s[66:67], 0x0 glc'%(512-cfg.chunk))
        A('%s:'%lb)
    for G in range(9):
        need(8*G+8)
        spread(kgroup(G),[4,4,4,4,4,4,3,2,3][G])
    assert tr['issued']==80
    stamp(3)
    def get():
        lb=int(math.log2(cfg.disp)); l=newlab('gt'); d=newlab('gd')
        A('s_cmp_ge_u32 s62, 512\ns_cbranch_scc1 %s'%d)
        A('v_mov_b32 v31, 0\nv_mov_b32 v30, 1\ns_mov_b64 exec, 1\nds_add_rtn_u32 v30, v31, v30 offset:%d\ns_waitcnt lgkmcnt(0)'%(L_CNT+24))
        A('v_lshlrev_b32 v31, 2, v30')
        A('%s:\nds_read_b32 v30, v31 offset:%d\ns_waitcnt lgkmcnt(0)\nv_readfirstlane_b32 s63, v30\ns_cmp_eq_u32 s63, 0\ns_cbranch_scc1 %s'%(l,L_CNT+64,l))
        A('s_mov_b64 exec, -1')
        A('%s:'%d)
    for G in range(9,NS):
        if cfg.disp:
            if G==NS-1:
                stamp(4); A('s_mov_b32 s62, 0'); get(); A('s_mov_b32 s62, s63')
        elif G==NS-2:
            A('v_mov_b32 v31, 0\nL_cw:\nds_read_b32 v15, v31 offset:%d\ns_waitcnt lgkmcnt(0)\nv_readfirstlane_b32 s54, v15\ns_cmp_eq_u32 s54, 0\ns_cbranch_scc1 L_cw'%(L_CNT+8))
            stamp(4)
            A('s_mov_b32 s63, %d\ns_atomic_add s63, s[66:67], 0x0 glc\ns_mov_b32 s69, %d'%((2,1) if cfg.chunk else (1,0)))
        if G==NS-1 and not cfg.disp:
            A('s_waitcnt lgkmcnt(0)\ns_add_u32 s62, s63, %d'%(NS*16+1))
            A('s_cmp_ge_u32 s62, 512\ns_cbranch_scc1 L_nrq'); request(); A('L_nrq:')
        lead=min(TH,8)
        if G==NK: spread(softmax(),lead)
        else:
            for _ in range(lead): sload()
        need(8*G+8)
        ch=kgroup(G) if G<NK else vgroup(G)
        spread(ch[:-1],8-lead); spread(ch[-1:],0)
    A('s_cmp_ge_u32 s62, 512\ns_cbranch_scc1 L_sdone')
    A('v_mov_b32 v28, 0x3f803f80\nv_mov_b32 v29, 0x3f803f80\nv_mov_b32 v25, 0\nv_mov_b32 v26, 0\nv_mov_b32 v27, 0')
    if cfg.disp: get(); A('s_mov_b32 s62, s63')
    else: A('s_waitcnt lgkmcnt(0)\ns_add_u32 s62, s63, %d'%(NS*16+1))
    A('s_mov_b32 s64, %d'%(NS+1))
    def body(c,th):
        if cfg.upfront:
            for j in range(8): load(1-c,j,th=th,throttle=(8+j>=th))
            if th>12: A('s_waitcnt vmcnt(12)')
            kpart(c,[])
            A('s_waitcnt vmcnt(8)')
            vpart(c)
            return
        for j in range(4): load(1-c,j,th=th)
        if th>8: A('s_waitcnt vmcnt(8)')
        kpart(c,[(lambda j=j: load(1-c,j,th=th)) for j in range(4,8)])
        if cfg.disp: get()
        if th>8: A('s_waitcnt vmcnt(8)')
        vpart(c)
    A('L_dyn:')
    for c in (slot_of[NS],1-slot_of[NS]):
        ls=newlab('st'); lc=newlab('sc')
        if cfg.diag: A('s_add_u32 s64, s64, 1')
        if not cfg.disp:
            A('s_cmp_ge_u32 s62, 512\ns_cbranch_scc1 %s'%ls)
            request()
            A('%s:'%ls)
        body(c,cfg.T2 or cfg.T)
        A('s_cmp_ge_u32 s62, 512\ns_cbranch_scc1 L_sdone')
        if cfg.disp: A('s_mov_b32 s62, s63')
        else:
            A('s_waitcnt lgkmcnt(0)')
            A('s_add_u32 s62, s63, %d'%(NS*16+1))
    A('s_branch L_dyn')
    A('L_sdone:')
    A('s_mov_b32 exec_lo, 0x000f000f\ns_mov_b32 exec_hi, 0x000f000f')
    stamp(5)
    A('s_lshl_b32 s55, s52, 2\nv_and_b32 v31, 0x30, v1\nv_lshl_add_u32 v31, v31, 1, s55')
    for j in range(8):
        A('ds_write_b128 v0, v[%d:%d] offset:%d'%(32+4*j,35+4*j,L_OW+64*j))
    A('ds_write2_b32 v31, v17, v24 offset0:%d offset1:%d'%(L_MLW//4,L_MLW//4+4))
    if cfg.diag:
        A('s_mov_b64 exec, -1')
        A('s_cmp_lg_u32 s52, 0\ns_cbranch_scc1 L_nost')
        pack_stamps(11 if cfg.sdiag else 8,8)
        A('v_writelane_b32 v8, s64, 8')
        A('ds_write_b32 v3, v8 offset:%d'%L_ST)
        A('L_nost:')
    A('s_waitcnt lgkmcnt(0)')
    A('s_barrier')
    A('s_endpgm')

    A('L_service:')
    if cfg.bare:
        A('s_sub_u32 s53, s52, 4\nv_mov_b32 v11, 0\nv_mov_b32 v12, 1\nv_mov_b32 v40, -1\nv_mov_b32 v41, -1\nv_mov_b32 v42, -1\nv_mov_b32 v43, -1\ns_waitcnt lgkmcnt(0)')
        if cfg.bare&2:
            A('s_lshl_b32 s54, s2, 2\ns_add_u32 s54, s54, s53\ns_mul_i32 s54, s54, 640\ns_add_u32 s54, s54, %d\nv_add_u32 v6, s54, v1\ns_mov_b32 exec_hi, 0xff\nglobal_store_dwordx4 v6, v[40:43], %s sc1\ns_mov_b64 exec, -1'%(CLR+0x100000,WS))
        if cfg.bare&4:
            A('global_load_dwordx4 v[32:35], v1, %s'%X)
        if cfg.bare&8:
            A('v_mov_b32 v6, s2\ns_mov_b64 exec, 1\nglobal_store_byte v6, v12, %s sc1\ns_mov_b64 exec, -1'%DBG)
        A('ds_write_b32 v11, v12 offset:%d\ns_waitcnt lgkmcnt(0)\ns_barrier\ns_barrier'%(L_CNT+8))
        if cfg.bare&16:
            A('v_lshlrev_b32 v7, 2, v0\nglobal_load_dword v13, v7, %s sc1'%DBG)
        A('s_barrier\ns_endpgm')
    A('s_setprio 3')
    A('s_sub_u32 s53, s52, 4')
    A('s_lshl_b32 s66, s53, 12')
    A('s_mov_b32 s3, %d'%FLG)
    A('s_lshr_b32 s68, s49, 3\ns_and_b32 s69, s49, 7')
    A('v_lshrrev_b32 v2, 5, v0\ns_lshl_b32 s54, s53, 1\nv_add_u32 v2, s54, v2')
    A('v_and_b32 v3, 31, v0\nv_lshlrev_b32 v3, 4, v3')
    A('v_lshl_add_u32 v4, v2, 10, v3')
    A('s_xor_b32 s13, s2, s49\ns_and_b32 s13, s13, 1\ns_lshr_b32 s14, s49, 4\ns_bfe_u32 s15, s49, 0x30001')
    A('s_lshl_b32 s54, s14, 8\ns_lshl_b32 s55, s53, 6\ns_add_u32 s54, s54, s55')
    A('v_lshrrev_b32 v6, 3, v0\nv_add_u32 v6, s54, v6\nv_lshlrev_b32 v6, 13, v6')
    A('v_and_b32 v7, 7, v0\nv_lshl_add_u32 v6, v7, 4, v6')
    A('s_lshl_b32 s54, s48, 10\ns_lshl_b32 s55, s15, 7\ns_add_u32 s54, s54, s55\nv_add_u32 v6, s54, v6')
    A('s_lshl_b32 s54, s48, 1\ns_add_u32 s54, s54, s14\ns_lshl_b32 s54, s54, 11\ns_lshl_b32 s55, s15, 8\ns_add_u32 s54, s54, s55\ns_lshl_b32 s55, s53, 6\ns_add_u32 s54, s54, s55')
    A('v_lshlrev_b32 v14, 15, v7\nv_and_b32 v15, 0x30, v0\nv_add3_u32 v14, v14, v15, s54')
    A('v_mov_b32 v40, -1\nv_mov_b32 v41, -1\nv_mov_b32 v42, -1\nv_mov_b32 v43, -1')
    A('s_lshl_b32 s71, s53, 13\ns_add_u32 m0, s71, %d'%L_WA)
    A('v_lshrrev_b32 v44, 1, v0\nv_lshlrev_b32 v44, 9, v44\nv_and_b32 v45, 16, v1\nv_add3_u32 v79, v44, v45, %s'%'s3')
    A('v_mov_b32 v44, 0\nv_mov_b32 v45, 0\nv_mov_b32 v46, 0\nv_mov_b32 v47, 0\nv_mov_b32 v11, 0\nv_mov_b32 v12, 1')
    A('s_lshl_b32 s12, s2, 2\ns_add_u32 s12, s12, s53')
    A('s_waitcnt lgkmcnt(0)')
    A('s_cmp_lg_u32 s13, 0\ns_cbranch_scc1 L_clr')
    A('global_load_dwordx4 v[32:35], v4, %s'%X)
    A('global_load_dwordx4 v[36:39], v4, %s offset:512'%X)
    for i in range(8):
        if i: A('s_add_u32 m0, s71, %d\nv_add_u32 v6, 0x10000, v6'%(L_WA+i*1024))
        A('global_load_lds_dwordx4 v6, %s %s'%(WQ,cfg.wf))
    A('s_mov_b32 exec_lo, 0x00ff00ff\ns_mov_b32 exec_hi, 0x00ff00ff')
    A('global_store_dwordx4 v14, v[40:43], %s sc1'%WS)
    A('s_branch L_clrd')
    A('L_clr:')
    if cfg.cpf:
        A('s_getpc_b64 s[6:7]\nL_pc:\ns_sub_u32 s6, s6, L_pc-%s\ns_subb_u32 s7, s7, 0'%K)
        A('s_lshr_b32 s54, s49, 1\ns_lshl_b32 s54, s54, 2\ns_add_u32 s54, s54, s53\ns_lshl_b32 s54, s54, 9\nv_lshl_add_u32 v48, v0, 3, s54\nv_min_u32 v48, L_last-%s-8, v48'%K)
        A('global_load_dwordx2 v[50:51], v48, s[6:7]')
    A('s_cmp_lg_u32 s12, 7\ns_cbranch_scc1 L_nolead')
    A('global_store_dwordx4 v79, v[44:47], %s sc1\nglobal_store_dwordx4 v79, v[44:47], %s offset:256 sc1'%(WS,WS))
    A('s_waitcnt vmcnt(0)')
    A('s_mov_b64 exec, 1\nglobal_store_dword v11, v12, %s sc1\ns_mov_b64 exec, -1'%DBG)
    A('L_nolead:')
    A('s_lshr_b32 s54, s2, 1\ns_lshl_b32 s54, s54, 2\ns_add_u32 s54, s54, s53\ns_mul_i32 s54, s54, 3584\ns_add_u32 s54, s54, %d'%CLR)
    A('v_add_u32 v6, s54, v1')
    for i in range(3): A('global_store_dwordx4 v6, v[40:43], %s offset:%d sc1'%(WS,1024*i))
    A('s_mov_b32 exec_hi, 0')
    A('global_store_dwordx4 v6, v[40:43], %s offset:3072 sc1'%WS)
    A('L_clrd:')
    A('s_mov_b64 exec, -1')
    A('s_and_b32 s54, s49, 3\ns_lshl_b32 s9, s54, 16\ns_lshr_b32 s54, s49, 2\ns_lshl_b32 s54, s54, 10\ns_add_u32 s9, s9, s54\ns_lshl_b32 s54, s48, 7\ns_add_u32 s9, s9, s54\ns_add_u32 s9, s9, %d'%PRB)
    A('s_lshl_b32 s54, s53, 14\ns_add_u32 s54, s54, s9\nv_bfe_u32 v6, v0, 3, 1\nv_lshlrev_b32 v6, 13, v6\nv_and_b32 v13, 0x70, v1\nv_add3_u32 v6, v6, v13, s54')
    A('s_mov_b64 exec, 0xffff')
    A('s_cmp_ge_u32 s49, 8\ns_cbranch_scc1 L_nopl\ns_cmp_ge_u32 s53, %d\ns_cbranch_scc1 L_nopl'%cfg.NP)
    A('global_store_dwordx4 v6, v[40:43], %s sc1'%WS)
    A('L_nopl:')
    A('s_mov_b64 exec, -1')
    if cfg.svcfirst==2: A('s_barrier')
    A('v_mul_u32_u24 v5, %d, v2\nv_add_u32 v5, v5, v3'%XNS)
    A('v_lshrrev_b32 v8, 4, v0\nv_lshlrev_b32 v8, 10, v8\nv_bfe_u32 v9, v0, 2, 2\nv_lshl_add_u32 v8, v9, 7, v8\nv_and_b32 v9, 3, v0\nv_lshl_add_u32 v8, v9, 3, v8')
    A('s_lshl_b32 s54, s53, 5\nv_add_u32 v8, s54, v8')
    A('v_mul_u32_u24 v9, %d, v7\nv_add_u32 v9, v9, v15\ns_lshl_b32 s54, s14, 9\nv_add_u32 v10, s54, v9'%XNS)
    A('s_lshl_b32 s54, s53, 8\nv_mov_b32 v31, s54')

    def dppadd(r,ctl):
        A('s_nop 1\nv_add_f32_dpp v%d, v%d, v%d %s row_mask:0xf bank_mask:0xf'%(r,r,r,ctl))
    def swapadd(r,t,w):
        A('v_mov_b32 v%d, v%d\ns_nop 1\nv_permlane%d_swap_b32 v%d, v%d\nv_add_f32 v%d, v%d, v%d'%(t,r,w,r,t,r,r,t))
    def rbf(r):
        A('v_cvt_pk_bf16_f32 v%d, 0, v%d'%(r,r))
    def layernorm(mode):
        if mode=='x':
            for i in range(8):
                A('v_lshlrev_b32 v%d, 16, v%d\nv_and_b32 v%d, s60, v%d'%(48+2*i,32+i,49+2*i,32+i))
        Q=lambda i:'v[%d:%d]'%(48+2*i,49+2*i)
        P=Q if mode=='x' else (lambda i:'v[%d:%d]'%(216+2*i,217+2*i))
        A('v_pk_add_f32 v[64:65], %s, %s\nv_pk_mul_f32 v[66:67], %s, %s'%(P(0),P(1),P(0),P(0)))
        A('v_pk_add_f32 v[68:69], %s, %s\nv_pk_mul_f32 v[70:71], %s, %s'%(P(2),P(3),P(1),P(1)))
        for i in range(2,8,2):
            if i>2: A('v_pk_add_f32 v[64:65], v[64:65], %s'%P(i))
            A('v_pk_fma_f32 v[66:67], %s, %s, v[66:67]'%(P(i),P(i)))
            if i>2: A('v_pk_add_f32 v[68:69], v[68:69], %s'%P(i+1))
            A('v_pk_fma_f32 v[70:71], %s, %s, v[70:71]'%(P(i+1),P(i+1)))
        A('v_pk_add_f32 v[64:65], v[64:65], v[68:69]\nv_pk_add_f32 v[66:67], v[66:67], v[70:71]')
        A('v_add_f32 v64, v64, v65\nv_add_f32 v66, v66, v67')
        ctl=['row_ror:1','row_ror:2','row_ror:4','row_ror:8'] if mode=='x' else ['quad_perm:[1,0,3,2]','quad_perm:[2,3,0,1]','row_ror:8']
        for c in ctl:
            A('s_nop 0')
            for r in (64,66): A('v_add_f32_dpp v%d, v%d, v%d %s row_mask:0xf bank_mask:0xf'%(r,r,r,c))
        for w in ((16,) if mode=='x' else (16,32)):
            A('v_mov_b32 v65, v64\nv_mov_b32 v67, v66\ns_nop 0')
            A('v_permlane%d_swap_b32 v64, v65\nv_permlane%d_swap_b32 v66, v67'%(w,w))
            A('v_add_f32 v64, v64, v65\nv_add_f32 v66, v66, v67')
        A('v_mul_f32 v64, 0xbb000000, v64\nv_mul_f32 v66, 0x3b000000, v66')
        A('v_cvt_pk_bf16_f32 v68, 0, v64')
        chain=['v_fma_f32 v66, -v64, v64, v66','v_max_f32 v66, 0, v66','v_cvt_pk_bf16_f32 v66, 0, v66','v_add_f32 v66, 0x3727c5ac, v66',
               'v_cvt_pk_bf16_f32 v66, 0, v66','v_sqrt_f32 v66, v66','v_cvt_pk_bf16_f32 v66, 0, v66','v_rcp_f32 v66, v66']
        for i in range(8):
            A(chain[i])
            A('v_pk_add_f32 %s, %s, v[68:69] op_sel_hi:[1,0]'%(Q(i),P(i)))
        for i in range(16): A('v_cvt_pk_bf16_f32 v%d, 0, v%d'%(48+i,48+i))
        nw=2 if mode=='h' else 4
        for i in range(8):
            A('v_pk_mul_f32 %s, %s, v[66:67] op_sel_hi:[1,0]'%(Q(i),Q(i)))
        for i in range(8):
            A('v_cvt_pk_bf16_f32 v%d, v%d, v%d'%(32+i,48+2*i,49+2*i))
            if mode=='h' and i%2==1: A('ds_write_b64 v5, v[%d:%d] offset:%d'%(31+i,32+i,L_XN+256*(i//2)))
            if mode=='x' and i%4==3: A('ds_write_b128 v5, v[%d:%d] offset:%d'%(29+i,32+i,L_XN+512*(i//4)))
    def lds_sync(cnt,sleep=0):
        l=newlab('ls')
        A('s_waitcnt lgkmcnt(0)')
        A('s_mov_b64 exec, 1\nds_add_u32 v11, v12 offset:%d\ns_mov_b64 exec, -1'%(L_CNT+4*cnt))
        lds_wait(11,L_CNT+4*cnt,4,sleep)
    def lds_wait(va,off,val,sleep):
        l=newlab('lw'); d=newlab('ld')
        A('%s:'%l)
        A('ds_read_b32 v13, v%d offset:%d\ns_waitcnt lgkmcnt(0)\nv_readfirstlane_b32 s54, v13\ns_cmp_ge_u32 s54, %s'%(va,off,val))
        if sleep: A('s_cbranch_scc1 %s\ns_sleep %d\ns_branch %s\n%s:'%(d,sleep,l,d))
        else: A('s_cbranch_scc0 %s'%l)
    def progress(p): lds_wait(31,L_PR,p,6)
    def poll(loads,regs,sleep=0,guard=False):
        l=newlab('pl'); d=newlab('pd')
        if guard: sleep=cfg.tsleep
        A('s_mov_b32 s61, %d'%cfg.spin)
        A('%s:'%l)
        for x in loads: A(x)
        import re as _re
        first=True; pend=[]
        for i,x in enumerate(loads):
            m=_re.search(r'v\[(\d+):(\d+)\]',x)
            pend+=list(range(int(m.group(1)),int(m.group(2))+1))
            last=(i==len(loads)-1)
            if len(pend)<4 and not last: continue
            A('s_waitcnt vmcnt(%d)'%(len(loads)-1-i))
            while pend:
                if first:
                    if len(pend)>=3: A('v_max3_u32 v13, v%d, v%d, v%d'%tuple(pend[:3])); pend=pend[3:]
                    else: A('v_max_u32 v13, v%d, v%d'%tuple(pend[:2])); pend=pend[2:]
                    first=False
                elif len(pend)>=2: A('v_max3_u32 v13, v13, v%d, v%d'%tuple(pend[:2])); pend=pend[2:]
                elif last: A('v_max_u32 v13, v13, v%d'%pend[0]); pend=[]
                else: break
        A('v_cmp_eq_u32 vcc, -1, v13')
        A('s_cbranch_vccz %s'%d)
        if sleep: A('s_sleep %d'%sleep)
        A('s_sub_u32 s61, s61, 1\ns_cmp_lg_u32 s61, 0\ns_cbranch_scc1 %s'%l)
        A('%s:'%d)
    def apoll(loads,par):
        import re as _re
        mode,D,sleep=par
        loads=[x.replace(' sc1',' '+cfg.lf) for x in loads]
        l=newlab('al'); d=newlab('ad'); gl=newlab('ag')
        rg=[]
        for x in loads:
            m=_re.search(r'v\[(\d+):(\d+)\]',x); rg.append(list(range(int(m.group(1)),int(m.group(2))+1)))
        def chain(t,r):
            r=list(r)
            if len(r)==2: A('v_max_u32 v%d, v%d, v%d'%(t,r[0],r[1])); return
            A('v_max3_u32 v%d, v%d, v%d, v%d'%(t,r[0],r[1],r[2])); r=r[3:]
            while r:
                if len(r)==1: A('v_max_u32 v%d, v%d, v%d'%(t,t,r[0])); r=[]
                else: A('v_max3_u32 v%d, v%d, v%d, v%d'%(t,t,r[0],r[1])); r=r[2:]
        n=len(loads)
        A('s_mov_b32 s61, %d'%cfg.spin)
        if mode in 'cm':
            A('%s:'%l)
            for x in loads: A(x)
            if sleep: A('s_sleep %d'%sleep)
            A('s_waitcnt vmcnt(%d)'%min(63,n*(D-1)))
            chain(13,sum(rg,[]))
            A('v_cmp_eq_u32 vcc, -1, v13')
            A('s_cbranch_vccz %s'%d)
            if mode=='m': A('s_mov_b64 exec, vcc')
            A('s_sub_u32 s61, s61, 1\ns_cmp_lg_u32 s61, 0\ns_cbranch_scc1 %s'%l)
            A('%s:'%d)
            if mode=='m': A('s_mov_b64 exec, s[4:5]')
        else:
            mk=['s[6:7]','s[8:9]','s[10:11]','s[40:41]','s[42:43]','s[44:45]','s[46:47]','s[62:63]'][:n]
            for m_ in mk: A('s_mov_b64 %s, s[4:5]'%m_)
            A('%s:'%l)
            for x,m_ in zip(loads,mk):
                sk=newlab('as')
                A('s_mov_b64 exec, %s\ns_cbranch_execz %s'%(m_,sk)); A(x); A('%s:'%sk)
            A('s_mov_b64 exec, s[4:5]')
            if sleep: A('s_sleep %d'%sleep)
            A('s_waitcnt vmcnt(%d)'%min(63,n*(D-1)))
            for i in range(n): chain(246+i,rg[i])
            chain(13,[246+i for i in range(n)])
            A('v_cmp_eq_u32 vcc, -1, v13')
            A('s_cbranch_vccz %s'%d)
            for i in range(n): A('v_cmp_eq_u32 %s, -1, v%d'%(mk[i],246+i))
            A('s_sub_u32 s61, s61, 1\ns_cmp_lg_u32 s61, 0\ns_cbranch_scc1 %s'%l)
            A('%s:'%d)
    def spoll(loads,hooks,pre=None,post=None):
        import re as _re
        l=newlab('sl'); d=newlab('sd')
        A('s_mov_b32 s61, %d'%cfg.spin)
        A('%s:'%l)
        if pre: A(pre)
        for x in loads: A(x)
        if post: A(post)
        first=True; pend=[]
        n=len(loads)
        for i,x in enumerate(loads):
            m=_re.search(r'v\[(\d+):(\d+)\]',x)
            pend+=list(range(int(m.group(1)),int(m.group(2))+1))
            if i<n-1 and i not in hooks: continue
            A('s_waitcnt vmcnt(%d)'%(n-1-i))
            chk=[]
            while pend:
                if first:
                    chk.append('v_max3_u32 v13, v%d, v%d, v%d'%tuple(pend[:3])); pend=pend[3:]; first=False
                elif len(pend)>=2: chk.append('v_max3_u32 v13, v13, v%d, v%d'%tuple(pend[:2])); pend=pend[2:]
                elif i==n-1: chk.append('v_max_u32 v13, v13, v%d'%pend[0]); pend=[]
                else: break
            if i==n-1: chk.append('v_cmp_eq_u32 vcc, -1, v13')
            h=list(hooks.get(i,[]))
            while h or chk:
                if h: A(h.pop(0))
                if chk: A(chk.pop(0))
        A('s_cbranch_vccz %s'%d)
        A('s_sub_u32 s61, s61, 1\ns_cmp_lg_u32 s61, 0\ns_cbranch_scc1 %s'%l)
        A('%s:'%d)
    def gate(n):
        if not n: return
        l=newlab('ga'); d=newlab('gb')
        A('s_mov_b32 s61, %d\n%s:\nglobal_load_dword v13, v14, %s sc1\ns_waitcnt vmcnt(0)\nv_cmp_ne_u32 vcc, -1, v13\ns_nop 1\ns_bcnt1_i32_b64 s6, vcc\ns_cmp_ge_u32 s6, %d\ns_cbranch_scc1 %s'%(cfg.spin,l,WS,n,d))
        A('s_sleep 2\ns_sub_u32 s61, s61, 1\ns_cmp_lg_u32 s61, 0\ns_cbranch_scc1 %s\n%s:'%(l,d))
    def flagpoll(voff,execmask):
        l=newlab('fl'); d=newlab('fd')
        A('s_mov_b32 s61, %d'%cfg.spin)
        A('s_mov_b64 exec, %s'%execmask)
        A('%s:'%l)
        A('global_load_dwordx4 v[72:75], v%d, %s sc1\ns_waitcnt vmcnt(0)'%(voff,WS))
        A('v_min3_u32 v13, v72, v73, v74\nv_min_u32 v13, v13, v75\nv_cmp_eq_u32 vcc, 0, v13\ns_cbranch_vccz %s'%d)
        A('s_sleep 16')
        A('s_sub_u32 s61, s61, 1\ns_cmp_lg_u32 s61, 0\ns_cbranch_scc1 %s'%l)
        A('%s:'%d)
        A('s_mov_b64 exec, -1')
    def CLASS():
        A('s_cmp_lg_u32 s53, 0\ns_cbranch_scc1 L_nofc')
        progress(cfg.pw0)
        flagpoll(79,'-1')
        A('ds_write_b128 v1, v[72:75] offset:%d'%L_DP)
        A('v_add_u32 v7, 256, v79\ns_mov_b32 s6, 0x03030303\ns_mov_b32 s7, s6\ns_waitcnt lgkmcnt(0)')
        flagpoll(7,'s[6:7]')
        A('s_and_b32 s54, s48, 3\ns_lshl_b32 s54, s54, 7\ns_lshl_b32 s55, s49, 2\ns_add_u32 s54, s54, s55\nv_mov_b32 v7, s54')
        A('s_mov_b32 s6, 0')
        for r in range(72,76):
            A('v_and_b32 v13, 2, v%d\nv_cmp_ne_u32 vcc, 0, v13\ns_nop 1\ns_bcnt1_i32_b64 s7, vcc\ns_add_u32 s6, s6, s7'%r)
        A('s_waitcnt lgkmcnt(0)\nds_read_b32 v13, v7 offset:%d\ns_waitcnt lgkmcnt(0)\nv_readfirstlane_b32 s7, v13'%L_DP)
        if cfg.diag: A('s_mov_b32 s9, s6')
        A('s_cmp_ge_u32 s6, 32\ns_cselect_b32 s6, 1, 0')
        if cfg.par is not None: A('s_mov_b32 s6, %d'%cfg.par)
        A('s_xor_b32 s7, s7, s48\ns_bfe_u32 s7, s7, 0x10002\ns_xor_b32 s7, s7, s6\ns_lshl_b32 s7, s7, 2\ns_lshl_b32 s6, s6, 1\ns_or_b32 s6, s6, s7\ns_or_b32 s6, s6, 1')
        A('v_mov_b32 v13, s6\nds_write_b32 v11, v13 offset:%d'%(L_CNT+8))
        if cfg.diag: A('s_cmp_lg_u32 s2, 0\ns_cbranch_scc1 L_nofc\nv_mov_b32 v13, s9\nv_mov_b32 v7, 8\nglobal_store_dword v7, v13, %s'%DBG)
        A('L_nofc:')
        lds_wait(11,L_CNT+8,1,6)
        A('s_bfe_u32 s11, s54, 0x10002\ns_bfe_u32 s54, s54, 0x10001\ns_xor_b32 s10, s10, s54')
    def tr128(dst,base):
        for s_ in range(4):
            A('ds_read_b64_tr_b16 v[%d:%d], v8 offset:%d'%(dst+4*s_,dst+4*s_+1,base+4096*s_))
            A('ds_read_b64_tr_b16 v[%d:%d], v8 offset:%d'%(dst+4*s_+2,dst+4*s_+3,base+4096*s_+512))

    A('v_mov_b32 v76, 0')
    A('s_cmp_lg_u32 s13, 0\ns_cbranch_scc1 L_noln')
    A('s_waitcnt vmcnt(9)')
    stamp(1)
    A('s_cmp_lg_u32 s53, 3\ns_cbranch_scc1 L_nog0\ns_mov_b64 exec, 1\nglobal_load_dword v76, v11, %s sc1\ns_mov_b64 exec, -1\nL_nog0:'%DBG)
    layernorm('x')
    A('L_noln:')
    A('s_waitcnt vmcnt(0)')
    lds_sync(0)
    stamp(2)
    A('s_lshl_b32 s54, s48, 2\ns_add_u32 s54, s54, s68\ns_lshl_b32 s54, s54, 9\ns_lshl_b32 s55, s69, 2\ns_add_u32 s54, s54, s55\ns_add_u32 s54, s54, s3\nv_mov_b32 v6, s54')
    A('s_getreg_b32 s10, hwreg(HW_REG_XCC_ID)\ns_bfe_u32 s10, s10, 0x10002')
    A('s_cmp_lg_u32 s53, 3\ns_cbranch_scc1 L_noflag')
    A('s_mov_b64 exec, 1\nv_cmp_eq_u32 vcc, 0, v76\ns_cbranch_vccz L_god')
    A('s_mov_b32 s61, %d\nL_go:\nglobal_load_dword v13, v11, %s sc1\ns_waitcnt vmcnt(0)\nv_cmp_eq_u32 vcc, 0, v13\ns_cbranch_vccz L_god'%(cfg.spin,DBG))
    A('s_sleep 8\ns_sub_u32 s61, s61, 1\ns_cmp_lg_u32 s61, 0\ns_cbranch_scc1 L_go\nL_god:')
    A('s_lshl_b32 s54, s10, 2\ns_or_b32 s54, s54, 1\nv_mov_b32 v7, s54\nglobal_store_dword v6, v7, %s sc1'%WS)
    A('s_mov_b64 exec, -1')
    A('L_noflag:')
    A('s_cmp_lg_u32 s13, 0\ns_cbranch_scc1 L_noq')
    for h in range(2):
        tr128(80+16*h,L_WA+16384*h)
        for s_ in range(4):
            A('ds_read_b128 v[%d:%d], v10 offset:%d'%(112+16*h+4*s_,115+16*h+4*s_,L_XN+256*h+64*s_))
        A('s_waitcnt lgkmcnt(0)')
    for s_ in range(8):
        A('v_mfma_f32_16x16x32_bf16 v[48:51], v[%d:%d], v[%d:%d], %s'%(80+4*s_,83+4*s_,112+4*s_,115+4*s_,'0' if s_==0 else 'v[48:51]'))
    A('s_mov_b32 exec_lo, 0x00ff00ff\ns_mov_b32 exec_hi, 0x00ff00ff')
    A('s_nop 5')
    A('global_store_dwordx4 v14, v[48:51], %s sc1'%WS)
    A('s_mov_b64 exec, -1')
    A('L_noq:')
    stamp(3)
    A('s_mov_b64 exec, 1\nds_add_u32 v11, v12 offset:%d\ns_mov_b64 exec, -1'%(L_CNT+12))
    A('s_cmp_eq_u32 s53, 0\ns_cbranch_scc1 L_qg\ns_cmp_lg_u32 s53, 1\ns_cbranch_scc1 L_qdone\ns_cmp_ge_u32 s49, 8\ns_cbranch_scc1 L_qdone')
    A('s_mov_b32 s6, 0')
    for i in range(cfg.NP):
        for c in ((0,1) if i%2==0 else (1,0)):
            l=newlab('pb'); d=newlab('pe')
            A('s_add_u32 s7, s9, %d\ns_mov_b32 s8, 0\ns_mov_b32 s61, 0\ns_load_dword s8, %s, s7'%(i*16384+c*8192,WS))
            A('%s:\ns_add_u32 s61, s61, 1\ns_cmp_gt_u32 s61, 0xffff\ns_cbranch_scc1 %s\ns_cmp_eq_u32 s8, 0\ns_cbranch_scc1 %s\n%s:\ns_waitcnt lgkmcnt(0)'%(l,d,l,d))
            if i>0: A('%s s6, s6, s61'%('s_add_i32' if c==0 else 's_sub_i32'))
    A('s_cmp_gt_i32 s6, 0\ns_cselect_b32 s6, 1, 0')
    A('s_xor_b32 s6, s6, s10\ns_lshl_b32 s6, s6, 1\ns_or_b32 s6, s6, 1\nv_mov_b32 v7, s6')
    lds_wait(11,L_CNT+12,4,2)
    A('s_mov_b64 exec, 1\nglobal_store_dword v6, v7, %s offset:256 sc1\ns_mov_b64 exec, -1\ns_branch L_qdone'%WS)
    A('L_qg:')
    A('v_and_b32 v6, 3, v0\nv_lshlrev_b32 v6, 9, v6\nv_lshrrev_b32 v14, 2, v0\nv_lshl_add_u32 v6, v14, 5, v6')
    A('s_lshl_b32 s54, s50, 12\ns_add_u32 s54, s54, %d\nv_add_u32 v6, s54, v6'%QP)
    A('s_and_b32 s54, s50, 7\ns_lshl_b32 s54, s54, 11\nv_add_u32 v7, s54, v79')
    lds_wait(11,L_CNT+12,4,2)
    progress(cfg.pq)
    if not cfg.skipF: flagpoll(7,'0xff')
    stamp(4)
    if not cfg.skipG: poll(['global_load_dwordx4 v[%d:%d], v6, %s offset:%d sc1'%(32+8*kq+4*h,35+8*kq+4*h,WS,2048*kq+16*h) for kq in range(2) for h in range(2)],None,sleep=8)
    for p in range(4):
        A('v_pk_add_f32 v[%d:%d], v[%d:%d], v[%d:%d]'%(32+2*p,33+2*p,32+2*p,33+2*p,40+2*p,41+2*p))
    for p in range(4):
        A('v_cvt_pk_bf16_f32 v%d, v%d, v%d'%(32+p,32+2*p,33+2*p))
    A('ds_write_b128 v1, v[32:35] offset:%d'%L_QL)
    stamp(5)
    A('s_waitcnt lgkmcnt(0)')
    if cfg.qflag: A('ds_write_b32 v11, v12 offset:%d'%(L_CNT+16))
    A('L_qdone:')
    if cfg.touch:
        A('s_lshl_b32 s54, s50, 21\ns_load_dword s4, %s, s54'%VP)
        A('s_load_dword s6, %s, 0\ns_load_dword s7, %s, 0\ns_load_dword s8, %s, 0'%(WG,WU,WD))
        A('s_lshl_b32 s54, s48, 19\ns_load_dword s9, %s, s54'%WO)
        A('s_waitcnt lgkmcnt(0)')
    A('s_setprio 0')
    if not cfg.qflag: A('s_barrier')

    A('s_mov_b32 s70, 0\ns_and_b32 s54, s49, 0x13\ns_cmp_eq_u32 s54, s51\ns_cselect_b32 s70, 2, s70')
    A('s_cmp_lt_u32 s48, 4\ns_cselect_b32 s6, 16, 12\ns_cselect_b32 s7, 8, 6\ns_cselect_b32 s8, 0, 8\ns_mul_i32 s14, s48, s7\ns_add_u32 s14, s14, s8')
    if cfg.helper: A('s_and_b32 s54, s49, 0x13\ns_xor_b32 s54, s54, 2\ns_cmp_eq_u32 s54, s51\ns_cselect_b32 s9, s49, 99\ns_cmp_lt_u32 s9, s6\ns_cselect_b32 s70, 4, s70')
    A('s_sub_u32 s54, s49, 16\ns_cmp_lt_u32 s54, s6\ns_cselect_b32 s70, 1, s70')
    A('s_xor_b32 s55, s2, s49\ns_and_b32 s55, s55, 1\ns_cselect_b32 s70, 3, s70')
    A('s_bfe_u32 s54, s49, 0x30001\ns_add_u32 s14, s14, s54')
    A('s_lshr_b32 s15, s49, 2\ns_add_u32 s54, s48, %d\ns_and_b32 s54, s54, 7\ns_lshl_b32 s54, s54, 2\ns_add_u32 s15, s15, s54'%cfg.crot)
    CLASS()
    A('s_lshr_b32 s13, s2, 1\ns_andn2_b32 s13, s13, 2\ns_lshl_b32 s54, s11, 1\ns_or_b32 s13, s13, s54')
    A('s_and_b32 s54, s48, 3\ns_lshl_b32 s54, s54, 2\ns_add_u32 s67, s54, s68\ns_lshl_b32 s54, s11, 4\ns_add_u32 s67, s67, s54')
    A('s_bfe_u32 s69, s49, 0x20001')
    A('v_and_b32 v6, 3, v0\nv_lshlrev_b32 v6, 2, v6\nv_lshrrev_b32 v7, 4, v0\nv_add_u32 v6, v6, v7')
    A('v_bfe_u32 v7, v0, 2, 1')
    A('v_lshrrev_b32 v24, 3, v0\nv_lshlrev_b32 v24, 13, v24\nv_and_b32 v13, 7, v0\nv_lshl_add_u32 v24, v13, 3, v24')
    A('s_and_b32 s54, s13, 31\ns_lshl_b32 s54, s54, 8\ns_lshr_b32 s55, s13, 5\ns_lshl_b32 s55, s55, 6\ns_add_u32 s54, s54, s55\ns_add_u32 s54, s54, %d\nv_add_u32 v24, s54, v24\ns_mov_b32 s55, s13'%HB)
    A('v_lshlrev_b32 v6, 1, v6\nv_lshl_add_u32 v6, v7, 10, v6\ns_lshr_b32 s54, s55, 5\ns_lshl_b32 s54, s54, 11\ns_and_b32 s55, s55, 31\ns_lshl_b32 s55, s55, 5\ns_add_u32 s54, s54, s55\nv_add_u32 v6, s54, v6')
    A('global_load_ushort v16, v6, %s'%X)
    def paced(k,n,line):
        if cfg.nb:
            nb=min(cfg.nb,n); span=16//nb
            bi=lambda k:(k*nb)//n
            if k==0 or bi(k)!=bi(k-1):
                A('s_lshr_b32 s55, s49, 1\ns_and_b32 s55, s55, %d\ns_add_u32 s55, s55, %d'%(span-1,cfg.pw0+1+span*bi(k)))
                progress('s55')
            assert cfg.pw0+16<cfg.NS-1
            A(line); return
        f=lambda k: cfg.pw0+(k*(cfg.pw1-cfg.pw0))//n
        if k==0 or f(k)!=f(k-1): progress(f(k))
        assert f(k)<cfg.NS
        A(line)
    def dma1(k):
        i=k//2
        return ('v_add_u32 v7, %d, v6\n'%(i*16*3584))+'s_add_u32 m0, s71, %d\ns_nop 0\nglobal_load_lds_dwordx4 v7, %s %s'%(L_WA+32768*(k&1)+i*1024,WU if k&1 else WG,cfg.ff)
    def dma2(i):
        return ('v_add_u32 v7, %d, v6\n'%(i*0x8000))+'s_add_u32 m0, s71, %d\ns_nop 0\nglobal_load_lds_dwordx4 v7, %s %s'%(L_WA+i*1024,WD,cfg.ff)
    l1=newlab('w1'); l2=newlab('w2'); le=newlab('we')
    A('s_cmp_eq_u32 s70, 0\ns_cbranch_scc1 %s\ns_cmp_eq_u32 s70, 2\ns_cbranch_scc1 %s\ns_cmp_lg_u32 s70, 3\ns_cbranch_scc1 %s'%(le,l2,l1))
    A('s_lshl_b32 s54, s67, 7\ns_lshl_b32 s55, s53, 1\ns_add_u32 s54, s54, s55\ns_lshl_b32 s54, s54, 10\ns_lshl_b32 s55, s69, 8\ns_add_u32 s54, s54, s55')
    A('v_lshrrev_b32 v6, 4, v0\nv_lshlrev_b32 v6, 13, v6\nv_and_b32 v7, 15, v0\nv_lshl_add_u32 v6, v7, 4, v6\nv_add_u32 v6, s54, v6')
    A('s_lshl_b32 s71, s53, 13')
    def dmaw(i):
        return 'v_add_u32 v7, %d, v6\ns_add_u32 m0, s71, %d\ns_nop 0\nglobal_load_lds_dwordx4 v7, %s %s'%((32*(i&3)+(i>>2))*1024,L_WA+i*1024,WO,cfg.wf)
    for i in range(0 if cfg.noW else cfg.EW): paced(i,cfg.EW,dmaw(i))
    A('s_branch %s'%le)
    A('%s:'%l1)
    A('s_lshl_b32 s54, s14, 6')
    A('s_lshl_b32 s55, s53, 7\nv_lshrrev_b32 v6, 2, v0\nv_add_u32 v6, s55, v6\nv_mul_u32_u24 v6, 3584, v6\nv_and_b32 v7, 3, v0\nv_lshl_add_u32 v6, v7, 4, v6\nv_add_u32 v6, s54, v6')
    A('s_lshl_b32 s71, s53, 13')
    A('s_cmp_eq_u32 s70, 4\ns_cbranch_scc1 %s'%le)
    for k in range(cfg.E1): paced(k,cfg.E1,dma1(k))
    A('s_branch %s'%le)
    A('%s:'%l2)
    A('s_mul_i32 s54, s53, 448\nv_lshrrev_b32 v6, 1, v0\nv_add_u32 v6, s54, v6\nv_lshlrev_b32 v6, 10, v6')
    A('v_and_b32 v7, 1, v0\nv_lshl_add_u32 v6, v7, 4, v6\ns_lshl_b32 s54, s15, 5\nv_add_u32 v6, s54, v6')
    A('s_mul_i32 s71, s53, 14336')
    for k in range(cfg.E2): paced(k,cfg.E2,dma2(k))
    A('%s:'%le)
    A('s_waitcnt vmcnt(0)')
    A('v_lshlrev_b32 v16, 16, v16')
    lds_sync(1,sleep=4)
    stamp(6)
    l1=newlab('r1'); l2=newlab('r2'); le=newlab('re')
    A('v_mov_b32 v26, 0\nv_mov_b32 v27, 0\nv_mov_b32 v28, 0\nv_mov_b32 v29, 0')
    A('s_cmp_eq_u32 s70, 1\ns_cbranch_scc1 %s\ns_cmp_eq_u32 s70, 2\ns_cbranch_scc1 %s'%(l1,l2))
    A('v_lshrrev_b32 v8, 4, v0\nv_lshlrev_b32 v8, 11, v8\nv_bfe_u32 v7, v0, 2, 2\nv_lshl_add_u32 v8, v7, 8, v8\nv_and_b32 v7, 3, v0\nv_lshl_add_u32 v8, v7, 3, v8')
    A('s_lshl_b32 s54, s53, 6\ns_add_u32 s54, s54, %d\nv_add_u32 v8, s54, v8'%L_WA)
    def trw():
        for t in range(2):
            for s_ in range(4):
                r=80+16*t+4*s_
                A('ds_read_b64_tr_b16 v[%d:%d], v8 offset:%d'%(r,r+1,8192*s_+32*t))
                A('ds_read_b64_tr_b16 v[%d:%d], v8 offset:%d'%(r+2,r+3,8192*s_+32*t+1024))
            if t==0 or cfg.EW==8: A('s_waitcnt lgkmcnt(0)')
    if cfg.EW==8: trw()
    A('s_branch %s'%le)
    A('%s:'%l1)
    A('v_lshrrev_b32 v8, 4, v0\nv_lshlrev_b32 v8, 9, v8\nv_bfe_u32 v7, v0, 2, 2\nv_lshl_add_u32 v8, v7, 6, v8')
    A('v_and_b32 v7, 1, v0\nv_lshl_add_u32 v8, v7, 3, v8\nv_bfe_u32 v7, v0, 1, 1\nv_lshl_add_u32 v8, v7, 15, v8\ns_add_u32 s54, s71, %d\nv_add_u32 v8, s54, v8'%L_WA)
    A('s_mul_i32 s55, s14, 147\ns_lshr_b32 s55, s55, 11\ns_mul_i32 s55, s55, %d'%(16384-7168))
    A('s_lshl_b32 s54, s14, 2\ns_add_u32 s54, s54, s53\ns_lshl_b32 s54, s54, 7\ns_add_u32 s54, s54, s55\ns_add_u32 s54, s54, %d'%AB)
    A('v_and_b32 v27, 0x70, v1\nv_lshrrev_b32 v7, 4, v0\nv_lshl_add_u32 v27, v7, 16, v27\nv_bfe_u32 v7, v0, 3, 1\nv_lshlrev_b32 v7, 13, v7\nv_add3_u32 v27, v27, v7, s54')
    A('s_and_b32 s55, s48, %d\ns_lshl_b32 s55, s55, 14\ns_lshl_b32 s54, s10, 13\ns_add_u32 s54, s54, s55\ns_lshl_b32 s55, s53, 11\ns_add_u32 s54, s54, s55\ns_add_u32 s54, s54, %d'%(cfg.nH//2-1,HB))
    A('v_and_b32 v4, 7, v0\nv_lshlrev_b32 v4, 5, v4\nv_lshrrev_b32 v7, 5, v0\nv_lshl_add_u32 v4, v7, 8, v4\nv_and_b32 v7, 16, v0\nv_add3_u32 v4, v4, v7, s54')
    A('s_mul_i32 s54, s53, 5120\nv_add_u32 v10, s54, v1')
    A('v_and_b32 v5, 0x17, v0\nv_lshlrev_b32 v5, 4, v5\nv_bfe_u32 v7, v0, 3, 1\nv_lshl_add_u32 v5, v7, 3, v5\nv_lshrrev_b32 v7, 5, v0\nv_lshl_add_u32 v5, v7, 2, v5\ns_lshl_b32 s54, s53, 10\nv_add_u32 v5, s54, v5')
    A('v_and_b32 v9, 7, v0\nv_lshlrev_b32 v9, 4, v9\nv_bfe_u32 v7, v0, 2, 1\nv_lshl_add_u32 v9, v7, 8, v9\nv_and_b32 v7, 3, v0\nv_lshl_add_u32 v9, v7, 2, v9')
    for p in range(4): A('v_add_u32 v%d, %d, v5\nv_add_u32 v%d, %d, v9'%(160+p,L_XN+5120*p,164+p,L_XN+5120*p+4096))
    A('s_branch %s'%le)
    A('%s:'%l2)
    A('v_lshrrev_b32 v8, 4, v0\nv_lshlrev_b32 v8, 9, v8\nv_bfe_u32 v7, v0, 1, 1\nv_lshl_add_u32 v8, v7, 8, v8\nv_bfe_u32 v7, v0, 2, 2\nv_lshl_add_u32 v8, v7, 5, v8')
    A('v_and_b32 v7, 1, v0\nv_lshl_add_u32 v8, v7, 3, v8\ns_add_u32 s55, s71, %d\nv_add_u32 v8, s55, v8'%L_WA)
    A('v_bfe_u32 v26, v0, 2, 1\nv_lshlrev_b32 v26, 10, v26\nv_bfe_u32 v7, v0, 1, 1\nv_lshl_add_u32 v26, v7, 8, v26\nv_lshrrev_b32 v7, 3, v0\nv_lshl_add_u32 v26, v7, 4, v26\nv_and_b32 v7, 1, v0\nv_lshl_add_u32 v26, v7, 3, v26')
    A('s_and_b32 s55, s48, %d\ns_lshl_b32 s55, s55, 16\ns_lshl_b32 s54, s53, 14\ns_add_u32 s54, s54, s55\ns_lshl_b32 s55, s10, 13\ns_add_u32 s54, s54, s55\ns_add_u32 s54, s54, %d\nv_add_u32 v27, s54, v1'%(cfg.nA//2-1,AB+3072))
    A('s_mov_b32 s54, s15\ns_lshl_b32 s55, s54, 5')
    A('v_lshrrev_b32 v28, 3, v0\nv_lshlrev_b32 v28, 10, v28\nv_and_b32 v7, 7, v0\nv_lshl_add_u32 v28, v7, 2, v28\nv_add_u32 v28, s55, v28')
    A('s_lshl_b32 s54, s54, 8\ns_and_b32 s55, s48, %d\ns_lshl_b32 s55, s55, 14\ns_add_u32 s54, s54, s55\ns_lshl_b32 s55, s10, 13\ns_add_u32 s54, s54, s55\ns_add_u32 s54, s54, %d'%(cfg.nH//2-1,HB))
    A('v_lshl_add_u32 v29, v0, 2, s54')
    A('s_lshl_b32 s54, s53, 11\nv_add_u32 v10, s54, v1')
    A('%s:'%le)
    A('s_lshl_b32 s54, s53, 9\nv_add_u32 v17, s54, v3')
    A('s_and_b32 s54, s50, 3\ns_lshl_b32 s54, s54, 2\ns_add_u32 s54, s54, s53\ns_mul_i32 s54, s54, 49152\ns_bfe_u32 s55, s50, 0x10002\ns_lshl_b32 s55, s55, 13\ns_add_u32 s54, s54, s55')
    A('s_lshr_b32 s6, s50, 3\ns_mul_i32 s7, s6, 11\ns_lshr_b32 s7, s7, 5\ns_mul_i32 s7, s7, %d\ns_lshl_b32 s6, s6, 2\ns_add_u32 s6, s6, s51\ns_mul_i32 s6, s6, %d'%(16384-12*OPS,OPS))
    A('s_add_u32 s54, s54, s6\ns_add_u32 s54, s54, s7\ns_add_u32 s54, s54, %d\nv_add_u32 v18, s54, v1'%OP)
    A('s_and_b32 s54, s67, 15\ns_mul_i32 s54, s54, 49152\ns_lshl_b32 s55, s11, 13\ns_add_u32 s54, s54, s55\ns_add_u32 s54, s54, %d'%OP)
    A('v_mul_u32_u24 v7, 11, v2\nv_lshrrev_b32 v7, 5, v7\nv_mul_u32_u24 v7, %d, v7\nv_mul_u32_u24 v25, %d, v2\nv_add3_u32 v25, v25, v7, s54\nv_add_u32 v19, v25, v3'%(16384-12*OPS,4*OPS))
    if cfg.G1 or cfg.G2:
        A('v_bfe_u32 v14, v0, 2, 3\nv_mul_u32_u24 v7, 11, v14\nv_lshrrev_b32 v7, 5, v7\nv_mul_u32_u24 v7, %d, v7\nv_and_b32 v14, 31, v0\nv_mul_u32_u24 v14, %d, v14\nv_add_u32 v14, v14, v7'%(16384-12*OPS,OPS))
        A('v_lshrrev_b32 v7, 5, v0\nv_add_u32 v7, s48, v7\nv_and_b32 v7, 3, v7\nv_mul_u32_u24 v7, %d, v7\ns_lshl_b32 s54, s10, 13\ns_add_u32 s54, s54, %d\nv_add3_u32 v14, v14, v7, s54'%(4*49152,OP+512))
    A('s_lshl_b32 s54, s53, 5\nv_mov_b32 v30, s54')
    A('v_mul_u32_u24 v20, %d, v2\nv_lshrrev_b32 v7, 1, v3\nv_add_u32 v20, v20, v7'%XOS)
    A('v_and_b32 v21, 7, v0\nv_mul_u32_u24 v21, %d, v21\nv_add_u32 v21, v21, v15'%XOS)
    A('s_lshl_b32 s54, s69, 2\ns_add_u32 s54, s54, s53\ns_lshl_b32 s54, s54, 13\ns_add_u32 s54, s54, %d'%(WP+2048))
    A('s_lshl_b32 s55, s69, 1\ns_add_u32 s55, s55, s67' if cfg.wrot else 's_mov_b32 s55, s67')
    A('v_bfe_u32 v22, v0, 1, 2')
    A('v_lshl_add_u32 v7, v22, 3, s55' if cfg.wrot else 'v_mov_b32 v7, s55')
    A('v_and_b32 v7, 31, v7\nv_lshlrev_b32 v22, 17, v22\nv_lshl_add_u32 v22, v7, 7, v22\nv_and_b32 v7, 1, v0\nv_lshl_add_u32 v22, v7, 6, v22\nv_add3_u32 v22, v22, v15, s54')
    A('s_lshl_b32 s54, s13, 12\ns_add_u32 s54, s54, %d\nv_add_u32 v23, s54, v1'%WP)
    def guarded(lines):
        A(lines)
    def drychk():
        pass
    for r in range(192,246): A('v_mov_b32 v%d, -1'%r)
    A('s_waitcnt lgkmcnt(0)')
    A('s_mov_b64 vcc, 0\ns_mov_b64 s[4:5], %d\ns_mov_b64 exec, s[4:5]'%(0 if cfg.warm else -1))
    wpl=['global_load_dwordx4 v[%d:%d], v23, %s offset:%d sc1'%(216+4*t,219+4*t,WS,1024*t) for t in range(4)]
    opl=['global_load_dwordx2 v[%d:%d], v25, %s offset:%d sc1'%(208+2*s_,209+2*s_,WS,OPS*s_+512) for s_ in range(4)]+['global_load_dwordx4 v[%d:%d], v19, %s offset:%d sc1'%(192+4*s_,195+4*s_,WS,OPS*s_) for s_ in range(4)]
    hbl=['global_load_dwordx4 v[%d:%d], v4, %s offset:%d sc1'%(216+4*t,219+4*t,WS,1024*t) for t in range(4)]
    abl=['global_load_dwordx4 v[%d:%d], v27, %s offset:%d sc1'%(216+4*t,219+4*t,WS,1024*t-3072) for t in range(7)]
    if cfg.pre:
        A('s_cmp_lg_u32 s70, 3\ns_cbranch_scc1 L_pre1')
        if cfg.pre&2: A('\n'.join(opl))
        A('s_cmp_lg_u32 s53, 0\ns_cbranch_scc1 L_pre3')
        if cfg.pre&1: A('\n'.join(wpl))
        A('s_branch L_pre3\nL_pre1:')
        if cfg.pre&4:
            A('s_cmp_lg_u32 s70, 1\ns_cbranch_scc1 L_pre2'); A('\n'.join(hbl)); A('L_pre2:\ns_cmp_lg_u32 s70, 2\ns_cbranch_scc1 L_pre3'); A('\n'.join(abl))
        A('L_pre3:')
    if cfg.disp:
        A('s_cmp_lg_u32 s53, 2\ns_cbranch_scc1 L_tail')
        A('s_lshl_b32 s54, s50, %d\ns_add_u32 s54, s54, %d\ns_add_u32 s40, s38, s54\ns_addc_u32 s41, s39, 0'%(cfg.cs,CTR))
        lds_wait(31,L_PR,cfg.NS-1,2)
        thr,small,keep2=cfg.gd or (0,cfg.disp,cfg.disp-cfg.LA)
        A('s_mov_b32 s42, 0\ns_mov_b32 s44, %d\ns_mov_b32 s45, %d'%(cfg.disp,cfg.disp-cfg.LA))
        A('L_dsp:')
        A('s_mov_b32 s43, s44\ns_atomic_add s43, s[40:41], 0x0 glc\nv_add_lshl_u32 v7, v0, s42, 2\ns_bfm_b64 s[46:47], s44, 0\ns_waitcnt lgkmcnt(0)\ns_add_u32 s43, s43, 1\ns_min_u32 s43, s43, 4096\ns_add_u32 s43, s43, %d\nv_add_u32 v13, s43, v0'%(cfg.NS*16))
        A('s_add_u32 s55, s43, s44\ns_cmp_ge_u32 s55, 512\ns_cbranch_scc1 L_dspd')
        A('s_mov_b64 exec, s[46:47]\nds_write_b32 v7, v13 offset:%d\ns_mov_b64 exec, -1'%(L_CNT+64))
        A('s_add_u32 s42, s42, s44\ns_cmp_ge_u32 s43, %d\ns_cselect_b32 s44, %d, s44\ns_cselect_b32 s45, %d, s45\ns_sub_i32 s55, s42, s45\ns_max_i32 s55, s55, 0'%(512-thr,small,keep2))
        lds_wait(11,L_CNT+24,'s55',1)
        A('s_branch L_dsp')
        A('L_dspd:')
        A('s_mov_b64 exec, 0xff\nds_write_b32 v7, v13 offset:%d\ns_mov_b64 exec, -1'%(L_CNT+64))
        A('s_waitcnt lgkmcnt(0)')
    A('L_tail:')
    stamp(7)
    guarded('s_barrier')
    def wstep(b0,s0,w):
        o=[]
        for half in range(2):
            d='v[%d:%d]'%(b0+2*half,b0+2*half+1); src='v[%d:%d]'%(s0+4*w+2*half,s0+4*w+2*half+1); f='v[%d:%d]'%(72+2*(w//2),73+2*(w//2))
            if w==0: o.append('v_pk_mul_f32 %s, %s, %s op_sel_hi:[1,0]'%(d,src,f))
            elif w%2==0: o.append('v_pk_fma_f32 %s, %s, %s, %s op_sel_hi:[1,0,1]'%(d,src,f,d))
            else: o.append('v_pk_fma_f32 %s, %s, %s, %s op_sel:[0,1,0] op_sel_hi:[1,1,1]'%(d,src,f,d))
        return o
    def wsum2(b0,s0):
        for w in range(4): A('\n'.join(wstep(b0,s0,w)))
    def wsum(b0,half,s0=None):
        d='v[%d:%d]'%(b0+2*half,b0+2*half+1)
        s0=s0 or b0
        for w in range(4):
            src='v[%d:%d]'%(s0+4*w+2*half,s0+4*w+2*half+1)
            f='v[%d:%d]'%(72+2*(w//2),73+2*(w//2))
            if w==0: A('v_pk_mul_f32 %s, %s, %s op_sel_hi:[1,0]'%(d,src,f))
            elif w%2==0: A('v_pk_fma_f32 %s, %s, %s, %s op_sel_hi:[1,0,1]'%(d,src,f,d))
            else: A('v_pk_fma_f32 %s, %s, %s, %s op_sel:[0,1,0] op_sel_hi:[1,1,1]'%(d,src,f,d))
    if cfg.gleak is not None:
        k,lo,hi,msk=cfg.gleak
        A('s_cbranch_execz L_nogl\ns_cmp_lg_u32 s53, 0\ns_cbranch_scc1 L_nogl')
        if k==8: stamp(8); A('s_waitcnt lgkmcnt(0)')
        if k==200: A('s_getreg_b32 s72, hwreg(HW_REG_XCC_ID)\ns_sub_u32 s72, s72, s48\ns_and_b32 s72, s72, 7\ns_mul_i32 s72, s72, 50\nv_mov_b32 v33, s72')
        elif k>=100: A('v_mov_b32 v32, %d\nds_read_b32 v33, v32 offset:%d\ns_waitcnt lgkmcnt(0)'%(4*(k-100),L_ST))
        else: A('v_mov_b32 v33, s%d'%(72+2*k))
        A('v_not_b32 v33, v33\nv_mov_b32 v34, s72\nv_mov_b32 v32, 0x3b0000')
        A('s_mov_b64 exec, 1')
        if k!=8: A('global_atomic_umin v32, v34, %s'%WS)
        A('s_and_b32 s54, s2, %d\ns_sub_u32 s54, s54, %d\ns_cmp_ge_u32 s54, %d\ns_cbranch_scc1 L_nogl2'%(msk,lo,hi-lo))
        A('global_atomic_umin v32, v33, %s offset:256'%WS)
        A('L_nogl2:\ns_mov_b64 exec, -1\n'+('s_nop 2' if k==8 else 's_waitcnt vmcnt(0)'))
        A('L_nogl:')
    A('ds_read_b128 v[64:67], v30 offset:%d\nds_read_b128 v[68:71], v30 offset:%d'%(L_MLW,L_MLW+16))
    for w in range(4):
        A('ds_read_b128 v[%d:%d], v17 offset:%d'%(32+4*w,35+4*w,L_OW+2048*w))
    stamp(8)
    if cfg.notail: A('s_branch L_fin')
    A('s_and_b32 exec_hi, s4, 1')
    A('s_waitcnt lgkmcnt(%d)'%(0 if cfg.diag else 4))
    A('v_max3_f32 v76, v64, v65, v66\nv_max_f32 v76, v76, v67')
    A('v_pk_add_f32 v[72:73], v[64:65], v[76:77] op_sel_hi:[1,0] neg_lo:[0,1] neg_hi:[0,1]')
    A('v_pk_add_f32 v[74:75], v[66:67], v[76:77] op_sel_hi:[1,0] neg_lo:[0,1] neg_hi:[0,1]')
    for i in range(4): A('v_exp_f32 v%d, v%d'%(72+i,72+i))
    A('v_pk_mul_f32 v[68:69], v[68:69], v[72:73]\nv_pk_fma_f32 v[68:69], v[70:71], v[74:75], v[68:69]')
    A('s_waitcnt lgkmcnt(0)')
    A('v_add_f32 v77, v68, v69')
    wsum2(32,32)
    A('s_nop 0')
    A('v_mov_b32_dpp v32, v76 quad_perm:[0,1,2,3] row_mask:0x4 bank_mask:0xf')
    A('v_mov_b32_dpp v33, v77 quad_perm:[0,1,2,3] row_mask:0x4 bank_mask:0xf')
    guarded('global_store_dwordx4 v18, v[32:35], %s %s'%(WS,cfg.sf))
    tstamp(1)
    A('s_mov_b64 exec, s[4:5]')
    A('s_cmp_lg_u32 s70, 3\ns_cbranch_scc1 L_rdone')
    if cfg.EW<8:
        for i in range(cfg.EW,8): A(dmaw(i))
        A('s_waitcnt vmcnt(0)\ns_barrier')
        trw()
    wts=['v_max3_f32 v76, v208, v210, v212','v_max_f32 v76, v76, v214']+['v_sub_f32 v%d, v%d, v76'%(72+i,208+2*i) for i in range(4)]+['v_exp_f32 v%d, v%d'%(72+i,72+i) for i in range(4)]
    wts+=['v_mul_f32 v78, v72, v209']+['v_fmac_f32 v78, v%d, v%d'%(72+i,209+2*i) for i in range(1,4)]+['v_rcp_f32 v78, v78','s_nop 0']
    wts+=['v_pk_mul_f32 v[72:73], v[72:73], v[78:79] op_sel_hi:[1,0]','v_pk_mul_f32 v[74:75], v[74:75], v[78:79] op_sel_hi:[1,0]']
    hk={3:wts}
    for w in range(4): hk[4+w]=wstep(48,192,w)
    spoll(opl,hk)
    stamp(9)
    A('v_cvt_pk_bf16_f32 v48, v48, v49\nv_cvt_pk_bf16_f32 v49, v50, v51')
    A('ds_write_b64 v20, v[48:49] offset:%d'%L_XO)
    A('s_waitcnt lgkmcnt(0)'); guarded('s_barrier')
    if cfg.tdiag: tstamp(2); A('s_waitcnt lgkmcnt(0)')
    for s_ in range(4):
        A('ds_read_b128 v[%d:%d], v21 offset:%d'%(32+4*s_,35+4*s_,L_XO+64*s_))
    for s_ in range(4):
        A('s_waitcnt lgkmcnt(%d)'%(3-s_))
        for t in range(2):
            acc='v[%d:%d]'%(48+4*t,51+4*t); r=80+16*t+4*s_
            A('v_mfma_f32_16x16x32_bf16 %s, v[%d:%d], v[%d:%d], %s'%(acc,r,r+3,32+4*s_,35+4*s_,'0' if s_==0 else acc))
    A('s_mov_b32 exec_lo, 0x00ff00ff\ns_mov_b32 exec_hi, 0x00ff00ff')
    A('s_nop 4')
    A('global_store_dwordx4 v22, v[48:51], %s offset:-2048 %s'%(WS,cfg.sf))
    A('global_store_dwordx4 v22, v[52:55], %s offset:2048 %s'%(WS,cfg.sf))
    tstamp(3)
    A('s_mov_b64 exec, -1')
    A('s_cmp_lg_u32 s53, 0\ns_cbranch_scc1 L_fin')
    apoll(['global_load_dwordx4 v[%d:%d], v23, %s offset:%d sc1'%(216+4*t,219+4*t,WS,1024*t) for t in range(4)],cfg.pR)
    stamp(10)
    A('v_pk_add_f32 v[32:33], v[216:217], v[220:221]\nv_pk_add_f32 v[34:35], v[218:219], v[222:223]')
    A('v_pk_add_f32 v[40:41], v[224:225], v[228:229]\nv_pk_add_f32 v[42:43], v[226:227], v[230:231]')
    A('v_pk_add_f32 v[32:33], v[32:33], v[40:41]\nv_pk_add_f32 v[34:35], v[34:35], v[42:43]')
    A('s_nop 1\nv_permlane32_swap_b32 v32, v34\nv_permlane32_swap_b32 v33, v35')
    A('v_add_f32 v32, v32, v34\nv_add_f32 v33, v33, v35')
    A('s_nop 1\nv_permlane16_swap_b32 v32, v33\nv_add_f32 v32, v32, v33')
    dppadd(32,'row_ror:8')
    rbf(32)
    A('v_add_f32 v32, v32, v16\nv_mov_b32 v33, v32\ns_nop 1')
    A('v_permlane16_swap_b32 v32, v33\nv_cvt_pk_bf16_f32 v32, v32, v33\nv_min_u32 v32, -2, v32\nv_mov_b32 v33, v32\ns_nop 1')
    A('v_permlane32_swap_b32 v32, v33')
    A('global_store_dwordx2 v24, v[32:33], %s %s'%(WS,cfg.sf))
    tstamp(4)
    A('s_branch L_fin')
    A('L_rdone:')
    A('s_cmp_eq_u32 s70, 2\ns_cbranch_scc1 L_ffn2')
    A('s_cmp_eq_u32 s70, 0\ns_cbranch_scc1 L_fin')
    gate(cfg.G1)
    if cfg.lrot:
        assert cfg.E1%2==0
        i0=cfg.E1//2; n=8-i0
        if cfg.helper: A('s_and_b32 s6, s14, 1\ns_cmp_eq_u32 s70, 4\ns_cselect_b32 s6, 2, s6\ns_mul_i32 s6, s6, %d\ns_add_u32 s6, s6, %d'%(n//3,i0))
        else: A('s_and_b32 s6, s14, 1\ns_mul_i32 s6, s6, %d\ns_add_u32 s6, s6, %d'%(n//2,i0))
        for it in range(n):
            if cfg.helper and it==n-2*(n//3): A('s_cmp_eq_u32 s70, 4\ns_cbranch_scc1 L_fin')
            A('s_mul_i32 s7, s6, %d\nv_add_u32 v7, s7, v6\ns_lshl_b32 s7, s6, 10\ns_add_u32 s7, s7, s71\ns_add_u32 m0, s7, %d\ns_add_u32 s6, s6, 1'%(16*3584,L_WA))
            A('global_load_lds_dwordx4 v7, %s %s'%(WG,cfg.ff))
            A('s_add_u32 m0, s7, %d\ns_cmp_eq_u32 s6, 8\ns_cselect_b32 s6, %d, s6'%(L_WA+32768,i0))
            A('global_load_lds_dwordx4 v7, %s %s'%(WU,cfg.ff))
    else:
        for k in range(cfg.E1,16): A(dma1(k))
    A('s_mov_b32 exec_lo, 0xff00ff00\ns_mov_b32 exec_hi, 0xff00ff00')
    for r in range(216,232): A('v_mov_b32 v%d, 0x3f803f80'%r)
    A('s_mov_b64 exec, -1')
    A('s_waitcnt vmcnt(0)')
    for t in range(4):
        for s_ in range(4):
            r=96+16*t+4*s_
            A('ds_read_b64_tr_b16 v[%d:%d], v8 offset:%d'%(r,r+1,2048*s_+16*t))
            A('ds_read_b64_tr_b16 v[%d:%d], v8 offset:%d'%(r+2,r+3,2048*s_+16*t+256))
        A('s_waitcnt lgkmcnt(0)')
    tstamp(2)
    hk={}
    for s_ in range(4):
        B='v[%d:%d]'%(216+4*s_,219+4*s_); hk[s_]=[]
        for t in (4,0,1,2,3):
            acc='v[%d:%d]'%(32+4*t,35+4*t)
            Aop=B if t==4 else 'v[%d:%d]'%(96+16*t+4*s_,99+16*t+4*s_)
            hk[s_].append('v_mfma_f32_16x16x32_bf16 %s, %s, %s, %s'%(acc,Aop,B,'0' if s_==0 else acc))
    ns_=cfg.f1s
    spoll(['global_load_dwordx4 v[%d:%d], v4, %s offset:%d sc1'%(216+4*t,219+4*t,WS,512*t) for t in range(4)],{i:(hk[i] if i<ns_ else []) for i in range(4)},
          pre='s_mov_b32 exec_lo, 0x00ff00ff\ns_mov_b32 exec_hi, 0x00ff00ff',post='s_mov_b64 exec, -1')
    stamp(11)
    for i in range(ns_,4): A('\n'.join(hk[i]))
    A('s_nop 3')
    for t in (4,0,1,2,3):
        A('ds_write_b128 v10, v[%d:%d] offset:%d'%(32+4*t,35+4*t,L_XN+1024*t))
    tstamp(5)
    A('s_waitcnt lgkmcnt(0)\ns_barrier')
    if cfg.tdiag: tstamp(6); A('s_waitcnt lgkmcnt(0)')
    for p in range(4): A('ds_read2_b32 v[%d:%d], v%d offset0:0 offset1:32'%(52+2*p,53+2*p,164+p))
    for p in range(4):
        A('ds_read2_b32 v[%d:%d], v%d offset0:0 offset1:32'%(60+2*p,61+2*p,160+p))
        A('ds_read2_b32 v[%d:%d], v%d offset0:128 offset1:160'%(68+2*p,69+2*p,160+p))
    A('s_waitcnt lgkmcnt(8)')
    A('v_pk_add_f32 v[52:53], v[52:53], v[54:55]\nv_pk_add_f32 v[56:57], v[56:57], v[58:59]\nv_pk_add_f32 v[52:53], v[52:53], v[56:57]')
    A('v_mul_f32 v53, 0xbb000000, v53\nv_mul_f32 v52, 0x3b000000, v52')
    A('v_fma_f32 v52, -v53, v53, v52\nv_cvt_pk_bf16_f32 v53, 0, v53\nv_max_f32 v52, 0, v52\nv_cvt_pk_bf16_f32 v52, 0, v52\nv_add_f32 v52, 0x3727c5ac, v52')
    A('v_cvt_pk_bf16_f32 v52, 0, v52\nv_sqrt_f32 v52, v52')
    A('s_waitcnt lgkmcnt(0)')
    A('v_pk_add_f32 v[60:61], v[60:61], v[62:63]\nv_cvt_pk_bf16_f32 v52, 0, v52\nv_pk_add_f32 v[64:65], v[64:65], v[66:67]\nv_rcp_f32 v52, v52')
    A('v_pk_add_f32 v[68:69], v[68:69], v[70:71]\nv_pk_add_f32 v[72:73], v[72:73], v[74:75]')
    A('v_pk_add_f32 v[60:61], v[60:61], v[64:65]\nv_pk_add_f32 v[68:69], v[68:69], v[72:73]')
    A('v_fmac_f32 v60, v53, v61\nv_fmac_f32 v68, v53, v69\nv_mul_f32 v60, v60, v52\nv_mul_f32 v68, v68, v52')
    A('v_cvt_pk_bf16_f32 v32, 0, v60\nv_cvt_pk_bf16_f32 v36, 0, v68')
    A('v_mul_f32 v33, v32, v32\nv_mul_f32 v33, 0x3d372713, v33\nv_fma_f32 v33, v33, v32, v32')
    A('v_mul_f32 v33, 0xc0135761, v33\nv_exp_f32 v33, v33\ns_nop 0\nv_add_f32 v33, 1.0, v33\nv_rcp_f32 v33, v33\ns_nop 0\nv_mul_f32 v33, v33, v32')
    rbf(33)
    A('v_mul_f32 v33, v33, v36\nv_mov_b32 v34, v33\ns_nop 1\nv_permlane32_swap_b32 v33, v34')
    A('v_cvt_pk_bf16_f32 v33, v33, v34\nv_min_u32 v36, -2, v33')
    A('v_mov_b32 v32, v36\nv_mov_b32 v33, v36\ns_nop 0')
    A('v_mov_b32_dpp v32, v36 row_ror:8 row_mask:0xf bank_mask:0xc\nv_mov_b32_dpp v33, v36 row_ror:8 row_mask:0xf bank_mask:0x3')
    A('v_mov_b32 v34, v32\nv_mov_b32 v35, v33\ns_nop 0')
    A('v_permlane16_swap_b32 v32, v34\nv_permlane16_swap_b32 v33, v35')
    if cfg.nA<8: A('s_and_b32 exec_lo, s4, 0x%x\ns_mov_b32 exec_hi, 0'%((1<<(8*cfg.nA))-1))
    guarded('global_store_dwordx4 v27, v[32:35], %s %s'%(WS,cfg.sf))
    stamp(12)
    A('L_fin:')
    A('s_waitcnt vmcnt(0)')
    if cfg.diag:
        dump_stamps(14,8)
    A('s_endpgm')
    A('L_ffn2:')
    gate(cfg.G2)
    if cfg.lrot:
        n=14-cfg.E2
        A('s_and_b32 s6, s15, 3\ns_mul_i32 s6, s6, %d\ns_lshr_b32 s6, s6, 2\ns_add_u32 s6, s6, %d'%(n,cfg.E2))
        for _ in range(n):
            A('s_lshl_b32 s7, s6, 15\nv_add_u32 v7, s7, v6\ns_lshl_b32 s7, s6, 10\ns_add_u32 s7, s7, s71\ns_add_u32 m0, s7, %d\ns_add_u32 s6, s6, 1'%L_WA)
            A('global_load_lds_dwordx4 v7, %s %s'%(WD,cfg.ff))
            A('s_cmp_eq_u32 s6, 14\ns_cselect_b32 s6, %d, s6'%cfg.E2)
    else:
        for k in range(cfg.E2,14): A(dma2(k))
    A('s_waitcnt vmcnt(0)')
    for t in range(7):
        for tt in range(2):
            r=96+8*t+4*tt
            A('ds_read_b64_tr_b16 v[%d:%d], v8 offset:%d'%(r,r+1,2048*t+16*tt))
            A('ds_read_b64_tr_b16 v[%d:%d], v8 offset:%d'%(r+2,r+3,2048*t+16*tt+128))
        if t%2==0: A('s_waitcnt lgkmcnt(0)')
    tstamp(2)
    l=newlab('hp'); d=newlab('hd')
    A('s_mov_b32 s61, %d\n%s:\nglobal_load_dword v60, v29, %s sc1\ns_waitcnt vmcnt(0)\nv_cmp_eq_u32 vcc, -1, v60\ns_cbranch_vccz %s'%(cfg.spin,l,WS,d))
    A('s_sub_u32 s61, s61, 1\ns_cmp_lg_u32 s61, 0\ns_cbranch_scc1 %s\n%s:'%(l,d))
    A('v_and_b32 v61, s60, v60\nv_lshlrev_b32 v60, 16, v60')
    hk={}
    for t in range(7):
        hk[t]=[]
        for tt in range(2):
            acc='v[%d:%d]'%(64+4*tt,67+4*tt); r=96+8*t+4*tt
            hk[t].append('v_mfma_f32_16x16x32_bf16 %s, v[%d:%d], v[%d:%d], %s'%(acc,r,r+3,216+4*t,219+4*t,'0' if t==0 else acc))
    spoll(abl,hk)
    stamp(10)
    A('s_nop 3')
    A('ds_write_b128 v10, v[64:67] offset:%d'%L_DP)
    A('ds_write_b128 v10, v[68:71] offset:%d'%(L_DP+1024))
    A('s_waitcnt lgkmcnt(0)'); guarded('s_barrier')
    tstamp(6)
    A('s_cmp_lg_u32 s53, 0\ns_cbranch_scc1 L_fin')
    for w in range(4):
        A('ds_read_b64 v[%d:%d], v26 offset:%d'%(32+4*w,33+4*w,L_DP+2048*w))
        A('ds_read_b64 v[%d:%d], v26 offset:%d'%(34+4*w,35+4*w,L_DP+2048*w+640))
    A('s_waitcnt lgkmcnt(0)')
    for w in range(4): A('v_pk_add_f32 v[%d:%d], v[%d:%d], v[%d:%d]'%(32+4*w,33+4*w,32+4*w,33+4*w,34+4*w,35+4*w))
    A('v_pk_add_f32 v[32:33], v[32:33], v[36:37]\nv_pk_add_f32 v[40:41], v[40:41], v[44:45]\nv_pk_add_f32 v[32:33], v[32:33], v[40:41]')
    A('v_cvt_pk_bf16_f32 v32, 0, v32\nv_cvt_pk_bf16_f32 v33, 0, v33')
    A('v_pk_add_f32 v[32:33], v[32:33], v[60:61]')
    A('v_cvt_pk_bf16_f32 v32, v32, v33')
    if cfg.odiag: stamp(12)
    guarded('global_store_dword v28, v32, %s %s'%(OUT,cfg.of))
    if cfg.odiag: A('s_waitcnt vmcnt(0)')
    drychk()
    if cfg.diag:
        stamp(13)
        if cfg.leak is not None:
            a,b=cfg.leak
            A('s_waitcnt lgkmcnt(0)')
            if cfg.gleak is not None:
                A('v_mov_b32 v8, 0x3b0000\nglobal_load_dword v9, v8, %s sc1\nglobal_load_dword v10, v8, %s offset:256 sc1\ns_waitcnt vmcnt(0)'%(WS,WS))
                if b==14: A('v_not_b32 v9, v10\nv_mov_b32 v10, s%d'%(72+2*13))
                elif b==13: A('v_mov_b32 v10, s%d'%(72+2*13))
                else: A('v_not_b32 v10, v10')
                A('v_sub_u32 v9, v10, v9\ns_nop 1\nv_readfirstlane_b32 s54, v9')
                if b==0: A('s_mov_b32 s54, 0')
            elif a>=100:
                A('v_mov_b32 v8, %d\nds_read_b32 v9, v8 offset:%d\nds_read_b32 v10, v8 offset:%d\ns_waitcnt lgkmcnt(0)\nv_sub_u32 v9, v9, v10\ns_nop 1\nv_readfirstlane_b32 s54, v9'%(0,L_ST+4*(b-100),L_ST+4*(a-100)))
            elif b>=100:
                A('v_mov_b32 v8, %d\nds_read_b32 v9, v8 offset:%d\ns_waitcnt lgkmcnt(0)\nv_readfirstlane_b32 s54, v9\ns_sub_u32 s54, s54, s%d'%(4*(b-100),L_ST,72+2*a))
            else: A('s_sub_u32 s54, s%d, s%d'%(72+2*b,72+2*a))
            A('s_mul_i32 s54, s54, %d\ns_min_u32 s54, s54, 60000'%cfg.mult)
            A('L_leak:')
            A('s_memrealtime s[68:69]\ns_waitcnt lgkmcnt(0)\ns_sub_u32 s55, s68, s%d\ns_cmp_lt_u32 s55, s54\ns_cbranch_scc1 L_leak'%(72+2*13))
        else:
            A('s_waitcnt lgkmcnt(0)\ns_mov_b32 s100, s92\ns_mov_b32 s92, 0')
            dump_stamps(15,8)
    A('L_end:')
    A('s_endpgm')
    A('L_last:')
    A('.section .rodata,"a"\n.p2align 6\n.amdhsa_kernel %s'%K)
    A('  .amdhsa_next_free_vgpr 256\n  .amdhsa_next_free_sgpr 102\n  .amdhsa_accum_offset 256\n  .amdhsa_group_segment_fixed_size 0\n  .amdhsa_kernarg_size 96')
    A('  .amdhsa_user_sgpr_count 2\n  .amdhsa_user_sgpr_kernarg_segment_ptr 1\n  .amdhsa_system_sgpr_workgroup_id_x 1')
    A('  .amdhsa_float_denorm_mode_32 3\n  .amdhsa_float_denorm_mode_16_64 3')
    A('.end_amdhsa_kernel')
    return '\n'.join(L)+'\n'

if __name__=='__main__':
    cfg=Cfg()
    out=sys.argv[1]
    for a in sys.argv[2:]:
        k,v=a.split('=',1); setattr(cfg,k,eval(v))
    s=gen(cfg)
    hdr=''.join(l for l in open('cdna_kernels/%s.s.ref'%NAME).readlines()[:13])
    open(out,'w').write(hdr+s)
```

```python
import sys
NAME='sequential_preLN__gqa_block_cached__geglu_ffn__decode'
K=NAME+'_kernel'

class Cfg:
    diag=False
    leak=None
    nocomp=False
    noq=False
    T2=12
    cpf=True
    b3=8
    cf='sc1'; nclr=4; wide=None; wo0=True; wo1=False; e1now=True; fb=(10,3,24,2); gmask=True; bA=(1,4,3); bB=(1,2); bF=2
    f1s=1
    nb=1; gd=(40,2,3)
    G1=0; G2=0
    disp=4; LA=1; boost=(1,5,3); lf='sc1'; sf='sc1'
    skipG=False; skipF=False
    par=None
    NP=3
    HS=20736; AS=28672; wrot=False; pre=0; head=0
    upfront=False
    vdiag=None
    odiag=False
    touch=True
    sdiag=False
    mult=1
    Q1=0; Q2=0
    E1=4; E2=0; EW=8; lrot=True; helper=False
    T0=6; n0=40
    qflag=True
    chunk=0
    bare=0
    notail=False
    knat=False
    cdbg=False
    ctouch=None
    rot=4
    cs=9
    nowq=False
    noqst=False
    nH=8; nA=8
    pW=('c',1,0); pR=('m',8,1); pF=('c',1,0); pG=('c',1,0)
    tdiag=False
    tsleep=0
    crot=0
    noclr=False
    wolate=False
    warm=False
    of=''
    gleak=None
    NS=30
    sflag=False
    svcfirst=0
    spin=1<<17
    T=5
    kf='nt'; vf='nt'; wf='nt'; ff=''
    pq=4
    pw0=7
    pw1=22
    noW=False

QP=0x0
FLG=0x80000
CLR=0x200000
WP=0x200000
OP=0x280000
OPS=640
HB=0x340000
AB=0x360000
CTR=0x3A0000
RNK=0x3A8000
PRB=0x3C0000
STAMP=0x10000000
L_MLW=64
L_QL=256
L_XN=1280
XNS=1040
L_XO=9600
XOS=272
L_DP=11776
L_OW=19968
L_ST=28160
L_PR=28416
L_CNT=L_PR+1024
L_WA=30720
LDS_BYTES=L_WA+65536

LOG2E=0x3fb8aa3b
SCALE=0x3db504f3

def gen(cfg):
    L=[]
    def A(s):
        L.extend(s.split('\n'))
    lab=[0]
    def newlab(p):
        lab[0]+=1
        return 'L_%s_%d'%(p,lab[0])
    X,KP,VP,WQ,WO,BX,WG,WU,WD,OUT,DBG,WS=['s[%d:%d]'%(16+2*i,17+2*i) for i in range(12)]
    def stamp(i):
        if cfg.diag: A('s_memrealtime s[%d:%d]'%(72+2*i,73+2*i))
    def tstamp(i):
        if cfg.tdiag: stamp(i)
    def pack_stamps(n,vt):
        A('s_waitcnt lgkmcnt(0)')
        A('v_mov_b32 v%d, 0'%vt)
        for i in range(n): A('v_writelane_b32 v%d, s%d, %d'%(vt,72+2*i,i))
    def dump_stamps(n,vt):
        if not cfg.diag: return
        A('s_mov_b64 exec, -1')
        pack_stamps(n,vt)
        A('v_lshlrev_b32 v%d, 2, v0'%(vt+1))
        A('ds_read_b32 v%d, v%d offset:%d'%(vt+2,vt+1,L_ST))
        A('s_lshl_b32 s66, s2, 9\ns_add_u32 s66, s66, %d'%(STAMP))
        A('v_add_u32 v%d, s66, v%d'%(vt+1,vt+1))
        A('s_mov_b64 exec, 0xffff')
        A('s_waitcnt lgkmcnt(0)')
        A('global_store_dword v%d, v%d, %s'%(vt+1,vt+2,WS))
        A('s_lshl_b32 s66, s53, 6\nv_add_u32 v%d, s66, v%d'%(vt+1,vt+1))
        A('global_store_dword v%d, v%d, %s offset:64'%(vt+1,vt,WS))

    A('; @launch grid=(256,1,1) block=(512,1,1) lds=%d'%LDS_BYTES)
    A('.amdgcn_target "amdgcn-amd-amdhsa--gfx950"\n.text\n.globl %s\n.p2align 8\n.type %s,@function\n%s:'%(K,K,K))
    A('s_cmp_ge_u32 s2, 256\ns_cbranch_scc1 L_end')
    stamp(0)
    A('v_lshrrev_b32 v1, 6, v0')
    A('v_lshlrev_b32 v3, 2, v0')
    A('v_readfirstlane_b32 s52, v1')
    A('s_cmp_lt_u32 s52, 4\ns_cbranch_scc1 L_noz')
    A('v_mov_b32 v30, 0')
    A('ds_write_b32 v3, v30 offset:%d\nds_write_b32 v3, v30 offset:%d'%(L_PR-1024,L_PR))
    A('s_waitcnt lgkmcnt(0)')
    A('L_noz:')
    A('s_load_dwordx16 s[16:31], s[0:1], 0')
    A('s_load_dwordx8 s[32:39], s[0:1], 64')
    A('s_barrier')
    if cfg.diag:
        for i in range(1,14): A('s_mov_b32 s%d, 0'%(72+2*i))
    A('v_and_b32 v0, 63, v0')
    A('s_and_b32 s48, s2, 7\ns_lshr_b32 s49, s2, 3\ns_lshl_b32 s50, s49, 1\ns_bfe_u32 s54, s2, 0x10001\ns_or_b32 s50, s50, s54')
    A('s_and_b32 s51, s2, 1\ns_bfe_u32 s54, s2, 0x10002\ns_lshl_b32 s54, s54, 1\ns_or_b32 s51, s51, s54')
    A('s_mov_b32 s59, 0x%x\ns_mov_b32 s60, 0xffff0000'%(LOG2E))
    A('v_lshlrev_b32 v1, 4, v0')
    A('s_cmp_ge_u32 s52, 4\ns_cbranch_scc1 L_service')

    import math
    TH=math.ceil(cfg.T)
    NS=cfg.NS
    RB=64
    A('s_lshl_b32 s54, s50, 21')
    A('s_lshl_b32 s62, s51, 2\ns_add_u32 s62, s62, s52')
    for i in range(4): A('s_add_u32 s%d, s62, %d\ns_and_b32 s%d, s%d, 15\ns_lshl_b32 s%d, s%d, 12'%(8+i,cfg.rot*i,8+i,8+i,8+i,8+i))
    A('v_lshrrev_b32 v2, 4, v0\nv_lshlrev_b32 v2, 6, v2\nv_and_b32 v4, 3, v0\nv_lshl_add_u32 v2, v4, 4, v2')
    A('v_bfe_u32 v5, v0, 2, 2\nv_lshl_add_u32 v2, v5, 8, v2')
    if cfg.knat: A('v_mov_b32 v2, v1')
    A('s_mov_b32 s42, 0x200000\ns_mov_b32 s43, 0x20000\ns_mov_b32 s46, 0x200000\ns_mov_b32 s47, 0x20000')
    A('s_waitcnt lgkmcnt(0)')
    A('s_add_u32 s40, s18, s54\ns_addc_u32 s41, s19, 0\ns_and_b32 s41, s41, 0xffff')
    A('s_add_u32 s44, s20, s54\ns_addc_u32 s45, s21, 0\ns_and_b32 s45, s45, 0xffff')
    st={'n':0}
    def adv():
        if cfg.rot: A('s_add_u32 s68, s62, %d\ns_and_b32 s68, s68, 15\ns_andn2_b32 s62, s62, 15\ns_add_u32 s62, s62, 16\ns_or_b32 s62, s62, s68'%cfg.rot)
        else: A('s_add_u32 s62, s62, 16')
    def load(slot,j,throttle=True,th=None):
        if j==0: A('s_lshl_b32 s65, s62, 12')
        if throttle:
            t_=(th or cfg.T); lo=int(t_); fr=t_-lo
            w=lo+(1 if (int((j+1)*fr+1e-9)>int(j*fr+1e-9)) else 0)
            A('s_waitcnt vmcnt(%d)'%(w-1))
        r=RB+slot*32+j*4
        t=j//4
        A('buffer_load_dwordx4 v[%d:%d], %s, %s, s65 offen offset:%d %s'%(r,r+3,'v2' if t==0 else 'v1','s[40:43]' if t==0 else 's[44:47]',(j%4)*1024,cfg.kf if t==0 else cfg.vf))
    def prog(val):
        A('v_mov_b32 v30, %s\nds_write_b32 v3, v30 offset:%d'%(val,L_PR))
    NK=NS//2
    assert NS%2==0 and NK>=10 and NK<=16
    slot_of={u:u for u in range(6)}
    for u in range(6,NS): slot_of[u]=u%3
    slot_of[NS]=3
    FB=RB+5*32+12
    tr={'issued':0,'w':TH}
    def win(G):
        for a_,b_,w_ in (cfg.wide or []):
            if a_<=G<b_: return w_
        return TH
    def sload():
        n=tr['issued']; G=n//8; j=n%8
        tr['issued']=n+1
        if G==NS:
            tr['w']=win(G); load(slot_of[G],j,th=win(G)); return
        t=G//NK; k=2*(G%NK)+j//4
        if cfg.vdiag is not None and G==cfg.vdiag and j==0: stamp(6)
        if cfg.vdiag is not None and G==cfg.vdiag+1 and j==0: stamp(7)
        if j%4==0: A('s_add_u32 s65, s%d, %d'%(8+k%4,k*65536))
        w=cfg.T0 if (cfg.T0 and n<cfg.n0) else win(G)
        tr['w']=w
        if cfg.wo0:
            if 1<=G<9 and j==0: A('s_cmp_gt_u32 s13, %d\ns_cselect_b64 vcc, -1, 0'%G)
            if 1<=G<max(cfg.bA[1],cfg.bB[1])+cfg.bF:
                assert G<9
                l=newlab('bo'); A('s_waitcnt vmcnt(%d)\ns_cbranch_vccnz %s\ns_waitcnt vmcnt(%d)\n%s:'%(w-1+cfg.bA[2],l,w-1,l))
            elif cfg.fb and G>cfg.fb[0]:
                if j==0: A('s_waitcnt lgkmcnt(0)\nv_cmp_ne_u32 vcc, 0, v%d\nds_read_b32 v%d, v%d offset:%d'%(FB,FB,FB+1,L_CNT+28))
                l=newlab('bo'); A('s_waitcnt vmcnt(%d)\ns_cbranch_vccnz %s\ns_waitcnt vmcnt(%d)\n%s:'%(w-1+cfg.fb[3],l,w-1,l))
                tr['w']=w+cfg.fb[3]
            elif n>=w: A('s_waitcnt vmcnt(%d)'%(w-1))
        elif cfg.b3 and G==cfg.boost[1] and j==0:
            A('s_bfe_u32 s55, s49, 0x30001\ns_cmp_eq_u32 s55, 3\ns_cselect_b64 vcc, vcc, 0')
        if cfg.wo0: pass
        elif cfg.boost and cfg.boost[0]<=G<max(cfg.boost[1],cfg.b3):
            assert G<9 and (G<5 or w+cfg.boost[2]<=8)
            l=newlab('bo'); A('s_waitcnt vmcnt(%d)\ns_cbranch_vccnz %s\ns_waitcnt vmcnt(%d)\n%s:'%(w-1+cfg.boost[2],l,w-1,l))
        elif n>=w: A('s_waitcnt vmcnt(%d)'%(w-1))
        r=RB+slot_of[G]*32+j*4
        A('buffer_load_dwordx4 v[%d:%d], %s, %s, s65 offen offset:%d %s'%(r,r+3,'v2' if t==0 else 'v1','s[40:43]' if t==0 else 's[44:47]',(j%4)*1024,cfg.kf if t==0 else cfg.vf))
        if j==7 and n>=15: prog(G+1)
    def pro_issue(n0,n1):
        assert tr['issued']==n0
        for n in range(n0,n1): sload()
    if cfg.svcfirst: A('s_barrier')
    if cfg.sdiag: stamp(6)
    pro_issue(0,TH)
    if cfg.sdiag: stamp(7)
    if cfg.wo0:
        A('s_mov_b32 s13, 1\ns_bfe_u32 s55, s49, 0x30001\ns_cmp_eq_u32 s55, 3\ns_cselect_b32 s13, %d, s13\ns_cmp_ge_u32 s49, 16\ns_cselect_b32 s14, %d, 0\ns_add_u32 s13, s13, s14'%(cfg.bA[1],cfg.bF))
        A('s_and_b32 s55, s55, 3\ns_cmp_eq_u32 s55, 1\ns_cselect_b32 s14, %d, 1\ns_xor_b32 s55, s2, s49\ns_and_b32 s55, s55, 1\ns_cselect_b32 s13, s14, s13'%cfg.bB[1])
    elif cfg.boost: A('s_xor_b32 s55, s2, s49\ns_and_b32 s55, s55, 1\ns_cselect_b64 vcc, 0, -1')
    A('s_mov_b32 s56, 0x05040100\ns_mov_b32 s57, 0x07060302\ns_mov_b32 s58, 0x%x'%SCALE)
    A('s_lshl_b32 s54, s50, %d\ns_add_u32 s54, s54, %d\ns_add_u32 s66, s38, s54\ns_addc_u32 s67, s39, 0'%(cfg.cs,CTR))
    if cfg.cdbg: A('s_lshl_b32 s54, s50, 9\ns_add_u32 s54, s54, 4096\ns_add_u32 s66, s36, s54\ns_addc_u32 s67, s37, 0')
    A('s_lshl_b32 s55, s52, 11')
    A('v_lshlrev_b32 v4, 9, v4\nv_and_b32 v0, 0x30, v0\nv_add3_u32 v0, v4, v0, s55')
    A('v_mov_b32 v14, 0xff800000')
    if cfg.sdiag:
        stamp(9); A('s_waitcnt vmcnt(%d)'%(TH-1)); stamp(10)
    pro_issue(TH,48)
    stamp(1)
    if cfg.qflag:
        A('v_mov_b32 v31, 0\nL_qw:\nds_read_b32 v15, v31 offset:%d\ns_waitcnt lgkmcnt(0)\nv_readfirstlane_b32 s54, v15\ns_cmp_eq_u32 s54, 0\ns_cbranch_scc1 L_qw'%(L_CNT+16))
    else: A('s_barrier')
    A('ds_read_b128 v[4:7], v1 offset:%d'%L_QL)
    stamp(2)
    A('s_waitcnt lgkmcnt(0)')
    def kpart(slot,fill):
        B=RB+slot*32
        f=list(fill)
        def nxt():
            if f: f.pop(0)()
        D=[20,B,B+4,B+8]
        if cfg.nocomp:
            while f: nxt()
            return
        for i in range(4):
            A('v_mfma_f32_16x16x32_bf16 v[%d:%d], v[%d:%d], v[4:7], 0'%(D[i],D[i]+3,B+4*i,B+4*i+3))
        A('s_nop 7')
        for h in range(2):
            for step in range(3):
                for e in range(2):
                    be=2*e+h
                    S=18+e
                    A('v_add_f32_dpp v%d, v%d, v%d row_ror:%d row_mask:0xf bank_mask:0x%x'%(S,D[be]+((be+step+1)&3),(D[be]+be) if step==0 else S,12-4*step,1<<be))
                A('s_nop 0')
        nxt()
        A('s_nop 0')
        A('v_mov_b32_dpp v18, v19 quad_perm:[0,1,2,3] row_mask:0xf bank_mask:0xc')
        A('v_cvt_pk_bf16_f32 v18, 0, v18\nv_mul_f32 v18, s58, v18\nv_cvt_pk_bf16_f32 v18, 0, v18')
        A('v_max_f32 v15, v14, v18')
        A('s_nop 1\nv_max_f32_dpp v15, v15, v15 row_ror:4 row_mask:0xf bank_mask:0xf')
        A('s_nop 1\nv_max_f32_dpp v15, v15, v15 row_ror:8 row_mask:0xf bank_mask:0xf')
        A('v_mov_b32 v31, v15\ns_nop 1\nv_permlane16_swap_b32 v15, v31\nv_max_f32 v15, v15, v31')
        A('v_mov_b32 v31, v15\ns_nop 1\nv_permlane32_swap_b32 v15, v31\nv_max_f32 v15, v15, v31')
        nxt()
        A('v_sub_f32 v16, v14, v15\nv_sub_f32 v18, v18, v15\nv_cmp_neq_f32 vcc, v14, v15\nv_mul_f32 v16, s59, v16\nv_mul_f32 v18, s59, v18')
        A('v_exp_f32 v16, v16\nv_exp_f32 v18, v18\nv_mov_b32 v14, v15\nv_mul_f32 v17, s59, v15')
        A('v_mov_b32_dpp v19, v18 row_ror:12 row_mask:0xf bank_mask:0xf')
        A('v_cvt_pk_bf16_f32 v8, v18, v19')
        l=newlab('nr')
        A('s_cbranch_vccz %s'%l)
        for r in range(32,64,2):
            A('v_pk_mul_f32 v[%d:%d], v[%d:%d], v[16:17] op_sel_hi:[1,0]'%(r,r+1,r,r+1))
        A('v_mul_f32 v24, v24, v16')
        A('%s:'%l)
        A('s_nop 0')
        A('v_mov_b32_dpp v9, v8 row_ror:8 row_mask:0xf bank_mask:0xf')
        while f: nxt()
    def vpart(slot):
        B=RB+slot*32+16
        if cfg.nocomp: return
        def perms(j):
            Tt=10+2*(j&1)
            for ii in range(2):
                A('v_perm_b32 v%d, v%d, v%d, s%d'%(Tt+ii,B+4*(2*ii+1)+(j>>1),B+4*(2*ii)+(j>>1),56+(j&1)))
        perms(0)
        for j in range(8):
            if j<7: perms(j+1)
            else: A('v_mfma_f32_16x16x16_bf16 v[24:27], v[28:29], v[8:9], v[24:27]')
            Tt=10+2*(j&1)
            A('v_mfma_f32_16x16x16_bf16 v[%d:%d], v[%d:%d], v[8:9], v[%d:%d]'%(32+4*j,35+4*j,Tt,Tt+1,32+4*j,35+4*j))
    SC=[8,9,10,11,12,13,20,21,22,23,25,26,27,28,29,RB+5*32+14][:NK]
    RV=RB+5*32; TV=RV+4
    def need(n):
        rem=tr['issued']-n
        assert rem>=0
        if rem<tr['w']: A('s_waitcnt vmcnt(%d)'%rem)
    def spread(chunks,nl):
        m=len(chunks)
        for i,c in enumerate(chunks):
            if not cfg.nocomp: A(c)
            for _ in range((nl*(i+1))//m-(nl*i)//m): sload()
    def kgroup(G):
        B=RB+slot_of[G]*32
        ch=['\n'.join('v_mfma_f32_16x16x32_bf16 v[%d:%d], v[%d:%d], v[4:7], 0'%(32+4*i,35+4*i,B+4*i,B+4*i+3) for i in range(8))+'\ns_nop 1']
        for be in range(4):
            c=[]
            for step in range(3):
                for e in range(2):
                    D=32+4*(2*be+e); S=18+e
                    c.append('v_add_f32_dpp v%d, v%d, v%d row_ror:%d row_mask:0xf bank_mask:0x%x'%(S,D+((be+step+1)&3),(D+be) if step==0 else S,12-4*step,1<<be))
                c.append('s_nop 0')
            ch.append('\n'.join(c))
        ch[-1]+='\nv_cvt_pk_bf16_f32 v15, 0, v18\nv_cvt_pk_bf16_f32 v16, 0, v19\nv_mul_f32 v15, s58, v15\nv_mul_f32 v16, s58, v16'
        ch[-1]+='\nv_cvt_pk_bf16_f32 v%d, v15, v16\nv_cvt_pk_bf16_f32 v15, 0, v15\nv_cvt_pk_bf16_f32 v16, 0, v16\nv_max3_f32 v14, v14, v15, v16'%SC[G]
        return ch
    def wred(op,r):
        return ('s_nop 1\n%s_dpp v%d, v%d, v%d row_ror:4 row_mask:0xf bank_mask:0xf\ns_nop 1\n%s_dpp v%d, v%d, v%d row_ror:8 row_mask:0xf bank_mask:0xf\n'%(op,r,r,r,op,r,r,r)+
                'v_mov_b32 v31, v%d\ns_nop 1\nv_permlane16_swap_b32 v%d, v31\n%s v%d, v%d, v31\n'%(r,r,op,r,r)+
                'v_mov_b32 v31, v%d\ns_nop 1\nv_permlane32_swap_b32 v%d, v31\n%s v%d, v%d, v31'%(r,r,op,r,r))
    def softmax():
        ch=[wred('v_max_f32',14)+'\nv_mul_f32 v17, s59, v14\nv_mov_b32 v24, 0']
        for g in range(NK):
            ch.append('v_lshlrev_b32 v18, 16, v%d\nv_and_b32 v19, s60, v%d\nv_sub_f32 v18, v18, v14\nv_sub_f32 v19, v19, v14\nv_mul_f32 v18, s59, v18\nv_mul_f32 v19, s59, v19\n'%(SC[g],SC[g])+
                      'v_exp_f32 v18, v18\nv_exp_f32 v19, v19\ns_nop 0\nv_cvt_pk_bf16_f32 v%d, v18, v19\nv_add_f32 v24, v24, v18\nv_add_f32 v24, v24, v19'%SC[g])
        ch.append(wred('v_add_f32',24))
        return ch
    def vgroup(G):
        B=RB+slot_of[G]*32; P=SC[G-NK]
        def perms(j):
            Tt=TV+4*(j&1)
            return '\n'.join('v_perm_b32 v%d, v%d, v%d, s%d'%(Tt+ii,B+4*(2*ii+1)+(j>>1),B+4*(2*ii)+(j>>1),56+(j&1)) for ii in range(4))
        c0='v_mov_b32 v%d, v%d\n'%(RV,P)+'\n'.join('v_mov_b32_dpp v%d, v%d row_ror:%d row_mask:0xf bank_mask:0xf'%(RV+r,P,16-4*r) for r in range(1,4))+'\n'+perms(0)
        ch=[c0]
        for j in range(8):
            Tt=TV+4*(j&1); acc='v[%d:%d]'%(32+4*j,35+4*j)
            ch.append((perms(j+1) if j<7 else 's_nop 1')+'\nv_mfma_f32_16x16x32_bf16 %s, v[%d:%d], v[%d:%d], %s'%(acc,Tt,Tt+3,RV,RV+3,'0' if G==NK else acc))
        return ch
    def request():
        if not cfg.chunk:
            A('s_mov_b32 s63, 1\ns_atomic_add s63, s[66:67], 0x0 glc'); return
        la=newlab('ra'); lb=newlab('rb')
        A('s_cmp_eq_u32 s69, 0\ns_cbranch_scc1 %s'%la)
        A('s_mov_b32 s69, 0\ns_sub_u32 s63, s62, %d\ns_branch %s'%(NS*16,lb))
        A('%s:'%la)
        A('s_cmp_lt_u32 s62, %d\ns_cselect_b32 s69, 1, 0\ns_add_u32 s63, s69, 1\ns_atomic_add s63, s[66:67], 0x0 glc'%(512-cfg.chunk))
        A('%s:'%lb)
    for G in range(7):
        need(8*G+8)
        spread(kgroup(G),[4,4,3,4,3,3,3][G])
    assert tr['issued']==72
    A('v_mov_b32 v%d, 0\nv_mov_b32 v%d, 0'%(FB,FB+1))
    stamp(3)
    def get():
        lb=int(math.log2(cfg.disp)); l=newlab('gt'); d=newlab('gd')
        A('s_cmp_ge_u32 s62, 512\ns_cbranch_scc1 %s'%d)
        A('v_mov_b32 v31, 0\nv_mov_b32 v30, 1\ns_mov_b64 exec, 1\nds_add_rtn_u32 v30, v31, v30 offset:%d\ns_waitcnt lgkmcnt(0)'%(L_CNT+24))
        A('v_lshlrev_b32 v31, 2, v30')
        A('%s:\nds_read_b32 v30, v31 offset:%d\ns_waitcnt lgkmcnt(0)\nv_readfirstlane_b32 s63, v30\ns_cmp_eq_u32 s63, 0\ns_cbranch_scc1 %s'%(l,L_CNT+64,l))
        A('s_mov_b64 exec, -1')
        A('%s:'%d)
    for G in range(7,NS):
        if G==NS-2:
            stamp(4)
            if NS<32: A('s_mov_b32 s62, 0'); get(); A('s_mov_b32 s62, s63')
        need(8*G+8)
        ch=kgroup(G) if G<NK else vgroup(G)
        if G==NK: ch=softmax()+ch
        if G<NS-2: spread(ch,8)
        elif NS==32: spread(ch,0)
        elif G==NS-2: spread(ch,TH)
        else: spread(ch[:-1],8-TH); spread(ch[-1:],0)
    if NS==32: A('s_nop 0\ns_branch L_sdone')
    A('s_cmp_ge_u32 s62, 512\ns_cbranch_scc1 L_sdone')
    A('v_mov_b32 v28, 0x3f803f80\nv_mov_b32 v29, 0x3f803f80\nv_mov_b32 v25, 0\nv_mov_b32 v26, 0\nv_mov_b32 v27, 0')
    if cfg.disp: get(); A('s_mov_b32 s62, s63')
    else: A('s_waitcnt lgkmcnt(0)\ns_add_u32 s62, s63, %d'%(NS*16+1))
    A('s_mov_b32 s64, %d'%(NS+1))
    def body(c,th):
        if cfg.upfront:
            for j in range(8): load(1-c,j,th=th,throttle=(8+j>=th))
            if th>12: A('s_waitcnt vmcnt(12)')
            kpart(c,[])
            A('s_waitcnt vmcnt(8)')
            vpart(c)
            return
        for j in range(4): load(7-c,j,th=th)
        if th>8: A('s_waitcnt vmcnt(8)')
        kpart(c,[(lambda j=j: load(7-c,j,th=th)) for j in range(4,8)])
        if cfg.disp: get()
        if th>8: A('s_waitcnt vmcnt(8)')
        vpart(c)
    A('L_dyn:')
    for c in (3,4):
        ls=newlab('st'); lc=newlab('sc')
        if cfg.diag: A('s_add_u32 s64, s64, 1')
        if not cfg.disp:
            A('s_cmp_ge_u32 s62, 512\ns_cbranch_scc1 %s'%ls)
            request()
            A('%s:'%ls)
        body(c,cfg.T2 or cfg.T)
        A('s_cmp_ge_u32 s62, 512\ns_cbranch_scc1 L_sdone')
        if cfg.disp: A('s_mov_b32 s62, s63')
        else:
            A('s_waitcnt lgkmcnt(0)')
            A('s_add_u32 s62, s63, %d'%(NS*16+1))
    A('s_branch L_dyn')
    A('L_sdone:')
    A('s_mov_b32 exec_lo, 0x000f000f\ns_mov_b32 exec_hi, 0x000f000f')
    stamp(5)
    A('s_lshl_b32 s55, s52, 2\nv_and_b32 v31, 0x30, v1\nv_lshl_add_u32 v31, v31, 1, s55')
    for j in range(8):
        A('ds_write_b128 v0, v[%d:%d] offset:%d'%(32+4*j,35+4*j,L_OW+64*j))
    A('ds_write2_b32 v31, v17, v24 offset0:%d offset1:%d'%(L_MLW//4,L_MLW//4+4))
    if cfg.diag:
        A('s_mov_b64 exec, -1')
        A('s_cmp_lg_u32 s52, 0\ns_cbranch_scc1 L_nost')
        pack_stamps(11 if cfg.sdiag else 8,8)
        A('v_writelane_b32 v8, s64, 8')
        A('ds_write_b32 v3, v8 offset:%d'%L_ST)
        A('L_nost:')
    A('s_waitcnt lgkmcnt(0)')
    A('s_barrier')
    A('s_endpgm')

    A('L_service:')
    if cfg.bare:
        A('s_sub_u32 s53, s52, 4\nv_mov_b32 v11, 0\nv_mov_b32 v12, 1\nv_mov_b32 v40, -1\nv_mov_b32 v41, -1\nv_mov_b32 v42, -1\nv_mov_b32 v43, -1\ns_waitcnt lgkmcnt(0)')
        if cfg.bare&2:
            A('s_lshl_b32 s54, s2, 2\ns_add_u32 s54, s54, s53\ns_mul_i32 s54, s54, 640\ns_add_u32 s54, s54, %d\nv_add_u32 v6, s54, v1\ns_mov_b32 exec_hi, 0xff\nglobal_store_dwordx4 v6, v[40:43], %s sc1\ns_mov_b64 exec, -1'%(CLR+0x100000,WS))
        if cfg.bare&4:
            A('global_load_dwordx4 v[32:35], v1, %s'%X)
        if cfg.bare&8:
            A('v_mov_b32 v6, s2\ns_mov_b64 exec, 1\nglobal_store_byte v6, v12, %s sc1\ns_mov_b64 exec, -1'%DBG)
        A('ds_write_b32 v11, v12 offset:%d\ns_waitcnt lgkmcnt(0)\ns_barrier\ns_barrier'%(L_CNT+8))
        if cfg.bare&16:
            A('v_lshlrev_b32 v7, 2, v0\nglobal_load_dword v13, v7, %s sc1'%DBG)
        A('s_barrier\ns_endpgm')
    A('s_setprio 3')
    A('s_sub_u32 s53, s52, 4')
    A('s_lshl_b32 s66, s53, 12')
    A('s_mov_b32 s3, %d'%FLG)
    A('s_lshr_b32 s68, s49, 3\ns_and_b32 s69, s49, 7')
    A('v_lshrrev_b32 v2, 5, v0\ns_lshl_b32 s54, s53, 1\nv_add_u32 v2, s54, v2')
    A('v_and_b32 v3, 31, v0\nv_lshlrev_b32 v3, 4, v3')
    A('v_lshl_add_u32 v4, v2, 10, v3')
    A('s_xor_b32 s13, s2, s49\ns_and_b32 s13, s13, 1\ns_lshr_b32 s14, s49, 4\ns_bfe_u32 s15, s49, 0x30001')
    A('s_lshl_b32 s54, s14, 8\ns_lshl_b32 s55, s53, 6\ns_add_u32 s54, s54, s55')
    A('v_lshrrev_b32 v6, 3, v0\nv_add_u32 v6, s54, v6\nv_lshlrev_b32 v6, 13, v6')
    A('v_and_b32 v7, 7, v0\nv_lshl_add_u32 v6, v7, 4, v6')
    A('s_lshl_b32 s54, s48, 10\ns_lshl_b32 s55, s15, 7\ns_add_u32 s54, s54, s55\nv_add_u32 v6, s54, v6')
    A('s_lshl_b32 s54, s48, 1\ns_add_u32 s54, s54, s14\ns_lshl_b32 s54, s54, 11\ns_lshl_b32 s55, s15, 8\ns_add_u32 s54, s54, s55\ns_lshl_b32 s55, s53, 6\ns_add_u32 s54, s54, s55')
    A('v_lshlrev_b32 v14, 15, v7\nv_and_b32 v15, 0x30, v0\nv_add3_u32 v14, v14, v15, s54')
    A('v_mov_b32 v40, -1\nv_mov_b32 v41, -1\nv_mov_b32 v42, -1\nv_mov_b32 v43, -1')
    A('s_lshl_b32 s71, s53, 13\ns_add_u32 m0, s71, %d'%L_WA)
    A('v_lshrrev_b32 v44, 1, v0\nv_lshlrev_b32 v44, 9, v44\nv_and_b32 v45, 16, v1\nv_add3_u32 v79, v44, v45, %s'%'s3')
    A('v_mov_b32 v44, 0\nv_mov_b32 v45, 0\nv_mov_b32 v46, 0\nv_mov_b32 v47, 0\nv_mov_b32 v11, 0\nv_mov_b32 v12, 1')
    A('s_lshl_b32 s12, s2, 2\ns_add_u32 s12, s12, s53')
    A('s_waitcnt lgkmcnt(0)')
    A('s_cmp_lg_u32 s13, 0\ns_cbranch_scc1 L_clr')
    A('global_load_dwordx4 v[32:35], v4, %s'%X)
    A('global_load_dwordx4 v[36:39], v4, %s offset:512'%X)
    for i in range(8):
        if i: A('s_add_u32 m0, s71, %d\nv_add_u32 v6, 0x10000, v6'%(L_WA+i*1024))
        A('global_load_lds_dwordx4 v6, %s %s'%(WQ,cfg.wf))
    A('s_mov_b32 exec_lo, 0x00ff00ff\ns_mov_b32 exec_hi, 0x00ff00ff')
    A('global_store_dwordx4 v14, v[40:43], %s sc1'%WS)
    A('s_branch L_clrd')
    A('L_clr:')
    if cfg.cpf:
        A('s_getpc_b64 s[6:7]\nL_pc:\ns_sub_u32 s6, s6, L_pc-%s\ns_subb_u32 s7, s7, 0'%K)
        A('s_lshr_b32 s54, s49, 1\ns_lshl_b32 s54, s54, 2\ns_add_u32 s54, s54, s53\ns_lshl_b32 s54, s54, 9\nv_lshl_add_u32 v48, v0, 3, s54\nv_min_u32 v48, L_last-%s-8, v48'%K)
        A('global_load_dwordx2 v[50:51], v48, s[6:7]')
    A('s_cmp_lg_u32 s12, 7\ns_cbranch_scc1 L_nolead')
    A('global_store_dwordx4 v79, v[44:47], %s sc1\nglobal_store_dwordx4 v79, v[44:47], %s offset:256 sc1'%(WS,WS))
    A('s_waitcnt vmcnt(0)')
    A('s_mov_b64 exec, 1\nglobal_store_dword v11, v12, %s sc1\ns_mov_b64 exec, -1'%DBG)
    A('L_nolead:')
    A('s_lshr_b32 s54, s2, 1\ns_lshl_b32 s54, s54, 2\ns_add_u32 s54, s54, s53\ns_mul_i32 s54, s54, 3584\ns_add_u32 s54, s54, %d'%CLR)
    A('v_add_u32 v6, s54, v1')
    if cfg.nclr<4: A('s_cmp_lt_u32 s2, 232\ns_cbranch_scc1 L_skc')
    for i in range(3): A('global_store_dwordx4 v6, v[40:43], %s offset:%d %s'%(WS,1024*i,cfg.cf))
    A('s_mov_b32 exec_hi, 0')
    A('global_store_dwordx4 v6, v[40:43], %s offset:3072 %s'%(WS,cfg.cf))
    if cfg.nclr<4: A('L_skc:')
    def wo_dma():
        A('s_lshl_b32 s54, s48, 2\ns_add_u32 s54, s54, s68\ns_lshl_b32 s54, s54, 7\ns_lshl_b32 s55, s53, 1\ns_add_u32 s54, s54, s55\ns_lshl_b32 s54, s54, 10\ns_and_b32 s55, s15, 3\ns_lshl_b32 s55, s55, 8\ns_add_u32 s54, s54, s55')
        A('v_lshrrev_b32 v48, 4, v0\nv_lshlrev_b32 v48, 13, v48\nv_and_b32 v49, 15, v0\nv_lshl_add_u32 v48, v49, 4, v48\nv_add_u32 v48, s54, v48')
        for i in range(8):
            A('v_add_u32 v49, %d, v48\ns_add_u32 m0, s71, %d\ns_nop 0\nglobal_load_lds_dwordx4 v49, %s %s'%((32*(i&3)+(i>>2))*1024,L_WA+i*1024,WO,cfg.wf))
    if cfg.wo0 and not cfg.wo1:
        A('s_mov_b64 exec, -1')
        wo_dma()
    A('L_clrd:')
    A('s_mov_b64 exec, -1')
    A('s_and_b32 s54, s49, 3\ns_lshl_b32 s9, s54, 16\ns_lshr_b32 s54, s49, 2\ns_lshl_b32 s54, s54, 10\ns_add_u32 s9, s9, s54\ns_lshl_b32 s54, s48, 7\ns_add_u32 s9, s9, s54\ns_add_u32 s9, s9, %d'%PRB)
    A('s_lshl_b32 s54, s53, 14\ns_add_u32 s54, s54, s9\nv_bfe_u32 v6, v0, 3, 1\nv_lshlrev_b32 v6, 13, v6\nv_and_b32 v13, 0x70, v1\nv_add3_u32 v6, v6, v13, s54')
    A('s_mov_b64 exec, 0xffff')
    A('s_cmp_ge_u32 s49, 8\ns_cbranch_scc1 L_nopl\ns_cmp_ge_u32 s53, %d\ns_cbranch_scc1 L_nopl'%cfg.NP)
    A('global_store_dwordx4 v6, v[40:43], %s sc1'%WS)
    A('L_nopl:')
    A('s_mov_b64 exec, -1')
    if cfg.svcfirst==2: A('s_barrier')
    A('v_mul_u32_u24 v5, %d, v2\nv_add_u32 v5, v5, v3'%XNS)
    A('v_lshrrev_b32 v8, 4, v0\nv_lshlrev_b32 v8, 10, v8\nv_bfe_u32 v9, v0, 2, 2\nv_lshl_add_u32 v8, v9, 7, v8\nv_and_b32 v9, 3, v0\nv_lshl_add_u32 v8, v9, 3, v8')
    A('s_lshl_b32 s54, s53, 5\nv_add_u32 v8, s54, v8')
    A('v_mul_u32_u24 v9, %d, v7\nv_add_u32 v9, v9, v15\ns_lshl_b32 s54, s14, 9\nv_add_u32 v10, s54, v9'%XNS)
    A('s_lshl_b32 s54, s53, 8\nv_mov_b32 v31, s54')

    def dppadd(r,ctl):
        A('s_nop 1\nv_add_f32_dpp v%d, v%d, v%d %s row_mask:0xf bank_mask:0xf'%(r,r,r,ctl))
    def swapadd(r,t,w):
        A('v_mov_b32 v%d, v%d\ns_nop 1\nv_permlane%d_swap_b32 v%d, v%d\nv_add_f32 v%d, v%d, v%d'%(t,r,w,r,t,r,r,t))
    def rbf(r):
        A('v_cvt_pk_bf16_f32 v%d, 0, v%d'%(r,r))
    def layernorm(mode):
        if mode=='x':
            for i in range(8):
                A('v_lshlrev_b32 v%d, 16, v%d\nv_and_b32 v%d, s60, v%d'%(48+2*i,32+i,49+2*i,32+i))
        Q=lambda i:'v[%d:%d]'%(48+2*i,49+2*i)
        P=Q if mode=='x' else (lambda i:'v[%d:%d]'%(216+2*i,217+2*i))
        A('v_pk_add_f32 v[64:65], %s, %s\nv_pk_mul_f32 v[66:67], %s, %s'%(P(0),P(1),P(0),P(0)))
        A('v_pk_add_f32 v[68:69], %s, %s\nv_pk_mul_f32 v[70:71], %s, %s'%(P(2),P(3),P(1),P(1)))
        for i in range(2,8,2):
            if i>2: A('v_pk_add_f32 v[64:65], v[64:65], %s'%P(i))
            A('v_pk_fma_f32 v[66:67], %s, %s, v[66:67]'%(P(i),P(i)))
            if i>2: A('v_pk_add_f32 v[68:69], v[68:69], %s'%P(i+1))
            A('v_pk_fma_f32 v[70:71], %s, %s, v[70:71]'%(P(i+1),P(i+1)))
        A('v_pk_add_f32 v[64:65], v[64:65], v[68:69]\nv_pk_add_f32 v[66:67], v[66:67], v[70:71]')
        A('v_add_f32 v64, v64, v65\nv_add_f32 v66, v66, v67')
        ctl=['row_ror:1','row_ror:2','row_ror:4','row_ror:8'] if mode=='x' else ['quad_perm:[1,0,3,2]','quad_perm:[2,3,0,1]','row_ror:8']
        for c in ctl:
            A('s_nop 0')
            for r in (64,66): A('v_add_f32_dpp v%d, v%d, v%d %s row_mask:0xf bank_mask:0xf'%(r,r,r,c))
        for w in ((16,) if mode=='x' else (16,32)):
            A('v_mov_b32 v65, v64\nv_mov_b32 v67, v66\ns_nop 0')
            A('v_permlane%d_swap_b32 v64, v65\nv_permlane%d_swap_b32 v66, v67'%(w,w))
            A('v_add_f32 v64, v64, v65\nv_add_f32 v66, v66, v67')
        A('v_mul_f32 v64, 0xbb000000, v64\nv_mul_f32 v66, 0x3b000000, v66')
        A('v_cvt_pk_bf16_f32 v68, 0, v64')
        chain=['v_fma_f32 v66, -v64, v64, v66','v_max_f32 v66, 0, v66','v_cvt_pk_bf16_f32 v66, 0, v66','v_add_f32 v66, 0x3727c5ac, v66',
               'v_cvt_pk_bf16_f32 v66, 0, v66','v_sqrt_f32 v66, v66','v_cvt_pk_bf16_f32 v66, 0, v66','v_rcp_f32 v66, v66']
        for i in range(8):
            A(chain[i])
            A('v_pk_add_f32 %s, %s, v[68:69] op_sel_hi:[1,0]'%(Q(i),P(i)))
        for i in range(16): A('v_cvt_pk_bf16_f32 v%d, 0, v%d'%(48+i,48+i))
        nw=2 if mode=='h' else 4
        for i in range(8):
            A('v_pk_mul_f32 %s, %s, v[66:67] op_sel_hi:[1,0]'%(Q(i),Q(i)))
        for i in range(8):
            A('v_cvt_pk_bf16_f32 v%d, v%d, v%d'%(32+i,48+2*i,49+2*i))
            if mode=='h' and i%2==1: A('ds_write_b64 v5, v[%d:%d] offset:%d'%(31+i,32+i,L_XN+256*(i//2)))
            if mode=='x' and i%4==3: A('ds_write_b128 v5, v[%d:%d] offset:%d'%(29+i,32+i,L_XN+512*(i//4)))
    def lds_sync(cnt,sleep=0):
        l=newlab('ls')
        A('s_waitcnt lgkmcnt(0)')
        A('s_mov_b64 exec, 1\nds_add_u32 v11, v12 offset:%d\ns_mov_b64 exec, -1'%(L_CNT+4*cnt))
        lds_wait(11,L_CNT+4*cnt,4,sleep)
    def lds_wait(va,off,val,sleep):
        l=newlab('lw'); d=newlab('ld')
        A('%s:'%l)
        A('ds_read_b32 v13, v%d offset:%d\ns_waitcnt lgkmcnt(0)\nv_readfirstlane_b32 s54, v13\ns_cmp_ge_u32 s54, %s'%(va,off,val))
        if sleep: A('s_cbranch_scc1 %s\ns_sleep %d\ns_branch %s\n%s:'%(d,sleep,l,d))
        else: A('s_cbranch_scc0 %s'%l)
    def progress(p): lds_wait(31,L_PR,p,6)
    def poll(loads,regs,sleep=0,guard=False):
        l=newlab('pl'); d=newlab('pd')
        if guard: sleep=cfg.tsleep
        A('s_mov_b32 s61, %d'%cfg.spin)
        A('%s:'%l)
        for x in loads: A(x)
        import re as _re
        first=True; pend=[]
        for i,x in enumerate(loads):
            m=_re.search(r'v\[(\d+):(\d+)\]',x)
            pend+=list(range(int(m.group(1)),int(m.group(2))+1))
            last=(i==len(loads)-1)
            if len(pend)<4 and not last: continue
            A('s_waitcnt vmcnt(%d)'%(len(loads)-1-i))
            while pend:
                if first:
                    if len(pend)>=3: A('v_max3_u32 v13, v%d, v%d, v%d'%tuple(pend[:3])); pend=pend[3:]
                    else: A('v_max_u32 v13, v%d, v%d'%tuple(pend[:2])); pend=pend[2:]
                    first=False
                elif len(pend)>=2: A('v_max3_u32 v13, v13, v%d, v%d'%tuple(pend[:2])); pend=pend[2:]
                elif last: A('v_max_u32 v13, v13, v%d'%pend[0]); pend=[]
                else: break
        A('v_cmp_eq_u32 vcc, -1, v13')
        A('s_cbranch_vccz %s'%d)
        if sleep: A('s_sleep %d'%sleep)
        A('s_sub_u32 s61, s61, 1\ns_cmp_lg_u32 s61, 0\ns_cbranch_scc1 %s'%l)
        A('%s:'%d)
    def apoll(loads,par):
        import re as _re
        mode,D,sleep=par
        loads=[x.replace(' sc1',' '+cfg.lf) for x in loads]
        l=newlab('al'); d=newlab('ad'); gl=newlab('ag')
        rg=[]
        for x in loads:
            m=_re.search(r'v\[(\d+):(\d+)\]',x); rg.append(list(range(int(m.group(1)),int(m.group(2))+1)))
        def chain(t,r):
            r=list(r)
            if len(r)==2: A('v_max_u32 v%d, v%d, v%d'%(t,r[0],r[1])); return
            A('v_max3_u32 v%d, v%d, v%d, v%d'%(t,r[0],r[1],r[2])); r=r[3:]
            while r:
                if len(r)==1: A('v_max_u32 v%d, v%d, v%d'%(t,t,r[0])); r=[]
                else: A('v_max3_u32 v%d, v%d, v%d, v%d'%(t,t,r[0],r[1])); r=r[2:]
        n=len(loads)
        A('s_mov_b32 s61, %d'%cfg.spin)
        if mode in 'cm':
            A('%s:'%l)
            for x in loads: A(x)
            if sleep: A('s_sleep %d'%sleep)
            A('s_waitcnt vmcnt(%d)'%min(63,n*(D-1)))
            chain(13,sum(rg,[]))
            A('v_cmp_eq_u32 vcc, -1, v13')
            A('s_cbranch_vccz %s'%d)
            if mode=='m': A('s_mov_b64 exec, vcc')
            A('s_sub_u32 s61, s61, 1\ns_cmp_lg_u32 s61, 0\ns_cbranch_scc1 %s'%l)
            A('%s:'%d)
            if mode=='m': A('s_mov_b64 exec, s[4:5]')
        else:
            mk=['s[6:7]','s[8:9]','s[10:11]','s[40:41]','s[42:43]','s[44:45]','s[46:47]','s[62:63]'][:n]
            for m_ in mk: A('s_mov_b64 %s, s[4:5]'%m_)
            A('%s:'%l)
            for x,m_ in zip(loads,mk):
                sk=newlab('as')
                A('s_mov_b64 exec, %s\ns_cbranch_execz %s'%(m_,sk)); A(x); A('%s:'%sk)
            A('s_mov_b64 exec, s[4:5]')
            if sleep: A('s_sleep %d'%sleep)
            A('s_waitcnt vmcnt(%d)'%min(63,n*(D-1)))
            for i in range(n): chain(246+i,rg[i])
            chain(13,[246+i for i in range(n)])
            A('v_cmp_eq_u32 vcc, -1, v13')
            A('s_cbranch_vccz %s'%d)
            for i in range(n): A('v_cmp_eq_u32 %s, -1, v%d'%(mk[i],246+i))
            A('s_sub_u32 s61, s61, 1\ns_cmp_lg_u32 s61, 0\ns_cbranch_scc1 %s'%l)
            A('%s:'%d)
    def spoll(loads,hooks,pre=None,post=None):
        import re as _re
        l=newlab('sl'); d=newlab('sd')
        A('s_mov_b32 s61, %d'%cfg.spin)
        A('%s:'%l)
        if pre: A(pre)
        for x in loads: A(x)
        if post: A(post)
        first=True; pend=[]
        n=len(loads)
        for i,x in enumerate(loads):
            m=_re.search(r'v\[(\d+):(\d+)\]',x)
            pend+=list(range(int(m.group(1)),int(m.group(2))+1))
            if i<n-1 and i not in hooks: continue
            A('s_waitcnt vmcnt(%d)'%(n-1-i))
            chk=[]
            while pend:
                if first:
                    chk.append('v_max3_u32 v13, v%d, v%d, v%d'%tuple(pend[:3])); pend=pend[3:]; first=False
                elif len(pend)>=2: chk.append('v_max3_u32 v13, v13, v%d, v%d'%tuple(pend[:2])); pend=pend[2:]
                elif i==n-1: chk.append('v_max_u32 v13, v13, v%d'%pend[0]); pend=[]
                else: break
            if i==n-1: chk.append('v_cmp_eq_u32 vcc, -1, v13')
            h=list(hooks.get(i,[]))
            while h or chk:
                if h: A(h.pop(0))
                if chk: A(chk.pop(0))
        A('s_cbranch_vccz %s'%d)
        A('s_sub_u32 s61, s61, 1\ns_cmp_lg_u32 s61, 0\ns_cbranch_scc1 %s'%l)
        A('%s:'%d)
    def gate(n):
        if not n: return
        l=newlab('ga'); d=newlab('gb')
        A('s_mov_b32 s61, %d\n%s:\nglobal_load_dword v13, v14, %s sc1\ns_waitcnt vmcnt(0)\nv_cmp_ne_u32 vcc, -1, v13\ns_nop 1\ns_bcnt1_i32_b64 s6, vcc\ns_cmp_ge_u32 s6, %d\ns_cbranch_scc1 %s'%(cfg.spin,l,WS,n,d))
        A('s_sleep 2\ns_sub_u32 s61, s61, 1\ns_cmp_lg_u32 s61, 0\ns_cbranch_scc1 %s\n%s:'%(l,d))
    def flagpoll(voff,execmask,par=None):
        l=newlab('fl'); d=newlab('fd')
        A('s_mov_b32 s61, %d'%cfg.spin)
        A('s_mov_b64 exec, %s'%execmask)
        A('%s:'%l)
        A('global_load_dwordx4 v[72:75], v%d, %s sc1\ns_waitcnt vmcnt(0)'%(voff,WS))
        if par: A('v_min_u32 v13, v72, v74\nv_min_u32 v72, v73, v75\nv_cndmask_b32 v13, v13, v72, %s\nv_cmp_eq_u32 vcc, 0, v13\ns_cbranch_vccz %s'%(par,d))
        else: A('v_min3_u32 v13, v72, v73, v74\nv_min_u32 v13, v13, v75\nv_cmp_eq_u32 vcc, 0, v13\ns_cbranch_vccz %s'%d)
        A('s_sleep 16')
        A('s_sub_u32 s61, s61, 1\ns_cmp_lg_u32 s61, 0\ns_cbranch_scc1 %s'%l)
        A('%s:'%d)
        A('s_mov_b64 exec, -1')
    def CLASS():
        A('s_cmp_lg_u32 s53, 0\ns_cbranch_scc1 L_nofc')
        progress(cfg.pw0)
        flagpoll(79,'-1')
        A('ds_write_b128 v1, v[72:75] offset:%d'%L_DP)
        A('v_add_u32 v7, 256, v79\ns_mov_b32 s6, 0x03030303\ns_mov_b32 s7, s6\ns_waitcnt lgkmcnt(0)')
        flagpoll(7,'s[6:7]')
        A('s_and_b32 s54, s48, 3\ns_lshl_b32 s54, s54, 7\ns_lshl_b32 s55, s49, 2\ns_add_u32 s54, s54, s55\nv_mov_b32 v7, s54')
        A('s_mov_b32 s6, 0')
        for r in range(72,76):
            A('v_and_b32 v13, 2, v%d\nv_cmp_ne_u32 vcc, 0, v13\ns_nop 1\ns_bcnt1_i32_b64 s7, vcc\ns_add_u32 s6, s6, s7'%r)
        A('s_waitcnt lgkmcnt(0)\nds_read_b32 v13, v7 offset:%d\ns_waitcnt lgkmcnt(0)\nv_readfirstlane_b32 s7, v13'%L_DP)
        if cfg.wo0:
            A('s_and_b32 s54, s48, 3\ns_lshl_b32 s54, s54, 7\nv_mov_b32 v7, s54\ns_and_b32 s54, s50, 3\ns_lshl_b32 s54, s54, 7\nv_mov_b32 v72, s54')
            A('ds_read_b32 v13, v7 offset:%d\nds_read_b32 v72, v72 offset:%d\ns_waitcnt lgkmcnt(0)\nv_readfirstlane_b32 s4, v13\nv_readfirstlane_b32 s5, v72'%(L_DP,L_DP))
            A('s_xor_b32 s4, s4, s48\ns_bfe_u32 s4, s4, 0x10002\ns_xor_b32 s5, s5, s50\ns_bfe_u32 s5, s5, 0x10002')
        if cfg.diag: A('s_mov_b32 s9, s6')
        A('s_cmp_ge_u32 s6, 32\ns_cselect_b32 s6, 1, 0')
        if cfg.par is not None: A('s_mov_b32 s6, %d'%cfg.par)
        A('s_xor_b32 s7, s7, s48\ns_bfe_u32 s7, s7, 0x10002\ns_xor_b32 s7, s7, s6\ns_lshl_b32 s7, s7, 2\ns_lshl_b32 s6, s6, 1\ns_or_b32 s6, s6, s7\ns_or_b32 s6, s6, 1')
        if cfg.wo0: A('s_lshl_b32 s4, s4, 3\ns_lshl_b32 s5, s5, 4\ns_or_b32 s6, s6, s4\ns_or_b32 s6, s6, s5')
        A('v_mov_b32 v13, s6\nds_write_b32 v11, v13 offset:%d'%(L_CNT+8))
        if cfg.diag: A('s_cmp_lg_u32 s2, 0\ns_cbranch_scc1 L_nofc\nv_mov_b32 v13, s9\nv_mov_b32 v7, 8\nglobal_store_dword v7, v13, %s'%DBG)
        A('L_nofc:')
        lds_wait(11,L_CNT+8,1,6)
        A('s_bfe_u32 s11, s54, 0x10002\ns_bfe_u32 s62, s54, 0x10003\ns_bfe_u32 s63, s54, 0x10004\ns_bfe_u32 s54, s54, 0x10001\ns_xor_b32 s10, s10, s54\ns_xor_b32 s62, s62, s54\ns_xor_b32 s63, s63, s54')
    def tr128(dst,base):
        for s_ in range(4):
            A('ds_read_b64_tr_b16 v[%d:%d], v8 offset:%d'%(dst+4*s_,dst+4*s_+1,base+4096*s_))
            A('ds_read_b64_tr_b16 v[%d:%d], v8 offset:%d'%(dst+4*s_+2,dst+4*s_+3,base+4096*s_+512))

    A('v_mov_b32 v76, 0')
    if cfg.wo0 and not cfg.wo1:
        A('s_cmp_eq_u32 s13, 0\ns_cbranch_scc1 L_isp\ns_cmp_lg_u32 s53, 3\ns_cbranch_scc1 L_noln\ns_waitcnt vmcnt(6)\ns_mov_b64 exec, 1\nglobal_load_dword v76, v11, %s sc1\ns_mov_b64 exec, -1\nL_isp:'%DBG)
    A('s_cmp_lg_u32 s13, 0\ns_cbranch_scc1 L_noln')
    A('s_waitcnt vmcnt(9)')
    stamp(1)
    A('s_cmp_lg_u32 s53, 3\ns_cbranch_scc1 L_nog0\ns_mov_b64 exec, 1\nglobal_load_dword v76, v11, %s sc1\ns_mov_b64 exec, -1\nL_nog0:'%DBG)
    layernorm('x')
    A('L_noln:')
    A('s_waitcnt vmcnt(0)')
    lds_sync(0)
    stamp(2)
    A('s_lshl_b32 s54, s48, 2\ns_add_u32 s54, s54, s68\ns_lshl_b32 s54, s54, 9\ns_lshl_b32 s55, s69, 2\ns_add_u32 s54, s54, s55\ns_add_u32 s54, s54, s3\nv_mov_b32 v6, s54')
    A('s_getreg_b32 s10, hwreg(HW_REG_XCC_ID)\ns_bfe_u32 s10, s10, 0x10002')
    A('s_cmp_lg_u32 s53, 3\ns_cbranch_scc1 L_noflag')
    A('s_mov_b64 exec, 1\nv_cmp_eq_u32 vcc, 0, v76\ns_cbranch_vccz L_god')
    A('s_mov_b32 s61, %d\nL_go:\nglobal_load_dword v13, v11, %s sc1\ns_waitcnt vmcnt(0)\nv_cmp_eq_u32 vcc, 0, v13\ns_cbranch_vccz L_god'%(cfg.spin,DBG))
    A('s_sleep 8\ns_sub_u32 s61, s61, 1\ns_cmp_lg_u32 s61, 0\ns_cbranch_scc1 L_go\nL_god:')
    A('s_lshl_b32 s54, s10, 2\ns_or_b32 s54, s54, 1\nv_mov_b32 v7, s54\nglobal_store_dword v6, v7, %s sc1'%WS)
    A('s_mov_b64 exec, -1')
    A('L_noflag:')
    if cfg.wo1:
        A('s_cmp_eq_u32 s13, 0\ns_cbranch_scc1 L_now1'); wo_dma(); A('L_now1:')
    A('s_cmp_lg_u32 s13, 0\ns_cbranch_scc1 L_noq')
    for h in range(2):
        tr128(80+16*h,L_WA+16384*h)
        for s_ in range(4):
            A('ds_read_b128 v[%d:%d], v10 offset:%d'%(112+16*h+4*s_,115+16*h+4*s_,L_XN+256*h+64*s_))
        A('s_waitcnt lgkmcnt(0)')
    for s_ in range(8):
        A('v_mfma_f32_16x16x32_bf16 v[48:51], v[%d:%d], v[%d:%d], %s'%(80+4*s_,83+4*s_,112+4*s_,115+4*s_,'0' if s_==0 else 'v[48:51]'))
    A('s_mov_b32 exec_lo, 0x00ff00ff\ns_mov_b32 exec_hi, 0x00ff00ff')
    A('s_nop 5')
    A('global_store_dwordx4 v14, v[48:51], %s sc1'%WS)
    A('s_mov_b64 exec, -1')
    A('L_noq:')
    stamp(3)
    A('s_mov_b64 exec, 1\nds_add_u32 v11, v12 offset:%d\ns_mov_b64 exec, -1'%(L_CNT+12))
    A('s_cmp_eq_u32 s53, 0\ns_cbranch_scc1 L_qg\ns_cmp_lg_u32 s53, 1\ns_cbranch_scc1 L_qdone\ns_cmp_ge_u32 s49, 8\ns_cbranch_scc1 L_qdone')
    A('s_mov_b32 s6, 0')
    for i in range(cfg.NP):
        for c in ((0,1) if i%2==0 else (1,0)):
            l=newlab('pb'); d=newlab('pe')
            A('s_add_u32 s7, s9, %d\ns_mov_b32 s8, 0\ns_mov_b32 s61, 0\ns_load_dword s8, %s, s7'%(i*16384+c*8192,WS))
            A('%s:\ns_add_u32 s61, s61, 1\ns_cmp_gt_u32 s61, 0xffff\ns_cbranch_scc1 %s\ns_cmp_eq_u32 s8, 0\ns_cbranch_scc1 %s\n%s:\ns_waitcnt lgkmcnt(0)'%(l,d,l,d))
            if i>0: A('%s s6, s6, s61'%('s_add_i32' if c==0 else 's_sub_i32'))
    A('s_cmp_gt_i32 s6, 0\ns_cselect_b32 s6, 1, 0')
    A('s_xor_b32 s6, s6, s10\ns_lshl_b32 s6, s6, 1\ns_or_b32 s6, s6, 1\nv_mov_b32 v7, s6')
    lds_wait(11,L_CNT+12,4,2)
    A('s_mov_b64 exec, 1\nglobal_store_dword v6, v7, %s offset:256 sc1\ns_mov_b64 exec, -1\ns_branch L_qdone'%WS)
    A('L_qg:')
    A('v_and_b32 v6, 3, v0\nv_lshlrev_b32 v6, 9, v6\nv_lshrrev_b32 v14, 2, v0\nv_lshl_add_u32 v6, v14, 5, v6')
    A('s_lshl_b32 s54, s50, 12\ns_add_u32 s54, s54, %d\nv_add_u32 v6, s54, v6'%QP)
    A('s_and_b32 s54, s50, 7\ns_lshl_b32 s54, s54, 11\nv_add_u32 v7, s54, v79')
    lds_wait(11,L_CNT+12,4,2)
    progress(cfg.pq)
    A('s_and_b32 s6, s50, 1\ns_cselect_b64 s[6:7], -1, 0')
    if not cfg.skipF: flagpoll(7,'0xff','s[6:7]' if cfg.gmask else None)
    stamp(4)
    if not cfg.skipG: poll(['global_load_dwordx4 v[%d:%d], v6, %s offset:%d sc1'%(32+8*kq+4*h,35+8*kq+4*h,WS,2048*kq+16*h) for kq in range(2) for h in range(2)],None,sleep=8)
    for p in range(4):
        A('v_pk_add_f32 v[%d:%d], v[%d:%d], v[%d:%d]'%(32+2*p,33+2*p,32+2*p,33+2*p,40+2*p,41+2*p))
    for p in range(4):
        A('v_cvt_pk_bf16_f32 v%d, v%d, v%d'%(32+p,32+2*p,33+2*p))
    A('ds_write_b128 v1, v[32:35] offset:%d'%L_QL)
    stamp(5)
    A('s_waitcnt lgkmcnt(0)')
    if cfg.qflag: A('ds_write_b32 v11, v12 offset:%d'%(L_CNT+16))
    A('L_qdone:')
    if cfg.touch:
        A('s_lshl_b32 s54, s50, 21\ns_load_dword s4, %s, s54'%VP)
        A('s_load_dword s6, %s, 0\ns_load_dword s7, %s, 0\ns_load_dword s8, %s, 0'%(WG,WU,WD))
        A('s_lshl_b32 s54, s48, 19\ns_load_dword s9, %s, s54'%WO)
        A('s_waitcnt lgkmcnt(0)')
    A('s_setprio 0')
    if not cfg.qflag: A('s_barrier')

    A('s_mov_b32 s70, 0\ns_and_b32 s54, s49, 0x13\ns_cmp_eq_u32 s54, s51\ns_cselect_b32 s70, 2, s70')
    A('s_cmp_lt_u32 s48, 4\ns_cselect_b32 s6, 16, 12\ns_cselect_b32 s7, 8, 6\ns_cselect_b32 s8, 0, 8\ns_mul_i32 s14, s48, s7\ns_add_u32 s14, s14, s8')
    if cfg.helper: A('s_and_b32 s54, s49, 0x13\ns_xor_b32 s54, s54, 2\ns_cmp_eq_u32 s54, s51\ns_cselect_b32 s9, s49, 99\ns_cmp_lt_u32 s9, s6\ns_cselect_b32 s70, 4, s70')
    A('s_sub_u32 s54, s49, 16\ns_cmp_lt_u32 s54, s6\ns_cselect_b32 s70, 1, s70')
    A('s_xor_b32 s55, s2, s49\ns_and_b32 s55, s55, 1\ns_cselect_b32 s70, 3, s70')
    A('s_bfe_u32 s54, s49, 0x30001\ns_add_u32 s14, s14, s54')
    A('s_lshr_b32 s15, s49, 2\ns_add_u32 s54, s48, %d\ns_and_b32 s54, s54, 7\ns_lshl_b32 s54, s54, 2\ns_add_u32 s15, s15, s54'%cfg.crot)
    if cfg.e1now:
        A('s_cmp_lg_u32 s70, 1\ns_cbranch_scc1 L_ne1')
        lds_wait(11,L_CNT+12,4,2)
        A('s_lshl_b32 s54, s14, 6')
        A('s_lshl_b32 s55, s53, 7\nv_lshrrev_b32 v6, 2, v0\nv_add_u32 v6, s55, v6\nv_mul_u32_u24 v6, 3584, v6\nv_and_b32 v7, 3, v0\nv_lshl_add_u32 v6, v7, 4, v6\nv_add_u32 v6, s54, v6')
        for k in range(cfg.E1):
            i=k//2
            A(('v_add_u32 v7, %d, v6\n'%(i*16*3584))+'s_add_u32 m0, s71, %d\ns_nop 0\nglobal_load_lds_dwordx4 v7, %s %s'%(L_WA+32768*(k&1)+i*1024,WU if k&1 else WG,cfg.ff))
        A('L_ne1:')
    CLASS()
    A('s_lshr_b32 s13, s2, 1\ns_andn2_b32 s13, s13, 2\ns_lshl_b32 s54, s11, 1\ns_or_b32 s13, s13, s54')
    A('s_and_b32 s54, s48, 3\ns_lshl_b32 s54, s54, 2\ns_add_u32 s67, s54, s68\ns_lshl_b32 s54, s11, 4\ns_add_u32 s67, s67, s54')
    if cfg.wo0: A('s_lshl_b32 s54, s48, 2\ns_add_u32 s67, s54, s68')
    A('s_bfe_u32 s69, s49, 0x20001')
    A('v_and_b32 v6, 3, v0\nv_lshlrev_b32 v6, 2, v6\nv_lshrrev_b32 v7, 4, v0\nv_add_u32 v6, v6, v7')
    A('v_bfe_u32 v7, v0, 2, 1')
    A('v_lshrrev_b32 v24, 3, v0\nv_lshlrev_b32 v24, 13, v24\nv_and_b32 v13, 7, v0\nv_lshl_add_u32 v24, v13, 3, v24')
    A('s_and_b32 s54, s13, 31\ns_lshl_b32 s54, s54, 8\ns_lshr_b32 s55, s13, 5\ns_lshl_b32 s55, s55, 6\ns_add_u32 s54, s54, s55\ns_add_u32 s54, s54, %d\nv_add_u32 v24, s54, v24\ns_mov_b32 s55, s13'%HB)
    A('v_lshlrev_b32 v6, 1, v6\nv_lshl_add_u32 v6, v7, 10, v6\ns_lshr_b32 s54, s55, 5\ns_lshl_b32 s54, s54, 11\ns_and_b32 s55, s55, 31\ns_lshl_b32 s55, s55, 5\ns_add_u32 s54, s54, s55\nv_add_u32 v6, s54, v6')
    A('global_load_ushort v16, v6, %s'%X)
    def paced(k,n,line):
        if cfg.nb:
            nb=min(cfg.nb,n); span=16//nb
            bi=lambda k:(k*nb)//n
            if k==0 or bi(k)!=bi(k-1):
                A('s_lshr_b32 s55, s49, 1\ns_and_b32 s55, s55, %d\ns_add_u32 s55, s55, %d'%(span-1,cfg.pw0+1+span*bi(k)))
                progress('s55')
            assert cfg.pw0+16<cfg.NS-1
            A(line); return
        f=lambda k: cfg.pw0+(k*(cfg.pw1-cfg.pw0))//n
        if k==0 or f(k)!=f(k-1): progress(f(k))
        assert f(k)<cfg.NS
        A(line)
    def dma1(k):
        i=k//2
        return ('v_add_u32 v7, %d, v6\n'%(i*16*3584))+'s_add_u32 m0, s71, %d\ns_nop 0\nglobal_load_lds_dwordx4 v7, %s %s'%(L_WA+32768*(k&1)+i*1024,WU if k&1 else WG,cfg.ff)
    def dma2(i):
        return ('v_add_u32 v7, %d, v6\n'%(i*0x8000))+'s_add_u32 m0, s71, %d\ns_nop 0\nglobal_load_lds_dwordx4 v7, %s %s'%(L_WA+i*1024,WD,cfg.ff)
    l1=newlab('w1'); l2=newlab('w2'); le=newlab('we')
    A('s_cmp_eq_u32 s70, 0\ns_cbranch_scc1 %s\ns_cmp_eq_u32 s70, 2\ns_cbranch_scc1 %s\ns_cmp_lg_u32 s70, 3\ns_cbranch_scc1 %s'%(le,l2,l1))
    A('s_lshl_b32 s54, s67, 7\ns_lshl_b32 s55, s53, 1\ns_add_u32 s54, s54, s55\ns_lshl_b32 s54, s54, 10\ns_lshl_b32 s55, s69, 8\ns_add_u32 s54, s54, s55')
    A('v_lshrrev_b32 v6, 4, v0\nv_lshlrev_b32 v6, 13, v6\nv_and_b32 v7, 15, v0\nv_lshl_add_u32 v6, v7, 4, v6\nv_add_u32 v6, s54, v6')
    A('s_lshl_b32 s71, s53, 13')
    def dmaw(i):
        return 'v_add_u32 v7, %d, v6\ns_add_u32 m0, s71, %d\ns_nop 0\nglobal_load_lds_dwordx4 v7, %s %s'%((32*(i&3)+(i>>2))*1024,L_WA+i*1024,WO,cfg.wf)
    for i in range(0 if (cfg.noW or cfg.wo0) else cfg.EW): paced(i,cfg.EW,dmaw(i))
    A('s_branch %s'%le)
    A('%s:'%l1)
    A('s_lshl_b32 s54, s14, 6')
    A('s_lshl_b32 s55, s53, 7\nv_lshrrev_b32 v6, 2, v0\nv_add_u32 v6, s55, v6\nv_mul_u32_u24 v6, 3584, v6\nv_and_b32 v7, 3, v0\nv_lshl_add_u32 v6, v7, 4, v6\nv_add_u32 v6, s54, v6')
    A('s_lshl_b32 s71, s53, 13')
    A('s_cmp_eq_u32 s70, 4\ns_cbranch_scc1 %s'%le)
    for k in range(0 if cfg.e1now else cfg.E1): paced(k,cfg.E1,dma1(k))
    A('s_branch %s'%le)
    A('%s:'%l2)
    A('s_mul_i32 s54, s53, 448\nv_lshrrev_b32 v6, 1, v0\nv_add_u32 v6, s54, v6\nv_lshlrev_b32 v6, 10, v6')
    A('v_and_b32 v7, 1, v0\nv_lshl_add_u32 v6, v7, 4, v6\ns_lshl_b32 s54, s15, 5\nv_add_u32 v6, s54, v6')
    A('s_mul_i32 s71, s53, 14336')
    for k in range(cfg.E2): paced(k,cfg.E2,dma2(k))
    A('%s:'%le)
    A('s_waitcnt vmcnt(0)')
    A('v_lshlrev_b32 v16, 16, v16')
    lds_sync(1,sleep=4)
    stamp(6)
    l1=newlab('r1'); l2=newlab('r2'); le=newlab('re')
    A('v_mov_b32 v26, 0\nv_mov_b32 v27, 0\nv_mov_b32 v28, 0\nv_mov_b32 v29, 0')
    A('s_cmp_eq_u32 s70, 1\ns_cbranch_scc1 %s\ns_cmp_eq_u32 s70, 2\ns_cbranch_scc1 %s'%(l1,l2))
    A('v_lshrrev_b32 v8, 4, v0\nv_lshlrev_b32 v8, 11, v8\nv_bfe_u32 v7, v0, 2, 2\nv_lshl_add_u32 v8, v7, 8, v8\nv_and_b32 v7, 3, v0\nv_lshl_add_u32 v8, v7, 3, v8')
    A('s_lshl_b32 s54, s53, 6\ns_add_u32 s54, s54, %d\nv_add_u32 v8, s54, v8'%L_WA)
    def trw():
        for t in range(2):
            for s_ in range(4):
                r=80+16*t+4*s_
                A('ds_read_b64_tr_b16 v[%d:%d], v8 offset:%d'%(r,r+1,8192*s_+32*t))
                A('ds_read_b64_tr_b16 v[%d:%d], v8 offset:%d'%(r+2,r+3,8192*s_+32*t+1024))
            if t==0 or cfg.EW==8: A('s_waitcnt lgkmcnt(0)')
    if cfg.EW==8: trw()
    A('s_branch %s'%le)
    A('%s:'%l1)
    A('v_lshrrev_b32 v8, 4, v0\nv_lshlrev_b32 v8, 9, v8\nv_bfe_u32 v7, v0, 2, 2\nv_lshl_add_u32 v8, v7, 6, v8')
    A('v_and_b32 v7, 1, v0\nv_lshl_add_u32 v8, v7, 3, v8\nv_bfe_u32 v7, v0, 1, 1\nv_lshl_add_u32 v8, v7, 15, v8\ns_add_u32 s54, s71, %d\nv_add_u32 v8, s54, v8'%L_WA)
    A('s_mul_i32 s55, s14, 147\ns_lshr_b32 s55, s55, 11\ns_mul_i32 s55, s55, %d'%(16384-7168))
    A('s_lshl_b32 s54, s14, 2\ns_add_u32 s54, s54, s53\ns_lshl_b32 s54, s54, 7\ns_add_u32 s54, s54, s55\ns_add_u32 s54, s54, %d'%AB)
    A('v_and_b32 v27, 0x70, v1\nv_lshrrev_b32 v7, 4, v0\nv_lshl_add_u32 v27, v7, 16, v27\nv_bfe_u32 v7, v0, 3, 1\nv_lshlrev_b32 v7, 13, v7\nv_add3_u32 v27, v27, v7, s54')
    A('s_and_b32 s55, s48, %d\ns_lshl_b32 s55, s55, 14\ns_lshl_b32 s54, s10, 13\ns_add_u32 s54, s54, s55\ns_lshl_b32 s55, s53, 11\ns_add_u32 s54, s54, s55\ns_add_u32 s54, s54, %d'%(cfg.nH//2-1,HB))
    A('v_and_b32 v4, 7, v0\nv_lshlrev_b32 v4, 5, v4\nv_lshrrev_b32 v7, 5, v0\nv_lshl_add_u32 v4, v7, 8, v4\nv_and_b32 v7, 16, v0\nv_add3_u32 v4, v4, v7, s54')
    A('s_mul_i32 s54, s53, 5120\nv_add_u32 v10, s54, v1')
    A('v_and_b32 v5, 0x17, v0\nv_lshlrev_b32 v5, 4, v5\nv_bfe_u32 v7, v0, 3, 1\nv_lshl_add_u32 v5, v7, 3, v5\nv_lshrrev_b32 v7, 5, v0\nv_lshl_add_u32 v5, v7, 2, v5\ns_lshl_b32 s54, s53, 10\nv_add_u32 v5, s54, v5')
    A('v_and_b32 v9, 7, v0\nv_lshlrev_b32 v9, 4, v9\nv_bfe_u32 v7, v0, 2, 1\nv_lshl_add_u32 v9, v7, 8, v9\nv_and_b32 v7, 3, v0\nv_lshl_add_u32 v9, v7, 2, v9')
    for p in range(4): A('v_add_u32 v%d, %d, v5\nv_add_u32 v%d, %d, v9'%(160+p,L_XN+5120*p,164+p,L_XN+5120*p+4096))
    A('s_branch %s'%le)
    A('%s:'%l2)
    A('v_lshrrev_b32 v8, 4, v0\nv_lshlrev_b32 v8, 9, v8\nv_bfe_u32 v7, v0, 1, 1\nv_lshl_add_u32 v8, v7, 8, v8\nv_bfe_u32 v7, v0, 2, 2\nv_lshl_add_u32 v8, v7, 5, v8')
    A('v_and_b32 v7, 1, v0\nv_lshl_add_u32 v8, v7, 3, v8\ns_add_u32 s55, s71, %d\nv_add_u32 v8, s55, v8'%L_WA)
    A('v_bfe_u32 v26, v0, 2, 1\nv_lshlrev_b32 v26, 10, v26\nv_bfe_u32 v7, v0, 1, 1\nv_lshl_add_u32 v26, v7, 8, v26\nv_lshrrev_b32 v7, 3, v0\nv_lshl_add_u32 v26, v7, 4, v26\nv_and_b32 v7, 1, v0\nv_lshl_add_u32 v26, v7, 3, v26')
    A('s_and_b32 s55, s48, %d\ns_lshl_b32 s55, s55, 16\ns_lshl_b32 s54, s53, 14\ns_add_u32 s54, s54, s55\ns_lshl_b32 s55, s10, 13\ns_add_u32 s54, s54, s55\ns_add_u32 s54, s54, %d\nv_add_u32 v27, s54, v1'%(cfg.nA//2-1,AB+3072))
    A('s_mov_b32 s54, s15\ns_lshl_b32 s55, s54, 5')
    A('v_lshrrev_b32 v28, 3, v0\nv_lshlrev_b32 v28, 10, v28\nv_and_b32 v7, 7, v0\nv_lshl_add_u32 v28, v7, 2, v28\nv_add_u32 v28, s55, v28')
    A('s_lshl_b32 s54, s54, 8\ns_and_b32 s55, s48, %d\ns_lshl_b32 s55, s55, 14\ns_add_u32 s54, s54, s55\ns_lshl_b32 s55, s10, 13\ns_add_u32 s54, s54, s55\ns_add_u32 s54, s54, %d'%(cfg.nH//2-1,HB))
    A('v_lshl_add_u32 v29, v0, 2, s54')
    A('s_lshl_b32 s54, s53, 11\nv_add_u32 v10, s54, v1')
    A('%s:'%le)
    A('s_lshl_b32 s54, s53, 9\nv_add_u32 v17, s54, v3')
    A('s_and_b32 s54, s50, 3\ns_lshl_b32 s54, s54, 2\ns_add_u32 s54, s54, s53\ns_mul_i32 s54, s54, 49152\n%s\ns_lshl_b32 s55, s55, 13\ns_add_u32 s54, s54, s55'%('s_mov_b32 s55, s63' if cfg.wo0 else 's_bfe_u32 s55, s50, 0x10002'))
    A('s_lshr_b32 s6, s50, 3\ns_mul_i32 s7, s6, 11\ns_lshr_b32 s7, s7, 5\ns_mul_i32 s7, s7, %d\ns_lshl_b32 s6, s6, 2\ns_add_u32 s6, s6, s51\ns_mul_i32 s6, s6, %d'%(16384-12*OPS,OPS))
    A('s_add_u32 s54, s54, s6\ns_add_u32 s54, s54, s7\ns_add_u32 s54, s54, %d\nv_add_u32 v18, s54, v1'%OP)
    A('s_and_b32 s54, s67, 15\ns_mul_i32 s54, s54, 49152\ns_lshl_b32 s55, %s, 13\ns_add_u32 s54, s54, s55\ns_add_u32 s54, s54, %d'%('s62' if cfg.wo0 else 's11',OP))
    A('v_mul_u32_u24 v7, 11, v2\nv_lshrrev_b32 v7, 5, v7\nv_mul_u32_u24 v7, %d, v7\nv_mul_u32_u24 v25, %d, v2\nv_add3_u32 v25, v25, v7, s54\nv_add_u32 v19, v25, v3'%(16384-12*OPS,4*OPS))
    if cfg.G1 or cfg.G2:
        A('v_bfe_u32 v14, v0, 2, 3\nv_mul_u32_u24 v7, 11, v14\nv_lshrrev_b32 v7, 5, v7\nv_mul_u32_u24 v7, %d, v7\nv_and_b32 v14, 31, v0\nv_mul_u32_u24 v14, %d, v14\nv_add_u32 v14, v14, v7'%(16384-12*OPS,OPS))
        A('v_lshrrev_b32 v7, 5, v0\nv_add_u32 v7, s48, v7\nv_and_b32 v7, 3, v7\nv_mul_u32_u24 v7, %d, v7\ns_lshl_b32 s54, s10, 13\ns_add_u32 s54, s54, %d\nv_add3_u32 v14, v14, v7, s54'%(4*49152,OP+512))
    A('s_lshl_b32 s54, s53, 5\nv_mov_b32 v30, s54')
    A('v_mul_u32_u24 v20, %d, v2\nv_lshrrev_b32 v7, 1, v3\nv_add_u32 v20, v20, v7'%XOS)
    A('v_and_b32 v21, 7, v0\nv_mul_u32_u24 v21, %d, v21\nv_add_u32 v21, v21, v15'%XOS)
    A('s_lshl_b32 s54, s69, 2\ns_add_u32 s54, s54, s53\ns_lshl_b32 s54, s54, 13\ns_add_u32 s54, s54, %d'%(WP+2048))
    A('s_lshl_b32 s55, s69, 1\ns_add_u32 s55, s55, s67' if cfg.wrot else 's_mov_b32 s55, s67')
    A('v_bfe_u32 v22, v0, 1, 2')
    A('v_lshl_add_u32 v7, v22, 3, s55' if cfg.wrot else 'v_mov_b32 v7, s55')
    A('v_and_b32 v7, 31, v7\nv_lshlrev_b32 v22, 17, v22\nv_lshl_add_u32 v22, v7, 7, v22\nv_and_b32 v7, 1, v0\nv_lshl_add_u32 v22, v7, 6, v22\nv_add3_u32 v22, v22, v15, s54')
    A('s_lshl_b32 s54, s13, 12\ns_add_u32 s54, s54, %d\nv_add_u32 v23, s54, v1'%WP)
    def guarded(lines):
        A(lines)
    def drychk():
        pass
    for r in range(192,246): A('v_mov_b32 v%d, -1'%r)
    A('s_waitcnt lgkmcnt(0)')
    A('s_mov_b64 vcc, 0\ns_mov_b64 s[4:5], %d\ns_mov_b64 exec, s[4:5]'%(0 if cfg.warm else -1))
    wpl=['global_load_dwordx4 v[%d:%d], v23, %s offset:%d sc1'%(216+4*t,219+4*t,WS,1024*t) for t in range(4)]
    opl=['global_load_dwordx2 v[%d:%d], v25, %s offset:%d sc1'%(208+2*s_,209+2*s_,WS,OPS*s_+512) for s_ in range(4)]+['global_load_dwordx4 v[%d:%d], v19, %s offset:%d sc1'%(192+4*s_,195+4*s_,WS,OPS*s_) for s_ in range(4)]
    hbl=['global_load_dwordx4 v[%d:%d], v4, %s offset:%d sc1'%(216+4*t,219+4*t,WS,1024*t) for t in range(4)]
    abl=['global_load_dwordx4 v[%d:%d], v27, %s offset:%d sc1'%(216+4*t,219+4*t,WS,1024*t-3072) for t in range(7)]
    if cfg.pre:
        A('s_cmp_lg_u32 s70, 3\ns_cbranch_scc1 L_pre1')
        if cfg.pre&2: A('\n'.join(opl))
        A('s_cmp_lg_u32 s53, 0\ns_cbranch_scc1 L_pre3')
        if cfg.pre&1: A('\n'.join(wpl))
        A('s_branch L_pre3\nL_pre1:')
        if cfg.pre&4:
            A('s_cmp_lg_u32 s70, 1\ns_cbranch_scc1 L_pre2'); A('\n'.join(hbl)); A('L_pre2:\ns_cmp_lg_u32 s70, 2\ns_cbranch_scc1 L_pre3'); A('\n'.join(abl))
        A('L_pre3:')
    if cfg.fb:
        p0,stp,late,up=cfg.fb
        A('s_cmp_lg_u32 s53, 1\ns_cbranch_scc1 L_nofb')
        A('s_and_b32 s54, s49, 7\ns_lshl_b32 s54, s54, 9\ns_add_u32 s54, s54, %d\ns_add_u32 s40, s38, s54\ns_addc_u32 s41, s39, 0\ns_mov_b32 s42, %d\ns_mov_b32 s44, 0'%(RNK,p0))
        A('L_fb:')
        lds_wait(31,L_PR,'s42',2)
        A('s_mov_b32 s43, 1\ns_atomic_add s43, s[40:41], s44 glc\ns_waitcnt lgkmcnt(0)\ns_add_u32 s43, s43, 1\ns_cmp_ge_u32 s43, %d\ns_cselect_b32 s43, 1, 0\nv_mov_b32 v13, s43\nds_write_b32 v11, v13 offset:%d'%(late,L_CNT+28))
        A('s_add_u32 s44, s44, 4096\ns_add_u32 s42, s42, %d\ns_cmp_lt_u32 s42, %d\ns_cbranch_scc1 L_fb\ns_waitcnt lgkmcnt(0)'%(stp,cfg.NS-2))
        assert (cfg.NS-p0)//stp+1<=20
        A('L_nofb:')
    if cfg.disp and cfg.NS<32:
        A('s_cmp_lg_u32 s53, 2\ns_cbranch_scc1 L_tail')
        A('s_lshl_b32 s54, s50, %d\ns_add_u32 s54, s54, %d\ns_add_u32 s40, s38, s54\ns_addc_u32 s41, s39, 0'%(cfg.cs,CTR))
        lds_wait(31,L_PR,cfg.NS-1,2)
        thr,small,keep2=cfg.gd or (0,cfg.disp,cfg.disp-cfg.LA)
        A('s_mov_b32 s42, 0\ns_mov_b32 s44, %d\ns_mov_b32 s45, %d'%(cfg.disp,cfg.disp-cfg.LA))
        A('L_dsp:')
        A('s_mov_b32 s43, s44\ns_atomic_add s43, s[40:41], 0x0 glc\nv_add_lshl_u32 v7, v0, s42, 2\ns_bfm_b64 s[46:47], s44, 0\ns_waitcnt lgkmcnt(0)\ns_add_u32 s43, s43, 1\ns_min_u32 s43, s43, 4096\ns_add_u32 s43, s43, %d\nv_add_u32 v13, s43, v0'%(cfg.NS*16))
        A('s_add_u32 s55, s43, s44\ns_cmp_ge_u32 s55, 512\ns_cbranch_scc1 L_dspd')
        A('s_mov_b64 exec, s[46:47]\nds_write_b32 v7, v13 offset:%d\ns_mov_b64 exec, -1'%(L_CNT+64))
        A('s_add_u32 s42, s42, s44\ns_cmp_ge_u32 s43, %d\ns_cselect_b32 s44, %d, s44\ns_cselect_b32 s45, %d, s45\ns_sub_i32 s55, s42, s45\ns_max_i32 s55, s55, 0'%(512-thr,small,keep2))
        lds_wait(11,L_CNT+24,'s55',1)
        A('s_branch L_dsp')
        A('L_dspd:')
        A('s_mov_b64 exec, 0xff\nds_write_b32 v7, v13 offset:%d\ns_mov_b64 exec, -1'%(L_CNT+64))
        A('s_waitcnt lgkmcnt(0)')
    A('L_tail:')
    stamp(7)
    guarded('s_barrier')
    def wstep(b0,s0,w):
        o=[]
        for half in range(2):
            d='v[%d:%d]'%(b0+2*half,b0+2*half+1); src='v[%d:%d]'%(s0+4*w+2*half,s0+4*w+2*half+1); f='v[%d:%d]'%(72+2*(w//2),73+2*(w//2))
            if w==0: o.append('v_pk_mul_f32 %s, %s, %s op_sel_hi:[1,0]'%(d,src,f))
            elif w%2==0: o.append('v_pk_fma_f32 %s, %s, %s, %s op_sel_hi:[1,0,1]'%(d,src,f,d))
            else: o.append('v_pk_fma_f32 %s, %s, %s, %s op_sel:[0,1,0] op_sel_hi:[1,1,1]'%(d,src,f,d))
        return o
    def wsum2(b0,s0):
        for w in range(4): A('\n'.join(wstep(b0,s0,w)))
    def wsum(b0,half,s0=None):
        d='v[%d:%d]'%(b0+2*half,b0+2*half+1)
        s0=s0 or b0
        for w in range(4):
            src='v[%d:%d]'%(s0+4*w+2*half,s0+4*w+2*half+1)
            f='v[%d:%d]'%(72+2*(w//2),73+2*(w//2))
            if w==0: A('v_pk_mul_f32 %s, %s, %s op_sel_hi:[1,0]'%(d,src,f))
            elif w%2==0: A('v_pk_fma_f32 %s, %s, %s, %s op_sel_hi:[1,0,1]'%(d,src,f,d))
            else: A('v_pk_fma_f32 %s, %s, %s, %s op_sel:[0,1,0] op_sel_hi:[1,1,1]'%(d,src,f,d))
    if cfg.gleak is not None:
        k,lo,hi,msk=cfg.gleak
        A('s_cbranch_execz L_nogl\ns_cmp_lg_u32 s53, 0\ns_cbranch_scc1 L_nogl')
        if k==8: stamp(8); A('s_waitcnt lgkmcnt(0)')
        if k==200: A('s_getreg_b32 s72, hwreg(HW_REG_XCC_ID)\ns_sub_u32 s72, s72, s48\ns_and_b32 s72, s72, 7\ns_mul_i32 s72, s72, 50\nv_mov_b32 v33, s72')
        elif k>=100: A('v_mov_b32 v32, %d\nds_read_b32 v33, v32 offset:%d\ns_waitcnt lgkmcnt(0)'%(4*(k-100),L_ST))
        else: A('v_mov_b32 v33, s%d'%(72+2*k))
        A('v_not_b32 v33, v33\nv_mov_b32 v34, s72\nv_mov_b32 v32, 0x3bf000')
        A('s_mov_b64 exec, 1')
        if k!=8: A('global_atomic_umin v32, v34, %s'%WS)
        A('s_and_b32 s54, s2, %d\ns_sub_u32 s54, s54, %d\ns_cmp_ge_u32 s54, %d\ns_cbranch_scc1 L_nogl2'%(msk,lo,hi-lo))
        A('global_atomic_umin v32, v33, %s offset:256'%WS)
        A('L_nogl2:\ns_mov_b64 exec, -1\n'+('s_nop 2' if k==8 else 's_waitcnt vmcnt(0)'))
        A('L_nogl:')
    A('ds_read_b128 v[64:67], v30 offset:%d\nds_read_b128 v[68:71], v30 offset:%d'%(L_MLW,L_MLW+16))
    for w in range(4):
        A('ds_read_b128 v[%d:%d], v17 offset:%d'%(32+4*w,35+4*w,L_OW+2048*w))
    stamp(8)
    if cfg.notail: A('s_branch L_fin')
    A('s_and_b32 exec_hi, s4, 1')
    A('s_waitcnt lgkmcnt(%d)'%(0 if cfg.diag else 4))
    A('v_max3_f32 v76, v64, v65, v66\nv_max_f32 v76, v76, v67')
    A('v_pk_add_f32 v[72:73], v[64:65], v[76:77] op_sel_hi:[1,0] neg_lo:[0,1] neg_hi:[0,1]')
    A('v_pk_add_f32 v[74:75], v[66:67], v[76:77] op_sel_hi:[1,0] neg_lo:[0,1] neg_hi:[0,1]')
    for i in range(4): A('v_exp_f32 v%d, v%d'%(72+i,72+i))
    A('v_pk_mul_f32 v[68:69], v[68:69], v[72:73]\nv_pk_fma_f32 v[68:69], v[70:71], v[74:75], v[68:69]')
    A('s_waitcnt lgkmcnt(0)')
    A('v_add_f32 v77, v68, v69')
    wsum2(32,32)
    A('s_nop 0')
    A('v_mov_b32_dpp v32, v76 quad_perm:[0,1,2,3] row_mask:0x4 bank_mask:0xf')
    A('v_mov_b32_dpp v33, v77 quad_perm:[0,1,2,3] row_mask:0x4 bank_mask:0xf')
    guarded('global_store_dwordx4 v18, v[32:35], %s %s'%(WS,cfg.sf))
    tstamp(1)
    A('s_mov_b64 exec, s[4:5]')
    A('s_cmp_lg_u32 s70, 3\ns_cbranch_scc1 L_rdone')
    if cfg.EW<8:
        for i in range(cfg.EW,8): A(dmaw(i))
        A('s_waitcnt vmcnt(0)\ns_barrier')
        trw()
    wts=['v_max3_f32 v76, v208, v210, v212','v_max_f32 v76, v76, v214']+['v_sub_f32 v%d, v%d, v76'%(72+i,208+2*i) for i in range(4)]+['v_exp_f32 v%d, v%d'%(72+i,72+i) for i in range(4)]
    wts+=['v_mul_f32 v78, v72, v209']+['v_fmac_f32 v78, v%d, v%d'%(72+i,209+2*i) for i in range(1,4)]+['v_rcp_f32 v78, v78','s_nop 0']
    wts+=['v_pk_mul_f32 v[72:73], v[72:73], v[78:79] op_sel_hi:[1,0]','v_pk_mul_f32 v[74:75], v[74:75], v[78:79] op_sel_hi:[1,0]']
    hk={3:wts}
    for w in range(4): hk[4+w]=wstep(48,192,w)
    spoll(opl,hk)
    stamp(9)
    A('v_cvt_pk_bf16_f32 v48, v48, v49\nv_cvt_pk_bf16_f32 v49, v50, v51')
    A('ds_write_b64 v20, v[48:49] offset:%d'%L_XO)
    A('s_waitcnt lgkmcnt(0)'); guarded('s_barrier')
    if cfg.tdiag: tstamp(2); A('s_waitcnt lgkmcnt(0)')
    for s_ in range(4):
        A('ds_read_b128 v[%d:%d], v21 offset:%d'%(32+4*s_,35+4*s_,L_XO+64*s_))
    for s_ in range(4):
        A('s_waitcnt lgkmcnt(%d)'%(3-s_))
        for t in range(2):
            acc='v[%d:%d]'%(48+4*t,51+4*t); r=80+16*t+4*s_
            A('v_mfma_f32_16x16x32_bf16 %s, v[%d:%d], v[%d:%d], %s'%(acc,r,r+3,32+4*s_,35+4*s_,'0' if s_==0 else acc))
    A('s_mov_b32 exec_lo, 0x00ff00ff\ns_mov_b32 exec_hi, 0x00ff00ff')
    A('s_nop 4')
    A('global_store_dwordx4 v22, v[48:51], %s offset:-2048 %s'%(WS,cfg.sf))
    A('global_store_dwordx4 v22, v[52:55], %s offset:2048 %s'%(WS,cfg.sf))
    tstamp(3)
    A('s_mov_b64 exec, -1')
    A('s_cmp_lg_u32 s53, 0\ns_cbranch_scc1 L_fin')
    apoll(['global_load_dwordx4 v[%d:%d], v23, %s offset:%d sc1'%(216+4*t,219+4*t,WS,1024*t) for t in range(4)],cfg.pR)
    stamp(10)
    A('v_pk_add_f32 v[32:33], v[216:217], v[220:221]\nv_pk_add_f32 v[34:35], v[218:219], v[222:223]')
    A('v_pk_add_f32 v[40:41], v[224:225], v[228:229]\nv_pk_add_f32 v[42:43], v[226:227], v[230:231]')
    A('v_pk_add_f32 v[32:33], v[32:33], v[40:41]\nv_pk_add_f32 v[34:35], v[34:35], v[42:43]')
    A('s_nop 1\nv_permlane32_swap_b32 v32, v34\nv_permlane32_swap_b32 v33, v35')
    A('v_add_f32 v32, v32, v34\nv_add_f32 v33, v33, v35')
    A('s_nop 1\nv_permlane16_swap_b32 v32, v33\nv_add_f32 v32, v32, v33')
    dppadd(32,'row_ror:8')
    rbf(32)
    A('v_add_f32 v32, v32, v16\nv_mov_b32 v33, v32\ns_nop 1')
    A('v_permlane16_swap_b32 v32, v33\nv_cvt_pk_bf16_f32 v32, v32, v33\nv_min_u32 v32, -2, v32\nv_mov_b32 v33, v32\ns_nop 1')
    A('v_permlane32_swap_b32 v32, v33')
    A('global_store_dwordx2 v24, v[32:33], %s %s'%(WS,cfg.sf))
    tstamp(4)
    A('s_branch L_fin')
    A('L_rdone:')
    A('s_cmp_eq_u32 s70, 2\ns_cbranch_scc1 L_ffn2')
    A('s_cmp_eq_u32 s70, 0\ns_cbranch_scc1 L_fin')
    gate(cfg.G1)
    if cfg.lrot:
        assert cfg.E1%2==0
        i0=cfg.E1//2; n=8-i0
        if cfg.helper: A('s_and_b32 s6, s14, 1\ns_cmp_eq_u32 s70, 4\ns_cselect_b32 s6, 2, s6\ns_mul_i32 s6, s6, %d\ns_add_u32 s6, s6, %d'%(n//3,i0))
        else: A('s_and_b32 s6, s14, 1\ns_mul_i32 s6, s6, %d\ns_add_u32 s6, s6, %d'%(n//2,i0))
        for it in range(n):
            if cfg.helper and it==n-2*(n//3): A('s_cmp_eq_u32 s70, 4\ns_cbranch_scc1 L_fin')
            A('s_mul_i32 s7, s6, %d\nv_add_u32 v7, s7, v6\ns_lshl_b32 s7, s6, 10\ns_add_u32 s7, s7, s71\ns_add_u32 m0, s7, %d\ns_add_u32 s6, s6, 1'%(16*3584,L_WA))
            A('global_load_lds_dwordx4 v7, %s %s'%(WG,cfg.ff))
            A('s_add_u32 m0, s7, %d\ns_cmp_eq_u32 s6, 8\ns_cselect_b32 s6, %d, s6'%(L_WA+32768,i0))
            A('global_load_lds_dwordx4 v7, %s %s'%(WU,cfg.ff))
    else:
        for k in range(cfg.E1,16): A(dma1(k))
    A('s_mov_b32 exec_lo, 0xff00ff00\ns_mov_b32 exec_hi, 0xff00ff00')
    for r in range(216,232): A('v_mov_b32 v%d, 0x3f803f80'%r)
    A('s_mov_b64 exec, -1')
    A('s_waitcnt vmcnt(0)')
    for t in range(4):
        for s_ in range(4):
            r=96+16*t+4*s_
            A('ds_read_b64_tr_b16 v[%d:%d], v8 offset:%d'%(r,r+1,2048*s_+16*t))
            A('ds_read_b64_tr_b16 v[%d:%d], v8 offset:%d'%(r+2,r+3,2048*s_+16*t+256))
        A('s_waitcnt lgkmcnt(0)')
    tstamp(2)
    hk={}
    for s_ in range(4):
        B='v[%d:%d]'%(216+4*s_,219+4*s_); hk[s_]=[]
        for t in (4,0,1,2,3):
            acc='v[%d:%d]'%(32+4*t,35+4*t)
            Aop=B if t==4 else 'v[%d:%d]'%(96+16*t+4*s_,99+16*t+4*s_)
            hk[s_].append('v_mfma_f32_16x16x32_bf16 %s, %s, %s, %s'%(acc,Aop,B,'0' if s_==0 else acc))
    ns_=cfg.f1s
    spoll(['global_load_dwordx4 v[%d:%d], v4, %s offset:%d sc1'%(216+4*t,219+4*t,WS,512*t) for t in range(4)],{i:(hk[i] if i<ns_ else []) for i in range(4)},
          pre='s_mov_b32 exec_lo, 0x00ff00ff\ns_mov_b32 exec_hi, 0x00ff00ff',post='s_mov_b64 exec, -1')
    stamp(11)
    for i in range(ns_,4): A('\n'.join(hk[i]))
    A('s_nop 3')
    for t in (4,0,1,2,3):
        A('ds_write_b128 v10, v[%d:%d] offset:%d'%(32+4*t,35+4*t,L_XN+1024*t))
    tstamp(5)
    A('s_waitcnt lgkmcnt(0)\ns_barrier')
    if cfg.tdiag: tstamp(6); A('s_waitcnt lgkmcnt(0)')
    for p in range(4): A('ds_read2_b32 v[%d:%d], v%d offset0:0 offset1:32'%(52+2*p,53+2*p,164+p))
    for p in range(4):
        A('ds_read2_b32 v[%d:%d], v%d offset0:0 offset1:32'%(60+2*p,61+2*p,160+p))
        A('ds_read2_b32 v[%d:%d], v%d offset0:128 offset1:160'%(68+2*p,69+2*p,160+p))
    A('s_waitcnt lgkmcnt(8)')
    A('v_pk_add_f32 v[52:53], v[52:53], v[54:55]\nv_pk_add_f32 v[56:57], v[56:57], v[58:59]\nv_pk_add_f32 v[52:53], v[52:53], v[56:57]')
    A('v_mul_f32 v53, 0xbb000000, v53\nv_mul_f32 v52, 0x3b000000, v52')
    A('v_fma_f32 v52, -v53, v53, v52\nv_cvt_pk_bf16_f32 v53, 0, v53\nv_max_f32 v52, 0, v52\nv_cvt_pk_bf16_f32 v52, 0, v52\nv_add_f32 v52, 0x3727c5ac, v52')
    A('v_cvt_pk_bf16_f32 v52, 0, v52\nv_sqrt_f32 v52, v52')
    A('s_waitcnt lgkmcnt(0)')
    A('v_pk_add_f32 v[60:61], v[60:61], v[62:63]\nv_cvt_pk_bf16_f32 v52, 0, v52\nv_pk_add_f32 v[64:65], v[64:65], v[66:67]\nv_rcp_f32 v52, v52')
    A('v_pk_add_f32 v[68:69], v[68:69], v[70:71]\nv_pk_add_f32 v[72:73], v[72:73], v[74:75]')
    A('v_pk_add_f32 v[60:61], v[60:61], v[64:65]\nv_pk_add_f32 v[68:69], v[68:69], v[72:73]')
    A('v_fmac_f32 v60, v53, v61\nv_fmac_f32 v68, v53, v69\nv_mul_f32 v60, v60, v52\nv_mul_f32 v68, v68, v52')
    A('v_cvt_pk_bf16_f32 v32, 0, v60\nv_cvt_pk_bf16_f32 v36, 0, v68')
    A('v_mul_f32 v33, v32, v32\nv_mul_f32 v33, 0x3d372713, v33\nv_fma_f32 v33, v33, v32, v32')
    A('v_mul_f32 v33, 0xc0135761, v33\nv_exp_f32 v33, v33\ns_nop 0\nv_add_f32 v33, 1.0, v33\nv_rcp_f32 v33, v33\ns_nop 0\nv_mul_f32 v33, v33, v32')
    rbf(33)
    A('v_mul_f32 v33, v33, v36\nv_mov_b32 v34, v33\ns_nop 1\nv_permlane32_swap_b32 v33, v34')
    A('v_cvt_pk_bf16_f32 v33, v33, v34\nv_min_u32 v36, -2, v33')
    A('v_mov_b32 v32, v36\nv_mov_b32 v33, v36\ns_nop 0')
    A('v_mov_b32_dpp v32, v36 row_ror:8 row_mask:0xf bank_mask:0xc\nv_mov_b32_dpp v33, v36 row_ror:8 row_mask:0xf bank_mask:0x3')
    A('v_mov_b32 v34, v32\nv_mov_b32 v35, v33\ns_nop 0')
    A('v_permlane16_swap_b32 v32, v34\nv_permlane16_swap_b32 v33, v35')
    if cfg.nA<8: A('s_and_b32 exec_lo, s4, 0x%x\ns_mov_b32 exec_hi, 0'%((1<<(8*cfg.nA))-1))
    guarded('global_store_dwordx4 v27, v[32:35], %s %s'%(WS,cfg.sf))
    stamp(12)
    A('L_fin:')
    A('s_waitcnt vmcnt(0)')
    if cfg.diag:
        dump_stamps(14,8)
    A('s_endpgm')
    A('L_ffn2:')
    gate(cfg.G2)
    if cfg.lrot:
        n=14-cfg.E2
        A('s_and_b32 s6, s15, 3\ns_mul_i32 s6, s6, %d\ns_lshr_b32 s6, s6, 2\ns_add_u32 s6, s6, %d'%(n,cfg.E2))
        for _ in range(n):
            A('s_lshl_b32 s7, s6, 15\nv_add_u32 v7, s7, v6\ns_lshl_b32 s7, s6, 10\ns_add_u32 s7, s7, s71\ns_add_u32 m0, s7, %d\ns_add_u32 s6, s6, 1'%L_WA)
            A('global_load_lds_dwordx4 v7, %s %s'%(WD,cfg.ff))
            A('s_cmp_eq_u32 s6, 14\ns_cselect_b32 s6, %d, s6'%cfg.E2)
    else:
        for k in range(cfg.E2,14): A(dma2(k))
    A('s_waitcnt vmcnt(0)')
    for t in range(7):
        for tt in range(2):
            r=96+8*t+4*tt
            A('ds_read_b64_tr_b16 v[%d:%d], v8 offset:%d'%(r,r+1,2048*t+16*tt))
            A('ds_read_b64_tr_b16 v[%d:%d], v8 offset:%d'%(r+2,r+3,2048*t+16*tt+128))
        if t%2==0: A('s_waitcnt lgkmcnt(0)')
    tstamp(2)
    l=newlab('hp'); d=newlab('hd')
    A('s_mov_b32 s61, %d\n%s:\nglobal_load_dword v60, v29, %s sc1\ns_waitcnt vmcnt(0)\nv_cmp_eq_u32 vcc, -1, v60\ns_cbranch_vccz %s'%(cfg.spin,l,WS,d))
    A('s_sub_u32 s61, s61, 1\ns_cmp_lg_u32 s61, 0\ns_cbranch_scc1 %s\n%s:'%(l,d))
    A('v_and_b32 v61, s60, v60\nv_lshlrev_b32 v60, 16, v60')
    hk={}
    for t in range(7):
        hk[t]=[]
        for tt in range(2):
            acc='v[%d:%d]'%(64+4*tt,67+4*tt); r=96+8*t+4*tt
            hk[t].append('v_mfma_f32_16x16x32_bf16 %s, v[%d:%d], v[%d:%d], %s'%(acc,r,r+3,216+4*t,219+4*t,'0' if t==0 else acc))
    spoll(abl,hk)
    stamp(10)
    A('s_nop 3')
    A('ds_write_b128 v10, v[64:67] offset:%d'%L_DP)
    A('ds_write_b128 v10, v[68:71] offset:%d'%(L_DP+1024))
    A('s_waitcnt lgkmcnt(0)'); guarded('s_barrier')
    tstamp(6)
    A('s_cmp_lg_u32 s53, 0\ns_cbranch_scc1 L_fin')
    for w in range(4):
        A('ds_read_b64 v[%d:%d], v26 offset:%d'%(32+4*w,33+4*w,L_DP+2048*w))
        A('ds_read_b64 v[%d:%d], v26 offset:%d'%(34+4*w,35+4*w,L_DP+2048*w+640))
    A('s_waitcnt lgkmcnt(0)')
    for w in range(4): A('v_pk_add_f32 v[%d:%d], v[%d:%d], v[%d:%d]'%(32+4*w,33+4*w,32+4*w,33+4*w,34+4*w,35+4*w))
    A('v_pk_add_f32 v[32:33], v[32:33], v[36:37]\nv_pk_add_f32 v[40:41], v[40:41], v[44:45]\nv_pk_add_f32 v[32:33], v[32:33], v[40:41]')
    A('v_cvt_pk_bf16_f32 v32, 0, v32\nv_cvt_pk_bf16_f32 v33, 0, v33')
    A('v_pk_add_f32 v[32:33], v[32:33], v[60:61]')
    A('v_cvt_pk_bf16_f32 v32, v32, v33')
    if cfg.odiag: stamp(12)
    guarded('global_store_dword v28, v32, %s %s'%(OUT,cfg.of))
    if cfg.odiag: A('s_waitcnt vmcnt(0)')
    drychk()
    if cfg.diag:
        stamp(13)
        if cfg.leak is not None:
            a,b=cfg.leak
            A('s_waitcnt lgkmcnt(0)')
            if cfg.gleak is not None:
                A('v_mov_b32 v8, 0x3bf000\nglobal_load_dword v9, v8, %s sc1\nglobal_load_dword v10, v8, %s offset:256 sc1\ns_waitcnt vmcnt(0)'%(WS,WS))
                if b==14: A('v_not_b32 v9, v10\nv_mov_b32 v10, s%d'%(72+2*13))
                elif b==13: A('v_mov_b32 v10, s%d'%(72+2*13))
                else: A('v_not_b32 v10, v10')
                A('v_sub_u32 v9, v10, v9\ns_nop 1\nv_readfirstlane_b32 s54, v9')
                if b==0: A('s_mov_b32 s54, 0')
            elif a>=100:
                A('v_mov_b32 v8, %d\nds_read_b32 v9, v8 offset:%d\nds_read_b32 v10, v8 offset:%d\ns_waitcnt lgkmcnt(0)\nv_sub_u32 v9, v9, v10\ns_nop 1\nv_readfirstlane_b32 s54, v9'%(0,L_ST+4*(b-100),L_ST+4*(a-100)))
            elif b>=100:
                A('v_mov_b32 v8, %d\nds_read_b32 v9, v8 offset:%d\ns_waitcnt lgkmcnt(0)\nv_readfirstlane_b32 s54, v9\ns_sub_u32 s54, s54, s%d'%(4*(b-100),L_ST,72+2*a))
            else: A('s_sub_u32 s54, s%d, s%d'%(72+2*b,72+2*a))
            A('s_mul_i32 s54, s54, %d\ns_min_u32 s54, s54, 60000'%cfg.mult)
            A('L_leak:')
            A('s_memrealtime s[68:69]\ns_waitcnt lgkmcnt(0)\ns_sub_u32 s55, s68, s%d\ns_cmp_lt_u32 s55, s54\ns_cbranch_scc1 L_leak'%(72+2*13))
        else:
            A('s_waitcnt lgkmcnt(0)\ns_mov_b32 s100, s92\ns_mov_b32 s92, 0')
            dump_stamps(15,8)
    A('L_end:')
    A('s_endpgm')
    A('L_last:')
    A('.section .rodata,"a"\n.p2align 6\n.amdhsa_kernel %s'%K)
    A('  .amdhsa_next_free_vgpr 256\n  .amdhsa_next_free_sgpr 102\n  .amdhsa_accum_offset 256\n  .amdhsa_group_segment_fixed_size 0\n  .amdhsa_kernarg_size 96')
    A('  .amdhsa_user_sgpr_count 2\n  .amdhsa_user_sgpr_kernarg_segment_ptr 1\n  .amdhsa_system_sgpr_workgroup_id_x 1')
    A('  .amdhsa_float_denorm_mode_32 3\n  .amdhsa_float_denorm_mode_16_64 3')
    A('.end_amdhsa_kernel')
    return '\n'.join(L)+'\n'

if __name__=='__main__':
    cfg=Cfg()
    out=sys.argv[1]
    for a in sys.argv[2:]:
        k,v=a.split('=',1); setattr(cfg,k,eval(v))
    s=gen(cfg)
    hdr=''.join(l for l in open('cdna_kernels/%s.s.ref'%NAME).readlines()[:13])
    open(out,'w').write(hdr+s)
```

```python
import sys
NAME='sequential_preLN__gqa_block_cached__geglu_ffn__decode'
K=NAME+'_kernel'

class Cfg:
    diag=False
    leak=None
    nocomp=False
    noq=False
    T2=12
    cpf=True
    b3=8
    cf='sc1'; nclr=4; wide=None; wo0=True; wo1=False; e1now=True; fb=(10,3,24,2); early=None; qfull=False; gmask=True; bA=(1,4,3); bB=(1,2); bF=2
    f1s=1
    nb=1; gd=(40,2,3)
    G1=0; G2=0
    disp=4; LA=1; boost=(1,5,3); lf='sc1'; sf='sc1'
    skipG=False; skipF=False
    par=None
    NP=3
    HS=20736; AS=28672; wrot=False; pre=0; head=0
    upfront=False
    vdiag=None
    odiag=False
    touch=True
    sdiag=False
    mult=1
    Q1=0; Q2=0
    E1=4; E2=0; EW=8; lrot=True; helper=False
    T0=6; n0=40
    qflag=True
    chunk=0
    bare=0
    notail=False
    knat=False
    cdbg=False
    ctouch=None
    rot=4
    cs=9
    nowq=False
    noqst=False
    nH=8; nA=8
    pW=('c',1,0); pR=('m',8,1); pF=('c',1,0); pG=('c',1,0)
    tdiag=False
    tsleep=0
    crot=0
    noclr=False
    wolate=False
    warm=False
    of=''
    gleak=None
    NS=30
    sflag=False
    svcfirst=0
    spin=1<<17
    T=5
    kf='nt'; vf='nt'; wf='nt'; ff=''
    pq=4
    pw0=8
    pw1=22
    noW=False

QP=0x0
FLG=0x80000
CLR=0x200000
WP=0x200000
OP=0x280000
OPS=640
HB=0x340000
AB=0x360000
CTR=0x3A0000
RNK=0x3A8000
PRB=0x3C0000
STAMP=0x10000000
L_MLW=64
L_QL=256
L_XN=1280
XNS=1040
L_XO=9600
XOS=272
L_DP=11776
L_OW=19968
L_ST=28160
L_PR=28416
L_CNT=L_PR+1024
L_WA=30720
LDS_BYTES=L_WA+65536

LOG2E=0x3fb8aa3b
SCALE=0x3db504f3

def gen(cfg):
    L=[]
    def A(s):
        L.extend(s.split('\n'))
    lab=[0]
    def newlab(p):
        lab[0]+=1
        return 'L_%s_%d'%(p,lab[0])
    X,KP,VP,WQ,WO,BX,WG,WU,WD,OUT,DBG,WS=['s[%d:%d]'%(16+2*i,17+2*i) for i in range(12)]
    def stamp(i):
        if cfg.diag: A('s_memrealtime s[%d:%d]'%(72+2*i,73+2*i))
    def tstamp(i):
        if cfg.tdiag: stamp(i)
    def pack_stamps(n,vt):
        A('s_waitcnt lgkmcnt(0)')
        A('v_mov_b32 v%d, 0'%vt)
        for i in range(n): A('v_writelane_b32 v%d, s%d, %d'%(vt,72+2*i,i))
    def dump_stamps(n,vt):
        if not cfg.diag: return
        A('s_mov_b64 exec, -1')
        pack_stamps(n,vt)
        A('v_lshlrev_b32 v%d, 2, v0'%(vt+1))
        A('ds_read_b32 v%d, v%d offset:%d'%(vt+2,vt+1,L_ST))
        A('s_lshl_b32 s66, s2, 9\ns_add_u32 s66, s66, %d'%(STAMP))
        A('v_add_u32 v%d, s66, v%d'%(vt+1,vt+1))
        A('s_mov_b64 exec, 0xffff')
        A('s_waitcnt lgkmcnt(0)')
        A('global_store_dword v%d, v%d, %s'%(vt+1,vt+2,WS))
        A('s_lshl_b32 s66, s53, 6\nv_add_u32 v%d, s66, v%d'%(vt+1,vt+1))
        A('global_store_dword v%d, v%d, %s offset:64'%(vt+1,vt,WS))

    A('; @launch grid=(256,1,1) block=(512,1,1) lds=%d'%LDS_BYTES)
    A(""";
;            that fill before any use), data are written through with sc1 and polled with sc1 loads; all polls are bounded.
;""")
    A('.amdgcn_target "amdgcn-amd-amdhsa--gfx950"\n.text\n.globl %s\n.p2align 8\n.type %s,@function\n%s:'%(K,K,K))
    A('s_cmp_ge_u32 s2, 256\ns_cbranch_scc1 L_end')
    stamp(0)
    A('v_lshrrev_b32 v1, 6, v0')
    A('v_lshlrev_b32 v3, 2, v0')
    A('v_readfirstlane_b32 s52, v1')
    A('s_cmp_lt_u32 s52, 4\ns_cbranch_scc1 L_noz')
    A('v_mov_b32 v30, 0')
    A('ds_write_b32 v3, v30 offset:%d\nds_write_b32 v3, v30 offset:%d'%(L_PR-1024,L_PR))
    A('s_waitcnt lgkmcnt(0)')
    A('L_noz:')
    A('s_load_dwordx16 s[16:31], s[0:1], 0')
    A('s_load_dwordx8 s[32:39], s[0:1], 64')
    A('s_barrier')
    if cfg.diag:
        for i in range(1,14): A('s_mov_b32 s%d, 0'%(72+2*i))
    A('v_and_b32 v0, 63, v0')
    A('s_and_b32 s48, s2, 7\ns_lshr_b32 s49, s2, 3\ns_lshl_b32 s50, s49, 1\ns_bfe_u32 s54, s2, 0x10001\ns_or_b32 s50, s50, s54')
    A('s_and_b32 s51, s2, 1\ns_bfe_u32 s54, s2, 0x10002\ns_lshl_b32 s54, s54, 1\ns_or_b32 s51, s51, s54')
    A('s_mov_b32 s59, 0x%x\ns_mov_b32 s60, 0xffff0000'%(LOG2E))
    A('v_lshlrev_b32 v1, 4, v0')
    A('s_cmp_ge_u32 s52, 4\ns_cbranch_scc1 L_service')

    import math
    TH=math.ceil(cfg.T)
    NS=cfg.NS
    RB=64
    A('s_lshl_b32 s54, s50, 21')
    A('s_lshl_b32 s62, s51, 2\ns_add_u32 s62, s62, s52')
    for i in range(4): A('s_add_u32 s%d, s62, %d\ns_and_b32 s%d, s%d, 15\ns_lshl_b32 s%d, s%d, 12'%(8+i,cfg.rot*i,8+i,8+i,8+i,8+i))
    A('v_lshrrev_b32 v2, 4, v0\nv_lshlrev_b32 v2, 6, v2\nv_and_b32 v4, 3, v0\nv_lshl_add_u32 v2, v4, 4, v2')
    A('v_bfe_u32 v5, v0, 2, 2\nv_lshl_add_u32 v2, v5, 8, v2')
    if cfg.knat: A('v_mov_b32 v2, v1')
    A('s_mov_b32 s42, 0x200000\ns_mov_b32 s43, 0x20000\ns_mov_b32 s46, 0x200000\ns_mov_b32 s47, 0x20000')
    A('s_waitcnt lgkmcnt(0)')
    A('s_add_u32 s40, s18, s54\ns_addc_u32 s41, s19, 0\ns_and_b32 s41, s41, 0xffff')
    A('s_add_u32 s44, s20, s54\ns_addc_u32 s45, s21, 0\ns_and_b32 s45, s45, 0xffff')
    st={'n':0}
    def adv():
        if cfg.rot: A('s_add_u32 s68, s62, %d\ns_and_b32 s68, s68, 15\ns_andn2_b32 s62, s62, 15\ns_add_u32 s62, s62, 16\ns_or_b32 s62, s62, s68'%cfg.rot)
        else: A('s_add_u32 s62, s62, 16')
    def load(slot,j,throttle=True,th=None):
        if j==0: A('s_lshl_b32 s65, s62, 12')
        if throttle:
            t_=(th or cfg.T); lo=int(t_); fr=t_-lo
            w=lo+(1 if (int((j+1)*fr+1e-9)>int(j*fr+1e-9)) else 0)
            A('s_waitcnt vmcnt(%d)'%(w-1))
        r=RB+slot*32+j*4
        t=j//4
        A('buffer_load_dwordx4 v[%d:%d], %s, %s, s65 offen offset:%d %s'%(r,r+3,'v2' if t==0 else 'v1','s[40:43]' if t==0 else 's[44:47]',(j%4)*1024,cfg.kf if t==0 else cfg.vf))
    def prog(val):
        A('v_mov_b32 v30, %s\nds_write_b32 v3, v30 offset:%d'%(val,L_PR))
    NK=NS//2
    assert NS%2==0 and NK>=10 and NK<=16
    slot_of={u:u-1 for u in range(7)}
    for u in range(7,NS): slot_of[u]=(u-1)%3
    slot_of[NS]=3
    FB=RB+5*32+12
    tr={'issued':0,'w':TH}
    def win(G):
        for a_,b_,w_ in (cfg.wide or []):
            if a_<=G<b_: return w_
        return TH
    def sload():
        n=tr['issued']; G=n//8; j=n%8
        tr['issued']=n+1
        if G==NS:
            tr['w']=win(G); load(slot_of[G],j,th=win(G)); return
        t=G//NK; k=2*(G%NK)+j//4
        if cfg.vdiag is not None and G==cfg.vdiag and j==0: stamp(6)
        if cfg.vdiag is not None and G==cfg.vdiag+1 and j==0: stamp(7)
        if j%4==0: A('s_add_u32 s65, s%d, %d'%(8+k%4,k*65536))
        w=cfg.T0 if (cfg.T0 and n<cfg.n0) else win(G)
        tr['w']=w
        if cfg.wo0:
            if 1<=G<9 and j==0: A('s_cmp_gt_u32 s13, %d\ns_cselect_b64 vcc, -1, 0'%G)
            if 1<=G<max(cfg.bA[1],cfg.bB[1])+cfg.bF:
                assert G<9
                l=newlab('bo'); A('s_waitcnt vmcnt(%d)\ns_cbranch_vccnz %s\ns_waitcnt vmcnt(%d)\n%s:'%(w-1+cfg.bA[2],l,w-1,l))
            elif cfg.fb and G>cfg.fb[0]:
                if j==0: A('s_waitcnt lgkmcnt(0)\nv_cmp_eq_u32 vcc, 1, v%d\nv_readfirstlane_b32 s14, v%d\nds_read_b32 v%d, v%d offset:%d'%(FB,FB,FB,FB+1,L_CNT+28))
                l=newlab('bo'); A('s_waitcnt vmcnt(%d)\ns_cbranch_vccnz %s\ns_waitcnt vmcnt(%d)'%(w-1+cfg.fb[3],l,w-1))
                if cfg.early and j%cfg.early[1]==0: A('s_cmp_eq_u32 s14, 0\ns_cbranch_scc1 %s\ns_waitcnt vmcnt(%d)'%(l,w-2))
                A('%s:'%l)
                tr['w']=w+cfg.fb[3]
            elif n>=w: A('s_waitcnt vmcnt(%d)'%(w-1))
        elif cfg.b3 and G==cfg.boost[1] and j==0:
            A('s_bfe_u32 s55, s49, 0x30001\ns_cmp_eq_u32 s55, 3\ns_cselect_b64 vcc, vcc, 0')
        if cfg.wo0: pass
        elif cfg.boost and cfg.boost[0]<=G<max(cfg.boost[1],cfg.b3):
            assert G<9 and (G<5 or w+cfg.boost[2]<=8)
            l=newlab('bo'); A('s_waitcnt vmcnt(%d)\ns_cbranch_vccnz %s\ns_waitcnt vmcnt(%d)\n%s:'%(w-1+cfg.boost[2],l,w-1,l))
        elif n>=w: A('s_waitcnt vmcnt(%d)'%(w-1))
        r=RB+slot_of[G]*32+j*4
        A('buffer_load_dwordx4 v[%d:%d], %s, %s, s65 offen offset:%d %s'%(r,r+3,'v2' if t==0 else 'v1','s[40:43]' if t==0 else 's[44:47]',(j%4)*1024,cfg.kf if t==0 else cfg.vf))
        if j==7 and n>=15: prog(G+1)
    def pro_issue(n0,n1):
        assert tr['issued']==n0
        for n in range(n0,n1): sload()
    if cfg.svcfirst: A('s_barrier')
    if cfg.sdiag: stamp(6)
    pro_issue(0,TH)
    if cfg.sdiag: stamp(7)
    if cfg.wo0:
        A('s_mov_b32 s13, 1\ns_bfe_u32 s55, s49, 0x30001\ns_cmp_eq_u32 s55, 3\ns_cselect_b32 s13, %d, s13\ns_cmp_ge_u32 s49, 16\ns_cselect_b32 s14, %d, 0\ns_add_u32 s13, s13, s14'%(cfg.bA[1],cfg.bF))
        A('s_and_b32 s55, s55, 3\ns_cmp_eq_u32 s55, 1\ns_cselect_b32 s14, %d, 1\ns_xor_b32 s55, s2, s49\ns_and_b32 s55, s55, 1\ns_cselect_b32 s13, s14, s13'%cfg.bB[1])
    elif cfg.boost: A('s_xor_b32 s55, s2, s49\ns_and_b32 s55, s55, 1\ns_cselect_b64 vcc, 0, -1')
    A('s_mov_b32 s56, 0x05040100\ns_mov_b32 s57, 0x07060302\ns_mov_b32 s58, 0x%x'%SCALE)
    A('s_lshl_b32 s54, s50, %d\ns_add_u32 s54, s54, %d\ns_add_u32 s66, s38, s54\ns_addc_u32 s67, s39, 0'%(cfg.cs,CTR))
    if cfg.cdbg: A('s_lshl_b32 s54, s50, 9\ns_add_u32 s54, s54, 4096\ns_add_u32 s66, s36, s54\ns_addc_u32 s67, s37, 0')
    A('s_lshl_b32 s55, s52, 11')
    A('v_lshlrev_b32 v4, 9, v4\nv_and_b32 v0, 0x30, v0\nv_add3_u32 v0, v4, v0, s55')
    A('v_mov_b32 v14, 0xff800000')
    if cfg.sdiag:
        stamp(9); A('s_waitcnt vmcnt(%d)'%(TH-1)); stamp(10)
    pro_issue(TH,56)
    stamp(1)
    if cfg.qflag:
        A('v_mov_b32 v31, 0\nL_qw:\nds_read_b32 v15, v31 offset:%d\ns_waitcnt lgkmcnt(0)\nv_readfirstlane_b32 s54, v15\ns_cmp_eq_u32 s54, 0\ns_cbranch_scc1 L_qw'%(L_CNT+16))
    else: A('s_barrier')
    A('ds_read_b128 v[4:7], v1 offset:%d'%L_QL)
    stamp(2)
    A('s_waitcnt lgkmcnt(0)')
    def kpart(slot,fill):
        B=RB+slot*32
        f=list(fill)
        def nxt():
            if f: f.pop(0)()
        D=[20,B,B+4,B+8]
        if cfg.nocomp:
            while f: nxt()
            return
        for i in range(4):
            A('v_mfma_f32_16x16x32_bf16 v[%d:%d], v[%d:%d], v[4:7], 0'%(D[i],D[i]+3,B+4*i,B+4*i+3))
        A('s_nop 7')
        for h in range(2):
            for step in range(3):
                for e in range(2):
                    be=2*e+h
                    S=18+e
                    A('v_add_f32_dpp v%d, v%d, v%d row_ror:%d row_mask:0xf bank_mask:0x%x'%(S,D[be]+((be+step+1)&3),(D[be]+be) if step==0 else S,12-4*step,1<<be))
                A('s_nop 0')
        nxt()
        A('s_nop 0')
        A('v_mov_b32_dpp v18, v19 quad_perm:[0,1,2,3] row_mask:0xf bank_mask:0xc')
        A('v_cvt_pk_bf16_f32 v18, 0, v18\nv_mul_f32 v18, s58, v18\nv_cvt_pk_bf16_f32 v18, 0, v18')
        A('v_max_f32 v15, v14, v18')
        A('s_nop 1\nv_max_f32_dpp v15, v15, v15 row_ror:4 row_mask:0xf bank_mask:0xf')
        A('s_nop 1\nv_max_f32_dpp v15, v15, v15 row_ror:8 row_mask:0xf bank_mask:0xf')
        A('v_mov_b32 v31, v15\ns_nop 1\nv_permlane16_swap_b32 v15, v31\nv_max_f32 v15, v15, v31')
        A('v_mov_b32 v31, v15\ns_nop 1\nv_permlane32_swap_b32 v15, v31\nv_max_f32 v15, v15, v31')
        nxt()
        A('v_sub_f32 v16, v14, v15\nv_sub_f32 v18, v18, v15\nv_cmp_neq_f32 vcc, v14, v15\nv_mul_f32 v16, s59, v16\nv_mul_f32 v18, s59, v18')
        A('v_exp_f32 v16, v16\nv_exp_f32 v18, v18\nv_mov_b32 v14, v15\nv_mul_f32 v17, s59, v15')
        A('v_mov_b32_dpp v19, v18 row_ror:12 row_mask:0xf bank_mask:0xf')
        A('v_cvt_pk_bf16_f32 v8, v18, v19')
        l=newlab('nr')
        A('s_cbranch_vccz %s'%l)
        for r in range(32,64,2):
            A('v_pk_mul_f32 v[%d:%d], v[%d:%d], v[16:17] op_sel_hi:[1,0]'%(r,r+1,r,r+1))
        A('v_mul_f32 v24, v24, v16')
        A('%s:'%l)
        A('s_nop 0')
        A('v_mov_b32_dpp v9, v8 row_ror:8 row_mask:0xf bank_mask:0xf')
        while f: nxt()
    def vpart(slot):
        B=RB+slot*32+16
        if cfg.nocomp: return
        def perms(j):
            Tt=10+2*(j&1)
            for ii in range(2):
                A('v_perm_b32 v%d, v%d, v%d, s%d'%(Tt+ii,B+4*(2*ii+1)+(j>>1),B+4*(2*ii)+(j>>1),56+(j&1)))
        perms(0)
        for j in range(8):
            if j<7: perms(j+1)
            else: A('v_mfma_f32_16x16x16_bf16 v[24:27], v[28:29], v[8:9], v[24:27]')
            Tt=10+2*(j&1)
            A('v_mfma_f32_16x16x16_bf16 v[%d:%d], v[%d:%d], v[8:9], v[%d:%d]'%(32+4*j,35+4*j,Tt,Tt+1,32+4*j,35+4*j))
    SC=[8,9,10,11,12,13,20,21,22,23,25,26,27,28,29,RB+5*32+14][:NK]
    RV=RB+5*32; TV=RV+4
    def need(n):
        rem=tr['issued']-n
        assert rem>=0
        if rem<tr['w']: A('s_waitcnt vmcnt(%d)'%rem)
    def spread(chunks,nl):
        m=len(chunks)
        for i,c in enumerate(chunks):
            if not cfg.nocomp: A(c)
            for _ in range((nl*(i+1))//m-(nl*i)//m): sload()
    def kgroup(G):
        B=RB+slot_of[G]*32
        Dr=[32+4*i for i in range(8)] if G else [20]+[32+4*i for i in range(7)]
        ch=['\n'.join('v_mfma_f32_16x16x32_bf16 v[%d:%d], v[%d:%d], v[4:7], 0'%(Dr[i],Dr[i]+3,B+4*i,B+4*i+3) for i in range(8))+'\ns_nop 1']
        for be in range(4):
            c=[]
            for step in range(3):
                for e in range(2):
                    D=Dr[2*be+e]; S=18+e
                    c.append('v_add_f32_dpp v%d, v%d, v%d row_ror:%d row_mask:0xf bank_mask:0x%x'%(S,D+((be+step+1)&3),(D+be) if step==0 else S,12-4*step,1<<be))
                c.append('s_nop 0')
            ch.append('\n'.join(c))
        ch[-1]+='\nv_cvt_pk_bf16_f32 v15, 0, v18\nv_cvt_pk_bf16_f32 v16, 0, v19\nv_mul_f32 v15, s58, v15\nv_mul_f32 v16, s58, v16'
        ch[-1]+='\nv_cvt_pk_bf16_f32 v%d, v15, v16\nv_cvt_pk_bf16_f32 v15, 0, v15\nv_cvt_pk_bf16_f32 v16, 0, v16\nv_max3_f32 v14, v14, v15, v16'%SC[G]
        return ch
    def wred(op,r):
        return ('s_nop 1\n%s_dpp v%d, v%d, v%d row_ror:4 row_mask:0xf bank_mask:0xf\ns_nop 1\n%s_dpp v%d, v%d, v%d row_ror:8 row_mask:0xf bank_mask:0xf\n'%(op,r,r,r,op,r,r,r)+
                'v_mov_b32 v31, v%d\ns_nop 1\nv_permlane16_swap_b32 v%d, v31\n%s v%d, v%d, v31\n'%(r,r,op,r,r)+
                'v_mov_b32 v31, v%d\ns_nop 1\nv_permlane32_swap_b32 v%d, v31\n%s v%d, v%d, v31'%(r,r,op,r,r))
    def softmax():
        ch=[wred('v_max_f32',14)+'\nv_mul_f32 v17, s59, v14\nv_mov_b32 v24, 0']
        for g in range(NK):
            ch.append('v_lshlrev_b32 v18, 16, v%d\nv_and_b32 v19, s60, v%d\nv_sub_f32 v18, v18, v14\nv_sub_f32 v19, v19, v14\nv_mul_f32 v18, s59, v18\nv_mul_f32 v19, s59, v19\n'%(SC[g],SC[g])+
                      'v_exp_f32 v18, v18\nv_exp_f32 v19, v19\ns_nop 0\nv_cvt_pk_bf16_f32 v%d, v18, v19\nv_add_f32 v24, v24, v18\nv_add_f32 v24, v24, v19'%SC[g])
        ch.append(wred('v_add_f32',24))
        return ch
    def vgroup(G):
        B=RB+slot_of[G]*32; P=SC[G-NK]
        def perms(j):
            Tt=TV+4*(j&1)
            return '\n'.join('v_perm_b32 v%d, v%d, v%d, s%d'%(Tt+ii,B+4*(2*ii+1)+(j>>1),B+4*(2*ii)+(j>>1),56+(j&1)) for ii in range(4))
        c0='v_mov_b32 v%d, v%d\n'%(RV,P)+'\n'.join('v_mov_b32_dpp v%d, v%d row_ror:%d row_mask:0xf bank_mask:0xf'%(RV+r,P,16-4*r) for r in range(1,4))+'\n'+perms(0)
        ch=[c0]
        for j in range(8):
            Tt=TV+4*(j&1); acc='v[%d:%d]'%(32+4*j,35+4*j)
            ch.append((perms(j+1) if j<7 else 's_nop 1')+'\nv_mfma_f32_16x16x32_bf16 %s, v[%d:%d], v[%d:%d], %s'%(acc,Tt,Tt+3,RV,RV+3,'0' if G==NK else acc))
        return ch
    def request():
        if not cfg.chunk:
            A('s_mov_b32 s63, 1\ns_atomic_add s63, s[66:67], 0x0 glc'); return
        la=newlab('ra'); lb=newlab('rb')
        A('s_cmp_eq_u32 s69, 0\ns_cbranch_scc1 %s'%la)
        A('s_mov_b32 s69, 0\ns_sub_u32 s63, s62, %d\ns_branch %s'%(NS*16,lb))
        A('%s:'%la)
        A('s_cmp_lt_u32 s62, %d\ns_cselect_b32 s69, 1, 0\ns_add_u32 s63, s69, 1\ns_atomic_add s63, s[66:67], 0x0 glc'%(512-cfg.chunk))
        A('%s:'%lb)
    for G in range(8):
        need(8*G+8)
        spread(kgroup(G),[0,4,4,3,4,3,3,3][G])
    assert tr['issued']==80
    A('v_mov_b32 v%d, 0\nv_mov_b32 v%d, 0'%(FB,FB+1))
    stamp(3)
    def get():
        lb=int(math.log2(cfg.disp)); l=newlab('gt'); d=newlab('gd')
        A('s_cmp_ge_u32 s62, 512\ns_cbranch_scc1 %s'%d)
        A('v_mov_b32 v31, 0\nv_mov_b32 v30, 1\ns_mov_b64 exec, 1\nds_add_rtn_u32 v30, v31, v30 offset:%d\ns_waitcnt lgkmcnt(0)'%(L_CNT+24))
        A('v_lshlrev_b32 v31, 2, v30')
        A('%s:\nds_read_b32 v30, v31 offset:%d\ns_waitcnt lgkmcnt(0)\nv_readfirstlane_b32 s63, v30\ns_cmp_eq_u32 s63, 0\ns_cbranch_scc1 %s'%(l,L_CNT+64,l))
        A('s_mov_b64 exec, -1')
        A('%s:'%d)
    for G in range(8,NS):
        if G==NS-2:
            stamp(4)
            if NS<32: A('s_mov_b32 s62, 0'); get(); A('s_mov_b32 s62, s63')
        need(8*G+8)
        ch=kgroup(G) if G<NK else vgroup(G)
        if G==NK: ch=softmax()+ch
        if G<NS-2: spread(ch,8)
        elif NS==32: spread(ch,0)
        elif G==NS-2: spread(ch,TH)
        else: spread(ch[:-1],8-TH); spread(ch[-1:],0)
    if NS==32: A('s_nop 0\ns_branch L_sdone')
    A('s_cmp_ge_u32 s62, 512\ns_cbranch_scc1 L_sdone')
    A('v_mov_b32 v28, 0x3f803f80\nv_mov_b32 v29, 0x3f803f80\nv_mov_b32 v25, 0\nv_mov_b32 v26, 0\nv_mov_b32 v27, 0')
    if cfg.disp: get(); A('s_mov_b32 s62, s63')
    else: A('s_waitcnt lgkmcnt(0)\ns_add_u32 s62, s63, %d'%(NS*16+1))
    A('s_mov_b32 s64, %d'%(NS+1))
    def body(c,th):
        if cfg.upfront:
            for j in range(8): load(1-c,j,th=th,throttle=(8+j>=th))
            if th>12: A('s_waitcnt vmcnt(12)')
            kpart(c,[])
            A('s_waitcnt vmcnt(8)')
            vpart(c)
            return
        for j in range(4): load(7-c,j,th=th)
        if th>8: A('s_waitcnt vmcnt(8)')
        kpart(c,[(lambda j=j: load(7-c,j,th=th)) for j in range(4,8)])
        if cfg.disp: get()
        if th>8: A('s_waitcnt vmcnt(8)')
        vpart(c)
    A('L_dyn:')
    for c in (3,4):
        ls=newlab('st'); lc=newlab('sc')
        if cfg.diag: A('s_add_u32 s64, s64, 1')
        if not cfg.disp:
            A('s_cmp_ge_u32 s62, 512\ns_cbranch_scc1 %s'%ls)
            request()
            A('%s:'%ls)
        body(c,cfg.T2 or cfg.T)
        A('s_cmp_ge_u32 s62, 512\ns_cbranch_scc1 L_sdone')
        if cfg.disp: A('s_mov_b32 s62, s63')
        else:
            A('s_waitcnt lgkmcnt(0)')
            A('s_add_u32 s62, s63, %d'%(NS*16+1))
    A('s_branch L_dyn')
    A('L_sdone:')
    A('s_mov_b32 exec_lo, 0x000f000f\ns_mov_b32 exec_hi, 0x000f000f')
    stamp(5)
    A('s_lshl_b32 s55, s52, 2\nv_and_b32 v31, 0x30, v1\nv_lshl_add_u32 v31, v31, 1, s55')
    for j in range(8):
        A('ds_write_b128 v0, v[%d:%d] offset:%d'%(32+4*j,35+4*j,L_OW+64*j))
    A('ds_write2_b32 v31, v17, v24 offset0:%d offset1:%d'%(L_MLW//4,L_MLW//4+4))
    if cfg.diag:
        A('s_mov_b64 exec, -1')
        A('s_cmp_lg_u32 s52, 0\ns_cbranch_scc1 L_nost')
        pack_stamps(11 if cfg.sdiag else 8,8)
        A('v_writelane_b32 v8, s64, 8')
        A('ds_write_b32 v3, v8 offset:%d'%L_ST)
        A('L_nost:')
    A('s_waitcnt lgkmcnt(0)')
    A('s_barrier')
    A('s_endpgm')

    A('L_service:')
    if cfg.bare:
        A('s_sub_u32 s53, s52, 4\nv_mov_b32 v11, 0\nv_mov_b32 v12, 1\nv_mov_b32 v40, -1\nv_mov_b32 v41, -1\nv_mov_b32 v42, -1\nv_mov_b32 v43, -1\ns_waitcnt lgkmcnt(0)')
        if cfg.bare&2:
            A('s_lshl_b32 s54, s2, 2\ns_add_u32 s54, s54, s53\ns_mul_i32 s54, s54, 640\ns_add_u32 s54, s54, %d\nv_add_u32 v6, s54, v1\ns_mov_b32 exec_hi, 0xff\nglobal_store_dwordx4 v6, v[40:43], %s sc1\ns_mov_b64 exec, -1'%(CLR+0x100000,WS))
        if cfg.bare&4:
            A('global_load_dwordx4 v[32:35], v1, %s'%X)
        if cfg.bare&8:
            A('v_mov_b32 v6, s2\ns_mov_b64 exec, 1\nglobal_store_byte v6, v12, %s sc1\ns_mov_b64 exec, -1'%DBG)
        A('ds_write_b32 v11, v12 offset:%d\ns_waitcnt lgkmcnt(0)\ns_barrier\ns_barrier'%(L_CNT+8))
        if cfg.bare&16:
            A('v_lshlrev_b32 v7, 2, v0\nglobal_load_dword v13, v7, %s sc1'%DBG)
        A('s_barrier\ns_endpgm')
    A('s_setprio 3')
    A('s_sub_u32 s53, s52, 4')
    A('s_lshl_b32 s66, s53, 12')
    A('s_mov_b32 s3, %d'%FLG)
    A('s_lshr_b32 s68, s49, 3\ns_and_b32 s69, s49, 7')
    A('v_lshrrev_b32 v2, 5, v0\ns_lshl_b32 s54, s53, 1\nv_add_u32 v2, s54, v2')
    A('v_and_b32 v3, 31, v0\nv_lshlrev_b32 v3, 4, v3')
    A('v_lshl_add_u32 v4, v2, 10, v3')
    A('s_xor_b32 s13, s2, s49\ns_and_b32 s13, s13, 1\ns_lshr_b32 s14, s49, 4\ns_bfe_u32 s15, s49, 0x30001')
    A('s_lshl_b32 s54, s14, 8\ns_lshl_b32 s55, s53, 6\ns_add_u32 s54, s54, s55')
    A('v_lshrrev_b32 v6, 3, v0\nv_add_u32 v6, s54, v6\nv_lshlrev_b32 v6, 13, v6')
    A('v_and_b32 v7, 7, v0\nv_lshl_add_u32 v6, v7, 4, v6')
    A('s_lshl_b32 s54, s48, 10\ns_lshl_b32 s55, s15, 7\ns_add_u32 s54, s54, s55\nv_add_u32 v6, s54, v6')
    A('s_lshl_b32 s54, s48, 1\ns_add_u32 s54, s54, s14\ns_lshl_b32 s54, s54, 11\ns_lshl_b32 s55, s15, 8\ns_add_u32 s54, s54, s55\ns_lshl_b32 s55, s53, 6\ns_add_u32 s54, s54, s55')
    A('v_lshlrev_b32 v14, 15, v7\nv_and_b32 v15, 0x30, v0\nv_add3_u32 v14, v14, v15, s54')
    if cfg.qfull:
        A('s_sub_u32 s54, s54, s55\ns_lshl_b32 s55, s53, 16\ns_add_u32 s54, s54, s55\nv_bfe_u32 v14, v0, 4, 1\nv_lshlrev_b32 v14, 15, v14\nv_and_b32 v13, 0xf0, v1\nv_add3_u32 v14, v14, v13, s54')
    A('v_mov_b32 v40, -1\nv_mov_b32 v41, -1\nv_mov_b32 v42, -1\nv_mov_b32 v43, -1')
    A('s_lshl_b32 s71, s53, 13\ns_add_u32 m0, s71, %d'%L_WA)
    A('v_lshrrev_b32 v44, 1, v0\nv_lshlrev_b32 v44, 9, v44\nv_and_b32 v45, 16, v1\nv_add3_u32 v79, v44, v45, %s'%'s3')
    A('v_mov_b32 v44, 0\nv_mov_b32 v45, 0\nv_mov_b32 v46, 0\nv_mov_b32 v47, 0\nv_mov_b32 v11, 0\nv_mov_b32 v12, 1')
    A('s_lshl_b32 s12, s2, 2\ns_add_u32 s12, s12, s53')
    A('s_waitcnt lgkmcnt(0)')
    A('s_cmp_lg_u32 s13, 0\ns_cbranch_scc1 L_clr')
    A('global_load_dwordx4 v[32:35], v4, %s'%X)
    A('global_load_dwordx4 v[36:39], v4, %s offset:512'%X)
    if cfg.nowq: A('s_mov_b64 exec, 1')
    for i in range(8):
        if i: A('s_add_u32 m0, s71, %d\nv_add_u32 v6, 0x10000, v6'%(L_WA+i*1024))
        A('global_load_lds_dwordx4 v6, %s %s'%(WQ,cfg.wf))
    A('s_mov_b32 exec_lo, -1\ns_mov_b32 exec_hi, 0' if cfg.qfull else 's_mov_b32 exec_lo, 0x00ff00ff\ns_mov_b32 exec_hi, 0x00ff00ff')
    A('global_store_dwordx4 v14, v[40:43], %s sc1'%WS)
    A('s_branch L_clrd')
    A('L_clr:')
    if cfg.cpf:
        A('s_getpc_b64 s[6:7]\nL_pc:\ns_sub_u32 s6, s6, L_pc-%s\ns_subb_u32 s7, s7, 0'%K)
        A('s_lshr_b32 s54, s49, 1\ns_lshl_b32 s54, s54, 2\ns_add_u32 s54, s54, s53\ns_lshl_b32 s54, s54, 9\nv_lshl_add_u32 v48, v0, 3, s54\nv_min_u32 v48, L_last-%s-8, v48'%K)
        A('global_load_dwordx2 v[50:51], v48, s[6:7]')
    A('s_cmp_lg_u32 s12, 7\ns_cbranch_scc1 L_nolead')
    A('global_store_dwordx4 v79, v[44:47], %s sc1\nglobal_store_dwordx4 v79, v[44:47], %s offset:256 sc1'%(WS,WS))
    A('s_waitcnt vmcnt(0)')
    A('s_mov_b64 exec, 1\nglobal_store_dword v11, v12, %s sc1\ns_mov_b64 exec, -1'%DBG)
    A('L_nolead:')
    A('s_lshr_b32 s54, s2, 1\ns_lshl_b32 s54, s54, 2\ns_add_u32 s54, s54, s53\ns_mul_i32 s54, s54, 3584\ns_add_u32 s54, s54, %d'%CLR)
    A('v_add_u32 v6, s54, v1')
    if cfg.nclr<4: A('s_cmp_lt_u32 s2, 232\ns_cbranch_scc1 L_skc')
    for i in range(3): A('global_store_dwordx4 v6, v[40:43], %s offset:%d %s'%(WS,1024*i,cfg.cf))
    A('s_mov_b32 exec_hi, 0')
    A('global_store_dwordx4 v6, v[40:43], %s offset:3072 %s'%(WS,cfg.cf))
    if cfg.nclr<4: A('L_skc:')
    def wo_dma():
        A('s_lshl_b32 s54, s48, 2\ns_add_u32 s54, s54, s68\ns_lshl_b32 s54, s54, 7\ns_lshl_b32 s55, s53, 1\ns_add_u32 s54, s54, s55\ns_lshl_b32 s54, s54, 10\ns_and_b32 s55, s15, 3\ns_lshl_b32 s55, s55, 8\ns_add_u32 s54, s54, s55')
        A('v_lshrrev_b32 v48, 4, v0\nv_lshlrev_b32 v48, 13, v48\nv_and_b32 v49, 15, v0\nv_lshl_add_u32 v48, v49, 4, v48\nv_add_u32 v48, s54, v48')
        for i in range(8):
            A('v_add_u32 v49, %d, v48\ns_add_u32 m0, s71, %d\ns_nop 0\nglobal_load_lds_dwordx4 v49, %s %s'%((32*(i&3)+(i>>2))*1024,L_WA+i*1024,WO,cfg.wf))
    if cfg.wo0 and not cfg.wo1:
        A('s_mov_b64 exec, -1')
        if not cfg.noW: wo_dma()
    A('L_clrd:')
    A('s_mov_b64 exec, -1')
    A('s_and_b32 s54, s49, 3\ns_lshl_b32 s9, s54, 16\ns_lshr_b32 s54, s49, 2\ns_lshl_b32 s54, s54, 10\ns_add_u32 s9, s9, s54\ns_lshl_b32 s54, s48, 7\ns_add_u32 s9, s9, s54\ns_add_u32 s9, s9, %d'%PRB)
    A('s_lshl_b32 s54, s53, 14\ns_add_u32 s54, s54, s9\nv_bfe_u32 v6, v0, 3, 1\nv_lshlrev_b32 v6, 13, v6\nv_and_b32 v13, 0x70, v1\nv_add3_u32 v6, v6, v13, s54')
    A('s_mov_b64 exec, 0xffff')
    A('s_cmp_ge_u32 s49, 8\ns_cbranch_scc1 L_nopl\ns_cmp_ge_u32 s53, %d\ns_cbranch_scc1 L_nopl'%cfg.NP)
    A('global_store_dwordx4 v6, v[40:43], %s sc1'%WS)
    A('L_nopl:')
    A('s_mov_b64 exec, -1')
    if cfg.svcfirst==2: A('s_barrier')
    A('v_mul_u32_u24 v5, %d, v2\nv_add_u32 v5, v5, v3'%XNS)
    A('v_lshrrev_b32 v8, 4, v0\nv_lshlrev_b32 v8, 10, v8\nv_bfe_u32 v9, v0, 2, 2\nv_lshl_add_u32 v8, v9, 7, v8\nv_and_b32 v9, 3, v0\nv_lshl_add_u32 v8, v9, 3, v8')
    A('s_lshl_b32 s54, s53, 5\nv_add_u32 v8, s54, v8')
    A('v_mul_u32_u24 v9, %d, v7\nv_add_u32 v9, v9, v15\ns_lshl_b32 s54, s14, 9\nv_add_u32 v10, s54, v9'%XNS)
    A('s_lshl_b32 s54, s53, 8\nv_mov_b32 v31, s54')

    def dppadd(r,ctl):
        A('s_nop 1\nv_add_f32_dpp v%d, v%d, v%d %s row_mask:0xf bank_mask:0xf'%(r,r,r,ctl))
    def swapadd(r,t,w):
        A('v_mov_b32 v%d, v%d\ns_nop 1\nv_permlane%d_swap_b32 v%d, v%d\nv_add_f32 v%d, v%d, v%d'%(t,r,w,r,t,r,r,t))
    def rbf(r):
        A('v_cvt_pk_bf16_f32 v%d, 0, v%d'%(r,r))
    def layernorm(mode):
        if mode=='x':
            for i in range(8):
                A('v_lshlrev_b32 v%d, 16, v%d\nv_and_b32 v%d, s60, v%d'%(48+2*i,32+i,49+2*i,32+i))
        Q=lambda i:'v[%d:%d]'%(48+2*i,49+2*i)
        P=Q if mode=='x' else (lambda i:'v[%d:%d]'%(216+2*i,217+2*i))
        A('v_pk_add_f32 v[64:65], %s, %s\nv_pk_mul_f32 v[66:67], %s, %s'%(P(0),P(1),P(0),P(0)))
        A('v_pk_add_f32 v[68:69], %s, %s\nv_pk_mul_f32 v[70:71], %s, %s'%(P(2),P(3),P(1),P(1)))
        for i in range(2,8,2):
            if i>2: A('v_pk_add_f32 v[64:65], v[64:65], %s'%P(i))
            A('v_pk_fma_f32 v[66:67], %s, %s, v[66:67]'%(P(i),P(i)))
            if i>2: A('v_pk_add_f32 v[68:69], v[68:69], %s'%P(i+1))
            A('v_pk_fma_f32 v[70:71], %s, %s, v[70:71]'%(P(i+1),P(i+1)))
        A('v_pk_add_f32 v[64:65], v[64:65], v[68:69]\nv_pk_add_f32 v[66:67], v[66:67], v[70:71]')
        A('v_add_f32 v64, v64, v65\nv_add_f32 v66, v66, v67')
        ctl=['row_ror:1','row_ror:2','row_ror:4','row_ror:8'] if mode=='x' else ['quad_perm:[1,0,3,2]','quad_perm:[2,3,0,1]','row_ror:8']
        for c in ctl:
            A('s_nop 0')
            for r in (64,66): A('v_add_f32_dpp v%d, v%d, v%d %s row_mask:0xf bank_mask:0xf'%(r,r,r,c))
        for w in ((16,) if mode=='x' else (16,32)):
            A('v_mov_b32 v65, v64\nv_mov_b32 v67, v66\ns_nop 0')
            A('v_permlane%d_swap_b32 v64, v65\nv_permlane%d_swap_b32 v66, v67'%(w,w))
            A('v_add_f32 v64, v64, v65\nv_add_f32 v66, v66, v67')
        A('v_mul_f32 v64, 0xbb000000, v64\nv_mul_f32 v66, 0x3b000000, v66')
        A('v_cvt_pk_bf16_f32 v68, 0, v64')
        chain=['v_fma_f32 v66, -v64, v64, v66','v_max_f32 v66, 0, v66','v_cvt_pk_bf16_f32 v66, 0, v66','v_add_f32 v66, 0x3727c5ac, v66',
               'v_cvt_pk_bf16_f32 v66, 0, v66','v_sqrt_f32 v66, v66','v_cvt_pk_bf16_f32 v66, 0, v66','v_rcp_f32 v66, v66']
        for i in range(8):
            A(chain[i])
            A('v_pk_add_f32 %s, %s, v[68:69] op_sel_hi:[1,0]'%(Q(i),P(i)))
        for i in range(16): A('v_cvt_pk_bf16_f32 v%d, 0, v%d'%(48+i,48+i))
        nw=2 if mode=='h' else 4
        for i in range(8):
            A('v_pk_mul_f32 %s, %s, v[66:67] op_sel_hi:[1,0]'%(Q(i),Q(i)))
        for i in range(8):
            A('v_cvt_pk_bf16_f32 v%d, v%d, v%d'%(32+i,48+2*i,49+2*i))
            if mode=='h' and i%2==1: A('ds_write_b64 v5, v[%d:%d] offset:%d'%(31+i,32+i,L_XN+256*(i//2)))
            if mode=='x' and i%4==3: A('ds_write_b128 v5, v[%d:%d] offset:%d'%(29+i,32+i,L_XN+512*(i//4)))
    def lds_sync(cnt,sleep=0):
        l=newlab('ls')
        A('s_waitcnt lgkmcnt(0)')
        A('s_mov_b64 exec, 1\nds_add_u32 v11, v12 offset:%d\ns_mov_b64 exec, -1'%(L_CNT+4*cnt))
        lds_wait(11,L_CNT+4*cnt,4,sleep)
    def lds_wait(va,off,val,sleep):
        l=newlab('lw'); d=newlab('ld')
        A('%s:'%l)
        A('ds_read_b32 v13, v%d offset:%d\ns_waitcnt lgkmcnt(0)\nv_readfirstlane_b32 s54, v13\ns_cmp_ge_u32 s54, %s'%(va,off,val))
        if sleep: A('s_cbranch_scc1 %s\ns_sleep %d\ns_branch %s\n%s:'%(d,sleep,l,d))
        else: A('s_cbranch_scc0 %s'%l)
    def progress(p): lds_wait(31,L_PR,p,6)
    def poll(loads,regs,sleep=0,guard=False):
        l=newlab('pl'); d=newlab('pd')
        if guard: sleep=cfg.tsleep
        A('s_mov_b32 s61, %d'%cfg.spin)
        A('%s:'%l)
        for x in loads: A(x)
        import re as _re
        first=True; pend=[]
        for i,x in enumerate(loads):
            m=_re.search(r'v\[(\d+):(\d+)\]',x)
            pend+=list(range(int(m.group(1)),int(m.group(2))+1))
            last=(i==len(loads)-1)
            if len(pend)<4 and not last: continue
            A('s_waitcnt vmcnt(%d)'%(len(loads)-1-i))
            while pend:
                if first:
                    if len(pend)>=3: A('v_max3_u32 v13, v%d, v%d, v%d'%tuple(pend[:3])); pend=pend[3:]
                    else: A('v_max_u32 v13, v%d, v%d'%tuple(pend[:2])); pend=pend[2:]
                    first=False
                elif len(pend)>=2: A('v_max3_u32 v13, v13, v%d, v%d'%tuple(pend[:2])); pend=pend[2:]
                elif last: A('v_max_u32 v13, v13, v%d'%pend[0]); pend=[]
                else: break
        A('v_cmp_eq_u32 vcc, -1, v13')
        A('s_cbranch_vccz %s'%d)
        if sleep: A('s_sleep %d'%sleep)
        A('s_sub_u32 s61, s61, 1\ns_cmp_lg_u32 s61, 0\ns_cbranch_scc1 %s'%l)
        A('%s:'%d)
    def apoll(loads,par):
        import re as _re
        mode,D,sleep=par
        loads=[x.replace(' sc1',' '+cfg.lf) for x in loads]
        l=newlab('al'); d=newlab('ad'); gl=newlab('ag')
        rg=[]
        for x in loads:
            m=_re.search(r'v\[(\d+):(\d+)\]',x); rg.append(list(range(int(m.group(1)),int(m.group(2))+1)))
        def chain(t,r):
            r=list(r)
            if len(r)==2: A('v_max_u32 v%d, v%d, v%d'%(t,r[0],r[1])); return
            A('v_max3_u32 v%d, v%d, v%d, v%d'%(t,r[0],r[1],r[2])); r=r[3:]
            while r:
                if len(r)==1: A('v_max_u32 v%d, v%d, v%d'%(t,t,r[0])); r=[]
                else: A('v_max3_u32 v%d, v%d, v%d, v%d'%(t,t,r[0],r[1])); r=r[2:]
        n=len(loads)
        A('s_mov_b32 s61, %d'%cfg.spin)
        if mode in 'cm':
            A('%s:'%l)
            for x in loads: A(x)
            if sleep: A('s_sleep %d'%sleep)
            A('s_waitcnt vmcnt(%d)'%min(63,n*(D-1)))
            chain(13,sum(rg,[]))
            A('v_cmp_eq_u32 vcc, -1, v13')
            A('s_cbranch_vccz %s'%d)
            if mode=='m': A('s_mov_b64 exec, vcc')
            A('s_sub_u32 s61, s61, 1\ns_cmp_lg_u32 s61, 0\ns_cbranch_scc1 %s'%l)
            A('%s:'%d)
            if mode=='m': A('s_mov_b64 exec, s[4:5]')
        else:
            mk=['s[6:7]','s[8:9]','s[10:11]','s[40:41]','s[42:43]','s[44:45]','s[46:47]','s[62:63]'][:n]
            for m_ in mk: A('s_mov_b64 %s, s[4:5]'%m_)
            A('%s:'%l)
            for x,m_ in zip(loads,mk):
                sk=newlab('as')
                A('s_mov_b64 exec, %s\ns_cbranch_execz %s'%(m_,sk)); A(x); A('%s:'%sk)
            A('s_mov_b64 exec, s[4:5]')
            if sleep: A('s_sleep %d'%sleep)
            A('s_waitcnt vmcnt(%d)'%min(63,n*(D-1)))
            for i in range(n): chain(246+i,rg[i])
            chain(13,[246+i for i in range(n)])
            A('v_cmp_eq_u32 vcc, -1, v13')
            A('s_cbranch_vccz %s'%d)
            for i in range(n): A('v_cmp_eq_u32 %s, -1, v%d'%(mk[i],246+i))
            A('s_sub_u32 s61, s61, 1\ns_cmp_lg_u32 s61, 0\ns_cbranch_scc1 %s'%l)
            A('%s:'%d)
    def spoll(loads,hooks,pre=None,post=None):
        import re as _re
        l=newlab('sl'); d=newlab('sd')
        A('s_mov_b32 s61, %d'%cfg.spin)
        A('%s:'%l)
        if pre: A(pre)
        for x in loads: A(x)
        if post: A(post)
        first=True; pend=[]
        n=len(loads)
        for i,x in enumerate(loads):
            m=_re.search(r'v\[(\d+):(\d+)\]',x)
            pend+=list(range(int(m.group(1)),int(m.group(2))+1))
            if i<n-1 and i not in hooks: continue
            A('s_waitcnt vmcnt(%d)'%(n-1-i))
            chk=[]
            while pend:
                if first:
                    chk.append('v_max3_u32 v13, v%d, v%d, v%d'%tuple(pend[:3])); pend=pend[3:]; first=False
                elif len(pend)>=2: chk.append('v_max3_u32 v13, v13, v%d, v%d'%tuple(pend[:2])); pend=pend[2:]
                elif i==n-1: chk.append('v_max_u32 v13, v13, v%d'%pend[0]); pend=[]
                else: break
            if i==n-1: chk.append('v_cmp_eq_u32 vcc, -1, v13')
            h=list(hooks.get(i,[]))
            while h or chk:
                if h: A(h.pop(0))
                if chk: A(chk.pop(0))
        A('s_cbranch_vccz %s'%d)
        A('s_sub_u32 s61, s61, 1\ns_cmp_lg_u32 s61, 0\ns_cbranch_scc1 %s'%l)
        A('%s:'%d)
    def gate(n):
        if not n: return
        l=newlab('ga'); d=newlab('gb')
        A('s_mov_b32 s61, %d\n%s:\nglobal_load_dword v13, v14, %s sc1\ns_waitcnt vmcnt(0)\nv_cmp_ne_u32 vcc, -1, v13\ns_nop 1\ns_bcnt1_i32_b64 s6, vcc\ns_cmp_ge_u32 s6, %d\ns_cbranch_scc1 %s'%(cfg.spin,l,WS,n,d))
        A('s_sleep 2\ns_sub_u32 s61, s61, 1\ns_cmp_lg_u32 s61, 0\ns_cbranch_scc1 %s\n%s:'%(l,d))
    def flagpoll(voff,execmask,par=None):
        l=newlab('fl'); d=newlab('fd')
        A('s_mov_b32 s61, %d'%cfg.spin)
        A('s_mov_b64 exec, %s'%execmask)
        A('%s:'%l)
        A('global_load_dwordx4 v[72:75], v%d, %s sc1\ns_waitcnt vmcnt(0)'%(voff,WS))
        if par: A('v_min_u32 v13, v72, v74\nv_min_u32 v72, v73, v75\nv_cndmask_b32 v13, v13, v72, %s\nv_cmp_eq_u32 vcc, 0, v13\ns_cbranch_vccz %s'%(par,d))
        else: A('v_min3_u32 v13, v72, v73, v74\nv_min_u32 v13, v13, v75\nv_cmp_eq_u32 vcc, 0, v13\ns_cbranch_vccz %s'%d)
        A('s_sleep 16')
        A('s_sub_u32 s61, s61, 1\ns_cmp_lg_u32 s61, 0\ns_cbranch_scc1 %s'%l)
        A('%s:'%d)
        A('s_mov_b64 exec, -1')
    def CLASS():
        A('s_cmp_lg_u32 s53, 0\ns_cbranch_scc1 L_nofc')
        progress(cfg.pw0)
        flagpoll(79,'-1')
        A('ds_write_b128 v1, v[72:75] offset:%d'%L_DP)
        A('v_add_u32 v7, 256, v79\ns_mov_b32 s6, 0x03030303\ns_mov_b32 s7, s6\ns_waitcnt lgkmcnt(0)')
        flagpoll(7,'s[6:7]')
        A('s_and_b32 s54, s48, 3\ns_lshl_b32 s54, s54, 7\ns_lshl_b32 s55, s49, 2\ns_add_u32 s54, s54, s55\nv_mov_b32 v7, s54')
        A('s_mov_b32 s6, 0')
        for r in range(72,76):
            A('v_and_b32 v13, 2, v%d\nv_cmp_ne_u32 vcc, 0, v13\ns_nop 1\ns_bcnt1_i32_b64 s7, vcc\ns_add_u32 s6, s6, s7'%r)
        A('s_waitcnt lgkmcnt(0)\nds_read_b32 v13, v7 offset:%d\ns_waitcnt lgkmcnt(0)\nv_readfirstlane_b32 s7, v13'%L_DP)
        if cfg.wo0:
            A('s_and_b32 s54, s48, 3\ns_lshl_b32 s54, s54, 7\nv_mov_b32 v7, s54\ns_and_b32 s54, s50, 3\ns_lshl_b32 s54, s54, 7\nv_mov_b32 v72, s54')
            A('ds_read_b32 v13, v7 offset:%d\nds_read_b32 v72, v72 offset:%d\ns_waitcnt lgkmcnt(0)\nv_readfirstlane_b32 s4, v13\nv_readfirstlane_b32 s5, v72'%(L_DP,L_DP))
            A('s_xor_b32 s4, s4, s48\ns_bfe_u32 s4, s4, 0x10002\ns_xor_b32 s5, s5, s50\ns_bfe_u32 s5, s5, 0x10002')
        if cfg.diag: A('s_mov_b32 s9, s6')
        A('s_cmp_ge_u32 s6, 32\ns_cselect_b32 s6, 1, 0')
        if cfg.par is not None: A('s_mov_b32 s6, %d'%cfg.par)
        A('s_xor_b32 s7, s7, s48\ns_bfe_u32 s7, s7, 0x10002\ns_xor_b32 s7, s7, s6\ns_lshl_b32 s7, s7, 2\ns_lshl_b32 s6, s6, 1\ns_or_b32 s6, s6, s7\ns_or_b32 s6, s6, 1')
        if cfg.wo0: A('s_lshl_b32 s4, s4, 3\ns_lshl_b32 s5, s5, 4\ns_or_b32 s6, s6, s4\ns_or_b32 s6, s6, s5')
        A('v_mov_b32 v13, s6\nds_write_b32 v11, v13 offset:%d'%(L_CNT+8))
        if cfg.diag: A('s_cmp_lg_u32 s2, 0\ns_cbranch_scc1 L_nofc\nv_mov_b32 v13, s9\nv_mov_b32 v7, 8\nglobal_store_dword v7, v13, %s'%DBG)
        A('L_nofc:')
        lds_wait(11,L_CNT+8,1,6)
        A('s_bfe_u32 s11, s54, 0x10002\ns_bfe_u32 s62, s54, 0x10003\ns_bfe_u32 s63, s54, 0x10004\ns_bfe_u32 s54, s54, 0x10001\ns_xor_b32 s10, s10, s54\ns_xor_b32 s62, s62, s54\ns_xor_b32 s63, s63, s54')
    def tr128(dst,base):
        for s_ in range(4):
            A('ds_read_b64_tr_b16 v[%d:%d], v8 offset:%d'%(dst+4*s_,dst+4*s_+1,base+4096*s_))
            A('ds_read_b64_tr_b16 v[%d:%d], v8 offset:%d'%(dst+4*s_+2,dst+4*s_+3,base+4096*s_+512))

    A('v_mov_b32 v76, 0')
    if cfg.wo0 and not cfg.wo1:
        A('s_cmp_eq_u32 s13, 0\ns_cbranch_scc1 L_isp\ns_cmp_lg_u32 s53, 3\ns_cbranch_scc1 L_noln\ns_waitcnt vmcnt(6)\ns_mov_b64 exec, 1\nglobal_load_dword v76, v11, %s sc1\ns_mov_b64 exec, -1\nL_isp:'%DBG)
    A('s_cmp_lg_u32 s13, 0\ns_cbranch_scc1 L_noln')
    A('s_waitcnt vmcnt(9)')
    stamp(1)
    A('s_cmp_lg_u32 s53, 3\ns_cbranch_scc1 L_nog0\ns_mov_b64 exec, 1\nglobal_load_dword v76, v11, %s sc1\ns_mov_b64 exec, -1\nL_nog0:'%DBG)
    layernorm('x')
    A('L_noln:')
    A('s_waitcnt vmcnt(0)')
    lds_sync(0)
    stamp(2)
    A('s_lshl_b32 s54, s48, 2\ns_add_u32 s54, s54, s68\ns_lshl_b32 s54, s54, 9\ns_lshl_b32 s55, s69, 2\ns_add_u32 s54, s54, s55\ns_add_u32 s54, s54, s3\nv_mov_b32 v6, s54')
    A('s_getreg_b32 s10, hwreg(HW_REG_XCC_ID)\ns_bfe_u32 s10, s10, 0x10002')
    A('s_cmp_lg_u32 s53, 3\ns_cbranch_scc1 L_noflag')
    A('s_mov_b64 exec, 1\nv_cmp_eq_u32 vcc, 0, v76\ns_cbranch_vccz L_god')
    A('s_mov_b32 s61, %d\nL_go:\nglobal_load_dword v13, v11, %s sc1\ns_waitcnt vmcnt(0)\nv_cmp_eq_u32 vcc, 0, v13\ns_cbranch_vccz L_god'%(cfg.spin,DBG))
    A('s_sleep 8\ns_sub_u32 s61, s61, 1\ns_cmp_lg_u32 s61, 0\ns_cbranch_scc1 L_go\nL_god:')
    A('s_lshl_b32 s54, s10, 2\ns_or_b32 s54, s54, 1\nv_mov_b32 v7, s54\nglobal_store_dword v6, v7, %s sc1'%WS)
    A('s_mov_b64 exec, -1')
    A('L_noflag:')
    if cfg.wo1:
        A('s_cmp_eq_u32 s13, 0\ns_cbranch_scc1 L_now1'); wo_dma(); A('L_now1:')
    A('s_cmp_lg_u32 s13, 0\ns_cbranch_scc1 L_noq')
    for h in range(2):
        tr128(80+16*h,L_WA+16384*h)
        for s_ in range(4):
            A('ds_read_b128 v[%d:%d], v10 offset:%d'%(112+16*h+4*s_,115+16*h+4*s_,L_XN+256*h+64*s_))
        A('s_waitcnt lgkmcnt(0)')
    for s_ in range(8):
        A('v_mfma_f32_16x16x32_bf16 v[48:51], v[%d:%d], v[%d:%d], %s'%(80+4*s_,83+4*s_,112+4*s_,115+4*s_,'0' if s_==0 else 'v[48:51]'))
    if cfg.qfull:
        A('v_and_b32 v52, 7, v0\nv_lshlrev_b32 v52, 8, v52\ns_lshl_b32 s54, s53, 6\nv_add3_u32 v52, v52, v15, s54\ns_lshl_b32 s54, s53, 9\nv_add_u32 v53, s54, v3\ns_nop 1')
        A('ds_write_b128 v52, v[48:51] offset:%d'%L_DP)
        lds_sync(8)
        A('ds_read_b128 v[48:51], v53 offset:%d\ns_mov_b32 exec_hi, 0\ns_waitcnt lgkmcnt(0)'%L_DP)
    else:
        A('s_mov_b32 exec_lo, 0x00ff00ff\ns_mov_b32 exec_hi, 0x00ff00ff')
        A('s_nop 5')
    A('global_store_dwordx4 v14, v[48:51], %s sc1'%WS)
    A('s_mov_b64 exec, -1')
    A('L_noq:')
    stamp(3)
    A('s_mov_b64 exec, 1\nds_add_u32 v11, v12 offset:%d\ns_mov_b64 exec, -1'%(L_CNT+12))
    A('s_cmp_eq_u32 s53, 0\ns_cbranch_scc1 L_qg\ns_cmp_lg_u32 s53, 1\ns_cbranch_scc1 L_qdone\ns_cmp_ge_u32 s49, 8\ns_cbranch_scc1 L_qdone')
    A('s_mov_b32 s6, 0')
    for i in range(cfg.NP):
        for c in ((0,1) if i%2==0 else (1,0)):
            l=newlab('pb'); d=newlab('pe')
            A('s_add_u32 s7, s9, %d\ns_mov_b32 s8, 0\ns_mov_b32 s61, 0\ns_load_dword s8, %s, s7'%(i*16384+c*8192,WS))
            A('%s:\ns_add_u32 s61, s61, 1\ns_cmp_gt_u32 s61, 0xffff\ns_cbranch_scc1 %s\ns_cmp_eq_u32 s8, 0\ns_cbranch_scc1 %s\n%s:\ns_waitcnt lgkmcnt(0)'%(l,d,l,d))
            if i>0: A('%s s6, s6, s61'%('s_add_i32' if c==0 else 's_sub_i32'))
    A('s_cmp_gt_i32 s6, 0\ns_cselect_b32 s6, 1, 0')
    A('s_xor_b32 s6, s6, s10\ns_lshl_b32 s6, s6, 1\ns_or_b32 s6, s6, 1\nv_mov_b32 v7, s6')
    lds_wait(11,L_CNT+12,4,2)
    A('s_mov_b64 exec, 1\nglobal_store_dword v6, v7, %s offset:256 sc1\ns_mov_b64 exec, -1\ns_branch L_qdone'%WS)
    A('L_qg:')
    A('v_and_b32 v6, 3, v0\nv_lshlrev_b32 v6, 9, v6\nv_lshrrev_b32 v14, 2, v0\nv_lshl_add_u32 v6, v14, 5, v6')
    A('s_lshl_b32 s54, s50, 12\ns_add_u32 s54, s54, %d\nv_add_u32 v6, s54, v6'%QP)
    A('s_and_b32 s54, s50, 7\ns_lshl_b32 s54, s54, 11\nv_add_u32 v7, s54, v79')
    lds_wait(11,L_CNT+12,4,2)
    progress(cfg.pq)
    A('s_and_b32 s6, s50, 1\ns_cselect_b64 s[6:7], -1, 0')
    if not cfg.skipF: flagpoll(7,'0xff','s[6:7]' if cfg.gmask else None)
    stamp(4)
    if not cfg.skipG: poll(['global_load_dwordx4 v[%d:%d], v6, %s offset:%d sc1'%(32+8*kq+4*h,35+8*kq+4*h,WS,2048*kq+16*h) for kq in range(2) for h in range(2)],None,sleep=8)
    for p in range(4):
        A('v_pk_add_f32 v[%d:%d], v[%d:%d], v[%d:%d]'%(32+2*p,33+2*p,32+2*p,33+2*p,40+2*p,41+2*p))
    for p in range(4):
        A('v_cvt_pk_bf16_f32 v%d, v%d, v%d'%(32+p,32+2*p,33+2*p))
    A('ds_write_b128 v1, v[32:35] offset:%d'%L_QL)
    stamp(5)
    A('s_waitcnt lgkmcnt(0)')
    if cfg.qflag: A('ds_write_b32 v11, v12 offset:%d'%(L_CNT+16))
    A('L_qdone:')
    if cfg.touch:
        A('s_lshl_b32 s54, s50, 21\ns_load_dword s4, %s, s54'%VP)
        A('s_load_dword s6, %s, 0\ns_load_dword s7, %s, 0\ns_load_dword s8, %s, 0'%(WG,WU,WD))
        A('s_lshl_b32 s54, s48, 19\ns_load_dword s9, %s, s54'%WO)
        A('s_waitcnt lgkmcnt(0)')
    A('s_setprio 0')
    if not cfg.qflag: A('s_barrier')

    A('s_mov_b32 s70, 0\ns_and_b32 s54, s49, 0x13\ns_cmp_eq_u32 s54, s51\ns_cselect_b32 s70, 2, s70')
    A('s_cmp_lt_u32 s48, 4\ns_cselect_b32 s6, 16, 12\ns_cselect_b32 s7, 8, 6\ns_cselect_b32 s8, 0, 8\ns_mul_i32 s14, s48, s7\ns_add_u32 s14, s14, s8')
    if cfg.helper: A('s_and_b32 s54, s49, 0x13\ns_xor_b32 s54, s54, 2\ns_cmp_eq_u32 s54, s51\ns_cselect_b32 s9, s49, 99\ns_cmp_lt_u32 s9, s6\ns_cselect_b32 s70, 4, s70')
    A('s_sub_u32 s54, s49, 16\ns_cmp_lt_u32 s54, s6\ns_cselect_b32 s70, 1, s70')
    A('s_xor_b32 s55, s2, s49\ns_and_b32 s55, s55, 1\ns_cselect_b32 s70, 3, s70')
    A('s_bfe_u32 s54, s49, 0x30001\ns_add_u32 s14, s14, s54')
    A('s_lshr_b32 s15, s49, 2\ns_add_u32 s54, s48, %d\ns_and_b32 s54, s54, 7\ns_lshl_b32 s54, s54, 2\ns_add_u32 s15, s15, s54'%cfg.crot)
    if cfg.e1now:
        A('s_cmp_lg_u32 s70, 1\ns_cbranch_scc1 L_ne1')
        lds_wait(11,L_CNT+12,4,2)
        A('s_lshl_b32 s54, s14, 6')
        A('s_lshl_b32 s55, s53, 7\nv_lshrrev_b32 v6, 2, v0\nv_add_u32 v6, s55, v6\nv_mul_u32_u24 v6, 3584, v6\nv_and_b32 v7, 3, v0\nv_lshl_add_u32 v6, v7, 4, v6\nv_add_u32 v6, s54, v6')
        for k in range(cfg.E1):
            i=k//2
            A(('v_add_u32 v7, %d, v6\n'%(i*16*3584))+'s_add_u32 m0, s71, %d\ns_nop 0\nglobal_load_lds_dwordx4 v7, %s %s'%(L_WA+32768*(k&1)+i*1024,WU if k&1 else WG,cfg.ff))
        A('L_ne1:')
    CLASS()
    A('s_lshr_b32 s13, s2, 1\ns_andn2_b32 s13, s13, 2\ns_lshl_b32 s54, s11, 1\ns_or_b32 s13, s13, s54')
    A('s_and_b32 s54, s48, 3\ns_lshl_b32 s54, s54, 2\ns_add_u32 s67, s54, s68\ns_lshl_b32 s54, s11, 4\ns_add_u32 s67, s67, s54')
    if cfg.wo0: A('s_lshl_b32 s54, s48, 2\ns_add_u32 s67, s54, s68')
    A('s_bfe_u32 s69, s49, 0x20001')
    A('v_and_b32 v6, 3, v0\nv_lshlrev_b32 v6, 2, v6\nv_lshrrev_b32 v7, 4, v0\nv_add_u32 v6, v6, v7')
    A('v_bfe_u32 v7, v0, 2, 1')
    A('v_lshrrev_b32 v24, 3, v0\nv_lshlrev_b32 v24, 13, v24\nv_and_b32 v13, 7, v0\nv_lshl_add_u32 v24, v13, 3, v24')
    A('s_and_b32 s54, s13, 31\ns_lshl_b32 s54, s54, 8\ns_lshr_b32 s55, s13, 5\ns_lshl_b32 s55, s55, 6\ns_add_u32 s54, s54, s55\ns_add_u32 s54, s54, %d\nv_add_u32 v24, s54, v24\ns_mov_b32 s55, s13'%HB)
    A('v_lshlrev_b32 v6, 1, v6\nv_lshl_add_u32 v6, v7, 10, v6\ns_lshr_b32 s54, s55, 5\ns_lshl_b32 s54, s54, 11\ns_and_b32 s55, s55, 31\ns_lshl_b32 s55, s55, 5\ns_add_u32 s54, s54, s55\nv_add_u32 v6, s54, v6')
    A('global_load_ushort v16, v6, %s'%X)
    def paced(k,n,line):
        if cfg.nb:
            nb=min(cfg.nb,n); span=16//nb
            bi=lambda k:(k*nb)//n
            if k==0 or bi(k)!=bi(k-1):
                A('s_lshr_b32 s55, s49, 1\ns_and_b32 s55, s55, %d\ns_add_u32 s55, s55, %d'%(span-1,cfg.pw0+1+span*bi(k)))
                progress('s55')
            assert cfg.pw0+16<cfg.NS-1
            A(line); return
        f=lambda k: cfg.pw0+(k*(cfg.pw1-cfg.pw0))//n
        if k==0 or f(k)!=f(k-1): progress(f(k))
        assert f(k)<cfg.NS
        A(line)
    def dma1(k):
        i=k//2
        return ('v_add_u32 v7, %d, v6\n'%(i*16*3584))+'s_add_u32 m0, s71, %d\ns_nop 0\nglobal_load_lds_dwordx4 v7, %s %s'%(L_WA+32768*(k&1)+i*1024,WU if k&1 else WG,cfg.ff)
    def dma2(i):
        return ('v_add_u32 v7, %d, v6\n'%(i*0x8000))+'s_add_u32 m0, s71, %d\ns_nop 0\nglobal_load_lds_dwordx4 v7, %s %s'%(L_WA+i*1024,WD,cfg.ff)
    l1=newlab('w1'); l2=newlab('w2'); le=newlab('we')
    A('s_cmp_eq_u32 s70, 0\ns_cbranch_scc1 %s\ns_cmp_eq_u32 s70, 2\ns_cbranch_scc1 %s\ns_cmp_lg_u32 s70, 3\ns_cbranch_scc1 %s'%(le,l2,l1))
    A('s_lshl_b32 s54, s67, 7\ns_lshl_b32 s55, s53, 1\ns_add_u32 s54, s54, s55\ns_lshl_b32 s54, s54, 10\ns_lshl_b32 s55, s69, 8\ns_add_u32 s54, s54, s55')
    A('v_lshrrev_b32 v6, 4, v0\nv_lshlrev_b32 v6, 13, v6\nv_and_b32 v7, 15, v0\nv_lshl_add_u32 v6, v7, 4, v6\nv_add_u32 v6, s54, v6')
    A('s_lshl_b32 s71, s53, 13')
    def dmaw(i):
        return 'v_add_u32 v7, %d, v6\ns_add_u32 m0, s71, %d\ns_nop 0\nglobal_load_lds_dwordx4 v7, %s %s'%((32*(i&3)+(i>>2))*1024,L_WA+i*1024,WO,cfg.wf)
    for i in range(0 if (cfg.noW or cfg.wo0) else cfg.EW): paced(i,cfg.EW,dmaw(i))
    A('s_branch %s'%le)
    A('%s:'%l1)
    A('s_lshl_b32 s54, s14, 6')
    A('s_lshl_b32 s55, s53, 7\nv_lshrrev_b32 v6, 2, v0\nv_add_u32 v6, s55, v6\nv_mul_u32_u24 v6, 3584, v6\nv_and_b32 v7, 3, v0\nv_lshl_add_u32 v6, v7, 4, v6\nv_add_u32 v6, s54, v6')
    A('s_lshl_b32 s71, s53, 13')
    A('s_cmp_eq_u32 s70, 4\ns_cbranch_scc1 %s'%le)
    for k in range(0 if cfg.e1now else cfg.E1): paced(k,cfg.E1,dma1(k))
    A('s_branch %s'%le)
    A('%s:'%l2)
    A('s_mul_i32 s54, s53, 448\nv_lshrrev_b32 v6, 1, v0\nv_add_u32 v6, s54, v6\nv_lshlrev_b32 v6, 10, v6')
    A('v_and_b32 v7, 1, v0\nv_lshl_add_u32 v6, v7, 4, v6\ns_lshl_b32 s54, s15, 5\nv_add_u32 v6, s54, v6')
    A('s_mul_i32 s71, s53, 14336')
    for k in range(cfg.E2): paced(k,cfg.E2,dma2(k))
    A('%s:'%le)
    A('s_waitcnt vmcnt(0)')
    A('v_lshlrev_b32 v16, 16, v16')
    lds_sync(1,sleep=4)
    stamp(6)
    l1=newlab('r1'); l2=newlab('r2'); le=newlab('re')
    A('v_mov_b32 v26, 0\nv_mov_b32 v27, 0\nv_mov_b32 v28, 0\nv_mov_b32 v29, 0')
    A('s_cmp_eq_u32 s70, 1\ns_cbranch_scc1 %s\ns_cmp_eq_u32 s70, 2\ns_cbranch_scc1 %s'%(l1,l2))
    A('v_lshrrev_b32 v8, 4, v0\nv_lshlrev_b32 v8, 11, v8\nv_bfe_u32 v7, v0, 2, 2\nv_lshl_add_u32 v8, v7, 8, v8\nv_and_b32 v7, 3, v0\nv_lshl_add_u32 v8, v7, 3, v8')
    A('s_lshl_b32 s54, s53, 6\ns_add_u32 s54, s54, %d\nv_add_u32 v8, s54, v8'%L_WA)
    def trw():
        for t in range(2):
            for s_ in range(4):
                r=80+16*t+4*s_
                A('ds_read_b64_tr_b16 v[%d:%d], v8 offset:%d'%(r,r+1,8192*s_+32*t))
                A('ds_read_b64_tr_b16 v[%d:%d], v8 offset:%d'%(r+2,r+3,8192*s_+32*t+1024))
            if t==0 or cfg.EW==8: A('s_waitcnt lgkmcnt(0)')
    if cfg.EW==8: trw()
    A('s_branch %s'%le)
    A('%s:'%l1)
    A('v_lshrrev_b32 v8, 4, v0\nv_lshlrev_b32 v8, 9, v8\nv_bfe_u32 v7, v0, 2, 2\nv_lshl_add_u32 v8, v7, 6, v8')
    A('v_and_b32 v7, 1, v0\nv_lshl_add_u32 v8, v7, 3, v8\nv_bfe_u32 v7, v0, 1, 1\nv_lshl_add_u32 v8, v7, 15, v8\ns_add_u32 s54, s71, %d\nv_add_u32 v8, s54, v8'%L_WA)
    A('s_mul_i32 s55, s14, 147\ns_lshr_b32 s55, s55, 11\ns_mul_i32 s55, s55, %d'%(16384-7168))
    A('s_lshl_b32 s54, s14, 2\ns_add_u32 s54, s54, s53\ns_lshl_b32 s54, s54, 7\ns_add_u32 s54, s54, s55\ns_add_u32 s54, s54, %d'%AB)
    A('v_and_b32 v27, 0x70, v1\nv_lshrrev_b32 v7, 4, v0\nv_lshl_add_u32 v27, v7, 16, v27\nv_bfe_u32 v7, v0, 3, 1\nv_lshlrev_b32 v7, 13, v7\nv_add3_u32 v27, v27, v7, s54')
    A('s_and_b32 s55, s48, %d\ns_lshl_b32 s55, s55, 14\ns_lshl_b32 s54, s10, 13\ns_add_u32 s54, s54, s55\ns_lshl_b32 s55, s53, 11\ns_add_u32 s54, s54, s55\ns_add_u32 s54, s54, %d'%(cfg.nH//2-1,HB))
    A('v_and_b32 v4, 7, v0\nv_lshlrev_b32 v4, 5, v4\nv_lshrrev_b32 v7, 5, v0\nv_lshl_add_u32 v4, v7, 8, v4\nv_and_b32 v7, 16, v0\nv_add3_u32 v4, v4, v7, s54')
    A('s_mul_i32 s54, s53, 5120\nv_add_u32 v10, s54, v1')
    A('v_and_b32 v5, 0x17, v0\nv_lshlrev_b32 v5, 4, v5\nv_bfe_u32 v7, v0, 3, 1\nv_lshl_add_u32 v5, v7, 3, v5\nv_lshrrev_b32 v7, 5, v0\nv_lshl_add_u32 v5, v7, 2, v5\ns_lshl_b32 s54, s53, 10\nv_add_u32 v5, s54, v5')
    A('v_and_b32 v9, 7, v0\nv_lshlrev_b32 v9, 4, v9\nv_bfe_u32 v7, v0, 2, 1\nv_lshl_add_u32 v9, v7, 8, v9\nv_and_b32 v7, 3, v0\nv_lshl_add_u32 v9, v7, 2, v9')
    for p in range(4): A('v_add_u32 v%d, %d, v5\nv_add_u32 v%d, %d, v9'%(160+p,L_XN+5120*p,164+p,L_XN+5120*p+4096))
    A('s_branch %s'%le)
    A('%s:'%l2)
    A('v_lshrrev_b32 v8, 4, v0\nv_lshlrev_b32 v8, 9, v8\nv_bfe_u32 v7, v0, 1, 1\nv_lshl_add_u32 v8, v7, 8, v8\nv_bfe_u32 v7, v0, 2, 2\nv_lshl_add_u32 v8, v7, 5, v8')
    A('v_and_b32 v7, 1, v0\nv_lshl_add_u32 v8, v7, 3, v8\ns_add_u32 s55, s71, %d\nv_add_u32 v8, s55, v8'%L_WA)
    A('v_bfe_u32 v26, v0, 2, 1\nv_lshlrev_b32 v26, 10, v26\nv_bfe_u32 v7, v0, 1, 1\nv_lshl_add_u32 v26, v7, 8, v26\nv_lshrrev_b32 v7, 3, v0\nv_lshl_add_u32 v26, v7, 4, v26\nv_and_b32 v7, 1, v0\nv_lshl_add_u32 v26, v7, 3, v26')
    A('s_and_b32 s55, s48, %d\ns_lshl_b32 s55, s55, 16\ns_lshl_b32 s54, s53, 14\ns_add_u32 s54, s54, s55\ns_lshl_b32 s55, s10, 13\ns_add_u32 s54, s54, s55\ns_add_u32 s54, s54, %d\nv_add_u32 v27, s54, v1'%(cfg.nA//2-1,AB+3072))
    A('s_mov_b32 s54, s15\ns_lshl_b32 s55, s54, 5')
    A('v_lshrrev_b32 v28, 3, v0\nv_lshlrev_b32 v28, 10, v28\nv_and_b32 v7, 7, v0\nv_lshl_add_u32 v28, v7, 2, v28\nv_add_u32 v28, s55, v28')
    A('s_lshl_b32 s54, s54, 8\ns_and_b32 s55, s48, %d\ns_lshl_b32 s55, s55, 14\ns_add_u32 s54, s54, s55\ns_lshl_b32 s55, s10, 13\ns_add_u32 s54, s54, s55\ns_add_u32 s54, s54, %d'%(cfg.nH//2-1,HB))
    A('v_lshl_add_u32 v29, v0, 2, s54')
    A('s_lshl_b32 s54, s53, 11\nv_add_u32 v10, s54, v1')
    A('%s:'%le)
    A('s_lshl_b32 s54, s53, 9\nv_add_u32 v17, s54, v3')
    A('s_and_b32 s54, s50, 3\ns_lshl_b32 s54, s54, 2\ns_add_u32 s54, s54, s53\ns_mul_i32 s54, s54, 49152\n%s\ns_lshl_b32 s55, s55, 13\ns_add_u32 s54, s54, s55'%('s_mov_b32 s55, s63' if cfg.wo0 else 's_bfe_u32 s55, s50, 0x10002'))
    A('s_lshr_b32 s6, s50, 3\ns_mul_i32 s7, s6, 11\ns_lshr_b32 s7, s7, 5\ns_mul_i32 s7, s7, %d\ns_lshl_b32 s6, s6, 2\ns_add_u32 s6, s6, s51\ns_mul_i32 s6, s6, %d'%(16384-12*OPS,OPS))
    A('s_add_u32 s54, s54, s6\ns_add_u32 s54, s54, s7\ns_add_u32 s54, s54, %d\nv_add_u32 v18, s54, v1'%OP)
    A('s_and_b32 s54, s67, 15\ns_mul_i32 s54, s54, 49152\ns_lshl_b32 s55, %s, 13\ns_add_u32 s54, s54, s55\ns_add_u32 s54, s54, %d'%('s62' if cfg.wo0 else 's11',OP))
    A('v_mul_u32_u24 v7, 11, v2\nv_lshrrev_b32 v7, 5, v7\nv_mul_u32_u24 v7, %d, v7\nv_mul_u32_u24 v25, %d, v2\nv_add3_u32 v25, v25, v7, s54\nv_add_u32 v19, v25, v3'%(16384-12*OPS,4*OPS))
    if cfg.G1 or cfg.G2:
        A('v_bfe_u32 v14, v0, 2, 3\nv_mul_u32_u24 v7, 11, v14\nv_lshrrev_b32 v7, 5, v7\nv_mul_u32_u24 v7, %d, v7\nv_and_b32 v14, 31, v0\nv_mul_u32_u24 v14, %d, v14\nv_add_u32 v14, v14, v7'%(16384-12*OPS,OPS))
        A('v_lshrrev_b32 v7, 5, v0\nv_add_u32 v7, s48, v7\nv_and_b32 v7, 3, v7\nv_mul_u32_u24 v7, %d, v7\ns_lshl_b32 s54, s10, 13\ns_add_u32 s54, s54, %d\nv_add3_u32 v14, v14, v7, s54'%(4*49152,OP+512))
    A('s_lshl_b32 s54, s53, 5\nv_mov_b32 v30, s54')
    A('v_mul_u32_u24 v20, %d, v2\nv_lshrrev_b32 v7, 1, v3\nv_add_u32 v20, v20, v7'%XOS)
    A('v_and_b32 v21, 7, v0\nv_mul_u32_u24 v21, %d, v21\nv_add_u32 v21, v21, v15'%XOS)
    A('s_lshl_b32 s54, s69, 2\ns_add_u32 s54, s54, s53\ns_lshl_b32 s54, s54, 13\ns_add_u32 s54, s54, %d'%(WP+2048))
    A('s_lshl_b32 s55, s69, 1\ns_add_u32 s55, s55, s67' if cfg.wrot else 's_mov_b32 s55, s67')
    A('v_bfe_u32 v22, v0, 1, 2')
    A('v_lshl_add_u32 v7, v22, 3, s55' if cfg.wrot else 'v_mov_b32 v7, s55')
    A('v_and_b32 v7, 31, v7\nv_lshlrev_b32 v22, 17, v22\nv_lshl_add_u32 v22, v7, 7, v22\nv_and_b32 v7, 1, v0\nv_lshl_add_u32 v22, v7, 6, v22\nv_add3_u32 v22, v22, v15, s54')
    A('s_lshl_b32 s54, s13, 12\ns_add_u32 s54, s54, %d\nv_add_u32 v23, s54, v1'%WP)
    def guarded(lines):
        A(lines)
    def drychk():
        pass
    for r in range(192,246): A('v_mov_b32 v%d, -1'%r)
    A('s_waitcnt lgkmcnt(0)')
    A('s_mov_b64 vcc, 0\ns_mov_b64 s[4:5], %d\ns_mov_b64 exec, s[4:5]'%(0 if cfg.warm else -1))
    wpl=['global_load_dwordx4 v[%d:%d], v23, %s offset:%d sc1'%(216+4*t,219+4*t,WS,1024*t) for t in range(4)]
    opl=['global_load_dwordx2 v[%d:%d], v25, %s offset:%d sc1'%(208+2*s_,209+2*s_,WS,OPS*s_+512) for s_ in range(4)]+['global_load_dwordx4 v[%d:%d], v19, %s offset:%d sc1'%(192+4*s_,195+4*s_,WS,OPS*s_) for s_ in range(4)]
    hbl=['global_load_dwordx4 v[%d:%d], v4, %s offset:%d sc1'%(216+4*t,219+4*t,WS,1024*t) for t in range(4)]
    abl=['global_load_dwordx4 v[%d:%d], v27, %s offset:%d sc1'%(216+4*t,219+4*t,WS,1024*t-3072) for t in range(7)]
    if cfg.pre:
        A('s_cmp_lg_u32 s70, 3\ns_cbranch_scc1 L_pre1')
        if cfg.pre&2: A('\n'.join(opl))
        A('s_cmp_lg_u32 s53, 0\ns_cbranch_scc1 L_pre3')
        if cfg.pre&1: A('\n'.join(wpl))
        A('s_branch L_pre3\nL_pre1:')
        if cfg.pre&4:
            A('s_cmp_lg_u32 s70, 1\ns_cbranch_scc1 L_pre2'); A('\n'.join(hbl)); A('L_pre2:\ns_cmp_lg_u32 s70, 2\ns_cbranch_scc1 L_pre3'); A('\n'.join(abl))
        A('L_pre3:')
    if cfg.fb:
        p0,stp,late,up=cfg.fb
        A('s_cmp_lg_u32 s53, 1\ns_cbranch_scc1 L_nofb')
        A('s_and_b32 s54, s49, 7\ns_lshl_b32 s54, s54, 9\ns_add_u32 s54, s54, %d\ns_add_u32 s40, s38, s54\ns_addc_u32 s41, s39, 0\ns_mov_b32 s42, %d\ns_mov_b32 s44, 0'%(RNK,p0))
        A('L_fb:')
        lds_wait(31,L_PR,'s42',2)
        A('s_mov_b32 s43, 1\ns_atomic_add s43, s[40:41], s44 glc\ns_waitcnt lgkmcnt(0)\ns_add_u32 s43, s43, 1\ns_cmp_lt_u32 s43, %d\ns_cselect_b32 s45, 2, 0\ns_cmp_ge_u32 s43, %d\ns_cselect_b32 s43, 1, s45\nv_mov_b32 v13, s43\nds_write_b32 v11, v13 offset:%d'%(cfg.early[0] if cfg.early else 0,late,L_CNT+28))
        A('s_add_u32 s44, s44, 4096\ns_add_u32 s42, s42, %d\ns_cmp_lt_u32 s42, %d\ns_cbranch_scc1 L_fb\ns_waitcnt lgkmcnt(0)'%(stp,cfg.NS-2))
        assert (cfg.NS-p0)//stp+1<=20
        A('L_nofb:')
    if cfg.disp and cfg.NS<32:
        A('s_cmp_lg_u32 s53, 2\ns_cbranch_scc1 L_tail')
        A('s_lshl_b32 s54, s50, %d\ns_add_u32 s54, s54, %d\ns_add_u32 s40, s38, s54\ns_addc_u32 s41, s39, 0'%(cfg.cs,CTR))
        lds_wait(31,L_PR,cfg.NS-1,2)
        thr,small,keep2=cfg.gd or (0,cfg.disp,cfg.disp-cfg.LA)
        A('s_mov_b32 s42, 0\ns_mov_b32 s44, %d\ns_mov_b32 s45, %d'%(cfg.disp,cfg.disp-cfg.LA))
        A('L_dsp:')
        A('s_mov_b32 s43, s44\ns_atomic_add s43, s[40:41], 0x0 glc\nv_add_lshl_u32 v7, v0, s42, 2\ns_bfm_b64 s[46:47], s44, 0\ns_waitcnt lgkmcnt(0)\ns_add_u32 s43, s43, 1\ns_min_u32 s43, s43, 4096\ns_add_u32 s43, s43, %d\nv_add_u32 v13, s43, v0'%(cfg.NS*16))
        A('s_add_u32 s55, s43, s44\ns_cmp_ge_u32 s55, 512\ns_cbranch_scc1 L_dspd')
        A('s_mov_b64 exec, s[46:47]\nds_write_b32 v7, v13 offset:%d\ns_mov_b64 exec, -1'%(L_CNT+64))
        A('s_add_u32 s42, s42, s44\ns_cmp_ge_u32 s43, %d\ns_cselect_b32 s44, %d, s44\ns_cselect_b32 s45, %d, s45\ns_sub_i32 s55, s42, s45\ns_max_i32 s55, s55, 0'%(512-thr,small,keep2))
        lds_wait(11,L_CNT+24,'s55',1)
        A('s_branch L_dsp')
        A('L_dspd:')
        A('s_mov_b64 exec, 0xff\nds_write_b32 v7, v13 offset:%d\ns_mov_b64 exec, -1'%(L_CNT+64))
        A('s_waitcnt lgkmcnt(0)')
    A('L_tail:')
    stamp(7)
    guarded('s_barrier')
    def wstep(b0,s0,w):
        o=[]
        for half in range(2):
            d='v[%d:%d]'%(b0+2*half,b0+2*half+1); src='v[%d:%d]'%(s0+4*w+2*half,s0+4*w+2*half+1); f='v[%d:%d]'%(72+2*(w//2),73+2*(w//2))
            if w==0: o.append('v_pk_mul_f32 %s, %s, %s op_sel_hi:[1,0]'%(d,src,f))
            elif w%2==0: o.append('v_pk_fma_f32 %s, %s, %s, %s op_sel_hi:[1,0,1]'%(d,src,f,d))
            else: o.append('v_pk_fma_f32 %s, %s, %s, %s op_sel:[0,1,0] op_sel_hi:[1,1,1]'%(d,src,f,d))
        return o
    def wsum2(b0,s0):
        for w in range(4): A('\n'.join(wstep(b0,s0,w)))
    def wsum(b0,half,s0=None):
        d='v[%d:%d]'%(b0+2*half,b0+2*half+1)
        s0=s0 or b0
        for w in range(4):
            src='v[%d:%d]'%(s0+4*w+2*half,s0+4*w+2*half+1)
            f='v[%d:%d]'%(72+2*(w//2),73+2*(w//2))
            if w==0: A('v_pk_mul_f32 %s, %s, %s op_sel_hi:[1,0]'%(d,src,f))
            elif w%2==0: A('v_pk_fma_f32 %s, %s, %s, %s op_sel_hi:[1,0,1]'%(d,src,f,d))
            else: A('v_pk_fma_f32 %s, %s, %s, %s op_sel:[0,1,0] op_sel_hi:[1,1,1]'%(d,src,f,d))
    if cfg.gleak is not None:
        k,lo,hi,msk=cfg.gleak
        A('s_cbranch_execz L_nogl\ns_cmp_lg_u32 s53, 0\ns_cbranch_scc1 L_nogl')
        if k==8: stamp(8); A('s_waitcnt lgkmcnt(0)')
        if k==200: A('s_getreg_b32 s72, hwreg(HW_REG_XCC_ID)\ns_sub_u32 s72, s72, s48\ns_and_b32 s72, s72, 7\ns_mul_i32 s72, s72, 50\nv_mov_b32 v33, s72')
        elif k>=100: A('v_mov_b32 v32, %d\nds_read_b32 v33, v32 offset:%d\ns_waitcnt lgkmcnt(0)'%(4*(k-100),L_ST))
        else: A('v_mov_b32 v33, s%d'%(72+2*k))
        A('v_not_b32 v33, v33\nv_mov_b32 v34, s72\nv_mov_b32 v32, 0x3bf000')
        A('s_mov_b64 exec, 1')
        if k!=8: A('global_atomic_umin v32, v34, %s'%WS)
        A('s_and_b32 s54, s2, %d\ns_sub_u32 s54, s54, %d\ns_cmp_ge_u32 s54, %d\ns_cbranch_scc1 L_nogl2'%(msk,lo,hi-lo))
        A('global_atomic_umin v32, v33, %s offset:256'%WS)
        A('L_nogl2:\ns_mov_b64 exec, -1\n'+('s_nop 2' if k==8 else 's_waitcnt vmcnt(0)'))
        A('L_nogl:')
    A('ds_read_b128 v[64:67], v30 offset:%d\nds_read_b128 v[68:71], v30 offset:%d'%(L_MLW,L_MLW+16))
    for w in range(4):
        A('ds_read_b128 v[%d:%d], v17 offset:%d'%(32+4*w,35+4*w,L_OW+2048*w))
    stamp(8)
    if cfg.notail: A('s_branch L_fin')
    A('s_and_b32 exec_hi, s4, 1')
    A('s_waitcnt lgkmcnt(%d)'%(0 if cfg.diag else 4))
    A('v_max3_f32 v76, v64, v65, v66\nv_max_f32 v76, v76, v67')
    A('v_pk_add_f32 v[72:73], v[64:65], v[76:77] op_sel_hi:[1,0] neg_lo:[0,1] neg_hi:[0,1]')
    A('v_pk_add_f32 v[74:75], v[66:67], v[76:77] op_sel_hi:[1,0] neg_lo:[0,1] neg_hi:[0,1]')
    for i in range(4): A('v_exp_f32 v%d, v%d'%(72+i,72+i))
    A('v_pk_mul_f32 v[68:69], v[68:69], v[72:73]\nv_pk_fma_f32 v[68:69], v[70:71], v[74:75], v[68:69]')
    A('s_waitcnt lgkmcnt(0)')
    A('v_add_f32 v77, v68, v69')
    wsum2(32,32)
    A('s_nop 0')
    A('v_mov_b32_dpp v32, v76 quad_perm:[0,1,2,3] row_mask:0x4 bank_mask:0xf')
    A('v_mov_b32_dpp v33, v77 quad_perm:[0,1,2,3] row_mask:0x4 bank_mask:0xf')
    guarded('global_store_dwordx4 v18, v[32:35], %s %s'%(WS,cfg.sf))
    tstamp(1)
    A('s_mov_b64 exec, s[4:5]')
    A('s_cmp_lg_u32 s70, 3\ns_cbranch_scc1 L_rdone')
    if cfg.EW<8:
        for i in range(cfg.EW,8): A(dmaw(i))
        A('s_waitcnt vmcnt(0)\ns_barrier')
        trw()
    wts=['v_max3_f32 v76, v208, v210, v212','v_max_f32 v76, v76, v214']+['v_sub_f32 v%d, v%d, v76'%(72+i,208+2*i) for i in range(4)]+['v_exp_f32 v%d, v%d'%(72+i,72+i) for i in range(4)]
    wts+=['v_mul_f32 v78, v72, v209']+['v_fmac_f32 v78, v%d, v%d'%(72+i,209+2*i) for i in range(1,4)]+['v_rcp_f32 v78, v78','s_nop 0']
    wts+=['v_pk_mul_f32 v[72:73], v[72:73], v[78:79] op_sel_hi:[1,0]','v_pk_mul_f32 v[74:75], v[74:75], v[78:79] op_sel_hi:[1,0]']
    hk={3:wts}
    for w in range(4): hk[4+w]=wstep(48,192,w)
    spoll(opl,hk)
    stamp(9)
    A('v_cvt_pk_bf16_f32 v48, v48, v49\nv_cvt_pk_bf16_f32 v49, v50, v51')
    A('ds_write_b64 v20, v[48:49] offset:%d'%L_XO)
    A('s_waitcnt lgkmcnt(0)'); guarded('s_barrier')
    if cfg.tdiag: tstamp(2); A('s_waitcnt lgkmcnt(0)')
    for s_ in range(4):
        A('ds_read_b128 v[%d:%d], v21 offset:%d'%(32+4*s_,35+4*s_,L_XO+64*s_))
    for s_ in range(4):
        A('s_waitcnt lgkmcnt(%d)'%(3-s_))
        for t in range(2):
            acc='v[%d:%d]'%(48+4*t,51+4*t); r=80+16*t+4*s_
            A('v_mfma_f32_16x16x32_bf16 %s, v[%d:%d], v[%d:%d], %s'%(acc,r,r+3,32+4*s_,35+4*s_,'0' if s_==0 else acc))
    A('s_mov_b32 exec_lo, 0x00ff00ff\ns_mov_b32 exec_hi, 0x00ff00ff')
    A('s_nop 4')
    A('global_store_dwordx4 v22, v[48:51], %s offset:-2048 %s'%(WS,cfg.sf))
    A('global_store_dwordx4 v22, v[52:55], %s offset:2048 %s'%(WS,cfg.sf))
    tstamp(3)
    A('s_mov_b64 exec, -1')
    A('s_cmp_lg_u32 s53, 0\ns_cbranch_scc1 L_fin')
    apoll(['global_load_dwordx4 v[%d:%d], v23, %s offset:%d sc1'%(216+4*t,219+4*t,WS,1024*t) for t in range(4)],cfg.pR)
    stamp(10)
    A('v_pk_add_f32 v[32:33], v[216:217], v[220:221]\nv_pk_add_f32 v[34:35], v[218:219], v[222:223]')
    A('v_pk_add_f32 v[40:41], v[224:225], v[228:229]\nv_pk_add_f32 v[42:43], v[226:227], v[230:231]')
    A('v_pk_add_f32 v[32:33], v[32:33], v[40:41]\nv_pk_add_f32 v[34:35], v[34:35], v[42:43]')
    A('s_nop 1\nv_permlane32_swap_b32 v32, v34\nv_permlane32_swap_b32 v33, v35')
    A('v_add_f32 v32, v32, v34\nv_add_f32 v33, v33, v35')
    A('s_nop 1\nv_permlane16_swap_b32 v32, v33\nv_add_f32 v32, v32, v33')
    dppadd(32,'row_ror:8')
    rbf(32)
    A('v_add_f32 v32, v32, v16\nv_mov_b32 v33, v32\ns_nop 1')
    A('v_permlane16_swap_b32 v32, v33\nv_cvt_pk_bf16_f32 v32, v32, v33\nv_min_u32 v32, -2, v32\nv_mov_b32 v33, v32\ns_nop 1')
    A('v_permlane32_swap_b32 v32, v33')
    A('global_store_dwordx2 v24, v[32:33], %s %s'%(WS,cfg.sf))
    tstamp(4)
    A('s_branch L_fin')
    A('L_rdone:')
    A('s_cmp_eq_u32 s70, 2\ns_cbranch_scc1 L_ffn2')
    A('s_cmp_eq_u32 s70, 0\ns_cbranch_scc1 L_fin')
    gate(cfg.G1)
    if cfg.lrot:
        assert cfg.E1%2==0
        i0=cfg.E1//2; n=8-i0
        if cfg.helper: A('s_and_b32 s6, s14, 1\ns_cmp_eq_u32 s70, 4\ns_cselect_b32 s6, 2, s6\ns_mul_i32 s6, s6, %d\ns_add_u32 s6, s6, %d'%(n//3,i0))
        else: A('s_and_b32 s6, s14, 1\ns_mul_i32 s6, s6, %d\ns_add_u32 s6, s6, %d'%(n//2,i0))
        for it in range(n):
            if cfg.helper and it==n-2*(n//3): A('s_cmp_eq_u32 s70, 4\ns_cbranch_scc1 L_fin')
            A('s_mul_i32 s7, s6, %d\nv_add_u32 v7, s7, v6\ns_lshl_b32 s7, s6, 10\ns_add_u32 s7, s7, s71\ns_add_u32 m0, s7, %d\ns_add_u32 s6, s6, 1'%(16*3584,L_WA))
            A('global_load_lds_dwordx4 v7, %s %s'%(WG,cfg.ff))
            A('s_add_u32 m0, s7, %d\ns_cmp_eq_u32 s6, 8\ns_cselect_b32 s6, %d, s6'%(L_WA+32768,i0))
            A('global_load_lds_dwordx4 v7, %s %s'%(WU,cfg.ff))
    else:
        for k in range(cfg.E1,16): A(dma1(k))
    A('s_mov_b32 exec_lo, 0xff00ff00\ns_mov_b32 exec_hi, 0xff00ff00')
    for r in range(216,232): A('v_mov_b32 v%d, 0x3f803f80'%r)
    A('s_mov_b64 exec, -1')
    A('s_waitcnt vmcnt(0)')
    for t in range(4):
        for s_ in range(4):
            r=96+16*t+4*s_
            A('ds_read_b64_tr_b16 v[%d:%d], v8 offset:%d'%(r,r+1,2048*s_+16*t))
            A('ds_read_b64_tr_b16 v[%d:%d], v8 offset:%d'%(r+2,r+3,2048*s_+16*t+256))
        A('s_waitcnt lgkmcnt(0)')
    tstamp(2)
    hk={}
    for s_ in range(4):
        B='v[%d:%d]'%(216+4*s_,219+4*s_); hk[s_]=[]
        for t in (4,0,1,2,3):
            acc='v[%d:%d]'%(32+4*t,35+4*t)
            Aop=B if t==4 else 'v[%d:%d]'%(96+16*t+4*s_,99+16*t+4*s_)
            hk[s_].append('v_mfma_f32_16x16x32_bf16 %s, %s, %s, %s'%(acc,Aop,B,'0' if s_==0 else acc))
    ns_=cfg.f1s
    spoll(['global_load_dwordx4 v[%d:%d], v4, %s offset:%d sc1'%(216+4*t,219+4*t,WS,512*t) for t in range(4)],{i:(hk[i] if i<ns_ else []) for i in range(4)},
          pre='s_mov_b32 exec_lo, 0x00ff00ff\ns_mov_b32 exec_hi, 0x00ff00ff',post='s_mov_b64 exec, -1')
    stamp(11)
    for i in range(ns_,4): A('\n'.join(hk[i]))
    A('s_nop 3')
    for t in (4,0,1,2,3):
        A('ds_write_b128 v10, v[%d:%d] offset:%d'%(32+4*t,35+4*t,L_XN+1024*t))
    tstamp(5)
    A('s_waitcnt lgkmcnt(0)\ns_barrier')
    if cfg.tdiag: tstamp(6); A('s_waitcnt lgkmcnt(0)')
    for p in range(4): A('ds_read2_b32 v[%d:%d], v%d offset0:0 offset1:32'%(52+2*p,53+2*p,164+p))
    for p in range(4):
        A('ds_read2_b32 v[%d:%d], v%d offset0:0 offset1:32'%(60+2*p,61+2*p,160+p))
        A('ds_read2_b32 v[%d:%d], v%d offset0:128 offset1:160'%(68+2*p,69+2*p,160+p))
    A('s_waitcnt lgkmcnt(8)')
    A('v_pk_add_f32 v[52:53], v[52:53], v[54:55]\nv_pk_add_f32 v[56:57], v[56:57], v[58:59]\nv_pk_add_f32 v[52:53], v[52:53], v[56:57]')
    A('v_mul_f32 v53, 0xbb000000, v53\nv_mul_f32 v52, 0x3b000000, v52')
    A('v_fma_f32 v52, -v53, v53, v52\nv_cvt_pk_bf16_f32 v53, 0, v53\nv_max_f32 v52, 0, v52\nv_cvt_pk_bf16_f32 v52, 0, v52\nv_add_f32 v52, 0x3727c5ac, v52')
    A('v_cvt_pk_bf16_f32 v52, 0, v52\nv_sqrt_f32 v52, v52')
    A('s_waitcnt lgkmcnt(0)')
    A('v_pk_add_f32 v[60:61], v[60:61], v[62:63]\nv_cvt_pk_bf16_f32 v52, 0, v52\nv_pk_add_f32 v[64:65], v[64:65], v[66:67]\nv_rcp_f32 v52, v52')
    A('v_pk_add_f32 v[68:69], v[68:69], v[70:71]\nv_pk_add_f32 v[72:73], v[72:73], v[74:75]')
    A('v_pk_add_f32 v[60:61], v[60:61], v[64:65]\nv_pk_add_f32 v[68:69], v[68:69], v[72:73]')
    A('v_fmac_f32 v60, v53, v61\nv_fmac_f32 v68, v53, v69\nv_mul_f32 v60, v60, v52\nv_mul_f32 v68, v68, v52')
    A('v_cvt_pk_bf16_f32 v32, 0, v60\nv_cvt_pk_bf16_f32 v36, 0, v68')
    A('v_mul_f32 v33, v32, v32\nv_mul_f32 v33, 0x3d372713, v33\nv_fma_f32 v33, v33, v32, v32')
    A('v_mul_f32 v33, 0xc0135761, v33\nv_exp_f32 v33, v33\ns_nop 0\nv_add_f32 v33, 1.0, v33\nv_rcp_f32 v33, v33\ns_nop 0\nv_mul_f32 v33, v33, v32')
    rbf(33)
    A('v_mul_f32 v33, v33, v36\nv_mov_b32 v34, v33\ns_nop 1\nv_permlane32_swap_b32 v33, v34')
    A('v_cvt_pk_bf16_f32 v33, v33, v34\nv_min_u32 v36, -2, v33')
    A('v_mov_b32 v32, v36\nv_mov_b32 v33, v36\ns_nop 0')
    A('v_mov_b32_dpp v32, v36 row_ror:8 row_mask:0xf bank_mask:0xc\nv_mov_b32_dpp v33, v36 row_ror:8 row_mask:0xf bank_mask:0x3')
    A('v_mov_b32 v34, v32\nv_mov_b32 v35, v33\ns_nop 0')
    A('v_permlane16_swap_b32 v32, v34\nv_permlane16_swap_b32 v33, v35')
    if cfg.nA<8: A('s_and_b32 exec_lo, s4, 0x%x\ns_mov_b32 exec_hi, 0'%((1<<(8*cfg.nA))-1))
    guarded('global_store_dwordx4 v27, v[32:35], %s %s'%(WS,cfg.sf))
    stamp(12)
    A('L_fin:')
    A('s_waitcnt vmcnt(0)')
    if cfg.diag:
        dump_stamps(14,8)
    A('s_endpgm')
    A('L_ffn2:')
    gate(cfg.G2)
    if cfg.lrot:
        n=14-cfg.E2
        A('s_and_b32 s6, s15, 3\ns_mul_i32 s6, s6, %d\ns_lshr_b32 s6, s6, 2\ns_add_u32 s6, s6, %d'%(n,cfg.E2))
        for _ in range(n):
            A('s_lshl_b32 s7, s6, 15\nv_add_u32 v7, s7, v6\ns_lshl_b32 s7, s6, 10\ns_add_u32 s7, s7, s71\ns_add_u32 m0, s7, %d\ns_add_u32 s6, s6, 1'%L_WA)
            A('global_load_lds_dwordx4 v7, %s %s'%(WD,cfg.ff))
            A('s_cmp_eq_u32 s6, 14\ns_cselect_b32 s6, %d, s6'%cfg.E2)
    else:
        for k in range(cfg.E2,14): A(dma2(k))
    A('s_waitcnt vmcnt(0)')
    for t in range(7):
        for tt in range(2):
            r=96+8*t+4*tt
            A('ds_read_b64_tr_b16 v[%d:%d], v8 offset:%d'%(r,r+1,2048*t+16*tt))
            A('ds_read_b64_tr_b16 v[%d:%d], v8 offset:%d'%(r+2,r+3,2048*t+16*tt+128))
        if t%2==0: A('s_waitcnt lgkmcnt(0)')
    tstamp(2)
    l=newlab('hp'); d=newlab('hd')
    A('s_mov_b32 s61, %d\n%s:\nglobal_load_dword v60, v29, %s sc1\ns_waitcnt vmcnt(0)\nv_cmp_eq_u32 vcc, -1, v60\ns_cbranch_vccz %s'%(cfg.spin,l,WS,d))
    A('s_sub_u32 s61, s61, 1\ns_cmp_lg_u32 s61, 0\ns_cbranch_scc1 %s\n%s:'%(l,d))
    A('v_and_b32 v61, s60, v60\nv_lshlrev_b32 v60, 16, v60')
    hk={}
    for t in range(7):
        hk[t]=[]
        for tt in range(2):
            acc='v[%d:%d]'%(64+4*tt,67+4*tt); r=96+8*t+4*tt
            hk[t].append('v_mfma_f32_16x16x32_bf16 %s, v[%d:%d], v[%d:%d], %s'%(acc,r,r+3,216+4*t,219+4*t,'0' if t==0 else acc))
    spoll(abl,hk)
    stamp(10)
    A('s_nop 3')
    A('ds_write_b128 v10, v[64:67] offset:%d'%L_DP)
    A('ds_write_b128 v10, v[68:71] offset:%d'%(L_DP+1024))
    A('s_waitcnt lgkmcnt(0)'); guarded('s_barrier')
    tstamp(6)
    A('s_cmp_lg_u32 s53, 0\ns_cbranch_scc1 L_fin')
    for w in range(4):
        A('ds_read_b64 v[%d:%d], v26 offset:%d'%(32+4*w,33+4*w,L_DP+2048*w))
        A('ds_read_b64 v[%d:%d], v26 offset:%d'%(34+4*w,35+4*w,L_DP+2048*w+640))
    A('s_waitcnt lgkmcnt(0)')
    for w in range(4): A('v_pk_add_f32 v[%d:%d], v[%d:%d], v[%d:%d]'%(32+4*w,33+4*w,32+4*w,33+4*w,34+4*w,35+4*w))
    A('v_pk_add_f32 v[32:33], v[32:33], v[36:37]\nv_pk_add_f32 v[40:41], v[40:41], v[44:45]\nv_pk_add_f32 v[32:33], v[32:33], v[40:41]')
    A('v_cvt_pk_bf16_f32 v32, 0, v32\nv_cvt_pk_bf16_f32 v33, 0, v33')
    A('v_pk_add_f32 v[32:33], v[32:33], v[60:61]')
    A('v_cvt_pk_bf16_f32 v32, v32, v33')
    if cfg.odiag: stamp(12)
    guarded('global_store_dword v28, v32, %s %s'%(OUT,cfg.of))
    if cfg.odiag: A('s_waitcnt vmcnt(0)')
    drychk()
    if cfg.diag:
        stamp(13)
        if cfg.leak is not None:
            a,b=cfg.leak
            A('s_waitcnt lgkmcnt(0)')
            if cfg.gleak is not None:
                A('v_mov_b32 v8, 0x3bf000\nglobal_load_dword v9, v8, %s sc1\nglobal_load_dword v10, v8, %s offset:256 sc1\ns_waitcnt vmcnt(0)'%(WS,WS))
                if b==14: A('v_not_b32 v9, v10\nv_mov_b32 v10, s%d'%(72+2*13))
                elif b==13: A('v_mov_b32 v10, s%d'%(72+2*13))
                else: A('v_not_b32 v10, v10')
                A('v_sub_u32 v9, v10, v9\ns_nop 1\nv_readfirstlane_b32 s54, v9')
                if b==0: A('s_mov_b32 s54, 0')
            elif a>=100:
                A('v_mov_b32 v8, %d\nds_read_b32 v9, v8 offset:%d\nds_read_b32 v10, v8 offset:%d\ns_waitcnt lgkmcnt(0)\nv_sub_u32 v9, v9, v10\ns_nop 1\nv_readfirstlane_b32 s54, v9'%(0,L_ST+4*(b-100),L_ST+4*(a-100)))
            elif b>=100:
                A('v_mov_b32 v8, %d\nds_read_b32 v9, v8 offset:%d\ns_waitcnt lgkmcnt(0)\nv_readfirstlane_b32 s54, v9\ns_sub_u32 s54, s54, s%d'%(4*(b-100),L_ST,72+2*a))
            else: A('s_sub_u32 s54, s%d, s%d'%(72+2*b,72+2*a))
            A('s_mul_i32 s54, s54, %d\ns_min_u32 s54, s54, 60000'%cfg.mult)
            A('L_leak:')
            A('s_memrealtime s[68:69]\ns_waitcnt lgkmcnt(0)\ns_sub_u32 s55, s68, s%d\ns_cmp_lt_u32 s55, s54\ns_cbranch_scc1 L_leak'%(72+2*13))
        else:
            A('s_waitcnt lgkmcnt(0)\ns_mov_b32 s100, s92\ns_mov_b32 s92, 0')
            dump_stamps(15,8)
    A('L_end:')
    A('s_endpgm')
    A('L_last:')
    A('.section .rodata,"a"\n.p2align 6\n.amdhsa_kernel %s'%K)
    A('  .amdhsa_next_free_vgpr 256\n  .amdhsa_next_free_sgpr 102\n  .amdhsa_accum_offset 256\n  .amdhsa_group_segment_fixed_size 0\n  .amdhsa_kernarg_size 96')
    A('  .amdhsa_user_sgpr_count 2\n  .amdhsa_user_sgpr_kernarg_segment_ptr 1\n  .amdhsa_system_sgpr_workgroup_id_x 1')
    A('  .amdhsa_float_denorm_mode_32 3\n  .amdhsa_float_denorm_mode_16_64 3')
    A('.end_amdhsa_kernel')
    return '\n'.join(L)+'\n'

if __name__=='__main__':
    cfg=Cfg()
    out=sys.argv[1]
    for a in sys.argv[2:]:
        k,v=a.split('=',1); setattr(cfg,k,eval(v))
    s=gen(cfg)
    hdr=''.join(l for l in open('cdna_kernels/%s.s.ref'%NAME).readlines()[:13])
    open(out,'w').write(hdr+s)
```

```python
import sys
NAME='sequential_preLN__gqa_block_cached__geglu_ffn__decode'
K=NAME+'_kernel'

class Cfg:
    diag=False
    leak=None
    nocomp=False
    noq=False
    T2=12
    cpf=True
    b3=8
    cf='sc1'; nclr=4; wide=None; wo0=True; wo1=False; e1now=True; fb=(11,4,24,2); early=None; qfull=False; qf=''; gmask=True; bA=(2,5,3); NV=4; bB=(1,2); bF=2
    f1s=1
    nb=1; gd=(40,2,3)
    G1=0; G2=0
    disp=4; LA=1; boost=(1,5,3); lf='sc1'; sf='sc1'
    skipG=False; skipF=False
    par=None
    NP=3
    HS=20736; AS=28672; wrot=False; pre=0; head=0
    upfront=False
    vdiag=None
    odiag=False
    touch=True
    sdiag=False
    mult=1
    Q1=0; Q2=0
    E1=4; E2=0; EW=8; lrot=True; helper=False
    T0=6; n0=40
    qflag=True
    chunk=0
    bare=0
    notail=False
    knat=False
    cdbg=False
    ctouch=None
    rot=4
    cs=9
    nowq=False
    noqst=False
    nH=8; nA=8
    pW=('c',1,0); pR=('m',8,1); pF=('c',1,0); pG=('c',1,0)
    tdiag=False
    tsleep=0
    crot=0
    noclr=False
    wolate=False
    warm=False
    of=''
    gleak=None
    NS=30
    sflag=False
    svcfirst=0
    spin=1<<17
    T=5
    kf='nt'; vf='nt'; wf='nt'; ff=''
    pq=5
    pw0=8
    pw1=22
    noW=False

QP=0x0
FLG=0x80000
CLR=0x200000
WP=0x200000
OP=0x280000
OPS=640
HB=0x340000
AB=0x360000
CTR=0x3A0000
RNK=0x3A8000
PRB=0x3C0000
STAMP=0x10000000
L_MLW=64
L_QL=256
L_XN=1280
XNS=1040
L_XO=9600
XOS=272
L_DP=11776
L_OW=19968
L_ST=28160
L_PR=28416
L_CNT=L_PR+1024
L_WA=30720
LDS_BYTES=L_WA+65536

LOG2E=0x3fb8aa3b
SCALE=0x3db504f3

def gen(cfg):
    L=[]
    def A(s):
        L.extend(s.split('\n'))
    lab=[0]
    def newlab(p):
        lab[0]+=1
        return 'L_%s_%d'%(p,lab[0])
    X,KP,VP,WQ,WO,BX,WG,WU,WD,OUT,DBG,WS=['s[%d:%d]'%(16+2*i,17+2*i) for i in range(12)]
    def stamp(i):
        if cfg.diag: A('s_memrealtime s[%d:%d]'%(72+2*i,73+2*i))
    def tstamp(i):
        if cfg.tdiag: stamp(i)
    def pack_stamps(n,vt):
        A('s_waitcnt lgkmcnt(0)')
        A('v_mov_b32 v%d, 0'%vt)
        for i in range(n): A('v_writelane_b32 v%d, s%d, %d'%(vt,72+2*i,i))
    def dump_stamps(n,vt):
        if not cfg.diag: return
        A('s_mov_b64 exec, -1')
        pack_stamps(n,vt)
        A('v_lshlrev_b32 v%d, 2, v0'%(vt+1))
        A('ds_read_b32 v%d, v%d offset:%d'%(vt+2,vt+1,L_ST))
        A('s_lshl_b32 s66, s2, 9\ns_add_u32 s66, s66, %d'%(STAMP))
        A('v_add_u32 v%d, s66, v%d'%(vt+1,vt+1))
        A('s_mov_b64 exec, 0xffff')
        A('s_waitcnt lgkmcnt(0)')
        A('global_store_dword v%d, v%d, %s'%(vt+1,vt+2,WS))
        A('s_lshl_b32 s66, s53, 6\nv_add_u32 v%d, s66, v%d'%(vt+1,vt+1))
        A('global_store_dword v%d, v%d, %s offset:64'%(vt+1,vt,WS))

    A('; @launch grid=(256,1,1) block=(512,1,1) lds=%d'%LDS_BYTES)
    A(""";
;            that fill before any use), data are written through with sc1 and polled with sc1 loads; all polls are bounded.
;""")
    A('.amdgcn_target "amdgcn-amd-amdhsa--gfx950"\n.text\n.globl %s\n.p2align 8\n.type %s,@function\n%s:'%(K,K,K))
    A('s_cmp_ge_u32 s2, 256\ns_cbranch_scc1 L_end')
    stamp(0)
    A('v_lshrrev_b32 v1, 6, v0')
    A('v_lshlrev_b32 v3, 2, v0')
    A('v_readfirstlane_b32 s52, v1')
    A('s_cmp_lt_u32 s52, 4\ns_cbranch_scc1 L_noz')
    A('v_mov_b32 v30, 0')
    A('ds_write_b32 v3, v30 offset:%d\nds_write_b32 v3, v30 offset:%d'%(L_PR-1024,L_PR))
    A('s_waitcnt lgkmcnt(0)')
    A('L_noz:')
    A('s_load_dwordx16 s[16:31], s[0:1], 0')
    A('s_load_dwordx8 s[32:39], s[0:1], 64')
    A('s_barrier')
    if cfg.diag:
        for i in range(1,14): A('s_mov_b32 s%d, 0'%(72+2*i))
    A('v_and_b32 v0, 63, v0')
    A('s_and_b32 s48, s2, 7\ns_lshr_b32 s49, s2, 3\ns_lshl_b32 s50, s49, 1\ns_bfe_u32 s54, s2, 0x10001\ns_or_b32 s50, s50, s54')
    A('s_and_b32 s51, s2, 1\ns_bfe_u32 s54, s2, 0x10002\ns_lshl_b32 s54, s54, 1\ns_or_b32 s51, s51, s54')
    A('s_mov_b32 s59, 0x%x\ns_mov_b32 s60, 0xffff0000'%(LOG2E))
    A('v_lshlrev_b32 v1, 4, v0')
    A('s_cmp_ge_u32 s52, 4\ns_cbranch_scc1 L_service')

    import math
    TH=math.ceil(cfg.T)
    NS=cfg.NS
    RB=64
    A('s_lshl_b32 s54, s50, 21')
    A('s_lshl_b32 s62, s51, 2\ns_add_u32 s62, s62, s52')
    for i in range(4): A('s_add_u32 s%d, s62, %d\ns_and_b32 s%d, s%d, 15\ns_lshl_b32 s%d, s%d, 12'%(8+i,cfg.rot*i,8+i,8+i,8+i,8+i))
    A('v_lshrrev_b32 v2, 4, v0\nv_lshlrev_b32 v2, 6, v2\nv_and_b32 v4, 3, v0\nv_lshl_add_u32 v2, v4, 4, v2')
    A('v_bfe_u32 v5, v0, 2, 2\nv_lshl_add_u32 v2, v5, 8, v2')
    if cfg.knat: A('v_mov_b32 v2, v1')
    A('s_mov_b32 s42, 0x200000\ns_mov_b32 s43, 0x20000\ns_mov_b32 s46, 0x200000\ns_mov_b32 s47, 0x20000')
    A('s_waitcnt lgkmcnt(0)')
    A('s_add_u32 s40, s18, s54\ns_addc_u32 s41, s19, 0\ns_and_b32 s41, s41, 0xffff')
    A('s_add_u32 s44, s20, s54\ns_addc_u32 s45, s21, 0\ns_and_b32 s45, s45, 0xffff')
    st={'n':0}
    def adv():
        if cfg.rot: A('s_add_u32 s68, s62, %d\ns_and_b32 s68, s68, 15\ns_andn2_b32 s62, s62, 15\ns_add_u32 s62, s62, 16\ns_or_b32 s62, s62, s68'%cfg.rot)
        else: A('s_add_u32 s62, s62, 16')
    def load(slot,j,throttle=True,th=None):
        if j==0: A('s_lshl_b32 s65, s62, 12')
        if throttle:
            t_=(th or cfg.T); lo=int(t_); fr=t_-lo
            w=lo+(1 if (int((j+1)*fr+1e-9)>int(j*fr+1e-9)) else 0)
            A('s_waitcnt vmcnt(%d)'%(w-1))
        r=RB+slot*32+j*4
        t=j//4
        A('buffer_load_dwordx4 v[%d:%d], %s, %s, s65 offen offset:%d %s'%(r,r+3,'v2' if t==0 else 'v1','s[40:43]' if t==0 else 's[44:47]',(j%4)*1024,cfg.kf if t==0 else cfg.vf))
    def prog(val):
        A('v_mov_b32 v30, %s\nds_write_b32 v3, v30 offset:%d'%(val,L_PR))
    NK=NS//2
    assert NS%2==0 and NK>=10 and NK<=16
    slot_of={u:u-1 for u in range(7)}
    for u in range(7,NS): slot_of[u]=(u-1)%3
    slot_of[NS]=3
    FB=RB+5*32+12
    tr={'issued':0,'w':TH}
    def win(G):
        for a_,b_,w_ in (cfg.wide or []):
            if a_<=G<b_: return w_
        return TH
    def sload():
        n=tr['issued']; G=n//8; j=n%8
        tr['issued']=n+1
        if G==NS:
            tr['w']=win(G); load(slot_of[G],j,th=win(G)); return
        t=G//NK; k=2*(G%NK)+j//4
        if cfg.vdiag is not None and G==cfg.vdiag and j==0: stamp(6)
        if cfg.vdiag is not None and G==cfg.vdiag+1 and j==0: stamp(7)
        if j%4==0: A('s_add_u32 s65, s%d, %d'%(8+k%4,k*65536))
        w=cfg.T0 if (cfg.T0 and n<cfg.n0) else win(G)
        tr['w']=w
        if cfg.wo0:
            if 1<=G<9 and j==0: A('s_cmp_gt_u32 s13, %d\ns_cselect_b64 vcc, -1, 0'%G)
            if 1<=G<max(cfg.bA[1],cfg.bB[1])+cfg.bF:
                assert G<9
                l=newlab('bo'); A('s_waitcnt vmcnt(%d)\ns_cbranch_vccnz %s\ns_waitcnt vmcnt(%d)\n%s:'%(w-1+cfg.bA[2],l,w-1,l))
            elif cfg.fb and G>cfg.fb[0]:
                if j==0: A('s_waitcnt lgkmcnt(0)\nv_cmp_eq_u32 vcc, 1, v%d\nv_readfirstlane_b32 s14, v%d\nds_read_b32 v%d, v%d offset:%d'%(FB,FB,FB,FB+1,L_CNT+28))
                l=newlab('bo'); A('s_waitcnt vmcnt(%d)\ns_cbranch_vccnz %s\ns_waitcnt vmcnt(%d)'%(w-1+cfg.fb[3],l,w-1))
                if cfg.early and j%cfg.early[1]==0: A('s_cmp_eq_u32 s14, 0\ns_cbranch_scc1 %s\ns_waitcnt vmcnt(%d)'%(l,w-2))
                A('%s:'%l)
                tr['w']=w+cfg.fb[3]
            elif n>=w: A('s_waitcnt vmcnt(%d)'%(w-1))
        elif cfg.b3 and G==cfg.boost[1] and j==0:
            A('s_bfe_u32 s55, s49, 0x30001\ns_cmp_eq_u32 s55, 3\ns_cselect_b64 vcc, vcc, 0')
        if cfg.wo0: pass
        elif cfg.boost and cfg.boost[0]<=G<max(cfg.boost[1],cfg.b3):
            assert G<9 and (G<5 or w+cfg.boost[2]<=8)
            l=newlab('bo'); A('s_waitcnt vmcnt(%d)\ns_cbranch_vccnz %s\ns_waitcnt vmcnt(%d)\n%s:'%(w-1+cfg.boost[2],l,w-1,l))
        elif n>=w: A('s_waitcnt vmcnt(%d)'%(w-1))
        r=RB+slot_of[G]*32+j*4
        A('buffer_load_dwordx4 v[%d:%d], %s, %s, s65 offen offset:%d %s'%(r,r+3,'v2' if t==0 else 'v1','s[40:43]' if t==0 else 's[44:47]',(j%4)*1024,cfg.kf if t==0 else cfg.vf))
        if j==7 and n>=15: prog(G+1)
    def pro_issue(n0,n1):
        assert tr['issued']==n0
        for n in range(n0,n1): sload()
    if cfg.svcfirst: A('s_barrier')
    if cfg.sdiag: stamp(6)
    pro_issue(0,TH)
    if cfg.sdiag: stamp(7)
    if cfg.wo0:
        A('s_mov_b32 s13, %d\ns_lshr_b32 s55, s49, 2\ns_cmp_eq_u32 s55, 3\ns_cselect_b32 s13, %d, s13\ns_bfe_u32 s55, s49, 0x30001\ns_cmp_ge_u32 s49, 16\ns_cselect_b32 s14, %d, 0\ns_add_u32 s13, s13, s14'%(cfg.bA[0],cfg.bA[1],cfg.bF))
        A('s_and_b32 s55, s55, 3\ns_cmp_eq_u32 s55, 1\ns_cselect_b32 s14, %d, 1\ns_xor_b32 s55, s2, s49\ns_and_b32 s55, s55, 1\ns_cselect_b32 s13, s14, s13'%cfg.bB[1])
    elif cfg.boost: A('s_xor_b32 s55, s2, s49\ns_and_b32 s55, s55, 1\ns_cselect_b64 vcc, 0, -1')
    A('s_mov_b32 s56, 0x05040100\ns_mov_b32 s57, 0x07060302\ns_mov_b32 s58, 0x%x'%SCALE)
    A('s_lshl_b32 s54, s50, %d\ns_add_u32 s54, s54, %d\ns_add_u32 s66, s38, s54\ns_addc_u32 s67, s39, 0'%(cfg.cs,CTR))
    if cfg.cdbg: A('s_lshl_b32 s54, s50, 9\ns_add_u32 s54, s54, 4096\ns_add_u32 s66, s36, s54\ns_addc_u32 s67, s37, 0')
    A('s_lshl_b32 s55, s52, 11')
    A('v_lshlrev_b32 v4, 9, v4\nv_and_b32 v0, 0x30, v0\nv_add3_u32 v0, v4, v0, s55')
    A('v_mov_b32 v14, 0xff800000')
    if cfg.sdiag:
        stamp(9); A('s_waitcnt vmcnt(%d)'%(TH-1)); stamp(10)
    pro_issue(TH,56)
    stamp(1)
    if cfg.qflag:
        A('v_mov_b32 v31, 0\nL_qw:\nds_read_b32 v15, v31 offset:%d\ns_waitcnt lgkmcnt(0)\nv_readfirstlane_b32 s54, v15\ns_cmp_eq_u32 s54, 0\ns_cbranch_scc1 L_qw'%(L_CNT+16))
    else: A('s_barrier')
    A('ds_read_b128 v[4:7], v1 offset:%d'%L_QL)
    stamp(2)
    A('s_waitcnt lgkmcnt(0)')
    def kpart(slot,fill):
        B=RB+slot*32
        f=list(fill)
        def nxt():
            if f: f.pop(0)()
        D=[20,B,B+4,B+8]
        if cfg.nocomp:
            while f: nxt()
            return
        for i in range(4):
            A('v_mfma_f32_16x16x32_bf16 v[%d:%d], v[%d:%d], v[4:7], 0'%(D[i],D[i]+3,B+4*i,B+4*i+3))
        A('s_nop 7')
        for h in range(2):
            for step in range(3):
                for e in range(2):
                    be=2*e+h
                    S=18+e
                    A('v_add_f32_dpp v%d, v%d, v%d row_ror:%d row_mask:0xf bank_mask:0x%x'%(S,D[be]+((be+step+1)&3),(D[be]+be) if step==0 else S,12-4*step,1<<be))
                A('s_nop 0')
        nxt()
        A('s_nop 0')
        A('v_mov_b32_dpp v18, v19 quad_perm:[0,1,2,3] row_mask:0xf bank_mask:0xc')
        A('v_cvt_pk_bf16_f32 v18, 0, v18\nv_mul_f32 v18, s58, v18\nv_cvt_pk_bf16_f32 v18, 0, v18')
        A('v_max_f32 v15, v14, v18')
        A('s_nop 1\nv_max_f32_dpp v15, v15, v15 row_ror:4 row_mask:0xf bank_mask:0xf')
        A('s_nop 1\nv_max_f32_dpp v15, v15, v15 row_ror:8 row_mask:0xf bank_mask:0xf')
        A('v_mov_b32 v31, v15\ns_nop 1\nv_permlane16_swap_b32 v15, v31\nv_max_f32 v15, v15, v31')
        A('v_mov_b32 v31, v15\ns_nop 1\nv_permlane32_swap_b32 v15, v31\nv_max_f32 v15, v15, v31')
        nxt()
        A('v_sub_f32 v16, v14, v15\nv_sub_f32 v18, v18, v15\nv_cmp_neq_f32 vcc, v14, v15\nv_mul_f32 v16, s59, v16\nv_mul_f32 v18, s59, v18')
        A('v_exp_f32 v16, v16\nv_exp_f32 v18, v18\nv_mov_b32 v14, v15\nv_mul_f32 v17, s59, v15')
        A('v_mov_b32_dpp v19, v18 row_ror:12 row_mask:0xf bank_mask:0xf')
        A('v_cvt_pk_bf16_f32 v8, v18, v19')
        l=newlab('nr')
        A('s_cbranch_vccz %s'%l)
        for r in range(32,64,2):
            A('v_pk_mul_f32 v[%d:%d], v[%d:%d], v[16:17] op_sel_hi:[1,0]'%(r,r+1,r,r+1))
        A('v_mul_f32 v24, v24, v16')
        A('%s:'%l)
        A('s_nop 0')
        A('v_mov_b32_dpp v9, v8 row_ror:8 row_mask:0xf bank_mask:0xf')
        while f: nxt()
    def vpart(slot):
        B=RB+slot*32+16
        if cfg.nocomp: return
        def perms(j):
            Tt=10+2*(j&1)
            for ii in range(2):
                A('v_perm_b32 v%d, v%d, v%d, s%d'%(Tt+ii,B+4*(2*ii+1)+(j>>1),B+4*(2*ii)+(j>>1),56+(j&1)))
        perms(0)
        for j in range(8):
            if j<7: perms(j+1)
            else: A('v_mfma_f32_16x16x16_bf16 v[24:27], v[28:29], v[8:9], v[24:27]')
            Tt=10+2*(j&1)
            A('v_mfma_f32_16x16x16_bf16 v[%d:%d], v[%d:%d], v[8:9], v[%d:%d]'%(32+4*j,35+4*j,Tt,Tt+1,32+4*j,35+4*j))
    SC=[8,9,10,11,12,13,20,21,22,23,25,26,27,28,29,RB+5*32+14][:NK]
    RV=RB+5*32; TV=RV+4
    def need(n):
        rem=tr['issued']-n
        assert rem>=0
        if rem<tr['w']: A('s_waitcnt vmcnt(%d)'%rem)
    def spread(chunks,nl):
        m=len(chunks)
        for i,c in enumerate(chunks):
            if not cfg.nocomp: A(c)
            for _ in range((nl*(i+1))//m-(nl*i)//m): sload()
    def kgroup(G):
        B=RB+slot_of[G]*32
        Dr=[32+4*i for i in range(8)] if G else [20]+[32+4*i for i in range(7)]
        ch=['\n'.join('v_mfma_f32_16x16x32_bf16 v[%d:%d], v[%d:%d], v[4:7], 0'%(Dr[i],Dr[i]+3,B+4*i,B+4*i+3) for i in range(8))+'\ns_nop 1']
        for be in range(4):
            c=[]
            for step in range(3):
                for e in range(2):
                    D=Dr[2*be+e]; S=18+e
                    c.append('v_add_f32_dpp v%d, v%d, v%d row_ror:%d row_mask:0xf bank_mask:0x%x'%(S,D+((be+step+1)&3),(D+be) if step==0 else S,12-4*step,1<<be))
                c.append('s_nop 0')
            ch.append('\n'.join(c))
        ch[-1]+='\nv_cvt_pk_bf16_f32 v15, 0, v18\nv_cvt_pk_bf16_f32 v16, 0, v19\nv_mul_f32 v15, s58, v15\nv_mul_f32 v16, s58, v16'
        ch[-1]+='\nv_cvt_pk_bf16_f32 v%d, v15, v16\nv_cvt_pk_bf16_f32 v15, 0, v15\nv_cvt_pk_bf16_f32 v16, 0, v16\nv_max3_f32 v14, v14, v15, v16'%SC[G]
        return ch
    def wred(op,r):
        return ('s_nop 1\n%s_dpp v%d, v%d, v%d row_ror:4 row_mask:0xf bank_mask:0xf\ns_nop 1\n%s_dpp v%d, v%d, v%d row_ror:8 row_mask:0xf bank_mask:0xf\n'%(op,r,r,r,op,r,r,r)+
                'v_mov_b32 v31, v%d\ns_nop 1\nv_permlane16_swap_b32 v%d, v31\n%s v%d, v%d, v31\n'%(r,r,op,r,r)+
                'v_mov_b32 v31, v%d\ns_nop 1\nv_permlane32_swap_b32 v%d, v31\n%s v%d, v%d, v31'%(r,r,op,r,r))
    def softmax():
        ch=[wred('v_max_f32',14)+'\nv_mul_f32 v17, s59, v14\nv_mov_b32 v24, 0']
        for g in range(NK):
            ch.append('v_lshlrev_b32 v18, 16, v%d\nv_and_b32 v19, s60, v%d\nv_sub_f32 v18, v18, v14\nv_sub_f32 v19, v19, v14\nv_mul_f32 v18, s59, v18\nv_mul_f32 v19, s59, v19\n'%(SC[g],SC[g])+
                      'v_exp_f32 v18, v18\nv_exp_f32 v19, v19\ns_nop 0\nv_cvt_pk_bf16_f32 v%d, v18, v19\nv_add_f32 v24, v24, v18\nv_add_f32 v24, v24, v19'%SC[g])
        ch.append(wred('v_add_f32',24))
        return ch
    def vgroup(G):
        B=RB+slot_of[G]*32; P=SC[G-NK]
        def perms(j):
            Tt=TV+4*(j&1)
            return '\n'.join('v_perm_b32 v%d, v%d, v%d, s%d'%(Tt+ii,B+4*(2*ii+1)+(j>>1),B+4*(2*ii)+(j>>1),56+(j&1)) for ii in range(4))
        c0='v_mov_b32 v%d, v%d\n'%(RV,P)+'\n'.join('v_mov_b32_dpp v%d, v%d row_ror:%d row_mask:0xf bank_mask:0xf'%(RV+r,P,16-4*r) for r in range(1,4))+'\n'+perms(0)
        ch=[c0]
        for j in range(8):
            Tt=TV+4*(j&1); acc='v[%d:%d]'%(32+4*j,35+4*j)
            ch.append((perms(j+1) if j<7 else 's_nop 1')+'\nv_mfma_f32_16x16x32_bf16 %s, v[%d:%d], v[%d:%d], %s'%(acc,Tt,Tt+3,RV,RV+3,'0' if G==NK else acc))
        return ch
    def request():
        if not cfg.chunk:
            A('s_mov_b32 s63, 1\ns_atomic_add s63, s[66:67], 0x0 glc'); return
        la=newlab('ra'); lb=newlab('rb')
        A('s_cmp_eq_u32 s69, 0\ns_cbranch_scc1 %s'%la)
        A('s_mov_b32 s69, 0\ns_sub_u32 s63, s62, %d\ns_branch %s'%(NS*16,lb))
        A('%s:'%la)
        A('s_cmp_lt_u32 s62, %d\ns_cselect_b32 s69, 1, 0\ns_add_u32 s63, s69, 1\ns_atomic_add s63, s[66:67], 0x0 glc'%(512-cfg.chunk))
        A('%s:'%lb)
    for G in range(8):
        need(8*G+8)
        spread(kgroup(G),[0,4,4,3,4,3,3,3][G])
    assert tr['issued']==80
    A('v_mov_b32 v%d, 0\nv_mov_b32 v%d, 0'%(FB,FB+1))
    stamp(3)
    def get():
        lb=int(math.log2(cfg.disp)); l=newlab('gt'); d=newlab('gd')
        A('s_cmp_ge_u32 s62, 512\ns_cbranch_scc1 %s'%d)
        A('v_mov_b32 v31, 0\nv_mov_b32 v30, 1\ns_mov_b64 exec, 1\nds_add_rtn_u32 v30, v31, v30 offset:%d\ns_waitcnt lgkmcnt(0)'%(L_CNT+24))
        A('v_lshlrev_b32 v31, 2, v30')
        A('%s:\nds_read_b32 v30, v31 offset:%d\ns_waitcnt lgkmcnt(0)\nv_readfirstlane_b32 s63, v30\ns_cmp_eq_u32 s63, 0\ns_cbranch_scc1 %s'%(l,L_CNT+64,l))
        A('s_mov_b64 exec, -1')
        A('%s:'%d)
    for G in range(8,NS):
        if G==NS-2:
            stamp(4)
            if NS<32: A('s_mov_b32 s62, 0'); get(); A('s_mov_b32 s62, s63')
        need(8*G+8)
        ch=kgroup(G) if G<NK else vgroup(G)
        if G==NK: ch=softmax()+ch
        if G<NS-2: spread(ch,8)
        elif NS==32: spread(ch,0)
        elif G==NS-2: spread(ch,TH)
        else: spread(ch[:-1],8-TH); spread(ch[-1:],0)
    if NS==32: A('s_nop 0\ns_branch L_sdone')
    A('s_cmp_ge_u32 s62, 512\ns_cbranch_scc1 L_sdone')
    A('v_mov_b32 v28, 0x3f803f80\nv_mov_b32 v29, 0x3f803f80\nv_mov_b32 v25, 0\nv_mov_b32 v26, 0\nv_mov_b32 v27, 0')
    if cfg.disp: get(); A('s_mov_b32 s62, s63')
    else: A('s_waitcnt lgkmcnt(0)\ns_add_u32 s62, s63, %d'%(NS*16+1))
    A('s_mov_b32 s64, %d'%(NS+1))
    def body(c,th):
        if cfg.upfront:
            for j in range(8): load(1-c,j,th=th,throttle=(8+j>=th))
            if th>12: A('s_waitcnt vmcnt(12)')
            kpart(c,[])
            A('s_waitcnt vmcnt(8)')
            vpart(c)
            return
        for j in range(4): load(7-c,j,th=th)
        if th>8: A('s_waitcnt vmcnt(8)')
        kpart(c,[(lambda j=j: load(7-c,j,th=th)) for j in range(4,8)])
        if cfg.disp: get()
        if th>8: A('s_waitcnt vmcnt(8)')
        vpart(c)
    A('L_dyn:')
    for c in (3,4):
        ls=newlab('st'); lc=newlab('sc')
        if cfg.diag: A('s_add_u32 s64, s64, 1')
        if not cfg.disp:
            A('s_cmp_ge_u32 s62, 512\ns_cbranch_scc1 %s'%ls)
            request()
            A('%s:'%ls)
        body(c,cfg.T2 or cfg.T)
        A('s_cmp_ge_u32 s62, 512\ns_cbranch_scc1 L_sdone')
        if cfg.disp: A('s_mov_b32 s62, s63')
        else:
            A('s_waitcnt lgkmcnt(0)')
            A('s_add_u32 s62, s63, %d'%(NS*16+1))
    A('s_branch L_dyn')
    A('L_sdone:')
    A('s_mov_b32 exec_lo, 0x000f000f\ns_mov_b32 exec_hi, 0x000f000f')
    stamp(5)
    A('s_lshl_b32 s55, s52, 2\nv_and_b32 v31, 0x30, v1\nv_lshl_add_u32 v31, v31, 1, s55')
    for j in range(8):
        A('ds_write_b128 v0, v[%d:%d] offset:%d'%(32+4*j,35+4*j,L_OW+64*j))
    A('ds_write2_b32 v31, v17, v24 offset0:%d offset1:%d'%(L_MLW//4,L_MLW//4+4))
    if cfg.diag:
        A('s_mov_b64 exec, -1')
        A('s_cmp_lg_u32 s52, 0\ns_cbranch_scc1 L_nost')
        pack_stamps(11 if cfg.sdiag else 8,8)
        A('v_writelane_b32 v8, s64, 8')
        A('ds_write_b32 v3, v8 offset:%d'%L_ST)
        A('L_nost:')
    A('s_waitcnt lgkmcnt(0)')
    A('s_barrier')
    A('s_endpgm')

    A('L_service:')
    if cfg.bare:
        A('s_sub_u32 s53, s52, 4\nv_mov_b32 v11, 0\nv_mov_b32 v12, 1\nv_mov_b32 v40, -1\nv_mov_b32 v41, -1\nv_mov_b32 v42, -1\nv_mov_b32 v43, -1\ns_waitcnt lgkmcnt(0)')
        if cfg.bare&2:
            A('s_lshl_b32 s54, s2, 2\ns_add_u32 s54, s54, s53\ns_mul_i32 s54, s54, 640\ns_add_u32 s54, s54, %d\nv_add_u32 v6, s54, v1\ns_mov_b32 exec_hi, 0xff\nglobal_store_dwordx4 v6, v[40:43], %s sc1\ns_mov_b64 exec, -1'%(CLR+0x100000,WS))
        if cfg.bare&4:
            A('global_load_dwordx4 v[32:35], v1, %s'%X)
        if cfg.bare&8:
            A('v_mov_b32 v6, s2\ns_mov_b64 exec, 1\nglobal_store_byte v6, v12, %s sc1\ns_mov_b64 exec, -1'%DBG)
        A('ds_write_b32 v11, v12 offset:%d\ns_waitcnt lgkmcnt(0)\ns_barrier\ns_barrier'%(L_CNT+8))
        if cfg.bare&16:
            A('v_lshlrev_b32 v7, 2, v0\nglobal_load_dword v13, v7, %s sc1'%DBG)
        A('s_barrier\ns_endpgm')
    A('s_setprio 3')
    A('s_sub_u32 s53, s52, 4')
    A('s_lshl_b32 s66, s53, 12')
    A('s_mov_b32 s3, %d'%FLG)
    A('s_lshr_b32 s68, s49, 3\ns_and_b32 s69, s49, 7')
    A('v_lshrrev_b32 v2, 5, v0\ns_lshl_b32 s54, s53, 1\nv_add_u32 v2, s54, v2')
    A('v_and_b32 v3, 31, v0\nv_lshlrev_b32 v3, 4, v3')
    A('v_lshl_add_u32 v4, v2, 10, v3')
    A('s_xor_b32 s13, s2, s49\ns_and_b32 s13, s13, 1\ns_lshr_b32 s14, s49, 4\ns_bfe_u32 s15, s49, 0x30001')
    A('s_lshl_b32 s54, s53, 7\nv_lshrrev_b32 v14, 2, v0\nv_add_u32 v6, s54, v14\nv_lshlrev_b32 v6, 13, v6\nv_and_b32 v13, 0x30, v1')
    A('s_lshr_b32 s55, s49, 1\ns_lshl_b32 s55, s55, 6\ns_lshl_b32 s54, s48, 10\ns_add_u32 s54, s54, s55\nv_add3_u32 v6, v6, v13, s54')
    A('s_lshl_b32 s54, s48, 13\ns_add_u32 s54, s54, s55\nv_lshlrev_b32 v14, 10, v14\nv_add3_u32 v14, v14, v13, s54')
    A('v_and_b32 v7, 7, v0\nv_and_b32 v15, 0x30, v0\nv_lshlrev_b32 v77, 2, v7')
    A('s_and_b32 s14, s15, 1\ns_lshl_b32 s14, s14, 2')
    A('v_mov_b32 v40, -1\nv_mov_b32 v41, -1\nv_mov_b32 v42, -1\nv_mov_b32 v43, -1')
    A('s_lshl_b32 s71, s53, 13\ns_add_u32 m0, s71, %d'%L_WA)
    A('v_lshrrev_b32 v44, 1, v0\nv_lshlrev_b32 v44, 9, v44\nv_and_b32 v45, 16, v1\nv_add3_u32 v79, v44, v45, %s'%'s3')
    A('v_mov_b32 v44, 0\nv_mov_b32 v45, 0\nv_mov_b32 v46, 0\nv_mov_b32 v47, 0\nv_mov_b32 v11, 0\nv_mov_b32 v12, 1')
    A('s_lshl_b32 s12, s2, 2\ns_add_u32 s12, s12, s53')
    A('s_waitcnt lgkmcnt(0)')
    A('s_cmp_lg_u32 s13, 0\ns_cbranch_scc1 L_clr')
    A('global_load_dwordx4 v[32:35], v4, %s'%X)
    A('global_load_dwordx4 v[36:39], v4, %s offset:512'%X)
    for i in range(8):
        A('s_xor_b32 s54, s14, %d\ns_lshl_b32 s55, s54, 17\nv_add_u32 v13, s55, v6\ns_lshl_b32 s54, s54, 10\ns_add_u32 s54, s54, s71\ns_add_u32 m0, s54, %d\ns_nop 0'%(i,L_WA))
        A('global_load_lds_dwordx4 v13, %s %s'%(WQ,cfg.qf))
    A('s_branch L_clrd')
    A('L_clr:')
    if cfg.cpf:
        A('s_getpc_b64 s[6:7]\nL_pc:\ns_sub_u32 s6, s6, L_pc-%s\ns_subb_u32 s7, s7, 0'%K)
        A('s_lshr_b32 s54, s49, 1\ns_lshl_b32 s54, s54, 2\ns_add_u32 s54, s54, s53\ns_lshl_b32 s54, s54, 9\nv_lshl_add_u32 v48, v0, 3, s54\nv_min_u32 v48, L_last-%s-8, v48'%K)
        A('global_load_dwordx2 v[50:51], v48, s[6:7]')
    A('s_cmp_lg_u32 s53, 3\ns_cbranch_scc1 L_nolead\ns_cmp_ge_u32 s49, 2\ns_cbranch_scc1 L_nolead')
    A('s_lshl_b32 s54, s48, 13\ns_add_u32 s54, s54, 4096\nv_add_u32 v48, s54, v1\ns_lshl_b32 s54, s48, 11\nv_add_u32 v49, s54, v79\ns_lshl_b32 s54, s48, 2\nv_mov_b32 v52, s54')
    for i in range(8): A('global_store_dwordx4 v48, v[40:43], %s offset:%d sc1'%(WS,1024*i-4096))
    A('s_mov_b64 exec, 0xff\nglobal_store_dwordx4 v49, v[44:47], %s sc1\nglobal_store_dwordx4 v49, v[44:47], %s offset:256 sc1'%(WS,WS))
    A('s_waitcnt vmcnt(0)')
    A('s_mov_b64 exec, 1\nglobal_store_dword v52, v12, %s sc1\ns_mov_b64 exec, -1'%DBG)
    A('L_nolead:')
    A('s_lshr_b32 s54, s2, 1\ns_lshl_b32 s54, s54, 2\ns_add_u32 s54, s54, s53\ns_mul_i32 s54, s54, 3584\ns_add_u32 s54, s54, %d'%CLR)
    A('v_add_u32 v6, s54, v1')
    if cfg.nclr<4: A('s_cmp_lt_u32 s2, %d\ns_cbranch_scc1 L_skc'%(232 if cfg.nclr==0 else 256))
    for i in range(3): A('global_store_dwordx4 v6, v[40:43], %s offset:%d %s'%(WS,1024*i,cfg.cf))
    A('s_mov_b32 exec_hi, 0')
    A('global_store_dwordx4 v6, v[40:43], %s offset:3072 %s'%(WS,cfg.cf))
    if cfg.nclr<4: A('L_skc:')
    def wo_dma():
        A('s_lshl_b32 s54, s48, 2\ns_add_u32 s54, s54, s68\ns_lshl_b32 s54, s54, 7\ns_lshl_b32 s55, s53, 1\ns_add_u32 s54, s54, s55\ns_lshl_b32 s54, s54, 10\ns_and_b32 s55, s15, 3\ns_lshl_b32 s55, s55, 8\ns_add_u32 s54, s54, s55')
        A('v_lshrrev_b32 v48, 4, v0\nv_lshlrev_b32 v48, 13, v48\nv_and_b32 v49, 15, v0\nv_lshl_add_u32 v48, v49, 4, v48\nv_add_u32 v48, s54, v48')
        for i in range(8):
            A('v_add_u32 v49, %d, v48\ns_add_u32 m0, s71, %d\ns_nop 0\nglobal_load_lds_dwordx4 v49, %s %s'%((32*(i&3)+(i>>2))*1024,L_WA+i*1024,WO,cfg.wf))
    if cfg.wo0 and not cfg.wo1:
        A('s_mov_b64 exec, -1')
        if not cfg.noW: wo_dma()
    A('L_clrd:')
    A('s_mov_b64 exec, -1')
    A('s_and_b32 s54, s49, 3\ns_lshl_b32 s9, s54, 16\ns_lshr_b32 s54, s49, 2\ns_lshl_b32 s54, s54, 10\ns_add_u32 s9, s9, s54\ns_lshl_b32 s54, s48, 7\ns_add_u32 s9, s9, s54\ns_add_u32 s9, s9, %d'%PRB)
    A('s_lshl_b32 s54, s53, 14\ns_add_u32 s54, s54, s9\nv_bfe_u32 v6, v0, 3, 1\nv_lshlrev_b32 v6, 13, v6\nv_and_b32 v13, 0x70, v1\nv_add3_u32 v6, v6, v13, s54')
    A('s_mov_b64 exec, 0xffff')
    A('s_cmp_ge_u32 s49, %d\ns_cbranch_scc1 L_nopl\ns_cmp_ge_u32 s53, %d\ns_cbranch_scc1 L_nopl'%(cfg.NV,cfg.NP))
    A('global_store_dwordx4 v6, v[40:43], %s sc1'%WS)
    A('L_nopl:')
    A('s_mov_b64 exec, -1')
    if cfg.svcfirst==2: A('s_barrier')
    A('v_mul_u32_u24 v5, %d, v2\nv_add_u32 v5, v5, v3'%XNS)
    A('v_lshrrev_b32 v8, 4, v0\nv_lshlrev_b32 v8, 9, v8\nv_bfe_u32 v9, v0, 2, 2\nv_lshl_add_u32 v8, v9, 6, v8\nv_and_b32 v9, 3, v0\nv_lshl_add_u32 v8, v9, 3, v8')
    A('v_add_u32 v8, s71, v8')
    A('v_mul_u32_u24 v9, %d, v7\nv_add_u32 v9, v9, v15\ns_lshl_b32 s54, s53, 8\nv_add_u32 v10, s54, v9'%XNS)
    A('s_lshl_b32 s54, s53, 8\nv_mov_b32 v31, s54')

    def dppadd(r,ctl):
        A('s_nop 1\nv_add_f32_dpp v%d, v%d, v%d %s row_mask:0xf bank_mask:0xf'%(r,r,r,ctl))
    def swapadd(r,t,w):
        A('v_mov_b32 v%d, v%d\ns_nop 1\nv_permlane%d_swap_b32 v%d, v%d\nv_add_f32 v%d, v%d, v%d'%(t,r,w,r,t,r,r,t))
    def rbf(r):
        A('v_cvt_pk_bf16_f32 v%d, 0, v%d'%(r,r))
    def layernorm(mode):
        if mode=='x':
            for i in range(8):
                A('v_lshlrev_b32 v%d, 16, v%d\nv_and_b32 v%d, s60, v%d'%(48+2*i,32+i,49+2*i,32+i))
        Q=lambda i:'v[%d:%d]'%(48+2*i,49+2*i)
        P=Q if mode=='x' else (lambda i:'v[%d:%d]'%(216+2*i,217+2*i))
        A('v_pk_add_f32 v[64:65], %s, %s\nv_pk_mul_f32 v[66:67], %s, %s'%(P(0),P(1),P(0),P(0)))
        A('v_pk_add_f32 v[68:69], %s, %s\nv_pk_mul_f32 v[70:71], %s, %s'%(P(2),P(3),P(1),P(1)))
        for i in range(2,8,2):
            if i>2: A('v_pk_add_f32 v[64:65], v[64:65], %s'%P(i))
            A('v_pk_fma_f32 v[66:67], %s, %s, v[66:67]'%(P(i),P(i)))
            if i>2: A('v_pk_add_f32 v[68:69], v[68:69], %s'%P(i+1))
            A('v_pk_fma_f32 v[70:71], %s, %s, v[70:71]'%(P(i+1),P(i+1)))
        A('v_pk_add_f32 v[64:65], v[64:65], v[68:69]\nv_pk_add_f32 v[66:67], v[66:67], v[70:71]')
        A('v_add_f32 v64, v64, v65\nv_add_f32 v66, v66, v67')
        ctl=['row_ror:1','row_ror:2','row_ror:4','row_ror:8'] if mode=='x' else ['quad_perm:[1,0,3,2]','quad_perm:[2,3,0,1]','row_ror:8']
        for c in ctl:
            A('s_nop 0')
            for r in (64,66): A('v_add_f32_dpp v%d, v%d, v%d %s row_mask:0xf bank_mask:0xf'%(r,r,r,c))
        for w in ((16,) if mode=='x' else (16,32)):
            A('v_mov_b32 v65, v64\nv_mov_b32 v67, v66\ns_nop 0')
            A('v_permlane%d_swap_b32 v64, v65\nv_permlane%d_swap_b32 v66, v67'%(w,w))
            A('v_add_f32 v64, v64, v65\nv_add_f32 v66, v66, v67')
        A('v_mul_f32 v64, 0xbb000000, v64\nv_mul_f32 v66, 0x3b000000, v66')
        A('v_cvt_pk_bf16_f32 v68, 0, v64')
        chain=['v_fma_f32 v66, -v64, v64, v66','v_max_f32 v66, 0, v66','v_cvt_pk_bf16_f32 v66, 0, v66','v_add_f32 v66, 0x3727c5ac, v66',
               'v_cvt_pk_bf16_f32 v66, 0, v66','v_sqrt_f32 v66, v66','v_cvt_pk_bf16_f32 v66, 0, v66','v_rcp_f32 v66, v66']
        for i in range(8):
            A(chain[i])
            A('v_pk_add_f32 %s, %s, v[68:69] op_sel_hi:[1,0]'%(Q(i),P(i)))
        for i in range(16): A('v_cvt_pk_bf16_f32 v%d, 0, v%d'%(48+i,48+i))
        nw=2 if mode=='h' else 4
        for i in range(8):
            A('v_pk_mul_f32 %s, %s, v[66:67] op_sel_hi:[1,0]'%(Q(i),Q(i)))
        for i in range(8):
            A('v_cvt_pk_bf16_f32 v%d, v%d, v%d'%(32+i,48+2*i,49+2*i))
            if mode=='h' and i%2==1: A('ds_write_b64 v5, v[%d:%d] offset:%d'%(31+i,32+i,L_XN+256*(i//2)))
            if mode=='x' and i%4==3: A('ds_write_b128 v5, v[%d:%d] offset:%d'%(29+i,32+i,L_XN+512*(i//4)))
    def lds_sync(cnt,sleep=0):
        l=newlab('ls')
        A('s_waitcnt lgkmcnt(0)')
        A('s_mov_b64 exec, 1\nds_add_u32 v11, v12 offset:%d\ns_mov_b64 exec, -1'%(L_CNT+4*cnt))
        lds_wait(11,L_CNT+4*cnt,4,sleep)
    def lds_wait(va,off,val,sleep):
        l=newlab('lw'); d=newlab('ld')
        A('%s:'%l)
        A('ds_read_b32 v13, v%d offset:%d\ns_waitcnt lgkmcnt(0)\nv_readfirstlane_b32 s54, v13\ns_cmp_ge_u32 s54, %s'%(va,off,val))
        if sleep: A('s_cbranch_scc1 %s\ns_sleep %d\ns_branch %s\n%s:'%(d,sleep,l,d))
        else: A('s_cbranch_scc0 %s'%l)
    def progress(p): lds_wait(31,L_PR,p,6)
    def poll(loads,regs,sleep=0,guard=False):
        l=newlab('pl'); d=newlab('pd')
        if guard: sleep=cfg.tsleep
        A('s_mov_b32 s61, %d'%cfg.spin)
        A('%s:'%l)
        for x in loads: A(x)
        import re as _re
        first=True; pend=[]
        for i,x in enumerate(loads):
            m=_re.search(r'v\[(\d+):(\d+)\]',x)
            pend+=list(range(int(m.group(1)),int(m.group(2))+1))
            last=(i==len(loads)-1)
            if len(pend)<4 and not last: continue
            A('s_waitcnt vmcnt(%d)'%(len(loads)-1-i))
            while pend:
                if first:
                    if len(pend)>=3: A('v_max3_u32 v13, v%d, v%d, v%d'%tuple(pend[:3])); pend=pend[3:]
                    else: A('v_max_u32 v13, v%d, v%d'%tuple(pend[:2])); pend=pend[2:]
                    first=False
                elif len(pend)>=2: A('v_max3_u32 v13, v13, v%d, v%d'%tuple(pend[:2])); pend=pend[2:]
                elif last: A('v_max_u32 v13, v13, v%d'%pend[0]); pend=[]
                else: break
        A('v_cmp_eq_u32 vcc, -1, v13')
        A('s_cbranch_vccz %s'%d)
        if sleep: A('s_sleep %d'%sleep)
        A('s_sub_u32 s61, s61, 1\ns_cmp_lg_u32 s61, 0\ns_cbranch_scc1 %s'%l)
        A('%s:'%d)
    def apoll(loads,par):
        import re as _re
        mode,D,sleep=par
        loads=[x.replace(' sc1',' '+cfg.lf) for x in loads]
        l=newlab('al'); d=newlab('ad'); gl=newlab('ag')
        rg=[]
        for x in loads:
            m=_re.search(r'v\[(\d+):(\d+)\]',x); rg.append(list(range(int(m.group(1)),int(m.group(2))+1)))
        def chain(t,r):
            r=list(r)
            if len(r)==2: A('v_max_u32 v%d, v%d, v%d'%(t,r[0],r[1])); return
            A('v_max3_u32 v%d, v%d, v%d, v%d'%(t,r[0],r[1],r[2])); r=r[3:]
            while r:
                if len(r)==1: A('v_max_u32 v%d, v%d, v%d'%(t,t,r[0])); r=[]
                else: A('v_max3_u32 v%d, v%d, v%d, v%d'%(t,t,r[0],r[1])); r=r[2:]
        n=len(loads)
        A('s_mov_b32 s61, %d'%cfg.spin)
        if mode in 'cm':
            A('%s:'%l)
            for x in loads: A(x)
            if sleep: A('s_sleep %d'%sleep)
            A('s_waitcnt vmcnt(%d)'%min(63,n*(D-1)))
            chain(13,sum(rg,[]))
            A('v_cmp_eq_u32 vcc, -1, v13')
            A('s_cbranch_vccz %s'%d)
            if mode=='m': A('s_mov_b64 exec, vcc')
            A('s_sub_u32 s61, s61, 1\ns_cmp_lg_u32 s61, 0\ns_cbranch_scc1 %s'%l)
            A('%s:'%d)
            if mode=='m': A('s_mov_b64 exec, s[4:5]')
        else:
            mk=['s[6:7]','s[8:9]','s[10:11]','s[40:41]','s[42:43]','s[44:45]','s[46:47]','s[62:63]'][:n]
            for m_ in mk: A('s_mov_b64 %s, s[4:5]'%m_)
            A('%s:'%l)
            for x,m_ in zip(loads,mk):
                sk=newlab('as')
                A('s_mov_b64 exec, %s\ns_cbranch_execz %s'%(m_,sk)); A(x); A('%s:'%sk)
            A('s_mov_b64 exec, s[4:5]')
            if sleep: A('s_sleep %d'%sleep)
            A('s_waitcnt vmcnt(%d)'%min(63,n*(D-1)))
            for i in range(n): chain(246+i,rg[i])
            chain(13,[246+i for i in range(n)])
            A('v_cmp_eq_u32 vcc, -1, v13')
            A('s_cbranch_vccz %s'%d)
            for i in range(n): A('v_cmp_eq_u32 %s, -1, v%d'%(mk[i],246+i))
            A('s_sub_u32 s61, s61, 1\ns_cmp_lg_u32 s61, 0\ns_cbranch_scc1 %s'%l)
            A('%s:'%d)
    def spoll(loads,hooks,pre=None,post=None):
        import re as _re
        l=newlab('sl'); d=newlab('sd')
        A('s_mov_b32 s61, %d'%cfg.spin)
        A('%s:'%l)
        if pre: A(pre)
        for x in loads: A(x)
        if post: A(post)
        first=True; pend=[]
        n=len(loads)
        for i,x in enumerate(loads):
            m=_re.search(r'v\[(\d+):(\d+)\]',x)
            pend+=list(range(int(m.group(1)),int(m.group(2))+1))
            if i<n-1 and i not in hooks: continue
            A('s_waitcnt vmcnt(%d)'%(n-1-i))
            chk=[]
            while pend:
                if first:
                    chk.append('v_max3_u32 v13, v%d, v%d, v%d'%tuple(pend[:3])); pend=pend[3:]; first=False
                elif len(pend)>=2: chk.append('v_max3_u32 v13, v13, v%d, v%d'%tuple(pend[:2])); pend=pend[2:]
                elif i==n-1: chk.append('v_max_u32 v13, v13, v%d'%pend[0]); pend=[]
                else: break
            if i==n-1: chk.append('v_cmp_eq_u32 vcc, -1, v13')
            h=list(hooks.get(i,[]))
            while h or chk:
                if h: A(h.pop(0))
                if chk: A(chk.pop(0))
        A('s_cbranch_vccz %s'%d)
        A('s_sub_u32 s61, s61, 1\ns_cmp_lg_u32 s61, 0\ns_cbranch_scc1 %s'%l)
        A('%s:'%d)
    def gate(n):
        if not n: return
        l=newlab('ga'); d=newlab('gb')
        A('s_mov_b32 s61, %d\n%s:\nglobal_load_dword v13, v14, %s sc1\ns_waitcnt vmcnt(0)\nv_cmp_ne_u32 vcc, -1, v13\ns_nop 1\ns_bcnt1_i32_b64 s6, vcc\ns_cmp_ge_u32 s6, %d\ns_cbranch_scc1 %s'%(cfg.spin,l,WS,n,d))
        A('s_sleep 2\ns_sub_u32 s61, s61, 1\ns_cmp_lg_u32 s61, 0\ns_cbranch_scc1 %s\n%s:'%(l,d))
    def flagpoll(voff,execmask,par=None):
        l=newlab('fl'); d=newlab('fd')
        A('s_mov_b32 s61, %d'%cfg.spin)
        A('s_mov_b64 exec, %s'%execmask)
        A('%s:'%l)
        A('global_load_dwordx4 v[72:75], v%d, %s sc1\ns_waitcnt vmcnt(0)'%(voff,WS))
        if par: A('v_min_u32 v13, v72, v74\nv_min_u32 v76, v73, v75\nv_cndmask_b32 v13, v13, v76, %s\nv_cmp_eq_u32 vcc, 0, v13\ns_cbranch_vccz %s'%(par,d))
        else: A('v_min3_u32 v13, v72, v73, v74\nv_min_u32 v13, v13, v75\nv_cmp_eq_u32 vcc, 0, v13\ns_cbranch_vccz %s'%d)
        A('s_sleep 16')
        A('s_sub_u32 s61, s61, 1\ns_cmp_lg_u32 s61, 0\ns_cbranch_scc1 %s'%l)
        A('%s:'%d)
        A('s_mov_b64 exec, -1')
    def CLASS():
        A('s_cmp_lg_u32 s53, 0\ns_cbranch_scc1 L_nofc')
        progress(cfg.pw0)
        A('s_mov_b32 s6, 0x00ff00ff\ns_mov_b32 s7, s6')
        flagpoll(79,'-1','s[6:7]')
        A('ds_write_b128 v1, v[72:75] offset:%d'%L_DP)
        A('v_add_u32 v7, 256, v79\ns_mov_b32 s6, %s\ns_mov_b32 s7, s6\ns_waitcnt lgkmcnt(0)'%('0x03030303' if cfg.NV==8 else '0x01010101'))
        flagpoll(7,'s[6:7]')
        A('s_and_b32 s54, s48, 3\ns_lshl_b32 s54, s54, 7\ns_lshl_b32 s55, s49, 2\ns_add_u32 s54, s54, s55\nv_mov_b32 v7, s54')
        A('s_mov_b32 s6, 0')
        for r in range(72,76):
            A('v_and_b32 v13, 2, v%d\nv_cmp_ne_u32 vcc, 0, v13\ns_nop 1\ns_bcnt1_i32_b64 s7, vcc\ns_add_u32 s6, s6, s7'%r)
        A('s_waitcnt lgkmcnt(0)\nds_read_b32 v13, v7 offset:%d\ns_waitcnt lgkmcnt(0)\nv_readfirstlane_b32 s7, v13'%L_DP)
        if cfg.wo0:
            A('s_and_b32 s54, s48, 3\ns_lshl_b32 s54, s54, 7\ns_andn2_b32 s55, 1, s48\ns_lshl_b32 s55, s55, 2\ns_add_u32 s54, s54, s55\nv_mov_b32 v7, s54')
            A('s_and_b32 s54, s50, 3\ns_lshl_b32 s54, s54, 7\ns_andn2_b32 s55, 1, s50\ns_lshl_b32 s55, s55, 2\ns_add_u32 s54, s54, s55\nv_mov_b32 v72, s54')
            A('ds_read_b32 v13, v7 offset:%d\nds_read_b32 v72, v72 offset:%d\ns_waitcnt lgkmcnt(0)\nv_readfirstlane_b32 s4, v13\nv_readfirstlane_b32 s5, v72'%(L_DP,L_DP))
            A('s_xor_b32 s4, s4, s48\ns_bfe_u32 s4, s4, 0x10002\ns_xor_b32 s5, s5, s50\ns_bfe_u32 s5, s5, 0x10002')
        if cfg.diag: A('s_mov_b32 s9, s6')
        A('s_cmp_ge_u32 s6, %d\ns_cselect_b32 s6, 1, 0'%(4*cfg.NV))
        if cfg.par is not None: A('s_mov_b32 s6, %d'%cfg.par)
        A('s_xor_b32 s7, s7, s48\ns_bfe_u32 s7, s7, 0x10002\ns_xor_b32 s7, s7, s6\ns_lshl_b32 s7, s7, 2\ns_lshl_b32 s6, s6, 1\ns_or_b32 s6, s6, s7\ns_or_b32 s6, s6, 1')
        if cfg.wo0: A('s_lshl_b32 s4, s4, 3\ns_lshl_b32 s5, s5, 4\ns_or_b32 s6, s6, s4\ns_or_b32 s6, s6, s5')
        A('v_mov_b32 v13, s6\nds_write_b32 v11, v13 offset:%d'%(L_CNT+8))
        if cfg.diag: A('s_cmp_lg_u32 s2, 0\ns_cbranch_scc1 L_nofc\nv_mov_b32 v13, s9\nv_mov_b32 v7, 32\nglobal_store_dword v7, v13, %s'%DBG)
        A('L_nofc:')
        lds_wait(11,L_CNT+8,1,6)
        A('s_bfe_u32 s11, s54, 0x10002\ns_bfe_u32 s62, s54, 0x10003\ns_bfe_u32 s63, s54, 0x10004\ns_bfe_u32 s54, s54, 0x10001\ns_xor_b32 s10, s10, s54\ns_xor_b32 s62, s62, s54\ns_xor_b32 s63, s63, s54')
    def tr128(dst,base):
        for s_ in range(4):
            A('ds_read_b64_tr_b16 v[%d:%d], v8 offset:%d'%(dst+4*s_,dst+4*s_+1,base+4096*s_))
            A('ds_read_b64_tr_b16 v[%d:%d], v8 offset:%d'%(dst+4*s_+2,dst+4*s_+3,base+4096*s_+512))

    A('v_mov_b32 v76, 0')
    A('s_cmp_lg_u32 s13, 0\ns_cbranch_scc1 L_noln')
    A('s_waitcnt vmcnt(8)')
    stamp(1)
    layernorm('x')
    A('L_noln:')
    A('s_waitcnt vmcnt(0)')
    lds_sync(0)
    stamp(2)
    A('s_lshl_b32 s54, s48, 2\ns_add_u32 s54, s54, s68\ns_lshl_b32 s54, s54, 9\ns_lshl_b32 s55, s69, 2\ns_add_u32 s54, s54, s55\ns_add_u32 s54, s54, s3\nv_mov_b32 v6, s54')
    A('s_getreg_b32 s10, hwreg(HW_REG_XCC_ID)\ns_bfe_u32 s10, s10, 0x10002')
    def gowait(tag):
        A('s_mov_b64 exec, 0xff\ns_waitcnt vmcnt(0)\nv_cmp_eq_u32 vcc, 0, v76\ns_cbranch_vccz L_god%s'%tag)
        A('s_mov_b32 s61, %d\nL_go%s:\ns_sleep 8\nglobal_load_dword v13, v77, %s sc1\ns_waitcnt vmcnt(0)\nv_cmp_eq_u32 vcc, 0, v13\ns_cbranch_vccz L_god%s'%(cfg.spin,tag,DBG,tag))
        A('s_sub_u32 s61, s61, 1\ns_cmp_lg_u32 s61, 0\ns_cbranch_scc1 L_go%s\nL_god%s:'%(tag,tag))
    A('s_cmp_lg_u32 s53, 3\ns_cbranch_scc1 L_noflag')
    A('s_mov_b64 exec, 0xff\nglobal_load_dword v76, v77, %s sc1\ns_mov_b64 exec, -1'%DBG)
    A('s_cmp_eq_u32 s13, 0\ns_cbranch_scc1 L_noflag')
    gowait('r')
    A('s_mov_b64 exec, 1\ns_lshl_b32 s54, s10, 2\ns_or_b32 s54, s54, 1\nv_mov_b32 v7, s54\nglobal_store_dword v6, v7, %s sc1'%WS)
    A('s_mov_b64 exec, -1')
    A('L_noflag:')
    if cfg.wo1:
        A('s_cmp_eq_u32 s13, 0\ns_cbranch_scc1 L_now1'); wo_dma(); A('L_now1:')
    A('s_cmp_lg_u32 s13, 0\ns_cbranch_scc1 L_noq')
    for t in range(2):
        for s_ in range(4):
            r=80+16*t+4*s_
            A('ds_read_b64_tr_b16 v[%d:%d], v8 offset:%d'%(r,r+1,L_WA+2048*s_+32*t))
            A('ds_read_b64_tr_b16 v[%d:%d], v8 offset:%d'%(r+2,r+3,L_WA+2048*s_+32*t+256))
            if t==0: A('ds_read_b128 v[%d:%d], v10 offset:%d'%(112+4*s_,115+4*s_,L_XN+64*s_))
        A('s_waitcnt lgkmcnt(0)')
    for s_ in range(4):
        for t in range(2):
            acc='v[%d:%d]'%(48+4*t,51+4*t); r=80+16*t+4*s_
            A('v_mfma_f32_16x16x32_bf16 %s, v[%d:%d], v[%d:%d], %s'%(acc,r,r+3,112+4*s_,115+4*s_,'0' if s_==0 else acc))
    A('s_lshl_b32 s54, s53, 11\nv_add_u32 v56, s54, v1\nv_and_b32 v57, 3, v0\nv_lshlrev_b32 v57, 9, v57\nv_bfe_u32 v58, v0, 2, 3\nv_lshl_add_u32 v57, v58, 4, v57\ns_nop 1')
    A('ds_write_b128 v56, v[48:51] offset:%d\nds_write_b128 v56, v[52:55] offset:%d'%(L_DP,L_DP+1024))
    lds_sync(8)
    A('s_cmp_lg_u32 s53, 3\ns_cbranch_scc1 L_noq')
    for p in range(4):
        A('ds_read_b128 v[%d:%d], v57 offset:%d\nds_read_b128 v[%d:%d], v57 offset:%d'%(80+8*p,83+8*p,L_DP+2048*p,84+8*p,87+8*p,L_DP+2048*p+256))
    A('s_waitcnt lgkmcnt(0)')
    for p in range(4):
        A('v_pk_add_f32 v[%d:%d], v[%d:%d], v[%d:%d]'%(80+2*p,81+2*p,80+2*p,81+2*p,88+2*p,89+2*p))
        A('v_pk_add_f32 v[%d:%d], v[%d:%d], v[%d:%d]'%(96+2*p,97+2*p,96+2*p,97+2*p,104+2*p,105+2*p))
    for p in range(4): A('v_pk_add_f32 v[%d:%d], v[%d:%d], v[%d:%d]'%(80+2*p,81+2*p,80+2*p,81+2*p,96+2*p,97+2*p))
    for p in range(4): A('v_cvt_pk_bf16_f32 v%d, v%d, v%d\nv_min_u32 v%d, -2, v%d'%(48+p,80+2*p,81+2*p,48+p,48+p))
    gowait('p')
    A('s_mov_b32 exec_lo, -1')
    A('global_store_dwordx4 v14, v[48:51], %s sc1'%WS)
    A('s_mov_b64 exec, -1')
    A('L_noq:')
    stamp(3)
    A('s_mov_b64 exec, 1\nds_add_u32 v11, v12 offset:%d\ns_mov_b64 exec, -1'%(L_CNT+12))
    A('s_cmp_eq_u32 s53, 0\ns_cbranch_scc1 L_qg\ns_cmp_lg_u32 s53, 1\ns_cbranch_scc1 L_qdone\ns_cmp_ge_u32 s49, %d\ns_cbranch_scc1 L_qdone'%cfg.NV)
    A('s_mov_b32 s6, 0')
    for i in range(cfg.NP):
        for c in ((0,1) if i%2==0 else (1,0)):
            l=newlab('pb'); d=newlab('pe')
            A('s_add_u32 s7, s9, %d\ns_mov_b32 s8, 0\ns_mov_b32 s61, 0\ns_load_dword s8, %s, s7'%(i*16384+c*8192,WS))
            A('%s:\ns_add_u32 s61, s61, 1\ns_cmp_gt_u32 s61, 0xffff\ns_cbranch_scc1 %s\ns_cmp_eq_u32 s8, 0\ns_cbranch_scc1 %s\n%s:\ns_waitcnt lgkmcnt(0)'%(l,d,l,d))
            if i>0: A('%s s6, s6, s61'%('s_add_i32' if c==0 else 's_sub_i32'))
    A('s_cmp_gt_i32 s6, 0\ns_cselect_b32 s6, 1, 0')
    A('s_xor_b32 s6, s6, s10\ns_lshl_b32 s6, s6, 1\ns_or_b32 s6, s6, 1\nv_mov_b32 v7, s6')
    lds_wait(11,L_CNT+12,4,2)
    A('s_mov_b64 exec, 1\nglobal_store_dword v6, v7, %s offset:256 sc1\ns_mov_b64 exec, -1\ns_branch L_qdone'%WS)
    A('L_qg:')
    A('v_and_b32 v6, 3, v0\nv_lshlrev_b32 v6, 8, v6\nv_lshrrev_b32 v14, 2, v0\nv_lshl_add_u32 v6, v14, 4, v6')
    A('s_and_b32 s54, s50, 7\ns_lshl_b32 s54, s54, 13\ns_lshr_b32 s55, s50, 3\ns_lshl_b32 s55, s55, 10\ns_add_u32 s54, s54, s55\nv_add_u32 v6, s54, v6')
    lds_wait(11,L_CNT+12,4,2)
    progress(cfg.pq)
    stamp(4)
    poll(['global_load_dwordx4 v[32:35], v6, %s sc1'%WS],None,sleep=8)
    A('ds_write_b128 v1, v[32:35] offset:%d'%L_QL)
    stamp(5)
    A('s_waitcnt lgkmcnt(0)')
    if cfg.qflag: A('ds_write_b32 v11, v12 offset:%d'%(L_CNT+16))
    A('L_qdone:')
    if cfg.touch:
        A('s_lshl_b32 s54, s50, 21\ns_load_dword s4, %s, s54'%VP)
        A('s_load_dword s6, %s, 0\ns_load_dword s7, %s, 0\ns_load_dword s8, %s, 0'%(WG,WU,WD))
        A('s_lshl_b32 s54, s48, 19\ns_load_dword s9, %s, s54'%WO)
        A('s_waitcnt lgkmcnt(0)')
    A('s_setprio 0')
    if not cfg.qflag: A('s_barrier')

    A('s_mov_b32 s70, 0\ns_and_b32 s54, s49, 0x13\ns_cmp_eq_u32 s54, s51\ns_cselect_b32 s70, 2, s70')
    A('s_cmp_lt_u32 s48, 4\ns_cselect_b32 s6, 16, 12\ns_cselect_b32 s7, 8, 6\ns_cselect_b32 s8, 0, 8\ns_mul_i32 s14, s48, s7\ns_add_u32 s14, s14, s8')
    if cfg.helper: A('s_and_b32 s54, s49, 0x13\ns_xor_b32 s54, s54, 2\ns_cmp_eq_u32 s54, s51\ns_cselect_b32 s9, s49, 99\ns_cmp_lt_u32 s9, s6\ns_cselect_b32 s70, 4, s70')
    A('s_sub_u32 s54, s49, 16\ns_cmp_lt_u32 s54, s6\ns_cselect_b32 s70, 1, s70')
    A('s_xor_b32 s55, s2, s49\ns_and_b32 s55, s55, 1\ns_cselect_b32 s70, 3, s70')
    A('s_bfe_u32 s54, s49, 0x30001\ns_add_u32 s14, s14, s54')
    A('s_lshr_b32 s15, s49, 2\ns_add_u32 s54, s48, %d\ns_and_b32 s54, s54, 7\ns_lshl_b32 s54, s54, 2\ns_add_u32 s15, s15, s54'%cfg.crot)
    if cfg.e1now:
        A('s_cmp_lg_u32 s70, 1\ns_cbranch_scc1 L_ne1')
        lds_wait(11,L_CNT+12,4,2)
        A('s_lshl_b32 s54, s14, 6')
        A('s_lshl_b32 s55, s53, 7\nv_lshrrev_b32 v6, 2, v0\nv_add_u32 v6, s55, v6\nv_mul_u32_u24 v6, 3584, v6\nv_and_b32 v7, 3, v0\nv_lshl_add_u32 v6, v7, 4, v6\nv_add_u32 v6, s54, v6')
        for k in range(cfg.E1):
            i=k//2
            A(('v_add_u32 v7, %d, v6\n'%(i*16*3584))+'s_add_u32 m0, s71, %d\ns_nop 0\nglobal_load_lds_dwordx4 v7, %s %s'%(L_WA+32768*(k&1)+i*1024,WU if k&1 else WG,cfg.ff))
        A('L_ne1:')
    CLASS()
    A('s_lshr_b32 s13, s2, 1\ns_andn2_b32 s13, s13, 2\ns_lshl_b32 s54, s11, 1\ns_or_b32 s13, s13, s54')
    A('s_and_b32 s54, s48, 3\ns_lshl_b32 s54, s54, 2\ns_add_u32 s67, s54, s68\ns_lshl_b32 s54, s11, 4\ns_add_u32 s67, s67, s54')
    if cfg.wo0: A('s_lshl_b32 s54, s48, 2\ns_add_u32 s67, s54, s68')
    A('s_bfe_u32 s69, s49, 0x20001')
    A('v_and_b32 v6, 3, v0\nv_lshlrev_b32 v6, 2, v6\nv_lshrrev_b32 v7, 4, v0\nv_add_u32 v6, v6, v7')
    A('v_bfe_u32 v7, v0, 2, 1')
    A('v_lshrrev_b32 v24, 3, v0\nv_lshlrev_b32 v24, 13, v24\nv_and_b32 v13, 7, v0\nv_lshl_add_u32 v24, v13, 3, v24')
    A('s_and_b32 s54, s13, 31\ns_lshl_b32 s54, s54, 8\ns_lshr_b32 s55, s13, 5\ns_lshl_b32 s55, s55, 6\ns_add_u32 s54, s54, s55\ns_add_u32 s54, s54, %d\nv_add_u32 v24, s54, v24\ns_mov_b32 s55, s13'%HB)
    A('v_lshlrev_b32 v6, 1, v6\nv_lshl_add_u32 v6, v7, 10, v6\ns_lshr_b32 s54, s55, 5\ns_lshl_b32 s54, s54, 11\ns_and_b32 s55, s55, 31\ns_lshl_b32 s55, s55, 5\ns_add_u32 s54, s54, s55\nv_add_u32 v6, s54, v6')
    A('global_load_ushort v16, v6, %s'%X)
    def paced(k,n,line):
        if cfg.nb:
            nb=min(cfg.nb,n); span=16//nb
            bi=lambda k:(k*nb)//n
            if k==0 or bi(k)!=bi(k-1):
                A('s_lshr_b32 s55, s49, 1\ns_and_b32 s55, s55, %d\ns_add_u32 s55, s55, %d'%(span-1,cfg.pw0+1+span*bi(k)))
                progress('s55')
            assert cfg.pw0+16<cfg.NS-1
            A(line); return
        f=lambda k: cfg.pw0+(k*(cfg.pw1-cfg.pw0))//n
        if k==0 or f(k)!=f(k-1): progress(f(k))
        assert f(k)<cfg.NS
        A(line)
    def dma1(k):
        i=k//2
        return ('v_add_u32 v7, %d, v6\n'%(i*16*3584))+'s_add_u32 m0, s71, %d\ns_nop 0\nglobal_load_lds_dwordx4 v7, %s %s'%(L_WA+32768*(k&1)+i*1024,WU if k&1 else WG,cfg.ff)
    def dma2(i):
        return ('v_add_u32 v7, %d, v6\n'%(i*0x8000))+'s_add_u32 m0, s71, %d\ns_nop 0\nglobal_load_lds_dwordx4 v7, %s %s'%(L_WA+i*1024,WD,cfg.ff)
    l1=newlab('w1'); l2=newlab('w2'); le=newlab('we')
    A('s_cmp_eq_u32 s70, 0\ns_cbranch_scc1 %s\ns_cmp_eq_u32 s70, 2\ns_cbranch_scc1 %s\ns_cmp_lg_u32 s70, 3\ns_cbranch_scc1 %s'%(le,l2,l1))
    A('s_lshl_b32 s54, s67, 7\ns_lshl_b32 s55, s53, 1\ns_add_u32 s54, s54, s55\ns_lshl_b32 s54, s54, 10\ns_lshl_b32 s55, s69, 8\ns_add_u32 s54, s54, s55')
    A('v_lshrrev_b32 v6, 4, v0\nv_lshlrev_b32 v6, 13, v6\nv_and_b32 v7, 15, v0\nv_lshl_add_u32 v6, v7, 4, v6\nv_add_u32 v6, s54, v6')
    A('s_lshl_b32 s71, s53, 13')
    def dmaw(i):
        return 'v_add_u32 v7, %d, v6\ns_add_u32 m0, s71, %d\ns_nop 0\nglobal_load_lds_dwordx4 v7, %s %s'%((32*(i&3)+(i>>2))*1024,L_WA+i*1024,WO,cfg.wf)
    for i in range(0 if (cfg.noW or cfg.wo0) else cfg.EW): paced(i,cfg.EW,dmaw(i))
    A('s_branch %s'%le)
    A('%s:'%l1)
    A('s_lshl_b32 s54, s14, 6')
    A('s_lshl_b32 s55, s53, 7\nv_lshrrev_b32 v6, 2, v0\nv_add_u32 v6, s55, v6\nv_mul_u32_u24 v6, 3584, v6\nv_and_b32 v7, 3, v0\nv_lshl_add_u32 v6, v7, 4, v6\nv_add_u32 v6, s54, v6')
    A('s_lshl_b32 s71, s53, 13')
    A('s_cmp_eq_u32 s70, 4\ns_cbranch_scc1 %s'%le)
    for k in range(0 if cfg.e1now else cfg.E1): paced(k,cfg.E1,dma1(k))
    A('s_branch %s'%le)
    A('%s:'%l2)
    A('s_mul_i32 s54, s53, 448\nv_lshrrev_b32 v6, 1, v0\nv_add_u32 v6, s54, v6\nv_lshlrev_b32 v6, 10, v6')
    A('v_and_b32 v7, 1, v0\nv_lshl_add_u32 v6, v7, 4, v6\ns_lshl_b32 s54, s15, 5\nv_add_u32 v6, s54, v6')
    A('s_mul_i32 s71, s53, 14336')
    for k in range(cfg.E2): paced(k,cfg.E2,dma2(k))
    A('%s:'%le)
    A('s_waitcnt vmcnt(0)')
    A('v_lshlrev_b32 v16, 16, v16')
    lds_sync(1,sleep=4)
    stamp(6)
    l1=newlab('r1'); l2=newlab('r2'); le=newlab('re')
    A('v_mov_b32 v26, 0\nv_mov_b32 v27, 0\nv_mov_b32 v28, 0\nv_mov_b32 v29, 0')
    A('s_cmp_eq_u32 s70, 1\ns_cbranch_scc1 %s\ns_cmp_eq_u32 s70, 2\ns_cbranch_scc1 %s'%(l1,l2))
    A('v_lshrrev_b32 v8, 4, v0\nv_lshlrev_b32 v8, 11, v8\nv_bfe_u32 v7, v0, 2, 2\nv_lshl_add_u32 v8, v7, 8, v8\nv_and_b32 v7, 3, v0\nv_lshl_add_u32 v8, v7, 3, v8')
    A('s_lshl_b32 s54, s53, 6\ns_add_u32 s54, s54, %d\nv_add_u32 v8, s54, v8'%L_WA)
    def trw():
        for t in range(2):
            for s_ in range(4):
                r=80+16*t+4*s_
                A('ds_read_b64_tr_b16 v[%d:%d], v8 offset:%d'%(r,r+1,8192*s_+32*t))
                A('ds_read_b64_tr_b16 v[%d:%d], v8 offset:%d'%(r+2,r+3,8192*s_+32*t+1024))
            if t==0 or cfg.EW==8: A('s_waitcnt lgkmcnt(0)')
    if cfg.EW==8: trw()
    A('s_branch %s'%le)
    A('%s:'%l1)
    A('v_lshrrev_b32 v8, 4, v0\nv_lshlrev_b32 v8, 9, v8\nv_bfe_u32 v7, v0, 2, 2\nv_lshl_add_u32 v8, v7, 6, v8')
    A('v_and_b32 v7, 1, v0\nv_lshl_add_u32 v8, v7, 3, v8\nv_bfe_u32 v7, v0, 1, 1\nv_lshl_add_u32 v8, v7, 15, v8\ns_add_u32 s54, s71, %d\nv_add_u32 v8, s54, v8'%L_WA)
    A('s_mul_i32 s55, s14, 147\ns_lshr_b32 s55, s55, 11\ns_mul_i32 s55, s55, %d'%(16384-7168))
    A('s_lshl_b32 s54, s14, 2\ns_add_u32 s54, s54, s53\ns_lshl_b32 s54, s54, 7\ns_add_u32 s54, s54, s55\ns_add_u32 s54, s54, %d'%AB)
    A('v_and_b32 v27, 0x70, v1\nv_lshrrev_b32 v7, 4, v0\nv_lshl_add_u32 v27, v7, 16, v27\nv_bfe_u32 v7, v0, 3, 1\nv_lshlrev_b32 v7, 13, v7\nv_add3_u32 v27, v27, v7, s54')
    A('s_and_b32 s55, s48, %d\ns_lshl_b32 s55, s55, 14\ns_lshl_b32 s54, s10, 13\ns_add_u32 s54, s54, s55\ns_lshl_b32 s55, s53, 11\ns_add_u32 s54, s54, s55\ns_add_u32 s54, s54, %d'%(cfg.nH//2-1,HB))
    A('v_and_b32 v4, 7, v0\nv_lshlrev_b32 v4, 5, v4\nv_lshrrev_b32 v7, 5, v0\nv_lshl_add_u32 v4, v7, 8, v4\nv_and_b32 v7, 16, v0\nv_add3_u32 v4, v4, v7, s54')
    A('s_mul_i32 s54, s53, 5120\nv_add_u32 v10, s54, v1')
    A('v_and_b32 v5, 0x17, v0\nv_lshlrev_b32 v5, 4, v5\nv_bfe_u32 v7, v0, 3, 1\nv_lshl_add_u32 v5, v7, 3, v5\nv_lshrrev_b32 v7, 5, v0\nv_lshl_add_u32 v5, v7, 2, v5\ns_lshl_b32 s54, s53, 10\nv_add_u32 v5, s54, v5')
    A('v_and_b32 v9, 7, v0\nv_lshlrev_b32 v9, 4, v9\nv_bfe_u32 v7, v0, 2, 1\nv_lshl_add_u32 v9, v7, 8, v9\nv_and_b32 v7, 3, v0\nv_lshl_add_u32 v9, v7, 2, v9')
    for p in range(4): A('v_add_u32 v%d, %d, v5\nv_add_u32 v%d, %d, v9'%(160+p,L_XN+5120*p,164+p,L_XN+5120*p+4096))
    A('s_branch %s'%le)
    A('%s:'%l2)
    A('v_lshrrev_b32 v8, 4, v0\nv_lshlrev_b32 v8, 9, v8\nv_bfe_u32 v7, v0, 1, 1\nv_lshl_add_u32 v8, v7, 8, v8\nv_bfe_u32 v7, v0, 2, 2\nv_lshl_add_u32 v8, v7, 5, v8')
    A('v_and_b32 v7, 1, v0\nv_lshl_add_u32 v8, v7, 3, v8\ns_add_u32 s55, s71, %d\nv_add_u32 v8, s55, v8'%L_WA)
    A('v_bfe_u32 v26, v0, 2, 1\nv_lshlrev_b32 v26, 10, v26\nv_bfe_u32 v7, v0, 1, 1\nv_lshl_add_u32 v26, v7, 8, v26\nv_lshrrev_b32 v7, 3, v0\nv_lshl_add_u32 v26, v7, 4, v26\nv_and_b32 v7, 1, v0\nv_lshl_add_u32 v26, v7, 3, v26')
    A('s_and_b32 s55, s48, %d\ns_lshl_b32 s55, s55, 16\ns_lshl_b32 s54, s53, 14\ns_add_u32 s54, s54, s55\ns_lshl_b32 s55, s10, 13\ns_add_u32 s54, s54, s55\ns_add_u32 s54, s54, %d\nv_add_u32 v27, s54, v1'%(cfg.nA//2-1,AB+3072))
    A('s_mov_b32 s54, s15\ns_lshl_b32 s55, s54, 5')
    A('v_lshrrev_b32 v28, 3, v0\nv_lshlrev_b32 v28, 10, v28\nv_and_b32 v7, 7, v0\nv_lshl_add_u32 v28, v7, 2, v28\nv_add_u32 v28, s55, v28')
    A('s_lshl_b32 s54, s54, 8\ns_and_b32 s55, s48, %d\ns_lshl_b32 s55, s55, 14\ns_add_u32 s54, s54, s55\ns_lshl_b32 s55, s10, 13\ns_add_u32 s54, s54, s55\ns_add_u32 s54, s54, %d'%(cfg.nH//2-1,HB))
    A('v_lshl_add_u32 v29, v0, 2, s54')
    A('s_lshl_b32 s54, s53, 11\nv_add_u32 v10, s54, v1')
    A('%s:'%le)
    A('s_lshl_b32 s54, s53, 9\nv_add_u32 v17, s54, v3')
    A('s_and_b32 s54, s50, 3\ns_lshl_b32 s54, s54, 2\ns_add_u32 s54, s54, s53\ns_mul_i32 s54, s54, 49152\n%s\ns_lshl_b32 s55, s55, 13\ns_add_u32 s54, s54, s55'%('s_mov_b32 s55, s63' if cfg.wo0 else 's_bfe_u32 s55, s50, 0x10002'))
    A('s_lshr_b32 s6, s50, 3\ns_mul_i32 s7, s6, 11\ns_lshr_b32 s7, s7, 5\ns_mul_i32 s7, s7, %d\ns_lshl_b32 s6, s6, 2\ns_add_u32 s6, s6, s51\ns_mul_i32 s6, s6, %d'%(16384-12*OPS,OPS))
    A('s_add_u32 s54, s54, s6\ns_add_u32 s54, s54, s7\ns_add_u32 s54, s54, %d\nv_add_u32 v18, s54, v1'%OP)
    A('s_and_b32 s54, s67, 15\ns_mul_i32 s54, s54, 49152\ns_lshl_b32 s55, %s, 13\ns_add_u32 s54, s54, s55\ns_add_u32 s54, s54, %d'%('s62' if cfg.wo0 else 's11',OP))
    A('v_mul_u32_u24 v7, 11, v2\nv_lshrrev_b32 v7, 5, v7\nv_mul_u32_u24 v7, %d, v7\nv_mul_u32_u24 v25, %d, v2\nv_add3_u32 v25, v25, v7, s54\nv_add_u32 v19, v25, v3'%(16384-12*OPS,4*OPS))
    if cfg.G1 or cfg.G2:
        A('v_bfe_u32 v14, v0, 2, 3\nv_mul_u32_u24 v7, 11, v14\nv_lshrrev_b32 v7, 5, v7\nv_mul_u32_u24 v7, %d, v7\nv_and_b32 v14, 31, v0\nv_mul_u32_u24 v14, %d, v14\nv_add_u32 v14, v14, v7'%(16384-12*OPS,OPS))
        A('v_lshrrev_b32 v7, 5, v0\nv_add_u32 v7, s48, v7\nv_and_b32 v7, 3, v7\nv_mul_u32_u24 v7, %d, v7\ns_lshl_b32 s54, s10, 13\ns_add_u32 s54, s54, %d\nv_add3_u32 v14, v14, v7, s54'%(4*49152,OP+512))
    A('s_lshl_b32 s54, s53, 5\nv_mov_b32 v30, s54')
    A('v_mul_u32_u24 v20, %d, v2\nv_lshrrev_b32 v7, 1, v3\nv_add_u32 v20, v20, v7'%XOS)
    A('v_and_b32 v21, 7, v0\nv_mul_u32_u24 v21, %d, v21\nv_add_u32 v21, v21, v15'%XOS)
    A('s_lshl_b32 s54, s69, 2\ns_add_u32 s54, s54, s53\ns_lshl_b32 s54, s54, 13\ns_add_u32 s54, s54, %d'%(WP+2048))
    A('s_lshl_b32 s55, s69, 1\ns_add_u32 s55, s55, s67' if cfg.wrot else 's_mov_b32 s55, s67')
    A('v_bfe_u32 v22, v0, 1, 2')
    A('v_lshl_add_u32 v7, v22, 3, s55' if cfg.wrot else 'v_mov_b32 v7, s55')
    A('v_and_b32 v7, 31, v7\nv_lshlrev_b32 v22, 17, v22\nv_lshl_add_u32 v22, v7, 7, v22\nv_and_b32 v7, 1, v0\nv_lshl_add_u32 v22, v7, 6, v22\nv_add3_u32 v22, v22, v15, s54')
    A('s_lshl_b32 s54, s13, 12\ns_add_u32 s54, s54, %d\nv_add_u32 v23, s54, v1'%WP)
    def guarded(lines):
        A(lines)
    def drychk():
        pass
    for r in range(192,246): A('v_mov_b32 v%d, -1'%r)
    A('s_waitcnt lgkmcnt(0)')
    A('s_mov_b64 vcc, 0\ns_mov_b64 s[4:5], %d\ns_mov_b64 exec, s[4:5]'%(0 if cfg.warm else -1))
    wpl=['global_load_dwordx4 v[%d:%d], v23, %s offset:%d sc1'%(216+4*t,219+4*t,WS,1024*t) for t in range(4)]
    opl=['global_load_dwordx2 v[%d:%d], v25, %s offset:%d sc1'%(208+2*s_,209+2*s_,WS,OPS*s_+512) for s_ in range(4)]+['global_load_dwordx4 v[%d:%d], v19, %s offset:%d sc1'%(192+4*s_,195+4*s_,WS,OPS*s_) for s_ in range(4)]
    hbl=['global_load_dwordx4 v[%d:%d], v4, %s offset:%d sc1'%(216+4*t,219+4*t,WS,1024*t) for t in range(4)]
    abl=['global_load_dwordx4 v[%d:%d], v27, %s offset:%d sc1'%(216+4*t,219+4*t,WS,1024*t-3072) for t in range(7)]
    if cfg.pre:
        A('s_cmp_lg_u32 s70, 3\ns_cbranch_scc1 L_pre1')
        if cfg.pre&2: A('\n'.join(opl))
        A('s_cmp_lg_u32 s53, 0\ns_cbranch_scc1 L_pre3')
        if cfg.pre&1: A('\n'.join(wpl))
        A('s_branch L_pre3\nL_pre1:')
        if cfg.pre&4:
            A('s_cmp_lg_u32 s70, 1\ns_cbranch_scc1 L_pre2'); A('\n'.join(hbl)); A('L_pre2:\ns_cmp_lg_u32 s70, 2\ns_cbranch_scc1 L_pre3'); A('\n'.join(abl))
        A('L_pre3:')
    if cfg.fb:
        p0,stp,late,up=cfg.fb
        A('s_cmp_lg_u32 s53, 1\ns_cbranch_scc1 L_nofb')
        A('s_and_b32 s54, s49, 7\ns_lshl_b32 s54, s54, 9\ns_add_u32 s54, s54, %d\ns_add_u32 s40, s38, s54\ns_addc_u32 s41, s39, 0\ns_mov_b32 s42, %d\ns_mov_b32 s44, 0'%(RNK,p0))
        A('L_fb:')
        lds_wait(31,L_PR,'s42',2)
        A('s_mov_b32 s43, 1\ns_atomic_add s43, s[40:41], s44 glc\ns_waitcnt lgkmcnt(0)\ns_add_u32 s43, s43, 1\ns_cmp_lt_u32 s43, %d\ns_cselect_b32 s45, 2, 0\ns_cmp_ge_u32 s43, %d\ns_cselect_b32 s43, 1, s45\nv_mov_b32 v13, s43\nds_write_b32 v11, v13 offset:%d'%(cfg.early[0] if cfg.early else 0,late,L_CNT+28))
        A('s_add_u32 s44, s44, 4096\ns_add_u32 s42, s42, %d\ns_cmp_lt_u32 s42, %d\ns_cbranch_scc1 L_fb\ns_waitcnt lgkmcnt(0)'%(stp,cfg.NS-2))
        assert (cfg.NS-p0)//stp+1<=20
        A('L_nofb:')
    if cfg.disp and cfg.NS<32:
        A('s_cmp_lg_u32 s53, 2\ns_cbranch_scc1 L_tail')
        A('s_lshl_b32 s54, s50, %d\ns_add_u32 s54, s54, %d\ns_add_u32 s40, s38, s54\ns_addc_u32 s41, s39, 0'%(cfg.cs,CTR))
        lds_wait(31,L_PR,cfg.NS-1,2)
        thr,small,keep2=cfg.gd or (0,cfg.disp,cfg.disp-cfg.LA)
        A('s_mov_b32 s42, 0\ns_mov_b32 s44, %d\ns_mov_b32 s45, %d'%(cfg.disp,cfg.disp-cfg.LA))
        A('L_dsp:')
        A('s_mov_b32 s43, s44\ns_atomic_add s43, s[40:41], 0x0 glc\nv_add_lshl_u32 v7, v0, s42, 2\ns_bfm_b64 s[46:47], s44, 0\ns_waitcnt lgkmcnt(0)\ns_add_u32 s43, s43, 1\ns_min_u32 s43, s43, 4096\ns_add_u32 s43, s43, %d\nv_add_u32 v13, s43, v0'%(cfg.NS*16))
        A('s_add_u32 s55, s43, s44\ns_cmp_ge_u32 s55, 512\ns_cbranch_scc1 L_dspd')
        A('s_mov_b64 exec, s[46:47]\nds_write_b32 v7, v13 offset:%d\ns_mov_b64 exec, -1'%(L_CNT+64))
        A('s_add_u32 s42, s42, s44\ns_cmp_ge_u32 s43, %d\ns_cselect_b32 s44, %d, s44\ns_cselect_b32 s45, %d, s45\ns_sub_i32 s55, s42, s45\ns_max_i32 s55, s55, 0'%(512-thr,small,keep2))
        lds_wait(11,L_CNT+24,'s55',1)
        A('s_branch L_dsp')
        A('L_dspd:')
        A('s_mov_b64 exec, 0xff\nds_write_b32 v7, v13 offset:%d\ns_mov_b64 exec, -1'%(L_CNT+64))
        A('s_waitcnt lgkmcnt(0)')
    A('L_tail:')
    stamp(7)
    guarded('s_barrier')
    def wstep(b0,s0,w):
        o=[]
        for half in range(2):
            d='v[%d:%d]'%(b0+2*half,b0+2*half+1); src='v[%d:%d]'%(s0+4*w+2*half,s0+4*w+2*half+1); f='v[%d:%d]'%(72+2*(w//2),73+2*(w//2))
            if w==0: o.append('v_pk_mul_f32 %s, %s, %s op_sel_hi:[1,0]'%(d,src,f))
            elif w%2==0: o.append('v_pk_fma_f32 %s, %s, %s, %s op_sel_hi:[1,0,1]'%(d,src,f,d))
            else: o.append('v_pk_fma_f32 %s, %s, %s, %s op_sel:[0,1,0] op_sel_hi:[1,1,1]'%(d,src,f,d))
        return o
    def wsum2(b0,s0):
        for w in range(4): A('\n'.join(wstep(b0,s0,w)))
    def wsum(b0,half,s0=None):
        d='v[%d:%d]'%(b0+2*half,b0+2*half+1)
        s0=s0 or b0
        for w in range(4):
            src='v[%d:%d]'%(s0+4*w+2*half,s0+4*w+2*half+1)
            f='v[%d:%d]'%(72+2*(w//2),73+2*(w//2))
            if w==0: A('v_pk_mul_f32 %s, %s, %s op_sel_hi:[1,0]'%(d,src,f))
            elif w%2==0: A('v_pk_fma_f32 %s, %s, %s, %s op_sel_hi:[1,0,1]'%(d,src,f,d))
            else: A('v_pk_fma_f32 %s, %s, %s, %s op_sel:[0,1,0] op_sel_hi:[1,1,1]'%(d,src,f,d))
    if cfg.gleak is not None:
        k,lo,hi,msk=cfg.gleak
        A('s_cbranch_execz L_nogl\ns_cmp_lg_u32 s53, 0\ns_cbranch_scc1 L_nogl')
        if k==8: stamp(8); A('s_waitcnt lgkmcnt(0)')
        if k==200: A('s_getreg_b32 s72, hwreg(HW_REG_XCC_ID)\ns_sub_u32 s72, s72, s48\ns_and_b32 s72, s72, 7\ns_mul_i32 s72, s72, 50\nv_mov_b32 v33, s72')
        elif k>=100: A('v_mov_b32 v32, %d\nds_read_b32 v33, v32 offset:%d\ns_waitcnt lgkmcnt(0)'%(4*(k-100),L_ST))
        else: A('v_mov_b32 v33, s%d'%(72+2*k))
        A('v_not_b32 v33, v33\nv_mov_b32 v34, s72\nv_mov_b32 v32, 0x3bf000')
        A('s_mov_b64 exec, 1')
        if k!=8: A('global_atomic_umin v32, v34, %s'%WS)
        A('s_and_b32 s54, s2, %d\ns_sub_u32 s54, s54, %d\ns_cmp_ge_u32 s54, %d\ns_cbranch_scc1 L_nogl2'%(msk,lo,hi-lo))
        A('global_atomic_umin v32, v33, %s offset:256'%WS)
        A('L_nogl2:\ns_mov_b64 exec, -1\n'+('s_nop 2' if k==8 else 's_waitcnt vmcnt(0)'))
        A('L_nogl:')
    A('ds_read_b128 v[64:67], v30 offset:%d\nds_read_b128 v[68:71], v30 offset:%d'%(L_MLW,L_MLW+16))
    for w in range(4):
        A('ds_read_b128 v[%d:%d], v17 offset:%d'%(32+4*w,35+4*w,L_OW+2048*w))
    stamp(8)
    if cfg.notail: A('s_branch L_fin')
    A('s_and_b32 exec_hi, s4, 1')
    A('s_waitcnt lgkmcnt(%d)'%(0 if cfg.diag else 4))
    A('v_max3_f32 v76, v64, v65, v66\nv_max_f32 v76, v76, v67')
    A('v_pk_add_f32 v[72:73], v[64:65], v[76:77] op_sel_hi:[1,0] neg_lo:[0,1] neg_hi:[0,1]')
    A('v_pk_add_f32 v[74:75], v[66:67], v[76:77] op_sel_hi:[1,0] neg_lo:[0,1] neg_hi:[0,1]')
    for i in range(4): A('v_exp_f32 v%d, v%d'%(72+i,72+i))
    A('v_pk_mul_f32 v[68:69], v[68:69], v[72:73]\nv_pk_fma_f32 v[68:69], v[70:71], v[74:75], v[68:69]')
    A('s_waitcnt lgkmcnt(0)')
    A('v_add_f32 v77, v68, v69')
    wsum2(32,32)
    A('s_nop 0')
    A('v_mov_b32_dpp v32, v76 quad_perm:[0,1,2,3] row_mask:0x4 bank_mask:0xf')
    A('v_mov_b32_dpp v33, v77 quad_perm:[0,1,2,3] row_mask:0x4 bank_mask:0xf')
    guarded('global_store_dwordx4 v18, v[32:35], %s %s'%(WS,cfg.sf))
    tstamp(1)
    A('s_mov_b64 exec, s[4:5]')
    A('s_cmp_lg_u32 s70, 3\ns_cbranch_scc1 L_rdone')
    if cfg.EW<8:
        for i in range(cfg.EW,8): A(dmaw(i))
        A('s_waitcnt vmcnt(0)\ns_barrier')
        trw()
    wts=['v_max3_f32 v76, v208, v210, v212','v_max_f32 v76, v76, v214']+['v_sub_f32 v%d, v%d, v76'%(72+i,208+2*i) for i in range(4)]+['v_exp_f32 v%d, v%d'%(72+i,72+i) for i in range(4)]
    wts+=['v_mul_f32 v78, v72, v209']+['v_fmac_f32 v78, v%d, v%d'%(72+i,209+2*i) for i in range(1,4)]+['v_rcp_f32 v78, v78','s_nop 0']
    wts+=['v_pk_mul_f32 v[72:73], v[72:73], v[78:79] op_sel_hi:[1,0]','v_pk_mul_f32 v[74:75], v[74:75], v[78:79] op_sel_hi:[1,0]']
    hk={3:wts}
    for w in range(4): hk[4+w]=wstep(48,192,w)
    spoll(opl,hk)
    stamp(9)
    A('v_cvt_pk_bf16_f32 v48, v48, v49\nv_cvt_pk_bf16_f32 v49, v50, v51')
    A('ds_write_b64 v20, v[48:49] offset:%d'%L_XO)
    A('s_waitcnt lgkmcnt(0)'); guarded('s_barrier')
    if cfg.tdiag: tstamp(2); A('s_waitcnt lgkmcnt(0)')
    for s_ in range(4):
        A('ds_read_b128 v[%d:%d], v21 offset:%d'%(32+4*s_,35+4*s_,L_XO+64*s_))
    for s_ in range(4):
        A('s_waitcnt lgkmcnt(%d)'%(3-s_))
        for t in range(2):
            acc='v[%d:%d]'%(48+4*t,51+4*t); r=80+16*t+4*s_
            A('v_mfma_f32_16x16x32_bf16 %s, v[%d:%d], v[%d:%d], %s'%(acc,r,r+3,32+4*s_,35+4*s_,'0' if s_==0 else acc))
    A('s_mov_b32 exec_lo, 0x00ff00ff\ns_mov_b32 exec_hi, 0x00ff00ff')
    A('s_nop 4')
    A('global_store_dwordx4 v22, v[48:51], %s offset:-2048 %s'%(WS,cfg.sf))
    A('global_store_dwordx4 v22, v[52:55], %s offset:2048 %s'%(WS,cfg.sf))
    tstamp(3)
    A('s_mov_b64 exec, -1')
    A('s_cmp_lg_u32 s53, 0\ns_cbranch_scc1 L_fin')
    apoll(['global_load_dwordx4 v[%d:%d], v23, %s offset:%d sc1'%(216+4*t,219+4*t,WS,1024*t) for t in range(4)],cfg.pR)
    stamp(10)
    A('v_pk_add_f32 v[32:33], v[216:217], v[220:221]\nv_pk_add_f32 v[34:35], v[218:219], v[222:223]')
    A('v_pk_add_f32 v[40:41], v[224:225], v[228:229]\nv_pk_add_f32 v[42:43], v[226:227], v[230:231]')
    A('v_pk_add_f32 v[32:33], v[32:33], v[40:41]\nv_pk_add_f32 v[34:35], v[34:35], v[42:43]')
    A('s_nop 1\nv_permlane32_swap_b32 v32, v34\nv_permlane32_swap_b32 v33, v35')
    A('v_add_f32 v32, v32, v34\nv_add_f32 v33, v33, v35')
    A('s_nop 1\nv_permlane16_swap_b32 v32, v33\nv_add_f32 v32, v32, v33')
    dppadd(32,'row_ror:8')
    rbf(32)
    A('v_add_f32 v32, v32, v16\nv_mov_b32 v33, v32\ns_nop 1')
    A('v_permlane16_swap_b32 v32, v33\nv_cvt_pk_bf16_f32 v32, v32, v33\nv_min_u32 v32, -2, v32\nv_mov_b32 v33, v32\ns_nop 1')
    A('v_permlane32_swap_b32 v32, v33')
    A('global_store_dwordx2 v24, v[32:33], %s %s'%(WS,cfg.sf))
    tstamp(4)
    A('s_branch L_fin')
    A('L_rdone:')
    A('s_cmp_eq_u32 s70, 2\ns_cbranch_scc1 L_ffn2')
    A('s_cmp_eq_u32 s70, 0\ns_cbranch_scc1 L_fin')
    gate(cfg.G1)
    if cfg.lrot:
        assert cfg.E1%2==0
        i0=cfg.E1//2; n=8-i0
        if cfg.helper: A('s_and_b32 s6, s14, 1\ns_cmp_eq_u32 s70, 4\ns_cselect_b32 s6, 2, s6\ns_mul_i32 s6, s6, %d\ns_add_u32 s6, s6, %d'%(n//3,i0))
        else: A('s_and_b32 s6, s14, 1\ns_mul_i32 s6, s6, %d\ns_add_u32 s6, s6, %d'%(n//2,i0))
        for it in range(n):
            if cfg.helper and it==n-2*(n//3): A('s_cmp_eq_u32 s70, 4\ns_cbranch_scc1 L_fin')
            A('s_mul_i32 s7, s6, %d\nv_add_u32 v7, s7, v6\ns_lshl_b32 s7, s6, 10\ns_add_u32 s7, s7, s71\ns_add_u32 m0, s7, %d\ns_add_u32 s6, s6, 1'%(16*3584,L_WA))
            A('global_load_lds_dwordx4 v7, %s %s'%(WG,cfg.ff))
            A('s_add_u32 m0, s7, %d\ns_cmp_eq_u32 s6, 8\ns_cselect_b32 s6, %d, s6'%(L_WA+32768,i0))
            A('global_load_lds_dwordx4 v7, %s %s'%(WU,cfg.ff))
    else:
        for k in range(cfg.E1,16): A(dma1(k))
    A('s_mov_b32 exec_lo, 0xff00ff00\ns_mov_b32 exec_hi, 0xff00ff00')
    for r in range(216,232): A('v_mov_b32 v%d, 0x3f803f80'%r)
    A('s_mov_b64 exec, -1')
    A('s_waitcnt vmcnt(0)')
    for t in range(4):
        for s_ in range(4):
            r=96+16*t+4*s_
            A('ds_read_b64_tr_b16 v[%d:%d], v8 offset:%d'%(r,r+1,2048*s_+16*t))
            A('ds_read_b64_tr_b16 v[%d:%d], v8 offset:%d'%(r+2,r+3,2048*s_+16*t+256))
        A('s_waitcnt lgkmcnt(0)')
    tstamp(2)
    hk={}
    for s_ in range(4):
        B='v[%d:%d]'%(216+4*s_,219+4*s_); hk[s_]=[]
        for t in (4,0,1,2,3):
            acc='v[%d:%d]'%(32+4*t,35+4*t)
            Aop=B if t==4 else 'v[%d:%d]'%(96+16*t+4*s_,99+16*t+4*s_)
            hk[s_].append('v_mfma_f32_16x16x32_bf16 %s, %s, %s, %s'%(acc,Aop,B,'0' if s_==0 else acc))
    ns_=cfg.f1s
    spoll(['global_load_dwordx4 v[%d:%d], v4, %s offset:%d sc1'%(216+4*t,219+4*t,WS,512*t) for t in range(4)],{i:(hk[i] if i<ns_ else []) for i in range(4)},
          pre='s_mov_b32 exec_lo, 0x00ff00ff\ns_mov_b32 exec_hi, 0x00ff00ff',post='s_mov_b64 exec, -1')
    stamp(11)
    for i in range(ns_,4): A('\n'.join(hk[i]))
    A('s_nop 3')
    for t in (4,0,1,2,3):
        A('ds_write_b128 v10, v[%d:%d] offset:%d'%(32+4*t,35+4*t,L_XN+1024*t))
    tstamp(5)
    A('s_waitcnt lgkmcnt(0)\ns_barrier')
    if cfg.tdiag: tstamp(6); A('s_waitcnt lgkmcnt(0)')
    for p in range(4): A('ds_read2_b32 v[%d:%d], v%d offset0:0 offset1:32'%(52+2*p,53+2*p,164+p))
    for p in range(4):
        A('ds_read2_b32 v[%d:%d], v%d offset0:0 offset1:32'%(60+2*p,61+2*p,160+p))
        A('ds_read2_b32 v[%d:%d], v%d offset0:128 offset1:160'%(68+2*p,69+2*p,160+p))
    A('s_waitcnt lgkmcnt(8)')
    A('v_pk_add_f32 v[52:53], v[52:53], v[54:55]\nv_pk_add_f32 v[56:57], v[56:57], v[58:59]\nv_pk_add_f32 v[52:53], v[52:53], v[56:57]')
    A('v_mul_f32 v53, 0xbb000000, v53\nv_mul_f32 v52, 0x3b000000, v52')
    A('v_fma_f32 v52, -v53, v53, v52\nv_cvt_pk_bf16_f32 v53, 0, v53\nv_max_f32 v52, 0, v52\nv_cvt_pk_bf16_f32 v52, 0, v52\nv_add_f32 v52, 0x3727c5ac, v52')
    A('v_cvt_pk_bf16_f32 v52, 0, v52\nv_sqrt_f32 v52, v52')
    A('s_waitcnt lgkmcnt(0)')
    A('v_pk_add_f32 v[60:61], v[60:61], v[62:63]\nv_cvt_pk_bf16_f32 v52, 0, v52\nv_pk_add_f32 v[64:65], v[64:65], v[66:67]\nv_rcp_f32 v52, v52')
    A('v_pk_add_f32 v[68:69], v[68:69], v[70:71]\nv_pk_add_f32 v[72:73], v[72:73], v[74:75]')
    A('v_pk_add_f32 v[60:61], v[60:61], v[64:65]\nv_pk_add_f32 v[68:69], v[68:69], v[72:73]')
    A('v_fmac_f32 v60, v53, v61\nv_fmac_f32 v68, v53, v69\nv_mul_f32 v60, v60, v52\nv_mul_f32 v68, v68, v52')
    A('v_cvt_pk_bf16_f32 v32, 0, v60\nv_cvt_pk_bf16_f32 v36, 0, v68')
    A('v_mul_f32 v33, v32, v32\nv_mul_f32 v33, 0x3d372713, v33\nv_fma_f32 v33, v33, v32, v32')
    A('v_mul_f32 v33, 0xc0135761, v33\nv_exp_f32 v33, v33\ns_nop 0\nv_add_f32 v33, 1.0, v33\nv_rcp_f32 v33, v33\ns_nop 0\nv_mul_f32 v33, v33, v32')
    rbf(33)
    A('v_mul_f32 v33, v33, v36\nv_mov_b32 v34, v33\ns_nop 1\nv_permlane32_swap_b32 v33, v34')
    A('v_cvt_pk_bf16_f32 v33, v33, v34\nv_min_u32 v36, -2, v33')
    A('v_mov_b32 v32, v36\nv_mov_b32 v33, v36\ns_nop 0')
    A('v_mov_b32_dpp v32, v36 row_ror:8 row_mask:0xf bank_mask:0xc\nv_mov_b32_dpp v33, v36 row_ror:8 row_mask:0xf bank_mask:0x3')
    A('v_mov_b32 v34, v32\nv_mov_b32 v35, v33\ns_nop 0')
    A('v_permlane16_swap_b32 v32, v34\nv_permlane16_swap_b32 v33, v35')
    if cfg.nA<8: A('s_and_b32 exec_lo, s4, 0x%x\ns_mov_b32 exec_hi, 0'%((1<<(8*cfg.nA))-1))
    guarded('global_store_dwordx4 v27, v[32:35], %s %s'%(WS,cfg.sf))
    stamp(12)
    A('L_fin:')
    A('s_waitcnt vmcnt(0)')
    if cfg.diag:
        dump_stamps(14,8)
    A('s_endpgm')
    A('L_ffn2:')
    gate(cfg.G2)
    if cfg.lrot:
        n=14-cfg.E2
        A('s_and_b32 s6, s15, 3\ns_mul_i32 s6, s6, %d\ns_lshr_b32 s6, s6, 2\ns_add_u32 s6, s6, %d'%(n,cfg.E2))
        for _ in range(n):
            A('s_lshl_b32 s7, s6, 15\nv_add_u32 v7, s7, v6\ns_lshl_b32 s7, s6, 10\ns_add_u32 s7, s7, s71\ns_add_u32 m0, s7, %d\ns_add_u32 s6, s6, 1'%L_WA)
            A('global_load_lds_dwordx4 v7, %s %s'%(WD,cfg.ff))
            A('s_cmp_eq_u32 s6, 14\ns_cselect_b32 s6, %d, s6'%cfg.E2)
    else:
        for k in range(cfg.E2,14): A(dma2(k))
    A('s_waitcnt vmcnt(0)')
    for t in range(7):
        for tt in range(2):
            r=96+8*t+4*tt
            A('ds_read_b64_tr_b16 v[%d:%d], v8 offset:%d'%(r,r+1,2048*t+16*tt))
            A('ds_read_b64_tr_b16 v[%d:%d], v8 offset:%d'%(r+2,r+3,2048*t+16*tt+128))
        if t%2==0: A('s_waitcnt lgkmcnt(0)')
    tstamp(2)
    l=newlab('hp'); d=newlab('hd')
    A('s_mov_b32 s61, %d\n%s:\nglobal_load_dword v60, v29, %s sc1\ns_waitcnt vmcnt(0)\nv_cmp_eq_u32 vcc, -1, v60\ns_cbranch_vccz %s'%(cfg.spin,l,WS,d))
    A('s_sub_u32 s61, s61, 1\ns_cmp_lg_u32 s61, 0\ns_cbranch_scc1 %s\n%s:'%(l,d))
    A('v_and_b32 v61, s60, v60\nv_lshlrev_b32 v60, 16, v60')
    hk={}
    for t in range(7):
        hk[t]=[]
        for tt in range(2):
            acc='v[%d:%d]'%(64+4*tt,67+4*tt); r=96+8*t+4*tt
            hk[t].append('v_mfma_f32_16x16x32_bf16 %s, v[%d:%d], v[%d:%d], %s'%(acc,r,r+3,216+4*t,219+4*t,'0' if t==0 else acc))
    spoll(abl,hk)
    stamp(10)
    A('s_nop 3')
    A('ds_write_b128 v10, v[64:67] offset:%d'%L_DP)
    A('ds_write_b128 v10, v[68:71] offset:%d'%(L_DP+1024))
    A('s_waitcnt lgkmcnt(0)'); guarded('s_barrier')
    tstamp(6)
    A('s_cmp_lg_u32 s53, 0\ns_cbranch_scc1 L_fin')
    for w in range(4):
        A('ds_read_b64 v[%d:%d], v26 offset:%d'%(32+4*w,33+4*w,L_DP+2048*w))
        A('ds_read_b64 v[%d:%d], v26 offset:%d'%(34+4*w,35+4*w,L_DP+2048*w+640))
    A('s_waitcnt lgkmcnt(0)')
    for w in range(4): A('v_pk_add_f32 v[%d:%d], v[%d:%d], v[%d:%d]'%(32+4*w,33+4*w,32+4*w,33+4*w,34+4*w,35+4*w))
    A('v_pk_add_f32 v[32:33], v[32:33], v[36:37]\nv_pk_add_f32 v[40:41], v[40:41], v[44:45]\nv_pk_add_f32 v[32:33], v[32:33], v[40:41]')
    A('v_cvt_pk_bf16_f32 v32, 0, v32\nv_cvt_pk_bf16_f32 v33, 0, v33')
    A('v_pk_add_f32 v[32:33], v[32:33], v[60:61]')
    A('v_cvt_pk_bf16_f32 v32, v32, v33')
    if cfg.odiag: stamp(12)
    guarded('global_store_dword v28, v32, %s %s'%(OUT,cfg.of))
    if cfg.odiag: A('s_waitcnt vmcnt(0)')
    drychk()
    if cfg.diag:
        stamp(13)
        if cfg.leak is not None:
            a,b=cfg.leak
            A('s_waitcnt lgkmcnt(0)')
            if cfg.gleak is not None:
                A('v_mov_b32 v8, 0x3bf000\nglobal_load_dword v9, v8, %s sc1\nglobal_load_dword v10, v8, %s offset:256 sc1\ns_waitcnt vmcnt(0)'%(WS,WS))
                if b==14: A('v_not_b32 v9, v10\nv_mov_b32 v10, s%d'%(72+2*13))
                elif b==13: A('v_mov_b32 v10, s%d'%(72+2*13))
                else: A('v_not_b32 v10, v10')
                A('v_sub_u32 v9, v10, v9\ns_nop 1\nv_readfirstlane_b32 s54, v9')
                if b==0: A('s_mov_b32 s54, 0')
            elif a>=100:
                A('v_mov_b32 v8, %d\nds_read_b32 v9, v8 offset:%d\nds_read_b32 v10, v8 offset:%d\ns_waitcnt lgkmcnt(0)\nv_sub_u32 v9, v9, v10\ns_nop 1\nv_readfirstlane_b32 s54, v9'%(0,L_ST+4*(b-100),L_ST+4*(a-100)))
            elif b>=100:
                A('v_mov_b32 v8, %d\nds_read_b32 v9, v8 offset:%d\ns_waitcnt lgkmcnt(0)\nv_readfirstlane_b32 s54, v9\ns_sub_u32 s54, s54, s%d'%(4*(b-100),L_ST,72+2*a))
            else: A('s_sub_u32 s54, s%d, s%d'%(72+2*b,72+2*a))
            A('s_mul_i32 s54, s54, %d\ns_min_u32 s54, s54, 60000'%cfg.mult)
            A('L_leak:')
            A('s_memrealtime s[68:69]\ns_waitcnt lgkmcnt(0)\ns_sub_u32 s55, s68, s%d\ns_cmp_lt_u32 s55, s54\ns_cbranch_scc1 L_leak'%(72+2*13))
        else:
            A('s_waitcnt lgkmcnt(0)\ns_mov_b32 s100, s92\ns_mov_b32 s92, 0')
            dump_stamps(15,8)
    A('L_end:')
    A('s_endpgm')
    A('L_last:')
    A('.section .rodata,"a"\n.p2align 6\n.amdhsa_kernel %s'%K)
    A('  .amdhsa_next_free_vgpr 256\n  .amdhsa_next_free_sgpr 102\n  .amdhsa_accum_offset 256\n  .amdhsa_group_segment_fixed_size 0\n  .amdhsa_kernarg_size 96')
    A('  .amdhsa_user_sgpr_count 2\n  .amdhsa_user_sgpr_kernarg_segment_ptr 1\n  .amdhsa_system_sgpr_workgroup_id_x 1')
    A('  .amdhsa_float_denorm_mode_32 3\n  .amdhsa_float_denorm_mode_16_64 3')
    A('.end_amdhsa_kernel')
    return '\n'.join(L)+'\n'

if __name__=='__main__':
    cfg=Cfg()
    out=sys.argv[1]
    for a in sys.argv[2:]:
        k,v=a.split('=',1); setattr(cfg,k,eval(v))
    s=gen(cfg)
    hdr=''.join(l for l in open('cdna_kernels/%s.s.ref'%NAME).readlines()[:13])
    open(out,'w').write(hdr+s)
```

```python
import sys
NAME='sequential_preLN__gqa_block_cached__geglu_ffn__decode'
K=NAME+'_kernel'

class Cfg:
    diag=False
    leak=None
    nocomp=False
    noq=False
    T2=12
    cpf=2
    b3=8
    cf='sc1'; nclr=4; wide=None; wo0=True; wo1=False; e1now=True; fb=(11,4,24,2); early=None; qfull=False; qf=''; gmask=True; bA=(2,5,3); NV=4; gmap=2; opf=None; oloc=True; wa=None; d2=0; T2b=None; bB=(1,2); bF=1
    f1s=1
    nb=1; gd=(16,2,2)
    G1=0; G2=0
    disp=4; LA=1; boost=(1,5,3); lf='sc1'; sf='sc1'
    skipG=False; skipF=False
    par=None
    NP=3
    HS=20736; AS=28672; wrot=False; pre=0; head=0
    upfront=False
    vdiag=None
    odiag=False
    touch=True
    sdiag=False
    mult=1
    Q1=0; Q2=0
    E1=2; E2=0; EW=8; lrot=True; helper=True
    T0=None; n0=40
    qflag=True
    chunk=0
    bare=0
    notail=False
    knat=False
    cdbg=False
    ctouch=None
    rot=4
    cs=9
    nowq=False
    noqst=False
    nH=8; nA=8
    pW=('c',1,0); pR=('m',8,1); pF=('c',1,0); pG=('c',1,0)
    tdiag=False
    tsleep=0
    crot=0
    noclr=False
    wolate=False
    warm=False
    of=''
    gleak=None
    NS=30
    sflag=False
    svcfirst=0
    spin=1<<17
    T=5
    kf='nt'; vf='nt'; wf='nt'; ff=''
    pq=5
    pw0=8
    pw1=22
    noW=False

QP=0x0
FLG=0x80000
CLR=0x200000
WP=0x200000
OP=0x280000
OPS=640
HB=0x340000
AB=0x360000
CTR=0x3A0000
RNK=0x3A8000
PRB=0x3C0000
STAMP=0x10000000
L_MLW=64
L_QL=256
L_XN=1280
XNS=1040
L_XO=9600
XOS=272
L_DP=11776
L_OW=19968
L_ST=28160
L_PR=28416
L_CNT=L_PR+1024
L_WA=30720
LDS_BYTES=L_WA+65536

LOG2E=0x3fb8aa3b
SCALE=0x3db504f3

def gen(cfg):
    L=[]
    def A(s):
        L.extend(s.split('\n'))
    lab=[0]
    def newlab(p):
        lab[0]+=1
        return 'L_%s_%d'%(p,lab[0])
    X,KP,VP,WQ,WO,BX,WG,WU,WD,OUT,DBG,WS=['s[%d:%d]'%(16+2*i,17+2*i) for i in range(12)]
    def stamp(i):
        if cfg.diag: A('s_memrealtime s[%d:%d]'%(72+2*i,73+2*i))
    def tstamp(i):
        if cfg.tdiag: stamp(i)
    def pack_stamps(n,vt):
        A('s_waitcnt lgkmcnt(0)')
        A('v_mov_b32 v%d, 0'%vt)
        for i in range(n): A('v_writelane_b32 v%d, s%d, %d'%(vt,72+2*i,i))
    def dump_stamps(n,vt):
        if not cfg.diag: return
        A('s_mov_b64 exec, -1')
        pack_stamps(n,vt)
        A('v_lshlrev_b32 v%d, 2, v0'%(vt+1))
        A('ds_read_b32 v%d, v%d offset:%d'%(vt+2,vt+1,L_ST))
        A('s_lshl_b32 s66, s2, 9\ns_add_u32 s66, s66, %d'%(STAMP))
        A('v_add_u32 v%d, s66, v%d'%(vt+1,vt+1))
        A('s_mov_b64 exec, 0xffff')
        A('s_waitcnt lgkmcnt(0)')
        A('global_store_dword v%d, v%d, %s'%(vt+1,vt+2,WS))
        A('s_lshl_b32 s66, s53, 6\nv_add_u32 v%d, s66, v%d'%(vt+1,vt+1))
        A('global_store_dword v%d, v%d, %s offset:64'%(vt+1,vt,WS))

    A('; @launch grid=(256,1,1) block=(512,1,1) lds=%d'%LDS_BYTES)
    A(""";
;            that fill before any use), data are written through with sc1 and polled with sc1 loads; all polls are bounded.
;""")
    A('.amdgcn_target "amdgcn-amd-amdhsa--gfx950"\n.text\n.globl %s\n.p2align 8\n.type %s,@function\n%s:'%(K,K,K))
    A('s_cmp_ge_u32 s2, 256\ns_cbranch_scc1 L_end')
    stamp(0)
    A('v_lshrrev_b32 v1, 6, v0')
    A('v_lshlrev_b32 v3, 2, v0')
    A('v_readfirstlane_b32 s52, v1')
    A('s_cmp_lt_u32 s52, 4\ns_cbranch_scc1 L_noz')
    if cfg.cpf==2:
        A('s_getpc_b64 s[6:7]\nL_pc:\ns_lshr_b32 s8, s2, 3\ns_lshl_b32 s8, s8, 10\nv_add_u32 v100, s8, v3\nv_min_u32 v100, L_last-L_pc+1024-4, v100')
        A('v_mov_b32 v101, s7\nv_add_co_u32 v100, vcc, s6, v100\nv_mov_b32 v30, 0\ns_nop 0\nv_addc_co_u32 v101, vcc, 0, v101, vcc')
        A('global_load_dword v102, v[100:101], off offset:-1024')
    A('v_mov_b32 v30, 0')
    A('ds_write_b32 v3, v30 offset:%d\nds_write_b32 v3, v30 offset:%d'%(L_PR-1024,L_PR))
    A('s_waitcnt lgkmcnt(0)')
    A('L_noz:')
    A('s_load_dwordx16 s[16:31], s[0:1], 0')
    A('s_load_dwordx8 s[32:39], s[0:1], 64')
    A('s_barrier')
    if cfg.diag:
        for i in range(1,14): A('s_mov_b32 s%d, 0'%(72+2*i))
    A('v_and_b32 v0, 63, v0')
    A('s_and_b32 s48, s2, 7\ns_lshr_b32 s49, s2, 3\ns_lshl_b32 s50, s49, 1\ns_bfe_u32 s54, s2, 0x10001\ns_or_b32 s50, s50, s54')
    A('s_and_b32 s51, s2, 1\ns_bfe_u32 s54, s2, 0x10002\ns_lshl_b32 s54, s54, 1\ns_or_b32 s51, s51, s54')
    A('s_mov_b32 s64, s51')
    if cfg.gmap==1: A('s_lshr_b32 s50, s49, 2\ns_lshl_b32 s50, s50, 3\ns_or_b32 s50, s50, s48\ns_and_b32 s51, s49, 3')
    if cfg.gmap==2: A('s_bfe_u32 s50, s49, 0x30001\ns_lshl_b32 s50, s50, 3\ns_or_b32 s50, s50, s48\ns_lshr_b32 s51, s49, 4\ns_lshl_b32 s51, s51, 1\ns_and_b32 s54, s49, 1\ns_or_b32 s51, s51, s54')
    A('s_mov_b32 s59, 0x%x\ns_mov_b32 s60, 0xffff0000'%(LOG2E))
    A('v_lshlrev_b32 v1, 4, v0')
    A('s_cmp_ge_u32 s52, 4\ns_cbranch_scc1 L_service')

    import math
    TH=math.ceil(cfg.T)
    NS=cfg.NS
    RB=64
    A('s_lshl_b32 s54, s50, 21')
    A('s_lshl_b32 s62, s51, 2\ns_add_u32 s62, s62, s52')
    for i in range(4): A('s_add_u32 s%d, s62, %d\ns_and_b32 s%d, s%d, 15\ns_lshl_b32 s%d, s%d, 12'%(8+i,cfg.rot*i,8+i,8+i,8+i,8+i))
    A('v_lshrrev_b32 v2, 4, v0\nv_lshlrev_b32 v2, 6, v2\nv_and_b32 v4, 3, v0\nv_lshl_add_u32 v2, v4, 4, v2')
    A('v_bfe_u32 v5, v0, 2, 2\nv_lshl_add_u32 v2, v5, 8, v2')
    if cfg.knat: A('v_mov_b32 v2, v1')
    A('s_mov_b32 s42, 0x200000\ns_mov_b32 s43, 0x20000\ns_mov_b32 s46, 0x200000\ns_mov_b32 s47, 0x20000')
    A('s_waitcnt lgkmcnt(0)')
    A('s_add_u32 s40, s18, s54\ns_addc_u32 s41, s19, 0\ns_and_b32 s41, s41, 0xffff')
    A('s_add_u32 s44, s20, s54\ns_addc_u32 s45, s21, 0\ns_and_b32 s45, s45, 0xffff')
    st={'n':0}
    def adv():
        if cfg.rot: A('s_add_u32 s68, s62, %d\ns_and_b32 s68, s68, 15\ns_andn2_b32 s62, s62, 15\ns_add_u32 s62, s62, 16\ns_or_b32 s62, s62, s68'%cfg.rot)
        else: A('s_add_u32 s62, s62, 16')
    def load(slot,j,throttle=True,th=None):
        if j==0: A('s_lshl_b32 s65, s62, 12')
        if throttle:
            t_=(th or cfg.T); lo=int(t_); fr=t_-lo
            w=lo+(1 if (int((j+1)*fr+1e-9)>int(j*fr+1e-9)) else 0)
            A('s_waitcnt vmcnt(%d)'%(w-1))
            if cfg.T2b and w>cfg.T2b:
                l=newlab('tb'); A('s_cmp_eq_u32 s14, 1\ns_cbranch_scc1 %s\ns_waitcnt vmcnt(%d)\n%s:'%(l,cfg.T2b-1,l))
        r=RB+slot*32+j*4
        t=j//4
        A('buffer_load_dwordx4 v[%d:%d], %s, %s, s65 offen offset:%d %s'%(r,r+3,'v2' if t==0 else 'v1','s[40:43]' if t==0 else 's[44:47]',(j%4)*1024,cfg.kf if t==0 else cfg.vf))
    def prog(val):
        A('v_mov_b32 v30, %s\nds_write_b32 v3, v30 offset:%d'%(val,L_PR))
    NK=NS//2
    assert NS%2==0 and NK>=10 and NK<=16
    slot_of={u:u-1 for u in range(7)}
    for u in range(7,NS): slot_of[u]=(u-1)%3
    slot_of[NS]=3
    FB=RB+5*32+12
    tr={'issued':0,'w':TH}
    def win(G):
        for a_,b_,w_ in (cfg.wide or []):
            if a_<=G<b_: return w_
        return TH
    def sload():
        n=tr['issued']; G=n//8; j=n%8
        tr['issued']=n+1
        if G==NS:
            tr['w']=win(G); load(slot_of[G],j,th=win(G)); return
        t=G//NK; k=2*(G%NK)+j//4
        if cfg.vdiag is not None and G==cfg.vdiag and j==0: stamp(6)
        if cfg.vdiag is not None and G==cfg.vdiag+1 and j==0: stamp(7)
        if j%4==0: A('s_add_u32 s65, s%d, %d'%(8+k%4,k*65536))
        w=cfg.T0 if (cfg.T0 and n<cfg.n0) else win(G)
        tr['w']=w
        if cfg.wo0:
            if 1<=G<9 and j==0: A('s_cmp_gt_u32 s13, %d\ns_cselect_b64 vcc, -1, 0'%G)
            if 1<=G<max(cfg.bA[1],cfg.bB[1])+cfg.bF:
                assert G<9
                l=newlab('bo'); A('s_waitcnt vmcnt(%d)\ns_cbranch_vccnz %s\ns_waitcnt vmcnt(%d)\n%s:'%(w-1+cfg.bA[2],l,w-1,l))
            elif cfg.fb and G>cfg.fb[0]:
                if j==0: A('s_waitcnt lgkmcnt(0)\nv_cmp_eq_u32 vcc, 1, v%d\nv_readfirstlane_b32 s14, v%d\nds_read_b32 v%d, v%d offset:%d'%(FB,FB,FB,FB+1,L_CNT+28))
                l=newlab('bo'); A('s_waitcnt vmcnt(%d)\ns_cbranch_vccnz %s\ns_waitcnt vmcnt(%d)'%(w-1+cfg.fb[3],l,w-1))
                if cfg.early and j%cfg.early[1]==0: A('s_cmp_eq_u32 s14, 0\ns_cbranch_scc1 %s\ns_waitcnt vmcnt(%d)'%(l,w-2))
                A('%s:'%l)
                tr['w']=w+cfg.fb[3]
            elif n>=w: A('s_waitcnt vmcnt(%d)'%(w-1))
        elif cfg.b3 and G==cfg.boost[1] and j==0:
            A('s_bfe_u32 s55, s49, 0x30001\ns_cmp_eq_u32 s55, 3\ns_cselect_b64 vcc, vcc, 0')
        if cfg.wo0: pass
        elif cfg.boost and cfg.boost[0]<=G<max(cfg.boost[1],cfg.b3):
            assert G<9 and (G<5 or w+cfg.boost[2]<=8)
            l=newlab('bo'); A('s_waitcnt vmcnt(%d)\ns_cbranch_vccnz %s\ns_waitcnt vmcnt(%d)\n%s:'%(w-1+cfg.boost[2],l,w-1,l))
        elif n>=w: A('s_waitcnt vmcnt(%d)'%(w-1))
        r=RB+slot_of[G]*32+j*4
        A('buffer_load_dwordx4 v[%d:%d], %s, %s, s65 offen offset:%d %s'%(r,r+3,'v2' if t==0 else 'v1','s[40:43]' if t==0 else 's[44:47]',(j%4)*1024,cfg.kf if t==0 else cfg.vf))
        if j==7 and n>=15: prog(G+1)
    def pro_issue(n0,n1):
        assert tr['issued']==n0
        for n in range(n0,n1): sload()
    if cfg.svcfirst: A('s_barrier')
    if cfg.sdiag: stamp(6)
    pro_issue(0,TH)
    if cfg.sdiag: stamp(7)
    if cfg.wo0:
        A('s_mov_b32 s13, %d\ns_lshr_b32 s55, s49, 2\ns_cmp_eq_u32 s55, 3\ns_cselect_b32 s13, %d, s13\ns_bfe_u32 s55, s49, 0x30001\ns_cmp_ge_u32 s49, 16\ns_cselect_b32 s14, %d, 0\ns_add_u32 s13, s13, s14'%(cfg.bA[0],cfg.bA[1],cfg.bF))
        A('s_and_b32 s55, s55, 3\ns_cmp_eq_u32 s55, 1\ns_cselect_b32 s14, %d, 1\ns_xor_b32 s55, s2, s49\ns_and_b32 s55, s55, 1\ns_cselect_b32 s13, s14, s13'%cfg.bB[1])
    elif cfg.boost: A('s_xor_b32 s55, s2, s49\ns_and_b32 s55, s55, 1\ns_cselect_b64 vcc, 0, -1')
    A('s_mov_b32 s56, 0x05040100\ns_mov_b32 s57, 0x07060302\ns_mov_b32 s58, 0x%x'%SCALE)
    A('s_lshl_b32 s54, s50, %d\ns_add_u32 s54, s54, %d\ns_add_u32 s66, s38, s54\ns_addc_u32 s67, s39, 0'%(cfg.cs,CTR))
    if cfg.cdbg: A('s_lshl_b32 s54, s50, 9\ns_add_u32 s54, s54, 4096\ns_add_u32 s66, s36, s54\ns_addc_u32 s67, s37, 0')
    A('s_lshl_b32 s55, s52, 11')
    A('v_lshlrev_b32 v4, 9, v4\nv_and_b32 v0, 0x30, v0\nv_add3_u32 v0, v4, v0, s55')
    A('v_mov_b32 v14, 0xff800000')
    if cfg.sdiag:
        stamp(9); A('s_waitcnt vmcnt(%d)'%(TH-1)); stamp(10)
    pro_issue(TH,56)
    stamp(1)
    if cfg.qflag:
        A('v_mov_b32 v31, 0\nL_qw:\nds_read_b32 v15, v31 offset:%d\ns_waitcnt lgkmcnt(0)\nv_readfirstlane_b32 s54, v15\ns_cmp_eq_u32 s54, 0\ns_cbranch_scc1 L_qw'%(L_CNT+16))
    else: A('s_barrier')
    A('ds_read_b128 v[4:7], v1 offset:%d'%L_QL)
    stamp(2)
    A('s_waitcnt lgkmcnt(0)')
    def kpart(slot,fill):
        B=RB+slot*32
        f=list(fill)
        def nxt():
            if f: f.pop(0)()
        D=[20,B,B+4,B+8]
        if cfg.nocomp:
            while f: nxt()
            return
        for i in range(4):
            A('v_mfma_f32_16x16x32_bf16 v[%d:%d], v[%d:%d], v[4:7], 0'%(D[i],D[i]+3,B+4*i,B+4*i+3))
        A('s_nop 7')
        for h in range(2):
            for step in range(3):
                for e in range(2):
                    be=2*e+h
                    S=18+e
                    A('v_add_f32_dpp v%d, v%d, v%d row_ror:%d row_mask:0xf bank_mask:0x%x'%(S,D[be]+((be+step+1)&3),(D[be]+be) if step==0 else S,12-4*step,1<<be))
                A('s_nop 0')
        nxt()
        A('s_nop 0')
        A('v_mov_b32_dpp v18, v19 quad_perm:[0,1,2,3] row_mask:0xf bank_mask:0xc')
        A('v_cvt_pk_bf16_f32 v18, 0, v18\nv_mul_f32 v18, s58, v18\nv_cvt_pk_bf16_f32 v18, 0, v18')
        A('v_max_f32 v15, v14, v18')
        A('s_nop 1\nv_max_f32_dpp v15, v15, v15 row_ror:4 row_mask:0xf bank_mask:0xf')
        A('s_nop 1\nv_max_f32_dpp v15, v15, v15 row_ror:8 row_mask:0xf bank_mask:0xf')
        A('v_mov_b32 v31, v15\ns_nop 1\nv_permlane16_swap_b32 v15, v31\nv_max_f32 v15, v15, v31')
        A('v_mov_b32 v31, v15\ns_nop 1\nv_permlane32_swap_b32 v15, v31\nv_max_f32 v15, v15, v31')
        nxt()
        A('v_sub_f32 v16, v14, v15\nv_sub_f32 v18, v18, v15\nv_cmp_neq_f32 vcc, v14, v15\nv_mul_f32 v16, s59, v16\nv_mul_f32 v18, s59, v18')
        A('v_exp_f32 v16, v16\nv_exp_f32 v18, v18\nv_mov_b32 v14, v15\nv_mul_f32 v17, s59, v15')
        A('v_mov_b32_dpp v19, v18 row_ror:12 row_mask:0xf bank_mask:0xf')
        A('v_cvt_pk_bf16_f32 v8, v18, v19')
        l=newlab('nr')
        A('s_cbranch_vccz %s'%l)
        for r in range(32,64,2):
            A('v_pk_mul_f32 v[%d:%d], v[%d:%d], v[16:17] op_sel_hi:[1,0]'%(r,r+1,r,r+1))
        A('v_mul_f32 v24, v24, v16')
        A('%s:'%l)
        A('s_nop 0')
        A('v_mov_b32_dpp v9, v8 row_ror:8 row_mask:0xf bank_mask:0xf')
        while f: nxt()
    def vpart(slot):
        B=RB+slot*32+16
        if cfg.nocomp: return
        def perms(j):
            Tt=10+2*(j&1)
            for ii in range(2):
                A('v_perm_b32 v%d, v%d, v%d, s%d'%(Tt+ii,B+4*(2*ii+1)+(j>>1),B+4*(2*ii)+(j>>1),56+(j&1)))
        perms(0)
        for j in range(8):
            if j<7: perms(j+1)
            else: A('v_mfma_f32_16x16x16_bf16 v[24:27], v[28:29], v[8:9], v[24:27]')
            Tt=10+2*(j&1)
            A('v_mfma_f32_16x16x16_bf16 v[%d:%d], v[%d:%d], v[8:9], v[%d:%d]'%(32+4*j,35+4*j,Tt,Tt+1,32+4*j,35+4*j))
    SC=[8,9,10,11,12,13,20,21,22,23,25,26,27,28,29,RB+5*32+14][:NK]
    RV=RB+5*32; TV=RV+4
    def need(n):
        rem=tr['issued']-n
        assert rem>=0
        if rem<tr['w']: A('s_waitcnt vmcnt(%d)'%rem)
    def spread(chunks,nl):
        m=len(chunks)
        for i,c in enumerate(chunks):
            if not cfg.nocomp: A(c)
            for _ in range((nl*(i+1))//m-(nl*i)//m): sload()
    def kgroup(G):
        B=RB+slot_of[G]*32
        Dr=[32+4*i for i in range(8)] if G else [20]+[32+4*i for i in range(7)]
        ch=['\n'.join('v_mfma_f32_16x16x32_bf16 v[%d:%d], v[%d:%d], v[4:7], 0'%(Dr[i],Dr[i]+3,B+4*i,B+4*i+3) for i in range(8))+'\ns_nop 1']
        for be in range(4):
            c=[]
            for step in range(3):
                for e in range(2):
                    D=Dr[2*be+e]; S=18+e
                    c.append('v_add_f32_dpp v%d, v%d, v%d row_ror:%d row_mask:0xf bank_mask:0x%x'%(S,D+((be+step+1)&3),(D+be) if step==0 else S,12-4*step,1<<be))
                c.append('s_nop 0')
            ch.append('\n'.join(c))
        ch[-1]+='\nv_cvt_pk_bf16_f32 v15, 0, v18\nv_cvt_pk_bf16_f32 v16, 0, v19\nv_mul_f32 v15, s58, v15\nv_mul_f32 v16, s58, v16'
        ch[-1]+='\nv_cvt_pk_bf16_f32 v%d, v15, v16\nv_cvt_pk_bf16_f32 v15, 0, v15\nv_cvt_pk_bf16_f32 v16, 0, v16\nv_max3_f32 v14, v14, v15, v16'%SC[G]
        return ch
    def wred(op,r):
        return ('s_nop 1\n%s_dpp v%d, v%d, v%d row_ror:4 row_mask:0xf bank_mask:0xf\ns_nop 1\n%s_dpp v%d, v%d, v%d row_ror:8 row_mask:0xf bank_mask:0xf\n'%(op,r,r,r,op,r,r,r)+
                'v_mov_b32 v31, v%d\ns_nop 1\nv_permlane16_swap_b32 v%d, v31\n%s v%d, v%d, v31\n'%(r,r,op,r,r)+
                'v_mov_b32 v31, v%d\ns_nop 1\nv_permlane32_swap_b32 v%d, v31\n%s v%d, v%d, v31'%(r,r,op,r,r))
    def softmax():
        ch=[wred('v_max_f32',14)+'\nv_mul_f32 v17, s59, v14\nv_mov_b32 v24, 0']
        for g in range(NK):
            ch.append('v_lshlrev_b32 v18, 16, v%d\nv_and_b32 v19, s60, v%d\nv_sub_f32 v18, v18, v14\nv_sub_f32 v19, v19, v14\nv_mul_f32 v18, s59, v18\nv_mul_f32 v19, s59, v19\n'%(SC[g],SC[g])+
                      'v_exp_f32 v18, v18\nv_exp_f32 v19, v19\ns_nop 0\nv_cvt_pk_bf16_f32 v%d, v18, v19\nv_add_f32 v24, v24, v18\nv_add_f32 v24, v24, v19'%SC[g])
        ch.append(wred('v_add_f32',24))
        return ch
    def vgroup(G):
        B=RB+slot_of[G]*32; P=SC[G-NK]
        def perms(j):
            Tt=TV+4*(j&1)
            return '\n'.join('v_perm_b32 v%d, v%d, v%d, s%d'%(Tt+ii,B+4*(2*ii+1)+(j>>1),B+4*(2*ii)+(j>>1),56+(j&1)) for ii in range(4))
        c0='v_mov_b32 v%d, v%d\n'%(RV,P)+'\n'.join('v_mov_b32_dpp v%d, v%d row_ror:%d row_mask:0xf bank_mask:0xf'%(RV+r,P,16-4*r) for r in range(1,4))+'\n'+perms(0)
        ch=[c0]
        for j in range(8):
            Tt=TV+4*(j&1); acc='v[%d:%d]'%(32+4*j,35+4*j)
            ch.append((perms(j+1) if j<7 else 's_nop 1')+'\nv_mfma_f32_16x16x32_bf16 %s, v[%d:%d], v[%d:%d], %s'%(acc,Tt,Tt+3,RV,RV+3,'0' if G==NK else acc))
        return ch
    def request():
        if not cfg.chunk:
            A('s_mov_b32 s63, 1\ns_atomic_add s63, s[66:67], 0x0 glc'); return
        la=newlab('ra'); lb=newlab('rb')
        A('s_cmp_eq_u32 s69, 0\ns_cbranch_scc1 %s'%la)
        A('s_mov_b32 s69, 0\ns_sub_u32 s63, s62, %d\ns_branch %s'%(NS*16,lb))
        A('%s:'%la)
        A('s_cmp_lt_u32 s62, %d\ns_cselect_b32 s69, 1, 0\ns_add_u32 s63, s69, 1\ns_atomic_add s63, s[66:67], 0x0 glc'%(512-cfg.chunk))
        A('%s:'%lb)
    for G in range(8):
        need(8*G+8)
        spread(kgroup(G),[0,4,4,3,4,3,3,3][G])
    assert tr['issued']==80
    A('v_mov_b32 v%d, 0\nv_mov_b32 v%d, 0'%(FB,FB+1))
    stamp(3)
    def get():
        lb=int(math.log2(cfg.disp)); l=newlab('gt'); d=newlab('gd')
        A('s_cmp_ge_u32 s62, 512\ns_cbranch_scc1 %s'%d)
        A('v_mov_b32 v31, 0\nv_mov_b32 v30, 1\ns_mov_b64 exec, 1\nds_add_rtn_u32 v30, v31, v30 offset:%d\ns_waitcnt lgkmcnt(0)'%(L_CNT+24))
        A('v_lshlrev_b32 v31, 2, v30')
        A('%s:\nds_read_b32 v30, v31 offset:%d\ns_waitcnt lgkmcnt(0)\nv_readfirstlane_b32 s63, v30\ns_cmp_eq_u32 s63, 0\ns_cbranch_scc1 %s'%(l,L_CNT+64,l))
        A('s_mov_b64 exec, -1')
        A('%s:'%d)
    for G in range(8,NS):
        if G==NS-2:
            stamp(4)
            if NS<32: A('s_mov_b32 s62, 0'); get(); A('s_mov_b32 s62, s63')
        need(8*G+8)
        ch=kgroup(G) if G<NK else vgroup(G)
        if G==NK: ch=softmax()+ch
        if G<NS-2: spread(ch,8)
        elif NS==32: spread(ch,0)
        elif G==NS-2: spread(ch,TH)
        else: spread(ch[:-1],8-TH); spread(ch[-1:],0)
    if NS==32: A('s_nop 0\ns_branch L_sdone')
    A('s_cmp_ge_u32 s62, 512\ns_cbranch_scc1 L_sdone')
    A('v_mov_b32 v28, 0x3f803f80\nv_mov_b32 v29, 0x3f803f80\nv_mov_b32 v25, 0\nv_mov_b32 v26, 0\nv_mov_b32 v27, 0')
    if cfg.disp: get(); A('s_mov_b32 s62, s63')
    else: A('s_waitcnt lgkmcnt(0)\ns_add_u32 s62, s63, %d'%(NS*16+1))
    if cfg.T2b: A('ds_read_b32 v%d, v%d offset:%d\ns_waitcnt lgkmcnt(0)\nv_readfirstlane_b32 s14, v%d'%(FB,FB+1,L_CNT+28,FB))
    A('s_mov_b32 s64, %d'%(NS+1))
    def body(c,th):
        if cfg.upfront:
            for j in range(8): load(1-c,j,th=th,throttle=(8+j>=th))
            if th>12: A('s_waitcnt vmcnt(12)')
            kpart(c,[])
            A('s_waitcnt vmcnt(8)')
            vpart(c)
            return
        for j in range(4): load(7-c,j,th=th)
        if th>8: A('s_waitcnt vmcnt(8)')
        kpart(c,[(lambda j=j: load(7-c,j,th=th)) for j in range(4,8)])
        if cfg.disp: get()
        if th>8: A('s_waitcnt vmcnt(8)')
        vpart(c)
    A('L_dyn:')
    for c in (3,4):
        ls=newlab('st'); lc=newlab('sc')
        if cfg.diag: A('s_add_u32 s64, s64, 1')
        if not cfg.disp:
            A('s_cmp_ge_u32 s62, 512\ns_cbranch_scc1 %s'%ls)
            request()
            A('%s:'%ls)
        body(c,cfg.T2 or cfg.T)
        A('s_cmp_ge_u32 s62, 512\ns_cbranch_scc1 L_sdone')
        if cfg.disp: A('s_mov_b32 s62, s63')
        else:
            A('s_waitcnt lgkmcnt(0)')
            A('s_add_u32 s62, s63, %d'%(NS*16+1))
    A('s_branch L_dyn')
    A('L_sdone:')
    A('s_mov_b32 exec_lo, 0x000f000f\ns_mov_b32 exec_hi, 0x000f000f')
    stamp(5)
    A('s_lshl_b32 s55, s52, 2\nv_and_b32 v31, 0x30, v1\nv_lshl_add_u32 v31, v31, 1, s55')
    for j in range(8):
        A('ds_write_b128 v0, v[%d:%d] offset:%d'%(32+4*j,35+4*j,L_OW+64*j))
    A('ds_write2_b32 v31, v17, v24 offset0:%d offset1:%d'%(L_MLW//4,L_MLW//4+4))
    if cfg.diag:
        A('s_mov_b64 exec, -1')
        A('s_cmp_lg_u32 s52, 0\ns_cbranch_scc1 L_nost')
        pack_stamps(11 if cfg.sdiag else 8,8)
        A('v_writelane_b32 v8, s64, 8')
        A('ds_write_b32 v3, v8 offset:%d'%L_ST)
        A('L_nost:')
    A('s_waitcnt lgkmcnt(0)')
    A('s_barrier')
    A('s_endpgm')

    A('L_service:')
    if cfg.bare:
        A('s_sub_u32 s53, s52, 4\nv_mov_b32 v11, 0\nv_mov_b32 v12, 1\nv_mov_b32 v40, -1\nv_mov_b32 v41, -1\nv_mov_b32 v42, -1\nv_mov_b32 v43, -1\ns_waitcnt lgkmcnt(0)')
        if cfg.bare&2:
            A('s_lshl_b32 s54, s2, 2\ns_add_u32 s54, s54, s53\ns_mul_i32 s54, s54, 640\ns_add_u32 s54, s54, %d\nv_add_u32 v6, s54, v1\ns_mov_b32 exec_hi, 0xff\nglobal_store_dwordx4 v6, v[40:43], %s sc1\ns_mov_b64 exec, -1'%(CLR+0x100000,WS))
        if cfg.bare&4:
            A('global_load_dwordx4 v[32:35], v1, %s'%X)
        if cfg.bare&8:
            A('v_mov_b32 v6, s2\ns_mov_b64 exec, 1\nglobal_store_byte v6, v12, %s sc1\ns_mov_b64 exec, -1'%DBG)
        A('ds_write_b32 v11, v12 offset:%d\ns_waitcnt lgkmcnt(0)\ns_barrier\ns_barrier'%(L_CNT+8))
        if cfg.bare&16:
            A('v_lshlrev_b32 v7, 2, v0\nglobal_load_dword v13, v7, %s sc1'%DBG)
        A('s_barrier\ns_endpgm')
    A('s_setprio 3')
    A('s_sub_u32 s53, s52, 4')
    A('s_lshl_b32 s66, s53, 12')
    A('s_mov_b32 s3, %d'%FLG)
    A('s_lshr_b32 s68, s49, 3\ns_and_b32 s69, s49, 7')
    A('v_lshrrev_b32 v2, 5, v0\ns_lshl_b32 s54, s53, 1\nv_add_u32 v2, s54, v2')
    A('v_and_b32 v3, 31, v0\nv_lshlrev_b32 v3, 4, v3')
    A('v_lshl_add_u32 v4, v2, 10, v3')
    A('s_xor_b32 s13, s2, s49\ns_and_b32 s13, s13, 1\ns_lshr_b32 s14, s49, 4\ns_bfe_u32 s15, s49, 0x30001')
    A('s_lshl_b32 s54, s53, 7\nv_lshrrev_b32 v14, 2, v0\nv_add_u32 v6, s54, v14\nv_lshlrev_b32 v6, 13, v6\nv_and_b32 v13, 0x30, v1')
    A('s_lshr_b32 s55, s49, 1\ns_lshl_b32 s55, s55, 6\ns_lshl_b32 s54, s48, 10\ns_add_u32 s54, s54, s55\nv_add3_u32 v6, v6, v13, s54')
    A('s_lshl_b32 s54, s48, 13\ns_add_u32 s54, s54, s55\nv_lshlrev_b32 v14, 10, v14\nv_add3_u32 v14, v14, v13, s54')
    A('v_and_b32 v7, 7, v0\nv_and_b32 v15, 0x30, v0\nv_lshlrev_b32 v77, 2, v7')
    A('s_and_b32 s14, s15, 1\ns_lshl_b32 s14, s14, 2')
    A('v_mov_b32 v40, -1\nv_mov_b32 v41, -1\nv_mov_b32 v42, -1\nv_mov_b32 v43, -1')
    A('s_lshl_b32 s71, s53, 13\ns_add_u32 m0, s71, %d'%L_WA)
    A('v_lshrrev_b32 v44, 1, v0\nv_lshlrev_b32 v44, 9, v44\nv_and_b32 v45, 16, v1\nv_add3_u32 v79, v44, v45, %s'%'s3')
    A('v_mov_b32 v44, 0\nv_mov_b32 v45, 0\nv_mov_b32 v46, 0\nv_mov_b32 v47, 0\nv_mov_b32 v11, 0\nv_mov_b32 v12, 1')
    A('s_lshl_b32 s12, s2, 2\ns_add_u32 s12, s12, s53')
    A('s_waitcnt lgkmcnt(0)')
    A('s_cmp_lg_u32 s13, 0\ns_cbranch_scc1 L_clr')
    A('global_load_dwordx4 v[32:35], v4, %s'%X)
    A('global_load_dwordx4 v[36:39], v4, %s offset:512'%X)
    for i in range(8):
        A('s_xor_b32 s54, s14, %d\ns_lshl_b32 s55, s54, 17\nv_add_u32 v13, s55, v6\ns_lshl_b32 s54, s54, 10\ns_add_u32 s54, s54, s71\ns_add_u32 m0, s54, %d\ns_nop 0'%(i,L_WA))
        A('global_load_lds_dwordx4 v13, %s %s'%(WQ,cfg.qf))
    A('s_branch L_clrd')
    A('L_clr:')
    if cfg.cpf==1:
        A('s_getpc_b64 s[6:7]\nL_pc:\ns_sub_u32 s6, s6, L_pc-%s\ns_subb_u32 s7, s7, 0'%K)
        A('s_lshr_b32 s54, s49, 1\ns_lshl_b32 s54, s54, 2\ns_add_u32 s54, s54, s53\ns_lshl_b32 s54, s54, 9\nv_lshl_add_u32 v48, v0, 3, s54\nv_min_u32 v48, L_last-%s-8, v48'%K)
        A('v_mov_b32 v55, s7\nv_add_co_u32 v54, vcc, s6, v48\ns_nop 1\nv_addc_co_u32 v55, vcc, 0, v55, vcc')
        A('global_load_dwordx2 v[50:51], v[54:55], off')
    A('s_cmp_lg_u32 s53, 3\ns_cbranch_scc1 L_nolead\ns_cmp_ge_u32 s49, 2\ns_cbranch_scc1 L_nolead')
    A('s_lshl_b32 s54, s48, 13\ns_add_u32 s54, s54, 4096\nv_add_u32 v48, s54, v1\ns_lshl_b32 s54, s48, 11\nv_add_u32 v49, s54, v79\ns_lshl_b32 s54, s48, 2\nv_mov_b32 v52, s54')
    for i in range(8): A('global_store_dwordx4 v48, v[40:43], %s offset:%d sc1'%(WS,1024*i-4096))
    A('s_mov_b64 exec, 0xff\nglobal_store_dwordx4 v49, v[44:47], %s sc1\nglobal_store_dwordx4 v49, v[44:47], %s offset:256 sc1'%(WS,WS))
    A('s_waitcnt vmcnt(0)')
    A('s_mov_b64 exec, 1\nglobal_store_dword v52, v12, %s sc1\ns_mov_b64 exec, -1'%DBG)
    A('L_nolead:')
    A('s_lshr_b32 s54, s2, 1\ns_lshl_b32 s54, s54, 2\ns_add_u32 s54, s54, s53\ns_mul_i32 s54, s54, 3584\ns_add_u32 s54, s54, %d'%CLR)
    A('v_add_u32 v6, s54, v1')
    if cfg.nclr<4: A('s_cmp_lt_u32 s2, %d\ns_cbranch_scc1 L_skc'%(232 if cfg.nclr==0 else 256))
    for i in range(3): A('global_store_dwordx4 v6, v[40:43], %s offset:%d %s'%(WS,1024*i,cfg.cf))
    A('s_mov_b32 exec_hi, 0')
    A('global_store_dwordx4 v6, v[40:43], %s offset:3072 %s'%(WS,cfg.cf))
    if cfg.nclr<4: A('L_skc:')
    def wo_dma():
        A('s_lshl_b32 s54, s48, 2\ns_add_u32 s54, s54, s68\ns_lshl_b32 s54, s54, 7\ns_lshl_b32 s55, s53, 1\ns_add_u32 s54, s54, s55\ns_lshl_b32 s54, s54, 10\ns_and_b32 s55, s15, 3\ns_lshl_b32 s55, s55, 8\ns_add_u32 s54, s54, s55')
        A('v_lshrrev_b32 v48, 4, v0\nv_lshlrev_b32 v48, 13, v48\nv_and_b32 v49, 15, v0\nv_lshl_add_u32 v48, v49, 4, v48\nv_add_u32 v48, s54, v48')
        for i in range(8):
            A('v_add_u32 v49, %d, v48\ns_add_u32 m0, s71, %d\ns_nop 0\nglobal_load_lds_dwordx4 v49, %s %s'%((32*(i&3)+(i>>2))*1024,L_WA+i*1024,WO,cfg.wf))
    if cfg.wo0 and not cfg.wo1:
        A('s_mov_b64 exec, -1')
        if not cfg.noW: wo_dma()
    A('L_clrd:')
    A('s_mov_b64 exec, -1')
    A('s_and_b32 s54, s49, 3\ns_lshl_b32 s9, s54, 16\ns_lshr_b32 s54, s49, 2\ns_lshl_b32 s54, s54, 10\ns_add_u32 s9, s9, s54\ns_lshl_b32 s54, s48, 7\ns_add_u32 s9, s9, s54\ns_add_u32 s9, s9, %d'%PRB)
    A('s_lshl_b32 s54, s53, 14\ns_add_u32 s54, s54, s9\nv_bfe_u32 v6, v0, 3, 1\nv_lshlrev_b32 v6, 13, v6\nv_and_b32 v13, 0x70, v1\nv_add3_u32 v6, v6, v13, s54')
    A('s_mov_b64 exec, 0xffff')
    A('s_cmp_ge_u32 s49, %d\ns_cbranch_scc1 L_nopl\ns_cmp_ge_u32 s53, %d\ns_cbranch_scc1 L_nopl'%(cfg.NV,cfg.NP))
    A('global_store_dwordx4 v6, v[40:43], %s sc1'%WS)
    A('L_nopl:')
    A('s_mov_b64 exec, -1')
    if cfg.svcfirst==2: A('s_barrier')
    A('v_mul_u32_u24 v5, %d, v2\nv_add_u32 v5, v5, v3'%XNS)
    A('v_lshrrev_b32 v8, 4, v0\nv_lshlrev_b32 v8, 9, v8\nv_bfe_u32 v9, v0, 2, 2\nv_lshl_add_u32 v8, v9, 6, v8\nv_and_b32 v9, 3, v0\nv_lshl_add_u32 v8, v9, 3, v8')
    A('v_add_u32 v8, s71, v8')
    A('v_mul_u32_u24 v9, %d, v7\nv_add_u32 v9, v9, v15\ns_lshl_b32 s54, s53, 8\nv_add_u32 v10, s54, v9'%XNS)
    A('s_lshl_b32 s54, s53, 8\nv_mov_b32 v31, s54')

    def dppadd(r,ctl):
        A('s_nop 1\nv_add_f32_dpp v%d, v%d, v%d %s row_mask:0xf bank_mask:0xf'%(r,r,r,ctl))
    def swapadd(r,t,w):
        A('v_mov_b32 v%d, v%d\ns_nop 1\nv_permlane%d_swap_b32 v%d, v%d\nv_add_f32 v%d, v%d, v%d'%(t,r,w,r,t,r,r,t))
    def rbf(r):
        A('v_cvt_pk_bf16_f32 v%d, 0, v%d'%(r,r))
    def layernorm(mode):
        if mode=='x':
            for i in range(8):
                A('v_lshlrev_b32 v%d, 16, v%d\nv_and_b32 v%d, s60, v%d'%(48+2*i,32+i,49+2*i,32+i))
        Q=lambda i:'v[%d:%d]'%(48+2*i,49+2*i)
        P=Q if mode=='x' else (lambda i:'v[%d:%d]'%(216+2*i,217+2*i))
        A('v_pk_add_f32 v[64:65], %s, %s\nv_pk_mul_f32 v[66:67], %s, %s'%(P(0),P(1),P(0),P(0)))
        A('v_pk_add_f32 v[68:69], %s, %s\nv_pk_mul_f32 v[70:71], %s, %s'%(P(2),P(3),P(1),P(1)))
        for i in range(2,8,2):
            if i>2: A('v_pk_add_f32 v[64:65], v[64:65], %s'%P(i))
            A('v_pk_fma_f32 v[66:67], %s, %s, v[66:67]'%(P(i),P(i)))
            if i>2: A('v_pk_add_f32 v[68:69], v[68:69], %s'%P(i+1))
            A('v_pk_fma_f32 v[70:71], %s, %s, v[70:71]'%(P(i+1),P(i+1)))
        A('v_pk_add_f32 v[64:65], v[64:65], v[68:69]\nv_pk_add_f32 v[66:67], v[66:67], v[70:71]')
        A('v_add_f32 v64, v64, v65\nv_add_f32 v66, v66, v67')
        ctl=['row_ror:1','row_ror:2','row_ror:4','row_ror:8'] if mode=='x' else ['quad_perm:[1,0,3,2]','quad_perm:[2,3,0,1]','row_ror:8']
        for c in ctl:
            A('s_nop 0')
            for r in (64,66): A('v_add_f32_dpp v%d, v%d, v%d %s row_mask:0xf bank_mask:0xf'%(r,r,r,c))
        for w in ((16,) if mode=='x' else (16,32)):
            A('v_mov_b32 v65, v64\nv_mov_b32 v67, v66\ns_nop 0')
            A('v_permlane%d_swap_b32 v64, v65\nv_permlane%d_swap_b32 v66, v67'%(w,w))
            A('v_add_f32 v64, v64, v65\nv_add_f32 v66, v66, v67')
        A('v_mul_f32 v64, 0xbb000000, v64\nv_mul_f32 v66, 0x3b000000, v66')
        A('v_cvt_pk_bf16_f32 v68, 0, v64')
        chain=['v_fma_f32 v66, -v64, v64, v66','v_max_f32 v66, 0, v66','v_cvt_pk_bf16_f32 v66, 0, v66','v_add_f32 v66, 0x3727c5ac, v66',
               'v_cvt_pk_bf16_f32 v66, 0, v66','v_sqrt_f32 v66, v66','v_cvt_pk_bf16_f32 v66, 0, v66','v_rcp_f32 v66, v66']
        for i in range(8):
            A(chain[i])
            A('v_pk_add_f32 %s, %s, v[68:69] op_sel_hi:[1,0]'%(Q(i),P(i)))
        for i in range(16): A('v_cvt_pk_bf16_f32 v%d, 0, v%d'%(48+i,48+i))
        nw=2 if mode=='h' else 4
        for i in range(8):
            A('v_pk_mul_f32 %s, %s, v[66:67] op_sel_hi:[1,0]'%(Q(i),Q(i)))
        for i in range(8):
            A('v_cvt_pk_bf16_f32 v%d, v%d, v%d'%(32+i,48+2*i,49+2*i))
            if mode=='h' and i%2==1: A('ds_write_b64 v5, v[%d:%d] offset:%d'%(31+i,32+i,L_XN+256*(i//2)))
            if mode=='x' and i%4==3: A('ds_write_b128 v5, v[%d:%d] offset:%d'%(29+i,32+i,L_XN+512*(i//4)))
    def lds_sync(cnt,sleep=0):
        l=newlab('ls')
        A('s_waitcnt lgkmcnt(0)')
        A('s_mov_b64 exec, 1\nds_add_u32 v11, v12 offset:%d\ns_mov_b64 exec, -1'%(L_CNT+4*cnt))
        lds_wait(11,L_CNT+4*cnt,4,sleep)
    def lds_wait(va,off,val,sleep):
        l=newlab('lw'); d=newlab('ld')
        A('%s:'%l)
        A('ds_read_b32 v13, v%d offset:%d\ns_waitcnt lgkmcnt(0)\nv_readfirstlane_b32 s54, v13\ns_cmp_ge_u32 s54, %s'%(va,off,val))
        if sleep: A('s_cbranch_scc1 %s\ns_sleep %d\ns_branch %s\n%s:'%(d,sleep,l,d))
        else: A('s_cbranch_scc0 %s'%l)
    def progress(p): lds_wait(31,L_PR,p,6)
    def poll(loads,regs,sleep=0,guard=False):
        l=newlab('pl'); d=newlab('pd')
        if guard: sleep=cfg.tsleep
        A('s_mov_b32 s61, %d'%cfg.spin)
        A('%s:'%l)
        for x in loads: A(x)
        import re as _re
        first=True; pend=[]
        for i,x in enumerate(loads):
            m=_re.search(r'v\[(\d+):(\d+)\]',x)
            pend+=list(range(int(m.group(1)),int(m.group(2))+1))
            last=(i==len(loads)-1)
            if len(pend)<4 and not last: continue
            A('s_waitcnt vmcnt(%d)'%(len(loads)-1-i))
            while pend:
                if first:
                    if len(pend)>=3: A('v_max3_u32 v13, v%d, v%d, v%d'%tuple(pend[:3])); pend=pend[3:]
                    else: A('v_max_u32 v13, v%d, v%d'%tuple(pend[:2])); pend=pend[2:]
                    first=False
                elif len(pend)>=2: A('v_max3_u32 v13, v13, v%d, v%d'%tuple(pend[:2])); pend=pend[2:]
                elif last: A('v_max_u32 v13, v13, v%d'%pend[0]); pend=[]
                else: break
        A('v_cmp_eq_u32 vcc, -1, v13')
        A('s_cbranch_vccz %s'%d)
        if sleep: A('s_sleep %d'%sleep)
        A('s_sub_u32 s61, s61, 1\ns_cmp_lg_u32 s61, 0\ns_cbranch_scc1 %s'%l)
        A('%s:'%d)
    def apoll(loads,par):
        import re as _re
        mode,D,sleep=par
        loads=[x.replace(' sc1',' '+cfg.lf) for x in loads]
        l=newlab('al'); d=newlab('ad'); gl=newlab('ag')
        rg=[]
        for x in loads:
            m=_re.search(r'v\[(\d+):(\d+)\]',x); rg.append(list(range(int(m.group(1)),int(m.group(2))+1)))
        def chain(t,r):
            r=list(r)
            if len(r)==2: A('v_max_u32 v%d, v%d, v%d'%(t,r[0],r[1])); return
            A('v_max3_u32 v%d, v%d, v%d, v%d'%(t,r[0],r[1],r[2])); r=r[3:]
            while r:
                if len(r)==1: A('v_max_u32 v%d, v%d, v%d'%(t,t,r[0])); r=[]
                else: A('v_max3_u32 v%d, v%d, v%d, v%d'%(t,t,r[0],r[1])); r=r[2:]
        n=len(loads)
        A('s_mov_b32 s61, %d'%cfg.spin)
        if mode in 'cm':
            A('%s:'%l)
            for x in loads: A(x)
            if sleep: A('s_sleep %d'%sleep)
            A('s_waitcnt vmcnt(%d)'%min(63,n*(D-1)))
            chain(13,sum(rg,[]))
            A('v_cmp_eq_u32 vcc, -1, v13')
            A('s_cbranch_vccz %s'%d)
            if mode=='m': A('s_mov_b64 exec, vcc')
            A('s_sub_u32 s61, s61, 1\ns_cmp_lg_u32 s61, 0\ns_cbranch_scc1 %s'%l)
            A('%s:'%d)
            if mode=='m': A('s_mov_b64 exec, s[4:5]')
        else:
            mk=['s[6:7]','s[8:9]','s[56:57]','s[40:41]','s[42:43]','s[44:45]','s[46:47]','s[62:63]'][:n]
            for m_ in mk: A('s_mov_b64 %s, s[4:5]'%m_)
            A('%s:'%l)
            for x,m_ in zip(loads,mk):
                sk=newlab('as')
                A('s_mov_b64 exec, %s\ns_cbranch_execz %s'%(m_,sk)); A(x); A('%s:'%sk)
            A('s_mov_b64 exec, s[4:5]')
            if sleep: A('s_sleep %d'%sleep)
            A('s_waitcnt vmcnt(%d)'%min(63,n*(D-1)))
            for i in range(n): chain(246+i,rg[i])
            chain(13,[246+i for i in range(n)])
            A('v_cmp_eq_u32 vcc, -1, v13')
            A('s_cbranch_vccz %s'%d)
            for i in range(n): A('v_cmp_eq_u32 %s, -1, v%d'%(mk[i],246+i))
            A('s_sub_u32 s61, s61, 1\ns_cmp_lg_u32 s61, 0\ns_cbranch_scc1 %s'%l)
            A('%s:'%d)
    def spoll(loads,hooks,pre=None,post=None):
        import re as _re
        l=newlab('sl'); d=newlab('sd')
        A('s_mov_b32 s61, %d'%cfg.spin)
        A('%s:'%l)
        if pre: A(pre)
        for x in loads: A(x)
        if post: A(post)
        first=True; pend=[]
        n=len(loads)
        for i,x in enumerate(loads):
            m=_re.search(r'v\[(\d+):(\d+)\]',x)
            pend+=list(range(int(m.group(1)),int(m.group(2))+1))
            if i<n-1 and i not in hooks: continue
            A('s_waitcnt vmcnt(%d)'%(n-1-i))
            chk=[]
            while pend:
                if first:
                    chk.append('v_max3_u32 v13, v%d, v%d, v%d'%tuple(pend[:3])); pend=pend[3:]; first=False
                elif len(pend)>=2: chk.append('v_max3_u32 v13, v13, v%d, v%d'%tuple(pend[:2])); pend=pend[2:]
                elif i==n-1: chk.append('v_max_u32 v13, v13, v%d'%pend[0]); pend=[]
                else: break
            if i==n-1: chk.append('v_cmp_eq_u32 vcc, -1, v13')
            h=list(hooks.get(i,[]))
            while h or chk:
                if h: A(h.pop(0))
                if chk: A(chk.pop(0))
        A('s_cbranch_vccz %s'%d)
        A('s_sub_u32 s61, s61, 1\ns_cmp_lg_u32 s61, 0\ns_cbranch_scc1 %s'%l)
        A('%s:'%d)
    def gate(n):
        if not n: return
        l=newlab('ga'); d=newlab('gb')
        A('s_mov_b32 s61, %d\n%s:\nglobal_load_dword v13, v14, %s sc1\ns_waitcnt vmcnt(0)\nv_cmp_ne_u32 vcc, -1, v13\ns_nop 1\ns_bcnt1_i32_b64 s6, vcc\ns_cmp_ge_u32 s6, %d\ns_cbranch_scc1 %s'%(cfg.spin,l,WS,n,d))
        A('s_sleep 2\ns_sub_u32 s61, s61, 1\ns_cmp_lg_u32 s61, 0\ns_cbranch_scc1 %s\n%s:'%(l,d))
    def flagpoll(voff,execmask,par=None):
        l=newlab('fl'); d=newlab('fd')
        A('s_mov_b32 s61, %d'%cfg.spin)
        A('s_mov_b64 exec, %s'%execmask)
        A('%s:'%l)
        A('global_load_dwordx4 v[72:75], v%d, %s sc1\ns_waitcnt vmcnt(0)'%(voff,WS))
        if par: A('v_min_u32 v13, v72, v74\nv_min_u32 v76, v73, v75\nv_cndmask_b32 v13, v13, v76, %s\nv_cmp_eq_u32 vcc, 0, v13\ns_cbranch_vccz %s'%(par,d))
        else: A('v_min3_u32 v13, v72, v73, v74\nv_min_u32 v13, v13, v75\nv_cmp_eq_u32 vcc, 0, v13\ns_cbranch_vccz %s'%d)
        A('s_sleep 16')
        A('s_sub_u32 s61, s61, 1\ns_cmp_lg_u32 s61, 0\ns_cbranch_scc1 %s'%l)
        A('%s:'%d)
        A('s_mov_b64 exec, -1')
    def CLASS():
        A('s_cmp_lg_u32 s53, 0\ns_cbranch_scc1 L_nofc')
        progress(cfg.pw0)
        A('s_mov_b32 s6, 0x00ff00ff\ns_mov_b32 s7, s6')
        flagpoll(79,'-1','s[6:7]')
        A('v_cndmask_b32 v13, v72, v73, s[6:7]\nv_cndmask_b32 v76, v74, v75, s[6:7]\nv_cmp_ne_u32 vcc, s65, v13\nv_cmp_ne_u32 s[8:9], s65, v76\ns_nop 1')
        A('s_or_b64 s[8:9], s[8:9], vcc\ns_and_b32 s54, s50, 7\ns_lshl_b32 s54, s54, 3\ns_lshr_b64 s[8:9], s[8:9], s54\ns_and_b32 s8, s8, 0xff\ns_cselect_b32 s12, 0, 32')
        A('ds_write_b128 v1, v[72:75] offset:%d'%L_DP)
        A('v_add_u32 v7, 256, v79\ns_mov_b32 s6, %s\ns_mov_b32 s7, s6\ns_waitcnt lgkmcnt(0)'%('0x03030303' if cfg.NV==8 else '0x01010101'))
        flagpoll(7,'s[6:7]')
        A('s_and_b32 s54, s48, 3\ns_lshl_b32 s54, s54, 7\ns_lshl_b32 s55, s49, 2\ns_add_u32 s54, s54, s55\nv_mov_b32 v7, s54')
        A('s_mov_b32 s6, 0')
        for r in range(72,76):
            A('v_and_b32 v13, 2, v%d\nv_cmp_ne_u32 vcc, 0, v13\ns_nop 1\ns_bcnt1_i32_b64 s7, vcc\ns_add_u32 s6, s6, s7'%r)
        A('s_waitcnt lgkmcnt(0)\nds_read_b32 v13, v7 offset:%d\ns_waitcnt lgkmcnt(0)\nv_readfirstlane_b32 s7, v13'%L_DP)
        if cfg.wo0:
            A('s_and_b32 s54, s48, 3\ns_lshl_b32 s54, s54, 7\ns_andn2_b32 s55, 1, s48\ns_lshl_b32 s55, s55, 2\ns_add_u32 s54, s54, s55\nv_mov_b32 v7, s54')
            A('s_and_b32 s54, s50, 3\ns_lshl_b32 s54, s54, 7\ns_andn2_b32 s55, 1, s50\ns_lshl_b32 s55, s55, 2\ns_add_u32 s54, s54, s55\nv_mov_b32 v72, s54')
            A('ds_read_b32 v13, v7 offset:%d\nds_read_b32 v72, v72 offset:%d\ns_waitcnt lgkmcnt(0)\nv_readfirstlane_b32 s4, v13\nv_readfirstlane_b32 s5, v72'%(L_DP,L_DP))
            A('s_xor_b32 s4, s4, s48\ns_bfe_u32 s4, s4, 0x10002\ns_xor_b32 s5, s5, s50\ns_bfe_u32 s5, s5, 0x10002')
        if cfg.diag: A('s_mov_b32 s9, s6')
        A('s_cmp_ge_u32 s6, %d\ns_cselect_b32 s6, 1, 0'%(4*cfg.NV))
        if cfg.par is not None: A('s_mov_b32 s6, %d'%cfg.par)
        A('s_xor_b32 s7, s7, s48\ns_bfe_u32 s7, s7, 0x10002\ns_xor_b32 s7, s7, s6\ns_lshl_b32 s7, s7, 2\ns_lshl_b32 s6, s6, 1\ns_or_b32 s6, s6, s7\ns_or_b32 s6, s6, 1')
        if cfg.wo0: A('s_lshl_b32 s4, s4, 3\ns_lshl_b32 s5, s5, 4\ns_or_b32 s6, s6, s4\ns_or_b32 s6, s6, s5')
        A('s_or_b32 s6, s6, s12')
        A('v_mov_b32 v13, s6\nds_write_b32 v11, v13 offset:%d'%(L_CNT+8))
        if cfg.diag: A('s_cmp_lg_u32 s2, 0\ns_cbranch_scc1 L_nofc\nv_mov_b32 v13, s9\nv_mov_b32 v7, 32\nglobal_store_dword v7, v13, %s'%DBG)
        A('L_nofc:')
        lds_wait(11,L_CNT+8,1,6)
        A('s_and_b32 s12, s54, 32\ns_bfe_u32 s11, s54, 0x10002\ns_bfe_u32 s62, s54, 0x10003\ns_bfe_u32 s63, s54, 0x10004\ns_bfe_u32 s54, s54, 0x10001\ns_xor_b32 s10, s10, s54\ns_xor_b32 s62, s62, s54\ns_xor_b32 s63, s63, s54')
    def tr128(dst,base):
        for s_ in range(4):
            A('ds_read_b64_tr_b16 v[%d:%d], v8 offset:%d'%(dst+4*s_,dst+4*s_+1,base+4096*s_))
            A('ds_read_b64_tr_b16 v[%d:%d], v8 offset:%d'%(dst+4*s_+2,dst+4*s_+3,base+4096*s_+512))

    A('v_mov_b32 v76, 0')
    A('s_cmp_lg_u32 s13, 0\ns_cbranch_scc1 L_noln')
    A('s_waitcnt vmcnt(8)')
    stamp(1)
    layernorm('x')
    A('L_noln:')
    A('s_waitcnt vmcnt(0)')
    lds_sync(0)
    stamp(2)
    A('s_lshl_b32 s54, s48, 2\ns_add_u32 s54, s54, s68\ns_lshl_b32 s54, s54, 9\ns_lshl_b32 s55, s69, 2\ns_add_u32 s54, s54, s55\ns_add_u32 s54, s54, s3\nv_mov_b32 v6, s54')
    A('s_getreg_b32 s10, hwreg(HW_REG_XCC_ID)\ns_and_b32 s65, s10, 15\ns_bfe_u32 s10, s10, 0x10002')
    A('s_lshl_b32 s65, s65, 4\ns_lshl_b32 s54, s10, 2\ns_or_b32 s65, s65, s54\ns_or_b32 s65, s65, 1')
    def gowait(tag):
        A('s_mov_b64 exec, 0xff\ns_waitcnt vmcnt(0)\nv_cmp_eq_u32 vcc, 0, v76\ns_cbranch_vccz L_god%s'%tag)
        A('s_mov_b32 s61, %d\nL_go%s:\ns_sleep 8\nglobal_load_dword v13, v77, %s sc1\ns_waitcnt vmcnt(0)\nv_cmp_eq_u32 vcc, 0, v13\ns_cbranch_vccz L_god%s'%(cfg.spin,tag,DBG,tag))
        A('s_sub_u32 s61, s61, 1\ns_cmp_lg_u32 s61, 0\ns_cbranch_scc1 L_go%s\nL_god%s:'%(tag,tag))
    A('s_cmp_lg_u32 s53, 3\ns_cbranch_scc1 L_noflag')
    A('s_mov_b64 exec, 0xff\nglobal_load_dword v76, v77, %s sc1\ns_mov_b64 exec, -1'%DBG)
    A('s_cmp_eq_u32 s13, 0\ns_cbranch_scc1 L_noflag')
    gowait('r')
    A('s_mov_b64 exec, 1\nv_mov_b32 v7, s65\nglobal_store_dword v6, v7, %s sc1'%WS)
    A('s_mov_b64 exec, -1')
    A('L_noflag:')
    if cfg.wo1:
        A('s_cmp_eq_u32 s13, 0\ns_cbranch_scc1 L_now1'); wo_dma(); A('L_now1:')
    A('s_cmp_lg_u32 s13, 0\ns_cbranch_scc1 L_noq')
    for t in range(2):
        for s_ in range(4):
            r=80+16*t+4*s_
            A('ds_read_b64_tr_b16 v[%d:%d], v8 offset:%d'%(r,r+1,L_WA+2048*s_+32*t))
            A('ds_read_b64_tr_b16 v[%d:%d], v8 offset:%d'%(r+2,r+3,L_WA+2048*s_+32*t+256))
            if t==0: A('ds_read_b128 v[%d:%d], v10 offset:%d'%(112+4*s_,115+4*s_,L_XN+64*s_))
        A('s_waitcnt lgkmcnt(0)')
    for s_ in range(4):
        for t in range(2):
            acc='v[%d:%d]'%(48+4*t,51+4*t); r=80+16*t+4*s_
            A('v_mfma_f32_16x16x32_bf16 %s, v[%d:%d], v[%d:%d], %s'%(acc,r,r+3,112+4*s_,115+4*s_,'0' if s_==0 else acc))
    A('s_lshl_b32 s54, s53, 11\nv_add_u32 v56, s54, v1\nv_and_b32 v57, 3, v0\nv_lshlrev_b32 v57, 9, v57\nv_bfe_u32 v58, v0, 2, 3\nv_lshl_add_u32 v57, v58, 4, v57\ns_nop 1')
    A('ds_write_b128 v56, v[48:51] offset:%d\nds_write_b128 v56, v[52:55] offset:%d'%(L_DP,L_DP+1024))
    lds_sync(8)
    A('s_cmp_lg_u32 s53, 3\ns_cbranch_scc1 L_noq')
    for p in range(4):
        A('ds_read_b128 v[%d:%d], v57 offset:%d\nds_read_b128 v[%d:%d], v57 offset:%d'%(80+8*p,83+8*p,L_DP+2048*p,84+8*p,87+8*p,L_DP+2048*p+256))
    A('s_waitcnt lgkmcnt(0)')
    for p in range(4):
        A('v_pk_add_f32 v[%d:%d], v[%d:%d], v[%d:%d]'%(80+2*p,81+2*p,80+2*p,81+2*p,88+2*p,89+2*p))
        A('v_pk_add_f32 v[%d:%d], v[%d:%d], v[%d:%d]'%(96+2*p,97+2*p,96+2*p,97+2*p,104+2*p,105+2*p))
    for p in range(4): A('v_pk_add_f32 v[%d:%d], v[%d:%d], v[%d:%d]'%(80+2*p,81+2*p,80+2*p,81+2*p,96+2*p,97+2*p))
    for p in range(4): A('v_cvt_pk_bf16_f32 v%d, v%d, v%d\nv_min_u32 v%d, -2, v%d'%(48+p,80+2*p,81+2*p,48+p,48+p))
    gowait('p')
    A('s_mov_b32 exec_lo, -1')
    A('global_store_dwordx4 v14, v[48:51], %s sc1'%WS)
    A('s_mov_b64 exec, -1')
    A('L_noq:')
    stamp(3)
    A('s_mov_b64 exec, 1\nds_add_u32 v11, v12 offset:%d\ns_mov_b64 exec, -1'%(L_CNT+12))
    A('s_cmp_eq_u32 s53, 0\ns_cbranch_scc1 L_qg\ns_cmp_lg_u32 s53, 1\ns_cbranch_scc1 L_qdone\ns_cmp_ge_u32 s49, %d\ns_cbranch_scc1 L_qdone'%cfg.NV)
    A('s_mov_b32 s6, 0')
    for i in range(cfg.NP):
        for c in ((0,1) if i%2==0 else (1,0)):
            l=newlab('pb'); d=newlab('pe')
            A('s_add_u32 s7, s9, %d\ns_mov_b32 s8, 0\ns_mov_b32 s61, 0\ns_load_dword s8, %s, s7'%(i*16384+c*8192,WS))
            A('%s:\ns_add_u32 s61, s61, 1\ns_cmp_gt_u32 s61, 0xffff\ns_cbranch_scc1 %s\ns_cmp_eq_u32 s8, 0\ns_cbranch_scc1 %s\n%s:\ns_waitcnt lgkmcnt(0)'%(l,d,l,d))
            if i>0: A('%s s6, s6, s61'%('s_add_i32' if c==0 else 's_sub_i32'))
    A('s_cmp_gt_i32 s6, 0\ns_cselect_b32 s6, 1, 0')
    A('s_xor_b32 s6, s6, s10\ns_lshl_b32 s6, s6, 1\ns_or_b32 s6, s6, 1\nv_mov_b32 v7, s6')
    lds_wait(11,L_CNT+12,4,2)
    A('s_mov_b64 exec, 1\nglobal_store_dword v6, v7, %s offset:256 sc1\ns_mov_b64 exec, -1\ns_branch L_qdone'%WS)
    A('L_qg:')
    A('v_and_b32 v6, 3, v0\nv_lshlrev_b32 v6, 8, v6\nv_lshrrev_b32 v14, 2, v0\nv_lshl_add_u32 v6, v14, 4, v6')
    A('s_and_b32 s54, s50, 7\ns_lshl_b32 s54, s54, 13\ns_lshr_b32 s55, s50, 3\ns_lshl_b32 s55, s55, 10\ns_add_u32 s54, s54, s55\nv_add_u32 v6, s54, v6')
    lds_wait(11,L_CNT+12,4,2)
    progress(cfg.pq)
    stamp(4)
    poll(['global_load_dwordx4 v[32:35], v6, %s sc1'%WS],None,sleep=8)
    A('ds_write_b128 v1, v[32:35] offset:%d'%L_QL)
    stamp(5)
    A('s_waitcnt lgkmcnt(0)')
    if cfg.qflag: A('ds_write_b32 v11, v12 offset:%d'%(L_CNT+16))
    A('L_qdone:')
    if cfg.touch:
        A('s_lshl_b32 s54, s50, 21\ns_load_dword s4, %s, s54'%VP)
        A('s_load_dword s6, %s, 0\ns_load_dword s7, %s, 0\ns_load_dword s8, %s, 0'%(WG,WU,WD))
        A('s_lshl_b32 s54, s48, 19\ns_load_dword s9, %s, s54'%WO)
        A('s_waitcnt lgkmcnt(0)')
    A('s_setprio 0')
    if not cfg.qflag: A('s_barrier')

    A('s_mov_b32 s70, 0\ns_and_b32 s54, s49, 0x13\ns_cmp_eq_u32 s54, s64\ns_cselect_b32 s70, 2, s70')
    A('s_cmp_lt_u32 s48, 4\ns_cselect_b32 s6, 16, 12\ns_cselect_b32 s7, 8, 6\ns_cselect_b32 s8, 0, 8\ns_mul_i32 s14, s48, s7\ns_add_u32 s14, s14, s8')
    if cfg.helper: A('s_and_b32 s54, s49, 0x13\ns_xor_b32 s54, s54, 2\ns_cmp_eq_u32 s54, s64\ns_cselect_b32 s9, s49, 99\ns_cmp_lt_u32 s9, s6\ns_cselect_b32 s70, 4, s70')
    A('s_sub_u32 s54, s49, 16\ns_cmp_lt_u32 s54, s6\ns_cselect_b32 s70, 1, s70')
    A('s_xor_b32 s55, s2, s49\ns_and_b32 s55, s55, 1\ns_cselect_b32 s70, 3, s70')
    A('s_bfe_u32 s54, s49, 0x30001\ns_add_u32 s14, s14, s54')
    A('s_lshr_b32 s15, s49, 2\ns_add_u32 s54, s48, %d\ns_and_b32 s54, s54, 7\ns_lshl_b32 s54, s54, 2\ns_add_u32 s15, s15, s54'%cfg.crot)
    if cfg.e1now:
        A('s_cmp_lg_u32 s70, 1\ns_cbranch_scc1 L_ne1')
        lds_wait(11,L_CNT+12,4,2)
        A('s_lshl_b32 s54, s14, 6')
        A('s_lshl_b32 s55, s53, 7\nv_lshrrev_b32 v6, 2, v0\nv_add_u32 v6, s55, v6\nv_mul_u32_u24 v6, 3584, v6\nv_and_b32 v7, 3, v0\nv_lshl_add_u32 v6, v7, 4, v6\nv_add_u32 v6, s54, v6')
        for k in range(cfg.E1):
            i=k//2
            A(('v_add_u32 v7, %d, v6\n'%(i*16*3584))+'s_add_u32 m0, s71, %d\ns_nop 0\nglobal_load_lds_dwordx4 v7, %s %s'%(L_WA+32768*(k&1)+i*1024,WU if k&1 else WG,cfg.ff))
        A('L_ne1:')
    CLASS()
    A('s_lshr_b32 s13, s2, 1\ns_andn2_b32 s13, s13, 2\ns_lshl_b32 s54, s11, 1\ns_or_b32 s13, s13, s54')
    A('s_and_b32 s54, s48, 3\ns_lshl_b32 s54, s54, 2\ns_add_u32 s67, s54, s68\ns_lshl_b32 s54, s11, 4\ns_add_u32 s67, s67, s54')
    if cfg.wo0: A('s_lshl_b32 s54, s48, 2\ns_add_u32 s67, s54, s68')
    A('s_bfe_u32 s69, s49, 0x20001')
    A('v_and_b32 v6, 3, v0\nv_lshlrev_b32 v6, 2, v6\nv_lshrrev_b32 v7, 4, v0\nv_add_u32 v6, v6, v7')
    A('v_bfe_u32 v7, v0, 2, 1')
    A('v_lshrrev_b32 v24, 3, v0\nv_lshlrev_b32 v24, 13, v24\nv_and_b32 v13, 7, v0\nv_lshl_add_u32 v24, v13, 3, v24')
    A('s_and_b32 s54, s13, 31\ns_lshl_b32 s54, s54, 8\ns_lshr_b32 s55, s13, 5\ns_lshl_b32 s55, s55, 6\ns_add_u32 s54, s54, s55\ns_add_u32 s54, s54, %d\nv_add_u32 v24, s54, v24\ns_mov_b32 s55, s13'%HB)
    A('v_lshlrev_b32 v6, 1, v6\nv_lshl_add_u32 v6, v7, 10, v6\ns_lshr_b32 s54, s55, 5\ns_lshl_b32 s54, s54, 11\ns_and_b32 s55, s55, 31\ns_lshl_b32 s55, s55, 5\ns_add_u32 s54, s54, s55\nv_add_u32 v6, s54, v6')
    A('global_load_ushort v16, v6, %s'%X)
    def paced(k,n,line):
        if cfg.nb:
            nb=min(cfg.nb,n); span=16//nb
            bi=lambda k:(k*nb)//n
            if k==0 or bi(k)!=bi(k-1):
                A('s_lshr_b32 s55, s49, 1\ns_and_b32 s55, s55, %d\ns_add_u32 s55, s55, %d'%(span-1,cfg.pw0+1+span*bi(k)))
                progress('s55')
            assert cfg.pw0+16<cfg.NS-1
            A(line); return
        f=lambda k: cfg.pw0+(k*(cfg.pw1-cfg.pw0))//n
        if k==0 or f(k)!=f(k-1): progress(f(k))
        assert f(k)<cfg.NS
        A(line)
    def dma1(k):
        i=k//2
        return ('v_add_u32 v7, %d, v6\n'%(i*16*3584))+'s_add_u32 m0, s71, %d\ns_nop 0\nglobal_load_lds_dwordx4 v7, %s %s'%(L_WA+32768*(k&1)+i*1024,WU if k&1 else WG,cfg.ff)
    def dma2(i):
        return ('v_add_u32 v7, %d, v6\n'%(i*0x8000))+'s_add_u32 m0, s71, %d\ns_nop 0\nglobal_load_lds_dwordx4 v7, %s %s'%(L_WA+i*1024,WD,cfg.ff)
    l1=newlab('w1'); l2=newlab('w2'); le=newlab('we')
    A('s_cmp_eq_u32 s70, 0\ns_cbranch_scc1 %s\ns_cmp_eq_u32 s70, 2\ns_cbranch_scc1 %s\ns_cmp_lg_u32 s70, 3\ns_cbranch_scc1 %s'%(le,l2,l1))
    A('s_lshl_b32 s54, s67, 7\ns_lshl_b32 s55, s53, 1\ns_add_u32 s54, s54, s55\ns_lshl_b32 s54, s54, 10\ns_lshl_b32 s55, s69, 8\ns_add_u32 s54, s54, s55')
    A('v_lshrrev_b32 v6, 4, v0\nv_lshlrev_b32 v6, 13, v6\nv_and_b32 v7, 15, v0\nv_lshl_add_u32 v6, v7, 4, v6\nv_add_u32 v6, s54, v6')
    A('s_lshl_b32 s71, s53, 13')
    def dmaw(i):
        return 'v_add_u32 v7, %d, v6\ns_add_u32 m0, s71, %d\ns_nop 0\nglobal_load_lds_dwordx4 v7, %s %s'%((32*(i&3)+(i>>2))*1024,L_WA+i*1024,WO,cfg.wf)
    for i in range(0 if (cfg.noW or cfg.wo0) else cfg.EW): paced(i,cfg.EW,dmaw(i))
    A('s_branch %s'%le)
    A('%s:'%l1)
    A('s_lshl_b32 s54, s14, 6')
    A('s_lshl_b32 s55, s53, 7\nv_lshrrev_b32 v6, 2, v0\nv_add_u32 v6, s55, v6\nv_mul_u32_u24 v6, 3584, v6\nv_and_b32 v7, 3, v0\nv_lshl_add_u32 v6, v7, 4, v6\nv_add_u32 v6, s54, v6')
    A('s_lshl_b32 s71, s53, 13')
    A('s_cmp_eq_u32 s70, 4\ns_cbranch_scc1 %s'%le)
    for k in range(0 if cfg.e1now else cfg.E1): paced(k,cfg.E1,dma1(k))
    A('s_branch %s'%le)
    A('%s:'%l2)
    A('s_mul_i32 s54, s53, 448\nv_lshrrev_b32 v6, 1, v0\nv_add_u32 v6, s54, v6\nv_lshlrev_b32 v6, 10, v6')
    A('v_and_b32 v7, 1, v0\nv_lshl_add_u32 v6, v7, 4, v6\ns_lshl_b32 s54, s15, 5\nv_add_u32 v6, s54, v6')
    A('s_mul_i32 s71, s53, 14336')
    for k in range(cfg.E2): paced(k,cfg.E2,dma2(k))
    A('%s:'%le)
    A('s_waitcnt vmcnt(0)')
    A('v_lshlrev_b32 v16, 16, v16')
    lds_sync(1,sleep=4)
    stamp(6)
    l1=newlab('r1'); l2=newlab('r2'); le=newlab('re')
    A('v_mov_b32 v26, 0\nv_mov_b32 v27, 0\nv_mov_b32 v28, 0\nv_mov_b32 v29, 0')
    A('s_cmp_eq_u32 s70, 1\ns_cbranch_scc1 %s\ns_cmp_eq_u32 s70, 2\ns_cbranch_scc1 %s'%(l1,l2))
    A('v_lshrrev_b32 v8, 4, v0\nv_lshlrev_b32 v8, 11, v8\nv_bfe_u32 v7, v0, 2, 2\nv_lshl_add_u32 v8, v7, 8, v8\nv_and_b32 v7, 3, v0\nv_lshl_add_u32 v8, v7, 3, v8')
    A('s_lshl_b32 s54, s53, 6\ns_add_u32 s54, s54, %d\nv_add_u32 v8, s54, v8'%L_WA)
    def trw():
        for t in range(2):
            for s_ in range(4):
                r=80+16*t+4*s_
                A('ds_read_b64_tr_b16 v[%d:%d], v8 offset:%d'%(r,r+1,8192*s_+32*t))
                A('ds_read_b64_tr_b16 v[%d:%d], v8 offset:%d'%(r+2,r+3,8192*s_+32*t+1024))
            if t==0 or cfg.EW==8: A('s_waitcnt lgkmcnt(0)')
    if cfg.EW==8: trw()
    A('s_branch %s'%le)
    A('%s:'%l1)
    A('v_lshrrev_b32 v8, 4, v0\nv_lshlrev_b32 v8, 9, v8\nv_bfe_u32 v7, v0, 2, 2\nv_lshl_add_u32 v8, v7, 6, v8')
    A('v_and_b32 v7, 1, v0\nv_lshl_add_u32 v8, v7, 3, v8\nv_bfe_u32 v7, v0, 1, 1\nv_lshl_add_u32 v8, v7, 15, v8\ns_add_u32 s54, s71, %d\nv_add_u32 v8, s54, v8'%L_WA)
    A('s_mul_i32 s55, s14, 147\ns_lshr_b32 s55, s55, 11\ns_mul_i32 s55, s55, %d'%(16384-7168))
    A('s_lshl_b32 s54, s14, 2\ns_add_u32 s54, s54, s53\ns_lshl_b32 s54, s54, 7\ns_add_u32 s54, s54, s55\ns_add_u32 s54, s54, %d'%AB)
    A('v_and_b32 v27, 0x70, v1\nv_lshrrev_b32 v7, 4, v0\nv_lshl_add_u32 v27, v7, 16, v27\nv_bfe_u32 v7, v0, 3, 1\nv_lshlrev_b32 v7, 13, v7\nv_add3_u32 v27, v27, v7, s54')
    A('s_and_b32 s55, s48, %d\ns_lshl_b32 s55, s55, 14\ns_lshl_b32 s54, s10, 13\ns_add_u32 s54, s54, s55\ns_lshl_b32 s55, s53, 11\ns_add_u32 s54, s54, s55\ns_add_u32 s54, s54, %d'%(cfg.nH//2-1,HB))
    A('v_and_b32 v4, 7, v0\nv_lshlrev_b32 v4, 5, v4\nv_lshrrev_b32 v7, 5, v0\nv_lshl_add_u32 v4, v7, 8, v4\nv_and_b32 v7, 16, v0\nv_add3_u32 v4, v4, v7, s54')
    A('s_mul_i32 s54, s53, 5120\nv_add_u32 v10, s54, v1')
    A('v_and_b32 v5, 0x17, v0\nv_lshlrev_b32 v5, 4, v5\nv_bfe_u32 v7, v0, 3, 1\nv_lshl_add_u32 v5, v7, 3, v5\nv_lshrrev_b32 v7, 5, v0\nv_lshl_add_u32 v5, v7, 2, v5\ns_lshl_b32 s54, s53, 10\nv_add_u32 v5, s54, v5')
    A('v_and_b32 v9, 7, v0\nv_lshlrev_b32 v9, 4, v9\nv_bfe_u32 v7, v0, 2, 1\nv_lshl_add_u32 v9, v7, 8, v9\nv_and_b32 v7, 3, v0\nv_lshl_add_u32 v9, v7, 2, v9')
    for p in range(4): A('v_add_u32 v%d, %d, v5\nv_add_u32 v%d, %d, v9'%(160+p,L_XN+5120*p,164+p,L_XN+5120*p+4096))
    A('s_branch %s'%le)
    A('%s:'%l2)
    A('v_lshrrev_b32 v8, 4, v0\nv_lshlrev_b32 v8, 9, v8\nv_bfe_u32 v7, v0, 1, 1\nv_lshl_add_u32 v8, v7, 8, v8\nv_bfe_u32 v7, v0, 2, 2\nv_lshl_add_u32 v8, v7, 5, v8')
    A('v_and_b32 v7, 1, v0\nv_lshl_add_u32 v8, v7, 3, v8\ns_add_u32 s55, s71, %d\nv_add_u32 v8, s55, v8'%L_WA)
    A('v_bfe_u32 v26, v0, 2, 1\nv_lshlrev_b32 v26, 10, v26\nv_bfe_u32 v7, v0, 1, 1\nv_lshl_add_u32 v26, v7, 8, v26\nv_lshrrev_b32 v7, 3, v0\nv_lshl_add_u32 v26, v7, 4, v26\nv_and_b32 v7, 1, v0\nv_lshl_add_u32 v26, v7, 3, v26')
    A('s_and_b32 s55, s48, %d\ns_lshl_b32 s55, s55, 16\ns_lshl_b32 s54, s53, 14\ns_add_u32 s54, s54, s55\ns_lshl_b32 s55, s10, 13\ns_add_u32 s54, s54, s55\ns_add_u32 s54, s54, %d\nv_add_u32 v27, s54, v1'%(cfg.nA//2-1,AB+3072))
    A('s_mov_b32 s54, s15\ns_lshl_b32 s55, s54, 5')
    A('v_lshrrev_b32 v28, 3, v0\nv_lshlrev_b32 v28, 10, v28\nv_and_b32 v7, 7, v0\nv_lshl_add_u32 v28, v7, 2, v28\nv_add_u32 v28, s55, v28')
    A('s_lshl_b32 s54, s54, 8\ns_and_b32 s55, s48, %d\ns_lshl_b32 s55, s55, 14\ns_add_u32 s54, s54, s55\ns_lshl_b32 s55, s10, 13\ns_add_u32 s54, s54, s55\ns_add_u32 s54, s54, %d'%(cfg.nH//2-1,HB))
    A('v_lshl_add_u32 v29, v0, 2, s54')
    A('s_lshl_b32 s54, s53, 11\nv_add_u32 v10, s54, v1')
    A('%s:'%le)
    A('s_lshl_b32 s54, s53, 9\nv_add_u32 v17, s54, v3')
    A('s_and_b32 s54, s50, 3\ns_lshl_b32 s54, s54, 2\ns_add_u32 s54, s54, s53\ns_mul_i32 s54, s54, 49152\n%s\ns_lshl_b32 s55, s55, 13\ns_add_u32 s54, s54, s55'%('s_mov_b32 s55, s63' if cfg.wo0 else 's_bfe_u32 s55, s50, 0x10002'))
    A('s_lshr_b32 s6, s50, 3\ns_mul_i32 s7, s6, 11\ns_lshr_b32 s7, s7, 5\ns_mul_i32 s7, s7, %d\ns_lshl_b32 s6, s6, 2\ns_add_u32 s6, s6, s51\ns_mul_i32 s6, s6, %d'%(16384-12*OPS,OPS))
    A('s_add_u32 s54, s54, s6\ns_add_u32 s54, s54, s7\ns_add_u32 s54, s54, %d\nv_add_u32 v18, s54, v1'%OP)
    A('s_and_b32 s54, s67, 15\ns_mul_i32 s54, s54, 49152\ns_lshl_b32 s55, %s, 13\ns_add_u32 s54, s54, s55\ns_add_u32 s54, s54, %d'%('s62' if cfg.wo0 else 's11',OP))
    A('v_mul_u32_u24 v7, 11, v2\nv_lshrrev_b32 v7, 5, v7\nv_mul_u32_u24 v7, %d, v7\nv_mul_u32_u24 v25, %d, v2\nv_add3_u32 v25, v25, v7, s54\nv_add_u32 v19, v25, v3'%(16384-12*OPS,4*OPS))
    if cfg.G1 or cfg.G2:
        A('v_bfe_u32 v14, v0, 2, 3\nv_mul_u32_u24 v7, 11, v14\nv_lshrrev_b32 v7, 5, v7\nv_mul_u32_u24 v7, %d, v7\nv_and_b32 v14, 31, v0\nv_mul_u32_u24 v14, %d, v14\nv_add_u32 v14, v14, v7'%(16384-12*OPS,OPS))
        A('v_lshrrev_b32 v7, 5, v0\nv_add_u32 v7, s48, v7\nv_and_b32 v7, 3, v7\nv_mul_u32_u24 v7, %d, v7\ns_lshl_b32 s54, s10, 13\ns_add_u32 s54, s54, %d\nv_add3_u32 v14, v14, v7, s54'%(4*49152,OP+512))
    A('s_lshl_b32 s54, s53, 5\nv_mov_b32 v30, s54')
    A('v_mul_u32_u24 v20, %d, v2\nv_lshrrev_b32 v7, 1, v3\nv_add_u32 v20, v20, v7'%XOS)
    A('v_and_b32 v21, 7, v0\nv_mul_u32_u24 v21, %d, v21\nv_add_u32 v21, v21, v15'%XOS)
    A('s_lshl_b32 s54, s69, 2\ns_add_u32 s54, s54, s53\ns_lshl_b32 s54, s54, 13\ns_add_u32 s54, s54, %d'%(WP+2048))
    A('s_lshl_b32 s55, s69, 1\ns_add_u32 s55, s55, s67' if cfg.wrot else 's_mov_b32 s55, s67')
    A('v_bfe_u32 v22, v0, 1, 2')
    A('v_lshl_add_u32 v7, v22, 3, s55' if cfg.wrot else 'v_mov_b32 v7, s55')
    A('v_and_b32 v7, 31, v7\nv_lshlrev_b32 v22, 17, v22\nv_lshl_add_u32 v22, v7, 7, v22\nv_and_b32 v7, 1, v0\nv_lshl_add_u32 v22, v7, 6, v22\nv_add3_u32 v22, v22, v15, s54')
    A('s_lshl_b32 s54, s13, 12\ns_add_u32 s54, s54, %d\nv_add_u32 v23, s54, v1'%WP)
    def guarded(lines):
        A(lines)
    def drychk():
        pass
    for r in range(192,246): A('v_mov_b32 v%d, -1'%r)
    A('s_waitcnt lgkmcnt(0)')
    A('s_mov_b64 vcc, 0\ns_mov_b64 s[4:5], %d\ns_mov_b64 exec, s[4:5]'%(0 if cfg.warm else -1))
    wpl=['global_load_dwordx4 v[%d:%d], v23, %s offset:%d sc1'%(216+4*t,219+4*t,WS,1024*t) for t in range(4)]
    opl=['global_load_dwordx2 v[%d:%d], v25, %s offset:%d sc1'%(208+2*s_,209+2*s_,WS,OPS*s_+512) for s_ in range(4)]+['global_load_dwordx4 v[%d:%d], v19, %s offset:%d sc1'%(192+4*s_,195+4*s_,WS,OPS*s_) for s_ in range(4)]
    hbl=['global_load_dwordx4 v[%d:%d], v4, %s offset:%d sc1'%(216+4*t,219+4*t,WS,1024*t) for t in range(4)]
    abl=['global_load_dwordx4 v[%d:%d], v27, %s offset:%d sc1'%(216+4*t,219+4*t,WS,1024*t-3072) for t in range(7)]
    if cfg.pre:
        A('s_cmp_lg_u32 s70, 3\ns_cbranch_scc1 L_pre1')
        if cfg.pre&2: A('\n'.join(opl))
        A('s_cmp_lg_u32 s53, 0\ns_cbranch_scc1 L_pre3')
        if cfg.pre&1: A('\n'.join(wpl))
        A('s_branch L_pre3\nL_pre1:')
        if cfg.pre&4:
            A('s_cmp_lg_u32 s70, 1\ns_cbranch_scc1 L_pre2'); A('\n'.join(hbl)); A('L_pre2:\ns_cmp_lg_u32 s70, 2\ns_cbranch_scc1 L_pre3'); A('\n'.join(abl))
        A('L_pre3:')
    if cfg.fb:
        p0,stp,late,up=cfg.fb
        A('s_cmp_lg_u32 s53, 1\ns_cbranch_scc1 L_nofb')
        A('s_and_b32 s54, s49, 7\ns_lshl_b32 s54, s54, 9\ns_add_u32 s54, s54, %d\ns_add_u32 s40, s38, s54\ns_addc_u32 s41, s39, 0\ns_mov_b32 s42, %d\ns_mov_b32 s44, 0'%(RNK,p0))
        A('L_fb:')
        lds_wait(31,L_PR,'s42',2)
        A('s_mov_b32 s43, 1\ns_atomic_add s43, s[40:41], s44 glc\ns_waitcnt lgkmcnt(0)\ns_add_u32 s43, s43, 1\ns_cmp_lt_u32 s43, %d\ns_cselect_b32 s45, 2, 0\ns_cmp_ge_u32 s43, %d\ns_cselect_b32 s43, 1, s45\nv_mov_b32 v13, s43\nds_write_b32 v11, v13 offset:%d'%(cfg.early[0] if cfg.early else 0,late,L_CNT+28))
        A('s_add_u32 s44, s44, 4096\ns_add_u32 s42, s42, %d\ns_cmp_lt_u32 s42, %d\ns_cbranch_scc1 L_fb\ns_waitcnt lgkmcnt(0)'%(stp,cfg.NS if cfg.T2b else cfg.NS-2))
        assert (cfg.NS-p0)//stp+1<=20
        A('L_nofb:')
    if cfg.disp and cfg.NS<32:
        A('s_cmp_lg_u32 s53, 2\ns_cbranch_scc1 L_tail')
        A('s_lshl_b32 s54, s50, %d\ns_add_u32 s54, s54, %d\ns_add_u32 s40, s38, s54\ns_addc_u32 s41, s39, 0'%(cfg.cs,CTR))
        lds_wait(31,L_PR,cfg.NS-1,2)
        thr,small,keep2=cfg.gd or (0,cfg.disp,cfg.disp-cfg.LA)
        A('s_mov_b32 s42, 0\ns_mov_b32 s44, %d\ns_mov_b32 s45, %d'%(cfg.disp,cfg.disp-cfg.LA))
        A('L_dsp:')
        A('s_mov_b32 s43, s44\ns_atomic_add s43, s[40:41], 0x0 glc\nv_add_lshl_u32 v7, v0, s42, 2\ns_bfm_b64 s[46:47], s44, 0\ns_waitcnt lgkmcnt(0)\ns_add_u32 s43, s43, 1\ns_min_u32 s43, s43, 4096\ns_add_u32 s43, s43, %d\nv_add_u32 v13, s43, v0'%(cfg.NS*16))
        A('s_add_u32 s55, s43, s44\ns_cmp_ge_u32 s55, 512\ns_cbranch_scc1 L_dspd')
        A('s_mov_b64 exec, s[46:47]\nds_write_b32 v7, v13 offset:%d\ns_mov_b64 exec, -1'%(L_CNT+64))
        A('s_add_u32 s42, s42, s44\ns_cmp_ge_u32 s43, %d\ns_cselect_b32 s44, %d, s44\ns_cselect_b32 s45, %d, s45\ns_sub_i32 s55, s42, s45\ns_max_i32 s55, s55, 0'%(512-thr,small,keep2))
        lds_wait(11,L_CNT+24,'s55',1)
        A('s_branch L_dsp')
        A('L_dspd:')
        A('s_mov_b64 exec, 0xff\nds_write_b32 v7, v13 offset:%d\ns_mov_b64 exec, -1'%(L_CNT+64))
        A('s_waitcnt lgkmcnt(0)')
    A('L_tail:')
    stamp(7)
    guarded('s_barrier')
    def wstep(b0,s0,w):
        o=[]
        for half in range(2):
            d='v[%d:%d]'%(b0+2*half,b0+2*half+1); src='v[%d:%d]'%(s0+4*w+2*half,s0+4*w+2*half+1); f='v[%d:%d]'%(72+2*(w//2),73+2*(w//2))
            if w==0: o.append('v_pk_mul_f32 %s, %s, %s op_sel_hi:[1,0]'%(d,src,f))
            elif w%2==0: o.append('v_pk_fma_f32 %s, %s, %s, %s op_sel_hi:[1,0,1]'%(d,src,f,d))
            else: o.append('v_pk_fma_f32 %s, %s, %s, %s op_sel:[0,1,0] op_sel_hi:[1,1,1]'%(d,src,f,d))
        return o
    def wsum2(b0,s0):
        for w in range(4): A('\n'.join(wstep(b0,s0,w)))
    def wsum(b0,half,s0=None):
        d='v[%d:%d]'%(b0+2*half,b0+2*half+1)
        s0=s0 or b0
        for w in range(4):
            src='v[%d:%d]'%(s0+4*w+2*half,s0+4*w+2*half+1)
            f='v[%d:%d]'%(72+2*(w//2),73+2*(w//2))
            if w==0: A('v_pk_mul_f32 %s, %s, %s op_sel_hi:[1,0]'%(d,src,f))
            elif w%2==0: A('v_pk_fma_f32 %s, %s, %s, %s op_sel_hi:[1,0,1]'%(d,src,f,d))
            else: A('v_pk_fma_f32 %s, %s, %s, %s op_sel:[0,1,0] op_sel_hi:[1,1,1]'%(d,src,f,d))
    if cfg.gleak is not None:
        k,lo,hi,msk=cfg.gleak
        A('s_cbranch_execz L_nogl\ns_cmp_lg_u32 s53, 0\ns_cbranch_scc1 L_nogl')
        if k==8: stamp(8); A('s_waitcnt lgkmcnt(0)')
        if k==200: A('s_getreg_b32 s72, hwreg(HW_REG_XCC_ID)\ns_sub_u32 s72, s72, s48\ns_and_b32 s72, s72, 7\ns_mul_i32 s72, s72, 50\nv_mov_b32 v33, s72')
        elif k>=100: A('v_mov_b32 v32, %d\nds_read_b32 v33, v32 offset:%d\ns_waitcnt lgkmcnt(0)'%(4*(k-100),L_ST))
        else: A('v_mov_b32 v33, s%d'%(72+2*k))
        A('v_not_b32 v33, v33\nv_mov_b32 v34, s72\nv_mov_b32 v32, 0x3bf000')
        A('s_mov_b64 exec, 1')
        if k!=8: A('global_atomic_umin v32, v34, %s'%WS)
        A('s_and_b32 s54, s2, %d\ns_sub_u32 s54, s54, %d\ns_cmp_ge_u32 s54, %d\ns_cbranch_scc1 L_nogl2'%(msk,lo,hi-lo))
        A('global_atomic_umin v32, v33, %s offset:256'%WS)
        A('L_nogl2:\ns_mov_b64 exec, -1\n'+('s_nop 2' if k==8 else 's_waitcnt vmcnt(0)'))
        A('L_nogl:')
    A('ds_read_b128 v[64:67], v30 offset:%d\nds_read_b128 v[68:71], v30 offset:%d'%(L_MLW,L_MLW+16))
    for w in range(4):
        A('ds_read_b128 v[%d:%d], v17 offset:%d'%(32+4*w,35+4*w,L_OW+2048*w))
    stamp(8)
    if cfg.notail: A('s_branch L_fin')
    A('s_and_b32 exec_hi, s4, 1')
    A('s_waitcnt lgkmcnt(%d)'%(0 if cfg.diag else 4))
    A('v_max3_f32 v76, v64, v65, v66\nv_max_f32 v76, v76, v67')
    A('v_pk_add_f32 v[72:73], v[64:65], v[76:77] op_sel_hi:[1,0] neg_lo:[0,1] neg_hi:[0,1]')
    A('v_pk_add_f32 v[74:75], v[66:67], v[76:77] op_sel_hi:[1,0] neg_lo:[0,1] neg_hi:[0,1]')
    for i in range(4): A('v_exp_f32 v%d, v%d'%(72+i,72+i))
    A('v_pk_mul_f32 v[68:69], v[68:69], v[72:73]\nv_pk_fma_f32 v[68:69], v[70:71], v[74:75], v[68:69]')
    A('s_waitcnt lgkmcnt(0)')
    A('v_add_f32 v77, v68, v69')
    wsum2(32,32)
    A('s_cmp_eq_u32 s12, 0')
    A('v_mov_b32_dpp v32, v76 quad_perm:[0,1,2,3] row_mask:0x4 bank_mask:0xf')
    A('v_mov_b32_dpp v33, v77 quad_perm:[0,1,2,3] row_mask:0x4 bank_mask:0xf')
    if cfg.oloc:
        A('s_cbranch_scc1 L_opf\nglobal_store_dwordx4 v18, v[32:35], %s\ns_branch L_opd\nL_opf:\nglobal_store_dwordx4 v18, v[32:35], %s sc1\nL_opd:'%(WS,WS))
    else: guarded('global_store_dwordx4 v18, v[32:35], %s %s'%(WS,cfg.sf if cfg.opf is None else cfg.opf))
    tstamp(1)
    A('s_mov_b64 exec, s[4:5]')
    A('s_cmp_lg_u32 s70, 3\ns_cbranch_scc1 L_rdone')
    if cfg.EW<8:
        for i in range(cfg.EW,8): A(dmaw(i))
        A('s_waitcnt vmcnt(0)\ns_barrier')
        trw()
    wts=['v_max3_f32 v76, v208, v210, v212','v_max_f32 v76, v76, v214']+['v_sub_f32 v%d, v%d, v76'%(72+i,208+2*i) for i in range(4)]+['v_exp_f32 v%d, v%d'%(72+i,72+i) for i in range(4)]
    wts+=['v_mul_f32 v78, v72, v209']+['v_fmac_f32 v78, v%d, v%d'%(72+i,209+2*i) for i in range(1,4)]+['v_rcp_f32 v78, v78','s_nop 0']
    wts+=['v_pk_mul_f32 v[72:73], v[72:73], v[78:79] op_sel_hi:[1,0]','v_pk_mul_f32 v[74:75], v[74:75], v[78:79] op_sel_hi:[1,0]']
    hk={3:wts}
    for w in range(4): hk[4+w]=wstep(48,192,w)
    if cfg.wa=='ml':
        apoll(opl[:4],('c',1,0)); spoll(opl,hk)
    elif cfg.wa:
        apoll(opl,cfg.wa)
        for i in range(3,8): A('\n'.join(hk[i]))
    else: spoll(opl,hk)
    stamp(9)
    A('v_cvt_pk_bf16_f32 v48, v48, v49\nv_cvt_pk_bf16_f32 v49, v50, v51')
    A('ds_write_b64 v20, v[48:49] offset:%d'%L_XO)
    A('s_waitcnt lgkmcnt(0)'); guarded('s_barrier')
    if cfg.tdiag: tstamp(2); A('s_waitcnt lgkmcnt(0)')
    for s_ in range(4):
        A('ds_read_b128 v[%d:%d], v21 offset:%d'%(32+4*s_,35+4*s_,L_XO+64*s_))
    for s_ in range(4):
        A('s_waitcnt lgkmcnt(%d)'%(3-s_))
        for t in range(2):
            acc='v[%d:%d]'%(48+4*t,51+4*t); r=80+16*t+4*s_
            A('v_mfma_f32_16x16x32_bf16 %s, v[%d:%d], v[%d:%d], %s'%(acc,r,r+3,32+4*s_,35+4*s_,'0' if s_==0 else acc))
    A('s_mov_b32 exec_lo, 0x00ff00ff\ns_mov_b32 exec_hi, 0x00ff00ff')
    A('s_nop 4')
    A('global_store_dwordx4 v22, v[48:51], %s offset:-2048 %s'%(WS,cfg.sf))
    A('global_store_dwordx4 v22, v[52:55], %s offset:2048 %s'%(WS,cfg.sf))
    tstamp(3)
    A('s_mov_b64 exec, -1')
    A('s_cmp_lg_u32 s53, 0\ns_cbranch_scc1 L_fin')
    apoll(['global_load_dwordx4 v[%d:%d], v23, %s offset:%d sc1'%(216+4*t,219+4*t,WS,1024*t) for t in range(4)],cfg.pR)
    stamp(10)
    A('v_pk_add_f32 v[32:33], v[216:217], v[220:221]\nv_pk_add_f32 v[34:35], v[218:219], v[222:223]')
    A('v_pk_add_f32 v[40:41], v[224:225], v[228:229]\nv_pk_add_f32 v[42:43], v[226:227], v[230:231]')
    A('v_pk_add_f32 v[32:33], v[32:33], v[40:41]\nv_pk_add_f32 v[34:35], v[34:35], v[42:43]')
    A('s_nop 1\nv_permlane32_swap_b32 v32, v34\nv_permlane32_swap_b32 v33, v35')
    A('v_add_f32 v32, v32, v34\nv_add_f32 v33, v33, v35')
    A('s_nop 1\nv_permlane16_swap_b32 v32, v33\nv_add_f32 v32, v32, v33')
    dppadd(32,'row_ror:8')
    rbf(32)
    A('v_add_f32 v32, v32, v16\nv_mov_b32 v33, v32\ns_nop 1')
    A('v_permlane16_swap_b32 v32, v33\nv_cvt_pk_bf16_f32 v32, v32, v33\nv_min_u32 v32, -2, v32\nv_mov_b32 v33, v32\ns_nop 1')
    A('v_permlane32_swap_b32 v32, v33')
    A('global_store_dwordx2 v24, v[32:33], %s %s'%(WS,cfg.sf))
    tstamp(4)
    A('s_branch L_fin')
    A('L_rdone:')
    A('s_cmp_eq_u32 s70, 2\ns_cbranch_scc1 L_ffn2')
    A('s_cmp_eq_u32 s70, 0\ns_cbranch_scc1 L_fin')
    gate(cfg.G1)
    if cfg.lrot:
        assert cfg.E1%2==0
        i0=cfg.E1//2; n=8-i0
        if cfg.helper: A('s_and_b32 s6, s14, 1\ns_cmp_eq_u32 s70, 4\ns_cselect_b32 s6, 2, s6\ns_mul_i32 s6, s6, %d\ns_add_u32 s6, s6, %d'%(n//3,i0))
        else: A('s_and_b32 s6, s14, 1\ns_mul_i32 s6, s6, %d\ns_add_u32 s6, s6, %d'%(n//2,i0))
        for it in range(n):
            if cfg.helper and it==n-2*(n//3): A('s_cmp_eq_u32 s70, 4\ns_cbranch_scc1 L_fin')
            A('s_mul_i32 s7, s6, %d\nv_add_u32 v7, s7, v6\ns_lshl_b32 s7, s6, 10\ns_add_u32 s7, s7, s71\ns_add_u32 m0, s7, %d\ns_add_u32 s6, s6, 1'%(16*3584,L_WA))
            A('global_load_lds_dwordx4 v7, %s %s'%(WG,cfg.ff))
            A('s_add_u32 m0, s7, %d\ns_cmp_eq_u32 s6, 8\ns_cselect_b32 s6, %d, s6'%(L_WA+32768,i0))
            A('global_load_lds_dwordx4 v7, %s %s'%(WU,cfg.ff))
    else:
        for k in range(cfg.E1,16): A(dma1(k))
    A('s_mov_b32 exec_lo, 0xff00ff00\ns_mov_b32 exec_hi, 0xff00ff00')
    for r in range(216,232): A('v_mov_b32 v%d, 0x3f803f80'%r)
    A('s_mov_b64 exec, -1')
    A('s_waitcnt vmcnt(0)')
    for t in range(4):
        for s_ in range(4):
            r=96+16*t+4*s_
            A('ds_read_b64_tr_b16 v[%d:%d], v8 offset:%d'%(r,r+1,2048*s_+16*t))
            A('ds_read_b64_tr_b16 v[%d:%d], v8 offset:%d'%(r+2,r+3,2048*s_+16*t+256))
        A('s_waitcnt lgkmcnt(0)')
    tstamp(2)
    hk={}
    for s_ in range(4):
        B='v[%d:%d]'%(216+4*s_,219+4*s_); hk[s_]=[]
        for t in (4,0,1,2,3):
            acc='v[%d:%d]'%(32+4*t,35+4*t)
            Aop=B if t==4 else 'v[%d:%d]'%(96+16*t+4*s_,99+16*t+4*s_)
            hk[s_].append('v_mfma_f32_16x16x32_bf16 %s, %s, %s, %s'%(acc,Aop,B,'0' if s_==0 else acc))
    ns_=cfg.f1s
    spoll(['global_load_dwordx4 v[%d:%d], v4, %s offset:%d sc1'%(216+4*t,219+4*t,WS,512*t) for t in range(4)],{i:(hk[i] if i<ns_ else []) for i in range(4)},
          pre='s_mov_b32 exec_lo, 0x00ff00ff\ns_mov_b32 exec_hi, 0x00ff00ff',post='s_mov_b64 exec, -1')
    stamp(11)
    for i in range(ns_,4): A('\n'.join(hk[i]))
    A('s_nop 3')
    for t in (4,0,1,2,3):
        A('ds_write_b128 v10, v[%d:%d] offset:%d'%(32+4*t,35+4*t,L_XN+1024*t))
    tstamp(5)
    A('s_waitcnt lgkmcnt(0)\ns_barrier')
    if cfg.tdiag: tstamp(6); A('s_waitcnt lgkmcnt(0)')
    for p in range(4): A('ds_read2_b32 v[%d:%d], v%d offset0:0 offset1:32'%(52+2*p,53+2*p,164+p))
    for p in range(4):
        A('ds_read2_b32 v[%d:%d], v%d offset0:0 offset1:32'%(60+2*p,61+2*p,160+p))
        A('ds_read2_b32 v[%d:%d], v%d offset0:128 offset1:160'%(68+2*p,69+2*p,160+p))
    A('s_waitcnt lgkmcnt(8)')
    A('v_pk_add_f32 v[52:53], v[52:53], v[54:55]\nv_pk_add_f32 v[56:57], v[56:57], v[58:59]\nv_pk_add_f32 v[52:53], v[52:53], v[56:57]')
    A('v_mul_f32 v53, 0xbb000000, v53\nv_mul_f32 v52, 0x3b000000, v52')
    A('v_fma_f32 v52, -v53, v53, v52\nv_cvt_pk_bf16_f32 v53, 0, v53\nv_max_f32 v52, 0, v52\nv_cvt_pk_bf16_f32 v52, 0, v52\nv_add_f32 v52, 0x3727c5ac, v52')
    A('v_cvt_pk_bf16_f32 v52, 0, v52\nv_sqrt_f32 v52, v52')
    A('s_waitcnt lgkmcnt(0)')
    A('v_pk_add_f32 v[60:61], v[60:61], v[62:63]\nv_cvt_pk_bf16_f32 v52, 0, v52\nv_pk_add_f32 v[64:65], v[64:65], v[66:67]\nv_rcp_f32 v52, v52')
    A('v_pk_add_f32 v[68:69], v[68:69], v[70:71]\nv_pk_add_f32 v[72:73], v[72:73], v[74:75]')
    A('v_pk_add_f32 v[60:61], v[60:61], v[64:65]\nv_pk_add_f32 v[68:69], v[68:69], v[72:73]')
    A('v_fmac_f32 v60, v53, v61\nv_fmac_f32 v68, v53, v69\nv_mul_f32 v60, v60, v52\nv_mul_f32 v68, v68, v52')
    A('v_cvt_pk_bf16_f32 v32, 0, v60\nv_cvt_pk_bf16_f32 v36, 0, v68')
    A('v_mul_f32 v33, v32, v32\nv_mul_f32 v33, 0x3d372713, v33\nv_fma_f32 v33, v33, v32, v32')
    A('v_mul_f32 v33, 0xc0135761, v33\nv_exp_f32 v33, v33\ns_nop 0\nv_add_f32 v33, 1.0, v33\nv_rcp_f32 v33, v33\ns_nop 0\nv_mul_f32 v33, v33, v32')
    rbf(33)
    A('v_mul_f32 v33, v33, v36\nv_mov_b32 v34, v33\ns_nop 1\nv_permlane32_swap_b32 v33, v34')
    A('v_cvt_pk_bf16_f32 v33, v33, v34\nv_min_u32 v36, -2, v33')
    A('v_mov_b32 v32, v36\nv_mov_b32 v33, v36\ns_nop 0')
    A('v_mov_b32_dpp v32, v36 row_ror:8 row_mask:0xf bank_mask:0xc\nv_mov_b32_dpp v33, v36 row_ror:8 row_mask:0xf bank_mask:0x3')
    A('v_mov_b32 v34, v32\nv_mov_b32 v35, v33\ns_nop 0')
    A('v_permlane16_swap_b32 v32, v34\nv_permlane16_swap_b32 v33, v35')
    if cfg.nA<8: A('s_and_b32 exec_lo, s4, 0x%x\ns_mov_b32 exec_hi, 0'%((1<<(8*cfg.nA))-1))
    guarded('global_store_dwordx4 v27, v[32:35], %s %s'%(WS,cfg.sf))
    stamp(12)
    A('L_fin:')
    A('s_waitcnt vmcnt(0)')
    if cfg.diag:
        dump_stamps(14,8)
    A('s_endpgm')
    A('L_ffn2:')
    if cfg.d2: A('s_waitcnt vmcnt(0)')
    gate(cfg.G2)
    if cfg.lrot:
        n=14-cfg.E2
        A('s_and_b32 s6, s15, 3\ns_mul_i32 s6, s6, %d\ns_lshr_b32 s6, s6, 2\ns_add_u32 s6, s6, %d'%(n,cfg.E2))
        for _ in range(n):
            A('s_lshl_b32 s7, s6, 15\nv_add_u32 v7, s7, v6\ns_lshl_b32 s7, s6, 10\ns_add_u32 s7, s7, s71\ns_add_u32 m0, s7, %d\ns_add_u32 s6, s6, 1'%L_WA)
            A('global_load_lds_dwordx4 v7, %s %s'%(WD,cfg.ff))
            A('s_cmp_eq_u32 s6, 14\ns_cselect_b32 s6, %d, s6'%cfg.E2)
    else:
        for k in range(cfg.E2,14): A(dma2(k))
    A('s_waitcnt vmcnt(0)')
    for t in range(7):
        for tt in range(2):
            r=96+8*t+4*tt
            A('ds_read_b64_tr_b16 v[%d:%d], v8 offset:%d'%(r,r+1,2048*t+16*tt))
            A('ds_read_b64_tr_b16 v[%d:%d], v8 offset:%d'%(r+2,r+3,2048*t+16*tt+128))
        if t%2==0: A('s_waitcnt lgkmcnt(0)')
    tstamp(2)
    l=newlab('hp'); d=newlab('hd')
    A('s_mov_b32 s61, %d\n%s:\nglobal_load_dword v60, v29, %s sc1\ns_waitcnt vmcnt(0)\nv_cmp_eq_u32 vcc, -1, v60\ns_cbranch_vccz %s'%(cfg.spin,l,WS,d))
    A('s_sub_u32 s61, s61, 1\ns_cmp_lg_u32 s61, 0\ns_cbranch_scc1 %s\n%s:'%(l,d))
    A('v_and_b32 v61, s60, v60\nv_lshlrev_b32 v60, 16, v60')
    hk={}
    for t in range(7):
        hk[t]=[]
        for tt in range(2):
            acc='v[%d:%d]'%(64+4*tt,67+4*tt); r=96+8*t+4*tt
            hk[t].append('v_mfma_f32_16x16x32_bf16 %s, v[%d:%d], v[%d:%d], %s'%(acc,r,r+3,216+4*t,219+4*t,'0' if t==0 else acc))
    spoll(abl,hk)
    stamp(10)
    A('s_nop 3')
    A('ds_write_b128 v10, v[64:67] offset:%d'%L_DP)
    A('ds_write_b128 v10, v[68:71] offset:%d'%(L_DP+1024))
    A('s_waitcnt lgkmcnt(0)'); guarded('s_barrier')
    tstamp(6)
    A('s_cmp_lg_u32 s53, 0\ns_cbranch_scc1 L_fin')
    for w in range(4):
        A('ds_read_b64 v[%d:%d], v26 offset:%d'%(32+4*w,33+4*w,L_DP+2048*w))
        A('ds_read_b64 v[%d:%d], v26 offset:%d'%(34+4*w,35+4*w,L_DP+2048*w+640))
    A('s_waitcnt lgkmcnt(0)')
    for w in range(4): A('v_pk_add_f32 v[%d:%d], v[%d:%d], v[%d:%d]'%(32+4*w,33+4*w,32+4*w,33+4*w,34+4*w,35+4*w))
    A('v_pk_add_f32 v[32:33], v[32:33], v[36:37]\nv_pk_add_f32 v[40:41], v[40:41], v[44:45]\nv_pk_add_f32 v[32:33], v[32:33], v[40:41]')
    A('v_cvt_pk_bf16_f32 v32, 0, v32\nv_cvt_pk_bf16_f32 v33, 0, v33')
    A('v_pk_add_f32 v[32:33], v[32:33], v[60:61]')
    A('v_cvt_pk_bf16_f32 v32, v32, v33')
    if cfg.odiag: stamp(12)
    guarded('global_store_dword v28, v32, %s %s'%(OUT,cfg.of))
    if cfg.odiag: A('s_waitcnt vmcnt(0)')
    drychk()
    if cfg.diag:
        stamp(13)
        if cfg.leak is not None:
            a,b=cfg.leak
            A('s_waitcnt lgkmcnt(0)')
            if cfg.gleak is not None:
                A('v_mov_b32 v8, 0x3bf000\nglobal_load_dword v9, v8, %s sc1\nglobal_load_dword v10, v8, %s offset:256 sc1\ns_waitcnt vmcnt(0)'%(WS,WS))
                if b==14: A('v_not_b32 v9, v10\nv_mov_b32 v10, s%d'%(72+2*13))
                elif b==13: A('v_mov_b32 v10, s%d'%(72+2*13))
                else: A('v_not_b32 v10, v10')
                A('v_sub_u32 v9, v10, v9\ns_nop 1\nv_readfirstlane_b32 s54, v9')
                if b==0: A('s_mov_b32 s54, 0')
            elif a>=100:
                A('v_mov_b32 v8, %d\nds_read_b32 v9, v8 offset:%d\nds_read_b32 v10, v8 offset:%d\ns_waitcnt lgkmcnt(0)\nv_sub_u32 v9, v9, v10\ns_nop 1\nv_readfirstlane_b32 s54, v9'%(0,L_ST+4*(b-100),L_ST+4*(a-100)))
            elif b>=100:
                A('v_mov_b32 v8, %d\nds_read_b32 v9, v8 offset:%d\ns_waitcnt lgkmcnt(0)\nv_readfirstlane_b32 s54, v9\ns_sub_u32 s54, s54, s%d'%(4*(b-100),L_ST,72+2*a))
            else: A('s_sub_u32 s54, s%d, s%d'%(72+2*b,72+2*a))
            A('s_mul_i32 s54, s54, %d\ns_min_u32 s54, s54, 60000'%cfg.mult)
            A('L_leak:')
            A('s_memrealtime s[68:69]\ns_waitcnt lgkmcnt(0)\ns_sub_u32 s55, s68, s%d\ns_cmp_lt_u32 s55, s54\ns_cbranch_scc1 L_leak'%(72+2*13))
        else:
            A('s_waitcnt lgkmcnt(0)\ns_mov_b32 s100, s92\ns_mov_b32 s92, 0')
            dump_stamps(15,8)
    A('L_end:')
    A('s_endpgm')
    A('L_last:')
    A('.section .rodata,"a"\n.p2align 6\n.amdhsa_kernel %s'%K)
    A('  .amdhsa_next_free_vgpr 256\n  .amdhsa_next_free_sgpr 102\n  .amdhsa_accum_offset 256\n  .amdhsa_group_segment_fixed_size 0\n  .amdhsa_kernarg_size 96')
    A('  .amdhsa_user_sgpr_count 2\n  .amdhsa_user_sgpr_kernarg_segment_ptr 1\n  .amdhsa_system_sgpr_workgroup_id_x 1')
    A('  .amdhsa_float_denorm_mode_32 3\n  .amdhsa_float_denorm_mode_16_64 3')
    A('.end_amdhsa_kernel')
    return '\n'.join(L)+'\n'

if __name__=='__main__':
    cfg=Cfg()
    out=sys.argv[1]
    for a in sys.argv[2:]:
        k,v=a.split('=',1); setattr(cfg,k,eval(v))
    s=gen(cfg)
    hdr=''.join(l for l in open('cdna_kernels/%s.s.ref'%NAME).readlines()[:13])
    open(out,'w').write(hdr+s)
```

```python
import sys
NAME='sequential_preLN__gqa_block_cached__geglu_ffn__decode'
K=NAME+'_kernel'

class Cfg:
    diag=False
    leak=None
    nocomp=False
    noq=False
    T2=12
    cpf=2
    b3=8
    cf='sc1'; nclr=4; wide=None; wo0=True; wo1=False; e1now=True; fb=(11,4,24,2); early=None; qfull=False; qf=''; gmask=True; bA=(2,5,3); NV=4; gmap=2; opf=None; oloc=True; wa=None; d2=0; hdiag=False; lspin=1<<21; T2b=None; bB=(1,2); bF=1
    f1s=1
    nb=1; gd=(16,2,2)
    G1=0; G2=0
    disp=4; LA=1; boost=(1,5,3); lf='sc1'; sf='sc1'
    skipG=False; skipF=False
    par=None
    NP=3
    HS=20736; AS=28672; wrot=False; pre=0; head=0
    upfront=False
    vdiag=None
    odiag=False
    touch=True
    sdiag=False
    mult=1
    Q1=0; Q2=0
    E1=2; E2=0; EW=8; lrot=True; helper=True
    T0=None; n0=40
    qflag=True
    chunk=0
    bare=0
    notail=False
    knat=False
    cdbg=False
    ctouch=None
    rot=4
    cs=9
    nowq=False
    noqst=False
    nH=8; nA=8
    pW=('c',1,0); pR=('m',8,1); pF=('c',1,0); pG=('c',1,0)
    tdiag=False
    tsleep=0
    crot=0
    noclr=False
    wolate=False
    warm=False
    of=''
    gleak=None
    NS=30
    sflag=False
    svcfirst=0
    spin=1<<17
    T=5
    kf='nt'; vf='nt'; wf='nt'; ff=''
    pq=5
    pw0=8
    pw1=22
    noW=False

QP=0x0
FLG=0x80000
CLR=0x200000
WP=0x200000
OP=0x280000
OPS=640
HB=0x340000
AB=0x360000
CTR=0x3A0000
RNK=0x3A8000
PRB=0x3C0000
STAMP=0x10000000
L_MLW=64
L_QL=256
L_XN=1280
XNS=1040
L_XO=9600
XOS=272
L_DP=11776
L_OW=19968
L_ST=28160
L_PR=28416
L_CNT=L_PR+1024
L_WA=30720
LDS_BYTES=L_WA+65536

LOG2E=0x3fb8aa3b
SCALE=0x3db504f3

def gen(cfg):
    L=[]
    def A(s):
        L.extend(s.split('\n'))
    lab=[0]
    def newlab(p):
        lab[0]+=1
        return 'L_%s_%d'%(p,lab[0])
    X,KP,VP,WQ,WO,BX,WG,WU,WD,OUT,DBG,WS=['s[%d:%d]'%(16+2*i,17+2*i) for i in range(12)]
    def stamp(i):
        if cfg.diag: A('s_memrealtime s[%d:%d]'%(72+2*i,73+2*i))
    site=[0]
    def expired(vz,vt,name):
        if cfg.hdiag:
            site[0]+=1; print('site',site[0],name,file=sys.stderr)
            A('s_add_u32 s54, s2, 1000\nv_mov_b32 v%d, 0\nv_mov_b32 v%d, s54\nglobal_store_dword v%d, v%d, %s offset:%d sc1\ns_waitcnt vmcnt(0)'%(vz,vt,vz,vt,DBG,256+4*site[0]))
    def tstamp(i):
        if cfg.tdiag: stamp(i)
    def pack_stamps(n,vt):
        A('s_waitcnt lgkmcnt(0)')
        A('v_mov_b32 v%d, 0'%vt)
        for i in range(n): A('v_writelane_b32 v%d, s%d, %d'%(vt,72+2*i,i))
    def dump_stamps(n,vt):
        if not cfg.diag: return
        A('s_mov_b64 exec, -1')
        pack_stamps(n,vt)
        A('v_lshlrev_b32 v%d, 2, v0'%(vt+1))
        A('ds_read_b32 v%d, v%d offset:%d'%(vt+2,vt+1,L_ST))
        A('s_lshl_b32 s66, s2, 9\ns_add_u32 s66, s66, %d'%(STAMP))
        A('v_add_u32 v%d, s66, v%d'%(vt+1,vt+1))
        A('s_mov_b64 exec, 0xffff')
        A('s_waitcnt lgkmcnt(0)')
        A('global_store_dword v%d, v%d, %s'%(vt+1,vt+2,WS))
        A('s_lshl_b32 s66, s53, 6\nv_add_u32 v%d, s66, v%d'%(vt+1,vt+1))
        A('global_store_dword v%d, v%d, %s offset:64'%(vt+1,vt,WS))

    A('; @launch grid=(256,1,1) block=(512,1,1) lds=%d'%LDS_BYTES)
    A(""";
;            that fill before any use), data are written through with sc1 and polled with sc1 loads; all polls are bounded.
;""")
    A('.amdgcn_target "amdgcn-amd-amdhsa--gfx950"\n.text\n.globl %s\n.p2align 8\n.type %s,@function\n%s:'%(K,K,K))
    A('s_cmp_ge_u32 s2, 256\ns_cbranch_scc1 L_end')
    stamp(0)
    A('v_lshrrev_b32 v1, 6, v0')
    A('v_lshlrev_b32 v3, 2, v0')
    A('v_readfirstlane_b32 s52, v1')
    A('s_cmp_lt_u32 s52, 4\ns_cbranch_scc1 L_noz')
    if cfg.cpf==2:
        A('s_getpc_b64 s[6:7]\nL_pc:\ns_lshr_b32 s8, s2, 3\ns_lshl_b32 s8, s8, 10\nv_add_u32 v100, s8, v3\nv_min_u32 v100, L_last-L_pc+1024-4, v100')
        A('v_mov_b32 v101, s7\nv_add_co_u32 v100, vcc, s6, v100\nv_mov_b32 v30, 0\ns_nop 0\nv_addc_co_u32 v101, vcc, 0, v101, vcc')
        A('global_load_dword v102, v[100:101], off offset:-1024')
    A('v_mov_b32 v30, 0')
    A('ds_write_b32 v3, v30 offset:%d\nds_write_b32 v3, v30 offset:%d'%(L_PR-1024,L_PR))
    A('s_waitcnt lgkmcnt(0)')
    A('L_noz:')
    A('s_load_dwordx16 s[16:31], s[0:1], 0')
    A('s_load_dwordx8 s[32:39], s[0:1], 64')
    A('s_barrier')
    if cfg.diag:
        for i in range(1,14): A('s_mov_b32 s%d, 0'%(72+2*i))
    A('v_and_b32 v0, 63, v0')
    A('s_and_b32 s48, s2, 7\ns_lshr_b32 s49, s2, 3\ns_lshl_b32 s50, s49, 1\ns_bfe_u32 s54, s2, 0x10001\ns_or_b32 s50, s50, s54')
    A('s_and_b32 s51, s2, 1\ns_bfe_u32 s54, s2, 0x10002\ns_lshl_b32 s54, s54, 1\ns_or_b32 s51, s51, s54')
    A('s_mov_b32 s64, s51')
    if cfg.gmap==1: A('s_lshr_b32 s50, s49, 2\ns_lshl_b32 s50, s50, 3\ns_or_b32 s50, s50, s48\ns_and_b32 s51, s49, 3')
    if cfg.gmap==2: A('s_bfe_u32 s50, s49, 0x30001\ns_lshl_b32 s50, s50, 3\ns_or_b32 s50, s50, s48\ns_lshr_b32 s51, s49, 4\ns_lshl_b32 s51, s51, 1\ns_and_b32 s54, s49, 1\ns_or_b32 s51, s51, s54')
    A('s_mov_b32 s59, 0x%x\ns_mov_b32 s60, 0xffff0000'%(LOG2E))
    A('v_lshlrev_b32 v1, 4, v0')
    A('s_cmp_ge_u32 s52, 4\ns_cbranch_scc1 L_service')

    import math
    TH=math.ceil(cfg.T)
    NS=cfg.NS
    RB=64
    A('s_lshl_b32 s54, s50, 21')
    A('s_lshl_b32 s62, s51, 2\ns_add_u32 s62, s62, s52')
    for i in range(4): A('s_add_u32 s%d, s62, %d\ns_and_b32 s%d, s%d, 15\ns_lshl_b32 s%d, s%d, 12'%(8+i,cfg.rot*i,8+i,8+i,8+i,8+i))
    A('v_lshrrev_b32 v2, 4, v0\nv_lshlrev_b32 v2, 6, v2\nv_and_b32 v4, 3, v0\nv_lshl_add_u32 v2, v4, 4, v2')
    A('v_bfe_u32 v5, v0, 2, 2\nv_lshl_add_u32 v2, v5, 8, v2')
    if cfg.knat: A('v_mov_b32 v2, v1')
    A('s_mov_b32 s42, 0x200000\ns_mov_b32 s43, 0x20000\ns_mov_b32 s46, 0x200000\ns_mov_b32 s47, 0x20000')
    A('s_waitcnt lgkmcnt(0)')
    A('s_add_u32 s40, s18, s54\ns_addc_u32 s41, s19, 0\ns_and_b32 s41, s41, 0xffff')
    A('s_add_u32 s44, s20, s54\ns_addc_u32 s45, s21, 0\ns_and_b32 s45, s45, 0xffff')
    st={'n':0}
    def adv():
        if cfg.rot: A('s_add_u32 s68, s62, %d\ns_and_b32 s68, s68, 15\ns_andn2_b32 s62, s62, 15\ns_add_u32 s62, s62, 16\ns_or_b32 s62, s62, s68'%cfg.rot)
        else: A('s_add_u32 s62, s62, 16')
    def load(slot,j,throttle=True,th=None):
        if j==0: A('s_lshl_b32 s65, s62, 12')
        if throttle:
            t_=(th or cfg.T); lo=int(t_); fr=t_-lo
            w=lo+(1 if (int((j+1)*fr+1e-9)>int(j*fr+1e-9)) else 0)
            A('s_waitcnt vmcnt(%d)'%(w-1))
            if cfg.T2b and w>cfg.T2b:
                l=newlab('tb'); A('s_cmp_eq_u32 s14, 1\ns_cbranch_scc1 %s\ns_waitcnt vmcnt(%d)\n%s:'%(l,cfg.T2b-1,l))
        r=RB+slot*32+j*4
        t=j//4
        A('buffer_load_dwordx4 v[%d:%d], %s, %s, s65 offen offset:%d %s'%(r,r+3,'v2' if t==0 else 'v1','s[40:43]' if t==0 else 's[44:47]',(j%4)*1024,cfg.kf if t==0 else cfg.vf))
    def prog(val):
        A('v_mov_b32 v30, %s\nds_write_b32 v3, v30 offset:%d'%(val,L_PR))
    NK=NS//2
    assert NS%2==0 and NK>=10 and NK<=16
    slot_of={u:u-1 for u in range(7)}
    for u in range(7,NS): slot_of[u]=(u-1)%3
    slot_of[NS]=3
    FB=RB+5*32+12
    tr={'issued':0,'w':TH}
    def win(G):
        for a_,b_,w_ in (cfg.wide or []):
            if a_<=G<b_: return w_
        return TH
    def sload():
        n=tr['issued']; G=n//8; j=n%8
        tr['issued']=n+1
        if G==NS:
            tr['w']=win(G); load(slot_of[G],j,th=win(G)); return
        t=G//NK; k=2*(G%NK)+j//4
        if cfg.vdiag is not None and G==cfg.vdiag and j==0: stamp(6)
        if cfg.vdiag is not None and G==cfg.vdiag+1 and j==0: stamp(7)
        if j%4==0: A('s_add_u32 s65, s%d, %d'%(8+k%4,k*65536))
        w=cfg.T0 if (cfg.T0 and n<cfg.n0) else win(G)
        tr['w']=w
        if cfg.wo0:
            if 1<=G<9 and j==0: A('s_cmp_gt_u32 s13, %d\ns_cselect_b64 vcc, -1, 0'%G)
            if 1<=G<max(cfg.bA[1],cfg.bB[1])+cfg.bF:
                assert G<9
                l=newlab('bo'); A('s_waitcnt vmcnt(%d)\ns_cbranch_vccnz %s\ns_waitcnt vmcnt(%d)\n%s:'%(w-1+cfg.bA[2],l,w-1,l))
            elif cfg.fb and G>cfg.fb[0]:
                if j==0: A('s_waitcnt lgkmcnt(0)\nv_cmp_eq_u32 vcc, 1, v%d\nv_readfirstlane_b32 s14, v%d\nds_read_b32 v%d, v%d offset:%d'%(FB,FB,FB,FB+1,L_CNT+28))
                l=newlab('bo'); A('s_waitcnt vmcnt(%d)\ns_cbranch_vccnz %s\ns_waitcnt vmcnt(%d)'%(w-1+cfg.fb[3],l,w-1))
                if cfg.early and j%cfg.early[1]==0: A('s_cmp_eq_u32 s14, 0\ns_cbranch_scc1 %s\ns_waitcnt vmcnt(%d)'%(l,w-2))
                A('%s:'%l)
                tr['w']=w+cfg.fb[3]
            elif n>=w: A('s_waitcnt vmcnt(%d)'%(w-1))
        elif cfg.b3 and G==cfg.boost[1] and j==0:
            A('s_bfe_u32 s55, s49, 0x30001\ns_cmp_eq_u32 s55, 3\ns_cselect_b64 vcc, vcc, 0')
        if cfg.wo0: pass
        elif cfg.boost and cfg.boost[0]<=G<max(cfg.boost[1],cfg.b3):
            assert G<9 and (G<5 or w+cfg.boost[2]<=8)
            l=newlab('bo'); A('s_waitcnt vmcnt(%d)\ns_cbranch_vccnz %s\ns_waitcnt vmcnt(%d)\n%s:'%(w-1+cfg.boost[2],l,w-1,l))
        elif n>=w: A('s_waitcnt vmcnt(%d)'%(w-1))
        r=RB+slot_of[G]*32+j*4
        A('buffer_load_dwordx4 v[%d:%d], %s, %s, s65 offen offset:%d %s'%(r,r+3,'v2' if t==0 else 'v1','s[40:43]' if t==0 else 's[44:47]',(j%4)*1024,cfg.kf if t==0 else cfg.vf))
        if j==7 and n>=15: prog(G+1)
    def pro_issue(n0,n1):
        assert tr['issued']==n0
        for n in range(n0,n1): sload()
    if cfg.svcfirst: A('s_barrier')
    if cfg.sdiag: stamp(6)
    pro_issue(0,TH)
    if cfg.sdiag: stamp(7)
    if cfg.wo0:
        A('s_mov_b32 s13, %d\ns_lshr_b32 s55, s49, 2\ns_cmp_eq_u32 s55, 3\ns_cselect_b32 s13, %d, s13\ns_bfe_u32 s55, s49, 0x30001\ns_cmp_ge_u32 s49, 16\ns_cselect_b32 s14, %d, 0\ns_add_u32 s13, s13, s14'%(cfg.bA[0],cfg.bA[1],cfg.bF))
        A('s_and_b32 s55, s55, 3\ns_cmp_eq_u32 s55, 1\ns_cselect_b32 s14, %d, 1\ns_xor_b32 s55, s2, s49\ns_and_b32 s55, s55, 1\ns_cselect_b32 s13, s14, s13'%cfg.bB[1])
    elif cfg.boost: A('s_xor_b32 s55, s2, s49\ns_and_b32 s55, s55, 1\ns_cselect_b64 vcc, 0, -1')
    A('s_mov_b32 s56, 0x05040100\ns_mov_b32 s57, 0x07060302\ns_mov_b32 s58, 0x%x'%SCALE)
    A('s_lshl_b32 s54, s50, %d\ns_add_u32 s54, s54, %d\ns_add_u32 s66, s38, s54\ns_addc_u32 s67, s39, 0'%(cfg.cs,CTR))
    if cfg.cdbg: A('s_lshl_b32 s54, s50, 9\ns_add_u32 s54, s54, 4096\ns_add_u32 s66, s36, s54\ns_addc_u32 s67, s37, 0')
    A('s_lshl_b32 s55, s52, 11')
    A('v_lshlrev_b32 v4, 9, v4\nv_and_b32 v0, 0x30, v0\nv_add3_u32 v0, v4, v0, s55')
    A('v_mov_b32 v14, 0xff800000')
    if cfg.sdiag:
        stamp(9); A('s_waitcnt vmcnt(%d)'%(TH-1)); stamp(10)
    pro_issue(TH,56)
    stamp(1)
    if cfg.qflag:
        A('v_mov_b32 v31, 0\ns_mov_b32 s61, %d\nL_qw:\nds_read_b32 v15, v31 offset:%d\ns_waitcnt lgkmcnt(0)\nv_readfirstlane_b32 s54, v15\ns_cmp_lg_u32 s54, 0\ns_cbranch_scc1 L_qwd'%(cfg.lspin*4,L_CNT+16))
        A('s_sub_u32 s61, s61, 1\ns_cmp_lg_u32 s61, 0\ns_cbranch_scc1 L_qw')
        expired(31,15,'q wait')
        A('L_qwd:')
    else: A('s_barrier')
    A('ds_read_b128 v[4:7], v1 offset:%d'%L_QL)
    stamp(2)
    A('s_waitcnt lgkmcnt(0)')
    def kpart(slot,fill):
        B=RB+slot*32
        f=list(fill)
        def nxt():
            if f: f.pop(0)()
        D=[20,B,B+4,B+8]
        if cfg.nocomp:
            while f: nxt()
            return
        for i in range(4):
            A('v_mfma_f32_16x16x32_bf16 v[%d:%d], v[%d:%d], v[4:7], 0'%(D[i],D[i]+3,B+4*i,B+4*i+3))
        A('s_nop 7')
        for h in range(2):
            for step in range(3):
                for e in range(2):
                    be=2*e+h
                    S=18+e
                    A('v_add_f32_dpp v%d, v%d, v%d row_ror:%d row_mask:0xf bank_mask:0x%x'%(S,D[be]+((be+step+1)&3),(D[be]+be) if step==0 else S,12-4*step,1<<be))
                A('s_nop 0')
        nxt()
        A('s_nop 0')
        A('v_mov_b32_dpp v18, v19 quad_perm:[0,1,2,3] row_mask:0xf bank_mask:0xc')
        A('v_cvt_pk_bf16_f32 v18, 0, v18\nv_mul_f32 v18, s58, v18\nv_cvt_pk_bf16_f32 v18, 0, v18')
        A('v_max_f32 v15, v14, v18')
        A('s_nop 1\nv_max_f32_dpp v15, v15, v15 row_ror:4 row_mask:0xf bank_mask:0xf')
        A('s_nop 1\nv_max_f32_dpp v15, v15, v15 row_ror:8 row_mask:0xf bank_mask:0xf')
        A('v_mov_b32 v31, v15\ns_nop 1\nv_permlane16_swap_b32 v15, v31\nv_max_f32 v15, v15, v31')
        A('v_mov_b32 v31, v15\ns_nop 1\nv_permlane32_swap_b32 v15, v31\nv_max_f32 v15, v15, v31')
        nxt()
        A('v_sub_f32 v16, v14, v15\nv_sub_f32 v18, v18, v15\nv_cmp_neq_f32 vcc, v14, v15\nv_mul_f32 v16, s59, v16\nv_mul_f32 v18, s59, v18')
        A('v_exp_f32 v16, v16\nv_exp_f32 v18, v18\nv_mov_b32 v14, v15\nv_mul_f32 v17, s59, v15')
        A('v_mov_b32_dpp v19, v18 row_ror:12 row_mask:0xf bank_mask:0xf')
        A('v_cvt_pk_bf16_f32 v8, v18, v19')
        l=newlab('nr')
        A('s_cbranch_vccz %s'%l)
        for r in range(32,64,2):
            A('v_pk_mul_f32 v[%d:%d], v[%d:%d], v[16:17] op_sel_hi:[1,0]'%(r,r+1,r,r+1))
        A('v_mul_f32 v24, v24, v16')
        A('%s:'%l)
        A('s_nop 0')
        A('v_mov_b32_dpp v9, v8 row_ror:8 row_mask:0xf bank_mask:0xf')
        while f: nxt()
    def vpart(slot):
        B=RB+slot*32+16
        if cfg.nocomp: return
        def perms(j):
            Tt=10+2*(j&1)
            for ii in range(2):
                A('v_perm_b32 v%d, v%d, v%d, s%d'%(Tt+ii,B+4*(2*ii+1)+(j>>1),B+4*(2*ii)+(j>>1),56+(j&1)))
        perms(0)
        for j in range(8):
            if j<7: perms(j+1)
            else: A('v_mfma_f32_16x16x16_bf16 v[24:27], v[28:29], v[8:9], v[24:27]')
            Tt=10+2*(j&1)
            A('v_mfma_f32_16x16x16_bf16 v[%d:%d], v[%d:%d], v[8:9], v[%d:%d]'%(32+4*j,35+4*j,Tt,Tt+1,32+4*j,35+4*j))
    SC=[8,9,10,11,12,13,20,21,22,23,25,26,27,28,29,RB+5*32+14][:NK]
    RV=RB+5*32; TV=RV+4
    def need(n):
        rem=tr['issued']-n
        assert rem>=0
        if rem<tr['w']: A('s_waitcnt vmcnt(%d)'%rem)
    def spread(chunks,nl):
        m=len(chunks)
        for i,c in enumerate(chunks):
            if not cfg.nocomp: A(c)
            for _ in range((nl*(i+1))//m-(nl*i)//m): sload()
    def kgroup(G):
        B=RB+slot_of[G]*32
        Dr=[32+4*i for i in range(8)] if G else [20]+[32+4*i for i in range(7)]
        ch=['\n'.join('v_mfma_f32_16x16x32_bf16 v[%d:%d], v[%d:%d], v[4:7], 0'%(Dr[i],Dr[i]+3,B+4*i,B+4*i+3) for i in range(8))+'\ns_nop 1']
        for be in range(4):
            c=[]
            for step in range(3):
                for e in range(2):
                    D=Dr[2*be+e]; S=18+e
                    c.append('v_add_f32_dpp v%d, v%d, v%d row_ror:%d row_mask:0xf bank_mask:0x%x'%(S,D+((be+step+1)&3),(D+be) if step==0 else S,12-4*step,1<<be))
                c.append('s_nop 0')
            ch.append('\n'.join(c))
        ch[-1]+='\nv_cvt_pk_bf16_f32 v15, 0, v18\nv_cvt_pk_bf16_f32 v16, 0, v19\nv_mul_f32 v15, s58, v15\nv_mul_f32 v16, s58, v16'
        ch[-1]+='\nv_cvt_pk_bf16_f32 v%d, v15, v16\nv_cvt_pk_bf16_f32 v15, 0, v15\nv_cvt_pk_bf16_f32 v16, 0, v16\nv_max3_f32 v14, v14, v15, v16'%SC[G]
        return ch
    def wred(op,r):
        return ('s_nop 1\n%s_dpp v%d, v%d, v%d row_ror:4 row_mask:0xf bank_mask:0xf\ns_nop 1\n%s_dpp v%d, v%d, v%d row_ror:8 row_mask:0xf bank_mask:0xf\n'%(op,r,r,r,op,r,r,r)+
                'v_mov_b32 v31, v%d\ns_nop 1\nv_permlane16_swap_b32 v%d, v31\n%s v%d, v%d, v31\n'%(r,r,op,r,r)+
                'v_mov_b32 v31, v%d\ns_nop 1\nv_permlane32_swap_b32 v%d, v31\n%s v%d, v%d, v31'%(r,r,op,r,r))
    def softmax():
        ch=[wred('v_max_f32',14)+'\nv_mul_f32 v17, s59, v14\nv_mov_b32 v24, 0']
        for g in range(NK):
            ch.append('v_lshlrev_b32 v18, 16, v%d\nv_and_b32 v19, s60, v%d\nv_sub_f32 v18, v18, v14\nv_sub_f32 v19, v19, v14\nv_mul_f32 v18, s59, v18\nv_mul_f32 v19, s59, v19\n'%(SC[g],SC[g])+
                      'v_exp_f32 v18, v18\nv_exp_f32 v19, v19\ns_nop 0\nv_cvt_pk_bf16_f32 v%d, v18, v19\nv_add_f32 v24, v24, v18\nv_add_f32 v24, v24, v19'%SC[g])
        ch.append(wred('v_add_f32',24))
        return ch
    def vgroup(G):
        B=RB+slot_of[G]*32; P=SC[G-NK]
        def perms(j):
            Tt=TV+4*(j&1)
            return '\n'.join('v_perm_b32 v%d, v%d, v%d, s%d'%(Tt+ii,B+4*(2*ii+1)+(j>>1),B+4*(2*ii)+(j>>1),56+(j&1)) for ii in range(4))
        c0='v_mov_b32 v%d, v%d\n'%(RV,P)+'\n'.join('v_mov_b32_dpp v%d, v%d row_ror:%d row_mask:0xf bank_mask:0xf'%(RV+r,P,16-4*r) for r in range(1,4))+'\n'+perms(0)
        ch=[c0]
        for j in range(8):
            Tt=TV+4*(j&1); acc='v[%d:%d]'%(32+4*j,35+4*j)
            ch.append((perms(j+1) if j<7 else 's_nop 1')+'\nv_mfma_f32_16x16x32_bf16 %s, v[%d:%d], v[%d:%d], %s'%(acc,Tt,Tt+3,RV,RV+3,'0' if G==NK else acc))
        return ch
    def request():
        if not cfg.chunk:
            A('s_mov_b32 s63, 1\ns_atomic_add s63, s[66:67], 0x0 glc'); return
        la=newlab('ra'); lb=newlab('rb')
        A('s_cmp_eq_u32 s69, 0\ns_cbranch_scc1 %s'%la)
        A('s_mov_b32 s69, 0\ns_sub_u32 s63, s62, %d\ns_branch %s'%(NS*16,lb))
        A('%s:'%la)
        A('s_cmp_lt_u32 s62, %d\ns_cselect_b32 s69, 1, 0\ns_add_u32 s63, s69, 1\ns_atomic_add s63, s[66:67], 0x0 glc'%(512-cfg.chunk))
        A('%s:'%lb)
    for G in range(8):
        need(8*G+8)
        spread(kgroup(G),[0,4,4,3,4,3,3,3][G])
    assert tr['issued']==80
    A('v_mov_b32 v%d, 0\nv_mov_b32 v%d, 0'%(FB,FB+1))
    stamp(3)
    def get():
        lb=int(math.log2(cfg.disp)); l=newlab('gt'); d=newlab('gd')
        A('s_cmp_ge_u32 s62, 512\ns_cbranch_scc1 %s'%d)
        A('v_mov_b32 v31, 0\nv_mov_b32 v30, 1\ns_mov_b64 exec, 1\nds_add_rtn_u32 v30, v31, v30 offset:%d\ns_waitcnt lgkmcnt(0)'%(L_CNT+24))
        A('v_lshlrev_b32 v31, 2, v30')
        e=newlab('ge')
        A('s_mov_b32 s61, %d\n%s:\nds_read_b32 v30, v31 offset:%d\ns_waitcnt lgkmcnt(0)\nv_readfirstlane_b32 s63, v30\ns_cmp_lg_u32 s63, 0\ns_cbranch_scc1 %s'%(cfg.lspin*4,l,L_CNT+64,e))
        A('s_sub_u32 s61, s61, 1\ns_cmp_lg_u32 s61, 0\ns_cbranch_scc1 %s'%l)
        expired(31,30,'get')
        A('s_mov_b32 s63, 512\n%s:\ns_mov_b64 exec, -1'%e)
        A('%s:'%d)
    for G in range(8,NS):
        if G==NS-2:
            stamp(4)
            if NS<32: A('s_mov_b32 s62, 0'); get(); A('s_mov_b32 s62, s63')
        need(8*G+8)
        ch=kgroup(G) if G<NK else vgroup(G)
        if G==NK: ch=softmax()+ch
        if G<NS-2: spread(ch,8)
        elif NS==32: spread(ch,0)
        elif G==NS-2: spread(ch,TH)
        else: spread(ch[:-1],8-TH); spread(ch[-1:],0)
    if NS==32: A('s_nop 0\ns_branch L_sdone')
    A('s_cmp_ge_u32 s62, 512\ns_cbranch_scc1 L_sdone')
    A('v_mov_b32 v28, 0x3f803f80\nv_mov_b32 v29, 0x3f803f80\nv_mov_b32 v25, 0\nv_mov_b32 v26, 0\nv_mov_b32 v27, 0')
    if cfg.disp: get(); A('s_mov_b32 s62, s63')
    else: A('s_waitcnt lgkmcnt(0)\ns_add_u32 s62, s63, %d'%(NS*16+1))
    if cfg.T2b: A('ds_read_b32 v%d, v%d offset:%d\ns_waitcnt lgkmcnt(0)\nv_readfirstlane_b32 s14, v%d'%(FB,FB+1,L_CNT+28,FB))
    A('s_mov_b32 s64, %d'%(NS+1))
    def body(c,th):
        if cfg.upfront:
            for j in range(8): load(1-c,j,th=th,throttle=(8+j>=th))
            if th>12: A('s_waitcnt vmcnt(12)')
            kpart(c,[])
            A('s_waitcnt vmcnt(8)')
            vpart(c)
            return
        for j in range(4): load(7-c,j,th=th)
        if th>8: A('s_waitcnt vmcnt(8)')
        kpart(c,[(lambda j=j: load(7-c,j,th=th)) for j in range(4,8)])
        if cfg.disp: get()
        if th>8: A('s_waitcnt vmcnt(8)')
        vpart(c)
    A('L_dyn:')
    for c in (3,4):
        ls=newlab('st'); lc=newlab('sc')
        if cfg.diag: A('s_add_u32 s64, s64, 1')
        if not cfg.disp:
            A('s_cmp_ge_u32 s62, 512\ns_cbranch_scc1 %s'%ls)
            request()
            A('%s:'%ls)
        body(c,cfg.T2 or cfg.T)
        A('s_cmp_ge_u32 s62, 512\ns_cbranch_scc1 L_sdone')
        if cfg.disp: A('s_mov_b32 s62, s63')
        else:
            A('s_waitcnt lgkmcnt(0)')
            A('s_add_u32 s62, s63, %d'%(NS*16+1))
    A('s_branch L_dyn')
    A('L_sdone:')
    A('s_mov_b32 exec_lo, 0x000f000f\ns_mov_b32 exec_hi, 0x000f000f')
    stamp(5)
    A('s_lshl_b32 s55, s52, 2\nv_and_b32 v31, 0x30, v1\nv_lshl_add_u32 v31, v31, 1, s55')
    for j in range(8):
        A('ds_write_b128 v0, v[%d:%d] offset:%d'%(32+4*j,35+4*j,L_OW+64*j))
    A('ds_write2_b32 v31, v17, v24 offset0:%d offset1:%d'%(L_MLW//4,L_MLW//4+4))
    if cfg.diag:
        A('s_mov_b64 exec, -1')
        A('s_cmp_lg_u32 s52, 0\ns_cbranch_scc1 L_nost')
        pack_stamps(11 if cfg.sdiag else 8,8)
        A('v_writelane_b32 v8, s64, 8')
        A('ds_write_b32 v3, v8 offset:%d'%L_ST)
        A('L_nost:')
    A('s_waitcnt lgkmcnt(0)')
    A('s_barrier')
    A('s_endpgm')

    A('L_service:')
    if cfg.bare:
        A('s_sub_u32 s53, s52, 4\nv_mov_b32 v11, 0\nv_mov_b32 v12, 1\nv_mov_b32 v40, -1\nv_mov_b32 v41, -1\nv_mov_b32 v42, -1\nv_mov_b32 v43, -1\ns_waitcnt lgkmcnt(0)')
        if cfg.bare&2:
            A('s_lshl_b32 s54, s2, 2\ns_add_u32 s54, s54, s53\ns_mul_i32 s54, s54, 640\ns_add_u32 s54, s54, %d\nv_add_u32 v6, s54, v1\ns_mov_b32 exec_hi, 0xff\nglobal_store_dwordx4 v6, v[40:43], %s sc1\ns_mov_b64 exec, -1'%(CLR+0x100000,WS))
        if cfg.bare&4:
            A('global_load_dwordx4 v[32:35], v1, %s'%X)
        if cfg.bare&8:
            A('v_mov_b32 v6, s2\ns_mov_b64 exec, 1\nglobal_store_byte v6, v12, %s sc1\ns_mov_b64 exec, -1'%DBG)
        A('ds_write_b32 v11, v12 offset:%d\ns_waitcnt lgkmcnt(0)\ns_barrier\ns_barrier'%(L_CNT+8))
        if cfg.bare&16:
            A('v_lshlrev_b32 v7, 2, v0\nglobal_load_dword v13, v7, %s sc1'%DBG)
        A('s_barrier\ns_endpgm')
    A('s_setprio 3')
    A('s_sub_u32 s53, s52, 4')
    A('s_lshl_b32 s66, s53, 12')
    A('s_mov_b32 s3, %d'%FLG)
    A('s_lshr_b32 s68, s49, 3\ns_and_b32 s69, s49, 7')
    A('v_lshrrev_b32 v2, 5, v0\ns_lshl_b32 s54, s53, 1\nv_add_u32 v2, s54, v2')
    A('v_and_b32 v3, 31, v0\nv_lshlrev_b32 v3, 4, v3')
    A('v_lshl_add_u32 v4, v2, 10, v3')
    A('s_xor_b32 s13, s2, s49\ns_and_b32 s13, s13, 1\ns_lshr_b32 s14, s49, 4\ns_bfe_u32 s15, s49, 0x30001')
    A('s_lshl_b32 s54, s53, 7\nv_lshrrev_b32 v14, 2, v0\nv_add_u32 v6, s54, v14\nv_lshlrev_b32 v6, 13, v6\nv_and_b32 v13, 0x30, v1')
    A('s_lshr_b32 s55, s49, 1\ns_lshl_b32 s55, s55, 6\ns_lshl_b32 s54, s48, 10\ns_add_u32 s54, s54, s55\nv_add3_u32 v6, v6, v13, s54')
    A('s_lshl_b32 s54, s48, 13\ns_add_u32 s54, s54, s55\nv_lshlrev_b32 v14, 10, v14\nv_add3_u32 v14, v14, v13, s54')
    A('v_and_b32 v7, 7, v0\nv_and_b32 v15, 0x30, v0\nv_lshlrev_b32 v77, 2, v7')
    A('s_and_b32 s14, s15, 1\ns_lshl_b32 s14, s14, 2')
    A('v_mov_b32 v40, -1\nv_mov_b32 v41, -1\nv_mov_b32 v42, -1\nv_mov_b32 v43, -1')
    A('s_lshl_b32 s71, s53, 13\ns_add_u32 m0, s71, %d'%L_WA)
    A('v_lshrrev_b32 v44, 1, v0\nv_lshlrev_b32 v44, 9, v44\nv_and_b32 v45, 16, v1\nv_add3_u32 v79, v44, v45, %s'%'s3')
    A('v_mov_b32 v44, 0\nv_mov_b32 v45, 0\nv_mov_b32 v46, 0\nv_mov_b32 v47, 0\nv_mov_b32 v11, 0\nv_mov_b32 v12, 1')
    A('s_lshl_b32 s12, s2, 2\ns_add_u32 s12, s12, s53')
    A('s_waitcnt lgkmcnt(0)')
    A('s_cmp_lg_u32 s13, 0\ns_cbranch_scc1 L_clr')
    A('global_load_dwordx4 v[32:35], v4, %s'%X)
    A('global_load_dwordx4 v[36:39], v4, %s offset:512'%X)
    for i in range(8):
        A('s_xor_b32 s54, s14, %d\ns_lshl_b32 s55, s54, 17\nv_add_u32 v13, s55, v6\ns_lshl_b32 s54, s54, 10\ns_add_u32 s54, s54, s71\ns_add_u32 m0, s54, %d\ns_nop 0'%(i,L_WA))
        A('global_load_lds_dwordx4 v13, %s %s'%(WQ,cfg.qf))
    A('s_branch L_clrd')
    A('L_clr:')
    if cfg.cpf==1:
        A('s_getpc_b64 s[6:7]\nL_pc:\ns_sub_u32 s6, s6, L_pc-%s\ns_subb_u32 s7, s7, 0'%K)
        A('s_lshr_b32 s54, s49, 1\ns_lshl_b32 s54, s54, 2\ns_add_u32 s54, s54, s53\ns_lshl_b32 s54, s54, 9\nv_lshl_add_u32 v48, v0, 3, s54\nv_min_u32 v48, L_last-%s-8, v48'%K)
        A('v_mov_b32 v55, s7\nv_add_co_u32 v54, vcc, s6, v48\ns_nop 1\nv_addc_co_u32 v55, vcc, 0, v55, vcc')
        A('global_load_dwordx2 v[50:51], v[54:55], off')
    A('s_cmp_lg_u32 s53, 3\ns_cbranch_scc1 L_nolead\ns_cmp_ge_u32 s49, 2\ns_cbranch_scc1 L_nolead')
    A('s_lshl_b32 s54, s48, 13\ns_add_u32 s54, s54, 4096\nv_add_u32 v48, s54, v1\ns_lshl_b32 s54, s48, 11\nv_add_u32 v49, s54, v79\ns_lshl_b32 s54, s48, 2\nv_mov_b32 v52, s54')
    for i in range(8): A('global_store_dwordx4 v48, v[40:43], %s offset:%d sc1'%(WS,1024*i-4096))
    A('s_mov_b64 exec, 0xff\nglobal_store_dwordx4 v49, v[44:47], %s sc1\nglobal_store_dwordx4 v49, v[44:47], %s offset:256 sc1'%(WS,WS))
    A('s_waitcnt vmcnt(0)')
    A('s_mov_b64 exec, 1\nglobal_store_dword v52, v12, %s sc1\ns_mov_b64 exec, -1'%DBG)
    A('L_nolead:')
    A('s_lshr_b32 s54, s2, 1\ns_lshl_b32 s54, s54, 2\ns_add_u32 s54, s54, s53\ns_mul_i32 s54, s54, 3584\ns_add_u32 s54, s54, %d'%CLR)
    A('v_add_u32 v6, s54, v1')
    if cfg.nclr<4: A('s_cmp_lt_u32 s2, %d\ns_cbranch_scc1 L_skc'%(232 if cfg.nclr==0 else 256))
    for i in range(3): A('global_store_dwordx4 v6, v[40:43], %s offset:%d %s'%(WS,1024*i,cfg.cf))
    A('s_mov_b32 exec_hi, 0')
    A('global_store_dwordx4 v6, v[40:43], %s offset:3072 %s'%(WS,cfg.cf))
    if cfg.nclr<4: A('L_skc:')
    def wo_dma():
        A('s_lshl_b32 s54, s48, 2\ns_add_u32 s54, s54, s68\ns_lshl_b32 s54, s54, 7\ns_lshl_b32 s55, s53, 1\ns_add_u32 s54, s54, s55\ns_lshl_b32 s54, s54, 10\ns_and_b32 s55, s15, 3\ns_lshl_b32 s55, s55, 8\ns_add_u32 s54, s54, s55')
        A('v_lshrrev_b32 v48, 4, v0\nv_lshlrev_b32 v48, 13, v48\nv_and_b32 v49, 15, v0\nv_lshl_add_u32 v48, v49, 4, v48\nv_add_u32 v48, s54, v48')
        for i in range(8):
            A('v_add_u32 v49, %d, v48\ns_add_u32 m0, s71, %d\ns_nop 0\nglobal_load_lds_dwordx4 v49, %s %s'%((32*(i&3)+(i>>2))*1024,L_WA+i*1024,WO,cfg.wf))
    if cfg.wo0 and not cfg.wo1:
        A('s_mov_b64 exec, -1')
        if not cfg.noW: wo_dma()
    A('L_clrd:')
    A('s_mov_b64 exec, -1')
    A('s_and_b32 s54, s49, 3\ns_lshl_b32 s9, s54, 16\ns_lshr_b32 s54, s49, 2\ns_lshl_b32 s54, s54, 10\ns_add_u32 s9, s9, s54\ns_lshl_b32 s54, s48, 7\ns_add_u32 s9, s9, s54\ns_add_u32 s9, s9, %d'%PRB)
    A('s_lshl_b32 s54, s53, 14\ns_add_u32 s54, s54, s9\nv_bfe_u32 v6, v0, 3, 1\nv_lshlrev_b32 v6, 13, v6\nv_and_b32 v13, 0x70, v1\nv_add3_u32 v6, v6, v13, s54')
    A('s_mov_b64 exec, 0xffff')
    A('s_cmp_ge_u32 s49, %d\ns_cbranch_scc1 L_nopl\ns_cmp_ge_u32 s53, %d\ns_cbranch_scc1 L_nopl'%(cfg.NV,cfg.NP))
    A('global_store_dwordx4 v6, v[40:43], %s sc1'%WS)
    A('L_nopl:')
    A('s_mov_b64 exec, -1')
    if cfg.svcfirst==2: A('s_barrier')
    A('v_mul_u32_u24 v5, %d, v2\nv_add_u32 v5, v5, v3'%XNS)
    A('v_lshrrev_b32 v8, 4, v0\nv_lshlrev_b32 v8, 9, v8\nv_bfe_u32 v9, v0, 2, 2\nv_lshl_add_u32 v8, v9, 6, v8\nv_and_b32 v9, 3, v0\nv_lshl_add_u32 v8, v9, 3, v8')
    A('v_add_u32 v8, s71, v8')
    A('v_mul_u32_u24 v9, %d, v7\nv_add_u32 v9, v9, v15\ns_lshl_b32 s54, s53, 8\nv_add_u32 v10, s54, v9'%XNS)
    A('s_lshl_b32 s54, s53, 8\nv_mov_b32 v31, s54')

    def dppadd(r,ctl):
        A('s_nop 1\nv_add_f32_dpp v%d, v%d, v%d %s row_mask:0xf bank_mask:0xf'%(r,r,r,ctl))
    def swapadd(r,t,w):
        A('v_mov_b32 v%d, v%d\ns_nop 1\nv_permlane%d_swap_b32 v%d, v%d\nv_add_f32 v%d, v%d, v%d'%(t,r,w,r,t,r,r,t))
    def rbf(r):
        A('v_cvt_pk_bf16_f32 v%d, 0, v%d'%(r,r))
    def layernorm(mode):
        if mode=='x':
            for i in range(8):
                A('v_lshlrev_b32 v%d, 16, v%d\nv_and_b32 v%d, s60, v%d'%(48+2*i,32+i,49+2*i,32+i))
        Q=lambda i:'v[%d:%d]'%(48+2*i,49+2*i)
        P=Q if mode=='x' else (lambda i:'v[%d:%d]'%(216+2*i,217+2*i))
        A('v_pk_add_f32 v[64:65], %s, %s\nv_pk_mul_f32 v[66:67], %s, %s'%(P(0),P(1),P(0),P(0)))
        A('v_pk_add_f32 v[68:69], %s, %s\nv_pk_mul_f32 v[70:71], %s, %s'%(P(2),P(3),P(1),P(1)))
        for i in range(2,8,2):
            if i>2: A('v_pk_add_f32 v[64:65], v[64:65], %s'%P(i))
            A('v_pk_fma_f32 v[66:67], %s, %s, v[66:67]'%(P(i),P(i)))
            if i>2: A('v_pk_add_f32 v[68:69], v[68:69], %s'%P(i+1))
            A('v_pk_fma_f32 v[70:71], %s, %s, v[70:71]'%(P(i+1),P(i+1)))
        A('v_pk_add_f32 v[64:65], v[64:65], v[68:69]\nv_pk_add_f32 v[66:67], v[66:67], v[70:71]')
        A('v_add_f32 v64, v64, v65\nv_add_f32 v66, v66, v67')
        ctl=['row_ror:1','row_ror:2','row_ror:4','row_ror:8'] if mode=='x' else ['quad_perm:[1,0,3,2]','quad_perm:[2,3,0,1]','row_ror:8']
        for c in ctl:
            A('s_nop 0')
            for r in (64,66): A('v_add_f32_dpp v%d, v%d, v%d %s row_mask:0xf bank_mask:0xf'%(r,r,r,c))
        for w in ((16,) if mode=='x' else (16,32)):
            A('v_mov_b32 v65, v64\nv_mov_b32 v67, v66\ns_nop 0')
            A('v_permlane%d_swap_b32 v64, v65\nv_permlane%d_swap_b32 v66, v67'%(w,w))
            A('v_add_f32 v64, v64, v65\nv_add_f32 v66, v66, v67')
        A('v_mul_f32 v64, 0xbb000000, v64\nv_mul_f32 v66, 0x3b000000, v66')
        A('v_cvt_pk_bf16_f32 v68, 0, v64')
        chain=['v_fma_f32 v66, -v64, v64, v66','v_max_f32 v66, 0, v66','v_cvt_pk_bf16_f32 v66, 0, v66','v_add_f32 v66, 0x3727c5ac, v66',
               'v_cvt_pk_bf16_f32 v66, 0, v66','v_sqrt_f32 v66, v66','v_cvt_pk_bf16_f32 v66, 0, v66','v_rcp_f32 v66, v66']
        for i in range(8):
            A(chain[i])
            A('v_pk_add_f32 %s, %s, v[68:69] op_sel_hi:[1,0]'%(Q(i),P(i)))
        for i in range(16): A('v_cvt_pk_bf16_f32 v%d, 0, v%d'%(48+i,48+i))
        nw=2 if mode=='h' else 4
        for i in range(8):
            A('v_pk_mul_f32 %s, %s, v[66:67] op_sel_hi:[1,0]'%(Q(i),Q(i)))
        for i in range(8):
            A('v_cvt_pk_bf16_f32 v%d, v%d, v%d'%(32+i,48+2*i,49+2*i))
            if mode=='h' and i%2==1: A('ds_write_b64 v5, v[%d:%d] offset:%d'%(31+i,32+i,L_XN+256*(i//2)))
            if mode=='x' and i%4==3: A('ds_write_b128 v5, v[%d:%d] offset:%d'%(29+i,32+i,L_XN+512*(i//4)))
    def lds_sync(cnt,sleep=0):
        l=newlab('ls')
        A('s_waitcnt lgkmcnt(0)')
        A('s_mov_b64 exec, 1\nds_add_u32 v11, v12 offset:%d\ns_mov_b64 exec, -1'%(L_CNT+4*cnt))
        lds_wait(11,L_CNT+4*cnt,4,sleep)
    def lds_wait(va,off,val,sleep):
        l=newlab('lw'); d=newlab('ld')
        A('s_mov_b32 s58, %d'%cfg.lspin)
        A('%s:'%l)
        A('ds_read_b32 v13, v%d offset:%d\ns_waitcnt lgkmcnt(0)\nv_readfirstlane_b32 s54, v13\ns_cmp_ge_u32 s54, %s\ns_cbranch_scc1 %s'%(va,off,val,d))
        if sleep: A('s_sleep %d'%sleep)
        A('s_sub_u32 s58, s58, 1\ns_cmp_lg_u32 s58, 0\ns_cbranch_scc1 %s'%l)
        expired(11,13,'lds_wait %d %s'%(off-L_CNT,val))
        A('%s:'%d)
    def progress(p): lds_wait(31,L_PR,p,6)
    def poll(loads,regs,sleep=0,guard=False):
        l=newlab('pl'); d=newlab('pd')
        if guard: sleep=cfg.tsleep
        A('s_mov_b32 s61, %d'%cfg.spin)
        A('%s:'%l)
        for x in loads: A(x)
        import re as _re
        first=True; pend=[]
        for i,x in enumerate(loads):
            m=_re.search(r'v\[(\d+):(\d+)\]',x)
            pend+=list(range(int(m.group(1)),int(m.group(2))+1))
            last=(i==len(loads)-1)
            if len(pend)<4 and not last: continue
            A('s_waitcnt vmcnt(%d)'%(len(loads)-1-i))
            while pend:
                if first:
                    if len(pend)>=3: A('v_max3_u32 v13, v%d, v%d, v%d'%tuple(pend[:3])); pend=pend[3:]
                    else: A('v_max_u32 v13, v%d, v%d'%tuple(pend[:2])); pend=pend[2:]
                    first=False
                elif len(pend)>=2: A('v_max3_u32 v13, v13, v%d, v%d'%tuple(pend[:2])); pend=pend[2:]
                elif last: A('v_max_u32 v13, v13, v%d'%pend[0]); pend=[]
                else: break
        A('v_cmp_eq_u32 vcc, -1, v13')
        A('s_cbranch_vccz %s'%d)
        if sleep: A('s_sleep %d'%sleep)
        A('s_sub_u32 s61, s61, 1\ns_cmp_lg_u32 s61, 0\ns_cbranch_scc1 %s'%l)
        A('%s:'%d)
    def apoll(loads,par):
        import re as _re
        mode,D,sleep=par
        loads=[x.replace(' sc1',' '+cfg.lf) for x in loads]
        l=newlab('al'); d=newlab('ad'); gl=newlab('ag')
        rg=[]
        for x in loads:
            m=_re.search(r'v\[(\d+):(\d+)\]',x); rg.append(list(range(int(m.group(1)),int(m.group(2))+1)))
        def chain(t,r):
            r=list(r)
            if len(r)==2: A('v_max_u32 v%d, v%d, v%d'%(t,r[0],r[1])); return
            A('v_max3_u32 v%d, v%d, v%d, v%d'%(t,r[0],r[1],r[2])); r=r[3:]
            while r:
                if len(r)==1: A('v_max_u32 v%d, v%d, v%d'%(t,t,r[0])); r=[]
                else: A('v_max3_u32 v%d, v%d, v%d, v%d'%(t,t,r[0],r[1])); r=r[2:]
        n=len(loads)
        A('s_mov_b32 s61, %d'%cfg.spin)
        if mode in 'cm':
            A('%s:'%l)
            for x in loads: A(x)
            if sleep: A('s_sleep %d'%sleep)
            A('s_waitcnt vmcnt(%d)'%min(63,n*(D-1)))
            chain(13,sum(rg,[]))
            A('v_cmp_eq_u32 vcc, -1, v13')
            A('s_cbranch_vccz %s'%d)
            if mode=='m': A('s_mov_b64 exec, vcc')
            A('s_sub_u32 s61, s61, 1\ns_cmp_lg_u32 s61, 0\ns_cbranch_scc1 %s'%l)
            A('%s:'%d)
            if mode=='m': A('s_mov_b64 exec, s[4:5]')
        else:
            mk=['s[6:7]','s[8:9]','s[56:57]','s[40:41]','s[42:43]','s[44:45]','s[46:47]','s[62:63]'][:n]
            for m_ in mk: A('s_mov_b64 %s, s[4:5]'%m_)
            A('%s:'%l)
            for x,m_ in zip(loads,mk):
                sk=newlab('as')
                A('s_mov_b64 exec, %s\ns_cbranch_execz %s'%(m_,sk)); A(x); A('%s:'%sk)
            A('s_mov_b64 exec, s[4:5]')
            if sleep: A('s_sleep %d'%sleep)
            A('s_waitcnt vmcnt(%d)'%min(63,n*(D-1)))
            for i in range(n): chain(246+i,rg[i])
            chain(13,[246+i for i in range(n)])
            A('v_cmp_eq_u32 vcc, -1, v13')
            A('s_cbranch_vccz %s'%d)
            for i in range(n): A('v_cmp_eq_u32 %s, -1, v%d'%(mk[i],246+i))
            A('s_sub_u32 s61, s61, 1\ns_cmp_lg_u32 s61, 0\ns_cbranch_scc1 %s'%l)
            A('%s:'%d)
    def spoll(loads,hooks,pre=None,post=None):
        import re as _re
        l=newlab('sl'); d=newlab('sd')
        A('s_mov_b32 s61, %d'%cfg.spin)
        A('%s:'%l)
        if pre: A(pre)
        for x in loads: A(x)
        if post: A(post)
        first=True; pend=[]
        n=len(loads)
        for i,x in enumerate(loads):
            m=_re.search(r'v\[(\d+):(\d+)\]',x)
            pend+=list(range(int(m.group(1)),int(m.group(2))+1))
            if i<n-1 and i not in hooks: continue
            A('s_waitcnt vmcnt(%d)'%(n-1-i))
            chk=[]
            while pend:
                if first:
                    chk.append('v_max3_u32 v13, v%d, v%d, v%d'%tuple(pend[:3])); pend=pend[3:]; first=False
                elif len(pend)>=2: chk.append('v_max3_u32 v13, v13, v%d, v%d'%tuple(pend[:2])); pend=pend[2:]
                elif i==n-1: chk.append('v_max_u32 v13, v13, v%d'%pend[0]); pend=[]
                else: break
            if i==n-1: chk.append('v_cmp_eq_u32 vcc, -1, v13')
            h=list(hooks.get(i,[]))
            while h or chk:
                if h: A(h.pop(0))
                if chk: A(chk.pop(0))
        A('s_cbranch_vccz %s'%d)
        A('s_sub_u32 s61, s61, 1\ns_cmp_lg_u32 s61, 0\ns_cbranch_scc1 %s'%l)
        A('%s:'%d)
    def gate(n):
        if not n: return
        l=newlab('ga'); d=newlab('gb')
        A('s_mov_b32 s61, %d\n%s:\nglobal_load_dword v13, v14, %s sc1\ns_waitcnt vmcnt(0)\nv_cmp_ne_u32 vcc, -1, v13\ns_nop 1\ns_bcnt1_i32_b64 s6, vcc\ns_cmp_ge_u32 s6, %d\ns_cbranch_scc1 %s'%(cfg.spin,l,WS,n,d))
        A('s_sleep 2\ns_sub_u32 s61, s61, 1\ns_cmp_lg_u32 s61, 0\ns_cbranch_scc1 %s\n%s:'%(l,d))
    def flagpoll(voff,execmask,par=None):
        l=newlab('fl'); d=newlab('fd')
        A('s_mov_b32 s61, %d'%cfg.spin)
        A('s_mov_b64 exec, %s'%execmask)
        A('%s:'%l)
        A('global_load_dwordx4 v[72:75], v%d, %s sc1\ns_waitcnt vmcnt(0)'%(voff,WS))
        if par: A('v_min_u32 v13, v72, v74\nv_min_u32 v76, v73, v75\nv_cndmask_b32 v13, v13, v76, %s\nv_cmp_eq_u32 vcc, 0, v13\ns_cbranch_vccz %s'%(par,d))
        else: A('v_min3_u32 v13, v72, v73, v74\nv_min_u32 v13, v13, v75\nv_cmp_eq_u32 vcc, 0, v13\ns_cbranch_vccz %s'%d)
        A('s_sleep 16')
        A('s_sub_u32 s61, s61, 1\ns_cmp_lg_u32 s61, 0\ns_cbranch_scc1 %s'%l)
        A('%s:'%d)
        A('s_mov_b64 exec, -1')
    def CLASS():
        A('s_cmp_lg_u32 s53, 0\ns_cbranch_scc1 L_nofc')
        progress(cfg.pw0)
        A('s_mov_b32 s6, 0x00ff00ff\ns_mov_b32 s7, s6')
        flagpoll(79,'-1','s[6:7]')
        A('v_cndmask_b32 v13, v72, v73, s[6:7]\nv_cndmask_b32 v76, v74, v75, s[6:7]\nv_cmp_ne_u32 vcc, s65, v13\nv_cmp_ne_u32 s[8:9], s65, v76\ns_nop 1')
        A('s_or_b64 s[8:9], s[8:9], vcc\ns_and_b32 s54, s50, 7\ns_lshl_b32 s54, s54, 3\ns_lshr_b64 s[8:9], s[8:9], s54\ns_and_b32 s8, s8, 0xff\ns_cselect_b32 s12, 0, 32')
        A('ds_write_b128 v1, v[72:75] offset:%d'%L_DP)
        A('v_add_u32 v7, 256, v79\ns_mov_b32 s6, %s\ns_mov_b32 s7, s6\ns_waitcnt lgkmcnt(0)'%('0x03030303' if cfg.NV==8 else '0x01010101'))
        flagpoll(7,'s[6:7]')
        A('s_and_b32 s54, s48, 3\ns_lshl_b32 s54, s54, 7\ns_lshl_b32 s55, s49, 2\ns_add_u32 s54, s54, s55\nv_mov_b32 v7, s54')
        A('s_mov_b32 s6, 0')
        for r in range(72,76):
            A('v_and_b32 v13, 2, v%d\nv_cmp_ne_u32 vcc, 0, v13\ns_nop 1\ns_bcnt1_i32_b64 s7, vcc\ns_add_u32 s6, s6, s7'%r)
        A('s_waitcnt lgkmcnt(0)\nds_read_b32 v13, v7 offset:%d\ns_waitcnt lgkmcnt(0)\nv_readfirstlane_b32 s7, v13'%L_DP)
        if cfg.wo0:
            A('s_and_b32 s54, s48, 3\ns_lshl_b32 s54, s54, 7\ns_andn2_b32 s55, 1, s48\ns_lshl_b32 s55, s55, 2\ns_add_u32 s54, s54, s55\nv_mov_b32 v7, s54')
            A('s_and_b32 s54, s50, 3\ns_lshl_b32 s54, s54, 7\ns_andn2_b32 s55, 1, s50\ns_lshl_b32 s55, s55, 2\ns_add_u32 s54, s54, s55\nv_mov_b32 v72, s54')
            A('ds_read_b32 v13, v7 offset:%d\nds_read_b32 v72, v72 offset:%d\ns_waitcnt lgkmcnt(0)\nv_readfirstlane_b32 s4, v13\nv_readfirstlane_b32 s5, v72'%(L_DP,L_DP))
            A('s_xor_b32 s4, s4, s48\ns_bfe_u32 s4, s4, 0x10002\ns_xor_b32 s5, s5, s50\ns_bfe_u32 s5, s5, 0x10002')
        if cfg.diag: A('s_mov_b32 s9, s6')
        A('s_cmp_ge_u32 s6, %d\ns_cselect_b32 s6, 1, 0'%(4*cfg.NV))
        if cfg.par is not None: A('s_mov_b32 s6, %d'%cfg.par)
        A('s_xor_b32 s7, s7, s48\ns_bfe_u32 s7, s7, 0x10002\ns_xor_b32 s7, s7, s6\ns_lshl_b32 s7, s7, 2\ns_lshl_b32 s6, s6, 1\ns_or_b32 s6, s6, s7\ns_or_b32 s6, s6, 1')
        if cfg.wo0: A('s_lshl_b32 s4, s4, 3\ns_lshl_b32 s5, s5, 4\ns_or_b32 s6, s6, s4\ns_or_b32 s6, s6, s5')
        A('s_or_b32 s6, s6, s12')
        A('v_mov_b32 v13, s6\nds_write_b32 v11, v13 offset:%d'%(L_CNT+8))
        if cfg.diag: A('s_cmp_lg_u32 s2, 0\ns_cbranch_scc1 L_nofc\nv_mov_b32 v13, s9\nv_mov_b32 v7, 32\nglobal_store_dword v7, v13, %s'%DBG)
        A('L_nofc:')
        lds_wait(11,L_CNT+8,1,6)
        A('s_and_b32 s12, s54, 32\ns_bfe_u32 s11, s54, 0x10002\ns_bfe_u32 s62, s54, 0x10003\ns_bfe_u32 s63, s54, 0x10004\ns_bfe_u32 s54, s54, 0x10001\ns_xor_b32 s10, s10, s54\ns_xor_b32 s62, s62, s54\ns_xor_b32 s63, s63, s54')
    def tr128(dst,base):
        for s_ in range(4):
            A('ds_read_b64_tr_b16 v[%d:%d], v8 offset:%d'%(dst+4*s_,dst+4*s_+1,base+4096*s_))
            A('ds_read_b64_tr_b16 v[%d:%d], v8 offset:%d'%(dst+4*s_+2,dst+4*s_+3,base+4096*s_+512))

    A('v_mov_b32 v76, 0')
    A('s_cmp_lg_u32 s13, 0\ns_cbranch_scc1 L_noln')
    A('s_waitcnt vmcnt(8)')
    stamp(1)
    layernorm('x')
    A('L_noln:')
    A('s_waitcnt vmcnt(0)')
    lds_sync(0)
    stamp(2)
    A('s_lshl_b32 s54, s48, 2\ns_add_u32 s54, s54, s68\ns_lshl_b32 s54, s54, 9\ns_lshl_b32 s55, s69, 2\ns_add_u32 s54, s54, s55\ns_add_u32 s54, s54, s3\nv_mov_b32 v6, s54')
    A('s_getreg_b32 s10, hwreg(HW_REG_XCC_ID)\ns_and_b32 s65, s10, 15\ns_bfe_u32 s10, s10, 0x10002')
    A('s_lshl_b32 s65, s65, 4\ns_lshl_b32 s54, s10, 2\ns_or_b32 s65, s65, s54\ns_or_b32 s65, s65, 1')
    def gowait(tag):
        A('s_mov_b64 exec, 0xff\ns_waitcnt vmcnt(0)\nv_cmp_eq_u32 vcc, 0, v76\ns_cbranch_vccz L_god%s'%tag)
        A('s_mov_b32 s61, %d\nL_go%s:\ns_sleep 8\nglobal_load_dword v13, v77, %s sc1\ns_waitcnt vmcnt(0)\nv_cmp_eq_u32 vcc, 0, v13\ns_cbranch_vccz L_god%s'%(cfg.spin,tag,DBG,tag))
        A('s_sub_u32 s61, s61, 1\ns_cmp_lg_u32 s61, 0\ns_cbranch_scc1 L_go%s\nL_god%s:'%(tag,tag))
    A('s_cmp_lg_u32 s53, 3\ns_cbranch_scc1 L_noflag')
    A('s_mov_b64 exec, 0xff\nglobal_load_dword v76, v77, %s sc1\ns_mov_b64 exec, -1'%DBG)
    A('s_cmp_eq_u32 s13, 0\ns_cbranch_scc1 L_noflag')
    gowait('r')
    A('s_mov_b64 exec, 1\nv_mov_b32 v7, s65\nglobal_store_dword v6, v7, %s sc1'%WS)
    A('s_mov_b64 exec, -1')
    A('L_noflag:')
    if cfg.wo1:
        A('s_cmp_eq_u32 s13, 0\ns_cbranch_scc1 L_now1'); wo_dma(); A('L_now1:')
    A('s_cmp_lg_u32 s13, 0\ns_cbranch_scc1 L_noq')
    for t in range(2):
        for s_ in range(4):
            r=80+16*t+4*s_
            A('ds_read_b64_tr_b16 v[%d:%d], v8 offset:%d'%(r,r+1,L_WA+2048*s_+32*t))
            A('ds_read_b64_tr_b16 v[%d:%d], v8 offset:%d'%(r+2,r+3,L_WA+2048*s_+32*t+256))
            if t==0: A('ds_read_b128 v[%d:%d], v10 offset:%d'%(112+4*s_,115+4*s_,L_XN+64*s_))
        A('s_waitcnt lgkmcnt(0)')
    for s_ in range(4):
        for t in range(2):
            acc='v[%d:%d]'%(48+4*t,51+4*t); r=80+16*t+4*s_
            A('v_mfma_f32_16x16x32_bf16 %s, v[%d:%d], v[%d:%d], %s'%(acc,r,r+3,112+4*s_,115+4*s_,'0' if s_==0 else acc))
    A('s_lshl_b32 s54, s53, 11\nv_add_u32 v56, s54, v1\nv_and_b32 v57, 3, v0\nv_lshlrev_b32 v57, 9, v57\nv_bfe_u32 v58, v0, 2, 3\nv_lshl_add_u32 v57, v58, 4, v57\ns_nop 1')
    A('ds_write_b128 v56, v[48:51] offset:%d\nds_write_b128 v56, v[52:55] offset:%d'%(L_DP,L_DP+1024))
    lds_sync(8)
    A('s_cmp_lg_u32 s53, 3\ns_cbranch_scc1 L_noq')
    for p in range(4):
        A('ds_read_b128 v[%d:%d], v57 offset:%d\nds_read_b128 v[%d:%d], v57 offset:%d'%(80+8*p,83+8*p,L_DP+2048*p,84+8*p,87+8*p,L_DP+2048*p+256))
    A('s_waitcnt lgkmcnt(0)')
    for p in range(4):
        A('v_pk_add_f32 v[%d:%d], v[%d:%d], v[%d:%d]'%(80+2*p,81+2*p,80+2*p,81+2*p,88+2*p,89+2*p))
        A('v_pk_add_f32 v[%d:%d], v[%d:%d], v[%d:%d]'%(96+2*p,97+2*p,96+2*p,97+2*p,104+2*p,105+2*p))
    for p in range(4): A('v_pk_add_f32 v[%d:%d], v[%d:%d], v[%d:%d]'%(80+2*p,81+2*p,80+2*p,81+2*p,96+2*p,97+2*p))
    for p in range(4): A('v_cvt_pk_bf16_f32 v%d, v%d, v%d\nv_min_u32 v%d, -2, v%d'%(48+p,80+2*p,81+2*p,48+p,48+p))
    gowait('p')
    A('s_mov_b32 exec_lo, -1')
    A('global_store_dwordx4 v14, v[48:51], %s sc1'%WS)
    A('s_mov_b64 exec, -1')
    A('L_noq:')
    stamp(3)
    A('s_mov_b64 exec, 1\nds_add_u32 v11, v12 offset:%d\ns_mov_b64 exec, -1'%(L_CNT+12))
    A('s_cmp_eq_u32 s53, 0\ns_cbranch_scc1 L_qg\ns_cmp_lg_u32 s53, 1\ns_cbranch_scc1 L_qdone\ns_cmp_ge_u32 s49, %d\ns_cbranch_scc1 L_qdone'%cfg.NV)
    A('s_mov_b32 s6, 0')
    for i in range(cfg.NP):
        for c in ((0,1) if i%2==0 else (1,0)):
            l=newlab('pb'); d=newlab('pe')
            A('s_add_u32 s7, s9, %d\ns_mov_b32 s8, 0\ns_mov_b32 s61, 0\ns_load_dword s8, %s, s7'%(i*16384+c*8192,WS))
            A('%s:\ns_add_u32 s61, s61, 1\ns_cmp_gt_u32 s61, 0xffff\ns_cbranch_scc1 %s\ns_cmp_eq_u32 s8, 0\ns_cbranch_scc1 %s\n%s:\ns_waitcnt lgkmcnt(0)'%(l,d,l,d))
            if i>0: A('%s s6, s6, s61'%('s_add_i32' if c==0 else 's_sub_i32'))
    A('s_cmp_gt_i32 s6, 0\ns_cselect_b32 s6, 1, 0')
    A('s_xor_b32 s6, s6, s10\ns_lshl_b32 s6, s6, 1\ns_or_b32 s6, s6, 1\nv_mov_b32 v7, s6')
    lds_wait(11,L_CNT+12,4,2)
    A('s_mov_b64 exec, 1\nglobal_store_dword v6, v7, %s offset:256 sc1\ns_mov_b64 exec, -1\ns_branch L_qdone'%WS)
    A('L_qg:')
    A('v_and_b32 v6, 3, v0\nv_lshlrev_b32 v6, 8, v6\nv_lshrrev_b32 v14, 2, v0\nv_lshl_add_u32 v6, v14, 4, v6')
    A('s_and_b32 s54, s50, 7\ns_lshl_b32 s54, s54, 13\ns_lshr_b32 s55, s50, 3\ns_lshl_b32 s55, s55, 10\ns_add_u32 s54, s54, s55\nv_add_u32 v6, s54, v6')
    lds_wait(11,L_CNT+12,4,2)
    progress(cfg.pq)
    stamp(4)
    poll(['global_load_dwordx4 v[32:35], v6, %s sc1'%WS],None,sleep=8)
    A('ds_write_b128 v1, v[32:35] offset:%d'%L_QL)
    stamp(5)
    A('s_waitcnt lgkmcnt(0)')
    if cfg.qflag: A('ds_write_b32 v11, v12 offset:%d'%(L_CNT+16))
    A('L_qdone:')
    if cfg.touch:
        A('s_lshl_b32 s54, s50, 21\ns_load_dword s4, %s, s54'%VP)
        A('s_load_dword s6, %s, 0\ns_load_dword s7, %s, 0\ns_load_dword s8, %s, 0'%(WG,WU,WD))
        A('s_lshl_b32 s54, s48, 19\ns_load_dword s9, %s, s54'%WO)
        A('s_waitcnt lgkmcnt(0)')
    A('s_setprio 0')
    if not cfg.qflag: A('s_barrier')

    A('s_mov_b32 s70, 0\ns_and_b32 s54, s49, 0x13\ns_cmp_eq_u32 s54, s64\ns_cselect_b32 s70, 2, s70')
    A('s_cmp_lt_u32 s48, 4\ns_cselect_b32 s6, 16, 12\ns_cselect_b32 s7, 8, 6\ns_cselect_b32 s8, 0, 8\ns_mul_i32 s14, s48, s7\ns_add_u32 s14, s14, s8')
    if cfg.helper: A('s_and_b32 s54, s49, 0x13\ns_xor_b32 s54, s54, 2\ns_cmp_eq_u32 s54, s64\ns_cselect_b32 s9, s49, 99\ns_cmp_lt_u32 s9, s6\ns_cselect_b32 s70, 4, s70')
    A('s_sub_u32 s54, s49, 16\ns_cmp_lt_u32 s54, s6\ns_cselect_b32 s70, 1, s70')
    A('s_xor_b32 s55, s2, s49\ns_and_b32 s55, s55, 1\ns_cselect_b32 s70, 3, s70')
    A('s_bfe_u32 s54, s49, 0x30001\ns_add_u32 s14, s14, s54')
    A('s_lshr_b32 s15, s49, 2\ns_add_u32 s54, s48, %d\ns_and_b32 s54, s54, 7\ns_lshl_b32 s54, s54, 2\ns_add_u32 s15, s15, s54'%cfg.crot)
    if cfg.e1now:
        A('s_cmp_lg_u32 s70, 1\ns_cbranch_scc1 L_ne1')
        lds_wait(11,L_CNT+12,4,2)
        A('s_lshl_b32 s54, s14, 6')
        A('s_lshl_b32 s55, s53, 7\nv_lshrrev_b32 v6, 2, v0\nv_add_u32 v6, s55, v6\nv_mul_u32_u24 v6, 3584, v6\nv_and_b32 v7, 3, v0\nv_lshl_add_u32 v6, v7, 4, v6\nv_add_u32 v6, s54, v6')
        for k in range(cfg.E1):
            i=k//2
            A(('v_add_u32 v7, %d, v6\n'%(i*16*3584))+'s_add_u32 m0, s71, %d\ns_nop 0\nglobal_load_lds_dwordx4 v7, %s %s'%(L_WA+32768*(k&1)+i*1024,WU if k&1 else WG,cfg.ff))
        A('L_ne1:')
    CLASS()
    A('s_lshr_b32 s13, s2, 1\ns_andn2_b32 s13, s13, 2\ns_lshl_b32 s54, s11, 1\ns_or_b32 s13, s13, s54')
    A('s_and_b32 s54, s48, 3\ns_lshl_b32 s54, s54, 2\ns_add_u32 s67, s54, s68\ns_lshl_b32 s54, s11, 4\ns_add_u32 s67, s67, s54')
    if cfg.wo0: A('s_lshl_b32 s54, s48, 2\ns_add_u32 s67, s54, s68')
    A('s_bfe_u32 s69, s49, 0x20001')
    A('v_and_b32 v6, 3, v0\nv_lshlrev_b32 v6, 2, v6\nv_lshrrev_b32 v7, 4, v0\nv_add_u32 v6, v6, v7')
    A('v_bfe_u32 v7, v0, 2, 1')
    A('v_lshrrev_b32 v24, 3, v0\nv_lshlrev_b32 v24, 13, v24\nv_and_b32 v13, 7, v0\nv_lshl_add_u32 v24, v13, 3, v24')
    A('s_and_b32 s54, s13, 31\ns_lshl_b32 s54, s54, 8\ns_lshr_b32 s55, s13, 5\ns_lshl_b32 s55, s55, 6\ns_add_u32 s54, s54, s55\ns_add_u32 s54, s54, %d\nv_add_u32 v24, s54, v24\ns_mov_b32 s55, s13'%HB)
    A('v_lshlrev_b32 v6, 1, v6\nv_lshl_add_u32 v6, v7, 10, v6\ns_lshr_b32 s54, s55, 5\ns_lshl_b32 s54, s54, 11\ns_and_b32 s55, s55, 31\ns_lshl_b32 s55, s55, 5\ns_add_u32 s54, s54, s55\nv_add_u32 v6, s54, v6')
    A('global_load_ushort v16, v6, %s'%X)
    def paced(k,n,line):
        if cfg.nb:
            nb=min(cfg.nb,n); span=16//nb
            bi=lambda k:(k*nb)//n
            if k==0 or bi(k)!=bi(k-1):
                A('s_lshr_b32 s55, s49, 1\ns_and_b32 s55, s55, %d\ns_add_u32 s55, s55, %d'%(span-1,cfg.pw0+1+span*bi(k)))
                progress('s55')
            assert cfg.pw0+16<cfg.NS-1
            A(line); return
        f=lambda k: cfg.pw0+(k*(cfg.pw1-cfg.pw0))//n
        if k==0 or f(k)!=f(k-1): progress(f(k))
        assert f(k)<cfg.NS
        A(line)
    def dma1(k):
        i=k//2
        return ('v_add_u32 v7, %d, v6\n'%(i*16*3584))+'s_add_u32 m0, s71, %d\ns_nop 0\nglobal_load_lds_dwordx4 v7, %s %s'%(L_WA+32768*(k&1)+i*1024,WU if k&1 else WG,cfg.ff)
    def dma2(i):
        return ('v_add_u32 v7, %d, v6\n'%(i*0x8000))+'s_add_u32 m0, s71, %d\ns_nop 0\nglobal_load_lds_dwordx4 v7, %s %s'%(L_WA+i*1024,WD,cfg.ff)
    l1=newlab('w1'); l2=newlab('w2'); le=newlab('we')
    A('s_cmp_eq_u32 s70, 0\ns_cbranch_scc1 %s\ns_cmp_eq_u32 s70, 2\ns_cbranch_scc1 %s\ns_cmp_lg_u32 s70, 3\ns_cbranch_scc1 %s'%(le,l2,l1))
    A('s_lshl_b32 s54, s67, 7\ns_lshl_b32 s55, s53, 1\ns_add_u32 s54, s54, s55\ns_lshl_b32 s54, s54, 10\ns_lshl_b32 s55, s69, 8\ns_add_u32 s54, s54, s55')
    A('v_lshrrev_b32 v6, 4, v0\nv_lshlrev_b32 v6, 13, v6\nv_and_b32 v7, 15, v0\nv_lshl_add_u32 v6, v7, 4, v6\nv_add_u32 v6, s54, v6')
    A('s_lshl_b32 s71, s53, 13')
    def dmaw(i):
        return 'v_add_u32 v7, %d, v6\ns_add_u32 m0, s71, %d\ns_nop 0\nglobal_load_lds_dwordx4 v7, %s %s'%((32*(i&3)+(i>>2))*1024,L_WA+i*1024,WO,cfg.wf)
    for i in range(0 if (cfg.noW or cfg.wo0) else cfg.EW): paced(i,cfg.EW,dmaw(i))
    A('s_branch %s'%le)
    A('%s:'%l1)
    A('s_lshl_b32 s54, s14, 6')
    A('s_lshl_b32 s55, s53, 7\nv_lshrrev_b32 v6, 2, v0\nv_add_u32 v6, s55, v6\nv_mul_u32_u24 v6, 3584, v6\nv_and_b32 v7, 3, v0\nv_lshl_add_u32 v6, v7, 4, v6\nv_add_u32 v6, s54, v6')
    A('s_lshl_b32 s71, s53, 13')
    A('s_cmp_eq_u32 s70, 4\ns_cbranch_scc1 %s'%le)
    for k in range(0 if cfg.e1now else cfg.E1): paced(k,cfg.E1,dma1(k))
    A('s_branch %s'%le)
    A('%s:'%l2)
    A('s_mul_i32 s54, s53, 448\nv_lshrrev_b32 v6, 1, v0\nv_add_u32 v6, s54, v6\nv_lshlrev_b32 v6, 10, v6')
    A('v_and_b32 v7, 1, v0\nv_lshl_add_u32 v6, v7, 4, v6\ns_lshl_b32 s54, s15, 5\nv_add_u32 v6, s54, v6')
    A('s_mul_i32 s71, s53, 14336')
    for k in range(cfg.E2): paced(k,cfg.E2,dma2(k))
    A('%s:'%le)
    A('s_waitcnt vmcnt(0)')
    A('v_lshlrev_b32 v16, 16, v16')
    lds_sync(1,sleep=4)
    stamp(6)
    l1=newlab('r1'); l2=newlab('r2'); le=newlab('re')
    A('v_mov_b32 v26, 0\nv_mov_b32 v27, 0\nv_mov_b32 v28, 0\nv_mov_b32 v29, 0')
    A('s_cmp_eq_u32 s70, 1\ns_cbranch_scc1 %s\ns_cmp_eq_u32 s70, 2\ns_cbranch_scc1 %s'%(l1,l2))
    A('v_lshrrev_b32 v8, 4, v0\nv_lshlrev_b32 v8, 11, v8\nv_bfe_u32 v7, v0, 2, 2\nv_lshl_add_u32 v8, v7, 8, v8\nv_and_b32 v7, 3, v0\nv_lshl_add_u32 v8, v7, 3, v8')
    A('s_lshl_b32 s54, s53, 6\ns_add_u32 s54, s54, %d\nv_add_u32 v8, s54, v8'%L_WA)
    def trw():
        for t in range(2):
            for s_ in range(4):
                r=80+16*t+4*s_
                A('ds_read_b64_tr_b16 v[%d:%d], v8 offset:%d'%(r,r+1,8192*s_+32*t))
                A('ds_read_b64_tr_b16 v[%d:%d], v8 offset:%d'%(r+2,r+3,8192*s_+32*t+1024))
            if t==0 or cfg.EW==8: A('s_waitcnt lgkmcnt(0)')
    if cfg.EW==8: trw()
    A('s_branch %s'%le)
    A('%s:'%l1)
    A('v_lshrrev_b32 v8, 4, v0\nv_lshlrev_b32 v8, 9, v8\nv_bfe_u32 v7, v0, 2, 2\nv_lshl_add_u32 v8, v7, 6, v8')
    A('v_and_b32 v7, 1, v0\nv_lshl_add_u32 v8, v7, 3, v8\nv_bfe_u32 v7, v0, 1, 1\nv_lshl_add_u32 v8, v7, 15, v8\ns_add_u32 s54, s71, %d\nv_add_u32 v8, s54, v8'%L_WA)
    A('s_mul_i32 s55, s14, 147\ns_lshr_b32 s55, s55, 11\ns_mul_i32 s55, s55, %d'%(16384-7168))
    A('s_lshl_b32 s54, s14, 2\ns_add_u32 s54, s54, s53\ns_lshl_b32 s54, s54, 7\ns_add_u32 s54, s54, s55\ns_add_u32 s54, s54, %d'%AB)
    A('v_and_b32 v27, 0x70, v1\nv_lshrrev_b32 v7, 4, v0\nv_lshl_add_u32 v27, v7, 16, v27\nv_bfe_u32 v7, v0, 3, 1\nv_lshlrev_b32 v7, 13, v7\nv_add3_u32 v27, v27, v7, s54')
    A('s_and_b32 s55, s48, %d\ns_lshl_b32 s55, s55, 14\ns_lshl_b32 s54, s10, 13\ns_add_u32 s54, s54, s55\ns_lshl_b32 s55, s53, 11\ns_add_u32 s54, s54, s55\ns_add_u32 s54, s54, %d'%(cfg.nH//2-1,HB))
    A('v_and_b32 v4, 7, v0\nv_lshlrev_b32 v4, 5, v4\nv_lshrrev_b32 v7, 5, v0\nv_lshl_add_u32 v4, v7, 8, v4\nv_and_b32 v7, 16, v0\nv_add3_u32 v4, v4, v7, s54')
    A('s_mul_i32 s54, s53, 5120\nv_add_u32 v10, s54, v1')
    A('v_and_b32 v5, 0x17, v0\nv_lshlrev_b32 v5, 4, v5\nv_bfe_u32 v7, v0, 3, 1\nv_lshl_add_u32 v5, v7, 3, v5\nv_lshrrev_b32 v7, 5, v0\nv_lshl_add_u32 v5, v7, 2, v5\ns_lshl_b32 s54, s53, 10\nv_add_u32 v5, s54, v5')
    A('v_and_b32 v9, 7, v0\nv_lshlrev_b32 v9, 4, v9\nv_bfe_u32 v7, v0, 2, 1\nv_lshl_add_u32 v9, v7, 8, v9\nv_and_b32 v7, 3, v0\nv_lshl_add_u32 v9, v7, 2, v9')
    for p in range(4): A('v_add_u32 v%d, %d, v5\nv_add_u32 v%d, %d, v9'%(160+p,L_XN+5120*p,164+p,L_XN+5120*p+4096))
    A('s_branch %s'%le)
    A('%s:'%l2)
    A('v_lshrrev_b32 v8, 4, v0\nv_lshlrev_b32 v8, 9, v8\nv_bfe_u32 v7, v0, 1, 1\nv_lshl_add_u32 v8, v7, 8, v8\nv_bfe_u32 v7, v0, 2, 2\nv_lshl_add_u32 v8, v7, 5, v8')
    A('v_and_b32 v7, 1, v0\nv_lshl_add_u32 v8, v7, 3, v8\ns_add_u32 s55, s71, %d\nv_add_u32 v8, s55, v8'%L_WA)
    A('v_bfe_u32 v26, v0, 2, 1\nv_lshlrev_b32 v26, 10, v26\nv_bfe_u32 v7, v0, 1, 1\nv_lshl_add_u32 v26, v7, 8, v26\nv_lshrrev_b32 v7, 3, v0\nv_lshl_add_u32 v26, v7, 4, v26\nv_and_b32 v7, 1, v0\nv_lshl_add_u32 v26, v7, 3, v26')
    A('s_and_b32 s55, s48, %d\ns_lshl_b32 s55, s55, 16\ns_lshl_b32 s54, s53, 14\ns_add_u32 s54, s54, s55\ns_lshl_b32 s55, s10, 13\ns_add_u32 s54, s54, s55\ns_add_u32 s54, s54, %d\nv_add_u32 v27, s54, v1'%(cfg.nA//2-1,AB+3072))
    A('s_mov_b32 s54, s15\ns_lshl_b32 s55, s54, 5')
    A('v_lshrrev_b32 v28, 3, v0\nv_lshlrev_b32 v28, 10, v28\nv_and_b32 v7, 7, v0\nv_lshl_add_u32 v28, v7, 2, v28\nv_add_u32 v28, s55, v28')
    A('s_lshl_b32 s54, s54, 8\ns_and_b32 s55, s48, %d\ns_lshl_b32 s55, s55, 14\ns_add_u32 s54, s54, s55\ns_lshl_b32 s55, s10, 13\ns_add_u32 s54, s54, s55\ns_add_u32 s54, s54, %d'%(cfg.nH//2-1,HB))
    A('v_lshl_add_u32 v29, v0, 2, s54')
    A('s_lshl_b32 s54, s53, 11\nv_add_u32 v10, s54, v1')
    A('%s:'%le)
    A('s_lshl_b32 s54, s53, 9\nv_add_u32 v17, s54, v3')
    A('s_and_b32 s54, s50, 3\ns_lshl_b32 s54, s54, 2\ns_add_u32 s54, s54, s53\ns_mul_i32 s54, s54, 49152\n%s\ns_lshl_b32 s55, s55, 13\ns_add_u32 s54, s54, s55'%('s_mov_b32 s55, s63' if cfg.wo0 else 's_bfe_u32 s55, s50, 0x10002'))
    A('s_lshr_b32 s6, s50, 3\ns_mul_i32 s7, s6, 11\ns_lshr_b32 s7, s7, 5\ns_mul_i32 s7, s7, %d\ns_lshl_b32 s6, s6, 2\ns_add_u32 s6, s6, s51\ns_mul_i32 s6, s6, %d'%(16384-12*OPS,OPS))
    A('s_add_u32 s54, s54, s6\ns_add_u32 s54, s54, s7\ns_add_u32 s54, s54, %d\nv_add_u32 v18, s54, v1'%OP)
    A('s_and_b32 s54, s67, 15\ns_mul_i32 s54, s54, 49152\ns_lshl_b32 s55, %s, 13\ns_add_u32 s54, s54, s55\ns_add_u32 s54, s54, %d'%('s62' if cfg.wo0 else 's11',OP))
    A('v_mul_u32_u24 v7, 11, v2\nv_lshrrev_b32 v7, 5, v7\nv_mul_u32_u24 v7, %d, v7\nv_mul_u32_u24 v25, %d, v2\nv_add3_u32 v25, v25, v7, s54\nv_add_u32 v19, v25, v3'%(16384-12*OPS,4*OPS))
    if cfg.G1 or cfg.G2:
        A('v_bfe_u32 v14, v0, 2, 3\nv_mul_u32_u24 v7, 11, v14\nv_lshrrev_b32 v7, 5, v7\nv_mul_u32_u24 v7, %d, v7\nv_and_b32 v14, 31, v0\nv_mul_u32_u24 v14, %d, v14\nv_add_u32 v14, v14, v7'%(16384-12*OPS,OPS))
        A('v_lshrrev_b32 v7, 5, v0\nv_add_u32 v7, s48, v7\nv_and_b32 v7, 3, v7\nv_mul_u32_u24 v7, %d, v7\ns_lshl_b32 s54, s10, 13\ns_add_u32 s54, s54, %d\nv_add3_u32 v14, v14, v7, s54'%(4*49152,OP+512))
    A('s_lshl_b32 s54, s53, 5\nv_mov_b32 v30, s54')
    A('v_mul_u32_u24 v20, %d, v2\nv_lshrrev_b32 v7, 1, v3\nv_add_u32 v20, v20, v7'%XOS)
    A('v_and_b32 v21, 7, v0\nv_mul_u32_u24 v21, %d, v21\nv_add_u32 v21, v21, v15'%XOS)
    A('s_lshl_b32 s54, s69, 2\ns_add_u32 s54, s54, s53\ns_lshl_b32 s54, s54, 13\ns_add_u32 s54, s54, %d'%(WP+2048))
    A('s_lshl_b32 s55, s69, 1\ns_add_u32 s55, s55, s67' if cfg.wrot else 's_mov_b32 s55, s67')
    A('v_bfe_u32 v22, v0, 1, 2')
    A('v_lshl_add_u32 v7, v22, 3, s55' if cfg.wrot else 'v_mov_b32 v7, s55')
    A('v_and_b32 v7, 31, v7\nv_lshlrev_b32 v22, 17, v22\nv_lshl_add_u32 v22, v7, 7, v22\nv_and_b32 v7, 1, v0\nv_lshl_add_u32 v22, v7, 6, v22\nv_add3_u32 v22, v22, v15, s54')
    A('s_lshl_b32 s54, s13, 12\ns_add_u32 s54, s54, %d\nv_add_u32 v23, s54, v1'%WP)
    def guarded(lines):
        A(lines)
    def drychk():
        pass
    for r in range(192,246): A('v_mov_b32 v%d, -1'%r)
    A('s_waitcnt lgkmcnt(0)')
    A('s_mov_b64 vcc, 0\ns_mov_b64 s[4:5], %d\ns_mov_b64 exec, s[4:5]'%(0 if cfg.warm else -1))
    wpl=['global_load_dwordx4 v[%d:%d], v23, %s offset:%d sc1'%(216+4*t,219+4*t,WS,1024*t) for t in range(4)]
    opl=['global_load_dwordx2 v[%d:%d], v25, %s offset:%d sc1'%(208+2*s_,209+2*s_,WS,OPS*s_+512) for s_ in range(4)]+['global_load_dwordx4 v[%d:%d], v19, %s offset:%d sc1'%(192+4*s_,195+4*s_,WS,OPS*s_) for s_ in range(4)]
    hbl=['global_load_dwordx4 v[%d:%d], v4, %s offset:%d sc1'%(216+4*t,219+4*t,WS,1024*t) for t in range(4)]
    abl=['global_load_dwordx4 v[%d:%d], v27, %s offset:%d sc1'%(216+4*t,219+4*t,WS,1024*t-3072) for t in range(7)]
    if cfg.pre:
        A('s_cmp_lg_u32 s70, 3\ns_cbranch_scc1 L_pre1')
        if cfg.pre&2: A('\n'.join(opl))
        A('s_cmp_lg_u32 s53, 0\ns_cbranch_scc1 L_pre3')
        if cfg.pre&1: A('\n'.join(wpl))
        A('s_branch L_pre3\nL_pre1:')
        if cfg.pre&4:
            A('s_cmp_lg_u32 s70, 1\ns_cbranch_scc1 L_pre2'); A('\n'.join(hbl)); A('L_pre2:\ns_cmp_lg_u32 s70, 2\ns_cbranch_scc1 L_pre3'); A('\n'.join(abl))
        A('L_pre3:')
    if cfg.fb:
        p0,stp,late,up=cfg.fb
        A('s_cmp_lg_u32 s53, 1\ns_cbranch_scc1 L_nofb')
        A('s_and_b32 s54, s49, 7\ns_lshl_b32 s54, s54, 9\ns_add_u32 s54, s54, %d\ns_add_u32 s40, s38, s54\ns_addc_u32 s41, s39, 0\ns_mov_b32 s42, %d\ns_mov_b32 s44, 0'%(RNK,p0))
        A('L_fb:')
        lds_wait(31,L_PR,'s42',2)
        A('s_mov_b32 s43, 1\ns_atomic_add s43, s[40:41], s44 glc\ns_waitcnt lgkmcnt(0)\ns_add_u32 s43, s43, 1\ns_cmp_lt_u32 s43, %d\ns_cselect_b32 s45, 2, 0\ns_cmp_ge_u32 s43, %d\ns_cselect_b32 s43, 1, s45\nv_mov_b32 v13, s43\nds_write_b32 v11, v13 offset:%d'%(cfg.early[0] if cfg.early else 0,late,L_CNT+28))
        A('s_add_u32 s44, s44, 4096\ns_add_u32 s42, s42, %d\ns_cmp_lt_u32 s42, %d\ns_cbranch_scc1 L_fb\ns_waitcnt lgkmcnt(0)'%(stp,cfg.NS if cfg.T2b else cfg.NS-2))
        assert (cfg.NS-p0)//stp+1<=20
        A('L_nofb:')
    if cfg.disp and cfg.NS<32:
        A('s_cmp_lg_u32 s53, 2\ns_cbranch_scc1 L_tail')
        A('s_lshl_b32 s54, s50, %d\ns_add_u32 s54, s54, %d\ns_add_u32 s40, s38, s54\ns_addc_u32 s41, s39, 0'%(cfg.cs,CTR))
        lds_wait(31,L_PR,cfg.NS-1,2)
        thr,small,keep2=cfg.gd or (0,cfg.disp,cfg.disp-cfg.LA)
        A('s_mov_b32 s42, 0\ns_mov_b32 s44, %d\ns_mov_b32 s45, %d'%(cfg.disp,cfg.disp-cfg.LA))
        A('L_dsp:')
        A('s_mov_b32 s43, s44\ns_atomic_add s43, s[40:41], 0x0 glc\nv_add_lshl_u32 v7, v0, s42, 2\ns_bfm_b64 s[46:47], s44, 0\ns_waitcnt lgkmcnt(0)\ns_add_u32 s43, s43, 1\ns_min_u32 s43, s43, 4096\ns_add_u32 s43, s43, %d\nv_add_u32 v13, s43, v0'%(cfg.NS*16))
        A('s_add_u32 s55, s43, s44\ns_cmp_ge_u32 s55, 512\ns_cbranch_scc1 L_dspd')
        A('s_mov_b64 exec, s[46:47]\nds_write_b32 v7, v13 offset:%d\ns_mov_b64 exec, -1'%(L_CNT+64))
        A('s_add_u32 s42, s42, s44\ns_cmp_ge_u32 s43, %d\ns_cselect_b32 s44, %d, s44\ns_cselect_b32 s45, %d, s45\ns_sub_i32 s55, s42, s45\ns_max_i32 s55, s55, 0'%(512-thr,small,keep2))
        lds_wait(11,L_CNT+24,'s55',1)
        A('s_branch L_dsp')
        A('L_dspd:')
        A('s_mov_b64 exec, 0xff\nds_write_b32 v7, v13 offset:%d\ns_mov_b64 exec, -1'%(L_CNT+64))
        A('s_waitcnt lgkmcnt(0)')
    A('L_tail:')
    stamp(7)
    guarded('s_barrier')
    def wstep(b0,s0,w):
        o=[]
        for half in range(2):
            d='v[%d:%d]'%(b0+2*half,b0+2*half+1); src='v[%d:%d]'%(s0+4*w+2*half,s0+4*w+2*half+1); f='v[%d:%d]'%(72+2*(w//2),73+2*(w//2))
            if w==0: o.append('v_pk_mul_f32 %s, %s, %s op_sel_hi:[1,0]'%(d,src,f))
            elif w%2==0: o.append('v_pk_fma_f32 %s, %s, %s, %s op_sel_hi:[1,0,1]'%(d,src,f,d))
            else: o.append('v_pk_fma_f32 %s, %s, %s, %s op_sel:[0,1,0] op_sel_hi:[1,1,1]'%(d,src,f,d))
        return o
    def wsum2(b0,s0):
        for w in range(4): A('\n'.join(wstep(b0,s0,w)))
    def wsum(b0,half,s0=None):
        d='v[%d:%d]'%(b0+2*half,b0+2*half+1)
        s0=s0 or b0
        for w in range(4):
            src='v[%d:%d]'%(s0+4*w+2*half,s0+4*w+2*half+1)
            f='v[%d:%d]'%(72+2*(w//2),73+2*(w//2))
            if w==0: A('v_pk_mul_f32 %s, %s, %s op_sel_hi:[1,0]'%(d,src,f))
            elif w%2==0: A('v_pk_fma_f32 %s, %s, %s, %s op_sel_hi:[1,0,1]'%(d,src,f,d))
            else: A('v_pk_fma_f32 %s, %s, %s, %s op_sel:[0,1,0] op_sel_hi:[1,1,1]'%(d,src,f,d))
    if cfg.gleak is not None:
        k,lo,hi,msk=cfg.gleak
        A('s_cbranch_execz L_nogl\ns_cmp_lg_u32 s53, 0\ns_cbranch_scc1 L_nogl')
        if k==8: stamp(8); A('s_waitcnt lgkmcnt(0)')
        if k==200: A('s_getreg_b32 s72, hwreg(HW_REG_XCC_ID)\ns_sub_u32 s72, s72, s48\ns_and_b32 s72, s72, 7\ns_mul_i32 s72, s72, 50\nv_mov_b32 v33, s72')
        elif k>=100: A('v_mov_b32 v32, %d\nds_read_b32 v33, v32 offset:%d\ns_waitcnt lgkmcnt(0)'%(4*(k-100),L_ST))
        else: A('v_mov_b32 v33, s%d'%(72+2*k))
        A('v_not_b32 v33, v33\nv_mov_b32 v34, s72\nv_mov_b32 v32, 0x3bf000')
        A('s_mov_b64 exec, 1')
        if k!=8: A('global_atomic_umin v32, v34, %s'%WS)
        A('s_and_b32 s54, s2, %d\ns_sub_u32 s54, s54, %d\ns_cmp_ge_u32 s54, %d\ns_cbranch_scc1 L_nogl2'%(msk,lo,hi-lo))
        A('global_atomic_umin v32, v33, %s offset:256'%WS)
        A('L_nogl2:\ns_mov_b64 exec, -1\n'+('s_nop 2' if k==8 else 's_waitcnt vmcnt(0)'))
        A('L_nogl:')
    A('ds_read_b128 v[64:67], v30 offset:%d\nds_read_b128 v[68:71], v30 offset:%d'%(L_MLW,L_MLW+16))
    for w in range(4):
        A('ds_read_b128 v[%d:%d], v17 offset:%d'%(32+4*w,35+4*w,L_OW+2048*w))
    stamp(8)
    if cfg.notail: A('s_branch L_fin')
    A('s_and_b32 exec_hi, s4, 1')
    A('s_waitcnt lgkmcnt(%d)'%(0 if cfg.diag else 4))
    A('v_max3_f32 v76, v64, v65, v66\nv_max_f32 v76, v76, v67')
    A('v_pk_add_f32 v[72:73], v[64:65], v[76:77] op_sel_hi:[1,0] neg_lo:[0,1] neg_hi:[0,1]')
    A('v_pk_add_f32 v[74:75], v[66:67], v[76:77] op_sel_hi:[1,0] neg_lo:[0,1] neg_hi:[0,1]')
    for i in range(4): A('v_exp_f32 v%d, v%d'%(72+i,72+i))
    A('v_pk_mul_f32 v[68:69], v[68:69], v[72:73]\nv_pk_fma_f32 v[68:69], v[70:71], v[74:75], v[68:69]')
    A('s_waitcnt lgkmcnt(0)')
    A('v_add_f32 v77, v68, v69')
    wsum2(32,32)
    A('s_cmp_eq_u32 s12, 0')
    A('v_mov_b32_dpp v32, v76 quad_perm:[0,1,2,3] row_mask:0x4 bank_mask:0xf')
    A('v_mov_b32_dpp v33, v77 quad_perm:[0,1,2,3] row_mask:0x4 bank_mask:0xf')
    if cfg.oloc:
        A('s_cbranch_scc1 L_opf\nglobal_store_dwordx4 v18, v[32:35], %s\ns_branch L_opd\nL_opf:\nglobal_store_dwordx4 v18, v[32:35], %s sc1\nL_opd:'%(WS,WS))
    else: guarded('global_store_dwordx4 v18, v[32:35], %s %s'%(WS,cfg.sf if cfg.opf is None else cfg.opf))
    tstamp(1)
    A('s_mov_b64 exec, s[4:5]')
    A('s_cmp_lg_u32 s70, 3\ns_cbranch_scc1 L_rdone')
    if cfg.EW<8:
        for i in range(cfg.EW,8): A(dmaw(i))
        A('s_waitcnt vmcnt(0)\ns_barrier')
        trw()
    wts=['v_max3_f32 v76, v208, v210, v212','v_max_f32 v76, v76, v214']+['v_sub_f32 v%d, v%d, v76'%(72+i,208+2*i) for i in range(4)]+['v_exp_f32 v%d, v%d'%(72+i,72+i) for i in range(4)]
    wts+=['v_mul_f32 v78, v72, v209']+['v_fmac_f32 v78, v%d, v%d'%(72+i,209+2*i) for i in range(1,4)]+['v_rcp_f32 v78, v78','s_nop 0']
    wts+=['v_pk_mul_f32 v[72:73], v[72:73], v[78:79] op_sel_hi:[1,0]','v_pk_mul_f32 v[74:75], v[74:75], v[78:79] op_sel_hi:[1,0]']
    hk={3:wts}
    for w in range(4): hk[4+w]=wstep(48,192,w)
    if cfg.wa=='ml':
        apoll(opl[:4],('c',1,0)); spoll(opl,hk)
    elif cfg.wa:
        apoll(opl,cfg.wa)
        for i in range(3,8): A('\n'.join(hk[i]))
    else: spoll(opl,hk)
    stamp(9)
    A('v_cvt_pk_bf16_f32 v48, v48, v49\nv_cvt_pk_bf16_f32 v49, v50, v51')
    A('ds_write_b64 v20, v[48:49] offset:%d'%L_XO)
    A('s_waitcnt lgkmcnt(0)'); guarded('s_barrier')
    if cfg.tdiag: tstamp(2); A('s_waitcnt lgkmcnt(0)')
    for s_ in range(4):
        A('ds_read_b128 v[%d:%d], v21 offset:%d'%(32+4*s_,35+4*s_,L_XO+64*s_))
    for s_ in range(4):
        A('s_waitcnt lgkmcnt(%d)'%(3-s_))
        for t in range(2):
            acc='v[%d:%d]'%(48+4*t,51+4*t); r=80+16*t+4*s_
            A('v_mfma_f32_16x16x32_bf16 %s, v[%d:%d], v[%d:%d], %s'%(acc,r,r+3,32+4*s_,35+4*s_,'0' if s_==0 else acc))
    A('s_mov_b32 exec_lo, 0x00ff00ff\ns_mov_b32 exec_hi, 0x00ff00ff')
    A('s_nop 4')
    A('global_store_dwordx4 v22, v[48:51], %s offset:-2048 %s'%(WS,cfg.sf))
    A('global_store_dwordx4 v22, v[52:55], %s offset:2048 %s'%(WS,cfg.sf))
    tstamp(3)
    A('s_mov_b64 exec, -1')
    A('s_cmp_lg_u32 s53, 0\ns_cbranch_scc1 L_fin')
    apoll(['global_load_dwordx4 v[%d:%d], v23, %s offset:%d sc1'%(216+4*t,219+4*t,WS,1024*t) for t in range(4)],cfg.pR)
    stamp(10)
    A('v_pk_add_f32 v[32:33], v[216:217], v[220:221]\nv_pk_add_f32 v[34:35], v[218:219], v[222:223]')
    A('v_pk_add_f32 v[40:41], v[224:225], v[228:229]\nv_pk_add_f32 v[42:43], v[226:227], v[230:231]')
    A('v_pk_add_f32 v[32:33], v[32:33], v[40:41]\nv_pk_add_f32 v[34:35], v[34:35], v[42:43]')
    A('s_nop 1\nv_permlane32_swap_b32 v32, v34\nv_permlane32_swap_b32 v33, v35')
    A('v_add_f32 v32, v32, v34\nv_add_f32 v33, v33, v35')
    A('s_nop 1\nv_permlane16_swap_b32 v32, v33\nv_add_f32 v32, v32, v33')
    dppadd(32,'row_ror:8')
    rbf(32)
    A('v_add_f32 v32, v32, v16\nv_mov_b32 v33, v32\ns_nop 1')
    A('v_permlane16_swap_b32 v32, v33\nv_cvt_pk_bf16_f32 v32, v32, v33\nv_min_u32 v32, -2, v32\nv_mov_b32 v33, v32\ns_nop 1')
    A('v_permlane32_swap_b32 v32, v33')
    A('global_store_dwordx2 v24, v[32:33], %s %s'%(WS,cfg.sf))
    tstamp(4)
    A('s_branch L_fin')
    A('L_rdone:')
    A('s_cmp_eq_u32 s70, 2\ns_cbranch_scc1 L_ffn2')
    A('s_cmp_eq_u32 s70, 0\ns_cbranch_scc1 L_fin')
    gate(cfg.G1)
    if cfg.lrot:
        assert cfg.E1%2==0
        i0=cfg.E1//2; n=8-i0
        if cfg.helper: A('s_and_b32 s6, s14, 1\ns_cmp_eq_u32 s70, 4\ns_cselect_b32 s6, 2, s6\ns_mul_i32 s6, s6, %d\ns_add_u32 s6, s6, %d'%(n//3,i0))
        else: A('s_and_b32 s6, s14, 1\ns_mul_i32 s6, s6, %d\ns_add_u32 s6, s6, %d'%(n//2,i0))
        for it in range(n):
            if cfg.helper and it==n-2*(n//3): A('s_cmp_eq_u32 s70, 4\ns_cbranch_scc1 L_fin')
            A('s_mul_i32 s7, s6, %d\nv_add_u32 v7, s7, v6\ns_lshl_b32 s7, s6, 10\ns_add_u32 s7, s7, s71\ns_add_u32 m0, s7, %d\ns_add_u32 s6, s6, 1'%(16*3584,L_WA))
            A('global_load_lds_dwordx4 v7, %s %s'%(WG,cfg.ff))
            A('s_add_u32 m0, s7, %d\ns_cmp_eq_u32 s6, 8\ns_cselect_b32 s6, %d, s6'%(L_WA+32768,i0))
            A('global_load_lds_dwordx4 v7, %s %s'%(WU,cfg.ff))
    else:
        for k in range(cfg.E1,16): A(dma1(k))
    A('s_mov_b32 exec_lo, 0xff00ff00\ns_mov_b32 exec_hi, 0xff00ff00')
    for r in range(216,232): A('v_mov_b32 v%d, 0x3f803f80'%r)
    A('s_mov_b64 exec, -1')
    A('s_waitcnt vmcnt(0)')
    for t in range(4):
        for s_ in range(4):
            r=96+16*t+4*s_
            A('ds_read_b64_tr_b16 v[%d:%d], v8 offset:%d'%(r,r+1,2048*s_+16*t))
            A('ds_read_b64_tr_b16 v[%d:%d], v8 offset:%d'%(r+2,r+3,2048*s_+16*t+256))
        A('s_waitcnt lgkmcnt(0)')
    tstamp(2)
    hk={}
    for s_ in range(4):
        B='v[%d:%d]'%(216+4*s_,219+4*s_); hk[s_]=[]
        for t in (4,0,1,2,3):
            acc='v[%d:%d]'%(32+4*t,35+4*t)
            Aop=B if t==4 else 'v[%d:%d]'%(96+16*t+4*s_,99+16*t+4*s_)
            hk[s_].append('v_mfma_f32_16x16x32_bf16 %s, %s, %s, %s'%(acc,Aop,B,'0' if s_==0 else acc))
    ns_=cfg.f1s
    spoll(['global_load_dwordx4 v[%d:%d], v4, %s offset:%d sc1'%(216+4*t,219+4*t,WS,512*t) for t in range(4)],{i:(hk[i] if i<ns_ else []) for i in range(4)},
          pre='s_mov_b32 exec_lo, 0x00ff00ff\ns_mov_b32 exec_hi, 0x00ff00ff',post='s_mov_b64 exec, -1')
    stamp(11)
    for i in range(ns_,4): A('\n'.join(hk[i]))
    A('s_nop 3')
    for t in (4,0,1,2,3):
        A('ds_write_b128 v10, v[%d:%d] offset:%d'%(32+4*t,35+4*t,L_XN+1024*t))
    tstamp(5)
    A('s_waitcnt lgkmcnt(0)\ns_barrier')
    if cfg.tdiag: tstamp(6); A('s_waitcnt lgkmcnt(0)')
    for p in range(4): A('ds_read2_b32 v[%d:%d], v%d offset0:0 offset1:32'%(52+2*p,53+2*p,164+p))
    for p in range(4):
        A('ds_read2_b32 v[%d:%d], v%d offset0:0 offset1:32'%(60+2*p,61+2*p,160+p))
        A('ds_read2_b32 v[%d:%d], v%d offset0:128 offset1:160'%(68+2*p,69+2*p,160+p))
    A('s_waitcnt lgkmcnt(8)')
    A('v_pk_add_f32 v[52:53], v[52:53], v[54:55]\nv_pk_add_f32 v[56:57], v[56:57], v[58:59]\nv_pk_add_f32 v[52:53], v[52:53], v[56:57]')
    A('v_mul_f32 v53, 0xbb000000, v53\nv_mul_f32 v52, 0x3b000000, v52')
    A('v_fma_f32 v52, -v53, v53, v52\nv_cvt_pk_bf16_f32 v53, 0, v53\nv_max_f32 v52, 0, v52\nv_cvt_pk_bf16_f32 v52, 0, v52\nv_add_f32 v52, 0x3727c5ac, v52')
    A('v_cvt_pk_bf16_f32 v52, 0, v52\nv_sqrt_f32 v52, v52')
    A('s_waitcnt lgkmcnt(0)')
    A('v_pk_add_f32 v[60:61], v[60:61], v[62:63]\nv_cvt_pk_bf16_f32 v52, 0, v52\nv_pk_add_f32 v[64:65], v[64:65], v[66:67]\nv_rcp_f32 v52, v52')
    A('v_pk_add_f32 v[68:69], v[68:69], v[70:71]\nv_pk_add_f32 v[72:73], v[72:73], v[74:75]')
    A('v_pk_add_f32 v[60:61], v[60:61], v[64:65]\nv_pk_add_f32 v[68:69], v[68:69], v[72:73]')
    A('v_fmac_f32 v60, v53, v61\nv_fmac_f32 v68, v53, v69\nv_mul_f32 v60, v60, v52\nv_mul_f32 v68, v68, v52')
    A('v_cvt_pk_bf16_f32 v32, 0, v60\nv_cvt_pk_bf16_f32 v36, 0, v68')
    A('v_mul_f32 v33, v32, v32\nv_mul_f32 v33, 0x3d372713, v33\nv_fma_f32 v33, v33, v32, v32')
    A('v_mul_f32 v33, 0xc0135761, v33\nv_exp_f32 v33, v33\ns_nop 0\nv_add_f32 v33, 1.0, v33\nv_rcp_f32 v33, v33\ns_nop 0\nv_mul_f32 v33, v33, v32')
    rbf(33)
    A('v_mul_f32 v33, v33, v36\nv_mov_b32 v34, v33\ns_nop 1\nv_permlane32_swap_b32 v33, v34')
    A('v_cvt_pk_bf16_f32 v33, v33, v34\nv_min_u32 v36, -2, v33')
    A('v_mov_b32 v32, v36\nv_mov_b32 v33, v36\ns_nop 0')
    A('v_mov_b32_dpp v32, v36 row_ror:8 row_mask:0xf bank_mask:0xc\nv_mov_b32_dpp v33, v36 row_ror:8 row_mask:0xf bank_mask:0x3')
    A('v_mov_b32 v34, v32\nv_mov_b32 v35, v33\ns_nop 0')
    A('v_permlane16_swap_b32 v32, v34\nv_permlane16_swap_b32 v33, v35')
    if cfg.nA<8: A('s_and_b32 exec_lo, s4, 0x%x\ns_mov_b32 exec_hi, 0'%((1<<(8*cfg.nA))-1))
    guarded('global_store_dwordx4 v27, v[32:35], %s %s'%(WS,cfg.sf))
    stamp(12)
    A('L_fin:')
    A('s_waitcnt vmcnt(0)')
    if cfg.diag:
        dump_stamps(14,8)
    A('s_endpgm')
    A('L_ffn2:')
    if cfg.d2: A('s_waitcnt vmcnt(0)')
    gate(cfg.G2)
    if cfg.lrot:
        n=14-cfg.E2
        A('s_and_b32 s6, s15, 3\ns_mul_i32 s6, s6, %d\ns_lshr_b32 s6, s6, 2\ns_add_u32 s6, s6, %d'%(n,cfg.E2))
        for _ in range(n):
            A('s_lshl_b32 s7, s6, 15\nv_add_u32 v7, s7, v6\ns_lshl_b32 s7, s6, 10\ns_add_u32 s7, s7, s71\ns_add_u32 m0, s7, %d\ns_add_u32 s6, s6, 1'%L_WA)
            A('global_load_lds_dwordx4 v7, %s %s'%(WD,cfg.ff))
            A('s_cmp_eq_u32 s6, 14\ns_cselect_b32 s6, %d, s6'%cfg.E2)
    else:
        for k in range(cfg.E2,14): A(dma2(k))
    A('s_waitcnt vmcnt(0)')
    for t in range(7):
        for tt in range(2):
            r=96+8*t+4*tt
            A('ds_read_b64_tr_b16 v[%d:%d], v8 offset:%d'%(r,r+1,2048*t+16*tt))
            A('ds_read_b64_tr_b16 v[%d:%d], v8 offset:%d'%(r+2,r+3,2048*t+16*tt+128))
        if t%2==0: A('s_waitcnt lgkmcnt(0)')
    tstamp(2)
    l=newlab('hp'); d=newlab('hd')
    A('s_mov_b32 s61, %d\n%s:\nglobal_load_dword v60, v29, %s sc1\ns_waitcnt vmcnt(0)\nv_cmp_eq_u32 vcc, -1, v60\ns_cbranch_vccz %s'%(cfg.spin,l,WS,d))
    A('s_sub_u32 s61, s61, 1\ns_cmp_lg_u32 s61, 0\ns_cbranch_scc1 %s\n%s:'%(l,d))
    A('v_and_b32 v61, s60, v60\nv_lshlrev_b32 v60, 16, v60')
    hk={}
    for t in range(7):
        hk[t]=[]
        for tt in range(2):
            acc='v[%d:%d]'%(64+4*tt,67+4*tt); r=96+8*t+4*tt
            hk[t].append('v_mfma_f32_16x16x32_bf16 %s, v[%d:%d], v[%d:%d], %s'%(acc,r,r+3,216+4*t,219+4*t,'0' if t==0 else acc))
    spoll(abl,hk)
    stamp(10)
    A('s_nop 3')
    A('ds_write_b128 v10, v[64:67] offset:%d'%L_DP)
    A('ds_write_b128 v10, v[68:71] offset:%d'%(L_DP+1024))
    A('s_waitcnt lgkmcnt(0)'); guarded('s_barrier')
    tstamp(6)
    A('s_cmp_lg_u32 s53, 0\ns_cbranch_scc1 L_fin')
    for w in range(4):
        A('ds_read_b64 v[%d:%d], v26 offset:%d'%(32+4*w,33+4*w,L_DP+2048*w))
        A('ds_read_b64 v[%d:%d], v26 offset:%d'%(34+4*w,35+4*w,L_DP+2048*w+640))
    A('s_waitcnt lgkmcnt(0)')
    for w in range(4): A('v_pk_add_f32 v[%d:%d], v[%d:%d], v[%d:%d]'%(32+4*w,33+4*w,32+4*w,33+4*w,34+4*w,35+4*w))
    A('v_pk_add_f32 v[32:33], v[32:33], v[36:37]\nv_pk_add_f32 v[40:41], v[40:41], v[44:45]\nv_pk_add_f32 v[32:33], v[32:33], v[40:41]')
    A('v_cvt_pk_bf16_f32 v32, 0, v32\nv_cvt_pk_bf16_f32 v33, 0, v33')
    A('v_pk_add_f32 v[32:33], v[32:33], v[60:61]')
    A('v_cvt_pk_bf16_f32 v32, v32, v33')
    if cfg.odiag: stamp(12)
    guarded('global_store_dword v28, v32, %s %s'%(OUT,cfg.of))
    if cfg.odiag: A('s_waitcnt vmcnt(0)')
    drychk()
    if cfg.diag:
        stamp(13)
        if cfg.leak is not None:
            a,b=cfg.leak
            A('s_waitcnt lgkmcnt(0)')
            if cfg.gleak is not None:
                A('v_mov_b32 v8, 0x3bf000\nglobal_load_dword v9, v8, %s sc1\nglobal_load_dword v10, v8, %s offset:256 sc1\ns_waitcnt vmcnt(0)'%(WS,WS))
                if b==14: A('v_not_b32 v9, v10\nv_mov_b32 v10, s%d'%(72+2*13))
                elif b==13: A('v_mov_b32 v10, s%d'%(72+2*13))
                else: A('v_not_b32 v10, v10')
                A('v_sub_u32 v9, v10, v9\ns_nop 1\nv_readfirstlane_b32 s54, v9')
                if b==0: A('s_mov_b32 s54, 0')
            elif a>=100:
                A('v_mov_b32 v8, %d\nds_read_b32 v9, v8 offset:%d\nds_read_b32 v10, v8 offset:%d\ns_waitcnt lgkmcnt(0)\nv_sub_u32 v9, v9, v10\ns_nop 1\nv_readfirstlane_b32 s54, v9'%(0,L_ST+4*(b-100),L_ST+4*(a-100)))
            elif b>=100:
                A('v_mov_b32 v8, %d\nds_read_b32 v9, v8 offset:%d\ns_waitcnt lgkmcnt(0)\nv_readfirstlane_b32 s54, v9\ns_sub_u32 s54, s54, s%d'%(4*(b-100),L_ST,72+2*a))
            else: A('s_sub_u32 s54, s%d, s%d'%(72+2*b,72+2*a))
            A('s_mul_i32 s54, s54, %d\ns_min_u32 s54, s54, 60000'%cfg.mult)
            A('L_leak:')
            A('s_memrealtime s[68:69]\ns_waitcnt lgkmcnt(0)\ns_sub_u32 s55, s68, s%d\ns_cmp_lt_u32 s55, s54\ns_cbranch_scc1 L_leak'%(72+2*13))
        else:
            A('s_waitcnt lgkmcnt(0)\ns_mov_b32 s100, s92\ns_mov_b32 s92, 0')
            dump_stamps(15,8)
    A('L_end:')
    A('s_endpgm')
    A('L_last:')
    A('.section .rodata,"a"\n.p2align 6\n.amdhsa_kernel %s'%K)
    A('  .amdhsa_next_free_vgpr 256\n  .amdhsa_next_free_sgpr 102\n  .amdhsa_accum_offset 256\n  .amdhsa_group_segment_fixed_size 0\n  .amdhsa_kernarg_size 96')
    A('  .amdhsa_user_sgpr_count 2\n  .amdhsa_user_sgpr_kernarg_segment_ptr 1\n  .amdhsa_system_sgpr_workgroup_id_x 1')
    A('  .amdhsa_float_denorm_mode_32 3\n  .amdhsa_float_denorm_mode_16_64 3')
    A('.end_amdhsa_kernel')
    return '\n'.join(L)+'\n'

if __name__=='__main__':
    cfg=Cfg()
    out=sys.argv[1]
    for a in sys.argv[2:]:
        k,v=a.split('=',1); setattr(cfg,k,eval(v))
    s=gen(cfg)
    hdr=''.join(l for l in open('cdna_kernels/%s.s.ref'%NAME).readlines()[:13])
    open(out,'w').write(hdr+s)
```

```python
import sys
NAME='sequential_preLN__gqa_block_cached__geglu_ffn__decode'
K=NAME+'_kernel'

class Cfg:
    diag=False
    leak=None
    nocomp=False
    noq=False
    T2=12
    cpf=2
    b3=8
    cf='sc1'; nclr=4; wide=None; wo0=True; wo1=False; e1now=True; fb=(11,4,24,2); early=None; qfull=False; qf=''; gmask=True; bA=(2,5,3); NV=4; gmap=2; opf=None; oloc=True; wa=None; d2=0; ovl=True; E3=0; hdiag=False; lspin=1<<21; T2b=None; bB=(1,2); bF=1
    f1s=1
    nb=1; gd=(16,2,2)
    G1=0; G2=0
    disp=4; LA=1; boost=(1,5,3); lf='sc1'; sf='sc1'
    skipG=False; skipF=False
    par=None
    NP=3
    HS=20736; AS=28672; wrot=False; pre=0; head=0
    upfront=False
    vdiag=None
    odiag=False
    touch=True
    sdiag=False
    mult=1
    Q1=0; Q2=0
    E1=2; E2=0; EW=8; lrot=True; helper=True
    T0=None; n0=40
    qflag=True
    chunk=0
    bare=0
    notail=False
    knat=False
    cdbg=False
    ctouch=None
    rot=4
    cs=9
    nowq=False
    noqst=False
    nH=8; nA=8
    pW=('c',1,0); pR=('m',8,1); pF=('c',1,0); pG=('c',1,0)
    tdiag=False
    tsleep=0
    crot=0
    noclr=False
    wolate=False
    warm=False
    of=''
    gleak=None
    NS=30
    sflag=False
    svcfirst=0
    spin=1<<17
    T=5
    kf='nt'; vf='nt'; wf='nt'; ff=''
    pq=5
    pw0=8
    pw1=22
    noW=False

QP=0x0
FLG=0x80000
CLR=0x200000
WP=0x200000
OP=0x280000
OPS=640
HB=0x340000
AB=0x360000
CTR=0x3A0000
RNK=0x3A8000
PRB=0x3C0000
STAMP=0x10000000
L_MLW=64
L_QL=256
L_XN=1280
XNS=1040
L_XO=9600
XOS=272
L_DP=11776
L_OW=19968
L_ST=28160
L_PR=28416
L_CNT=L_PR+1024
L_WA=30720
LDS_BYTES=L_WA+65536

LOG2E=0x3fb8aa3b
SCALE=0x3db504f3

def gen(cfg):
    L=[]
    def A(s):
        L.extend(s.split('\n'))
    lab=[0]
    def newlab(p):
        lab[0]+=1
        return 'L_%s_%d'%(p,lab[0])
    X,KP,VP,WQ,WO,BX,WG,WU,WD,OUT,DBG,WS=['s[%d:%d]'%(16+2*i,17+2*i) for i in range(12)]
    def stamp(i):
        if cfg.diag: A('s_memrealtime s[%d:%d]'%(72+2*i,73+2*i))
    site=[0]
    def expired(vz,vt,name):
        if cfg.hdiag:
            site[0]+=1; print('site',site[0],name,file=sys.stderr)
            A('s_add_u32 s54, s2, 1000\nv_mov_b32 v%d, 0\nv_mov_b32 v%d, s54\nglobal_store_dword v%d, v%d, %s offset:%d sc1\ns_waitcnt vmcnt(0)'%(vz,vt,vz,vt,DBG,256+4*site[0]))
    def tstamp(i):
        if cfg.tdiag: stamp(i)
    def pack_stamps(n,vt):
        A('s_waitcnt lgkmcnt(0)')
        A('v_mov_b32 v%d, 0'%vt)
        for i in range(n): A('v_writelane_b32 v%d, s%d, %d'%(vt,72+2*i,i))
    def dump_stamps(n,vt):
        if not cfg.diag: return
        A('s_mov_b64 exec, -1')
        pack_stamps(n,vt)
        A('v_lshlrev_b32 v%d, 2, v0'%(vt+1))
        A('ds_read_b32 v%d, v%d offset:%d'%(vt+2,vt+1,L_ST))
        A('s_lshl_b32 s66, s2, 9\ns_add_u32 s66, s66, %d'%(STAMP))
        A('v_add_u32 v%d, s66, v%d'%(vt+1,vt+1))
        A('s_mov_b64 exec, 0xffff')
        A('s_waitcnt lgkmcnt(0)')
        A('global_store_dword v%d, v%d, %s'%(vt+1,vt+2,WS))
        A('s_lshl_b32 s66, s53, 6\nv_add_u32 v%d, s66, v%d'%(vt+1,vt+1))
        A('global_store_dword v%d, v%d, %s offset:64'%(vt+1,vt,WS))

    A('; @launch grid=(256,1,1) block=(512,1,1) lds=%d'%LDS_BYTES)
    A(""";
;            that fill before any use), data are written through with sc1 and polled with sc1 loads; all polls are bounded.
;""")
    A('.amdgcn_target "amdgcn-amd-amdhsa--gfx950"\n.text\n.globl %s\n.p2align 8\n.type %s,@function\n%s:'%(K,K,K))
    A('s_cmp_ge_u32 s2, 256\ns_cbranch_scc1 L_end')
    stamp(0)
    A('v_lshrrev_b32 v1, 6, v0')
    A('v_lshlrev_b32 v3, 2, v0')
    A('v_readfirstlane_b32 s52, v1')
    A('s_cmp_lt_u32 s52, 4\ns_cbranch_scc1 L_noz')
    if cfg.cpf==2:
        A('s_getpc_b64 s[6:7]\nL_pc:\ns_lshr_b32 s8, s2, 3\ns_lshl_b32 s8, s8, 10\nv_add_u32 v100, s8, v3\nv_min_u32 v100, L_last-L_pc+1024-4, v100')
        A('v_mov_b32 v101, s7\nv_add_co_u32 v100, vcc, s6, v100\nv_mov_b32 v30, 0\ns_nop 0\nv_addc_co_u32 v101, vcc, 0, v101, vcc')
        A('global_load_dword v102, v[100:101], off offset:-1024')
    A('v_mov_b32 v30, 0')
    A('ds_write_b32 v3, v30 offset:%d\nds_write_b32 v3, v30 offset:%d'%(L_PR-1024,L_PR))
    A('s_waitcnt lgkmcnt(0)')
    A('L_noz:')
    A('s_load_dwordx16 s[16:31], s[0:1], 0')
    A('s_load_dwordx8 s[32:39], s[0:1], 64')
    A('s_barrier')
    if cfg.diag:
        for i in range(1,14): A('s_mov_b32 s%d, 0'%(72+2*i))
    A('v_and_b32 v0, 63, v0')
    A('s_and_b32 s48, s2, 7\ns_lshr_b32 s49, s2, 3\ns_lshl_b32 s50, s49, 1\ns_bfe_u32 s54, s2, 0x10001\ns_or_b32 s50, s50, s54')
    A('s_and_b32 s51, s2, 1\ns_bfe_u32 s54, s2, 0x10002\ns_lshl_b32 s54, s54, 1\ns_or_b32 s51, s51, s54')
    A('s_mov_b32 s64, s51')
    if cfg.gmap==1: A('s_lshr_b32 s50, s49, 2\ns_lshl_b32 s50, s50, 3\ns_or_b32 s50, s50, s48\ns_and_b32 s51, s49, 3')
    if cfg.gmap==2: A('s_bfe_u32 s50, s49, 0x30001\ns_lshl_b32 s50, s50, 3\ns_or_b32 s50, s50, s48\ns_lshr_b32 s51, s49, 4\ns_lshl_b32 s51, s51, 1\ns_and_b32 s54, s49, 1\ns_or_b32 s51, s51, s54')
    A('s_mov_b32 s59, 0x%x\ns_mov_b32 s60, 0xffff0000'%(LOG2E))
    A('v_lshlrev_b32 v1, 4, v0')
    A('s_cmp_ge_u32 s52, 4\ns_cbranch_scc1 L_service')

    import math
    TH=math.ceil(cfg.T)
    NS=cfg.NS
    RB=64
    A('s_lshl_b32 s54, s50, 21')
    A('s_lshl_b32 s62, s51, 2\ns_add_u32 s62, s62, s52')
    for i in range(4): A('s_add_u32 s%d, s62, %d\ns_and_b32 s%d, s%d, 15\ns_lshl_b32 s%d, s%d, 12'%(8+i,cfg.rot*i,8+i,8+i,8+i,8+i))
    A('v_lshrrev_b32 v2, 4, v0\nv_lshlrev_b32 v2, 6, v2\nv_and_b32 v4, 3, v0\nv_lshl_add_u32 v2, v4, 4, v2')
    A('v_bfe_u32 v5, v0, 2, 2\nv_lshl_add_u32 v2, v5, 8, v2')
    if cfg.knat: A('v_mov_b32 v2, v1')
    A('s_mov_b32 s42, 0x200000\ns_mov_b32 s43, 0x20000\ns_mov_b32 s46, 0x200000\ns_mov_b32 s47, 0x20000')
    A('s_waitcnt lgkmcnt(0)')
    A('s_add_u32 s40, s18, s54\ns_addc_u32 s41, s19, 0\ns_and_b32 s41, s41, 0xffff')
    A('s_add_u32 s44, s20, s54\ns_addc_u32 s45, s21, 0\ns_and_b32 s45, s45, 0xffff')
    st={'n':0}
    def adv():
        if cfg.rot: A('s_add_u32 s68, s62, %d\ns_and_b32 s68, s68, 15\ns_andn2_b32 s62, s62, 15\ns_add_u32 s62, s62, 16\ns_or_b32 s62, s62, s68'%cfg.rot)
        else: A('s_add_u32 s62, s62, 16')
    def load(slot,j,throttle=True,th=None):
        if j==0: A('s_lshl_b32 s65, s62, 12')
        if throttle:
            t_=(th or cfg.T); lo=int(t_); fr=t_-lo
            w=lo+(1 if (int((j+1)*fr+1e-9)>int(j*fr+1e-9)) else 0)
            A('s_waitcnt vmcnt(%d)'%(w-1))
            if cfg.T2b and w>cfg.T2b:
                l=newlab('tb'); A('s_cmp_eq_u32 s14, 1\ns_cbranch_scc1 %s\ns_waitcnt vmcnt(%d)\n%s:'%(l,cfg.T2b-1,l))
        r=RB+slot*32+j*4
        t=j//4
        A('buffer_load_dwordx4 v[%d:%d], %s, %s, s65 offen offset:%d %s'%(r,r+3,'v2' if t==0 else 'v1','s[40:43]' if t==0 else 's[44:47]',(j%4)*1024,cfg.kf if t==0 else cfg.vf))
    def prog(val):
        A('v_mov_b32 v30, %s\nds_write_b32 v3, v30 offset:%d'%(val,L_PR))
    NK=NS//2
    assert NS%2==0 and NK>=10 and NK<=16
    slot_of={u:u-1 for u in range(7)}
    for u in range(7,NS): slot_of[u]=(u-1)%3
    slot_of[NS]=3
    FB=RB+5*32+12
    tr={'issued':0,'w':TH}
    def win(G):
        for a_,b_,w_ in (cfg.wide or []):
            if a_<=G<b_: return w_
        return TH
    def sload():
        n=tr['issued']; G=n//8; j=n%8
        tr['issued']=n+1
        if G==NS:
            tr['w']=win(G); load(slot_of[G],j,th=win(G)); return
        t=G//NK; k=2*(G%NK)+j//4
        if cfg.vdiag is not None and G==cfg.vdiag and j==0: stamp(6)
        if cfg.vdiag is not None and G==cfg.vdiag+1 and j==0: stamp(7)
        if j%4==0: A('s_add_u32 s65, s%d, %d'%(8+k%4,k*65536))
        w=cfg.T0 if (cfg.T0 and n<cfg.n0) else win(G)
        tr['w']=w
        if cfg.wo0:
            if 1<=G<9 and j==0: A('s_cmp_gt_u32 s13, %d\ns_cselect_b64 vcc, -1, 0'%G)
            if 1<=G<max(cfg.bA[1],cfg.bB[1])+cfg.bF:
                assert G<9
                l=newlab('bo'); A('s_waitcnt vmcnt(%d)\ns_cbranch_vccnz %s\ns_waitcnt vmcnt(%d)\n%s:'%(w-1+cfg.bA[2],l,w-1,l))
            elif cfg.fb and G>cfg.fb[0]:
                if j==0: A('s_waitcnt lgkmcnt(0)\nv_cmp_eq_u32 vcc, 1, v%d\nv_readfirstlane_b32 s14, v%d\nds_read_b32 v%d, v%d offset:%d'%(FB,FB,FB,FB+1,L_CNT+28))
                l=newlab('bo'); A('s_waitcnt vmcnt(%d)\ns_cbranch_vccnz %s\ns_waitcnt vmcnt(%d)'%(w-1+cfg.fb[3],l,w-1))
                if cfg.early and j%cfg.early[1]==0: A('s_cmp_eq_u32 s14, 0\ns_cbranch_scc1 %s\ns_waitcnt vmcnt(%d)'%(l,w-2))
                A('%s:'%l)
                tr['w']=w+cfg.fb[3]
            elif n>=w: A('s_waitcnt vmcnt(%d)'%(w-1))
        elif cfg.b3 and G==cfg.boost[1] and j==0:
            A('s_bfe_u32 s55, s49, 0x30001\ns_cmp_eq_u32 s55, 3\ns_cselect_b64 vcc, vcc, 0')
        if cfg.wo0: pass
        elif cfg.boost and cfg.boost[0]<=G<max(cfg.boost[1],cfg.b3):
            assert G<9 and (G<5 or w+cfg.boost[2]<=8)
            l=newlab('bo'); A('s_waitcnt vmcnt(%d)\ns_cbranch_vccnz %s\ns_waitcnt vmcnt(%d)\n%s:'%(w-1+cfg.boost[2],l,w-1,l))
        elif n>=w: A('s_waitcnt vmcnt(%d)'%(w-1))
        r=RB+slot_of[G]*32+j*4
        A('buffer_load_dwordx4 v[%d:%d], %s, %s, s65 offen offset:%d %s'%(r,r+3,'v2' if t==0 else 'v1','s[40:43]' if t==0 else 's[44:47]',(j%4)*1024,cfg.kf if t==0 else cfg.vf))
        if j==7 and n>=15: prog(G+1)
    def pro_issue(n0,n1):
        assert tr['issued']==n0
        for n in range(n0,n1): sload()
    if cfg.svcfirst: A('s_barrier')
    if cfg.sdiag: stamp(6)
    pro_issue(0,TH)
    if cfg.sdiag: stamp(7)
    if cfg.wo0:
        A('s_mov_b32 s13, %d\ns_lshr_b32 s55, s49, 2\ns_cmp_eq_u32 s55, 3\ns_cselect_b32 s13, %d, s13\ns_bfe_u32 s55, s49, 0x30001\ns_cmp_ge_u32 s49, 16\ns_cselect_b32 s14, %d, 0\ns_add_u32 s13, s13, s14'%(cfg.bA[0],cfg.bA[1],cfg.bF))
        A('s_and_b32 s55, s55, 3\ns_cmp_eq_u32 s55, 1\ns_cselect_b32 s14, %d, 1\ns_xor_b32 s55, s2, s49\ns_and_b32 s55, s55, 1\ns_cselect_b32 s13, s14, s13'%cfg.bB[1])
    elif cfg.boost: A('s_xor_b32 s55, s2, s49\ns_and_b32 s55, s55, 1\ns_cselect_b64 vcc, 0, -1')
    A('s_mov_b32 s56, 0x05040100\ns_mov_b32 s57, 0x07060302\ns_mov_b32 s58, 0x%x'%SCALE)
    A('s_lshl_b32 s54, s50, %d\ns_add_u32 s54, s54, %d\ns_add_u32 s66, s38, s54\ns_addc_u32 s67, s39, 0'%(cfg.cs,CTR))
    if cfg.cdbg: A('s_lshl_b32 s54, s50, 9\ns_add_u32 s54, s54, 4096\ns_add_u32 s66, s36, s54\ns_addc_u32 s67, s37, 0')
    A('s_lshl_b32 s55, s52, 11')
    A('v_lshlrev_b32 v4, 9, v4\nv_and_b32 v0, 0x30, v0\nv_add3_u32 v0, v4, v0, s55')
    A('v_mov_b32 v14, 0xff800000')
    if cfg.sdiag:
        stamp(9); A('s_waitcnt vmcnt(%d)'%(TH-1)); stamp(10)
    pro_issue(TH,56)
    stamp(1)
    if cfg.qflag:
        A('v_mov_b32 v31, 0\ns_mov_b32 s61, %d\nL_qw:\nds_read_b32 v15, v31 offset:%d\ns_waitcnt lgkmcnt(0)\nv_readfirstlane_b32 s54, v15\ns_cmp_lg_u32 s54, 0\ns_cbranch_scc1 L_qwd'%(cfg.lspin*4,L_CNT+16))
        A('s_sub_u32 s61, s61, 1\ns_cmp_lg_u32 s61, 0\ns_cbranch_scc1 L_qw')
        expired(31,15,'q wait')
        A('L_qwd:')
    else: A('s_barrier')
    A('ds_read_b128 v[4:7], v1 offset:%d'%L_QL)
    stamp(2)
    A('s_waitcnt lgkmcnt(0)')
    def kpart(slot,fill):
        B=RB+slot*32
        f=list(fill)
        def nxt():
            if f: f.pop(0)()
        D=[20,B,B+4,B+8]
        if cfg.nocomp:
            while f: nxt()
            return
        for i in range(4):
            A('v_mfma_f32_16x16x32_bf16 v[%d:%d], v[%d:%d], v[4:7], 0'%(D[i],D[i]+3,B+4*i,B+4*i+3))
        A('s_nop 7')
        for h in range(2):
            for step in range(3):
                for e in range(2):
                    be=2*e+h
                    S=18+e
                    A('v_add_f32_dpp v%d, v%d, v%d row_ror:%d row_mask:0xf bank_mask:0x%x'%(S,D[be]+((be+step+1)&3),(D[be]+be) if step==0 else S,12-4*step,1<<be))
                A('s_nop 0')
        nxt()
        A('s_nop 0')
        A('v_mov_b32_dpp v18, v19 quad_perm:[0,1,2,3] row_mask:0xf bank_mask:0xc')
        A('v_cvt_pk_bf16_f32 v18, 0, v18\nv_mul_f32 v18, s58, v18\nv_cvt_pk_bf16_f32 v18, 0, v18')
        A('v_max_f32 v15, v14, v18')
        A('s_nop 1\nv_max_f32_dpp v15, v15, v15 row_ror:4 row_mask:0xf bank_mask:0xf')
        A('s_nop 1\nv_max_f32_dpp v15, v15, v15 row_ror:8 row_mask:0xf bank_mask:0xf')
        A('v_mov_b32 v31, v15\ns_nop 1\nv_permlane16_swap_b32 v15, v31\nv_max_f32 v15, v15, v31')
        A('v_mov_b32 v31, v15\ns_nop 1\nv_permlane32_swap_b32 v15, v31\nv_max_f32 v15, v15, v31')
        nxt()
        A('v_sub_f32 v16, v14, v15\nv_sub_f32 v18, v18, v15\nv_cmp_neq_f32 vcc, v14, v15\nv_mul_f32 v16, s59, v16\nv_mul_f32 v18, s59, v18')
        A('v_exp_f32 v16, v16\nv_exp_f32 v18, v18\nv_mov_b32 v14, v15\nv_mul_f32 v17, s59, v15')
        A('v_mov_b32_dpp v19, v18 row_ror:12 row_mask:0xf bank_mask:0xf')
        A('v_cvt_pk_bf16_f32 v8, v18, v19')
        l=newlab('nr')
        A('s_cbranch_vccz %s'%l)
        for r in range(32,64,2):
            A('v_pk_mul_f32 v[%d:%d], v[%d:%d], v[16:17] op_sel_hi:[1,0]'%(r,r+1,r,r+1))
        A('v_mul_f32 v24, v24, v16')
        A('%s:'%l)
        A('s_nop 0')
        A('v_mov_b32_dpp v9, v8 row_ror:8 row_mask:0xf bank_mask:0xf')
        while f: nxt()
    def vpart(slot):
        B=RB+slot*32+16
        if cfg.nocomp: return
        def perms(j):
            Tt=10+2*(j&1)
            for ii in range(2):
                A('v_perm_b32 v%d, v%d, v%d, s%d'%(Tt+ii,B+4*(2*ii+1)+(j>>1),B+4*(2*ii)+(j>>1),56+(j&1)))
        perms(0)
        for j in range(8):
            if j<7: perms(j+1)
            else: A('v_mfma_f32_16x16x16_bf16 v[24:27], v[28:29], v[8:9], v[24:27]')
            Tt=10+2*(j&1)
            A('v_mfma_f32_16x16x16_bf16 v[%d:%d], v[%d:%d], v[8:9], v[%d:%d]'%(32+4*j,35+4*j,Tt,Tt+1,32+4*j,35+4*j))
    SC=[8,9,10,11,12,13,20,21,22,23,25,26,27,28,29,RB+5*32+14][:NK]
    RV=RB+5*32; TV=RV+4
    def need(n):
        rem=tr['issued']-n
        assert rem>=0
        if rem<tr['w']: A('s_waitcnt vmcnt(%d)'%rem)
    def spread(chunks,nl):
        m=len(chunks)
        for i,c in enumerate(chunks):
            if not cfg.nocomp: A(c)
            for _ in range((nl*(i+1))//m-(nl*i)//m): sload()
    def kgroup(G):
        B=RB+slot_of[G]*32
        Dr=[32+4*i for i in range(8)] if G else [20]+[32+4*i for i in range(7)]
        ch=['\n'.join('v_mfma_f32_16x16x32_bf16 v[%d:%d], v[%d:%d], v[4:7], 0'%(Dr[i],Dr[i]+3,B+4*i,B+4*i+3) for i in range(8))+'\ns_nop 1']
        for be in range(4):
            c=[]
            for step in range(3):
                for e in range(2):
                    D=Dr[2*be+e]; S=18+e
                    c.append('v_add_f32_dpp v%d, v%d, v%d row_ror:%d row_mask:0xf bank_mask:0x%x'%(S,D+((be+step+1)&3),(D+be) if step==0 else S,12-4*step,1<<be))
                c.append('s_nop 0')
            ch.append('\n'.join(c))
        ch[-1]+='\nv_cvt_pk_bf16_f32 v15, 0, v18\nv_cvt_pk_bf16_f32 v16, 0, v19\nv_mul_f32 v15, s58, v15\nv_mul_f32 v16, s58, v16'
        ch[-1]+='\nv_cvt_pk_bf16_f32 v%d, v15, v16\nv_cvt_pk_bf16_f32 v15, 0, v15\nv_cvt_pk_bf16_f32 v16, 0, v16\nv_max3_f32 v14, v14, v15, v16'%SC[G]
        return ch
    def wred(op,r):
        return ('s_nop 1\n%s_dpp v%d, v%d, v%d row_ror:4 row_mask:0xf bank_mask:0xf\ns_nop 1\n%s_dpp v%d, v%d, v%d row_ror:8 row_mask:0xf bank_mask:0xf\n'%(op,r,r,r,op,r,r,r)+
                'v_mov_b32 v31, v%d\ns_nop 1\nv_permlane16_swap_b32 v%d, v31\n%s v%d, v%d, v31\n'%(r,r,op,r,r)+
                'v_mov_b32 v31, v%d\ns_nop 1\nv_permlane32_swap_b32 v%d, v31\n%s v%d, v%d, v31'%(r,r,op,r,r))
    def softmax():
        ch=[wred('v_max_f32',14)+'\nv_mul_f32 v17, s59, v14\nv_mov_b32 v24, 0']
        for g in range(NK):
            ch.append('v_lshlrev_b32 v18, 16, v%d\nv_and_b32 v19, s60, v%d\nv_sub_f32 v18, v18, v14\nv_sub_f32 v19, v19, v14\nv_mul_f32 v18, s59, v18\nv_mul_f32 v19, s59, v19\n'%(SC[g],SC[g])+
                      'v_exp_f32 v18, v18\nv_exp_f32 v19, v19\ns_nop 0\nv_cvt_pk_bf16_f32 v%d, v18, v19\nv_add_f32 v24, v24, v18\nv_add_f32 v24, v24, v19'%SC[g])
        ch.append(wred('v_add_f32',24))
        return ch
    def vgroup(G):
        B=RB+slot_of[G]*32; P=SC[G-NK]
        def perms(j):
            Tt=TV+4*(j&1)
            return '\n'.join('v_perm_b32 v%d, v%d, v%d, s%d'%(Tt+ii,B+4*(2*ii+1)+(j>>1),B+4*(2*ii)+(j>>1),56+(j&1)) for ii in range(4))
        c0='v_mov_b32 v%d, v%d\n'%(RV,P)+'\n'.join('v_mov_b32_dpp v%d, v%d row_ror:%d row_mask:0xf bank_mask:0xf'%(RV+r,P,16-4*r) for r in range(1,4))+'\n'+perms(0)
        ch=[c0]
        for j in range(8):
            Tt=TV+4*(j&1); acc='v[%d:%d]'%(32+4*j,35+4*j)
            ch.append((perms(j+1) if j<7 else 's_nop 1')+'\nv_mfma_f32_16x16x32_bf16 %s, v[%d:%d], v[%d:%d], %s'%(acc,Tt,Tt+3,RV,RV+3,'0' if G==NK else acc))
        return ch
    def request():
        if not cfg.chunk:
            A('s_mov_b32 s63, 1\ns_atomic_add s63, s[66:67], 0x0 glc'); return
        la=newlab('ra'); lb=newlab('rb')
        A('s_cmp_eq_u32 s69, 0\ns_cbranch_scc1 %s'%la)
        A('s_mov_b32 s69, 0\ns_sub_u32 s63, s62, %d\ns_branch %s'%(NS*16,lb))
        A('%s:'%la)
        A('s_cmp_lt_u32 s62, %d\ns_cselect_b32 s69, 1, 0\ns_add_u32 s63, s69, 1\ns_atomic_add s63, s[66:67], 0x0 glc'%(512-cfg.chunk))
        A('%s:'%lb)
    for G in range(8):
        need(8*G+8)
        spread(kgroup(G),[0,4,4,3,4,3,3,3][G])
    assert tr['issued']==80
    A('v_mov_b32 v%d, 0\nv_mov_b32 v%d, 0'%(FB,FB+1))
    stamp(3)
    def get():
        lb=int(math.log2(cfg.disp)); l=newlab('gt'); d=newlab('gd')
        A('s_cmp_ge_u32 s62, 512\ns_cbranch_scc1 %s'%d)
        A('v_mov_b32 v31, 0\nv_mov_b32 v30, 1\ns_mov_b64 exec, 1\nds_add_rtn_u32 v30, v31, v30 offset:%d\ns_waitcnt lgkmcnt(0)'%(L_CNT+24))
        A('v_lshlrev_b32 v31, 2, v30')
        e=newlab('ge')
        A('s_mov_b32 s61, %d\n%s:\nds_read_b32 v30, v31 offset:%d\ns_waitcnt lgkmcnt(0)\nv_readfirstlane_b32 s63, v30\ns_cmp_lg_u32 s63, 0\ns_cbranch_scc1 %s'%(cfg.lspin*4,l,L_CNT+64,e))
        A('s_sub_u32 s61, s61, 1\ns_cmp_lg_u32 s61, 0\ns_cbranch_scc1 %s'%l)
        expired(31,30,'get')
        A('s_mov_b32 s63, 512\n%s:\ns_mov_b64 exec, -1'%e)
        A('%s:'%d)
    for G in range(8,NS):
        if G==NS-2:
            stamp(4)
            if NS<32: A('s_mov_b32 s62, 0'); get(); A('s_mov_b32 s62, s63')
        need(8*G+8)
        ch=kgroup(G) if G<NK else vgroup(G)
        if G==NK: ch=softmax()+ch
        if G<NS-2: spread(ch,8)
        elif NS==32: spread(ch,0)
        elif G==NS-2: spread(ch,TH)
        else: spread(ch[:-1],8-TH); spread(ch[-1:],0)
    if NS==32: A('s_nop 0\ns_branch L_sdone')
    A('s_cmp_ge_u32 s62, 512\ns_cbranch_scc1 L_sdone')
    A('v_mov_b32 v28, 0x3f803f80\nv_mov_b32 v29, 0x3f803f80\nv_mov_b32 v25, 0\nv_mov_b32 v26, 0\nv_mov_b32 v27, 0')
    if cfg.disp: get(); A('s_mov_b32 s62, s63')
    else: A('s_waitcnt lgkmcnt(0)\ns_add_u32 s62, s63, %d'%(NS*16+1))
    if cfg.T2b: A('ds_read_b32 v%d, v%d offset:%d\ns_waitcnt lgkmcnt(0)\nv_readfirstlane_b32 s14, v%d'%(FB,FB+1,L_CNT+28,FB))
    A('s_mov_b32 s64, %d'%(NS+1))
    def body(c,th):
        if cfg.upfront:
            for j in range(8): load(1-c,j,th=th,throttle=(8+j>=th))
            if th>12: A('s_waitcnt vmcnt(12)')
            kpart(c,[])
            A('s_waitcnt vmcnt(8)')
            vpart(c)
            return
        for j in range(4): load(7-c,j,th=th)
        if th>8: A('s_waitcnt vmcnt(8)')
        kpart(c,[(lambda j=j: load(7-c,j,th=th)) for j in range(4,8)])
        if cfg.disp: get()
        if th>8: A('s_waitcnt vmcnt(8)')
        vpart(c)
    A('L_dyn:')
    for c in (3,4):
        ls=newlab('st'); lc=newlab('sc')
        if cfg.diag: A('s_add_u32 s64, s64, 1')
        if not cfg.disp:
            A('s_cmp_ge_u32 s62, 512\ns_cbranch_scc1 %s'%ls)
            request()
            A('%s:'%ls)
        body(c,cfg.T2 or cfg.T)
        A('s_cmp_ge_u32 s62, 512\ns_cbranch_scc1 L_sdone')
        if cfg.disp: A('s_mov_b32 s62, s63')
        else:
            A('s_waitcnt lgkmcnt(0)')
            A('s_add_u32 s62, s63, %d'%(NS*16+1))
    A('s_branch L_dyn')
    A('L_sdone:')
    A('s_mov_b32 exec_lo, 0x000f000f\ns_mov_b32 exec_hi, 0x000f000f')
    stamp(5)
    A('s_lshl_b32 s55, s52, 2\nv_and_b32 v31, 0x30, v1\nv_lshl_add_u32 v31, v31, 1, s55')
    for j in range(8):
        A('ds_write_b128 v0, v[%d:%d] offset:%d'%(32+4*j,35+4*j,L_OW+64*j))
    A('ds_write2_b32 v31, v17, v24 offset0:%d offset1:%d'%(L_MLW//4,L_MLW//4+4))
    if cfg.diag:
        A('s_mov_b64 exec, -1')
        A('s_cmp_lg_u32 s52, 0\ns_cbranch_scc1 L_nost')
        pack_stamps(11 if cfg.sdiag else 8,8)
        A('v_writelane_b32 v8, s64, 8')
        A('ds_write_b32 v3, v8 offset:%d'%L_ST)
        A('L_nost:')
    A('s_waitcnt lgkmcnt(0)')
    A('s_barrier')
    A('s_endpgm')

    A('L_service:')
    if cfg.bare:
        A('s_sub_u32 s53, s52, 4\nv_mov_b32 v11, 0\nv_mov_b32 v12, 1\nv_mov_b32 v40, -1\nv_mov_b32 v41, -1\nv_mov_b32 v42, -1\nv_mov_b32 v43, -1\ns_waitcnt lgkmcnt(0)')
        if cfg.bare&2:
            A('s_lshl_b32 s54, s2, 2\ns_add_u32 s54, s54, s53\ns_mul_i32 s54, s54, 640\ns_add_u32 s54, s54, %d\nv_add_u32 v6, s54, v1\ns_mov_b32 exec_hi, 0xff\nglobal_store_dwordx4 v6, v[40:43], %s sc1\ns_mov_b64 exec, -1'%(CLR+0x100000,WS))
        if cfg.bare&4:
            A('global_load_dwordx4 v[32:35], v1, %s'%X)
        if cfg.bare&8:
            A('v_mov_b32 v6, s2\ns_mov_b64 exec, 1\nglobal_store_byte v6, v12, %s sc1\ns_mov_b64 exec, -1'%DBG)
        A('ds_write_b32 v11, v12 offset:%d\ns_waitcnt lgkmcnt(0)\ns_barrier\ns_barrier'%(L_CNT+8))
        if cfg.bare&16:
            A('v_lshlrev_b32 v7, 2, v0\nglobal_load_dword v13, v7, %s sc1'%DBG)
        A('s_barrier\ns_endpgm')
    A('s_setprio 3')
    A('s_sub_u32 s53, s52, 4')
    A('s_lshl_b32 s66, s53, 12')
    A('s_mov_b32 s3, %d'%FLG)
    A('s_lshr_b32 s68, s49, 3\ns_and_b32 s69, s49, 7')
    A('v_lshrrev_b32 v2, 5, v0\ns_lshl_b32 s54, s53, 1\nv_add_u32 v2, s54, v2')
    A('v_and_b32 v3, 31, v0\nv_lshlrev_b32 v3, 4, v3')
    A('v_lshl_add_u32 v4, v2, 10, v3')
    A('s_xor_b32 s13, s2, s49\ns_and_b32 s13, s13, 1\ns_lshr_b32 s14, s49, 4\ns_bfe_u32 s15, s49, 0x30001')
    A('s_lshl_b32 s54, s53, 7\nv_lshrrev_b32 v14, 2, v0\nv_add_u32 v6, s54, v14\nv_lshlrev_b32 v6, 13, v6\nv_and_b32 v13, 0x30, v1')
    A('s_lshr_b32 s55, s49, 1\ns_lshl_b32 s55, s55, 6\ns_lshl_b32 s54, s48, 10\ns_add_u32 s54, s54, s55\nv_add3_u32 v6, v6, v13, s54')
    A('s_lshl_b32 s54, s48, 13\ns_add_u32 s54, s54, s55\nv_lshlrev_b32 v14, 10, v14\nv_add3_u32 v14, v14, v13, s54')
    A('v_and_b32 v7, 7, v0\nv_and_b32 v15, 0x30, v0\nv_lshlrev_b32 v77, 2, v7')
    A('s_and_b32 s14, s15, 1\ns_lshl_b32 s14, s14, 2')
    A('v_mov_b32 v40, -1\nv_mov_b32 v41, -1\nv_mov_b32 v42, -1\nv_mov_b32 v43, -1')
    A('s_lshl_b32 s71, s53, 13\ns_add_u32 m0, s71, %d'%L_WA)
    A('v_lshrrev_b32 v44, 1, v0\nv_lshlrev_b32 v44, 9, v44\nv_and_b32 v45, 16, v1\nv_add3_u32 v79, v44, v45, %s'%'s3')
    A('v_mov_b32 v44, 0\nv_mov_b32 v45, 0\nv_mov_b32 v46, 0\nv_mov_b32 v47, 0\nv_mov_b32 v11, 0\nv_mov_b32 v12, 1')
    A('s_lshl_b32 s12, s2, 2\ns_add_u32 s12, s12, s53')
    A('s_waitcnt lgkmcnt(0)')
    A('s_cmp_lg_u32 s13, 0\ns_cbranch_scc1 L_clr')
    A('global_load_dwordx4 v[32:35], v4, %s'%X)
    A('global_load_dwordx4 v[36:39], v4, %s offset:512'%X)
    for i in range(8):
        A('s_xor_b32 s54, s14, %d\ns_lshl_b32 s55, s54, 17\nv_add_u32 v13, s55, v6\ns_lshl_b32 s54, s54, 10\ns_add_u32 s54, s54, s71\ns_add_u32 m0, s54, %d\ns_nop 0'%(i,L_WA))
        A('global_load_lds_dwordx4 v13, %s %s'%(WQ,cfg.qf))
    A('s_branch L_clrd')
    A('L_clr:')
    if cfg.cpf==1:
        A('s_getpc_b64 s[6:7]\nL_pc:\ns_sub_u32 s6, s6, L_pc-%s\ns_subb_u32 s7, s7, 0'%K)
        A('s_lshr_b32 s54, s49, 1\ns_lshl_b32 s54, s54, 2\ns_add_u32 s54, s54, s53\ns_lshl_b32 s54, s54, 9\nv_lshl_add_u32 v48, v0, 3, s54\nv_min_u32 v48, L_last-%s-8, v48'%K)
        A('v_mov_b32 v55, s7\nv_add_co_u32 v54, vcc, s6, v48\ns_nop 1\nv_addc_co_u32 v55, vcc, 0, v55, vcc')
        A('global_load_dwordx2 v[50:51], v[54:55], off')
    A('s_cmp_lg_u32 s53, 3\ns_cbranch_scc1 L_nolead\ns_cmp_ge_u32 s49, 2\ns_cbranch_scc1 L_nolead')
    A('s_lshl_b32 s54, s48, 13\ns_add_u32 s54, s54, 4096\nv_add_u32 v48, s54, v1\ns_lshl_b32 s54, s48, 11\nv_add_u32 v49, s54, v79\ns_lshl_b32 s54, s48, 2\nv_mov_b32 v52, s54')
    for i in range(8): A('global_store_dwordx4 v48, v[40:43], %s offset:%d sc1'%(WS,1024*i-4096))
    A('s_mov_b64 exec, 0xff\nglobal_store_dwordx4 v49, v[44:47], %s sc1\nglobal_store_dwordx4 v49, v[44:47], %s offset:256 sc1'%(WS,WS))
    A('s_waitcnt vmcnt(0)')
    A('s_mov_b64 exec, 1\nglobal_store_dword v52, v12, %s sc1\ns_mov_b64 exec, -1'%DBG)
    A('L_nolead:')
    A('s_lshr_b32 s54, s2, 1\ns_lshl_b32 s54, s54, 2\ns_add_u32 s54, s54, s53\ns_mul_i32 s54, s54, 3584\ns_add_u32 s54, s54, %d'%CLR)
    A('v_add_u32 v6, s54, v1')
    if cfg.nclr<4: A('s_cmp_lt_u32 s2, %d\ns_cbranch_scc1 L_skc'%(232 if cfg.nclr==0 else 256))
    for i in range(3): A('global_store_dwordx4 v6, v[40:43], %s offset:%d %s'%(WS,1024*i,cfg.cf))
    A('s_mov_b32 exec_hi, 0')
    A('global_store_dwordx4 v6, v[40:43], %s offset:3072 %s'%(WS,cfg.cf))
    if cfg.nclr<4: A('L_skc:')
    def wo_dma():
        A('s_lshl_b32 s54, s48, 2\ns_add_u32 s54, s54, s68\ns_lshl_b32 s54, s54, 7\ns_lshl_b32 s55, s53, 1\ns_add_u32 s54, s54, s55\ns_lshl_b32 s54, s54, 10\ns_and_b32 s55, s15, 3\ns_lshl_b32 s55, s55, 8\ns_add_u32 s54, s54, s55')
        A('v_lshrrev_b32 v48, 4, v0\nv_lshlrev_b32 v48, 13, v48\nv_and_b32 v49, 15, v0\nv_lshl_add_u32 v48, v49, 4, v48\nv_add_u32 v48, s54, v48')
        for i in range(8):
            A('v_add_u32 v49, %d, v48\ns_add_u32 m0, s71, %d\ns_nop 0\nglobal_load_lds_dwordx4 v49, %s %s'%((32*(i&3)+(i>>2))*1024,L_WA+i*1024,WO,cfg.wf))
    if cfg.wo0 and not cfg.wo1:
        A('s_mov_b64 exec, -1')
        if not cfg.noW: wo_dma()
    A('L_clrd:')
    A('s_mov_b64 exec, -1')
    A('s_and_b32 s54, s49, 3\ns_lshl_b32 s9, s54, 16\ns_lshr_b32 s54, s49, 2\ns_lshl_b32 s54, s54, 10\ns_add_u32 s9, s9, s54\ns_lshl_b32 s54, s48, 7\ns_add_u32 s9, s9, s54\ns_add_u32 s9, s9, %d'%PRB)
    A('s_lshl_b32 s54, s53, 14\ns_add_u32 s54, s54, s9\nv_bfe_u32 v6, v0, 3, 1\nv_lshlrev_b32 v6, 13, v6\nv_and_b32 v13, 0x70, v1\nv_add3_u32 v6, v6, v13, s54')
    A('s_mov_b64 exec, 0xffff')
    A('s_cmp_ge_u32 s49, %d\ns_cbranch_scc1 L_nopl\ns_cmp_ge_u32 s53, %d\ns_cbranch_scc1 L_nopl'%(cfg.NV,cfg.NP))
    A('global_store_dwordx4 v6, v[40:43], %s sc1'%WS)
    A('L_nopl:')
    A('s_mov_b64 exec, -1')
    if cfg.svcfirst==2: A('s_barrier')
    A('v_mul_u32_u24 v5, %d, v2\nv_add_u32 v5, v5, v3'%XNS)
    A('v_lshrrev_b32 v8, 4, v0\nv_lshlrev_b32 v8, 9, v8\nv_bfe_u32 v9, v0, 2, 2\nv_lshl_add_u32 v8, v9, 6, v8\nv_and_b32 v9, 3, v0\nv_lshl_add_u32 v8, v9, 3, v8')
    A('v_add_u32 v8, s71, v8')
    A('v_mul_u32_u24 v9, %d, v7\nv_add_u32 v9, v9, v15\ns_lshl_b32 s54, s53, 8\nv_add_u32 v10, s54, v9'%XNS)
    A('s_lshl_b32 s54, s53, 8\nv_mov_b32 v31, s54')

    def dppadd(r,ctl):
        A('s_nop 1\nv_add_f32_dpp v%d, v%d, v%d %s row_mask:0xf bank_mask:0xf'%(r,r,r,ctl))
    def swapadd(r,t,w):
        A('v_mov_b32 v%d, v%d\ns_nop 1\nv_permlane%d_swap_b32 v%d, v%d\nv_add_f32 v%d, v%d, v%d'%(t,r,w,r,t,r,r,t))
    def rbf(r):
        A('v_cvt_pk_bf16_f32 v%d, 0, v%d'%(r,r))
    def layernorm(mode):
        if mode=='x':
            for i in range(8):
                A('v_lshlrev_b32 v%d, 16, v%d\nv_and_b32 v%d, s60, v%d'%(48+2*i,32+i,49+2*i,32+i))
        Q=lambda i:'v[%d:%d]'%(48+2*i,49+2*i)
        P=Q if mode=='x' else (lambda i:'v[%d:%d]'%(216+2*i,217+2*i))
        A('v_pk_add_f32 v[64:65], %s, %s\nv_pk_mul_f32 v[66:67], %s, %s'%(P(0),P(1),P(0),P(0)))
        A('v_pk_add_f32 v[68:69], %s, %s\nv_pk_mul_f32 v[70:71], %s, %s'%(P(2),P(3),P(1),P(1)))
        for i in range(2,8,2):
            if i>2: A('v_pk_add_f32 v[64:65], v[64:65], %s'%P(i))
            A('v_pk_fma_f32 v[66:67], %s, %s, v[66:67]'%(P(i),P(i)))
            if i>2: A('v_pk_add_f32 v[68:69], v[68:69], %s'%P(i+1))
            A('v_pk_fma_f32 v[70:71], %s, %s, v[70:71]'%(P(i+1),P(i+1)))
        A('v_pk_add_f32 v[64:65], v[64:65], v[68:69]\nv_pk_add_f32 v[66:67], v[66:67], v[70:71]')
        A('v_add_f32 v64, v64, v65\nv_add_f32 v66, v66, v67')
        ctl=['row_ror:1','row_ror:2','row_ror:4','row_ror:8'] if mode=='x' else ['quad_perm:[1,0,3,2]','quad_perm:[2,3,0,1]','row_ror:8']
        for c in ctl:
            A('s_nop 0')
            for r in (64,66): A('v_add_f32_dpp v%d, v%d, v%d %s row_mask:0xf bank_mask:0xf'%(r,r,r,c))
        for w in ((16,) if mode=='x' else (16,32)):
            A('v_mov_b32 v65, v64\nv_mov_b32 v67, v66\ns_nop 0')
            A('v_permlane%d_swap_b32 v64, v65\nv_permlane%d_swap_b32 v66, v67'%(w,w))
            A('v_add_f32 v64, v64, v65\nv_add_f32 v66, v66, v67')
        A('v_mul_f32 v64, 0xbb000000, v64\nv_mul_f32 v66, 0x3b000000, v66')
        A('v_cvt_pk_bf16_f32 v68, 0, v64')
        chain=['v_fma_f32 v66, -v64, v64, v66','v_max_f32 v66, 0, v66','v_cvt_pk_bf16_f32 v66, 0, v66','v_add_f32 v66, 0x3727c5ac, v66',
               'v_cvt_pk_bf16_f32 v66, 0, v66','v_sqrt_f32 v66, v66','v_cvt_pk_bf16_f32 v66, 0, v66','v_rcp_f32 v66, v66']
        for i in range(8):
            A(chain[i])
            A('v_pk_add_f32 %s, %s, v[68:69] op_sel_hi:[1,0]'%(Q(i),P(i)))
        for i in range(16): A('v_cvt_pk_bf16_f32 v%d, 0, v%d'%(48+i,48+i))
        nw=2 if mode=='h' else 4
        for i in range(8):
            A('v_pk_mul_f32 %s, %s, v[66:67] op_sel_hi:[1,0]'%(Q(i),Q(i)))
        for i in range(8):
            A('v_cvt_pk_bf16_f32 v%d, v%d, v%d'%(32+i,48+2*i,49+2*i))
            if mode=='h' and i%2==1: A('ds_write_b64 v5, v[%d:%d] offset:%d'%(31+i,32+i,L_XN+256*(i//2)))
            if mode=='x' and i%4==3: A('ds_write_b128 v5, v[%d:%d] offset:%d'%(29+i,32+i,L_XN+512*(i//4)))
    def lds_sync(cnt,sleep=0):
        l=newlab('ls')
        A('s_waitcnt lgkmcnt(0)')
        A('s_mov_b64 exec, 1\nds_add_u32 v11, v12 offset:%d\ns_mov_b64 exec, -1'%(L_CNT+4*cnt))
        lds_wait(11,L_CNT+4*cnt,4,sleep)
    def lds_wait(va,off,val,sleep):
        l=newlab('lw'); d=newlab('ld')
        A('s_mov_b32 s58, %d'%cfg.lspin)
        A('%s:'%l)
        A('ds_read_b32 v13, v%d offset:%d\ns_waitcnt lgkmcnt(0)\nv_readfirstlane_b32 s54, v13\ns_cmp_ge_u32 s54, %s\ns_cbranch_scc1 %s'%(va,off,val,d))
        if sleep: A('s_sleep %d'%sleep)
        A('s_sub_u32 s58, s58, 1\ns_cmp_lg_u32 s58, 0\ns_cbranch_scc1 %s'%l)
        expired(11,13,'lds_wait %d %s'%(off-L_CNT,val))
        A('%s:'%d)
    def progress(p): lds_wait(31,L_PR,p,6)
    def poll(loads,regs,sleep=0,guard=False):
        l=newlab('pl'); d=newlab('pd')
        if guard: sleep=cfg.tsleep
        A('s_mov_b32 s61, %d'%cfg.spin)
        A('%s:'%l)
        for x in loads: A(x)
        import re as _re
        first=True; pend=[]
        for i,x in enumerate(loads):
            m=_re.search(r'v\[(\d+):(\d+)\]',x)
            pend+=list(range(int(m.group(1)),int(m.group(2))+1))
            last=(i==len(loads)-1)
            if len(pend)<4 and not last: continue
            A('s_waitcnt vmcnt(%d)'%(len(loads)-1-i))
            while pend:
                if first:
                    if len(pend)>=3: A('v_max3_u32 v13, v%d, v%d, v%d'%tuple(pend[:3])); pend=pend[3:]
                    else: A('v_max_u32 v13, v%d, v%d'%tuple(pend[:2])); pend=pend[2:]
                    first=False
                elif len(pend)>=2: A('v_max3_u32 v13, v13, v%d, v%d'%tuple(pend[:2])); pend=pend[2:]
                elif last: A('v_max_u32 v13, v13, v%d'%pend[0]); pend=[]
                else: break
        A('v_cmp_eq_u32 vcc, -1, v13')
        A('s_cbranch_vccz %s'%d)
        if sleep: A('s_sleep %d'%sleep)
        A('s_sub_u32 s61, s61, 1\ns_cmp_lg_u32 s61, 0\ns_cbranch_scc1 %s'%l)
        A('%s:'%d)
    def apoll(loads,par):
        import re as _re
        mode,D,sleep=par
        loads=[x.replace(' sc1',' '+cfg.lf) for x in loads]
        l=newlab('al'); d=newlab('ad'); gl=newlab('ag')
        rg=[]
        for x in loads:
            m=_re.search(r'v\[(\d+):(\d+)\]',x); rg.append(list(range(int(m.group(1)),int(m.group(2))+1)))
        def chain(t,r):
            r=list(r)
            if len(r)==2: A('v_max_u32 v%d, v%d, v%d'%(t,r[0],r[1])); return
            A('v_max3_u32 v%d, v%d, v%d, v%d'%(t,r[0],r[1],r[2])); r=r[3:]
            while r:
                if len(r)==1: A('v_max_u32 v%d, v%d, v%d'%(t,t,r[0])); r=[]
                else: A('v_max3_u32 v%d, v%d, v%d, v%d'%(t,t,r[0],r[1])); r=r[2:]
        n=len(loads)
        A('s_mov_b32 s61, %d'%cfg.spin)
        if mode in 'cm':
            A('%s:'%l)
            for x in loads: A(x)
            if sleep: A('s_sleep %d'%sleep)
            A('s_waitcnt vmcnt(%d)'%min(63,n*(D-1)))
            chain(13,sum(rg,[]))
            A('v_cmp_eq_u32 vcc, -1, v13')
            A('s_cbranch_vccz %s'%d)
            if mode=='m': A('s_mov_b64 exec, vcc')
            A('s_sub_u32 s61, s61, 1\ns_cmp_lg_u32 s61, 0\ns_cbranch_scc1 %s'%l)
            A('%s:'%d)
            if mode=='m': A('s_mov_b64 exec, s[4:5]')
        else:
            mk=['s[6:7]','s[8:9]','s[56:57]','s[40:41]','s[42:43]','s[44:45]','s[46:47]','s[62:63]'][:n]
            for m_ in mk: A('s_mov_b64 %s, s[4:5]'%m_)
            A('%s:'%l)
            for x,m_ in zip(loads,mk):
                sk=newlab('as')
                A('s_mov_b64 exec, %s\ns_cbranch_execz %s'%(m_,sk)); A(x); A('%s:'%sk)
            A('s_mov_b64 exec, s[4:5]')
            if sleep: A('s_sleep %d'%sleep)
            A('s_waitcnt vmcnt(%d)'%min(63,n*(D-1)))
            for i in range(n): chain(246+i,rg[i])
            chain(13,[246+i for i in range(n)])
            A('v_cmp_eq_u32 vcc, -1, v13')
            A('s_cbranch_vccz %s'%d)
            for i in range(n): A('v_cmp_eq_u32 %s, -1, v%d'%(mk[i],246+i))
            A('s_sub_u32 s61, s61, 1\ns_cmp_lg_u32 s61, 0\ns_cbranch_scc1 %s'%l)
            A('%s:'%d)
    def spoll(loads,hooks,pre=None,post=None,once=None):
        import re as _re
        l=newlab('sl'); d=newlab('sd')
        A('s_mov_b32 s61, %d'%cfg.spin)
        if once:
            m_=newlab('sm')
            if pre: A(pre)
            for x in loads: A(x)
            if post: A(post)
            once()
            A('s_branch %s'%m_)
        A('%s:'%l)
        if pre: A(pre)
        for x in loads: A(x)
        if post: A(post)
        if once: A('%s:'%m_)
        first=True; pend=[]
        n=len(loads)
        for i,x in enumerate(loads):
            m=_re.search(r'v\[(\d+):(\d+)\]',x)
            pend+=list(range(int(m.group(1)),int(m.group(2))+1))
            if i<n-1 and i not in hooks: continue
            A('s_waitcnt vmcnt(%d)'%(n-1-i))
            chk=[]
            while pend:
                if first:
                    chk.append('v_max3_u32 v13, v%d, v%d, v%d'%tuple(pend[:3])); pend=pend[3:]; first=False
                elif len(pend)>=2: chk.append('v_max3_u32 v13, v13, v%d, v%d'%tuple(pend[:2])); pend=pend[2:]
                elif i==n-1: chk.append('v_max_u32 v13, v13, v%d'%pend[0]); pend=[]
                else: break
            if i==n-1: chk.append('v_cmp_eq_u32 vcc, -1, v13')
            h=list(hooks.get(i,[]))
            while h or chk:
                if h: A(h.pop(0))
                if chk: A(chk.pop(0))
        A('s_cbranch_vccz %s'%d)
        A('s_sub_u32 s61, s61, 1\ns_cmp_lg_u32 s61, 0\ns_cbranch_scc1 %s'%l)
        A('%s:'%d)
    def gate(n):
        if not n: return
        l=newlab('ga'); d=newlab('gb')
        A('s_mov_b32 s61, %d\n%s:\nglobal_load_dword v13, v14, %s sc1\ns_waitcnt vmcnt(0)\nv_cmp_ne_u32 vcc, -1, v13\ns_nop 1\ns_bcnt1_i32_b64 s6, vcc\ns_cmp_ge_u32 s6, %d\ns_cbranch_scc1 %s'%(cfg.spin,l,WS,n,d))
        A('s_sleep 2\ns_sub_u32 s61, s61, 1\ns_cmp_lg_u32 s61, 0\ns_cbranch_scc1 %s\n%s:'%(l,d))
    def flagpoll(voff,execmask,par=None):
        l=newlab('fl'); d=newlab('fd')
        A('s_mov_b32 s61, %d'%cfg.spin)
        A('s_mov_b64 exec, %s'%execmask)
        A('%s:'%l)
        A('global_load_dwordx4 v[72:75], v%d, %s sc1\ns_waitcnt vmcnt(0)'%(voff,WS))
        if par: A('v_min_u32 v13, v72, v74\nv_min_u32 v76, v73, v75\nv_cndmask_b32 v13, v13, v76, %s\nv_cmp_eq_u32 vcc, 0, v13\ns_cbranch_vccz %s'%(par,d))
        else: A('v_min3_u32 v13, v72, v73, v74\nv_min_u32 v13, v13, v75\nv_cmp_eq_u32 vcc, 0, v13\ns_cbranch_vccz %s'%d)
        A('s_sleep 16')
        A('s_sub_u32 s61, s61, 1\ns_cmp_lg_u32 s61, 0\ns_cbranch_scc1 %s'%l)
        A('%s:'%d)
        A('s_mov_b64 exec, -1')
    def CLASS():
        A('s_cmp_lg_u32 s53, 0\ns_cbranch_scc1 L_nofc')
        progress(cfg.pw0)
        A('s_mov_b32 s6, 0x00ff00ff\ns_mov_b32 s7, s6')
        flagpoll(79,'-1','s[6:7]')
        A('v_cndmask_b32 v13, v72, v73, s[6:7]\nv_cndmask_b32 v76, v74, v75, s[6:7]\nv_cmp_ne_u32 vcc, s65, v13\nv_cmp_ne_u32 s[8:9], s65, v76\ns_nop 1')
        A('s_or_b64 s[8:9], s[8:9], vcc\ns_and_b32 s54, s50, 7\ns_lshl_b32 s54, s54, 3\ns_lshr_b64 s[8:9], s[8:9], s54\ns_and_b32 s8, s8, 0xff\ns_cselect_b32 s12, 0, 32')
        A('ds_write_b128 v1, v[72:75] offset:%d'%L_DP)
        A('v_add_u32 v7, 256, v79\ns_mov_b32 s6, %s\ns_mov_b32 s7, s6\ns_waitcnt lgkmcnt(0)'%('0x03030303' if cfg.NV==8 else '0x01010101'))
        flagpoll(7,'s[6:7]')
        A('s_and_b32 s54, s48, 3\ns_lshl_b32 s54, s54, 7\ns_lshl_b32 s55, s49, 2\ns_add_u32 s54, s54, s55\nv_mov_b32 v7, s54')
        A('s_mov_b32 s6, 0')
        for r in range(72,76):
            A('v_and_b32 v13, 2, v%d\nv_cmp_ne_u32 vcc, 0, v13\ns_nop 1\ns_bcnt1_i32_b64 s7, vcc\ns_add_u32 s6, s6, s7'%r)
        A('s_waitcnt lgkmcnt(0)\nds_read_b32 v13, v7 offset:%d\ns_waitcnt lgkmcnt(0)\nv_readfirstlane_b32 s7, v13'%L_DP)
        if cfg.wo0:
            A('s_and_b32 s54, s48, 3\ns_lshl_b32 s54, s54, 7\ns_andn2_b32 s55, 1, s48\ns_lshl_b32 s55, s55, 2\ns_add_u32 s54, s54, s55\nv_mov_b32 v7, s54')
            A('s_and_b32 s54, s50, 3\ns_lshl_b32 s54, s54, 7\ns_andn2_b32 s55, 1, s50\ns_lshl_b32 s55, s55, 2\ns_add_u32 s54, s54, s55\nv_mov_b32 v72, s54')
            A('ds_read_b32 v13, v7 offset:%d\nds_read_b32 v72, v72 offset:%d\ns_waitcnt lgkmcnt(0)\nv_readfirstlane_b32 s4, v13\nv_readfirstlane_b32 s5, v72'%(L_DP,L_DP))
            A('s_xor_b32 s4, s4, s48\ns_bfe_u32 s4, s4, 0x10002\ns_xor_b32 s5, s5, s50\ns_bfe_u32 s5, s5, 0x10002')
        if cfg.diag: A('s_mov_b32 s9, s6')
        A('s_cmp_ge_u32 s6, %d\ns_cselect_b32 s6, 1, 0'%(4*cfg.NV))
        if cfg.par is not None: A('s_mov_b32 s6, %d'%cfg.par)
        A('s_xor_b32 s7, s7, s48\ns_bfe_u32 s7, s7, 0x10002\ns_xor_b32 s7, s7, s6\ns_lshl_b32 s7, s7, 2\ns_lshl_b32 s6, s6, 1\ns_or_b32 s6, s6, s7\ns_or_b32 s6, s6, 1')
        if cfg.wo0: A('s_lshl_b32 s4, s4, 3\ns_lshl_b32 s5, s5, 4\ns_or_b32 s6, s6, s4\ns_or_b32 s6, s6, s5')
        A('s_or_b32 s6, s6, s12')
        A('v_mov_b32 v13, s6\nds_write_b32 v11, v13 offset:%d'%(L_CNT+8))
        if cfg.diag: A('s_cmp_lg_u32 s2, 0\ns_cbranch_scc1 L_nofc\nv_mov_b32 v13, s9\nv_mov_b32 v7, 32\nglobal_store_dword v7, v13, %s'%DBG)
        A('L_nofc:')
        lds_wait(11,L_CNT+8,1,6)
        A('s_and_b32 s12, s54, 32\ns_bfe_u32 s11, s54, 0x10002\ns_bfe_u32 s62, s54, 0x10003\ns_bfe_u32 s63, s54, 0x10004\ns_bfe_u32 s54, s54, 0x10001\ns_xor_b32 s10, s10, s54\ns_xor_b32 s62, s62, s54\ns_xor_b32 s63, s63, s54')
    def tr128(dst,base):
        for s_ in range(4):
            A('ds_read_b64_tr_b16 v[%d:%d], v8 offset:%d'%(dst+4*s_,dst+4*s_+1,base+4096*s_))
            A('ds_read_b64_tr_b16 v[%d:%d], v8 offset:%d'%(dst+4*s_+2,dst+4*s_+3,base+4096*s_+512))

    A('v_mov_b32 v76, 0')
    A('s_cmp_lg_u32 s13, 0\ns_cbranch_scc1 L_noln')
    A('s_waitcnt vmcnt(8)')
    stamp(1)
    layernorm('x')
    A('L_noln:')
    A('s_waitcnt vmcnt(0)')
    lds_sync(0)
    stamp(2)
    A('s_lshl_b32 s54, s48, 2\ns_add_u32 s54, s54, s68\ns_lshl_b32 s54, s54, 9\ns_lshl_b32 s55, s69, 2\ns_add_u32 s54, s54, s55\ns_add_u32 s54, s54, s3\nv_mov_b32 v6, s54')
    A('s_getreg_b32 s10, hwreg(HW_REG_XCC_ID)\ns_and_b32 s65, s10, 15\ns_bfe_u32 s10, s10, 0x10002')
    A('s_lshl_b32 s65, s65, 4\ns_lshl_b32 s54, s10, 2\ns_or_b32 s65, s65, s54\ns_or_b32 s65, s65, 1')
    def gowait(tag):
        A('s_mov_b64 exec, 0xff\ns_waitcnt vmcnt(0)\nv_cmp_eq_u32 vcc, 0, v76\ns_cbranch_vccz L_god%s'%tag)
        A('s_mov_b32 s61, %d\nL_go%s:\ns_sleep 8\nglobal_load_dword v13, v77, %s sc1\ns_waitcnt vmcnt(0)\nv_cmp_eq_u32 vcc, 0, v13\ns_cbranch_vccz L_god%s'%(cfg.spin,tag,DBG,tag))
        A('s_sub_u32 s61, s61, 1\ns_cmp_lg_u32 s61, 0\ns_cbranch_scc1 L_go%s\nL_god%s:'%(tag,tag))
    A('s_cmp_lg_u32 s53, 3\ns_cbranch_scc1 L_noflag')
    A('s_mov_b64 exec, 0xff\nglobal_load_dword v76, v77, %s sc1\ns_mov_b64 exec, -1'%DBG)
    A('s_cmp_eq_u32 s13, 0\ns_cbranch_scc1 L_noflag')
    gowait('r')
    A('s_mov_b64 exec, 1\nv_mov_b32 v7, s65\nglobal_store_dword v6, v7, %s sc1'%WS)
    A('s_mov_b64 exec, -1')
    A('L_noflag:')
    if cfg.wo1:
        A('s_cmp_eq_u32 s13, 0\ns_cbranch_scc1 L_now1'); wo_dma(); A('L_now1:')
    A('s_cmp_lg_u32 s13, 0\ns_cbranch_scc1 L_noq')
    for t in range(2):
        for s_ in range(4):
            r=80+16*t+4*s_
            A('ds_read_b64_tr_b16 v[%d:%d], v8 offset:%d'%(r,r+1,L_WA+2048*s_+32*t))
            A('ds_read_b64_tr_b16 v[%d:%d], v8 offset:%d'%(r+2,r+3,L_WA+2048*s_+32*t+256))
            if t==0: A('ds_read_b128 v[%d:%d], v10 offset:%d'%(112+4*s_,115+4*s_,L_XN+64*s_))
        A('s_waitcnt lgkmcnt(0)')
    for s_ in range(4):
        for t in range(2):
            acc='v[%d:%d]'%(48+4*t,51+4*t); r=80+16*t+4*s_
            A('v_mfma_f32_16x16x32_bf16 %s, v[%d:%d], v[%d:%d], %s'%(acc,r,r+3,112+4*s_,115+4*s_,'0' if s_==0 else acc))
    A('s_lshl_b32 s54, s53, 11\nv_add_u32 v56, s54, v1\nv_and_b32 v57, 3, v0\nv_lshlrev_b32 v57, 9, v57\nv_bfe_u32 v58, v0, 2, 3\nv_lshl_add_u32 v57, v58, 4, v57\ns_nop 1')
    A('ds_write_b128 v56, v[48:51] offset:%d\nds_write_b128 v56, v[52:55] offset:%d'%(L_DP,L_DP+1024))
    lds_sync(8)
    A('s_cmp_lg_u32 s53, 3\ns_cbranch_scc1 L_noq')
    for p in range(4):
        A('ds_read_b128 v[%d:%d], v57 offset:%d\nds_read_b128 v[%d:%d], v57 offset:%d'%(80+8*p,83+8*p,L_DP+2048*p,84+8*p,87+8*p,L_DP+2048*p+256))
    A('s_waitcnt lgkmcnt(0)')
    for p in range(4):
        A('v_pk_add_f32 v[%d:%d], v[%d:%d], v[%d:%d]'%(80+2*p,81+2*p,80+2*p,81+2*p,88+2*p,89+2*p))
        A('v_pk_add_f32 v[%d:%d], v[%d:%d], v[%d:%d]'%(96+2*p,97+2*p,96+2*p,97+2*p,104+2*p,105+2*p))
    for p in range(4): A('v_pk_add_f32 v[%d:%d], v[%d:%d], v[%d:%d]'%(80+2*p,81+2*p,80+2*p,81+2*p,96+2*p,97+2*p))
    for p in range(4): A('v_cvt_pk_bf16_f32 v%d, v%d, v%d\nv_min_u32 v%d, -2, v%d'%(48+p,80+2*p,81+2*p,48+p,48+p))
    gowait('p')
    A('s_mov_b32 exec_lo, -1')
    A('global_store_dwordx4 v14, v[48:51], %s sc1'%WS)
    A('s_mov_b64 exec, -1')
    A('L_noq:')
    stamp(3)
    A('s_mov_b64 exec, 1\nds_add_u32 v11, v12 offset:%d\ns_mov_b64 exec, -1'%(L_CNT+12))
    A('s_cmp_eq_u32 s53, 0\ns_cbranch_scc1 L_qg\ns_cmp_lg_u32 s53, 1\ns_cbranch_scc1 L_qdone\ns_cmp_ge_u32 s49, %d\ns_cbranch_scc1 L_qdone'%cfg.NV)
    A('s_mov_b32 s6, 0')
    for i in range(cfg.NP):
        for c in ((0,1) if i%2==0 else (1,0)):
            l=newlab('pb'); d=newlab('pe')
            A('s_add_u32 s7, s9, %d\ns_mov_b32 s8, 0\ns_mov_b32 s61, 0\ns_load_dword s8, %s, s7'%(i*16384+c*8192,WS))
            A('%s:\ns_add_u32 s61, s61, 1\ns_cmp_gt_u32 s61, 0xffff\ns_cbranch_scc1 %s\ns_cmp_eq_u32 s8, 0\ns_cbranch_scc1 %s\n%s:\ns_waitcnt lgkmcnt(0)'%(l,d,l,d))
            if i>0: A('%s s6, s6, s61'%('s_add_i32' if c==0 else 's_sub_i32'))
    A('s_cmp_gt_i32 s6, 0\ns_cselect_b32 s6, 1, 0')
    A('s_xor_b32 s6, s6, s10\ns_lshl_b32 s6, s6, 1\ns_or_b32 s6, s6, 1\nv_mov_b32 v7, s6')
    lds_wait(11,L_CNT+12,4,2)
    A('s_mov_b64 exec, 1\nglobal_store_dword v6, v7, %s offset:256 sc1\ns_mov_b64 exec, -1\ns_branch L_qdone'%WS)
    A('L_qg:')
    A('v_and_b32 v6, 3, v0\nv_lshlrev_b32 v6, 8, v6\nv_lshrrev_b32 v14, 2, v0\nv_lshl_add_u32 v6, v14, 4, v6')
    A('s_and_b32 s54, s50, 7\ns_lshl_b32 s54, s54, 13\ns_lshr_b32 s55, s50, 3\ns_lshl_b32 s55, s55, 10\ns_add_u32 s54, s54, s55\nv_add_u32 v6, s54, v6')
    lds_wait(11,L_CNT+12,4,2)
    progress(cfg.pq)
    stamp(4)
    poll(['global_load_dwordx4 v[32:35], v6, %s sc1'%WS],None,sleep=8)
    A('ds_write_b128 v1, v[32:35] offset:%d'%L_QL)
    stamp(5)
    A('s_waitcnt lgkmcnt(0)')
    if cfg.qflag: A('ds_write_b32 v11, v12 offset:%d'%(L_CNT+16))
    A('L_qdone:')
    if cfg.touch:
        A('s_lshl_b32 s54, s50, 21\ns_load_dword s4, %s, s54'%VP)
        A('s_load_dword s6, %s, 0\ns_load_dword s7, %s, 0\ns_load_dword s8, %s, 0'%(WG,WU,WD))
        A('s_lshl_b32 s54, s48, 19\ns_load_dword s9, %s, s54'%WO)
        A('s_waitcnt lgkmcnt(0)')
    A('s_setprio 0')
    if not cfg.qflag: A('s_barrier')

    A('s_mov_b32 s70, 0\ns_and_b32 s54, s49, 0x13\ns_cmp_eq_u32 s54, s64\ns_cselect_b32 s70, 2, s70')
    A('s_cmp_lt_u32 s48, 4\ns_cselect_b32 s6, 16, 12\ns_cselect_b32 s7, 8, 6\ns_cselect_b32 s8, 0, 8\ns_mul_i32 s14, s48, s7\ns_add_u32 s14, s14, s8')
    if cfg.helper: A('s_and_b32 s54, s49, 0x13\ns_xor_b32 s54, s54, 2\ns_cmp_eq_u32 s54, s64\ns_cselect_b32 s9, s49, 99\ns_cmp_lt_u32 s9, s6\ns_cselect_b32 s70, 4, s70')
    A('s_sub_u32 s54, s49, 16\ns_cmp_lt_u32 s54, s6\ns_cselect_b32 s70, 1, s70')
    A('s_xor_b32 s55, s2, s49\ns_and_b32 s55, s55, 1\ns_cselect_b32 s70, 3, s70')
    A('s_bfe_u32 s54, s49, 0x30001\ns_add_u32 s14, s14, s54')
    A('s_lshr_b32 s15, s49, 2\ns_add_u32 s54, s48, %d\ns_and_b32 s54, s54, 7\ns_lshl_b32 s54, s54, 2\ns_add_u32 s15, s15, s54'%cfg.crot)
    if cfg.e1now:
        A('s_cmp_lg_u32 s70, 1\ns_cbranch_scc1 L_ne1')
        lds_wait(11,L_CNT+12,4,2)
        A('s_lshl_b32 s54, s14, 6')
        A('s_lshl_b32 s55, s53, 7\nv_lshrrev_b32 v6, 2, v0\nv_add_u32 v6, s55, v6\nv_mul_u32_u24 v6, 3584, v6\nv_and_b32 v7, 3, v0\nv_lshl_add_u32 v6, v7, 4, v6\nv_add_u32 v6, s54, v6')
        for k in range(cfg.E1):
            i=k//2
            A(('v_add_u32 v7, %d, v6\n'%(i*16*3584))+'s_add_u32 m0, s71, %d\ns_nop 0\nglobal_load_lds_dwordx4 v7, %s %s'%(L_WA+32768*(k&1)+i*1024,WU if k&1 else WG,cfg.ff))
        A('L_ne1:')
    CLASS()
    A('s_lshr_b32 s13, s2, 1\ns_andn2_b32 s13, s13, 2\ns_lshl_b32 s54, s11, 1\ns_or_b32 s13, s13, s54')
    A('s_and_b32 s54, s48, 3\ns_lshl_b32 s54, s54, 2\ns_add_u32 s67, s54, s68\ns_lshl_b32 s54, s11, 4\ns_add_u32 s67, s67, s54')
    if cfg.wo0: A('s_lshl_b32 s54, s48, 2\ns_add_u32 s67, s54, s68')
    A('s_bfe_u32 s69, s49, 0x20001')
    A('v_and_b32 v6, 3, v0\nv_lshlrev_b32 v6, 2, v6\nv_lshrrev_b32 v7, 4, v0\nv_add_u32 v6, v6, v7')
    A('v_bfe_u32 v7, v0, 2, 1')
    A('v_lshrrev_b32 v24, 3, v0\nv_lshlrev_b32 v24, 13, v24\nv_and_b32 v13, 7, v0\nv_lshl_add_u32 v24, v13, 3, v24')
    A('s_and_b32 s54, s13, 31\ns_lshl_b32 s54, s54, 8\ns_lshr_b32 s55, s13, 5\ns_lshl_b32 s55, s55, 6\ns_add_u32 s54, s54, s55\ns_add_u32 s54, s54, %d\nv_add_u32 v24, s54, v24\ns_mov_b32 s55, s13'%HB)
    A('v_lshlrev_b32 v6, 1, v6\nv_lshl_add_u32 v6, v7, 10, v6\ns_lshr_b32 s54, s55, 5\ns_lshl_b32 s54, s54, 11\ns_and_b32 s55, s55, 31\ns_lshl_b32 s55, s55, 5\ns_add_u32 s54, s54, s55\nv_add_u32 v6, s54, v6')
    A('global_load_ushort v16, v6, %s'%X)
    def paced(k,n,line):
        if cfg.nb:
            nb=min(cfg.nb,n); span=16//nb
            bi=lambda k:(k*nb)//n
            if k==0 or bi(k)!=bi(k-1):
                A('s_lshr_b32 s55, s49, 1\ns_and_b32 s55, s55, %d\ns_add_u32 s55, s55, %d'%(span-1,cfg.pw0+1+span*bi(k)))
                progress('s55')
            assert cfg.pw0+16<cfg.NS-1
            A(line); return
        f=lambda k: cfg.pw0+(k*(cfg.pw1-cfg.pw0))//n
        if k==0 or f(k)!=f(k-1): progress(f(k))
        assert f(k)<cfg.NS
        A(line)
    def dma1(k):
        i=k//2
        return ('v_add_u32 v7, %d, v6\n'%(i*16*3584))+'s_add_u32 m0, s71, %d\ns_nop 0\nglobal_load_lds_dwordx4 v7, %s %s'%(L_WA+32768*(k&1)+i*1024,WU if k&1 else WG,cfg.ff)
    def dma2(i):
        return ('v_add_u32 v7, %d, v6\n'%(i*0x8000))+'s_add_u32 m0, s71, %d\ns_nop 0\nglobal_load_lds_dwordx4 v7, %s %s'%(L_WA+i*1024,WD,cfg.ff)
    l1=newlab('w1'); l2=newlab('w2'); le=newlab('we')
    A('s_cmp_eq_u32 s70, 0\ns_cbranch_scc1 %s\ns_cmp_eq_u32 s70, 2\ns_cbranch_scc1 %s\ns_cmp_lg_u32 s70, 3\ns_cbranch_scc1 %s'%(le,l2,l1))
    A('s_lshl_b32 s54, s67, 7\ns_lshl_b32 s55, s53, 1\ns_add_u32 s54, s54, s55\ns_lshl_b32 s54, s54, 10\ns_lshl_b32 s55, s69, 8\ns_add_u32 s54, s54, s55')
    A('v_lshrrev_b32 v6, 4, v0\nv_lshlrev_b32 v6, 13, v6\nv_and_b32 v7, 15, v0\nv_lshl_add_u32 v6, v7, 4, v6\nv_add_u32 v6, s54, v6')
    A('s_lshl_b32 s71, s53, 13')
    def dmaw(i):
        return 'v_add_u32 v7, %d, v6\ns_add_u32 m0, s71, %d\ns_nop 0\nglobal_load_lds_dwordx4 v7, %s %s'%((32*(i&3)+(i>>2))*1024,L_WA+i*1024,WO,cfg.wf)
    for i in range(0 if (cfg.noW or cfg.wo0) else cfg.EW): paced(i,cfg.EW,dmaw(i))
    A('s_branch %s'%le)
    A('%s:'%l1)
    A('s_lshl_b32 s54, s14, 6')
    A('s_lshl_b32 s55, s53, 7\nv_lshrrev_b32 v6, 2, v0\nv_add_u32 v6, s55, v6\nv_mul_u32_u24 v6, 3584, v6\nv_and_b32 v7, 3, v0\nv_lshl_add_u32 v6, v7, 4, v6\nv_add_u32 v6, s54, v6')
    A('s_lshl_b32 s71, s53, 13')
    A('s_cmp_eq_u32 s70, 4\ns_cbranch_scc1 %s'%le)
    for k in range(0 if cfg.e1now else cfg.E1): paced(k,cfg.E1,dma1(k))
    A('s_branch %s'%le)
    A('%s:'%l2)
    A('s_mul_i32 s54, s53, 448\nv_lshrrev_b32 v6, 1, v0\nv_add_u32 v6, s54, v6\nv_lshlrev_b32 v6, 10, v6')
    A('v_and_b32 v7, 1, v0\nv_lshl_add_u32 v6, v7, 4, v6\ns_lshl_b32 s54, s15, 5\nv_add_u32 v6, s54, v6')
    A('s_mul_i32 s71, s53, 14336')
    for k in range(cfg.E2): paced(k,cfg.E2,dma2(k))
    if cfg.E3:
        A('s_lshr_b32 s54, s15, 2\ns_cmp_lg_u32 s54, 3\ns_cbranch_scc1 %s'%le)
        for k in range(cfg.E3): A(dma2(k))
    A('%s:'%le)
    A('s_waitcnt vmcnt(0)')
    A('v_lshlrev_b32 v16, 16, v16')
    lds_sync(1,sleep=4)
    stamp(6)
    l1=newlab('r1'); l2=newlab('r2'); le=newlab('re')
    A('v_mov_b32 v26, 0\nv_mov_b32 v27, 0\nv_mov_b32 v28, 0\nv_mov_b32 v29, 0')
    A('s_cmp_eq_u32 s70, 1\ns_cbranch_scc1 %s\ns_cmp_eq_u32 s70, 2\ns_cbranch_scc1 %s'%(l1,l2))
    A('v_lshrrev_b32 v8, 4, v0\nv_lshlrev_b32 v8, 11, v8\nv_bfe_u32 v7, v0, 2, 2\nv_lshl_add_u32 v8, v7, 8, v8\nv_and_b32 v7, 3, v0\nv_lshl_add_u32 v8, v7, 3, v8')
    A('s_lshl_b32 s54, s53, 6\ns_add_u32 s54, s54, %d\nv_add_u32 v8, s54, v8'%L_WA)
    def trw():
        for t in range(2):
            for s_ in range(4):
                r=80+16*t+4*s_
                A('ds_read_b64_tr_b16 v[%d:%d], v8 offset:%d'%(r,r+1,8192*s_+32*t))
                A('ds_read_b64_tr_b16 v[%d:%d], v8 offset:%d'%(r+2,r+3,8192*s_+32*t+1024))
            if t==0 or cfg.EW==8: A('s_waitcnt lgkmcnt(0)')
    if cfg.EW==8: trw()
    A('s_branch %s'%le)
    A('%s:'%l1)
    A('v_lshrrev_b32 v8, 4, v0\nv_lshlrev_b32 v8, 9, v8\nv_bfe_u32 v7, v0, 2, 2\nv_lshl_add_u32 v8, v7, 6, v8')
    A('v_and_b32 v7, 1, v0\nv_lshl_add_u32 v8, v7, 3, v8\nv_bfe_u32 v7, v0, 1, 1\nv_lshl_add_u32 v8, v7, 15, v8\ns_add_u32 s54, s71, %d\nv_add_u32 v8, s54, v8'%L_WA)
    A('s_mul_i32 s55, s14, 147\ns_lshr_b32 s55, s55, 11\ns_mul_i32 s55, s55, %d'%(16384-7168))
    A('s_lshl_b32 s54, s14, 2\ns_add_u32 s54, s54, s53\ns_lshl_b32 s54, s54, 7\ns_add_u32 s54, s54, s55\ns_add_u32 s54, s54, %d'%AB)
    A('v_and_b32 v27, 0x70, v1\nv_lshrrev_b32 v7, 4, v0\nv_lshl_add_u32 v27, v7, 16, v27\nv_bfe_u32 v7, v0, 3, 1\nv_lshlrev_b32 v7, 13, v7\nv_add3_u32 v27, v27, v7, s54')
    A('s_and_b32 s55, s48, %d\ns_lshl_b32 s55, s55, 14\ns_lshl_b32 s54, s10, 13\ns_add_u32 s54, s54, s55\ns_lshl_b32 s55, s53, 11\ns_add_u32 s54, s54, s55\ns_add_u32 s54, s54, %d'%(cfg.nH//2-1,HB))
    A('v_and_b32 v4, 7, v0\nv_lshlrev_b32 v4, 5, v4\nv_lshrrev_b32 v7, 5, v0\nv_lshl_add_u32 v4, v7, 8, v4\nv_and_b32 v7, 16, v0\nv_add3_u32 v4, v4, v7, s54')
    A('s_mul_i32 s54, s53, 5120\nv_add_u32 v10, s54, v1')
    A('v_and_b32 v5, 0x17, v0\nv_lshlrev_b32 v5, 4, v5\nv_bfe_u32 v7, v0, 3, 1\nv_lshl_add_u32 v5, v7, 3, v5\nv_lshrrev_b32 v7, 5, v0\nv_lshl_add_u32 v5, v7, 2, v5\ns_lshl_b32 s54, s53, 10\nv_add_u32 v5, s54, v5')
    A('v_and_b32 v9, 7, v0\nv_lshlrev_b32 v9, 4, v9\nv_bfe_u32 v7, v0, 2, 1\nv_lshl_add_u32 v9, v7, 8, v9\nv_and_b32 v7, 3, v0\nv_lshl_add_u32 v9, v7, 2, v9')
    for p in range(4): A('v_add_u32 v%d, %d, v5\nv_add_u32 v%d, %d, v9'%(160+p,L_XN+5120*p,164+p,L_XN+5120*p+4096))
    A('s_branch %s'%le)
    A('%s:'%l2)
    A('v_lshrrev_b32 v8, 4, v0\nv_lshlrev_b32 v8, 9, v8\nv_bfe_u32 v7, v0, 1, 1\nv_lshl_add_u32 v8, v7, 8, v8\nv_bfe_u32 v7, v0, 2, 2\nv_lshl_add_u32 v8, v7, 5, v8')
    A('v_and_b32 v7, 1, v0\nv_lshl_add_u32 v8, v7, 3, v8\ns_add_u32 s55, s71, %d\nv_add_u32 v8, s55, v8'%L_WA)
    A('v_bfe_u32 v26, v0, 2, 1\nv_lshlrev_b32 v26, 10, v26\nv_bfe_u32 v7, v0, 1, 1\nv_lshl_add_u32 v26, v7, 8, v26\nv_lshrrev_b32 v7, 3, v0\nv_lshl_add_u32 v26, v7, 4, v26\nv_and_b32 v7, 1, v0\nv_lshl_add_u32 v26, v7, 3, v26')
    A('s_and_b32 s55, s48, %d\ns_lshl_b32 s55, s55, 16\ns_lshl_b32 s54, s53, 14\ns_add_u32 s54, s54, s55\ns_lshl_b32 s55, s10, 13\ns_add_u32 s54, s54, s55\ns_add_u32 s54, s54, %d\nv_add_u32 v27, s54, v1'%(cfg.nA//2-1,AB+3072))
    A('s_mov_b32 s54, s15\ns_lshl_b32 s55, s54, 5')
    A('v_lshrrev_b32 v28, 3, v0\nv_lshlrev_b32 v28, 10, v28\nv_and_b32 v7, 7, v0\nv_lshl_add_u32 v28, v7, 2, v28\nv_add_u32 v28, s55, v28')
    A('s_lshl_b32 s54, s54, 8\ns_and_b32 s55, s48, %d\ns_lshl_b32 s55, s55, 14\ns_add_u32 s54, s54, s55\ns_lshl_b32 s55, s10, 13\ns_add_u32 s54, s54, s55\ns_add_u32 s54, s54, %d'%(cfg.nH//2-1,HB))
    A('v_lshl_add_u32 v29, v0, 2, s54')
    A('s_lshl_b32 s54, s53, 11\nv_add_u32 v10, s54, v1')
    A('%s:'%le)
    A('s_lshl_b32 s54, s53, 9\nv_add_u32 v17, s54, v3')
    A('s_and_b32 s54, s50, 3\ns_lshl_b32 s54, s54, 2\ns_add_u32 s54, s54, s53\ns_mul_i32 s54, s54, 49152\n%s\ns_lshl_b32 s55, s55, 13\ns_add_u32 s54, s54, s55'%('s_mov_b32 s55, s63' if cfg.wo0 else 's_bfe_u32 s55, s50, 0x10002'))
    A('s_lshr_b32 s6, s50, 3\ns_mul_i32 s7, s6, 11\ns_lshr_b32 s7, s7, 5\ns_mul_i32 s7, s7, %d\ns_lshl_b32 s6, s6, 2\ns_add_u32 s6, s6, s51\ns_mul_i32 s6, s6, %d'%(16384-12*OPS,OPS))
    A('s_add_u32 s54, s54, s6\ns_add_u32 s54, s54, s7\ns_add_u32 s54, s54, %d\nv_add_u32 v18, s54, v1'%OP)
    A('s_and_b32 s54, s67, 15\ns_mul_i32 s54, s54, 49152\ns_lshl_b32 s55, %s, 13\ns_add_u32 s54, s54, s55\ns_add_u32 s54, s54, %d'%('s62' if cfg.wo0 else 's11',OP))
    A('v_mul_u32_u24 v7, 11, v2\nv_lshrrev_b32 v7, 5, v7\nv_mul_u32_u24 v7, %d, v7\nv_mul_u32_u24 v25, %d, v2\nv_add3_u32 v25, v25, v7, s54\nv_add_u32 v19, v25, v3'%(16384-12*OPS,4*OPS))
    if cfg.G1 or cfg.G2:
        A('v_bfe_u32 v14, v0, 2, 3\nv_mul_u32_u24 v7, 11, v14\nv_lshrrev_b32 v7, 5, v7\nv_mul_u32_u24 v7, %d, v7\nv_and_b32 v14, 31, v0\nv_mul_u32_u24 v14, %d, v14\nv_add_u32 v14, v14, v7'%(16384-12*OPS,OPS))
        A('v_lshrrev_b32 v7, 5, v0\nv_add_u32 v7, s48, v7\nv_and_b32 v7, 3, v7\nv_mul_u32_u24 v7, %d, v7\ns_lshl_b32 s54, s10, 13\ns_add_u32 s54, s54, %d\nv_add3_u32 v14, v14, v7, s54'%(4*49152,OP+512))
    A('s_lshl_b32 s54, s53, 5\nv_mov_b32 v30, s54')
    A('v_mul_u32_u24 v20, %d, v2\nv_lshrrev_b32 v7, 1, v3\nv_add_u32 v20, v20, v7'%XOS)
    A('v_and_b32 v21, 7, v0\nv_mul_u32_u24 v21, %d, v21\nv_add_u32 v21, v21, v15'%XOS)
    A('s_lshl_b32 s54, s69, 2\ns_add_u32 s54, s54, s53\ns_lshl_b32 s54, s54, 13\ns_add_u32 s54, s54, %d'%(WP+2048))
    A('s_lshl_b32 s55, s69, 1\ns_add_u32 s55, s55, s67' if cfg.wrot else 's_mov_b32 s55, s67')
    A('v_bfe_u32 v22, v0, 1, 2')
    A('v_lshl_add_u32 v7, v22, 3, s55' if cfg.wrot else 'v_mov_b32 v7, s55')
    A('v_and_b32 v7, 31, v7\nv_lshlrev_b32 v22, 17, v22\nv_lshl_add_u32 v22, v7, 7, v22\nv_and_b32 v7, 1, v0\nv_lshl_add_u32 v22, v7, 6, v22\nv_add3_u32 v22, v22, v15, s54')
    A('s_lshl_b32 s54, s13, 12\ns_add_u32 s54, s54, %d\nv_add_u32 v23, s54, v1'%WP)
    def guarded(lines):
        A(lines)
    def drychk():
        pass
    for r in range(192,246): A('v_mov_b32 v%d, -1'%r)
    A('s_waitcnt lgkmcnt(0)')
    A('s_mov_b64 vcc, 0\ns_mov_b64 s[4:5], %d\ns_mov_b64 exec, s[4:5]'%(0 if cfg.warm else -1))
    wpl=['global_load_dwordx4 v[%d:%d], v23, %s offset:%d sc1'%(216+4*t,219+4*t,WS,1024*t) for t in range(4)]
    opl=['global_load_dwordx2 v[%d:%d], v25, %s offset:%d sc1'%(208+2*s_,209+2*s_,WS,OPS*s_+512) for s_ in range(4)]+['global_load_dwordx4 v[%d:%d], v19, %s offset:%d sc1'%(192+4*s_,195+4*s_,WS,OPS*s_) for s_ in range(4)]
    hbl=['global_load_dwordx4 v[%d:%d], v4, %s offset:%d sc1'%(216+4*t,219+4*t,WS,1024*t) for t in range(4)]
    abl=['global_load_dwordx4 v[%d:%d], v27, %s offset:%d sc1'%(216+4*t,219+4*t,WS,1024*t-3072) for t in range(7)]
    if cfg.pre:
        A('s_cmp_lg_u32 s70, 3\ns_cbranch_scc1 L_pre1')
        if cfg.pre&2: A('\n'.join(opl))
        A('s_cmp_lg_u32 s53, 0\ns_cbranch_scc1 L_pre3')
        if cfg.pre&1: A('\n'.join(wpl))
        A('s_branch L_pre3\nL_pre1:')
        if cfg.pre&4:
            A('s_cmp_lg_u32 s70, 1\ns_cbranch_scc1 L_pre2'); A('\n'.join(hbl)); A('L_pre2:\ns_cmp_lg_u32 s70, 2\ns_cbranch_scc1 L_pre3'); A('\n'.join(abl))
        A('L_pre3:')
    if cfg.fb:
        p0,stp,late,up=cfg.fb
        A('s_cmp_lg_u32 s53, 1\ns_cbranch_scc1 L_nofb')
        A('s_and_b32 s54, s49, 7\ns_lshl_b32 s54, s54, 9\ns_add_u32 s54, s54, %d\ns_add_u32 s40, s38, s54\ns_addc_u32 s41, s39, 0\ns_mov_b32 s42, %d\ns_mov_b32 s44, 0'%(RNK,p0))
        A('L_fb:')
        lds_wait(31,L_PR,'s42',2)
        A('s_mov_b32 s43, 1\ns_atomic_add s43, s[40:41], s44 glc\ns_waitcnt lgkmcnt(0)\ns_add_u32 s43, s43, 1\ns_cmp_lt_u32 s43, %d\ns_cselect_b32 s45, 2, 0\ns_cmp_ge_u32 s43, %d\ns_cselect_b32 s43, 1, s45\nv_mov_b32 v13, s43\nds_write_b32 v11, v13 offset:%d'%(cfg.early[0] if cfg.early else 0,late,L_CNT+28))
        A('s_add_u32 s44, s44, 4096\ns_add_u32 s42, s42, %d\ns_cmp_lt_u32 s42, %d\ns_cbranch_scc1 L_fb\ns_waitcnt lgkmcnt(0)'%(stp,cfg.NS if cfg.T2b else cfg.NS-2))
        assert (cfg.NS-p0)//stp+1<=20
        A('L_nofb:')
    if cfg.disp and cfg.NS<32:
        A('s_cmp_lg_u32 s53, 2\ns_cbranch_scc1 L_tail')
        A('s_lshl_b32 s54, s50, %d\ns_add_u32 s54, s54, %d\ns_add_u32 s40, s38, s54\ns_addc_u32 s41, s39, 0'%(cfg.cs,CTR))
        lds_wait(31,L_PR,cfg.NS-1,2)
        thr,small,keep2=cfg.gd or (0,cfg.disp,cfg.disp-cfg.LA)
        A('s_mov_b32 s42, 0\ns_mov_b32 s44, %d\ns_mov_b32 s45, %d'%(cfg.disp,cfg.disp-cfg.LA))
        A('L_dsp:')
        A('s_mov_b32 s43, s44\ns_atomic_add s43, s[40:41], 0x0 glc\nv_add_lshl_u32 v7, v0, s42, 2\ns_bfm_b64 s[46:47], s44, 0\ns_waitcnt lgkmcnt(0)\ns_add_u32 s43, s43, 1\ns_min_u32 s43, s43, 4096\ns_add_u32 s43, s43, %d\nv_add_u32 v13, s43, v0'%(cfg.NS*16))
        A('s_add_u32 s55, s43, s44\ns_cmp_ge_u32 s55, 512\ns_cbranch_scc1 L_dspd')
        A('s_mov_b64 exec, s[46:47]\nds_write_b32 v7, v13 offset:%d\ns_mov_b64 exec, -1'%(L_CNT+64))
        A('s_add_u32 s42, s42, s44\ns_cmp_ge_u32 s43, %d\ns_cselect_b32 s44, %d, s44\ns_cselect_b32 s45, %d, s45\ns_sub_i32 s55, s42, s45\ns_max_i32 s55, s55, 0'%(512-thr,small,keep2))
        lds_wait(11,L_CNT+24,'s55',1)
        A('s_branch L_dsp')
        A('L_dspd:')
        A('s_mov_b64 exec, 0xff\nds_write_b32 v7, v13 offset:%d\ns_mov_b64 exec, -1'%(L_CNT+64))
        A('s_waitcnt lgkmcnt(0)')
    A('L_tail:')
    stamp(7)
    guarded('s_barrier')
    def wstep(b0,s0,w):
        o=[]
        for half in range(2):
            d='v[%d:%d]'%(b0+2*half,b0+2*half+1); src='v[%d:%d]'%(s0+4*w+2*half,s0+4*w+2*half+1); f='v[%d:%d]'%(72+2*(w//2),73+2*(w//2))
            if w==0: o.append('v_pk_mul_f32 %s, %s, %s op_sel_hi:[1,0]'%(d,src,f))
            elif w%2==0: o.append('v_pk_fma_f32 %s, %s, %s, %s op_sel_hi:[1,0,1]'%(d,src,f,d))
            else: o.append('v_pk_fma_f32 %s, %s, %s, %s op_sel:[0,1,0] op_sel_hi:[1,1,1]'%(d,src,f,d))
        return o
    def wsum2(b0,s0):
        for w in range(4): A('\n'.join(wstep(b0,s0,w)))
    def wsum(b0,half,s0=None):
        d='v[%d:%d]'%(b0+2*half,b0+2*half+1)
        s0=s0 or b0
        for w in range(4):
            src='v[%d:%d]'%(s0+4*w+2*half,s0+4*w+2*half+1)
            f='v[%d:%d]'%(72+2*(w//2),73+2*(w//2))
            if w==0: A('v_pk_mul_f32 %s, %s, %s op_sel_hi:[1,0]'%(d,src,f))
            elif w%2==0: A('v_pk_fma_f32 %s, %s, %s, %s op_sel_hi:[1,0,1]'%(d,src,f,d))
            else: A('v_pk_fma_f32 %s, %s, %s, %s op_sel:[0,1,0] op_sel_hi:[1,1,1]'%(d,src,f,d))
    if cfg.gleak is not None:
        k,lo,hi,msk=cfg.gleak
        A('s_cbranch_execz L_nogl\ns_cmp_lg_u32 s53, 0\ns_cbranch_scc1 L_nogl')
        if k==8: stamp(8); A('s_waitcnt lgkmcnt(0)')
        if k==200: A('s_getreg_b32 s72, hwreg(HW_REG_XCC_ID)\ns_sub_u32 s72, s72, s48\ns_and_b32 s72, s72, 7\ns_mul_i32 s72, s72, 50\nv_mov_b32 v33, s72')
        elif k>=100: A('v_mov_b32 v32, %d\nds_read_b32 v33, v32 offset:%d\ns_waitcnt lgkmcnt(0)'%(4*(k-100),L_ST))
        else: A('v_mov_b32 v33, s%d'%(72+2*k))
        A('v_not_b32 v33, v33\nv_mov_b32 v34, s72\nv_mov_b32 v32, 0x3bf000')
        A('s_mov_b64 exec, 1')
        if k!=8: A('global_atomic_umin v32, v34, %s'%WS)
        A('s_and_b32 s54, s2, %d\ns_sub_u32 s54, s54, %d\ns_cmp_ge_u32 s54, %d\ns_cbranch_scc1 L_nogl2'%(msk,lo,hi-lo))
        A('global_atomic_umin v32, v33, %s offset:256'%WS)
        A('L_nogl2:\ns_mov_b64 exec, -1\n'+('s_nop 2' if k==8 else 's_waitcnt vmcnt(0)'))
        A('L_nogl:')
    A('ds_read_b128 v[64:67], v30 offset:%d\nds_read_b128 v[68:71], v30 offset:%d'%(L_MLW,L_MLW+16))
    for w in range(4):
        A('ds_read_b128 v[%d:%d], v17 offset:%d'%(32+4*w,35+4*w,L_OW+2048*w))
    stamp(8)
    if cfg.notail: A('s_branch L_fin')
    A('s_and_b32 exec_hi, s4, 1')
    A('s_waitcnt lgkmcnt(%d)'%(0 if cfg.diag else 4))
    A('v_max3_f32 v76, v64, v65, v66\nv_max_f32 v76, v76, v67')
    A('v_pk_add_f32 v[72:73], v[64:65], v[76:77] op_sel_hi:[1,0] neg_lo:[0,1] neg_hi:[0,1]')
    A('v_pk_add_f32 v[74:75], v[66:67], v[76:77] op_sel_hi:[1,0] neg_lo:[0,1] neg_hi:[0,1]')
    for i in range(4): A('v_exp_f32 v%d, v%d'%(72+i,72+i))
    A('v_pk_mul_f32 v[68:69], v[68:69], v[72:73]\nv_pk_fma_f32 v[68:69], v[70:71], v[74:75], v[68:69]')
    A('s_waitcnt lgkmcnt(0)')
    A('v_add_f32 v77, v68, v69')
    wsum2(32,32)
    A('s_cmp_eq_u32 s12, 0')
    A('v_mov_b32_dpp v32, v76 quad_perm:[0,1,2,3] row_mask:0x4 bank_mask:0xf')
    A('v_mov_b32_dpp v33, v77 quad_perm:[0,1,2,3] row_mask:0x4 bank_mask:0xf')
    if cfg.oloc:
        A('s_cbranch_scc1 L_opf\nglobal_store_dwordx4 v18, v[32:35], %s\ns_branch L_opd\nL_opf:\nglobal_store_dwordx4 v18, v[32:35], %s sc1\nL_opd:'%(WS,WS))
    else: guarded('global_store_dwordx4 v18, v[32:35], %s %s'%(WS,cfg.sf if cfg.opf is None else cfg.opf))
    tstamp(1)
    A('s_mov_b64 exec, s[4:5]')
    A('s_cmp_lg_u32 s70, 3\ns_cbranch_scc1 L_rdone')
    if cfg.EW<8:
        for i in range(cfg.EW,8): A(dmaw(i))
        A('s_waitcnt vmcnt(0)\ns_barrier')
        trw()
    wts=['v_max3_f32 v76, v208, v210, v212','v_max_f32 v76, v76, v214']+['v_sub_f32 v%d, v%d, v76'%(72+i,208+2*i) for i in range(4)]+['v_exp_f32 v%d, v%d'%(72+i,72+i) for i in range(4)]
    wts+=['v_mul_f32 v78, v72, v209']+['v_fmac_f32 v78, v%d, v%d'%(72+i,209+2*i) for i in range(1,4)]+['v_rcp_f32 v78, v78','s_nop 0']
    wts+=['v_pk_mul_f32 v[72:73], v[72:73], v[78:79] op_sel_hi:[1,0]','v_pk_mul_f32 v[74:75], v[74:75], v[78:79] op_sel_hi:[1,0]']
    hk={3:wts}
    for w in range(4): hk[4+w]=wstep(48,192,w)
    if cfg.wa=='ml':
        apoll(opl[:4],('c',1,0)); spoll(opl,hk)
    elif cfg.wa:
        apoll(opl,cfg.wa)
        for i in range(3,8): A('\n'.join(hk[i]))
    else: spoll(opl,hk)
    stamp(9)
    A('v_cvt_pk_bf16_f32 v48, v48, v49\nv_cvt_pk_bf16_f32 v49, v50, v51')
    A('ds_write_b64 v20, v[48:49] offset:%d'%L_XO)
    A('s_waitcnt lgkmcnt(0)'); guarded('s_barrier')
    if cfg.tdiag: tstamp(2); A('s_waitcnt lgkmcnt(0)')
    for s_ in range(4):
        A('ds_read_b128 v[%d:%d], v21 offset:%d'%(32+4*s_,35+4*s_,L_XO+64*s_))
    for s_ in range(4):
        A('s_waitcnt lgkmcnt(%d)'%(3-s_))
        for t in range(2):
            acc='v[%d:%d]'%(48+4*t,51+4*t); r=80+16*t+4*s_
            A('v_mfma_f32_16x16x32_bf16 %s, v[%d:%d], v[%d:%d], %s'%(acc,r,r+3,32+4*s_,35+4*s_,'0' if s_==0 else acc))
    A('s_mov_b32 exec_lo, 0x00ff00ff\ns_mov_b32 exec_hi, 0x00ff00ff')
    A('s_nop 4')
    A('global_store_dwordx4 v22, v[48:51], %s offset:-2048 %s'%(WS,cfg.sf))
    A('global_store_dwordx4 v22, v[52:55], %s offset:2048 %s'%(WS,cfg.sf))
    tstamp(3)
    A('s_mov_b64 exec, -1')
    A('s_cmp_lg_u32 s53, 0\ns_cbranch_scc1 L_fin')
    apoll(['global_load_dwordx4 v[%d:%d], v23, %s offset:%d sc1'%(216+4*t,219+4*t,WS,1024*t) for t in range(4)],cfg.pR)
    stamp(10)
    A('v_pk_add_f32 v[32:33], v[216:217], v[220:221]\nv_pk_add_f32 v[34:35], v[218:219], v[222:223]')
    A('v_pk_add_f32 v[40:41], v[224:225], v[228:229]\nv_pk_add_f32 v[42:43], v[226:227], v[230:231]')
    A('v_pk_add_f32 v[32:33], v[32:33], v[40:41]\nv_pk_add_f32 v[34:35], v[34:35], v[42:43]')
    A('s_nop 1\nv_permlane32_swap_b32 v32, v34\nv_permlane32_swap_b32 v33, v35')
    A('v_add_f32 v32, v32, v34\nv_add_f32 v33, v33, v35')
    A('s_nop 1\nv_permlane16_swap_b32 v32, v33\nv_add_f32 v32, v32, v33')
    dppadd(32,'row_ror:8')
    rbf(32)
    A('v_add_f32 v32, v32, v16\nv_mov_b32 v33, v32\ns_nop 1')
    A('v_permlane16_swap_b32 v32, v33\nv_cvt_pk_bf16_f32 v32, v32, v33\nv_min_u32 v32, -2, v32\nv_mov_b32 v33, v32\ns_nop 1')
    A('v_permlane32_swap_b32 v32, v33')
    A('global_store_dwordx2 v24, v[32:33], %s %s'%(WS,cfg.sf))
    tstamp(4)
    A('s_branch L_fin')
    A('L_rdone:')
    A('s_cmp_eq_u32 s70, 2\ns_cbranch_scc1 L_ffn2')
    A('s_cmp_eq_u32 s70, 0\ns_cbranch_scc1 L_fin')
    gate(cfg.G1)
    if cfg.lrot:
        assert cfg.E1%2==0
        i0=cfg.E1//2; n=8-i0
        if cfg.helper: A('s_and_b32 s6, s14, 1\ns_cmp_eq_u32 s70, 4\ns_cselect_b32 s6, 2, s6\ns_mul_i32 s6, s6, %d\ns_add_u32 s6, s6, %d'%(n//3,i0))
        else: A('s_and_b32 s6, s14, 1\ns_mul_i32 s6, s6, %d\ns_add_u32 s6, s6, %d'%(n//2,i0))
        for it in range(n):
            if cfg.helper and it==n-2*(n//3): A('s_cmp_eq_u32 s70, 4\ns_cbranch_scc1 L_fin')
            A('s_mul_i32 s7, s6, %d\nv_add_u32 v7, s7, v6\ns_lshl_b32 s7, s6, 10\ns_add_u32 s7, s7, s71\ns_add_u32 m0, s7, %d\ns_add_u32 s6, s6, 1'%(16*3584,L_WA))
            A('global_load_lds_dwordx4 v7, %s %s'%(WG,cfg.ff))
            A('s_add_u32 m0, s7, %d\ns_cmp_eq_u32 s6, 8\ns_cselect_b32 s6, %d, s6'%(L_WA+32768,i0))
            A('global_load_lds_dwordx4 v7, %s %s'%(WU,cfg.ff))
    else:
        for k in range(cfg.E1,16): A(dma1(k))
    A('s_mov_b32 exec_lo, 0xff00ff00\ns_mov_b32 exec_hi, 0xff00ff00')
    for r in range(216,232): A('v_mov_b32 v%d, 0x3f803f80'%r)
    A('s_mov_b64 exec, -1')
    def tr1():
        A('s_waitcnt vmcnt(%d)'%(4 if cfg.ovl else 0))
        for t in range(4):
            for s_ in range(4):
                r=96+16*t+4*s_
                A('ds_read_b64_tr_b16 v[%d:%d], v8 offset:%d'%(r,r+1,2048*s_+16*t))
                A('ds_read_b64_tr_b16 v[%d:%d], v8 offset:%d'%(r+2,r+3,2048*s_+16*t+256))
            A('s_waitcnt lgkmcnt(%d)'%(0 if t==3 else 4))
        tstamp(2)
    if cfg.ovl: A('s_waitcnt vmcnt(0)')
    else: tr1()
    hk={}
    for s_ in range(4):
        B='v[%d:%d]'%(216+4*s_,219+4*s_); hk[s_]=[]
        for t in (4,0,1,2,3):
            acc='v[%d:%d]'%(32+4*t,35+4*t)
            Aop=B if t==4 else 'v[%d:%d]'%(96+16*t+4*s_,99+16*t+4*s_)
            hk[s_].append('v_mfma_f32_16x16x32_bf16 %s, %s, %s, %s'%(acc,Aop,B,'0' if s_==0 else acc))
    ns_=cfg.f1s
    spoll(['global_load_dwordx4 v[%d:%d], v4, %s offset:%d sc1'%(216+4*t,219+4*t,WS,512*t) for t in range(4)],{i:(hk[i] if i<ns_ else []) for i in range(4)},
          pre='s_mov_b32 exec_lo, 0x00ff00ff\ns_mov_b32 exec_hi, 0x00ff00ff',post='s_mov_b64 exec, -1',once=tr1 if cfg.ovl else None)
    stamp(11)
    for i in range(ns_,4): A('\n'.join(hk[i]))
    A('s_nop 3')
    for t in (4,0,1,2,3):
        A('ds_write_b128 v10, v[%d:%d] offset:%d'%(32+4*t,35+4*t,L_XN+1024*t))
    tstamp(5)
    A('s_waitcnt lgkmcnt(0)\ns_barrier')
    if cfg.tdiag: tstamp(6); A('s_waitcnt lgkmcnt(0)')
    for p in range(4): A('ds_read2_b32 v[%d:%d], v%d offset0:0 offset1:32'%(52+2*p,53+2*p,164+p))
    for p in range(4):
        A('ds_read2_b32 v[%d:%d], v%d offset0:0 offset1:32'%(60+2*p,61+2*p,160+p))
        A('ds_read2_b32 v[%d:%d], v%d offset0:128 offset1:160'%(68+2*p,69+2*p,160+p))
    A('s_waitcnt lgkmcnt(8)')
    A('v_pk_add_f32 v[52:53], v[52:53], v[54:55]\nv_pk_add_f32 v[56:57], v[56:57], v[58:59]\nv_pk_add_f32 v[52:53], v[52:53], v[56:57]')
    A('v_mul_f32 v53, 0xbb000000, v53\nv_mul_f32 v52, 0x3b000000, v52')
    A('v_fma_f32 v52, -v53, v53, v52\nv_cvt_pk_bf16_f32 v53, 0, v53\nv_max_f32 v52, 0, v52\nv_cvt_pk_bf16_f32 v52, 0, v52\nv_add_f32 v52, 0x3727c5ac, v52')
    A('v_cvt_pk_bf16_f32 v52, 0, v52\nv_sqrt_f32 v52, v52')
    A('s_waitcnt lgkmcnt(0)')
    A('v_pk_add_f32 v[60:61], v[60:61], v[62:63]\nv_cvt_pk_bf16_f32 v52, 0, v52\nv_pk_add_f32 v[64:65], v[64:65], v[66:67]\nv_rcp_f32 v52, v52')
    A('v_pk_add_f32 v[68:69], v[68:69], v[70:71]\nv_pk_add_f32 v[72:73], v[72:73], v[74:75]')
    A('v_pk_add_f32 v[60:61], v[60:61], v[64:65]\nv_pk_add_f32 v[68:69], v[68:69], v[72:73]')
    A('v_fmac_f32 v60, v53, v61\nv_fmac_f32 v68, v53, v69\nv_mul_f32 v60, v60, v52\nv_mul_f32 v68, v68, v52')
    A('v_cvt_pk_bf16_f32 v32, 0, v60\nv_cvt_pk_bf16_f32 v36, 0, v68')
    A('v_mul_f32 v33, v32, v32\nv_mul_f32 v33, 0x3d372713, v33\nv_fma_f32 v33, v33, v32, v32')
    A('v_mul_f32 v33, 0xc0135761, v33\nv_exp_f32 v33, v33\ns_nop 0\nv_add_f32 v33, 1.0, v33\nv_rcp_f32 v33, v33\ns_nop 0\nv_mul_f32 v33, v33, v32')
    rbf(33)
    A('v_mul_f32 v33, v33, v36\nv_mov_b32 v34, v33\ns_nop 1\nv_permlane32_swap_b32 v33, v34')
    A('v_cvt_pk_bf16_f32 v33, v33, v34\nv_min_u32 v36, -2, v33')
    A('v_mov_b32 v32, v36\nv_mov_b32 v33, v36\ns_nop 0')
    A('v_mov_b32_dpp v32, v36 row_ror:8 row_mask:0xf bank_mask:0xc\nv_mov_b32_dpp v33, v36 row_ror:8 row_mask:0xf bank_mask:0x3')
    A('v_mov_b32 v34, v32\nv_mov_b32 v35, v33\ns_nop 0')
    A('v_permlane16_swap_b32 v32, v34\nv_permlane16_swap_b32 v33, v35')
    if cfg.nA<8: A('s_and_b32 exec_lo, s4, 0x%x\ns_mov_b32 exec_hi, 0'%((1<<(8*cfg.nA))-1))
    guarded('global_store_dwordx4 v27, v[32:35], %s %s'%(WS,cfg.sf))
    stamp(12)
    A('L_fin:')
    A('s_waitcnt vmcnt(0)')
    if cfg.diag:
        dump_stamps(14,8)
    A('s_endpgm')
    A('L_ffn2:')
    if cfg.d2: A('s_waitcnt vmcnt(0)')
    gate(cfg.G2)
    if cfg.lrot:
        n=14-cfg.E2
        assert not (cfg.E2 and cfg.E3)
        A('s_lshr_b32 s8, s15, 2\ns_cmp_eq_u32 s8, 3\ns_cselect_b32 s8, %d, %d\ns_sub_u32 s9, 14, s8'%(cfg.E3 or cfg.E2,cfg.E2))
        A('s_and_b32 s6, s15, 3\ns_mul_i32 s6, s6, s9\ns_lshr_b32 s6, s6, 2\ns_add_u32 s6, s6, s8')
        for it in range(n):
            if cfg.E3 and it==14-cfg.E3: A('s_cmp_lg_u32 s8, 0\ns_cbranch_scc1 L_d2d')
            A('s_lshl_b32 s7, s6, 15\nv_add_u32 v7, s7, v6\ns_lshl_b32 s7, s6, 10\ns_add_u32 s7, s7, s71\ns_add_u32 m0, s7, %d\ns_add_u32 s6, s6, 1'%L_WA)
            A('global_load_lds_dwordx4 v7, %s %s'%(WD,cfg.ff))
            A('s_cmp_eq_u32 s6, 14\ns_cselect_b32 s6, s8, s6')
        A('L_d2d:')
    else:
        for k in range(cfg.E2,14): A(dma2(k))
    def tr2(n):
        A('s_waitcnt vmcnt(%d)'%n)
        for t in range(7):
            for tt in range(2):
                r=96+8*t+4*tt
                A('ds_read_b64_tr_b16 v[%d:%d], v8 offset:%d'%(r,r+1,2048*t+16*tt))
                A('ds_read_b64_tr_b16 v[%d:%d], v8 offset:%d'%(r+2,r+3,2048*t+16*tt+128))
            if t%2==0: A('s_waitcnt lgkmcnt(%d)'%(0 if t==6 else 4))
        tstamp(2)
    if cfg.ovl:
        A('s_waitcnt vmcnt(0)\nglobal_load_dword v60, v29, %s sc1'%WS)
        tr2(1)
        A('s_waitcnt vmcnt(0)\nv_cmp_eq_u32 vcc, -1, v60\ns_cbranch_vccz L_hok')
    else: tr2(0)
    l=newlab('hp'); d=newlab('hd')
    A('s_mov_b32 s61, %d\n%s:\nglobal_load_dword v60, v29, %s sc1\ns_waitcnt vmcnt(0)\nv_cmp_eq_u32 vcc, -1, v60\ns_cbranch_vccz %s'%(cfg.spin,l,WS,d))
    A('s_sub_u32 s61, s61, 1\ns_cmp_lg_u32 s61, 0\ns_cbranch_scc1 %s\n%s:'%(l,d))
    if cfg.ovl: A('L_hok:')
    A('v_and_b32 v61, s60, v60\nv_lshlrev_b32 v60, 16, v60')
    hk={}
    for t in range(7):
        hk[t]=[]
        for tt in range(2):
            acc='v[%d:%d]'%(64+4*tt,67+4*tt); r=96+8*t+4*tt
            hk[t].append('v_mfma_f32_16x16x32_bf16 %s, v[%d:%d], v[%d:%d], %s'%(acc,r,r+3,216+4*t,219+4*t,'0' if t==0 else acc))
    spoll(abl,hk)
    stamp(10)
    A('s_nop 3')
    A('ds_write_b128 v10, v[64:67] offset:%d'%L_DP)
    A('ds_write_b128 v10, v[68:71] offset:%d'%(L_DP+1024))
    A('s_waitcnt lgkmcnt(0)'); guarded('s_barrier')
    tstamp(6)
    A('s_cmp_lg_u32 s53, 0\ns_cbranch_scc1 L_fin')
    for w in range(4):
        A('ds_read_b64 v[%d:%d], v26 offset:%d'%(32+4*w,33+4*w,L_DP+2048*w))
        A('ds_read_b64 v[%d:%d], v26 offset:%d'%(34+4*w,35+4*w,L_DP+2048*w+640))
    A('s_waitcnt lgkmcnt(0)')
    for w in range(4): A('v_pk_add_f32 v[%d:%d], v[%d:%d], v[%d:%d]'%(32+4*w,33+4*w,32+4*w,33+4*w,34+4*w,35+4*w))
    A('v_pk_add_f32 v[32:33], v[32:33], v[36:37]\nv_pk_add_f32 v[40:41], v[40:41], v[44:45]\nv_pk_add_f32 v[32:33], v[32:33], v[40:41]')
    A('v_cvt_pk_bf16_f32 v32, 0, v32\nv_cvt_pk_bf16_f32 v33, 0, v33')
    A('v_pk_add_f32 v[32:33], v[32:33], v[60:61]')
    A('v_cvt_pk_bf16_f32 v32, v32, v33')
    if cfg.odiag: stamp(12)
    guarded('global_store_dword v28, v32, %s %s'%(OUT,cfg.of))
    if cfg.odiag: A('s_waitcnt vmcnt(0)')
    drychk()
    if cfg.diag:
        stamp(13)
        if cfg.leak is not None:
            a,b=cfg.leak
            A('s_waitcnt lgkmcnt(0)')
            if cfg.gleak is not None:
                A('v_mov_b32 v8, 0x3bf000\nglobal_load_dword v9, v8, %s sc1\nglobal_load_dword v10, v8, %s offset:256 sc1\ns_waitcnt vmcnt(0)'%(WS,WS))
                if b==14: A('v_not_b32 v9, v10\nv_mov_b32 v10, s%d'%(72+2*13))
                elif b==13: A('v_mov_b32 v10, s%d'%(72+2*13))
                else: A('v_not_b32 v10, v10')
                A('v_sub_u32 v9, v10, v9\ns_nop 1\nv_readfirstlane_b32 s54, v9')
                if b==0: A('s_mov_b32 s54, 0')
            elif a>=100:
                A('v_mov_b32 v8, %d\nds_read_b32 v9, v8 offset:%d\nds_read_b32 v10, v8 offset:%d\ns_waitcnt lgkmcnt(0)\nv_sub_u32 v9, v9, v10\ns_nop 1\nv_readfirstlane_b32 s54, v9'%(0,L_ST+4*(b-100),L_ST+4*(a-100)))
            elif b>=100:
                A('v_mov_b32 v8, %d\nds_read_b32 v9, v8 offset:%d\ns_waitcnt lgkmcnt(0)\nv_readfirstlane_b32 s54, v9\ns_sub_u32 s54, s54, s%d'%(4*(b-100),L_ST,72+2*a))
            else: A('s_sub_u32 s54, s%d, s%d'%(72+2*b,72+2*a))
            A('s_mul_i32 s54, s54, %d\ns_min_u32 s54, s54, 60000'%cfg.mult)
            A('L_leak:')
            A('s_memrealtime s[68:69]\ns_waitcnt lgkmcnt(0)\ns_sub_u32 s55, s68, s%d\ns_cmp_lt_u32 s55, s54\ns_cbranch_scc1 L_leak'%(72+2*13))
        else:
            A('s_waitcnt lgkmcnt(0)\ns_mov_b32 s100, s92\ns_mov_b32 s92, 0')
            dump_stamps(15,8)
    A('L_end:')
    A('s_endpgm')
    A('L_last:')
    A('.section .rodata,"a"\n.p2align 6\n.amdhsa_kernel %s'%K)
    A('  .amdhsa_next_free_vgpr 256\n  .amdhsa_next_free_sgpr 102\n  .amdhsa_accum_offset 256\n  .amdhsa_group_segment_fixed_size 0\n  .amdhsa_kernarg_size 96')
    A('  .amdhsa_user_sgpr_count 2\n  .amdhsa_user_sgpr_kernarg_segment_ptr 1\n  .amdhsa_system_sgpr_workgroup_id_x 1')
    A('  .amdhsa_float_denorm_mode_32 3\n  .amdhsa_float_denorm_mode_16_64 3')
    A('.end_amdhsa_kernel')
    return '\n'.join(L)+'\n'

if __name__=='__main__':
    cfg=Cfg()
    out=sys.argv[1]
    for a in sys.argv[2:]:
        k,v=a.split('=',1); setattr(cfg,k,eval(v))
    s=gen(cfg)
    hdr=''.join(l for l in open('cdna_kernels/%s.s.ref'%NAME).readlines()[:13])
    open(out,'w').write(hdr+s)
```

```python
import sys
NAME='sequential_preLN__gqa_block_cached__geglu_ffn__decode'
K=NAME+'_kernel'

class Cfg:
    diag=False
    leak=None
    nocomp=False
    noq=False
    T2=12
    cpf=2
    b3=8
    cf='sc1'; nclr=4; wide=[(31,32,12)]; wo0=True; wo1=False; e1now=True; fb=(11,3,29,3); early=None; qfull=False; qf=''; gmask=True; bA=(2,5,3); NV=4; gmap=2; opf=None; oloc=True; wa=None; d2=0; fq=4; mid=18; loc=None; cps=None; eml=True; ovl=True; E3=0; hdiag=False; lspin=1<<21; T2b=None; bB=(1,2); bF=1
    f1s=1
    nb=1; gd=(16,2,2)
    G1=0; G2=0
    disp=4; LA=1; boost=(1,5,3); lf='sc1'; sf='sc1'
    skipG=False; skipF=False
    par=None
    NP=3
    HS=20736; AS=28672; wrot=False; pre=0; head=0
    upfront=False
    vdiag=None
    odiag=False
    touch=True
    sdiag=False
    mult=1
    Q1=0; Q2=0
    E1=2; E2=0; EW=8; lrot=True; helper=True
    T0=None; n0=40
    qflag=True
    chunk=0
    bare=0
    notail=False
    knat=False
    cdbg=False
    ctouch=None
    rot=4
    cs=9
    nowq=False
    noqst=False
    nH=8; nA=8
    pW=('c',1,0); pR=('m',8,1); pF=('c',1,0); pG=('c',1,0)
    tdiag=False
    tsleep=0
    crot=0
    noclr=False
    wolate=False
    warm=False
    of=''
    gleak=None
    NS=32
    sflag=False
    svcfirst=0
    spin=1<<17
    T=5
    kf='nt'; vf='nt'; wf='nt'; ff=''
    pq=5
    pw0=8
    pw1=22
    noW=False

QP=0x0
FLG=0x80000
CLR=0x200000
WP=0x200000
OP=0x280000
OPS=640
HB=0x340000
AB=0x360000
CTR=0x3A0000
RNK=0x3A8000
PRB=0x3C0000
STAMP=0x10000000
L_MLW=64
L_QL=256
L_XN=1280
XNS=1040
L_XO=9600
XOS=272
L_DP=11776
L_OW=19968
L_ST=28160
L_PR=28416
L_CNT=L_PR+1024
L_WA=30720
LDS_BYTES=L_WA+65536

LOG2E=0x3fb8aa3b
SCALE=0x3db504f3

def gen(cfg):
    L=[]
    def A(s):
        L.extend(s.split('\n'))
    lab=[0]
    def newlab(p):
        lab[0]+=1
        return 'L_%s_%d'%(p,lab[0])
    X,KP,VP,WQ,WO,BX,WG,WU,WD,OUT,DBG,WS=['s[%d:%d]'%(16+2*i,17+2*i) for i in range(12)]
    def stamp(i):
        if cfg.diag: A('s_memrealtime s[%d:%d]'%(72+2*i,73+2*i))
    site=[0]
    def expired(vz,vt,name):
        if cfg.hdiag:
            site[0]+=1; print('site',site[0],name,file=sys.stderr)
            A('s_add_u32 s54, s2, 1000\nv_mov_b32 v%d, 0\nv_mov_b32 v%d, s54\nglobal_store_dword v%d, v%d, %s offset:%d sc1\ns_waitcnt vmcnt(0)'%(vz,vt,vz,vt,DBG,256+4*site[0]))
    def tstamp(i):
        if cfg.tdiag: stamp(i)
    def pack_stamps(n,vt):
        A('s_waitcnt lgkmcnt(0)')
        A('v_mov_b32 v%d, 0'%vt)
        for i in range(n): A('v_writelane_b32 v%d, s%d, %d'%(vt,72+2*i,i))
    def dump_stamps(n,vt):
        if not cfg.diag: return
        A('s_mov_b64 exec, -1')
        pack_stamps(n,vt)
        A('v_lshlrev_b32 v%d, 2, v0'%(vt+1))
        A('ds_read_b32 v%d, v%d offset:%d'%(vt+2,vt+1,L_ST))
        A('s_lshl_b32 s66, s2, 9\ns_add_u32 s66, s66, %d'%(STAMP))
        A('v_add_u32 v%d, s66, v%d'%(vt+1,vt+1))
        A('s_mov_b64 exec, 0xffff')
        A('s_waitcnt lgkmcnt(0)')
        A('global_store_dword v%d, v%d, %s'%(vt+1,vt+2,WS))
        A('s_lshl_b32 s66, s53, 6\nv_add_u32 v%d, s66, v%d'%(vt+1,vt+1))
        A('global_store_dword v%d, v%d, %s offset:64'%(vt+1,vt,WS))

    A('; @launch grid=(256,1,1) block=(512,1,1) lds=%d'%LDS_BYTES)
    A(""";
;            that fill before any use), data are written through with sc1 and polled with sc1 loads; all polls are bounded.
;""")
    A('.amdgcn_target "amdgcn-amd-amdhsa--gfx950"\n.text\n.globl %s\n.p2align 8\n.type %s,@function\n%s:'%(K,K,K))
    A('s_cmp_ge_u32 s2, 256\ns_cbranch_scc1 L_end')
    stamp(0)
    A('v_lshrrev_b32 v1, 6, v0')
    A('v_lshlrev_b32 v3, 2, v0')
    A('v_readfirstlane_b32 s52, v1')
    A('s_cmp_lt_u32 s52, 4\ns_cbranch_scc1 L_noz')
    if cfg.cpf==2:
        A('s_getpc_b64 s[6:7]\nL_pc:\ns_lshr_b32 s8, s2, 3\ns_mul_i32 s8, s8, 1280\nv_lshl_add_u32 v100, v3, 1, s8\nv_min_u32 v100, L_last-L_pc+2048-4, v100')
        A('v_mov_b32 v101, s7\nv_add_co_u32 v100, vcc, s6, v100\nv_mov_b32 v30, 0\ns_nop 0\nv_addc_co_u32 v101, vcc, 0, v101, vcc')
        A('global_load_dword v102, v[100:101], off offset:-2048')
    A('v_mov_b32 v30, 0')
    A('ds_write_b32 v3, v30 offset:%d\nds_write_b32 v3, v30 offset:%d'%(L_PR-1024,L_PR))
    A('s_waitcnt lgkmcnt(0)')
    A('L_noz:')
    A('s_load_dwordx16 s[16:31], s[0:1], 0')
    A('s_load_dwordx8 s[32:39], s[0:1], 64')
    A('s_barrier')
    if cfg.diag:
        for i in range(1,14): A('s_mov_b32 s%d, 0'%(72+2*i))
    A('v_and_b32 v0, 63, v0')
    A('s_and_b32 s48, s2, 7\ns_lshr_b32 s49, s2, 3\ns_lshl_b32 s50, s49, 1\ns_bfe_u32 s54, s2, 0x10001\ns_or_b32 s50, s50, s54')
    A('s_and_b32 s51, s2, 1\ns_bfe_u32 s54, s2, 0x10002\ns_lshl_b32 s54, s54, 1\ns_or_b32 s51, s51, s54')
    A('s_mov_b32 s64, s51')
    if cfg.gmap==1: A('s_lshr_b32 s50, s49, 2\ns_lshl_b32 s50, s50, 3\ns_or_b32 s50, s50, s48\ns_and_b32 s51, s49, 3')
    if cfg.gmap==2: A('s_bfe_u32 s50, s49, 0x30001\ns_lshl_b32 s50, s50, 3\ns_or_b32 s50, s50, s48\ns_lshr_b32 s51, s49, 4\ns_lshl_b32 s51, s51, 1\ns_and_b32 s54, s49, 1\ns_or_b32 s51, s51, s54')
    A('s_mov_b32 s59, 0x%x\ns_mov_b32 s60, 0xffff0000'%(LOG2E))
    A('v_lshlrev_b32 v1, 4, v0')
    A('s_cmp_ge_u32 s52, 4\ns_cbranch_scc1 L_service')

    import math
    TH=math.ceil(cfg.T)
    EML=cfg.eml and cfg.NS==32
    NS=cfg.NS
    RB=64
    A('s_lshl_b32 s54, s50, 21')
    A('s_lshl_b32 s62, s51, 2\ns_add_u32 s62, s62, s52')
    for i in range(4): A('s_add_u32 s%d, s62, %d\ns_and_b32 s%d, s%d, 15\ns_lshl_b32 s%d, s%d, 12'%(8+i,cfg.rot*i,8+i,8+i,8+i,8+i))
    A('v_lshrrev_b32 v2, 4, v0\nv_lshlrev_b32 v2, 6, v2\nv_and_b32 v4, 3, v0\nv_lshl_add_u32 v2, v4, 4, v2')
    A('v_bfe_u32 v5, v0, 2, 2\nv_lshl_add_u32 v2, v5, 8, v2')
    if cfg.knat: A('v_mov_b32 v2, v1')
    A('s_mov_b32 s42, 0x200000\ns_mov_b32 s43, 0x20000\ns_mov_b32 s46, 0x200000\ns_mov_b32 s47, 0x20000')
    A('s_waitcnt lgkmcnt(0)')
    A('s_add_u32 s40, s18, s54\ns_addc_u32 s41, s19, 0\ns_and_b32 s41, s41, 0xffff')
    A('s_add_u32 s44, s20, s54\ns_addc_u32 s45, s21, 0\ns_and_b32 s45, s45, 0xffff')
    st={'n':0}
    def adv():
        if cfg.rot: A('s_add_u32 s68, s62, %d\ns_and_b32 s68, s68, 15\ns_andn2_b32 s62, s62, 15\ns_add_u32 s62, s62, 16\ns_or_b32 s62, s62, s68'%cfg.rot)
        else: A('s_add_u32 s62, s62, 16')
    def load(slot,j,throttle=True,th=None):
        if j==0: A('s_lshl_b32 s65, s62, 12')
        if throttle:
            t_=(th or cfg.T); lo=int(t_); fr=t_-lo
            w=lo+(1 if (int((j+1)*fr+1e-9)>int(j*fr+1e-9)) else 0)
            A('s_waitcnt vmcnt(%d)'%(w-1))
            if cfg.T2b and w>cfg.T2b:
                l=newlab('tb'); A('s_cmp_eq_u32 s14, 1\ns_cbranch_scc1 %s\ns_waitcnt vmcnt(%d)\n%s:'%(l,cfg.T2b-1,l))
        r=RB+slot*32+j*4
        t=j//4
        A('buffer_load_dwordx4 v[%d:%d], %s, %s, s65 offen offset:%d %s'%(r,r+3,'v2' if t==0 else 'v1','s[40:43]' if t==0 else 's[44:47]',(j%4)*1024,cfg.kf if t==0 else cfg.vf))
    def prog(val):
        A('v_mov_b32 v30, %s\nds_write_b32 v3, v30 offset:%d'%(val,L_PR))
    NK=NS//2
    assert NS%2==0 and NK>=10 and NK<=16
    slot_of={u:u-1 for u in range(7)}
    for u in range(7,NS): slot_of[u]=(u-1)%3
    slot_of[NS]=3
    FB=RB+5*32+12
    tr={'issued':0,'w':TH}
    def win(G):
        for a_,b_,w_ in (cfg.wide or []):
            if a_<=G<b_: return w_
        return TH
    def sload():
        n=tr['issued']; G=n//8; j=n%8
        tr['issued']=n+1
        if G==NS:
            tr['w']=win(G); load(slot_of[G],j,th=win(G)); return
        t=G//NK; k=2*(G%NK)+j//4
        if cfg.vdiag is not None and G==cfg.vdiag and j==0: stamp(6)
        if cfg.vdiag is not None and G==cfg.vdiag+1 and j==0: stamp(7)
        if j%4==0: A('s_add_u32 s65, s%d, %d'%(8+k%4,k*65536))
        w=cfg.T0 if (cfg.T0 and n<cfg.n0) else win(G)
        tr['w']=w
        if cfg.wo0:
            if 1<=G<9 and j==0: A('s_cmp_gt_u32 s13, %d\ns_cselect_b64 vcc, -1, 0'%G)
            if 1<=G<max(cfg.bA[1],cfg.bB[1])+cfg.bF:
                assert G<9
                l=newlab('bo'); A('s_waitcnt vmcnt(%d)\ns_cbranch_vccnz %s\ns_waitcnt vmcnt(%d)\n%s:'%(w-1+cfg.bA[2],l,w-1,l))
            elif cfg.fb and G>cfg.fb[0]:
                if j%cfg.fq==0: A('s_waitcnt lgkmcnt(0)\nv_cmp_eq_u32 vcc, 1, v%d\nv_readfirstlane_b32 s14, v%d\nds_read_b32 v%d, v%d offset:%d'%(FB,FB,FB,FB+1,L_CNT+28))
                if cfg.loc and j%cfg.fq==0:
                    g0,per,rk=cfg.loc
                    A('v_readfirstlane_b32 s15, v%d'%(FB+3))
                    if j==0 and G>=g0 and G%per==0: A('s_mov_b64 exec, 1\nds_add_rtn_u32 v%d, v%d, v%d offset:%d\ns_mov_b64 exec, -1'%(FB+3,FB+1,FB+4,L_CNT+64+4*G))
                    A('s_cmp_ge_u32 s15, %d\ns_cselect_b32 s14, 3, s14'%rk)
                l=newlab('bo'); A('s_waitcnt vmcnt(%d)\ns_cbranch_vccnz %s'%(w-1+cfg.fb[3],l))
                if cfg.mid: A('s_waitcnt vmcnt(%d)\ns_cmp_eq_u32 s14, 3\ns_cbranch_scc1 %s'%(w,l))
                A('s_waitcnt vmcnt(%d)'%(w-1))
                if cfg.early and j%cfg.early[1]==0: A('s_cmp_eq_u32 s14, 0\ns_cbranch_scc1 %s\ns_waitcnt vmcnt(%d)'%(l,w-2))
                A('%s:'%l)
                tr['w']=w+cfg.fb[3]
            elif n>=w: A('s_waitcnt vmcnt(%d)'%(w-1))
        elif cfg.b3 and G==cfg.boost[1] and j==0:
            A('s_bfe_u32 s55, s49, 0x30001\ns_cmp_eq_u32 s55, 3\ns_cselect_b64 vcc, vcc, 0')
        if cfg.wo0: pass
        elif cfg.boost and cfg.boost[0]<=G<max(cfg.boost[1],cfg.b3):
            assert G<9 and (G<5 or w+cfg.boost[2]<=8)
            l=newlab('bo'); A('s_waitcnt vmcnt(%d)\ns_cbranch_vccnz %s\ns_waitcnt vmcnt(%d)\n%s:'%(w-1+cfg.boost[2],l,w-1,l))
        elif n>=w: A('s_waitcnt vmcnt(%d)'%(w-1))
        r=RB+slot_of[G]*32+j*4
        A('buffer_load_dwordx4 v[%d:%d], %s, %s, s65 offen offset:%d %s'%(r,r+3,'v2' if t==0 else 'v1','s[40:43]' if t==0 else 's[44:47]',(j%4)*1024,cfg.kf if t==0 else cfg.vf))
        if j==7 and n>=15: prog(G+1)
    def pro_issue(n0,n1):
        assert tr['issued']==n0
        for n in range(n0,n1): sload()
    if cfg.svcfirst: A('s_barrier')
    if cfg.sdiag: stamp(6)
    pro_issue(0,TH)
    if cfg.sdiag: stamp(7)
    if cfg.wo0:
        A('s_mov_b32 s13, %d\ns_lshr_b32 s55, s49, 2\ns_cmp_eq_u32 s55, 3\ns_cselect_b32 s13, %d, s13\ns_bfe_u32 s55, s49, 0x30001\ns_cmp_ge_u32 s49, 16\ns_cselect_b32 s14, %d, 0\ns_add_u32 s13, s13, s14'%(cfg.bA[0],cfg.bA[1],cfg.bF))
        A('s_and_b32 s55, s55, 3\ns_cmp_eq_u32 s55, 1\ns_cselect_b32 s14, %d, 1\ns_xor_b32 s55, s2, s49\ns_and_b32 s55, s55, 1\ns_cselect_b32 s13, s14, s13'%cfg.bB[1])
    elif cfg.boost: A('s_xor_b32 s55, s2, s49\ns_and_b32 s55, s55, 1\ns_cselect_b64 vcc, 0, -1')
    A('s_mov_b32 s68, 0x000f000f\ns_mov_b32 s69, 0x000f000f')
    A('s_mov_b32 s56, 0x05040100\ns_mov_b32 s57, 0x07060302\ns_mov_b32 s58, 0x%x'%SCALE)
    A('s_lshl_b32 s54, s50, %d\ns_add_u32 s54, s54, %d\ns_add_u32 s66, s38, s54\ns_addc_u32 s67, s39, 0'%(cfg.cs,CTR))
    if cfg.cdbg: A('s_lshl_b32 s54, s50, 9\ns_add_u32 s54, s54, 4096\ns_add_u32 s66, s36, s54\ns_addc_u32 s67, s37, 0')
    A('s_lshl_b32 s55, s52, 11')
    A('v_lshlrev_b32 v4, 9, v4\nv_and_b32 v0, 0x30, v0\nv_add3_u32 v0, v4, v0, s55')
    A('v_mov_b32 v14, 0xff800000')
    if cfg.sdiag:
        stamp(9); A('s_waitcnt vmcnt(%d)'%(TH-1)); stamp(10)
    pro_issue(TH,56)
    stamp(1)
    if cfg.qflag:
        A('v_mov_b32 v31, 0\ns_mov_b32 s61, %d\nL_qw:\nds_read_b32 v15, v31 offset:%d\ns_waitcnt lgkmcnt(0)\nv_readfirstlane_b32 s54, v15\ns_cmp_lg_u32 s54, 0\ns_cbranch_scc1 L_qwd'%(cfg.lspin*4,L_CNT+16))
        A('s_sub_u32 s61, s61, 1\ns_cmp_lg_u32 s61, 0\ns_cbranch_scc1 L_qw')
        expired(31,15,'q wait')
        A('L_qwd:')
    else: A('s_barrier')
    A('ds_read_b128 v[4:7], v1 offset:%d'%L_QL)
    stamp(2)
    A('s_waitcnt lgkmcnt(0)')
    def kpart(slot,fill):
        B=RB+slot*32
        f=list(fill)
        def nxt():
            if f: f.pop(0)()
        D=[20,B,B+4,B+8]
        if cfg.nocomp:
            while f: nxt()
            return
        for i in range(4):
            A('v_mfma_f32_16x16x32_bf16 v[%d:%d], v[%d:%d], v[4:7], 0'%(D[i],D[i]+3,B+4*i,B+4*i+3))
        A('s_nop 7')
        for h in range(2):
            for step in range(3):
                for e in range(2):
                    be=2*e+h
                    S=18+e
                    A('v_add_f32_dpp v%d, v%d, v%d row_ror:%d row_mask:0xf bank_mask:0x%x'%(S,D[be]+((be+step+1)&3),(D[be]+be) if step==0 else S,12-4*step,1<<be))
                A('s_nop 0')
        nxt()
        A('s_nop 0')
        A('v_mov_b32_dpp v18, v19 quad_perm:[0,1,2,3] row_mask:0xf bank_mask:0xc')
        A('v_cvt_pk_bf16_f32 v18, 0, v18\nv_mul_f32 v18, s58, v18\nv_cvt_pk_bf16_f32 v18, 0, v18')
        A('v_max_f32 v15, v14, v18')
        A('s_nop 1\nv_max_f32_dpp v15, v15, v15 row_ror:4 row_mask:0xf bank_mask:0xf')
        A('s_nop 1\nv_max_f32_dpp v15, v15, v15 row_ror:8 row_mask:0xf bank_mask:0xf')
        A('v_mov_b32 v31, v15\ns_nop 1\nv_permlane16_swap_b32 v15, v31\nv_max_f32 v15, v15, v31')
        A('v_mov_b32 v31, v15\ns_nop 1\nv_permlane32_swap_b32 v15, v31\nv_max_f32 v15, v15, v31')
        nxt()
        A('v_sub_f32 v16, v14, v15\nv_sub_f32 v18, v18, v15\nv_cmp_neq_f32 vcc, v14, v15\nv_mul_f32 v16, s59, v16\nv_mul_f32 v18, s59, v18')
        A('v_exp_f32 v16, v16\nv_exp_f32 v18, v18\nv_mov_b32 v14, v15\nv_mul_f32 v17, s59, v15')
        A('v_mov_b32_dpp v19, v18 row_ror:12 row_mask:0xf bank_mask:0xf')
        A('v_cvt_pk_bf16_f32 v8, v18, v19')
        l=newlab('nr')
        A('s_cbranch_vccz %s'%l)
        for r in range(32,64,2):
            A('v_pk_mul_f32 v[%d:%d], v[%d:%d], v[16:17] op_sel_hi:[1,0]'%(r,r+1,r,r+1))
        A('v_mul_f32 v24, v24, v16')
        A('%s:'%l)
        A('s_nop 0')
        A('v_mov_b32_dpp v9, v8 row_ror:8 row_mask:0xf bank_mask:0xf')
        while f: nxt()
    def vpart(slot):
        B=RB+slot*32+16
        if cfg.nocomp: return
        def perms(j):
            Tt=10+2*(j&1)
            for ii in range(2):
                A('v_perm_b32 v%d, v%d, v%d, s%d'%(Tt+ii,B+4*(2*ii+1)+(j>>1),B+4*(2*ii)+(j>>1),56+(j&1)))
        perms(0)
        for j in range(8):
            if j<7: perms(j+1)
            else: A('v_mfma_f32_16x16x16_bf16 v[24:27], v[28:29], v[8:9], v[24:27]')
            Tt=10+2*(j&1)
            A('v_mfma_f32_16x16x16_bf16 v[%d:%d], v[%d:%d], v[8:9], v[%d:%d]'%(32+4*j,35+4*j,Tt,Tt+1,32+4*j,35+4*j))
    SC=[8,9,10,11,12,13,20,21,22,23,25,26,27,28,29,RB+5*32+14][:NK]
    RV=RB+5*32; TV=RV+4
    def need(n):
        rem=tr['issued']-n
        assert rem>=0
        if rem<tr['w']: A('s_waitcnt vmcnt(%d)'%rem)
    def spread(chunks,nl):
        m=len(chunks)
        for i,c in enumerate(chunks):
            if not cfg.nocomp: A(c)
            for _ in range((nl*(i+1))//m-(nl*i)//m): sload()
    def kgroup(G):
        B=RB+slot_of[G]*32
        Dr=[32+4*i for i in range(8)] if G else [20]+[32+4*i for i in range(7)]
        ch=['\n'.join('v_mfma_f32_16x16x32_bf16 v[%d:%d], v[%d:%d], v[4:7], 0'%(Dr[i],Dr[i]+3,B+4*i,B+4*i+3) for i in range(8))+'\ns_nop 1']
        for be in range(4):
            c=[]
            for step in range(3):
                for e in range(2):
                    D=Dr[2*be+e]; S=18+e
                    c.append('v_add_f32_dpp v%d, v%d, v%d row_ror:%d row_mask:0xf bank_mask:0x%x'%(S,D+((be+step+1)&3),(D+be) if step==0 else S,12-4*step,1<<be))
                c.append('s_nop 0')
            ch.append('\n'.join(c))
        ch[-1]+='\nv_cvt_pk_bf16_f32 v15, 0, v18\nv_cvt_pk_bf16_f32 v16, 0, v19\nv_mul_f32 v15, s58, v15\nv_mul_f32 v16, s58, v16'
        ch[-1]+='\nv_cvt_pk_bf16_f32 v%d, v15, v16\nv_cvt_pk_bf16_f32 v15, 0, v15\nv_cvt_pk_bf16_f32 v16, 0, v16\nv_max3_f32 v14, v14, v15, v16'%SC[G]
        return ch
    def wred(op,r):
        return ('s_nop 1\n%s_dpp v%d, v%d, v%d row_ror:4 row_mask:0xf bank_mask:0xf\ns_nop 1\n%s_dpp v%d, v%d, v%d row_ror:8 row_mask:0xf bank_mask:0xf\n'%(op,r,r,r,op,r,r,r)+
                'v_mov_b32 v31, v%d\ns_nop 1\nv_permlane16_swap_b32 v%d, v31\n%s v%d, v%d, v31\n'%(r,r,op,r,r)+
                'v_mov_b32 v31, v%d\ns_nop 1\nv_permlane32_swap_b32 v%d, v31\n%s v%d, v%d, v31'%(r,r,op,r,r))
    def softmax():
        ch=[wred('v_max_f32',14)+'\nv_mul_f32 v17, s59, v14\nv_mov_b32 v24, 0']
        for g in range(NK):
            ch.append('v_lshlrev_b32 v18, 16, v%d\nv_and_b32 v19, s60, v%d\nv_sub_f32 v18, v18, v14\nv_sub_f32 v19, v19, v14\nv_mul_f32 v18, s59, v18\nv_mul_f32 v19, s59, v19\n'%(SC[g],SC[g])+
                      'v_exp_f32 v18, v18\nv_exp_f32 v19, v19\ns_nop 0\nv_cvt_pk_bf16_f32 v%d, v18, v19\nv_add_f32 v24, v24, v18\nv_add_f32 v24, v24, v19'%SC[g])
        ch.append(wred('v_add_f32',24))
        if EML:
            ch.append('s_lshl_b32 s55, s52, 2\nv_and_b32 v31, 0x30, v1\nv_lshl_add_u32 v31, v31, 1, s55\nv_mov_b32 v18, 0\nv_mov_b32 v19, 1\ns_mov_b64 exec, 0xf\n'+
                      'ds_write2_b32 v31, v17, v24 offset0:%d offset1:%d\ns_mov_b64 exec, 1\ns_waitcnt lgkmcnt(0)\nds_add_u32 v18, v19 offset:%d\ns_mov_b64 exec, -1'%(L_MLW//4,L_MLW//4+4,L_CNT+36))
        return ch
    def vgroup(G):
        B=RB+slot_of[G]*32; P=SC[G-NK]
        def perms(j):
            Tt=TV+4*(j&1)
            return '\n'.join('v_perm_b32 v%d, v%d, v%d, s%d'%(Tt+ii,B+4*(2*ii+1)+(j>>1),B+4*(2*ii)+(j>>1),56+(j&1)) for ii in range(4))
        c0='v_mov_b32 v%d, v%d\n'%(RV,P)+'\n'.join('v_mov_b32_dpp v%d, v%d row_ror:%d row_mask:0xf bank_mask:0xf'%(RV+r,P,16-4*r) for r in range(1,4))+'\n'+perms(0)
        ch=[c0]
        for j in range(8):
            Tt=TV+4*(j&1); acc='v[%d:%d]'%(32+4*j,35+4*j)
            ch.append((perms(j+1) if j<7 else 's_nop 1')+'\nv_mfma_f32_16x16x32_bf16 %s, v[%d:%d], v[%d:%d], %s'%(acc,Tt,Tt+3,RV,RV+3,'0' if G==NK else acc))
            if EML and G==NS-1 and j>=2:
                ch[-1]+='\ns_mov_b64 exec, s[68:69]\nds_write_b128 v0, v[%d:%d] offset:%d\ns_mov_b64 exec, -1'%(32+4*(j-2),35+4*(j-2),L_OW+64*(j-2))
        return ch
    def request():
        if not cfg.chunk:
            A('s_mov_b32 s63, 1\ns_atomic_add s63, s[66:67], 0x0 glc'); return
        la=newlab('ra'); lb=newlab('rb')
        A('s_cmp_eq_u32 s69, 0\ns_cbranch_scc1 %s'%la)
        A('s_mov_b32 s69, 0\ns_sub_u32 s63, s62, %d\ns_branch %s'%(NS*16,lb))
        A('%s:'%la)
        A('s_cmp_lt_u32 s62, %d\ns_cselect_b32 s69, 1, 0\ns_add_u32 s63, s69, 1\ns_atomic_add s63, s[66:67], 0x0 glc'%(512-cfg.chunk))
        A('%s:'%lb)
    for G in range(8):
        need(8*G+8)
        spread(kgroup(G),[0,4,4,3,4,3,3,3][G])
    assert tr['issued']==80
    A('v_mov_b32 v%d, 0\nv_mov_b32 v%d, 0\nv_mov_b32 v%d, 0\nv_mov_b32 v%d, 1'%(FB,FB+1,FB+3,FB+4))
    stamp(3)
    def get():
        lb=int(math.log2(cfg.disp)); l=newlab('gt'); d=newlab('gd')
        A('s_cmp_ge_u32 s62, 512\ns_cbranch_scc1 %s'%d)
        A('v_mov_b32 v31, 0\nv_mov_b32 v30, 1\ns_mov_b64 exec, 1\nds_add_rtn_u32 v30, v31, v30 offset:%d\ns_waitcnt lgkmcnt(0)'%(L_CNT+24))
        A('v_lshlrev_b32 v31, 2, v30')
        e=newlab('ge')
        A('s_mov_b32 s61, %d\n%s:\nds_read_b32 v30, v31 offset:%d\ns_waitcnt lgkmcnt(0)\nv_readfirstlane_b32 s63, v30\ns_cmp_lg_u32 s63, 0\ns_cbranch_scc1 %s'%(cfg.lspin*4,l,L_CNT+64,e))
        A('s_sub_u32 s61, s61, 1\ns_cmp_lg_u32 s61, 0\ns_cbranch_scc1 %s'%l)
        expired(31,30,'get')
        A('s_mov_b32 s63, 512\n%s:\ns_mov_b64 exec, -1'%e)
        A('%s:'%d)
    for G in range(8,NS):
        if G==NS-2:
            stamp(4)
            if NS<32: A('s_mov_b32 s62, 0'); get(); A('s_mov_b32 s62, s63')
        need(8*G+8)
        ch=kgroup(G) if G<NK else vgroup(G)
        if G==NK: ch=softmax()+ch
        if G<NS-2: spread(ch,8)
        elif NS==32: spread(ch,0)
        elif G==NS-2: spread(ch,TH)
        else: spread(ch[:-1],8-TH); spread(ch[-1:],0)
    if NS==32: A('s_nop 0\ns_branch L_sdone')
    cut0=len(L)
    A('s_cmp_ge_u32 s62, 512\ns_cbranch_scc1 L_sdone')
    A('v_mov_b32 v28, 0x3f803f80\nv_mov_b32 v29, 0x3f803f80\nv_mov_b32 v25, 0\nv_mov_b32 v26, 0\nv_mov_b32 v27, 0')
    if cfg.disp: get(); A('s_mov_b32 s62, s63')
    else: A('s_waitcnt lgkmcnt(0)\ns_add_u32 s62, s63, %d'%(NS*16+1))
    if cfg.T2b: A('ds_read_b32 v%d, v%d offset:%d\ns_waitcnt lgkmcnt(0)\nv_readfirstlane_b32 s14, v%d'%(FB,FB+1,L_CNT+28,FB))
    A('s_mov_b32 s64, %d'%(NS+1))
    def body(c,th):
        if cfg.upfront:
            for j in range(8): load(1-c,j,th=th,throttle=(8+j>=th))
            if th>12: A('s_waitcnt vmcnt(12)')
            kpart(c,[])
            A('s_waitcnt vmcnt(8)')
            vpart(c)
            return
        for j in range(4): load(7-c,j,th=th)
        if th>8: A('s_waitcnt vmcnt(8)')
        kpart(c,[(lambda j=j: load(7-c,j,th=th)) for j in range(4,8)])
        if cfg.disp: get()
        if th>8: A('s_waitcnt vmcnt(8)')
        vpart(c)
    A('L_dyn:')
    for c in (3,4):
        ls=newlab('st'); lc=newlab('sc')
        if cfg.diag: A('s_add_u32 s64, s64, 1')
        if not cfg.disp:
            A('s_cmp_ge_u32 s62, 512\ns_cbranch_scc1 %s'%ls)
            request()
            A('%s:'%ls)
        body(c,cfg.T2 or cfg.T)
        A('s_cmp_ge_u32 s62, 512\ns_cbranch_scc1 L_sdone')
        if cfg.disp: A('s_mov_b32 s62, s63')
        else:
            A('s_waitcnt lgkmcnt(0)')
            A('s_add_u32 s62, s63, %d'%(NS*16+1))
    A('s_branch L_dyn')
    if NS==32: del L[cut0-2:]
    A('L_sdone:')
    A('s_mov_b32 exec_lo, 0x000f000f\ns_mov_b32 exec_hi, 0x000f000f')
    stamp(5)
    if EML:
        A('ds_write_b128 v0, v[56:59] offset:%d\ns_nop 1\nds_write_b128 v0, v[60:63] offset:%d'%(L_OW+64*6,L_OW+64*7))
    else:
        A('s_lshl_b32 s55, s52, 2\nv_and_b32 v31, 0x30, v1\nv_lshl_add_u32 v31, v31, 1, s55')
        for j in range(8):
            A('ds_write_b128 v0, v[%d:%d] offset:%d'%(32+4*j,35+4*j,L_OW+64*j))
        A('ds_write2_b32 v31, v17, v24 offset0:%d offset1:%d'%(L_MLW//4,L_MLW//4+4))
    if cfg.diag:
        A('s_mov_b64 exec, -1')
        A('s_cmp_lg_u32 s52, 0\ns_cbranch_scc1 L_nost')
        pack_stamps(11 if cfg.sdiag else 8,8)
        A('v_writelane_b32 v8, s64, 8')
        A('ds_write_b32 v3, v8 offset:%d'%L_ST)
        A('L_nost:')
    A('s_waitcnt lgkmcnt(0)')
    A('s_barrier')
    A('s_endpgm')

    A('L_service:')
    if cfg.bare:
        A('s_sub_u32 s53, s52, 4\nv_mov_b32 v11, 0\nv_mov_b32 v12, 1\nv_mov_b32 v40, -1\nv_mov_b32 v41, -1\nv_mov_b32 v42, -1\nv_mov_b32 v43, -1\ns_waitcnt lgkmcnt(0)')
        if cfg.bare&2:
            A('s_lshl_b32 s54, s2, 2\ns_add_u32 s54, s54, s53\ns_mul_i32 s54, s54, 640\ns_add_u32 s54, s54, %d\nv_add_u32 v6, s54, v1\ns_mov_b32 exec_hi, 0xff\nglobal_store_dwordx4 v6, v[40:43], %s sc1\ns_mov_b64 exec, -1'%(CLR+0x100000,WS))
        if cfg.bare&4:
            A('global_load_dwordx4 v[32:35], v1, %s'%X)
        if cfg.bare&8:
            A('v_mov_b32 v6, s2\ns_mov_b64 exec, 1\nglobal_store_byte v6, v12, %s sc1\ns_mov_b64 exec, -1'%DBG)
        A('ds_write_b32 v11, v12 offset:%d\ns_waitcnt lgkmcnt(0)\ns_barrier\ns_barrier'%(L_CNT+8))
        if cfg.bare&16:
            A('v_lshlrev_b32 v7, 2, v0\nglobal_load_dword v13, v7, %s sc1'%DBG)
        A('s_barrier\ns_endpgm')
    A('s_setprio 3')
    A('s_sub_u32 s53, s52, 4')
    A('s_lshl_b32 s66, s53, 12')
    A('s_mov_b32 s3, %d'%FLG)
    A('s_lshr_b32 s68, s49, 3\ns_and_b32 s69, s49, 7')
    A('v_lshrrev_b32 v2, 5, v0\ns_lshl_b32 s54, s53, 1\nv_add_u32 v2, s54, v2')
    A('v_and_b32 v3, 31, v0\nv_lshlrev_b32 v3, 4, v3')
    A('v_lshl_add_u32 v4, v2, 10, v3')
    A('s_xor_b32 s13, s2, s49\ns_and_b32 s13, s13, 1\ns_lshr_b32 s14, s49, 4\ns_bfe_u32 s15, s49, 0x30001')
    A('s_lshl_b32 s54, s53, 7\nv_lshrrev_b32 v14, 2, v0\nv_add_u32 v6, s54, v14\nv_lshlrev_b32 v6, 13, v6\nv_and_b32 v13, 0x30, v1')
    A('s_lshr_b32 s55, s49, 1\ns_lshl_b32 s55, s55, 6\ns_lshl_b32 s54, s48, 10\ns_add_u32 s54, s54, s55\nv_add3_u32 v6, v6, v13, s54')
    A('s_lshl_b32 s54, s48, 13\ns_add_u32 s54, s54, s55\nv_lshlrev_b32 v14, 10, v14\nv_add3_u32 v14, v14, v13, s54')
    A('v_and_b32 v7, 7, v0\nv_and_b32 v15, 0x30, v0\nv_lshlrev_b32 v77, 2, v7')
    A('s_and_b32 s14, s15, 1\ns_lshl_b32 s14, s14, 2')
    A('v_mov_b32 v40, -1\nv_mov_b32 v41, -1\nv_mov_b32 v42, -1\nv_mov_b32 v43, -1')
    A('s_lshl_b32 s71, s53, 13\ns_add_u32 m0, s71, %d'%L_WA)
    A('v_lshrrev_b32 v44, 1, v0\nv_lshlrev_b32 v44, 9, v44\nv_and_b32 v45, 16, v1\nv_add3_u32 v79, v44, v45, %s'%'s3')
    A('v_mov_b32 v44, 0\nv_mov_b32 v45, 0\nv_mov_b32 v46, 0\nv_mov_b32 v47, 0\nv_mov_b32 v11, 0\nv_mov_b32 v12, 1')
    A('s_lshl_b32 s12, s2, 2\ns_add_u32 s12, s12, s53')
    A('s_waitcnt lgkmcnt(0)')
    A('s_cmp_lg_u32 s13, 0\ns_cbranch_scc1 L_clr')
    A('global_load_dwordx4 v[32:35], v4, %s'%X)
    A('global_load_dwordx4 v[36:39], v4, %s offset:512'%X)
    for i in range(8):
        A('s_xor_b32 s54, s14, %d\ns_lshl_b32 s55, s54, 17\nv_add_u32 v13, s55, v6\ns_lshl_b32 s54, s54, 10\ns_add_u32 s54, s54, s71\ns_add_u32 m0, s54, %d\ns_nop 0'%(i,L_WA))
        A('global_load_lds_dwordx4 v13, %s %s'%(WQ,cfg.qf))
    A('s_branch L_clrd')
    A('L_clr:')
    if cfg.cpf==1:
        A('s_getpc_b64 s[6:7]\nL_pc:\ns_sub_u32 s6, s6, L_pc-%s\ns_subb_u32 s7, s7, 0'%K)
        A('s_lshr_b32 s54, s49, 1\ns_lshl_b32 s54, s54, 2\ns_add_u32 s54, s54, s53\ns_lshl_b32 s54, s54, 9\nv_lshl_add_u32 v48, v0, 3, s54\nv_min_u32 v48, L_last-%s-8, v48'%K)
        A('v_mov_b32 v55, s7\nv_add_co_u32 v54, vcc, s6, v48\ns_nop 1\nv_addc_co_u32 v55, vcc, 0, v55, vcc')
        A('global_load_dwordx2 v[50:51], v[54:55], off')
    A('s_cmp_lg_u32 s53, 3\ns_cbranch_scc1 L_nolead\ns_cmp_ge_u32 s49, 2\ns_cbranch_scc1 L_nolead')
    A('s_lshl_b32 s54, s48, 13\ns_add_u32 s54, s54, 4096\nv_add_u32 v48, s54, v1\ns_lshl_b32 s54, s48, 11\nv_add_u32 v49, s54, v79\ns_lshl_b32 s54, s48, 2\nv_mov_b32 v52, s54')
    for i in range(8): A('global_store_dwordx4 v48, v[40:43], %s offset:%d sc1'%(WS,1024*i-4096))
    A('s_mov_b64 exec, 0xff\nglobal_store_dwordx4 v49, v[44:47], %s sc1\nglobal_store_dwordx4 v49, v[44:47], %s offset:256 sc1'%(WS,WS))
    A('s_waitcnt vmcnt(0)')
    A('s_mov_b64 exec, 1\nglobal_store_dword v52, v12, %s sc1\ns_mov_b64 exec, -1'%DBG)
    A('L_nolead:')
    A('s_lshr_b32 s54, s2, 1\ns_lshl_b32 s54, s54, 2\ns_add_u32 s54, s54, s53\ns_mul_i32 s54, s54, 3584\ns_add_u32 s54, s54, %d'%CLR)
    A('v_add_u32 v6, s54, v1')
    if cfg.nclr<4: A('s_cmp_lt_u32 s2, %d\ns_cbranch_scc1 L_skc'%(232 if cfg.nclr==0 else 256))
    for i in range(3): A('global_store_dwordx4 v6, v[40:43], %s offset:%d %s'%(WS,1024*i,cfg.cf))
    A('s_mov_b32 exec_hi, 0')
    A('global_store_dwordx4 v6, v[40:43], %s offset:3072 %s'%(WS,cfg.cf))
    if cfg.nclr<4: A('L_skc:')
    def wo_dma():
        A('s_lshl_b32 s54, s48, 2\ns_add_u32 s54, s54, s68\ns_lshl_b32 s54, s54, 7\ns_lshl_b32 s55, s53, 1\ns_add_u32 s54, s54, s55\ns_lshl_b32 s54, s54, 10\ns_and_b32 s55, s15, 3\ns_lshl_b32 s55, s55, 8\ns_add_u32 s54, s54, s55')
        A('v_lshrrev_b32 v48, 4, v0\nv_lshlrev_b32 v48, 13, v48\nv_and_b32 v49, 15, v0\nv_lshl_add_u32 v48, v49, 4, v48\nv_add_u32 v48, s54, v48')
        for i in range(8):
            A('v_add_u32 v49, %d, v48\ns_add_u32 m0, s71, %d\ns_nop 0\nglobal_load_lds_dwordx4 v49, %s %s'%((32*(i&3)+(i>>2))*1024,L_WA+i*1024,WO,cfg.wf))
    if cfg.wo0 and not cfg.wo1:
        A('s_mov_b64 exec, -1')
        if not cfg.noW: wo_dma()
    A('L_clrd:')
    A('s_mov_b64 exec, -1')
    A('s_and_b32 s54, s49, 3\ns_lshl_b32 s9, s54, 16\ns_lshr_b32 s54, s49, 2\ns_lshl_b32 s54, s54, 10\ns_add_u32 s9, s9, s54\ns_lshl_b32 s54, s48, 7\ns_add_u32 s9, s9, s54\ns_add_u32 s9, s9, %d'%PRB)
    A('s_lshl_b32 s54, s53, 14\ns_add_u32 s54, s54, s9\nv_bfe_u32 v6, v0, 3, 1\nv_lshlrev_b32 v6, 13, v6\nv_and_b32 v13, 0x70, v1\nv_add3_u32 v6, v6, v13, s54')
    A('s_mov_b64 exec, 0xffff')
    A('s_cmp_ge_u32 s49, %d\ns_cbranch_scc1 L_nopl\ns_cmp_ge_u32 s53, %d\ns_cbranch_scc1 L_nopl'%(cfg.NV,cfg.NP))
    A('global_store_dwordx4 v6, v[40:43], %s sc1'%WS)
    A('L_nopl:')
    A('s_mov_b64 exec, -1')
    if cfg.svcfirst==2: A('s_barrier')
    A('v_mul_u32_u24 v5, %d, v2\nv_add_u32 v5, v5, v3'%XNS)
    A('v_lshrrev_b32 v8, 4, v0\nv_lshlrev_b32 v8, 9, v8\nv_bfe_u32 v9, v0, 2, 2\nv_lshl_add_u32 v8, v9, 6, v8\nv_and_b32 v9, 3, v0\nv_lshl_add_u32 v8, v9, 3, v8')
    A('v_add_u32 v8, s71, v8')
    A('v_mul_u32_u24 v9, %d, v7\nv_add_u32 v9, v9, v15\ns_lshl_b32 s54, s53, 8\nv_add_u32 v10, s54, v9'%XNS)
    A('s_lshl_b32 s54, s53, 8\nv_mov_b32 v31, s54')

    def dppadd(r,ctl):
        A('s_nop 1\nv_add_f32_dpp v%d, v%d, v%d %s row_mask:0xf bank_mask:0xf'%(r,r,r,ctl))
    def swapadd(r,t,w):
        A('v_mov_b32 v%d, v%d\ns_nop 1\nv_permlane%d_swap_b32 v%d, v%d\nv_add_f32 v%d, v%d, v%d'%(t,r,w,r,t,r,r,t))
    def rbf(r):
        A('v_cvt_pk_bf16_f32 v%d, 0, v%d'%(r,r))
    def layernorm(mode):
        if mode=='x':
            for i in range(8):
                A('v_lshlrev_b32 v%d, 16, v%d\nv_and_b32 v%d, s60, v%d'%(48+2*i,32+i,49+2*i,32+i))
        Q=lambda i:'v[%d:%d]'%(48+2*i,49+2*i)
        P=Q if mode=='x' else (lambda i:'v[%d:%d]'%(216+2*i,217+2*i))
        A('v_pk_add_f32 v[64:65], %s, %s\nv_pk_mul_f32 v[66:67], %s, %s'%(P(0),P(1),P(0),P(0)))
        A('v_pk_add_f32 v[68:69], %s, %s\nv_pk_mul_f32 v[70:71], %s, %s'%(P(2),P(3),P(1),P(1)))
        for i in range(2,8,2):
            if i>2: A('v_pk_add_f32 v[64:65], v[64:65], %s'%P(i))
            A('v_pk_fma_f32 v[66:67], %s, %s, v[66:67]'%(P(i),P(i)))
            if i>2: A('v_pk_add_f32 v[68:69], v[68:69], %s'%P(i+1))
            A('v_pk_fma_f32 v[70:71], %s, %s, v[70:71]'%(P(i+1),P(i+1)))
        A('v_pk_add_f32 v[64:65], v[64:65], v[68:69]\nv_pk_add_f32 v[66:67], v[66:67], v[70:71]')
        A('v_add_f32 v64, v64, v65\nv_add_f32 v66, v66, v67')
        ctl=['row_ror:1','row_ror:2','row_ror:4','row_ror:8'] if mode=='x' else ['quad_perm:[1,0,3,2]','quad_perm:[2,3,0,1]','row_ror:8']
        for c in ctl:
            A('s_nop 0')
            for r in (64,66): A('v_add_f32_dpp v%d, v%d, v%d %s row_mask:0xf bank_mask:0xf'%(r,r,r,c))
        for w in ((16,) if mode=='x' else (16,32)):
            A('v_mov_b32 v65, v64\nv_mov_b32 v67, v66\ns_nop 0')
            A('v_permlane%d_swap_b32 v64, v65\nv_permlane%d_swap_b32 v66, v67'%(w,w))
            A('v_add_f32 v64, v64, v65\nv_add_f32 v66, v66, v67')
        A('v_mul_f32 v64, 0xbb000000, v64\nv_mul_f32 v66, 0x3b000000, v66')
        A('v_cvt_pk_bf16_f32 v68, 0, v64')
        chain=['v_fma_f32 v66, -v64, v64, v66','v_max_f32 v66, 0, v66','v_cvt_pk_bf16_f32 v66, 0, v66','v_add_f32 v66, 0x3727c5ac, v66',
               'v_cvt_pk_bf16_f32 v66, 0, v66','v_sqrt_f32 v66, v66','v_cvt_pk_bf16_f32 v66, 0, v66','v_rcp_f32 v66, v66']
        for i in range(8):
            A(chain[i])
            A('v_pk_add_f32 %s, %s, v[68:69] op_sel_hi:[1,0]'%(Q(i),P(i)))
        for i in range(16): A('v_cvt_pk_bf16_f32 v%d, 0, v%d'%(48+i,48+i))
        nw=2 if mode=='h' else 4
        for i in range(8):
            A('v_pk_mul_f32 %s, %s, v[66:67] op_sel_hi:[1,0]'%(Q(i),Q(i)))
        for i in range(8):
            A('v_cvt_pk_bf16_f32 v%d, v%d, v%d'%(32+i,48+2*i,49+2*i))
            if mode=='h' and i%2==1: A('ds_write_b64 v5, v[%d:%d] offset:%d'%(31+i,32+i,L_XN+256*(i//2)))
            if mode=='x' and i%4==3: A('ds_write_b128 v5, v[%d:%d] offset:%d'%(29+i,32+i,L_XN+512*(i//4)))
    def lds_sync(cnt,sleep=0):
        l=newlab('ls')
        A('s_waitcnt lgkmcnt(0)')
        A('s_mov_b64 exec, 1\nds_add_u32 v11, v12 offset:%d\ns_mov_b64 exec, -1'%(L_CNT+4*cnt))
        lds_wait(11,L_CNT+4*cnt,4,sleep)
    def lds_wait(va,off,val,sleep):
        l=newlab('lw'); d=newlab('ld')
        A('s_mov_b32 s58, %d'%cfg.lspin)
        A('%s:'%l)
        A('ds_read_b32 v13, v%d offset:%d\ns_waitcnt lgkmcnt(0)\nv_readfirstlane_b32 s54, v13\ns_cmp_ge_u32 s54, %s\ns_cbranch_scc1 %s'%(va,off,val,d))
        if sleep: A('s_sleep %d'%sleep)
        A('s_sub_u32 s58, s58, 1\ns_cmp_lg_u32 s58, 0\ns_cbranch_scc1 %s'%l)
        expired(11,13,'lds_wait %d %s'%(off-L_CNT,val))
        A('%s:'%d)
    def progress(p): lds_wait(31,L_PR,p,6)
    def poll(loads,regs,sleep=0,guard=False):
        l=newlab('pl'); d=newlab('pd')
        if guard: sleep=cfg.tsleep
        A('s_mov_b32 s61, %d'%cfg.spin)
        A('%s:'%l)
        for x in loads: A(x)
        import re as _re
        first=True; pend=[]
        for i,x in enumerate(loads):
            m=_re.search(r'v\[(\d+):(\d+)\]',x)
            pend+=list(range(int(m.group(1)),int(m.group(2))+1))
            last=(i==len(loads)-1)
            if len(pend)<4 and not last: continue
            A('s_waitcnt vmcnt(%d)'%(len(loads)-1-i))
            while pend:
                if first:
                    if len(pend)>=3: A('v_max3_u32 v13, v%d, v%d, v%d'%tuple(pend[:3])); pend=pend[3:]
                    else: A('v_max_u32 v13, v%d, v%d'%tuple(pend[:2])); pend=pend[2:]
                    first=False
                elif len(pend)>=2: A('v_max3_u32 v13, v13, v%d, v%d'%tuple(pend[:2])); pend=pend[2:]
                elif last: A('v_max_u32 v13, v13, v%d'%pend[0]); pend=[]
                else: break
        A('v_cmp_eq_u32 vcc, -1, v13')
        A('s_cbranch_vccz %s'%d)
        if sleep: A('s_sleep %d'%sleep)
        A('s_sub_u32 s61, s61, 1\ns_cmp_lg_u32 s61, 0\ns_cbranch_scc1 %s'%l)
        A('%s:'%d)
    def apoll(loads,par):
        import re as _re
        mode,D,sleep=par
        loads=[x.replace(' sc1',' '+cfg.lf) for x in loads]
        l=newlab('al'); d=newlab('ad'); gl=newlab('ag')
        rg=[]
        for x in loads:
            m=_re.search(r'v\[(\d+):(\d+)\]',x); rg.append(list(range(int(m.group(1)),int(m.group(2))+1)))
        def chain(t,r):
            r=list(r)
            if len(r)==2: A('v_max_u32 v%d, v%d, v%d'%(t,r[0],r[1])); return
            A('v_max3_u32 v%d, v%d, v%d, v%d'%(t,r[0],r[1],r[2])); r=r[3:]
            while r:
                if len(r)==1: A('v_max_u32 v%d, v%d, v%d'%(t,t,r[0])); r=[]
                else: A('v_max3_u32 v%d, v%d, v%d, v%d'%(t,t,r[0],r[1])); r=r[2:]
        n=len(loads)
        A('s_mov_b32 s61, %d'%cfg.spin)
        if mode in 'cm':
            A('%s:'%l)
            for x in loads: A(x)
            if sleep: A('s_sleep %d'%sleep)
            A('s_waitcnt vmcnt(%d)'%min(63,n*(D-1)))
            chain(13,sum(rg,[]))
            A('v_cmp_eq_u32 vcc, -1, v13')
            A('s_cbranch_vccz %s'%d)
            if mode=='m': A('s_mov_b64 exec, vcc')
            A('s_sub_u32 s61, s61, 1\ns_cmp_lg_u32 s61, 0\ns_cbranch_scc1 %s'%l)
            A('%s:'%d)
            if mode=='m': A('s_mov_b64 exec, s[4:5]')
        else:
            mk=['s[6:7]','s[8:9]','s[56:57]','s[40:41]','s[42:43]','s[44:45]','s[46:47]','s[62:63]'][:n]
            for m_ in mk: A('s_mov_b64 %s, s[4:5]'%m_)
            A('%s:'%l)
            for x,m_ in zip(loads,mk):
                sk=newlab('as')
                A('s_mov_b64 exec, %s\ns_cbranch_execz %s'%(m_,sk)); A(x); A('%s:'%sk)
            A('s_mov_b64 exec, s[4:5]')
            if sleep: A('s_sleep %d'%sleep)
            A('s_waitcnt vmcnt(%d)'%min(63,n*(D-1)))
            for i in range(n): chain(246+i,rg[i])
            chain(13,[246+i for i in range(n)])
            A('v_cmp_eq_u32 vcc, -1, v13')
            A('s_cbranch_vccz %s'%d)
            for i in range(n): A('v_cmp_eq_u32 %s, -1, v%d'%(mk[i],246+i))
            A('s_sub_u32 s61, s61, 1\ns_cmp_lg_u32 s61, 0\ns_cbranch_scc1 %s'%l)
            A('%s:'%d)
    def spoll(loads,hooks,pre=None,post=None,once=None):
        import re as _re
        l=newlab('sl'); d=newlab('sd')
        A('s_mov_b32 s61, %d'%cfg.spin)
        if once:
            m_=newlab('sm')
            if pre: A(pre)
            for x in loads: A(x)
            if post: A(post)
            once()
            A('s_branch %s'%m_)
        A('%s:'%l)
        if pre: A(pre)
        for x in loads: A(x)
        if post: A(post)
        if once: A('%s:'%m_)
        first=True; pend=[]
        n=len(loads)
        for i,x in enumerate(loads):
            m=_re.search(r'v\[(\d+):(\d+)\]',x)
            pend+=list(range(int(m.group(1)),int(m.group(2))+1))
            if i<n-1 and i not in hooks: continue
            A('s_waitcnt vmcnt(%d)'%(n-1-i))
            chk=[]
            while pend:
                if first:
                    chk.append('v_max3_u32 v13, v%d, v%d, v%d'%tuple(pend[:3])); pend=pend[3:]; first=False
                elif len(pend)>=2: chk.append('v_max3_u32 v13, v13, v%d, v%d'%tuple(pend[:2])); pend=pend[2:]
                elif i==n-1: chk.append('v_max_u32 v13, v13, v%d'%pend[0]); pend=[]
                else: break
            if i==n-1: chk.append('v_cmp_eq_u32 vcc, -1, v13')
            h=list(hooks.get(i,[]))
            while h or chk:
                if h: A(h.pop(0))
                if chk: A(chk.pop(0))
        A('s_cbranch_vccz %s'%d)
        A('s_sub_u32 s61, s61, 1\ns_cmp_lg_u32 s61, 0\ns_cbranch_scc1 %s'%l)
        A('%s:'%d)
    def gate(n):
        if not n: return
        l=newlab('ga'); d=newlab('gb')
        A('s_mov_b32 s61, %d\n%s:\nglobal_load_dword v13, v14, %s sc1\ns_waitcnt vmcnt(0)\nv_cmp_ne_u32 vcc, -1, v13\ns_nop 1\ns_bcnt1_i32_b64 s6, vcc\ns_cmp_ge_u32 s6, %d\ns_cbranch_scc1 %s'%(cfg.spin,l,WS,n,d))
        A('s_sleep 2\ns_sub_u32 s61, s61, 1\ns_cmp_lg_u32 s61, 0\ns_cbranch_scc1 %s\n%s:'%(l,d))
    def flagpoll(voff,execmask,par=None):
        l=newlab('fl'); d=newlab('fd')
        A('s_mov_b32 s61, %d'%cfg.spin)
        A('s_mov_b64 exec, %s'%execmask)
        A('%s:'%l)
        A('global_load_dwordx4 v[72:75], v%d, %s sc1\ns_waitcnt vmcnt(0)'%(voff,WS))
        if par: A('v_min_u32 v13, v72, v74\nv_min_u32 v76, v73, v75\nv_cndmask_b32 v13, v13, v76, %s\nv_cmp_eq_u32 vcc, 0, v13\ns_cbranch_vccz %s'%(par,d))
        else: A('v_min3_u32 v13, v72, v73, v74\nv_min_u32 v13, v13, v75\nv_cmp_eq_u32 vcc, 0, v13\ns_cbranch_vccz %s'%d)
        A('s_sleep 16')
        A('s_sub_u32 s61, s61, 1\ns_cmp_lg_u32 s61, 0\ns_cbranch_scc1 %s'%l)
        A('%s:'%d)
        A('s_mov_b64 exec, -1')
    def CLASS():
        A('s_cmp_lg_u32 s53, 0\ns_cbranch_scc1 L_nofc')
        progress(cfg.pw0)
        A('s_mov_b32 s6, 0x00ff00ff\ns_mov_b32 s7, s6')
        flagpoll(79,'-1','s[6:7]')
        A('v_cndmask_b32 v13, v72, v73, s[6:7]\nv_cndmask_b32 v76, v74, v75, s[6:7]\nv_cmp_ne_u32 vcc, s65, v13\nv_cmp_ne_u32 s[8:9], s65, v76\ns_nop 1')
        A('s_or_b64 s[8:9], s[8:9], vcc\ns_and_b32 s54, s50, 7\ns_lshl_b32 s54, s54, 3\ns_lshr_b64 s[8:9], s[8:9], s54\ns_and_b32 s8, s8, 0xff\ns_cselect_b32 s12, 0, 32')
        A('ds_write_b128 v1, v[72:75] offset:%d'%L_DP)
        A('v_add_u32 v7, 256, v79\ns_mov_b32 s6, %s\ns_mov_b32 s7, s6\ns_waitcnt lgkmcnt(0)'%('0x03030303' if cfg.NV==8 else '0x01010101'))
        flagpoll(7,'s[6:7]')
        A('s_and_b32 s54, s48, 3\ns_lshl_b32 s54, s54, 7\ns_lshl_b32 s55, s49, 2\ns_add_u32 s54, s54, s55\nv_mov_b32 v7, s54')
        A('s_mov_b32 s6, 0')
        for r in range(72,76):
            A('v_and_b32 v13, 2, v%d\nv_cmp_ne_u32 vcc, 0, v13\ns_nop 1\ns_bcnt1_i32_b64 s7, vcc\ns_add_u32 s6, s6, s7'%r)
        A('s_waitcnt lgkmcnt(0)\nds_read_b32 v13, v7 offset:%d\ns_waitcnt lgkmcnt(0)\nv_readfirstlane_b32 s7, v13'%L_DP)
        if cfg.wo0:
            A('s_and_b32 s54, s48, 3\ns_lshl_b32 s54, s54, 7\ns_andn2_b32 s55, 1, s48\ns_lshl_b32 s55, s55, 2\ns_add_u32 s54, s54, s55\nv_mov_b32 v7, s54')
            A('s_and_b32 s54, s50, 3\ns_lshl_b32 s54, s54, 7\ns_andn2_b32 s55, 1, s50\ns_lshl_b32 s55, s55, 2\ns_add_u32 s54, s54, s55\nv_mov_b32 v72, s54')
            A('ds_read_b32 v13, v7 offset:%d\nds_read_b32 v72, v72 offset:%d\ns_waitcnt lgkmcnt(0)\nv_readfirstlane_b32 s4, v13\nv_readfirstlane_b32 s5, v72'%(L_DP,L_DP))
            A('s_xor_b32 s4, s4, s48\ns_bfe_u32 s4, s4, 0x10002\ns_xor_b32 s5, s5, s50\ns_bfe_u32 s5, s5, 0x10002')
        if cfg.diag: A('s_mov_b32 s9, s6')
        A('s_cmp_ge_u32 s6, %d\ns_cselect_b32 s6, 1, 0'%(4*cfg.NV))
        if cfg.par is not None: A('s_mov_b32 s6, %d'%cfg.par)
        A('s_xor_b32 s7, s7, s48\ns_bfe_u32 s7, s7, 0x10002\ns_xor_b32 s7, s7, s6\ns_lshl_b32 s7, s7, 2\ns_lshl_b32 s6, s6, 1\ns_or_b32 s6, s6, s7\ns_or_b32 s6, s6, 1')
        if cfg.wo0: A('s_lshl_b32 s4, s4, 3\ns_lshl_b32 s5, s5, 4\ns_or_b32 s6, s6, s4\ns_or_b32 s6, s6, s5')
        A('s_or_b32 s6, s6, s12')
        A('v_mov_b32 v13, s6\nds_write_b32 v11, v13 offset:%d'%(L_CNT+8))
        if cfg.diag: A('s_cmp_lg_u32 s2, 0\ns_cbranch_scc1 L_nofc\nv_mov_b32 v13, s9\nv_mov_b32 v7, 32\nglobal_store_dword v7, v13, %s'%DBG)
        A('L_nofc:')
        lds_wait(11,L_CNT+8,1,6)
        A('s_and_b32 s12, s54, 32\ns_bfe_u32 s11, s54, 0x10002\ns_bfe_u32 s62, s54, 0x10003\ns_bfe_u32 s63, s54, 0x10004\ns_bfe_u32 s54, s54, 0x10001\ns_xor_b32 s10, s10, s54\ns_xor_b32 s62, s62, s54\ns_xor_b32 s63, s63, s54')
    def tr128(dst,base):
        for s_ in range(4):
            A('ds_read_b64_tr_b16 v[%d:%d], v8 offset:%d'%(dst+4*s_,dst+4*s_+1,base+4096*s_))
            A('ds_read_b64_tr_b16 v[%d:%d], v8 offset:%d'%(dst+4*s_+2,dst+4*s_+3,base+4096*s_+512))

    A('v_mov_b32 v76, 0')
    A('s_cmp_lg_u32 s13, 0\ns_cbranch_scc1 L_noln')
    A('s_waitcnt vmcnt(8)')
    stamp(1)
    layernorm('x')
    A('L_noln:')
    A('s_waitcnt vmcnt(0)')
    lds_sync(0)
    stamp(2)
    A('s_lshl_b32 s54, s48, 2\ns_add_u32 s54, s54, s68\ns_lshl_b32 s54, s54, 9\ns_lshl_b32 s55, s69, 2\ns_add_u32 s54, s54, s55\ns_add_u32 s54, s54, s3\nv_mov_b32 v6, s54')
    A('s_getreg_b32 s10, hwreg(HW_REG_XCC_ID)\ns_and_b32 s65, s10, 15\ns_bfe_u32 s10, s10, 0x10002')
    A('s_lshl_b32 s65, s65, 4\ns_lshl_b32 s54, s10, 2\ns_or_b32 s65, s65, s54\ns_or_b32 s65, s65, 1')
    def gowait(tag):
        A('s_mov_b64 exec, 0xff\ns_waitcnt vmcnt(0)\nv_cmp_eq_u32 vcc, 0, v76\ns_cbranch_vccz L_god%s'%tag)
        A('s_mov_b32 s61, %d\nL_go%s:\ns_sleep 8\nglobal_load_dword v13, v77, %s sc1\ns_waitcnt vmcnt(0)\nv_cmp_eq_u32 vcc, 0, v13\ns_cbranch_vccz L_god%s'%(cfg.spin,tag,DBG,tag))
        A('s_sub_u32 s61, s61, 1\ns_cmp_lg_u32 s61, 0\ns_cbranch_scc1 L_go%s\nL_god%s:'%(tag,tag))
    A('s_cmp_lg_u32 s53, 3\ns_cbranch_scc1 L_noflag')
    A('s_mov_b64 exec, 0xff\nglobal_load_dword v76, v77, %s sc1\ns_mov_b64 exec, -1'%DBG)
    A('s_cmp_eq_u32 s13, 0\ns_cbranch_scc1 L_noflag')
    gowait('r')
    A('s_mov_b64 exec, 1\nv_mov_b32 v7, s65\nglobal_store_dword v6, v7, %s sc1'%WS)
    A('s_mov_b64 exec, -1')
    A('L_noflag:')
    if cfg.wo1:
        A('s_cmp_eq_u32 s13, 0\ns_cbranch_scc1 L_now1'); wo_dma(); A('L_now1:')
    A('s_cmp_lg_u32 s13, 0\ns_cbranch_scc1 L_noq')
    for t in range(2):
        for s_ in range(4):
            r=80+16*t+4*s_
            A('ds_read_b64_tr_b16 v[%d:%d], v8 offset:%d'%(r,r+1,L_WA+2048*s_+32*t))
            A('ds_read_b64_tr_b16 v[%d:%d], v8 offset:%d'%(r+2,r+3,L_WA+2048*s_+32*t+256))
            if t==0: A('ds_read_b128 v[%d:%d], v10 offset:%d'%(112+4*s_,115+4*s_,L_XN+64*s_))
        A('s_waitcnt lgkmcnt(0)')
    for s_ in range(4):
        for t in range(2):
            acc='v[%d:%d]'%(48+4*t,51+4*t); r=80+16*t+4*s_
            A('v_mfma_f32_16x16x32_bf16 %s, v[%d:%d], v[%d:%d], %s'%(acc,r,r+3,112+4*s_,115+4*s_,'0' if s_==0 else acc))
    A('s_lshl_b32 s54, s53, 11\nv_add_u32 v56, s54, v1\nv_and_b32 v57, 3, v0\nv_lshlrev_b32 v57, 9, v57\nv_bfe_u32 v58, v0, 2, 3\nv_lshl_add_u32 v57, v58, 4, v57\ns_nop 1')
    A('ds_write_b128 v56, v[48:51] offset:%d\nds_write_b128 v56, v[52:55] offset:%d'%(L_DP,L_DP+1024))
    lds_sync(8)
    A('s_cmp_lg_u32 s53, 3\ns_cbranch_scc1 L_noq')
    for p in range(4):
        A('ds_read_b128 v[%d:%d], v57 offset:%d\nds_read_b128 v[%d:%d], v57 offset:%d'%(80+8*p,83+8*p,L_DP+2048*p,84+8*p,87+8*p,L_DP+2048*p+256))
    A('s_waitcnt lgkmcnt(0)')
    for p in range(4):
        A('v_pk_add_f32 v[%d:%d], v[%d:%d], v[%d:%d]'%(80+2*p,81+2*p,80+2*p,81+2*p,88+2*p,89+2*p))
        A('v_pk_add_f32 v[%d:%d], v[%d:%d], v[%d:%d]'%(96+2*p,97+2*p,96+2*p,97+2*p,104+2*p,105+2*p))
    for p in range(4): A('v_pk_add_f32 v[%d:%d], v[%d:%d], v[%d:%d]'%(80+2*p,81+2*p,80+2*p,81+2*p,96+2*p,97+2*p))
    for p in range(4): A('v_cvt_pk_bf16_f32 v%d, v%d, v%d\nv_min_u32 v%d, -2, v%d'%(48+p,80+2*p,81+2*p,48+p,48+p))
    gowait('p')
    A('s_mov_b32 exec_lo, -1')
    A('global_store_dwordx4 v14, v[48:51], %s sc1'%WS)
    A('s_mov_b64 exec, -1')
    A('L_noq:')
    stamp(3)
    A('s_mov_b64 exec, 1\nds_add_u32 v11, v12 offset:%d\ns_mov_b64 exec, -1'%(L_CNT+12))
    A('s_cmp_eq_u32 s53, 0\ns_cbranch_scc1 L_qg\ns_cmp_lg_u32 s53, 1\ns_cbranch_scc1 L_qdone\ns_cmp_ge_u32 s49, %d\ns_cbranch_scc1 L_qdone'%cfg.NV)
    A('s_mov_b32 s6, 0')
    for i in range(cfg.NP):
        for c in ((0,1) if i%2==0 else (1,0)):
            l=newlab('pb'); d=newlab('pe')
            A('s_add_u32 s7, s9, %d\ns_mov_b32 s8, 0\ns_mov_b32 s61, 0\ns_load_dword s8, %s, s7'%(i*16384+c*8192,WS))
            A('%s:\ns_add_u32 s61, s61, 1\ns_cmp_gt_u32 s61, 0xffff\ns_cbranch_scc1 %s\ns_cmp_eq_u32 s8, 0\ns_cbranch_scc1 %s\n%s:\ns_waitcnt lgkmcnt(0)'%(l,d,l,d))
            if i>0: A('%s s6, s6, s61'%('s_add_i32' if c==0 else 's_sub_i32'))
    A('s_cmp_gt_i32 s6, 0\ns_cselect_b32 s6, 1, 0')
    A('s_xor_b32 s6, s6, s10\ns_lshl_b32 s6, s6, 1\ns_or_b32 s6, s6, 1\nv_mov_b32 v7, s6')
    lds_wait(11,L_CNT+12,4,2)
    A('s_mov_b64 exec, 1\nglobal_store_dword v6, v7, %s offset:256 sc1\ns_mov_b64 exec, -1\ns_branch L_qdone'%WS)
    A('L_qg:')
    A('v_and_b32 v6, 3, v0\nv_lshlrev_b32 v6, 8, v6\nv_lshrrev_b32 v14, 2, v0\nv_lshl_add_u32 v6, v14, 4, v6')
    A('s_and_b32 s54, s50, 7\ns_lshl_b32 s54, s54, 13\ns_lshr_b32 s55, s50, 3\ns_lshl_b32 s55, s55, 10\ns_add_u32 s54, s54, s55\nv_add_u32 v6, s54, v6')
    lds_wait(11,L_CNT+12,4,2)
    progress(cfg.pq)
    stamp(4)
    poll(['global_load_dwordx4 v[32:35], v6, %s sc1'%WS],None,sleep=8)
    A('ds_write_b128 v1, v[32:35] offset:%d'%L_QL)
    stamp(5)
    A('s_waitcnt lgkmcnt(0)')
    if cfg.qflag: A('ds_write_b32 v11, v12 offset:%d'%(L_CNT+16))
    A('L_qdone:')
    if cfg.touch:
        A('s_lshl_b32 s54, s50, 21\ns_load_dword s4, %s, s54'%VP)
        A('s_load_dword s6, %s, 0\ns_load_dword s7, %s, 0\ns_load_dword s8, %s, 0'%(WG,WU,WD))
        A('s_lshl_b32 s54, s48, 19\ns_load_dword s9, %s, s54'%WO)
        A('s_waitcnt lgkmcnt(0)')
    A('s_setprio 0')
    if not cfg.qflag: A('s_barrier')

    A('s_mov_b32 s70, 0\ns_and_b32 s54, s49, 0x13\ns_cmp_eq_u32 s54, s64\ns_cselect_b32 s70, 2, s70')
    A('s_cmp_lt_u32 s48, 4\ns_cselect_b32 s6, 16, 12\ns_cselect_b32 s7, 8, 6\ns_cselect_b32 s8, 0, 8\ns_mul_i32 s14, s48, s7\ns_add_u32 s14, s14, s8')
    if cfg.helper: A('s_and_b32 s54, s49, 0x13\ns_xor_b32 s54, s54, 2\ns_cmp_eq_u32 s54, s64\ns_cselect_b32 s9, s49, 99\ns_cmp_lt_u32 s9, s6\ns_cselect_b32 s70, 4, s70')
    A('s_sub_u32 s54, s49, 16\ns_cmp_lt_u32 s54, s6\ns_cselect_b32 s70, 1, s70')
    A('s_xor_b32 s55, s2, s49\ns_and_b32 s55, s55, 1\ns_cselect_b32 s70, 3, s70')
    A('s_bfe_u32 s54, s49, 0x30001\ns_add_u32 s14, s14, s54')
    A('s_lshr_b32 s15, s49, 2\ns_add_u32 s54, s48, %d\ns_and_b32 s54, s54, 7\ns_lshl_b32 s54, s54, 2\ns_add_u32 s15, s15, s54'%cfg.crot)
    if cfg.e1now:
        A('s_cmp_lg_u32 s70, 1\ns_cbranch_scc1 L_ne1')
        lds_wait(11,L_CNT+12,4,2)
        A('s_lshl_b32 s54, s14, 6')
        A('s_lshl_b32 s55, s53, 7\nv_lshrrev_b32 v6, 2, v0\nv_add_u32 v6, s55, v6\nv_mul_u32_u24 v6, 3584, v6\nv_and_b32 v7, 3, v0\nv_lshl_add_u32 v6, v7, 4, v6\nv_add_u32 v6, s54, v6')
        for k in range(cfg.E1):
            i=k//2
            A(('v_add_u32 v7, %d, v6\n'%(i*16*3584))+'s_add_u32 m0, s71, %d\ns_nop 0\nglobal_load_lds_dwordx4 v7, %s %s'%(L_WA+32768*(k&1)+i*1024,WU if k&1 else WG,cfg.ff))
        A('L_ne1:')
    CLASS()
    A('s_lshr_b32 s13, s2, 1\ns_andn2_b32 s13, s13, 2\ns_lshl_b32 s54, s11, 1\ns_or_b32 s13, s13, s54')
    A('s_and_b32 s54, s48, 3\ns_lshl_b32 s54, s54, 2\ns_add_u32 s67, s54, s68\ns_lshl_b32 s54, s11, 4\ns_add_u32 s67, s67, s54')
    if cfg.wo0: A('s_lshl_b32 s54, s48, 2\ns_add_u32 s67, s54, s68')
    A('s_bfe_u32 s69, s49, 0x20001')
    A('v_and_b32 v6, 3, v0\nv_lshlrev_b32 v6, 2, v6\nv_lshrrev_b32 v7, 4, v0\nv_add_u32 v6, v6, v7')
    A('v_bfe_u32 v7, v0, 2, 1')
    A('v_lshrrev_b32 v24, 3, v0\nv_lshlrev_b32 v24, 13, v24\nv_and_b32 v13, 7, v0\nv_lshl_add_u32 v24, v13, 3, v24')
    A('s_and_b32 s54, s13, 31\ns_lshl_b32 s54, s54, 8\ns_lshr_b32 s55, s13, 5\ns_lshl_b32 s55, s55, 6\ns_add_u32 s54, s54, s55\ns_add_u32 s54, s54, %d\nv_add_u32 v24, s54, v24\ns_mov_b32 s55, s13'%HB)
    A('v_lshlrev_b32 v6, 1, v6\nv_lshl_add_u32 v6, v7, 10, v6\ns_lshr_b32 s54, s55, 5\ns_lshl_b32 s54, s54, 11\ns_and_b32 s55, s55, 31\ns_lshl_b32 s55, s55, 5\ns_add_u32 s54, s54, s55\nv_add_u32 v6, s54, v6')
    A('global_load_ushort v16, v6, %s'%X)
    def paced(k,n,line):
        if cfg.nb:
            nb=min(cfg.nb,n); span=16//nb
            bi=lambda k:(k*nb)//n
            if k==0 or bi(k)!=bi(k-1):
                A('s_lshr_b32 s55, s49, 1\ns_and_b32 s55, s55, %d\ns_add_u32 s55, s55, %d'%(span-1,cfg.pw0+1+span*bi(k)))
                progress('s55')
            assert cfg.pw0+16<cfg.NS-1
            A(line); return
        f=lambda k: cfg.pw0+(k*(cfg.pw1-cfg.pw0))//n
        if k==0 or f(k)!=f(k-1): progress(f(k))
        assert f(k)<cfg.NS
        A(line)
    def dma1(k):
        i=k//2
        return ('v_add_u32 v7, %d, v6\n'%(i*16*3584))+'s_add_u32 m0, s71, %d\ns_nop 0\nglobal_load_lds_dwordx4 v7, %s %s'%(L_WA+32768*(k&1)+i*1024,WU if k&1 else WG,cfg.ff)
    def dma2(i):
        return ('v_add_u32 v7, %d, v6\n'%(i*0x8000))+'s_add_u32 m0, s71, %d\ns_nop 0\nglobal_load_lds_dwordx4 v7, %s %s'%(L_WA+i*1024,WD,cfg.ff)
    l1=newlab('w1'); l2=newlab('w2'); le=newlab('we')
    A('s_cmp_eq_u32 s70, 0\ns_cbranch_scc1 %s\ns_cmp_eq_u32 s70, 2\ns_cbranch_scc1 %s\ns_cmp_lg_u32 s70, 3\ns_cbranch_scc1 %s'%(le,l2,l1))
    A('s_lshl_b32 s54, s67, 7\ns_lshl_b32 s55, s53, 1\ns_add_u32 s54, s54, s55\ns_lshl_b32 s54, s54, 10\ns_lshl_b32 s55, s69, 8\ns_add_u32 s54, s54, s55')
    A('v_lshrrev_b32 v6, 4, v0\nv_lshlrev_b32 v6, 13, v6\nv_and_b32 v7, 15, v0\nv_lshl_add_u32 v6, v7, 4, v6\nv_add_u32 v6, s54, v6')
    A('s_lshl_b32 s71, s53, 13')
    def dmaw(i):
        return 'v_add_u32 v7, %d, v6\ns_add_u32 m0, s71, %d\ns_nop 0\nglobal_load_lds_dwordx4 v7, %s %s'%((32*(i&3)+(i>>2))*1024,L_WA+i*1024,WO,cfg.wf)
    for i in range(0 if (cfg.noW or cfg.wo0) else cfg.EW): paced(i,cfg.EW,dmaw(i))
    A('s_branch %s'%le)
    A('%s:'%l1)
    A('s_lshl_b32 s54, s14, 6')
    A('s_lshl_b32 s55, s53, 7\nv_lshrrev_b32 v6, 2, v0\nv_add_u32 v6, s55, v6\nv_mul_u32_u24 v6, 3584, v6\nv_and_b32 v7, 3, v0\nv_lshl_add_u32 v6, v7, 4, v6\nv_add_u32 v6, s54, v6')
    A('s_lshl_b32 s71, s53, 13')
    A('s_cmp_eq_u32 s70, 4\ns_cbranch_scc1 %s'%le)
    for k in range(0 if cfg.e1now else cfg.E1): paced(k,cfg.E1,dma1(k))
    A('s_branch %s'%le)
    A('%s:'%l2)
    A('s_mul_i32 s54, s53, 448\nv_lshrrev_b32 v6, 1, v0\nv_add_u32 v6, s54, v6\nv_lshlrev_b32 v6, 10, v6')
    A('v_and_b32 v7, 1, v0\nv_lshl_add_u32 v6, v7, 4, v6\ns_lshl_b32 s54, s15, 5\nv_add_u32 v6, s54, v6')
    A('s_mul_i32 s71, s53, 14336')
    for k in range(cfg.E2): paced(k,cfg.E2,dma2(k))
    if cfg.E3:
        A('s_lshr_b32 s54, s15, 2\ns_cmp_lg_u32 s54, 3\ns_cbranch_scc1 %s'%le)
        for k in range(cfg.E3): A(dma2(k))
    A('%s:'%le)
    A('s_waitcnt vmcnt(0)')
    A('v_lshlrev_b32 v16, 16, v16')
    lds_sync(1,sleep=4)
    stamp(6)
    l1=newlab('r1'); l2=newlab('r2'); le=newlab('re')
    A('v_mov_b32 v26, 0\nv_mov_b32 v27, 0\nv_mov_b32 v28, 0\nv_mov_b32 v29, 0')
    A('s_cmp_eq_u32 s70, 1\ns_cbranch_scc1 %s\ns_cmp_eq_u32 s70, 2\ns_cbranch_scc1 %s'%(l1,l2))
    A('v_lshrrev_b32 v8, 4, v0\nv_lshlrev_b32 v8, 11, v8\nv_bfe_u32 v7, v0, 2, 2\nv_lshl_add_u32 v8, v7, 8, v8\nv_and_b32 v7, 3, v0\nv_lshl_add_u32 v8, v7, 3, v8')
    A('s_lshl_b32 s54, s53, 6\ns_add_u32 s54, s54, %d\nv_add_u32 v8, s54, v8'%L_WA)
    def trw():
        for t in range(2):
            for s_ in range(4):
                r=80+16*t+4*s_
                A('ds_read_b64_tr_b16 v[%d:%d], v8 offset:%d'%(r,r+1,8192*s_+32*t))
                A('ds_read_b64_tr_b16 v[%d:%d], v8 offset:%d'%(r+2,r+3,8192*s_+32*t+1024))
            if t==0 or cfg.EW==8: A('s_waitcnt lgkmcnt(0)')
    if cfg.EW==8: trw()
    A('s_branch %s'%le)
    A('%s:'%l1)
    A('v_lshrrev_b32 v8, 4, v0\nv_lshlrev_b32 v8, 9, v8\nv_bfe_u32 v7, v0, 2, 2\nv_lshl_add_u32 v8, v7, 6, v8')
    A('v_and_b32 v7, 1, v0\nv_lshl_add_u32 v8, v7, 3, v8\nv_bfe_u32 v7, v0, 1, 1\nv_lshl_add_u32 v8, v7, 15, v8\ns_add_u32 s54, s71, %d\nv_add_u32 v8, s54, v8'%L_WA)
    A('s_mul_i32 s55, s14, 147\ns_lshr_b32 s55, s55, 11\ns_mul_i32 s55, s55, %d'%(16384-7168))
    A('s_lshl_b32 s54, s14, 2\ns_add_u32 s54, s54, s53\ns_lshl_b32 s54, s54, 7\ns_add_u32 s54, s54, s55\ns_add_u32 s54, s54, %d'%AB)
    A('v_and_b32 v27, 0x70, v1\nv_lshrrev_b32 v7, 4, v0\nv_lshl_add_u32 v27, v7, 16, v27\nv_bfe_u32 v7, v0, 3, 1\nv_lshlrev_b32 v7, 13, v7\nv_add3_u32 v27, v27, v7, s54')
    A('s_and_b32 s55, s48, %d\ns_lshl_b32 s55, s55, 14\ns_lshl_b32 s54, s10, 13\ns_add_u32 s54, s54, s55\ns_lshl_b32 s55, s53, 11\ns_add_u32 s54, s54, s55\ns_add_u32 s54, s54, %d'%(cfg.nH//2-1,HB))
    A('v_and_b32 v4, 7, v0\nv_lshlrev_b32 v4, 5, v4\nv_lshrrev_b32 v7, 5, v0\nv_lshl_add_u32 v4, v7, 8, v4\nv_and_b32 v7, 16, v0\nv_add3_u32 v4, v4, v7, s54')
    A('s_mul_i32 s54, s53, 5120\nv_add_u32 v10, s54, v1')
    A('v_and_b32 v5, 0x17, v0\nv_lshlrev_b32 v5, 4, v5\nv_bfe_u32 v7, v0, 3, 1\nv_lshl_add_u32 v5, v7, 3, v5\nv_lshrrev_b32 v7, 5, v0\nv_lshl_add_u32 v5, v7, 2, v5\ns_lshl_b32 s54, s53, 10\nv_add_u32 v5, s54, v5')
    A('v_and_b32 v9, 7, v0\nv_lshlrev_b32 v9, 4, v9\nv_bfe_u32 v7, v0, 2, 1\nv_lshl_add_u32 v9, v7, 8, v9\nv_and_b32 v7, 3, v0\nv_lshl_add_u32 v9, v7, 2, v9')
    for p in range(4): A('v_add_u32 v%d, %d, v5\nv_add_u32 v%d, %d, v9'%(160+p,L_XN+5120*p,164+p,L_XN+5120*p+4096))
    A('s_branch %s'%le)
    A('%s:'%l2)
    A('v_lshrrev_b32 v8, 4, v0\nv_lshlrev_b32 v8, 9, v8\nv_bfe_u32 v7, v0, 1, 1\nv_lshl_add_u32 v8, v7, 8, v8\nv_bfe_u32 v7, v0, 2, 2\nv_lshl_add_u32 v8, v7, 5, v8')
    A('v_and_b32 v7, 1, v0\nv_lshl_add_u32 v8, v7, 3, v8\ns_add_u32 s55, s71, %d\nv_add_u32 v8, s55, v8'%L_WA)
    A('v_bfe_u32 v26, v0, 2, 1\nv_lshlrev_b32 v26, 10, v26\nv_bfe_u32 v7, v0, 1, 1\nv_lshl_add_u32 v26, v7, 8, v26\nv_lshrrev_b32 v7, 3, v0\nv_lshl_add_u32 v26, v7, 4, v26\nv_and_b32 v7, 1, v0\nv_lshl_add_u32 v26, v7, 3, v26')
    A('s_and_b32 s55, s48, %d\ns_lshl_b32 s55, s55, 16\ns_lshl_b32 s54, s53, 14\ns_add_u32 s54, s54, s55\ns_lshl_b32 s55, s10, 13\ns_add_u32 s54, s54, s55\ns_add_u32 s54, s54, %d\nv_add_u32 v27, s54, v1'%(cfg.nA//2-1,AB+3072))
    A('s_mov_b32 s54, s15\ns_lshl_b32 s55, s54, 5')
    A('v_lshrrev_b32 v28, 3, v0\nv_lshlrev_b32 v28, 10, v28\nv_and_b32 v7, 7, v0\nv_lshl_add_u32 v28, v7, 2, v28\nv_add_u32 v28, s55, v28')
    A('s_lshl_b32 s54, s54, 8\ns_and_b32 s55, s48, %d\ns_lshl_b32 s55, s55, 14\ns_add_u32 s54, s54, s55\ns_lshl_b32 s55, s10, 13\ns_add_u32 s54, s54, s55\ns_add_u32 s54, s54, %d'%(cfg.nH//2-1,HB))
    A('v_lshl_add_u32 v29, v0, 2, s54')
    A('s_lshl_b32 s54, s53, 11\nv_add_u32 v10, s54, v1')
    A('%s:'%le)
    A('s_lshl_b32 s54, s53, 9\nv_add_u32 v17, s54, v3')
    A('s_and_b32 s54, s50, 3\ns_lshl_b32 s54, s54, 2\ns_add_u32 s54, s54, s53\ns_mul_i32 s54, s54, 49152\n%s\ns_lshl_b32 s55, s55, 13\ns_add_u32 s54, s54, s55'%('s_mov_b32 s55, s63' if cfg.wo0 else 's_bfe_u32 s55, s50, 0x10002'))
    A('s_lshr_b32 s6, s50, 3\ns_mul_i32 s7, s6, 11\ns_lshr_b32 s7, s7, 5\ns_mul_i32 s7, s7, %d\ns_lshl_b32 s6, s6, 2\ns_add_u32 s6, s6, s51\ns_mul_i32 s6, s6, %d'%(16384-12*OPS,OPS))
    A('s_add_u32 s54, s54, s6\ns_add_u32 s54, s54, s7\ns_add_u32 s54, s54, %d\nv_add_u32 v18, s54, v1'%OP)
    A('s_and_b32 s54, s67, 15\ns_mul_i32 s54, s54, 49152\ns_lshl_b32 s55, %s, 13\ns_add_u32 s54, s54, s55\ns_add_u32 s54, s54, %d'%('s62' if cfg.wo0 else 's11',OP))
    A('v_mul_u32_u24 v7, 11, v2\nv_lshrrev_b32 v7, 5, v7\nv_mul_u32_u24 v7, %d, v7\nv_mul_u32_u24 v25, %d, v2\nv_add3_u32 v25, v25, v7, s54\nv_add_u32 v19, v25, v3'%(16384-12*OPS,4*OPS))
    if cfg.G1 or cfg.G2:
        A('v_bfe_u32 v14, v0, 2, 3\nv_mul_u32_u24 v7, 11, v14\nv_lshrrev_b32 v7, 5, v7\nv_mul_u32_u24 v7, %d, v7\nv_and_b32 v14, 31, v0\nv_mul_u32_u24 v14, %d, v14\nv_add_u32 v14, v14, v7'%(16384-12*OPS,OPS))
        A('v_lshrrev_b32 v7, 5, v0\nv_add_u32 v7, s48, v7\nv_and_b32 v7, 3, v7\nv_mul_u32_u24 v7, %d, v7\ns_lshl_b32 s54, s10, 13\ns_add_u32 s54, s54, %d\nv_add3_u32 v14, v14, v7, s54'%(4*49152,OP+512))
    A('s_lshl_b32 s54, s53, 5\nv_mov_b32 v30, s54')
    A('v_mul_u32_u24 v20, %d, v2\nv_lshrrev_b32 v7, 1, v3\nv_add_u32 v20, v20, v7'%XOS)
    A('v_and_b32 v21, 7, v0\nv_mul_u32_u24 v21, %d, v21\nv_add_u32 v21, v21, v15'%XOS)
    A('s_lshl_b32 s54, s69, 2\ns_add_u32 s54, s54, s53\ns_lshl_b32 s54, s54, 13\ns_add_u32 s54, s54, %d'%(WP+2048))
    A('s_lshl_b32 s55, s69, 1\ns_add_u32 s55, s55, s67' if cfg.wrot else 's_mov_b32 s55, s67')
    A('v_bfe_u32 v22, v0, 1, 2')
    A('v_lshl_add_u32 v7, v22, 3, s55' if cfg.wrot else 'v_mov_b32 v7, s55')
    A('v_and_b32 v7, 31, v7\nv_lshlrev_b32 v22, 17, v22\nv_lshl_add_u32 v22, v7, 7, v22\nv_and_b32 v7, 1, v0\nv_lshl_add_u32 v22, v7, 6, v22\nv_add3_u32 v22, v22, v15, s54')
    A('s_lshl_b32 s54, s13, 12\ns_add_u32 s54, s54, %d\nv_add_u32 v23, s54, v1'%WP)
    def guarded(lines):
        A(lines)
    def drychk():
        pass
    for r in range(192,246): A('v_mov_b32 v%d, -1'%r)
    A('s_waitcnt lgkmcnt(0)')
    A('s_mov_b64 vcc, 0\ns_mov_b64 s[4:5], %d\ns_mov_b64 exec, s[4:5]'%(0 if cfg.warm else -1))
    wpl=['global_load_dwordx4 v[%d:%d], v23, %s offset:%d sc1'%(216+4*t,219+4*t,WS,1024*t) for t in range(4)]
    opl=['global_load_dwordx2 v[%d:%d], v25, %s offset:%d sc1'%(208+2*s_,209+2*s_,WS,OPS*s_+512) for s_ in range(4)]+['global_load_dwordx4 v[%d:%d], v19, %s offset:%d sc1'%(192+4*s_,195+4*s_,WS,OPS*s_) for s_ in range(4)]
    hbl=['global_load_dwordx4 v[%d:%d], v4, %s offset:%d sc1'%(216+4*t,219+4*t,WS,1024*t) for t in range(4)]
    abl=['global_load_dwordx4 v[%d:%d], v27, %s offset:%d sc1'%(216+4*t,219+4*t,WS,1024*t-3072) for t in range(7)]
    if cfg.pre:
        A('s_cmp_lg_u32 s70, 3\ns_cbranch_scc1 L_pre1')
        if cfg.pre&2: A('\n'.join(opl))
        A('s_cmp_lg_u32 s53, 0\ns_cbranch_scc1 L_pre3')
        if cfg.pre&1: A('\n'.join(wpl))
        A('s_branch L_pre3\nL_pre1:')
        if cfg.pre&4:
            A('s_cmp_lg_u32 s70, 1\ns_cbranch_scc1 L_pre2'); A('\n'.join(hbl)); A('L_pre2:\ns_cmp_lg_u32 s70, 2\ns_cbranch_scc1 L_pre3'); A('\n'.join(abl))
        A('L_pre3:')
    def wgml():
        A('v_max3_f32 v76, v64, v65, v66\nv_max_f32 v76, v76, v67')
        A('v_pk_add_f32 v[72:73], v[64:65], v[76:77] op_sel_hi:[1,0] neg_lo:[0,1] neg_hi:[0,1]')
        A('v_pk_add_f32 v[74:75], v[66:67], v[76:77] op_sel_hi:[1,0] neg_lo:[0,1] neg_hi:[0,1]')
        for i in range(4): A('v_exp_f32 v%d, v%d'%(72+i,72+i))
        A('v_pk_mul_f32 v[68:69], v[68:69], v[72:73]\nv_pk_fma_f32 v[68:69], v[70:71], v[74:75], v[68:69]')
    def wtsf(f,t):
        w=['v_max3_f32 v%d, v208, v210, v212'%t,'v_max_f32 v%d, v%d, v214'%(t,t)]+['v_sub_f32 v%d, v%d, v%d'%(f+i,208+2*i,t) for i in range(4)]+['v_exp_f32 v%d, v%d'%(f+i,f+i) for i in range(4)]
        w+=['v_mul_f32 v78, v%d, v209'%f]+['v_fmac_f32 v78, v%d, v%d'%(f+i,209+2*i) for i in range(1,4)]+['v_rcp_f32 v78, v78','s_nop 0']
        w+=['v_pk_mul_f32 v[%d:%d], v[%d:%d], v[78:79] op_sel_hi:[1,0]'%(f,f+1,f,f+1),'v_pk_mul_f32 v[%d:%d], v[%d:%d], v[78:79] op_sel_hi:[1,0]'%(f+2,f+3,f+2,f+3)]
        return w
    if EML:
        p0,stp,late,up=cfg.fb
        A('s_and_b32 s54, s49, 7\ns_lshl_b32 s54, s54, 9\ns_add_u32 s54, s54, %d\ns_add_u32 s40, s38, s54\ns_addc_u32 s41, s39, 0'%RNK)
        cps=cfg.cps or list(range(p0,cfg.NS-2,stp))
        def fbseg(lo,hi_):
            ps=[p for p in cps if lo<=p<hi_]
            if not ps: return
            l=newlab('nf'); A('s_cmp_lg_u32 s53, 1\ns_cbranch_scc1 %s'%l)
            for p in ps:
                lds_wait(31,L_PR,p,2)
                A('s_mov_b32 s43, 1\ns_atomic_add s43, s[40:41], 0x%x glc\ns_waitcnt lgkmcnt(0)\ns_add_u32 s43, s43, 1\ns_cmp_ge_u32 s43, %d\ns_cselect_b32 s45, 3, 0\ns_cmp_ge_u32 s43, %d\ns_cselect_b32 s43, 1, s45\nv_mov_b32 v13, s43\nds_write_b32 v11, v13 offset:%d'%(4096*cps.index(p),cfg.mid or 99,late,L_CNT+28))
            A('%s:'%l)
        fbseg(0,21)
        lds_wait(11,L_CNT+36,4,6)
        A('ds_read_b128 v[64:67], v30 offset:%d\nds_read_b128 v[68:71], v30 offset:%d\ns_waitcnt lgkmcnt(0)'%(L_MLW,L_MLW+16))
        wgml()
        A('v_add_f32 v77, v68, v69\ns_mov_b32 exec_lo, 0\ns_mov_b32 exec_hi, 1\ns_cmp_eq_u32 s12, 0')
        A('s_cbranch_scc1 L_mlf\nglobal_store_dwordx2 v18, v[76:77], %s\ns_branch L_mld\nL_mlf:\nglobal_store_dwordx2 v18, v[76:77], %s sc1\nL_mld:\ns_mov_b64 exec, -1'%(WS,WS))
        fbseg(21,27)
        A('s_cmp_lg_u32 s70, 3\ns_cbranch_scc1 L_nomg')
        progress(26)
        poll(opl[:4],None,sleep=16)
        A('\n'.join(wtsf(64,68)))
        A('L_nomg:')
        fbseg(27,99)
        A('s_waitcnt lgkmcnt(0)')
    elif cfg.fb:
        p0,stp,late,up=cfg.fb
        A('s_cmp_lg_u32 s53, 1\ns_cbranch_scc1 L_nofb')
        A('s_and_b32 s54, s49, 7\ns_lshl_b32 s54, s54, 9\ns_add_u32 s54, s54, %d\ns_add_u32 s40, s38, s54\ns_addc_u32 s41, s39, 0\ns_mov_b32 s42, %d\ns_mov_b32 s44, 0'%(RNK,p0))
        A('L_fb:')
        lds_wait(31,L_PR,'s42',2)
        A('s_mov_b32 s43, 1\ns_atomic_add s43, s[40:41], s44 glc\ns_waitcnt lgkmcnt(0)\ns_add_u32 s43, s43, 1\ns_cmp_lt_u32 s43, %d\ns_cselect_b32 s45, 2, 0\ns_cmp_ge_u32 s43, %d\ns_cselect_b32 s43, 1, s45\nv_mov_b32 v13, s43\nds_write_b32 v11, v13 offset:%d'%(cfg.early[0] if cfg.early else 0,late,L_CNT+28))
        A('s_add_u32 s44, s44, 4096\ns_add_u32 s42, s42, %d\ns_cmp_lt_u32 s42, %d\ns_cbranch_scc1 L_fb\ns_waitcnt lgkmcnt(0)'%(stp,cfg.NS if cfg.T2b else cfg.NS-2))
        assert (cfg.NS-p0)//stp+1<=20
        A('L_nofb:')
    if cfg.disp and cfg.NS<32:
        A('s_cmp_lg_u32 s53, 2\ns_cbranch_scc1 L_tail')
        A('s_lshl_b32 s54, s50, %d\ns_add_u32 s54, s54, %d\ns_add_u32 s40, s38, s54\ns_addc_u32 s41, s39, 0'%(cfg.cs,CTR))
        lds_wait(31,L_PR,cfg.NS-1,2)
        thr,small,keep2=cfg.gd or (0,cfg.disp,cfg.disp-cfg.LA)
        A('s_mov_b32 s42, 0\ns_mov_b32 s44, %d\ns_mov_b32 s45, %d'%(cfg.disp,cfg.disp-cfg.LA))
        A('L_dsp:')
        A('s_mov_b32 s43, s44\ns_atomic_add s43, s[40:41], 0x0 glc\nv_add_lshl_u32 v7, v0, s42, 2\ns_bfm_b64 s[46:47], s44, 0\ns_waitcnt lgkmcnt(0)\ns_add_u32 s43, s43, 1\ns_min_u32 s43, s43, 4096\ns_add_u32 s43, s43, %d\nv_add_u32 v13, s43, v0'%(cfg.NS*16))
        A('s_add_u32 s55, s43, s44\ns_cmp_ge_u32 s55, 512\ns_cbranch_scc1 L_dspd')
        A('s_mov_b64 exec, s[46:47]\nds_write_b32 v7, v13 offset:%d\ns_mov_b64 exec, -1'%(L_CNT+64))
        A('s_add_u32 s42, s42, s44\ns_cmp_ge_u32 s43, %d\ns_cselect_b32 s44, %d, s44\ns_cselect_b32 s45, %d, s45\ns_sub_i32 s55, s42, s45\ns_max_i32 s55, s55, 0'%(512-thr,small,keep2))
        lds_wait(11,L_CNT+24,'s55',1)
        A('s_branch L_dsp')
        A('L_dspd:')
        A('s_mov_b64 exec, 0xff\nds_write_b32 v7, v13 offset:%d\ns_mov_b64 exec, -1'%(L_CNT+64))
        A('s_waitcnt lgkmcnt(0)')
    A('L_tail:')
    stamp(7)
    guarded('s_barrier')
    def wstep(b0,s0,w,f0=72):
        o=[]
        for half in range(2):
            d='v[%d:%d]'%(b0+2*half,b0+2*half+1); src='v[%d:%d]'%(s0+4*w+2*half,s0+4*w+2*half+1); f='v[%d:%d]'%(f0+2*(w//2),f0+1+2*(w//2))
            if w==0: o.append('v_pk_mul_f32 %s, %s, %s op_sel_hi:[1,0]'%(d,src,f))
            elif w%2==0: o.append('v_pk_fma_f32 %s, %s, %s, %s op_sel_hi:[1,0,1]'%(d,src,f,d))
            else: o.append('v_pk_fma_f32 %s, %s, %s, %s op_sel:[0,1,0] op_sel_hi:[1,1,1]'%(d,src,f,d))
        return o
    def wsum2(b0,s0):
        for w in range(4): A('\n'.join(wstep(b0,s0,w)))
    def wsum(b0,half,s0=None):
        d='v[%d:%d]'%(b0+2*half,b0+2*half+1)
        s0=s0 or b0
        for w in range(4):
            src='v[%d:%d]'%(s0+4*w+2*half,s0+4*w+2*half+1)
            f='v[%d:%d]'%(72+2*(w//2),73+2*(w//2))
            if w==0: A('v_pk_mul_f32 %s, %s, %s op_sel_hi:[1,0]'%(d,src,f))
            elif w%2==0: A('v_pk_fma_f32 %s, %s, %s, %s op_sel_hi:[1,0,1]'%(d,src,f,d))
            else: A('v_pk_fma_f32 %s, %s, %s, %s op_sel:[0,1,0] op_sel_hi:[1,1,1]'%(d,src,f,d))
    if cfg.gleak is not None:
        k,lo,hi,msk=cfg.gleak
        A('s_cbranch_execz L_nogl\ns_cmp_lg_u32 s53, 0\ns_cbranch_scc1 L_nogl')
        if k==8: stamp(8); A('s_waitcnt lgkmcnt(0)')
        if k==200: A('s_getreg_b32 s72, hwreg(HW_REG_XCC_ID)\ns_sub_u32 s72, s72, s48\ns_and_b32 s72, s72, 7\ns_mul_i32 s72, s72, 50\nv_mov_b32 v33, s72')
        elif k>=100: A('v_mov_b32 v32, %d\nds_read_b32 v33, v32 offset:%d\ns_waitcnt lgkmcnt(0)'%(4*(k-100),L_ST))
        else: A('v_mov_b32 v33, s%d'%(72+2*k))
        A('v_not_b32 v33, v33\nv_mov_b32 v34, s72\nv_mov_b32 v32, 0x3bf000')
        A('s_mov_b64 exec, 1')
        if k!=8: A('global_atomic_umin v32, v34, %s'%WS)
        A('s_and_b32 s54, s2, %d\ns_sub_u32 s54, s54, %d\ns_cmp_ge_u32 s54, %d\ns_cbranch_scc1 L_nogl2'%(msk,lo,hi-lo))
        A('global_atomic_umin v32, v33, %s offset:256'%WS)
        A('L_nogl2:\ns_mov_b64 exec, -1\n'+('s_nop 2' if k==8 else 's_waitcnt vmcnt(0)'))
        A('L_nogl:')
    if not EML: A('ds_read_b128 v[64:67], v30 offset:%d\nds_read_b128 v[68:71], v30 offset:%d'%(L_MLW,L_MLW+16))
    for w in range(4):
        A('ds_read_b128 v[%d:%d], v17 offset:%d'%(32+4*w,35+4*w,L_OW+2048*w))
    stamp(8)
    if cfg.notail: A('s_branch L_fin')
    if EML:
        A('s_mov_b32 exec_hi, 0\ns_cmp_eq_u32 s12, 0')
        for w in range(4):
            A('s_waitcnt lgkmcnt(%d)'%(0 if cfg.diag else 3-w)); A('\n'.join(wstep(32,32,w)))
    else:
        A('s_and_b32 exec_hi, s4, 1')
        A('s_waitcnt lgkmcnt(%d)'%(0 if cfg.diag else 4))
        wgml()
        A('s_waitcnt lgkmcnt(0)')
        A('v_add_f32 v77, v68, v69')
        wsum2(32,32)
        A('s_cmp_eq_u32 s12, 0')
        A('v_mov_b32_dpp v32, v76 quad_perm:[0,1,2,3] row_mask:0x4 bank_mask:0xf')
        A('v_mov_b32_dpp v33, v77 quad_perm:[0,1,2,3] row_mask:0x4 bank_mask:0xf')
    if cfg.oloc:
        A('s_cbranch_scc1 L_opf\nglobal_store_dwordx4 v18, v[32:35], %s\ns_branch L_opd\nL_opf:\nglobal_store_dwordx4 v18, v[32:35], %s sc1\nL_opd:'%(WS,WS))
    else: guarded('global_store_dwordx4 v18, v[32:35], %s %s'%(WS,cfg.sf if cfg.opf is None else cfg.opf))
    tstamp(1)
    A('s_mov_b64 exec, s[4:5]')
    A('s_cmp_lg_u32 s70, 3\ns_cbranch_scc1 L_rdone')
    if cfg.EW<8:
        for i in range(cfg.EW,8): A(dmaw(i))
        A('s_waitcnt vmcnt(0)\ns_barrier')
        trw()
    wts=['v_max3_f32 v76, v208, v210, v212','v_max_f32 v76, v76, v214']+['v_sub_f32 v%d, v%d, v76'%(72+i,208+2*i) for i in range(4)]+['v_exp_f32 v%d, v%d'%(72+i,72+i) for i in range(4)]
    wts+=['v_mul_f32 v78, v72, v209']+['v_fmac_f32 v78, v%d, v%d'%(72+i,209+2*i) for i in range(1,4)]+['v_rcp_f32 v78, v78','s_nop 0']
    wts+=['v_pk_mul_f32 v[72:73], v[72:73], v[78:79] op_sel_hi:[1,0]','v_pk_mul_f32 v[74:75], v[74:75], v[78:79] op_sel_hi:[1,0]']
    hk={3:wts}
    for w in range(4): hk[4+w]=wstep(48,192,w)
    if EML: spoll(opl[4:],{w:wstep(48,192,w,64) for w in range(4)})
    elif cfg.wa=='ml':
        apoll(opl[:4],('c',1,0)); spoll(opl,hk)
    elif cfg.wa:
        apoll(opl,cfg.wa)
        for i in range(3,8): A('\n'.join(hk[i]))
    else: spoll(opl,hk)
    stamp(9)
    A('v_cvt_pk_bf16_f32 v48, v48, v49\nv_cvt_pk_bf16_f32 v49, v50, v51')
    A('ds_write_b64 v20, v[48:49] offset:%d'%L_XO)
    A('s_waitcnt lgkmcnt(0)'); guarded('s_barrier')
    if cfg.tdiag: tstamp(2); A('s_waitcnt lgkmcnt(0)')
    for s_ in range(4):
        A('ds_read_b128 v[%d:%d], v21 offset:%d'%(32+4*s_,35+4*s_,L_XO+64*s_))
    for s_ in range(4):
        A('s_waitcnt lgkmcnt(%d)'%(3-s_))
        for t in range(2):
            acc='v[%d:%d]'%(48+4*t,51+4*t); r=80+16*t+4*s_
            A('v_mfma_f32_16x16x32_bf16 %s, v[%d:%d], v[%d:%d], %s'%(acc,r,r+3,32+4*s_,35+4*s_,'0' if s_==0 else acc))
    A('s_mov_b32 exec_lo, 0x00ff00ff\ns_mov_b32 exec_hi, 0x00ff00ff')
    A('s_nop 4')
    A('global_store_dwordx4 v22, v[48:51], %s offset:-2048 %s'%(WS,cfg.sf))
    A('global_store_dwordx4 v22, v[52:55], %s offset:2048 %s'%(WS,cfg.sf))
    tstamp(3)
    A('s_mov_b64 exec, -1')
    A('s_cmp_lg_u32 s53, 0\ns_cbranch_scc1 L_fin')
    apoll(['global_load_dwordx4 v[%d:%d], v23, %s offset:%d sc1'%(216+4*t,219+4*t,WS,1024*t) for t in range(4)],cfg.pR)
    stamp(10)
    A('v_pk_add_f32 v[32:33], v[216:217], v[220:221]\nv_pk_add_f32 v[34:35], v[218:219], v[222:223]')
    A('v_pk_add_f32 v[40:41], v[224:225], v[228:229]\nv_pk_add_f32 v[42:43], v[226:227], v[230:231]')
    A('v_pk_add_f32 v[32:33], v[32:33], v[40:41]\nv_pk_add_f32 v[34:35], v[34:35], v[42:43]')
    A('s_nop 1\nv_permlane32_swap_b32 v32, v34\nv_permlane32_swap_b32 v33, v35')
    A('v_add_f32 v32, v32, v34\nv_add_f32 v33, v33, v35')
    A('s_nop 1\nv_permlane16_swap_b32 v32, v33\nv_add_f32 v32, v32, v33')
    dppadd(32,'row_ror:8')
    rbf(32)
    A('v_add_f32 v32, v32, v16\nv_mov_b32 v33, v32\ns_nop 1')
    A('v_permlane16_swap_b32 v32, v33\nv_cvt_pk_bf16_f32 v32, v32, v33\nv_min_u32 v32, -2, v32\nv_mov_b32 v33, v32\ns_nop 1')
    A('v_permlane32_swap_b32 v32, v33')
    A('global_store_dwordx2 v24, v[32:33], %s %s'%(WS,cfg.sf))
    tstamp(4)
    A('s_branch L_fin')
    A('L_rdone:')
    A('s_cmp_eq_u32 s70, 2\ns_cbranch_scc1 L_ffn2')
    A('s_cmp_eq_u32 s70, 0\ns_cbranch_scc1 L_fin')
    gate(cfg.G1)
    if cfg.lrot:
        assert cfg.E1%2==0
        i0=cfg.E1//2; n=8-i0
        if cfg.helper: A('s_and_b32 s6, s14, 1\ns_cmp_eq_u32 s70, 4\ns_cselect_b32 s6, 2, s6\ns_mul_i32 s6, s6, %d\ns_add_u32 s6, s6, %d'%(n//3,i0))
        else: A('s_and_b32 s6, s14, 1\ns_mul_i32 s6, s6, %d\ns_add_u32 s6, s6, %d'%(n//2,i0))
        for it in range(n):
            if cfg.helper and it==n-2*(n//3): A('s_cmp_eq_u32 s70, 4\ns_cbranch_scc1 L_fin')
            A('s_mul_i32 s7, s6, %d\nv_add_u32 v7, s7, v6\ns_lshl_b32 s7, s6, 10\ns_add_u32 s7, s7, s71\ns_add_u32 m0, s7, %d\ns_add_u32 s6, s6, 1'%(16*3584,L_WA))
            A('global_load_lds_dwordx4 v7, %s %s'%(WG,cfg.ff))
            A('s_add_u32 m0, s7, %d\ns_cmp_eq_u32 s6, 8\ns_cselect_b32 s6, %d, s6'%(L_WA+32768,i0))
            A('global_load_lds_dwordx4 v7, %s %s'%(WU,cfg.ff))
    else:
        for k in range(cfg.E1,16): A(dma1(k))
    A('s_mov_b32 exec_lo, 0xff00ff00\ns_mov_b32 exec_hi, 0xff00ff00')
    for r in range(216,232): A('v_mov_b32 v%d, 0x3f803f80'%r)
    A('s_mov_b64 exec, -1')
    def tr1():
        A('s_waitcnt vmcnt(%d)'%(4 if cfg.ovl else 0))
        for t in range(4):
            for s_ in range(4):
                r=96+16*t+4*s_
                A('ds_read_b64_tr_b16 v[%d:%d], v8 offset:%d'%(r,r+1,2048*s_+16*t))
                A('ds_read_b64_tr_b16 v[%d:%d], v8 offset:%d'%(r+2,r+3,2048*s_+16*t+256))
            A('s_waitcnt lgkmcnt(%d)'%(0 if t==3 else 4))
        tstamp(2)
    if cfg.ovl: A('s_waitcnt vmcnt(0)')
    else: tr1()
    hk={}
    for s_ in range(4):
        B='v[%d:%d]'%(216+4*s_,219+4*s_); hk[s_]=[]
        for t in (4,0,1,2,3):
            acc='v[%d:%d]'%(32+4*t,35+4*t)
            Aop=B if t==4 else 'v[%d:%d]'%(96+16*t+4*s_,99+16*t+4*s_)
            hk[s_].append('v_mfma_f32_16x16x32_bf16 %s, %s, %s, %s'%(acc,Aop,B,'0' if s_==0 else acc))
    ns_=cfg.f1s
    spoll(['global_load_dwordx4 v[%d:%d], v4, %s offset:%d sc1'%(216+4*t,219+4*t,WS,512*t) for t in range(4)],{i:(hk[i] if i<ns_ else []) for i in range(4)},
          pre='s_mov_b32 exec_lo, 0x00ff00ff\ns_mov_b32 exec_hi, 0x00ff00ff',post='s_mov_b64 exec, -1',once=tr1 if cfg.ovl else None)
    stamp(11)
    for i in range(ns_,4): A('\n'.join(hk[i]))
    A('s_nop 3')
    for t in (4,0,1,2,3):
        A('ds_write_b128 v10, v[%d:%d] offset:%d'%(32+4*t,35+4*t,L_XN+1024*t))
    tstamp(5)
    A('s_waitcnt lgkmcnt(0)\ns_barrier')
    if cfg.tdiag: tstamp(6); A('s_waitcnt lgkmcnt(0)')
    for p in range(4): A('ds_read2_b32 v[%d:%d], v%d offset0:0 offset1:32'%(52+2*p,53+2*p,164+p))
    for p in range(4):
        A('ds_read2_b32 v[%d:%d], v%d offset0:0 offset1:32'%(60+2*p,61+2*p,160+p))
        A('ds_read2_b32 v[%d:%d], v%d offset0:128 offset1:160'%(68+2*p,69+2*p,160+p))
    A('s_waitcnt lgkmcnt(8)')
    A('v_pk_add_f32 v[52:53], v[52:53], v[54:55]\nv_pk_add_f32 v[56:57], v[56:57], v[58:59]\nv_pk_add_f32 v[52:53], v[52:53], v[56:57]')
    A('v_mul_f32 v53, 0xbb000000, v53\nv_mul_f32 v52, 0x3b000000, v52')
    A('v_fma_f32 v52, -v53, v53, v52\nv_cvt_pk_bf16_f32 v53, 0, v53\nv_max_f32 v52, 0, v52\nv_cvt_pk_bf16_f32 v52, 0, v52\nv_add_f32 v52, 0x3727c5ac, v52')
    A('v_cvt_pk_bf16_f32 v52, 0, v52\nv_sqrt_f32 v52, v52')
    A('s_waitcnt lgkmcnt(0)')
    A('v_pk_add_f32 v[60:61], v[60:61], v[62:63]\nv_cvt_pk_bf16_f32 v52, 0, v52\nv_pk_add_f32 v[64:65], v[64:65], v[66:67]\nv_rcp_f32 v52, v52')
    A('v_pk_add_f32 v[68:69], v[68:69], v[70:71]\nv_pk_add_f32 v[72:73], v[72:73], v[74:75]')
    A('v_pk_add_f32 v[60:61], v[60:61], v[64:65]\nv_pk_add_f32 v[68:69], v[68:69], v[72:73]')
    A('v_fmac_f32 v60, v53, v61\nv_fmac_f32 v68, v53, v69\nv_mul_f32 v60, v60, v52\nv_mul_f32 v68, v68, v52')
    A('v_cvt_pk_bf16_f32 v32, 0, v60\nv_cvt_pk_bf16_f32 v36, 0, v68')
    A('v_mul_f32 v33, v32, v32\nv_mul_f32 v33, 0x3d372713, v33\nv_fma_f32 v33, v33, v32, v32')
    A('v_mul_f32 v33, 0xc0135761, v33\nv_exp_f32 v33, v33\ns_nop 0\nv_add_f32 v33, 1.0, v33\nv_rcp_f32 v33, v33\ns_nop 0\nv_mul_f32 v33, v33, v32')
    rbf(33)
    A('v_mul_f32 v33, v33, v36\nv_mov_b32 v34, v33\ns_nop 1\nv_permlane32_swap_b32 v33, v34')
    A('v_cvt_pk_bf16_f32 v33, v33, v34\nv_min_u32 v36, -2, v33')
    A('v_mov_b32 v32, v36\nv_mov_b32 v33, v36\ns_nop 0')
    A('v_mov_b32_dpp v32, v36 row_ror:8 row_mask:0xf bank_mask:0xc\nv_mov_b32_dpp v33, v36 row_ror:8 row_mask:0xf bank_mask:0x3')
    A('v_mov_b32 v34, v32\nv_mov_b32 v35, v33\ns_nop 0')
    A('v_permlane16_swap_b32 v32, v34\nv_permlane16_swap_b32 v33, v35')
    if cfg.nA<8: A('s_and_b32 exec_lo, s4, 0x%x\ns_mov_b32 exec_hi, 0'%((1<<(8*cfg.nA))-1))
    guarded('global_store_dwordx4 v27, v[32:35], %s %s'%(WS,cfg.sf))
    stamp(12)
    A('L_fin:')
    A('s_waitcnt vmcnt(0)')
    if cfg.diag:
        dump_stamps(14,8)
    A('s_endpgm')
    A('L_ffn2:')
    if cfg.d2: A('s_waitcnt vmcnt(0)')
    gate(cfg.G2)
    if cfg.lrot:
        n=14-cfg.E2
        assert not (cfg.E2 and cfg.E3)
        A('s_lshr_b32 s8, s15, 2\ns_cmp_eq_u32 s8, 3\ns_cselect_b32 s8, %d, %d\ns_sub_u32 s9, 14, s8'%(cfg.E3 or cfg.E2,cfg.E2))
        A('s_and_b32 s6, s15, 3\ns_mul_i32 s6, s6, s9\ns_lshr_b32 s6, s6, 2\ns_add_u32 s6, s6, s8')
        for it in range(n):
            if cfg.E3 and it==14-cfg.E3: A('s_cmp_lg_u32 s8, 0\ns_cbranch_scc1 L_d2d')
            A('s_lshl_b32 s7, s6, 15\nv_add_u32 v7, s7, v6\ns_lshl_b32 s7, s6, 10\ns_add_u32 s7, s7, s71\ns_add_u32 m0, s7, %d\ns_add_u32 s6, s6, 1'%L_WA)
            A('global_load_lds_dwordx4 v7, %s %s'%(WD,cfg.ff))
            A('s_cmp_eq_u32 s6, 14\ns_cselect_b32 s6, s8, s6')
        A('L_d2d:')
    else:
        for k in range(cfg.E2,14): A(dma2(k))
    def tr2(n):
        A('s_waitcnt vmcnt(%d)'%n)
        for t in range(7):
            for tt in range(2):
                r=96+8*t+4*tt
                A('ds_read_b64_tr_b16 v[%d:%d], v8 offset:%d'%(r,r+1,2048*t+16*tt))
                A('ds_read_b64_tr_b16 v[%d:%d], v8 offset:%d'%(r+2,r+3,2048*t+16*tt+128))
            if t%2==0: A('s_waitcnt lgkmcnt(%d)'%(0 if t==6 else 4))
        tstamp(2)
    if cfg.ovl:
        A('s_waitcnt vmcnt(0)\nglobal_load_dword v60, v29, %s sc1'%WS)
        tr2(1)
        A('s_waitcnt vmcnt(0)\nv_cmp_eq_u32 vcc, -1, v60\ns_cbranch_vccz L_hok')
    else: tr2(0)
    l=newlab('hp'); d=newlab('hd')
    A('s_mov_b32 s61, %d\n%s:\nglobal_load_dword v60, v29, %s sc1\ns_waitcnt vmcnt(0)\nv_cmp_eq_u32 vcc, -1, v60\ns_cbranch_vccz %s'%(cfg.spin,l,WS,d))
    A('s_sub_u32 s61, s61, 1\ns_cmp_lg_u32 s61, 0\ns_cbranch_scc1 %s\n%s:'%(l,d))
    if cfg.ovl: A('L_hok:')
    A('v_and_b32 v61, s60, v60\nv_lshlrev_b32 v60, 16, v60')
    hk={}
    for t in range(7):
        hk[t]=[]
        for tt in range(2):
            acc='v[%d:%d]'%(64+4*tt,67+4*tt); r=96+8*t+4*tt
            hk[t].append('v_mfma_f32_16x16x32_bf16 %s, v[%d:%d], v[%d:%d], %s'%(acc,r,r+3,216+4*t,219+4*t,'0' if t==0 else acc))
    spoll(abl,hk)
    stamp(10)
    A('s_nop 3')
    A('ds_write_b128 v10, v[64:67] offset:%d'%L_DP)
    A('ds_write_b128 v10, v[68:71] offset:%d'%(L_DP+1024))
    A('s_waitcnt lgkmcnt(0)'); guarded('s_barrier')
    tstamp(6)
    A('s_cmp_lg_u32 s53, 0\ns_cbranch_scc1 L_fin')
    for w in range(4):
        A('ds_read_b64 v[%d:%d], v26 offset:%d'%(32+4*w,33+4*w,L_DP+2048*w))
        A('ds_read_b64 v[%d:%d], v26 offset:%d'%(34+4*w,35+4*w,L_DP+2048*w+640))
    A('s_waitcnt lgkmcnt(0)')
    for w in range(4): A('v_pk_add_f32 v[%d:%d], v[%d:%d], v[%d:%d]'%(32+4*w,33+4*w,32+4*w,33+4*w,34+4*w,35+4*w))
    A('v_pk_add_f32 v[32:33], v[32:33], v[36:37]\nv_pk_add_f32 v[40:41], v[40:41], v[44:45]\nv_pk_add_f32 v[32:33], v[32:33], v[40:41]')
    A('v_cvt_pk_bf16_f32 v32, 0, v32\nv_cvt_pk_bf16_f32 v33, 0, v33')
    A('v_pk_add_f32 v[32:33], v[32:33], v[60:61]')
    A('v_cvt_pk_bf16_f32 v32, v32, v33')
    if cfg.odiag: stamp(12)
    guarded('global_store_dword v28, v32, %s %s'%(OUT,cfg.of))
    if cfg.odiag: A('s_waitcnt vmcnt(0)')
    drychk()
    if cfg.diag:
        stamp(13)
        if cfg.leak is not None:
            a,b=cfg.leak
            A('s_waitcnt lgkmcnt(0)')
            if cfg.gleak is not None:
                A('v_mov_b32 v8, 0x3bf000\nglobal_load_dword v9, v8, %s sc1\nglobal_load_dword v10, v8, %s offset:256 sc1\ns_waitcnt vmcnt(0)'%(WS,WS))
                if b==14: A('v_not_b32 v9, v10\nv_mov_b32 v10, s%d'%(72+2*13))
                elif b==13: A('v_mov_b32 v10, s%d'%(72+2*13))
                else: A('v_not_b32 v10, v10')
                A('v_sub_u32 v9, v10, v9\ns_nop 1\nv_readfirstlane_b32 s54, v9')
                if b==0: A('s_mov_b32 s54, 0')
            elif a>=100:
                A('v_mov_b32 v8, %d\nds_read_b32 v9, v8 offset:%d\nds_read_b32 v10, v8 offset:%d\ns_waitcnt lgkmcnt(0)\nv_sub_u32 v9, v9, v10\ns_nop 1\nv_readfirstlane_b32 s54, v9'%(0,L_ST+4*(b-100),L_ST+4*(a-100)))
            elif b>=100:
                A('v_mov_b32 v8, %d\nds_read_b32 v9, v8 offset:%d\ns_waitcnt lgkmcnt(0)\nv_readfirstlane_b32 s54, v9\ns_sub_u32 s54, s54, s%d'%(4*(b-100),L_ST,72+2*a))
            else: A('s_sub_u32 s54, s%d, s%d'%(72+2*b,72+2*a))
            A('s_mul_i32 s54, s54, %d\ns_min_u32 s54, s54, 60000'%cfg.mult)
            A('L_leak:')
            A('s_memrealtime s[68:69]\ns_waitcnt lgkmcnt(0)\ns_sub_u32 s55, s68, s%d\ns_cmp_lt_u32 s55, s54\ns_cbranch_scc1 L_leak'%(72+2*13))
        else:
            A('s_waitcnt lgkmcnt(0)\ns_mov_b32 s100, s92\ns_mov_b32 s92, 0')
            dump_stamps(15,8)
    A('L_end:')
    A('s_endpgm')
    A('L_last:')
    A('.section .rodata,"a"\n.p2align 6\n.amdhsa_kernel %s'%K)
    A('  .amdhsa_next_free_vgpr 256\n  .amdhsa_next_free_sgpr 102\n  .amdhsa_accum_offset 256\n  .amdhsa_group_segment_fixed_size 0\n  .amdhsa_kernarg_size 96')
    A('  .amdhsa_user_sgpr_count 2\n  .amdhsa_user_sgpr_kernarg_segment_ptr 1\n  .amdhsa_system_sgpr_workgroup_id_x 1')
    A('  .amdhsa_float_denorm_mode_32 3\n  .amdhsa_float_denorm_mode_16_64 3')
    A('.end_amdhsa_kernel')
    return '\n'.join(L)+'\n'

if __name__=='__main__':
    cfg=Cfg()
    out=sys.argv[1]
    for a in sys.argv[2:]:
        k,v=a.split('=',1); setattr(cfg,k,eval(v))
    s=gen(cfg)
    hdr=''.join(l for l in open('cdna_kernels/%s.s.ref'%NAME).readlines()[:13])
    open(out,'w').write(hdr+s)
```
